```python
import torch

def _softmax(x, axis=-1):
    return torch.softmax(x, dim=axis)

def _gelu(x):
    return torch.nn.functional.gelu(x, approximate='tanh')

def _silu(x):
    return torch.nn.functional.silu(x)

def _sigmoid(x):
    return torch.sigmoid(x)

def _layernorm(x, axis=-1, eps=1e-05):
    m = x.mean(dim=axis, keepdim=True)
    v = x.var(dim=axis, keepdim=True, unbiased=False)
    return (x - m) / torch.sqrt(v + eps)

def _scatter_add(tgt, idx, src, axis=0):
    return tgt.clone().index_add_(axis, idx, src)

def _segment_sum(src, seg, n):
    out = torch.zeros((n,) + src.shape[1:], dtype=src.dtype)
    return out.index_add_(0, seg, src)

def _pad(x, pw):
    flat = tuple((v for pair in reversed(pw) for v in pair))
    return torch.nn.functional.pad(x, flat)
kernel_name = 'interleave_layers__spectral_fnet__mixer_gmlp__prompt'

def setup_inputs():

    _w = lambda a: (lambda t: t.to(torch.bfloat16) if t.is_floating_point() else t)(torch.as_tensor(a))

    def _A_setup():
        B, S, D = (1, 2048, 512)
        ns = torch.arange(S)[:, None] * torch.arange(S)[None, :]
        nd = torch.arange(D)[:, None] * torch.arange(D)[None, :]
        Ws_re = torch.cos(-2.0 * torch.pi * ns / S).to(float)
        Ws_im = torch.sin(-2.0 * torch.pi * ns / S).to(float)
        Wd_re = torch.cos(-2.0 * torch.pi * nd / D).to(float)
        Wd_im = torch.sin(-2.0 * torch.pi * nd / D).to(float)
        return {'x': _w((lambda *s: torch.randn(*s, dtype=torch.bfloat16) * 0.05)(B, S, D)), 'dft_seq_re': _w(Ws_re), 'dft_seq_im': _w(Ws_im), 'dft_hid_re': _w(Wd_re), 'dft_hid_im': _w(Wd_im)}
    _A_in = _A_setup()

    def _B_setup():
        B, S, D, F = (1, 2048, 512, 1792)
        Fh = F // 2
        return {'x': _w((lambda *s: torch.randn(*s, dtype=torch.bfloat16) * 0.05)(B, S, D)), 'w_in': _w((lambda *s: torch.randn(*s, dtype=torch.bfloat16) * 1.6)(D, 2 * Fh)), 'w_sp': _w(0.01 * (lambda *s: torch.randn(*s, dtype=torch.bfloat16) * 1.6)(S, S)), 'b_sp': _w(1.0 + 0.01 * (lambda *s: torch.randn(*s, dtype=torch.bfloat16) * 1.6)(S)), 'w_out': _w((lambda *s: torch.randn(*s, dtype=torch.bfloat16) * 1.6)(Fh, D))}
    _B_in = _B_setup()
    return {'A_x': _A_in['x'], 'A_dft_seq_re': _A_in['dft_seq_re'], 'A_dft_seq_im': _A_in['dft_seq_im'], 'A_dft_hid_re': _A_in['dft_hid_re'], 'A_dft_hid_im': _A_in['dft_hid_im'], 'B_x': _B_in['x'], 'B_w_in': _B_in['w_in'], 'B_w_sp': _B_in['w_sp'], 'B_b_sp': _B_in['b_sp'], 'B_w_out': _B_in['w_out']}

def reference(A_x, A_dft_seq_re, A_dft_seq_im, A_dft_hid_re, A_dft_hid_im, B_x, B_w_in, B_w_sp, B_b_sp, B_w_out):

    def _A_ref(x, dft_seq_re, dft_seq_im, dft_hid_re, dft_hid_im):
        a = torch.einsum('bsd,ed->bse', x, dft_hid_re)
        b = torch.einsum('bsd,ed->bse', x, dft_hid_im)
        y = torch.einsum('ts,bse->bte', dft_seq_re, a) - torch.einsum('ts,bse->bte', dft_seq_im, b)
        return y

    def _B_ref(x, w_in, w_sp, b_sp, w_out):
        B, S, D = x.shape
        F = w_in.shape[-1]
        Fh = F // 2
        z = _gelu(torch.einsum('bsd,df->bsf', x, w_in))
        z1 = z[..., :Fh].clone()
        z2 = _layernorm(z[..., Fh:], axis=-1)
        g = torch.einsum('ts,bsf->btf', w_sp, z2) + b_sp[None, :, None]
        return torch.einsum('bsf,fd->bsd', z1 * g, w_out)
    x = A_x
    x = x + _A_ref(_layernorm(x, axis=-1), A_dft_seq_re, A_dft_seq_im, A_dft_hid_re, A_dft_hid_im)
    x = x + _B_ref(_layernorm(x, axis=-1), B_w_in, B_w_sp, B_b_sp, B_w_out)
    x = x + _A_ref(_layernorm(x, axis=-1), A_dft_seq_re, A_dft_seq_im, A_dft_hid_re, A_dft_hid_im)
    x = x + _B_ref(_layernorm(x, axis=-1), B_w_in, B_w_sp, B_b_sp, B_w_out)
    return x
```

```python
import re
import itertools

TRANS = ('v_exp_f32', 'v_log_f32', 'v_rcp_f32', 'v_rsq_f32', 'v_sqrt_f32', 'v_sin_f32', 'v_cos_f32')
RMW = ('v_fmac_f32', 'v_dot2c_f32_bf16', 'v_writelane_b32')
BOTH = ('v_swap_b32', 'v_permlane16_swap_b32', 'v_permlane32_swap_b32')
_REG = re.compile(r'^-?\|?([vas])(?:(\d+)|\[(\d+):(\d+)\])\|?$')


def v(i, n=1):
    return f'v{i}' if n == 1 else f'v[{i}:{i + n - 1}]'


def a(i, n=1):
    return f'a{i}' if n == 1 else f'a[{i}:{i + n - 1}]'


def s(i, n=1):
    return f's{i}' if n == 1 else f's[{i}:{i + n - 1}]'


def regs_of(op):
    op = op.strip()
    if op == 'vcc':
        return {('s', 'vcc')}
    if op == 'exec':
        return {('s', 'exec')}
    if op == 'm0':
        return {('s', 'm0')}
    m = _REG.match(op)
    if not m:
        return set()
    if m.group(2) is not None:
        return {(m.group(1), int(m.group(2)))}
    return {(m.group(1), i) for i in range(int(m.group(3)), int(m.group(4)) + 1)}


def split_ops(text):
    out, depth, cur = [], 0, ''
    for ch in text:
        if ch == '[':
            depth += 1
        if ch == ']':
            depth -= 1
        if ch == ',' and depth == 0:
            out.append(cur.strip())
            cur = ''
        else:
            cur += ch
    if cur.strip():
        out.append(cur.strip())
    return out


class Ins:
    def __init__(self, text, cond, tag=None):
        self.text, self.cond, self.tag = text, cond, tag
        self.need_vm = None
        self.need_lgkm = None
        self.nops = 0
        self.kind = 'other'
        self.defs, self.uses = set(), set()
        self.srcc, self.srcab, self.data = set(), set(), set()
        self.passes = 0
        self.op = ''
        self.wide = False
        self.lds_dma = False
        self.dpp = False
        if text.endswith(':') or text.startswith('.') or text.startswith(';'):
            self.kind = 'label'
            return
        if text.startswith('@'):
            self.kind = 'pseudo'
            return
        parts = text.split(None, 1)
        op = self.op = parts[0]
        ops = split_ops(parts[1]) if len(parts) > 1 else []
        if ops:
            last = ops[-1].split()
            mods = last[1:]
            ops[-1] = last[0]
        else:
            mods = []
        R = [regs_of(o) for o in ops]
        allr = set().union(*R) if R else set()
        if op.startswith('v_mfma'):
            self.kind = 'mfma'
            self.passes = 8 if '32x32' in op else 4
            self.defs = R[0]
            self.srcab = R[1] | R[2]
            self.srcc = R[3]
            self.uses = self.srcab | self.srcc
        elif op.startswith('v_'):
            self.kind = 'valu'
            self.dpp = '_dpp' in op
            if op in BOTH:
                self.defs = set(allr)
                self.uses = set(allr)
            else:
                self.defs = set(R[0])
                self.uses = set().union(*R[1:]) if len(R) > 1 else set()
                if op in RMW or self.dpp:
                    self.uses |= R[0]
                if op.startswith(('v_add_co', 'v_addc_co', 'v_sub_co')):
                    self.defs |= R[1]
                    self.uses = set().union(*R[2:])
        elif op.startswith(('buffer_', 'global_')):
            self.kind = 'vmem'
            self.lds_dma = 'lds' in mods or '_lds_' in op
            if self.lds_dma:
                self.uses = allr | {('s', 'm0')}
            elif '_load_' in op:
                self.defs = R[0]
                self.uses = set().union(*R[1:])
            else:
                self.uses = allr
                self.data = R[0] if op.startswith('buffer_') else R[1]
                self.wide = op.endswith(('x3', 'x4'))
                if '_atomic_' in op and 'sc0' in mods:
                    self.defs = R[0]
        elif op.startswith('ds_'):
            self.kind = 'ds'
            if op.startswith(('ds_read', 'ds_bpermute', 'ds_swizzle')):
                self.defs = R[0]
                self.uses = set().union(*R[1:])
            else:
                self.uses = allr
        elif op.startswith(('s_load', 's_memtime', 's_memrealtime')):
            self.kind = 'smem'
            self.defs = R[0]
            self.uses = set().union(*R[1:]) if len(R) > 1 else set()
        elif op == 's_waitcnt':
            self.kind = 'wait'
            m = re.search(r'vmcnt\((\d+)\)', text)
            self.w_vm = int(m.group(1)) if m else None
            m = re.search(r'lgkmcnt\((\d+)\)', text)
            self.w_lgkm = int(m.group(1)) if m else None
        elif op == 's_nop':
            self.kind = 'nop'
            self.n = int(ops[0]) + 1
        elif op.startswith('s_'):
            self.kind = 'salu'
            if op.startswith(('s_cmp', 's_cbranch', 's_branch', 's_barrier', 's_endpgm', 's_sleep', 's_setprio', 's_bitcmp')):
                self.uses = allr
            else:
                self.defs = set(R[0]) if R else set()
                self.uses = set().union(*R[1:]) if len(R) > 1 else set()
        else:
            raise ValueError('unknown instruction: ' + text)


def hazard(p, c):
    d = 0
    vec = lambda rs: {r for r in rs if r[0] in 'va'}
    sca = lambda rs: {r for r in rs if r[0] == 's'}
    if p.kind == 'mfma':
        big = p.passes == 8
        if c.kind == 'mfma':
            if p.defs & c.srcab:
                d = max(d, 12 if big else 8)
            if p.defs & c.srcc and not (p.defs == c.srcc and p.passes == c.passes):
                d = max(d, 10 if big else 6)
            if p.defs & c.defs and not (p.defs == c.srcc and p.passes == c.passes):
                d = max(d, 10 if big else 6)
        elif c.kind in ('valu', 'vmem', 'ds'):
            if p.defs & (c.uses | c.defs):
                d = max(d, 12 if big else 8)
            if p.srcc & c.defs:
                d = max(d, 7 if big else 3)
    if p.kind == 'valu':
        w = vec(p.defs)
        if c.kind == 'mfma' and w & c.uses:
            d = max(d, 2)
        if p.op in TRANS and c.kind in ('valu', 'vmem', 'ds') and w & c.uses:
            d = max(d, 1)
        if c.kind == 'valu' and w & c.uses:
            if c.dpp or c.op.startswith('v_permlane'):
                d = max(d, 2)
            if c.op.startswith(('v_readlane', 'v_readfirstlane')):
                d = max(d, 1)
        if p.op.startswith('v_dot') and w & (c.uses | c.defs) and not (c.op == p.op and w == c.defs):
            d = max(d, 3)
        ws = sca(p.defs)
        if ws & c.uses:
            if c.kind == 'vmem':
                d = max(d, 5)
            elif c.kind == 'valu':
                d = max(d, 4 if c.op.startswith(('v_readlane', 'v_writelane')) else 2)
            elif c.kind == 'salu':
                d = max(d, 1)
    if p.kind == 'vmem' and p.wide and p.data & c.defs:
        d = max(d, 2)
    if p.kind == 'salu' and ('s', 'm0') in p.defs and c.kind == 'vmem' and c.lds_dma:
        d = max(d, 1)
    return d


class Prog:
    def __init__(self):
        self.sec = {}
        self.order = []
        self.cur = None
        self.cond = frozenset()
        self.nlab = 0

    def section(self, name):
        self.sec[name] = []
        self.order.append(name)
        self.cur = self.sec[name]

    def __call__(self, text, tag=None):
        for line in text.split('\n'):
            line = line.strip()
            if line:
                self.cur.append(Ins(line, self.cond, tag))

    def label(self, base='L'):
        self.nlab += 1
        return f'{base}_{self.nlab}'

    def begin(self, tagname, skip_branch):
        lab = self.label('skip')
        self(f'{skip_branch} {lab}')
        self._stack = getattr(self, '_stack', [])
        self._stack.append((self.cond, lab))
        self.cond = self.cond | {tagname}

    def end(self):
        self.cond, lab = self._stack.pop()
        self(f'{lab}:')

    def wait_vm(self, tag):
        self.cur.append(Ins(f'@vm {tag}', self.cond))

    def wait_lgkm(self, tag):
        self.cur.append(Ins(f'@lgkm {tag}', self.cond))

    def traces(self, seq, free_tags):
        for combo in itertools.product((False, True), repeat=len(free_tags)):
            on = {t for t, b in zip(free_tags, combo) if b}
            tr = []
            done = False
            for name, tags in seq:
                for ins in self.sec[name]:
                    if ins.cond <= (on | tags):
                        tr.append(ins)
                        if ins.op == 's_endpgm':
                            done = True
                            break
                if done:
                    break
            yield tr

    def resolve(self, seq, free_tags):
        trs = list(self.traces(seq, free_tags))
        lo = lambda x, y: y if x is None else min(x, y)
        for tr in trs:
            vm, lg = [], []
            for ins in tr:
                if ins.kind == 'label':
                    continue
                if ins.kind == 'pseudo':
                    which, tag = ins.text[1:].split()
                    q = vm if which == 'vm' else lg
                    idx = [i for i, e in enumerate(q) if e[1] == tag]
                    if idx:
                        n = len(q) - idx[-1] - 1
                        if which == 'vm':
                            ins.need_vm = lo(ins.need_vm, n)
                        else:
                            ins.need_lgkm = lo(ins.need_lgkm, n)
                else:
                    touch = ins.uses | ins.defs
                    idx = [i for i, e in enumerate(vm) if e[0] & touch]
                    if idx:
                        ins.need_vm = lo(ins.need_vm, len(vm) - idx[-1] - 1)
                    idx = [i for i, e in enumerate(lg) if e[0] & touch]
                    if idx:
                        n = len(lg) - idx[-1] - 1
                        if any(e[2] for e in lg):
                            n = 0
                        ins.need_lgkm = lo(ins.need_lgkm, n)
                if ins.need_vm is not None:
                    ins.need_vm = min(ins.need_vm, 63)
                    del vm[:max(0, len(vm) - ins.need_vm)]
                if ins.need_lgkm is not None:
                    ins.need_lgkm = min(ins.need_lgkm, 15)
                    del lg[:max(0, len(lg) - ins.need_lgkm)]
                if ins.kind == 'wait':
                    if ins.w_vm is not None:
                        del vm[:max(0, len(vm) - ins.w_vm)]
                    if ins.w_lgkm is not None:
                        assert ins.w_lgkm == 0 or not any(e[2] for e in lg)
                        del lg[:max(0, len(lg) - ins.w_lgkm)]
                elif ins.kind == 'vmem':
                    vm.append((ins.defs, ins.tag))
                elif ins.kind == 'ds':
                    lg.append((ins.defs, ins.tag, False))
                elif ins.kind == 'smem':
                    lg.append((ins.defs, ins.tag, True))
        for tr in trs:
            hist = []
            pos = 0
            for ins in tr:
                if ins.kind == 'label':
                    continue
                has_wait = ins.need_vm is not None or ins.need_lgkm is not None
                pos += 1 if has_wait else 0
                if ins.kind == 'pseudo':
                    continue
                need = 0
                for p, ppos in hist:
                    d = hazard(p, ins)
                    if d:
                        need = max(need, d - (pos - ppos - 1))
                ins.nops = max(ins.nops, need)
                pos += ins.nops
                hist.append((ins, pos))
                if len(hist) > 16:
                    hist.pop(0)
                pos += ins.n if ins.kind == 'nop' else 1

    def text(self):
        out = []
        for name in self.order:
            for ins in self.sec[name]:
                w = []
                if ins.need_vm is not None:
                    w.append(f'vmcnt({ins.need_vm})')
                if ins.need_lgkm is not None:
                    w.append(f'lgkmcnt({ins.need_lgkm})')
                if w:
                    out.append('    s_waitcnt ' + ' '.join(w))
                if ins.nops:
                    out.append(f'    s_nop {ins.nops - 1}')
                if ins.kind == 'pseudo':
                    continue
                out.append(ins.text if ins.kind == 'label' else '    ' + ins.text)
        return '\n'.join(out) + '\n'

    def stats(self):
        n = {}
        for name in self.order:
            for ins in self.sec[name]:
                n[ins.kind] = n.get(ins.kind, 0) + 1
                n['nops'] = n.get('nops', 0) + (1 if ins.nops else 0)
        return n
```

```python
import sys
import struct
import numpy as np
from asmlib import Prog, v, a, s

NAME = 'interleave_layers__spectral_fnet__mixer_gmlp__prompt_kernel'
OPT = dict(prof=0)
for arg in sys.argv[2:]:
    k, val = arg.split('=')
    OPT[k] = int(val)
PROF = OPT['prof']

WI, WO, FLAGS, STATS, X2, PROFO = 0, 0x200000, 0x300000, 0x340000, 0x400000, 0x600000
LBASE, LSTRIDE = 0x800000, 0x1000000
V_, H_, X1_, Z_, U_ = 0, 0x200000, 0x400000, 0x600000, 0xA00000
WB, CT, SCR, LDS_BYTES = 0, 114688, 114688 + 22528, 163840
CT_FA, CT_TW, CT_FB, CT_M1 = 0, 6144, 10240, 14336

R_X, R_WIN, R_WSP, R_WOUT, R_OUT, R_WS, R_DBG, R_BSP, R_WL = 4, 8, 12, 16, 20, 24, 28, 32, 36
sW, sC, sB, sL, sTO = 40, 41, 42, 43, 44
sVst, sVld, sH, sK2, sXo, sXb, sZst, sZld, sUst, sUld = 45, 46, 47, 48, 49, 50, 51, 52, 53, 54
sFl, sSt, sWI, sWO, sWsp, sSelLo, sSelHi, sPidx, sOnes = 55, 56, 57, 58, 59, 60, 61, 62, 63
sArr, sRep, sS2, sS4, sS5, sB128, sDm = 64, 65, 66, 67, 68, 69, 70
sT = 72
sStamp = 90
vL16, vH, vK2, vXr, vVld, vVst, vBsp, vZst = 0, 1, 2, 3, 4, 5, 6, 7
vC2 = 8
vHw, vHr, vUw, vUr, vStl, vL8, vOut, vPoll, vArr, vProf, vGK = 16, 17, 18, 19, 20, 21, 22, 23, 24, 25, 26
vRed = 28
T = 32
XV = 40


def f2u(x):
    return struct.unpack('<I', struct.pack('<f', x))[0]


def bf16(x):
    u = np.ascontiguousarray(x, dtype=np.float32).view(np.uint32)
    return ((u + 0x7FFF + ((u >> 16) & 1)) >> 16).astype(np.uint32)


def const_table():
    l = np.arange(64)[:, None]
    j = np.arange(8)[None, :]
    nn, h = l & 31, l >> 5
    e1 = 16 * ((nn >> 2) & 1) + 4 * (nn >> 3) + (nn & 3)
    frags = []

    def pack(x):
        x = np.where(np.abs(x) < 1e-12, 0.0, x)
        b = bf16(x)
        return (b[:, 0::2] | (b[:, 1::2] << 16)).astype(np.uint32)
    ang = [2 * np.pi * ((16 * dh + 8 * h + j) * e1 % 32) / 32 for dh in range(2)]
    frags += [pack(np.cos(ang[0])), pack(np.cos(ang[1])), pack(np.sin(ang[0])), pack(np.sin(ang[1])),
              pack(-np.sin(ang[0])), pack(-np.sin(ang[1]))]
    d2 = 8 * (j >> 2) + 4 * h + (j & 3)
    tw = 2 * np.pi * (d2 * e1) / 512
    tc = np.cos(tw).astype(np.float32).view(np.uint32)
    ts = np.sin(tw).astype(np.float32).view(np.uint32)
    frags += [tc[:, :4], tc[:, 4:], ts[:, :4], ts[:, 4:]]
    ps = 2 * np.pi * (d2 * (nn & 15) % 16) / 16
    for row in range(2):
        m = ((nn >> 4) == row)
        frags += [pack(np.cos(ps) * m), pack(np.sin(ps) * m)]
    n, g = l & 15, l >> 4
    for jh in range(2):
        for ri in range(2):
            for ks in range(2):
                rho = 32 * ks + 16 * (j >> 2) + 4 * g + (j & 3)
                s1 = 16 * (rho >> 4) + 2 * (rho & 7) + ((rho >> 3) & 1)
                jj = 16 * jh + n
                th = 2 * np.pi * (s1 * jj % 64) / 64
                x = np.cos(th) if ri == 0 else np.where(jj == 0, (-1.0) ** s1, -np.sin(th))
                frags.append(pack(x))
    tab = np.concatenate([np.ascontiguousarray(f).reshape(-1) for f in frags])
    assert tab.size == 22 * 256
    return tab


p = Prog()
M16 = 'v_mfma_f32_16x16x32_bf16'
M32 = 'v_mfma_f32_32x32x16_bf16'


def stamp():
    if PROF:
        p(f's_memrealtime {s(sStamp, 2)}')
        p('s_waitcnt lgkmcnt(0)')
        p(f's_mov_b32 m0, {s(sPidx)}')
        p(f'v_writelane_b32 {v(vProf)}, {s(sStamp)}, m0')
        p(f's_add_u32 {s(sPidx)}, {s(sPidx)}, 1')


def srd(r, lo, hi, size):
    p(f's_mov_b32 {s(r)}, {s(lo)}')
    p(f's_and_b32 {s(r + 1)}, {s(hi)}, 0xffff')
    p(f's_mov_b32 {s(r + 2)}, {size:#x}')
    p(f's_mov_b32 {s(r + 3)}, 0x20000')


def if_wave0():
    p(f's_cmp_eq_u32 {s(sW)}, 0')
    p.begin('W0', 's_cbranch_scc0')


def if_layer(l):
    p(f's_cmp_eq_u32 {s(sL)}, {l}')
    p.begin(f'L{l}', 's_cbranch_scc0')


def spin_tail(top, done):
    p(f's_cbranch_vccz {done}')
    p(f's_sub_u32 {s(sTO)}, {s(sTO)}, 1')
    p(f's_cbranch_scc0 {top}')
    p(f's_mov_b32 {s(sTO)}, 0')
    p(f'{done}:')


def arrive(soff, nrep):
    p('s_barrier')
    if_wave0()
    p(f'v_mov_b32 {v(T)}, 1')
    p(f's_mov_b64 exec, {(1 << nrep) - 1:#x}')
    p(f'buffer_atomic_add {v(T)}, {v(vArr)}, {s(R_WS, 4)}, {s(soff)} offen sc1')
    p('s_mov_b64 exec, -1')
    p.end()


def poll(soff, sharded, need):
    if_wave0()
    top, done = p.label('poll'), p.label('pdone')
    p(f'{top}:')
    if sharded:
        p(f'buffer_load_dword {v(T)}, {v(vPoll)}, {s(R_WS, 4)}, {s(soff)} offen sc1')
    else:
        p(f'buffer_load_dword {v(T)}, off, {s(R_WS, 4)}, {s(soff)} sc1')
    p('s_waitcnt vmcnt(0)')
    p(f'v_cmp_ne_u32 vcc, {need}, {v(T)}')
    spin_tail(top, done)
    p.end()
    p('s_barrier')


def reduce_g(x, y):
    p(f'v_permlane16_swap_b32 {v(x)}, {v(y)}')
    p(f'v_add_f32 {v(x)}, {v(x)}, {v(y)}')
    p(f'v_mov_b32 {v(y)}, {v(x)}')
    p(f'v_permlane32_swap_b32 {v(x)}, {v(y)}')
    p(f'v_add_f32 {v(x)}, {v(x)}, {v(y)}')
    p(f'v_mov_b32 {v(y)}, {v(x)}')
    p(f'v_permlane16_swap_b32 {v(x)}, {v(y)}')


def finish_stats(x, n):
    y, m = x + 1, x + 2
    p(f'v_mul_f32 {v(m)}, {f2u(1.0 / n):#x}, {v(x)}')
    p(f'v_mul_f32 {v(y)}, {f2u(1.0 / n):#x}, {v(y)}')
    p(f'v_fma_f32 {v(y)}, -{v(m)}, {v(m)}, {v(y)}')
    p(f'v_max_f32 {v(y)}, 0, {v(y)}')
    p(f'v_add_f32 {v(y)}, {f2u(1e-5):#x}, {v(y)}')
    p(f'v_rsq_f32 {v(x)}, {v(y)}')
    p(f'v_mul_f32 {v(y)}, -{v(m)}, {v(x)}')


def norm_pack(src, n, st, tmp, dst):
    for i in range(0, n, 2):
        p(f'v_pk_fma_f32 {v(tmp + i, 2)}, {v(src + i, 2)}, {v(st, 2)}, {v(st, 2)} op_sel:[0,0,1] op_sel_hi:[1,0,1]')
    for i in range(0, n, 2):
        p(f'v_cvt_pk_bf16_f32 {v(dst + i // 2)}, {v(tmp + i)}, {v(tmp + i + 1)}')


def local_stats(src, n, out):
    sa, sq = out + 2, out + 4
    p(f'v_pk_add_f32 {v(sa, 2)}, {v(src, 2)}, {v(src + 2, 2)}')
    p(f'v_pk_mul_f32 {v(sq, 2)}, {v(src, 2)}, {v(src, 2)}')
    p(f'v_pk_fma_f32 {v(sq, 2)}, {v(src + 2, 2)}, {v(src + 2, 2)}, {v(sq, 2)}')
    for i in range(4, n, 2):
        p(f'v_pk_add_f32 {v(sa, 2)}, {v(sa, 2)}, {v(src + i, 2)}')
        p(f'v_pk_fma_f32 {v(sq, 2)}, {v(src + i, 2)}, {v(src + i, 2)}, {v(sq, 2)}')
    p(f'v_add_f32 {v(out)}, {v(sa)}, {v(sa + 1)}')
    p(f'v_add_f32 {v(out + 1)}, {v(sq)}, {v(sq + 1)}')


def unpack(src, n, dst):
    for i in range(n):
        p(f'v_lshlrev_b32 {v(dst + 2 * i)}, 16, {v(src + i)}')
        p(f'v_and_b32 {v(dst + 2 * i + 1)}, 0xffff0000, {v(src + i)}')


def publish_stats(area):
    p(f's_add_u32 {s(sT)}, {s(sSt)}, {s(sB128)}')
    if area:
        p(f's_add_u32 {s(sT)}, {s(sT)}, {area:#x}')
    p('s_mov_b64 exec, 0xffff')
    p(f'buffer_store_dwordx2 {v(T, 2)}, {v(vStl)}, {s(R_WS, 4)}, {s(sT)} offen sc1')
    p('s_mov_b64 exec, -1')


def gather_stats(area):
    p(f's_add_u32 {s(sT)}, {s(sSt)}, {area:#x}')
    top, done = p.label('gst'), p.label('gdone')
    p(f'{top}:')
    p(f'buffer_load_dwordx2 {v(T, 2)}, {v(vStl)}, {s(R_WS, 4)}, {s(sT)} offen sc1')
    p(f'buffer_load_dwordx2 {v(T + 2, 2)}, {v(vStl)}, {s(R_WS, 4)}, {s(sT)} offen offset:128 sc1')
    p('s_waitcnt vmcnt(0)')
    p(f'v_add_f32 {v(T)}, {v(T)}, {v(T + 2)}')
    p(f'v_add_f32 {v(T + 1)}, {v(T + 1)}, {v(T + 3)}')
    p(f'v_cmp_u_f32 vcc, {v(T)}, {v(T + 1)}')
    spin_tail(top, done)
    reduce_g(T, T + 1)


def w_dma_ops(sbase, extra):
    ops = []
    for grp in range(7):
        for i in range(4):
            o = []
            if i == 0:
                o.append(f's_add_u32 {s(sT + 1)}, {s(sbase)}, {extra + grp * 4096:#x}')
                o.append(f's_add_u32 m0, {s(sDm)}, {grp * 4096:#x}')
            o.append(f'buffer_load_dwordx4 {v(vL16)}, {s(R_WS, 4)}, {s(sT + 1)} offen offset:{i * 1024} lds')
            ops.append(o)
    return ops


def w_dma(sbase, extra):
    for o in w_dma_ops(sbase, extra):
        for x in o:
            p(x, tag='wdma')


def wsp_load(batch, reg):
    q, o = batch >> 1, batch & 1
    p(f's_add_u32 {s(sT)}, {s(sW)}, {q}')
    p(f's_and_b32 {s(sT)}, {s(sT)}, 3')
    p(f's_lshl_b32 {s(sT)}, {s(sT)}, 21')
    p(f's_add_u32 {s(sT)}, {s(sT)}, {s(sWsp)}')
    for i in range(8):
        p(f'buffer_load_dwordx4 {v(reg + 4 * i, 4)}, {v(vWspA)}, {s(R_WSP, 4)}, {s(sT)} offen offset:{128 * i + 64 * o}')


def wsp_perm(batch, reg):
    q, o = batch >> 1, batch & 1
    k = 0
    for ip in range(4):
        for al in range(8):
            t = T + (k & 7)
            k += 1
            lo, hi = reg + 4 * (2 * ip) + (al >> 1), reg + 4 * (2 * ip + 1) + (al >> 1)
            p(f'v_perm_b32 {v(t)}, {v(hi)}, {v(lo)}, {s(sSelHi if al & 1 else sSelLo)}')
            p(f'v_accvgpr_write_b32 {a((q * 16 + 8 * o + al) * 4 + ip)}, {v(t)}')


def wring_read(idx, ring, depth):
    base, off = (vL16, idx * 1024) if idx < 64 else (vL16hi, (idx - 64) * 1024)
    p(f'ds_read_b128 {v(ring + 4 * (idx % depth), 4)}, {v(base)} offset:{off}', tag=f'w{idx}')


def gemm_r(acc, nt, nks, act, ring, depth, first_c=None):
    total = nt * nks
    for idx in range(total):
        ks, t = divmod(idx, nt)
        if idx % 2 == 0:
            p.wait_lgkm(f'w{min(idx + 1, total - 1)}')
        c = v(acc + 4 * t, 4) if (ks or first_c) else '0'
        p(f'{M16} {v(acc + 4 * t, 4)}, {v(ring + 4 * (idx % depth), 4)}, {v(act + 4 * ks, 4)}, {c}')
        if idx + depth < total:
            wring_read(idx + depth, ring, depth)


def gelu(x, n, tmp, fill=None):
    fill = list(fill or [])
    for i in range(0, n, 4):
        t = tmp + (i & 4)
        for k in (0, 2):
            p(f'v_pk_mul_f32 {v(t + k, 2)}, {v(x + i + k, 2)}, {v(x + i + k, 2)}')
        for k in (0, 2):
            p(f'v_pk_fma_f32 {v(t + k, 2)}, {v(t + k, 2)}, {v(vGK, 2)}, {v(vGK, 2)} op_sel:[0,0,1] op_sel_hi:[1,0,1]')
        for k in (0, 2):
            p(f'v_pk_mul_f32 {v(t + k, 2)}, {v(t + k, 2)}, {v(x + i + k, 2)}')
        for k in range(4):
            p(f'v_exp_f32 {v(t + k)}, {v(t + k)}')
            if k & 1 and fill:
                for y in fill.pop(0):
                    p(y, tag='wdma')
        for k in (0, 2):
            p(f'v_pk_add_f32 {v(t + k, 2)}, {v(t + k, 2)}, 1.0 op_sel_hi:[1,0]')
        for k in range(4):
            p(f'v_rcp_f32 {v(t + k)}, {v(t + k)}')
            if k & 1 and fill:
                for y in fill.pop(0):
                    p(y, tag='wdma')
        for k in (0, 2):
            p(f'v_pk_mul_f32 {v(x + i + k, 2)}, {v(t + k, 2)}, {v(x + i + k, 2)}')
    for o in fill:
        for y in o:
            p(y, tag='wdma')


vWspA = 248
vL16hi = 252
p.section('pro')
p(f'{NAME}:')
p(f's_cmp_ge_u32 s2, 256')
p('s_cbranch_scc1 L_exit')
p(f's_load_dwordx2 {s(72, 2)}, s[0:1], 0')
p(f's_load_dwordx8 {s(76, 8)}, s[0:1], 48')
p(f's_load_dwordx4 {s(84, 4)}, s[0:1], 80')
p(f's_load_dwordx2 {s(88, 2)}, s[0:1], 96')
p(f's_getpc_b64 {s(92, 2)}')
p('L_pc:')
lane, n_, g_, t0, t1, t2, t3, tid = 100, 101, 102, 103, 104, 105, 106, 107
p(f'v_mov_b32 {v(tid)}, v0')
p(f'v_lshrrev_b32 {v(t0)}, 6, v0')
p(f'v_and_b32 {v(lane)}, 63, v0')
p(f'v_readfirstlane_b32 {s(sW)}, {v(t0)}')
p(f'v_and_b32 {v(n_)}, 15, {v(lane)}')
p(f'v_lshrrev_b32 {v(g_)}, 4, {v(lane)}')
p(f'v_lshlrev_b32 {v(vL16)}, 4, {v(lane)}')
p(f's_lshr_b32 {s(94)}, s2, 3')
p(f's_and_b32 {s(sB)}, {s(94)}, 7')
p(f's_and_b32 {s(95)}, s2, 7')
p(f's_lshl_b32 {s(95)}, {s(95)}, 1')
p(f's_lshr_b32 {s(96)}, {s(94)}, 4')
p(f's_add_u32 {s(95)}, {s(95)}, {s(96)}')
p(f's_sub_u32 {s(96)}, 32, {s(95)}')
p(f's_cmp_eq_u32 {s(95)}, 0')
p(f's_cselect_b32 {s(96)}, 16, {s(96)}')
p(f's_bitcmp1_b32 {s(94)}, 3')
p(f's_cselect_b32 {s(sC)}, {s(96)}, {s(95)}')
p(f's_mov_b32 {s(sL)}, 0')
p(f's_mov_b32 {s(sTO)}, 40000')
p(f's_mov_b32 {s(sPidx)}, 0')
p(f's_lshl_b32 {s(sB128)}, {s(sB)}, 7')
p(f's_mov_b32 {s(sOnes)}, 0x3f803f80')
p(f's_mov_b32 {s(sSelLo)}, 0x05040100')
p(f's_mov_b32 {s(sSelHi)}, 0x07060302')
p(f'v_and_b32 {v(t0)}, 7, {v(n_)}')
p(f'v_lshlrev_b32 {v(t0)}, 1, {v(t0)}')
p(f'v_lshrrev_b32 {v(t1)}, 3, {v(n_)}')
p(f'v_add_u32 {v(t0)}, {v(t0)}, {v(t1)}')
p(f'v_lshlrev_b32 {v(t0)}, 5, {v(t0)}')
p(f'v_add_u32 {v(t0)}, {s(sC)}, {v(t0)}')
p(f'v_lshlrev_b32 {v(vWspA)}, 12, {v(t0)}')
p(f'v_lshl_add_u32 {v(vWspA)}, {v(g_)}, 4, {v(vWspA)}')
p(f's_lshl_b32 {s(sWsp)}, {s(sW)}, 10')
p(f's_lshl_b32 {s(94)}, {s(sW)}, 9')
p(f'v_add_u32 {v(t0)}, {s(94)}, {v(t0)}')
p(f'v_lshlrev_b32 {v(t2)}, 10, {v(t0)}')
p(f'v_lshl_add_u32 {v(vOut)}, {v(g_)}, 5, {v(t2)}')
p(f'v_lshl_add_u32 {v(t2)}, {v(g_)}, 4, {v(t2)}')
p(f'v_lshlrev_b32 {v(t3)}, 1, {v(t0)}')
p('s_waitcnt lgkmcnt(0)')
srd(R_X, 72, 73, 2097152)
srd(R_WS, 88, 89, LBASE)
p('s_cmp_eq_u32 s2, 0')
p.begin('G0', 's_cbranch_scc0')
p(f'v_lshlrev_b32 {v(T)}, 8, {v(tid)}')
p(f'v_mov_b32 {v(T + 1)}, 0')
p(f's_mov_b32 {s(94)}, {FLAGS:#x}')
p(f's_mov_b32 {s(95)}, {FLAGS + 0x10000:#x}')
p(f'buffer_store_dword {v(T + 1)}, {v(T)}, {s(R_WS, 4)}, {s(94)} offen sc1', tag='z')
p(f'buffer_store_dword {v(T + 1)}, {v(T)}, {s(R_WS, 4)}, {s(95)} offen sc1', tag='z')
p.end()
XR = 120
p(f'buffer_load_dwordx4 {v(XR, 4)}, {v(vOut)}, {s(R_X, 4)}, {s(sB128)} offen')
p(f'buffer_load_dwordx4 {v(XR + 4, 4)}, {v(vOut)}, {s(R_X, 4)}, {s(sB128)} offen offset:16')
for i in range(1, 8):
    p(f's_add_u32 {s(94)}, {s(sB128)}, {128 * i}')
    p(f's_and_b32 {s(94)}, {s(94)}, 0x3ff')
    p(f'buffer_load_dwordx4 {v(XR + 8 * i, 4)}, {v(t2)}, {s(R_X, 4)}, {s(94)} offen')
    p(f'buffer_load_dwordx4 {v(XR + 8 * i + 4, 4)}, {v(t2)}, {s(R_X, 4)}, {s(94)} offen offset:64')
srd(R_WIN, 76, 77, 512 * 3584)
srd(R_WSP, 78, 79, 2048 * 4096)
srd(R_BSP, 80, 81, 4096)
srd(R_WOUT, 82, 83, 896 * 1024)
srd(R_OUT, 84, 85, 2097152)
srd(R_DBG, 86, 87, 256)
p(f's_add_u32 {s(88)}, {s(88)}, {LBASE:#x}')
p(f's_addc_u32 {s(89)}, {s(89)}, 0')
srd(R_WL, 88, 89, LSTRIDE)
if PROF:
    p(f'v_mov_b32 {v(vProf)}, 0')
stamp()
p(f'v_lshlrev_b32 {v(T)}, 7, {v(tid)}')
p(f'v_mov_b32 {v(T + 3)}, {s(93)}')
p(f'v_add_co_u32 {v(T + 2)}, vcc, {s(92)}, {v(T)}')
p(f'v_addc_co_u32 {v(T + 3)}, vcc, 0, {v(T + 3)}, vcc')
p(f'global_load_dword {v(T + 6)}, {v(T + 2, 2)}, off')
p(f's_add_u32 {s(92)}, {s(92)}, L_table-L_pc')
p(f's_addc_u32 {s(93)}, {s(93)}, 0')
p(f's_mul_i32 {s(94)}, {s(sW)}, 5632')
p(f'v_add_u32 {v(T)}, {s(94)}, {v(vL16)}')
p(f'v_mov_b32 {v(T + 5)}, {s(93)}')
p(f'v_add_co_u32 {v(T + 4)}, vcc, {s(92)}, {v(T)}')
p(f'v_addc_co_u32 {v(T + 5)}, vcc, 0, {v(T + 5)}, vcc')
p(f's_add_u32 m0, {s(94)}, {CT}')
for off in (0, 1024, 2048, 3072):
    p(f'global_load_lds_dwordx4 {v(T + 4, 2)}, off offset:{off}', tag='ct')
p(f'v_add_co_u32 {v(T + 4)}, vcc, 0x1000, {v(T + 4)}')
p(f'v_addc_co_u32 {v(T + 5)}, vcc, 0, {v(T + 5)}, vcc')
p(f's_add_u32 m0, {s(94)}, {CT + 4096}')
p(f'global_load_lds_dwordx4 {v(T + 4, 2)}, off', tag='ct')
p('s_mov_b32 exec_hi, 0')
p(f'global_load_lds_dwordx4 {v(T + 4, 2)}, off offset:1024', tag='ct')
p('s_mov_b64 exec, -1')
PR, PK = 64, 88
p(f'v_mul_u32_u24 {v(t1)}, {16 * 3584}, {v(g_)}')
p(f'v_lshl_add_u32 {v(t1)}, {v(n_)}, 1, {v(t1)}')
p(f's_and_b32 {s(94)}, {s(sC)}, 7')
p(f's_lshl_b32 {s(94)}, {s(94)}, 6')
p(f's_and_b32 {s(95)}, {s(sC)}, 8')
p(f's_add_u32 {s(94)}, {s(94)}, {s(95)}')
p(f's_mul_i32 {s(94)}, {s(94)}, 3584')
p(f's_lshr_b32 {s(95)}, {s(sC)}, 4')
p(f's_mul_i32 {s(95)}, {s(95)}, 1792')
p(f's_add_u32 {s(94)}, {s(94)}, {s(95)}')
p(f's_mul_i32 {s(95)}, {s(sB)}, 224')
p(f's_add_u32 {s(94)}, {s(94)}, {s(95)}')
p(f's_lshl_b32 {s(95)}, {s(sW)}, 5')
p(f's_add_u32 {s(94)}, {s(94)}, {s(95)}')
for j in range(8):
    p(f'buffer_load_ushort {v(PR + j)}, {v(t1)}, {s(R_WIN, 4)}, {s(94)} offen')
    p(f'buffer_load_ushort {v(PR + 8 + j)}, {v(t1)}, {s(R_WIN, 4)}, {s(94)} offen offset:128')
    if j < 7:
        p(f's_add_u32 {s(94)}, {s(94)}, 3584')
p(f'v_lshrrev_b32 {v(t1)}, 2, {v(n_)}')
p(f'v_lshlrev_b32 {v(t1)}, 4, {v(t1)}')
p(f'v_and_b32 {v(T)}, 3, {v(n_)}')
p(f'v_add_u32 {v(t1)}, {v(t1)}, {v(T)}')
p(f'v_lshlrev_b32 {v(t1)}, 1, {v(t1)}')
p(f'v_lshl_add_u32 {v(t1)}, {v(g_)}, 12, {v(t1)}')
p(f's_mul_i32 {s(94)}, {s(sC)}, 0x5556')
p(f's_lshr_b32 {s(94)}, {s(94)}, 16')
p(f's_lshl_b32 {s(94)}, {s(94)}, 4')
p(f's_lshl_b32 {s(95)}, {s(sC)}, 5')
p(f's_add_u32 {s(94)}, {s(94)}, {s(95)}')
p(f's_sub_u32 {s(95)}, {s(sC)}, 24')
p(f's_mul_i32 {s(95)}, {s(95)}, 224')
p(f's_add_u32 {s(95)}, {s(95)}, 96')
p(f's_cmp_lt_u32 {s(sC)}, 24')
p(f's_cselect_b32 {s(94)}, {s(94)}, {s(95)}')
p(f's_cselect_b32 {s(95)}, 16, 112')
p(f's_add_u32 {s(95)}, {s(95)}, {s(94)}')
p(f's_lshl_b32 {s(96)}, {s(sW)}, 3')
p(f's_add_u32 {s(96)}, {s(96)}, {s(sB128)}')
p(f's_lshl_b32 {s(94)}, {s(94)}, 10')
p(f's_lshl_b32 {s(95)}, {s(95)}, 10')
p(f's_add_u32 {s(94)}, {s(94)}, {s(96)}')
p(f's_add_u32 {s(95)}, {s(95)}, {s(96)}')
for j in range(8):
    p(f'buffer_load_ushort {v(PR + 16 + j)}, {v(t1)}, {s(R_WOUT, 4)}, {s(94 + (j >> 2))} offen offset:{(j & 3) * 1024}')
p(f'buffer_load_ushort {v(vBsp)}, {v(t3)}, {s(R_BSP, 4)}, 0 offen')
WS0, WS1, WS2, WS3 = 184, 216, 120, 152
wsp_load(0, WS0)
wsp_load(1, WS1)
p('s_cmp_eq_u32 s2, 0')
p.begin('G0', 's_cbranch_scc0')
p.wait_vm('z')
p('s_barrier')
p(f'v_mov_b32 {v(T + 1)}, 1')
p('s_mov_b64 exec, 1')
p(f'buffer_store_dword {v(T + 1)}, off, {s(R_DBG, 4)}, 0 sc1')
p('s_mov_b64 exec, -1')
p.end()
p(f's_lshr_b32 {s(94)}, {s(sB)}, 2')
p(f's_and_b32 {s(95)}, {s(sB)}, 3')
p(f's_lshl_b32 {s(sVst)}, {s(sC)}, 11')
p(f's_lshl_b32 {s(96)}, {s(sB)}, 8')
p(f's_add_u32 {s(sVst)}, {s(sVst)}, {s(96)}')
p(f's_sub_u32 {s(96)}, 32, {s(sC)}')
p(f's_and_b32 {s(96)}, {s(96)}, 31')
p(f's_cmp_eq_u32 {s(94)}, 0')
p(f's_cselect_b32 {s(96)}, {s(sC)}, {s(96)}')
p(f's_lshl_b32 {s(sVld)}, {s(96)}, 16')
p(f's_lshl_b32 {s(sH)}, {s(sC)}, 16')
p(f's_lshl_b32 {s(96)}, {s(95)}, 14')
p(f's_lshl_b32 {s(97)}, {s(94)}, 13')
p(f's_add_u32 {s(96)}, {s(96)}, {s(97)}')
p(f's_add_u32 {s(sK2)}, {s(sH)}, {s(96)}')
p(f's_mov_b32 {s(sXb)}, 0')
p(f's_mov_b32 {s(sXo)}, 16')
p(f's_lshl_b32 {s(96)}, {s(sB)}, 2')
p(f's_add_u32 {s(96)}, {s(96)}, {s(sW)}')
p(f's_mul_i32 {s(sZld)}, {s(96)}, 114688')
p(f's_add_u32 {s(sZld)}, {s(sZld)}, {Z_:#x}')
p(f's_and_b32 {s(96)}, {s(sC)}, 7')
p(f's_lshl_b32 {s(96)}, {s(96)}, 10')
p(f's_lshr_b32 {s(97)}, {s(sC)}, 3')
p(f's_lshl_b32 {s(97)}, {s(97)}, 8')
p(f's_add_u32 {s(96)}, {s(96)}, {s(97)}')
p(f's_add_u32 {s(sZst)}, {s(sZld)}, {s(96)}')
p(f's_lshl_b32 {s(96)}, {s(sC)}, 2')
p(f's_add_u32 {s(96)}, {s(96)}, {s(sW)}')
p(f's_mul_i32 {s(sUld)}, {s(96)}, 28672')
p(f's_add_u32 {s(sUld)}, {s(sUld)}, {U_:#x}')
p(f's_mul_i32 {s(97)}, {s(sB)}, 3584')
p(f's_add_u32 {s(sUst)}, {s(sUld)}, {s(97)}')
p(f's_lshl_b32 {s(sSt)}, {s(96)}, 10')
p(f's_add_u32 {s(sSt)}, {s(sSt)}, {STATS:#x}')
p(f's_mul_i32 {s(sDm)}, {s(sW)}, 28672')
p(f's_mul_i32 {s(sWI)}, {s(sB)}, 229376')
p(f's_add_u32 {s(sWI)}, {s(sWI)}, {s(sDm)}')
p(f's_mul_i32 {s(sWO)}, {s(sB)}, 114688')
p(f's_add_u32 {s(sWO)}, {s(sWO)}, {s(sDm)}')
p(f's_add_u32 {s(sWO)}, {s(sWO)}, {WO:#x}')
p(f's_and_b32 {s(96)}, s2, 15')
p(f's_lshl_b32 {s(96)}, {s(96)}, 8')
p(f's_add_u32 {s(sArr)}, {s(96)}, {FLAGS:#x}')
p(f's_and_b32 {s(96)}, s2, 7')
p(f's_lshl_b32 {s(96)}, {s(96)}, 12')
p(f's_add_u32 {s(sRep)}, {s(96)}, {FLAGS:#x}')
p(f's_lshl_b32 {s(96)}, {s(sC)}, 8')
p(f's_add_u32 {s(sS2)}, {s(96)}, {FLAGS + 0x8000:#x}')
p(f's_add_u32 {s(sS5)}, {s(96)}, {FLAGS + 0xA000:#x}')
p(f's_lshl_b32 {s(96)}, {s(sB)}, 8')
p(f's_add_u32 {s(sS4)}, {s(96)}, {FLAGS + 0xC000:#x}')
p(f'v_lshlrev_b32 {v(vL8)}, 3, {v(lane)}')
p(f'v_add_u32 {v(vL16hi)}, 0x10000, {v(vL16)}')
p(f'v_lshlrev_b32 {v(vPoll)}, 8, {v(n_)}')
p(f'v_and_b32 {v(vArr)}, 7, {v(lane)}')
p(f'v_lshlrev_b32 {v(vArr)}, 12, {v(vArr)}')
p(f'v_lshlrev_b32 {v(vStl)}, 3, {v(n_)}')
p(f'v_lshl_add_u32 {v(vStl)}, {v(g_)}, 8, {v(vStl)}')
p(f'v_mov_b32 {v(vGK)}, {f2u(-2.302208198144325 * 0.044715):#x}')
p(f'v_mov_b32 {v(vGK + 1)}, {f2u(-2.302208198144325):#x}')
p(f'v_lshrrev_b32 {v(T)}, 1, {v(n_)}')
p(f'v_lshlrev_b32 {v(T)}, 11, {v(T)}')
p(f'v_lshl_add_u32 {v(T)}, {v(g_)}, 5, {v(T)}')
p(f'v_and_b32 {v(T + 1)}, 1, {v(n_)}')
p(f'v_lshl_add_u32 {v(T)}, {v(T + 1)}, 4, {v(T)}')
p(f's_lshl_b32 {s(96)}, {s(sW)}, 14')
p(f'v_add_u32 {v(vH)}, {s(96)}, {v(T)}')
p(f'v_lshrrev_b32 {v(T)}, 5, {v(lane)}')
p(f'v_and_b32 {v(T + 1)}, 1, {v(g_)}')
p(f'v_lshlrev_b32 {v(T + 2)}, 6, {v(n_)}')
p(f'v_lshl_add_u32 {v(T + 2)}, {v(T)}, 5, {v(T + 2)}')
p(f'v_lshl_add_u32 {v(T + 3)}, {v(T + 1)}, 4, {v(T + 2)}')
p(f's_lshl_b32 {s(96)}, {s(sW)}, 11')
p(f'v_add_u32 {v(vK2)}, {s(96)}, {v(T + 3)}')
p(f's_lshl_b32 {s(96)}, {s(95)}, 4')
p(f's_add_u32 {s(96)}, {s(96)}, {s(94)}')
p(f's_lshl_b32 {s(96)}, {s(96)}, 5')
p(f's_add_u32 {s(98)}, {s(96)}, {s(sC)}')
p(f's_lshl_b32 {s(96)}, {s(sW)}, 7')
p(f's_add_u32 {s(96)}, {s(96)}, {s(98)}')
p(f's_lshl_b32 {s(96)}, {s(96)}, 10')
p(f'v_lshl_add_u32 {v(T + 3)}, {v(T + 1)}, 16, {v(T + 2)}')
p(f'v_add_u32 {v(vXr)}, {s(96)}, {v(T + 3)}')
p(f'v_mul_u32_u24 {v(T + 3)}, 1040, {v(T + 1)}')
p(f'v_lshl_add_u32 {v(T + 3)}, {v(T)}, 8, {v(T + 3)}')
p(f'v_lshl_add_u32 {v(T + 3)}, {v(n_)}, 3, {v(T + 3)}')
p(f's_mul_i32 {s(96)}, {s(sW)}, 2080')
p(f's_add_u32 {s(96)}, {s(96)}, {SCR}')
p(f'v_add_u32 {v(vUr)}, {s(96)}, {v(T + 3)}')
p(f'v_mul_u32_u24 {v(T + 3)}, 1040, {v(n_)}')
p(f'v_lshl_add_u32 {v(T + 3)}, {v(g_)}, 5, {v(T + 3)}')
p(f's_lshl_b32 {s(96)}, {s(sW)}, 8')
p(f's_add_u32 {s(96)}, {s(96)}, {SCR}')
p(f'v_add_u32 {v(vUw)}, {s(96)}, {v(T + 3)}')
p(f'v_lshlrev_b32 {v(T + 3)}, 14, {v(T + 1)}')
p(f'v_lshl_add_u32 {v(T + 3)}, {v(T)}, 13, {v(T + 3)}')
p(f'v_lshl_add_u32 {v(vZst)}, {v(n_)}, 4, {v(T + 3)}')
p(f'v_lshlrev_b32 {v(T + 3)}, 13, {v(g_)}')
p(f'v_lshl_add_u32 {v(T + 3)}, {v(n_)}, 4, {v(T + 3)}')
p(f's_lshl_b32 {s(96)}, {s(sW)}, 9')
p(f'v_add_u32 {v(vVld)}, {s(96)}, {v(T + 3)}')
p(f'v_lshlrev_b32 {v(T + 3)}, 16, {v(n_)}')
p(f'v_lshl_add_u32 {v(T + 3)}, {v(g_)}, 4, {v(T + 3)}')
p(f's_lshr_b32 {s(96)}, {s(sW)}, 1')
p(f's_lshl_b32 {s(96)}, {s(96)}, 20')
p(f's_and_b32 {s(97)}, {s(sW)}, 1')
p(f's_lshl_b32 {s(99)}, {s(97)}, 7')
p(f's_add_u32 {s(96)}, {s(96)}, {s(99)}')
p(f'v_add_u32 {v(vVst)}, {s(96)}, {v(T + 3)}')
p(f'v_mul_u32_u24 {v(T + 3)}, 160, {v(n_)}')
p(f'v_lshl_add_u32 {v(T + 3)}, {v(g_)}, 5, {v(T + 3)}')
p(f's_mul_i32 {s(96)}, {s(sW)}, 2560')
p(f's_add_u32 {s(96)}, {s(96)}, {SCR}')
p(f'v_add_u32 {v(vHw)}, {s(96)}, {v(T + 3)}')
p(f'v_lshrrev_b32 {v(T + 3)}, 2, {v(lane)}')
p(f'v_mul_u32_u24 {v(T + 3)}, 160, {v(T + 3)}')
p(f'v_and_b32 {v(T + 2)}, 3, {v(lane)}')
p(f'v_lshl_add_u32 {v(T + 3)}, {v(T + 2)}, 3, {v(T + 3)}')
p(f's_lshl_b32 {s(96)}, {s(97)}, 6')
p(f's_add_u32 {s(96)}, {s(96)}, {SCR}')
p(f'v_add_u32 {v(vHr)}, {s(96)}, {v(T + 3)}')
for q in range(1, 5):
    p(f's_add_u32 {s(96)}, {s(sW)}, {q}')
    p(f's_and_b32 {s(96)}, {s(96)}, 3')
    p(f's_mul_i32 {s(96)}, {s(96)}, 3072')
    p(f's_add_u32 {s(96)}, {s(96)}, {SCR + (1024 * (q - 1) if q < 4 else 0)}')
    p(f'v_add_u32 {v(vRed + q - 1)}, {s(96)}, {v(vL16)}')
p(f'v_and_b32 {v(T)}, 7, {v(n_)}')
p(f'v_lshlrev_b32 {v(T)}, 6, {v(T)}')
p(f'v_add_u32 {v(T)}, {s(98)}, {v(T)}')
p(f'v_lshlrev_b32 {v(T + 1)}, 2, {v(g_)}')
p(f'v_mul_u32_u24 {v(T + 1)}, {v(T + 1)}, {v(T)}')
p(f'v_lshrrev_b32 {v(T + 2)}, 3, {v(n_)}')
p(f'v_lshl_add_u32 {v(T + 1)}, {v(T + 2)}, 9, {v(T + 1)}')
p(f's_cmp_eq_u32 {s(94)}, 0')
p(f's_cselect_b32 {s(73)}, 1.0, -1.0')
p(f's_cselect_b32 {s(74)}, 0, 1.0')
p(f's_cselect_b32 {s(72)}, 1.0, 0')
p(f's_cmp_eq_u32 {s(sC)}, 0')
p(f's_cselect_b32 {s(72)}, {s(72)}, 1.0')
p(f's_cselect_b32 {s(73)}, 0, {s(73)}')
p(f's_cselect_b32 {s(74)}, {s(74)}, 0')
for k in range(8):
    cp = 16 * (k >> 2) + (k & 3)
    p(f'v_mad_u32_u24 {v(T + 2)}, {v(T)}, {cp}, {v(T + 1)}')
    p(f'v_and_b32 {v(T + 2)}, 0x7ff, {v(T + 2)}')
    p(f'v_cvt_f32_u32 {v(T + 2)}, {v(T + 2)}')
    p(f'v_mul_f32 {v(T + 2)}, {f2u(1.0 / 2048):#x}, {v(T + 2)}')
    p(f'v_cos_f32 {v(T + 3)}, {v(T + 2)}')
    p(f'v_sin_f32 {v(T + 4)}, {v(T + 2)}')
    p(f'v_mul_f32 {v(T + 5)}, {s(74)}, {v(T + 3)}')
    p(f'v_mul_f32 {v(T + 3)}, {s(72)}, {v(T + 3)}')
    p(f'v_fma_f32 {v(T + 4)}, {s(73)}, {v(T + 4)}, {v(T + 5)}')
    p(f'v_cvt_pk_bf16_f32 {v(vC2 + k)}, {v(T + 3)}, {v(T + 4)}')
p(f'v_mov_b32 {v(T)}, -1')
p(f'v_mov_b32 {v(T + 1)}, -1')
p('s_mov_b64 exec, 0xffff')
for k in range(3):
    p(f's_add_u32 {s(96)}, {s(sSt)}, {s(sB128)}')
    p(f's_add_u32 {s(96)}, {s(96)}, {k * 0x20000:#x}')
    p(f'buffer_store_dwordx2 {v(T, 2)}, {v(vStl)}, {s(R_WS, 4)}, {s(96)} offen sc1', tag='pub')
p('s_mov_b64 exec, -1')
for k in range(4):
    p(f'v_mov_b32 {v(T + 2 + k)}, 0')
for i in range(64):
    p(f'v_dot2c_f32_bf16 {v(T + 2 + (i & 1))}, {s(sOnes)}, {v(XR + i)}')
    p(f'v_dot2c_f32_bf16 {v(T + 4 + (i & 1))}, {v(XR + i)}, {v(XR + i)}')
unpack(XR, 8, XV)
p(f'v_add_f32 {v(T)}, {v(T + 2)}, {v(T + 3)}')
p(f'v_add_f32 {v(T + 1)}, {v(T + 4)}, {v(T + 5)}')
reduce_g(T, T + 1)
for k in range(12):
    p(f'v_lshl_or_b32 {v(PK + k)}, {v(PR + 2 * k + 1)}, 16, {v(PR + 2 * k)}')
p(f'v_lshlrev_b32 {v(vBsp)}, 16, {v(vBsp)}')
p(f's_mul_i32 {s(94)}, {s(sB)}, 229376')
p(f's_mul_i32 {s(95)}, {s(sC)}, 7168')
p(f's_add_u32 {s(94)}, {s(94)}, {s(95)}')
p(f's_lshl_b32 {s(95)}, {s(sW)}, 10')
p(f's_add_u32 {s(94)}, {s(94)}, {s(95)}')
p(f'buffer_store_dwordx4 {v(PK, 4)}, {v(vL16)}, {s(R_WS, 4)}, {s(94)} offen sc1', tag='pub')
p(f's_add_u32 {s(94)}, {s(94)}, 4096')
p(f's_cmp_lt_u32 {s(sW)}, 3')
p.begin('W012', 's_cbranch_scc0')
p(f'buffer_store_dwordx4 {v(PK + 4, 4)}, {v(vL16)}, {s(R_WS, 4)}, {s(94)} offen sc1', tag='pub')
p.end()
p(f's_mul_i32 {s(94)}, {s(sB)}, 114688')
p(f's_lshl_b32 {s(96)}, {s(sC)}, 12')
p(f's_add_u32 {s(94)}, {s(94)}, {s(96)}')
p(f's_add_u32 {s(94)}, {s(94)}, {s(95)}')
p(f's_add_u32 {s(94)}, {s(94)}, {WO:#x}')
p(f's_cmp_lt_u32 {s(sC)}, 28')
p.begin('C28', 's_cbranch_scc0')
p(f'buffer_store_dwordx4 {v(PK + 8, 4)}, {v(vL16)}, {s(R_WS, 4)}, {s(94)} offen sc1', tag='pub')
p.end()
p.wait_vm('ct')
p('s_barrier')

p.section('body')
p('L_layer:')
stamp()
HP, M1, AF, D1, VO = 56, 64, 80, 96, 112
p(f's_lshr_b32 {s(sT)}, {s(sW)}, 1')
p(f's_lshl_b32 {s(sT)}, {s(sT)}, 12')
p(f's_add_u32 {s(sT)}, {s(sT)}, {CT + CT_M1}')
p(f'v_add_u32 {v(T + 7)}, {s(sT)}, {v(vL16)}')
finish_stats(T, 512)
norm_pack(XV, 16, T, XV, HP)
p(f'ds_write_b128 {v(vHw)}, {v(HP, 4)}')
p(f'ds_write_b128 {v(vHw)}, {v(HP + 4, 4)} offset:16', tag='hw')
for k in range(4):
    p(f'ds_read_b128 {v(M1 + 4 * k, 4)}, {v(T + 7)} offset:{k * 1024}')
p.wait_lgkm('hw')
p('s_barrier')
for tile in range(2):
    for ks in range(2):
        for half in range(2):
            p(f'ds_read_b64_tr_b16 {v(AF + 8 * tile + 4 * ks + 2 * half, 2)}, {v(vHr)} offset:{(32 * ks + 16 * half) * 160 + 32 * tile}')
for tile in range(2):
    for ks in range(2):
        for ri in range(2):
            d = D1 + 8 * tile + 4 * ri
            p(f'{M16} {v(d, 4)}, {v(AF + 8 * tile + 4 * ks, 4)}, {v(M1 + 8 * ri + 4 * ks, 4)}, {v(d, 4) if ks else 0}')
for tile in range(2):
    for r in range(4):
        p(f'v_cvt_pk_bf16_f32 {v(VO + 4 * tile + r)}, {v(D1 + 8 * tile + r)}, {v(D1 + 8 * tile + 4 + r)}')
    p(f'buffer_store_dwordx4 {v(VO + 4 * tile, 4)}, {v(vVst)}, {s(R_WL, 4)}, {s(sVst)} offen offset:{64 * tile} sc1', tag='pub')
stamp()
if_layer(0)
wsp_load(2, WS2)
wsp_load(3, WS3)
wsp_perm(0, WS0)
wsp_perm(1, WS1)
if_wave0()
top, done = p.label('init'), p.label('idone')
p(f'{top}:')
p(f'buffer_load_dword {v(T)}, off, {s(R_DBG, 4)}, 0 sc1')
p('s_waitcnt vmcnt(0)')
p(f'v_cmp_ne_u32 vcc, 1, {v(T)}')
spin_tail(top, done)
p.end()
p.end()
p.wait_vm('pub')
arrive(sArr, 8)
stamp()
if_layer(0)
wsp_load(4, WS0)
wsp_load(5, WS1)
wsp_perm(2, WS2)
wsp_perm(3, WS3)
wsp_load(6, WS2)
wsp_load(7, WS3)
wsp_perm(4, WS0)
wsp_perm(5, WS1)
wsp_perm(6, WS2)
wsp_perm(7, WS3)
p.end()
FA, TW, FB, VR, D2, UP, XRES, Y = 40, 64, 80, 96, 160, 192, 200, 208
for k in range(14):
    p(f'ds_read_b128 {v(FA + 4 * k, 4)}, {v(vL16hi)} offset:{CT - 65536 + k * 1024}')
for k in range(4):
    p(f's_add_u32 {s(sT + 4 + k)}, {s(sVld)}, {(16 * (k >> 1) + 2 * (k & 1)) * 2048:#x}')
stamp()
poll(sRep, True, 16)
stamp()
for hi in range(2):
    for ks in range(2):
        for ii in range(4):
            r = VR + 32 * hi + 16 * ks + 4 * ii
            p(f'buffer_load_dwordx4 {v(r, 4)}, {v(vVld)}, {s(R_WL, 4)}, {s(sT + 4 + 2 * ks + (ii >> 1))} offen offset:{(ii & 1) * 2048 + hi * 256} sc1')
p(f'buffer_load_dwordx4 {v(XRES, 4)}, {v(vXr)}, {s(R_X, 4)}, {s(sXb)} offen sc1')
p(f'buffer_load_dwordx4 {v(XRES + 4, 4)}, {v(vXr)}, {s(R_X, 4)}, {s(sXo)} offen sc1')
w_dma(sWI, 114688)
for hi in range(2):
    for ks in range(2):
        r = VR + 32 * hi + 16 * ks
        for i in range(4):
            for j in range(i + 1, 4):
                p(f'v_swap_b32 {v(r + 4 * i + j)}, {v(r + 4 * j + i)}')
        for lo in range(4):
            d = D2 + 16 * hi + 4 * lo
            p(f'{M16} {v(d, 4)}, {v(r + 4 * lo, 4)}, {v(vC2 + 4 * ks, 4)}, {v(d, 4) if ks else 0}')
for hi in range(2):
    UP = (192, 240)[hi]
    for r in range(4):
        for lp in range(2):
            p(f'v_cvt_pk_bf16_f32 {v(UP + 2 * r + lp)}, {v(D2 + 16 * hi + 8 * lp + r)}, {v(D2 + 16 * hi + 8 * lp + 4 + r)}')
    p(f'ds_write_b128 {v(vUw)}, {v(UP, 4)} offset:{128 * hi}')
    p(f'ds_write_b128 {v(vUw)}, {v(UP + 4, 4)} offset:{128 * hi + 16}')
p('s_waitcnt lgkmcnt(0)')
p('s_barrier')
UA, DR, DI, TT, PF = 96, 112, 128, 144, 160
for ri in range(2):
    for dh in range(2):
        for half in range(2):
            p(f'ds_read_b64_tr_b16 {v(UA + 8 * ri + 4 * dh + 2 * half, 2)}, {v(vUr)} offset:{ri * 8320 + dh * 512 + half * 128}')
unpack(XRES, 8, Y)
for ri in range(2):
    for dh in range(2):
        first = ri == 0 and dh == 0
        fr = FA + 4 * ((2 if ri else 0) + dh)
        fi = FA + 4 * ((0 if ri else 4) + dh)
        p(f'{M32} {v(DR, 16)}, {v(UA + 8 * ri + 4 * dh, 4)}, {v(fr, 4)}, {0 if first else v(DR, 16)}')
        p(f'{M32} {v(DI, 16)}, {v(UA + 8 * ri + 4 * dh, 4)}, {v(fi, 4)}, {0 if first else v(DI, 16)}')
for row in range(2):
    for k in range(0, 8, 2):
        r = 8 * row + k
        p(f'v_pk_mul_f32 {v(TT + k, 2)}, {v(DI + r, 2)}, {v(TW + 8 + k, 2)}')
        p(f'v_pk_mul_f32 {v(TT + 8 + k, 2)}, {v(DR + r, 2)}, {v(TW + 8 + k, 2)}')
    for k in range(0, 8, 2):
        r = 8 * row + k
        p(f'v_pk_fma_f32 {v(TT + k, 2)}, {v(DR + r, 2)}, {v(TW + k, 2)}, {v(TT + k, 2)}')
        p(f'v_pk_fma_f32 {v(TT + 8 + k, 2)}, {v(DI + r, 2)}, {v(TW + k, 2)}, {v(TT + 8 + k, 2)} neg_lo:[0,0,1] neg_hi:[0,0,1]')
    for k in range(8):
        p(f'v_cvt_pk_bf16_f32 {v(PF + 8 * row + k)}, {v(TT + 2 * k)}, {v(TT + 2 * k + 1)}')
for k in range(4):
    p(f'{M32} {v(Y, 16)}, {v(PF + 4 * k, 4)}, {v(FB + 4 * k, 4)}, {v(Y, 16)}')
XO, HO = 224, 232
local_stats(Y, 16, T)
p(f'v_permlane32_swap_b32 {v(T)}, {v(T + 1)}')
p(f'v_add_f32 {v(T)}, {v(T)}, {v(T + 1)}')
for k, sh in enumerate((8, 4, 2, 1)):
    p(f'v_cvt_pk_bf16_f32 {v(XO + 2 * k)}, {v(Y + 4 * k)}, {v(Y + 4 * k + 1)}')
    p(f'v_cvt_pk_bf16_f32 {v(XO + 2 * k + 1)}, {v(Y + 4 * k + 2)}, {v(Y + 4 * k + 3)}')
    p(f'v_add_f32_dpp {v(T)}, {v(T)}, {v(T)} row_ror:{sh} row_mask:0xf bank_mask:0xf')
p(f'v_mov_b32 {v(T + 1)}, {v(T)}')
p(f's_add_u32 {s(sT)}, {s(sK2)}, {X1_:#x}')
p(f's_add_u32 {s(sT + 1)}, {s(sK2)}, {H_:#x}')
p(f'v_permlane32_swap_b32 {v(T)}, {v(T + 1)}')
finish_stats(T, 512)
norm_pack(Y, 16, T, Y, HO)
for o in range(2):
    p(f'buffer_store_dwordx4 {v(HO + 4 * o, 4)}, {v(vK2)}, {s(R_WL, 4)}, {s(sT + 1)} offen offset:{1024 * o} sc1')
for o in range(2):
    p(f'buffer_store_dwordx4 {v(XO + 4 * o, 4)}, {v(vK2)}, {s(R_WL, 4)}, {s(sT)} offen offset:{1024 * o} sc1')
stamp()
p('s_waitcnt vmcnt(0)')
arrive(sS2, 1)
stamp()
HF, Z2, Z1, WR, WD, GT = 40, 104, 136, 164, 12, 212
for i in range(WD):
    wring_read(i, WR, WD)
p(f's_add_u32 {s(sT + 2)}, {s(sH)}, {H_:#x}')
poll(sS2, False, 8)
stamp()
for ks in range(16):
    p(f'buffer_load_dwordx4 {v(HF + 4 * ks, 4)}, {v(vH)}, {s(R_WL, 4)}, {s(sT + 2)} offen offset:{128 * ks} sc1')
gemm_r(Z2, 7, 16, HF, WR, WD)
p('s_barrier')
stamp()
gelu(Z2, 28, GT, w_dma_ops(sWI, 0))
local_stats(Z2, 28, T)
reduce_g(T, T + 1)
publish_stats(0)
stamp()
p.wait_vm('wdma')
p('s_barrier')
for i in range(WD):
    wring_read(i, WR, WD)
gemm_r(Z1, 7, 16, HF, WR, WD)
SEL, ZP, ZT, ZO = 40, 48, 64, 96
p(f'v_and_b32 {v(SEL)}, 0xf0, {v(vL16)}')
p(f'v_lshrrev_b32 {v(SEL + 1)}, 2, {v(vL16)}')
p(f'v_and_b32 {v(SEL + 1)}, 0xc0, {v(SEL + 1)}')
p(f'v_sub_u32 {v(SEL)}, {v(SEL)}, {v(SEL + 1)}')
p(f'v_mov_b32 {v(SEL + 4)}, 0x3f80')
p(f'v_lshlrev_b32 {v(SEL + 4)}, {v(SEL)}, {v(SEL + 4)}')
p(f'v_lshrrev_b32 {v(SEL + 1)}, 5, {v(SEL)}')
p(f'v_cmp_eq_u32 vcc, 0, {v(SEL + 1)}')
p(f'v_cndmask_b32 {v(SEL + 2)}, 0, {v(SEL + 4)}, vcc')
p(f'v_cmp_eq_u32 vcc, 1, {v(SEL + 1)}')
p(f'v_cndmask_b32 {v(SEL + 3)}, 0, {v(SEL + 4)}, vcc')
for k in (0, 1, 4, 5):
    p(f'v_mov_b32 {v(SEL + k)}, 0')
p(f'v_mov_b32 {v(ZP + 14)}, 0')
p(f'v_mov_b32 {v(ZP + 15)}, 0')
stamp()
gather_stats(0)
stamp()
finish_stats(T, 896)
norm_pack(Z2, 28, T, Z2, ZP)
for ft in range(7):
    p(f'{M16} {v(ZT + 4 * ft, 4)}, {v(ZP + 4 * (ft >> 1), 4)}, {v(SEL + (0 if ft & 1 else 2), 4)}, 0')
for ft in range(7):
    for k in range(2):
        p(f'v_cvt_pk_bf16_f32 {v(ZO + 2 * ft + k)}, {v(ZT + 4 * ft + 2 * k)}, {v(ZT + 4 * ft + 2 * k + 1)}')
for pr in range(4):
    p(f's_add_u32 {s(sT)}, {s(sZst)}, {pr * 32768:#x}')
    for k in range(2):
        p(f'v_permlane16_swap_b32 {v(ZO + 4 * pr + k)}, {v(ZO + 4 * pr + 2 + k)}')
    if pr == 3:
        p('s_mov_b32 exec_lo, 0xffff')
        p('s_mov_b32 exec_hi, 0xffff')
    p(f'buffer_store_dwordx4 {v(ZO + 4 * pr, 4)}, {v(vZst)}, {s(R_WL, 4)}, {s(sT)} offen sc1')
p('s_mov_b64 exec, -1')
stamp()
gelu(Z1, 28, GT)
p('s_waitcnt vmcnt(0)')
arrive(sS4, 1)
stamp()
w_dma(sWO, 0)
p(f's_mov_b32 {s(sT + 2)}, {s(sZld)}')
poll(sS4, False, 32)
stamp()
ZD, AC, RT, UO = 32, 196, 228, 240


def zreg(fi):
    k = fi % ZD
    return 40 + 4 * k if k < 24 else 164 + 4 * (k - 24)


def zload(fi):
    if fi % 4 == 0 and fi:
        p(f's_add_u32 {s(sT + 2)}, {s(sT + 2)}, 4096')
    p(f'buffer_load_dwordx4 {v(zreg(fi), 4)}, {v(vL16)}, {s(R_WL, 4)}, {s(sT + 2)} offen offset:{(fi % 4) * 1024} sc1')


def k4_epilogue(ft):
    ac, buf = AC + 16 * (ft & 1), 12288 * (ft & 1)
    st1 = [f'ds_write_b128 {v(vRed + q - 1)}, {v(ac + 4 * q, 4)} offset:{buf}' for q in (1, 2, 3)]
    st1 += [f'v_add_f32 {v(ac + r)}, {v(vBsp)}, {v(ac + r)}' for r in range(4)]
    st2 = ['s_waitcnt lgkmcnt(0)', 's_barrier']
    st2 += [f'ds_read_b128 {v(RT + 4 * q, 4)}, {v(vRed + 3)} offset:{buf + 1024 * q}' for q in range(3)]
    st3 = [f'v_add_f32 {v(ac + r)}, {v(RT + 4 * q + r)}, {v(ac + r)}' for q in range(3) for r in range(4)]
    st3 += [f'v_mul_f32 {v(ac + r)}, {v(Z1 + 4 * ft + r)}, {v(ac + r)}' for r in range(4)]
    st3 += [f'v_cvt_pk_bf16_f32 {v(UO + 2 * (ft & 1) + k)}, {v(ac + 2 * k)}, {v(ac + 2 * k + 1)}' for k in range(2)]
    if ft == 6:
        st3 += [f'buffer_store_dwordx2 {v(UO, 2)}, {v(vL8)}, {s(R_WL, 4)}, {s(sUst)} offen offset:3072 sc1']
    elif ft & 1:
        st3 += [f'buffer_store_dwordx4 {v(UO, 4)}, {v(vL16)}, {s(R_WL, 4)}, {s(sUst)} offen offset:{1024 * (ft >> 1)} sc1']
    return st1, st2, st3


for fi in range(ZD):
    zload(fi)
for ft in range(7):
    fill = {}
    if ft:
        st1, st2, st3 = k4_epilogue(ft - 1)
        pos = 8
        for x in st1:
            fill.setdefault(pos, []).append(x)
            pos += 1
        pos = 22
        for x in st2:
            fill.setdefault(pos, []).append(x)
            pos += 1
        pos = 36
        for x in st3:
            fill.setdefault(pos, []).append(x)
            pos += 1
    for a2 in range(16):
        fi = ft * 16 + a2
        for q in range(4):
            d = AC + 16 * (ft & 1) + 4 * q
            p(f'{M16} {v(d, 4)}, {v(zreg(fi), 4)}, {a((q * 16 + a2) * 4, 4)}, {v(d, 4) if a2 else 0}')
            for x in fill.get(4 * a2 + q, []):
                p(x)
        if fi + ZD < 112:
            zload(fi + ZD)
for st in k4_epilogue(6):
    for x in st:
        p(x)
stamp()
p('s_waitcnt vmcnt(0)')
arrive(sS5, 1)
stamp()
UF, WR5, X1R, XP = 56, 168, 216, 224
p(f's_add_u32 {s(sT + 2)}, {s(sH)}, {s(sB128)}')
p(f's_add_u32 {s(sT + 3)}, {s(sT + 2)}, {X1_:#x}')
for o in range(2):
    p(f'buffer_load_dwordx4 {v(X1R + 4 * o, 4)}, {v(vH)}, {s(R_WL, 4)}, {s(sT + 3)} offen offset:{1024 * o} sc1')
for i in range(WD):
    wring_read(i, WR5, WD)
for bb in range(8):
    p(f's_add_u32 {s(sT + 4 + bb)}, {s(sUld)}, {3584 * bb}')
unpack(X1R, 8, XV)
poll(sS5, False, 8)
stamp()
for bb in range(8):
    for pp in range(3):
        p(f'buffer_load_dwordx4 {v(UF + 4 * (3 * bb + pp), 4)}, {v(vL16)}, {s(R_WL, 4)}, {s(sT + 4 + bb)} offen offset:{1024 * pp} sc1')
for bb in range(8):
    p(f'buffer_load_dwordx2 {v(UF + 96 + 2 * bb, 2)}, {v(vL8)}, {s(R_WL, 4)}, {s(sT + 4 + bb)} offen offset:3072 sc1')
gemm_r(XV, 4, 28, UF, WR5, WD, first_c=True)
for k in range(8):
    p(f'v_cvt_pk_bf16_f32 {v(XP + k)}, {v(XV + 2 * k)}, {v(XV + 2 * k + 1)}')
stamp()
if_layer(1)
for o in range(2):
    p(f'buffer_store_dwordx4 {v(XP + 4 * o, 4)}, {v(vOut)}, {s(R_OUT, 4)}, {s(sB128)} offen offset:{16 * o}')
if PROF:
    p('s_waitcnt vmcnt(0)')
    stamp()
    p(f's_lshl_b32 {s(sT)}, s2, 2')
    p(f's_add_u32 {s(sT)}, {s(sT)}, {s(sW)}')
    p(f's_lshl_b32 {s(sT)}, {s(sT)}, 8')
    p(f's_add_u32 {s(sT)}, {s(sT)}, {PROFO:#x}')
    p(f'v_lshrrev_b32 {v(T)}, 2, {v(vL16)}')
    p(f'buffer_store_dword {v(vProf)}, {v(T)}, {s(R_WS, 4)}, {s(sT)} offen')
p('L_exit:')
p('s_endpgm')
p.end()
local_stats(XV, 16, T)
reduce_g(T, T + 1)
publish_stats(0x40000)
p(f's_add_u32 {s(sT + 3)}, {s(sT + 2)}, {X2:#x}')
for o in range(2):
    p(f'buffer_store_dwordx4 {v(XP + 4 * o, 4)}, {v(vH)}, {s(R_WS, 4)}, {s(sT + 3)} offen offset:{1024 * o} sc1', tag='pub')
gather_stats(0x40000)
p(f's_mov_b32 {s(sL)}, 1')
p(f's_add_u32 {s(R_WL)}, {s(R_WL)}, {LSTRIDE:#x}')
p(f's_addc_u32 {s(R_WL + 1)}, {s(R_WL + 1)}, 0')
p(f's_mov_b32 {s(R_X)}, {s(R_WS)}')
p(f's_mov_b32 {s(R_X + 1)}, {s(R_WS + 1)}')
p(f's_mov_b32 {s(R_X + 2)}, {LBASE:#x}')
p(f's_add_u32 {s(sXb)}, {s(sK2)}, {X2:#x}')
p(f's_add_u32 {s(sXo)}, {s(sXb)}, 1024')
p(f'v_mov_b32 {v(vXr)}, {v(vK2)}')
p(f's_add_u32 {s(sSt)}, {s(sSt)}, 0x20000')
for r in (sArr, sRep, sS2, sS4, sS5):
    p(f's_add_u32 {s(r)}, {s(r)}, 0x10000')
p('s_branch L_layer')

p.resolve([('pro', set()), ('body', {'L0'}), ('body', {'L1'})], ['W0', 'G0', 'W012', 'C28'])

hdr = open('interleave_layers__spectral_fnet__mixer_gmlp__prompt.s.ref').read().split('\n')
out = [l for l in hdr if l.startswith(';') and '@launch' not in l][:14]
out.append(f'; @launch grid=(256,1,1) block=(256,1,1) lds={LDS_BYTES}')
out += ['.amdgcn_target "amdgcn-amd-amdhsa--gfx950"', '.text', f'.globl {NAME}', '.p2align 8', f'.type {NAME},@function']
out.append(p.text())
out.append('.p2align 8')
out.append('.type L_table,@object')
out.append('L_table:')
tab = const_table()
for i in range(0, tab.size, 8):
    out.append('.long ' + ','.join(f'{x:#x}' for x in tab[i:i + 8]))
out.append(f'.size L_table, {tab.size * 4}')
out += ['.section .rodata,"a"', '.p2align 6', f'.amdhsa_kernel {NAME}',
        '  .amdhsa_next_free_vgpr 512', '  .amdhsa_next_free_sgpr 102', '  .amdhsa_accum_offset 256',
        '  .amdhsa_group_segment_fixed_size 0', '  .amdhsa_kernarg_size 104', '  .amdhsa_user_sgpr_count 2',
        '  .amdhsa_user_sgpr_kernarg_segment_ptr 1', '  .amdhsa_system_sgpr_workgroup_id_x 1',
        '  .amdhsa_float_denorm_mode_32 3', '.end_amdhsa_kernel', '']
open(sys.argv[1], 'w').write('\n'.join(out))
print(p.stats(), file=sys.stderr)
```

```python
import re
import itertools

TRANS = ('v_exp_f32', 'v_log_f32', 'v_rcp_f32', 'v_rsq_f32', 'v_sqrt_f32', 'v_sin_f32', 'v_cos_f32')
RMW = ('v_fmac_f32', 'v_dot2c_f32_bf16', 'v_writelane_b32')
BOTH = ('v_swap_b32', 'v_permlane16_swap_b32', 'v_permlane32_swap_b32')
_REG = re.compile(r'^-?\|?([vas])(?:(\d+)|\[(\d+):(\d+)\])\|?$')


def v(i, n=1):
    return f'v{i}' if n == 1 else f'v[{i}:{i + n - 1}]'


def a(i, n=1):
    return f'a{i}' if n == 1 else f'a[{i}:{i + n - 1}]'


def s(i, n=1):
    return f's{i}' if n == 1 else f's[{i}:{i + n - 1}]'


def regs_of(op):
    op = op.strip()
    if op == 'vcc':
        return {('s', 'vcc')}
    if op == 'exec':
        return {('s', 'exec')}
    if op == 'm0':
        return {('s', 'm0')}
    m = _REG.match(op)
    if not m:
        return set()
    if m.group(2) is not None:
        return {(m.group(1), int(m.group(2)))}
    return {(m.group(1), i) for i in range(int(m.group(3)), int(m.group(4)) + 1)}


def split_ops(text):
    out, depth, cur = [], 0, ''
    for ch in text:
        if ch == '[':
            depth += 1
        if ch == ']':
            depth -= 1
        if ch == ',' and depth == 0:
            out.append(cur.strip())
            cur = ''
        else:
            cur += ch
    if cur.strip():
        out.append(cur.strip())
    return out


class Ins:
    def __init__(self, text, cond, tag=None):
        self.text, self.cond, self.tag = text, cond, tag
        self.need_vm = None
        self.need_lgkm = None
        self.nops = 0
        self.kind = 'other'
        self.defs, self.uses = set(), set()
        self.srcc, self.srcab, self.data = set(), set(), set()
        self.passes = 0
        self.op = ''
        self.wide = False
        self.lds_dma = False
        self.dpp = False
        if text.endswith(':') or text.startswith('.') or text.startswith(';'):
            self.kind = 'label'
            return
        if text.startswith('@'):
            self.kind = 'pseudo'
            return
        parts = text.split(None, 1)
        op = self.op = parts[0]
        ops = split_ops(parts[1]) if len(parts) > 1 else []
        if ops:
            last = ops[-1].split()
            mods = last[1:]
            ops[-1] = last[0]
        else:
            mods = []
        R = [regs_of(o) for o in ops]
        allr = set().union(*R) if R else set()
        if op.startswith('v_mfma'):
            self.kind = 'mfma'
            self.passes = 8 if '32x32' in op else 4
            self.defs = R[0]
            self.srcab = R[1] | R[2]
            self.srcc = R[3]
            self.uses = self.srcab | self.srcc
        elif op.startswith('v_'):
            self.kind = 'valu'
            self.dpp = '_dpp' in op
            if op in BOTH:
                self.defs = set(allr)
                self.uses = set(allr)
            else:
                self.defs = set(R[0])
                self.uses = set().union(*R[1:]) if len(R) > 1 else set()
                if op in RMW or self.dpp:
                    self.uses |= R[0]
                if op.startswith(('v_add_co', 'v_addc_co', 'v_sub_co')):
                    self.defs |= R[1]
                    self.uses = set().union(*R[2:])
        elif op.startswith(('buffer_', 'global_')):
            self.kind = 'vmem'
            self.lds_dma = 'lds' in mods or '_lds_' in op
            if self.lds_dma:
                self.uses = allr | {('s', 'm0')}
            elif '_load_' in op:
                self.defs = R[0]
                self.uses = set().union(*R[1:])
            else:
                self.uses = allr
                self.data = R[0] if op.startswith('buffer_') else R[1]
                self.wide = op.endswith(('x3', 'x4'))
                if '_atomic_' in op and 'sc0' in mods:
                    self.defs = R[0]
        elif op.startswith('ds_'):
            self.kind = 'ds'
            if op.startswith(('ds_read', 'ds_bpermute', 'ds_swizzle')):
                self.defs = R[0]
                self.uses = set().union(*R[1:])
            else:
                self.uses = allr
        elif op.startswith(('s_load', 's_memtime', 's_memrealtime')):
            self.kind = 'smem'
            self.defs = R[0]
            self.uses = set().union(*R[1:]) if len(R) > 1 else set()
        elif op == 's_waitcnt':
            self.kind = 'wait'
            m = re.search(r'vmcnt\((\d+)\)', text)
            self.w_vm = int(m.group(1)) if m else None
            m = re.search(r'lgkmcnt\((\d+)\)', text)
            self.w_lgkm = int(m.group(1)) if m else None
        elif op == 's_nop':
            self.kind = 'nop'
            self.n = int(ops[0]) + 1
        elif op.startswith('s_'):
            self.kind = 'salu'
            if op.startswith(('s_cmp', 's_cbranch', 's_branch', 's_barrier', 's_endpgm', 's_sleep', 's_setprio', 's_bitcmp')):
                self.uses = allr
            else:
                self.defs = set(R[0]) if R else set()
                self.uses = set().union(*R[1:]) if len(R) > 1 else set()
        else:
            raise ValueError('unknown instruction: ' + text)


def hazard(p, c):
    d = 0
    vec = lambda rs: {r for r in rs if r[0] in 'va'}
    sca = lambda rs: {r for r in rs if r[0] == 's'}
    if p.kind == 'mfma':
        big = p.passes == 8
        if c.kind == 'mfma':
            if p.defs & c.srcab:
                d = max(d, 12 if big else 8)
            if p.defs & c.srcc and not (p.defs == c.srcc and p.passes == c.passes):
                d = max(d, 10 if big else 6)
            if p.defs & c.defs and not (p.defs == c.srcc and p.passes == c.passes):
                d = max(d, 10 if big else 6)
        elif c.kind in ('valu', 'vmem', 'ds'):
            if p.defs & (c.uses | c.defs):
                d = max(d, 12 if big else 8)
            if p.srcc & c.defs:
                d = max(d, 7 if big else 3)
    if p.kind == 'valu':
        w = vec(p.defs)
        if c.kind == 'mfma' and w & c.uses:
            d = max(d, 2)
        if p.op in TRANS and c.kind in ('valu', 'vmem', 'ds') and w & c.uses:
            d = max(d, 1)
        if c.kind == 'valu' and w & c.uses:
            if c.dpp or c.op.startswith('v_permlane'):
                d = max(d, 2)
            if c.op.startswith(('v_readlane', 'v_readfirstlane')):
                d = max(d, 1)
        if p.op.startswith('v_dot') and w & (c.uses | c.defs) and not (c.op == p.op and w == c.defs):
            d = max(d, 3)
        ws = sca(p.defs)
        if ws & c.uses:
            if c.kind == 'vmem':
                d = max(d, 5)
            elif c.kind == 'valu':
                d = max(d, 4 if c.op.startswith(('v_readlane', 'v_writelane')) else 2)
            elif c.kind == 'salu':
                d = max(d, 1)
    if p.kind == 'vmem' and p.wide and p.data & c.defs:
        d = max(d, 2)
    if p.kind == 'salu' and ('s', 'm0') in p.defs and c.kind == 'vmem' and c.lds_dma:
        d = max(d, 1)
    return d


class Prog:
    def __init__(self):
        self.sec = {}
        self.order = []
        self.cur = None
        self.cond = frozenset()
        self.nlab = 0
        self.bg, self.bg_every, self.bg_cnt = [], 0, 0

    def section(self, name):
        self.sec[name] = []
        self.order.append(name)
        self.cur = self.sec[name]

    def __call__(self, text, tag=None):
        for line in text.split('\n'):
            line = line.strip()
            if line:
                self.cur.append(Ins(line, self.cond, tag))
                if self.bg_every and self.bg:
                    self.bg_cnt += 1
                    if self.bg_cnt % self.bg_every == 0:
                        self.bg_emit(1)

    def bg_emit(self, n=None):
        while self.bg and (n is None or n > 0):
            for text, tag in self.bg.pop(0):
                self.cur.append(Ins(text, self.cond, tag))
            n = None if n is None else n - 1

    def bg_on(self, every):
        self.bg_every, self.bg_cnt = every, 0

    def label(self, base='L'):
        self.nlab += 1
        return f'{base}_{self.nlab}'

    def begin(self, tagname, skip_branch):
        lab = self.label('skip')
        self(f'{skip_branch} {lab}')
        self._stack = getattr(self, '_stack', [])
        self._stack.append((self.cond, lab))
        self.cond = self.cond | {tagname}

    def end(self):
        self.cond, lab = self._stack.pop()
        self(f'{lab}:')

    def wait_vm(self, tag):
        self.cur.append(Ins(f'@vm {tag}', self.cond))

    def wait_lgkm(self, tag):
        self.cur.append(Ins(f'@lgkm {tag}', self.cond))

    def traces(self, seq, free_tags):
        for combo in itertools.product((False, True), repeat=len(free_tags)):
            on = {t if b else '!' + t for t, b in zip(free_tags, combo)}
            tr = []
            done = False
            for name, tags in seq:
                for ins in self.sec[name]:
                    if ins.cond <= (on | tags):
                        tr.append(ins)
                        if ins.op == 's_endpgm':
                            done = True
                            break
                if done:
                    break
            yield tr

    def resolve(self, seq, free_tags):
        trs = list(self.traces(seq, free_tags))
        lo = lambda x, y: y if x is None else min(x, y)
        for tr in trs:
            vm, lg = [], []
            for ins in tr:
                if ins.kind == 'label':
                    continue
                if ins.kind == 'pseudo':
                    which, tag = ins.text[1:].split()
                    q = vm if which == 'vm' else lg
                    idx = [i for i, e in enumerate(q) if e[1] == tag]
                    if idx:
                        n = len(q) - idx[-1] - 1
                        if which == 'vm':
                            ins.need_vm = lo(ins.need_vm, n)
                        else:
                            ins.need_lgkm = lo(ins.need_lgkm, n)
                else:
                    touch = ins.uses | ins.defs
                    idx = [i for i, e in enumerate(vm) if e[0] & touch]
                    if idx:
                        ins.need_vm = lo(ins.need_vm, len(vm) - idx[-1] - 1)
                    idx = [i for i, e in enumerate(lg) if e[0] & touch]
                    if idx:
                        n = len(lg) - idx[-1] - 1
                        if any(e[2] for e in lg):
                            n = 0
                        ins.need_lgkm = lo(ins.need_lgkm, n)
                if ins.need_vm is not None:
                    ins.need_vm = min(ins.need_vm, 63)
                    del vm[:max(0, len(vm) - ins.need_vm)]
                if ins.need_lgkm is not None:
                    ins.need_lgkm = min(ins.need_lgkm, 15)
                    del lg[:max(0, len(lg) - ins.need_lgkm)]
                if ins.kind == 'wait':
                    if ins.w_vm is not None:
                        del vm[:max(0, len(vm) - ins.w_vm)]
                    if ins.w_lgkm is not None:
                        assert ins.w_lgkm == 0 or not any(e[2] for e in lg)
                        del lg[:max(0, len(lg) - ins.w_lgkm)]
                elif ins.kind == 'vmem':
                    vm.append((ins.defs, ins.tag))
                elif ins.kind == 'ds':
                    lg.append((ins.defs, ins.tag, False))
                elif ins.kind == 'smem':
                    lg.append((ins.defs, ins.tag, True))
        for tr in trs:
            hist = []
            pos = 0
            for ins in tr:
                if ins.kind == 'label':
                    continue
                has_wait = ins.need_vm is not None or ins.need_lgkm is not None
                pos += 1 if has_wait else 0
                if ins.kind == 'pseudo':
                    continue
                need = 0
                for p, ppos in hist:
                    d = hazard(p, ins)
                    if d:
                        need = max(need, d - (pos - ppos - 1))
                ins.nops = max(ins.nops, need)
                pos += ins.nops
                hist.append((ins, pos))
                if len(hist) > 16:
                    hist.pop(0)
                pos += ins.n if ins.kind == 'nop' else 1

    def text(self):
        out = []
        for name in self.order:
            for ins in self.sec[name]:
                w = []
                if ins.need_vm is not None:
                    w.append(f'vmcnt({ins.need_vm})')
                if ins.need_lgkm is not None:
                    w.append(f'lgkmcnt({ins.need_lgkm})')
                if w:
                    out.append('    s_waitcnt ' + ' '.join(w))
                if ins.nops:
                    out.append(f'    s_nop {ins.nops - 1}')
                if ins.kind == 'pseudo':
                    continue
                out.append(ins.text if ins.kind == 'label' else '    ' + ins.text)
        return '\n'.join(out) + '\n'

    def stats(self):
        n = {}
        for name in self.order:
            for ins in self.sec[name]:
                n[ins.kind] = n.get(ins.kind, 0) + 1
                n['nops'] = n.get('nops', 0) + (1 if ins.nops else 0)
        return n
```

```python
import sys
import struct
import numpy as np
from asmlib import Prog, v, a, s

NAME = 'interleave_layers__spectral_fnet__mixer_gmlp__prompt_kernel'
OPT = dict(prof=0, k4mfma=1, k4load=1, k4epi=1, zd=12, pre3=8, pre5=8, dbl=0, nt=1, wspev=8, g2ev=11, z1a=0, z1arr=5,
           wotail=0, wopre=8)
for arg in sys.argv[2:]:
    k, val = arg.split('=')
    OPT[k] = int(val)
PROF = OPT['prof']
NT = ' nt' if OPT['nt'] else ''

WI, WO, FLAGS, STATS, X2, PROFO = 0, 0x200000, 0x300000, 0x340000, 0x400000, 0x600000
LBASE, LSTRIDE = 0x800000, 0x1000000
V_, H_, X1_, Z_, U_ = 0, 0x200000, 0x400000, 0x600000, 0xA00000
WB, CT, SCR, LDS_BYTES = 0, 114688, 114688 + 22528, 163840
CT_FA, CT_TW, CT_FB, CT_M1 = 0, 6144, 10240, 14336

R_X, R_WIN, R_WSP, R_WOUT, R_OUT, R_WS, R_DBG, R_BSP, R_WL = 4, 8, 12, 16, 20, 24, 28, 32, 36
sW, sC, sB, sL, sTO = 40, 41, 42, 43, 44
sVst, sVld, sH, sK2, sXo, sXb, sZst, sZld, sUst, sUld = 45, 46, 47, 48, 49, 50, 51, 52, 53, 54
sFl, sSt, sWI, sWO, sWsp, sSelLo, sSelHi, sPidx, sOnes = 55, 56, 57, 58, 59, 60, 61, 62, 63
sArr, sRep, sS2, sS4, sS5, sB128, sDm, sDo = 64, 65, 66, 67, 68, 69, 70, 71
sT = 72
sStamp = 90
vL16, vTw, vK2, vXr, vVld, vVst, vBsp, vZst = 0, 1, 2, 3, 4, 5, 6, 7
vC2 = 8
vHw, vHr, vUw, vUr, vStl, vL8, vTr, vPoll, vArr, vProf, vGK = 16, 17, 18, 19, 20, 21, 22, 23, 24, 25, 26
vRed = 28
T = 32
XV = 40


def f2u(x):
    return struct.unpack('<I', struct.pack('<f', x))[0]


def bf16(x):
    u = np.ascontiguousarray(x, dtype=np.float32).view(np.uint32)
    return ((u + 0x7FFF + ((u >> 16) & 1)) >> 16).astype(np.uint32)


def const_table():
    l = np.arange(64)[:, None]
    j = np.arange(8)[None, :]
    nn, h = l & 31, l >> 5
    e1 = 16 * ((nn >> 2) & 1) + 4 * (nn >> 3) + (nn & 3)
    frags = []

    def pack(x):
        x = np.where(np.abs(x) < 1e-12, 0.0, x)
        b = bf16(x)
        return (b[:, 0::2] | (b[:, 1::2] << 16)).astype(np.uint32)
    ang = [2 * np.pi * ((16 * dh + 8 * h + j) * e1 % 32) / 32 for dh in range(2)]
    frags += [pack(np.cos(ang[0])), pack(np.cos(ang[1])), pack(np.sin(ang[0])), pack(np.sin(ang[1])),
              pack(-np.sin(ang[0])), pack(-np.sin(ang[1]))]
    d2 = 8 * (j >> 2) + 4 * h + (j & 3)
    tw = 2 * np.pi * (d2 * e1) / 512
    tc = np.cos(tw).astype(np.float32).view(np.uint32)
    ts = np.sin(tw).astype(np.float32).view(np.uint32)
    frags += [tc[:, :4], tc[:, 4:], ts[:, :4], ts[:, 4:]]
    ps = 2 * np.pi * (d2 * (nn & 15) % 16) / 16
    for row in range(2):
        m = ((nn >> 4) == row)
        frags += [pack(np.cos(ps) * m), pack(np.sin(ps) * m)]
    n, g = l & 15, l >> 4
    for jq in range(4):
        for ks in range(2):
            rho = 32 * ks + 16 * (j >> 2) + 4 * g + (j & 3)
            s1 = 16 * (rho >> 4) + 2 * (rho & 7) + ((rho >> 3) & 1)
            jj = 8 * jq + (n >> 1)
            th = 2 * np.pi * (s1 * jj % 64) / 64
            x = np.where((n & 1) == 0, np.cos(th), np.where(jj == 0, (-1.0) ** s1, -np.sin(th)))
            frags.append(pack(x))
    tab = np.concatenate([np.ascontiguousarray(f).reshape(-1) for f in frags])
    assert tab.size == 22 * 256
    return tab


p = Prog()
M16 = 'v_mfma_f32_16x16x32_bf16'
M32 = 'v_mfma_f32_32x32x16_bf16'


STAMPS = []


def stamp(name):
    STAMPS.append(name)
    if PROF:
        p(f'{"s_memtime" if PROF == 2 else "s_memrealtime"} {s(sStamp, 2)}')
        p('s_waitcnt lgkmcnt(0)')
        p('s_mov_b32 s101, m0')
        p(f's_mov_b32 m0, {s(sPidx)}')
        p(f'v_writelane_b32 {v(vProf)}, {s(sStamp)}, m0')
        p('s_mov_b32 m0, s101')
        p(f's_add_u32 {s(sPidx)}, {s(sPidx)}, 1')


def srd(r, lo, hi, size):
    p(f's_mov_b32 {s(r)}, {s(lo)}')
    p(f's_and_b32 {s(r + 1)}, {s(hi)}, 0xffff')
    p(f's_mov_b32 {s(r + 2)}, {size:#x}')
    p(f's_mov_b32 {s(r + 3)}, 0x20000')


def if_wave0():
    p(f's_cmp_eq_u32 {s(sW)}, 0')
    p.begin('W0', 's_cbranch_scc0')


def if_layer(l):
    p(f's_cmp_eq_u32 {s(sL)}, {l}')
    p.begin(f'L{l}', 's_cbranch_scc0')


def spin_tail(top, done):
    p(f's_cbranch_vccz {done}')
    p(f's_sub_u32 {s(sTO)}, {s(sTO)}, 1')
    p(f's_cbranch_scc0 {top}')
    p(f's_mov_b32 {s(sTO)}, 0')
    p(f'{done}:')


def arrive(soff, nrep):
    p('s_barrier')
    if_wave0()
    p(f'v_mov_b32 {v(T)}, 1')
    p(f's_mov_b64 exec, {(1 << nrep) - 1:#x}')
    p(f'buffer_atomic_add {v(T)}, {v(vArr)}, {s(R_WS, 4)}, {s(soff)} offen sc1')
    p('s_mov_b64 exec, -1')
    p.end()


def poll(soff, sharded, need, tag=None):
    if_wave0()
    top, done = p.label('poll'), p.label('pdone')
    p(f'{top}:')
    if sharded:
        p(f'buffer_load_dword {v(T)}, {v(vPoll)}, {s(R_WS, 4)}, {s(soff)} offen sc1')
    else:
        p(f'buffer_load_dword {v(T)}, off, {s(R_WS, 4)}, {s(soff)} sc1')
    p('s_waitcnt vmcnt(0)')
    p(f'v_cmp_ne_u32 vcc, {need}, {v(T)}')
    spin_tail(top, done)
    p.end()
    if tag:
        p.wait_vm(tag)
    p('s_barrier')


def reduce_g(x, y):
    p(f'v_permlane16_swap_b32 {v(x)}, {v(y)}')
    p(f'v_add_f32 {v(x)}, {v(x)}, {v(y)}')
    p(f'v_mov_b32 {v(y)}, {v(x)}')
    p(f'v_permlane32_swap_b32 {v(x)}, {v(y)}')
    p(f'v_add_f32 {v(x)}, {v(x)}, {v(y)}')
    p(f'v_mov_b32 {v(y)}, {v(x)}')
    p(f'v_permlane16_swap_b32 {v(x)}, {v(y)}')


def finish_stats(x, n):
    y, m = x + 1, x + 2
    p(f'v_mul_f32 {v(m)}, {f2u(1.0 / n):#x}, {v(x)}')
    p(f'v_mul_f32 {v(y)}, {f2u(1.0 / n):#x}, {v(y)}')
    p(f'v_fma_f32 {v(y)}, -{v(m)}, {v(m)}, {v(y)}')
    p(f'v_max_f32 {v(y)}, 0, {v(y)}')
    p(f'v_add_f32 {v(y)}, {f2u(1e-5):#x}, {v(y)}')
    p(f'v_rsq_f32 {v(x)}, {v(y)}')
    p(f'v_mul_f32 {v(y)}, -{v(m)}, {v(x)}')


def norm_pack(src, n, st, tmp, dst):
    for i in range(0, n, 2):
        p(f'v_pk_fma_f32 {v(tmp + i, 2)}, {v(src + i, 2)}, {v(st, 2)}, {v(st, 2)} op_sel:[0,0,1] op_sel_hi:[1,0,1]')
    for i in range(0, n, 2):
        p(f'v_cvt_pk_bf16_f32 {v(dst + i // 2)}, {v(tmp + i)}, {v(tmp + i + 1)}')


def local_stats(src, n, out):
    sa, sq = out + 2, out + 4
    p(f'v_pk_add_f32 {v(sa, 2)}, {v(src, 2)}, {v(src + 2, 2)}')
    p(f'v_pk_mul_f32 {v(sq, 2)}, {v(src, 2)}, {v(src, 2)}')
    p(f'v_pk_fma_f32 {v(sq, 2)}, {v(src + 2, 2)}, {v(src + 2, 2)}, {v(sq, 2)}')
    for i in range(4, n, 2):
        p(f'v_pk_add_f32 {v(sa, 2)}, {v(sa, 2)}, {v(src + i, 2)}')
        p(f'v_pk_fma_f32 {v(sq, 2)}, {v(src + i, 2)}, {v(src + i, 2)}, {v(sq, 2)}')
    p(f'v_add_f32 {v(out)}, {v(sa)}, {v(sa + 1)}')
    p(f'v_add_f32 {v(out + 1)}, {v(sq)}, {v(sq + 1)}')


def unpack(src, n, dst):
    for i in range(n):
        p(f'v_lshlrev_b32 {v(dst + 2 * i)}, 16, {v(src + i)}')
        p(f'v_and_b32 {v(dst + 2 * i + 1)}, 0xffff0000, {v(src + i)}')


def publish_stats(area):
    p(f's_add_u32 {s(sT)}, {s(sSt)}, {s(sB128)}')
    if area:
        p(f's_add_u32 {s(sT)}, {s(sT)}, {area:#x}')
    p('s_mov_b64 exec, 0xffff')
    p(f'buffer_store_dwordx2 {v(T, 2)}, {v(vStl)}, {s(R_WS, 4)}, {s(sT)} offen sc1')
    p('s_mov_b64 exec, -1')


def gather_stats(area):
    p(f's_add_u32 {s(sT)}, {s(sSt)}, {area:#x}')
    top, done = p.label('gst'), p.label('gdone')
    p(f'{top}:')
    p(f'buffer_load_dwordx2 {v(T, 2)}, {v(vStl)}, {s(R_WS, 4)}, {s(sT)} offen sc1')
    p(f'buffer_load_dwordx2 {v(T + 2, 2)}, {v(vStl)}, {s(R_WS, 4)}, {s(sT)} offen offset:128 sc1')
    p('s_waitcnt vmcnt(0)')
    p(f'v_add_f32 {v(T)}, {v(T)}, {v(T + 2)}')
    p(f'v_add_f32 {v(T + 1)}, {v(T + 1)}, {v(T + 3)}')
    p(f'v_cmp_u_f32 vcc, {v(T)}, {v(T + 1)}')
    spin_tail(top, done)
    reduce_g(T, T + 1)


def w_dma_ops(sbase, extra):
    ops = []
    for half in range(2):
        for i in range(14):
            o = []
            if i % 4 == 0:
                off = half * 57344 + i * 1024
                o.append((f's_add_u32 m0, {s(sDm)}, {off:#x}', None))
                o.append((f's_add_u32 {s(sDo)}, {s(sbase)}, {extra + off:#x}', None))
            o.append((f'buffer_load_dwordx4 {v(vL16)}, {s(R_WS, 4)}, {s(sDo)} offen offset:{(i % 4) * 1024} lds', f'wdma{half}'))
            ops.append(o)
    return ops


def wsp_dma_ops(batch):
    q, ih = batch >> 1, batch & 1
    ops = []
    for il in range(4):
        for rh in range(2):
            imm = 512 * ih + 128 * il
            o = [(f's_add_u32 m0, {s(sWsp)}, {1024 + 8192 * (batch % 3) + 2048 * il + 1024 * rh - imm}', None)]
            if not ops:
                o += [(f's_add_u32 {s(sDo)}, {s(sW)}, {q}', None), (f's_and_b32 {s(sDo)}, {s(sDo)}, 3', None),
                      (f's_lshl_b32 {s(sDo)}, {s(sDo)}, 21', None)]
            o.append((f'buffer_load_dwordx4 {v(vWspA + rh)}, {s(R_WSP, 4)}, {s(sDo)} offen offset:{imm}{NT if batch < 2 else ""} lds', f'wsp{batch}'))
            ops.append(o)
    return ops


def wsp_dma(batch):
    p.bg = wsp_dma_ops(batch)
    p.bg_emit()


def wsp_read(batch, reg):
    p.wait_vm(f'wsp{batch}')
    for il in range(4):
        for o in range(2):
            p(f'ds_read_b128 {v(reg + 4 * (2 * il + o), 4)}, {v(vWspR + o)} offset:{8192 * (batch % 3) + 2048 * il}', tag=f'wr{batch}')


def wsp_perm(batch, reg):
    q, ih = batch >> 1, batch & 1
    k = 0
    for ipl in range(2):
        for o in range(2):
            for al in range(8):
                t = T + (k & 7)
                k += 1
                lo, hi = reg + 4 * (4 * ipl + o) + (al >> 1), reg + 4 * (4 * ipl + 2 + o) + (al >> 1)
                p(f'v_perm_b32 {v(t)}, {v(hi)}, {v(lo)}, {s(sSelHi if al & 1 else sSelLo)}')
                p(f'v_accvgpr_write_b32 {a((q * 16 + 8 * o + al) * 4 + 2 * ih + ipl)}, {v(t)}')


def wring_read(idx, ring, depth):
    base, off = (vL16, idx * 1024) if idx < 64 else (vL16hi, (idx - 64) * 1024)
    p(f'ds_read_b128 {v(ring + 4 * (idx % depth), 4)}, {v(base)} offset:{off}', tag=f'w{idx}')


def gemm_r(acc, nt, ks0, ks1, act, ring, depth, first_c=None, loads=(), preload=True, last=None):
    loads = list(loads)
    lo, hi = nt * ks0, nt * ks1
    if preload:
        for idx in range(lo, min(lo + depth, last or hi)):
            wring_read(idx, ring, depth)
    for idx in range(lo, hi):
        ks, t = divmod(idx, nt)
        if (idx - lo) % 2 == 0:
            p.wait_lgkm(f'w{min(idx + 1, hi - 1)}')
        c = v(acc + 4 * t, 4) if (ks or first_c) else '0'
        p(f'{M16} {v(acc + 4 * t, 4)}, {v(ring + 4 * (idx % depth), 4)}, {v(act + 4 * ks, 4)}, {c}')
        if idx + depth < (last or hi):
            wring_read(idx + depth, ring, depth)
        if t == 1 and loads:
            p(loads.pop(0))
    assert not loads


def gelu(x, n, tmp):
    for i in range(0, n, 4):
        t = tmp + (i & 4)
        for k in (0, 2):
            p(f'v_pk_mul_f32 {v(t + k, 2)}, {v(x + i + k, 2)}, {v(x + i + k, 2)}')
        for k in (0, 2):
            p(f'v_pk_fma_f32 {v(t + k, 2)}, {v(t + k, 2)}, {v(vGK, 2)}, {v(vGK, 2)} op_sel:[0,0,1] op_sel_hi:[1,0,1]')
        for k in (0, 2):
            p(f'v_pk_mul_f32 {v(t + k, 2)}, {v(t + k, 2)}, {v(x + i + k, 2)}')
        for k in range(4):
            p(f'v_exp_f32 {v(t + k)}, {v(t + k)}')
        for k in (0, 2):
            p(f'v_pk_add_f32 {v(t + k, 2)}, {v(t + k, 2)}, 1.0 op_sel_hi:[1,0]')
        for k in range(4):
            p(f'v_rcp_f32 {v(t + k)}, {v(t + k)}')
        for k in (0, 2):
            p(f'v_pk_mul_f32 {v(x + i + k, 2)}, {v(t + k, 2)}, {v(x + i + k, 2)}')


vWspA, vWspR = 244, 246
vHw2, vXr2 = 250, 251
vL16hi = 252
p.section('pro')
p(f'{NAME}:')
p(f's_cmp_ge_u32 s2, 256')
p('s_cbranch_scc1 L_exit')
p(f's_load_dwordx2 {s(72, 2)}, s[0:1], 0')
p(f's_load_dwordx8 {s(76, 8)}, s[0:1], 48')
p(f's_load_dwordx4 {s(84, 4)}, s[0:1], 80')
p(f's_load_dwordx2 {s(88, 2)}, s[0:1], 96')
p(f's_getpc_b64 {s(92, 2)}')
p('L_pc:')
lane, n_, g_, t0, t1, t2, t3, tid = 100, 101, 102, 103, 104, 105, 106, 107
p(f'v_mov_b32 {v(tid)}, v0')
p(f's_lshr_b32 {s(94)}, s2, 3')
p(f's_lshl_b32 {s(94)}, {s(94)}, 4')
p(f'v_lshrrev_b32 {v(T)}, 4, v0')
p(f'v_add_u32 {v(T)}, {s(94)}, {v(T)}')
p(f'v_lshlrev_b32 {v(T)}, 7, {v(T)}')
p(f'v_min_u32 {v(T)}, L_end-L_pc-4, {v(T)}')
p(f'v_mov_b32 {v(T + 3)}, {s(93)}')
p(f'v_add_co_u32 {v(T + 2)}, vcc, {s(92)}, {v(T)}')
p(f'v_addc_co_u32 {v(T + 3)}, vcc, 0, {v(T + 3)}, vcc')
p(f'global_load_dword {v(253)}, {v(T + 2, 2)}, off')
p(f'v_lshrrev_b32 {v(t0)}, 6, v0')
p(f'v_and_b32 {v(lane)}, 63, v0')
p(f'v_readfirstlane_b32 {s(sW)}, {v(t0)}')
p(f'v_and_b32 {v(n_)}, 15, {v(lane)}')
p(f'v_lshrrev_b32 {v(g_)}, 4, {v(lane)}')
p(f'v_lshlrev_b32 {v(vL16)}, 4, {v(lane)}')
p(f's_lshr_b32 {s(94)}, s2, 3')
p(f's_and_b32 {s(sB)}, {s(94)}, 7')
p(f's_and_b32 {s(95)}, s2, 7')
p(f's_lshl_b32 {s(95)}, {s(95)}, 1')
p(f's_lshr_b32 {s(96)}, {s(94)}, 4')
p(f's_add_u32 {s(95)}, {s(95)}, {s(96)}')
p(f's_sub_u32 {s(96)}, 32, {s(95)}')
p(f's_cmp_eq_u32 {s(95)}, 0')
p(f's_cselect_b32 {s(96)}, 16, {s(96)}')
p(f's_bitcmp1_b32 {s(94)}, 3')
p(f's_cselect_b32 {s(sC)}, {s(96)}, {s(95)}')
p(f's_mov_b32 {s(sL)}, 0')
p(f's_mov_b32 {s(sTO)}, 40000')
p(f's_mov_b32 {s(sPidx)}, 0')
p(f's_lshl_b32 {s(sB128)}, {s(sB)}, 7')
p(f's_mov_b32 {s(sOnes)}, 0x3f803f80')
p(f's_mov_b32 {s(sSelLo)}, 0x05040100')
p(f's_mov_b32 {s(sSelHi)}, 0x07060302')
p(f's_lshl_b32 {s(94)}, {s(sW)}, 9')
p(f's_add_u32 {s(94)}, {s(94)}, {s(sC)}')
p(f'v_and_b32 {v(t0)}, 28, {v(lane)}')
p(f'v_lshlrev_b32 {v(t0)}, 4, {v(t0)}')
p(f'v_and_b32 {v(t1)}, 32, {v(lane)}')
p(f'v_add3_u32 {v(t0)}, {v(t0)}, {v(t1)}, {s(94)}')
p(f'v_lshlrev_b32 {v(t2)}, 10, {v(t0)}')
p(f'v_and_b32 {v(t1)}, 3, {v(lane)}')
p(f'v_lshl_add_u32 {v(t0)}, {v(t1)}, 5, {v(t2)}')
p(f'v_lshl_add_u32 {v(t2)}, {v(t1)}, 4, {v(t2)}')
p(f'v_and_b32 {v(t3)}, 7, {v(n_)}')
p(f'v_lshlrev_b32 {v(t3)}, 6, {v(t3)}')
p(f'v_and_b32 {v(t1)}, 8, {v(n_)}')
p(f'v_lshlrev_b32 {v(t1)}, 2, {v(t1)}')
p(f'v_add3_u32 {v(t3)}, {v(t3)}, {v(t1)}, {s(94)}')
p(f'v_lshlrev_b32 {v(t3)}, 1, {v(t3)}')
p('s_waitcnt lgkmcnt(0)')
srd(R_X, 72, 73, 2097152)
srd(R_WS, 88, 89, LBASE)
p('s_cmp_eq_u32 s2, 0')
p.begin('G0', 's_cbranch_scc0')
p(f'v_lshlrev_b32 {v(T)}, 8, {v(tid)}')
p(f'v_mov_b32 {v(T + 1)}, 0')
p(f's_mov_b32 {s(94)}, {FLAGS:#x}')
p(f's_mov_b32 {s(95)}, {FLAGS + 0x10000:#x}')
p(f'buffer_store_dword {v(T + 1)}, {v(T)}, {s(R_WS, 4)}, {s(94)} offen sc1', tag='z')
p(f'buffer_store_dword {v(T + 1)}, {v(T)}, {s(R_WS, 4)}, {s(95)} offen sc1', tag='z')
p.end()
XR = 120
p(f'buffer_load_dwordx4 {v(XR, 4)}, {v(t0)}, {s(R_X, 4)}, {s(sB128)} offen{NT}')
p(f'buffer_load_dwordx4 {v(XR + 4, 4)}, {v(t0)}, {s(R_X, 4)}, {s(sB128)} offen offset:16{NT}')
for i in range(1, 8):
    p(f's_add_u32 {s(94)}, {s(sB128)}, {128 * i}')
    p(f's_and_b32 {s(94)}, {s(94)}, 0x3ff')
    p(f'buffer_load_dwordx4 {v(XR + 8 * i, 4)}, {v(t2)}, {s(R_X, 4)}, {s(94)} offen{NT}')
    p(f'buffer_load_dwordx4 {v(XR + 8 * i + 4, 4)}, {v(t2)}, {s(R_X, 4)}, {s(94)} offen offset:64{NT}')
srd(R_WIN, 76, 77, 512 * 3584)
srd(R_WSP, 78, 79, 2048 * 4096)
srd(R_BSP, 80, 81, 4096)
srd(R_WOUT, 82, 83, 896 * 1024)
srd(R_OUT, 84, 85, 2097152)
srd(R_DBG, 86, 87, 256)
p(f's_add_u32 {s(88)}, {s(88)}, {LBASE:#x}')
p(f's_addc_u32 {s(89)}, {s(89)}, 0')
srd(R_WL, 88, 89, LSTRIDE)
if PROF:
    p(f'v_mov_b32 {v(vProf)}, 0')
stamp('start')
p(f's_add_u32 {s(92)}, {s(92)}, L_table-L_pc')
p(f's_addc_u32 {s(93)}, {s(93)}, 0')
p(f's_mul_i32 {s(94)}, {s(sW)}, 5632')
p(f'v_add_u32 {v(T)}, {s(94)}, {v(vL16)}')
p(f'v_mov_b32 {v(T + 5)}, {s(93)}')
p(f'v_add_co_u32 {v(T + 4)}, vcc, {s(92)}, {v(T)}')
p(f'v_addc_co_u32 {v(T + 5)}, vcc, 0, {v(T + 5)}, vcc')
p(f's_add_u32 m0, {s(94)}, {CT}')
for off in (0, 1024, 2048, 3072):
    p(f'global_load_lds_dwordx4 {v(T + 4, 2)}, off offset:{off}', tag='ct')
p(f'v_add_co_u32 {v(T + 4)}, vcc, 0x1000, {v(T + 4)}')
p(f'v_addc_co_u32 {v(T + 5)}, vcc, 0, {v(T + 5)}, vcc')
p(f's_add_u32 m0, {s(94)}, {CT + 4096}')
p(f'global_load_lds_dwordx4 {v(T + 4, 2)}, off', tag='ct')
p('s_mov_b32 exec_hi, 0')
p(f'global_load_lds_dwordx4 {v(T + 4, 2)}, off offset:1024', tag='ct')
p('s_mov_b64 exec, -1')
PR, PK = 64, 88
p(f'v_mul_u32_u24 {v(t1)}, {16 * 3584}, {v(g_)}')
p(f'v_lshl_add_u32 {v(t1)}, {v(n_)}, 1, {v(t1)}')
p(f's_and_b32 {s(94)}, {s(sC)}, 7')
p(f's_lshl_b32 {s(94)}, {s(94)}, 6')
p(f's_and_b32 {s(95)}, {s(sC)}, 8')
p(f's_add_u32 {s(94)}, {s(94)}, {s(95)}')
p(f's_mul_i32 {s(94)}, {s(94)}, 3584')
p(f's_lshr_b32 {s(95)}, {s(sC)}, 4')
p(f's_mul_i32 {s(95)}, {s(95)}, 1792')
p(f's_add_u32 {s(94)}, {s(94)}, {s(95)}')
p(f's_mul_i32 {s(95)}, {s(sB)}, 224')
p(f's_add_u32 {s(94)}, {s(94)}, {s(95)}')
p(f's_lshl_b32 {s(95)}, {s(sW)}, 5')
p(f's_add_u32 {s(94)}, {s(94)}, {s(95)}')
for j in range(8):
    p(f'buffer_load_ushort {v(PR + j)}, {v(t1)}, {s(R_WIN, 4)}, {s(94)} offen{NT}')
    p(f'buffer_load_ushort {v(PR + 8 + j)}, {v(t1)}, {s(R_WIN, 4)}, {s(94)} offen offset:128{NT}')
    if j < 7:
        p(f's_add_u32 {s(94)}, {s(94)}, 3584')
p(f'v_lshrrev_b32 {v(t1)}, 2, {v(n_)}')
p(f'v_lshlrev_b32 {v(t1)}, 4, {v(t1)}')
p(f'v_and_b32 {v(T)}, 3, {v(n_)}')
p(f'v_add_u32 {v(t1)}, {v(t1)}, {v(T)}')
p(f'v_lshlrev_b32 {v(t1)}, 1, {v(t1)}')
p(f'v_lshl_add_u32 {v(t1)}, {v(g_)}, 12, {v(t1)}')
p(f's_mul_i32 {s(94)}, {s(sC)}, 0x5556')
p(f's_lshr_b32 {s(94)}, {s(94)}, 16')
p(f's_lshl_b32 {s(94)}, {s(94)}, 4')
p(f's_lshl_b32 {s(95)}, {s(sC)}, 5')
p(f's_add_u32 {s(94)}, {s(94)}, {s(95)}')
p(f's_sub_u32 {s(95)}, {s(sC)}, 24')
p(f's_mul_i32 {s(95)}, {s(95)}, 224')
p(f's_add_u32 {s(95)}, {s(95)}, 96')
p(f's_cmp_lt_u32 {s(sC)}, 24')
p(f's_cselect_b32 {s(94)}, {s(94)}, {s(95)}')
p(f's_cselect_b32 {s(95)}, 16, 112')
p(f's_add_u32 {s(95)}, {s(95)}, {s(94)}')
p(f's_lshl_b32 {s(96)}, {s(sW)}, 3')
p(f's_add_u32 {s(96)}, {s(96)}, {s(sB128)}')
p(f's_lshl_b32 {s(94)}, {s(94)}, 10')
p(f's_lshl_b32 {s(95)}, {s(95)}, 10')
p(f's_add_u32 {s(94)}, {s(94)}, {s(96)}')
p(f's_add_u32 {s(95)}, {s(95)}, {s(96)}')
for j in range(8):
    p(f'buffer_load_ushort {v(PR + 16 + j)}, {v(t1)}, {s(R_WOUT, 4)}, {s(94 + (j >> 2))} offen offset:{(j & 3) * 1024}{NT}')
p(f'buffer_load_ushort {v(vBsp)}, {v(t3)}, {s(R_BSP, 4)}, 0 offen')
p(f'v_lshrrev_b32 {v(T)}, 3, {v(lane)}')
p(f'v_lshlrev_b32 {v(T)}, 18, {v(T)}')
p(f'v_and_b32 {v(T + 1)}, 7, {v(lane)}')
p(f'v_xor_b32 {v(T + 1)}, {v(T + 1)}, {v(g_)}')
p(f'v_lshl_add_u32 {v(T)}, {v(T + 1)}, 4, {v(T)}')
p(f's_lshl_b32 {s(94)}, {s(sC)}, 12')
p(f's_add_u32 {s(100)}, {s(sW)}, {s(sB)}')
p(f's_and_b32 {s(100)}, {s(100)}, 3')
p(f's_lshl_b32 {s(95)}, {s(100)}, 10')
p(f's_add_u32 {s(94)}, {s(94)}, {s(95)}')
p(f'v_add_u32 {v(vWspA)}, {s(94)}, {v(T)}')
p(f'v_xor_b32 {v(T)}, 64, {v(vWspA)}')
p(f'v_add_u32 {v(vWspA + 1)}, 0x20000, {v(T)}')
p(f's_mul_i32 {s(sWsp)}, {s(sW)}, 24576')
p(f'v_lshrrev_b32 {v(T)}, 1, {v(n_)}')
p(f'v_xor_b32 {v(T)}, {v(T)}, {v(g_)}')
p(f'v_lshlrev_b32 {v(T)}, 4, {v(T)}')
p(f'v_lshl_add_u32 {v(T)}, {v(n_)}, 7, {v(T)}')
p(f's_add_u32 {s(94)}, {s(sWsp)}, 1024')
p(f'v_add_u32 {v(vWspR)}, {s(94)}, {v(T)}')
p(f'v_xor_b32 {v(vWspR + 1)}, 64, {v(vWspR)}')
stamp('issued')
p('s_cmp_eq_u32 s2, 0')
p.begin('G0', 's_cbranch_scc0')
p.wait_vm('z')
p('s_barrier')
p(f'v_mov_b32 {v(T + 1)}, 1')
p('s_mov_b64 exec, 1')
p(f'buffer_store_dword {v(T + 1)}, off, {s(R_DBG, 4)}, 0 sc1')
p('s_mov_b64 exec, -1')
p.end()
p(f's_lshr_b32 {s(94)}, {s(sB)}, 2')
p(f's_and_b32 {s(95)}, {s(sB)}, 3')
p(f's_lshl_b32 {s(sVst)}, {s(sC)}, 11')
p(f's_lshl_b32 {s(96)}, {s(sB)}, 8')
p(f's_add_u32 {s(sVst)}, {s(sVst)}, {s(96)}')
p(f's_sub_u32 {s(96)}, 32, {s(sC)}')
p(f's_and_b32 {s(96)}, {s(96)}, 31')
p(f's_cmp_eq_u32 {s(94)}, 0')
p(f's_cselect_b32 {s(96)}, {s(sC)}, {s(96)}')
p(f's_lshl_b32 {s(sVld)}, {s(96)}, 16')
p(f's_lshl_b32 {s(sH)}, {s(sC)}, 16')
p(f's_lshl_b32 {s(96)}, {s(95)}, 14')
p(f's_lshl_b32 {s(97)}, {s(94)}, 7')
p(f's_add_u32 {s(96)}, {s(96)}, {s(97)}')
p(f's_add_u32 {s(sK2)}, {s(sH)}, {s(96)}')
p(f's_lshl_b32 {s(96)}, {s(sW)}, 14')
p(f's_add_u32 {s(sH)}, {s(sH)}, {s(96)}')
p(f's_mov_b32 {s(sXb)}, 0')
p(f's_mov_b32 {s(sXo)}, 16')
p(f's_lshl_b32 {s(96)}, {s(sB)}, 2')
p(f's_add_u32 {s(96)}, {s(96)}, {s(sW)}')
p(f's_mul_i32 {s(sZld)}, {s(96)}, 114688')
p(f's_add_u32 {s(sZld)}, {s(sZld)}, {Z_:#x}')
p(f's_and_b32 {s(96)}, {s(sC)}, 7')
p(f's_lshl_b32 {s(96)}, {s(96)}, 10')
p(f's_lshr_b32 {s(97)}, {s(sC)}, 3')
p(f's_lshl_b32 {s(97)}, {s(97)}, 8')
p(f's_add_u32 {s(96)}, {s(96)}, {s(97)}')
p(f's_add_u32 {s(sZst)}, {s(sZld)}, {s(96)}')
p(f's_lshl_b32 {s(96)}, {s(sB)}, 2')
p(f's_add_u32 {s(96)}, {s(96)}, {s(100)}')
p(f's_mul_i32 {s(sZld)}, {s(96)}, 114688')
p(f's_add_u32 {s(sZld)}, {s(sZld)}, {Z_:#x}')
p(f's_lshl_b32 {s(96)}, {s(sC)}, 2')
p(f's_add_u32 {s(96)}, {s(96)}, {s(sW)}')
p(f's_mul_i32 {s(sUld)}, {s(96)}, 28672')
p(f's_add_u32 {s(sUld)}, {s(sUld)}, {U_:#x}')
p(f's_mul_i32 {s(97)}, {s(sB)}, 3584')
p(f's_add_u32 {s(sUst)}, {s(sUld)}, {s(97)}')
p(f's_lshl_b32 {s(sSt)}, {s(96)}, 10')
p(f's_add_u32 {s(sSt)}, {s(sSt)}, {STATS:#x}')
p(f's_mul_i32 {s(sDm)}, {s(sW)}, 14336')
p(f's_mul_i32 {s(sWI)}, {s(sB)}, 229376')
p(f's_add_u32 {s(sWI)}, {s(sWI)}, {s(sDm)}')
p(f's_mul_i32 {s(sWO)}, {s(sB)}, 114688')
p(f's_add_u32 {s(sWO)}, {s(sWO)}, {s(sDm)}')
p(f's_add_u32 {s(sWO)}, {s(sWO)}, {WO:#x}')
p(f's_and_b32 {s(96)}, s2, 15')
p(f's_lshl_b32 {s(96)}, {s(96)}, 8')
p(f's_add_u32 {s(sArr)}, {s(96)}, {FLAGS:#x}')
p(f's_and_b32 {s(96)}, s2, 7')
p(f's_lshl_b32 {s(96)}, {s(96)}, 12')
p(f's_add_u32 {s(sRep)}, {s(96)}, {FLAGS:#x}')
p(f's_lshl_b32 {s(96)}, {s(sC)}, 8')
p(f's_add_u32 {s(sS2)}, {s(96)}, {FLAGS + 0x8000:#x}')
p(f's_add_u32 {s(sS5)}, {s(96)}, {FLAGS + 0xA000:#x}')
p(f's_lshl_b32 {s(96)}, {s(sB)}, 8')
p(f's_add_u32 {s(sS4)}, {s(96)}, {FLAGS + 0xC000:#x}')
p(f'v_lshlrev_b32 {v(vL8)}, 3, {v(lane)}')
p(f'v_add_u32 {v(vL16hi)}, 0x10000, {v(vL16)}')
p(f'v_lshlrev_b32 {v(vPoll)}, 8, {v(n_)}')
p(f'v_and_b32 {v(vArr)}, 7, {v(lane)}')
p(f'v_lshlrev_b32 {v(vArr)}, 12, {v(vArr)}')
p(f'v_lshlrev_b32 {v(vStl)}, 3, {v(n_)}')
p(f'v_lshl_add_u32 {v(vStl)}, {v(g_)}, 8, {v(vStl)}')
p(f'v_mov_b32 {v(vGK)}, {f2u(-2.302208198144325 * 0.044715):#x}')
p(f'v_mov_b32 {v(vGK + 1)}, {f2u(-2.302208198144325):#x}')
p(f'v_lshrrev_b32 {v(T)}, 3, {v(lane)}')
p(f'v_and_b32 {v(T + 4)}, 7, {v(lane)}')
p(f'v_lshlrev_b32 {v(T + 4)}, 4, {v(T + 4)}')
p(f'v_lshl_add_u32 {v(T + 2)}, {v(T)}, 8, {v(T + 4)}')
p(f's_lshl_b32 {s(96)}, {s(sW)}, 12')
p(f'v_add_u32 {v(vK2)}, {s(96)}, {v(T + 2)}')
p(f'v_and_b32 {v(T)}, 1, {v(T)}')
p(f'v_lshl_add_u32 {v(T)}, {v(T)}, 4, {v(g_)}')
p(f'v_mul_u32_u24 {v(T)}, 144, {v(T)}')
p(f's_lshr_b32 {s(96)}, {s(sW)}, 1')
p(f's_mul_i32 {s(96)}, {s(96)}, 4608')
p(f's_and_b32 {s(97)}, {s(sW)}, 1')
p(f's_mul_i32 {s(97)}, {s(97)}, 1152')
p(f's_add_u32 {s(96)}, {s(96)}, {s(97)}')
p(f's_add_u32 {s(96)}, {s(96)}, {SCR}')
p(f'v_add3_u32 {v(vTr)}, {v(T)}, {v(T + 4)}, {s(96)}')
p(f'v_lshrrev_b32 {v(T)}, 5, {v(lane)}')
p(f'v_and_b32 {v(T + 1)}, 1, {v(g_)}')
p(f'v_lshl_add_u32 {v(T + 2)}, {v(T)}, 4, {v(n_)}')
p(f'v_mul_u32_u24 {v(T + 2)}, 144, {v(T + 2)}')
p(f'v_lshl_add_u32 {v(T + 2)}, {v(T + 1)}, 4, {v(T + 2)}')
p(f's_lshl_b32 {s(96)}, {s(sW)}, 5')
p(f's_add_u32 {s(97)}, {s(96)}, {SCR}')
p(f'v_add_u32 {v(vTw)}, {s(97)}, {v(T + 2)}')
p(f'v_lshlrev_b32 {v(T + 2)}, 6, {v(n_)}')
p(f'v_lshl_add_u32 {v(T + 2)}, {v(T)}, 5, {v(T + 2)}')
p(f'v_lshlrev_b32 {v(T + 3)}, 3, {v(T + 2)}')
p(f'v_lshl_add_u32 {v(T + 3)}, {v(T + 1)}, 4, {v(T + 3)}')
p(f'v_add_u32 {v(vXr2)}, {s(96)}, {v(T + 3)}')
p(f's_lshl_b32 {s(96)}, {s(95)}, 4')
p(f's_add_u32 {s(96)}, {s(96)}, {s(94)}')
p(f's_lshl_b32 {s(96)}, {s(96)}, 5')
p(f's_add_u32 {s(98)}, {s(96)}, {s(sC)}')
p(f's_lshl_b32 {s(96)}, {s(sW)}, 7')
p(f's_add_u32 {s(96)}, {s(96)}, {s(98)}')
p(f's_lshl_b32 {s(96)}, {s(96)}, 10')
p(f'v_lshl_add_u32 {v(T + 3)}, {v(T + 1)}, 16, {v(T + 2)}')
p(f'v_add_u32 {v(vXr)}, {s(96)}, {v(T + 3)}')
p(f'v_mul_u32_u24 {v(T + 3)}, 1040, {v(T + 1)}')
p(f'v_lshl_add_u32 {v(T + 3)}, {v(T)}, 8, {v(T + 3)}')
p(f'v_lshl_add_u32 {v(T + 3)}, {v(n_)}, 3, {v(T + 3)}')
p(f's_mul_i32 {s(96)}, {s(sW)}, 2080')
p(f's_add_u32 {s(96)}, {s(96)}, {SCR}')
p(f'v_add_u32 {v(vUr)}, {s(96)}, {v(T + 3)}')
p(f'v_mul_u32_u24 {v(T + 3)}, 1040, {v(n_)}')
p(f'v_lshl_add_u32 {v(T + 3)}, {v(g_)}, 5, {v(T + 3)}')
p(f's_lshl_b32 {s(96)}, {s(sW)}, 8')
p(f's_add_u32 {s(96)}, {s(96)}, {SCR}')
p(f'v_add_u32 {v(vUw)}, {s(96)}, {v(T + 3)}')
p(f'v_lshlrev_b32 {v(T + 3)}, 14, {v(T + 1)}')
p(f'v_lshl_add_u32 {v(T + 3)}, {v(T)}, 13, {v(T + 3)}')
p(f'v_lshl_add_u32 {v(vZst)}, {v(n_)}, 4, {v(T + 3)}')
p(f'v_lshlrev_b32 {v(T + 3)}, 13, {v(g_)}')
p(f'v_lshl_add_u32 {v(T + 3)}, {v(n_)}, 4, {v(T + 3)}')
p(f's_lshl_b32 {s(96)}, {s(sW)}, 9')
p(f'v_add_u32 {v(vVld)}, {s(96)}, {v(T + 3)}')
p(f'v_lshlrev_b32 {v(T + 3)}, 17, {v(g_)}')
p(f'v_lshl_add_u32 {v(T + 3)}, {v(n_)}, 4, {v(T + 3)}')
p(f's_lshl_b32 {s(96)}, {s(sW)}, 19')
p(f'v_add_u32 {v(vVst)}, {s(96)}, {v(T + 3)}')
p(f'v_mul_u32_u24 {v(T + 3)}, 160, {v(n_)}')
p(f'v_lshl_add_u32 {v(T + 3)}, {v(g_)}, 3, {v(T + 3)}')
p(f's_mul_i32 {s(96)}, {s(sW)}, 2560')
p(f's_add_u32 {s(96)}, {s(96)}, {SCR}')
p(f'v_add_u32 {v(vHw2)}, {s(96)}, {v(T + 3)}')
p(f'v_lshrrev_b32 {v(T + 3)}, 2, {v(lane)}')
p(f'v_mul_u32_u24 {v(T + 3)}, 160, {v(T + 3)}')
p(f'v_and_b32 {v(T + 2)}, 3, {v(lane)}')
p(f'v_lshl_add_u32 {v(T + 3)}, {v(T + 2)}, 3, {v(T + 3)}')
p(f'v_add_u32 {v(vHw)}, {s(96)}, {v(T + 3)}')
p(f'v_add_u32 {v(vHr)}, {SCR}, {v(T + 3)}')
for q in range(1, 5):
    p(f's_add_u32 {s(96)}, {s(sW)}, {q}')
    p(f's_and_b32 {s(96)}, {s(96)}, 3')
    p(f's_mul_i32 {s(96)}, {s(96)}, 3072')
    p(f's_add_u32 {s(96)}, {s(96)}, {SCR + (1024 * (q - 1) if q < 4 else 0)}')
    p(f'v_add_u32 {v(vRed + q - 1)}, {s(96)}, {v(vL16)}')
p(f'v_and_b32 {v(T)}, 7, {v(n_)}')
p(f'v_lshlrev_b32 {v(T)}, 6, {v(T)}')
p(f'v_add_u32 {v(T)}, {s(98)}, {v(T)}')
p(f'v_lshlrev_b32 {v(T + 1)}, 2, {v(g_)}')
p(f'v_mul_u32_u24 {v(T + 1)}, {v(T + 1)}, {v(T)}')
p(f'v_lshrrev_b32 {v(T + 2)}, 3, {v(n_)}')
p(f'v_lshl_add_u32 {v(T + 1)}, {v(T + 2)}, 9, {v(T + 1)}')
p(f's_cmp_eq_u32 {s(94)}, 0')
p(f's_cselect_b32 {s(73)}, 1.0, -1.0')
p(f's_cselect_b32 {s(74)}, 0, 1.0')
p(f's_cselect_b32 {s(72)}, 1.0, 0')
p(f's_cmp_eq_u32 {s(sC)}, 0')
p(f's_cselect_b32 {s(72)}, {s(72)}, 1.0')
p(f's_cselect_b32 {s(73)}, 0, {s(73)}')
p(f's_cselect_b32 {s(74)}, {s(74)}, 0')
for k in range(8):
    cp = 16 * (k >> 2) + (k & 3)
    p(f'v_mad_u32_u24 {v(T + 2)}, {v(T)}, {cp}, {v(T + 1)}')
    p(f'v_and_b32 {v(T + 2)}, 0x7ff, {v(T + 2)}')
    p(f'v_cvt_f32_u32 {v(T + 2)}, {v(T + 2)}')
    p(f'v_mul_f32 {v(T + 2)}, {f2u(1.0 / 2048):#x}, {v(T + 2)}')
    p(f'v_cos_f32 {v(T + 3)}, {v(T + 2)}')
    p(f'v_sin_f32 {v(T + 4)}, {v(T + 2)}')
    p(f'v_mul_f32 {v(T + 5)}, {s(74)}, {v(T + 3)}')
    p(f'v_mul_f32 {v(T + 3)}, {s(72)}, {v(T + 3)}')
    p(f'v_fma_f32 {v(T + 4)}, {s(73)}, {v(T + 4)}, {v(T + 5)}')
    p(f'v_cvt_pk_bf16_f32 {v(vC2 + k)}, {v(T + 3)}, {v(T + 4)}')
p(f'v_mov_b32 {v(T)}, -1')
p(f'v_mov_b32 {v(T + 1)}, -1')
p('s_mov_b64 exec, 0xffff')
for k in range(3):
    p(f's_add_u32 {s(96)}, {s(sSt)}, {s(sB128)}')
    p(f's_add_u32 {s(96)}, {s(96)}, {k * 0x20000:#x}')
    p(f'buffer_store_dwordx2 {v(T, 2)}, {v(vStl)}, {s(R_WS, 4)}, {s(96)} offen sc1', tag='pub')
p('s_mov_b64 exec, -1')
stamp('setup')
for k in range(4):
    p(f'v_mov_b32 {v(T + 2 + k)}, 0')
p.bg = wsp_dma_ops(0) + wsp_dma_ops(1)
p.bg_on(OPT['wspev'])
for i in range(64):
    p(f'v_dot2c_f32_bf16 {v(T + 2 + (i & 1))}, {s(sOnes)}, {v(XR + i)}')
    p(f'v_dot2c_f32_bf16 {v(T + 4 + (i & 1))}, {v(XR + i)}, {v(XR + i)}')
unpack(XR, 8, XV)
p.bg_on(0)
p.bg_emit()
p(f'v_add_f32 {v(T)}, {v(T + 2)}, {v(T + 3)}')
p(f'v_add_f32 {v(T + 1)}, {v(T + 4)}, {v(T + 5)}')
for qp in ('[1,0,3,2]', '[2,3,0,1]'):
    for k in range(2):
        p(f'v_add_f32_dpp {v(T + k)}, {v(T + k)}, {v(T + k)} quad_perm:{qp} row_mask:0xf bank_mask:0xf')
stamp('stats')
for k in range(12):
    p(f'v_lshl_or_b32 {v(PK + k)}, {v(PR + 2 * k + 1)}, 16, {v(PR + 2 * k)}')
p(f'v_lshlrev_b32 {v(vBsp)}, 16, {v(vBsp)}')
p(f's_mul_i32 {s(94)}, {s(sB)}, 229376')
p(f's_mul_i32 {s(95)}, {s(sC)}, 7168')
p(f's_add_u32 {s(94)}, {s(94)}, {s(95)}')
p(f's_lshl_b32 {s(95)}, {s(sW)}, 10')
p(f's_add_u32 {s(94)}, {s(94)}, {s(95)}')
p(f'buffer_store_dwordx4 {v(PK, 4)}, {v(vL16)}, {s(R_WS, 4)}, {s(94)} offen sc1', tag='pub')
p(f's_add_u32 {s(94)}, {s(94)}, 4096')
p(f's_cmp_lt_u32 {s(sW)}, 3')
p.begin('W012', 's_cbranch_scc0')
p(f'buffer_store_dwordx4 {v(PK + 4, 4)}, {v(vL16)}, {s(R_WS, 4)}, {s(94)} offen sc1', tag='pub')
p.end()
p(f's_mul_i32 {s(94)}, {s(sB)}, 114688')
p(f's_lshl_b32 {s(96)}, {s(sC)}, 12')
p(f's_add_u32 {s(94)}, {s(94)}, {s(96)}')
p(f's_add_u32 {s(94)}, {s(94)}, {s(95)}')
p(f's_add_u32 {s(94)}, {s(94)}, {WO:#x}')
p(f's_cmp_lt_u32 {s(sC)}, 28')
p.begin('C28', 's_cbranch_scc0')
p(f'buffer_store_dwordx4 {v(PK + 8, 4)}, {v(vL16)}, {s(R_WS, 4)}, {s(94)} offen sc1', tag='pub')
p.end()
p.wait_vm('ct')
p('s_barrier')

p.section('body')
p('L_layer:')
stamp('T')
HP, M1, AF, D1, VO = 56, 64, 72, 104, 56
p(f's_lshl_b32 {s(sT)}, {s(sW)}, 11')
p(f's_add_u32 {s(sT)}, {s(sT)}, {CT + CT_M1}')
p(f'v_add_u32 {v(T + 7)}, {s(sT)}, {v(vL16)}')
p(f's_add_u32 {s(sT + 1)}, {s(sVst)}, 0x10000')
finish_stats(T, 512)
for i in range(0, 16, 2):
    p(f'v_pk_fma_f32 {v(XV + i, 2)}, {v(XV + i, 2)}, {v(T, 2)}, {v(T, 2)} op_sel:[0,0,1] op_sel_hi:[1,0,1]')
for t in range(4):
    for k in range(2):
        p(f'v_cvt_pk_bf16_f32 {v(HP + 2 * t + k)}, {v(XV + 8 * k + t)}, {v(XV + 8 * k + 4 + t)}')
    p(f'ds_write_b64 {v(vHw)}, {v(HP + 2 * t, 2)} offset:{32 * t}', tag='hw')
for k in range(2):
    p(f'ds_read_b128 {v(M1 + 4 * k, 4)}, {v(T + 7)} offset:{k * 1024}')
p.wait_lgkm('hw')
p('s_barrier')
for ks in range(2):
    for tile in range(4):
        for half in range(2):
            p(f'ds_read_b64_tr_b16 {v(AF + 16 * ks + 4 * tile + 2 * half, 2)}, {v(vHr)} offset:{(32 * ks + 16 * half) * 160 + 32 * tile}')
for ks in range(2):
    for tile in range(4):
        d = D1 + 4 * tile
        p(f'{M16} {v(d, 4)}, {v(M1 + 4 * ks, 4)}, {v(AF + 16 * ks + 4 * tile, 4)}, {v(d, 4) if ks else 0}')
for jj in range(2):
    for t in range(4):
        p(f'v_cvt_pk_bf16_f32 {v(VO + 4 * jj + t)}, {v(D1 + 4 * t + 2 * jj)}, {v(D1 + 4 * t + 2 * jj + 1)}')
    p(f'buffer_store_dwordx4 {v(VO + 4 * jj, 4)}, {v(vVst)}, {s(R_WL, 4)}, {s(sT + 1 if jj else sVst)} offen sc1', tag='pub')
stamp('Vst')
WSR = (120, 152)
if_layer(0)
if_wave0()
top, done = p.label('init'), p.label('idone')
p(f'{top}:')
p(f'buffer_load_dword {v(T)}, off, {s(R_DBG, 4)}, 0 sc1')
p('s_waitcnt vmcnt(0)')
p(f'v_cmp_ne_u32 vcc, 1, {v(T)}')
spin_tail(top, done)
p.end()
wsp_dma(2)
p.end()
stamp('init')
p.wait_vm('pub')
arrive(sArr, 8)
stamp('arr1')
if_layer(0)
wsp_read(0, WSR[0])
for k in range(8):
    if k + 3 < 8:
        p.wait_lgkm(f'wr{k}')
        wsp_dma(k + 3)
    if k + 1 < 8:
        wsp_read(k + 1, WSR[(k + 1) & 1])
    wsp_perm(k, WSR[k & 1])
p.end()
if_layer(1)
p.bg = w_dma_ops(sWI, 114688)
p.bg_emit()
p.end()
wz2 = w_dma_ops(sWI, 114688)


def l0_dma(n):
    if_layer(0)
    p.bg = [wz2.pop(0) for _ in range(n)]
    p.bg_emit()
    p.end()


FA, TW, FB, VR, D2, UP, XRES, Y = 40, 64, 80, 96, 160, 192, 200, 208
for k in range(14):
    p(f'ds_read_b128 {v(FA + 4 * k, 4)}, {v(vL16hi)} offset:{CT - 65536 + k * 1024}')
for k in range(4):
    p(f's_add_u32 {s(sT + 4 + k)}, {s(sVld)}, {(16 * (k >> 1) + 2 * (k & 1)) * 2048:#x}')
stamp('win1')
poll(sRep, True, 16)
stamp('S1')
for hi in range(2):
    for ks in range(2):
        for ii in range(4):
            r = VR + 32 * hi + 16 * ks + 4 * ii
            p(f'buffer_load_dwordx4 {v(r, 4)}, {v(vVld)}, {s(R_WL, 4)}, {s(sT + 4 + 2 * ks + (ii >> 1))} offen offset:{(ii & 1) * 2048 + hi * 256} sc1')
p(f'buffer_load_dwordx4 {v(XRES, 4)}, {v(vXr)}, {s(R_X, 4)}, {s(sXb)} offen sc1')
p(f'buffer_load_dwordx4 {v(XRES + 4, 4)}, {v(vXr)}, {s(R_X, 4)}, {s(sXo)} offen sc1')
for hi in range(2):
    for ks in range(2):
        r = VR + 32 * hi + 16 * ks
        for i in range(4):
            for j in range(i + 1, 4):
                p(f'v_swap_b32 {v(r + 4 * i + j)}, {v(r + 4 * j + i)}')
        for lo in range(4):
            d = D2 + 16 * hi + 4 * lo
            p(f'{M16} {v(d, 4)}, {v(r + 4 * lo, 4)}, {v(vC2 + 4 * ks, 4)}, {v(d, 4) if ks else 0}')
l0_dma(4)
for hi in range(2):
    UP = (192, 240)[hi]
    for r in range(4):
        for lp in range(2):
            p(f'v_cvt_pk_bf16_f32 {v(UP + 2 * r + lp)}, {v(D2 + 16 * hi + 8 * lp + r)}, {v(D2 + 16 * hi + 8 * lp + 4 + r)}')
    p(f'ds_write_b128 {v(vUw)}, {v(UP, 4)} offset:{128 * hi}')
    p(f'ds_write_b128 {v(vUw)}, {v(UP + 4, 4)} offset:{128 * hi + 16}')
p('s_waitcnt lgkmcnt(0)')
p('s_barrier')
UA, DR, DI, TT, PF = 96, 112, 128, 144, 160
for ri in range(2):
    for dh in range(2):
        for half in range(2):
            p(f'ds_read_b64_tr_b16 {v(UA + 8 * ri + 4 * dh + 2 * half, 2)}, {v(vUr)} offset:{ri * 8320 + dh * 512 + half * 128}')
l0_dma(4)
unpack(XRES, 8, Y)
for ri in range(2):
    for dh in range(2):
        first = ri == 0 and dh == 0
        fr = FA + 4 * ((2 if ri else 0) + dh)
        fi = FA + 4 * ((0 if ri else 4) + dh)
        p(f'{M32} {v(DR, 16)}, {v(UA + 8 * ri + 4 * dh, 4)}, {v(fr, 4)}, {0 if first else v(DR, 16)}')
        p(f'{M32} {v(DI, 16)}, {v(UA + 8 * ri + 4 * dh, 4)}, {v(fi, 4)}, {0 if first else v(DI, 16)}')
l0_dma(4)
for row in range(2):
    for k in range(0, 8, 2):
        r = 8 * row + k
        p(f'v_pk_mul_f32 {v(TT + k, 2)}, {v(DI + r, 2)}, {v(TW + 8 + k, 2)}')
        p(f'v_pk_mul_f32 {v(TT + 8 + k, 2)}, {v(DR + r, 2)}, {v(TW + 8 + k, 2)}')
    for k in range(0, 8, 2):
        r = 8 * row + k
        p(f'v_pk_fma_f32 {v(TT + k, 2)}, {v(DR + r, 2)}, {v(TW + k, 2)}, {v(TT + k, 2)}')
        p(f'v_pk_fma_f32 {v(TT + 8 + k, 2)}, {v(DI + r, 2)}, {v(TW + k, 2)}, {v(TT + 8 + k, 2)} neg_lo:[0,0,1] neg_hi:[0,0,1]')
    for k in range(8):
        p(f'v_cvt_pk_bf16_f32 {v(PF + 8 * row + k)}, {v(TT + 2 * k)}, {v(TT + 2 * k + 1)}')
for k in range(4):
    p(f'{M32} {v(Y, 16)}, {v(PF + 4 * k, 4)}, {v(FB + 4 * k, 4)}, {v(Y, 16)}')
XO, HO = 224, 232
l0_dma(4)
local_stats(Y, 16, T)
p(f'v_permlane32_swap_b32 {v(T)}, {v(T + 1)}')
p(f'v_add_f32 {v(T)}, {v(T)}, {v(T + 1)}')
for k, sh in enumerate((8, 4, 2, 1)):
    p(f'v_cvt_pk_bf16_f32 {v(XO + 2 * k)}, {v(Y + 4 * k)}, {v(Y + 4 * k + 1)}')
    p(f'v_cvt_pk_bf16_f32 {v(XO + 2 * k + 1)}, {v(Y + 4 * k + 2)}, {v(Y + 4 * k + 3)}')
    p(f'v_add_f32_dpp {v(T)}, {v(T)}, {v(T)} row_ror:{sh} row_mask:0xf bank_mask:0xf')
p(f'v_mov_b32 {v(T + 1)}, {v(T)}')
p(f's_add_u32 {s(sT)}, {s(sK2)}, {X1_:#x}')
p(f's_add_u32 {s(sT + 1)}, {s(sK2)}, {H_:#x}')
p(f'v_permlane32_swap_b32 {v(T)}, {v(T + 1)}')
finish_stats(T, 512)
norm_pack(Y, 16, T, Y, HO)
for o in range(2):
    p(f'ds_write_b128 {v(vTw)}, {v(HO + 4 * o, 4)} offset:{16640 + 4608 * o}')
p('s_waitcnt lgkmcnt(0)')
p('s_barrier')
for k in range(2):
    p(f'ds_read_b128 {v(HO + 4 * k, 4)}, {v(vTr)} offset:{16640 + 576 * k}')
for o in range(2):
    p(f'ds_write_b128 {v(vTw)}, {v(XO + 4 * o, 4)} offset:{4608 * o}')
for k in range(2):
    p(f'buffer_store_dwordx4 {v(HO + 4 * k, 4)}, {v(vK2)}, {s(R_WL, 4)}, {s(sT + 1)} offen offset:{2048 * k} sc1', tag='pub')
if OPT['dbl']:
    for k in range(2):
        p(f'buffer_store_dwordx4 {v(HO + 4 * k, 4)}, {v(vK2)}, {s(R_WL, 4)}, {s(sT + 1)} offen offset:{2048 * k}')
l0_dma(6)
stamp('K2')
p('s_waitcnt lgkmcnt(0)')
p.wait_vm('pub')
arrive(sS2, 1)
for k in range(2):
    p(f'ds_read_b128 {v(XO + 4 * k, 4)}, {v(vTr)} offset:{576 * k}')
for k in range(2):
    p(f'buffer_store_dwordx4 {v(XO + 4 * k, 4)}, {v(vK2)}, {s(R_WL, 4)}, {s(sT)} offen offset:{2048 * k} sc1', tag='x1')
l0_dma(6)
stamp('arr2')
HF, Z2, Z1, WR, WD, GT = 40, 104, 136, 164, 12, 212
for k in range(4):
    p(f's_add_u32 {s(sT + 4 + k)}, {s(sH)}, {H_ + 4096 * k:#x}')
poll(sS2, False, 8, 'wdma1')
stamp('S2')
hl = [f'buffer_load_dwordx4 {v(HF + 4 * ks, 4)}, {v(vL16)}, {s(R_WL, 4)}, {s(sT + 4 + (ks >> 2))} offen offset:{1024 * (ks & 3)} sc1' for ks in range(16)]
for x in hl[:OPT['pre3']]:
    p(x)
gemm_r(Z2, 7, 0, 16, HF, WR, WD, loads=hl[OPT['pre3']:])
p.wait_vm('x1')
p('s_barrier')
stamp('z2mm')
p.bg = w_dma_ops(sWI, 0)
p.bg_emit(2)
p.bg_on(OPT['g2ev'])
gelu(Z2, 28, GT)
local_stats(Z2, 28, T)
p.bg_on(0)
reduce_g(T, T + 1)
publish_stats(0)
stamp('pub3')
Z1A = OPT['z1a']
if Z1A:
    p.bg_emit(max(0, len(p.bg) - 14))
    p.wait_vm('wdma0')
    p('s_barrier')
    p.bg_on(max(1, 14 * Z1A // max(1, len(p.bg))))
    gemm_r(Z1, 7, 0, Z1A, HF, WR, WD)
    p.bg_on(0)
p.bg_emit()
SEL, ZP, ZT, ZO = 220, 228, 164, 104
p(f'v_and_b32 {v(SEL)}, 0xf0, {v(vL16)}')
p(f'v_lshrrev_b32 {v(SEL + 1)}, 2, {v(vL16)}')
p(f'v_and_b32 {v(SEL + 1)}, 0xc0, {v(SEL + 1)}')
p(f'v_sub_u32 {v(SEL)}, {v(SEL)}, {v(SEL + 1)}')
p(f'v_mov_b32 {v(SEL + 4)}, 0x3f80')
p(f'v_lshlrev_b32 {v(SEL + 4)}, {v(SEL)}, {v(SEL + 4)}')
p(f'v_lshrrev_b32 {v(SEL + 1)}, 5, {v(SEL)}')
p(f'v_cmp_eq_u32 vcc, 0, {v(SEL + 1)}')
p(f'v_cndmask_b32 {v(SEL + 2)}, 0, {v(SEL + 4)}, vcc')
p(f'v_cmp_eq_u32 vcc, 1, {v(SEL + 1)}')
p(f'v_cndmask_b32 {v(SEL + 3)}, 0, {v(SEL + 4)}, vcc')
for k in (0, 1, 4, 5):
    p(f'v_mov_b32 {v(SEL + k)}, 0')
p(f'v_mov_b32 {v(ZP + 14)}, 0')
p(f'v_mov_b32 {v(ZP + 15)}, 0')
stamp('z1a')
gather_stats(0)
stamp('S3')
finish_stats(T, 896)
norm_pack(Z2, 28, T, Z2, ZP)
for ft in range(7):
    p(f'{M16} {v(ZT + 4 * ft, 4)}, {v(ZP + 4 * (ft >> 1), 4)}, {v(SEL + (0 if ft & 1 else 2), 4)}, 0')
for ft in range(7):
    for k in range(2):
        p(f'v_cvt_pk_bf16_f32 {v(ZO + 2 * ft + k)}, {v(ZT + 4 * ft + 2 * k)}, {v(ZT + 4 * ft + 2 * k + 1)}')
for pr in range(4):
    p(f's_add_u32 {s(sT)}, {s(sZst)}, {pr * 32768:#x}')
    for k in range(2):
        p(f'v_permlane16_swap_b32 {v(ZO + 4 * pr + k)}, {v(ZO + 4 * pr + 2 + k)}')
    if pr == 3:
        p('s_mov_b32 exec_lo, 0xffff')
        p('s_mov_b32 exec_hi, 0xffff')
    p(f'buffer_store_dwordx4 {v(ZO + 4 * pr, 4)}, {v(vZst)}, {s(R_WL, 4)}, {s(sT)} offen sc1')
p('s_mov_b64 exec, -1')
stamp('Zst')
p('s_barrier')
Z1B = min(16, Z1A + OPT['z1arr'])
gemm_r(Z1, 7, Z1A, Z1B, HF, WR, WD, last=112)
p('s_waitcnt vmcnt(0)')
arrive(sS4, 1)
stamp('arr4')
gemm_r(Z1, 7, Z1B, 16, HF, WR, WD, preload=False)
wo = w_dma_ops(sWO, 0)
p(f's_mov_b32 {s(sT + 2)}, {s(sZld)}')
stamp('win4')
poll(sS4, False, 32)
stamp('S4')
ZD, AC, RT, UO = OPT['zd'], 196, 228, 240


def zreg(fi):
    k = fi % ZD
    return 40 + 4 * k if k < 24 else 164 + 4 * (k - 24)


def zload(fi):
    if fi % 4 == 0 and fi:
        p(f's_add_u32 {s(sT + 2)}, {s(sT + 2)}, 4096')
    if OPT['k4load'] or fi < ZD:
        p(f'buffer_load_dwordx4 {v(zreg(fi), 4)}, {v(vL16)}, {s(R_WL, 4)}, {s(sT + 2)} offen offset:{(fi % 4) * 1024}' + ' sc1')


def k4_epilogue(ft):
    ac, buf = AC + 16 * (ft & 1), 12288 * (ft & 1)
    st1 = [f'ds_write_b128 {v(vRed + q - 1)}, {v(ac + 4 * q, 4)} offset:{buf}' for q in (1, 2, 3)]
    st1 += [f'v_add_f32 {v(ac + r)}, {v(vBsp)}, {v(ac + r)}' for r in range(4)]
    st2 = ['s_waitcnt lgkmcnt(0)', 's_barrier']
    st2 += [f'ds_read_b128 {v(RT + 4 * q, 4)}, {v(vRed + 3)} offset:{buf + 1024 * q}' for q in range(3)]
    st3 = [f'v_add_f32 {v(ac + r)}, {v(RT + 4 * q + r)}, {v(ac + r)}' for q in range(3) for r in range(4)]
    st3 += [f'v_mul_f32 {v(ac + r)}, {v(Z1 + 4 * ft + r)}, {v(ac + r)}' for r in range(4)]
    st3 += [f'v_cvt_pk_bf16_f32 {v(UO + 2 * (ft & 1) + k)}, {v(ac + 2 * k)}, {v(ac + 2 * k + 1)}' for k in range(2)]
    if ft == 6:
        st3 += [f'buffer_store_dwordx2 {v(UO, 2)}, {v(vL8)}, {s(R_WL, 4)}, {s(sUst)} offen offset:3072 sc1']
    elif ft & 1:
        st3 += [f'buffer_store_dwordx4 {v(UO, 4)}, {v(vL16)}, {s(R_WL, 4)}, {s(sUst)} offen offset:{1024 * (ft >> 1)} sc1']
        if OPT['dbl']:
            st3 += [st3[-1][:-4]]
    return st1, st2, st3


def gelu_ops(x, t):
    ops = [f'v_mul_f32 {v(t + k)}, {v(x + k)}, {v(x + k)}' for k in range(4)]
    ops += [f'v_fma_f32 {v(t + k)}, {v(t + k)}, {v(vGK)}, {v(vGK + 1)}' for k in range(4)]
    ops += [f'v_mul_f32 {v(t + k)}, {v(t + k)}, {v(x + k)}' for k in range(4)]
    ops += [f'v_exp_f32 {v(t + k)}, {v(t + k)}' for k in range(4)]
    ops += [f'v_add_f32 {v(t + k)}, 1.0, {v(t + k)}' for k in range(4)]
    ops += [f'v_rcp_f32 {v(t + k)}, {v(t + k)}' for k in range(4)]
    ops += [f'v_mul_f32 {v(x + k)}, {v(t + k)}, {v(x + k)}' for k in range(4)]
    return ops


for fi in range(ZD):
    zload(fi)
for ft in range(7):
    fill = {}
    if ft and OPT['k4epi']:
        st1, st2, st3 = k4_epilogue(ft - 1)
        pos = 8
        for x in st1:
            fill.setdefault(pos, []).append(x)
            pos += 1
        pos = 22
        for x in st2:
            fill.setdefault(pos, []).append(x)
            pos += 1
        pos = 36
        for x in st3:
            fill.setdefault(pos, []).append(x)
            pos += 1
    free = [k for k in range(64) if k not in fill]
    for k, x in zip(free, gelu_ops(Z1 + 4 * ft, T)):
        fill[k] = [x]
    for a2 in range(16):
        fi = ft * 16 + a2
        for q in range(4):
            d = AC + 16 * (ft & 1) + 4 * q
            if OPT['k4mfma'] or q == 0:
                p(f'{M16} {v(d, 4)}, {v(zreg(fi), 4)}, {a((q * 16 + a2) * 4, 4)}, {v(d, 4) if a2 else 0}')
            for x in fill.get(4 * a2 + q, []):
                p(x)
        if fi + ZD < 112:
            zload(fi + ZD)
        elif fi >= 112 - OPT['wotail']:
            p.bg = [wo.pop(0)]
            p.bg_emit()
for st in k4_epilogue(6):
    for x in st:
        p(x, tag='pub')
if OPT['dbl']:
    p(x[:-4])
p.bg = wo
p.bg_emit(OPT['wopre'])
stamp('K4')
p.wait_vm('pub')
arrive(sS5, 1)
stamp('arr5')
UF, WR5, X1R, XP = 56, 168, 216, 224
p(f's_lshl_b32 {s(sT + 2)}, {s(sB)}, 10')
p(f's_add_u32 {s(sT + 2)}, {s(sT + 2)}, {s(sH)}')
p(f's_add_u32 {s(sT + 12)}, {s(sT + 2)}, {X1_:#x}')
p(f's_add_u32 {s(sT + 13)}, {s(sT + 2)}, {X1_ + 8192:#x}')
for o in range(2):
    p(f'buffer_load_dwordx4 {v(X1R + 4 * o, 4)}, {v(vL16)}, {s(R_WL, 4)}, {s(sT + 12 + o)} offen sc1')
OW, OR, OG = 248, 249, 253
p(f'v_and_b32 {v(T)}, 0xf0, {v(vL16)}')
p(f'v_mul_u32_u24 {v(T)}, 9, {v(T)}')
p(f'v_lshrrev_b32 {v(T + 1)}, 8, {v(vL16)}')
p(f'v_lshl_add_u32 {v(T)}, {v(T + 1)}, 5, {v(T)}')
p(f's_mul_i32 {s(sT)}, {s(sW)}, 2304')
p(f's_add_u32 {s(sT)}, {s(sT)}, {SCR}')
p(f'v_add_u32 {v(OW)}, {s(sT)}, {v(T)}')
p(f'v_lshrrev_b32 {v(T)}, 7, {v(vL16)}')
p(f'v_lshl_add_u32 {v(T + 1)}, {v(T)}, 4, {v(vL16)}')
p(f'v_add_u32 {v(OR)}, {s(sT)}, {v(T + 1)}')
p(f'v_and_b32 {v(T + 1)}, 0x70, {v(vL16)}')
p(f'v_lshl_add_u32 {v(OG)}, {v(T)}, 16, {v(T + 1)}')
p(f's_lshl_b32 {s(sT)}, {s(sW)}, 9')
p(f's_add_u32 {s(sT)}, {s(sT)}, {s(sC)}')
p(f's_lshl_b32 {s(sT)}, {s(sT)}, 10')
p(f's_add_u32 {s(sT + 14)}, {s(sT)}, {s(sB128)}')
p(f's_add_u32 {s(sT + 15)}, {s(sT + 14)}, 0x8000')
p.bg_emit()
for bb in range(8):
    p(f's_add_u32 {s(sT + 4 + bb)}, {s(sUld)}, {3584 * bb}')
unpack(X1R, 8, XV)
poll(sS5, False, 8, 'wdma1')
stamp('S5')
ul = [f'buffer_load_dwordx4 {v(UF + 4 * (3 * bb + pp), 4)}, {v(vL16)}, {s(R_WL, 4)}, {s(sT + 4 + bb)} offen offset:{1024 * pp} sc1'
      for bb in range(8) for pp in range(3)]
ul += ['\n'.join(f'buffer_load_dwordx2 {v(UF + 96 + 2 * bb, 2)}, {v(vL8)}, {s(R_WL, 4)}, {s(sT + 4 + bb)} offen offset:3072 sc1'
                 for bb in (2 * i, 2 * i + 1)) for i in range(4)]
for x in ul[:OPT['pre5']]:
    p(x)
gemm_r(XV, 4, 0, 28, UF, WR5, WD, first_c=True, loads=ul[OPT['pre5']:])
for k in range(8):
    p(f'v_cvt_pk_bf16_f32 {v(XP + k)}, {v(XV + 2 * k)}, {v(XV + 2 * k + 1)}')
stamp('K5')
if_layer(1)
for o in range(2):
    p(f'ds_write_b128 {v(OW)}, {v(XP + 4 * o, 4)} offset:{16 * o}')
for k in range(2):
    p(f'ds_read_b128 {v(X1R + 4 * k, 4)}, {v(OR)} offset:{1152 * k}')
for k in range(2):
    p(f'buffer_store_dwordx4 {v(X1R + 4 * k, 4)}, {v(OG)}, {s(R_OUT, 4)}, {s(sT + 14 + k)} offen')
if PROF:
    p('s_waitcnt vmcnt(0)')
    stamp('end')
    p(f's_lshl_b32 {s(sT)}, s2, 2')
    p(f's_add_u32 {s(sT)}, {s(sT)}, {s(sW)}')
    p(f's_lshl_b32 {s(sT)}, {s(sT)}, 8')
    p(f's_add_u32 {s(sT)}, {s(sT)}, {PROFO:#x}')
    p(f'v_lshrrev_b32 {v(T)}, 2, {v(vL16)}')
    p(f'buffer_store_dword {v(vProf)}, {v(T)}, {s(R_WS, 4)}, {s(sT)} offen')
p('L_exit:')
p('s_endpgm')
p.end()
local_stats(XV, 16, T)
reduce_g(T, T + 1)
publish_stats(0x40000)
gather_stats(0x40000)
for o in range(2):
    p(f's_add_u32 {s(sT + 3)}, {s(sT + 2)}, {X2 + 8192 * o:#x}')
    p(f'buffer_store_dwordx4 {v(XP + 4 * o, 4)}, {v(vL16)}, {s(R_WS, 4)}, {s(sT + 3)} offen sc1', tag='pub')
p(f's_mov_b32 {s(sL)}, 1')
p(f's_add_u32 {s(R_WL)}, {s(R_WL)}, {LSTRIDE:#x}')
p(f's_addc_u32 {s(R_WL + 1)}, {s(R_WL + 1)}, 0')
p(f's_mov_b32 {s(R_X)}, {s(R_WS)}')
p(f's_mov_b32 {s(R_X + 1)}, {s(R_WS + 1)}')
p(f's_mov_b32 {s(R_X + 2)}, {LBASE:#x}')
p(f's_add_u32 {s(sXb)}, {s(sK2)}, {X2:#x}')
p(f's_add_u32 {s(sXo)}, {s(sXb)}, 8192')
p(f'v_mov_b32 {v(vXr)}, {v(vXr2)}')
p(f'v_mov_b32 {v(vHw)}, {v(vHw2)}')
p(f's_add_u32 {s(sSt)}, {s(sSt)}, 0x20000')
for r in (sArr, sRep, sS2, sS4, sS5):
    p(f's_add_u32 {s(r)}, {s(r)}, 0x10000')
p('s_branch L_layer')

p.resolve([('pro', set()), ('body', {'L0'}), ('body', {'L1'})], ['W0', 'G0', 'W012', 'C28'])

hdr = open('interleave_layers__spectral_fnet__mixer_gmlp__prompt.s.ref').read().split('\n')
out = [l for l in hdr if l.startswith(';') and '@launch' not in l][:14]
if PROF:
    k = STAMPS.index('T')
    out.append('; stamps: ' + ' '.join(STAMPS[:-1] + STAMPS[k:]))
out.append(f'; @launch grid=(256,1,1) block=(256,1,1) lds={LDS_BYTES}')
out += ['.amdgcn_target "amdgcn-amd-amdhsa--gfx950"', '.text', f'.globl {NAME}', '.p2align 8', f'.type {NAME},@function']
out.append(p.text())
out.append('.p2align 8')
out.append('.type L_table,@object')
out.append('L_table:')
tab = const_table()
for i in range(0, tab.size, 8):
    out.append('.long ' + ','.join(f'{x:#x}' for x in tab[i:i + 8]))
out.append(f'.size L_table, {tab.size * 4}')
out.append('L_end:')
out += ['.section .rodata,"a"', '.p2align 6', f'.amdhsa_kernel {NAME}',
        '  .amdhsa_next_free_vgpr 512', '  .amdhsa_next_free_sgpr 102', '  .amdhsa_accum_offset 256',
        '  .amdhsa_group_segment_fixed_size 0', '  .amdhsa_kernarg_size 104', '  .amdhsa_user_sgpr_count 2',
        '  .amdhsa_user_sgpr_kernarg_segment_ptr 1', '  .amdhsa_system_sgpr_workgroup_id_x 1',
        '  .amdhsa_float_denorm_mode_32 3', '.end_amdhsa_kernel', '']
open(sys.argv[1], 'w').write('\n'.join(out))
print(p.stats(), file=sys.stderr)
```

```python
import sys
import struct
import numpy as np
from asmlib import Prog, v, a, s

NAME = 'interleave_layers__spectral_fnet__mixer_gmlp__prompt_kernel'
OPT = dict(prof=0, k4mfma=1, k4load=1, k4epi=1, zd=12, pre3=8, pre5=8, dbl=0, nt=1, wspev=8, g2ev=8, z1a=0, z1arr=5,
           wotail=6, wopre=8, diag='')
for arg in sys.argv[2:]:
    k, val = arg.split('=')
    OPT[k] = val if k == 'diag' else int(val)
PROF = OPT['prof']
NT = ' nt' if OPT['nt'] else ''

WI, WO, FLAGS, STATS, X2, PROFO = 0, 0x200000, 0x300000, 0x340000, 0x400000, 0x600000
LBASE, LSTRIDE = 0x800000, 0x1000000
V_, H_, X1_, Z_, U_ = 0, 0x200000, 0x400000, 0x600000, 0xA00000
WB, CT, SCR, LDS_BYTES = 0, 114688, 114688 + 22528, 163840
CT_FA, CT_TW, CT_FB, CT_M1 = 0, 6144, 10240, 14336

R_X, R_WIN, R_WSP, R_WOUT, R_OUT, R_WS, R_DBG, R_BSP, R_WL = 4, 8, 12, 16, 20, 24, 28, 32, 36
sW, sC, sB, sL, sTO = 40, 41, 42, 43, 44
sVst, sVld, sH, sK2, sXo, sXb, sZst, sZld, sUst, sUld = 45, 46, 47, 48, 49, 50, 51, 52, 53, 54
sFl, sSt, sWI, sWO, sWsp, sSelLo, sSelHi, sPidx, sOnes = 55, 56, 57, 58, 59, 60, 61, 62, 63
sArr, sRep, sS2, sS4, sS5, sB128, sDm, sDo = 64, 65, 66, 67, 68, 69, 70, 71
sT = 72
sStamp = 90
vL16, vTw, vK2, vXr, vVld, vVst, vBsp, vZst = 0, 1, 2, 3, 4, 5, 6, 7
vC2 = 8
vHw, vHr, vUw, vUr, vStl, vL8, vTr, vPoll, vArr, vProf, vGK = 16, 17, 18, 19, 20, 21, 22, 23, 24, 25, 26
vRed = 28
T = 32
XV = 40


def f2u(x):
    return struct.unpack('<I', struct.pack('<f', x))[0]


def bf16(x):
    u = np.ascontiguousarray(x, dtype=np.float32).view(np.uint32)
    return ((u + 0x7FFF + ((u >> 16) & 1)) >> 16).astype(np.uint32)


def const_table():
    l = np.arange(64)[:, None]
    j = np.arange(8)[None, :]
    nn, h = l & 31, l >> 5
    e1 = 16 * ((nn >> 2) & 1) + 4 * (nn >> 3) + (nn & 3)
    frags = []

    def pack(x):
        x = np.where(np.abs(x) < 1e-12, 0.0, x)
        b = bf16(x)
        return (b[:, 0::2] | (b[:, 1::2] << 16)).astype(np.uint32)
    ang = [2 * np.pi * ((16 * dh + 8 * h + j) * e1 % 32) / 32 for dh in range(2)]
    frags += [pack(np.cos(ang[0])), pack(np.cos(ang[1])), pack(np.sin(ang[0])), pack(np.sin(ang[1])),
              pack(-np.sin(ang[0])), pack(-np.sin(ang[1]))]
    d2 = 8 * (j >> 2) + 4 * h + (j & 3)
    tw = 2 * np.pi * (d2 * e1) / 512
    tc = np.cos(tw).astype(np.float32).view(np.uint32)
    ts = np.sin(tw).astype(np.float32).view(np.uint32)
    frags += [tc[:, :4], tc[:, 4:], ts[:, :4], ts[:, 4:]]
    ps = 2 * np.pi * (d2 * (nn & 15) % 16) / 16
    for row in range(2):
        m = ((nn >> 4) == row)
        frags += [pack(np.cos(ps) * m), pack(np.sin(ps) * m)]
    n, g = l & 15, l >> 4
    for jq in range(4):
        for ks in range(2):
            rho = 32 * ks + 16 * (j >> 2) + 4 * g + (j & 3)
            s1 = 16 * (rho >> 4) + 2 * (rho & 7) + ((rho >> 3) & 1)
            jj = 8 * jq + (n >> 1)
            th = 2 * np.pi * (s1 * jj % 64) / 64
            x = np.where((n & 1) == 0, np.cos(th), np.where(jj == 0, (-1.0) ** s1, -np.sin(th)))
            frags.append(pack(x))
    tab = np.concatenate([np.ascontiguousarray(f).reshape(-1) for f in frags])
    assert tab.size == 22 * 256
    return tab


p = Prog()
M16 = 'v_mfma_f32_16x16x32_bf16'
M32 = 'v_mfma_f32_32x32x16_bf16'


STAMPS = []


def stamp(name):
    STAMPS.append(name)
    if OPT['diag'] and OPT['diag'][:-1] == name:
        p(f's_memrealtime {s(sStamp, 2)}')
        p('s_waitcnt lgkmcnt(0)')
        p(f's_cmp_eq_u32 {s(sL)}, {OPT["diag"][-1]}')
        p(f's_cselect_b32 s101, {s(sStamp)}, s101')
    if PROF:
        p(f'{"s_memtime" if PROF == 2 else "s_memrealtime"} {s(sStamp, 2)}')
        p('s_waitcnt lgkmcnt(0)')
        p('s_mov_b32 s101, m0')
        p(f's_mov_b32 m0, {s(sPidx)}')
        p(f'v_writelane_b32 {v(vProf)}, {s(sStamp)}, m0')
        p('s_mov_b32 m0, s101')
        p(f's_add_u32 {s(sPidx)}, {s(sPidx)}, 1')


def srd(r, lo, hi, size):
    p(f's_mov_b32 {s(r)}, {s(lo)}')
    p(f's_and_b32 {s(r + 1)}, {s(hi)}, 0xffff')
    p(f's_mov_b32 {s(r + 2)}, {size:#x}')
    p(f's_mov_b32 {s(r + 3)}, 0x20000')


def if_wave0():
    p(f's_cmp_eq_u32 {s(sW)}, 0')
    p.begin('W0', 's_cbranch_scc0')


def if_layer(l):
    p(f's_cmp_eq_u32 {s(sL)}, {l}')
    p.begin(f'L{l}', 's_cbranch_scc0')


def spin_tail(top, done):
    p(f's_cbranch_vccz {done}')
    p(f's_sub_u32 {s(sTO)}, {s(sTO)}, 1')
    p(f's_cbranch_scc0 {top}')
    p(f's_mov_b32 {s(sTO)}, 0')
    p(f'{done}:')


def arrive(soff, nrep):
    p('s_barrier')
    if_wave0()
    p(f'v_mov_b32 {v(T)}, 1')
    p(f's_mov_b64 exec, {(1 << nrep) - 1:#x}')
    p(f'buffer_atomic_add {v(T)}, {v(vArr)}, {s(R_WS, 4)}, {s(soff)} offen sc1')
    p('s_mov_b64 exec, -1')
    p.end()


def poll(soff, sharded, need, tag=None):
    if_wave0()
    top, done = p.label('poll'), p.label('pdone')
    p(f'{top}:')
    if sharded:
        p(f'buffer_load_dword {v(T)}, {v(vPoll)}, {s(R_WS, 4)}, {s(soff)} offen sc1')
    else:
        p(f'buffer_load_dword {v(T)}, off, {s(R_WS, 4)}, {s(soff)} sc1')
    p('s_waitcnt vmcnt(0)')
    p(f'v_cmp_ne_u32 vcc, {need}, {v(T)}')
    spin_tail(top, done)
    p.end()
    if tag:
        p.wait_vm(tag)
    p('s_barrier')


def reduce_g(x, y):
    p(f'v_permlane16_swap_b32 {v(x)}, {v(y)}')
    p(f'v_add_f32 {v(x)}, {v(x)}, {v(y)}')
    p(f'v_mov_b32 {v(y)}, {v(x)}')
    p(f'v_permlane32_swap_b32 {v(x)}, {v(y)}')
    p(f'v_add_f32 {v(x)}, {v(x)}, {v(y)}')
    p(f'v_mov_b32 {v(y)}, {v(x)}')
    p(f'v_permlane16_swap_b32 {v(x)}, {v(y)}')


def finish_stats(x, n):
    y, m = x + 1, x + 2
    p(f'v_mul_f32 {v(m)}, {f2u(1.0 / n):#x}, {v(x)}')
    p(f'v_mul_f32 {v(y)}, {f2u(1.0 / n):#x}, {v(y)}')
    p(f'v_fma_f32 {v(y)}, -{v(m)}, {v(m)}, {v(y)}')
    p(f'v_max_f32 {v(y)}, 0, {v(y)}')
    p(f'v_add_f32 {v(y)}, {f2u(1e-5):#x}, {v(y)}')
    p(f'v_rsq_f32 {v(x)}, {v(y)}')
    p(f'v_mul_f32 {v(y)}, -{v(m)}, {v(x)}')


def norm_pack(src, n, st, tmp, dst):
    for i in range(0, n, 2):
        p(f'v_pk_fma_f32 {v(tmp + i, 2)}, {v(src + i, 2)}, {v(st, 2)}, {v(st, 2)} op_sel:[0,0,1] op_sel_hi:[1,0,1]')
    for i in range(0, n, 2):
        p(f'v_cvt_pk_bf16_f32 {v(dst + i // 2)}, {v(tmp + i)}, {v(tmp + i + 1)}')


def local_stats(src, n, out):
    sa, sq = out + 2, out + 4
    p(f'v_pk_add_f32 {v(sa, 2)}, {v(src, 2)}, {v(src + 2, 2)}')
    p(f'v_pk_mul_f32 {v(sq, 2)}, {v(src, 2)}, {v(src, 2)}')
    p(f'v_pk_fma_f32 {v(sq, 2)}, {v(src + 2, 2)}, {v(src + 2, 2)}, {v(sq, 2)}')
    for i in range(4, n, 2):
        p(f'v_pk_add_f32 {v(sa, 2)}, {v(sa, 2)}, {v(src + i, 2)}')
        p(f'v_pk_fma_f32 {v(sq, 2)}, {v(src + i, 2)}, {v(src + i, 2)}, {v(sq, 2)}')
    p(f'v_add_f32 {v(out)}, {v(sa)}, {v(sa + 1)}')
    p(f'v_add_f32 {v(out + 1)}, {v(sq)}, {v(sq + 1)}')


def unpack(src, n, dst):
    for i in range(n):
        p(f'v_lshlrev_b32 {v(dst + 2 * i)}, 16, {v(src + i)}')
        p(f'v_and_b32 {v(dst + 2 * i + 1)}, 0xffff0000, {v(src + i)}')


def publish_stats(area):
    p(f's_add_u32 {s(sT)}, {s(sSt)}, {s(sB128)}')
    if area:
        p(f's_add_u32 {s(sT)}, {s(sT)}, {area:#x}')
    p('s_mov_b64 exec, 0xffff')
    p(f'buffer_store_dwordx2 {v(T, 2)}, {v(vStl)}, {s(R_WS, 4)}, {s(sT)} offen sc1')
    p('s_mov_b64 exec, -1')


def gather_stats(area):
    p(f's_add_u32 {s(sT)}, {s(sSt)}, {area:#x}')
    top, done = p.label('gst'), p.label('gdone')
    p(f'{top}:')
    p(f'buffer_load_dwordx2 {v(T, 2)}, {v(vStl)}, {s(R_WS, 4)}, {s(sT)} offen sc1')
    p(f'buffer_load_dwordx2 {v(T + 2, 2)}, {v(vStl)}, {s(R_WS, 4)}, {s(sT)} offen offset:128 sc1')
    p('s_waitcnt vmcnt(0)')
    p(f'v_add_f32 {v(T)}, {v(T)}, {v(T + 2)}')
    p(f'v_add_f32 {v(T + 1)}, {v(T + 1)}, {v(T + 3)}')
    p(f'v_cmp_u_f32 vcc, {v(T)}, {v(T + 1)}')
    spin_tail(top, done)
    reduce_g(T, T + 1)


def w_dma_ops(sbase, extra):
    ops = []
    for half in range(2):
        for i in range(14):
            o = []
            if i % 4 == 0:
                off = half * 57344 + i * 1024
                o.append((f's_add_u32 m0, {s(sDm)}, {off:#x}', None))
                o.append((f's_add_u32 {s(sDo)}, {s(sbase)}, {extra + off:#x}', None))
            o.append((f'buffer_load_dwordx4 {v(vL16)}, {s(R_WS, 4)}, {s(sDo)} offen offset:{(i % 4) * 1024} lds', f'wdma{half}'))
            ops.append(o)
    return ops


def wsp_dma_ops(batch):
    q, ih = batch >> 1, batch & 1
    ops = []
    for il in range(4):
        for rh in range(2):
            imm = 512 * ih + 128 * il
            o = [(f's_add_u32 m0, {s(sWsp)}, {1024 + 8192 * (batch % 3) + 2048 * il + 1024 * rh - imm}', None)]
            if not ops:
                o += [(f's_add_u32 {s(sDo)}, {s(sW)}, {q}', None), (f's_and_b32 {s(sDo)}, {s(sDo)}, 3', None),
                      (f's_lshl_b32 {s(sDo)}, {s(sDo)}, 21', None)]
            o.append((f'buffer_load_dwordx4 {v(vWspA + rh)}, {s(R_WSP, 4)}, {s(sDo)} offen offset:{imm}{NT if batch < 2 else ""} lds', f'wsp{batch}'))
            ops.append(o)
    return ops


def wsp_dma(batch):
    p.bg = wsp_dma_ops(batch)
    p.bg_emit()


def wsp_read(batch, reg):
    p.wait_vm(f'wsp{batch}')
    for il in range(4):
        for o in range(2):
            p(f'ds_read_b128 {v(reg + 4 * (2 * il + o), 4)}, {v(vWspR + o)} offset:{8192 * (batch % 3) + 2048 * il}', tag=f'wr{batch}')


def wsp_perm(batch, reg):
    q, ih = batch >> 1, batch & 1
    k = 0
    for ipl in range(2):
        for o in range(2):
            for al in range(8):
                t = T + (k & 7)
                k += 1
                lo, hi = reg + 4 * (4 * ipl + o) + (al >> 1), reg + 4 * (4 * ipl + 2 + o) + (al >> 1)
                p(f'v_perm_b32 {v(t)}, {v(hi)}, {v(lo)}, {s(sSelHi if al & 1 else sSelLo)}')
                p(f'v_accvgpr_write_b32 {a((q * 16 + 8 * o + al) * 4 + 2 * ih + ipl)}, {v(t)}')


def wring_read(idx, ring, depth):
    base, off = (vL16, idx * 1024) if idx < 64 else (vL16hi, (idx - 64) * 1024)
    p(f'ds_read_b128 {v(ring + 4 * (idx % depth), 4)}, {v(base)} offset:{off}', tag=f'w{idx}')


def gemm_r(acc, nt, ks0, ks1, act, ring, depth, first_c=None, loads=(), preload=True, last=None):
    loads = list(loads)
    lo, hi = nt * ks0, nt * ks1
    if preload:
        for idx in range(lo, min(lo + depth, last or hi)):
            wring_read(idx, ring, depth)
    for idx in range(lo, hi):
        ks, t = divmod(idx, nt)
        if (idx - lo) % 2 == 0:
            p.wait_lgkm(f'w{min(idx + 1, hi - 1)}')
        c = v(acc + 4 * t, 4) if (ks or first_c) else '0'
        p(f'{M16} {v(acc + 4 * t, 4)}, {v(ring + 4 * (idx % depth), 4)}, {v(act + 4 * ks, 4)}, {c}')
        if idx + depth < (last or hi):
            wring_read(idx + depth, ring, depth)
        if t == 1 and loads:
            p(loads.pop(0))
    assert not loads


def gelu(x, n, tmp):
    for i in range(0, n, 4):
        t = tmp + (i & 4)
        for k in (0, 2):
            p(f'v_pk_mul_f32 {v(t + k, 2)}, {v(x + i + k, 2)}, {v(x + i + k, 2)}')
        for k in (0, 2):
            p(f'v_pk_fma_f32 {v(t + k, 2)}, {v(t + k, 2)}, {v(vGK, 2)}, {v(vGK, 2)} op_sel:[0,0,1] op_sel_hi:[1,0,1]')
        for k in (0, 2):
            p(f'v_pk_mul_f32 {v(t + k, 2)}, {v(t + k, 2)}, {v(x + i + k, 2)}')
        for k in range(4):
            p(f'v_exp_f32 {v(t + k)}, {v(t + k)}')
        for k in (0, 2):
            p(f'v_pk_add_f32 {v(t + k, 2)}, {v(t + k, 2)}, 1.0 op_sel_hi:[1,0]')
        for k in range(4):
            p(f'v_rcp_f32 {v(t + k)}, {v(t + k)}')
        for k in (0, 2):
            p(f'v_pk_mul_f32 {v(x + i + k, 2)}, {v(t + k, 2)}, {v(x + i + k, 2)}')


vWspA, vWspR = 244, 246
vHw2, vXr2 = 250, 251
vL16hi = 252
p.section('pro')
p(f'{NAME}:')
p(f's_cmp_ge_u32 s2, 256')
p('s_cbranch_scc1 L_exit')
p(f's_load_dwordx2 {s(72, 2)}, s[0:1], 0')
p(f's_load_dwordx8 {s(76, 8)}, s[0:1], 48')
p(f's_load_dwordx4 {s(84, 4)}, s[0:1], 80')
p(f's_load_dwordx2 {s(88, 2)}, s[0:1], 96')
if OPT['diag']:
    p(f's_memrealtime {s(sStamp, 2)}')
    p('s_waitcnt lgkmcnt(0)')
    p(f's_mov_b32 s3, {s(sStamp)}')
    p(f's_mov_b32 s101, {s(sStamp)}')
p(f's_getpc_b64 {s(92, 2)}')
p('L_pc:')
lane, n_, g_, t0, t1, t2, t3, tid = 100, 101, 102, 103, 104, 105, 106, 107
p(f'v_mov_b32 {v(tid)}, v0')
p(f's_lshr_b32 {s(94)}, s2, 3')
p(f's_lshl_b32 {s(94)}, {s(94)}, 4')
p(f'v_lshrrev_b32 {v(T)}, 4, v0')
p(f'v_add_u32 {v(T)}, {s(94)}, {v(T)}')
p(f'v_lshlrev_b32 {v(T)}, 7, {v(T)}')
p(f'v_min_u32 {v(T)}, L_end-L_pc-4, {v(T)}')
p(f'v_mov_b32 {v(T + 3)}, {s(93)}')
p(f'v_add_co_u32 {v(T + 2)}, vcc, {s(92)}, {v(T)}')
p(f'v_addc_co_u32 {v(T + 3)}, vcc, 0, {v(T + 3)}, vcc')
p(f'global_load_dword {v(253)}, {v(T + 2, 2)}, off')
p(f'v_lshrrev_b32 {v(t0)}, 6, v0')
p(f'v_and_b32 {v(lane)}, 63, v0')
p(f'v_readfirstlane_b32 {s(sW)}, {v(t0)}')
p(f'v_and_b32 {v(n_)}, 15, {v(lane)}')
p(f'v_lshrrev_b32 {v(g_)}, 4, {v(lane)}')
p(f'v_lshlrev_b32 {v(vL16)}, 4, {v(lane)}')
p(f's_lshr_b32 {s(94)}, s2, 3')
p(f's_and_b32 {s(sB)}, {s(94)}, 7')
p(f's_and_b32 {s(95)}, s2, 7')
p(f's_lshl_b32 {s(95)}, {s(95)}, 1')
p(f's_lshr_b32 {s(96)}, {s(94)}, 4')
p(f's_add_u32 {s(95)}, {s(95)}, {s(96)}')
p(f's_sub_u32 {s(96)}, 32, {s(95)}')
p(f's_cmp_eq_u32 {s(95)}, 0')
p(f's_cselect_b32 {s(96)}, 16, {s(96)}')
p(f's_bitcmp1_b32 {s(94)}, 3')
p(f's_cselect_b32 {s(sC)}, {s(96)}, {s(95)}')
p(f's_mov_b32 {s(sL)}, 0')
p(f's_mov_b32 {s(sTO)}, 40000')
p(f's_mov_b32 {s(sPidx)}, 0')
p(f's_lshl_b32 {s(sB128)}, {s(sB)}, 7')
p(f's_mov_b32 {s(sOnes)}, 0x3f803f80')
p(f's_mov_b32 {s(sSelLo)}, 0x05040100')
p(f's_mov_b32 {s(sSelHi)}, 0x07060302')
p(f's_lshl_b32 {s(94)}, {s(sW)}, 9')
p(f's_add_u32 {s(94)}, {s(94)}, {s(sC)}')
p(f'v_and_b32 {v(t0)}, 28, {v(lane)}')
p(f'v_lshlrev_b32 {v(t0)}, 4, {v(t0)}')
p(f'v_and_b32 {v(t1)}, 32, {v(lane)}')
p(f'v_add3_u32 {v(t0)}, {v(t0)}, {v(t1)}, {s(94)}')
p(f'v_lshlrev_b32 {v(t2)}, 10, {v(t0)}')
p(f'v_and_b32 {v(t1)}, 3, {v(lane)}')
p(f'v_lshl_add_u32 {v(t0)}, {v(t1)}, 5, {v(t2)}')
p(f'v_lshl_add_u32 {v(t2)}, {v(t1)}, 4, {v(t2)}')
p(f'v_and_b32 {v(t3)}, 7, {v(n_)}')
p(f'v_lshlrev_b32 {v(t3)}, 6, {v(t3)}')
p(f'v_and_b32 {v(t1)}, 8, {v(n_)}')
p(f'v_lshlrev_b32 {v(t1)}, 2, {v(t1)}')
p(f'v_add3_u32 {v(t3)}, {v(t3)}, {v(t1)}, {s(94)}')
p(f'v_lshlrev_b32 {v(t3)}, 1, {v(t3)}')
p('s_waitcnt lgkmcnt(0)')
srd(R_X, 72, 73, 2097152)
srd(R_WS, 88, 89, LBASE)
p('s_cmp_eq_u32 s2, 0')
p.begin('G0', 's_cbranch_scc0')
p(f'v_lshlrev_b32 {v(T)}, 8, {v(tid)}')
p(f'v_mov_b32 {v(T + 1)}, 0')
p(f's_mov_b32 {s(94)}, {FLAGS:#x}')
p(f's_mov_b32 {s(95)}, {FLAGS + 0x10000:#x}')
p(f'buffer_store_dword {v(T + 1)}, {v(T)}, {s(R_WS, 4)}, {s(94)} offen sc1', tag='z')
p(f'buffer_store_dword {v(T + 1)}, {v(T)}, {s(R_WS, 4)}, {s(95)} offen sc1', tag='z')
p.end()
XR = 120
p(f'buffer_load_dwordx4 {v(XR, 4)}, {v(t0)}, {s(R_X, 4)}, {s(sB128)} offen{NT}')
p(f'buffer_load_dwordx4 {v(XR + 4, 4)}, {v(t0)}, {s(R_X, 4)}, {s(sB128)} offen offset:16{NT}')
for i in range(1, 8):
    p(f's_add_u32 {s(94)}, {s(sB128)}, {128 * i}')
    p(f's_and_b32 {s(94)}, {s(94)}, 0x3ff')
    p(f'buffer_load_dwordx4 {v(XR + 8 * i, 4)}, {v(t2)}, {s(R_X, 4)}, {s(94)} offen{NT}')
    p(f'buffer_load_dwordx4 {v(XR + 8 * i + 4, 4)}, {v(t2)}, {s(R_X, 4)}, {s(94)} offen offset:64{NT}')
srd(R_WIN, 76, 77, 512 * 3584)
srd(R_WSP, 78, 79, 2048 * 4096)
srd(R_BSP, 80, 81, 4096)
srd(R_WOUT, 82, 83, 896 * 1024)
srd(R_OUT, 84, 85, 2097152)
srd(R_DBG, 86, 87, 256)
p(f's_add_u32 {s(88)}, {s(88)}, {LBASE:#x}')
p(f's_addc_u32 {s(89)}, {s(89)}, 0')
srd(R_WL, 88, 89, LSTRIDE)
if PROF:
    p(f'v_mov_b32 {v(vProf)}, 0')
stamp('start')
p(f's_add_u32 {s(92)}, {s(92)}, L_table-L_pc')
p(f's_addc_u32 {s(93)}, {s(93)}, 0')
p(f's_mul_i32 {s(94)}, {s(sW)}, 5632')
p(f'v_add_u32 {v(T)}, {s(94)}, {v(vL16)}')
p(f'v_mov_b32 {v(T + 5)}, {s(93)}')
p(f'v_add_co_u32 {v(T + 4)}, vcc, {s(92)}, {v(T)}')
p(f'v_addc_co_u32 {v(T + 5)}, vcc, 0, {v(T + 5)}, vcc')
p(f's_add_u32 m0, {s(94)}, {CT}')
for off in (0, 1024, 2048, 3072):
    p(f'global_load_lds_dwordx4 {v(T + 4, 2)}, off offset:{off}', tag='ct')
p(f'v_add_co_u32 {v(T + 4)}, vcc, 0x1000, {v(T + 4)}')
p(f'v_addc_co_u32 {v(T + 5)}, vcc, 0, {v(T + 5)}, vcc')
p(f's_add_u32 m0, {s(94)}, {CT + 4096}')
p(f'global_load_lds_dwordx4 {v(T + 4, 2)}, off', tag='ct')
p('s_mov_b32 exec_hi, 0')
p(f'global_load_lds_dwordx4 {v(T + 4, 2)}, off offset:1024', tag='ct')
p('s_mov_b64 exec, -1')
PR, PK = 64, 88
p(f'v_mul_u32_u24 {v(t1)}, {16 * 3584}, {v(g_)}')
p(f'v_lshl_add_u32 {v(t1)}, {v(n_)}, 1, {v(t1)}')
p(f's_and_b32 {s(94)}, {s(sC)}, 7')
p(f's_lshl_b32 {s(94)}, {s(94)}, 6')
p(f's_and_b32 {s(95)}, {s(sC)}, 8')
p(f's_add_u32 {s(94)}, {s(94)}, {s(95)}')
p(f's_mul_i32 {s(94)}, {s(94)}, 3584')
p(f's_lshr_b32 {s(95)}, {s(sC)}, 4')
p(f's_mul_i32 {s(95)}, {s(95)}, 1792')
p(f's_add_u32 {s(94)}, {s(94)}, {s(95)}')
p(f's_mul_i32 {s(95)}, {s(sB)}, 224')
p(f's_add_u32 {s(94)}, {s(94)}, {s(95)}')
p(f's_lshl_b32 {s(95)}, {s(sW)}, 5')
p(f's_add_u32 {s(94)}, {s(94)}, {s(95)}')
for j in range(8):
    p(f'buffer_load_ushort {v(PR + j)}, {v(t1)}, {s(R_WIN, 4)}, {s(94)} offen{NT}')
    p(f'buffer_load_ushort {v(PR + 8 + j)}, {v(t1)}, {s(R_WIN, 4)}, {s(94)} offen offset:128{NT}')
    if j < 7:
        p(f's_add_u32 {s(94)}, {s(94)}, 3584')
p(f'v_lshrrev_b32 {v(t1)}, 2, {v(n_)}')
p(f'v_lshlrev_b32 {v(t1)}, 4, {v(t1)}')
p(f'v_and_b32 {v(T)}, 3, {v(n_)}')
p(f'v_add_u32 {v(t1)}, {v(t1)}, {v(T)}')
p(f'v_lshlrev_b32 {v(t1)}, 1, {v(t1)}')
p(f'v_lshl_add_u32 {v(t1)}, {v(g_)}, 12, {v(t1)}')
p(f's_mul_i32 {s(94)}, {s(sC)}, 0x5556')
p(f's_lshr_b32 {s(94)}, {s(94)}, 16')
p(f's_lshl_b32 {s(94)}, {s(94)}, 4')
p(f's_lshl_b32 {s(95)}, {s(sC)}, 5')
p(f's_add_u32 {s(94)}, {s(94)}, {s(95)}')
p(f's_sub_u32 {s(95)}, {s(sC)}, 24')
p(f's_mul_i32 {s(95)}, {s(95)}, 224')
p(f's_add_u32 {s(95)}, {s(95)}, 96')
p(f's_cmp_lt_u32 {s(sC)}, 24')
p(f's_cselect_b32 {s(94)}, {s(94)}, {s(95)}')
p(f's_cselect_b32 {s(95)}, 16, 112')
p(f's_add_u32 {s(95)}, {s(95)}, {s(94)}')
p(f's_lshl_b32 {s(96)}, {s(sW)}, 3')
p(f's_add_u32 {s(96)}, {s(96)}, {s(sB128)}')
p(f's_lshl_b32 {s(94)}, {s(94)}, 10')
p(f's_lshl_b32 {s(95)}, {s(95)}, 10')
p(f's_add_u32 {s(94)}, {s(94)}, {s(96)}')
p(f's_add_u32 {s(95)}, {s(95)}, {s(96)}')
for j in range(8):
    p(f'buffer_load_ushort {v(PR + 16 + j)}, {v(t1)}, {s(R_WOUT, 4)}, {s(94 + (j >> 2))} offen offset:{(j & 3) * 1024}{NT}')
p(f'buffer_load_ushort {v(vBsp)}, {v(t3)}, {s(R_BSP, 4)}, 0 offen')
p(f'v_lshrrev_b32 {v(T)}, 3, {v(lane)}')
p(f'v_lshlrev_b32 {v(T)}, 18, {v(T)}')
p(f'v_and_b32 {v(T + 1)}, 7, {v(lane)}')
p(f'v_xor_b32 {v(T + 1)}, {v(T + 1)}, {v(g_)}')
p(f'v_lshl_add_u32 {v(T)}, {v(T + 1)}, 4, {v(T)}')
p(f's_lshl_b32 {s(94)}, {s(sC)}, 12')
p(f's_add_u32 {s(100)}, {s(sW)}, {s(sB)}')
p(f's_and_b32 {s(100)}, {s(100)}, 3')
p(f's_lshl_b32 {s(95)}, {s(100)}, 10')
p(f's_add_u32 {s(94)}, {s(94)}, {s(95)}')
p(f'v_add_u32 {v(vWspA)}, {s(94)}, {v(T)}')
p(f'v_xor_b32 {v(T)}, 64, {v(vWspA)}')
p(f'v_add_u32 {v(vWspA + 1)}, 0x20000, {v(T)}')
p(f's_mul_i32 {s(sWsp)}, {s(sW)}, 24576')
p(f'v_lshrrev_b32 {v(T)}, 1, {v(n_)}')
p(f'v_xor_b32 {v(T)}, {v(T)}, {v(g_)}')
p(f'v_lshlrev_b32 {v(T)}, 4, {v(T)}')
p(f'v_lshl_add_u32 {v(T)}, {v(n_)}, 7, {v(T)}')
p(f's_add_u32 {s(94)}, {s(sWsp)}, 1024')
p(f'v_add_u32 {v(vWspR)}, {s(94)}, {v(T)}')
p(f'v_xor_b32 {v(vWspR + 1)}, 64, {v(vWspR)}')
stamp('issued')
p('s_cmp_eq_u32 s2, 0')
p.begin('G0', 's_cbranch_scc0')
p.wait_vm('z')
p('s_barrier')
p(f'v_mov_b32 {v(T + 1)}, 1')
p('s_mov_b64 exec, 1')
p(f'buffer_store_dword {v(T + 1)}, off, {s(R_DBG, 4)}, 0 sc1')
p('s_mov_b64 exec, -1')
p.end()
p(f's_lshr_b32 {s(94)}, {s(sB)}, 2')
p(f's_and_b32 {s(95)}, {s(sB)}, 3')
p(f's_lshl_b32 {s(sVst)}, {s(sC)}, 11')
p(f's_lshl_b32 {s(96)}, {s(sB)}, 8')
p(f's_add_u32 {s(sVst)}, {s(sVst)}, {s(96)}')
p(f's_sub_u32 {s(96)}, 32, {s(sC)}')
p(f's_and_b32 {s(96)}, {s(96)}, 31')
p(f's_cmp_eq_u32 {s(94)}, 0')
p(f's_cselect_b32 {s(96)}, {s(sC)}, {s(96)}')
p(f's_lshl_b32 {s(sVld)}, {s(96)}, 16')
p(f's_lshl_b32 {s(sH)}, {s(sC)}, 16')
p(f's_lshl_b32 {s(96)}, {s(95)}, 14')
p(f's_lshl_b32 {s(97)}, {s(94)}, 7')
p(f's_add_u32 {s(96)}, {s(96)}, {s(97)}')
p(f's_add_u32 {s(sK2)}, {s(sH)}, {s(96)}')
p(f's_lshl_b32 {s(96)}, {s(sW)}, 14')
p(f's_add_u32 {s(sH)}, {s(sH)}, {s(96)}')
p(f's_mov_b32 {s(sXb)}, 0')
p(f's_mov_b32 {s(sXo)}, 16')
p(f's_lshl_b32 {s(96)}, {s(sB)}, 2')
p(f's_add_u32 {s(96)}, {s(96)}, {s(sW)}')
p(f's_mul_i32 {s(sZld)}, {s(96)}, 114688')
p(f's_add_u32 {s(sZld)}, {s(sZld)}, {Z_:#x}')
p(f's_and_b32 {s(96)}, {s(sC)}, 7')
p(f's_lshl_b32 {s(96)}, {s(96)}, 10')
p(f's_lshr_b32 {s(97)}, {s(sC)}, 3')
p(f's_lshl_b32 {s(97)}, {s(97)}, 8')
p(f's_add_u32 {s(96)}, {s(96)}, {s(97)}')
p(f's_add_u32 {s(sZst)}, {s(sZld)}, {s(96)}')
p(f's_lshl_b32 {s(96)}, {s(sB)}, 2')
p(f's_add_u32 {s(96)}, {s(96)}, {s(100)}')
p(f's_mul_i32 {s(sZld)}, {s(96)}, 114688')
p(f's_add_u32 {s(sZld)}, {s(sZld)}, {Z_:#x}')
p(f's_lshl_b32 {s(96)}, {s(sC)}, 2')
p(f's_add_u32 {s(96)}, {s(96)}, {s(sW)}')
p(f's_mul_i32 {s(sUld)}, {s(96)}, 28672')
p(f's_add_u32 {s(sUld)}, {s(sUld)}, {U_:#x}')
p(f's_mul_i32 {s(97)}, {s(sB)}, 3584')
p(f's_add_u32 {s(sUst)}, {s(sUld)}, {s(97)}')
p(f's_lshl_b32 {s(sSt)}, {s(96)}, 10')
p(f's_add_u32 {s(sSt)}, {s(sSt)}, {STATS:#x}')
p(f's_mul_i32 {s(sDm)}, {s(sW)}, 14336')
p(f's_mul_i32 {s(sWI)}, {s(sB)}, 229376')
p(f's_add_u32 {s(sWI)}, {s(sWI)}, {s(sDm)}')
p(f's_mul_i32 {s(sWO)}, {s(sB)}, 114688')
p(f's_add_u32 {s(sWO)}, {s(sWO)}, {s(sDm)}')
p(f's_add_u32 {s(sWO)}, {s(sWO)}, {WO:#x}')
p(f's_and_b32 {s(96)}, s2, 15')
p(f's_lshl_b32 {s(96)}, {s(96)}, 8')
p(f's_add_u32 {s(sArr)}, {s(96)}, {FLAGS:#x}')
p(f's_and_b32 {s(96)}, s2, 7')
p(f's_lshl_b32 {s(96)}, {s(96)}, 12')
p(f's_add_u32 {s(sRep)}, {s(96)}, {FLAGS:#x}')
p(f's_lshl_b32 {s(96)}, {s(sC)}, 8')
p(f's_add_u32 {s(sS2)}, {s(96)}, {FLAGS + 0x8000:#x}')
p(f's_add_u32 {s(sS5)}, {s(96)}, {FLAGS + 0xA000:#x}')
p(f's_lshl_b32 {s(96)}, {s(sB)}, 8')
p(f's_add_u32 {s(sS4)}, {s(96)}, {FLAGS + 0xC000:#x}')
p(f'v_lshlrev_b32 {v(vL8)}, 3, {v(lane)}')
p(f'v_add_u32 {v(vL16hi)}, 0x10000, {v(vL16)}')
p(f'v_lshlrev_b32 {v(vPoll)}, 8, {v(n_)}')
p(f'v_and_b32 {v(vArr)}, 7, {v(lane)}')
p(f'v_lshlrev_b32 {v(vArr)}, 12, {v(vArr)}')
p(f'v_lshlrev_b32 {v(vStl)}, 3, {v(n_)}')
p(f'v_lshl_add_u32 {v(vStl)}, {v(g_)}, 8, {v(vStl)}')
p(f'v_mov_b32 {v(vGK)}, {f2u(-2.302208198144325 * 0.044715):#x}')
p(f'v_mov_b32 {v(vGK + 1)}, {f2u(-2.302208198144325):#x}')
p(f'v_lshrrev_b32 {v(T)}, 3, {v(lane)}')
p(f'v_and_b32 {v(T + 4)}, 7, {v(lane)}')
p(f'v_lshlrev_b32 {v(T + 4)}, 4, {v(T + 4)}')
p(f'v_lshl_add_u32 {v(T + 2)}, {v(T)}, 8, {v(T + 4)}')
p(f's_lshl_b32 {s(96)}, {s(sW)}, 12')
p(f'v_add_u32 {v(vK2)}, {s(96)}, {v(T + 2)}')
p(f'v_and_b32 {v(T)}, 1, {v(T)}')
p(f'v_lshl_add_u32 {v(T)}, {v(T)}, 4, {v(g_)}')
p(f'v_mul_u32_u24 {v(T)}, 144, {v(T)}')
p(f's_lshr_b32 {s(96)}, {s(sW)}, 1')
p(f's_mul_i32 {s(96)}, {s(96)}, 4608')
p(f's_and_b32 {s(97)}, {s(sW)}, 1')
p(f's_mul_i32 {s(97)}, {s(97)}, 1152')
p(f's_add_u32 {s(96)}, {s(96)}, {s(97)}')
p(f's_add_u32 {s(96)}, {s(96)}, {SCR}')
p(f'v_add3_u32 {v(vTr)}, {v(T)}, {v(T + 4)}, {s(96)}')
p(f'v_lshrrev_b32 {v(T)}, 5, {v(lane)}')
p(f'v_and_b32 {v(T + 1)}, 1, {v(g_)}')
p(f'v_lshl_add_u32 {v(T + 2)}, {v(T)}, 4, {v(n_)}')
p(f'v_mul_u32_u24 {v(T + 2)}, 144, {v(T + 2)}')
p(f'v_lshl_add_u32 {v(T + 2)}, {v(T + 1)}, 4, {v(T + 2)}')
p(f's_lshl_b32 {s(96)}, {s(sW)}, 5')
p(f's_add_u32 {s(97)}, {s(96)}, {SCR}')
p(f'v_add_u32 {v(vTw)}, {s(97)}, {v(T + 2)}')
p(f'v_lshlrev_b32 {v(T + 2)}, 6, {v(n_)}')
p(f'v_lshl_add_u32 {v(T + 2)}, {v(T)}, 5, {v(T + 2)}')
p(f'v_lshlrev_b32 {v(T + 3)}, 3, {v(T + 2)}')
p(f'v_lshl_add_u32 {v(T + 3)}, {v(T + 1)}, 4, {v(T + 3)}')
p(f'v_add_u32 {v(vXr2)}, {s(96)}, {v(T + 3)}')
p(f's_lshl_b32 {s(96)}, {s(95)}, 4')
p(f's_add_u32 {s(96)}, {s(96)}, {s(94)}')
p(f's_lshl_b32 {s(96)}, {s(96)}, 5')
p(f's_add_u32 {s(98)}, {s(96)}, {s(sC)}')
p(f's_lshl_b32 {s(96)}, {s(sW)}, 7')
p(f's_add_u32 {s(96)}, {s(96)}, {s(98)}')
p(f's_lshl_b32 {s(96)}, {s(96)}, 10')
p(f'v_lshl_add_u32 {v(T + 3)}, {v(T + 1)}, 16, {v(T + 2)}')
p(f'v_add_u32 {v(vXr)}, {s(96)}, {v(T + 3)}')
p(f'v_mul_u32_u24 {v(T + 3)}, 1040, {v(T + 1)}')
p(f'v_lshl_add_u32 {v(T + 3)}, {v(T)}, 8, {v(T + 3)}')
p(f'v_lshl_add_u32 {v(T + 3)}, {v(n_)}, 3, {v(T + 3)}')
p(f's_mul_i32 {s(96)}, {s(sW)}, 2080')
p(f's_add_u32 {s(96)}, {s(96)}, {SCR}')
p(f'v_add_u32 {v(vUr)}, {s(96)}, {v(T + 3)}')
p(f'v_mul_u32_u24 {v(T + 3)}, 1040, {v(n_)}')
p(f'v_lshl_add_u32 {v(T + 3)}, {v(g_)}, 5, {v(T + 3)}')
p(f's_lshl_b32 {s(96)}, {s(sW)}, 8')
p(f's_add_u32 {s(96)}, {s(96)}, {SCR}')
p(f'v_add_u32 {v(vUw)}, {s(96)}, {v(T + 3)}')
p(f'v_lshlrev_b32 {v(T + 3)}, 14, {v(T + 1)}')
p(f'v_lshl_add_u32 {v(T + 3)}, {v(T)}, 13, {v(T + 3)}')
p(f'v_lshl_add_u32 {v(vZst)}, {v(n_)}, 4, {v(T + 3)}')
p(f'v_lshlrev_b32 {v(T + 3)}, 13, {v(g_)}')
p(f'v_lshl_add_u32 {v(T + 3)}, {v(n_)}, 4, {v(T + 3)}')
p(f's_lshl_b32 {s(96)}, {s(sW)}, 9')
p(f'v_add_u32 {v(vVld)}, {s(96)}, {v(T + 3)}')
p(f'v_lshlrev_b32 {v(T + 3)}, 17, {v(g_)}')
p(f'v_lshl_add_u32 {v(T + 3)}, {v(n_)}, 4, {v(T + 3)}')
p(f's_lshl_b32 {s(96)}, {s(sW)}, 19')
p(f'v_add_u32 {v(vVst)}, {s(96)}, {v(T + 3)}')
p(f'v_mul_u32_u24 {v(T + 3)}, 160, {v(n_)}')
p(f'v_lshl_add_u32 {v(T + 3)}, {v(g_)}, 3, {v(T + 3)}')
p(f's_mul_i32 {s(96)}, {s(sW)}, 2560')
p(f's_add_u32 {s(96)}, {s(96)}, {SCR}')
p(f'v_add_u32 {v(vHw2)}, {s(96)}, {v(T + 3)}')
p(f'v_lshrrev_b32 {v(T + 3)}, 2, {v(lane)}')
p(f'v_mul_u32_u24 {v(T + 3)}, 160, {v(T + 3)}')
p(f'v_and_b32 {v(T + 2)}, 3, {v(lane)}')
p(f'v_lshl_add_u32 {v(T + 3)}, {v(T + 2)}, 3, {v(T + 3)}')
p(f'v_add_u32 {v(vHw)}, {s(96)}, {v(T + 3)}')
p(f'v_add_u32 {v(vHr)}, {SCR}, {v(T + 3)}')
for q in range(1, 5):
    p(f's_add_u32 {s(96)}, {s(sW)}, {q}')
    p(f's_and_b32 {s(96)}, {s(96)}, 3')
    p(f's_mul_i32 {s(96)}, {s(96)}, 3072')
    p(f's_add_u32 {s(96)}, {s(96)}, {SCR + (1024 * (q - 1) if q < 4 else 0)}')
    p(f'v_add_u32 {v(vRed + q - 1)}, {s(96)}, {v(vL16)}')
p(f'v_and_b32 {v(T)}, 7, {v(n_)}')
p(f'v_lshlrev_b32 {v(T)}, 6, {v(T)}')
p(f'v_add_u32 {v(T)}, {s(98)}, {v(T)}')
p(f'v_lshlrev_b32 {v(T + 1)}, 2, {v(g_)}')
p(f'v_mul_u32_u24 {v(T + 1)}, {v(T + 1)}, {v(T)}')
p(f'v_lshrrev_b32 {v(T + 2)}, 3, {v(n_)}')
p(f'v_lshl_add_u32 {v(T + 1)}, {v(T + 2)}, 9, {v(T + 1)}')
p(f's_cmp_eq_u32 {s(94)}, 0')
p(f's_cselect_b32 {s(73)}, 1.0, -1.0')
p(f's_cselect_b32 {s(74)}, 0, 1.0')
p(f's_cselect_b32 {s(72)}, 1.0, 0')
p(f's_cmp_eq_u32 {s(sC)}, 0')
p(f's_cselect_b32 {s(72)}, {s(72)}, 1.0')
p(f's_cselect_b32 {s(73)}, 0, {s(73)}')
p(f's_cselect_b32 {s(74)}, {s(74)}, 0')
for k in range(8):
    cp = 16 * (k >> 2) + (k & 3)
    p(f'v_mad_u32_u24 {v(T + 2)}, {v(T)}, {cp}, {v(T + 1)}')
    p(f'v_and_b32 {v(T + 2)}, 0x7ff, {v(T + 2)}')
    p(f'v_cvt_f32_u32 {v(T + 2)}, {v(T + 2)}')
    p(f'v_mul_f32 {v(T + 2)}, {f2u(1.0 / 2048):#x}, {v(T + 2)}')
    p(f'v_cos_f32 {v(T + 3)}, {v(T + 2)}')
    p(f'v_sin_f32 {v(T + 4)}, {v(T + 2)}')
    p(f'v_mul_f32 {v(T + 5)}, {s(74)}, {v(T + 3)}')
    p(f'v_mul_f32 {v(T + 3)}, {s(72)}, {v(T + 3)}')
    p(f'v_fma_f32 {v(T + 4)}, {s(73)}, {v(T + 4)}, {v(T + 5)}')
    p(f'v_cvt_pk_bf16_f32 {v(vC2 + k)}, {v(T + 3)}, {v(T + 4)}')
p(f'v_mov_b32 {v(T)}, -1')
p(f'v_mov_b32 {v(T + 1)}, -1')
p('s_mov_b64 exec, 0xffff')
for k in range(3):
    p(f's_add_u32 {s(96)}, {s(sSt)}, {s(sB128)}')
    p(f's_add_u32 {s(96)}, {s(96)}, {k * 0x20000:#x}')
    p(f'buffer_store_dwordx2 {v(T, 2)}, {v(vStl)}, {s(R_WS, 4)}, {s(96)} offen sc1', tag='pub')
p('s_mov_b64 exec, -1')
stamp('setup')
for k in range(4):
    p(f'v_mov_b32 {v(T + 2 + k)}, 0')
p.bg = wsp_dma_ops(0) + wsp_dma_ops(1)
p.bg_on(OPT['wspev'])
for i in range(64):
    p(f'v_dot2c_f32_bf16 {v(T + 2 + (i & 1))}, {s(sOnes)}, {v(XR + i)}')
    p(f'v_dot2c_f32_bf16 {v(T + 4 + (i & 1))}, {v(XR + i)}, {v(XR + i)}')
unpack(XR, 8, XV)
p.bg_on(0)
p.bg_emit()
p(f'v_add_f32 {v(T)}, {v(T + 2)}, {v(T + 3)}')
p(f'v_add_f32 {v(T + 1)}, {v(T + 4)}, {v(T + 5)}')
for qp in ('[1,0,3,2]', '[2,3,0,1]'):
    for k in range(2):
        p(f'v_add_f32_dpp {v(T + k)}, {v(T + k)}, {v(T + k)} quad_perm:{qp} row_mask:0xf bank_mask:0xf')
stamp('stats')
for k in range(12):
    p(f'v_lshl_or_b32 {v(PK + k)}, {v(PR + 2 * k + 1)}, 16, {v(PR + 2 * k)}')
p(f'v_lshlrev_b32 {v(vBsp)}, 16, {v(vBsp)}')
p(f's_mul_i32 {s(94)}, {s(sB)}, 229376')
p(f's_mul_i32 {s(95)}, {s(sC)}, 7168')
p(f's_add_u32 {s(94)}, {s(94)}, {s(95)}')
p(f's_lshl_b32 {s(95)}, {s(sW)}, 10')
p(f's_add_u32 {s(94)}, {s(94)}, {s(95)}')
p(f'buffer_store_dwordx4 {v(PK, 4)}, {v(vL16)}, {s(R_WS, 4)}, {s(94)} offen sc1', tag='pub')
p(f's_add_u32 {s(94)}, {s(94)}, 4096')
p(f's_cmp_lt_u32 {s(sW)}, 3')
p.begin('W012', 's_cbranch_scc0')
p(f'buffer_store_dwordx4 {v(PK + 4, 4)}, {v(vL16)}, {s(R_WS, 4)}, {s(94)} offen sc1', tag='pub')
p.end()
p(f's_mul_i32 {s(94)}, {s(sB)}, 114688')
p(f's_lshl_b32 {s(96)}, {s(sC)}, 12')
p(f's_add_u32 {s(94)}, {s(94)}, {s(96)}')
p(f's_add_u32 {s(94)}, {s(94)}, {s(95)}')
p(f's_add_u32 {s(94)}, {s(94)}, {WO:#x}')
p(f's_cmp_lt_u32 {s(sC)}, 28')
p.begin('C28', 's_cbranch_scc0')
p(f'buffer_store_dwordx4 {v(PK + 8, 4)}, {v(vL16)}, {s(R_WS, 4)}, {s(94)} offen sc1', tag='pub')
p.end()
p.wait_vm('ct')
p('s_barrier')

p.section('body')
p('L_layer:')
stamp('T')
HP, M1, AF, D1, VO = 56, 64, 72, 104, 56
p(f's_lshl_b32 {s(sT)}, {s(sW)}, 11')
p(f's_add_u32 {s(sT)}, {s(sT)}, {CT + CT_M1}')
p(f'v_add_u32 {v(T + 7)}, {s(sT)}, {v(vL16)}')
p(f's_add_u32 {s(sT + 1)}, {s(sVst)}, 0x10000')
finish_stats(T, 512)
for i in range(0, 16, 2):
    p(f'v_pk_fma_f32 {v(XV + i, 2)}, {v(XV + i, 2)}, {v(T, 2)}, {v(T, 2)} op_sel:[0,0,1] op_sel_hi:[1,0,1]')
for t in range(4):
    for k in range(2):
        p(f'v_cvt_pk_bf16_f32 {v(HP + 2 * t + k)}, {v(XV + 8 * k + t)}, {v(XV + 8 * k + 4 + t)}')
    p(f'ds_write_b64 {v(vHw)}, {v(HP + 2 * t, 2)} offset:{32 * t}', tag='hw')
for k in range(2):
    p(f'ds_read_b128 {v(M1 + 4 * k, 4)}, {v(T + 7)} offset:{k * 1024}')
p.wait_lgkm('hw')
p('s_barrier')
for ks in range(2):
    for tile in range(4):
        for half in range(2):
            p(f'ds_read_b64_tr_b16 {v(AF + 16 * ks + 4 * tile + 2 * half, 2)}, {v(vHr)} offset:{(32 * ks + 16 * half) * 160 + 32 * tile}')
for ks in range(2):
    for tile in range(4):
        d = D1 + 4 * tile
        p(f'{M16} {v(d, 4)}, {v(M1 + 4 * ks, 4)}, {v(AF + 16 * ks + 4 * tile, 4)}, {v(d, 4) if ks else 0}')
for jj in range(2):
    for t in range(4):
        p(f'v_cvt_pk_bf16_f32 {v(VO + 4 * jj + t)}, {v(D1 + 4 * t + 2 * jj)}, {v(D1 + 4 * t + 2 * jj + 1)}')
    p(f'buffer_store_dwordx4 {v(VO + 4 * jj, 4)}, {v(vVst)}, {s(R_WL, 4)}, {s(sT + 1 if jj else sVst)} offen sc1', tag='pub')
stamp('Vst')
WSR = (120, 152)
if_layer(0)
if_wave0()
top, done = p.label('init'), p.label('idone')
p(f'{top}:')
p(f'buffer_load_dword {v(T)}, off, {s(R_DBG, 4)}, 0 sc1')
p('s_waitcnt vmcnt(0)')
p(f'v_cmp_ne_u32 vcc, 1, {v(T)}')
spin_tail(top, done)
p.end()
wsp_dma(2)
p.end()
stamp('init')
p.wait_vm('pub')
arrive(sArr, 8)
stamp('arr1')
if_layer(0)
wsp_read(0, WSR[0])
for k in range(8):
    if k + 3 < 8:
        p.wait_lgkm(f'wr{k}')
        wsp_dma(k + 3)
    if k + 1 < 8:
        wsp_read(k + 1, WSR[(k + 1) & 1])
    wsp_perm(k, WSR[k & 1])
p.end()
if_layer(1)
p.bg = w_dma_ops(sWI, 114688)
p.bg_emit()
p.end()
wz2 = w_dma_ops(sWI, 114688)


def l0_dma(n):
    if_layer(0)
    p.bg = [wz2.pop(0) for _ in range(n)]
    p.bg_emit()
    p.end()


FA, TW, FB, VR, D2, UP, XRES, Y = 40, 64, 80, 96, 160, 192, 200, 208
for k in range(14):
    p(f'ds_read_b128 {v(FA + 4 * k, 4)}, {v(vL16hi)} offset:{CT - 65536 + k * 1024}')
for k in range(4):
    p(f's_add_u32 {s(sT + 4 + k)}, {s(sVld)}, {(16 * (k >> 1) + 2 * (k & 1)) * 2048:#x}')
stamp('win1')
poll(sRep, True, 16)
stamp('S1')
for hi in range(2):
    for ks in range(2):
        for ii in range(4):
            r = VR + 32 * hi + 16 * ks + 4 * ii
            p(f'buffer_load_dwordx4 {v(r, 4)}, {v(vVld)}, {s(R_WL, 4)}, {s(sT + 4 + 2 * ks + (ii >> 1))} offen offset:{(ii & 1) * 2048 + hi * 256} sc1')
p(f'buffer_load_dwordx4 {v(XRES, 4)}, {v(vXr)}, {s(R_X, 4)}, {s(sXb)} offen sc1')
p(f'buffer_load_dwordx4 {v(XRES + 4, 4)}, {v(vXr)}, {s(R_X, 4)}, {s(sXo)} offen sc1')
for hi in range(2):
    for ks in range(2):
        r = VR + 32 * hi + 16 * ks
        for i in range(4):
            for j in range(i + 1, 4):
                p(f'v_swap_b32 {v(r + 4 * i + j)}, {v(r + 4 * j + i)}')
        for lo in range(4):
            d = D2 + 16 * hi + 4 * lo
            p(f'{M16} {v(d, 4)}, {v(r + 4 * lo, 4)}, {v(vC2 + 4 * ks, 4)}, {v(d, 4) if ks else 0}')
l0_dma(4)
for hi in range(2):
    UP = (192, 240)[hi]
    for r in range(4):
        for lp in range(2):
            p(f'v_cvt_pk_bf16_f32 {v(UP + 2 * r + lp)}, {v(D2 + 16 * hi + 8 * lp + r)}, {v(D2 + 16 * hi + 8 * lp + 4 + r)}')
    p(f'ds_write_b128 {v(vUw)}, {v(UP, 4)} offset:{128 * hi}')
    p(f'ds_write_b128 {v(vUw)}, {v(UP + 4, 4)} offset:{128 * hi + 16}')
p('s_waitcnt lgkmcnt(0)')
p('s_barrier')
UA, DR, DI, TT, PF = 96, 112, 128, 144, 160
for ri in range(2):
    for dh in range(2):
        for half in range(2):
            p(f'ds_read_b64_tr_b16 {v(UA + 8 * ri + 4 * dh + 2 * half, 2)}, {v(vUr)} offset:{ri * 8320 + dh * 512 + half * 128}')
l0_dma(4)
unpack(XRES, 8, Y)
for ri in range(2):
    for dh in range(2):
        first = ri == 0 and dh == 0
        fr = FA + 4 * ((2 if ri else 0) + dh)
        fi = FA + 4 * ((0 if ri else 4) + dh)
        p(f'{M32} {v(DR, 16)}, {v(UA + 8 * ri + 4 * dh, 4)}, {v(fr, 4)}, {0 if first else v(DR, 16)}')
        p(f'{M32} {v(DI, 16)}, {v(UA + 8 * ri + 4 * dh, 4)}, {v(fi, 4)}, {0 if first else v(DI, 16)}')
l0_dma(4)
for row in range(2):
    for k in range(0, 8, 2):
        r = 8 * row + k
        p(f'v_pk_mul_f32 {v(TT + k, 2)}, {v(DI + r, 2)}, {v(TW + 8 + k, 2)}')
        p(f'v_pk_mul_f32 {v(TT + 8 + k, 2)}, {v(DR + r, 2)}, {v(TW + 8 + k, 2)}')
    for k in range(0, 8, 2):
        r = 8 * row + k
        p(f'v_pk_fma_f32 {v(TT + k, 2)}, {v(DR + r, 2)}, {v(TW + k, 2)}, {v(TT + k, 2)}')
        p(f'v_pk_fma_f32 {v(TT + 8 + k, 2)}, {v(DI + r, 2)}, {v(TW + k, 2)}, {v(TT + 8 + k, 2)} neg_lo:[0,0,1] neg_hi:[0,0,1]')
    for k in range(8):
        p(f'v_cvt_pk_bf16_f32 {v(PF + 8 * row + k)}, {v(TT + 2 * k)}, {v(TT + 2 * k + 1)}')
for k in range(4):
    p(f'{M32} {v(Y, 16)}, {v(PF + 4 * k, 4)}, {v(FB + 4 * k, 4)}, {v(Y, 16)}')
XO, HO = 224, 232
l0_dma(4)
local_stats(Y, 16, T)
p(f'v_permlane32_swap_b32 {v(T)}, {v(T + 1)}')
p(f'v_add_f32 {v(T)}, {v(T)}, {v(T + 1)}')
for k, sh in enumerate((8, 4, 2, 1)):
    p(f'v_cvt_pk_bf16_f32 {v(XO + 2 * k)}, {v(Y + 4 * k)}, {v(Y + 4 * k + 1)}')
    p(f'v_cvt_pk_bf16_f32 {v(XO + 2 * k + 1)}, {v(Y + 4 * k + 2)}, {v(Y + 4 * k + 3)}')
    p(f'v_add_f32_dpp {v(T)}, {v(T)}, {v(T)} row_ror:{sh} row_mask:0xf bank_mask:0xf')
p(f'v_mov_b32 {v(T + 1)}, {v(T)}')
p(f's_add_u32 {s(sT)}, {s(sK2)}, {X1_:#x}')
p(f's_add_u32 {s(sT + 1)}, {s(sK2)}, {H_:#x}')
p(f'v_permlane32_swap_b32 {v(T)}, {v(T + 1)}')
finish_stats(T, 512)
norm_pack(Y, 16, T, Y, HO)
for o in range(2):
    p(f'ds_write_b128 {v(vTw)}, {v(HO + 4 * o, 4)} offset:{16640 + 4608 * o}')
p('s_waitcnt lgkmcnt(0)')
p('s_barrier')
for k in range(2):
    p(f'ds_read_b128 {v(HO + 4 * k, 4)}, {v(vTr)} offset:{16640 + 576 * k}')
for o in range(2):
    p(f'ds_write_b128 {v(vTw)}, {v(XO + 4 * o, 4)} offset:{4608 * o}')
for k in range(2):
    p(f'buffer_store_dwordx4 {v(HO + 4 * k, 4)}, {v(vK2)}, {s(R_WL, 4)}, {s(sT + 1)} offen offset:{2048 * k} sc1', tag='pub')
if OPT['dbl']:
    for k in range(2):
        p(f'buffer_store_dwordx4 {v(HO + 4 * k, 4)}, {v(vK2)}, {s(R_WL, 4)}, {s(sT + 1)} offen offset:{2048 * k}')
l0_dma(6)
stamp('K2')
p('s_waitcnt lgkmcnt(0)')
p.wait_vm('pub')
arrive(sS2, 1)
for k in range(2):
    p(f'ds_read_b128 {v(XO + 4 * k, 4)}, {v(vTr)} offset:{576 * k}')
for k in range(2):
    p(f'buffer_store_dwordx4 {v(XO + 4 * k, 4)}, {v(vK2)}, {s(R_WL, 4)}, {s(sT)} offen offset:{2048 * k} sc1', tag='x1')
l0_dma(6)
stamp('arr2')
HF, Z2, Z1, WR, WD, GT = 40, 104, 136, 164, 12, 212
for k in range(4):
    p(f's_add_u32 {s(sT + 4 + k)}, {s(sH)}, {H_ + 4096 * k:#x}')
poll(sS2, False, 8, 'wdma1')
stamp('S2')
hl = [f'buffer_load_dwordx4 {v(HF + 4 * ks, 4)}, {v(vL16)}, {s(R_WL, 4)}, {s(sT + 4 + (ks >> 2))} offen offset:{1024 * (ks & 3)} sc1' for ks in range(16)]
for x in hl[:OPT['pre3']]:
    p(x)
gemm_r(Z2, 7, 0, 16, HF, WR, WD, loads=hl[OPT['pre3']:])
p.wait_vm('x1')
p('s_barrier')
stamp('z2mm')
p.bg = w_dma_ops(sWI, 0)
p.bg_emit(2)
p.bg_on(OPT['g2ev'])
gelu(Z2, 28, GT)
local_stats(Z2, 28, T)
p.bg_on(0)
reduce_g(T, T + 1)
publish_stats(0)
stamp('pub3')
Z1A = OPT['z1a']
if Z1A:
    p.bg_emit(max(0, len(p.bg) - 14))
    p.wait_vm('wdma0')
    p('s_barrier')
    p.bg_on(max(1, 14 * Z1A // max(1, len(p.bg))))
    gemm_r(Z1, 7, 0, Z1A, HF, WR, WD)
    p.bg_on(0)
p.bg_emit()
SEL, ZP, ZT, ZO = 220, 228, 164, 104
p(f'v_and_b32 {v(SEL)}, 0xf0, {v(vL16)}')
p(f'v_lshrrev_b32 {v(SEL + 1)}, 2, {v(vL16)}')
p(f'v_and_b32 {v(SEL + 1)}, 0xc0, {v(SEL + 1)}')
p(f'v_sub_u32 {v(SEL)}, {v(SEL)}, {v(SEL + 1)}')
p(f'v_mov_b32 {v(SEL + 4)}, 0x3f80')
p(f'v_lshlrev_b32 {v(SEL + 4)}, {v(SEL)}, {v(SEL + 4)}')
p(f'v_lshrrev_b32 {v(SEL + 1)}, 5, {v(SEL)}')
p(f'v_cmp_eq_u32 vcc, 0, {v(SEL + 1)}')
p(f'v_cndmask_b32 {v(SEL + 2)}, 0, {v(SEL + 4)}, vcc')
p(f'v_cmp_eq_u32 vcc, 1, {v(SEL + 1)}')
p(f'v_cndmask_b32 {v(SEL + 3)}, 0, {v(SEL + 4)}, vcc')
for k in (0, 1, 4, 5):
    p(f'v_mov_b32 {v(SEL + k)}, 0')
p(f'v_mov_b32 {v(ZP + 14)}, 0')
p(f'v_mov_b32 {v(ZP + 15)}, 0')
stamp('z1a')
gather_stats(0)
stamp('S3')
finish_stats(T, 896)
norm_pack(Z2, 28, T, Z2, ZP)
for ft in range(7):
    p(f'{M16} {v(ZT + 4 * ft, 4)}, {v(ZP + 4 * (ft >> 1), 4)}, {v(SEL + (0 if ft & 1 else 2), 4)}, 0')
for ft in range(7):
    for k in range(2):
        p(f'v_cvt_pk_bf16_f32 {v(ZO + 2 * ft + k)}, {v(ZT + 4 * ft + 2 * k)}, {v(ZT + 4 * ft + 2 * k + 1)}')
for pr in range(4):
    p(f's_add_u32 {s(sT)}, {s(sZst)}, {pr * 32768:#x}')
    for k in range(2):
        p(f'v_permlane16_swap_b32 {v(ZO + 4 * pr + k)}, {v(ZO + 4 * pr + 2 + k)}')
    if pr == 3:
        p('s_mov_b32 exec_lo, 0xffff')
        p('s_mov_b32 exec_hi, 0xffff')
    p(f'buffer_store_dwordx4 {v(ZO + 4 * pr, 4)}, {v(vZst)}, {s(R_WL, 4)}, {s(sT)} offen sc1')
p('s_mov_b64 exec, -1')
stamp('Zst')
p('s_barrier')
Z1B = min(16, Z1A + OPT['z1arr'])
gemm_r(Z1, 7, Z1A, Z1B, HF, WR, WD, last=112)
p('s_waitcnt vmcnt(0)')
arrive(sS4, 1)
stamp('arr4')
gemm_r(Z1, 7, Z1B, 16, HF, WR, WD, preload=False)
wo = w_dma_ops(sWO, 0)
p(f's_mov_b32 {s(sT + 2)}, {s(sZld)}')
stamp('win4')
poll(sS4, False, 32)
stamp('S4')
ZD, AC, RT, UO = OPT['zd'], 196, 228, 240


def zreg(fi):
    k = fi % ZD
    return 40 + 4 * k if k < 24 else 164 + 4 * (k - 24)


def zload(fi):
    if fi % 4 == 0 and fi:
        p(f's_add_u32 {s(sT + 2)}, {s(sT + 2)}, 4096')
    if OPT['k4load'] or fi < ZD:
        p(f'buffer_load_dwordx4 {v(zreg(fi), 4)}, {v(vL16)}, {s(R_WL, 4)}, {s(sT + 2)} offen offset:{(fi % 4) * 1024}' + ' sc1')


def k4_epilogue(ft):
    ac, buf = AC + 16 * (ft & 1), 12288 * (ft & 1)
    st1 = [f'ds_write_b128 {v(vRed + q - 1)}, {v(ac + 4 * q, 4)} offset:{buf}' for q in (1, 2, 3)]
    st1 += [f'v_add_f32 {v(ac + r)}, {v(vBsp)}, {v(ac + r)}' for r in range(4)]
    st2 = ['s_waitcnt lgkmcnt(0)', 's_barrier']
    st2 += [f'ds_read_b128 {v(RT + 4 * q, 4)}, {v(vRed + 3)} offset:{buf + 1024 * q}' for q in range(3)]
    st3 = [f'v_add_f32 {v(ac + r)}, {v(RT + 4 * q + r)}, {v(ac + r)}' for q in range(3) for r in range(4)]
    st3 += [f'v_mul_f32 {v(ac + r)}, {v(Z1 + 4 * ft + r)}, {v(ac + r)}' for r in range(4)]
    st3 += [f'v_cvt_pk_bf16_f32 {v(UO + 2 * (ft & 1) + k)}, {v(ac + 2 * k)}, {v(ac + 2 * k + 1)}' for k in range(2)]
    if ft == 6:
        st3 += [f'buffer_store_dwordx2 {v(UO, 2)}, {v(vL8)}, {s(R_WL, 4)}, {s(sUst)} offen offset:3072 sc1']
    elif ft & 1:
        st3 += [f'buffer_store_dwordx4 {v(UO, 4)}, {v(vL16)}, {s(R_WL, 4)}, {s(sUst)} offen offset:{1024 * (ft >> 1)} sc1']
        if OPT['dbl']:
            st3 += [st3[-1][:-4]]
    return st1, st2, st3


def gelu_ops(x, t):
    ops = [f'v_mul_f32 {v(t + k)}, {v(x + k)}, {v(x + k)}' for k in range(4)]
    ops += [f'v_fma_f32 {v(t + k)}, {v(t + k)}, {v(vGK)}, {v(vGK + 1)}' for k in range(4)]
    ops += [f'v_mul_f32 {v(t + k)}, {v(t + k)}, {v(x + k)}' for k in range(4)]
    ops += [f'v_exp_f32 {v(t + k)}, {v(t + k)}' for k in range(4)]
    ops += [f'v_add_f32 {v(t + k)}, 1.0, {v(t + k)}' for k in range(4)]
    ops += [f'v_rcp_f32 {v(t + k)}, {v(t + k)}' for k in range(4)]
    ops += [f'v_mul_f32 {v(x + k)}, {v(t + k)}, {v(x + k)}' for k in range(4)]
    return ops


for fi in range(ZD):
    zload(fi)
for ft in range(7):
    fill = {}
    if ft and OPT['k4epi']:
        st1, st2, st3 = k4_epilogue(ft - 1)
        pos = 8
        for x in st1:
            fill.setdefault(pos, []).append(x)
            pos += 1
        pos = 22
        for x in st2:
            fill.setdefault(pos, []).append(x)
            pos += 1
        pos = 36
        for x in st3:
            fill.setdefault(pos, []).append(x)
            pos += 1
    free = [k for k in range(64) if k not in fill]
    for k, x in zip(free, gelu_ops(Z1 + 4 * ft, T)):
        fill[k] = [x]
    for a2 in range(16):
        fi = ft * 16 + a2
        for q in range(4):
            d = AC + 16 * (ft & 1) + 4 * q
            if OPT['k4mfma'] or q == 0:
                p(f'{M16} {v(d, 4)}, {v(zreg(fi), 4)}, {a((q * 16 + a2) * 4, 4)}, {v(d, 4) if a2 else 0}')
            for x in fill.get(4 * a2 + q, []):
                p(x)
        if fi + ZD < 112:
            zload(fi + ZD)
        elif fi >= 112 - OPT['wotail']:
            p.bg = [wo.pop(0)]
            p.bg_emit()
for st in k4_epilogue(6):
    for x in st:
        p(x, tag='pub')
if OPT['dbl']:
    p(x[:-4])
p.bg = wo
p.bg_emit(OPT['wopre'])
stamp('K4')
p.wait_vm('pub')
arrive(sS5, 1)
stamp('arr5')
UF, WR5, X1R, XP = 56, 168, 216, 224
p(f's_lshl_b32 {s(sT + 2)}, {s(sB)}, 10')
p(f's_add_u32 {s(sT + 2)}, {s(sT + 2)}, {s(sH)}')
p(f's_add_u32 {s(sT + 12)}, {s(sT + 2)}, {X1_:#x}')
p(f's_add_u32 {s(sT + 13)}, {s(sT + 2)}, {X1_ + 8192:#x}')
for o in range(2):
    p(f'buffer_load_dwordx4 {v(X1R + 4 * o, 4)}, {v(vL16)}, {s(R_WL, 4)}, {s(sT + 12 + o)} offen sc1')
OW, OR, OG = 248, 249, 253
p(f'v_and_b32 {v(T)}, 0xf0, {v(vL16)}')
p(f'v_mul_u32_u24 {v(T)}, 9, {v(T)}')
p(f'v_lshrrev_b32 {v(T + 1)}, 8, {v(vL16)}')
p(f'v_lshl_add_u32 {v(T)}, {v(T + 1)}, 5, {v(T)}')
p(f's_mul_i32 {s(sT)}, {s(sW)}, 2304')
p(f's_add_u32 {s(sT)}, {s(sT)}, {SCR}')
p(f'v_add_u32 {v(OW)}, {s(sT)}, {v(T)}')
p(f'v_lshrrev_b32 {v(T)}, 7, {v(vL16)}')
p(f'v_lshl_add_u32 {v(T + 1)}, {v(T)}, 4, {v(vL16)}')
p(f'v_add_u32 {v(OR)}, {s(sT)}, {v(T + 1)}')
p(f'v_and_b32 {v(T + 1)}, 0x70, {v(vL16)}')
p(f'v_lshl_add_u32 {v(OG)}, {v(T)}, 16, {v(T + 1)}')
p(f's_lshl_b32 {s(sT)}, {s(sW)}, 9')
p(f's_add_u32 {s(sT)}, {s(sT)}, {s(sC)}')
p(f's_lshl_b32 {s(sT)}, {s(sT)}, 10')
p(f's_add_u32 {s(sT + 14)}, {s(sT)}, {s(sB128)}')
p(f's_add_u32 {s(sT + 15)}, {s(sT + 14)}, 0x8000')
p.bg_emit()
for bb in range(8):
    p(f's_add_u32 {s(sT + 4 + bb)}, {s(sUld)}, {3584 * bb}')
unpack(X1R, 8, XV)
poll(sS5, False, 8, 'wdma1')
stamp('S5')
ul = [f'buffer_load_dwordx4 {v(UF + 4 * (3 * bb + pp), 4)}, {v(vL16)}, {s(R_WL, 4)}, {s(sT + 4 + bb)} offen offset:{1024 * pp} sc1'
      for bb in range(8) for pp in range(3)]
ul += ['\n'.join(f'buffer_load_dwordx2 {v(UF + 96 + 2 * bb, 2)}, {v(vL8)}, {s(R_WL, 4)}, {s(sT + 4 + bb)} offen offset:3072 sc1'
                 for bb in (2 * i, 2 * i + 1)) for i in range(4)]
for x in ul[:OPT['pre5']]:
    p(x)
gemm_r(XV, 4, 0, 28, UF, WR5, WD, first_c=True, loads=ul[OPT['pre5']:])
for k in range(8):
    p(f'v_cvt_pk_bf16_f32 {v(XP + k)}, {v(XV + 2 * k)}, {v(XV + 2 * k + 1)}')
stamp('K5')
if_layer(1)
for o in range(2):
    p(f'ds_write_b128 {v(OW)}, {v(XP + 4 * o, 4)} offset:{16 * o}')
for k in range(2):
    p(f'ds_read_b128 {v(X1R + 4 * k, 4)}, {v(OR)} offset:{1152 * k}')
for k in range(2):
    p(f'buffer_store_dwordx4 {v(X1R + 4 * k, 4)}, {v(OG)}, {s(R_OUT, 4)}, {s(sT + 14 + k)} offen')
if PROF:
    p('s_waitcnt vmcnt(0)')
    stamp('end')
    p(f's_lshl_b32 {s(sT)}, s2, 2')
    p(f's_add_u32 {s(sT)}, {s(sT)}, {s(sW)}')
    p(f's_lshl_b32 {s(sT)}, {s(sT)}, 8')
    p(f's_add_u32 {s(sT)}, {s(sT)}, {PROFO:#x}')
    p(f'v_lshrrev_b32 {v(T)}, 2, {v(vL16)}')
    p(f'buffer_store_dword {v(vProf)}, {v(T)}, {s(R_WS, 4)}, {s(sT)} offen')
if OPT['diag']:
    p('s_waitcnt vmcnt(0)')
    stamp('end')
    p('s_sub_u32 s101, s101, s3')
    p('s_min_u32 s101, s101, 20000')
    p('s_mul_i32 s101, s101, 10')
    p('s_add_u32 s101, s101, 10000')
    p('L_spin:')
    p(f's_memrealtime {s(sStamp, 2)}')
    p('s_waitcnt lgkmcnt(0)')
    p(f's_sub_u32 {s(sStamp)}, {s(sStamp)}, s3')
    p(f's_cmp_lt_u32 {s(sStamp)}, s101')
    p('s_cbranch_scc1 L_spin')
p('L_exit:')
p('s_endpgm')
p.end()
local_stats(XV, 16, T)
reduce_g(T, T + 1)
publish_stats(0x40000)
gather_stats(0x40000)
for o in range(2):
    p(f's_add_u32 {s(sT + 3)}, {s(sT + 2)}, {X2 + 8192 * o:#x}')
    p(f'buffer_store_dwordx4 {v(XP + 4 * o, 4)}, {v(vL16)}, {s(R_WS, 4)}, {s(sT + 3)} offen sc1', tag='pub')
p(f's_mov_b32 {s(sL)}, 1')
p(f's_add_u32 {s(R_WL)}, {s(R_WL)}, {LSTRIDE:#x}')
p(f's_addc_u32 {s(R_WL + 1)}, {s(R_WL + 1)}, 0')
p(f's_mov_b32 {s(R_X)}, {s(R_WS)}')
p(f's_mov_b32 {s(R_X + 1)}, {s(R_WS + 1)}')
p(f's_mov_b32 {s(R_X + 2)}, {LBASE:#x}')
p(f's_add_u32 {s(sXb)}, {s(sK2)}, {X2:#x}')
p(f's_add_u32 {s(sXo)}, {s(sXb)}, 8192')
p(f'v_mov_b32 {v(vXr)}, {v(vXr2)}')
p(f'v_mov_b32 {v(vHw)}, {v(vHw2)}')
p(f's_add_u32 {s(sSt)}, {s(sSt)}, 0x20000')
for r in (sArr, sRep, sS2, sS4, sS5):
    p(f's_add_u32 {s(r)}, {s(r)}, 0x10000')
p('s_branch L_layer')

p.resolve([('pro', set()), ('body', {'L0'}), ('body', {'L1'})], ['W0', 'G0', 'W012', 'C28'])

hdr = open('interleave_layers__spectral_fnet__mixer_gmlp__prompt.s.ref').read().split('\n')
out = [l for l in hdr if l.startswith(';') and '@launch' not in l][:14]
if PROF:
    k = STAMPS.index('T')
    out.append('; stamps: ' + ' '.join(STAMPS[:-1] + STAMPS[k:]))
out.append(f'; @launch grid=(256,1,1) block=(256,1,1) lds={LDS_BYTES}')
out += ['.amdgcn_target "amdgcn-amd-amdhsa--gfx950"', '.text', f'.globl {NAME}', '.p2align 8', f'.type {NAME},@function']
out.append(p.text())
out.append('.p2align 8')
out.append('.type L_table,@object')
out.append('L_table:')
tab = const_table()
for i in range(0, tab.size, 8):
    out.append('.long ' + ','.join(f'{x:#x}' for x in tab[i:i + 8]))
out.append(f'.size L_table, {tab.size * 4}')
out.append('L_end:')
out += ['.section .rodata,"a"', '.p2align 6', f'.amdhsa_kernel {NAME}',
        '  .amdhsa_next_free_vgpr 512', '  .amdhsa_next_free_sgpr 102', '  .amdhsa_accum_offset 256',
        '  .amdhsa_group_segment_fixed_size 0', '  .amdhsa_kernarg_size 104', '  .amdhsa_user_sgpr_count 2',
        '  .amdhsa_user_sgpr_kernarg_segment_ptr 1', '  .amdhsa_system_sgpr_workgroup_id_x 1',
        '  .amdhsa_float_denorm_mode_32 3', '.end_amdhsa_kernel', '']
open(sys.argv[1], 'w').write('\n'.join(out))
print(p.stats(), file=sys.stderr)
```

```python
import sys
import struct
import numpy as np
from asmlib import Prog, v, a, s

NAME = 'interleave_layers__spectral_fnet__mixer_gmlp__prompt_kernel'
OPT = dict(prof=0, k4mfma=1, k4load=1, k4epi=1, zd=12, pre3=8, pre5=16, loc=1, locd=0, lg=0, pg=0, sg=0, wspev=8, x1=1,
           g2ev=10, z1a=5, gpos=18, z1arr=6, wo4=8, wzp1=8, wzp2=0, wzp3=8, upre=8, fa=28, fb=46, fc=51, hpf=0, nomean=0, lpre=6, z2sp=4, early=7, wfirst=0, nobg=0, few=0, diag='')
for arg in sys.argv[2:]:
    k, val = arg.split('=')
    OPT[k] = val if k == 'diag' else int(val)
PROF = OPT['prof']
LG = (' sc1', '', ' nt', ' sc0')[OPT['lg']]
PG = (' sc1', '', ' nt')[OPT['pg']]
SG = ('', ' nt', ' sc0')[OPT['sg']]


WI, WO, FLAGS, STATS, X2, PROFO = 0, 0x200000, 0x300000, 0x340000, 0x400000, 0x600000
LBASE, LSTRIDE = 0x800000, 0x1000000
V_, H_, X1_, Z_, U_ = 0, 0x200000, 0x400000, 0x600000, 0xA00000
WB, CT, SCR, LDS_BYTES = 0, 114688, 114688 + 22528, 163840
CT_FA, CT_TW, CT_FB, CT_M1 = 0, 6144, 10240, 14336

R_X, R_WIN, R_WSP, R_WOUT, R_OUT, R_WS, R_DBG, R_BSP, R_WL = 4, 8, 12, 16, 20, 24, 28, 32, 36
sW, sC, sB, sL, sTO = 40, 41, 42, 43, 44
sVst, sVld, sH, sK2, sXo, sXb, sZst, sZld, sUst, sUld = 45, 46, 47, 48, 49, 50, 51, 52, 53, 54
sLoc, sSt, sWI, sWO, sWsp, sSelLo, sSelHi, sPidx, sOnes = 55, 56, 57, 58, 59, 60, 61, 62, 63
sArr, sRep, sS2, sS4, sS5, sB128, sDm, sDo = 64, 65, 66, 67, 68, 69, 70, 71
sB4, sP4 = 3, 88
sT = 72
sStamp = 90
vL16, vTw, vK2, vXr, vVld, vVst, vBsp, vZst = 0, 1, 2, 3, 4, 5, 6, 7
vC2 = 8
vHw, vHr, vUw, vUr, vStl, vL8, vTr, vPoll, vArr, vProf, vGK = 16, 17, 18, 19, 20, 21, 22, 23, 24, 25, 26
vRed = 28
T = 32
XV = 40


def f2u(x):
    return struct.unpack('<I', struct.pack('<f', x))[0]


def bf16(x):
    u = np.ascontiguousarray(x, dtype=np.float32).view(np.uint32)
    return ((u + 0x7FFF + ((u >> 16) & 1)) >> 16).astype(np.uint32)


def const_table():
    l = np.arange(64)[:, None]
    j = np.arange(8)[None, :]
    nn, h = l & 31, l >> 5
    e1 = 16 * ((nn >> 2) & 1) + 4 * (nn >> 3) + (nn & 3)
    frags = []

    def pack(x):
        x = np.where(np.abs(x) < 1e-12, 0.0, x)
        b = bf16(x)
        return (b[:, 0::2] | (b[:, 1::2] << 16)).astype(np.uint32)
    ang = [2 * np.pi * ((16 * dh + 8 * h + j) * e1 % 32) / 32 for dh in range(2)]
    frags += [pack(np.cos(ang[0])), pack(np.cos(ang[1])), pack(np.sin(ang[0])), pack(np.sin(ang[1])),
              pack(-np.sin(ang[0])), pack(-np.sin(ang[1]))]
    d2 = 8 * (j >> 2) + 4 * h + (j & 3)
    tw = 2 * np.pi * (d2 * e1) / 512
    tc = np.cos(tw).astype(np.float32).view(np.uint32)
    ts = np.sin(tw).astype(np.float32).view(np.uint32)
    frags += [tc[:, :4], tc[:, 4:], ts[:, :4], ts[:, 4:]]
    ps = 2 * np.pi * (d2 * (nn & 15) % 16) / 16
    for row in range(2):
        m = ((nn >> 4) == row)
        frags += [pack(np.cos(ps) * m), pack(np.sin(ps) * m)]
    n, g = l & 15, l >> 4
    for jq in range(4):
        for ks in range(2):
            rho = 32 * ks + 16 * (j >> 2) + 4 * g + (j & 3)
            s1 = 16 * (rho >> 4) + 2 * (rho & 7) + ((rho >> 3) & 1)
            jj = 8 * jq + (n >> 1)
            th = 2 * np.pi * (s1 * jj % 64) / 64
            x = np.where((n & 1) == 0, np.cos(th), np.where(jj == 0, (-1.0) ** s1, -np.sin(th)))
            frags.append(pack(x))
    tab = np.concatenate([np.ascontiguousarray(f).reshape(-1) for f in frags])
    assert tab.size == 22 * 256
    return tab


p = Prog()
M16 = 'v_mfma_f32_16x16x32_bf16'
M32 = 'v_mfma_f32_32x32x16_bf16'


STAMPS = []


def stamp(name):
    if OPT['few'] and name not in ('T', 'S1', 'S2', 'z2mm', 'S4', 'K4', 'end'):
        return
    STAMPS.append(name)
    if OPT['diag'] and OPT['diag'][:-1] == name:
        p(f's_memrealtime {s(sStamp, 2)}')
        p('s_waitcnt lgkmcnt(0)')
        p(f's_cmp_eq_u32 {s(sL)}, {OPT["diag"][-1]}')
        p(f's_cselect_b32 s101, {s(sStamp)}, s101')
    if PROF:
        p(f'{"s_memtime" if PROF == 2 else "s_memrealtime"} {s(sStamp, 2)}')
        p('s_waitcnt lgkmcnt(0)')
        p('s_mov_b32 s101, m0')
        p(f's_mov_b32 m0, {s(sPidx)}')
        p(f'v_writelane_b32 {v(vProf)}, {s(sStamp)}, m0')
        p('s_mov_b32 m0, s101')
        p(f's_add_u32 {s(sPidx)}, {s(sPidx)}, 1')


def srd(r, lo, hi, size):
    p(f's_mov_b32 {s(r)}, {s(lo)}')
    p(f's_and_b32 {s(r + 1)}, {s(hi)}, 0xffff')
    p(f's_mov_b32 {s(r + 2)}, {size:#x}')
    p(f's_mov_b32 {s(r + 3)}, 0x20000')


def if_wave0():
    p(f's_cmp_eq_u32 {s(sW)}, 0')
    p.begin('W0', 's_cbranch_scc0')


def if_layer(l):
    p(f's_cmp_eq_u32 {s(sL)}, {l}')
    p.begin(f'L{l}', 's_cbranch_scc0')


def spin_tail(top, done):
    p(f's_cbranch_vccz {done}')
    p(f's_sub_u32 {s(sTO)}, {s(sTO)}, 1')
    p(f's_cbranch_scc0 {top}')
    p(f's_mov_b32 {s(sTO)}, 0')
    p(f'{done}:')


def arrive(soff, nrep):
    p('s_barrier')
    if_wave0()
    p(f'v_mov_b32 {v(T)}, 1')
    p(f's_mov_b64 exec, {(1 << nrep) - 1:#x}')
    p(f'buffer_atomic_add {v(T)}, {v(vArr)}, {s(R_WS, 4)}, {s(soff)} offen sc1')
    p('s_mov_b64 exec, -1')
    p.end()


def gstore(lines, tag=None):
    if not OPT['loc'] or (tag and not OPT['locd']):
        for x in lines:
            p(x + ' sc1', tag=tag)
        return
    p(f's_cmp_eq_u32 {s(sLoc)}, 0')
    p.begin('LOC', 's_cbranch_scc1')
    for x in lines:
        p(x + SG, tag=tag)
    p.end()
    p.begin('!LOC', 's_cbranch_scc0')
    for x in lines:
        p(x + ' sc1', tag=tag)
    p.end()


def arrive_group(soff):
    p('s_barrier')
    if_wave0()
    p(f'v_mov_b32 {v(T)}, 1')
    p(f's_add_u32 {s(99)}, {s(soff)}, {s(sB4)}')
    p('s_mov_b64 exec, 1')
    gstore([f'buffer_store_dword {v(T)}, off, {s(R_WS, 4)}, {s(99)}'])
    p('s_mov_b64 exec, -1')
    p.end()


def poll(soff, vaddr, need, tag=None):
    if_wave0()
    top, done = p.label('poll'), p.label('pdone')
    p(f'{top}:')
    if vaddr is not None:
        p(f'buffer_load_dword {v(T)}, {v(vaddr)}, {s(R_WS, 4)}, {s(soff)} offen' + (PG if vaddr == vGrp else ' sc1'))
    else:
        p(f'buffer_load_dword {v(T)}, off, {s(R_WS, 4)}, {s(soff)} sc1')
    p('s_waitcnt vmcnt(0)')
    p(f'v_cmp_ne_u32 vcc, {need}, {v(T)}')
    spin_tail(top, done)
    p.end()
    if tag:
        p.wait_vm(tag)
    p('s_barrier')


def reduce_g(x, y):
    p(f'v_permlane16_swap_b32 {v(x)}, {v(y)}')
    p(f'v_add_f32 {v(x)}, {v(x)}, {v(y)}')
    p(f'v_mov_b32 {v(y)}, {v(x)}')
    p(f'v_permlane32_swap_b32 {v(x)}, {v(y)}')
    p(f'v_add_f32 {v(x)}, {v(x)}, {v(y)}')
    p(f'v_mov_b32 {v(y)}, {v(x)}')
    p(f'v_permlane16_swap_b32 {v(x)}, {v(y)}')


def finish_stats(x, n):
    y, m = x + 1, x + 2
    p(f'v_mul_f32 {v(m)}, {f2u(1.0 / n):#x}, {v(x)}')
    p(f'v_mul_f32 {v(y)}, {f2u(1.0 / n):#x}, {v(y)}')
    p(f'v_fma_f32 {v(y)}, -{v(m)}, {v(m)}, {v(y)}')
    p(f'v_max_f32 {v(y)}, 0, {v(y)}')
    p(f'v_add_f32 {v(y)}, {f2u(1e-5):#x}, {v(y)}')
    p(f'v_rsq_f32 {v(x)}, {v(y)}')
    p(f'v_mul_f32 {v(y)}, -{v(m)}, {v(x)}')


def norm_pack(src, n, st, tmp, dst):
    for i in range(0, n, 2):
        p(f'v_pk_fma_f32 {v(tmp + i, 2)}, {v(src + i, 2)}, {v(st, 2)}, {v(st, 2)} op_sel:[0,0,1] op_sel_hi:[1,0,1]')
    for i in range(0, n, 2):
        p(f'v_cvt_pk_bf16_f32 {v(dst + i // 2)}, {v(tmp + i)}, {v(tmp + i + 1)}')


def local_stats(src, n, out):
    sa, sq = out + 2, out + 4
    p(f'v_pk_add_f32 {v(sa, 2)}, {v(src, 2)}, {v(src + 2, 2)}')
    p(f'v_pk_mul_f32 {v(sq, 2)}, {v(src, 2)}, {v(src, 2)}')
    p(f'v_pk_fma_f32 {v(sq, 2)}, {v(src + 2, 2)}, {v(src + 2, 2)}, {v(sq, 2)}')
    for i in range(4, n, 2):
        p(f'v_pk_add_f32 {v(sa, 2)}, {v(sa, 2)}, {v(src + i, 2)}')
        p(f'v_pk_fma_f32 {v(sq, 2)}, {v(src + i, 2)}, {v(src + i, 2)}, {v(sq, 2)}')
    p(f'v_add_f32 {v(out)}, {v(sa)}, {v(sa + 1)}')
    p(f'v_add_f32 {v(out + 1)}, {v(sq)}, {v(sq + 1)}')


def unpack(src, n, dst):
    for i in range(n):
        p(f'v_lshlrev_b32 {v(dst + 2 * i)}, 16, {v(src + i)}')
        p(f'v_and_b32 {v(dst + 2 * i + 1)}, 0xffff0000, {v(src + i)}')


def publish_stats(area):
    p(f's_add_u32 {s(sT)}, {s(sSt)}, {s(sB128)}')
    if area:
        p(f's_add_u32 {s(sT)}, {s(sT)}, {area:#x}')
    p('s_mov_b64 exec, 0xffff')
    gstore([f'buffer_store_dwordx2 {v(T, 2)}, {v(vStl)}, {s(R_WS, 4)}, {s(sT)} offen'])
    p('s_mov_b64 exec, -1')


def gather_loads(area):
    return [(f's_add_u32 {s(99)}, {s(sSt)}, {area:#x}', None),
            (f'buffer_load_dwordx2 {v(T + 4, 2)}, {v(vStl)}, {s(R_WS, 4)}, {s(99)} offen{PG}', None),
            (f'buffer_load_dwordx2 {v(T + 6, 2)}, {v(vStl)}, {s(R_WS, 4)}, {s(99)} offen offset:128{PG}', None)]


def retry_until(loads, test):
    test()
    p.begin('RETRY', 's_cbranch_vccz')
    top, done = p.label('rt'), p.label('rdone')
    p(f'{top}:')
    emit([loads])
    p('s_waitcnt vmcnt(0)')
    test()
    spin_tail(top, done)
    p.end()


def gather_finish(area):
    def test():
        p(f'v_add_f32 {v(T)}, {v(T + 4)}, {v(T + 6)}')
        p(f'v_add_f32 {v(T + 1)}, {v(T + 5)}, {v(T + 7)}')
        p(f'v_cmp_u_f32 vcc, {v(T)}, {v(T + 1)}')
    retry_until(gather_loads(area), test)
    reduce_g(T, T + 1)


LOC_Z2 = lambda i: 1024 * i
LOC_Z1 = lambda i: 1024 * (i - 48) if i >= 48 else CT + 1024 * i
LOC_WO = lambda i: 1024 * (i - 48) if i >= 48 else 65536 + 1024 * i


def w_dma_ops(sbase, extra, loc, name):
    ops = []
    for j in range(7):
        for i in range(4):
            o = []
            if i == 0:
                o.append((f's_add_u32 m0, {s(sDm)}, {loc(16 * j):#x}', None))
                o.append((f's_add_u32 {s(sDo)}, {s(sbase)}, {extra + 16384 * j:#x}', None))
            if OPT['nobg'] & 1:
                o.append(('s_nop 0', None))
            else:
                o.append((f'buffer_load_dwordx4 {v(vL16)}, {s(R_WS, 4)}, {s(sDo)} offen offset:{i * 1024} lds', f'{name}{j}'))
            ops.append(o)
    return ops


def emit(groups):
    for g in groups:
        for text, tag in g:
            p(text, tag=tag)


def wsp_dma_ops(batch):
    q, ih = batch >> 1, batch & 1
    ops = []
    for il in range(4):
        for rh in range(2):
            if batch < 2:
                imm, so = 128 * il, 80 + batch
                o = [(f's_add_u32 m0, {s(78 + batch)}, {1024 + 2048 * il + 1024 * rh - imm}', None)]
            else:
                imm, so = 512 * ih + 128 * il, sDo
                o = [(f's_add_u32 m0, {s(sWsp)}, {1024 + 8192 * (batch % 3) + 2048 * il + 1024 * rh - imm}', None)]
                if not ops:
                    o += [(f's_add_u32 {s(sDo)}, {s(sW)}, {q}', None), (f's_and_b32 {s(sDo)}, {s(sDo)}, 3', None),
                          (f's_lshl_b32 {s(sDo)}, {s(sDo)}, 21', None)]
            o.append((f'buffer_load_dwordx4 {v(vWspA + rh)}, {s(R_WSP, 4)}, {s(so)} offen offset:{imm} lds', f'wsp{max(batch, 1)}'))
            ops.append(o)
    return ops


def table_addr(dst, soff):
    p(f'v_add_u32 {v(dst)}, {s(soff)}, {v(vL16)}')
    p(f'v_mov_b32 {v(dst + 1)}, {s(93)}')
    p(f'v_add_co_u32 {v(dst)}, vcc, {s(92)}, {v(dst)}')
    p(f's_add_u32 m0, {s(soff)}, {CT}')
    p(f'v_addc_co_u32 {v(dst + 1)}, vcc, 0, {v(dst + 1)}, vcc')


def m1_dma(dst):
    p(f's_lshl_b32 {s(99)}, {s(sW)}, 11')
    p(f's_add_u32 {s(99)}, {s(99)}, {CT_M1}')
    table_addr(dst, 99)
    for k in range(2):
        p(f'global_load_lds_dwordx4 {v(dst, 2)}, off offset:{1024 * k}', tag='m1')


def ct_dma(dst):
    p(f's_mul_i32 {s(99)}, {s(sW)}, 3584')
    table_addr(dst, 99)
    for off in (0, 1024, 2048):
        p(f'global_load_lds_dwordx4 {v(dst, 2)}, off offset:{off}', tag='ct')
    p('s_mov_b32 exec_hi, 0')
    p(f'global_load_lds_dwordx4 {v(dst, 2)}, off offset:3072', tag='ct')
    p('s_mov_b64 exec, -1')


def wsp_dma(batch):
    p.bg = wsp_dma_ops(batch)
    p.bg_emit()


def wsp_read(batch, reg):
    p.wait_vm(f'wsp{max(batch, 1)}')
    for il in range(4):
        for o in range(2):
            p(f'ds_read_b128 {v(reg + 4 * (2 * il + o), 4)}, {v(vWspR + o)} offset:{8192 * (batch % 3) + 2048 * il}', tag=f'wr{batch}')


def wsp_perm(batch, reg):
    q, ih = batch >> 1, batch & 1
    k = 0
    for ipl in range(2):
        for o in range(2):
            for al in range(8):
                t = T + (k & 7)
                k += 1
                lo, hi = reg + 4 * (4 * ipl + o) + (al >> 1), reg + 4 * (4 * ipl + 2 + o) + (al >> 1)
                p(f'v_perm_b32 {v(t)}, {v(hi)}, {v(lo)}, {s(sSelHi if al & 1 else sSelLo)}')
                p(f'v_accvgpr_write_b32 {a((q * 16 + 8 * o + al) * 4 + 2 * ih + ipl)}, {v(t)}')


def wring_read(idx, ring, depth, loc):
    base, off = (vL16, vL16hi, vL16h2)[loc(idx) >> 16], loc(idx) & 0xffff
    p(f'ds_read_b128 {v(ring + 4 * (idx % depth), 4)}, {v(base)} offset:{off}', tag=f'w{idx}')


def gemm_r(acc, nt, ks0, ks1, act, ring, depth, loc, first_c=None, fill=None, preload=True, last=None):
    fill = dict(fill or {})
    if OPT['nobg'] & 2 and loc is LOC_Z1:
        emit(fill.values())
        return
    lo, hi = nt * ks0, nt * ks1
    if preload:
        for idx in range(lo, min(lo + depth, last or hi)):
            wring_read(idx, ring, depth, loc)
    for idx in range(lo, hi):
        ks, t = divmod(idx, nt)
        if (idx - lo) % 2 == 0:
            p.wait_lgkm(f'w{min(idx + 1, hi - 1)}')
        c = v(acc + 4 * t, 4) if (ks or first_c) else '0'
        p(f'{M16} {v(acc + 4 * t, 4)}, {v(ring + 4 * (idx % depth), 4)}, {v(act(ks) if callable(act) else act + 4 * ks, 4)}, {c}')
        if idx + depth < (last or hi):
            wring_read(idx + depth, ring, depth, loc)
        f = fill.pop(idx, None)
        if callable(f):
            f()
        elif f:
            emit([f])
    assert not fill


def spread(groups, first, step):
    return {first + step * k: g for k, g in enumerate(groups)}


def gelu(x, n, tmp):
    for i in range(0, n, 4):
        t = tmp + (i & 4)
        for k in (0, 2):
            p(f'v_pk_mul_f32 {v(t + k, 2)}, {v(x + i + k, 2)}, {v(x + i + k, 2)}')
        for k in (0, 2):
            p(f'v_pk_fma_f32 {v(t + k, 2)}, {v(t + k, 2)}, {v(vGK, 2)}, {v(vGK, 2)} op_sel:[0,0,1] op_sel_hi:[1,0,1]')
        for k in (0, 2):
            p(f'v_pk_mul_f32 {v(t + k, 2)}, {v(t + k, 2)}, {v(x + i + k, 2)}')
        for k in range(4):
            p(f'v_exp_f32 {v(t + k)}, {v(t + k)}')
        for k in (0, 2):
            p(f'v_pk_add_f32 {v(t + k, 2)}, {v(t + k, 2)}, 1.0 op_sel_hi:[1,0]')
        for k in range(4):
            p(f'v_rcp_f32 {v(t + k)}, {v(t + k)}')
        for k in (0, 2):
            p(f'v_pk_mul_f32 {v(x + i + k, 2)}, {v(t + k, 2)}, {v(x + i + k, 2)}')


vWspA, vWspR = 244, 246
vHw2, vXr2, vGrp = 250, 251, 254
vL16hi, vL16h2 = 252, 255
p.section('pro')
p(f'{NAME}:')
p(f's_cmp_ge_u32 s2, 256')
p('s_cbranch_scc1 L_exit')
p(f's_load_dwordx2 {s(72, 2)}, s[0:1], 0')
p(f's_load_dwordx8 {s(76, 8)}, s[0:1], 48')
p(f's_load_dwordx4 {s(84, 4)}, s[0:1], 80')
p(f's_load_dwordx2 {s(88, 2)}, s[0:1], 96')
if OPT['diag']:
    p(f's_memrealtime {s(sStamp, 2)}')
    p('s_waitcnt lgkmcnt(0)')
    p(f's_mov_b32 {s(sPidx)}, {s(sStamp)}')
    p(f's_mov_b32 s101, {s(sStamp)}')
if PROF:
    p(f'{"s_memtime" if PROF == 2 else "s_memrealtime"} {s(sStamp, 2)}')
p(f's_getpc_b64 {s(92, 2)}')
p('L_pc:')
lane, n_, g_, t0, t1, t2, t3, tid = 100, 101, 102, 103, 104, 105, 106, 107
p(f'v_mov_b32 {v(tid)}, v0')
p(f's_lshr_b32 {s(94)}, s2, 3')
p(f's_lshl_b32 {s(94)}, {s(94)}, 4')
p(f'v_lshrrev_b32 {v(T)}, 4, v0')
p(f'v_add_u32 {v(T)}, {s(94)}, {v(T)}')
p(f'v_lshlrev_b32 {v(T)}, 7, {v(T)}')
p(f'v_min_u32 {v(T)}, L_end-L_pc-4, {v(T)}')
p(f'v_mov_b32 {v(T + 3)}, {s(93)}')
p(f'v_add_co_u32 {v(T + 2)}, vcc, {s(92)}, {v(T)}')
p(f'v_addc_co_u32 {v(T + 3)}, vcc, 0, {v(T + 3)}, vcc')
p(f'global_load_dword {v(253)}, {v(T + 2, 2)}, off')
p(f'v_lshrrev_b32 {v(t0)}, 6, v0')
p(f'v_and_b32 {v(lane)}, 63, v0')
p(f'v_readfirstlane_b32 {s(sW)}, {v(t0)}')
p(f'v_and_b32 {v(n_)}, 15, {v(lane)}')
p(f'v_lshrrev_b32 {v(g_)}, 4, {v(lane)}')
p(f'v_lshlrev_b32 {v(vL16)}, 4, {v(lane)}')
p(f's_lshr_b32 {s(94)}, s2, 3')
p(f's_and_b32 {s(sB)}, {s(94)}, 7')
p(f's_and_b32 {s(95)}, s2, 7')
p(f's_lshl_b32 {s(95)}, {s(95)}, 1')
p(f's_lshr_b32 {s(96)}, {s(94)}, 4')
p(f's_add_u32 {s(95)}, {s(95)}, {s(96)}')
p(f's_sub_u32 {s(96)}, 32, {s(95)}')
p(f's_cmp_eq_u32 {s(95)}, 0')
p(f's_cselect_b32 {s(96)}, 16, {s(96)}')
p(f's_bitcmp1_b32 {s(94)}, 3')
p(f's_cselect_b32 {s(sC)}, {s(96)}, {s(95)}')
p(f's_mov_b32 {s(sL)}, 0')
p(f's_mov_b32 {s(sTO)}, 40000')
p(f's_lshl_b32 {s(sB128)}, {s(sB)}, 7')
p(f's_lshl_b32 {s(sB4)}, {s(sB)}, 2')
p(f's_getreg_b32 {s(sLoc)}, hwreg(HW_REG_XCC_ID)')
p(f's_mov_b32 {s(sOnes)}, 0x3f803f80')
p(f's_mov_b32 {s(sSelLo)}, 0x05040100')
p(f's_mov_b32 {s(sSelHi)}, 0x07060302')
p(f's_lshl_b32 {s(94)}, {s(sW)}, 9')
p(f's_add_u32 {s(94)}, {s(94)}, {s(sC)}')
p(f'v_and_b32 {v(t0)}, 28, {v(lane)}')
p(f'v_lshlrev_b32 {v(t0)}, 4, {v(t0)}')
p(f'v_and_b32 {v(t1)}, 32, {v(lane)}')
p(f'v_add3_u32 {v(t0)}, {v(t0)}, {v(t1)}, {s(94)}')
p(f'v_lshlrev_b32 {v(t2)}, 10, {v(t0)}')
p(f'v_and_b32 {v(t1)}, 3, {v(lane)}')
p(f'v_lshl_add_u32 {v(t0)}, {v(t1)}, 5, {v(t2)}')
p(f'v_lshl_add_u32 {v(t2)}, {v(t1)}, 4, {v(t2)}')
p(f'v_and_b32 {v(t3)}, 7, {v(n_)}')
p(f'v_lshlrev_b32 {v(t3)}, 6, {v(t3)}')
p(f'v_and_b32 {v(t1)}, 8, {v(n_)}')
p(f'v_lshlrev_b32 {v(t1)}, 2, {v(t1)}')
p(f'v_add3_u32 {v(t3)}, {v(t3)}, {v(t1)}, {s(94)}')
p(f'v_lshlrev_b32 {v(t3)}, 1, {v(t3)}')
p('s_waitcnt lgkmcnt(0)')
if PROF:
    p(f'v_mov_b32 {v(vProf)}, 0')
    p(f'v_writelane_b32 {v(vProf)}, {s(sStamp)}, 0')
    p(f's_mov_b32 {s(sPidx)}, 1')
    STAMPS.append('entry')
stamp('karg')
srd(R_X, 72, 73, 2097152)
srd(R_WS, 88, 89, LBASE)
p('s_cmp_eq_u32 s2, 0')
p.begin('G0', 's_cbranch_scc0')
p(f'v_lshlrev_b32 {v(T)}, 8, {v(tid)}')
p(f'v_mov_b32 {v(T + 4)}, 0')
p(f's_mov_b32 {s(94)}, {FLAGS:#x}')
p(f's_mov_b32 {s(95)}, {FLAGS + 0x20000:#x}')
for k in range(2):
    p(f'buffer_store_dword {v(T + 4)}, {v(T)}, {s(R_WS, 4)}, {s(94 + k)} offen sc1', tag='z')
p.end()
XR = 120


def x_loads(i0, i1):
    for i in range(i0, i1):
        if i == 0:
            p(f'buffer_load_dwordx4 {v(XR, 4)}, {v(t0)}, {s(R_X, 4)}, {s(sB128)} offen')
            p(f'buffer_load_dwordx4 {v(XR + 4, 4)}, {v(t0)}, {s(R_X, 4)}, {s(sB128)} offen offset:16')
            continue
        p(f's_add_u32 {s(99)}, {s(sB128)}, {128 * i}')
        p(f's_and_b32 {s(99)}, {s(99)}, 0x3ff')
        p(f'buffer_load_dwordx4 {v(XR + 8 * i, 4)}, {v(t2)}, {s(R_X, 4)}, {s(99)} offen')
        p(f'buffer_load_dwordx4 {v(XR + 8 * i + 4, 4)}, {v(t2)}, {s(R_X, 4)}, {s(99)} offen offset:64')


x_loads(0, OPT['x1'])
srd(R_WIN, 76, 77, 512 * 3584)
srd(R_WSP, 78, 79, 2048 * 4096)
srd(R_BSP, 80, 81, 4096)
srd(R_WOUT, 82, 83, 896 * 1024)
srd(R_OUT, 84, 85, 2097152)
srd(R_DBG, 86, 87, 256)
p(f's_add_u32 {s(88)}, {s(88)}, {LBASE:#x}')
p(f's_addc_u32 {s(89)}, {s(89)}, 0')
srd(R_WL, 88, 89, LSTRIDE)
stamp('start')
vPi, vPo, vPri, vPro, PK = 112, 114, 242, 243, 184
PST = SCR + 12288
p(f's_add_u32 {s(92)}, {s(92)}, L_table-L_pc')
p(f's_addc_u32 {s(93)}, {s(93)}, 0')
for k in range(2):
    p(f'v_add_u32 {v(T)}, {256 * k}, {v(tid)}')
    p(f'v_mul_u32_u24 {v(T + 1)}, 4682, {v(T)}')
    p(f'v_lshrrev_b32 {v(T + 1)}, 16, {v(T + 1)}')
    p(f'v_mul_u32_u24 {v(T + 2)}, 14, {v(T + 1)}')
    p(f'v_sub_u32 {v(T)}, {v(T)}, {v(T + 2)}')
    p(f'v_and_b32 {v(T + 2)}, 0x38, {v(T + 1)}')
    p(f'v_add_u32 {v(T + 1)}, {v(T + 1)}, {v(T + 2)}')
    p(f'v_mul_u32_u24 {v(T + 1)}, 3584, {v(T + 1)}')
    p(f'v_lshl_add_u32 {v(vPi + k)}, {v(T)}, 4, {v(T + 1)}')
p(f's_and_b32 {s(94)}, {s(sC)}, 7')
p(f's_lshl_b32 {s(94)}, {s(94)}, 6')
p(f's_and_b32 {s(95)}, {s(sC)}, 8')
p(f's_add_u32 {s(94)}, {s(94)}, {s(95)}')
p(f's_mul_i32 {s(94)}, {s(94)}, 3584')
p(f's_lshr_b32 {s(95)}, {s(sC)}, 4')
p(f's_mul_i32 {s(95)}, {s(95)}, 1792')
p(f's_add_u32 {s(94)}, {s(94)}, {s(95)}')
p(f's_mul_i32 {s(95)}, {s(sB)}, 224')
p(f's_add_u32 {s(76)}, {s(94)}, {s(95)}')
p(f'v_lshrrev_b32 {v(T)}, 3, {v(lane)}')
p(f'v_and_b32 {v(T + 1)}, 0x70, {v(vL16)}')
p(f'v_lshl_add_u32 {v(vPo)}, {v(T)}, 10, {v(T + 1)}')
p(f's_lshr_b32 {s(94)}, {s(sC)}, 1')
p(f's_mul_i32 {s(94)}, {s(94)}, 112')
p(f's_and_b32 {s(95)}, {s(sC)}, 1')
p(f's_lshl_b32 {s(95)}, {s(95)}, 5')
p(f's_add_u32 {s(94)}, {s(94)}, {s(95)}')
p(f's_sub_u32 {s(95)}, {s(sC)}, 16')
p(f's_mul_i32 {s(95)}, {s(95)}, 112')
p(f's_add_u32 {s(95)}, {s(95)}, 64')
p(f's_cmp_lt_u32 {s(sC)}, 16')
p(f's_cselect_b32 {s(94)}, {s(94)}, {s(95)}')
p(f's_sub_u32 {s(95)}, {s(sC)}, 24')
p(f's_mul_i32 {s(95)}, {s(95)}, 224')
p(f's_add_u32 {s(95)}, {s(95)}, 96')
p(f's_cmp_lt_u32 {s(sC)}, 24')
p(f's_cselect_b32 {s(94)}, {s(94)}, {s(95)}')
p(f's_cselect_b32 {s(95)}, 16, 112')
p(f's_lshr_b32 {s(96)}, {s(sW)}, 1')
p(f's_mul_i32 {s(95)}, {s(95)}, {s(96)}')
p(f's_add_u32 {s(94)}, {s(94)}, {s(95)}')
p(f's_and_b32 {s(95)}, {s(sW)}, 1')
p(f's_lshl_b32 {s(95)}, {s(95)}, 3')
p(f's_add_u32 {s(94)}, {s(94)}, {s(95)}')
p(f's_lshl_b32 {s(94)}, {s(94)}, 10')
p(f's_add_u32 {s(77)}, {s(94)}, {s(sB128)}')
p(f'v_lshrrev_b32 {v(T)}, 2, {v(n_)}')
p(f'v_lshl_add_u32 {v(T)}, {v(g_)}, 3, {v(T)}')
p(f'v_mul_u32_u24 {v(T)}, 224, {v(T)}')
p(f'v_and_b32 {v(T + 1)}, 3, {v(lane)}')
p(f'v_lshl_add_u32 {v(T)}, {v(T + 1)}, 3, {v(T)}')
p(f's_lshl_b32 {s(94)}, {s(sW)}, 5')
p(f's_add_u32 {s(94)}, {s(94)}, {PST}')
p(f'v_add_u32 {v(vPri)}, {s(94)}, {v(T)}')
p(f's_lshl_b32 {s(94)}, {s(sW)}, 3')
p(f's_add_u32 {s(94)}, {s(94)}, {PST + 8192}')
p(f'v_lshl_add_u32 {v(vPro)}, {v(lane)}, 5, {s(94)}')
p(f'v_lshrrev_b32 {v(T)}, 3, {v(lane)}')
p(f'v_lshlrev_b32 {v(T)}, 18, {v(T)}')
p(f'v_and_b32 {v(T + 1)}, 7, {v(lane)}')
p(f'v_xor_b32 {v(T + 1)}, {v(T + 1)}, {v(g_)}')
p(f'v_lshl_add_u32 {v(T)}, {v(T + 1)}, 4, {v(T)}')
p(f's_lshl_b32 {s(94)}, {s(sC)}, 12')
p(f's_add_u32 {s(100)}, {s(sW)}, {s(sB)}')
p(f's_and_b32 {s(100)}, {s(100)}, 3')
p(f's_lshl_b32 {s(95)}, {s(100)}, 10')
p(f's_add_u32 {s(94)}, {s(94)}, {s(95)}')
p(f'v_add_u32 {v(vWspA)}, {s(94)}, {v(T)}')
p(f'v_xor_b32 {v(T)}, 64, {v(vWspA)}')
p(f'v_add_u32 {v(vWspA + 1)}, 0x20000, {v(T)}')
p(f's_mul_i32 {s(sWsp)}, {s(sW)}, 24576')
p(f'v_lshrrev_b32 {v(T)}, 1, {v(n_)}')
p(f'v_xor_b32 {v(T)}, {v(T)}, {v(g_)}')
p(f'v_lshlrev_b32 {v(T)}, 4, {v(T)}')
p(f'v_lshl_add_u32 {v(T)}, {v(n_)}, 7, {v(T)}')
p(f's_add_u32 {s(94)}, {s(sWsp)}, 1024')
p(f'v_add_u32 {v(vWspR)}, {s(94)}, {v(T)}')
p(f'v_xor_b32 {v(vWspR + 1)}, 64, {v(vWspR)}')
p(f's_lshr_b32 {s(94)}, {s(sB)}, 2')
p(f's_lshl_b32 {s(95)}, {s(sW)}, 21')
for k in range(2):
    p(f's_lshl_b32 {s(96)}, {s(94)}, 13')
    p(f's_add_u32 {s(78 + k)}, {s(96)}, {s(sWsp)}')
    p(f's_lshl_b32 {s(96)}, {s(94)}, 9')
    p(f's_add_u32 {s(80 + k)}, {s(96)}, {s(95)}')
    p(f's_xor_b32 {s(94)}, {s(94)}, 1')
p(f's_lshl_b32 {s(82)}, {s(sW)}, 10')
prep = [[(f's_add_u32 m0, {s(82)}, {PST}', None), (f'buffer_load_dwordx4 {v(vPi)}, {s(R_WIN, 4)}, {s(76)} offen lds', 'prep')],
        [(f's_add_u32 m0, {s(82)}, {PST + 4096}', None), (f'buffer_load_dwordx4 {v(vPi + 1)}, {s(R_WIN, 4)}, {s(76)} offen lds', 'prep')],
        [(f's_add_u32 m0, {s(82)}, {PST + 8192}', None), (f'buffer_load_dwordx4 {v(vPo)}, {s(R_WOUT, 4)}, {s(77)} offen lds', 'prep')],
        [(f'buffer_load_ushort {v(vBsp)}, {v(t3)}, {s(R_BSP, 4)}, 0 offen', None)]]
wsp_first = wsp_dma_ops(0)
if OPT['early'] & 1:
    emit(prep)
    prep = []
emit(wsp_first[:OPT['early'] >> 1])
wsp_first = wsp_first[OPT['early'] >> 1:]
p(f's_lshr_b32 {s(94)}, {s(sB)}, 2')
p(f's_and_b32 {s(95)}, {s(sB)}, 3')
p(f's_lshl_b32 {s(sVst)}, {s(sC)}, 11')
p(f's_lshl_b32 {s(96)}, {s(sB)}, 8')
p(f's_add_u32 {s(sVst)}, {s(sVst)}, {s(96)}')
p(f's_sub_u32 {s(96)}, 32, {s(sC)}')
p(f's_and_b32 {s(96)}, {s(96)}, 31')
p(f's_cmp_eq_u32 {s(94)}, 0')
p(f's_cselect_b32 {s(96)}, {s(sC)}, {s(96)}')
p(f's_lshl_b32 {s(sVld)}, {s(96)}, 16')
p(f's_lshl_b32 {s(sH)}, {s(sC)}, 16')
p(f's_lshl_b32 {s(96)}, {s(95)}, 14')
p(f's_lshl_b32 {s(97)}, {s(94)}, 7')
p(f's_add_u32 {s(96)}, {s(96)}, {s(97)}')
p(f's_add_u32 {s(sK2)}, {s(sH)}, {s(96)}')
p(f's_lshl_b32 {s(96)}, {s(sW)}, 14')
p(f's_add_u32 {s(sH)}, {s(sH)}, {s(96)}')
p(f's_mov_b32 {s(sXb)}, 0')
p(f's_mov_b32 {s(sXo)}, 16')
p(f's_lshl_b32 {s(96)}, {s(sB)}, 2')
p(f's_add_u32 {s(96)}, {s(96)}, {s(sW)}')
p(f's_mul_i32 {s(sZld)}, {s(96)}, 114688')
p(f's_add_u32 {s(sZld)}, {s(sZld)}, {Z_:#x}')
p(f's_and_b32 {s(96)}, {s(sC)}, 7')
p(f's_lshl_b32 {s(96)}, {s(96)}, 10')
p(f's_lshr_b32 {s(97)}, {s(sC)}, 3')
p(f's_lshl_b32 {s(97)}, {s(97)}, 8')
p(f's_add_u32 {s(96)}, {s(96)}, {s(97)}')
p(f's_add_u32 {s(sZst)}, {s(sZld)}, {s(96)}')
p(f's_lshl_b32 {s(96)}, {s(sB)}, 2')
p(f's_add_u32 {s(96)}, {s(96)}, {s(100)}')
p(f's_mul_i32 {s(sZld)}, {s(96)}, 114688')
p(f's_add_u32 {s(sZld)}, {s(sZld)}, {Z_:#x}')
p(f's_lshl_b32 {s(96)}, {s(sC)}, 2')
p(f's_add_u32 {s(96)}, {s(96)}, {s(sW)}')
p(f's_mul_i32 {s(sUld)}, {s(96)}, 28672')
p(f's_add_u32 {s(sUld)}, {s(sUld)}, {U_:#x}')
p(f's_mul_i32 {s(97)}, {s(sB)}, 3584')
p(f's_add_u32 {s(sUst)}, {s(sUld)}, {s(97)}')
p(f's_lshl_b32 {s(sSt)}, {s(96)}, 10')
p(f's_add_u32 {s(sSt)}, {s(sSt)}, {STATS:#x}')
p(f's_lshl_b32 {s(sDm)}, {s(sW)}, 12')
p(f's_mul_i32 {s(sWI)}, {s(sB)}, 229376')
p(f's_add_u32 {s(sWI)}, {s(sWI)}, {s(sDm)}')
p(f's_mul_i32 {s(sWO)}, {s(sB)}, 114688')
p(f's_add_u32 {s(sWO)}, {s(sWO)}, {s(sDm)}')
p(f's_add_u32 {s(sWO)}, {s(sWO)}, {WO:#x}')
p(f's_and_b32 {s(96)}, s2, 15')
p(f's_lshl_b32 {s(96)}, {s(96)}, 8')
p(f's_add_u32 {s(sArr)}, {s(96)}, {FLAGS:#x}')
p(f's_and_b32 {s(96)}, s2, 7')
p(f's_lshl_b32 {s(96)}, {s(96)}, 12')
p(f's_add_u32 {s(sRep)}, {s(96)}, {FLAGS:#x}')
p(f's_lshl_b32 {s(97)}, {s(sB)}, 9')
p(f's_add_u32 {s(97)}, {s(97)}, {FLAGS + 0x8000:#x}')
p(f's_add_u32 {s(sP4)}, {s(96)}, {s(97)}')
p(f's_and_b32 {s(96)}, {s(sC)}, 1')
p(f's_lshl_b32 {s(96)}, {s(96)}, 8')
p(f's_add_u32 {s(sS4)}, {s(96)}, {s(97)}')
p(f's_lshl_b32 {s(96)}, {s(sC)}, 9')
p(f's_add_u32 {s(sS2)}, {s(96)}, {FLAGS + 0x10000:#x}')
p(f's_lshl_b32 {s(96)}, {s(sW)}, 6')
p(f's_add_u32 {s(96)}, {s(96)}, 256')
p(f's_add_u32 {s(sS5)}, {s(96)}, {s(sS2)}')
p(f'v_lshlrev_b32 {v(vL8)}, 3, {v(lane)}')
p(f'v_add_u32 {v(vL16hi)}, 0x10000, {v(vL16)}')
p(f'v_add_u32 {v(vL16h2)}, 0x20000, {v(vL16)}')
p(f'v_lshlrev_b32 {v(vPoll)}, 8, {v(n_)}')
p(f'v_and_b32 {v(vArr)}, 7, {v(lane)}')
p(f'v_lshlrev_b32 {v(vGrp)}, 2, {v(vArr)}')
p(f'v_lshlrev_b32 {v(vArr)}, 12, {v(vArr)}')
p(f'v_lshlrev_b32 {v(vStl)}, 3, {v(n_)}')
p(f'v_lshl_add_u32 {v(vStl)}, {v(g_)}, 8, {v(vStl)}')
p(f'v_mov_b32 {v(vGK)}, {f2u(-2.302208198144325 * 0.044715):#x}')
p(f'v_mov_b32 {v(vGK + 1)}, {f2u(-2.302208198144325):#x}')
p(f'v_lshrrev_b32 {v(T)}, 3, {v(lane)}')
p(f'v_and_b32 {v(T + 4)}, 7, {v(lane)}')
p(f'v_lshlrev_b32 {v(T + 4)}, 4, {v(T + 4)}')
p(f'v_lshl_add_u32 {v(T + 2)}, {v(T)}, 8, {v(T + 4)}')
p(f's_lshl_b32 {s(96)}, {s(sW)}, 12')
p(f'v_add_u32 {v(vK2)}, {s(96)}, {v(T + 2)}')
p(f'v_and_b32 {v(T)}, 1, {v(T)}')
p(f'v_lshl_add_u32 {v(T)}, {v(T)}, 4, {v(g_)}')
p(f'v_mul_u32_u24 {v(T)}, 144, {v(T)}')
p(f's_lshr_b32 {s(96)}, {s(sW)}, 1')
p(f's_mul_i32 {s(96)}, {s(96)}, 4608')
p(f's_and_b32 {s(97)}, {s(sW)}, 1')
p(f's_mul_i32 {s(97)}, {s(97)}, 1152')
p(f's_add_u32 {s(96)}, {s(96)}, {s(97)}')
p(f's_add_u32 {s(96)}, {s(96)}, {SCR}')
p(f'v_add3_u32 {v(vTr)}, {v(T)}, {v(T + 4)}, {s(96)}')
p(f'v_lshrrev_b32 {v(T)}, 5, {v(lane)}')
p(f'v_and_b32 {v(T + 1)}, 1, {v(g_)}')
p(f'v_lshl_add_u32 {v(T + 2)}, {v(T)}, 4, {v(n_)}')
p(f'v_mul_u32_u24 {v(T + 2)}, 144, {v(T + 2)}')
p(f'v_lshl_add_u32 {v(T + 2)}, {v(T + 1)}, 4, {v(T + 2)}')
p(f's_lshl_b32 {s(96)}, {s(sW)}, 5')
p(f's_add_u32 {s(97)}, {s(96)}, {SCR}')
p(f'v_add_u32 {v(vTw)}, {s(97)}, {v(T + 2)}')
p(f'v_lshlrev_b32 {v(T + 2)}, 6, {v(n_)}')
p(f'v_lshl_add_u32 {v(T + 2)}, {v(T)}, 5, {v(T + 2)}')
p(f'v_lshlrev_b32 {v(T + 3)}, 3, {v(T + 2)}')
p(f'v_lshl_add_u32 {v(T + 3)}, {v(T + 1)}, 4, {v(T + 3)}')
p(f'v_add_u32 {v(vXr2)}, {s(96)}, {v(T + 3)}')
p(f's_lshl_b32 {s(96)}, {s(95)}, 4')
p(f's_add_u32 {s(96)}, {s(96)}, {s(94)}')
p(f's_lshl_b32 {s(96)}, {s(96)}, 5')
p(f's_add_u32 {s(98)}, {s(96)}, {s(sC)}')
p(f's_lshl_b32 {s(96)}, {s(sW)}, 7')
p(f's_add_u32 {s(96)}, {s(96)}, {s(98)}')
p(f's_lshl_b32 {s(96)}, {s(96)}, 10')
p(f'v_lshl_add_u32 {v(T + 3)}, {v(T + 1)}, 16, {v(T + 2)}')
p(f'v_add_u32 {v(vXr)}, {s(96)}, {v(T + 3)}')
p(f'v_mul_u32_u24 {v(T + 3)}, 1040, {v(T + 1)}')
p(f'v_lshl_add_u32 {v(T + 3)}, {v(T)}, 8, {v(T + 3)}')
p(f'v_lshl_add_u32 {v(T + 3)}, {v(n_)}, 3, {v(T + 3)}')
p(f's_mul_i32 {s(96)}, {s(sW)}, 2080')
p(f's_add_u32 {s(96)}, {s(96)}, {SCR}')
p(f'v_add_u32 {v(vUr)}, {s(96)}, {v(T + 3)}')
p(f'v_mul_u32_u24 {v(T + 3)}, 1040, {v(n_)}')
p(f'v_lshl_add_u32 {v(T + 3)}, {v(g_)}, 5, {v(T + 3)}')
p(f's_lshl_b32 {s(96)}, {s(sW)}, 8')
p(f's_add_u32 {s(96)}, {s(96)}, {SCR}')
p(f'v_add_u32 {v(vUw)}, {s(96)}, {v(T + 3)}')
p(f'v_lshlrev_b32 {v(T + 3)}, 14, {v(T + 1)}')
p(f'v_lshl_add_u32 {v(T + 3)}, {v(T)}, 13, {v(T + 3)}')
p(f'v_lshl_add_u32 {v(vZst)}, {v(n_)}, 4, {v(T + 3)}')
p(f'v_lshlrev_b32 {v(T + 3)}, 13, {v(g_)}')
p(f'v_lshl_add_u32 {v(T + 3)}, {v(n_)}, 4, {v(T + 3)}')
p(f's_lshl_b32 {s(96)}, {s(sW)}, 9')
p(f'v_add_u32 {v(vVld)}, {s(96)}, {v(T + 3)}')
p(f'v_lshlrev_b32 {v(T + 3)}, 17, {v(g_)}')
p(f'v_lshl_add_u32 {v(T + 3)}, {v(n_)}, 4, {v(T + 3)}')
p(f's_lshl_b32 {s(96)}, {s(sW)}, 19')
p(f'v_add_u32 {v(vVst)}, {s(96)}, {v(T + 3)}')
p(f'v_mul_u32_u24 {v(T + 3)}, 160, {v(n_)}')
p(f'v_lshl_add_u32 {v(T + 3)}, {v(g_)}, 3, {v(T + 3)}')
p(f's_mul_i32 {s(96)}, {s(sW)}, 2560')
p(f's_add_u32 {s(96)}, {s(96)}, {SCR}')
p(f'v_add_u32 {v(vHw2)}, {s(96)}, {v(T + 3)}')
p(f'v_lshrrev_b32 {v(T + 3)}, 2, {v(lane)}')
p(f'v_mul_u32_u24 {v(T + 3)}, 160, {v(T + 3)}')
p(f'v_and_b32 {v(T + 2)}, 3, {v(lane)}')
p(f'v_lshl_add_u32 {v(T + 3)}, {v(T + 2)}, 3, {v(T + 3)}')
p(f'v_add_u32 {v(vHw)}, {s(96)}, {v(T + 3)}')
p(f'v_add_u32 {v(vHr)}, {SCR}, {v(T + 3)}')
for q in range(1, 5):
    p(f's_add_u32 {s(96)}, {s(sW)}, {q}')
    p(f's_and_b32 {s(96)}, {s(96)}, 3')
    p(f's_mul_i32 {s(96)}, {s(96)}, 3072')
    p(f's_add_u32 {s(96)}, {s(96)}, {SCR + (1024 * (q - 1) if q < 4 else 0)}')
    p(f'v_add_u32 {v(vRed + q - 1)}, {s(96)}, {v(vL16)}')
p(f'v_and_b32 {v(T)}, 7, {v(n_)}')
p(f'v_lshlrev_b32 {v(T)}, 6, {v(T)}')
p(f'v_add_u32 {v(T)}, {s(98)}, {v(T)}')
p(f'v_lshlrev_b32 {v(T + 1)}, 2, {v(g_)}')
p(f'v_mul_u32_u24 {v(T + 1)}, {v(T + 1)}, {v(T)}')
p(f'v_lshrrev_b32 {v(T + 2)}, 3, {v(n_)}')
p(f'v_lshl_add_u32 {v(T + 1)}, {v(T + 2)}, 9, {v(T + 1)}')
p(f's_cmp_eq_u32 {s(94)}, 0')
p(f's_cselect_b32 {s(73)}, 1.0, -1.0')
p(f's_cselect_b32 {s(74)}, 0, 1.0')
p(f's_cselect_b32 {s(72)}, 1.0, 0')
p(f's_cmp_eq_u32 {s(sC)}, 0')
p(f's_cselect_b32 {s(72)}, {s(72)}, 1.0')
p(f's_cselect_b32 {s(73)}, 0, {s(73)}')
p(f's_cselect_b32 {s(74)}, {s(74)}, 0')
for k in range(8):
    cp = 16 * (k >> 2) + (k & 3)
    p(f'v_mad_u32_u24 {v(T + 2)}, {v(T)}, {cp}, {v(T + 1)}')
    p(f'v_and_b32 {v(T + 2)}, 0x7ff, {v(T + 2)}')
    p(f'v_cvt_f32_u32 {v(T + 2)}, {v(T + 2)}')
    p(f'v_mul_f32 {v(T + 2)}, {f2u(1.0 / 2048):#x}, {v(T + 2)}')
    p(f'v_cos_f32 {v(T + 3)}, {v(T + 2)}')
    p(f'v_sin_f32 {v(T + 4)}, {v(T + 2)}')
    p(f'v_mul_f32 {v(T + 5)}, {s(74)}, {v(T + 3)}')
    p(f'v_mul_f32 {v(T + 3)}, {s(72)}, {v(T + 3)}')
    p(f'v_fma_f32 {v(T + 4)}, {s(73)}, {v(T + 4)}, {v(T + 5)}')
    p(f'v_cvt_pk_bf16_f32 {v(vC2 + k)}, {v(T + 3)}, {v(T + 4)}')
p('s_cmp_eq_u32 s2, 0')
p.begin('G0', 's_cbranch_scc0')
p.wait_vm('z')
p('s_barrier')
p(f'v_mov_b32 {v(T + 1)}, 1')
p('s_mov_b64 exec, 1')
p(f'buffer_store_dword {v(T + 1)}, off, {s(R_DBG, 4)}, 0 sc1')
p('s_mov_b64 exec, -1')
p.end()
stamp('setup')
if OPT['wfirst']:
    emit(wsp_first)
    wsp_first = []
x_loads(OPT['x1'], 8)
m1_dma(108)
bg = prep + wsp_first
for k in range(4):
    p(f'v_mov_b32 {v(T + 2 + k)}, 0')
p.bg = bg
p.bg_on(OPT['wspev'])
for i in range(64):
    p(f'v_dot2c_f32_bf16 {v(T + 2 + (i & 1))}, {s(sOnes)}, {v(XR + i)}')
    p(f'v_dot2c_f32_bf16 {v(T + 4 + (i & 1))}, {v(XR + i)}, {v(XR + i)}')
    if i == 7:
        unpack(XR, 8, XV)
p.bg_on(0)
p.bg_emit()
p(f'v_add_f32 {v(T)}, {v(T + 2)}, {v(T + 3)}')
p(f'v_add_f32 {v(T + 1)}, {v(T + 4)}, {v(T + 5)}')
for qp in ('[1,0,3,2]', '[2,3,0,1]'):
    for k in range(2):
        p(f'v_add_f32_dpp {v(T + k)}, {v(T + k)}, {v(T + k)} quad_perm:{qp} row_mask:0xf bank_mask:0xf')

p.section('body')
p('L_layer:')
stamp('T')
HP, M1, AF, D1, VO = 56, 64, 72, 104, 56
p(f's_lshl_b32 {s(sT)}, {s(sW)}, 11')
p(f's_add_u32 {s(sT)}, {s(sT)}, {CT + CT_M1}')
p(f'v_add_u32 {v(T + 7)}, {s(sT)}, {v(vL16)}')
p(f's_add_u32 {s(sT + 1)}, {s(sVst)}, 0x10000')
finish_stats(T, 512)
for i in range(0, 16, 2):
    p(f'v_pk_fma_f32 {v(XV + i, 2)}, {v(XV + i, 2)}, {v(T, 2)}, {v(T, 2)} op_sel:[0,0,1] op_sel_hi:[1,0,1]')
for t in range(4):
    for k in range(2):
        p(f'v_cvt_pk_bf16_f32 {v(HP + 2 * t + k)}, {v(XV + 8 * k + t)}, {v(XV + 8 * k + 4 + t)}')
    p(f'ds_write_b64 {v(vHw)}, {v(HP + 2 * t, 2)} offset:{32 * t}', tag='hw')
p.wait_vm('m1')
for k in range(2):
    p(f'ds_read_b128 {v(M1 + 4 * k, 4)}, {v(T + 7)} offset:{k * 1024}')
p.wait_lgkm('hw')
p('s_barrier')
for ks in range(2):
    for tile in range(4):
        for half in range(2):
            p(f'ds_read_b64_tr_b16 {v(AF + 16 * ks + 4 * tile + 2 * half, 2)}, {v(vHr)} offset:{(32 * ks + 16 * half) * 160 + 32 * tile}')
for ks in range(2):
    for tile in range(4):
        d = D1 + 4 * tile
        p(f'{M16} {v(d, 4)}, {v(M1 + 4 * ks, 4)}, {v(AF + 16 * ks + 4 * tile, 4)}, {v(d, 4) if ks else 0}')
for jj in range(2):
    for t in range(4):
        p(f'v_cvt_pk_bf16_f32 {v(VO + 4 * jj + t)}, {v(D1 + 4 * t + 2 * jj)}, {v(D1 + 4 * t + 2 * jj + 1)}')
    p(f'buffer_store_dwordx4 {v(VO + 4 * jj, 4)}, {v(vVst)}, {s(R_WL, 4)}, {s(sT + 1 if jj else sVst)} offen sc1', tag='pub')
stamp('Vst')
WSR = (120, 152)
if_layer(0)
p.wait_vm('prep')
p('s_barrier')
for k in range(2):
    for half in range(2):
        p(f'ds_read_b64_tr_b16 {v(PK + 4 * k + 2 * half, 2)}, {v(vPri)} offset:{128 * k + 896 * half}')
for half in range(2):
    p(f'ds_read_b64_tr_b16 {v(PK + 8 + 2 * half, 2)}, {v(vPro)} offset:{2048 * half}')
p(f'v_mov_b32 {v(T)}, -1')
p(f'v_mov_b32 {v(T + 1)}, -1')
p(f'v_mov_b32 {v(T + 2)}, {s(sLoc)}')
p(f'v_mov_b32 {v(T + 3)}, 0')
p(f'v_and_b32 {v(T + 4)}, 16, {v(vL16)}')
p(f'v_lshlrev_b32 {v(T + 4)}, 13, {v(T + 4)}')
p(f'v_and_or_b32 {v(T + 4)}, {v(vL16)}, 32, {v(T + 4)}')
p(f'v_lshlrev_b32 {v(vBsp)}, 16, {v(vBsp)}')
p('s_mov_b64 exec, 0xffff')
for k in range(3):
    p(f's_add_u32 {s(96)}, {s(sSt)}, {s(sB128)}')
    p(f's_add_u32 {s(96)}, {s(96)}, {k * 0x20000:#x}')
    p(f'buffer_store_dwordx2 {v(T, 2)}, {v(vStl)}, {s(R_WS, 4)}, {s(96)} offen sc1', tag='pub')
p('s_mov_b64 exec, 1')
p(f's_add_u32 {s(96)}, {s(sS2)}, {s(sB4)}')
p(f'buffer_store_dword {v(T + 2)}, off, {s(R_WS, 4)}, {s(96)} offset:128 sc1', tag='pub')
p('s_mov_b64 exec, 3')
p(f'buffer_store_dword {v(T + 3)}, {v(T + 4)}, {s(R_WS, 4)}, {s(96)} offen sc1', tag='pub')
p('s_mov_b64 exec, 15')
p(f's_add_u32 {s(97)}, {s(sS5)}, {s(sB4)}')
p(f'buffer_store_dword {v(T + 3)}, {v(T + 4)}, {s(R_WS, 4)}, {s(97)} offen sc1', tag='pub')
p('s_mov_b64 exec, -1')
p(f's_mul_i32 {s(94)}, {s(sB)}, 229376')
p(f's_mul_i32 {s(95)}, {s(sC)}, 7168')
p(f's_add_u32 {s(94)}, {s(94)}, {s(95)}')
p(f's_lshl_b32 {s(95)}, {s(sW)}, 10')
p(f's_add_u32 {s(94)}, {s(94)}, {s(95)}')
p(f'buffer_store_dwordx4 {v(PK, 4)}, {v(vL16)}, {s(R_WS, 4)}, {s(94)} offen sc1', tag='pub')
p(f's_add_u32 {s(94)}, {s(94)}, 4096')
p(f's_cmp_lt_u32 {s(sW)}, 3')
p(f's_cselect_b32 {s(94)}, {s(94)}, {LBASE:#x}')
p(f'buffer_store_dwordx4 {v(PK + 4, 4)}, {v(vL16)}, {s(R_WS, 4)}, {s(94)} offen sc1', tag='pub')
p(f's_mul_i32 {s(94)}, {s(sB)}, 114688')
p(f's_lshl_b32 {s(96)}, {s(sC)}, 12')
p(f's_add_u32 {s(94)}, {s(94)}, {s(96)}')
p(f's_add_u32 {s(94)}, {s(94)}, {s(95)}')
p(f's_add_u32 {s(94)}, {s(94)}, {WO:#x}')
p(f's_cmp_lt_u32 {s(sC)}, 28')
p(f's_cselect_b32 {s(94)}, {s(94)}, {LBASE:#x}')
p(f'buffer_store_dwordx4 {v(PK + 8, 4)}, {v(vL16)}, {s(R_WS, 4)}, {s(94)} offen sc1', tag='pub')
if_wave0()
top, done = p.label('init'), p.label('idone')
p(f'{top}:')
p(f'buffer_load_dword {v(T)}, off, {s(R_DBG, 4)}, 0 sc1')
p('s_waitcnt vmcnt(0)')
p(f'v_cmp_ne_u32 vcc, 1, {v(T)}')
spin_tail(top, done)
p.end()
wsp_dma(1)
p.end()
wz2 = w_dma_ops(sWI, 114688, LOC_Z2, 'wz2')
P1, P2, P3 = OPT['wzp1'], OPT['wzp1'] + OPT['wzp2'], OPT['wzp1'] + OPT['wzp2'] + OPT['wzp3']
if P2 > P1:
    if_layer(1)
    emit(wz2[P1:P2])
    p.end()
stamp('init')
p.wait_vm('pub')
arrive(sArr, 8)
stamp('arr1')
if_layer(0)
wsp_dma(2)
wsp_read(0, WSR[0])
for k in range(8):
    if k + 3 < 8:
        p.wait_lgkm(f'wr{k}')
        wsp_dma(k + 3)
    if k == 4:
        ct_dma(240)
    if k + 1 < 8:
        wsp_read(k + 1, WSR[(k + 1) & 1])
    wsp_perm(k, WSR[k & 1])
p.end()
if P3 > P2:
    if_layer(1)
    emit(wz2[P2:P3])
    p.end()
wz2_l0, wz2_l1 = list(wz2), wz2[P3:]


def l0_dma(n):
    if_layer(0)
    emit([wz2_l0.pop(0) for _ in range(n)])
    p.end()
    if wz2_l1:
        if_layer(1)
        emit([wz2_l1.pop(0) for _ in range(min(n, len(wz2_l1)))])
        p.end()


FA, TW, FB, VR, D2, UP, XRES, Y = 40, 64, 80, 96, 160, 192, 200, 208
for k in range(4):
    p(f's_add_u32 {s(sT + 4 + k)}, {s(sVld)}, {(16 * (k >> 1) + 2 * (k & 1)) * 2048:#x}')
stamp('win1')
poll(sRep, vPoll, 16, 'ct')
stamp('S1')
for hi in range(2):
    for ks in range(2):
        for ii in range(4):
            r = VR + 32 * hi + 16 * ks + 4 * ii
            p(f'buffer_load_dwordx4 {v(r, 4)}, {v(vVld)}, {s(R_WL, 4)}, {s(sT + 4 + 2 * ks + (ii >> 1))} offen offset:{(ii & 1) * 2048 + hi * 256} sc1')
for k in range(14):
    p(f'ds_read_b128 {v(FA + 4 * k, 4)}, {v(vL16hi)} offset:{CT - 65536 + k * 1024}')
p(f'buffer_load_dwordx4 {v(XRES, 4)}, {v(vXr)}, {s(R_X, 4)}, {s(sXb)} offen{LG}')
p(f'buffer_load_dwordx4 {v(XRES + 4, 4)}, {v(vXr)}, {s(R_X, 4)}, {s(sXo)} offen{LG}')
if_layer(0)
p(f'buffer_load_dword {v(248)}, {v(vGrp)}, {s(R_WS, 4)}, {s(sS2)} offen offset:128 sc1')
p.end()
for hi in range(2):
    for ks in range(2):
        r = VR + 32 * hi + 16 * ks
        for i in range(4):
            for j in range(i + 1, 4):
                p(f'v_swap_b32 {v(r + 4 * i + j)}, {v(r + 4 * j + i)}')
        for lo in range(4):
            d = D2 + 16 * hi + 4 * lo
            p(f'{M16} {v(d, 4)}, {v(r + 4 * lo, 4)}, {v(vC2 + 4 * ks, 4)}, {v(d, 4) if ks else 0}')
l0_dma(4)
for hi in range(2):
    UP = (192, 240)[hi]
    for r in range(4):
        for lp in range(2):
            p(f'v_cvt_pk_bf16_f32 {v(UP + 2 * r + lp)}, {v(D2 + 16 * hi + 8 * lp + r)}, {v(D2 + 16 * hi + 8 * lp + 4 + r)}')
    p(f'ds_write_b128 {v(vUw)}, {v(UP, 4)} offset:{128 * hi}')
    p(f'ds_write_b128 {v(vUw)}, {v(UP + 4, 4)} offset:{128 * hi + 16}')
p('s_waitcnt lgkmcnt(0)')
p('s_barrier')
UA, DR, DI, TT, PF = 96, 112, 128, 144, 160
for ri in range(2):
    for dh in range(2):
        for half in range(2):
            p(f'ds_read_b64_tr_b16 {v(UA + 8 * ri + 4 * dh + 2 * half, 2)}, {v(vUr)} offset:{ri * 8320 + dh * 512 + half * 128}')
l0_dma(4)
for ri in range(2):
    for dh in range(2):
        first = ri == 0 and dh == 0
        fr = FA + 4 * ((2 if ri else 0) + dh)
        fi = FA + 4 * ((0 if ri else 4) + dh)
        p(f'{M32} {v(DR, 16)}, {v(UA + 8 * ri + 4 * dh, 4)}, {v(fr, 4)}, {0 if first else v(DR, 16)}')
        p(f'{M32} {v(DI, 16)}, {v(UA + 8 * ri + 4 * dh, 4)}, {v(fi, 4)}, {0 if first else v(DI, 16)}')
unpack(XRES, 8, Y)
l0_dma(4)
for row in range(2):
    for k in range(0, 8, 2):
        r = 8 * row + k
        p(f'v_pk_mul_f32 {v(TT + k, 2)}, {v(DI + r, 2)}, {v(TW + 8 + k, 2)}')
        p(f'v_pk_mul_f32 {v(TT + 8 + k, 2)}, {v(DR + r, 2)}, {v(TW + 8 + k, 2)}')
    for k in range(0, 8, 2):
        r = 8 * row + k
        p(f'v_pk_fma_f32 {v(TT + k, 2)}, {v(DR + r, 2)}, {v(TW + k, 2)}, {v(TT + k, 2)}')
        p(f'v_pk_fma_f32 {v(TT + 8 + k, 2)}, {v(DI + r, 2)}, {v(TW + k, 2)}, {v(TT + 8 + k, 2)} neg_lo:[0,0,1] neg_hi:[0,0,1]')
    for k in range(8):
        p(f'v_cvt_pk_bf16_f32 {v(PF + 8 * row + k)}, {v(TT + 2 * k)}, {v(TT + 2 * k + 1)}')
for k in range(4):
    p(f'{M32} {v(Y, 16)}, {v(PF + 4 * k, 4)}, {v(FB + 4 * k, 4)}, {v(Y, 16)}')
XO, HO = 224, 232
l0_dma(4)
if_layer(0)
p(f'v_cmp_ne_u32 vcc, {s(sLoc)}, {v(248)}')
p('s_cmp_eq_u64 vcc, 0')
p(f's_cselect_b32 {s(sLoc)}, {OPT["loc"]}, 0')
p.end()
local_stats(Y, 16, T)
p(f'v_permlane32_swap_b32 {v(T)}, {v(T + 1)}')
p(f'v_add_f32 {v(T)}, {v(T)}, {v(T + 1)}')
for k, sh in enumerate((8, 4, 2, 1)):
    p(f'v_cvt_pk_bf16_f32 {v(XO + 2 * k)}, {v(Y + 4 * k)}, {v(Y + 4 * k + 1)}')
    p(f'v_cvt_pk_bf16_f32 {v(XO + 2 * k + 1)}, {v(Y + 4 * k + 2)}, {v(Y + 4 * k + 3)}')
    p(f'v_add_f32_dpp {v(T)}, {v(T)}, {v(T)} row_ror:{sh} row_mask:0xf bank_mask:0xf')
p(f'v_mov_b32 {v(T + 1)}, {v(T)}')
p(f's_add_u32 {s(sT)}, {s(sK2)}, {X1_:#x}')
p(f's_add_u32 {s(sT + 1)}, {s(sK2)}, {H_:#x}')
p(f'v_permlane32_swap_b32 {v(T)}, {v(T + 1)}')
finish_stats(T, 512)
norm_pack(Y, 16, T, Y, HO)
for o in range(2):
    p(f'ds_write_b128 {v(vTw)}, {v(HO + 4 * o, 4)} offset:{16640 + 4608 * o}')
p('s_waitcnt lgkmcnt(0)')
p('s_barrier')
for k in range(2):
    p(f'ds_read_b128 {v(HO + 4 * k, 4)}, {v(vTr)} offset:{16640 + 576 * k}')
for o in range(2):
    p(f'ds_write_b128 {v(vTw)}, {v(XO + 4 * o, 4)} offset:{4608 * o}')
gstore([f'buffer_store_dwordx4 {v(HO + 4 * k, 4)}, {v(vK2)}, {s(R_WL, 4)}, {s(sT + 1)} offen offset:{2048 * k}' for k in range(2)], 'pub')
l0_dma(6)
stamp('K2')
p('s_waitcnt lgkmcnt(0)')
p.wait_vm('pub')
if OPT['hpf']:
    for k in range(2):
        p(f'buffer_load_dwordx4 {v(HO + 4 * k, 4)}, {v(vK2)}, {s(R_WL, 4)}, {s(sT + 1)} offen offset:{2048 * k} sc1')
arrive_group(sS2)
for k in range(2):
    p(f'ds_read_b128 {v(XO + 4 * k, 4)}, {v(vTr)} offset:{576 * k}')
l0_dma(6)
stamp('arr2')
HF, Z2, Z1, WR, WD, GT = 40, 104, 136, 164, 12, 212
for k in range(4):
    p(f's_add_u32 {s(sT + 4 + k)}, {s(sH)}, {H_ + 4096 * k:#x}')
p('s_waitcnt lgkmcnt(0)')
poll(sS2, vGrp, 1, 'wz26')
stamp('S2')
hl = [[(f'buffer_load_dwordx4 {v(HF + 4 * ks, 4)}, {v(vL16)}, {s(R_WL, 4)}, {s(sT + 4 + (ks >> 2))} offen offset:{1024 * (ks & 3)}{LG}', None)]
      for ks in range(16)]
xs = [[(f'buffer_store_dwordx4 {v(XO + 4 * k, 4)}, {v(vK2)}, {s(R_WL, 4)}, {s(sT)} offen offset:{2048 * k} sc1', 'x1')] for k in range(2)]
wz1 = w_dma_ops(sWI, 0, LOC_Z1, 'wz1')
emit(hl[:OPT['pre3']])
n_h = 16 - OPT['pre3']
fill = spread(hl[OPT['pre3']:], 1, 5)
fill.update(spread(xs + wz1[:12], 5 * n_h + 1, OPT['z2sp']))
gemm_r(Z2, 7, 0, 16, HF, WR, WD, LOC_Z2, fill=fill)
p.wait_vm('x1')
p('s_barrier')
stamp('z2mm')
p.bg = wz1[12:]
p.bg_emit(2)
p.bg_on(OPT['g2ev'])
gelu(Z2, 28, GT)
local_stats(Z2, 28, T)
p.bg_on(0)
reduce_g(T, T + 1)
publish_stats(0)
stamp('pub3')
Z1A = OPT['z1a']
p.bg_emit()
p.wait_vm('wz12')
p('s_barrier')
gemm_r(Z1, 7, 0, Z1A, HF, WR, WD, LOC_Z1, fill={min(OPT['gpos'], 7 * Z1A - 1): gather_loads(0)})
SEL, ZP, ZT, ZO = 220, 228, 164, 104
p(f'v_and_b32 {v(SEL)}, 0xf0, {v(vL16)}')
p(f'v_lshrrev_b32 {v(SEL + 1)}, 2, {v(vL16)}')
p(f'v_and_b32 {v(SEL + 1)}, 0xc0, {v(SEL + 1)}')
p(f'v_sub_u32 {v(SEL)}, {v(SEL)}, {v(SEL + 1)}')
p(f'v_mov_b32 {v(SEL + 4)}, 0x3f80')
p(f'v_lshlrev_b32 {v(SEL + 4)}, {v(SEL)}, {v(SEL + 4)}')
p(f'v_lshrrev_b32 {v(SEL + 1)}, 5, {v(SEL)}')
p(f'v_cmp_eq_u32 vcc, 0, {v(SEL + 1)}')
p(f'v_cndmask_b32 {v(SEL + 2)}, 0, {v(SEL + 4)}, vcc')
p(f'v_cmp_eq_u32 vcc, 1, {v(SEL + 1)}')
p(f'v_cndmask_b32 {v(SEL + 3)}, 0, {v(SEL + 4)}, vcc')
for k in (0, 1, 4, 5):
    p(f'v_mov_b32 {v(SEL + k)}, 0')
p(f'v_mov_b32 {v(ZP + 14)}, 0')
p(f'v_mov_b32 {v(ZP + 15)}, 0')
stamp('z1a')
gather_finish(0)
stamp('S3')
finish_stats(T, 896)
if OPT['nomean']:
    p(f'v_mov_b32 {v(T + 1)}, 0')
if OPT['nomean'] == 2:
    p(f'v_mov_b32 {v(T)}, 0')
norm_pack(Z2, 28, T, Z2, ZP)
for ft in range(7):
    p(f'{M16} {v(ZT + 4 * ft, 4)}, {v(ZP + 4 * (ft >> 1), 4)}, {v(SEL + (0 if ft & 1 else 2), 4)}, 0')
for ft in range(7):
    for k in range(2):
        p(f'v_cvt_pk_bf16_f32 {v(ZO + 2 * ft + k)}, {v(ZT + 4 * ft + 2 * k)}, {v(ZT + 4 * ft + 2 * k + 1)}')
for pr in range(4):
    p(f's_add_u32 {s(sT)}, {s(sZst)}, {pr * 32768:#x}')
    for k in range(2):
        p(f'v_permlane16_swap_b32 {v(ZO + 4 * pr + k)}, {v(ZO + 4 * pr + 2 + k)}')
    if pr == 3:
        p('s_mov_b32 exec_lo, 0xffff')
        p('s_mov_b32 exec_hi, 0xffff')
    p(f'buffer_store_dwordx4 {v(ZO + 4 * pr, 4)}, {v(vZst)}, {s(R_WL, 4)}, {s(sT)} offen sc1', tag='pub')
p('s_mov_b64 exec, -1')
stamp('Zst')
p.wait_vm('wz16')
p('s_barrier')
Z1B = min(16, Z1A + OPT['z1arr'])
wo = w_dma_ops(sWO, 0, LOC_WO, 'wo')
fill = spread(wo[:12], 7 * Z1A + 1, 5)
gemm_r(Z1, 7, Z1A, Z1B, HF, WR, WD, LOC_Z1, last=112, fill={k: g for k, g in fill.items() if k < 7 * Z1B})
p.wait_vm('pub')
arrive(sS4, 8)
stamp('arr4')
if Z1B < 16:
    gemm_r(Z1, 7, Z1B, 16, HF, WR, WD, LOC_Z1, preload=False, fill={k: g for k, g in fill.items() if k >= 7 * Z1B})
    if OPT['wo4']:
        p('s_barrier')
emit(wo[12:12 + OPT['wo4']])
wo = wo[12 + OPT['wo4']:]
p(f's_mov_b32 {s(sT + 2)}, {s(sZld)}')
stamp('win4')
p(f'v_and_b32 {v(T + 1)}, 0x100, {v(vPoll)}')
poll(sP4, T + 1, 16)
stamp('S4')
ZD, AC, RT, UO = OPT['zd'], 196, 228, 240


def zreg(fi):
    k = fi % ZD
    return 40 + 4 * k if k < 24 else 164 + 4 * (k - 24)


def zload(fi):
    if fi % 4 == 0 and fi:
        p(f's_add_u32 {s(sT + 2)}, {s(sT + 2)}, 4096')
    if OPT['k4load'] or fi < ZD:
        p(f'buffer_load_dwordx4 {v(zreg(fi), 4)}, {v(vL16)}, {s(R_WL, 4)}, {s(sT + 2)} offen offset:{(fi % 4) * 1024}' + ' sc1')


def k4_epilogue(ft):
    ac, buf = AC + 16 * (ft & 1), 12288 * (ft & 1)
    st1 = [f'ds_write_b128 {v(vRed + q - 1)}, {v(ac + 4 * q, 4)} offset:{buf}' for q in (1, 2, 3)]
    st1 += [f'v_add_f32 {v(ac + r)}, {v(vBsp)}, {v(ac + r)}' for r in range(4)]
    st2 = ['s_waitcnt lgkmcnt(0)', 's_barrier']
    st2 += [f'ds_read_b128 {v(RT + 4 * q, 4)}, {v(vRed + 3)} offset:{buf + 1024 * q}' for q in range(3)]
    st3 = [f'v_add_f32 {v(ac + r)}, {v(RT + 4 * q + r)}, {v(ac + r)}' for q in range(3) for r in range(4)]
    st3 += [f'v_mul_f32 {v(ac + r)}, {v(Z1 + 4 * ft + r)}, {v(ac + r)}' for r in range(4)]
    st3 += [f'v_cvt_pk_bf16_f32 {v(UO + 2 * (ft & 1) + k)}, {v(ac + 2 * k)}, {v(ac + 2 * k + 1)}' for k in range(2)]
    if ft == 6:
        st3 += [f'buffer_store_dwordx2 {v(UO, 2)}, {v(vL8)}, {s(R_WL, 4)}, {s(sUst)} offen offset:3072']
    elif ft & 1:
        st3 += [f'buffer_store_dwordx4 {v(UO, 4)}, {v(vL16)}, {s(R_WL, 4)}, {s(sUst)} offen offset:{1024 * (ft >> 1)}']
    return st1, st2, st3


def k4_emit(x):
    if x.startswith('buffer_store'):
        gstore([x], 'pub')
    else:
        p(x)


def gelu_ops(x, t):
    ops = [f'v_mul_f32 {v(t + k)}, {v(x + k)}, {v(x + k)}' for k in range(4)]
    ops += [f'v_fma_f32 {v(t + k)}, {v(t + k)}, {v(vGK)}, {v(vGK + 1)}' for k in range(4)]
    ops += [f'v_mul_f32 {v(t + k)}, {v(t + k)}, {v(x + k)}' for k in range(4)]
    ops += [f'v_exp_f32 {v(t + k)}, {v(t + k)}' for k in range(4)]
    ops += [f'v_add_f32 {v(t + k)}, 1.0, {v(t + k)}' for k in range(4)]
    ops += [f'v_rcp_f32 {v(t + k)}, {v(t + k)}' for k in range(4)]
    ops += [f'v_mul_f32 {v(x + k)}, {v(t + k)}, {v(x + k)}' for k in range(4)]
    return ops


WR5, X1R, XP, FL = 56, 232, 104, 244
OW, OR, OG = 248, 249, 253
assert ZD <= 12


def ureg(ks):
    return 104 + 4 * ks if ks < 8 else (164 + 4 * (ks - 8) if ks < 24 else 136 + 4 * (ks - 24))


ul = [[(f'buffer_load_dwordx4 {v(ureg(ks), 4)}, {v(vL16)}, {s(R_WL, 4)}, {s(sT + 4 + (ks >> 1 if ks < 16 else ks - 16))} '
        f'offen offset:{1024 * (ks & 1 if ks < 16 else 2)}{LG}', None)] for ks in range(24)]
ul += [[(f'buffer_load_dwordx2 {v(ureg(24 + i) + 2 * k, 2)}, {v(vL8)}, {s(R_WL, 4)}, {s(sT + 4 + 2 * i + k)} offen offset:3072{LG}', None)
        for k in range(2)] for i in range(4)]


def flag_store(off):
    p(f'v_mov_b32 {v(FL + 1)}, 1')
    p(f's_add_u32 {s(99)}, {s(sS5)}, {s(sB4)}')
    p('s_mov_b64 exec, 1')
    gstore([f'buffer_store_dword {v(FL + 1)}, off, {s(R_WS, 4)}, {s(99)} offset:{off}'])
    p('s_mov_b64 exec, -1')


def flag_load(off):
    return [(f'buffer_load_dword {v(FL)}, {v(vGrp)}, {s(R_WS, 4)}, {s(sS5)} offen offset:{off}{PG}', None)]


def flag_check(off):
    retry_until(flag_load(off), lambda: p(f'v_cmp_ne_u32 vcc, 1, {v(FL)}'))


for fi in range(ZD):
    zload(fi)
p(f's_lshl_b32 {s(sT + 3)}, {s(sB)}, 10')
p(f's_add_u32 {s(sT + 3)}, {s(sT + 3)}, {s(sH)}')
p(f's_add_u32 {s(sT + 12)}, {s(sT + 3)}, {X1_:#x}')
p(f's_add_u32 {s(sT + 13)}, {s(sT + 3)}, {X1_ + 8192:#x}')
for bb in range(8):
    p(f's_add_u32 {s(sT + 4 + bb)}, {s(sUld)}, {3584 * bb}')
p(f'v_and_b32 {v(T)}, 0xf0, {v(vL16)}')
p(f'v_mul_u32_u24 {v(T)}, 9, {v(T)}')
p(f'v_lshrrev_b32 {v(T + 1)}, 8, {v(vL16)}')
p(f'v_lshl_add_u32 {v(T)}, {v(T + 1)}, 5, {v(T)}')
p(f's_mul_i32 {s(sT)}, {s(sW)}, 2304')
p(f's_add_u32 {s(sT)}, {s(sT)}, {SCR + 12288}')
p(f'v_add_u32 {v(OW)}, {s(sT)}, {v(T)}')
p(f'v_lshrrev_b32 {v(T)}, 7, {v(vL16)}')
p(f'v_lshl_add_u32 {v(T + 1)}, {v(T)}, 4, {v(vL16)}')
p(f'v_add_u32 {v(OR)}, {s(sT)}, {v(T + 1)}')
p(f'v_and_b32 {v(T + 1)}, 0x70, {v(vL16)}')
p(f'v_lshl_add_u32 {v(OG)}, {v(T)}, 16, {v(T + 1)}')
p(f's_lshl_b32 {s(sT)}, {s(sW)}, 9')
p(f's_add_u32 {s(sT)}, {s(sT)}, {s(sC)}')
p(f's_lshl_b32 {s(sT)}, {s(sT)}, 10')
p(f's_add_u32 {s(sT + 14)}, {s(sT)}, {s(sB128)}')
p(f's_add_u32 {s(sT + 15)}, {s(sT + 14)}, 0x8000')
tail = [[(f'buffer_load_dwordx4 {v(88 + 4 * o, 4)}, {v(vL16)}, {s(R_WL, 4)}, {s(sT + 12 + o)} offen{LG}', None) for o in range(2)]] + wo
late_wo = bool(wo)
for ft in range(7):
    fill = {}
    if ft and OPT['k4epi']:
        st1, st2, st3 = k4_epilogue(ft - 1)
        pos = 8
        for x in st1:
            fill.setdefault(pos, []).append(x)
            pos += 1
        pos = 22
        for x in st2:
            fill.setdefault(pos, []).append(x)
            pos += 1
        pos = 36
        for x in st3:
            fill.setdefault(pos, []).append(x)
            pos += 1
    free = [k for k in range(64) if k not in fill]
    for k, x in zip(free, gelu_ops(Z1 + 4 * ft, T)):
        fill[k] = [x]
    for a2 in range(16):
        fi = ft * 16 + a2
        for q in range(4):
            d = AC + 16 * (ft & 1) + 4 * q
            if OPT['k4mfma'] or q == 0:
                p(f'{M16} {v(d, 4)}, {v(zreg(fi), 4)}, {a((q * 16 + a2) * 4, 4)}, {v(d, 4) if a2 else 0}')
            for x in fill.get(4 * a2 + q, []):
                k4_emit(x)
        if fi + ZD < 112:
            zload(fi + ZD)
        elif tail:
            emit([tail.pop(0)])
        if fi == 92:
            p.wait_vm('pub')
            flag_store(0)
        if fi == 111 - ZD:
            emit([flag_load(0)])
emit(tail)
st1, st2, st3 = k4_epilogue(6)
flag_check(0)
for x in st1:
    p(x)
emit(ul[:OPT['upre']])
for x in st2:
    p(x)
unpack(88, 8, XV)
for x in st3:
    k4_emit(x)
stamp('K4')
emit(ul[OPT['upre']:OPT['pre5']])


def reload_table():
    if_layer(0)
    m1_dma(228)
    ct_dma(230)
    p.end()


def late_flag():
    p.wait_vm('pub')
    flag_store(32)


def late_weights():
    p.wait_vm('wo6')
    p('s_barrier')


first = max(OPT['upre'], OPT['pre5'])
fill = spread(ul[first:16], 1, 4)
fill[OPT['fa']] = late_flag
fill[OPT['fb']] = flag_load(32)
fill[OPT['fc']] = lambda: (flag_check(32), emit(ul[16:16 + OPT['lpre']]))
fill.update(spread(ul[16 + OPT['lpre']:], OPT['fc'] + 1, 3))
if late_wo:
    fill[26] = late_weights
fill[max(fill) + 2] = reload_table
gemm_r(XV, 4, 0, 28, ureg, WR5, WD, LOC_WO, first_c=True, fill=fill)
for k in range(8):
    p(f'v_cvt_pk_bf16_f32 {v(XP + k)}, {v(XV + 2 * k)}, {v(XV + 2 * k + 1)}')
stamp('K5')
if_layer(1)
for o in range(2):
    p(f'ds_write_b128 {v(OW)}, {v(XP + 4 * o, 4)} offset:{16 * o}')
for k in range(2):
    p(f'ds_read_b128 {v(X1R + 4 * k, 4)}, {v(OR)} offset:{1152 * k}')
for k in range(2):
    p(f'buffer_store_dwordx4 {v(X1R + 4 * k, 4)}, {v(OG)}, {s(R_OUT, 4)}, {s(sT + 14 + k)} offen sc1')
if PROF:
    p('s_waitcnt vmcnt(0)')
    stamp('end')
    p(f's_lshl_b32 {s(sT)}, s2, 2')
    p(f's_add_u32 {s(sT)}, {s(sT)}, {s(sW)}')
    p(f's_lshl_b32 {s(sT)}, {s(sT)}, 8')
    p(f's_add_u32 {s(sT)}, {s(sT)}, {PROFO:#x}')
    p(f'v_lshrrev_b32 {v(T)}, 2, {v(vL16)}')
    p(f'buffer_store_dword {v(vProf)}, {v(T)}, {s(R_WS, 4)}, {s(sT)} offen')
if OPT['diag']:
    p('s_waitcnt vmcnt(0)')
    stamp('end')
    p(f's_sub_u32 s101, s101, {s(sPidx)}')
    p('s_min_u32 s101, s101, 20000')
    p('s_mul_i32 s101, s101, 10')
    p('s_add_u32 s101, s101, 10000')
    p('L_spin:')
    p(f's_memrealtime {s(sStamp, 2)}')
    p('s_waitcnt lgkmcnt(0)')
    p(f's_sub_u32 {s(sStamp)}, {s(sStamp)}, {s(sPidx)}')
    p(f's_cmp_lt_u32 {s(sStamp)}, s101')
    p('s_cbranch_scc1 L_spin')
p('L_exit:')
p('s_endpgm')
p.end()
local_stats(XV, 16, T)
reduce_g(T, T + 1)
publish_stats(0x40000)
emit([gather_loads(0x40000)])
p('s_barrier')
for o in range(2):
    p(f's_add_u32 {s(sT + 4 + o)}, {s(sT + 3)}, {X2 + 8192 * o:#x}')
gather_finish(0x40000)
gstore([f'buffer_store_dwordx4 {v(XP + 4 * o, 4)}, {v(vL16)}, {s(R_WS, 4)}, {s(sT + 4 + o)} offen' for o in range(2)], 'pub')
emit(wz2[:P1])
p(f's_mov_b32 {s(sL)}, 1')
p(f's_add_u32 {s(R_WL)}, {s(R_WL)}, {LSTRIDE:#x}')
p(f's_addc_u32 {s(R_WL + 1)}, {s(R_WL + 1)}, 0')
p(f's_mov_b32 {s(R_X)}, {s(R_WS)}')
p(f's_mov_b32 {s(R_X + 1)}, {s(R_WS + 1)}')
p(f's_mov_b32 {s(R_X + 2)}, {LBASE:#x}')
p(f's_add_u32 {s(sXb)}, {s(sK2)}, {X2:#x}')
p(f's_add_u32 {s(sXo)}, {s(sXb)}, 8192')
p(f'v_mov_b32 {v(vXr)}, {v(vXr2)}')
p(f'v_mov_b32 {v(vHw)}, {v(vHw2)}')
p(f's_add_u32 {s(sSt)}, {s(sSt)}, 0x20000')
for r in (sArr, sRep, sS2, sS4, sP4, sS5):
    p(f's_add_u32 {s(r)}, {s(r)}, 0x20000')
p('s_branch L_layer')

p.resolve([('pro', set()), ('body', {'L0'}), ('body', {'L1'})], ['W0', 'G0', 'LOC', 'RETRY'])

hdr = open('interleave_layers__spectral_fnet__mixer_gmlp__prompt.s.ref').read().split('\n')
out = [l for l in hdr if l.startswith(';') and '@launch' not in l][:14]
if PROF:
    k = STAMPS.index('T')
    out.append('; stamps: ' + ' '.join(STAMPS[:-1] + STAMPS[k:]))
out.append(f'; @launch grid=(256,1,1) block=(256,1,1) lds={LDS_BYTES}')
out += ['.amdgcn_target "amdgcn-amd-amdhsa--gfx950"', '.text', f'.globl {NAME}', '.p2align 8', f'.type {NAME},@function']
out.append(p.text())
out.append('.p2align 8')
out.append('.type L_table,@object')
out.append('L_table:')
tab = const_table()
for i in range(0, tab.size, 8):
    out.append('.long ' + ','.join(f'{x:#x}' for x in tab[i:i + 8]))
out.append(f'.size L_table, {tab.size * 4}')
out.append('L_end:')
out += ['.section .rodata,"a"', '.p2align 6', f'.amdhsa_kernel {NAME}',
        '  .amdhsa_next_free_vgpr 512', '  .amdhsa_next_free_sgpr 102', '  .amdhsa_accum_offset 256',
        '  .amdhsa_group_segment_fixed_size 0', '  .amdhsa_kernarg_size 104', '  .amdhsa_user_sgpr_count 2',
        '  .amdhsa_user_sgpr_kernarg_segment_ptr 1', '  .amdhsa_system_sgpr_workgroup_id_x 1',
        '  .amdhsa_float_denorm_mode_32 3', '.end_amdhsa_kernel', '']
open(sys.argv[1], 'w').write('\n'.join(out))
print(p.stats(), file=sys.stderr)
```

```python
import sys
import struct
import numpy as np
from asmlib import Prog, v, a, s

NAME = 'interleave_layers__spectral_fnet__mixer_gmlp__prompt_kernel'
OPT = dict(prof=0, k4mfma=1, k4load=1, k4epi=1, zd=12, pre3=8, pre5=16, loc=1, locd=0, lg=0, pg=0, sg=0, wspev=8, x1=2,
           g2ev=10, z1a=5, gpos=18, z1arr=6, wo4=16, wzp1=0, wzp2=6, wzp3=14, reuse=0, tlb=0, e1=4, e2=14, e3=24, f5a=86, l5a=93, ma=2, mb=16, mc=28, fa=30, fb=50, fc=62, hpf=0, l0n='0444466', ann=0, fix='4/5/6/7/', ntail=12, lnow=4, fine=0, sched='//d1/d2r0d3r1d4p0r2d5p1r3qd6a4d7/a5p2/a6p3/a7/', ctpos=0, pk=3, nomean=0,  z2sp=4, early=1, wfirst=0, nobg=0, few=0, diag='')
for arg in sys.argv[2:]:
    k, val = arg.split('=')
    OPT[k] = val if k in ('diag', 'sched', 'fix', 'l0n') else int(val)
PROF = OPT['prof']
LG = (' sc1', '', ' nt', ' sc0')[OPT['lg']]
PG = (' sc1', '', ' nt')[OPT['pg']]
SG = ('', ' nt', ' sc0')[OPT['sg']]


WI, WO, FLAGS, STATS, X2, PROFO = 0, 0x200000, 0x300000, 0x340000, 0x400000, 0x600000
LBASE, LSTRIDE = 0x800000, 0x1000000
V_, H_, X1_, Z_, U_ = 0, 0x200000, 0x400000, 0x600000, 0xA00000
WB, CT, SCR, LDS_BYTES = 0, 114688, 114688 + 22528, 163840
CT_FA, CT_TW, CT_FB, CT_M1 = 0, 6144, 10240, 14336

R_X, R_WIN, R_WSP, R_WOUT, R_OUT, R_WS, R_DBG, R_BSP, R_WL = 4, 8, 12, 16, 20, 24, 28, 32, 36
sW, sC, sB, sL, sTO = 40, 41, 42, 43, 44
sVst, sVld, sH, sK2, sXo, sXb, sZst, sZld, sUst, sUld = 45, 46, 47, 48, 49, 50, 51, 52, 53, 54
sLoc, sSt, sWI, sWO, sWsp, sSelLo, sSelHi, sPidx, sOnes = 55, 56, 57, 58, 59, 60, 61, 62, 63
sArr, sRep, sS2, sS4, sS5, sB128, sDm, sDo = 64, 65, 66, 67, 68, 69, 70, 71
sB4, sP4, sG0 = 3, 88, 75
sT = 72
sStamp = 90
vL16, vTw, vK2, vXr, vVld, vVst, vBsp, vZst = 0, 1, 2, 3, 4, 5, 6, 7
vC2 = 8
vHw, vHr, vUw, vUr, vStl, vL8, vTr, vPoll, vArr, vProf, vGK = 16, 17, 18, 19, 20, 21, 22, 23, 24, 25, 26
vRed = 28
T = 32
XV = 40


def f2u(x):
    return struct.unpack('<I', struct.pack('<f', x))[0]


def bf16(x):
    u = np.ascontiguousarray(x, dtype=np.float32).view(np.uint32)
    return ((u + 0x7FFF + ((u >> 16) & 1)) >> 16).astype(np.uint32)


def const_table():
    l = np.arange(64)[:, None]
    j = np.arange(8)[None, :]
    nn, h = l & 31, l >> 5
    e1 = 16 * ((nn >> 2) & 1) + 4 * (nn >> 3) + (nn & 3)
    frags = []

    def pack(x):
        x = np.where(np.abs(x) < 1e-12, 0.0, x)
        b = bf16(x)
        return (b[:, 0::2] | (b[:, 1::2] << 16)).astype(np.uint32)
    ang = [2 * np.pi * ((16 * dh + 8 * h + j) * e1 % 32) / 32 for dh in range(2)]
    frags += [pack(np.cos(ang[0])), pack(np.cos(ang[1])), pack(np.sin(ang[0])), pack(np.sin(ang[1])),
              pack(-np.sin(ang[0])), pack(-np.sin(ang[1]))]
    d2 = 8 * (j >> 2) + 4 * h + (j & 3)
    tw = 2 * np.pi * (d2 * e1) / 512
    tc = np.cos(tw).astype(np.float32).view(np.uint32)
    ts = np.sin(tw).astype(np.float32).view(np.uint32)
    frags += [tc[:, :4], tc[:, 4:], ts[:, :4], ts[:, 4:]]
    ps = 2 * np.pi * (d2 * (nn & 15) % 16) / 16
    for row in range(2):
        m = ((nn >> 4) == row)
        frags += [pack(np.cos(ps) * m), pack(np.sin(ps) * m)]
    n, g = l & 15, l >> 4
    for jq in range(4):
        for ks in range(2):
            rho = 32 * ks + 16 * (j >> 2) + 4 * g + (j & 3)
            s1 = 16 * (rho >> 4) + 2 * (rho & 7) + ((rho >> 3) & 1)
            jj = 8 * jq + (n >> 1)
            th = 2 * np.pi * (s1 * jj % 64) / 64
            x = np.where((n & 1) == 0, np.cos(th), np.where(jj == 0, (-1.0) ** s1, -np.sin(th)))
            frags.append(pack(x))
    tab = np.concatenate([np.ascontiguousarray(f).reshape(-1) for f in frags])
    assert tab.size == 22 * 256
    return tab


p = Prog()
M16 = 'v_mfma_f32_16x16x32_bf16'
M32 = 'v_mfma_f32_32x32x16_bf16'


STAMPS = []


def stamp(name):
    if OPT['few'] and name in ('karg', 'start', 'setup', 'init', 'arr1', 'Vst', 'pub3', 'z1a', 'S3', 'Zst', 'arr4', 'win4') + (() if OPT['fine'] else ('Vld', 'K2', 'arr2', 'K5')):
        return
    STAMPS.append(name)
    if OPT['diag'] and OPT['diag'][:-1] == name:
        p(f's_memrealtime {s(sStamp, 2)}')
        p('s_waitcnt lgkmcnt(0)')
        p(f's_cmp_eq_u32 {s(sL)}, {OPT["diag"][-1]}')
        p(f's_cselect_b32 s101, {s(sStamp)}, s101')
    if PROF:
        p(f'{"s_memtime" if PROF == 2 else "s_memrealtime"} {s(sStamp, 2)}')
        p('s_waitcnt lgkmcnt(0)')
        p('s_mov_b32 s101, m0')
        p(f's_mov_b32 m0, {s(sPidx)}')
        p(f'v_writelane_b32 {v(vProf)}, {s(sStamp)}, m0')
        p('s_mov_b32 m0, s101')
        p(f's_add_u32 {s(sPidx)}, {s(sPidx)}, 1')


def fine(name):
    if OPT['fine'] == 1:
        stamp(name)


def srd(r, lo, hi, size):
    p(f's_mov_b32 {s(r)}, {s(lo)}')
    p(f's_and_b32 {s(r + 1)}, {s(hi)}, 0xffff')
    p(f's_mov_b32 {s(r + 2)}, {size:#x}')
    p(f's_mov_b32 {s(r + 3)}, 0x20000')


def if_wave0():
    p(f's_cmp_eq_u32 {s(sW)}, 0')
    p.begin('W0', 's_cbranch_scc0')


def if_layer(l):
    p(f's_cmp_eq_u32 {s(sL)}, {l}')
    p.begin(f'L{l}', 's_cbranch_scc0')


def spin_tail(top, done):
    p(f's_cbranch_vccz {done}')
    p(f's_sub_u32 {s(sTO)}, {s(sTO)}, 1')
    p(f's_cbranch_scc0 {top}')
    p(f's_mov_b32 {s(sTO)}, 0')
    p(f'{done}:')


def arrive(soff, nrep):
    p('s_barrier')
    if_wave0()
    p(f'v_mov_b32 {v(T)}, 1')
    p(f's_mov_b64 exec, {(1 << nrep) - 1:#x}')
    p(f'buffer_atomic_add {v(T)}, {v(vArr)}, {s(R_WS, 4)}, {s(soff)} offen sc1')
    p('s_mov_b64 exec, -1')
    p.end()


def gstore(lines, tag=None):
    if not OPT['loc'] or (tag and not OPT['locd']):
        for x in lines:
            p(x + ' sc1', tag=tag)
        return
    p(f's_cmp_eq_u32 {s(sLoc)}, 0')
    p.begin('LOC', 's_cbranch_scc1')
    for x in lines:
        p(x + SG, tag=tag)
    p.end()
    p.begin('!LOC', 's_cbranch_scc0')
    for x in lines:
        p(x + ' sc1', tag=tag)
    p.end()


def arrive_group(soff):
    p('s_barrier')
    if_wave0()
    p(f'v_mov_b32 {v(T)}, 1')
    p(f's_add_u32 {s(99)}, {s(soff)}, {s(sB4)}')
    p('s_mov_b64 exec, 1')
    gstore([f'buffer_store_dword {v(T)}, off, {s(R_WS, 4)}, {s(99)}'])
    p('s_mov_b64 exec, -1')
    p.end()


def poll(soff, vaddr, need, tag=None):
    if_wave0()
    top, done = p.label('poll'), p.label('pdone')
    p(f'{top}:')
    if vaddr is not None:
        p(f'buffer_load_dword {v(T)}, {v(vaddr)}, {s(R_WS, 4)}, {s(soff)} offen' + (PG if vaddr == vGrp else ' sc1'))
    else:
        p(f'buffer_load_dword {v(T)}, off, {s(R_WS, 4)}, {s(soff)} sc1')
    p('s_waitcnt vmcnt(0)')
    p(f'v_cmp_ne_u32 vcc, {need}, {v(T)}')
    spin_tail(top, done)
    p.end()
    if tag:
        p.wait_vm(tag)
    p('s_barrier')


def reduce_g(x, y):
    p(f'v_permlane16_swap_b32 {v(x)}, {v(y)}')
    p(f'v_add_f32 {v(x)}, {v(x)}, {v(y)}')
    p(f'v_mov_b32 {v(y)}, {v(x)}')
    p(f'v_permlane32_swap_b32 {v(x)}, {v(y)}')
    p(f'v_add_f32 {v(x)}, {v(x)}, {v(y)}')
    p(f'v_mov_b32 {v(y)}, {v(x)}')
    p(f'v_permlane16_swap_b32 {v(x)}, {v(y)}')


def finish_stats(x, n):
    y, m = x + 1, x + 2
    p(f'v_mul_f32 {v(m)}, {f2u(1.0 / n):#x}, {v(x)}')
    p(f'v_mul_f32 {v(y)}, {f2u(1.0 / n):#x}, {v(y)}')
    p(f'v_fma_f32 {v(y)}, -{v(m)}, {v(m)}, {v(y)}')
    p(f'v_max_f32 {v(y)}, 0, {v(y)}')
    p(f'v_add_f32 {v(y)}, {f2u(1e-5):#x}, {v(y)}')
    p(f'v_rsq_f32 {v(x)}, {v(y)}')
    p(f'v_mul_f32 {v(y)}, -{v(m)}, {v(x)}')


def norm_pack(src, n, st, tmp, dst):
    for i in range(0, n, 2):
        p(f'v_pk_fma_f32 {v(tmp + i, 2)}, {v(src + i, 2)}, {v(st, 2)}, {v(st, 2)} op_sel:[0,0,1] op_sel_hi:[1,0,1]')
    for i in range(0, n, 2):
        p(f'v_cvt_pk_bf16_f32 {v(dst + i // 2)}, {v(tmp + i)}, {v(tmp + i + 1)}')


def local_stats(src, n, out):
    sa, sq = out + 2, out + 4
    p(f'v_pk_add_f32 {v(sa, 2)}, {v(src, 2)}, {v(src + 2, 2)}')
    p(f'v_pk_mul_f32 {v(sq, 2)}, {v(src, 2)}, {v(src, 2)}')
    p(f'v_pk_fma_f32 {v(sq, 2)}, {v(src + 2, 2)}, {v(src + 2, 2)}, {v(sq, 2)}')
    for i in range(4, n, 2):
        p(f'v_pk_add_f32 {v(sa, 2)}, {v(sa, 2)}, {v(src + i, 2)}')
        p(f'v_pk_fma_f32 {v(sq, 2)}, {v(src + i, 2)}, {v(src + i, 2)}, {v(sq, 2)}')
    p(f'v_add_f32 {v(out)}, {v(sa)}, {v(sa + 1)}')
    p(f'v_add_f32 {v(out + 1)}, {v(sq)}, {v(sq + 1)}')


def unpack(src, n, dst):
    for i in range(n):
        p(f'v_lshlrev_b32 {v(dst + 2 * i)}, 16, {v(src + i)}')
        p(f'v_and_b32 {v(dst + 2 * i + 1)}, 0xffff0000, {v(src + i)}')


def publish_stats(area):
    p(f's_add_u32 {s(sT)}, {s(sSt)}, {s(sB128)}')
    if area:
        p(f's_add_u32 {s(sT)}, {s(sT)}, {area:#x}')
    p('s_mov_b64 exec, 0xffff')
    gstore([f'buffer_store_dwordx2 {v(T, 2)}, {v(vStl)}, {s(R_WS, 4)}, {s(sT)} offen'])
    p('s_mov_b64 exec, -1')


def gather_loads(area):
    return [(f's_add_u32 {s(99)}, {s(sSt)}, {area:#x}', None),
            (f'buffer_load_dwordx2 {v(T + 4, 2)}, {v(vStl)}, {s(R_WS, 4)}, {s(99)} offen{PG}', None),
            (f'buffer_load_dwordx2 {v(T + 6, 2)}, {v(vStl)}, {s(R_WS, 4)}, {s(99)} offen offset:128{PG}', None)]


def retry_until(loads, test):
    test()
    p.begin('RETRY', 's_cbranch_vccz')
    top, done = p.label('rt'), p.label('rdone')
    p(f'{top}:')
    emit([loads])
    p('s_waitcnt vmcnt(0)')
    test()
    spin_tail(top, done)
    p.end()


def gather_finish(area):
    def test():
        p(f'v_add_f32 {v(T)}, {v(T + 4)}, {v(T + 6)}')
        p(f'v_add_f32 {v(T + 1)}, {v(T + 5)}, {v(T + 7)}')
        p(f'v_cmp_u_f32 vcc, {v(T)}, {v(T + 1)}')
    retry_until(gather_loads(area), test)
    reduce_g(T, T + 1)


LOC_Z2 = lambda i: 1024 * i
LOC_Z1 = lambda i: 1024 * (i - 48) if i >= 48 else CT + 1024 * i
LOC_WO = lambda i: 1024 * (i - 48) if i >= 48 else 65536 + 1024 * i


def w_dma_ops(sbase, extra, loc, name):
    ops = []
    for j in range(7):
        for i in range(4):
            o = []
            if i == 0:
                o.append((f's_add_u32 m0, {s(sDm)}, {loc(16 * j):#x}', None))
                o.append((f's_add_u32 {s(sDo)}, {s(sbase)}, {extra + 16384 * j:#x}', None))
            if OPT['nobg'] & 1:
                o.append(('s_nop 0', None))
            else:
                o.append((f'buffer_load_dwordx4 {v(vL16)}, {s(R_WS, 4)}, {s(sDo)} offen offset:{i * 1024} lds', f'{name}{j}'))
            ops.append(o)
    return ops


def emit(groups):
    for g in groups:
        for text, tag in g:
            p(text, tag=tag)


def wsp_dma_ops(batch):
    q, ih = batch >> 1, batch & 1
    ops = []
    for il in range(4):
        for rh in range(2):
            if batch < 2:
                imm, so = 128 * il, 80 + batch
                o = [(f's_add_u32 m0, {s(78 + batch)}, {1024 + 2048 * il + 1024 * rh - imm}', None)]
            else:
                imm, so = 512 * ih + 128 * il, sDo
                o = [(f's_add_u32 m0, {s(sWsp)}, {1024 + 8192 * (batch % 3) + 2048 * il + 1024 * rh - imm}', None)]
                if not ops:
                    o += [(f's_add_u32 {s(sDo)}, {s(sW)}, {q}', None), (f's_and_b32 {s(sDo)}, {s(sDo)}, 3', None),
                          (f's_lshl_b32 {s(sDo)}, {s(sDo)}, 21', None)]
            o.append((f'buffer_load_dwordx4 {v(vWspA + rh)}, {s(R_WSP, 4)}, {s(so)} offen offset:{imm} lds', f'wsp{max(batch, 1)}'))
            ops.append(o)
    return ops


def table_addr(dst, soff):
    p(f'v_add_u32 {v(dst)}, {s(soff)}, {v(vL16)}')
    p(f'v_mov_b32 {v(dst + 1)}, {s(93)}')
    p(f'v_add_co_u32 {v(dst)}, vcc, {s(92)}, {v(dst)}')
    p(f's_add_u32 m0, {s(soff)}, {CT}')
    p(f'v_addc_co_u32 {v(dst + 1)}, vcc, 0, {v(dst + 1)}, vcc')


def m1_dma(dst):
    p(f's_lshl_b32 {s(99)}, {s(sW)}, 11')
    p(f's_add_u32 {s(99)}, {s(99)}, {CT_M1}')
    table_addr(dst, 99)
    for k in range(2):
        p(f'global_load_lds_dwordx4 {v(dst, 2)}, off offset:{1024 * k}', tag='m1')


def ct_dma(dst):
    p(f's_mul_i32 {s(99)}, {s(sW)}, 3584')
    table_addr(dst, 99)
    for off in (0, 1024, 2048):
        p(f'global_load_lds_dwordx4 {v(dst, 2)}, off offset:{off}', tag='ct')
    p('s_mov_b32 exec_hi, 0')
    p(f'global_load_lds_dwordx4 {v(dst, 2)}, off offset:3072', tag='ct')
    p('s_mov_b64 exec, -1')


def wsp_dma(batch):
    p.bg = wsp_dma_ops(batch)
    p.bg_emit()


def wsp_read(batch, reg):
    p.wait_vm(f'wsp{max(batch, 1)}')
    for il in range(4):
        for o in range(2):
            p(f'ds_read_b128 {v(reg + 4 * (2 * il + o), 4)}, {v(vWspR + o)} offset:{8192 * (batch % 3) + 2048 * il}', tag=f'wr{batch}')


def wsp_park(batch):
    q, ih = batch >> 1, batch & 1
    p.wait_vm(f'wsp{max(batch, 1)}')
    for il in range(4):
        for o in range(2):
            p(f'ds_read_b128 {a(64 * q + 32 * o + 4 * (4 * ih + il), 4)}, {v(vWspR + o)} offset:{8192 * (batch % 3) + 2048 * il}', tag=f'wr{batch}')


def wsp_fix(units, reg):
    if not units:
        return
    if_layer(0)
    for u in units:
        base = 32 * int(u)
        for k in range(32):
            p(f'v_accvgpr_read_b32 {v(reg + k)}, {a(base + k)}')
        k = 0
        for ip in range(4):
            for al in range(8):
                t = reg + 32 + (k & 3)
                k += 1
                lo, hi = reg + 8 * ip + (al >> 1), reg + 8 * ip + 4 + (al >> 1)
                p(f'v_perm_b32 {v(t)}, {v(hi)}, {v(lo)}, {s(sSelHi if al & 1 else sSelLo)}')
                p(f'v_accvgpr_write_b32 {a(base + 4 * al + ip)}, {v(t)}')
    p.end()


def wsp_perm(batch, reg):
    q, ih = batch >> 1, batch & 1
    k = 0
    for ipl in range(2):
        for o in range(2):
            for al in range(8):
                t = T + (k & 7)
                k += 1
                lo, hi = reg + 4 * (4 * ipl + o) + (al >> 1), reg + 4 * (4 * ipl + 2 + o) + (al >> 1)
                p(f'v_perm_b32 {v(t)}, {v(hi)}, {v(lo)}, {s(sSelHi if al & 1 else sSelLo)}')
                p(f'v_accvgpr_write_b32 {a((q * 16 + 8 * o + al) * 4 + 2 * ih + ipl)}, {v(t)}')


def wring_read(idx, ring, depth, loc):
    base, off = (vL16, vL16hi, vL16h2)[loc(idx) >> 16], loc(idx) & 0xffff
    p(f'ds_read_b128 {v(ring + 4 * (idx % depth), 4)}, {v(base)} offset:{off}', tag=f'w{idx}')


def gemm_r(acc, nt, ks0, ks1, act, ring, depth, loc, first_c=None, fill=None, preload=True, last=None):
    fill = dict(fill or {})
    if OPT['nobg'] & 2 and loc is LOC_Z1:
        emit(fill.values())
        return
    lo, hi = nt * ks0, nt * ks1
    if preload:
        for idx in range(lo, min(lo + depth, last or hi)):
            wring_read(idx, ring, depth, loc)
    for idx in range(lo, hi):
        ks, t = divmod(idx, nt)
        if (idx - lo) % 2 == 0:
            p.wait_lgkm(f'w{min(idx + 1, hi - 1)}')
        c = v(acc + 4 * t, 4) if (ks or first_c) else '0'
        p(f'{M16} {v(acc + 4 * t, 4)}, {v(ring + 4 * (idx % depth), 4)}, {v(act(ks) if callable(act) else act + 4 * ks, 4)}, {c}')
        if idx + depth < (last or hi):
            wring_read(idx + depth, ring, depth, loc)
        f = fill.pop(idx, None)
        if callable(f):
            f()
        elif f:
            emit([f])
    assert not fill


def spread(groups, first, step):
    return {first + step * k: g for k, g in enumerate(groups)}


def gelu(x, n, tmp):
    for i in range(0, n, 4):
        t = tmp + (i & 4)
        for k in (0, 2):
            p(f'v_pk_mul_f32 {v(t + k, 2)}, {v(x + i + k, 2)}, {v(x + i + k, 2)}')
        for k in (0, 2):
            p(f'v_pk_fma_f32 {v(t + k, 2)}, {v(t + k, 2)}, {v(vGK, 2)}, {v(vGK, 2)} op_sel:[0,0,1] op_sel_hi:[1,0,1]')
        for k in (0, 2):
            p(f'v_pk_mul_f32 {v(t + k, 2)}, {v(t + k, 2)}, {v(x + i + k, 2)}')
        for k in range(4):
            p(f'v_exp_f32 {v(t + k)}, {v(t + k)}')
        for k in (0, 2):
            p(f'v_pk_add_f32 {v(t + k, 2)}, {v(t + k, 2)}, 1.0 op_sel_hi:[1,0]')
        for k in range(4):
            p(f'v_rcp_f32 {v(t + k)}, {v(t + k)}')
        for k in (0, 2):
            p(f'v_pk_mul_f32 {v(x + i + k, 2)}, {v(t + k, 2)}, {v(x + i + k, 2)}')


vWspA, vWspR = 244, 236
vHw2, vXw, vGrp = 250, 246, 254
vL16hi, vL16h2 = 252, 255
p.section('pro')
p(f'{NAME}:')
p(f's_cmp_ge_u32 s2, 256')
p('s_cbranch_scc1 L_exit')
p(f's_load_dwordx2 {s(72, 2)}, s[0:1], 0')
p(f's_load_dwordx8 {s(76, 8)}, s[0:1], 48')
p(f's_load_dwordx4 {s(84, 4)}, s[0:1], 80')
p(f's_load_dwordx2 {s(88, 2)}, s[0:1], 96')
if OPT['diag']:
    p(f's_memrealtime {s(sStamp, 2)}')
    p('s_waitcnt lgkmcnt(0)')
    p(f's_mov_b32 {s(sPidx)}, {s(sStamp)}')
    p(f's_mov_b32 s101, {s(sStamp)}')
if PROF:
    p(f'{"s_memtime" if PROF == 2 else "s_memrealtime"} {s(sStamp, 2)}')
p(f's_getpc_b64 {s(92, 2)}')
p('L_pc:')
lane, n_, g_, t0, t1, t2, t3, tid = 100, 101, 102, 103, 104, 105, 106, 107
p(f'v_mov_b32 {v(tid)}, v0')
p(f's_lshr_b32 {s(94)}, s2, 3')
p(f's_lshl_b32 {s(94)}, {s(94)}, 4')
p(f'v_lshrrev_b32 {v(T)}, 4, v0')
p(f'v_add_u32 {v(T)}, {s(94)}, {v(T)}')
p(f'v_lshlrev_b32 {v(T)}, 7, {v(T)}')
p(f'v_min_u32 {v(T)}, L_end-L_pc-4, {v(T)}')
p(f'v_mov_b32 {v(T + 3)}, {s(93)}')
p(f'v_add_co_u32 {v(T + 2)}, vcc, {s(92)}, {v(T)}')
p(f'v_addc_co_u32 {v(T + 3)}, vcc, 0, {v(T + 3)}, vcc')
p(f'global_load_dword {v(253)}, {v(T + 2, 2)}, off')
p(f'v_lshrrev_b32 {v(t0)}, 6, v0')
p(f'v_and_b32 {v(lane)}, 63, v0')
p(f'v_readfirstlane_b32 {s(sW)}, {v(t0)}')
p(f'v_and_b32 {v(n_)}, 15, {v(lane)}')
p(f'v_lshrrev_b32 {v(g_)}, 4, {v(lane)}')
p(f'v_lshlrev_b32 {v(vL16)}, 4, {v(lane)}')
p(f's_lshr_b32 {s(94)}, s2, 3')
p(f's_and_b32 {s(sB)}, {s(94)}, 7')
p(f's_and_b32 {s(95)}, s2, 7')
p(f's_lshl_b32 {s(95)}, {s(95)}, 1')
p(f's_lshr_b32 {s(96)}, {s(94)}, 4')
p(f's_add_u32 {s(95)}, {s(95)}, {s(96)}')
p(f's_sub_u32 {s(96)}, 32, {s(95)}')
p(f's_cmp_eq_u32 {s(95)}, 0')
p(f's_cselect_b32 {s(96)}, 16, {s(96)}')
p(f's_bitcmp1_b32 {s(94)}, 3')
p(f's_cselect_b32 {s(sC)}, {s(96)}, {s(95)}')
p(f's_mov_b32 {s(sL)}, 0')
p(f's_mov_b32 {s(sTO)}, 40000')
p(f's_lshl_b32 {s(sB128)}, {s(sB)}, 7')
p(f's_lshl_b32 {s(sB4)}, {s(sB)}, 2')
p(f's_getreg_b32 {s(sLoc)}, hwreg(HW_REG_XCC_ID)')
p(f's_mov_b32 {s(sOnes)}, 0x3f803f80')
p(f's_mov_b32 {s(sSelLo)}, 0x05040100')
p(f's_mov_b32 {s(sSelHi)}, 0x07060302')
p(f's_lshl_b32 {s(94)}, {s(sW)}, 9')
p(f's_add_u32 {s(94)}, {s(94)}, {s(sC)}')
p(f'v_and_b32 {v(t0)}, 28, {v(lane)}')
p(f'v_lshlrev_b32 {v(t0)}, 4, {v(t0)}')
p(f'v_and_b32 {v(t1)}, 32, {v(lane)}')
p(f'v_add3_u32 {v(t0)}, {v(t0)}, {v(t1)}, {s(94)}')
p(f'v_lshlrev_b32 {v(t2)}, 10, {v(t0)}')
p(f'v_and_b32 {v(t1)}, 3, {v(lane)}')
p(f'v_lshl_add_u32 {v(t0)}, {v(t1)}, 5, {v(t2)}')
p(f'v_lshl_add_u32 {v(t2)}, {v(t1)}, 4, {v(t2)}')
p(f'v_and_b32 {v(t3)}, 7, {v(n_)}')
p(f'v_lshlrev_b32 {v(t3)}, 6, {v(t3)}')
p(f'v_and_b32 {v(t1)}, 8, {v(n_)}')
p(f'v_lshlrev_b32 {v(t1)}, 2, {v(t1)}')
p(f'v_add3_u32 {v(t3)}, {v(t3)}, {v(t1)}, {s(94)}')
p(f'v_lshlrev_b32 {v(t3)}, 1, {v(t3)}')
p(f's_lshl_b32 {s(96)}, {s(sC)}, 2')
p(f's_add_u32 {s(96)}, {s(96)}, {s(sW)}')
p(f's_lshl_b32 {s(sSt)}, {s(96)}, 10')
p(f's_add_u32 {s(sSt)}, {s(sSt)}, {STATS:#x}')
p(f's_lshl_b32 {s(96)}, {s(sC)}, 10')
p(f's_add_u32 {s(sS2)}, {s(96)}, {FLAGS + 0x10000:#x}')
p(f's_lshl_b32 {s(96)}, {s(sW)}, 7')
p(f's_add_u32 {s(96)}, {s(96)}, 256')
p(f's_add_u32 {s(sS5)}, {s(96)}, {s(sS2)}')
p(f'v_lshlrev_b32 {v(vStl)}, 3, {v(n_)}')
p(f'v_lshl_add_u32 {v(vStl)}, {v(g_)}, 8, {v(vStl)}')
EI = 64
p(f'v_mov_b32 {v(EI)}, -1')
p(f'v_mov_b32 {v(EI + 1)}, -1')
p(f'v_mov_b32 {v(EI + 2)}, {s(sLoc)}')
p(f'v_mov_b32 {v(EI + 3)}, 0')
p(f'v_and_b32 {v(EI + 4)}, 16, {v(vL16)}')
p(f'v_lshlrev_b32 {v(EI + 4)}, 13, {v(EI + 4)}')
p(f'v_and_b32 {v(EI + 5)}, 0x60, {v(vL16)}')
p(f'v_or_b32 {v(EI + 4)}, {v(EI + 4)}, {v(EI + 5)}')
p('s_waitcnt lgkmcnt(0)')
if PROF:
    p(f'v_mov_b32 {v(vProf)}, 0')
    p(f'v_writelane_b32 {v(vProf)}, {s(sStamp)}, 0')
    p(f's_mov_b32 {s(sPidx)}, 1')
    STAMPS.append('entry')
stamp('karg')
srd(R_X, 72, 73, 2097152)
srd(R_WS, 88, 89, LBASE)
XR = 120


def x_loads(i0, i1):
    for i in range(i0, i1):
        if i == 0:
            p(f'buffer_load_dwordx4 {v(XR, 4)}, {v(t0)}, {s(R_X, 4)}, {s(sB128)} offen')
            p(f'buffer_load_dwordx4 {v(XR + 4, 4)}, {v(t0)}, {s(R_X, 4)}, {s(sB128)} offen offset:16')
            continue
        p(f's_add_u32 {s(99)}, {s(sB128)}, {128 * i}')
        p(f's_and_b32 {s(99)}, {s(99)}, 0x3ff')
        p(f'buffer_load_dwordx4 {v(XR + 8 * i, 4)}, {v(t2)}, {s(R_X, 4)}, {s(99)} offen')
        p(f'buffer_load_dwordx4 {v(XR + 8 * i + 4, 4)}, {v(t2)}, {s(R_X, 4)}, {s(99)} offen offset:64')


x_loads(0, OPT['x1'])
p(f's_lshl_b32 {s(96)}, s2, 2')
p(f's_add_u32 {s(sG0)}, {s(96)}, {s(sW)}')
p(f's_cmp_eq_u32 {s(sG0)}, 3')
p.begin('G0', 's_cbranch_scc0')
p(f'v_lshlrev_b32 {v(T)}, 4, {v(vL16)}')
for k in range(2):
    p(f's_mov_b32 {s(94)}, {FLAGS + 0x4000 * k:#x}')
    p(f'buffer_store_dword {v(EI + 3)}, {v(T)}, {s(R_WS, 4)}, {s(94)} offen sc1', tag='z')
p.end()
p('s_mov_b64 exec, 0xffff')
for k in range(3):
    p(f's_add_u32 {s(96)}, {s(sSt)}, {s(sB128)}')
    p(f's_add_u32 {s(96)}, {s(96)}, {k * 0x20000:#x}')
    p(f'buffer_store_dwordx2 {v(EI, 2)}, {v(vStl)}, {s(R_WS, 4)}, {s(96)} offen sc1', tag='pub')
p('s_mov_b64 exec, 0x3f')
p(f's_add_u32 {s(97)}, {s(sS5)}, {s(sB4)}')
p(f'buffer_store_dword {v(EI + 3)}, {v(EI + 4)}, {s(R_WS, 4)}, {s(97)} offen sc1', tag='pub')
if_wave0()
p('s_mov_b64 exec, 1')
p(f's_add_u32 {s(96)}, {s(sS2)}, {s(sB4)}')
p(f'buffer_store_dword {v(EI + 2)}, off, {s(R_WS, 4)}, {s(96)} offset:128 sc1', tag='pub')
p('s_mov_b64 exec, 3')
p(f'buffer_store_dword {v(EI + 3)}, {v(EI + 4)}, {s(R_WS, 4)}, {s(96)} offen sc1', tag='pub')
p(f's_lshl_b32 {s(96)}, s2, 8')
p(f's_add_u32 {s(96)}, {s(96)}, {FLAGS:#x}')
p('s_cmp_lt_u32 s2, 128')
p('s_cselect_b32 exec_lo, 2, 3')
p(f'buffer_store_dword {v(EI + 3)}, {v(EI + 4)}, {s(R_WS, 4)}, {s(96)} offen sc1', tag='pub')
p.end()
p('s_mov_b64 exec, -1')
srd(R_WIN, 76, 77, 512 * 3584)
srd(R_WSP, 78, 79, 2048 * 4096)
srd(R_BSP, 80, 81, 4096)
srd(R_WOUT, 82, 83, 896 * 1024)
srd(R_OUT, 84, 85, 2097152)
srd(R_DBG, 86, 87, 256)
p(f's_add_u32 {s(88)}, {s(88)}, {LBASE:#x}')
p(f's_addc_u32 {s(89)}, {s(89)}, 0')
srd(R_WL, 88, 89, 2 * LSTRIDE)
if OPT['tlb']:
    p(f'v_lshlrev_b32 {v(T)}, 21, {v(n_)}')
    p(f'buffer_load_dword {v(240)}, {v(T)}, {s(R_WL, 4)}, 0 offen sc1')
    p(f'buffer_load_dword {v(239)}, {v(T)}, {s(R_WS, 4)}, 0 offen sc1')
    p(f'buffer_load_dword {v(238)}, off, {s(R_OUT, 4)}, 0 sc1')
stamp('start')
vPi, vPo, vPri, vPro, PK = 112, 114, 242, 243, 224
PST = SCR + 12288
p(f's_add_u32 {s(92)}, {s(92)}, L_table-L_pc')
p(f's_addc_u32 {s(93)}, {s(93)}, 0')
for k in range(2):
    p(f'v_add_u32 {v(T)}, {256 * k}, {v(tid)}')
    p(f'v_mul_u32_u24 {v(T + 1)}, 4682, {v(T)}')
    p(f'v_lshrrev_b32 {v(T + 1)}, 16, {v(T + 1)}')
    p(f'v_mul_u32_u24 {v(T + 2)}, 14, {v(T + 1)}')
    p(f'v_sub_u32 {v(T)}, {v(T)}, {v(T + 2)}')
    p(f'v_and_b32 {v(T + 2)}, 0x38, {v(T + 1)}')
    p(f'v_add_u32 {v(T + 1)}, {v(T + 1)}, {v(T + 2)}')
    p(f'v_mul_u32_u24 {v(T + 1)}, 3584, {v(T + 1)}')
    p(f'v_lshl_add_u32 {v(vPi + k)}, {v(T)}, 4, {v(T + 1)}')
p(f's_and_b32 {s(94)}, {s(sC)}, 7')
p(f's_lshl_b32 {s(94)}, {s(94)}, 6')
p(f's_and_b32 {s(95)}, {s(sC)}, 8')
p(f's_add_u32 {s(94)}, {s(94)}, {s(95)}')
p(f's_mul_i32 {s(94)}, {s(94)}, 3584')
p(f's_lshr_b32 {s(95)}, {s(sC)}, 4')
p(f's_mul_i32 {s(95)}, {s(95)}, 1792')
p(f's_add_u32 {s(94)}, {s(94)}, {s(95)}')
p(f's_mul_i32 {s(95)}, {s(sB)}, 224')
p(f's_add_u32 {s(76)}, {s(94)}, {s(95)}')
p(f'v_lshrrev_b32 {v(T)}, 3, {v(lane)}')
p(f'v_and_b32 {v(T + 1)}, 0x70, {v(vL16)}')
p(f'v_lshl_add_u32 {v(vPo)}, {v(T)}, 10, {v(T + 1)}')
p(f's_lshr_b32 {s(94)}, {s(sC)}, 1')
p(f's_mul_i32 {s(94)}, {s(94)}, 112')
p(f's_and_b32 {s(95)}, {s(sC)}, 1')
p(f's_lshl_b32 {s(95)}, {s(95)}, 5')
p(f's_add_u32 {s(94)}, {s(94)}, {s(95)}')
p(f's_sub_u32 {s(95)}, {s(sC)}, 16')
p(f's_mul_i32 {s(95)}, {s(95)}, 112')
p(f's_add_u32 {s(95)}, {s(95)}, 64')
p(f's_cmp_lt_u32 {s(sC)}, 16')
p(f's_cselect_b32 {s(94)}, {s(94)}, {s(95)}')
p(f's_sub_u32 {s(95)}, {s(sC)}, 24')
p(f's_mul_i32 {s(95)}, {s(95)}, 224')
p(f's_add_u32 {s(95)}, {s(95)}, 96')
p(f's_cmp_lt_u32 {s(sC)}, 24')
p(f's_cselect_b32 {s(94)}, {s(94)}, {s(95)}')
p(f's_cselect_b32 {s(95)}, 16, 112')
p(f's_lshr_b32 {s(96)}, {s(sW)}, 1')
p(f's_mul_i32 {s(95)}, {s(95)}, {s(96)}')
p(f's_add_u32 {s(94)}, {s(94)}, {s(95)}')
p(f's_and_b32 {s(95)}, {s(sW)}, 1')
p(f's_lshl_b32 {s(95)}, {s(95)}, 3')
p(f's_add_u32 {s(94)}, {s(94)}, {s(95)}')
p(f's_lshl_b32 {s(94)}, {s(94)}, 10')
p(f's_add_u32 {s(77)}, {s(94)}, {s(sB128)}')
p(f'v_lshrrev_b32 {v(T)}, 2, {v(n_)}')
p(f'v_lshl_add_u32 {v(T)}, {v(g_)}, 3, {v(T)}')
p(f'v_mul_u32_u24 {v(T)}, 224, {v(T)}')
p(f'v_and_b32 {v(T + 1)}, 3, {v(lane)}')
p(f'v_lshl_add_u32 {v(T)}, {v(T + 1)}, 3, {v(T)}')
p(f's_lshl_b32 {s(94)}, {s(sW)}, 5')
p(f's_add_u32 {s(94)}, {s(94)}, {PST}')
p(f'v_add_u32 {v(vPri)}, {s(94)}, {v(T)}')
p(f's_lshl_b32 {s(94)}, {s(sW)}, 3')
p(f's_add_u32 {s(94)}, {s(94)}, {PST + 8192}')
p(f'v_lshl_add_u32 {v(vPro)}, {v(lane)}, 5, {s(94)}')
p(f'v_lshrrev_b32 {v(T)}, 3, {v(lane)}')
p(f'v_lshlrev_b32 {v(T)}, 18, {v(T)}')
p(f'v_and_b32 {v(T + 1)}, 7, {v(lane)}')
p(f'v_xor_b32 {v(T + 1)}, {v(T + 1)}, {v(g_)}')
p(f'v_lshl_add_u32 {v(T)}, {v(T + 1)}, 4, {v(T)}')
p(f's_lshl_b32 {s(94)}, {s(sC)}, 12')
p(f's_add_u32 {s(100)}, {s(sW)}, {s(sB)}')
p(f's_and_b32 {s(100)}, {s(100)}, 3')
p(f's_lshl_b32 {s(95)}, {s(100)}, 10')
p(f's_add_u32 {s(94)}, {s(94)}, {s(95)}')
p(f'v_add_u32 {v(vWspA)}, {s(94)}, {v(T)}')
p(f'v_xor_b32 {v(T)}, 64, {v(vWspA)}')
p(f'v_add_u32 {v(vWspA + 1)}, 0x20000, {v(T)}')
p(f's_mul_i32 {s(sWsp)}, {s(sW)}, 24576')
p(f'v_lshrrev_b32 {v(T)}, 1, {v(n_)}')
p(f'v_xor_b32 {v(T)}, {v(T)}, {v(g_)}')
p(f'v_lshlrev_b32 {v(T)}, 4, {v(T)}')
p(f'v_lshl_add_u32 {v(T)}, {v(n_)}, 7, {v(T)}')
p(f's_add_u32 {s(94)}, {s(sWsp)}, 1024')
p(f'v_add_u32 {v(vWspR)}, {s(94)}, {v(T)}')
p(f'v_xor_b32 {v(vWspR + 1)}, 64, {v(vWspR)}')
p(f's_lshr_b32 {s(94)}, {s(sB)}, 2')
p(f's_lshl_b32 {s(95)}, {s(sW)}, 21')
for k in range(2):
    p(f's_lshl_b32 {s(96)}, {s(94)}, 13')
    p(f's_add_u32 {s(78 + k)}, {s(96)}, {s(sWsp)}')
    p(f's_lshl_b32 {s(96)}, {s(94)}, 9')
    p(f's_add_u32 {s(80 + k)}, {s(96)}, {s(95)}')
    p(f's_xor_b32 {s(94)}, {s(94)}, 1')
p(f's_lshl_b32 {s(82)}, {s(sW)}, 10')
prep = [[(f's_add_u32 m0, {s(82)}, {PST}', None), (f'buffer_load_dwordx4 {v(vPi)}, {s(R_WIN, 4)}, {s(76)} offen lds', 'prep')],
        [(f's_add_u32 m0, {s(82)}, {PST + 4096}', None), (f'buffer_load_dwordx4 {v(vPi + 1)}, {s(R_WIN, 4)}, {s(76)} offen lds', 'prep')],
        [(f's_add_u32 m0, {s(82)}, {PST + 8192}', None), (f'buffer_load_dwordx4 {v(vPo)}, {s(R_WOUT, 4)}, {s(77)} offen lds', 'prep')],
        [(f'buffer_load_ushort {v(vBsp)}, {v(t3)}, {s(R_BSP, 4)}, 0 offen', None)]]
wsp_first = wsp_dma_ops(0)
if OPT['early'] & 1:
    emit(prep)
    prep = []
emit(wsp_first[:OPT['early'] >> 1])
wsp_first = wsp_first[OPT['early'] >> 1:]
p(f's_mul_i32 {s(94)}, {s(sB)}, 229376')
p(f's_mul_i32 {s(95)}, {s(sC)}, 7168')
p(f's_add_u32 {s(94)}, {s(94)}, {s(95)}')
p(f's_lshl_b32 {s(95)}, {s(sW)}, 10')
p(f's_add_u32 {s(94)}, {s(94)}, {s(95)}')
p(f's_mov_b32 {s(83)}, {s(94)}')
p(f's_add_u32 {s(94)}, {s(94)}, 4096')
p(f's_cmp_lt_u32 {s(sW)}, 3')
p(f's_cselect_b32 {s(94)}, {s(94)}, {LBASE:#x}')
p(f's_mov_b32 {s(84)}, {s(94)}')
p(f's_mul_i32 {s(94)}, {s(sB)}, 114688')
p(f's_lshl_b32 {s(96)}, {s(sC)}, 12')
p(f's_add_u32 {s(94)}, {s(94)}, {s(96)}')
p(f's_add_u32 {s(94)}, {s(94)}, {s(95)}')
p(f's_add_u32 {s(94)}, {s(94)}, {WO:#x}')
p(f's_cmp_lt_u32 {s(sC)}, 28')
p(f's_cselect_b32 {s(94)}, {s(94)}, {LBASE:#x}')
p(f's_mov_b32 {s(85)}, {s(94)}')
p(f's_lshr_b32 {s(94)}, {s(sB)}, 2')
p(f's_and_b32 {s(95)}, {s(sB)}, 3')
p(f's_lshl_b32 {s(sVst)}, {s(sC)}, 11')
p(f's_lshl_b32 {s(96)}, {s(sB)}, 8')
p(f's_add_u32 {s(sVst)}, {s(sVst)}, {s(96)}')
p(f's_sub_u32 {s(96)}, 32, {s(sC)}')
p(f's_and_b32 {s(96)}, {s(96)}, 31')
p(f's_cmp_eq_u32 {s(94)}, 0')
p(f's_cselect_b32 {s(96)}, {s(sC)}, {s(96)}')
p(f's_lshl_b32 {s(sVld)}, {s(96)}, 16')
p(f's_lshl_b32 {s(sH)}, {s(sC)}, 16')
p(f's_lshl_b32 {s(96)}, {s(95)}, 14')
p(f's_lshl_b32 {s(97)}, {s(94)}, 7')
p(f's_add_u32 {s(96)}, {s(96)}, {s(97)}')
p(f's_add_u32 {s(sK2)}, {s(sH)}, {s(96)}')
p(f's_lshl_b32 {s(96)}, {s(sW)}, 14')
p(f's_add_u32 {s(sH)}, {s(sH)}, {s(96)}')
p(f's_mov_b32 {s(sXb)}, 0')
p(f's_mov_b32 {s(sXo)}, 0x10000')
p(f's_lshl_b32 {s(96)}, {s(sB)}, 2')
p(f's_add_u32 {s(96)}, {s(96)}, {s(sW)}')
p(f's_mul_i32 {s(sZld)}, {s(96)}, 114688')
p(f's_add_u32 {s(sZld)}, {s(sZld)}, {Z_:#x}')
p(f's_and_b32 {s(96)}, {s(sC)}, 7')
p(f's_lshl_b32 {s(96)}, {s(96)}, 10')
p(f's_lshr_b32 {s(97)}, {s(sC)}, 3')
p(f's_lshl_b32 {s(97)}, {s(97)}, 8')
p(f's_add_u32 {s(96)}, {s(96)}, {s(97)}')
p(f's_add_u32 {s(sZst)}, {s(sZld)}, {s(96)}')
p(f's_lshl_b32 {s(96)}, {s(sB)}, 2')
p(f's_add_u32 {s(96)}, {s(96)}, {s(100)}')
p(f's_mul_i32 {s(sZld)}, {s(96)}, 114688')
p(f's_add_u32 {s(sZld)}, {s(sZld)}, {Z_:#x}')
p(f's_lshl_b32 {s(96)}, {s(sC)}, 2')
p(f's_add_u32 {s(96)}, {s(96)}, {s(sW)}')
p(f's_mul_i32 {s(sUld)}, {s(96)}, 28672')
p(f's_add_u32 {s(sUld)}, {s(sUld)}, {U_:#x}')
p(f's_mul_i32 {s(97)}, {s(sB)}, 3584')
p(f's_add_u32 {s(sUst)}, {s(sUld)}, {s(97)}')
p(f's_lshl_b32 {s(sDm)}, {s(sW)}, 12')
p(f's_mul_i32 {s(sWI)}, {s(sB)}, 229376')
p(f's_add_u32 {s(sWI)}, {s(sWI)}, {s(sDm)}')
p(f's_mul_i32 {s(sWO)}, {s(sB)}, 114688')
p(f's_add_u32 {s(sWO)}, {s(sWO)}, {s(sDm)}')
p(f's_add_u32 {s(sWO)}, {s(sWO)}, {WO:#x}')
p(f's_and_b32 {s(96)}, s2, 15')
p(f's_lshl_b32 {s(96)}, {s(96)}, 8')
p(f's_add_u32 {s(sArr)}, {s(96)}, {FLAGS:#x}')
p(f's_and_b32 {s(96)}, s2, 7')
p(f's_lshl_b32 {s(96)}, {s(96)}, 12')
p(f's_add_u32 {s(sRep)}, {s(96)}, {FLAGS:#x}')
p(f's_lshl_b32 {s(97)}, {s(sB)}, 9')
p(f's_add_u32 {s(97)}, {s(97)}, {FLAGS + 0x8000:#x}')
p(f's_add_u32 {s(sP4)}, {s(96)}, {s(97)}')
p(f's_and_b32 {s(96)}, {s(sC)}, 1')
p(f's_lshl_b32 {s(96)}, {s(96)}, 8')
p(f's_add_u32 {s(sS4)}, {s(96)}, {s(97)}')
p(f'v_lshlrev_b32 {v(vL8)}, 3, {v(lane)}')
p(f'v_add_u32 {v(vL16hi)}, 0x10000, {v(vL16)}')
p(f'v_add_u32 {v(vL16h2)}, 0x20000, {v(vL16)}')
p(f'v_lshlrev_b32 {v(vPoll)}, 8, {v(n_)}')
p(f'v_and_b32 {v(vArr)}, 7, {v(lane)}')
p(f'v_lshlrev_b32 {v(vGrp)}, 2, {v(vArr)}')
p(f'v_lshlrev_b32 {v(vArr)}, 12, {v(vArr)}')
p(f'v_mov_b32 {v(vGK)}, {f2u(-2.302208198144325 * 0.044715):#x}')
p(f'v_mov_b32 {v(vGK + 1)}, {f2u(-2.302208198144325):#x}')
p(f'v_lshrrev_b32 {v(T)}, 3, {v(lane)}')
p(f'v_and_b32 {v(T + 4)}, 7, {v(lane)}')
p(f'v_lshlrev_b32 {v(T + 4)}, 4, {v(T + 4)}')
p(f'v_lshl_add_u32 {v(T + 2)}, {v(T)}, 8, {v(T + 4)}')
p(f's_lshl_b32 {s(96)}, {s(sW)}, 12')
p(f'v_add_u32 {v(vK2)}, {s(96)}, {v(T + 2)}')
p(f'v_and_b32 {v(T)}, 1, {v(T)}')
p(f'v_lshl_add_u32 {v(T)}, {v(T)}, 4, {v(g_)}')
p(f'v_mul_u32_u24 {v(T)}, 144, {v(T)}')
p(f's_lshr_b32 {s(96)}, {s(sW)}, 1')
p(f's_mul_i32 {s(96)}, {s(96)}, 4608')
p(f's_and_b32 {s(97)}, {s(sW)}, 1')
p(f's_mul_i32 {s(97)}, {s(97)}, 1152')
p(f's_add_u32 {s(96)}, {s(96)}, {s(97)}')
p(f's_add_u32 {s(96)}, {s(96)}, {SCR}')
p(f'v_add3_u32 {v(vTr)}, {v(T)}, {v(T + 4)}, {s(96)}')
p(f'v_lshrrev_b32 {v(T)}, 5, {v(lane)}')
p(f'v_and_b32 {v(T + 1)}, 1, {v(g_)}')
p(f'v_lshl_add_u32 {v(T + 2)}, {v(T)}, 4, {v(n_)}')
p(f'v_mul_u32_u24 {v(T + 2)}, 144, {v(T + 2)}')
p(f'v_lshl_add_u32 {v(T + 2)}, {v(T + 1)}, 4, {v(T + 2)}')
p(f's_lshl_b32 {s(96)}, {s(sW)}, 5')
p(f's_add_u32 {s(97)}, {s(96)}, {SCR}')
p(f'v_add_u32 {v(vTw)}, {s(97)}, {v(T + 2)}')
p(f'v_and_b32 {v(T + 2)}, 1, {v(lane)}')
p(f'v_lshlrev_b32 {v(T + 2)}, 5, {v(T + 2)}')
p(f'v_and_b32 {v(T + 3)}, 2, {v(lane)}')
p(f'v_lshl_add_u32 {v(T + 2)}, {v(T + 3)}, 3, {v(T + 2)}')
p(f'v_lshrrev_b32 {v(T + 3)}, 2, {v(lane)}')
p(f'v_add_u32 {v(T + 2)}, {v(T + 2)}, {v(T + 3)}')
p(f'v_mul_u32_u24 {v(T + 2)}, 144, {v(T + 2)}')
p(f'v_add_u32 {v(vXw)}, {s(97)}, {v(T + 2)}')
p(f'v_add_u32 {v(vXw + 1)}, 16, {v(vXw)}')
p(f's_lshl_b32 {s(96)}, {s(95)}, 4')
p(f's_add_u32 {s(96)}, {s(96)}, {s(94)}')
p(f's_lshl_b32 {s(96)}, {s(96)}, 5')
p(f's_add_u32 {s(98)}, {s(96)}, {s(sC)}')
p(f's_lshl_b32 {s(96)}, {s(sW)}, 7')
p(f's_add_u32 {s(96)}, {s(96)}, {s(98)}')
p(f's_lshl_b32 {s(96)}, {s(96)}, 10')
p(f'v_add_u32 {v(vXr)}, {s(96)}, {v(vL16)}')
p(f'v_mul_u32_u24 {v(T + 3)}, 1040, {v(T + 1)}')
p(f'v_lshl_add_u32 {v(T + 3)}, {v(T)}, 8, {v(T + 3)}')
p(f'v_lshl_add_u32 {v(T + 3)}, {v(n_)}, 3, {v(T + 3)}')
p(f's_mul_i32 {s(96)}, {s(sW)}, 2080')
p(f's_add_u32 {s(96)}, {s(96)}, {SCR}')
p(f'v_add_u32 {v(vUr)}, {s(96)}, {v(T + 3)}')
p(f'v_mul_u32_u24 {v(T + 3)}, 1040, {v(n_)}')
p(f'v_lshl_add_u32 {v(T + 3)}, {v(g_)}, 5, {v(T + 3)}')
p(f's_lshl_b32 {s(96)}, {s(sW)}, 8')
p(f's_add_u32 {s(96)}, {s(96)}, {SCR}')
p(f'v_add_u32 {v(vUw)}, {s(96)}, {v(T + 3)}')
p(f'v_lshlrev_b32 {v(T + 3)}, 14, {v(T + 1)}')
p(f'v_lshl_add_u32 {v(T + 3)}, {v(T)}, 13, {v(T + 3)}')
p(f'v_lshl_add_u32 {v(vZst)}, {v(n_)}, 4, {v(T + 3)}')
p(f'v_lshlrev_b32 {v(T + 3)}, 13, {v(g_)}')
p(f'v_lshl_add_u32 {v(T + 3)}, {v(n_)}, 4, {v(T + 3)}')
p(f's_lshl_b32 {s(96)}, {s(sW)}, 9')
p(f'v_add_u32 {v(vVld)}, {s(96)}, {v(T + 3)}')
p(f'v_lshlrev_b32 {v(T + 3)}, 17, {v(g_)}')
p(f'v_lshl_add_u32 {v(T + 3)}, {v(n_)}, 4, {v(T + 3)}')
p(f's_lshl_b32 {s(96)}, {s(sW)}, 19')
p(f'v_add_u32 {v(vVst)}, {s(96)}, {v(T + 3)}')
p(f'v_mul_u32_u24 {v(T + 3)}, 160, {v(n_)}')
p(f'v_lshl_add_u32 {v(T + 3)}, {v(g_)}, 3, {v(T + 3)}')
p(f's_mul_i32 {s(96)}, {s(sW)}, 2560')
p(f's_add_u32 {s(96)}, {s(96)}, {SCR}')
p(f'v_add_u32 {v(vHw2)}, {s(96)}, {v(T + 3)}')
p(f'v_lshrrev_b32 {v(T + 3)}, 2, {v(lane)}')
p(f'v_mul_u32_u24 {v(T + 3)}, 160, {v(T + 3)}')
p(f'v_and_b32 {v(T + 2)}, 3, {v(lane)}')
p(f'v_lshl_add_u32 {v(T + 3)}, {v(T + 2)}, 3, {v(T + 3)}')
p(f'v_add_u32 {v(vHw)}, {s(96)}, {v(T + 3)}')
p(f'v_add_u32 {v(vHr)}, {SCR}, {v(T + 3)}')
for q in range(1, 5):
    p(f's_add_u32 {s(96)}, {s(sW)}, {q}')
    p(f's_and_b32 {s(96)}, {s(96)}, 3')
    p(f's_mul_i32 {s(96)}, {s(96)}, 3072')
    p(f's_add_u32 {s(96)}, {s(96)}, {SCR + (1024 * (q - 1) if q < 4 else 0)}')
    p(f'v_add_u32 {v(vRed + q - 1)}, {s(96)}, {v(vL16)}')
p(f'v_and_b32 {v(T)}, 7, {v(n_)}')
p(f'v_lshlrev_b32 {v(T)}, 6, {v(T)}')
p(f'v_add_u32 {v(T)}, {s(98)}, {v(T)}')
p(f'v_lshlrev_b32 {v(T + 1)}, 2, {v(g_)}')
p(f'v_mul_u32_u24 {v(T + 1)}, {v(T + 1)}, {v(T)}')
p(f'v_lshrrev_b32 {v(T + 2)}, 3, {v(n_)}')
p(f'v_lshl_add_u32 {v(T + 1)}, {v(T + 2)}, 9, {v(T + 1)}')
p(f's_cmp_eq_u32 {s(94)}, 0')
p(f's_cselect_b32 {s(73)}, 1.0, -1.0')
p(f's_cselect_b32 {s(74)}, 0, 1.0')
p(f's_cselect_b32 {s(72)}, 1.0, 0')
p(f's_cmp_eq_u32 {s(sC)}, 0')
p(f's_cselect_b32 {s(72)}, {s(72)}, 1.0')
p(f's_cselect_b32 {s(73)}, 0, {s(73)}')
p(f's_cselect_b32 {s(74)}, {s(74)}, 0')
for k in range(8):
    cp = 16 * (k >> 2) + (k & 3)
    p(f'v_mad_u32_u24 {v(T + 2)}, {v(T)}, {cp}, {v(T + 1)}')
    p(f'v_and_b32 {v(T + 2)}, 0x7ff, {v(T + 2)}')
    p(f'v_cvt_f32_u32 {v(T + 2)}, {v(T + 2)}')
    p(f'v_mul_f32 {v(T + 2)}, {f2u(1.0 / 2048):#x}, {v(T + 2)}')
    p(f'v_cos_f32 {v(T + 3)}, {v(T + 2)}')
    p(f'v_sin_f32 {v(T + 4)}, {v(T + 2)}')
    p(f'v_mul_f32 {v(T + 5)}, {s(74)}, {v(T + 3)}')
    p(f'v_mul_f32 {v(T + 3)}, {s(72)}, {v(T + 3)}')
    p(f'v_fma_f32 {v(T + 4)}, {s(73)}, {v(T + 4)}, {v(T + 5)}')
    p(f'v_cvt_pk_bf16_f32 {v(vC2 + k)}, {v(T + 3)}, {v(T + 4)}')
stamp('setup')
if OPT['wfirst'] == 1:
    emit(wsp_first)
    wsp_first = []
for i in range(OPT['x1'], 8):
    if OPT['wfirst'] == 2 and wsp_first:
        emit([wsp_first.pop(0)])
    x_loads(i, i + 1)
m1_dma(108)
if OPT['ctpos'] == 0:
    ct_dma(110)
SCHED = OPT['sched'].split('/')
FIX = OPT['fix'].split('/')
WSR = (160, 192)
a2a_load = [(f'buffer_load_dword {v(241)}, {v(vPoll)}, {s(R_WS, 4)}, {s(sRep)} offen sc1', None)]


def wsp_run(items):
    i = 0
    while i < len(items):
        if items[i] == 'q':
            if_wave0()
            emit([a2a_load])
            p.end()
            i += 1
            continue
        k = int(items[i + 1])
        if items[i] == 'd':
            p.wait_lgkm(f'wr{k - 3}')
            wsp_dma(k)
        elif items[i] == 'r':
            wsp_read(k, WSR[k & 1])
        elif items[i] == 'a':
            wsp_park(k)
        else:
            wsp_perm(k, WSR[k & 1])
        if OPT['fine'] == 2:
            stamp('*' + items[i:i + 2])
        i += 2


bg = prep + wsp_first
for ch in SCHED[0]:
    bg += wsp_dma_ops(int(ch))
for k in range(4):
    p(f'v_mov_b32 {v(T + 2 + k)}, 0')
p.bg = bg
p.bg_on(OPT['wspev'])
for i in range(64):
    p(f'v_dot2c_f32_bf16 {v(T + 2 + (i & 1))}, {s(sOnes)}, {v(XR + i)}')
    p(f'v_dot2c_f32_bf16 {v(T + 4 + (i & 1))}, {v(XR + i)}, {v(XR + i)}')
    if i == 7:
        unpack(XR, 8, XV)
    if i == OPT['ann']:
        p.bg_on(0)
        p(f's_cmp_eq_u32 {s(sG0)}, 3')
        p.begin('G0', 's_cbranch_scc0')
        p.wait_vm('z')
        p(f'v_mov_b32 {v(EI)}, 1')
        p('s_mov_b64 exec, 1')
        p(f'buffer_store_dword {v(EI)}, off, {s(R_DBG, 4)}, 0 sc1')
        p('s_mov_b64 exec, -1')
        p.end()
        p.bg_on(OPT['wspev'])
p.bg_on(0)
p.bg_emit()
p(f'v_add_f32 {v(T)}, {v(T + 2)}, {v(T + 3)}')
p(f'v_add_f32 {v(T + 1)}, {v(T + 4)}, {v(T + 5)}')
for qp in ('[1,0,3,2]', '[2,3,0,1]'):
    for k in range(2):
        p(f'v_add_f32_dpp {v(T + k)}, {v(T + k)}, {v(T + k)} quad_perm:{qp} row_mask:0xf bank_mask:0xf')
dbg_load = [(f'buffer_load_dword {v(241)}, off, {s(R_DBG, 4)}, 0 sc1', None)]
assert 'p' not in SCHED[1]
wsp_run(SCHED[1])

p.section('body')
p('L_layer:')
stamp('T')
HP, M1, AF, D1, VO = 56, 64, 72, 104, 56
p(f's_lshl_b32 {s(sT)}, {s(sW)}, 11')
p(f's_add_u32 {s(sT)}, {s(sT)}, {CT + CT_M1}')
p(f'v_add_u32 {v(T + 7)}, {s(sT)}, {v(vL16)}')
p(f's_add_u32 {s(sT + 1)}, {s(sVst)}, 0x10000')
finish_stats(T, 512)
for i in range(0, 16, 2):
    p(f'v_pk_fma_f32 {v(XV + i, 2)}, {v(XV + i, 2)}, {v(T, 2)}, {v(T, 2)} op_sel:[0,0,1] op_sel_hi:[1,0,1]')
for t in range(4):
    for k in range(2):
        p(f'v_cvt_pk_bf16_f32 {v(HP + 2 * t + k)}, {v(XV + 8 * k + t)}, {v(XV + 8 * k + 4 + t)}')
    p(f'ds_write_b64 {v(vHw)}, {v(HP + 2 * t, 2)} offset:{32 * t}', tag='hw')
p.wait_vm('m1')
for k in range(2):
    p(f'ds_read_b128 {v(M1 + 4 * k, 4)}, {v(T + 7)} offset:{k * 1024}')
p.wait_lgkm('hw')
p.wait_vm('prep')
p('s_barrier')
for ks in range(2):
    for tile in range(4):
        for half in range(2):
            p(f'ds_read_b64_tr_b16 {v(AF + 16 * ks + 4 * tile + 2 * half, 2)}, {v(vHr)} offset:{(32 * ks + 16 * half) * 160 + 32 * tile}')
if_layer(0)
for k in range(2):
    for half in range(2):
        p(f'ds_read_b64_tr_b16 {v(PK + 4 * k + 2 * half, 2)}, {v(vPri)} offset:{128 * k + 896 * half}')
for half in range(2):
    p(f'ds_read_b64_tr_b16 {v(PK + 8 + 2 * half, 2)}, {v(vPro)} offset:{2048 * half}')
p.end()
for ks in range(2):
    for tile in range(4):
        d = D1 + 4 * tile
        p(f'{M16} {v(d, 4)}, {v(M1 + 4 * ks, 4)}, {v(AF + 16 * ks + 4 * tile, 4)}, {v(d, 4) if ks else 0}')
if_layer(0)
p(f'v_lshlrev_b32 {v(vBsp)}, 16, {v(vBsp)}')
p(f'buffer_store_dwordx4 {v(PK, 4)}, {v(vL16)}, {s(R_WS, 4)}, {s(83)} offen sc1', tag='pub')
p(f'buffer_store_dwordx4 {v(PK + 4, 4)}, {v(vL16)}, {s(R_WS, 4)}, {s(84)} offen sc1', tag='pub')
p(f'buffer_store_dwordx4 {v(PK + 8, 4)}, {v(vL16)}, {s(R_WS, 4)}, {s(85)} offen sc1', tag='pub')
p.end()
for jj in range(2):
    for t in range(4):
        p(f'v_cvt_pk_bf16_f32 {v(VO + 4 * jj + t)}, {v(D1 + 4 * t + 2 * jj)}, {v(D1 + 4 * t + 2 * jj + 1)}')
    p(f'buffer_store_dwordx4 {v(VO + 4 * jj, 4)}, {v(vVst)}, {s(R_WL, 4)}, {s(sT + 1 if jj else sVst)} offen sc1', tag='pub')
stamp('Vst')
if_layer(0)
if_wave0()
emit([dbg_load])
p.end()
wsp_run(SCHED[2])
if_wave0()
retry_until(dbg_load, lambda: p(f'v_cmp_ne_u32 vcc, 1, {v(241)}'))
p.end()
p.end()
wz2 = w_dma_ops(sWI, 114688, LOC_Z2, 'wz2')
P1, P2, P3 = OPT['wzp1'], OPT['wzp1'] + OPT['wzp2'], OPT['wzp1'] + OPT['wzp2'] + OPT['wzp3']
if P2 > P1:
    if_layer(1)
    emit(wz2[P1:P2])
    p.end()
stamp('init')
p.wait_vm('pub')
p.wait_vm('ct')
arrive(sArr, 8)
stamp('arr1')
FA, TW, FB, VR, D2, UP, XRES, Y = 40, 64, 80, 96, 160, 192, 224, 208
for k in range(14):
    p(f'ds_read_b128 {v(FA + 4 * k, 4)}, {v(vL16hi)} offset:{CT - 65536 + k * 1024}')
if_layer(0)
wsp_run(SCHED[3])
if_wave0()
retry_until(a2a_load, lambda: p(f'v_cmp_ne_u32 vcc, 16, {v(241)}'))
p.end()
p('s_barrier')
p.end()
for k in range(4):
    p(f's_add_u32 {s(sT + 4 + k)}, {s(sVld)}, {(16 * (k >> 1) + 2 * (k & 1)) * 2048:#x}')
if_layer(1)
emit(wz2[P2:P3])
poll(sRep, vPoll, 16)
p.end()
wz2_l0, wz2_l1 = list(wz2), wz2[P3:]


L0N = [int(ch, 16) for ch in OPT['l0n']]
assert sum(L0N) == 28


def l0_dma(n):
    n0 = L0N.pop(0)
    if n0:
        if_layer(0)
        emit([wz2_l0.pop(0) for _ in range(n0)])
        p.end()
    if wz2_l1 and n:
        if_layer(1)
        emit([wz2_l1.pop(0) for _ in range(min(n, len(wz2_l1)))])
        p.end()


stamp('S1')
for hi in range(2):
    for ks in range(2):
        for ii in range(4):
            r = VR + 32 * hi + 16 * ks + 4 * ii
            p(f'buffer_load_dwordx4 {v(r, 4)}, {v(vVld)}, {s(R_WL, 4)}, {s(sT + 4 + 2 * ks + (ii >> 1))} offen offset:{(ii & 1) * 2048 + hi * 256} sc1')
        if hi + ks < 2:
            if_layer(0)
            wsp_run(SCHED[4 + 2 * hi + ks])
            p.end()
p(f'buffer_load_dwordx4 {v(XRES, 4)}, {v(vXr)}, {s(R_X, 4)}, {s(sXb)} offen{LG}')
p(f'buffer_load_dwordx4 {v(XRES + 4, 4)}, {v(vXr)}, {s(R_X, 4)}, {s(sXo)} offen{LG}')
if_layer(0)
p(f'buffer_load_dword {v(248)}, {v(vGrp)}, {s(R_WS, 4)}, {s(sS2)} offen offset:128 sc1')
wsp_run(SCHED[7])
p('s_waitcnt lgkmcnt(0)')
p('s_barrier')
p.end()
l0_dma(0)
stamp('Vld')
for hi in range(2):
    for ks in range(2):
        r = VR + 32 * hi + 16 * ks
        for i in range(4):
            for j in range(i + 1, 4):
                p(f'v_swap_b32 {v(r + 4 * i + j)}, {v(r + 4 * j + i)}')
        for lo in range(4):
            d = D2 + 16 * hi + 4 * lo
            p(f'{M16} {v(d, 4)}, {v(r + 4 * lo, 4)}, {v(vC2 + 4 * ks, 4)}, {v(d, 4) if ks else 0}')
fine('st2')
l0_dma(4)
for hi in range(2):
    UP = (192, 200)[hi]
    for r in range(4):
        for lp in range(2):
            p(f'v_cvt_pk_bf16_f32 {v(UP + 2 * r + lp)}, {v(D2 + 16 * hi + 8 * lp + r)}, {v(D2 + 16 * hi + 8 * lp + 4 + r)}')
    p(f'ds_write_b128 {v(vUw)}, {v(UP, 4)} offset:{128 * hi}')
    p(f'ds_write_b128 {v(vUw)}, {v(UP + 4, 4)} offset:{128 * hi + 16}')
for k in range(2):
    p(f'ds_write_b128 {v(vXw + k)}, {v(XRES + 4 * k, 4)} offset:16640')
p('s_waitcnt lgkmcnt(0)')
p('s_barrier')
fine('ubar')
UA, DR, DI, TT, PF = 96, 112, 128, 144, 160
for ri in range(2):
    for dh in range(2):
        for half in range(2):
            p(f'ds_read_b64_tr_b16 {v(UA + 8 * ri + 4 * dh + 2 * half, 2)}, {v(vUr)} offset:{ri * 8320 + dh * 512 + half * 128}')
for o in range(2):
    p(f'ds_read_b128 {v(XRES + 4 * o, 4)}, {v(vTw)} offset:{16640 + 4608 * o}')
l0_dma(4)
for ri in range(2):
    for dh in range(2):
        first = ri == 0 and dh == 0
        fr = FA + 4 * ((2 if ri else 0) + dh)
        fi = FA + 4 * ((0 if ri else 4) + dh)
        p(f'{M32} {v(DR, 16)}, {v(UA + 8 * ri + 4 * dh, 4)}, {v(fr, 4)}, {0 if first else v(DR, 16)}')
        p(f'{M32} {v(DI, 16)}, {v(UA + 8 * ri + 4 * dh, 4)}, {v(fi, 4)}, {0 if first else v(DI, 16)}')
fine('stA')
unpack(XRES, 8, Y)
fine('xres')
l0_dma(4)
for row in range(2):
    for k in range(0, 8, 2):
        r = 8 * row + k
        p(f'v_pk_mul_f32 {v(TT + k, 2)}, {v(DI + r, 2)}, {v(TW + 8 + k, 2)}')
        p(f'v_pk_mul_f32 {v(TT + 8 + k, 2)}, {v(DR + r, 2)}, {v(TW + 8 + k, 2)}')
    for k in range(0, 8, 2):
        r = 8 * row + k
        p(f'v_pk_fma_f32 {v(TT + k, 2)}, {v(DR + r, 2)}, {v(TW + k, 2)}, {v(TT + k, 2)}')
        p(f'v_pk_fma_f32 {v(TT + 8 + k, 2)}, {v(DI + r, 2)}, {v(TW + k, 2)}, {v(TT + 8 + k, 2)} neg_lo:[0,0,1] neg_hi:[0,0,1]')
    for k in range(8):
        p(f'v_cvt_pk_bf16_f32 {v(PF + 8 * row + k)}, {v(TT + 2 * k)}, {v(TT + 2 * k + 1)}')
for k in range(4):
    p(f'{M32} {v(Y, 16)}, {v(PF + 4 * k, 4)}, {v(FB + 4 * k, 4)}, {v(Y, 16)}')
fine('stB')
XO, HO = 224, 232
l0_dma(4)
if_layer(0)
p(f'v_cmp_ne_u32 vcc, {s(sLoc)}, {v(248)}')
p('s_cmp_eq_u64 vcc, 0')
p(f's_cselect_b32 {s(sLoc)}, {OPT["loc"]}, 0')
p.end()
local_stats(Y, 16, T)
p(f'v_permlane32_swap_b32 {v(T)}, {v(T + 1)}')
p(f'v_add_f32 {v(T)}, {v(T)}, {v(T + 1)}')
for k, sh in enumerate((8, 4, 2, 1)):
    p(f'v_cvt_pk_bf16_f32 {v(XO + 2 * k)}, {v(Y + 4 * k)}, {v(Y + 4 * k + 1)}')
    p(f'v_cvt_pk_bf16_f32 {v(XO + 2 * k + 1)}, {v(Y + 4 * k + 2)}, {v(Y + 4 * k + 3)}')
    p(f'v_add_f32_dpp {v(T)}, {v(T)}, {v(T)} row_ror:{sh} row_mask:0xf bank_mask:0xf')
p(f'v_mov_b32 {v(T + 1)}, {v(T)}')
p(f's_add_u32 {s(sT)}, {s(sK2)}, {X1_:#x}')
p(f's_add_u32 {s(sT + 1)}, {s(sK2)}, {H_:#x}')
p(f'v_permlane32_swap_b32 {v(T)}, {v(T + 1)}')
finish_stats(T, 512)
norm_pack(Y, 16, T, Y, HO)
fine('norm')
for o in range(2):
    p(f'ds_write_b128 {v(vTw)}, {v(HO + 4 * o, 4)} offset:{16640 + 4608 * o}')
p('s_waitcnt lgkmcnt(0)')
p('s_barrier')
for k in range(2):
    p(f'ds_read_b128 {v(HO + 4 * k, 4)}, {v(vTr)} offset:{16640 + 576 * k}')
for o in range(2):
    p(f'ds_write_b128 {v(vTw)}, {v(XO + 4 * o, 4)} offset:{4608 * o}')
gstore([f'buffer_store_dwordx4 {v(HO + 4 * k, 4)}, {v(vK2)}, {s(R_WL, 4)}, {s(sT + 1)} offen offset:{2048 * k}' for k in range(2)], 'pub')
l0_dma(6)
wsp_fix(FIX[0], 104)
stamp('K2')
p('s_waitcnt lgkmcnt(0)')
p.wait_vm('pub')
if OPT['hpf']:
    for k in range(2):
        p(f'buffer_load_dwordx4 {v(HO + 4 * k, 4)}, {v(vK2)}, {s(R_WL, 4)}, {s(sT + 1)} offen offset:{2048 * k} sc1')
arrive_group(sS2)
for k in range(2):
    p(f'ds_read_b128 {v(XO + 4 * k, 4)}, {v(vTr)} offset:{576 * k}')
l0_dma(6)
wsp_fix(FIX[1], 104)
stamp('arr2')
HF, Z2, Z1, WR, WD, GT = 40, 104, 136, 164, 12, 212
for k in range(4):
    p(f's_add_u32 {s(sT + 4 + k)}, {s(sH)}, {H_ + 4096 * k:#x}')
p('s_waitcnt lgkmcnt(0)')
poll(sS2, vGrp, 1, 'wz26')
stamp('S2')
hl = [[(f'buffer_load_dwordx4 {v(HF + 4 * ks, 4)}, {v(vL16)}, {s(R_WL, 4)}, {s(sT + 4 + (ks >> 2))} offen offset:{1024 * (ks & 3)}{LG}', None)]
      for ks in range(16)]
xs = [[(f'buffer_store_dwordx4 {v(XO + 4 * k, 4)}, {v(vK2)}, {s(R_WL, 4)}, {s(sT)} offen offset:{2048 * k} sc1', 'x1')] for k in range(2)]
wz1 = w_dma_ops(sWI, 0, LOC_Z1, 'wz1')
emit(hl[:OPT['pre3']])
wsp_fix(FIX[2], 104)
n_h = 16 - OPT['pre3']
fill = spread(hl[OPT['pre3']:], 1, 5)
fill.update(spread(xs + wz1[:12], 5 * n_h + 1, OPT['z2sp']))
gemm_r(Z2, 7, 0, 16, HF, WR, WD, LOC_Z2, fill=fill)
p.wait_vm('x1')
p('s_barrier')
stamp('z2mm')
p.bg = wz1[12:]
p.bg_emit(2)
p.bg_on(OPT['g2ev'])
gelu(Z2, 28, GT)
local_stats(Z2, 28, T)
p.bg_on(0)
reduce_g(T, T + 1)
publish_stats(0)
stamp('pub3')
Z1A = OPT['z1a']
p.bg_emit()
p.wait_vm('wz12')
p('s_barrier')
gemm_r(Z1, 7, 0, Z1A, HF, WR, WD, LOC_Z1, fill={min(OPT['gpos'], 7 * Z1A - 1): gather_loads(0)})
SEL, ZP, ZT, ZO = 220, 228, 164, 104
p(f'v_and_b32 {v(SEL)}, 0xf0, {v(vL16)}')
p(f'v_lshrrev_b32 {v(SEL + 1)}, 2, {v(vL16)}')
p(f'v_and_b32 {v(SEL + 1)}, 0xc0, {v(SEL + 1)}')
p(f'v_sub_u32 {v(SEL)}, {v(SEL)}, {v(SEL + 1)}')
p(f'v_mov_b32 {v(SEL + 4)}, 0x3f80')
p(f'v_lshlrev_b32 {v(SEL + 4)}, {v(SEL)}, {v(SEL + 4)}')
p(f'v_lshrrev_b32 {v(SEL + 1)}, 5, {v(SEL)}')
p(f'v_cmp_eq_u32 vcc, 0, {v(SEL + 1)}')
p(f'v_cndmask_b32 {v(SEL + 2)}, 0, {v(SEL + 4)}, vcc')
p(f'v_cmp_eq_u32 vcc, 1, {v(SEL + 1)}')
p(f'v_cndmask_b32 {v(SEL + 3)}, 0, {v(SEL + 4)}, vcc')
for k in (0, 1, 4, 5):
    p(f'v_mov_b32 {v(SEL + k)}, 0')
p(f'v_mov_b32 {v(ZP + 14)}, 0')
p(f'v_mov_b32 {v(ZP + 15)}, 0')
stamp('z1a')
gather_finish(0)
stamp('S3')
finish_stats(T, 896)
if OPT['nomean']:
    p(f'v_mov_b32 {v(T + 1)}, 0')
if OPT['nomean'] == 2:
    p(f'v_mov_b32 {v(T)}, 0')
norm_pack(Z2, 28, T, Z2, ZP)
for ft in range(7):
    p(f'{M16} {v(ZT + 4 * ft, 4)}, {v(ZP + 4 * (ft >> 1), 4)}, {v(SEL + (0 if ft & 1 else 2), 4)}, 0')
for ft in range(7):
    for k in range(2):
        p(f'v_cvt_pk_bf16_f32 {v(ZO + 2 * ft + k)}, {v(ZT + 4 * ft + 2 * k)}, {v(ZT + 4 * ft + 2 * k + 1)}')
for pr in range(4):
    p(f's_add_u32 {s(sT)}, {s(sZst)}, {pr * 32768:#x}')
    for k in range(2):
        p(f'v_permlane16_swap_b32 {v(ZO + 4 * pr + k)}, {v(ZO + 4 * pr + 2 + k)}')
    if pr == 3:
        p('s_mov_b32 exec_lo, 0xffff')
        p('s_mov_b32 exec_hi, 0xffff')
    p(f'buffer_store_dwordx4 {v(ZO + 4 * pr, 4)}, {v(vZst)}, {s(R_WL, 4)}, {s(sT)} offen sc1', tag='pub')
p('s_mov_b64 exec, -1')
stamp('Zst')
p.wait_vm('wz16')
p('s_barrier')
Z1B = min(16, Z1A + OPT['z1arr'])
wo = w_dma_ops(sWO, 0, LOC_WO, 'wo')
fill = spread(wo[:12], 7 * Z1A + 1, 5)
gemm_r(Z1, 7, Z1A, Z1B, HF, WR, WD, LOC_Z1, last=112, fill={k: g for k, g in fill.items() if k < 7 * Z1B})
p.wait_vm('pub')
arrive(sS4, 8)
stamp('arr4')
if Z1B < 16:
    gemm_r(Z1, 7, Z1B, 16, HF, WR, WD, LOC_Z1, preload=False, fill={k: g for k, g in fill.items() if k >= 7 * Z1B})
    if OPT['wo4']:
        p('s_barrier')
emit(wo[12:12 + OPT['wo4']])
wo = wo[12 + OPT['wo4']:]
wsp_fix(FIX[3], 88)
p(f's_mov_b32 {s(sT + 2)}, {s(sZld)}')
stamp('win4')
p(f'v_and_b32 {v(T + 1)}, 0x100, {v(vPoll)}')
poll(sP4, T + 1, 16)
stamp('S4')
ZD, AC, RT, UO = OPT['zd'], 196, 228, 240


def zreg(fi):
    k = fi % ZD
    return 40 + 4 * k if k < 24 else 164 + 4 * (k - 24)


def zload(fi):
    if fi % 4 == 0 and fi:
        p(f's_add_u32 {s(sT + 2)}, {s(sT + 2)}, 4096')
    if OPT['k4load'] or fi < ZD:
        p(f'buffer_load_dwordx4 {v(zreg(fi), 4)}, {v(vL16)}, {s(R_WL, 4)}, {s(sT + 2)} offen offset:{(fi % 4) * 1024}' + ' sc1')


def k4_epilogue(ft):
    ac, buf = AC + 16 * (ft & 1), 12288 * (ft & 1)
    st1 = [f'ds_write_b128 {v(vRed + q - 1)}, {v(ac + 4 * q, 4)} offset:{buf}' for q in (1, 2, 3)]
    st1 += [f'v_add_f32 {v(ac + r)}, {v(vBsp)}, {v(ac + r)}' for r in range(4)]
    st2 = ['s_waitcnt lgkmcnt(0)', 's_barrier']
    st2 += [f'ds_read_b128 {v(RT + 4 * q, 4)}, {v(vRed + 3)} offset:{buf + 1024 * q}' for q in range(3)]
    st3 = [f'v_add_f32 {v(ac + r)}, {v(RT + 4 * q + r)}, {v(ac + r)}' for q in range(3) for r in range(4)]
    st3 += [f'v_mul_f32 {v(ac + r)}, {v(Z1 + 4 * ft + r)}, {v(ac + r)}' for r in range(4)]
    st3 += [f'v_cvt_pk_bf16_f32 {v(UO + 2 * (ft & 1) + k)}, {v(ac + 2 * k)}, {v(ac + 2 * k + 1)}' for k in range(2)]
    if ft == 6:
        st3 += [f'buffer_store_dwordx2 {v(UO, 2)}, {v(vL8)}, {s(R_WL, 4)}, {s(sUst)} offen offset:3072']
    elif ft & 1:
        st3 += [f'buffer_store_dwordx4 {v(UO, 4)}, {v(vL16)}, {s(R_WL, 4)}, {s(sUst)} offen offset:{1024 * (ft >> 1)}']
    return st1, st2, st3


def k4_emit(x):
    if x.startswith('buffer_store'):
        gstore([x], 'u6' if 'dwordx2' in x else 'pub')
    else:
        p(x)


def gelu_ops(x, t):
    ops = [f'v_mul_f32 {v(t + k)}, {v(x + k)}, {v(x + k)}' for k in range(4)]
    ops += [f'v_fma_f32 {v(t + k)}, {v(t + k)}, {v(vGK)}, {v(vGK + 1)}' for k in range(4)]
    ops += [f'v_mul_f32 {v(t + k)}, {v(t + k)}, {v(x + k)}' for k in range(4)]
    ops += [f'v_exp_f32 {v(t + k)}, {v(t + k)}' for k in range(4)]
    ops += [f'v_add_f32 {v(t + k)}, 1.0, {v(t + k)}' for k in range(4)]
    ops += [f'v_rcp_f32 {v(t + k)}, {v(t + k)}' for k in range(4)]
    ops += [f'v_mul_f32 {v(x + k)}, {v(t + k)}, {v(x + k)}' for k in range(4)]
    return ops


WR5, X1R, XP, FL = 56, 232, 104, 244
OW, OR, OG = 248, 249, 253
assert ZD <= 12


def ureg(ks):
    return 104 + 4 * ks if ks < 8 else (164 + 4 * (ks - 8) if ks < 24 else 136 + 4 * (ks - 24))


ul = [[(f'buffer_load_dwordx4 {v(ureg(ks), 4)}, {v(vL16)}, {s(R_WL, 4)}, {s(sT + 4 + (ks >> 1 if ks < 16 else ks - 16))} '
        f'offen offset:{1024 * (ks & 1 if ks < 16 else 2)}{LG}', None)] for ks in range(24)]
ul += [[(f'buffer_load_dwordx2 {v(ureg(24 + i) + 2 * k, 2)}, {v(vL8)}, {s(R_WL, 4)}, {s(sT + 4 + 2 * i + k)} offen offset:3072{LG}', None)
        for k in range(2)] for i in range(4)]


def flag_store(off):
    p(f'v_mov_b32 {v(FL + 1)}, 1')
    p(f's_add_u32 {s(99)}, {s(sS5)}, {s(sB4)}')
    p('s_mov_b64 exec, 1')
    gstore([f'buffer_store_dword {v(FL + 1)}, off, {s(R_WS, 4)}, {s(99)} offset:{off}'])
    p('s_mov_b64 exec, -1')


def flag_load(off):
    return [(f'buffer_load_dword {v(FL)}, {v(vGrp)}, {s(R_WS, 4)}, {s(sS5)} offen offset:{off}{PG}', None)]


def flag_check(off):
    retry_until(flag_load(off), lambda: p(f'v_cmp_ne_u32 vcc, 1, {v(FL)}'))


for fi in range(ZD):
    zload(fi)
wsp_fix(FIX[4], 88)
p(f's_lshl_b32 {s(sT + 3)}, {s(sB)}, 10')
p(f's_add_u32 {s(sT + 3)}, {s(sT + 3)}, {s(sH)}')
p(f's_add_u32 {s(sT + 12)}, {s(sT + 3)}, {X1_:#x}')
p(f's_add_u32 {s(sT + 13)}, {s(sT + 3)}, {X1_ + 8192:#x}')
for bb in range(8):
    p(f's_add_u32 {s(sT + 4 + bb)}, {s(sUld)}, {3584 * bb}')
p(f'v_and_b32 {v(T)}, 0xf0, {v(vL16)}')
p(f'v_mul_u32_u24 {v(T)}, 9, {v(T)}')
p(f'v_lshrrev_b32 {v(T + 1)}, 8, {v(vL16)}')
p(f'v_lshl_add_u32 {v(T)}, {v(T + 1)}, 5, {v(T)}')
p(f's_mul_i32 {s(sT)}, {s(sW)}, 2304')
p(f's_add_u32 {s(sT)}, {s(sT)}, {SCR + 12288}')
p(f'v_add_u32 {v(OW)}, {s(sT)}, {v(T)}')
p(f'v_lshrrev_b32 {v(T)}, 7, {v(vL16)}')
p(f'v_lshl_add_u32 {v(T + 1)}, {v(T)}, 4, {v(vL16)}')
p(f'v_add_u32 {v(OR)}, {s(sT)}, {v(T + 1)}')
p(f'v_and_b32 {v(T + 1)}, 0x70, {v(vL16)}')
p(f'v_lshl_add_u32 {v(OG)}, {v(T)}, 16, {v(T + 1)}')
p(f's_lshl_b32 {s(sT)}, {s(sW)}, 9')
p(f's_add_u32 {s(sT)}, {s(sT)}, {s(sC)}')
p(f's_lshl_b32 {s(sT)}, {s(sT)}, 10')
p(f's_add_u32 {s(sT + 14)}, {s(sT)}, {s(sB128)}')
p(f's_add_u32 {s(sT + 15)}, {s(sT + 14)}, 0x8000')
tail = [[(f'buffer_load_dwordx4 {v(88 + 4 * o, 4)}, {v(vL16)}, {s(R_WL, 4)}, {s(sT + 12 + o)} offen{LG}', None) for o in range(2)]] + ul[:16]
late_wo = bool(wo)
for ft in range(7):
    fill = {}
    if ft and OPT['k4epi']:
        st1, st2, st3 = k4_epilogue(ft - 1)
        pos = OPT['e1']
        for x in st1:
            fill.setdefault(pos, []).append(x)
            pos += 1
        pos = OPT['e2']
        for x in st2:
            fill.setdefault(pos, []).append(x)
            pos += 1
        pos = OPT['e3']
        for x in st3:
            fill.setdefault(pos, []).append(x)
            pos += 1
    free = [k for k in range(64) if k not in fill]
    for k, x in zip(free, gelu_ops(Z1 + 4 * ft, T)):
        fill[k] = [x]
    for a2 in range(16):
        fi = ft * 16 + a2
        for q in range(4):
            d = AC + 16 * (ft & 1) + 4 * q
            if OPT['k4mfma'] or q == 0:
                p(f'{M16} {v(d, 4)}, {v(zreg(fi), 4)}, {a((q * 16 + a2) * 4, 4)}, {v(d, 4) if a2 else 0}')
            for x in fill.get(4 * a2 + q, []):
                k4_emit(x)
        if fi + ZD < 112:
            zload(fi + ZD)
        elif len(tail) > 17 - OPT['ntail']:
            if len(tail) == 16:
                flag_check(0)
            emit([tail.pop(0)])
        if fi == OPT['f5a']:
            p.wait_vm('pub')
            flag_store(0)
        if fi == OPT['l5a']:
            emit([flag_load(0)])
fine('k4mm')
st1, st2, st3 = k4_epilogue(6)
for x in st1 + st2:
    p(x)
unpack(88, 8, XV)
for x in st3:
    k4_emit(x)
stamp('K4')
later = tail + wo


def reload_table():
    if_layer(0)
    m1_dma(228)
    ct_dma(230)
    p.end()


def flag_after(tag, off):
    p.wait_vm(tag)
    flag_store(off)


def late_weights():
    p.wait_vm('wo6')
    p('s_barrier')


emit(later[:OPT['lnow']])
fill = spread(later[OPT['lnow']:], 1, 2)
fill[OPT['ma']] = lambda: flag_after('pub', 32)
fill[OPT['mb']] = flag_load(32)
fill[OPT['mc']] = lambda: (flag_check(32), fine('ck5m'), emit(ul[16:20]))
fill[OPT['fa']] = lambda: (flag_after('u6', 64), fine('fl5b'))
fill.update(spread(ul[20:24], OPT['fa'] + 1, 2))
fill[OPT['fb']] = flag_load(64)
fill[OPT['fc']] = lambda: (flag_check(64), fine('ck5b'), emit(ul[24:]), late_wo and late_weights())
assert OPT['fc'] + WD < 112 - 4 * len(wo)
fill[OPT['fc'] + 6] = reload_table
gemm_r(XV, 4, 0, 28, ureg, WR5, WD, LOC_WO, first_c=True, fill=fill)
for k in range(8):
    p(f'v_cvt_pk_bf16_f32 {v(XP + k)}, {v(XV + 2 * k)}, {v(XV + 2 * k + 1)}')
stamp('K5')
if_layer(1)
for o in range(2):
    p(f'ds_write_b128 {v(OW)}, {v(XP + 4 * o, 4)} offset:{16 * o}')
for k in range(2):
    p(f'ds_read_b128 {v(X1R + 4 * k, 4)}, {v(OR)} offset:{1152 * k}')
for k in range(2):
    p(f'buffer_store_dwordx4 {v(X1R + 4 * k, 4)}, {v(OG)}, {s(R_OUT, 4)}, {s(sT + 14 + k)} offen sc1')
if PROF:
    p('s_waitcnt vmcnt(0)')
    stamp('end')
    p(f's_lshl_b32 {s(sT)}, s2, 2')
    p(f's_add_u32 {s(sT)}, {s(sT)}, {s(sW)}')
    p(f's_lshl_b32 {s(sT)}, {s(sT)}, 8')
    p(f's_add_u32 {s(sT)}, {s(sT)}, {PROFO:#x}')
    p(f'v_lshrrev_b32 {v(T)}, 2, {v(vL16)}')
    p(f'buffer_store_dword {v(vProf)}, {v(T)}, {s(R_WS, 4)}, {s(sT)} offen')
if OPT['diag']:
    p('s_waitcnt vmcnt(0)')
    stamp('end')
    p(f's_sub_u32 s101, s101, {s(sPidx)}')
    p('s_min_u32 s101, s101, 20000')
    p('s_mul_i32 s101, s101, 10')
    p('s_add_u32 s101, s101, 10000')
    p('L_spin:')
    p(f's_memrealtime {s(sStamp, 2)}')
    p('s_waitcnt lgkmcnt(0)')
    p(f's_sub_u32 {s(sStamp)}, {s(sStamp)}, {s(sPidx)}')
    p(f's_cmp_lt_u32 {s(sStamp)}, s101')
    p('s_cbranch_scc1 L_spin')
p('L_exit:')
p('s_endpgm')
p.end()
local_stats(XV, 16, T)
reduce_g(T, T + 1)
publish_stats(0x40000)
emit([gather_loads(0x40000)])
p('s_barrier')
for o in range(2):
    p(f's_add_u32 {s(sT + 4 + o)}, {s(sT + 3)}, {X2 + 8192 * o:#x}')
gather_finish(0x40000)
gstore([f'buffer_store_dwordx4 {v(XP + 4 * o, 4)}, {v(vL16)}, {s(R_WS, 4)}, {s(sT + 4 + o)} offen' for o in range(2)], 'pub')
emit(wz2[:P1])
p(f's_mov_b32 {s(sL)}, 1')
if not OPT['reuse']:
    p(f's_add_u32 {s(R_WL)}, {s(R_WL)}, {LSTRIDE:#x}')
    p(f's_addc_u32 {s(R_WL + 1)}, {s(R_WL + 1)}, 0')
p(f's_mov_b32 {s(R_X)}, {s(R_WS)}')
p(f's_mov_b32 {s(R_X + 1)}, {s(R_WS + 1)}')
p(f's_mov_b32 {s(R_X + 2)}, {LBASE:#x}')
p(f's_add_u32 {s(sXb)}, {s(sK2)}, {X2:#x}')
p(f's_add_u32 {s(sXo)}, {s(sXb)}, 2048')
p(f'v_mov_b32 {v(vXr)}, {v(vK2)}')
p(f'v_mov_b32 {v(vXw)}, {v(vTr)}')
p(f'v_add_u32 {v(vXw + 1)}, 576, {v(vTr)}')
p(f'v_mov_b32 {v(vHw)}, {v(vHw2)}')
p(f's_add_u32 {s(sSt)}, {s(sSt)}, 0x20000')
for r in (sArr, sRep, sS2, sS4, sP4, sS5):
    p(f's_add_u32 {s(r)}, {s(r)}, 0x20000')
p('s_branch L_layer')

p.resolve([('pro', set()), ('body', {'L0'}), ('body', {'L1'})], ['W0', 'G0', 'LOC', 'RETRY'])

hdr = open('interleave_layers__spectral_fnet__mixer_gmlp__prompt.s.ref').read().split('\n')
out = [l for l in hdr if l.startswith(';') and '@launch' not in l][:14]
if PROF:
    k = STAMPS.index('T')
    out.append('; stamps: ' + ' '.join(STAMPS[:-1] + [x for x in STAMPS[k:] if x[0] != '*']))
out.append(f'; @launch grid=(256,1,1) block=(256,1,1) lds={LDS_BYTES}')
out += ['.amdgcn_target "amdgcn-amd-amdhsa--gfx950"', '.text', f'.globl {NAME}', '.p2align 8', f'.type {NAME},@function']
out.append(p.text())
out.append('.p2align 8')
out.append('.type L_table,@object')
out.append('L_table:')
tab = const_table()
for i in range(0, tab.size, 8):
    out.append('.long ' + ','.join(f'{x:#x}' for x in tab[i:i + 8]))
out.append(f'.size L_table, {tab.size * 4}')
out.append('L_end:')
out += ['.section .rodata,"a"', '.p2align 6', f'.amdhsa_kernel {NAME}',
        '  .amdhsa_next_free_vgpr 512', '  .amdhsa_next_free_sgpr 102', '  .amdhsa_accum_offset 256',
        '  .amdhsa_group_segment_fixed_size 0', '  .amdhsa_kernarg_size 104', '  .amdhsa_user_sgpr_count 2',
        '  .amdhsa_user_sgpr_kernarg_segment_ptr 1', '  .amdhsa_system_sgpr_workgroup_id_x 1',
        '  .amdhsa_float_denorm_mode_32 3', '.end_amdhsa_kernel', '']
open(sys.argv[1], 'w').write('\n'.join(out))
print(p.stats(), file=sys.stderr)
```

```python
import sys
import struct
import numpy as np
from asmlib import Prog, v, a, s

NAME = 'interleave_layers__spectral_fnet__mixer_gmlp__prompt_kernel'
OPT = dict(prof=0, k4mfma=1, k4load=1, k4epi=1, zd=12, pre3=8, pre5=16, loc=1, locd=3, x1pos=88, lg=0, pg=0, sg=0, wspev=8, x1=2,
           g2ev=10, z1a=5, gpos=18, z1arr=5, wo4=16, wzp1=0, wzp2=6, wzp3=14, reuse=0, tlb=0, e1=4, e2=14, e3=24, f5a=87, l5a=95, mb=8, mc=20, fa=36, fb=48, fc=60, hpf=0, cpf=12, k1=3, k2=9, k3=15, mf=111, fixev=0, woa=4, wosp=4, g1w=4, l0n='0444466', ann=0, fix='4/5/6/7/', ntail=12, lnow=4, fine=0, sched='//d1/d2r0d3r1d4p0r2d5p1r3qd6a4d7/a5p2/a6p3/a7/', ctpos=0, pk=3, nomean=0,  z2sp=4, early=1, wfirst=0, nobg=0, few=0, diag='')
for arg in sys.argv[2:]:
    k, val = arg.split('=')
    OPT[k] = val if k in ('diag', 'sched', 'fix', 'l0n') else int(val)
PROF = OPT['prof']
LG = (' sc1', '', ' nt', ' sc0')[OPT['lg']]
PG = (' sc1', '', ' nt')[OPT['pg']]
SG = ('', ' nt', ' sc0')[OPT['sg']]


WI, WO, FLAGS, STATS, X2, PROFO = 0, 0x200000, 0x300000, 0x340000, 0x400000, 0x600000
LBASE, LSTRIDE = 0x800000, 0x1000000
V_, H_, X1_, Z_, U_ = 0, 0x200000, 0x400000, 0x600000, 0xA00000
WB, CT, SCR, LDS_BYTES = 0, 114688, 114688 + 22528, 163840
CT_FA, CT_TW, CT_FB, CT_M1 = 0, 6144, 10240, 14336

R_X, R_WIN, R_WSP, R_WOUT, R_OUT, R_WS, R_DBG, R_BSP, R_WL = 4, 8, 12, 16, 20, 24, 28, 32, 36
sW, sC, sB, sL, sTO = 40, 41, 42, 43, 44
sVst, sVld, sH, sK2, sXo, sXb, sZst, sZld, sUst, sUld = 45, 46, 47, 48, 49, 50, 51, 52, 53, 54
sLoc, sSt, sWI, sWO, sWsp, sSelLo, sSelHi, sPidx, sOnes = 55, 56, 57, 58, 59, 60, 61, 62, 63
sArr, sRep, sS2, sS4, sS5, sB128, sDm, sDo = 64, 65, 66, 67, 68, 69, 70, 71
sB4, sP4, sG0, sLocH = 3, 88, 75, 89
sT = 72
sStamp = 90
vL16, vTw, vK2, vXr, vVld, vVst, vBsp, vZst = 0, 1, 2, 3, 4, 5, 6, 7
vC2 = 8
vHw, vHr, vUw, vUr, vStl, vL8, vTr, vPoll, vArr, vProf, vGK = 16, 17, 18, 19, 20, 21, 22, 23, 24, 25, 26
vRed = 28
T = 32
XV = 40
M1 = 184


def f2u(x):
    return struct.unpack('<I', struct.pack('<f', x))[0]


def bf16(x):
    u = np.ascontiguousarray(x, dtype=np.float32).view(np.uint32)
    return ((u + 0x7FFF + ((u >> 16) & 1)) >> 16).astype(np.uint32)


def const_table():
    l = np.arange(64)[:, None]
    j = np.arange(8)[None, :]
    nn, h = l & 31, l >> 5
    e1 = 16 * ((nn >> 2) & 1) + 4 * (nn >> 3) + (nn & 3)
    frags = []

    def pack(x):
        x = np.where(np.abs(x) < 1e-12, 0.0, x)
        b = bf16(x)
        return (b[:, 0::2] | (b[:, 1::2] << 16)).astype(np.uint32)
    ang = [2 * np.pi * ((16 * dh + 8 * h + j) * e1 % 32) / 32 for dh in range(2)]
    frags += [pack(np.cos(ang[0])), pack(np.cos(ang[1])), pack(np.sin(ang[0])), pack(np.sin(ang[1])),
              pack(-np.sin(ang[0])), pack(-np.sin(ang[1]))]
    d2 = 8 * (j >> 2) + 4 * h + (j & 3)
    tw = 2 * np.pi * (d2 * e1) / 512
    tc = np.cos(tw).astype(np.float32).view(np.uint32)
    ts = np.sin(tw).astype(np.float32).view(np.uint32)
    frags += [tc[:, :4], tc[:, 4:], ts[:, :4], ts[:, 4:]]
    ps = 2 * np.pi * (d2 * (nn & 15) % 16) / 16
    for row in range(2):
        m = ((nn >> 4) == row)
        frags += [pack(np.cos(ps) * m), pack(np.sin(ps) * m)]
    n, g = l & 15, l >> 4
    for jq in range(4):
        for ks in range(2):
            rho = 32 * ks + 16 * (j >> 2) + 4 * g + (j & 3)
            s1 = 16 * (rho >> 4) + 2 * (rho & 7) + ((rho >> 3) & 1)
            jj = 8 * jq + (n >> 1)
            th = 2 * np.pi * (s1 * jj % 64) / 64
            x = np.where((n & 1) == 0, np.cos(th), np.where(jj == 0, (-1.0) ** s1, -np.sin(th)))
            frags.append(pack(x))
    tab = np.concatenate([np.ascontiguousarray(f).reshape(-1) for f in frags])
    assert tab.size == 22 * 256
    return tab


p = Prog()
M16 = 'v_mfma_f32_16x16x32_bf16'
M32 = 'v_mfma_f32_32x32x16_bf16'


STAMPS = []


def stamp(name):
    if OPT['few'] and name in ('karg', 'start', 'setup', 'init', 'arr1', 'Vst', 'pub3', 'z1a', 'S3', 'Zst', 'arr4', 'win4') + (() if OPT['fine'] else ('Vld', 'K2', 'arr2', 'K5')):
        return
    STAMPS.append(name)
    if OPT['diag'] and OPT['diag'][:-1] == name:
        p(f's_memrealtime {s(sStamp, 2)}')
        p('s_waitcnt lgkmcnt(0)')
        p(f's_cmp_eq_u32 {s(sL)}, {OPT["diag"][-1]}')
        p(f's_cselect_b32 s101, {s(sStamp)}, s101')
    if PROF:
        p(f'{"s_memtime" if PROF == 2 else "s_memrealtime"} {s(sStamp, 2)}')
        p('s_waitcnt lgkmcnt(0)')
        p('s_mov_b32 s101, m0')
        p(f's_mov_b32 m0, {s(sPidx)}')
        p(f'v_writelane_b32 {v(vProf)}, {s(sStamp)}, m0')
        p('s_mov_b32 m0, s101')
        p(f's_add_u32 {s(sPidx)}, {s(sPidx)}, 1')


def fine(name):
    if OPT['fine'] == 1:
        stamp(name)


def srd(r, lo, hi, size):
    p(f's_mov_b32 {s(r)}, {s(lo)}')
    p(f's_and_b32 {s(r + 1)}, {s(hi)}, 0xffff')
    p(f's_mov_b32 {s(r + 2)}, {size:#x}')
    p(f's_mov_b32 {s(r + 3)}, 0x20000')


def if_wave0():
    p(f's_cmp_eq_u32 {s(sW)}, 0')
    p.begin('W0', 's_cbranch_scc0')


def if_layer(l):
    p(f's_cmp_eq_u32 {s(sL)}, {l}')
    p.begin(f'L{l}', 's_cbranch_scc0')


def spin_tail(top, done):
    p(f's_cbranch_vccz {done}')
    p(f's_sub_u32 {s(sTO)}, {s(sTO)}, 1')
    p(f's_cbranch_scc0 {top}')
    p(f's_mov_b32 {s(sTO)}, 0')
    p(f'{done}:')


def arrive(soff, nrep):
    p('s_barrier')
    if_wave0()
    p(f'v_mov_b32 {v(T)}, 1')
    p(f's_mov_b64 exec, {(1 << nrep) - 1:#x}')
    p(f'buffer_atomic_add {v(T)}, {v(vArr)}, {s(R_WS, 4)}, {s(soff)} offen sc1')
    p('s_mov_b64 exec, -1')
    p.end()


def gstore(lines, tag=None, local=False, flag=None):
    if not OPT['loc'] or (tag and not local):
        for x in lines:
            p(x + ' sc1', tag=tag)
        return
    p(f's_cmp_eq_u32 {s(flag or sLoc)}, 0')
    p.begin('LOC', 's_cbranch_scc1')
    for x in lines:
        p(x + SG, tag=tag)
    p.end()
    p.begin('!LOC', 's_cbranch_scc0')
    for x in lines:
        p(x + ' sc1', tag=tag)
    p.end()


def arrive_group(soff):
    p('s_barrier')
    if_wave0()
    p(f'v_mov_b32 {v(T)}, 1')
    p(f's_add_u32 {s(99)}, {s(soff)}, {s(sB4)}')
    p('s_mov_b64 exec, 1')
    gstore([f'buffer_store_dword {v(T)}, off, {s(R_WS, 4)}, {s(99)}'])
    p('s_mov_b64 exec, -1')
    p.end()


def poll(soff, vaddr, need, tag=None):
    if_wave0()
    top, done = p.label('poll'), p.label('pdone')
    p(f'{top}:')
    if vaddr is not None:
        p(f'buffer_load_dword {v(T)}, {v(vaddr)}, {s(R_WS, 4)}, {s(soff)} offen' + (PG if vaddr == vGrp else ' sc1'))
    else:
        p(f'buffer_load_dword {v(T)}, off, {s(R_WS, 4)}, {s(soff)} sc1')
    p('s_waitcnt vmcnt(0)')
    p(f'v_cmp_ne_u32 vcc, {need}, {v(T)}')
    spin_tail(top, done)
    p.end()
    if tag:
        p.wait_vm(tag)
    p('s_barrier')


def reduce_g(x, y):
    p(f'v_permlane16_swap_b32 {v(x)}, {v(y)}')
    p(f'v_add_f32 {v(x)}, {v(x)}, {v(y)}')
    p(f'v_mov_b32 {v(y)}, {v(x)}')
    p(f'v_permlane32_swap_b32 {v(x)}, {v(y)}')
    p(f'v_add_f32 {v(x)}, {v(x)}, {v(y)}')
    p(f'v_mov_b32 {v(y)}, {v(x)}')
    p(f'v_permlane16_swap_b32 {v(x)}, {v(y)}')


def finish_stats(x, n):
    y, m = x + 1, x + 2
    p(f'v_mul_f32 {v(m)}, {f2u(1.0 / n):#x}, {v(x)}')
    p(f'v_mul_f32 {v(y)}, {f2u(1.0 / n):#x}, {v(y)}')
    p(f'v_fma_f32 {v(y)}, -{v(m)}, {v(m)}, {v(y)}')
    p(f'v_max_f32 {v(y)}, 0, {v(y)}')
    p(f'v_add_f32 {v(y)}, {f2u(1e-5):#x}, {v(y)}')
    p(f'v_rsq_f32 {v(x)}, {v(y)}')
    p(f'v_mul_f32 {v(y)}, -{v(m)}, {v(x)}')


def norm_pack(src, n, st, tmp, dst):
    for i in range(0, n, 2):
        p(f'v_pk_fma_f32 {v(tmp + i, 2)}, {v(src + i, 2)}, {v(st, 2)}, {v(st, 2)} op_sel:[0,0,1] op_sel_hi:[1,0,1]')
    for i in range(0, n, 2):
        p(f'v_cvt_pk_bf16_f32 {v(dst + i // 2)}, {v(tmp + i)}, {v(tmp + i + 1)}')


def local_stats(src, n, out):
    sa, sq = out + 2, out + 4
    p(f'v_pk_add_f32 {v(sa, 2)}, {v(src, 2)}, {v(src + 2, 2)}')
    p(f'v_pk_mul_f32 {v(sq, 2)}, {v(src, 2)}, {v(src, 2)}')
    p(f'v_pk_fma_f32 {v(sq, 2)}, {v(src + 2, 2)}, {v(src + 2, 2)}, {v(sq, 2)}')
    for i in range(4, n, 2):
        p(f'v_pk_add_f32 {v(sa, 2)}, {v(sa, 2)}, {v(src + i, 2)}')
        p(f'v_pk_fma_f32 {v(sq, 2)}, {v(src + i, 2)}, {v(src + i, 2)}, {v(sq, 2)}')
    p(f'v_add_f32 {v(out)}, {v(sa)}, {v(sa + 1)}')
    p(f'v_add_f32 {v(out + 1)}, {v(sq)}, {v(sq + 1)}')


def unpack(src, n, dst):
    for i in range(n):
        p(f'v_lshlrev_b32 {v(dst + 2 * i)}, 16, {v(src + i)}')
        p(f'v_and_b32 {v(dst + 2 * i + 1)}, 0xffff0000, {v(src + i)}')


def publish_stats(area):
    p(f's_add_u32 {s(sT)}, {s(sSt)}, {s(sB128)}')
    if area:
        p(f's_add_u32 {s(sT)}, {s(sT)}, {area:#x}')
    p('s_mov_b64 exec, 0xffff')
    gstore([f'buffer_store_dwordx2 {v(T, 2)}, {v(vStl)}, {s(R_WS, 4)}, {s(sT)} offen'])
    p('s_mov_b64 exec, -1')


def gather_loads(area):
    return [(f's_add_u32 {s(99)}, {s(sSt)}, {area:#x}', None),
            (f'buffer_load_dwordx2 {v(T + 4, 2)}, {v(vStl)}, {s(R_WS, 4)}, {s(99)} offen{PG}', None),
            (f'buffer_load_dwordx2 {v(T + 6, 2)}, {v(vStl)}, {s(R_WS, 4)}, {s(99)} offen offset:128{PG}', None)]


def retry_until(loads, test):
    test()
    p.begin('RETRY', 's_cbranch_vccz')
    top, done = p.label('rt'), p.label('rdone')
    p(f'{top}:')
    emit([loads])
    p('s_waitcnt vmcnt(0)')
    test()
    spin_tail(top, done)
    p.end()


def gather_finish(area):
    def test():
        p(f'v_add_f32 {v(T)}, {v(T + 4)}, {v(T + 6)}')
        p(f'v_add_f32 {v(T + 1)}, {v(T + 5)}, {v(T + 7)}')
        p(f'v_cmp_u_f32 vcc, {v(T)}, {v(T + 1)}')
    retry_until(gather_loads(area), test)
    reduce_g(T, T + 1)


LOC_Z2 = lambda i: 1024 * i
LOC_Z1 = lambda i: 1024 * (i - 48) if i >= 48 else CT + 1024 * i
LOC_WO = lambda i: 1024 * (i - 48) if i >= 48 else 65536 + 1024 * i


def w_dma_ops(sbase, extra, loc, name):
    ops = []
    for j in range(7):
        for i in range(4):
            o = []
            if i == 0:
                o.append((f's_add_u32 m0, {s(sDm)}, {loc(16 * j):#x}', None))
                o.append((f's_add_u32 {s(sDo)}, {s(sbase)}, {extra + 16384 * j:#x}', None))
            if OPT['nobg'] & 1:
                o.append(('s_nop 0', None))
            else:
                o.append((f'buffer_load_dwordx4 {v(vL16)}, {s(R_WS, 4)}, {s(sDo)} offen offset:{i * 1024} lds', f'{name}{j}'))
            ops.append(o)
    return ops


def emit(groups):
    for g in groups:
        for text, tag in g:
            p(text, tag=tag)


def wsp_dma_ops(batch):
    q, ih = batch >> 1, batch & 1
    ops = []
    for il in range(4):
        for rh in range(2):
            if batch < 2:
                imm, so = 128 * il, 80 + batch
                o = [(f's_add_u32 m0, {s(78 + batch)}, {1024 + 2048 * il + 1024 * rh - imm}', None)]
            else:
                imm, so = 512 * ih + 128 * il, sDo
                o = [(f's_add_u32 m0, {s(sWsp)}, {1024 + 8192 * (batch % 3) + 2048 * il + 1024 * rh - imm}', None)]
                if not ops:
                    o += [(f's_add_u32 {s(sDo)}, {s(sW)}, {q}', None), (f's_and_b32 {s(sDo)}, {s(sDo)}, 3', None),
                          (f's_lshl_b32 {s(sDo)}, {s(sDo)}, 21', None)]
            o.append((f'buffer_load_dwordx4 {v(vWspA + rh)}, {s(R_WSP, 4)}, {s(so)} offen offset:{imm} lds', f'wsp{max(batch, 1)}'))
            ops.append(o)
    return ops


def table_addr(dst, soff):
    p(f'v_add_u32 {v(dst)}, {s(soff)}, {v(vL16)}')
    p(f'v_mov_b32 {v(dst + 1)}, {s(93)}')
    p(f'v_add_co_u32 {v(dst)}, vcc, {s(92)}, {v(dst)}')
    p(f'v_addc_co_u32 {v(dst + 1)}, vcc, 0, {v(dst + 1)}, vcc')


def code_prefetch(bit, lo):
    if not OPT['cpf'] & bit:
        return
    if_layer(0)
    p(f's_lshr_b32 {s(99)}, s2, 3')
    p(f's_lshl_b32 {s(99)}, {s(99)}, 2')
    p(f's_add_u32 {s(99)}, {s(99)}, {s(sW)}')
    p(f's_lshl_b32 {s(99)}, {s(99)}, 7')
    p(f's_sub_u32 {s(98)}, {s(92)}, L_table-{lo}')
    p(f's_subb_u32 {s(97)}, {s(93)}, 0')
    p(f's_add_u32 {s(98)}, {s(98)}, {s(99)}')
    p(f's_addc_u32 {s(97)}, {s(97)}, 0')
    p(f'v_mov_b32 {v(T + 6)}, {s(98)}')
    p(f'v_mov_b32 {v(T + 7)}, {s(97)}')
    p('s_mov_b64 exec, 1')
    p(f'global_load_dword {v(251)}, {v(T + 6, 2)}, off')
    p('s_mov_b64 exec, -1')
    p.end()


def m1_load(dst):
    p(f's_lshl_b32 {s(99)}, {s(sW)}, 11')
    p(f's_add_u32 {s(99)}, {s(99)}, {CT_M1}')
    table_addr(dst, 99)
    for k in range(2):
        p(f'global_load_dwordx4 {v(M1 + 4 * k, 4)}, {v(dst, 2)}, off offset:{1024 * k}')


def ct_dma(dst):
    p(f's_mul_i32 {s(99)}, {s(sW)}, 3584')
    p(f's_add_u32 m0, {s(99)}, {CT}')
    table_addr(dst, 99)
    for off in (0, 1024, 2048):
        p(f'global_load_lds_dwordx4 {v(dst, 2)}, off offset:{off}', tag='ct')
    p('s_mov_b32 exec_hi, 0')
    p(f'global_load_lds_dwordx4 {v(dst, 2)}, off offset:3072', tag='ct')
    p('s_mov_b64 exec, -1')


def wsp_dma(batch):
    p.bg = wsp_dma_ops(batch)
    p.bg_emit()


def wsp_read(batch, reg):
    p.wait_vm(f'wsp{max(batch, 1)}')
    for il in range(4):
        for o in range(2):
            p(f'ds_read_b128 {v(reg + 4 * (2 * il + o), 4)}, {v(vWspR + o)} offset:{8192 * (batch % 3) + 2048 * il}', tag=f'wr{batch}')


def wsp_park(batch):
    q, ih = batch >> 1, batch & 1
    p.wait_vm(f'wsp{max(batch, 1)}')
    for il in range(4):
        for o in range(2):
            p(f'ds_read_b128 {a(64 * q + 32 * o + 4 * (4 * ih + il), 4)}, {v(vWspR + o)} offset:{8192 * (batch % 3) + 2048 * il}', tag=f'wr{batch}')


def wsp_fix(units, reg, every=0):
    if not units:
        return
    if_layer(0)
    p.bg_on(every)
    for u in units:
        base = 32 * int(u)
        for k in range(32):
            p(f'v_accvgpr_read_b32 {v(reg + k)}, {a(base + k)}')
        k = 0
        for ip in range(4):
            for al in range(8):
                t = reg + 32 + (k & 3)
                k += 1
                lo, hi = reg + 8 * ip + (al >> 1), reg + 8 * ip + 4 + (al >> 1)
                p(f'v_perm_b32 {v(t)}, {v(hi)}, {v(lo)}, {s(sSelHi if al & 1 else sSelLo)}')
                p(f'v_accvgpr_write_b32 {a(base + 4 * al + ip)}, {v(t)}')
    p.bg_on(0)
    if every:
        p.bg_emit()
    p.end()


def wsp_perm(batch, reg):
    q, ih = batch >> 1, batch & 1
    k = 0
    for ipl in range(2):
        for o in range(2):
            for al in range(8):
                t = T + (k & 7)
                k += 1
                lo, hi = reg + 4 * (4 * ipl + o) + (al >> 1), reg + 4 * (4 * ipl + 2 + o) + (al >> 1)
                p(f'v_perm_b32 {v(t)}, {v(hi)}, {v(lo)}, {s(sSelHi if al & 1 else sSelLo)}')
                p(f'v_accvgpr_write_b32 {a((q * 16 + 8 * o + al) * 4 + 2 * ih + ipl)}, {v(t)}')


def wring_read(idx, ring, depth, loc, rot=0):
    base, off = (vL16, vL16hi, vL16h2)[loc(idx) >> 16], loc(idx) & 0xffff
    p(f'ds_read_b128 {v(ring + 4 * ((idx + rot) % depth), 4)}, {v(base)} offset:{off}', tag=f'w{idx}')


def gemm_r(acc, nt, ks0, ks1, act, ring, depth, loc, first_c=None, fill=None, preload=True, last=None, rot=0):
    fill = dict(fill or {})
    if OPT['nobg'] & 2 and loc is LOC_Z1:
        emit(fill.values())
        return
    lo, hi = nt * ks0, nt * ks1
    if preload:
        for idx in range(lo, min(lo + depth, last or hi)):
            wring_read(idx, ring, depth, loc)
    for idx in range(lo, hi):
        ks, t = divmod(idx, nt)
        if (idx - lo) % 2 == 0:
            p.wait_lgkm(f'w{min(idx + 1, hi - 1)}')
        c = v(acc + 4 * t, 4) if (ks or first_c) else '0'
        p(f'{M16} {v(acc + 4 * t, 4)}, {v(ring + 4 * ((idx + rot) % depth), 4)}, {v(act(ks) if callable(act) else act + 4 * ks, 4)}, {c}')
        if idx + depth < (last or hi):
            wring_read(idx + depth, ring, depth, loc, rot)
        f = fill.pop(idx, None)
        if callable(f):
            f()
        elif f:
            emit([f])
    assert not fill


def spread(groups, first, step):
    return {first + step * k: g for k, g in enumerate(groups)}


def gelu(x, n, tmp):
    for i in range(0, n, 4):
        t = tmp + (i & 4)
        for k in (0, 2):
            p(f'v_pk_mul_f32 {v(t + k, 2)}, {v(x + i + k, 2)}, {v(x + i + k, 2)}')
        for k in (0, 2):
            p(f'v_pk_fma_f32 {v(t + k, 2)}, {v(t + k, 2)}, {v(vGK, 2)}, {v(vGK, 2)} op_sel:[0,0,1] op_sel_hi:[1,0,1]')
        for k in (0, 2):
            p(f'v_pk_mul_f32 {v(t + k, 2)}, {v(t + k, 2)}, {v(x + i + k, 2)}')
        for k in range(4):
            p(f'v_exp_f32 {v(t + k)}, {v(t + k)}')
        for k in (0, 2):
            p(f'v_pk_add_f32 {v(t + k, 2)}, {v(t + k, 2)}, 1.0 op_sel_hi:[1,0]')
        for k in range(4):
            p(f'v_rcp_f32 {v(t + k)}, {v(t + k)}')
        for k in (0, 2):
            p(f'v_pk_mul_f32 {v(x + i + k, 2)}, {v(t + k, 2)}, {v(x + i + k, 2)}')


vWspA, vWspR = 244, 236
vHw2, vXw, vGrp = 250, 246, 254
vL16hi, vL16h2 = 252, 255
p.section('pro')
p(f'{NAME}:')
p(f's_cmp_ge_u32 s2, 256')
p('s_cbranch_scc1 L_exit')
p(f's_load_dwordx2 {s(72, 2)}, s[0:1], 0')
p(f's_load_dwordx8 {s(76, 8)}, s[0:1], 48')
p(f's_load_dwordx4 {s(84, 4)}, s[0:1], 80')
p(f's_load_dwordx2 {s(88, 2)}, s[0:1], 96')
if OPT['diag']:
    p(f's_memrealtime {s(sStamp, 2)}')
    p('s_waitcnt lgkmcnt(0)')
    p(f's_mov_b32 {s(sPidx)}, {s(sStamp)}')
    p(f's_mov_b32 s101, {s(sStamp)}')
if PROF:
    p(f'{"s_memtime" if PROF == 2 else "s_memrealtime"} {s(sStamp, 2)}')
p(f's_getpc_b64 {s(92, 2)}')
p('L_pc:')
lane, n_, g_, t0, t1, t2, t3, tid = 100, 101, 102, 103, 104, 105, 106, 107
p(f'v_mov_b32 {v(tid)}, v0')
p(f's_lshr_b32 {s(94)}, s2, 3')
p(f's_lshl_b32 {s(94)}, {s(94)}, 4')
p(f'v_lshrrev_b32 {v(T)}, 4, v0')
p(f'v_add_u32 {v(T)}, {s(94)}, {v(T)}')
p(f'v_lshlrev_b32 {v(T)}, 7, {v(T)}')
p(f'v_min_u32 {v(T)}, L_end-L_pc-4, {v(T)}')
p(f'v_mov_b32 {v(T + 3)}, {s(93)}')
p(f'v_add_co_u32 {v(T + 2)}, vcc, {s(92)}, {v(T)}')
p(f'v_addc_co_u32 {v(T + 3)}, vcc, 0, {v(T + 3)}, vcc')
p(f'global_load_dword {v(253)}, {v(T + 2, 2)}, off')
p(f'v_lshrrev_b32 {v(t0)}, 6, v0')
p(f'v_and_b32 {v(lane)}, 63, v0')
p(f'v_readfirstlane_b32 {s(sW)}, {v(t0)}')
p(f'v_and_b32 {v(n_)}, 15, {v(lane)}')
p(f'v_lshrrev_b32 {v(g_)}, 4, {v(lane)}')
p(f'v_lshlrev_b32 {v(vL16)}, 4, {v(lane)}')
p(f's_lshr_b32 {s(94)}, s2, 3')
p(f's_and_b32 {s(sB)}, {s(94)}, 7')
p(f's_and_b32 {s(95)}, s2, 7')
p(f's_lshl_b32 {s(95)}, {s(95)}, 1')
p(f's_lshr_b32 {s(96)}, {s(94)}, 4')
p(f's_add_u32 {s(95)}, {s(95)}, {s(96)}')
p(f's_sub_u32 {s(96)}, 32, {s(95)}')
p(f's_cmp_eq_u32 {s(95)}, 0')
p(f's_cselect_b32 {s(96)}, 16, {s(96)}')
p(f's_bitcmp1_b32 {s(94)}, 3')
p(f's_cselect_b32 {s(sC)}, {s(96)}, {s(95)}')
p(f's_mov_b32 {s(sL)}, 0')
p(f's_mov_b32 {s(sTO)}, 40000')
p(f's_lshl_b32 {s(sB128)}, {s(sB)}, 7')
p(f's_lshl_b32 {s(sB4)}, {s(sB)}, 2')
p(f's_getreg_b32 {s(sLoc)}, hwreg(HW_REG_XCC_ID)')
p(f's_mov_b32 {s(sOnes)}, 0x3f803f80')
p(f's_mov_b32 {s(sSelLo)}, 0x05040100')
p(f's_mov_b32 {s(sSelHi)}, 0x07060302')
p(f's_lshl_b32 {s(94)}, {s(sW)}, 9')
p(f's_add_u32 {s(94)}, {s(94)}, {s(sC)}')
p(f'v_and_b32 {v(t0)}, 28, {v(lane)}')
p(f'v_lshlrev_b32 {v(t0)}, 4, {v(t0)}')
p(f'v_and_b32 {v(t1)}, 32, {v(lane)}')
p(f'v_add3_u32 {v(t0)}, {v(t0)}, {v(t1)}, {s(94)}')
p(f'v_lshlrev_b32 {v(t2)}, 10, {v(t0)}')
p(f'v_and_b32 {v(t1)}, 3, {v(lane)}')
p(f'v_lshl_add_u32 {v(t0)}, {v(t1)}, 5, {v(t2)}')
p(f'v_lshl_add_u32 {v(t2)}, {v(t1)}, 4, {v(t2)}')
p(f'v_and_b32 {v(t3)}, 7, {v(n_)}')
p(f'v_lshlrev_b32 {v(t3)}, 6, {v(t3)}')
p(f'v_and_b32 {v(t1)}, 8, {v(n_)}')
p(f'v_lshlrev_b32 {v(t1)}, 2, {v(t1)}')
p(f'v_add3_u32 {v(t3)}, {v(t3)}, {v(t1)}, {s(94)}')
p(f'v_lshlrev_b32 {v(t3)}, 1, {v(t3)}')
p(f's_lshl_b32 {s(96)}, {s(sC)}, 2')
p(f's_add_u32 {s(96)}, {s(96)}, {s(sW)}')
p(f's_lshl_b32 {s(sSt)}, {s(96)}, 10')
p(f's_add_u32 {s(sSt)}, {s(sSt)}, {STATS:#x}')
p(f's_lshl_b32 {s(96)}, {s(sC)}, 10')
p(f's_add_u32 {s(sS2)}, {s(96)}, {FLAGS + 0x10000:#x}')
p(f's_lshl_b32 {s(96)}, {s(sW)}, 7')
p(f's_add_u32 {s(96)}, {s(96)}, 256')
p(f's_add_u32 {s(sS5)}, {s(96)}, {s(sS2)}')
p(f'v_lshlrev_b32 {v(vStl)}, 3, {v(n_)}')
p(f'v_lshl_add_u32 {v(vStl)}, {v(g_)}, 8, {v(vStl)}')
EI = 64
p(f'v_mov_b32 {v(EI)}, -1')
p(f'v_mov_b32 {v(EI + 1)}, -1')
p(f'v_mov_b32 {v(EI + 2)}, {s(sLoc)}')
p(f'v_mov_b32 {v(EI + 3)}, 0')
p(f'v_and_b32 {v(EI + 4)}, 16, {v(vL16)}')
p(f'v_lshlrev_b32 {v(EI + 4)}, 13, {v(EI + 4)}')
p(f'v_and_b32 {v(EI + 5)}, 0x60, {v(vL16)}')
p(f'v_or_b32 {v(EI + 4)}, {v(EI + 4)}, {v(EI + 5)}')
p('s_waitcnt lgkmcnt(0)')
if PROF:
    p(f'v_mov_b32 {v(vProf)}, 0')
    p(f'v_writelane_b32 {v(vProf)}, {s(sStamp)}, 0')
    p(f's_mov_b32 {s(sPidx)}, 1')
    STAMPS.append('entry')
stamp('karg')
srd(R_X, 72, 73, 2097152)
srd(R_WS, 88, 89, LBASE)
XR = 120


def x_loads(i0, i1):
    for i in range(i0, i1):
        if i == 0:
            p(f'buffer_load_dwordx4 {v(XR, 4)}, {v(t0)}, {s(R_X, 4)}, {s(sB128)} offen')
            p(f'buffer_load_dwordx4 {v(XR + 4, 4)}, {v(t0)}, {s(R_X, 4)}, {s(sB128)} offen offset:16')
            continue
        p(f's_add_u32 {s(99)}, {s(sB128)}, {128 * i}')
        p(f's_and_b32 {s(99)}, {s(99)}, 0x3ff')
        p(f'buffer_load_dwordx4 {v(XR + 8 * i, 4)}, {v(t2)}, {s(R_X, 4)}, {s(99)} offen')
        p(f'buffer_load_dwordx4 {v(XR + 8 * i + 4, 4)}, {v(t2)}, {s(R_X, 4)}, {s(99)} offen offset:64')


x_loads(0, OPT['x1'])
p(f's_lshl_b32 {s(96)}, s2, 2')
p(f's_add_u32 {s(sG0)}, {s(96)}, {s(sW)}')
p(f's_cmp_eq_u32 {s(sG0)}, 3')
p.begin('G0', 's_cbranch_scc0')
p(f'v_lshlrev_b32 {v(T)}, 4, {v(vL16)}')
for k in range(2):
    p(f's_mov_b32 {s(94)}, {FLAGS + 0x4000 * k:#x}')
    p(f'buffer_store_dword {v(EI + 3)}, {v(T)}, {s(R_WS, 4)}, {s(94)} offen sc1', tag='z')
p.end()
p('s_mov_b64 exec, 0xffff')
for k in range(3):
    p(f's_add_u32 {s(96)}, {s(sSt)}, {s(sB128)}')
    p(f's_add_u32 {s(96)}, {s(96)}, {k * 0x20000:#x}')
    p(f'buffer_store_dwordx2 {v(EI, 2)}, {v(vStl)}, {s(R_WS, 4)}, {s(96)} offen sc1', tag='pub')
p('s_mov_b64 exec, 0xff')
p(f's_add_u32 {s(97)}, {s(sS5)}, {s(sB4)}')
p(f'buffer_store_dword {v(EI + 3)}, {v(EI + 4)}, {s(R_WS, 4)}, {s(97)} offen sc1', tag='pub')
if_wave0()
p('s_mov_b64 exec, 1')
p(f's_add_u32 {s(96)}, {s(sS2)}, {s(sB4)}')
p(f'buffer_store_dword {v(EI + 2)}, off, {s(R_WS, 4)}, {s(96)} offset:128 sc1', tag='pub')
p('s_mov_b64 exec, 3')
p(f'buffer_store_dword {v(EI + 3)}, {v(EI + 4)}, {s(R_WS, 4)}, {s(96)} offen sc1', tag='pub')
p(f's_lshl_b32 {s(96)}, s2, 8')
p(f's_add_u32 {s(96)}, {s(96)}, {FLAGS:#x}')
p('s_cmp_lt_u32 s2, 128')
p('s_cselect_b32 exec_lo, 2, 3')
p(f'buffer_store_dword {v(EI + 3)}, {v(EI + 4)}, {s(R_WS, 4)}, {s(96)} offen sc1', tag='pub')
p.end()
p('s_mov_b64 exec, -1')
srd(R_WIN, 76, 77, 512 * 3584)
srd(R_WSP, 78, 79, 2048 * 4096)
srd(R_BSP, 80, 81, 4096)
srd(R_WOUT, 82, 83, 896 * 1024)
srd(R_OUT, 84, 85, 2097152)
srd(R_DBG, 86, 87, 256)
p(f's_add_u32 {s(88)}, {s(88)}, {LBASE:#x}')
p(f's_addc_u32 {s(89)}, {s(89)}, 0')
srd(R_WL, 88, 89, 2 * LSTRIDE)
if OPT['tlb']:
    p(f'v_lshlrev_b32 {v(T)}, 21, {v(n_)}')
    p(f'buffer_load_dword {v(240)}, {v(T)}, {s(R_WL, 4)}, 0 offen sc1')
    p(f'buffer_load_dword {v(239)}, {v(T)}, {s(R_WS, 4)}, 0 offen sc1')
    p(f'buffer_load_dword {v(238)}, off, {s(R_OUT, 4)}, 0 sc1')
stamp('start')
vPi, vPo, vPri, vPro, PK = 112, 114, 242, 243, 224
PST = SCR + 12288
p(f's_add_u32 {s(92)}, {s(92)}, L_table-L_pc')
p(f's_addc_u32 {s(93)}, {s(93)}, 0')
for k in range(2):
    p(f'v_add_u32 {v(T)}, {256 * k}, {v(tid)}')
    p(f'v_mul_u32_u24 {v(T + 1)}, 4682, {v(T)}')
    p(f'v_lshrrev_b32 {v(T + 1)}, 16, {v(T + 1)}')
    p(f'v_mul_u32_u24 {v(T + 2)}, 14, {v(T + 1)}')
    p(f'v_sub_u32 {v(T)}, {v(T)}, {v(T + 2)}')
    p(f'v_and_b32 {v(T + 2)}, 0x38, {v(T + 1)}')
    p(f'v_add_u32 {v(T + 1)}, {v(T + 1)}, {v(T + 2)}')
    p(f'v_mul_u32_u24 {v(T + 1)}, 3584, {v(T + 1)}')
    p(f'v_lshl_add_u32 {v(vPi + k)}, {v(T)}, 4, {v(T + 1)}')
p(f's_and_b32 {s(94)}, {s(sC)}, 7')
p(f's_lshl_b32 {s(94)}, {s(94)}, 6')
p(f's_and_b32 {s(95)}, {s(sC)}, 8')
p(f's_add_u32 {s(94)}, {s(94)}, {s(95)}')
p(f's_mul_i32 {s(94)}, {s(94)}, 3584')
p(f's_lshr_b32 {s(95)}, {s(sC)}, 4')
p(f's_mul_i32 {s(95)}, {s(95)}, 1792')
p(f's_add_u32 {s(94)}, {s(94)}, {s(95)}')
p(f's_mul_i32 {s(95)}, {s(sB)}, 224')
p(f's_add_u32 {s(76)}, {s(94)}, {s(95)}')
p(f'v_lshrrev_b32 {v(T)}, 3, {v(lane)}')
p(f'v_and_b32 {v(T + 1)}, 0x70, {v(vL16)}')
p(f'v_lshl_add_u32 {v(vPo)}, {v(T)}, 10, {v(T + 1)}')
p(f's_and_b32 {s(94)}, {s(sC)}, 7')
p(f's_mul_i32 {s(94)}, {s(94)}, 112')
p(f's_lshr_b32 {s(95)}, {s(sC)}, 3')
p(f's_lshl_b32 {s(95)}, {s(95)}, 5')
p(f's_add_u32 {s(94)}, {s(94)}, {s(95)}')
p(f's_sub_u32 {s(95)}, {s(sC)}, 24')
p(f's_mul_i32 {s(95)}, {s(95)}, 224')
p(f's_add_u32 {s(95)}, {s(95)}, 96')
p(f's_cmp_lt_u32 {s(sC)}, 24')
p(f's_cselect_b32 {s(94)}, {s(94)}, {s(95)}')
p(f's_cselect_b32 {s(95)}, 16, 112')
p(f's_lshr_b32 {s(96)}, {s(sW)}, 1')
p(f's_mul_i32 {s(95)}, {s(95)}, {s(96)}')
p(f's_add_u32 {s(94)}, {s(94)}, {s(95)}')
p(f's_and_b32 {s(95)}, {s(sW)}, 1')
p(f's_lshl_b32 {s(95)}, {s(95)}, 3')
p(f's_add_u32 {s(94)}, {s(94)}, {s(95)}')
p(f's_lshl_b32 {s(94)}, {s(94)}, 10')
p(f's_add_u32 {s(77)}, {s(94)}, {s(sB128)}')
p(f'v_lshrrev_b32 {v(T)}, 2, {v(n_)}')
p(f'v_lshl_add_u32 {v(T)}, {v(g_)}, 3, {v(T)}')
p(f'v_mul_u32_u24 {v(T)}, 224, {v(T)}')
p(f'v_and_b32 {v(T + 1)}, 3, {v(lane)}')
p(f'v_lshl_add_u32 {v(T)}, {v(T + 1)}, 3, {v(T)}')
p(f's_lshl_b32 {s(94)}, {s(sW)}, 5')
p(f's_add_u32 {s(94)}, {s(94)}, {PST}')
p(f'v_add_u32 {v(vPri)}, {s(94)}, {v(T)}')
p(f's_lshl_b32 {s(94)}, {s(sW)}, 3')
p(f's_add_u32 {s(94)}, {s(94)}, {PST + 8192}')
p(f'v_lshl_add_u32 {v(vPro)}, {v(lane)}, 5, {s(94)}')
p(f'v_lshrrev_b32 {v(T)}, 3, {v(lane)}')
p(f'v_lshlrev_b32 {v(T)}, 18, {v(T)}')
p(f'v_and_b32 {v(T + 1)}, 7, {v(lane)}')
p(f'v_xor_b32 {v(T + 1)}, {v(T + 1)}, {v(g_)}')
p(f'v_lshl_add_u32 {v(T)}, {v(T + 1)}, 4, {v(T)}')
p(f's_lshl_b32 {s(94)}, {s(sC)}, 12')
p(f's_add_u32 {s(100)}, {s(sW)}, {s(sB)}')
p(f's_and_b32 {s(100)}, {s(100)}, 3')
p(f's_lshl_b32 {s(95)}, {s(100)}, 10')
p(f's_add_u32 {s(94)}, {s(94)}, {s(95)}')
p(f'v_add_u32 {v(vWspA)}, {s(94)}, {v(T)}')
p(f'v_xor_b32 {v(T)}, 64, {v(vWspA)}')
p(f'v_add_u32 {v(vWspA + 1)}, 0x20000, {v(T)}')
p(f's_mul_i32 {s(sWsp)}, {s(sW)}, 24576')
p(f'v_lshrrev_b32 {v(T)}, 1, {v(n_)}')
p(f'v_xor_b32 {v(T)}, {v(T)}, {v(g_)}')
p(f'v_lshlrev_b32 {v(T)}, 4, {v(T)}')
p(f'v_lshl_add_u32 {v(T)}, {v(n_)}, 7, {v(T)}')
p(f's_add_u32 {s(94)}, {s(sWsp)}, 1024')
p(f'v_add_u32 {v(vWspR)}, {s(94)}, {v(T)}')
p(f'v_xor_b32 {v(vWspR + 1)}, 64, {v(vWspR)}')
p(f's_lshr_b32 {s(94)}, {s(sB)}, 2')
p(f's_lshl_b32 {s(95)}, {s(sW)}, 21')
for k in range(2):
    p(f's_lshl_b32 {s(96)}, {s(94)}, 13')
    p(f's_add_u32 {s(78 + k)}, {s(96)}, {s(sWsp)}')
    p(f's_lshl_b32 {s(96)}, {s(94)}, 9')
    p(f's_add_u32 {s(80 + k)}, {s(96)}, {s(95)}')
    p(f's_xor_b32 {s(94)}, {s(94)}, 1')
p(f's_lshl_b32 {s(82)}, {s(sW)}, 10')
prep = [[(f's_add_u32 m0, {s(82)}, {PST}', None), (f'buffer_load_dwordx4 {v(vPi)}, {s(R_WIN, 4)}, {s(76)} offen lds', 'prep')],
        [(f's_add_u32 m0, {s(82)}, {PST + 4096}', None), (f'buffer_load_dwordx4 {v(vPi + 1)}, {s(R_WIN, 4)}, {s(76)} offen lds', 'prep')],
        [(f's_add_u32 m0, {s(82)}, {PST + 8192}', None), (f'buffer_load_dwordx4 {v(vPo)}, {s(R_WOUT, 4)}, {s(77)} offen lds', 'prep')],
        [(f'buffer_load_ushort {v(vBsp)}, {v(t3)}, {s(R_BSP, 4)}, 0 offen', None)]]
wsp_first = wsp_dma_ops(0)
if OPT['early'] & 1:
    emit(prep)
    prep = []
emit(wsp_first[:OPT['early'] >> 1])
wsp_first = wsp_first[OPT['early'] >> 1:]
p(f's_mul_i32 {s(94)}, {s(sB)}, 229376')
p(f's_mul_i32 {s(95)}, {s(sC)}, 7168')
p(f's_add_u32 {s(94)}, {s(94)}, {s(95)}')
p(f's_lshl_b32 {s(95)}, {s(sW)}, 10')
p(f's_add_u32 {s(94)}, {s(94)}, {s(95)}')
p(f's_mov_b32 {s(83)}, {s(94)}')
p(f's_add_u32 {s(94)}, {s(94)}, 4096')
p(f's_cmp_lt_u32 {s(sW)}, 3')
p(f's_cselect_b32 {s(94)}, {s(94)}, {LBASE:#x}')
p(f's_mov_b32 {s(84)}, {s(94)}')
p(f's_mul_i32 {s(94)}, {s(sB)}, 114688')
p(f's_lshl_b32 {s(96)}, {s(sC)}, 12')
p(f's_add_u32 {s(94)}, {s(94)}, {s(96)}')
p(f's_add_u32 {s(94)}, {s(94)}, {s(95)}')
p(f's_add_u32 {s(94)}, {s(94)}, {WO:#x}')
p(f's_cmp_lt_u32 {s(sC)}, 28')
p(f's_cselect_b32 {s(94)}, {s(94)}, {LBASE:#x}')
p(f's_mov_b32 {s(85)}, {s(94)}')
p(f's_lshr_b32 {s(94)}, {s(sB)}, 2')
p(f's_and_b32 {s(95)}, {s(sB)}, 3')
p(f's_lshl_b32 {s(sVst)}, {s(sC)}, 11')
p(f's_lshl_b32 {s(96)}, {s(sB)}, 8')
p(f's_add_u32 {s(sVst)}, {s(sVst)}, {s(96)}')
p(f's_sub_u32 {s(96)}, 32, {s(sC)}')
p(f's_and_b32 {s(96)}, {s(96)}, 31')
p(f's_cmp_eq_u32 {s(94)}, 0')
p(f's_cselect_b32 {s(96)}, {s(sC)}, {s(96)}')
p(f's_lshl_b32 {s(sVld)}, {s(96)}, 16')
p(f's_lshl_b32 {s(sH)}, {s(sC)}, 16')
p(f's_lshl_b32 {s(96)}, {s(95)}, 14')
p(f's_lshl_b32 {s(97)}, {s(94)}, 7')
p(f's_add_u32 {s(96)}, {s(96)}, {s(97)}')
p(f's_add_u32 {s(sK2)}, {s(sH)}, {s(96)}')
p(f's_lshl_b32 {s(96)}, {s(sW)}, 14')
p(f's_add_u32 {s(sH)}, {s(sH)}, {s(96)}')
p(f's_mov_b32 {s(sXb)}, 0')
p(f's_mov_b32 {s(sXo)}, 0x10000')
p(f's_lshl_b32 {s(96)}, {s(sB)}, 2')
p(f's_add_u32 {s(96)}, {s(96)}, {s(sW)}')
p(f's_mul_i32 {s(sZld)}, {s(96)}, 114688')
p(f's_add_u32 {s(sZld)}, {s(sZld)}, {Z_:#x}')
p(f's_and_b32 {s(96)}, {s(sC)}, 7')
p(f's_lshl_b32 {s(96)}, {s(96)}, 10')
p(f's_lshr_b32 {s(97)}, {s(sC)}, 3')
p(f's_lshl_b32 {s(97)}, {s(97)}, 8')
p(f's_add_u32 {s(96)}, {s(96)}, {s(97)}')
p(f's_add_u32 {s(sZst)}, {s(sZld)}, {s(96)}')
p(f's_lshl_b32 {s(96)}, {s(sB)}, 2')
p(f's_add_u32 {s(96)}, {s(96)}, {s(100)}')
p(f's_mul_i32 {s(sZld)}, {s(96)}, 114688')
p(f's_add_u32 {s(sZld)}, {s(sZld)}, {Z_:#x}')
p(f's_lshl_b32 {s(96)}, {s(sC)}, 2')
p(f's_add_u32 {s(96)}, {s(96)}, {s(sW)}')
p(f's_lshl_b32 {s(sUld)}, {s(96)}, 14')
p(f's_add_u32 {s(sUld)}, {s(sUld)}, {H_ if OPT["locd"] & 4 else U_:#x}')
p(f's_lshl_b32 {s(97)}, {s(sB)}, 10')
p(f's_add_u32 {s(sUst)}, {s(sUld)}, {s(97)}')
p(f's_lshl_b32 {s(sDm)}, {s(sW)}, 12')
p(f's_mul_i32 {s(sWI)}, {s(sB)}, 229376')
p(f's_add_u32 {s(sWI)}, {s(sWI)}, {s(sDm)}')
p(f's_mul_i32 {s(sWO)}, {s(sB)}, 114688')
p(f's_add_u32 {s(sWO)}, {s(sWO)}, {s(sDm)}')
p(f's_add_u32 {s(sWO)}, {s(sWO)}, {WO:#x}')
p(f's_and_b32 {s(96)}, s2, 15')
p(f's_lshl_b32 {s(96)}, {s(96)}, 8')
p(f's_add_u32 {s(sArr)}, {s(96)}, {FLAGS:#x}')
p(f's_and_b32 {s(96)}, s2, 7')
p(f's_lshl_b32 {s(96)}, {s(96)}, 12')
p(f's_add_u32 {s(sRep)}, {s(96)}, {FLAGS:#x}')
p(f's_lshl_b32 {s(97)}, {s(sB)}, 9')
p(f's_add_u32 {s(97)}, {s(97)}, {FLAGS + 0x8000:#x}')
p(f's_add_u32 {s(sP4)}, {s(96)}, {s(97)}')
p(f's_mov_b32 {s(sS4)}, {s(97)}')
p(f's_mov_b32 {s(sLocH)}, 0')
p(f'v_lshlrev_b32 {v(vL8)}, 3, {v(lane)}')
p(f'v_add_u32 {v(vL16hi)}, 0x10000, {v(vL16)}')
p(f'v_add_u32 {v(vL16h2)}, 0x20000, {v(vL16)}')
p(f'v_lshlrev_b32 {v(vPoll)}, 8, {v(n_)}')
p(f'v_and_b32 {v(vArr)}, 7, {v(lane)}')
p(f'v_lshlrev_b32 {v(vGrp)}, 2, {v(vArr)}')
p(f'v_lshlrev_b32 {v(vArr)}, 12, {v(vArr)}')
p(f'v_mov_b32 {v(vGK)}, {f2u(-2.302208198144325 * 0.044715):#x}')
p(f'v_mov_b32 {v(vGK + 1)}, {f2u(-2.302208198144325):#x}')
p(f'v_lshrrev_b32 {v(T)}, 3, {v(lane)}')
p(f'v_and_b32 {v(T + 4)}, 7, {v(lane)}')
p(f'v_lshlrev_b32 {v(T + 4)}, 4, {v(T + 4)}')
p(f'v_lshl_add_u32 {v(T + 2)}, {v(T)}, 8, {v(T + 4)}')
p(f's_lshl_b32 {s(96)}, {s(sW)}, 12')
p(f'v_add_u32 {v(vK2)}, {s(96)}, {v(T + 2)}')
p(f'v_and_b32 {v(T)}, 1, {v(T)}')
p(f'v_lshl_add_u32 {v(T)}, {v(T)}, 4, {v(g_)}')
p(f'v_mul_u32_u24 {v(T)}, 144, {v(T)}')
p(f's_lshr_b32 {s(96)}, {s(sW)}, 1')
p(f's_mul_i32 {s(96)}, {s(96)}, 4608')
p(f's_and_b32 {s(97)}, {s(sW)}, 1')
p(f's_mul_i32 {s(97)}, {s(97)}, 1152')
p(f's_add_u32 {s(96)}, {s(96)}, {s(97)}')
p(f's_add_u32 {s(96)}, {s(96)}, {SCR}')
p(f'v_add3_u32 {v(vTr)}, {v(T)}, {v(T + 4)}, {s(96)}')
p(f'v_lshrrev_b32 {v(T)}, 5, {v(lane)}')
p(f'v_and_b32 {v(T + 1)}, 1, {v(g_)}')
p(f'v_lshl_add_u32 {v(T + 2)}, {v(T)}, 4, {v(n_)}')
p(f'v_mul_u32_u24 {v(T + 2)}, 144, {v(T + 2)}')
p(f'v_lshl_add_u32 {v(T + 2)}, {v(T + 1)}, 4, {v(T + 2)}')
p(f's_lshl_b32 {s(96)}, {s(sW)}, 5')
p(f's_add_u32 {s(97)}, {s(96)}, {SCR}')
p(f'v_add_u32 {v(vTw)}, {s(97)}, {v(T + 2)}')
p(f'v_and_b32 {v(T + 2)}, 1, {v(lane)}')
p(f'v_lshlrev_b32 {v(T + 2)}, 5, {v(T + 2)}')
p(f'v_and_b32 {v(T + 3)}, 2, {v(lane)}')
p(f'v_lshl_add_u32 {v(T + 2)}, {v(T + 3)}, 3, {v(T + 2)}')
p(f'v_lshrrev_b32 {v(T + 3)}, 2, {v(lane)}')
p(f'v_add_u32 {v(T + 2)}, {v(T + 2)}, {v(T + 3)}')
p(f'v_mul_u32_u24 {v(T + 2)}, 144, {v(T + 2)}')
p(f'v_add_u32 {v(vXw)}, {s(97)}, {v(T + 2)}')
p(f'v_add_u32 {v(vXw + 1)}, 16, {v(vXw)}')
p(f's_lshl_b32 {s(96)}, {s(95)}, 4')
p(f's_add_u32 {s(96)}, {s(96)}, {s(94)}')
p(f's_lshl_b32 {s(96)}, {s(96)}, 5')
p(f's_add_u32 {s(98)}, {s(96)}, {s(sC)}')
p(f's_lshl_b32 {s(96)}, {s(sW)}, 7')
p(f's_add_u32 {s(96)}, {s(96)}, {s(98)}')
p(f's_lshl_b32 {s(96)}, {s(96)}, 10')
p(f'v_add_u32 {v(vXr)}, {s(96)}, {v(vL16)}')
p(f'v_mul_u32_u24 {v(T + 3)}, 1040, {v(T + 1)}')
p(f'v_lshl_add_u32 {v(T + 3)}, {v(T)}, 8, {v(T + 3)}')
p(f'v_lshl_add_u32 {v(T + 3)}, {v(n_)}, 3, {v(T + 3)}')
p(f's_mul_i32 {s(96)}, {s(sW)}, 2080')
p(f's_add_u32 {s(96)}, {s(96)}, {SCR}')
p(f'v_add_u32 {v(vUr)}, {s(96)}, {v(T + 3)}')
p(f'v_mul_u32_u24 {v(T + 3)}, 1040, {v(n_)}')
p(f'v_lshl_add_u32 {v(T + 3)}, {v(g_)}, 5, {v(T + 3)}')
p(f's_lshl_b32 {s(96)}, {s(sW)}, 8')
p(f's_add_u32 {s(96)}, {s(96)}, {SCR}')
p(f'v_add_u32 {v(vUw)}, {s(96)}, {v(T + 3)}')
p(f'v_lshlrev_b32 {v(T + 3)}, 14, {v(T + 1)}')
p(f'v_lshl_add_u32 {v(T + 3)}, {v(T)}, 13, {v(T + 3)}')
p(f'v_lshl_add_u32 {v(vZst)}, {v(n_)}, 4, {v(T + 3)}')
p(f'v_lshlrev_b32 {v(T + 3)}, 13, {v(g_)}')
p(f'v_lshl_add_u32 {v(T + 3)}, {v(n_)}, 4, {v(T + 3)}')
p(f's_lshl_b32 {s(96)}, {s(sW)}, 9')
p(f'v_add_u32 {v(vVld)}, {s(96)}, {v(T + 3)}')
p(f'v_lshlrev_b32 {v(T + 3)}, 17, {v(g_)}')
p(f'v_lshl_add_u32 {v(T + 3)}, {v(n_)}, 4, {v(T + 3)}')
p(f's_lshl_b32 {s(96)}, {s(sW)}, 19')
p(f'v_add_u32 {v(vVst)}, {s(96)}, {v(T + 3)}')
p(f'v_mul_u32_u24 {v(T + 3)}, 160, {v(n_)}')
p(f'v_lshl_add_u32 {v(T + 3)}, {v(g_)}, 3, {v(T + 3)}')
p(f's_mul_i32 {s(96)}, {s(sW)}, 2560')
p(f's_add_u32 {s(96)}, {s(96)}, {SCR}')
p(f'v_add_u32 {v(vHw2)}, {s(96)}, {v(T + 3)}')
p(f'v_lshrrev_b32 {v(T + 3)}, 2, {v(lane)}')
p(f'v_mul_u32_u24 {v(T + 3)}, 160, {v(T + 3)}')
p(f'v_and_b32 {v(T + 2)}, 3, {v(lane)}')
p(f'v_lshl_add_u32 {v(T + 3)}, {v(T + 2)}, 3, {v(T + 3)}')
p(f'v_add_u32 {v(vHw)}, {s(96)}, {v(T + 3)}')
p(f'v_add_u32 {v(vHr)}, {SCR}, {v(T + 3)}')
for q in range(1, 5):
    p(f's_add_u32 {s(96)}, {s(sW)}, {q}')
    p(f's_and_b32 {s(96)}, {s(96)}, 3')
    p(f's_mul_i32 {s(96)}, {s(96)}, 3072')
    p(f's_add_u32 {s(96)}, {s(96)}, {SCR + (1024 * (q - 1) if q < 4 else 0)}')
    p(f'v_add_u32 {v(vRed + q - 1)}, {s(96)}, {v(vL16)}')
p(f'v_and_b32 {v(T)}, 7, {v(n_)}')
p(f'v_lshlrev_b32 {v(T)}, 6, {v(T)}')
p(f'v_add_u32 {v(T)}, {s(98)}, {v(T)}')
p(f'v_lshlrev_b32 {v(T + 1)}, 2, {v(g_)}')
p(f'v_mul_u32_u24 {v(T + 1)}, {v(T + 1)}, {v(T)}')
p(f'v_lshrrev_b32 {v(T + 2)}, 3, {v(n_)}')
p(f'v_lshl_add_u32 {v(T + 1)}, {v(T + 2)}, 9, {v(T + 1)}')
p(f's_cmp_eq_u32 {s(94)}, 0')
p(f's_cselect_b32 {s(73)}, 1.0, -1.0')
p(f's_cselect_b32 {s(74)}, 0, 1.0')
p(f's_cselect_b32 {s(72)}, 1.0, 0')
p(f's_cmp_eq_u32 {s(sC)}, 0')
p(f's_cselect_b32 {s(72)}, {s(72)}, 1.0')
p(f's_cselect_b32 {s(73)}, 0, {s(73)}')
p(f's_cselect_b32 {s(74)}, {s(74)}, 0')
for k in range(8):
    cp = 16 * (k >> 2) + (k & 3)
    p(f'v_mad_u32_u24 {v(T + 2)}, {v(T)}, {cp}, {v(T + 1)}')
    p(f'v_and_b32 {v(T + 2)}, 0x7ff, {v(T + 2)}')
    p(f'v_cvt_f32_u32 {v(T + 2)}, {v(T + 2)}')
    p(f'v_mul_f32 {v(T + 2)}, {f2u(1.0 / 2048):#x}, {v(T + 2)}')
    p(f'v_cos_f32 {v(T + 3)}, {v(T + 2)}')
    p(f'v_sin_f32 {v(T + 4)}, {v(T + 2)}')
    p(f'v_mul_f32 {v(T + 5)}, {s(74)}, {v(T + 3)}')
    p(f'v_mul_f32 {v(T + 3)}, {s(72)}, {v(T + 3)}')
    p(f'v_fma_f32 {v(T + 4)}, {s(73)}, {v(T + 4)}, {v(T + 5)}')
    p(f'v_cvt_pk_bf16_f32 {v(vC2 + k)}, {v(T + 3)}, {v(T + 4)}')
stamp('setup')
if OPT['wfirst'] == 1:
    emit(wsp_first)
    wsp_first = []
for i in range(OPT['x1'], 8):
    if OPT['wfirst'] == 2 and wsp_first:
        emit([wsp_first.pop(0)])
    x_loads(i, i + 1)
m1_load(108)
if OPT['ctpos'] == 0:
    ct_dma(110)
SCHED = OPT['sched'].split('/')
FIX = OPT['fix'].split('/')
WSR = (160, 192)
a2a_load = [(f'buffer_load_dword {v(241)}, {v(vPoll)}, {s(R_WS, 4)}, {s(sRep)} offen sc1', None)]


def wsp_run(items):
    i = 0
    while i < len(items):
        if items[i] == 'q':
            if_wave0()
            emit([a2a_load])
            p.end()
            i += 1
            continue
        k = int(items[i + 1])
        if items[i] == 'd':
            p.wait_lgkm(f'wr{k - 3}')
            wsp_dma(k)
        elif items[i] == 'r':
            wsp_read(k, WSR[k & 1])
        elif items[i] == 'a':
            wsp_park(k)
        else:
            wsp_perm(k, WSR[k & 1])
        if OPT['fine'] == 2:
            stamp('*' + items[i:i + 2])
        i += 2


bg = prep + wsp_first
for ch in SCHED[0]:
    bg += wsp_dma_ops(int(ch))
for k in range(4):
    p(f'v_mov_b32 {v(T + 2 + k)}, 0')
p.bg = bg
p.bg_on(OPT['wspev'])
for i in range(64):
    p(f'v_dot2c_f32_bf16 {v(T + 2 + (i & 1))}, {s(sOnes)}, {v(XR + i)}')
    p(f'v_dot2c_f32_bf16 {v(T + 4 + (i & 1))}, {v(XR + i)}, {v(XR + i)}')
    if i == 7:
        unpack(XR, 8, XV)
    if i == OPT['ann']:
        p.bg_on(0)
        p(f's_cmp_eq_u32 {s(sG0)}, 3')
        p.begin('G0', 's_cbranch_scc0')
        p.wait_vm('z')
        p(f'v_mov_b32 {v(EI)}, 1')
        p('s_mov_b64 exec, 1')
        p(f'buffer_store_dword {v(EI)}, off, {s(R_DBG, 4)}, 0 sc1')
        p('s_mov_b64 exec, -1')
        p.end()
        p.bg_on(OPT['wspev'])
p.bg_on(0)
p.bg_emit()
p(f'v_add_f32 {v(T)}, {v(T + 2)}, {v(T + 3)}')
p(f'v_add_f32 {v(T + 1)}, {v(T + 4)}, {v(T + 5)}')
for qp in ('[1,0,3,2]', '[2,3,0,1]'):
    for k in range(2):
        p(f'v_add_f32_dpp {v(T + k)}, {v(T + k)}, {v(T + k)} quad_perm:{qp} row_mask:0xf bank_mask:0xf')
dbg_load = [(f'buffer_load_dword {v(241)}, off, {s(R_DBG, 4)}, 0 sc1', None)]
assert not SCHED[1]
wsp_run(SCHED[1])

p.section('body')
p('L_layer:')
stamp('T')
HP, AF, D1, VO = 56, 72, 104, 56
finish_stats(T, 512)
for i in range(0, 16, 2):
    p(f'v_pk_fma_f32 {v(XV + i, 2)}, {v(XV + i, 2)}, {v(T, 2)}, {v(T, 2)} op_sel:[0,0,1] op_sel_hi:[1,0,1]')
for t in range(4):
    for k in range(2):
        p(f'v_cvt_pk_bf16_f32 {v(HP + 2 * t + k)}, {v(XV + 8 * k + t)}, {v(XV + 8 * k + 4 + t)}')
    p(f'ds_write_b64 {v(vHw)}, {v(HP + 2 * t, 2)} offset:{32 * t}', tag='hw')
p(f's_add_u32 {s(sT + 1)}, {s(sVst)}, 0x10000')
p.wait_lgkm('hw')
p.wait_vm('prep')
p('s_barrier')
for ks in range(2):
    for tile in range(4):
        for half in range(2):
            p(f'ds_read_b64_tr_b16 {v(AF + 16 * ks + 4 * tile + 2 * half, 2)}, {v(vHr)} offset:{(32 * ks + 16 * half) * 160 + 32 * tile}')
if_layer(0)
for k in range(2):
    for half in range(2):
        p(f'ds_read_b64_tr_b16 {v(PK + 4 * k + 2 * half, 2)}, {v(vPri)} offset:{128 * k + 896 * half}')
for half in range(2):
    p(f'ds_read_b64_tr_b16 {v(PK + 8 + 2 * half, 2)}, {v(vPro)} offset:{2048 * half}')
p.end()
for ks in range(2):
    for tile in range(4):
        d = D1 + 4 * tile
        p(f'{M16} {v(d, 4)}, {v(M1 + 4 * ks, 4)}, {v(AF + 16 * ks + 4 * tile, 4)}, {v(d, 4) if ks else 0}')
if_layer(0)
p(f'v_lshlrev_b32 {v(vBsp)}, 16, {v(vBsp)}')
p(f'buffer_store_dwordx4 {v(PK, 4)}, {v(vL16)}, {s(R_WS, 4)}, {s(83)} offen sc1', tag='pub')
p(f'buffer_store_dwordx4 {v(PK + 4, 4)}, {v(vL16)}, {s(R_WS, 4)}, {s(84)} offen sc1', tag='pub')
p(f'buffer_store_dwordx4 {v(PK + 8, 4)}, {v(vL16)}, {s(R_WS, 4)}, {s(85)} offen sc1', tag='pub')
p.end()
for jj in range(2):
    for t in range(4):
        p(f'v_cvt_pk_bf16_f32 {v(VO + 4 * jj + t)}, {v(D1 + 4 * t + 2 * jj)}, {v(D1 + 4 * t + 2 * jj + 1)}')
    p(f'buffer_store_dwordx4 {v(VO + 4 * jj, 4)}, {v(vVst)}, {s(R_WL, 4)}, {s(sT + 1 if jj else sVst)} offen sc1', tag='pub')
stamp('Vst')
if_layer(0)
if_wave0()
emit([dbg_load])
p.end()
wsp_run(SCHED[2])
if_wave0()
retry_until(dbg_load, lambda: p(f'v_cmp_ne_u32 vcc, 1, {v(241)}'))
p.end()
p.end()
wz2 = w_dma_ops(sWI, 114688, LOC_Z2, 'wz2')
P1, P2, P3 = OPT['wzp1'], OPT['wzp1'] + OPT['wzp2'], OPT['wzp1'] + OPT['wzp2'] + OPT['wzp3']
assert P1 == 0
if_layer(1)
ct_dma(T + 6)
emit(wz2[P1:P2])
p.end()
stamp('init')
p.wait_vm('pub')
p.wait_vm('ct')
arrive(sArr, 8)
code_prefetch(1, 'L_k2')
stamp('arr1')
FA, TW, FB, VR, D2, UP, XRES, Y = 40, 64, 80, 96, 160, 192, 224, 208
for k in range(14):
    p(f'ds_read_b128 {v(FA + 4 * k, 4)}, {v(vL16hi)} offset:{CT - 65536 + k * 1024}')
if_layer(0)
wsp_run(SCHED[3])
if_wave0()
retry_until(a2a_load, lambda: p(f'v_cmp_ne_u32 vcc, 16, {v(241)}'))
p.end()
p('s_barrier')
p.end()
for k in range(4):
    p(f's_add_u32 {s(sT + 4 + k)}, {s(sVld)}, {(16 * (k >> 1) + 2 * (k & 1)) * 2048:#x}')
if_layer(1)
emit(wz2[P2:P3])
poll(sRep, vPoll, 16)
p.end()
wz2_l0, wz2_l1 = list(wz2), wz2[P3:]


L0N = [int(ch, 36) for ch in OPT['l0n']]
assert sum(L0N) == 28
HOOK = [''] + SCHED[8:]
assert not SCHED[8:] or sum(L0N[:5]) == 0


def l0_dma(n):
    n0 = L0N.pop(0)
    extra = HOOK.pop(0) if HOOK else ''
    if n0 or extra:
        if_layer(0)
        wsp_run(extra)
        emit([wz2_l0.pop(0) for _ in range(n0)])
        p.end()
    if wz2_l1 and n:
        if_layer(1)
        emit([wz2_l1.pop(0) for _ in range(min(n, len(wz2_l1)))])
        p.end()


stamp('S1')
p('L_k2:')
for hi in range(2):
    for ks in range(2):
        for ii in range(4):
            r = VR + 32 * hi + 16 * ks + 4 * ii
            p(f'buffer_load_dwordx4 {v(r, 4)}, {v(vVld)}, {s(R_WL, 4)}, {s(sT + 4 + 2 * ks + (ii >> 1))} offen offset:{(ii & 1) * 2048 + hi * 256} sc1')
        if hi + ks < 2 and SCHED[4 + 2 * hi + ks]:
            if_layer(0)
            wsp_run(SCHED[4 + 2 * hi + ks])
            p.end()
p(f'buffer_load_dwordx4 {v(XRES, 4)}, {v(vXr)}, {s(R_X, 4)}, {s(sXb)} offen{LG}')
p(f'buffer_load_dwordx4 {v(XRES + 4, 4)}, {v(vXr)}, {s(R_X, 4)}, {s(sXo)} offen{LG}')
if_layer(0)
p(f'buffer_load_dword {v(248)}, {v(vGrp)}, {s(R_WS, 4)}, {s(sS2)} offen offset:128 sc1')
wsp_run(SCHED[7])
if not SCHED[8:]:
    p('s_waitcnt lgkmcnt(0)')
    p('s_barrier')
p.end()
l0_dma(0)
stamp('Vld')


def u_pack(hi):
    up = (192, 200)[hi]
    for r in range(4):
        for lp in range(2):
            p(f'v_cvt_pk_bf16_f32 {v(up + 2 * r + lp)}, {v(D2 + 16 * hi + 8 * lp + r)}, {v(D2 + 16 * hi + 8 * lp + 4 + r)}')
        if r & 1:
            p(f'ds_write_b128 {v(vUw)}, {v(up + 2 * r - 2, 4)} offset:{128 * hi + 8 * (r - 1)}')


for hi in range(2):
    for ks in range(2):
        if hi and ks:
            u_pack(0)
        r = VR + 32 * hi + 16 * ks
        for i in range(4):
            for j in range(i + 1, 4):
                p(f'v_swap_b32 {v(r + 4 * i + j)}, {v(r + 4 * j + i)}')
        for lo in range(4):
            d = D2 + 16 * hi + 4 * lo
            p(f'{M16} {v(d, 4)}, {v(r + 4 * lo, 4)}, {v(vC2 + 4 * ks, 4)}, {v(d, 4) if ks else 0}')
fine('st2')
l0_dma(4)
u_pack(1)
for k in range(2):
    p(f'ds_write_b128 {v(vXw + k)}, {v(XRES + 4 * k, 4)} offset:16640')
p('s_waitcnt lgkmcnt(0)')
p('s_barrier')
fine('ubar')
UA, DR, DI, TT, PF = 96, 112, 128, 144, 160
for ri in range(2):
    for dh in range(2):
        for half in range(2):
            p(f'ds_read_b64_tr_b16 {v(UA + 8 * ri + 4 * dh + 2 * half, 2)}, {v(vUr)} offset:{ri * 8320 + dh * 512 + half * 128}')
for o in range(2):
    p(f'ds_read_b128 {v(XRES + 4 * o, 4)}, {v(vTw)} offset:{16640 + 4608 * o}')
l0_dma(4)
for ri in range(2):
    for dh in range(2):
        first = ri == 0 and dh == 0
        fr = FA + 4 * ((2 if ri else 0) + dh)
        fi = FA + 4 * ((0 if ri else 4) + dh)
        p(f'{M32} {v(DR, 16)}, {v(UA + 8 * ri + 4 * dh, 4)}, {v(fr, 4)}, {0 if first else v(DR, 16)}')
        p(f'{M32} {v(DI, 16)}, {v(UA + 8 * ri + 4 * dh, 4)}, {v(fi, 4)}, {0 if first else v(DI, 16)}')
fine('stA')
unpack(XRES, 8, Y)
fine('xres')
l0_dma(4)
for row in range(2):
    for k in range(0, 8, 2):
        r = 8 * row + k
        p(f'v_pk_mul_f32 {v(TT + k, 2)}, {v(DI + r, 2)}, {v(TW + 8 + k, 2)}')
        p(f'v_pk_mul_f32 {v(TT + 8 + k, 2)}, {v(DR + r, 2)}, {v(TW + 8 + k, 2)}')
    for k in range(0, 8, 2):
        r = 8 * row + k
        p(f'v_pk_fma_f32 {v(TT + k, 2)}, {v(DR + r, 2)}, {v(TW + k, 2)}, {v(TT + k, 2)}')
        p(f'v_pk_fma_f32 {v(TT + 8 + k, 2)}, {v(DI + r, 2)}, {v(TW + k, 2)}, {v(TT + 8 + k, 2)} neg_lo:[0,0,1] neg_hi:[0,0,1]')
    for k in range(8):
        p(f'v_cvt_pk_bf16_f32 {v(PF + 8 * row + k)}, {v(TT + 2 * k)}, {v(TT + 2 * k + 1)}')
for k in range(4):
    p(f'{M32} {v(Y, 16)}, {v(PF + 4 * k, 4)}, {v(FB + 4 * k, 4)}, {v(Y, 16)}')
fine('stB')
XO, HO = 224, 232
l0_dma(4)
if_layer(0)
p(f'v_cmp_ne_u32 vcc, {s(sLoc)}, {v(248)}')
p('s_cmp_eq_u64 vcc, 0')
p(f's_cselect_b32 {s(sLoc)}, {OPT["loc"]}, 0')
p.end()
local_stats(Y, 16, T)
p(f'v_permlane32_swap_b32 {v(T)}, {v(T + 1)}')
p(f'v_add_f32 {v(T)}, {v(T)}, {v(T + 1)}')
for k, sh in enumerate((8, 4, 2, 1)):
    p(f'v_cvt_pk_bf16_f32 {v(XO + 2 * k)}, {v(Y + 4 * k)}, {v(Y + 4 * k + 1)}')
    p(f'v_cvt_pk_bf16_f32 {v(XO + 2 * k + 1)}, {v(Y + 4 * k + 2)}, {v(Y + 4 * k + 3)}')
    p(f'v_add_f32_dpp {v(T)}, {v(T)}, {v(T)} row_ror:{sh} row_mask:0xf bank_mask:0xf')
p(f'v_mov_b32 {v(T + 1)}, {v(T)}')
p(f's_add_u32 {s(sT)}, {s(sK2)}, {X1_:#x}')
p(f's_add_u32 {s(sT + 1)}, {s(sK2)}, {H_:#x}')
p(f'v_permlane32_swap_b32 {v(T)}, {v(T + 1)}')
finish_stats(T, 512)
norm_pack(Y, 16, T, Y, HO)
fine('norm')
for o in range(2):
    p(f'ds_write_b128 {v(vTw)}, {v(HO + 4 * o, 4)} offset:{16640 + 4608 * o}')
p('s_waitcnt lgkmcnt(0)')
p('s_barrier')
for k in range(2):
    p(f'ds_read_b128 {v(HO + 4 * k, 4)}, {v(vTr)} offset:{16640 + 576 * k}')
for o in range(2):
    p(f'ds_write_b128 {v(vTw)}, {v(XO + 4 * o, 4)} offset:{4608 * o}')
gstore([f'buffer_store_dwordx4 {v(HO + 4 * k, 4)}, {v(vK2)}, {s(R_WL, 4)}, {s(sT + 1)} offen offset:{2048 * k}' for k in range(2)], 'pub', OPT['locd'] & 1, sLocH)
l0_dma(6)
wsp_fix(FIX[0], 104)
stamp('K2')
p('s_waitcnt lgkmcnt(0)')
p.wait_vm('pub')
if OPT['hpf']:
    for k in range(2):
        p(f'buffer_load_dwordx4 {v(HO + 4 * k, 4)}, {v(vK2)}, {s(R_WL, 4)}, {s(sT + 1)} offen offset:{2048 * k} sc1')
arrive_group(sS2)
code_prefetch(2, 'L_k3')
for k in range(2):
    p(f'ds_read_b128 {v(XO + 4 * k, 4)}, {v(vTr)} offset:{576 * k}')
if OPT['fixev']:
    p.bg = [wz2_l0.pop() for _ in range(L0N[0] - 8)][::-1]
    L0N[0] = 8
l0_dma(6)
wsp_fix(FIX[1], 104, OPT['fixev'])
stamp('arr2')
HF, Z2, Z1, WR, WD, GT = 40, 104, 136, 164, 12, 232
for k in range(4):
    p(f's_add_u32 {s(sT + 4 + k)}, {s(sH)}, {H_ + 4096 * k:#x}')
p('s_waitcnt lgkmcnt(0)')
poll(sS2, vGrp, 1, 'wz26')
stamp('S2')
p('L_k3:')
hl = [[(f'buffer_load_dwordx4 {v(HF + 4 * ks, 4)}, {v(vL16)}, {s(R_WL, 4)}, {s(sT + 4 + (ks >> 2))} offen offset:{1024 * (ks & 3)}{LG}', None)]
      for ks in range(16)]
xs = [[(f'buffer_store_dwordx4 {v(XO + 4 * k, 4)}, {v(vK2)}, {s(R_WL, 4)}, {s(sT)} offen offset:{2048 * k} sc1', 'x1')] for k in range(2)]
wz1 = w_dma_ops(sWI, 0, LOC_Z1, 'wz1')
emit(hl[:OPT['pre3']])
SEL, ZP, ZT, ZO = 212, 228, 164, 104
p(f'v_and_b32 {v(SEL)}, 0xf0, {v(vL16)}')
p(f'v_lshrrev_b32 {v(SEL + 1)}, 2, {v(vL16)}')
p(f'v_and_b32 {v(SEL + 1)}, 0xc0, {v(SEL + 1)}')
p(f'v_sub_u32 {v(SEL)}, {v(SEL)}, {v(SEL + 1)}')
p(f'v_mov_b32 {v(SEL + 4)}, 0x3f80')
p(f'v_lshlrev_b32 {v(SEL + 4)}, {v(SEL)}, {v(SEL + 4)}')
p(f'v_lshrrev_b32 {v(SEL + 1)}, 5, {v(SEL)}')
p(f'v_cmp_eq_u32 vcc, 0, {v(SEL + 1)}')
p(f'v_cndmask_b32 {v(SEL + 2)}, 0, {v(SEL + 4)}, vcc')
p(f'v_cmp_eq_u32 vcc, 1, {v(SEL + 1)}')
p(f'v_cndmask_b32 {v(SEL + 3)}, 0, {v(SEL + 4)}, vcc')
for k in (0, 1, 4, 5):
    p(f'v_mov_b32 {v(SEL + k)}, 0')
p(f'v_mov_b32 {v(ZP + 14)}, 0')
p(f'v_mov_b32 {v(ZP + 15)}, 0')
wsp_fix(FIX[2], 104)
n_h = 16 - OPT['pre3']
fill = spread(hl[OPT['pre3']:], 1, 5)
fill.update(spread(xs + wz1[:12], 5 * n_h + 1, OPT['z2sp']))
gemm_r(Z2, 7, 0, 16, HF, WR, WD, LOC_Z2, fill=fill)
p.wait_vm('x1')
p('s_barrier')
stamp('z2mm')
p.bg = wz1[12:]
p.bg_emit(2)
p.bg_on(OPT['g2ev'])
gelu(Z2, 28, GT)
local_stats(Z2, 28, T)
p.bg_on(0)
reduce_g(T, T + 1)
publish_stats(0)
stamp('pub3')
Z1A = OPT['z1a']
p.bg_emit()
p.wait_vm('wz12')
p('s_barrier')
wo = w_dma_ops(sWO, 0, LOC_WO, 'wo')
fill = {OPT['gpos']: gather_loads(0)}
fill.update(spread(wo[:OPT['woa']], OPT['gpos'] + 2, 2))
gemm_r(Z1, 7, 0, Z1A, HF, WR, WD, LOC_Z1, fill=fill)
stamp('z1a')
gather_finish(0)
stamp('S3')
finish_stats(T, 896)
for i in range(0, 28, 2):
    p(f'v_pk_fma_f32 {v(Z2 + i, 2)}, {v(Z2 + i, 2)}, {v(T, 2)}, {v(T, 2)} op_sel:[0,0,1] op_sel_hi:[1,0,1]')
ZO = 192
for pr in range(6):
    if pr < 4:
        tiles = [ft for ft in (2 * pr, 2 * pr + 1) if ft < 7]
        for ft in tiles:
            for k in range(2):
                p(f'v_cvt_pk_bf16_f32 {v(ZP + 2 * ft + k)}, {v(Z2 + 4 * ft + 2 * k)}, {v(Z2 + 4 * ft + 2 * k + 1)}')
    if 2 <= pr:
        q = pr - 2
        for ft in (2 * q, 2 * q + 1):
            for k in range(2 if ft < 7 else 0):
                p(f'v_cvt_pk_bf16_f32 {v(ZO + 2 * ft + k)}, {v(ZT + 4 * ft + 2 * k)}, {v(ZT + 4 * ft + 2 * k + 1)}')
        p(f's_add_u32 {s(sT)}, {s(sZst)}, {q * 32768:#x}')
    if pr < 4:
        for ft in tiles:
            p(f'{M16} {v(ZT + 4 * ft, 4)}, {v(ZP + 4 * pr, 4)}, {v(SEL + (0 if ft & 1 else 2), 4)}, 0')
    if 2 <= pr:
        for k in range(2):
            p(f'v_permlane16_swap_b32 {v(ZO + 4 * q + k)}, {v(ZO + 4 * q + 2 + k)}')
        if q == 3:
            p('s_mov_b32 exec_lo, 0xffff')
            p('s_mov_b32 exec_hi, 0xffff')
        p(f'buffer_store_dwordx4 {v(ZO + 4 * q, 4)}, {v(vZst)}, {s(R_WL, 4)}, {s(sT)} offen sc1', tag='pub')
p('s_mov_b64 exec, -1')
stamp('Zst')
p.wait_vm('wz16')
p('s_barrier')
Z1B = min(16, Z1A + OPT['z1arr'])
wreg = lambda k: 104 + 4 * k if k < 8 else 212 + 4 * (k - 8)
wst = []
for k in range(16):
    g = [(f's_add_u32 {s(sDo)}, {s(sWO)}, {16384 * (3 + (k >> 2)):#x}', None)] if k % 4 == 0 else []
    if not OPT['nobg'] & 1:
        g.append((f'buffer_load_dwordx4 {v(wreg(k), 4)}, {v(vL16)}, {s(R_WS, 4)}, {s(sDo)} offen offset:{1024 * (k & 3)}', None))
    wst.append(g)
bgw = wo[OPT['woa']:12] + wst
wo = []
nin = min(len(bgw), (112 - 7 * Z1A - 1) // OPT['wosp'])
fill = spread(bgw[:nin], 7 * Z1A + 1, OPT['wosp'])
gemm_r(Z1, 7, Z1A, Z1B, HF, WR, WD, LOC_Z1, last=112, fill={k: g for k, g in fill.items() if k < 7 * Z1B})
p.wait_vm('pub')
arrive(sS4, 8)
code_prefetch(4, 'L_k4')
stamp('arr4')
if Z1B < 16:
    gemm_r(Z1, 7, Z1B, 16, HF, WR, WD, LOC_Z1, preload=False, fill={k: g for k, g in fill.items() if k >= 7 * Z1B})
p.bg = bgw[nin:]
if OPT['g1w']:
    p.bg_on(8)
    gelu(Z1, 4 * OPT['g1w'], 88)
    p.bg_on(0)
p.bg_emit()
wsp_fix(FIX[3], 40)
p(f's_mov_b32 {s(sT + 2)}, {s(sZld)}')
p(f'v_add_u32 {v(T + 5)}, {s(sDm)}, {v(vL16)}')
OW, OR, OG = 248, 249, 253
p(f's_add_u32 {s(sT + 1)}, {s(sUst)}, 8192')
p(f's_lshl_b32 {s(sT + 3)}, {s(sB)}, 10')
p(f's_add_u32 {s(sT + 3)}, {s(sT + 3)}, {s(sH)}')
p(f's_add_u32 {s(sT + 12)}, {s(sT + 3)}, {X1_:#x}')
p(f's_add_u32 {s(sT + 13)}, {s(sT + 3)}, {X1_ + 8192:#x}')
for k in range(4):
    p(f's_add_u32 {s(sT + 4 + k)}, {s(sUld)}, {4096 * k}')
    p(f's_add_u32 {s(sT + 8 + k)}, {s(sH)}, {X1_ + 4096 * k:#x}')
p(f'v_and_b32 {v(T)}, 0xf0, {v(vL16)}')
p(f'v_mul_u32_u24 {v(T)}, 9, {v(T)}')
p(f'v_lshrrev_b32 {v(T + 1)}, 8, {v(vL16)}')
p(f'v_lshl_add_u32 {v(T)}, {v(T + 1)}, 5, {v(T)}')
p(f's_mul_i32 {s(sT)}, {s(sW)}, 2304')
p(f's_add_u32 {s(sT)}, {s(sT)}, {SCR + 12288}')
p(f'v_add_u32 {v(OW)}, {s(sT)}, {v(T)}')
p(f'v_lshrrev_b32 {v(T)}, 7, {v(vL16)}')
p(f'v_lshl_add_u32 {v(T + 1)}, {v(T)}, 4, {v(vL16)}')
p(f'v_add_u32 {v(OR)}, {s(sT)}, {v(T + 1)}')
p(f'v_and_b32 {v(T + 1)}, 0x70, {v(vL16)}')
p(f'v_lshl_add_u32 {v(OG)}, {v(T)}, 16, {v(T + 1)}')
p(f's_lshl_b32 {s(sT)}, {s(sW)}, 9')
p(f's_add_u32 {s(sT)}, {s(sT)}, {s(sC)}')
p(f's_lshl_b32 {s(sT)}, {s(sT)}, 10')
p(f's_add_u32 {s(sT + 14)}, {s(sT)}, {s(sB128)}')
p(f's_add_u32 {s(sT + 15)}, {s(sT + 14)}, 0x8000')
stamp('win4')
poll(sP4, None, 32)
stamp('S4')
p('L_k4:')
ZD, AC, RT, UO = OPT['zd'], 196, 228, 240


def zreg(fi):
    k = fi % ZD
    return 56 + 4 * k


def zload(fi):
    if fi % 4 == 0 and fi:
        p(f's_add_u32 {s(sT + 2)}, {s(sT + 2)}, 4096')
    if OPT['k4load'] or fi < ZD:
        p(f'buffer_load_dwordx4 {v(zreg(fi), 4)}, {v(vL16)}, {s(R_WL, 4)}, {s(sT + 2)} offen offset:{(fi % 4) * 1024}' + ' sc1')


def k4_epilogue(ft):
    ac, buf = AC + 16 * (ft & 1), 12288 * (ft & 1)
    st1 = [f'ds_write_b128 {v(vRed + q - 1)}, {v(ac + 4 * q, 4)} offset:{buf}' for q in (1, 2, 3)]
    st1 += [f'v_add_f32 {v(ac + r)}, {v(vBsp)}, {v(ac + r)}' for r in range(4)]
    st2 = ['s_waitcnt lgkmcnt(0)', 's_barrier']
    st2 += [f'ds_read_b128 {v(RT + 4 * q, 4)}, {v(vRed + 3)} offset:{buf + 1024 * q}' for q in range(3)]
    st3 = [f'v_add_f32 {v(ac + r)}, {v(RT + 4 * q + r)}, {v(ac + r)}' for q in range(3) for r in range(4)]
    st3 += [f'v_mul_f32 {v(ac + r)}, {v(Z1 + 4 * ft + r)}, {v(ac + r)}' for r in range(4)]
    st3 += [f'v_cvt_pk_bf16_f32 {v(UO + 2 * (ft & 1) + k)}, {v(ac + 2 * k)}, {v(ac + 2 * k + 1)}' for k in range(2)]
    if ft == 6:
        st3 += [f'buffer_store_dwordx2 {v(UO, 2)}, {v(vL8)}, {s(R_WL, 4)}, {s(sT + 13)} offen']
    elif ft == 5:
        st3 += [f'buffer_store_dwordx4 {v(UO, 4)}, {v(vL16)}, {s(R_WL, 4)}, {s(sT + 12)} offen']
    elif ft & 1:
        st3 += [f'buffer_store_dwordx4 {v(UO, 4)}, {v(vL16)}, {s(R_WL, 4)}, {s(sT + 1 if ft == 3 else sUst)} offen offset:0']
    return st1, st2, st3


def k4_emit(x):
    if x.startswith('buffer_store'):
        late = x.endswith('offen')
        if late:
            p.wait_vm('x1l')
        gstore([x], 'u6' if 'dwordx2' in x else 'pub', OPT['locd'] & (2 if late else 4))
    else:
        p(x)


def gelu_ops(x, t):
    ops = [f'v_mul_f32 {v(t + k)}, {v(x + k)}, {v(x + k)}' for k in range(4)]
    ops += [f'v_fma_f32 {v(t + k)}, {v(t + k)}, {v(vGK)}, {v(vGK + 1)}' for k in range(4)]
    ops += [f'v_mul_f32 {v(t + k)}, {v(t + k)}, {v(x + k)}' for k in range(4)]
    ops += [f'v_exp_f32 {v(t + k)}, {v(t + k)}' for k in range(4)]
    ops += [f'v_add_f32 {v(t + k)}, 1.0, {v(t + k)}' for k in range(4)]
    ops += [f'v_rcp_f32 {v(t + k)}, {v(t + k)}' for k in range(4)]
    ops += [f'v_mul_f32 {v(x + k)}, {v(t + k)}, {v(x + k)}' for k in range(4)]
    return ops


WR5, X1R, XP, FL, X1L = 56, 232, 104, 244, 136
assert ZD == WD


def ureg(ks):
    return (104, 120, 164, 180, 212, 196, 136)[ks >> 2] + 4 * (ks & 3)


ul = [[(f'buffer_load_dwordx4 {v(ureg(ks), 4)}, {v(vL16)}, {s(R_WL, 4)}, {s(sT + 4 + (ks >> 2))} offen offset:{1024 * (ks & 3)}{LG}', None)]
      for ks in range(24)]
ul += [[(f'buffer_load_dwordx2 {v(ureg(24 + i) + 2 * k, 2)}, {v(vL8)}, {s(R_WL, 4)}, {s(sT + 10 + (i >> 1))} offen offset:{1024 * (2 * (i & 1) + k)}{LG}', None)
        for k in range(2)] for i in range(4)]


def flag_store(off):
    p(f'v_mov_b32 {v(FL + 1)}, 1')
    p(f's_add_u32 {s(99)}, {s(sS5)}, {s(sB4)}')
    p('s_mov_b64 exec, 1')
    gstore([f'buffer_store_dword {v(FL + 1)}, off, {s(R_WS, 4)}, {s(99)} offset:{off}'])
    p('s_mov_b64 exec, -1')


def flag_load(off):
    return [(f'buffer_load_dword {v(FL)}, {v(vGrp)}, {s(R_WS, 4)}, {s(sS5)} offen offset:{off}{PG}', None)]


def flag_check(off):
    retry_until(flag_load(off), lambda: p(f'v_cmp_ne_u32 vcc, 1, {v(FL)}'))


for fi in range(ZD):
    zload(fi)
assert not FIX[4]
x1l = [(f'buffer_load_dwordx4 {v(X1L + 4 * o, 4)}, {v(vL16)}, {s(R_WL, 4)}, {s(sT + 12 + o)} offen{LG}', 'x1l') for o in range(2)]
tail = ul[:16]
ROT = 112 % ZD
for ft in range(7):
    fill = {}
    if ft and OPT['k4epi']:
        st1, st2, st3 = k4_epilogue(ft - 1)
        pos = OPT['e1']
        for x in st1:
            fill.setdefault(pos, []).append(x)
            pos += 1
        pos = OPT['e2']
        for x in st2:
            fill.setdefault(pos, []).append(x)
            pos += 1
        pos = OPT['e3']
        for x in st3:
            fill.setdefault(pos, []).append(x)
            pos += 1
    if ft == 0:
        for k in range(16):
            fill[4 * k + 1] = [f'ds_write_b128 {v(T + 5)}, {v(wreg(15 - k), 4)} offset:{16384 * ((15 - k) >> 2) + 1024 * ((15 - k) & 3)}']
    if ft == 6:
        free = [k for k in range(64) if k % 4 != 3][-16:]
        for i in range(8):
            fill.setdefault(free[2 * i], []).append(f'v_lshlrev_b32 {v(XV + 2 * i)}, 16, {v(X1L + i)}')
            fill.setdefault(free[2 * i + 1], []).append(f'v_and_b32 {v(XV + 2 * i + 1)}, 0xffff0000, {v(X1L + i)}')
    free = [k for k in range(64) if k not in fill] + [k for k in range(64) if len(fill.get(k, [])) == 1 and fill[k][0][0] == 'v' and k % 4 != 3]
    free = sorted(free[:28])
    for k, x in zip(free, gelu_ops(Z1 + 4 * ft, T) if ft >= OPT['g1w'] else []):
        fill.setdefault(k, []).append(x)
    for a2 in range(16):
        fi = ft * 16 + a2
        for q in range(4):
            d = AC + 16 * (ft & 1) + 4 * q
            if OPT['k4mfma'] or q == 0:
                p(f'{M16} {v(d, 4)}, {v(zreg(fi), 4)}, {a((q * 16 + a2) * 4, 4)}, {v(d, 4) if a2 else 0}')
            for x in fill.get(4 * a2 + q, []):
                k4_emit(x)
        if fi + ZD < 112:
            zload(fi + ZD)
        elif len(tail) > 16 - OPT['ntail']:
            if len(tail) == 8:
                flag_check(0)
            emit([tail.pop(0)])
        if fi + ZD >= 112:
            wring_read(fi + ZD - 112, WR5, WD, LOC_WO, ROT)
        if fi == OPT['mf']:
            p.wait_vm('pub')
            flag_store(32)
        if OPT['fine'] == 3 and (a2 == 15 or fi == 0) and fi < 111:
            stamp(f'i{fi}')
        if fi == 56:
            p.wait_vm('pub')
            flag_store(96)
        if fi == 70:
            emit([flag_load(96)])
        if fi == 84:
            flag_check(96)
        if fi == OPT['f5a']:
            p.wait_vm('pub')
            flag_store(0)
        if fi == 64:
            code_prefetch(8, 'L_k5')
        if fi == 80:
            p('L_k5:')
        if fi == OPT['x1pos']:
            emit([x1l])
        if fi == OPT['l5a']:
            emit([flag_load(0)])
stamp('K4')


def chain(*fs):
    def run():
        for f in fs:
            f()
    return run


def line(x, tag=None):
    return lambda: p(x, tag=tag)


def flag_after(tag, off):
    p.wait_vm(tag)
    flag_store(off)


def next_m1():
    if_layer(0)
    m1_load(228)
    p.end()


fill = {}


def put(pos, f):
    fill[pos] = chain(fill[pos], f) if pos in fill else f


st1, st2, st3 = k4_epilogue(6)
for k, x in enumerate(st1):
    put(OPT['k1'] + min(k, 3 + (k - 3) // 2), line(x, 'red' if k < 3 else None))
put(OPT['k2'], chain(lambda: p.wait_lgkm('red'), *[line(x) for x in st2[1:]]))
for k, x in enumerate(st3):
    put(OPT['k3'] + k // 2, (lambda y: lambda: k4_emit(y))(x))
kend = OPT['k3'] + len(st3) // 2
assert len(tail) < 8
for k, g in enumerate(tail):
    put(k, (lambda y: lambda: emit([y]))(g))
put(OPT['mb'], lambda: emit([flag_load(32)]))
put(OPT['mc'], lambda: (flag_check(32), fine('ck5m'), emit(ul[16:20])))
for k in range(4):
    put(max(OPT['mc'], kend) + 2 + 2 * k, (lambda y: lambda: emit([y]))(ul[20 + k]))
put(OPT['fa'], lambda: (flag_after('u6', 64), fine('fl5b')))
put(OPT['fb'], lambda: emit([flag_load(64)]))
put(OPT['fc'], lambda: (flag_check(64), fine('ck5b'), emit(ul[24:])))
put(max(OPT['fc'] + 4, 64), next_m1)
gemm_r(XV, 4, 0, 28, ureg, WR5, WD, LOC_WO, first_c=True, fill=fill, preload=False, rot=ROT)


def x_pack():
    for k in range(8):
        p(f'v_cvt_pk_bf16_f32 {v(XP + k)}, {v(XV + 2 * k)}, {v(XV + 2 * k + 1)}')


stamp('K5')
if_layer(1)
x_pack()
for o in range(2):
    p(f'ds_write_b128 {v(OW)}, {v(XP + 4 * o, 4)} offset:{16 * o}')
for k in range(2):
    p(f'ds_read_b128 {v(X1R + 4 * k, 4)}, {v(OR)} offset:{1152 * k}')
for k in range(2):
    p(f'buffer_store_dwordx4 {v(X1R + 4 * k, 4)}, {v(OG)}, {s(R_OUT, 4)}, {s(sT + 14 + k)} offen sc1')
if PROF:
    p('s_waitcnt vmcnt(0)')
    stamp('end')
    p(f's_lshl_b32 {s(sT)}, s2, 2')
    p(f's_add_u32 {s(sT)}, {s(sT)}, {s(sW)}')
    p(f's_lshl_b32 {s(sT)}, {s(sT)}, 8')
    p(f's_add_u32 {s(sT)}, {s(sT)}, {PROFO:#x}')
    p(f'v_lshrrev_b32 {v(T)}, 2, {v(vL16)}')
    p(f'buffer_store_dword {v(vProf)}, {v(T)}, {s(R_WS, 4)}, {s(sT)} offen')
if OPT['diag']:
    p('s_waitcnt vmcnt(0)')
    stamp('end')
    p(f's_sub_u32 s101, s101, {s(sPidx)}')
    p('s_min_u32 s101, s101, 20000')
    p('s_mul_i32 s101, s101, 10')
    p('s_add_u32 s101, s101, 10000')
    p('L_spin:')
    p(f's_memrealtime {s(sStamp, 2)}')
    p('s_waitcnt lgkmcnt(0)')
    p(f's_sub_u32 {s(sStamp)}, {s(sStamp)}, {s(sPidx)}')
    p(f's_cmp_lt_u32 {s(sStamp)}, s101')
    p('s_cbranch_scc1 L_spin')
p('L_exit:')
p('s_endpgm')
p.end()
local_stats(XV, 16, T)
reduce_g(T, T + 1)
publish_stats(0x40000)
p('s_barrier')
x_pack()
p(f's_mov_b32 {s(sL)}, 1')
p(f's_mov_b32 {s(sLocH)}, {s(sLoc)}')
if not OPT['reuse']:
    p(f's_add_u32 {s(R_WL)}, {s(R_WL)}, {LSTRIDE:#x}')
    p(f's_addc_u32 {s(R_WL + 1)}, {s(R_WL + 1)}, 0')
p(f's_mov_b32 {s(R_X)}, {s(R_WL)}')
p(f's_mov_b32 {s(R_X + 1)}, {s(R_WL + 1)}')
p(f's_mov_b32 {s(R_X + 2)}, {LSTRIDE:#x}')
p(f's_add_u32 {s(sXb)}, {s(sK2)}, {H_:#x}')
p(f's_add_u32 {s(sXo)}, {s(sXb)}, 2048')
p(f'v_mov_b32 {v(vXr)}, {v(vK2)}')
p(f'v_mov_b32 {v(vXw)}, {v(vTr)}')
p(f'v_add_u32 {v(vXw + 1)}, 576, {v(vTr)}')
p(f'v_mov_b32 {v(vHw)}, {v(vHw2)}')
p(f's_add_u32 {s(sSt)}, {s(sSt)}, 0x20000')
for r in (sArr, sRep, sS2, sS4, sP4, sS5):
    p(f's_add_u32 {s(r)}, {s(r)}, 0x20000')
for o in range(2):
    p(f's_add_u32 {s(sT + 4 + o)}, {s(sT + 3)}, {H_ + 8192 * o:#x}')
emit([gather_loads(0x20000)])
gather_finish(0x20000)
gstore([f'buffer_store_dwordx4 {v(XP + 4 * o, 4)}, {v(vL16)}, {s(R_WL, 4)}, {s(sT + 4 + o)} offen' for o in range(2)], 'pub')
p('s_branch L_layer')

p.resolve([('pro', set()), ('body', {'L0'}), ('body', {'L1'})], ['W0', 'G0', 'LOC', 'RETRY'])

hdr = open('interleave_layers__spectral_fnet__mixer_gmlp__prompt.s.ref').read().split('\n')
out = [l for l in hdr if l.startswith(';') and '@launch' not in l][:14]
if PROF:
    k = STAMPS.index('T')
    out.append('; stamps: ' + ' '.join(STAMPS[:-1] + [x for x in STAMPS[k:] if x[0] != '*']))
out.append(f'; @launch grid=(256,1,1) block=(256,1,1) lds={LDS_BYTES}')
out += ['.amdgcn_target "amdgcn-amd-amdhsa--gfx950"', '.text', f'.globl {NAME}', '.p2align 8', f'.type {NAME},@function']
out.append(p.text())
out.append('.p2align 8')
out.append('.type L_table,@object')
out.append('L_table:')
tab = const_table()
for i in range(0, tab.size, 8):
    out.append('.long ' + ','.join(f'{x:#x}' for x in tab[i:i + 8]))
out.append(f'.size L_table, {tab.size * 4}')
out.append('L_end:')
out += ['.section .rodata,"a"', '.p2align 6', f'.amdhsa_kernel {NAME}',
        '  .amdhsa_next_free_vgpr 512', '  .amdhsa_next_free_sgpr 102', '  .amdhsa_accum_offset 256',
        '  .amdhsa_group_segment_fixed_size 0', '  .amdhsa_kernarg_size 104', '  .amdhsa_user_sgpr_count 2',
        '  .amdhsa_user_sgpr_kernarg_segment_ptr 1', '  .amdhsa_system_sgpr_workgroup_id_x 1',
        '  .amdhsa_float_denorm_mode_32 3', '.end_amdhsa_kernel', '']
open(sys.argv[1], 'w').write('\n'.join(out))
print(p.stats(), file=sys.stderr)
```

```python
import re
import itertools

TRANS = ('v_exp_f32', 'v_log_f32', 'v_rcp_f32', 'v_rsq_f32', 'v_sqrt_f32', 'v_sin_f32', 'v_cos_f32')
RMW = ('v_fmac_f32', 'v_dot2c_f32_bf16', 'v_writelane_b32')
BOTH = ('v_swap_b32', 'v_permlane16_swap_b32', 'v_permlane32_swap_b32')
_REG = re.compile(r'^-?\|?([vas])(?:(\d+)|\[(\d+):(\d+)\])\|?$')


def v(i, n=1):
    return f'v{i}' if n == 1 else f'v[{i}:{i + n - 1}]'


def a(i, n=1):
    return f'a{i}' if n == 1 else f'a[{i}:{i + n - 1}]'


def s(i, n=1):
    return f's{i}' if n == 1 else f's[{i}:{i + n - 1}]'


def regs_of(op):
    op = op.strip()
    if op == 'vcc':
        return {('s', 'vcc')}
    if op == 'exec':
        return {('s', 'exec')}
    if op == 'm0':
        return {('s', 'm0')}
    m = _REG.match(op)
    if not m:
        return set()
    if m.group(2) is not None:
        return {(m.group(1), int(m.group(2)))}
    return {(m.group(1), i) for i in range(int(m.group(3)), int(m.group(4)) + 1)}


def split_ops(text):
    out, depth, cur = [], 0, ''
    for ch in text:
        if ch == '[':
            depth += 1
        if ch == ']':
            depth -= 1
        if ch == ',' and depth == 0:
            out.append(cur.strip())
            cur = ''
        else:
            cur += ch
    if cur.strip():
        out.append(cur.strip())
    return out


class Ins:
    def __init__(self, text, cond, tag=None):
        self.text, self.cond, self.tag = text, cond, tag
        self.need_vm = None
        self.need_lgkm = None
        self.nops = 0
        self.kind = 'other'
        self.defs, self.uses = set(), set()
        self.srcc, self.srcab, self.data = set(), set(), set()
        self.passes = 0
        self.op = ''
        self.wide = False
        self.lds_dma = False
        self.dpp = False
        self.ool = False
        if text.endswith(':') or text.startswith('.') or text.startswith(';'):
            self.kind = 'label'
            return
        if text.startswith('@'):
            self.kind = 'pseudo'
            return
        parts = text.split(None, 1)
        op = self.op = parts[0]
        ops = split_ops(parts[1]) if len(parts) > 1 else []
        if ops:
            last = ops[-1].split()
            mods = last[1:]
            ops[-1] = last[0]
        else:
            mods = []
        R = [regs_of(o) for o in ops]
        allr = set().union(*R) if R else set()
        if op.startswith('v_mfma'):
            self.kind = 'mfma'
            self.passes = 8 if '32x32' in op else 4
            self.defs = R[0]
            self.srcab = R[1] | R[2]
            self.srcc = R[3]
            self.uses = self.srcab | self.srcc
        elif op.startswith('v_'):
            self.kind = 'valu'
            self.dpp = '_dpp' in op
            if op in BOTH:
                self.defs = set(allr)
                self.uses = set(allr)
            else:
                self.defs = set(R[0])
                self.uses = set().union(*R[1:]) if len(R) > 1 else set()
                if op in RMW or self.dpp:
                    self.uses |= R[0]
                if op.startswith(('v_add_co', 'v_addc_co', 'v_sub_co')):
                    self.defs |= R[1]
                    self.uses = set().union(*R[2:])
        elif op.startswith(('buffer_', 'global_')):
            self.kind = 'vmem'
            self.lds_dma = 'lds' in mods or '_lds_' in op
            if self.lds_dma:
                self.uses = allr | {('s', 'm0')}
            elif '_load_' in op:
                self.defs = R[0]
                self.uses = set().union(*R[1:])
            else:
                self.uses = allr
                self.data = R[0] if op.startswith('buffer_') else R[1]
                self.wide = op.endswith(('x3', 'x4'))
                if '_atomic_' in op and 'sc0' in mods:
                    self.defs = R[0]
        elif op.startswith('ds_'):
            self.kind = 'ds'
            if op.startswith(('ds_read', 'ds_bpermute', 'ds_swizzle')):
                self.defs = R[0]
                self.uses = set().union(*R[1:])
            else:
                self.uses = allr
        elif op.startswith(('s_load', 's_memtime', 's_memrealtime')):
            self.kind = 'smem'
            self.defs = R[0]
            self.uses = set().union(*R[1:]) if len(R) > 1 else set()
        elif op == 's_waitcnt':
            self.kind = 'wait'
            m = re.search(r'vmcnt\((\d+)\)', text)
            self.w_vm = int(m.group(1)) if m else None
            m = re.search(r'lgkmcnt\((\d+)\)', text)
            self.w_lgkm = int(m.group(1)) if m else None
        elif op == 's_nop':
            self.kind = 'nop'
            self.n = int(ops[0]) + 1
        elif op.startswith('s_'):
            self.kind = 'salu'
            if op.startswith(('s_cmp', 's_cbranch', 's_branch', 's_barrier', 's_endpgm', 's_sleep', 's_setprio', 's_bitcmp')):
                self.uses = allr
            else:
                self.defs = set(R[0]) if R else set()
                self.uses = set().union(*R[1:]) if len(R) > 1 else set()
        else:
            raise ValueError('unknown instruction: ' + text)


def hazard(p, c):
    d = 0
    vec = lambda rs: {r for r in rs if r[0] in 'va'}
    sca = lambda rs: {r for r in rs if r[0] == 's'}
    if p.kind == 'mfma':
        big = p.passes == 8
        if c.kind == 'mfma':
            if p.defs & c.srcab:
                d = max(d, 12 if big else 8)
            if p.defs & c.srcc and not (p.defs == c.srcc and p.passes == c.passes):
                d = max(d, 10 if big else 6)
            if p.defs & c.defs and not (p.defs == c.srcc and p.passes == c.passes):
                d = max(d, 10 if big else 6)
        elif c.kind in ('valu', 'vmem', 'ds'):
            if p.defs & (c.uses | c.defs):
                d = max(d, 12 if big else 8)
            if p.srcc & c.defs:
                d = max(d, 7 if big else 3)
    if p.kind == 'valu':
        w = vec(p.defs)
        if c.kind == 'mfma' and w & c.uses:
            d = max(d, 2)
        if p.op in TRANS and c.kind in ('valu', 'vmem', 'ds') and w & c.uses:
            d = max(d, 1)
        if c.kind == 'valu' and w & c.uses:
            if c.dpp or c.op.startswith('v_permlane'):
                d = max(d, 2)
            if c.op.startswith(('v_readlane', 'v_readfirstlane')):
                d = max(d, 1)
        if p.op.startswith('v_dot') and w & (c.uses | c.defs) and not (c.op == p.op and w == c.defs):
            d = max(d, 3)
        ws = sca(p.defs)
        if ws & c.uses:
            if c.kind == 'vmem':
                d = max(d, 5)
            elif c.kind == 'valu':
                d = max(d, 4 if c.op.startswith(('v_readlane', 'v_writelane')) else 2)
            elif c.kind == 'salu':
                d = max(d, 1)
    if p.kind == 'vmem' and p.wide and p.data & c.defs:
        d = max(d, 2)
    if p.kind == 'salu' and ('s', 'm0') in p.defs and c.kind == 'vmem' and c.lds_dma:
        d = max(d, 1)
    return d


class Prog:
    def __init__(self):
        self.sec = {}
        self.order = []
        self.cur = None
        self.cond = frozenset()
        self.nlab = 0
        self.bg, self.bg_every, self.bg_cnt = [], 0, 0

    def section(self, name):
        self.sec[name] = []
        self.order.append(name)
        self.cur = self.sec[name]

    def __call__(self, text, tag=None):
        for line in text.split('\n'):
            line = line.strip()
            if line:
                self.cur.append(Ins(line, self.cond, tag))
                if self.bg_every and self.bg:
                    self.bg_cnt += 1
                    if self.bg_cnt % self.bg_every == 0:
                        self.bg_emit(1)

    def bg_emit(self, n=None):
        while self.bg and (n is None or n > 0):
            for text, tag in self.bg.pop(0):
                self.cur.append(Ins(text, self.cond, tag))
            n = None if n is None else n - 1

    def bg_on(self, every):
        self.bg_every, self.bg_cnt = every, 0

    def label(self, base='L'):
        self.nlab += 1
        return f'{base}_{self.nlab}'

    def begin(self, tagname, skip_branch):
        lab = self.label('skip')
        self(f'{skip_branch} {lab}')
        self._stack = getattr(self, '_stack', [])
        self._stack.append((self.cond, lab))
        self.cond = self.cond | {tagname}

    def end(self):
        self.cond, lab = self._stack.pop()
        self(f'{lab}:')

    def begin_ool(self, tagname, enter_branch):
        lab, back = self.label('ool'), self.label('back')
        self(f'{enter_branch} {lab}')
        self._ool = (self.cond, back, len(self.cur))
        self.cond = self.cond | {tagname}
        self(f'{lab}:')

    def end_ool(self, inline=None):
        cond, back, start = self._ool
        self(f's_branch {back}')
        for ins in self.cur[start:]:
            ins.ool = True
        if inline:
            self.cond = cond | {inline[0]}
            inline[1]()
        self.cond = cond
        self(f'{back}:')

    def wait_vm(self, tag):
        self.cur.append(Ins(f'@vm {tag}', self.cond))

    def wait_lgkm(self, tag):
        self.cur.append(Ins(f'@lgkm {tag}', self.cond))

    def traces(self, seq, free_tags):
        for combo in itertools.product((False, True), repeat=len(free_tags)):
            on = {t if b else '!' + t for t, b in zip(free_tags, combo)}
            tr = []
            done = False
            for name, tags in seq:
                for ins in self.sec[name]:
                    if ins.cond <= (on | tags):
                        tr.append(ins)
                        if ins.op == 's_endpgm':
                            done = True
                            break
                if done:
                    break
            yield tr

    def resolve(self, seq, free_tags):
        trs = list(self.traces(seq, free_tags))
        lo = lambda x, y: y if x is None else min(x, y)
        for tr in trs:
            vm, lg = [], []
            for ins in tr:
                if ins.kind == 'label':
                    continue
                if ins.kind == 'pseudo':
                    which, tag = ins.text[1:].split()
                    q = vm if which == 'vm' else lg
                    idx = [i for i, e in enumerate(q) if e[1] == tag]
                    if idx:
                        n = len(q) - idx[-1] - 1
                        if which == 'vm':
                            ins.need_vm = lo(ins.need_vm, n)
                        else:
                            ins.need_lgkm = lo(ins.need_lgkm, n)
                else:
                    touch = ins.uses | ins.defs
                    idx = [i for i, e in enumerate(vm) if e[0] & touch]
                    if idx:
                        ins.need_vm = lo(ins.need_vm, len(vm) - idx[-1] - 1)
                    idx = [i for i, e in enumerate(lg) if e[0] & touch]
                    if idx:
                        n = len(lg) - idx[-1] - 1
                        if any(e[2] for e in lg):
                            n = 0
                        ins.need_lgkm = lo(ins.need_lgkm, n)
                if ins.need_vm is not None:
                    ins.need_vm = min(ins.need_vm, 63)
                    del vm[:max(0, len(vm) - ins.need_vm)]
                if ins.need_lgkm is not None:
                    ins.need_lgkm = min(ins.need_lgkm, 15)
                    del lg[:max(0, len(lg) - ins.need_lgkm)]
                if ins.kind == 'wait':
                    if ins.w_vm is not None:
                        del vm[:max(0, len(vm) - ins.w_vm)]
                    if ins.w_lgkm is not None:
                        assert ins.w_lgkm == 0 or not any(e[2] for e in lg)
                        del lg[:max(0, len(lg) - ins.w_lgkm)]
                elif ins.kind == 'vmem':
                    vm.append((ins.defs, ins.tag))
                elif ins.kind == 'ds':
                    lg.append((ins.defs, ins.tag, False))
                elif ins.kind == 'smem':
                    lg.append((ins.defs, ins.tag, True))
        for tr in trs:
            hist = []
            pos = 0
            for ins in tr:
                if ins.kind == 'label':
                    continue
                has_wait = ins.need_vm is not None or ins.need_lgkm is not None
                pos += 1 if has_wait else 0
                if ins.kind == 'pseudo':
                    continue
                need = 0
                for p, ppos in hist:
                    d = hazard(p, ins)
                    if d:
                        need = max(need, d - (pos - ppos - 1))
                ins.nops = max(ins.nops, need)
                pos += ins.nops
                hist.append((ins, pos))
                if len(hist) > 16:
                    hist.pop(0)
                pos += ins.n if ins.kind == 'nop' else 1

    def text(self):
        main, cold = [], []
        for name in self.order:
            for ins in self.sec[name]:
                out = cold if ins.ool else main
                w = []
                if ins.need_vm is not None:
                    w.append(f'vmcnt({ins.need_vm})')
                if ins.need_lgkm is not None:
                    w.append(f'lgkmcnt({ins.need_lgkm})')
                if w:
                    out.append('    s_waitcnt ' + ' '.join(w))
                if ins.nops:
                    out.append(f'    s_nop {ins.nops - 1}')
                if ins.kind == 'pseudo':
                    continue
                out.append(ins.text if ins.kind == 'label' else '    ' + ins.text)
        return '\n'.join(main + cold) + '\n'

    def stats(self):
        n = {}
        for name in self.order:
            for ins in self.sec[name]:
                n[ins.kind] = n.get(ins.kind, 0) + 1
                n['nops'] = n.get('nops', 0) + (1 if ins.nops else 0)
        return n
```

```python
import sys
import struct
import numpy as np
from asmlib import Prog, v, a, s

NAME = 'interleave_layers__spectral_fnet__mixer_gmlp__prompt_kernel'
OPT = dict(prof=0, k4mfma=1, k4load=1, k4epi=1, zd=12, pre3=8, pre5=16, loc=1, locd=7, x1pos=58, lg=0, pg=0, sg=0, wspev=8, x1=2,
           g2ev=10, z1a=5, gpos=18, z1arr=8, wo4=16, wzp1=0, wzp2=4, wzp3=8, reuse=0, tlb=0, e1=4, e2=14, e3=24, f5a=87, l5a=95, mb=8, mc=20, fa=36, fb=48, fc=60, hpf=0, pz=1, pv=4, vs=1, zp0=0, zin=0, zsp=3, zs=1, q4=6, upk=4, gsh=0, cpf=12, k1=3, k2=9, k3=15, mf=111, fixev=0, woa=8, wosp=4, g1w=1, l0n='0444466', ann=0, fix='4/5/6/7/', ntail=12, lnow=4, fine=0, sched='//d1/d2r0d3r1d4p0r2d5p1r3qd6a4d7/a5p2/a6p3/a7/', ctpos=0, pk=3, nomean=0,  z2sp=4, early=1, wfirst=0, nobg=0, few=0, diag='')
for arg in sys.argv[2:]:
    k, val = arg.split('=')
    OPT[k] = val if k in ('diag', 'sched', 'fix', 'l0n') else int(val)
PROF = OPT['prof']
LG = (' sc1', '', ' nt', ' sc0')[OPT['lg']]
PG = (' sc1', '', ' nt')[OPT['pg']]
SG = ('', ' nt', ' sc0')[OPT['sg']]


WI, WO, FLAGS, STATS, X2, PROFO = 0, 0x200000, 0x300000, 0x340000, 0x400000, 0x600000
LBASE, LSTRIDE = 0x800000, 0x1000000
V_, H_, X1_, Z_, U_ = 0, 0x200000, 0x400000, 0x600000, 0xA00000
WB, CT, SCR, LDS_BYTES = 0, 114688, 114688 + 22528, 163840
CT_FA, CT_TW, CT_FB, CT_M1 = 0, 6144, 10240, 14336

R_X, R_WIN, R_WSP, R_WOUT, R_OUT, R_WS, R_DBG, R_BSP, R_WL = 4, 8, 12, 16, 20, 24, 28, 32, 36
sW, sC, sB, sL, sTO = 40, 41, 42, 43, 44
sVst, sVld, sH, sK2, sXo, sXb, sZst, sZld, sUst, sUld = 45, 46, 47, 48, 49, 50, 51, 52, 53, 54
sLoc, sSt, sWI, sWO, sWsp, sSelLo, sSelHi, sPidx, sOnes = 55, 56, 57, 58, 59, 60, 61, 62, 63
sArr, sRep, sS2, sS4, sS5, sB128, sDm, sDo = 64, 65, 66, 67, 68, 69, 70, 71
sB4, sP4, sG0, sLocH = 3, 88, 75, 89
sT = 72
sStamp = 90
vL16, vTw, vK2, vXr, vVld, vVst, vBsp, vZst = 0, 1, 2, 3, 4, 5, 6, 7
vC2 = 8
vHw, vHr, vUw, vUr, vStl, vL8, vTr, vPoll, vArr, vProf, vGK = 16, 17, 18, 19, 20, 21, 22, 23, 24, 25, 26
vRed = 28
T = 32
XV = 40
M1 = 184


def f2u(x):
    return struct.unpack('<I', struct.pack('<f', x))[0]


def bf16(x):
    u = np.ascontiguousarray(x, dtype=np.float32).view(np.uint32)
    return ((u + 0x7FFF + ((u >> 16) & 1)) >> 16).astype(np.uint32)


def const_table():
    l = np.arange(64)[:, None]
    j = np.arange(8)[None, :]
    nn, h = l & 31, l >> 5
    e1 = 16 * ((nn >> 2) & 1) + 4 * (nn >> 3) + (nn & 3)
    frags = []

    def pack(x):
        x = np.where(np.abs(x) < 1e-12, 0.0, x)
        b = bf16(x)
        return (b[:, 0::2] | (b[:, 1::2] << 16)).astype(np.uint32)
    ang = [2 * np.pi * ((16 * dh + 8 * h + j) * e1 % 32) / 32 for dh in range(2)]
    frags += [pack(np.cos(ang[0])), pack(np.cos(ang[1])), pack(np.sin(ang[0])), pack(np.sin(ang[1])),
              pack(-np.sin(ang[0])), pack(-np.sin(ang[1]))]
    d2 = 8 * (j >> 2) + 4 * h + (j & 3)
    tw = 2 * np.pi * (d2 * e1) / 512
    tc = np.cos(tw).astype(np.float32).view(np.uint32)
    ts = np.sin(tw).astype(np.float32).view(np.uint32)
    frags += [tc[:, :4], tc[:, 4:], ts[:, :4], ts[:, 4:]]
    ps = 2 * np.pi * (d2 * (nn & 15) % 16) / 16
    for row in range(2):
        m = ((nn >> 4) == row)
        frags += [pack(np.cos(ps) * m), pack(np.sin(ps) * m)]
    n, g = l & 15, l >> 4
    for jq in range(4):
        for ks in range(2):
            rho = 32 * ks + 16 * (j >> 2) + 4 * g + (j & 3)
            s1 = 16 * (rho >> 4) + 2 * (rho & 7) + ((rho >> 3) & 1)
            jj = 8 * jq + (n >> 1)
            th = 2 * np.pi * (s1 * jj % 64) / 64
            x = np.where((n & 1) == 0, np.cos(th), np.where(jj == 0, (-1.0) ** s1, -np.sin(th)))
            frags.append(pack(x))
    tab = np.concatenate([np.ascontiguousarray(f).reshape(-1) for f in frags])
    assert tab.size == 22 * 256
    return tab


p = Prog()
M16 = 'v_mfma_f32_16x16x32_bf16'
M32 = 'v_mfma_f32_32x32x16_bf16'


STAMPS = []


def stamp(name):
    if OPT['few'] and name in ('karg', 'start', 'setup', 'init', 'arr1', 'Vst', 'pub3', 'z1a', 'S3', 'Zst', 'arr4', 'win4') + (() if OPT['fine'] else ('Vld', 'K2', 'arr2', 'K5')):
        return
    STAMPS.append(name)
    if OPT['diag'] and OPT['diag'][:-1] == name:
        p(f's_memrealtime {s(sStamp, 2)}')
        p('s_waitcnt lgkmcnt(0)')
        p(f's_cmp_eq_u32 {s(sL)}, {OPT["diag"][-1]}')
        p(f's_cselect_b32 s101, {s(sStamp)}, s101')
    if PROF:
        p(f'{"s_memtime" if PROF == 2 else "s_memrealtime"} {s(sStamp, 2)}')
        p('s_waitcnt lgkmcnt(0)')
        p('s_mov_b32 s101, m0')
        p(f's_mov_b32 m0, {s(sPidx)}')
        p(f'v_writelane_b32 {v(vProf)}, {s(sStamp)}, m0')
        p('s_mov_b32 m0, s101')
        p(f's_add_u32 {s(sPidx)}, {s(sPidx)}, 1')


def fine(name):
    if OPT['fine'] == 1:
        stamp(name)


def srd(r, lo, hi, size):
    p(f's_mov_b32 {s(r)}, {s(lo)}')
    p(f's_and_b32 {s(r + 1)}, {s(hi)}, 0xffff')
    p(f's_mov_b32 {s(r + 2)}, {size:#x}')
    p(f's_mov_b32 {s(r + 3)}, 0x20000')


def if_wave0():
    p(f's_cmp_eq_u32 {s(sW)}, 0')
    p.begin('W0', 's_cbranch_scc0')


def if_layer(l):
    p(f's_cmp_eq_u32 {s(sL)}, {l}')
    p.begin(f'L{l}', 's_cbranch_scc0')


def spin_tail(top, done):
    p(f's_cbranch_vccz {done}')
    p(f's_sub_u32 {s(sTO)}, {s(sTO)}, 1')
    p(f's_cbranch_scc0 {top}')
    p(f's_mov_b32 {s(sTO)}, 0')
    p(f'{done}:')


def arrive(soff, nrep):
    p('s_barrier')
    if_wave0()
    p(f'v_mov_b32 {v(T)}, 1')
    p(f's_mov_b64 exec, {(1 << nrep) - 1:#x}')
    p(f'buffer_atomic_add {v(T)}, {v(vArr)}, {s(R_WS, 4)}, {s(soff)} offen sc1')
    p('s_mov_b64 exec, -1')
    p.end()


def gstore(lines, tag=None, local=False, flag=None):
    if not OPT['loc'] or (tag and not local):
        for x in lines:
            p(x + ' sc1', tag=tag)
        return
    p(f's_cmp_eq_u32 {s(flag or sLoc)}, 0')
    p.begin_ool('!LOC', 's_cbranch_scc1')
    for x in lines:
        p(x + ' sc1', tag=tag)
    p.end_ool(('LOC', lambda: [p(x + SG, tag=tag) for x in lines]))


def arrive_group(soff, off=0):
    p('s_barrier')
    if_wave0()
    p(f'v_mov_b32 {v(T)}, 1')
    p(f's_add_u32 {s(99)}, {s(soff)}, {s(sB4)}')
    p('s_mov_b64 exec, 1')
    gstore([f'buffer_store_dword {v(T)}, off, {s(R_WS, 4)}, {s(99)} offset:{off}'])
    p('s_mov_b64 exec, -1')
    p.end()


def poll(soff, vaddr, need, tag=None):
    if_wave0()
    top, done = p.label('poll'), p.label('pdone')
    p(f'{top}:')
    if vaddr is not None:
        p(f'buffer_load_dword {v(T)}, {v(vaddr)}, {s(R_WS, 4)}, {s(soff)} offen' + (PG if vaddr == vGrp else ' sc1'))
    else:
        p(f'buffer_load_dword {v(T)}, off, {s(R_WS, 4)}, {s(soff)} sc1')
    p('s_waitcnt vmcnt(0)')
    p(f'v_cmp_ne_u32 vcc, {need}, {v(T)}')
    spin_tail(top, done)
    p.end()
    if tag:
        p.wait_vm(tag)
    p('s_barrier')


def reduce_g(x, y):
    p(f'v_permlane16_swap_b32 {v(x)}, {v(y)}')
    p(f'v_add_f32 {v(x)}, {v(x)}, {v(y)}')
    p(f'v_mov_b32 {v(y)}, {v(x)}')
    p(f'v_permlane32_swap_b32 {v(x)}, {v(y)}')
    p(f'v_add_f32 {v(x)}, {v(x)}, {v(y)}')
    p(f'v_mov_b32 {v(y)}, {v(x)}')
    p(f'v_permlane16_swap_b32 {v(x)}, {v(y)}')


def finish_stats(x, n):
    y, m = x + 1, x + 2
    p(f'v_mul_f32 {v(m)}, {f2u(1.0 / n):#x}, {v(x)}')
    p(f'v_mul_f32 {v(y)}, {f2u(1.0 / n):#x}, {v(y)}')
    p(f'v_fma_f32 {v(y)}, -{v(m)}, {v(m)}, {v(y)}')
    p(f'v_max_f32 {v(y)}, 0, {v(y)}')
    p(f'v_add_f32 {v(y)}, {f2u(1e-5):#x}, {v(y)}')
    p(f'v_rsq_f32 {v(x)}, {v(y)}')
    p(f'v_mul_f32 {v(y)}, -{v(m)}, {v(x)}')


def norm_pack(src, n, st, tmp, dst):
    for i in range(0, n, 2):
        p(f'v_pk_fma_f32 {v(tmp + i, 2)}, {v(src + i, 2)}, {v(st, 2)}, {v(st, 2)} op_sel:[0,0,1] op_sel_hi:[1,0,1]')
    for i in range(0, n, 2):
        p(f'v_cvt_pk_bf16_f32 {v(dst + i // 2)}, {v(tmp + i)}, {v(tmp + i + 1)}')


def local_stats(src, n, out):
    sa, sq = out + 2, out + 4
    p(f'v_pk_add_f32 {v(sa, 2)}, {v(src, 2)}, {v(src + 2, 2)}')
    p(f'v_pk_mul_f32 {v(sq, 2)}, {v(src, 2)}, {v(src, 2)}')
    p(f'v_pk_fma_f32 {v(sq, 2)}, {v(src + 2, 2)}, {v(src + 2, 2)}, {v(sq, 2)}')
    for i in range(4, n, 2):
        p(f'v_pk_add_f32 {v(sa, 2)}, {v(sa, 2)}, {v(src + i, 2)}')
        p(f'v_pk_fma_f32 {v(sq, 2)}, {v(src + i, 2)}, {v(src + i, 2)}, {v(sq, 2)}')
    p(f'v_add_f32 {v(out)}, {v(sa)}, {v(sa + 1)}')
    p(f'v_add_f32 {v(out + 1)}, {v(sq)}, {v(sq + 1)}')


def unpack(src, n, dst):
    for i in range(n):
        p(f'v_lshlrev_b32 {v(dst + 2 * i)}, 16, {v(src + i)}')
        p(f'v_and_b32 {v(dst + 2 * i + 1)}, 0xffff0000, {v(src + i)}')


def publish_stats(area):
    p(f's_add_u32 {s(sT)}, {s(sSt)}, {s(sB128)}')
    if area:
        p(f's_add_u32 {s(sT)}, {s(sT)}, {area:#x}')
    p('s_mov_b64 exec, 0xffff')
    gstore([f'buffer_store_dwordx2 {v(T, 2)}, {v(vStl)}, {s(R_WS, 4)}, {s(sT)} offen'])
    p('s_mov_b64 exec, -1')


def gather_loads(area):
    return [(f's_add_u32 {s(99)}, {s(sSt)}, {area:#x}', None),
            (f'buffer_load_dwordx2 {v(T + 4, 2)}, {v(vStl)}, {s(R_WS, 4)}, {s(99)} offen{PG}', None),
            (f'buffer_load_dwordx2 {v(T + 6, 2)}, {v(vStl)}, {s(R_WS, 4)}, {s(99)} offen offset:128{PG}', None)]


def retry_until(loads, test, tested=False):
    if not tested:
        test()
    p.begin_ool('RETRY', 's_cbranch_vccnz')
    top, done = p.label('rt'), p.label('rdone')
    p(f'{top}:')
    emit([loads])
    p('s_waitcnt vmcnt(0)')
    test()
    spin_tail(top, done)
    p.end_ool()


def gather_finish(area):
    def test():
        p(f'v_add_f32 {v(T)}, {v(T + 4)}, {v(T + 6)}')
        p(f'v_add_f32 {v(T + 1)}, {v(T + 5)}, {v(T + 7)}')
        p(f'v_cmp_u_f32 vcc, {v(T)}, {v(T + 1)}')
    retry_until(gather_loads(area), test)
    reduce_g(T, T + 1)


LOC_Z2 = lambda i: 1024 * i
LOC_Z1 = lambda i: 1024 * (i - 48) if i >= 48 else CT + 1024 * i
LOC_WO = lambda i: 1024 * (i - 48) if i >= 48 else 65536 + 1024 * i


def w_dma_ops(sbase, extra, loc, name):
    ops = []
    for j in range(7):
        for i in range(4):
            o = []
            if i == 0:
                o.append((f's_add_u32 m0, {s(sDm)}, {loc(16 * j):#x}', None))
                o.append((f's_add_u32 {s(sDo)}, {s(sbase)}, {extra + 16384 * j:#x}', None))
            if OPT['nobg'] & 1:
                o.append(('s_nop 0', None))
            else:
                o.append((f'buffer_load_dwordx4 {v(vL16)}, {s(R_WS, 4)}, {s(sDo)} offen offset:{i * 1024} lds', f'{name}{j}'))
            ops.append(o)
    return ops


def emit(groups):
    for g in groups:
        for text, tag in g:
            p(text, tag=tag)


def wsp_dma_ops(batch):
    q, ih = batch >> 1, batch & 1
    ops = []
    for il in range(4):
        for rh in range(2):
            if batch < 2:
                imm, so = 128 * il, 80 + batch
                o = [(f's_add_u32 m0, {s(78 + batch)}, {1024 + 2048 * il + 1024 * rh - imm}', None)]
            else:
                imm, so = 512 * ih + 128 * il, sDo
                o = [(f's_add_u32 m0, {s(sWsp)}, {1024 + 8192 * (batch % 3) + 2048 * il + 1024 * rh - imm}', None)]
                if not ops:
                    o += [(f's_add_u32 {s(sDo)}, {s(sW)}, {q}', None), (f's_and_b32 {s(sDo)}, {s(sDo)}, 3', None),
                          (f's_lshl_b32 {s(sDo)}, {s(sDo)}, 21', None)]
            o.append((f'buffer_load_dwordx4 {v(vWspA + rh)}, {s(R_WSP, 4)}, {s(so)} offen offset:{imm} lds', f'wsp{max(batch, 1)}'))
            ops.append(o)
    return ops


def table_addr(dst, soff):
    p(f'v_add_u32 {v(dst)}, {s(soff)}, {v(vL16)}')
    p(f'v_mov_b32 {v(dst + 1)}, {s(93)}')
    p(f'v_add_co_u32 {v(dst)}, vcc, {s(92)}, {v(dst)}')
    p(f'v_addc_co_u32 {v(dst + 1)}, vcc, 0, {v(dst + 1)}, vcc')


def code_prefetch(bit, lo):
    if not OPT['cpf'] & bit:
        return
    if_layer(0)
    p(f's_lshr_b32 {s(99)}, s2, 3')
    p(f's_lshl_b32 {s(99)}, {s(99)}, 2')
    p(f's_add_u32 {s(99)}, {s(99)}, {s(sW)}')
    p(f's_lshl_b32 {s(99)}, {s(99)}, 7')
    p(f's_sub_u32 {s(98)}, {s(92)}, L_table-{lo}')
    p(f's_subb_u32 {s(97)}, {s(93)}, 0')
    p(f's_add_u32 {s(98)}, {s(98)}, {s(99)}')
    p(f's_addc_u32 {s(97)}, {s(97)}, 0')
    p(f'v_mov_b32 {v(T + 6)}, {s(98)}')
    p(f'v_mov_b32 {v(T + 7)}, {s(97)}')
    p('s_mov_b64 exec, 1')
    p(f'global_load_dword {v(251)}, {v(T + 6, 2)}, off')
    p('s_mov_b64 exec, -1')
    p.end()


def poison(site, reg):
    todo = [(sZst, vZst, 0)] if OPT['zs'] and OPT['pz'] == site else []
    todo += [(sVst, vVst, 0), (sVst, vVst, 0x10000)] if OPT['vs'] and OPT['pv'] == site else []
    if not todo:
        return
    if_layer(0)
    for k in range(4):
        p(f'v_mov_b32 {v(reg + k)}, -1')
    for base, va, off in todo:
        p(f's_add_u32 {s(99)}, {s(base)}, {LSTRIDE + off:#x}')
        p(f'buffer_store_dwordx4 {v(reg, 4)}, {v(va)}, {s(R_WL, 4)}, {s(99)} offen sc1', tag='pub' if site == 3 else None)
    p.end()


def m1_load(dst):
    p(f's_lshl_b32 {s(99)}, {s(sW)}, 11')
    p(f's_add_u32 {s(99)}, {s(99)}, {CT_M1}')
    table_addr(dst, 99)
    for k in range(2):
        p(f'global_load_dwordx4 {v(M1 + 4 * k, 4)}, {v(dst, 2)}, off offset:{1024 * k}')


def ct_dma(dst):
    p(f's_mul_i32 {s(99)}, {s(sW)}, 3584')
    p(f's_add_u32 m0, {s(99)}, {CT}')
    table_addr(dst, 99)
    for off in (0, 1024, 2048):
        p(f'global_load_lds_dwordx4 {v(dst, 2)}, off offset:{off}', tag='ct')
    p('s_mov_b32 exec_hi, 0')
    p(f'global_load_lds_dwordx4 {v(dst, 2)}, off offset:3072', tag='ct')
    p('s_mov_b64 exec, -1')


def wsp_dma(batch):
    p.bg = wsp_dma_ops(batch)
    p.bg_emit()


def wsp_read(batch, reg):
    p.wait_vm(f'wsp{max(batch, 1)}')
    for il in range(4):
        for o in range(2):
            p(f'ds_read_b128 {v(reg + 4 * (2 * il + o), 4)}, {v(vWspR + o)} offset:{8192 * (batch % 3) + 2048 * il}', tag=f'wr{batch}')


def wsp_park(batch):
    q, ih = batch >> 1, batch & 1
    p.wait_vm(f'wsp{max(batch, 1)}')
    for il in range(4):
        for o in range(2):
            p(f'ds_read_b128 {a(64 * q + 32 * o + 4 * (4 * ih + il), 4)}, {v(vWspR + o)} offset:{8192 * (batch % 3) + 2048 * il}', tag=f'wr{batch}')


def wsp_fix(units, reg, every=0):
    if not units:
        return
    if_layer(0)
    p.bg_on(every)
    for u in units:
        base = 32 * int(u)
        for k in range(32):
            p(f'v_accvgpr_read_b32 {v(reg + k)}, {a(base + k)}')
        k = 0
        for ip in range(4):
            for al in range(8):
                t = reg + 32 + (k & 3)
                k += 1
                lo, hi = reg + 8 * ip + (al >> 1), reg + 8 * ip + 4 + (al >> 1)
                p(f'v_perm_b32 {v(t)}, {v(hi)}, {v(lo)}, {s(sSelHi if al & 1 else sSelLo)}')
                p(f'v_accvgpr_write_b32 {a(base + 4 * al + ip)}, {v(t)}')
    p.bg_on(0)
    if every:
        p.bg_emit()
    p.end()


def wsp_perm(batch, reg):
    q, ih = batch >> 1, batch & 1
    k = 0
    for ipl in range(2):
        for o in range(2):
            for al in range(8):
                t = T + (k & 7)
                k += 1
                lo, hi = reg + 4 * (4 * ipl + o) + (al >> 1), reg + 4 * (4 * ipl + 2 + o) + (al >> 1)
                p(f'v_perm_b32 {v(t)}, {v(hi)}, {v(lo)}, {s(sSelHi if al & 1 else sSelLo)}')
                p(f'v_accvgpr_write_b32 {a((q * 16 + 8 * o + al) * 4 + 2 * ih + ipl)}, {v(t)}')


def wring_read(idx, ring, depth, loc, rot=0):
    base, off = (vL16, vL16hi, vL16h2)[loc(idx) >> 16], loc(idx) & 0xffff
    p(f'ds_read_b128 {v(ring + 4 * ((idx + rot) % depth), 4)}, {v(base)} offset:{off}', tag=f'w{idx}')


def gemm_r(acc, nt, ks0, ks1, act, ring, depth, loc, first_c=None, fill=None, preload=True, last=None, rot=0):
    fill = dict(fill or {})
    if OPT['nobg'] & 2 and loc is LOC_Z1:
        raise SystemExit('nobg&2 unsupported')
    lo, hi = nt * ks0, nt * ks1
    if preload:
        for idx in range(lo, min(lo + depth, last or hi)):
            wring_read(idx, ring, depth, loc)
    for idx in range(lo, hi):
        ks, t = divmod(idx, nt)
        if (idx - lo) % 2 == 0:
            p.wait_lgkm(f'w{min(idx + 1, hi - 1)}')
        c = v(acc + 4 * t, 4) if (ks or first_c) else '0'
        p(f'{M16} {v(acc + 4 * t, 4)}, {v(ring + 4 * ((idx + rot) % depth), 4)}, {v(act(ks) if callable(act) else act + 4 * ks, 4)}, {c}')
        if idx + depth < (last or hi):
            wring_read(idx + depth, ring, depth, loc, rot)
        f = fill.pop(idx, None)
        if callable(f):
            f()
        elif f:
            emit([f])
    assert not fill


def spread(groups, first, step):
    return {first + step * k: g for k, g in enumerate(groups)}


def gelu(x, n, tmp):
    for i in range(0, n, 4):
        t = tmp + (i & 4)
        for k in (0, 2):
            p(f'v_pk_mul_f32 {v(t + k, 2)}, {v(x + i + k, 2)}, {v(x + i + k, 2)}')
        for k in (0, 2):
            p(f'v_pk_fma_f32 {v(t + k, 2)}, {v(t + k, 2)}, {v(vGK, 2)}, {v(vGK, 2)} op_sel:[0,0,1] op_sel_hi:[1,0,1]')
        for k in (0, 2):
            p(f'v_pk_mul_f32 {v(t + k, 2)}, {v(t + k, 2)}, {v(x + i + k, 2)}')
        for k in range(4):
            p(f'v_exp_f32 {v(t + k)}, {v(t + k)}')
        for k in (0, 2):
            p(f'v_pk_add_f32 {v(t + k, 2)}, {v(t + k, 2)}, 1.0 op_sel_hi:[1,0]')
        for k in range(4):
            p(f'v_rcp_f32 {v(t + k)}, {v(t + k)}')
        for k in (0, 2):
            p(f'v_pk_mul_f32 {v(x + i + k, 2)}, {v(t + k, 2)}, {v(x + i + k, 2)}')


vWspA, vWspR = 244, 236
vHw2, vXw, vGrp = 250, 246, 254
vL16hi, vL16h2 = 252, 255
p.section('pro')
p(f'{NAME}:')
p(f's_cmp_ge_u32 s2, 256')
p('s_cbranch_scc1 L_exit')
p(f's_load_dwordx2 {s(72, 2)}, s[0:1], 0')
p(f's_load_dwordx8 {s(76, 8)}, s[0:1], 48')
p(f's_load_dwordx4 {s(84, 4)}, s[0:1], 80')
p(f's_load_dwordx2 {s(88, 2)}, s[0:1], 96')
if OPT['diag']:
    p(f's_memrealtime {s(sStamp, 2)}')
    p('s_waitcnt lgkmcnt(0)')
    p(f's_mov_b32 {s(sPidx)}, {s(sStamp)}')
    p(f's_mov_b32 s101, {s(sStamp)}')
if PROF:
    p(f'{"s_memtime" if PROF == 2 else "s_memrealtime"} {s(sStamp, 2)}')
p(f's_getpc_b64 {s(92, 2)}')
p('L_pc:')
lane, n_, g_, t0, t1, t2, t3, tid = 100, 101, 102, 103, 104, 105, 106, 107
p(f'v_mov_b32 {v(tid)}, v0')
p(f's_lshr_b32 {s(94)}, s2, 3')
p(f's_lshl_b32 {s(94)}, {s(94)}, 4')
p(f'v_lshrrev_b32 {v(T)}, 4, v0')
p(f'v_add_u32 {v(T)}, {s(94)}, {v(T)}')
p(f'v_lshlrev_b32 {v(T)}, 7, {v(T)}')
p(f'v_min_u32 {v(T)}, L_end-L_pc-4, {v(T)}')
p(f'v_mov_b32 {v(T + 3)}, {s(93)}')
p(f'v_add_co_u32 {v(T + 2)}, vcc, {s(92)}, {v(T)}')
p(f'v_addc_co_u32 {v(T + 3)}, vcc, 0, {v(T + 3)}, vcc')
p(f'global_load_dword {v(253)}, {v(T + 2, 2)}, off')
p(f'v_lshrrev_b32 {v(t0)}, 6, v0')
p(f'v_and_b32 {v(lane)}, 63, v0')
p(f'v_readfirstlane_b32 {s(sW)}, {v(t0)}')
p(f'v_and_b32 {v(n_)}, 15, {v(lane)}')
p(f'v_lshrrev_b32 {v(g_)}, 4, {v(lane)}')
p(f'v_lshlrev_b32 {v(vL16)}, 4, {v(lane)}')
p(f's_lshr_b32 {s(94)}, s2, 3')
p(f's_and_b32 {s(sB)}, {s(94)}, 7')
p(f's_and_b32 {s(95)}, s2, 7')
p(f's_lshl_b32 {s(95)}, {s(95)}, 1')
p(f's_lshr_b32 {s(96)}, {s(94)}, 4')
p(f's_add_u32 {s(95)}, {s(95)}, {s(96)}')
p(f's_sub_u32 {s(96)}, 32, {s(95)}')
p(f's_cmp_eq_u32 {s(95)}, 0')
p(f's_cselect_b32 {s(96)}, 16, {s(96)}')
p(f's_bitcmp1_b32 {s(94)}, 3')
p(f's_cselect_b32 {s(sC)}, {s(96)}, {s(95)}')
p(f's_mov_b32 {s(sL)}, 0')
p(f's_mov_b32 {s(sTO)}, 40000')
p(f's_lshl_b32 {s(sB128)}, {s(sB)}, 7')
p(f's_lshl_b32 {s(sB4)}, {s(sB)}, 2')
p(f's_getreg_b32 {s(sLoc)}, hwreg(HW_REG_XCC_ID)')
p(f's_mov_b32 {s(sOnes)}, 0x3f803f80')
p(f's_mov_b32 {s(sSelLo)}, 0x05040100')
p(f's_mov_b32 {s(sSelHi)}, 0x07060302')
p(f's_lshl_b32 {s(94)}, {s(sW)}, 9')
p(f's_add_u32 {s(94)}, {s(94)}, {s(sC)}')
p(f'v_and_b32 {v(t0)}, 28, {v(lane)}')
p(f'v_lshlrev_b32 {v(t0)}, 4, {v(t0)}')
p(f'v_and_b32 {v(t1)}, 32, {v(lane)}')
p(f'v_add3_u32 {v(t0)}, {v(t0)}, {v(t1)}, {s(94)}')
p(f'v_lshlrev_b32 {v(t2)}, 10, {v(t0)}')
p(f'v_and_b32 {v(t1)}, 3, {v(lane)}')
p(f'v_lshl_add_u32 {v(t0)}, {v(t1)}, 5, {v(t2)}')
p(f'v_lshl_add_u32 {v(t2)}, {v(t1)}, 4, {v(t2)}')
p(f'v_and_b32 {v(t3)}, 7, {v(n_)}')
p(f'v_lshlrev_b32 {v(t3)}, 6, {v(t3)}')
p(f'v_and_b32 {v(t1)}, 8, {v(n_)}')
p(f'v_lshlrev_b32 {v(t1)}, 2, {v(t1)}')
p(f'v_add3_u32 {v(t3)}, {v(t3)}, {v(t1)}, {s(94)}')
p(f'v_lshlrev_b32 {v(t3)}, 1, {v(t3)}')
p(f's_lshl_b32 {s(96)}, {s(sC)}, 2')
p(f's_add_u32 {s(96)}, {s(96)}, {s(sW)}')
p(f's_lshl_b32 {s(sSt)}, {s(96)}, 10')
p(f's_add_u32 {s(sSt)}, {s(sSt)}, {STATS:#x}')
p(f's_lshl_b32 {s(96)}, {s(sC)}, 10')
p(f's_add_u32 {s(sS2)}, {s(96)}, {FLAGS + 0x10000:#x}')
p(f's_lshl_b32 {s(96)}, {s(sW)}, 7')
p(f's_add_u32 {s(96)}, {s(96)}, 256')
p(f's_add_u32 {s(sS5)}, {s(96)}, {s(sS2)}')
p(f'v_lshlrev_b32 {v(vStl)}, 3, {v(n_)}')
p(f'v_lshl_add_u32 {v(vStl)}, {v(g_)}, 8, {v(vStl)}')
p(f's_lshl_b32 {s(96)}, {s(sB)}, 2')
p(f's_add_u32 {s(96)}, {s(96)}, {s(sW)}')
p(f's_mul_i32 {s(sZld)}, {s(96)}, 114688')
p(f's_add_u32 {s(sZld)}, {s(sZld)}, {Z_:#x}')
p(f's_and_b32 {s(96)}, {s(sC)}, 7')
p(f's_lshl_b32 {s(96)}, {s(96)}, 10')
p(f's_lshr_b32 {s(97)}, {s(sC)}, 3')
p(f's_lshl_b32 {s(97)}, {s(97)}, 8')
p(f's_add_u32 {s(96)}, {s(96)}, {s(97)}')
p(f's_add_u32 {s(sZst)}, {s(sZld)}, {s(96)}')
p(f'v_and_b32 {v(T)}, 1, {v(g_)}')
p(f'v_lshlrev_b32 {v(T)}, 14, {v(T)}')
p(f'v_and_b32 {v(T + 1)}, 2, {v(g_)}')
p(f'v_lshl_add_u32 {v(T)}, {v(T + 1)}, 12, {v(T)}')
p(f'v_lshl_add_u32 {v(vZst)}, {v(n_)}, 4, {v(T)}')
EI = 64
for k in range(4):
    p(f'v_mov_b32 {v(116 + k)}, -1')
p(f'v_mov_b32 {v(EI)}, -1')
p(f'v_mov_b32 {v(EI + 1)}, -1')
p(f'v_mov_b32 {v(EI + 2)}, {s(sLoc)}')
p(f'v_mov_b32 {v(EI + 3)}, 0')
p(f'v_and_b32 {v(EI + 4)}, 16, {v(vL16)}')
p(f'v_lshlrev_b32 {v(EI + 4)}, 13, {v(EI + 4)}')
p(f'v_and_b32 {v(EI + 5)}, 0x60, {v(vL16)}')
p(f'v_or_b32 {v(EI + 4)}, {v(EI + 4)}, {v(EI + 5)}')
p('s_waitcnt lgkmcnt(0)')
if PROF:
    p(f'v_mov_b32 {v(vProf)}, 0')
    p(f'v_writelane_b32 {v(vProf)}, {s(sStamp)}, 0')
    p(f's_mov_b32 {s(sPidx)}, 1')
    STAMPS.append('entry')
stamp('karg')
srd(R_X, 72, 73, 2097152)
srd(R_WS, 88, 89, LBASE)
XR = 120


def x_loads(i0, i1):
    for i in range(i0, i1):
        if i == 0:
            p(f'buffer_load_dwordx4 {v(XR, 4)}, {v(t0)}, {s(R_X, 4)}, {s(sB128)} offen')
            p(f'buffer_load_dwordx4 {v(XR + 4, 4)}, {v(t0)}, {s(R_X, 4)}, {s(sB128)} offen offset:16')
            continue
        p(f's_add_u32 {s(99)}, {s(sB128)}, {128 * i}')
        p(f's_and_b32 {s(99)}, {s(99)}, 0x3ff')
        p(f'buffer_load_dwordx4 {v(XR + 8 * i, 4)}, {v(t2)}, {s(R_X, 4)}, {s(99)} offen')
        p(f'buffer_load_dwordx4 {v(XR + 8 * i + 4, 4)}, {v(t2)}, {s(R_X, 4)}, {s(99)} offen offset:64')


x_loads(0, OPT['x1'])
p(f's_lshl_b32 {s(96)}, s2, 2')
p(f's_add_u32 {s(sG0)}, {s(96)}, {s(sW)}')
p(f's_cmp_eq_u32 {s(sG0)}, 3')
p.begin('G0', 's_cbranch_scc0')
p(f'v_lshlrev_b32 {v(T)}, 4, {v(vL16)}')
for k in range(2):
    p(f's_mov_b32 {s(94)}, {FLAGS + 0x4000 * k:#x}')
    p(f'buffer_store_dword {v(EI + 3)}, {v(T)}, {s(R_WS, 4)}, {s(94)} offen sc1', tag='z')
p.end()
p('s_mov_b64 exec, 0xffff')
for k in range(3):
    p(f's_add_u32 {s(96)}, {s(sSt)}, {s(sB128)}')
    p(f's_add_u32 {s(96)}, {s(96)}, {k * 0x20000:#x}')
    p(f'buffer_store_dwordx2 {v(EI, 2)}, {v(vStl)}, {s(R_WS, 4)}, {s(96)} offen sc1', tag='pub')
p('s_mov_b64 exec, 0xff')
p(f's_add_u32 {s(97)}, {s(sS5)}, {s(sB4)}')
p(f'buffer_store_dword {v(EI + 3)}, {v(EI + 4)}, {s(R_WS, 4)}, {s(97)} offen sc1', tag='pub')
if_wave0()
p('s_mov_b64 exec, 1')
p(f's_add_u32 {s(96)}, {s(sS2)}, {s(sB4)}')
p(f'buffer_store_dword {v(EI + 2)}, off, {s(R_WS, 4)}, {s(96)} offset:128 sc1', tag='pub')
p('s_mov_b64 exec, 15')
p(f'buffer_store_dword {v(EI + 3)}, {v(EI + 4)}, {s(R_WS, 4)}, {s(96)} offen sc1', tag='pub')
p(f's_lshl_b32 {s(96)}, s2, 8')
p(f's_add_u32 {s(96)}, {s(96)}, {FLAGS:#x}')
p('s_cmp_lt_u32 s2, 128')
p('s_cselect_b32 exec_lo, 2, 3')
p(f'buffer_store_dword {v(EI + 3)}, {v(EI + 4)}, {s(R_WS, 4)}, {s(96)} offen sc1', tag='pub')
p.end()
p('s_mov_b64 exec, -1')
srd(R_WIN, 76, 77, 512 * 3584)
srd(R_WSP, 78, 79, 2048 * 4096)
srd(R_BSP, 80, 81, 4096)
srd(R_WOUT, 82, 83, 896 * 1024)
srd(R_OUT, 84, 85, 2097152)
srd(R_DBG, 86, 87, 256)
p(f's_add_u32 {s(88)}, {s(88)}, {LBASE:#x}')
p(f's_addc_u32 {s(89)}, {s(89)}, 0')
srd(R_WL, 88, 89, 2 * LSTRIDE)
if OPT['tlb']:
    p(f'v_lshlrev_b32 {v(T)}, 21, {v(n_)}')
    p(f'buffer_load_dword {v(240)}, {v(T)}, {s(R_WL, 4)}, 0 offen sc1')
    p(f'buffer_load_dword {v(239)}, {v(T)}, {s(R_WS, 4)}, 0 offen sc1')
    p(f'buffer_load_dword {v(238)}, off, {s(R_OUT, 4)}, 0 sc1')
stamp('start')
vPi, vPo, vPri, vPro, PK = 112, 114, 242, 243, 224
PST = SCR + 12288
p(f's_add_u32 {s(92)}, {s(92)}, L_table-L_pc')
p(f's_addc_u32 {s(93)}, {s(93)}, 0')
for k in range(2):
    p(f'v_add_u32 {v(T)}, {256 * k}, {v(tid)}')
    p(f'v_mul_u32_u24 {v(T + 1)}, 4682, {v(T)}')
    p(f'v_lshrrev_b32 {v(T + 1)}, 16, {v(T + 1)}')
    p(f'v_mul_u32_u24 {v(T + 2)}, 14, {v(T + 1)}')
    p(f'v_sub_u32 {v(T)}, {v(T)}, {v(T + 2)}')
    p(f'v_and_b32 {v(T + 2)}, 0x38, {v(T + 1)}')
    p(f'v_add_u32 {v(T + 1)}, {v(T + 1)}, {v(T + 2)}')
    p(f'v_mul_u32_u24 {v(T + 1)}, 3584, {v(T + 1)}')
    p(f'v_lshl_add_u32 {v(vPi + k)}, {v(T)}, 4, {v(T + 1)}')
p(f's_and_b32 {s(94)}, {s(sC)}, 7')
p(f's_lshl_b32 {s(94)}, {s(94)}, 6')
p(f's_and_b32 {s(95)}, {s(sC)}, 8')
p(f's_add_u32 {s(94)}, {s(94)}, {s(95)}')
p(f's_mul_i32 {s(94)}, {s(94)}, 3584')
p(f's_lshr_b32 {s(95)}, {s(sC)}, 4')
p(f's_mul_i32 {s(95)}, {s(95)}, 1792')
p(f's_add_u32 {s(94)}, {s(94)}, {s(95)}')
p(f's_mul_i32 {s(95)}, {s(sB)}, 224')
p(f's_add_u32 {s(76)}, {s(94)}, {s(95)}')
p(f'v_lshrrev_b32 {v(T)}, 3, {v(lane)}')
p(f'v_and_b32 {v(T + 1)}, 0x70, {v(vL16)}')
p(f'v_lshl_add_u32 {v(vPo)}, {v(T)}, 10, {v(T + 1)}')
p(f's_and_b32 {s(94)}, {s(sC)}, 7')
p(f's_mul_i32 {s(94)}, {s(94)}, 112')
p(f's_lshr_b32 {s(95)}, {s(sC)}, 3')
p(f's_lshl_b32 {s(95)}, {s(95)}, 5')
p(f's_add_u32 {s(94)}, {s(94)}, {s(95)}')
p(f's_sub_u32 {s(95)}, {s(sC)}, 24')
p(f's_mul_i32 {s(95)}, {s(95)}, 224')
p(f's_add_u32 {s(95)}, {s(95)}, 96')
p(f's_cmp_lt_u32 {s(sC)}, 24')
p(f's_cselect_b32 {s(94)}, {s(94)}, {s(95)}')
p(f's_cselect_b32 {s(95)}, 16, 112')
p(f's_lshr_b32 {s(96)}, {s(sW)}, 1')
p(f's_mul_i32 {s(95)}, {s(95)}, {s(96)}')
p(f's_add_u32 {s(94)}, {s(94)}, {s(95)}')
p(f's_and_b32 {s(95)}, {s(sW)}, 1')
p(f's_lshl_b32 {s(95)}, {s(95)}, 3')
p(f's_add_u32 {s(94)}, {s(94)}, {s(95)}')
p(f's_lshl_b32 {s(94)}, {s(94)}, 10')
p(f's_add_u32 {s(77)}, {s(94)}, {s(sB128)}')
p(f'v_lshrrev_b32 {v(T)}, 2, {v(n_)}')
p(f'v_lshl_add_u32 {v(T)}, {v(g_)}, 3, {v(T)}')
p(f'v_mul_u32_u24 {v(T)}, 224, {v(T)}')
p(f'v_and_b32 {v(T + 1)}, 3, {v(lane)}')
p(f'v_lshl_add_u32 {v(T)}, {v(T + 1)}, 3, {v(T)}')
p(f's_lshl_b32 {s(94)}, {s(sW)}, 5')
p(f's_add_u32 {s(94)}, {s(94)}, {PST}')
p(f'v_add_u32 {v(vPri)}, {s(94)}, {v(T)}')
p(f's_lshl_b32 {s(94)}, {s(sW)}, 3')
p(f's_add_u32 {s(94)}, {s(94)}, {PST + 8192}')
p(f'v_lshl_add_u32 {v(vPro)}, {v(lane)}, 5, {s(94)}')
p(f'v_lshrrev_b32 {v(T)}, 3, {v(lane)}')
p(f'v_lshlrev_b32 {v(T)}, 18, {v(T)}')
p(f'v_and_b32 {v(T + 1)}, 7, {v(lane)}')
p(f'v_xor_b32 {v(T + 1)}, {v(T + 1)}, {v(g_)}')
p(f'v_lshl_add_u32 {v(T)}, {v(T + 1)}, 4, {v(T)}')
p(f's_lshl_b32 {s(94)}, {s(sC)}, 12')
p(f's_add_u32 {s(100)}, {s(sW)}, {s(sB)}')
p(f's_and_b32 {s(100)}, {s(100)}, 3')
p(f's_lshl_b32 {s(95)}, {s(100)}, 10')
p(f's_add_u32 {s(94)}, {s(94)}, {s(95)}')
p(f'v_add_u32 {v(vWspA)}, {s(94)}, {v(T)}')
p(f'v_xor_b32 {v(T)}, 64, {v(vWspA)}')
p(f'v_add_u32 {v(vWspA + 1)}, 0x20000, {v(T)}')
p(f's_mul_i32 {s(sWsp)}, {s(sW)}, 24576')
p(f'v_lshrrev_b32 {v(T)}, 1, {v(n_)}')
p(f'v_xor_b32 {v(T)}, {v(T)}, {v(g_)}')
p(f'v_lshlrev_b32 {v(T)}, 4, {v(T)}')
p(f'v_lshl_add_u32 {v(T)}, {v(n_)}, 7, {v(T)}')
p(f's_add_u32 {s(94)}, {s(sWsp)}, 1024')
p(f'v_add_u32 {v(vWspR)}, {s(94)}, {v(T)}')
p(f'v_xor_b32 {v(vWspR + 1)}, 64, {v(vWspR)}')
p(f's_lshr_b32 {s(94)}, {s(sB)}, 2')
p(f's_lshl_b32 {s(95)}, {s(sW)}, 21')
for k in range(2):
    p(f's_lshl_b32 {s(96)}, {s(94)}, 13')
    p(f's_add_u32 {s(78 + k)}, {s(96)}, {s(sWsp)}')
    p(f's_lshl_b32 {s(96)}, {s(94)}, 9')
    p(f's_add_u32 {s(80 + k)}, {s(96)}, {s(95)}')
    p(f's_xor_b32 {s(94)}, {s(94)}, 1')
p(f's_lshl_b32 {s(82)}, {s(sW)}, 10')
prep = [[(f's_add_u32 m0, {s(82)}, {PST}', None), (f'buffer_load_dwordx4 {v(vPi)}, {s(R_WIN, 4)}, {s(76)} offen lds', 'prep')],
        [(f's_add_u32 m0, {s(82)}, {PST + 4096}', None), (f'buffer_load_dwordx4 {v(vPi + 1)}, {s(R_WIN, 4)}, {s(76)} offen lds', 'prep')],
        [(f's_add_u32 m0, {s(82)}, {PST + 8192}', None), (f'buffer_load_dwordx4 {v(vPo)}, {s(R_WOUT, 4)}, {s(77)} offen lds', 'prep')],
        [(f'buffer_load_ushort {v(vBsp)}, {v(t3)}, {s(R_BSP, 4)}, 0 offen', None)]]
wsp_first = wsp_dma_ops(0)
if OPT['early'] & 1:
    emit(prep)
    prep = []
emit(wsp_first[:OPT['early'] >> 1])
wsp_first = wsp_first[OPT['early'] >> 1:]
p(f's_mul_i32 {s(94)}, {s(sB)}, 229376')
p(f's_mul_i32 {s(95)}, {s(sC)}, 7168')
p(f's_add_u32 {s(94)}, {s(94)}, {s(95)}')
p(f's_lshl_b32 {s(95)}, {s(sW)}, 10')
p(f's_add_u32 {s(94)}, {s(94)}, {s(95)}')
p(f's_mov_b32 {s(83)}, {s(94)}')
p(f's_add_u32 {s(94)}, {s(94)}, 4096')
p(f's_cmp_lt_u32 {s(sW)}, 3')
p(f's_cselect_b32 {s(94)}, {s(94)}, {LBASE:#x}')
p(f's_mov_b32 {s(84)}, {s(94)}')
p(f's_mul_i32 {s(94)}, {s(sB)}, 114688')
p(f's_lshl_b32 {s(96)}, {s(sC)}, 12')
p(f's_add_u32 {s(94)}, {s(94)}, {s(96)}')
p(f's_add_u32 {s(94)}, {s(94)}, {s(95)}')
p(f's_add_u32 {s(94)}, {s(94)}, {WO:#x}')
p(f's_cmp_lt_u32 {s(sC)}, 28')
p(f's_cselect_b32 {s(94)}, {s(94)}, {LBASE:#x}')
p(f's_mov_b32 {s(85)}, {s(94)}')
p(f's_lshr_b32 {s(94)}, {s(sB)}, 2')
p(f's_and_b32 {s(95)}, {s(sB)}, 3')
p(f's_lshl_b32 {s(sVst)}, {s(sC)}, 11')
p(f's_lshl_b32 {s(96)}, {s(sB)}, 8')
p(f's_add_u32 {s(sVst)}, {s(sVst)}, {s(96)}')
p(f's_sub_u32 {s(96)}, 32, {s(sC)}')
p(f's_and_b32 {s(96)}, {s(96)}, 31')
p(f's_cmp_eq_u32 {s(94)}, 0')
p(f's_cselect_b32 {s(96)}, {s(sC)}, {s(96)}')
p(f's_lshl_b32 {s(sVld)}, {s(96)}, 16')
p(f's_lshl_b32 {s(sH)}, {s(sC)}, 16')
p(f's_lshl_b32 {s(96)}, {s(95)}, 14')
p(f's_lshl_b32 {s(97)}, {s(94)}, 7')
p(f's_add_u32 {s(96)}, {s(96)}, {s(97)}')
p(f's_add_u32 {s(sK2)}, {s(sH)}, {s(96)}')
p(f's_lshl_b32 {s(96)}, {s(sW)}, 14')
p(f's_add_u32 {s(sH)}, {s(sH)}, {s(96)}')
p(f's_mov_b32 {s(sXb)}, 0')
p(f's_mov_b32 {s(sXo)}, 0x10000')
p(f's_lshl_b32 {s(96)}, {s(sB)}, 2')
p(f's_add_u32 {s(96)}, {s(96)}, {s(100)}')
p(f's_mul_i32 {s(sZld)}, {s(96)}, 114688')
p(f's_add_u32 {s(sZld)}, {s(sZld)}, {Z_:#x}')
p(f's_lshl_b32 {s(96)}, {s(sC)}, 2')
p(f's_add_u32 {s(96)}, {s(96)}, {s(sW)}')
p(f's_lshl_b32 {s(sUld)}, {s(96)}, 14')
p(f's_add_u32 {s(sUld)}, {s(sUld)}, {H_ if OPT["locd"] & 4 else U_:#x}')
p(f's_lshl_b32 {s(97)}, {s(sB)}, 10')
p(f's_add_u32 {s(sUst)}, {s(sUld)}, {s(97)}')
p(f's_lshl_b32 {s(sDm)}, {s(sW)}, 12')
p(f's_mul_i32 {s(sWI)}, {s(sB)}, 229376')
p(f's_add_u32 {s(sWI)}, {s(sWI)}, {s(sDm)}')
p(f's_mul_i32 {s(sWO)}, {s(sB)}, 114688')
p(f's_add_u32 {s(sWO)}, {s(sWO)}, {s(sDm)}')
p(f's_add_u32 {s(sWO)}, {s(sWO)}, {WO:#x}')
p(f's_and_b32 {s(96)}, s2, 15')
p(f's_lshl_b32 {s(96)}, {s(96)}, 8')
p(f's_add_u32 {s(sArr)}, {s(96)}, {FLAGS:#x}')
p(f's_and_b32 {s(96)}, s2, 7')
p(f's_lshl_b32 {s(96)}, {s(96)}, 12')
p(f's_add_u32 {s(sRep)}, {s(96)}, {FLAGS:#x}')
p(f's_lshl_b32 {s(97)}, {s(sB)}, 9')
p(f's_add_u32 {s(97)}, {s(97)}, {FLAGS + 0x8000:#x}')
p(f's_add_u32 {s(sP4)}, {s(96)}, {s(97)}')
p(f's_mov_b32 {s(sS4)}, {s(97)}')
p(f's_mov_b32 {s(sLocH)}, 0')
p(f'v_lshlrev_b32 {v(vL8)}, 3, {v(lane)}')
p(f'v_add_u32 {v(vL16hi)}, 0x10000, {v(vL16)}')
p(f'v_add_u32 {v(vL16h2)}, 0x20000, {v(vL16)}')
p(f'v_lshlrev_b32 {v(vPoll)}, 8, {v(n_)}')
p(f'v_and_b32 {v(vArr)}, 7, {v(lane)}')
p(f'v_lshlrev_b32 {v(vGrp)}, 2, {v(vArr)}')
p(f'v_lshlrev_b32 {v(vArr)}, 12, {v(vArr)}')
p(f'v_mov_b32 {v(vGK)}, {f2u(-2.302208198144325 * 0.044715):#x}')
p(f'v_mov_b32 {v(vGK + 1)}, {f2u(-2.302208198144325):#x}')
p(f'v_lshrrev_b32 {v(T)}, 3, {v(lane)}')
p(f'v_and_b32 {v(T + 4)}, 7, {v(lane)}')
p(f'v_lshlrev_b32 {v(T + 4)}, 4, {v(T + 4)}')
p(f'v_lshl_add_u32 {v(T + 2)}, {v(T)}, 8, {v(T + 4)}')
p(f's_lshl_b32 {s(96)}, {s(sW)}, 12')
p(f'v_add_u32 {v(vK2)}, {s(96)}, {v(T + 2)}')
p(f'v_and_b32 {v(T)}, 1, {v(T)}')
p(f'v_lshl_add_u32 {v(T)}, {v(T)}, 4, {v(g_)}')
p(f'v_mul_u32_u24 {v(T)}, 144, {v(T)}')
p(f's_lshr_b32 {s(96)}, {s(sW)}, 1')
p(f's_mul_i32 {s(96)}, {s(96)}, 4608')
p(f's_and_b32 {s(97)}, {s(sW)}, 1')
p(f's_mul_i32 {s(97)}, {s(97)}, 1152')
p(f's_add_u32 {s(96)}, {s(96)}, {s(97)}')
p(f's_add_u32 {s(96)}, {s(96)}, {SCR}')
p(f'v_add3_u32 {v(vTr)}, {v(T)}, {v(T + 4)}, {s(96)}')
p(f'v_lshrrev_b32 {v(T)}, 5, {v(lane)}')
p(f'v_and_b32 {v(T + 1)}, 1, {v(g_)}')
p(f'v_lshl_add_u32 {v(T + 2)}, {v(T)}, 4, {v(n_)}')
p(f'v_mul_u32_u24 {v(T + 2)}, 144, {v(T + 2)}')
p(f'v_lshl_add_u32 {v(T + 2)}, {v(T + 1)}, 4, {v(T + 2)}')
p(f's_lshl_b32 {s(96)}, {s(sW)}, 5')
p(f's_add_u32 {s(97)}, {s(96)}, {SCR}')
p(f'v_add_u32 {v(vTw)}, {s(97)}, {v(T + 2)}')
p(f'v_and_b32 {v(T + 2)}, 1, {v(lane)}')
p(f'v_lshlrev_b32 {v(T + 2)}, 5, {v(T + 2)}')
p(f'v_and_b32 {v(T + 3)}, 2, {v(lane)}')
p(f'v_lshl_add_u32 {v(T + 2)}, {v(T + 3)}, 3, {v(T + 2)}')
p(f'v_lshrrev_b32 {v(T + 3)}, 2, {v(lane)}')
p(f'v_add_u32 {v(T + 2)}, {v(T + 2)}, {v(T + 3)}')
p(f'v_mul_u32_u24 {v(T + 2)}, 144, {v(T + 2)}')
p(f'v_add_u32 {v(vXw)}, {s(97)}, {v(T + 2)}')
p(f'v_add_u32 {v(vXw + 1)}, 16, {v(vXw)}')
p(f's_lshl_b32 {s(96)}, {s(95)}, 4')
p(f's_add_u32 {s(96)}, {s(96)}, {s(94)}')
p(f's_lshl_b32 {s(96)}, {s(96)}, 5')
p(f's_add_u32 {s(98)}, {s(96)}, {s(sC)}')
p(f's_lshl_b32 {s(96)}, {s(sW)}, 7')
p(f's_add_u32 {s(96)}, {s(96)}, {s(98)}')
p(f's_lshl_b32 {s(96)}, {s(96)}, 10')
p(f'v_add_u32 {v(vXr)}, {s(96)}, {v(vL16)}')
p(f'v_mul_u32_u24 {v(T + 3)}, 1040, {v(T + 1)}')
p(f'v_lshl_add_u32 {v(T + 3)}, {v(T)}, 8, {v(T + 3)}')
p(f'v_lshl_add_u32 {v(T + 3)}, {v(n_)}, 3, {v(T + 3)}')
p(f's_mul_i32 {s(96)}, {s(sW)}, 2080')
p(f's_add_u32 {s(96)}, {s(96)}, {SCR}')
p(f'v_add_u32 {v(vUr)}, {s(96)}, {v(T + 3)}')
p(f'v_mul_u32_u24 {v(T + 3)}, 1040, {v(n_)}')
p(f'v_lshl_add_u32 {v(T + 3)}, {v(g_)}, 5, {v(T + 3)}')
p(f's_lshl_b32 {s(96)}, {s(sW)}, 8')
p(f's_add_u32 {s(96)}, {s(96)}, {SCR}')
p(f'v_add_u32 {v(vUw)}, {s(96)}, {v(T + 3)}')
p(f'v_lshlrev_b32 {v(T + 3)}, 13, {v(g_)}')
p(f'v_lshl_add_u32 {v(T + 3)}, {v(n_)}, 4, {v(T + 3)}')
p(f's_lshl_b32 {s(96)}, {s(sW)}, 9')
p(f'v_add_u32 {v(vVld)}, {s(96)}, {v(T + 3)}')
p(f'v_lshlrev_b32 {v(T + 3)}, 17, {v(g_)}')
p(f'v_lshl_add_u32 {v(T + 3)}, {v(n_)}, 4, {v(T + 3)}')
p(f's_lshl_b32 {s(96)}, {s(sW)}, 19')
p(f'v_add_u32 {v(vVst)}, {s(96)}, {v(T + 3)}')
p(f'v_mul_u32_u24 {v(T + 3)}, 160, {v(n_)}')
p(f'v_lshl_add_u32 {v(T + 3)}, {v(g_)}, 3, {v(T + 3)}')
p(f's_mul_i32 {s(96)}, {s(sW)}, 2560')
p(f's_add_u32 {s(96)}, {s(96)}, {SCR}')
p(f'v_add_u32 {v(vHw2)}, {s(96)}, {v(T + 3)}')
p(f'v_lshrrev_b32 {v(T + 3)}, 2, {v(lane)}')
p(f'v_mul_u32_u24 {v(T + 3)}, 160, {v(T + 3)}')
p(f'v_and_b32 {v(T + 2)}, 3, {v(lane)}')
p(f'v_lshl_add_u32 {v(T + 3)}, {v(T + 2)}, 3, {v(T + 3)}')
p(f'v_add_u32 {v(vHw)}, {s(96)}, {v(T + 3)}')
p(f'v_add_u32 {v(vHr)}, {SCR}, {v(T + 3)}')
for q in range(1, 5):
    p(f's_add_u32 {s(96)}, {s(sW)}, {q}')
    p(f's_and_b32 {s(96)}, {s(96)}, 3')
    p(f's_mul_i32 {s(96)}, {s(96)}, 3072')
    p(f's_add_u32 {s(96)}, {s(96)}, {SCR + (1024 * (q - 1) if q < 4 else 0)}')
    p(f'v_add_u32 {v(vRed + q - 1)}, {s(96)}, {v(vL16)}')
p(f'v_and_b32 {v(T)}, 7, {v(n_)}')
p(f'v_lshlrev_b32 {v(T)}, 6, {v(T)}')
p(f'v_add_u32 {v(T)}, {s(98)}, {v(T)}')
p(f'v_lshlrev_b32 {v(T + 1)}, 2, {v(g_)}')
p(f'v_mul_u32_u24 {v(T + 1)}, {v(T + 1)}, {v(T)}')
p(f'v_lshrrev_b32 {v(T + 2)}, 3, {v(n_)}')
p(f'v_lshl_add_u32 {v(T + 1)}, {v(T + 2)}, 9, {v(T + 1)}')
p(f's_cmp_eq_u32 {s(94)}, 0')
p(f's_cselect_b32 {s(73)}, 1.0, -1.0')
p(f's_cselect_b32 {s(74)}, 0, 1.0')
p(f's_cselect_b32 {s(72)}, 1.0, 0')
p(f's_cmp_eq_u32 {s(sC)}, 0')
p(f's_cselect_b32 {s(72)}, {s(72)}, 1.0')
p(f's_cselect_b32 {s(73)}, 0, {s(73)}')
p(f's_cselect_b32 {s(74)}, {s(74)}, 0')
for k in range(8):
    cp = 16 * (k >> 2) + (k & 3)
    p(f'v_mad_u32_u24 {v(T + 2)}, {v(T)}, {cp}, {v(T + 1)}')
    p(f'v_and_b32 {v(T + 2)}, 0x7ff, {v(T + 2)}')
    p(f'v_cvt_f32_u32 {v(T + 2)}, {v(T + 2)}')
    p(f'v_mul_f32 {v(T + 2)}, {f2u(1.0 / 2048):#x}, {v(T + 2)}')
    p(f'v_cos_f32 {v(T + 3)}, {v(T + 2)}')
    p(f'v_sin_f32 {v(T + 4)}, {v(T + 2)}')
    p(f'v_mul_f32 {v(T + 5)}, {s(74)}, {v(T + 3)}')
    p(f'v_mul_f32 {v(T + 3)}, {s(72)}, {v(T + 3)}')
    p(f'v_fma_f32 {v(T + 4)}, {s(73)}, {v(T + 4)}, {v(T + 5)}')
    p(f'v_cvt_pk_bf16_f32 {v(vC2 + k)}, {v(T + 3)}, {v(T + 4)}')
stamp('setup')
if OPT['wfirst'] == 1:
    emit(wsp_first)
    wsp_first = []
for i in range(OPT['x1'], 8):
    if OPT['wfirst'] == 2 and wsp_first:
        emit([wsp_first.pop(0)])
    x_loads(i, i + 1)
m1_load(108)
if OPT['ctpos'] == 0:
    ct_dma(110)
SCHED = OPT['sched'].split('/')
FIX = OPT['fix'].split('/')
WSR = (160, 192)
a2a_load = [(f'buffer_load_dword {v(241)}, {v(vPoll)}, {s(R_WS, 4)}, {s(sRep)} offen sc1', None)]


def wsp_run(items):
    i = 0
    while i < len(items):
        if items[i] == 'q':
            if_wave0()
            emit([a2a_load])
            p.end()
            i += 1
            continue
        k = int(items[i + 1])
        if items[i] == 'd':
            p.wait_lgkm(f'wr{k - 3}')
            wsp_dma(k)
        elif items[i] == 'r':
            wsp_read(k, WSR[k & 1])
        elif items[i] == 'a':
            wsp_park(k)
        else:
            wsp_perm(k, WSR[k & 1])
        if OPT['fine'] == 2:
            stamp('*' + items[i:i + 2])
        i += 2


zpois = [(f'buffer_store_dwordx4 {v(116, 4)}, {v(vZst)}, {s(R_WL, 4)}, {s(sZst)} offen sc1', 'pub')]
bg = prep + wsp_first
if OPT['zs']:
    bg = [zpois] + bg if OPT['zp0'] == 0 else bg + [zpois]
for ch in SCHED[0]:
    bg += wsp_dma_ops(int(ch))
for k in range(4):
    p(f'v_mov_b32 {v(T + 2 + k)}, 0')
p.bg = bg
p.bg_on(OPT['wspev'])
for i in range(64):
    p(f'v_dot2c_f32_bf16 {v(T + 2 + (i & 1))}, {s(sOnes)}, {v(XR + i)}')
    p(f'v_dot2c_f32_bf16 {v(T + 4 + (i & 1))}, {v(XR + i)}, {v(XR + i)}')
    if i == 7:
        unpack(XR, 8, XV)
    if i == OPT['ann']:
        p.bg_on(0)
        p(f's_cmp_eq_u32 {s(sG0)}, 3')
        p.begin('G0', 's_cbranch_scc0')
        p.wait_vm('z')
        p(f'v_mov_b32 {v(EI)}, 1')
        p('s_mov_b64 exec, 1')
        p(f'buffer_store_dword {v(EI)}, off, {s(R_DBG, 4)}, 0 sc1')
        p('s_mov_b64 exec, -1')
        p.end()
        p.bg_on(OPT['wspev'])
p.bg_on(0)
p.bg_emit()
p(f'v_add_f32 {v(T)}, {v(T + 2)}, {v(T + 3)}')
p(f'v_add_f32 {v(T + 1)}, {v(T + 4)}, {v(T + 5)}')
for qp in ('[1,0,3,2]', '[2,3,0,1]'):
    for k in range(2):
        p(f'v_add_f32_dpp {v(T + k)}, {v(T + k)}, {v(T + k)} quad_perm:{qp} row_mask:0xf bank_mask:0xf')
dbg_load = [(f'buffer_load_dword {v(241)}, off, {s(R_DBG, 4)}, 0 sc1', None)]
assert not SCHED[1]
wsp_run(SCHED[1])

p.section('body')
p('L_layer:')
stamp('T')
HP, AF, D1, VO = 56, 72, 104, 56
finish_stats(T, 512)
for i in range(0, 16, 2):
    p(f'v_pk_fma_f32 {v(XV + i, 2)}, {v(XV + i, 2)}, {v(T, 2)}, {v(T, 2)} op_sel:[0,0,1] op_sel_hi:[1,0,1]')
for t in range(4):
    for k in range(2):
        p(f'v_cvt_pk_bf16_f32 {v(HP + 2 * t + k)}, {v(XV + 8 * k + t)}, {v(XV + 8 * k + 4 + t)}')
    p(f'ds_write_b64 {v(vHw)}, {v(HP + 2 * t, 2)} offset:{32 * t}', tag='hw')
p(f's_add_u32 {s(sT + 1)}, {s(sVst)}, 0x10000')
p.wait_lgkm('hw')
p.wait_vm('prep')
p('s_barrier')
for ks in range(2):
    for tile in range(4):
        for half in range(2):
            p(f'ds_read_b64_tr_b16 {v(AF + 16 * ks + 4 * tile + 2 * half, 2)}, {v(vHr)} offset:{(32 * ks + 16 * half) * 160 + 32 * tile}')
if_layer(0)
for k in range(2):
    for half in range(2):
        p(f'ds_read_b64_tr_b16 {v(PK + 4 * k + 2 * half, 2)}, {v(vPri)} offset:{128 * k + 896 * half}')
for half in range(2):
    p(f'ds_read_b64_tr_b16 {v(PK + 8 + 2 * half, 2)}, {v(vPro)} offset:{2048 * half}')
p.end()
for ks in range(2):
    for tile in range(4):
        d = D1 + 4 * tile
        p(f'{M16} {v(d, 4)}, {v(M1 + 4 * ks, 4)}, {v(AF + 16 * ks + 4 * tile, 4)}, {v(d, 4) if ks else 0}')
if_layer(0)
p(f'v_lshlrev_b32 {v(vBsp)}, 16, {v(vBsp)}')
p(f'buffer_store_dwordx4 {v(PK, 4)}, {v(vL16)}, {s(R_WS, 4)}, {s(83)} offen sc1', tag='pub')
p(f'buffer_store_dwordx4 {v(PK + 4, 4)}, {v(vL16)}, {s(R_WS, 4)}, {s(84)} offen sc1', tag='pub')
p(f'buffer_store_dwordx4 {v(PK + 8, 4)}, {v(vL16)}, {s(R_WS, 4)}, {s(85)} offen sc1', tag='pub')
p.end()
for jj in range(2):
    for t in range(4):
        p(f'v_cvt_pk_bf16_f32 {v(VO + 4 * jj + t)}, {v(D1 + 4 * t + 2 * jj)}, {v(D1 + 4 * t + 2 * jj + 1)}')
    p(f'buffer_store_dwordx4 {v(VO + 4 * jj, 4)}, {v(vVst)}, {s(R_WL, 4)}, {s(sT + 1 if jj else sVst)} offen sc1', tag='pub')
stamp('Vst')
if_layer(0)
if_wave0()
emit([dbg_load])
p.end()
wsp_run(SCHED[2])
if_wave0()
retry_until(dbg_load, lambda: p(f'v_cmp_ne_u32 vcc, 1, {v(241)}'))
p.end()
p.end()
wz2 = w_dma_ops(sWI, 114688, LOC_Z2, 'wz2')
P1, P2, P3 = OPT['wzp1'], OPT['wzp1'] + OPT['wzp2'], OPT['wzp1'] + OPT['wzp2'] + OPT['wzp3']
assert P1 == 0
if_layer(1)
ct_dma(T + 6)
emit(wz2[P1:P2])
p.end()
stamp('init')
if OPT['vs']:
    if_layer(0)
    p.wait_vm('pub')
    p.wait_vm('ct')
    arrive(sArr, 8)
    p.end()
    if_layer(1)
    p.wait_vm('x2')
    p.wait_vm('ct')
    arrive_group(sS2, 32)
    p.end()
else:
    p.wait_vm('pub')
    p.wait_vm('ct')
    arrive(sArr, 8)
poison(5, 96)
code_prefetch(1, 'L_k2')
stamp('arr1')
FA, TW, FB, VR, D2, UP, XRES, Y = 40, 64, 80, 96, 160, 192, 224, 208
for k in range(14):
    p(f'ds_read_b128 {v(FA + 4 * k, 4)}, {v(vL16hi)} offset:{CT - 65536 + k * 1024}')
if_layer(0)
wsp_run(SCHED[3])
if_wave0()
retry_until(a2a_load, lambda: p(f'v_cmp_ne_u32 vcc, 16, {v(241)}'))
p.end()
p('s_barrier')
p.end()
for k in range(4):
    p(f's_add_u32 {s(sT + 4 + k)}, {s(sVld)}, {(16 * (k >> 1) + 2 * (k & 1)) * 2048:#x}')
if_layer(1)
emit(wz2[P2:P3])
x2_load = [(f'buffer_load_dword {v(248)}, {v(vGrp)}, {s(R_WS, 4)}, {s(sS2)} offen offset:32{PG}', None)]
if OPT['vs']:
    emit([x2_load])
else:
    poll(sRep, vPoll, 16)
p.end()
wz2_l0, wz2_l1 = list(wz2), wz2[P3:]


L0N = [int(ch, 36) for ch in OPT['l0n']]
assert sum(L0N) == 28
HOOK = [''] + SCHED[8:]
assert not SCHED[8:] or sum(L0N[:5]) == 0


def l0_dma(n):
    n0 = L0N.pop(0)
    extra = HOOK.pop(0) if HOOK else ''
    if n0 or extra:
        if_layer(0)
        wsp_run(extra)
        emit([wz2_l0.pop(0) for _ in range(n0)])
        p.end()
    if wz2_l1 and n:
        if_layer(1)
        emit([wz2_l1.pop(0) for _ in range(min(n, len(wz2_l1)))])
        p.end()


stamp('S1')
p('L_k2:')
vl = [(f'buffer_load_dwordx4 {v(VR + 16 * gk + 4 * ii, 4)}, {v(vVld)}, {s(R_WL, 4)}, {s(sT + 4 + 2 * (gk & 1) + (ii >> 1))} '
       f'offen offset:{(ii & 1) * 2048 + (gk >> 1) * 256} sc1', None) for gk in range(4) for ii in range(4)]
for gk in range(4):
    emit([vl[4 * gk:4 * gk + 4]])
    if gk < 3 and SCHED[4 + gk]:
        if_layer(0)
        wsp_run(SCHED[4 + gk])
        p.end()
if OPT['vs']:
    if_layer(1)
    retry_until(x2_load, lambda: p(f'v_cmp_ne_u32 vcc, 1, {v(248)}'))
    p.end()
p(f'buffer_load_dwordx4 {v(XRES, 4)}, {v(vXr)}, {s(R_X, 4)}, {s(sXb)} offen{LG}')
p(f'buffer_load_dwordx4 {v(XRES + 4, 4)}, {v(vXr)}, {s(R_X, 4)}, {s(sXo)} offen{LG}')
if_layer(0)
p(f'buffer_load_dword {v(248)}, {v(vGrp)}, {s(R_WS, 4)}, {s(sS2)} offen offset:128 sc1')
wsp_run(SCHED[7])
if not SCHED[8:]:
    p('s_waitcnt lgkmcnt(0)')
    p('s_barrier')
p.end()
l0_dma(0)
stamp('Vld')


def u_pack(hi):
    up = (192, 200)[hi]
    for r in range(4):
        for lp in range(2):
            p(f'v_cvt_pk_bf16_f32 {v(up + 2 * r + lp)}, {v(D2 + 16 * hi + 8 * lp + r)}, {v(D2 + 16 * hi + 8 * lp + 4 + r)}')
        if r & 1:
            p(f'ds_write_b128 {v(vUw)}, {v(up + 2 * r - 2, 4)} offset:{128 * hi + 8 * (r - 1)}')


for hi in range(2):
    for ks in range(2):
        if hi and ks:
            u_pack(0)
        r = VR + 32 * hi + 16 * ks
        if OPT['vs']:
            def v_test(r=r):
                p(f'v_max3_u32 {v(T)}, {v(r + 3)}, {v(r + 7)}, {v(r + 11)}')
                p(f'v_max_u32 {v(T)}, {v(T)}, {v(r + 15)}')
                p(f'v_cmp_eq_u32 vcc, -1, {v(T)}')
            retry_until(vl[4 * (2 * hi + ks):], v_test)
        for i in range(4):
            for j in range(i + 1, 4):
                p(f'v_swap_b32 {v(r + 4 * i + j)}, {v(r + 4 * j + i)}')
        for lo in range(4):
            d = D2 + 16 * hi + 4 * lo
            p(f'{M16} {v(d, 4)}, {v(r + 4 * lo, 4)}, {v(vC2 + 4 * ks, 4)}, {v(d, 4) if ks else 0}')
fine('st2')
l0_dma(4)
u_pack(1)
for k in range(2):
    p(f'ds_write_b128 {v(vXw + k)}, {v(XRES + 4 * k, 4)} offset:16640')
p('s_waitcnt lgkmcnt(0)')
p('s_barrier')
fine('ubar')
poison(4, 176)
UA, DR, DI, TT, PF = 96, 112, 128, 144, 160
for ri in range(2):
    for dh in range(2):
        for half in range(2):
            p(f'ds_read_b64_tr_b16 {v(UA + 8 * ri + 4 * dh + 2 * half, 2)}, {v(vUr)} offset:{ri * 8320 + dh * 512 + half * 128}')
for o in range(2):
    p(f'ds_read_b128 {v(XRES + 4 * o, 4)}, {v(vTw)} offset:{16640 + 4608 * o}')
l0_dma(4)
for ri in range(2):
    for dh in range(2):
        first = ri == 0 and dh == 0
        fr = FA + 4 * ((2 if ri else 0) + dh)
        fi = FA + 4 * ((0 if ri else 4) + dh)
        p(f'{M32} {v(DR, 16)}, {v(UA + 8 * ri + 4 * dh, 4)}, {v(fr, 4)}, {0 if first else v(DR, 16)}')
        p(f'{M32} {v(DI, 16)}, {v(UA + 8 * ri + 4 * dh, 4)}, {v(fi, 4)}, {0 if first else v(DI, 16)}')
fine('stA')
unpack(XRES, 8, Y)
fine('xres')
l0_dma(4)
for row in range(2):
    for k in range(0, 8, 2):
        r = 8 * row + k
        p(f'v_pk_mul_f32 {v(TT + k, 2)}, {v(DI + r, 2)}, {v(TW + 8 + k, 2)}')
        p(f'v_pk_mul_f32 {v(TT + 8 + k, 2)}, {v(DR + r, 2)}, {v(TW + 8 + k, 2)}')
    for k in range(0, 8, 2):
        r = 8 * row + k
        p(f'v_pk_fma_f32 {v(TT + k, 2)}, {v(DR + r, 2)}, {v(TW + k, 2)}, {v(TT + k, 2)}')
        p(f'v_pk_fma_f32 {v(TT + 8 + k, 2)}, {v(DI + r, 2)}, {v(TW + k, 2)}, {v(TT + 8 + k, 2)} neg_lo:[0,0,1] neg_hi:[0,0,1]')
    for k in range(8):
        p(f'v_cvt_pk_bf16_f32 {v(PF + 8 * row + k)}, {v(TT + 2 * k)}, {v(TT + 2 * k + 1)}')
for k in range(4):
    p(f'{M32} {v(Y, 16)}, {v(PF + 4 * k, 4)}, {v(FB + 4 * k, 4)}, {v(Y, 16)}')
fine('stB')
XO, HO = 224, 232
l0_dma(4)
if_layer(0)
p(f'v_cmp_ne_u32 vcc, {s(sLoc)}, {v(248)}')
p('s_cmp_eq_u64 vcc, 0')
p(f's_cselect_b32 {s(sLoc)}, {OPT["loc"]}, 0')
p.end()
local_stats(Y, 16, T)
p(f'v_permlane32_swap_b32 {v(T)}, {v(T + 1)}')
p(f'v_add_f32 {v(T)}, {v(T)}, {v(T + 1)}')
for k, sh in enumerate((8, 4, 2, 1)):
    p(f'v_cvt_pk_bf16_f32 {v(XO + 2 * k)}, {v(Y + 4 * k)}, {v(Y + 4 * k + 1)}')
    p(f'v_cvt_pk_bf16_f32 {v(XO + 2 * k + 1)}, {v(Y + 4 * k + 2)}, {v(Y + 4 * k + 3)}')
    p(f'v_add_f32_dpp {v(T)}, {v(T)}, {v(T)} row_ror:{sh} row_mask:0xf bank_mask:0xf')
p(f'v_mov_b32 {v(T + 1)}, {v(T)}')
p(f's_add_u32 {s(sT)}, {s(sK2)}, {X1_:#x}')
p(f's_add_u32 {s(sT + 1)}, {s(sK2)}, {H_:#x}')
p(f'v_permlane32_swap_b32 {v(T)}, {v(T + 1)}')
finish_stats(T, 512)
norm_pack(Y, 16, T, Y, HO)
fine('norm')
for o in range(2):
    p(f'ds_write_b128 {v(vTw)}, {v(HO + 4 * o, 4)} offset:{16640 + 4608 * o}')
p('s_waitcnt lgkmcnt(0)')
p('s_barrier')
for k in range(2):
    p(f'ds_read_b128 {v(HO + 4 * k, 4)}, {v(vTr)} offset:{16640 + 576 * k}')
for o in range(2):
    p(f'ds_write_b128 {v(vTw)}, {v(XO + 4 * o, 4)} offset:{4608 * o}')
gstore([f'buffer_store_dwordx4 {v(HO + 4 * k, 4)}, {v(vK2)}, {s(R_WL, 4)}, {s(sT + 1)} offen offset:{2048 * k}' for k in range(2)], 'pub', OPT['locd'] & 1, sLocH)
l0_dma(6)
wsp_fix(FIX[0], 104)
stamp('K2')
p('s_waitcnt lgkmcnt(0)')
p.wait_vm('pub')
if OPT['hpf']:
    for k in range(2):
        p(f'buffer_load_dwordx4 {v(HO + 4 * k, 4)}, {v(vK2)}, {s(R_WL, 4)}, {s(sT + 1)} offen offset:{2048 * k} sc1')
arrive_group(sS2)
code_prefetch(2, 'L_k3')
for k in range(2):
    p(f'ds_read_b128 {v(XO + 4 * k, 4)}, {v(vTr)} offset:{576 * k}')
if OPT['fixev']:
    p.bg = [wz2_l0.pop() for _ in range(L0N[0] - 8)][::-1]
    L0N[0] = 8
l0_dma(6)
wsp_fix(FIX[1], 104, OPT['fixev'])
stamp('arr2')
HF, Z2, Z1, WR, WD, GT = 40, 104, 136, 164, 12, 232
for k in range(4):
    p(f's_add_u32 {s(sT + 4 + k)}, {s(sH)}, {H_ + 4096 * k:#x}')
p('s_waitcnt lgkmcnt(0)')
poll(sS2, vGrp, 1, 'wz26')
stamp('S2')
p('L_k3:')
hl = [[(f'buffer_load_dwordx4 {v(HF + 4 * ks, 4)}, {v(vL16)}, {s(R_WL, 4)}, {s(sT + 4 + (ks >> 2))} offen offset:{1024 * (ks & 3)}{LG}', None)]
      for ks in range(16)]
xs = [[(f'buffer_store_dwordx4 {v(XO + 4 * k, 4)}, {v(vK2)}, {s(R_WL, 4)}, {s(sT)} offen offset:{2048 * k} sc1', 'x1')] for k in range(2)]
wz1 = w_dma_ops(sWI, 0, LOC_Z1, 'wz1')
emit(hl[:OPT['pre3']])
SEL, ZP, ZT, ZO = 212, 228, 164, 104
p(f'v_and_b32 {v(SEL)}, 0xf0, {v(vL16)}')
p(f'v_lshrrev_b32 {v(SEL + 1)}, 2, {v(vL16)}')
p(f'v_and_b32 {v(SEL + 1)}, 0xc0, {v(SEL + 1)}')
p(f'v_sub_u32 {v(SEL)}, {v(SEL)}, {v(SEL + 1)}')
p(f'v_mov_b32 {v(SEL + 4)}, 0x3f80')
p(f'v_lshlrev_b32 {v(SEL + 4)}, {v(SEL)}, {v(SEL + 4)}')
p(f'v_lshrrev_b32 {v(SEL + 1)}, 5, {v(SEL)}')
p(f'v_cmp_eq_u32 vcc, 0, {v(SEL + 1)}')
p(f'v_cndmask_b32 {v(SEL + 2)}, 0, {v(SEL + 4)}, vcc')
p(f'v_cmp_eq_u32 vcc, 1, {v(SEL + 1)}')
p(f'v_cndmask_b32 {v(SEL + 3)}, 0, {v(SEL + 4)}, vcc')
for k in (0, 1, 4, 5):
    p(f'v_mov_b32 {v(SEL + k)}, 0')
p(f'v_mov_b32 {v(ZP + 14)}, 0')
p(f'v_mov_b32 {v(ZP + 15)}, 0')
wsp_fix(FIX[2], 104)
n_h = 16 - OPT['pre3']
fill = spread(hl[OPT['pre3']:], 1, 5)
fill.update(spread(xs + wz1[:12], 5 * n_h + 1, OPT['z2sp']))
fill[max(fill) + 3] = lambda: poison(1, 132)
gemm_r(Z2, 7, 0, 16, HF, WR, WD, LOC_Z2, fill=fill)
p.wait_vm('x1')
p('s_barrier')
stamp('z2mm')
p.bg = wz1[12:]
p.bg_emit(2)
p.bg_on(OPT['g2ev'])
gelu(Z2, 28, GT)
local_stats(Z2, 28, T)
p.bg_on(0)
reduce_g(T, T + 1)
publish_stats(0)
stamp('pub3')
Z1A = OPT['z1a']
p.bg_emit()
p(f's_mov_b32 {s(sT + 2)}, {s(sZld)}')
p(f'v_add_u32 {v(245)}, {s(sDm)}, {v(vL16)}')
OW, OR, OG = 248, 249, 253
p(f's_add_u32 {s(sT + 1)}, {s(sUst)}, 8192')
p(f's_lshl_b32 {s(sT + 3)}, {s(sB)}, 10')
p(f's_add_u32 {s(sT + 3)}, {s(sT + 3)}, {s(sH)}')
p(f's_add_u32 {s(sT + 12)}, {s(sT + 3)}, {X1_:#x}')
p(f's_add_u32 {s(sT + 13)}, {s(sT + 3)}, {X1_ + 8192:#x}')
for k in range(4):
    p(f's_add_u32 {s(sT + 4 + k)}, {s(sUld)}, {4096 * k}')
    p(f's_add_u32 {s(sT + 8 + k)}, {s(sH)}, {X1_ + 4096 * k:#x}')
p(f'v_and_b32 {v(133)}, 0xf0, {v(vL16)}')
p(f'v_mul_u32_u24 {v(133)}, 9, {v(133)}')
p(f'v_lshrrev_b32 {v(134)}, 8, {v(vL16)}')
p(f'v_lshl_add_u32 {v(133)}, {v(134)}, 5, {v(133)}')
p(f's_mul_i32 {s(99)}, {s(sW)}, 2304')
p(f's_add_u32 {s(99)}, {s(99)}, {SCR + 12288}')
p(f'v_add_u32 {v(OW)}, {s(99)}, {v(133)}')
p(f'v_lshrrev_b32 {v(133)}, 7, {v(vL16)}')
p(f'v_lshl_add_u32 {v(134)}, {v(133)}, 4, {v(vL16)}')
p(f'v_add_u32 {v(OR)}, {s(99)}, {v(134)}')
p(f'v_and_b32 {v(134)}, 0x70, {v(vL16)}')
p(f'v_lshl_add_u32 {v(OG)}, {v(133)}, 16, {v(134)}')
p(f's_lshl_b32 {s(99)}, {s(sW)}, 9')
p(f's_add_u32 {s(99)}, {s(99)}, {s(sC)}')
p(f's_lshl_b32 {s(99)}, {s(99)}, 10')
p(f's_add_u32 {s(sT + 14)}, {s(99)}, {s(sB128)}')
p(f's_add_u32 {s(sT + 15)}, {s(sT + 14)}, 0x8000')
p.wait_vm('wz12')
p('s_barrier')
wo = w_dma_ops(sWO, 0, LOC_WO, 'wo')
fill = {OPT['gpos']: gather_loads(0)}
fill.update(spread(wo[:OPT['woa']], OPT['gpos'] + 2, 2))
gemm_r(Z1, 7, 0, Z1A, HF, WR, WD, LOC_Z1, fill=fill)
stamp('z1a')
gather_finish(0)
stamp('S3')
poison(2, 132)
finish_stats(T, 896)
for i in range(0, 28, 2):
    p(f'v_pk_fma_f32 {v(Z2 + i, 2)}, {v(Z2 + i, 2)}, {v(T, 2)}, {v(T, 2)} op_sel:[0,0,1] op_sel_hi:[1,0,1]')
ZO = 192
for pr in range(6):
    if pr < 4:
        tiles = [ft for ft in (2 * pr, 2 * pr + 1) if ft < 7]
        for ft in tiles:
            for k in range(2):
                p(f'v_cvt_pk_bf16_f32 {v(ZP + 2 * ft + k)}, {v(Z2 + 4 * ft + 2 * k)}, {v(Z2 + 4 * ft + 2 * k + 1)}')
    if 2 <= pr:
        q = pr - 2
        for ft in (2 * q, 2 * q + 1):
            for k in range(2 if ft < 7 else 0):
                p(f'v_cvt_pk_bf16_f32 {v(ZO + 2 * ft + k)}, {v(ZT + 4 * ft + 2 * k)}, {v(ZT + 4 * ft + 2 * k + 1)}')
        p(f's_add_u32 {s(sT)}, {s(sZst)}, {q * 32768:#x}')
    if pr < 4:
        for ft in tiles:
            p(f'{M16} {v(ZT + 4 * ft, 4)}, {v(ZP + 4 * pr, 4)}, {v(SEL + (0 if ft & 1 else 2), 4)}, 0')
    if 2 <= pr:
        for k in range(2):
            p(f'v_permlane16_swap_b32 {v(ZO + 4 * q + k)}, {v(ZO + 4 * q + 2 + k)}')
        if q == 3:
            p('s_mov_b32 exec_lo, 0xffff')
            p('s_mov_b32 exec_hi, 0xffff')
        p(f'buffer_store_dwordx4 {v(ZO + 4 * q, 4)}, {v(vZst)}, {s(R_WL, 4)}, {s(sT)} offen sc1', tag='pub')
p('s_mov_b64 exec, -1')
stamp('Zst')
poison(3, 132)
p.wait_vm('wz16')
p('s_barrier')
Z1B = min(16, Z1A + OPT['z1arr'])
wreg = lambda k: 104 + 4 * k if k < 8 else 212 + 4 * (k - 8)
wst = []
for k in range(16):
    g = [(f's_add_u32 {s(sDo)}, {s(sWO)}, {16384 * (3 + (k >> 2)):#x}', None)] if k % 4 == 0 else []
    if not OPT['nobg'] & 1:
        g.append((f'buffer_load_dwordx4 {v(wreg(k), 4)}, {v(vL16)}, {s(R_WS, 4)}, {s(sDo)} offen offset:{1024 * (k & 3)}', None))
    wst.append(g)
bgw = wo[OPT['woa']:12] + wst
wo = []
ZD, AC, RT, UO = OPT['zd'], 196, 228, 240


def zreg(fi):
    k = fi % ZD
    return 56 + 4 * k


def zload(fi):
    if fi % 4 == 0 and fi:
        p(f's_add_u32 {s(sT + 2)}, {s(sT + 2)}, 4096')
    if OPT['k4load'] or fi < ZD:
        p(f'buffer_load_dwordx4 {v(zreg(fi), 4)}, {v(vL16)}, {s(R_WL, 4)}, {s(sT + 2)} offen offset:{(fi % 4) * 1024}' + ' sc1')


nin = min(len(bgw), (112 - 7 * Z1A - 1) // OPT['wosp'])
fill = spread(bgw[:nin], 7 * Z1A + 1, OPT['wosp'])
nz = 0
if OPT['zs'] and OPT['zin'] and nin == len(bgw):
    pos = max(max(fill) + OPT['wosp'], OPT['zin'])
    while nz < ZD and max(pos, 7 * (nz + 5) - 1) < 112:
        pos = max(pos, 7 * (nz + 5) - 1)
        fill[pos] = (lambda k: lambda: zload(k))(nz)
        pos += OPT['zsp']
        nz += 1
gemm_r(Z1, 7, Z1A, Z1B, HF, WR, WD, LOC_Z1, last=112, fill={k: g for k, g in fill.items() if k < 7 * Z1B})
p.wait_vm('pub')
arrive(sS4, 8)
code_prefetch(4, 'L_k4')
stamp('arr4')
if Z1B < 16:
    gemm_r(Z1, 7, Z1B, 16, HF, WR, WD, LOC_Z1, preload=False, fill={k: g for k, g in fill.items() if k >= 7 * Z1B})
p.bg = bgw[nin:]
if nz:
    for fi in range(nz, ZD):
        zload(fi)
    nz = ZD
if OPT['g1w']:
    p.bg_on(8)
    gelu(Z1, 4 * OPT['g1w'], 164)
    p.bg_on(0)
p.bg_emit()
wsp_fix(FIX[3], 164)
stamp('win4')
if OPT['zs']:
    if Z1B < 16:
        p('s_barrier')
else:
    poll(sP4, None, 32)
stamp('S4')
p('L_k4:')
def k4_epilogue(ft):
    ac, buf = AC + 16 * (ft & 1), 12288 * (ft & 1)
    st1 = [f'ds_write_b128 {v(vRed + q - 1)}, {v(ac + 4 * q, 4)} offset:{buf}' for q in (1, 2, 3)]
    st1 += [f'v_add_f32 {v(ac + r)}, {v(vBsp)}, {v(ac + r)}' for r in range(4)]
    st2 = ['s_waitcnt lgkmcnt(0)', 's_barrier']
    st2 += [f'ds_read_b128 {v(RT + 4 * q, 4)}, {v(vRed + 3)} offset:{buf + 1024 * q}' for q in range(3)]
    st3 = [f'v_add_f32 {v(ac + r)}, {v(RT + 4 * q + r)}, {v(ac + r)}' for q in range(3) for r in range(4)]
    st3 += [f'v_mul_f32 {v(ac + r)}, {v(Z1 + 4 * ft + r)}, {v(ac + r)}' for r in range(4)]
    st3 += [f'v_cvt_pk_bf16_f32 {v(UO + 2 * (ft & 1) + k)}, {v(ac + 2 * k)}, {v(ac + 2 * k + 1)}' for k in range(2)]
    if ft == 6:
        st3 += [f'buffer_store_dwordx2 {v(UO, 2)}, {v(vL8)}, {s(R_WL, 4)}, {s(sT + 13)} offen']
    elif ft == 5:
        st3 += [f'buffer_store_dwordx4 {v(UO, 4)}, {v(vL16)}, {s(R_WL, 4)}, {s(sT + 12)} offen']
    elif ft & 1:
        st3 += [f'buffer_store_dwordx4 {v(UO, 4)}, {v(vL16)}, {s(R_WL, 4)}, {s(sT + 1 if ft == 3 else sUst)} offen offset:0']
    return st1, st2, st3


def k4_emit(x):
    if x.startswith('buffer_store'):
        late = x.endswith('offen')
        if late:
            p.wait_vm('x1l')
        gstore([x], 'u6' if 'dwordx2' in x else 'pub', OPT['locd'] & (2 if late else 4))
    else:
        p(x)


def gelu_ops(x, t):
    ops = [f'v_mul_f32 {v(t + k)}, {v(x + k)}, {v(x + k)}' for k in range(4)]
    ops += [f'v_fma_f32 {v(t + k)}, {v(t + k)}, {v(vGK)}, {v(vGK + 1)}' for k in range(4)]
    ops += [f'v_mul_f32 {v(t + k)}, {v(t + k)}, {v(x + k)}' for k in range(4)]
    ops += [f'v_exp_f32 {v(t + k)}, {v(t + k)}' for k in range(4)]
    ops += [f'v_add_f32 {v(t + k)}, 1.0, {v(t + k)}' for k in range(4)]
    ops += [f'v_rcp_f32 {v(t + k)}, {v(t + k)}' for k in range(4)]
    ops += [f'v_mul_f32 {v(x + k)}, {v(t + k)}, {v(x + k)}' for k in range(4)]
    return ops


WR5, X1R, XP, FL, X1L = 56, 232, 104, 244, 136
assert ZD == WD


def ureg(ks):
    return (104, 120, 164, 180, 212, 196, 136)[ks >> 2] + 4 * (ks & 3)


ul = [[(f'buffer_load_dwordx4 {v(ureg(ks), 4)}, {v(vL16)}, {s(R_WL, 4)}, {s(sT + 4 + (ks >> 2))} offen offset:{1024 * (ks & 3)}{LG}', None)]
      for ks in range(24)]
ul += [[(f'buffer_load_dwordx2 {v(ureg(24 + i) + 2 * k, 2)}, {v(vL8)}, {s(R_WL, 4)}, {s(sT + 10 + (i >> 1))} offen offset:{1024 * (2 * (i & 1) + k)}{LG}', None)
        for k in range(2)] for i in range(4)]


def flag_store(off):
    p(f'v_mov_b32 {v(FL + 1)}, 1')
    p(f's_add_u32 {s(99)}, {s(sS5)}, {s(sB4)}')
    p('s_mov_b64 exec, 1')
    gstore([f'buffer_store_dword {v(FL + 1)}, off, {s(R_WS, 4)}, {s(99)} offset:{off}'])
    p('s_mov_b64 exec, -1')


def flag_load(off):
    return [(f'buffer_load_dword {v(FL)}, {v(vGrp)}, {s(R_WS, 4)}, {s(sS5)} offen offset:{off}{PG}', None)]


def z_check(fi):
    loads = [(f's_add_u32 {s(99)}, {s(sZld)}, {1024 * fi:#x}', None)]
    loads += [(f'buffer_load_dwordx4 {v(zreg(fi + k), 4)}, {v(vL16)}, {s(R_WL, 4)}, {s(99)} offen offset:{1024 * k} sc1', None) for k in range(2)]
    return loads, lambda: p(f'v_cmp_u_f32 vcc, {v(zreg(fi) + 3)}, {v(zreg(fi + 1) + 3)}')


s4_load = [(f'buffer_load_dword {v(FL)}, off, {s(R_WS, 4)}, {s(sP4)} sc1', None)]


def flag_check(off):
    retry_until(flag_load(off), lambda: p(f'v_cmp_ne_u32 vcc, 1, {v(FL)}'))


for fi in range(nz, ZD):
    zload(fi)
assert not FIX[4]
x1l = [(f'buffer_load_dwordx4 {v(X1L + 4 * o, 4)}, {v(vL16)}, {s(R_WL, 4)}, {s(sT + 12 + o)} offen{LG}', 'x1l') for o in range(2)]
tail = ul[:16]
ROT = 112 % ZD
for ft in range(7):
    fill = {}
    if ft and OPT['k4epi']:
        st1, st2, st3 = k4_epilogue(ft - 1)
        pos = OPT['e1']
        for x in st1:
            fill.setdefault(pos, []).append(x)
            pos += 1
        pos = OPT['e2']
        for x in st2:
            fill.setdefault(pos, []).append(x)
            pos += 1
        pos = OPT['e3']
        for x in st3:
            fill.setdefault(pos, []).append(x)
            pos += 1
    if ft == 0:
        for k in range(16):
            fill[4 * k + 1] = [f'ds_write_b128 {v(245)}, {v(wreg(15 - k), 4)} offset:{16384 * ((15 - k) >> 2) + 1024 * ((15 - k) & 3)}']
    if ft == OPT['upk']:
        free = [k for k in range(64) if k % 4 != 3][-16:]
        for i in range(8):
            fill.setdefault(free[2 * i], []).append(f'v_lshlrev_b32 {v(XV + 2 * i)}, 16, {v(X1L + i)}')
            fill.setdefault(free[2 * i + 1], []).append(f'v_and_b32 {v(XV + 2 * i + 1)}, 0xffff0000, {v(X1L + i)}')
    free = [k for k in range(64) if k not in fill] + [k for k in range(64) if len(fill.get(k, [])) == 1 and fill[k][0][0] == 'v' and k % 4 != 3]
    free = sorted(free[:28])
    for k, x in zip(free, gelu_ops(Z1 + 4 * (ft + OPT['gsh']), T) if OPT['g1w'] <= ft + OPT['gsh'] < 7 else []):
        fill.setdefault(k, []).append(x)
    for a2 in range(16):
        fi = ft * 16 + a2
        chk = OPT['zs'] and fi & 1 and fi < 31
        if OPT['zs'] and fi == 0:
            retry_until(*z_check(0))
        for q in range(4):
            d = AC + 16 * (ft & 1) + 4 * q
            if chk and q == 3:
                z_check(fi + 1)[1]()
            if OPT['k4mfma'] or q == 0:
                p(f'{M16} {v(d, 4)}, {v(zreg(fi), 4)}, {a((q * 16 + a2) * 4, 4)}, {v(d, 4) if a2 else 0}')
            for x in fill.get(4 * a2 + q, []):
                k4_emit(x)
        if chk:
            retry_until(*z_check(fi + 1), tested=True)
        if OPT['zs'] and fi == OPT['q4']:
            emit([s4_load])
        if OPT['zs'] and fi + ZD == 32:
            retry_until(s4_load, lambda: p(f'v_cmp_ne_u32 vcc, 32, {v(FL)}'))
        if fi + ZD < 112:
            zload(fi + ZD)
        elif len(tail) > 16 - OPT['ntail']:
            if len(tail) == 8:
                flag_check(0)
            emit([tail.pop(0)])
        if fi + ZD >= 112:
            wring_read(fi + ZD - 112, WR5, WD, LOC_WO, ROT)
        if fi == OPT['mf']:
            p.wait_vm('pub')
            flag_store(32)
        if OPT['fine'] == 3 and (a2 == 15 or fi == 0) and fi < 111:
            stamp(f'i{fi}')
        if fi == 56:
            p.wait_vm('pub')
            flag_store(96)
        if fi == 70:
            emit([flag_load(96)])
        if fi == 84:
            flag_check(96)
        if fi == OPT['f5a']:
            p.wait_vm('pub')
            flag_store(0)
        if fi == 64:
            code_prefetch(8, 'L_k5')
        if fi == 80:
            p('L_k5:')
        if fi == OPT['x1pos']:
            emit([x1l])
        if fi == OPT['l5a']:
            emit([flag_load(0)])
stamp('K4')


def chain(*fs):
    def run():
        for f in fs:
            f()
    return run


def line(x, tag=None):
    return lambda: p(x, tag=tag)


def flag_after(tag, off):
    p.wait_vm(tag)
    flag_store(off)


def next_m1():
    if_layer(0)
    m1_load(228)
    p.end()


fill = {}


def put(pos, f):
    fill[pos] = chain(fill[pos], f) if pos in fill else f


st1, st2, st3 = k4_epilogue(6)
for k, x in enumerate(st1):
    put(OPT['k1'] + min(k, 3 + (k - 3) // 2), line(x, 'red' if k < 3 else None))
put(OPT['k2'], chain(lambda: p.wait_lgkm('red'), *[line(x) for x in st2[1:]]))
for k, x in enumerate(st3):
    put(OPT['k3'] + k // 2, (lambda y: lambda: k4_emit(y))(x))
kend = OPT['k3'] + len(st3) // 2
assert len(tail) < 8
for k, g in enumerate(tail):
    put(k, (lambda y: lambda: emit([y]))(g))
if OPT['mf'] > 111:
    put(OPT['mf'] - 112, lambda: flag_after('pub', 32))
put(OPT['mb'], lambda: emit([flag_load(32)]))
put(OPT['mc'], lambda: (flag_check(32), fine('ck5m'), emit(ul[16:20])))
for k in range(4):
    put(max(OPT['mc'], kend) + 2 + 2 * k, (lambda y: lambda: emit([y]))(ul[20 + k]))
put(OPT['fa'], lambda: (flag_after('u6', 64), fine('fl5b')))
put(OPT['fb'], lambda: emit([flag_load(64)]))
put(OPT['fc'], lambda: (flag_check(64), fine('ck5b'), emit(ul[24:])))
put(max(OPT['fc'] + 4, 64), next_m1)
gemm_r(XV, 4, 0, 28, ureg, WR5, WD, LOC_WO, first_c=True, fill=fill, preload=False, rot=ROT)


def x_pack():
    for k in range(8):
        p(f'v_cvt_pk_bf16_f32 {v(XP + k)}, {v(XV + 2 * k)}, {v(XV + 2 * k + 1)}')


stamp('K5')
if_layer(1)
x_pack()
for o in range(2):
    p(f'ds_write_b128 {v(OW)}, {v(XP + 4 * o, 4)} offset:{16 * o}')
for k in range(2):
    p(f'ds_read_b128 {v(X1R + 4 * k, 4)}, {v(OR)} offset:{1152 * k}')
for k in range(2):
    p(f'buffer_store_dwordx4 {v(X1R + 4 * k, 4)}, {v(OG)}, {s(R_OUT, 4)}, {s(sT + 14 + k)} offen sc1')
if PROF:
    p('s_waitcnt vmcnt(0)')
    stamp('end')
    p(f's_lshl_b32 {s(sT)}, s2, 2')
    p(f's_add_u32 {s(sT)}, {s(sT)}, {s(sW)}')
    p(f's_lshl_b32 {s(sT)}, {s(sT)}, 8')
    p(f's_add_u32 {s(sT)}, {s(sT)}, {PROFO:#x}')
    p(f'v_lshrrev_b32 {v(T)}, 2, {v(vL16)}')
    p(f'buffer_store_dword {v(vProf)}, {v(T)}, {s(R_WS, 4)}, {s(sT)} offen')
if OPT['diag']:
    p('s_waitcnt vmcnt(0)')
    stamp('end')
    p(f's_sub_u32 s101, s101, {s(sPidx)}')
    p('s_min_u32 s101, s101, 20000')
    p('s_mul_i32 s101, s101, 10')
    p('s_add_u32 s101, s101, 10000')
    p('L_spin:')
    p(f's_memrealtime {s(sStamp, 2)}')
    p('s_waitcnt lgkmcnt(0)')
    p(f's_sub_u32 {s(sStamp)}, {s(sStamp)}, {s(sPidx)}')
    p(f's_cmp_lt_u32 {s(sStamp)}, s101')
    p('s_cbranch_scc1 L_spin')
p('L_exit:')
p('s_endpgm')
p.end()
local_stats(XV, 16, T)
reduce_g(T, T + 1)
publish_stats(0x40000)
p('s_barrier')
x_pack()
p(f's_mov_b32 {s(sL)}, 1')
p(f's_mov_b32 {s(sLocH)}, {s(sLoc)}')
if not OPT['reuse']:
    p(f's_add_u32 {s(R_WL)}, {s(R_WL)}, {LSTRIDE:#x}')
    p(f's_addc_u32 {s(R_WL + 1)}, {s(R_WL + 1)}, 0')
p(f's_mov_b32 {s(R_WL + 2)}, {LSTRIDE:#x}')
p(f's_mov_b32 {s(R_X)}, {s(R_WL)}')
p(f's_mov_b32 {s(R_X + 1)}, {s(R_WL + 1)}')
p(f's_mov_b32 {s(R_X + 2)}, {LSTRIDE:#x}')
p(f's_add_u32 {s(sXb)}, {s(sK2)}, {H_:#x}')
p(f's_add_u32 {s(sXo)}, {s(sXb)}, 2048')
p(f'v_mov_b32 {v(vXr)}, {v(vK2)}')
p(f'v_mov_b32 {v(vXw)}, {v(vTr)}')
p(f'v_add_u32 {v(vXw + 1)}, 576, {v(vTr)}')
p(f'v_mov_b32 {v(vHw)}, {v(vHw2)}')
p(f's_add_u32 {s(sSt)}, {s(sSt)}, 0x20000')
for r in (sArr, sRep, sS2, sS4, sP4, sS5):
    p(f's_add_u32 {s(r)}, {s(r)}, 0x20000')
for o in range(2):
    p(f's_add_u32 {s(sT + 4 + o)}, {s(sT + 3)}, {H_ + 8192 * o:#x}')
emit([gather_loads(0x20000)])
gather_finish(0x20000)
gstore([f'buffer_store_dwordx4 {v(XP + 4 * o, 4)}, {v(vL16)}, {s(R_WL, 4)}, {s(sT + 4 + o)} offen' for o in range(2)], 'x2')
p('s_branch L_layer')

p.resolve([('pro', set()), ('body', {'L0'}), ('body', {'L1'})], ['W0', 'G0', 'LOC', 'RETRY'])

hdr = open('interleave_layers__spectral_fnet__mixer_gmlp__prompt.s.ref').read().split('\n')
out = [l for l in hdr if l.startswith(';') and '@launch' not in l][:14]
if PROF:
    k = STAMPS.index('T')
    out.append('; stamps: ' + ' '.join(STAMPS[:-1] + [x for x in STAMPS[k:] if x[0] != '*']))
out.append(f'; @launch grid=(256,1,1) block=(256,1,1) lds={LDS_BYTES}')
out += ['.amdgcn_target "amdgcn-amd-amdhsa--gfx950"', '.text', f'.globl {NAME}', '.p2align 8', f'.type {NAME},@function']
out.append(p.text())
out.append('.p2align 8')
out.append('.type L_table,@object')
out.append('L_table:')
tab = const_table()
for i in range(0, tab.size, 8):
    out.append('.long ' + ','.join(f'{x:#x}' for x in tab[i:i + 8]))
out.append(f'.size L_table, {tab.size * 4}')
out.append('L_end:')
out += ['.section .rodata,"a"', '.p2align 6', f'.amdhsa_kernel {NAME}',
        '  .amdhsa_next_free_vgpr 512', '  .amdhsa_next_free_sgpr 102', '  .amdhsa_accum_offset 256',
        '  .amdhsa_group_segment_fixed_size 0', '  .amdhsa_kernarg_size 104', '  .amdhsa_user_sgpr_count 2',
        '  .amdhsa_user_sgpr_kernarg_segment_ptr 1', '  .amdhsa_system_sgpr_workgroup_id_x 1',
        '  .amdhsa_float_denorm_mode_32 3', '.end_amdhsa_kernel', '']
open(sys.argv[1], 'w').write('\n'.join(out))
print(p.stats(), file=sys.stderr)
```

```python
import sys
import struct
import numpy as np
from asmlib import Prog, v, a, s

NAME = 'interleave_layers__spectral_fnet__mixer_gmlp__prompt_kernel'
OPT = dict(prof=0, k4mfma=1, k4load=1, k4epi=1, zd=12, pre3=6, pre5=16, loc=1, locd=7, x1pos=58, lg=0, pg=0, sg=0, wspev=8, x1=2,
           g2ev=12, z1a=0, gpos=18, z1arr=6, wo4=16, ctp=2, wzp0=0, wzp1=0, wzp2=0, wzp3=8, reuse=0, tlb=0, e1=4, e2=14, e3=24, f5a=87, l5a=95, mb=8, mc=20, fa=36, fb=48, fc=60, hpf=0, we=2, hsp=4, algn=0, xe=4, gb=1, xa=8, to=40000, wf2=1, cmn='044444', l0a=2, noe=0, pz=1, pv=4, vs=2, zp0=0, zin=1, zsp=3, zs=1, q4=8, upk=4, gsh=0, cpf=12, k1=3, k2=9, k3=15, mf=111, fixev=0, woa=8, wosp=4, g1w=1, l0n='0444466', ann=0, fix='6/7///', ntail=12, lnow=4, fine=0, sched='//d1/d2r0d3r1d4p0r2d5p1r3d6p2r4qd7p3/r5p4/a6p5/a7/', ctpos=0, pk=3, nomean=0,  z2sp=4, early=1, wfirst=0, nobg=0, few=0, diag='')
for arg in sys.argv[2:]:
    k, val = arg.split('=')
    OPT[k] = val if k in ('diag', 'sched', 'fix', 'l0n', 'cmn') else int(val)
PROF = OPT['prof']
LG = (' sc1', '', ' nt', ' sc0')[OPT['lg']]
PG = (' sc1', '', ' nt')[OPT['pg']]
SG = ('', ' nt', ' sc0')[OPT['sg']]


WI, WO, FLAGS, STATS, X2, PROFO = 0, 0x200000, 0x300000, 0x340000, 0x400000, 0x600000
LBASE, LSTRIDE = 0x800000, 0x1000000
V_, H_, X1_, Z_, U_ = 0, 0x200000, 0x400000, 0x600000, 0xA00000
WB, CT, SCR, LDS_BYTES = 0, 114688, 114688 + 22528, 163840
CT_FA, CT_TW, CT_FB, CT_M1 = 0, 6144, 10240, 14336

R_X, R_WIN, R_WSP, R_WOUT, R_OUT, R_WS, R_DBG, R_BSP, R_WL = 4, 8, 12, 16, 20, 24, 28, 32, 36
sW, sC, sB, sL, sTO = 40, 41, 42, 43, 44
sVst, sVld, sH, sK2, sXo, sXb, sZst, sZld, sUst, sUld = 45, 46, 47, 48, 49, 50, 51, 52, 53, 54
sLoc, sSt, sWI, sWO, sWsp, sSelLo, sSelHi, sPidx, sOnes = 55, 56, 57, 58, 59, 60, 61, 62, 63
sArr, sRep, sS2, sS4, sS5, sB128, sDm, sDo = 64, 65, 66, 67, 68, 69, 70, 71
sF2s, sF2l = 0, 1
sB4, sP4, sG0, sLocH, sLocU = 3, 88, 75, 89, 100
sT = 72
sStamp = 90
vL16, vTw, vK2, vXr, vVld, vVst, vBsp, vZst = 0, 1, 2, 3, 4, 5, 6, 7
vC2 = 8
vHw, vHr, vUw, vUr, vStl, vL8, vTr, vPoll, vArr, vProf, vGK = 16, 17, 18, 19, 20, 21, 22, 23, 24, 25, 26
vRed = 28
T = 32
XV = 40
M1 = 184


def f2u(x):
    return struct.unpack('<I', struct.pack('<f', x))[0]


def bf16(x):
    u = np.ascontiguousarray(x, dtype=np.float32).view(np.uint32)
    return ((u + 0x7FFF + ((u >> 16) & 1)) >> 16).astype(np.uint32)


def const_table():
    l = np.arange(64)[:, None]
    j = np.arange(8)[None, :]
    nn, h = l & 31, l >> 5
    e1 = 16 * ((nn >> 2) & 1) + 4 * (nn >> 3) + (nn & 3)
    frags = []

    def pack(x):
        x = np.where(np.abs(x) < 1e-12, 0.0, x)
        b = bf16(x)
        return (b[:, 0::2] | (b[:, 1::2] << 16)).astype(np.uint32)
    ang = [2 * np.pi * ((16 * dh + 8 * h + j) * e1 % 32) / 32 for dh in range(2)]
    frags += [pack(np.cos(ang[0])), pack(np.cos(ang[1])), pack(np.sin(ang[0])), pack(np.sin(ang[1])),
              pack(-np.sin(ang[0])), pack(-np.sin(ang[1]))]
    d2 = 8 * (j >> 2) + 4 * h + (j & 3)
    tw = 2 * np.pi * (d2 * e1) / 512
    tc = np.cos(tw).astype(np.float32).view(np.uint32)
    ts = np.sin(tw).astype(np.float32).view(np.uint32)
    frags += [tc[:, :4], tc[:, 4:], ts[:, :4], ts[:, 4:]]
    ps = 2 * np.pi * (d2 * (nn & 15) % 16) / 16
    for row in range(2):
        m = ((nn >> 4) == row)
        frags += [pack(np.cos(ps) * m), pack(np.sin(ps) * m)]
    n, g = l & 15, l >> 4
    for jq in range(4):
        for ks in range(2):
            rho = 32 * ks + 16 * (j >> 2) + 4 * g + (j & 3)
            s1 = 16 * (rho >> 4) + 2 * (rho & 7) + ((rho >> 3) & 1)
            jj = 8 * jq + (n >> 1)
            th = 2 * np.pi * (s1 * jj % 64) / 64
            x = np.where((n & 1) == 0, np.cos(th), np.where(jj == 0, (-1.0) ** s1, -np.sin(th)))
            frags.append(pack(x))
    tab = np.concatenate([np.ascontiguousarray(f).reshape(-1) for f in frags])
    assert tab.size == 22 * 256
    return tab


p = Prog()
M16 = 'v_mfma_f32_16x16x32_bf16'
M32 = 'v_mfma_f32_32x32x16_bf16'


STAMPS = []


def stamp(name):
    if OPT['few'] and name in ('karg', 'start', 'setup', 'init', 'arr1', 'Vst', 'pub3', 'z1a', 'S3', 'Zst', 'arr4', 'win4') + (() if OPT['fine'] else ('Vld', 'K2', 'arr2', 'K5')):
        return
    STAMPS.append(name)
    if OPT['diag'] and OPT['diag'][:-1] == name:
        p(f's_memrealtime {s(sStamp, 2)}')
        p('s_waitcnt lgkmcnt(0)')
        p(f's_cmp_eq_u32 {s(sL)}, {OPT["diag"][-1]}')
        p(f's_cselect_b32 s101, {s(sStamp)}, s101')
    if PROF:
        p(f'{"s_memtime" if PROF == 2 else "s_memrealtime"} {s(sStamp, 2)}')
        p('s_waitcnt lgkmcnt(0)')
        p('s_mov_b32 s101, m0')
        p(f's_mov_b32 m0, {s(sPidx)}')
        p(f'v_writelane_b32 {v(vProf)}, {s(sStamp)}, m0')
        p('s_mov_b32 m0, s101')
        p(f's_add_u32 {s(sPidx)}, {s(sPidx)}, 1')


def fine(name):
    if OPT['fine'] == 1:
        stamp(name)


def srd(r, lo, hi, size):
    p(f's_mov_b32 {s(r)}, {s(lo)}')
    p(f's_and_b32 {s(r + 1)}, {s(hi)}, 0xffff')
    p(f's_mov_b32 {s(r + 2)}, {size:#x}')
    p(f's_mov_b32 {s(r + 3)}, 0x20000')


def if_wave0():
    p(f's_cmp_eq_u32 {s(sW)}, 0')
    p.begin('W0', 's_cbranch_scc0')


def if_layer(l):
    p(f's_cmp_eq_u32 {s(sL)}, {l}')
    p.begin(f'L{l}', 's_cbranch_scc0')


def spin_tail(top, done):
    p(f's_cbranch_vccz {done}')
    p(f's_sub_u32 {s(sTO)}, {s(sTO)}, 1')
    p(f's_cbranch_scc0 {top}')
    p(f's_mov_b32 {s(sTO)}, 0')
    p(f'{done}:')


def arrive(soff, nrep):
    p('s_barrier')
    if_wave0()
    p(f'v_mov_b32 {v(T)}, 1')
    p(f's_mov_b64 exec, {(1 << nrep) - 1:#x}')
    p(f'buffer_atomic_add {v(T)}, {v(vArr)}, {s(R_WS, 4)}, {s(soff)} offen sc1')
    p('s_mov_b64 exec, -1')
    p.end()


def gstore(lines, tag=None, local=False, flag=None):
    if not OPT['loc'] or (tag and not local):
        for x in lines:
            p(x + ' sc1', tag=tag)
        return
    p(f's_cmp_eq_u32 {s(flag or sLoc)}, 0')
    p.begin_ool('!LOC', 's_cbranch_scc1')
    for x in lines:
        p(x + ' sc1', tag=tag)
    p.end_ool(('LOC', lambda: [p(x + SG, tag=tag) for x in lines]))


def arrive_group(soff, off=0):
    p('s_barrier')
    if_wave0()
    p(f'v_mov_b32 {v(T)}, 1')
    p(f's_add_u32 {s(99)}, {s(soff)}, {s(sB4)}')
    p('s_mov_b64 exec, 1')
    gstore([f'buffer_store_dword {v(T)}, off, {s(R_WS, 4)}, {s(99)} offset:{off}'])
    p('s_mov_b64 exec, -1')
    p.end()


def poll(soff, vaddr, need, tag=None):
    if_wave0()
    top, done = p.label('poll'), p.label('pdone')
    p(f'{top}:')
    if vaddr is not None:
        p(f'buffer_load_dword {v(T)}, {v(vaddr)}, {s(R_WS, 4)}, {s(soff)} offen' + (PG if vaddr == vGrp else ' sc1'))
    else:
        p(f'buffer_load_dword {v(T)}, off, {s(R_WS, 4)}, {s(soff)} sc1')
    p('s_waitcnt vmcnt(0)')
    p(f'v_cmp_ne_u32 vcc, {need}, {v(T)}')
    spin_tail(top, done)
    p.end()
    if tag:
        p.wait_vm(tag)
    p('s_barrier')


def reduce_g(x, y):
    p(f'v_permlane16_swap_b32 {v(x)}, {v(y)}')
    p(f'v_add_f32 {v(x)}, {v(x)}, {v(y)}')
    p(f'v_mov_b32 {v(y)}, {v(x)}')
    p(f'v_permlane32_swap_b32 {v(x)}, {v(y)}')
    p(f'v_add_f32 {v(x)}, {v(x)}, {v(y)}')
    p(f'v_mov_b32 {v(y)}, {v(x)}')
    p(f'v_permlane16_swap_b32 {v(x)}, {v(y)}')


def finish_stats(x, n):
    y, m = x + 1, x + 2
    p(f'v_mul_f32 {v(m)}, {f2u(1.0 / n):#x}, {v(x)}')
    p(f'v_mul_f32 {v(y)}, {f2u(1.0 / n):#x}, {v(y)}')
    p(f'v_fma_f32 {v(y)}, -{v(m)}, {v(m)}, {v(y)}')
    p(f'v_max_f32 {v(y)}, 0, {v(y)}')
    p(f'v_add_f32 {v(y)}, {f2u(1e-5):#x}, {v(y)}')
    p(f'v_rsq_f32 {v(x)}, {v(y)}')
    p(f'v_mul_f32 {v(y)}, -{v(m)}, {v(x)}')


def norm_pack(src, n, st, tmp, dst):
    for i in range(0, n, 2):
        p(f'v_pk_fma_f32 {v(tmp + i, 2)}, {v(src + i, 2)}, {v(st, 2)}, {v(st, 2)} op_sel:[0,0,1] op_sel_hi:[1,0,1]')
    for i in range(0, n, 2):
        p(f'v_cvt_pk_bf16_f32 {v(dst + i // 2)}, {v(tmp + i)}, {v(tmp + i + 1)}')


def local_stats(src, n, out):
    sa, sq = out + 2, out + 4
    p(f'v_pk_add_f32 {v(sa, 2)}, {v(src, 2)}, {v(src + 2, 2)}')
    p(f'v_pk_mul_f32 {v(sq, 2)}, {v(src, 2)}, {v(src, 2)}')
    p(f'v_pk_fma_f32 {v(sq, 2)}, {v(src + 2, 2)}, {v(src + 2, 2)}, {v(sq, 2)}')
    for i in range(4, n, 2):
        p(f'v_pk_add_f32 {v(sa, 2)}, {v(sa, 2)}, {v(src + i, 2)}')
        p(f'v_pk_fma_f32 {v(sq, 2)}, {v(src + i, 2)}, {v(src + i, 2)}, {v(sq, 2)}')
    p(f'v_add_f32 {v(out)}, {v(sa)}, {v(sa + 1)}')
    p(f'v_add_f32 {v(out + 1)}, {v(sq)}, {v(sq + 1)}')


def unpack(src, n, dst):
    for i in range(n):
        p(f'v_lshlrev_b32 {v(dst + 2 * i)}, 16, {v(src + i)}')
        p(f'v_and_b32 {v(dst + 2 * i + 1)}, 0xffff0000, {v(src + i)}')


def publish_stats(area):
    p(f's_add_u32 {s(sT)}, {s(sSt)}, {s(sB128)}')
    if area:
        p(f's_add_u32 {s(sT)}, {s(sT)}, {area:#x}')
    p('s_mov_b64 exec, 0xffff')
    gstore([f'buffer_store_dwordx2 {v(T, 2)}, {v(vStl)}, {s(R_WS, 4)}, {s(sT)} offen'])
    p('s_mov_b64 exec, -1')


def gather_loads(area):
    return [(f's_add_u32 {s(99)}, {s(sSt)}, {area:#x}', None),
            (f'buffer_load_dwordx2 {v(T + 4, 2)}, {v(vStl)}, {s(R_WS, 4)}, {s(99)} offen{PG}', None),
            (f'buffer_load_dwordx2 {v(T + 6, 2)}, {v(vStl)}, {s(R_WS, 4)}, {s(99)} offen offset:128{PG}', None)]


def retry_until(loads, test, tested=False, after=None):
    if not tested:
        test()
    p.begin_ool('RETRY', 's_cbranch_vccnz')
    top, done = p.label('rt'), p.label('rdone')
    p(f'{top}:')
    emit([loads])
    p('s_waitcnt vmcnt(0)')
    test()
    spin_tail(top, done)
    if after:
        emit([after])
    p.end_ool()


def gather_finish(area):
    def test():
        p(f'v_add_f32 {v(T)}, {v(T + 4)}, {v(T + 6)}')
        p(f'v_add_f32 {v(T + 1)}, {v(T + 5)}, {v(T + 7)}')
        p(f'v_cmp_u_f32 vcc, {v(T)}, {v(T + 1)}')
    retry_until(gather_loads(area), test)
    reduce_g(T, T + 1)


LOC_Z2 = lambda i: 1024 * i
LOC_Z1 = lambda i: 1024 * (i - 48) if i >= 48 else CT + 1024 * i
LOC_WO = lambda i: 1024 * (i - 48) if i >= 48 else 65536 + 1024 * i


def w_dma_ops(sbase, extra, loc, name):
    ops = []
    for j in range(7):
        for i in range(4):
            o = []
            if i == 0:
                o.append((f's_add_u32 m0, {s(sDm)}, {loc(16 * j):#x}', None))
                o.append((f's_add_u32 {s(sDo)}, {s(sbase)}, {extra + 16384 * j:#x}', None))
            if OPT['nobg'] & 1:
                o.append(('s_nop 0', None))
            else:
                o.append((f'buffer_load_dwordx4 {v(vL16)}, {s(R_WS, 4)}, {s(sDo)} offen offset:{i * 1024} lds', f'{name}{j}'))
            ops.append(o)
    return ops


def emit(groups):
    for g in groups:
        for text, tag in g:
            p(text, tag=tag)


def wsp_dma_ops(batch):
    q, ih = batch >> 1, batch & 1
    ops = []
    for il in range(4):
        for rh in range(2):
            if batch < 2:
                imm, so = 128 * il, 80 + batch
                o = [(f's_add_u32 m0, {s(78 + batch)}, {1024 + 2048 * il + 1024 * rh - imm}', None)]
            else:
                imm, so = 512 * ih + 128 * il, sDo
                o = [(f's_add_u32 m0, {s(sWsp)}, {1024 + 8192 * (batch % 3) + 2048 * il + 1024 * rh - imm}', None)]
                if not ops:
                    o += [(f's_add_u32 {s(sDo)}, {s(sW)}, {q}', None), (f's_and_b32 {s(sDo)}, {s(sDo)}, 3', None),
                          (f's_lshl_b32 {s(sDo)}, {s(sDo)}, 21', None)]
            o.append((f'buffer_load_dwordx4 {v(vWspA + rh)}, {s(R_WSP, 4)}, {s(so)} offen offset:{imm} lds', f'wsp{max(batch, 1)}'))
            ops.append(o)
    return ops


def table_addr(dst, soff):
    p(f'v_add_u32 {v(dst)}, {s(soff)}, {v(vL16)}')
    p(f'v_mov_b32 {v(dst + 1)}, {s(93)}')
    p(f'v_add_co_u32 {v(dst)}, vcc, {s(92)}, {v(dst)}')
    p(f'v_addc_co_u32 {v(dst + 1)}, vcc, 0, {v(dst + 1)}, vcc')


def code_prefetch(bit, lo):
    if not OPT['cpf'] & bit:
        return
    if_layer(0)
    p(f's_lshr_b32 {s(99)}, s2, 3')
    p(f's_lshl_b32 {s(99)}, {s(99)}, 2')
    p(f's_add_u32 {s(99)}, {s(99)}, {s(sW)}')
    p(f's_lshl_b32 {s(99)}, {s(99)}, 7')
    p(f's_sub_u32 {s(98)}, {s(92)}, L_table-{lo}')
    p(f's_subb_u32 {s(97)}, {s(93)}, 0')
    p(f's_add_u32 {s(98)}, {s(98)}, {s(99)}')
    p(f's_addc_u32 {s(97)}, {s(97)}, 0')
    p(f'v_mov_b32 {v(T + 6)}, {s(98)}')
    p(f'v_mov_b32 {v(T + 7)}, {s(97)}')
    p('s_mov_b64 exec, 1')
    p(f'global_load_dword {v(251)}, {v(T + 6, 2)}, off')
    p('s_mov_b64 exec, -1')
    p.end()


def poison(site, reg):
    todo = [(sZst, vZst, 0)] if OPT['zs'] and OPT['pz'] == site else []
    todo += [(sVst, vVst, 0), (sVst, vVst, 0x10000)] if OPT['vs'] and OPT['pv'] == site else []
    if not todo:
        return
    if_layer(0)
    for k in range(4):
        p(f'v_mov_b32 {v(reg + k)}, -1')
    for base, va, off in todo:
        p(f's_add_u32 {s(99)}, {s(base)}, {LSTRIDE + off:#x}')
        p(f'buffer_store_dwordx4 {v(reg, 4)}, {v(va)}, {s(R_WL, 4)}, {s(99)} offen sc1', tag='pub' if site == 3 else None)
    p.end()


def m1_load(dst):
    p(f's_lshl_b32 {s(99)}, {s(sW)}, 11')
    p(f's_add_u32 {s(99)}, {s(99)}, {CT_M1}')
    table_addr(dst, 99)
    for k in range(2):
        p(f'global_load_dwordx4 {v(M1 + 4 * k, 4)}, {v(dst, 2)}, off offset:{1024 * k}')


def ct_dma(dst):
    p(f's_mul_i32 {s(99)}, {s(sW)}, 3584')
    p(f's_add_u32 m0, {s(99)}, {CT}')
    table_addr(dst, 99)
    for off in (0, 1024, 2048):
        p(f'global_load_lds_dwordx4 {v(dst, 2)}, off offset:{off}', tag='ct')
    p('s_mov_b32 exec_hi, 0')
    p(f'global_load_lds_dwordx4 {v(dst, 2)}, off offset:3072', tag='ct')
    p('s_mov_b64 exec, -1')


def wsp_dma(batch):
    p.bg = wsp_dma_ops(batch)
    p.bg_emit()


def wsp_read(batch, reg):
    p.wait_vm(f'wsp{max(batch, 1)}')
    for il in range(4):
        for o in range(2):
            p(f'ds_read_b128 {v(reg + 4 * (2 * il + o), 4)}, {v(vWspR + o)} offset:{8192 * (batch % 3) + 2048 * il}', tag=f'wr{batch}')


def wsp_park(batch):
    q, ih = batch >> 1, batch & 1
    p.wait_vm(f'wsp{max(batch, 1)}')
    for il in range(4):
        for o in range(2):
            p(f'ds_read_b128 {a(64 * q + 32 * o + 4 * (4 * ih + il), 4)}, {v(vWspR + o)} offset:{8192 * (batch % 3) + 2048 * il}', tag=f'wr{batch}')


def wsp_fix(units, reg, first=()):
    if not units and not first:
        return
    if_layer(0)
    emit(first)
    for u in units:
        base = 32 * int(u)
        for k in range(32):
            p(f'v_accvgpr_read_b32 {v(reg + k)}, {a(base + k)}')
        k = 0
        for ip in range(4):
            for al in range(8):
                t = reg + 32 + (k & 3)
                k += 1
                lo, hi = reg + 8 * ip + (al >> 1), reg + 8 * ip + 4 + (al >> 1)
                p(f'v_perm_b32 {v(t)}, {v(hi)}, {v(lo)}, {s(sSelHi if al & 1 else sSelLo)}')
                p(f'v_accvgpr_write_b32 {a(base + 4 * al + ip)}, {v(t)}')
    p.end()


def wsp_perm(batch, reg):
    q, ih = batch >> 1, batch & 1
    k = 0
    for ipl in range(2):
        for o in range(2):
            for al in range(8):
                t = T + (k & 7)
                k += 1
                lo, hi = reg + 4 * (4 * ipl + o) + (al >> 1), reg + 4 * (4 * ipl + 2 + o) + (al >> 1)
                p(f'v_perm_b32 {v(t)}, {v(hi)}, {v(lo)}, {s(sSelHi if al & 1 else sSelLo)}')
                p(f'v_accvgpr_write_b32 {a((q * 16 + 8 * o + al) * 4 + 2 * ih + ipl)}, {v(t)}')


def wring_read(idx, ring, depth, loc, rot=0):
    base, off = (vL16, vL16hi, vL16h2)[loc(idx) >> 16], loc(idx) & 0xffff
    p(f'ds_read_b128 {v(ring + 4 * ((idx + rot) % depth), 4)}, {v(base)} offset:{off}', tag=f'w{idx}')


def gemm_r(acc, nt, ks0, ks1, act, ring, depth, loc, first_c=None, fill=None, preload=True, last=None, rot=0):
    fill = dict(fill or {})
    if OPT['nobg'] & 2 and loc is LOC_Z1:
        raise SystemExit('nobg&2 unsupported')
    lo, hi = nt * ks0, nt * ks1
    if preload:
        for idx in range(lo, min(lo + depth, last or hi)):
            wring_read(idx, ring, depth, loc)
    for idx in range(lo, hi):
        ks, t = divmod(idx, nt)
        if (idx - lo) % OPT['we'] == 0:
            p.wait_lgkm(f'w{min(idx + OPT["we"] - 1, hi - 1)}')
        c = v(acc + 4 * t, 4) if (ks or first_c) else '0'
        p(f'{M16} {v(acc + 4 * t, 4)}, {v(ring + 4 * ((idx + rot) % depth), 4)}, {v(act(ks) if callable(act) else act + 4 * ks, 4)}, {c}')
        if idx + depth < (last or hi):
            wring_read(idx + depth, ring, depth, loc, rot)
        f = fill.pop(idx, None)
        if callable(f):
            f()
        elif f:
            emit([f])
    assert not fill


def spread(groups, first, step):
    return {first + step * k: g for k, g in enumerate(groups)}


def gelu(x, n, tmp):
    for i in range(0, n, 4):
        t = tmp + (i & 4)
        for k in (0, 2):
            p(f'v_pk_mul_f32 {v(t + k, 2)}, {v(x + i + k, 2)}, {v(x + i + k, 2)}')
        for k in (0, 2):
            p(f'v_pk_fma_f32 {v(t + k, 2)}, {v(t + k, 2)}, {v(vGK, 2)}, {v(vGK, 2)} op_sel:[0,0,1] op_sel_hi:[1,0,1]')
        for k in (0, 2):
            p(f'v_pk_mul_f32 {v(t + k, 2)}, {v(t + k, 2)}, {v(x + i + k, 2)}')
        for k in range(4):
            p(f'v_exp_f32 {v(t + k)}, {v(t + k)}')
        for k in (0, 2):
            p(f'v_pk_add_f32 {v(t + k, 2)}, {v(t + k, 2)}, 1.0 op_sel_hi:[1,0]')
        for k in range(4):
            p(f'v_rcp_f32 {v(t + k)}, {v(t + k)}')
        for k in (0, 2):
            p(f'v_pk_mul_f32 {v(x + i + k, 2)}, {v(t + k, 2)}, {v(x + i + k, 2)}')


vWspA, vWspR = 244, 236
vHw2, vXw, vGrp = 250, 246, 254
vL16hi, vL16h2 = 252, 255
p.section('pro')
p(f'{NAME}:')
p(f's_cmp_ge_u32 s2, 256')
p('s_cbranch_scc1 L_exit')
p(f's_load_dwordx2 {s(72, 2)}, s[0:1], 0')
p(f's_load_dwordx8 {s(76, 8)}, s[0:1], 48')
p(f's_load_dwordx4 {s(84, 4)}, s[0:1], 80')
p(f's_load_dwordx2 {s(88, 2)}, s[0:1], 96')
if OPT['diag']:
    p(f's_memrealtime {s(sStamp, 2)}')
    p('s_waitcnt lgkmcnt(0)')
    p(f's_mov_b32 {s(sPidx)}, {s(sStamp)}')
    p(f's_mov_b32 s101, {s(sStamp)}')
if PROF:
    p(f'{"s_memtime" if PROF == 2 else "s_memrealtime"} {s(sStamp, 2)}')
p(f's_getpc_b64 {s(92, 2)}')
p('L_pc:')
lane, n_, g_, t0, t1, t2, t3, tid = 100, 101, 102, 103, 104, 105, 106, 107
p(f'v_mov_b32 {v(tid)}, v0')
p(f's_lshr_b32 {s(94)}, s2, 3')
p(f's_lshl_b32 {s(94)}, {s(94)}, 4')
p(f'v_lshrrev_b32 {v(T)}, 4, v0')
p(f'v_add_u32 {v(T)}, {s(94)}, {v(T)}')
p(f'v_lshlrev_b32 {v(T)}, 7, {v(T)}')
p(f'v_min_u32 {v(T)}, L_end-L_pc-4, {v(T)}')
p(f'v_mov_b32 {v(T + 3)}, {s(93)}')
p(f'v_add_co_u32 {v(T + 2)}, vcc, {s(92)}, {v(T)}')
p(f'v_addc_co_u32 {v(T + 3)}, vcc, 0, {v(T + 3)}, vcc')
p(f'global_load_dword {v(253)}, {v(T + 2, 2)}, off')
p(f'v_lshrrev_b32 {v(t0)}, 6, v0')
p(f'v_and_b32 {v(lane)}, 63, v0')
p(f'v_readfirstlane_b32 {s(sW)}, {v(t0)}')
p(f'v_and_b32 {v(n_)}, 15, {v(lane)}')
p(f'v_lshrrev_b32 {v(g_)}, 4, {v(lane)}')
p(f'v_lshlrev_b32 {v(vL16)}, 4, {v(lane)}')
p(f's_lshr_b32 {s(94)}, s2, 3')
p(f's_and_b32 {s(sB)}, {s(94)}, 7')
p(f's_and_b32 {s(95)}, s2, 7')
p(f's_lshl_b32 {s(95)}, {s(95)}, 1')
p(f's_lshr_b32 {s(96)}, {s(94)}, 4')
p(f's_add_u32 {s(95)}, {s(95)}, {s(96)}')
p(f's_sub_u32 {s(96)}, 32, {s(95)}')
p(f's_cmp_eq_u32 {s(95)}, 0')
p(f's_cselect_b32 {s(96)}, 16, {s(96)}')
p(f's_bitcmp1_b32 {s(94)}, 3')
p(f's_cselect_b32 {s(sC)}, {s(96)}, {s(95)}')
p(f's_mov_b32 {s(sL)}, 0')
p(f's_mov_b32 {s(sTO)}, {OPT["to"]}')
p(f's_lshl_b32 {s(sB128)}, {s(sB)}, 7')
p(f's_lshl_b32 {s(sB4)}, {s(sB)}, 2')
p(f's_getreg_b32 {s(sLoc)}, hwreg(HW_REG_XCC_ID)')
p(f's_mov_b32 {s(sOnes)}, 0x3f803f80')
p(f's_mov_b32 {s(sSelLo)}, 0x05040100')
p(f's_mov_b32 {s(sSelHi)}, 0x07060302')
p(f's_lshl_b32 {s(94)}, {s(sW)}, 9')
p(f's_add_u32 {s(94)}, {s(94)}, {s(sC)}')
p(f'v_and_b32 {v(t0)}, 28, {v(lane)}')
p(f'v_lshlrev_b32 {v(t0)}, 4, {v(t0)}')
p(f'v_and_b32 {v(t1)}, 32, {v(lane)}')
p(f'v_add3_u32 {v(t0)}, {v(t0)}, {v(t1)}, {s(94)}')
p(f'v_lshlrev_b32 {v(t2)}, 10, {v(t0)}')
p(f'v_and_b32 {v(t1)}, 3, {v(lane)}')
p(f'v_lshl_add_u32 {v(t0)}, {v(t1)}, 5, {v(t2)}')
p(f'v_lshl_add_u32 {v(t2)}, {v(t1)}, 4, {v(t2)}')
p(f'v_and_b32 {v(t3)}, 7, {v(n_)}')
p(f'v_lshlrev_b32 {v(t3)}, 6, {v(t3)}')
p(f'v_and_b32 {v(t1)}, 8, {v(n_)}')
p(f'v_lshlrev_b32 {v(t1)}, 2, {v(t1)}')
p(f'v_add3_u32 {v(t3)}, {v(t3)}, {v(t1)}, {s(94)}')
p(f'v_lshlrev_b32 {v(t3)}, 1, {v(t3)}')
p(f's_lshl_b32 {s(96)}, {s(sC)}, 2')
p(f's_add_u32 {s(96)}, {s(96)}, {s(sW)}')
p(f's_lshl_b32 {s(sSt)}, {s(96)}, 10')
p(f's_add_u32 {s(sSt)}, {s(sSt)}, {STATS:#x}')
p(f's_lshl_b32 {s(96)}, {s(sC)}, 10')
p(f's_add_u32 {s(sS2)}, {s(96)}, {FLAGS + 0x10000:#x}')
p(f's_lshl_b32 {s(96)}, {s(sW)}, 7')
p(f's_add_u32 {s(96)}, {s(96)}, 256')
p(f's_add_u32 {s(sS5)}, {s(96)}, {s(sS2)}')
p(f'v_lshlrev_b32 {v(vStl)}, 3, {v(n_)}')
p(f'v_lshl_add_u32 {v(vStl)}, {v(g_)}, 8, {v(vStl)}')
p(f's_lshl_b32 {s(96)}, {s(sB)}, 2')
p(f's_add_u32 {s(96)}, {s(96)}, {s(sW)}')
p(f's_mul_i32 {s(sZld)}, {s(96)}, 114688')
p(f's_add_u32 {s(sZld)}, {s(sZld)}, {Z_:#x}')
p(f's_and_b32 {s(96)}, {s(sC)}, 7')
p(f's_lshl_b32 {s(96)}, {s(96)}, 10')
p(f's_lshr_b32 {s(97)}, {s(sC)}, 3')
p(f's_lshl_b32 {s(97)}, {s(97)}, 8')
p(f's_add_u32 {s(96)}, {s(96)}, {s(97)}')
p(f's_add_u32 {s(sZst)}, {s(sZld)}, {s(96)}')
p(f'v_and_b32 {v(T)}, 1, {v(g_)}')
p(f'v_lshlrev_b32 {v(T)}, 14, {v(T)}')
p(f'v_and_b32 {v(T + 1)}, 2, {v(g_)}')
p(f'v_lshl_add_u32 {v(T)}, {v(T + 1)}, 12, {v(T)}')
p(f'v_lshl_add_u32 {v(vZst)}, {v(n_)}, 4, {v(T)}')
EI = 64
for k in range(4):
    p(f'v_mov_b32 {v(116 + k)}, -1')
p(f'v_mov_b32 {v(EI)}, -1')
p(f'v_mov_b32 {v(EI + 1)}, -1')
p(f'v_mov_b32 {v(EI + 2)}, {s(sLoc)}')
p(f'v_mov_b32 {v(EI + 3)}, 0')
p(f'v_and_b32 {v(EI + 4)}, 16, {v(vL16)}')
p(f'v_lshlrev_b32 {v(EI + 4)}, 13, {v(EI + 4)}')
p(f'v_and_b32 {v(EI + 5)}, 0x60, {v(vL16)}')
p(f'v_or_b32 {v(EI + 4)}, {v(EI + 4)}, {v(EI + 5)}')
p('s_waitcnt lgkmcnt(0)')
if PROF:
    p(f'v_mov_b32 {v(vProf)}, 0')
    p(f'v_writelane_b32 {v(vProf)}, {s(sStamp)}, 0')
    p(f's_mov_b32 {s(sPidx)}, 1')
    STAMPS.append('entry')
stamp('karg')
srd(R_X, 72, 73, 2097152)
srd(R_WS, 88, 89, LBASE)
XR = 120


def x_loads(i0, i1):
    for i in range(i0, i1):
        if i == 0:
            p(f'buffer_load_dwordx4 {v(XR, 4)}, {v(t0)}, {s(R_X, 4)}, {s(sB128)} offen')
            p(f'buffer_load_dwordx4 {v(XR + 4, 4)}, {v(t0)}, {s(R_X, 4)}, {s(sB128)} offen offset:16')
            continue
        p(f's_add_u32 {s(99)}, {s(sB128)}, {128 * i}')
        p(f's_and_b32 {s(99)}, {s(99)}, 0x3ff')
        p(f'buffer_load_dwordx4 {v(XR + 8 * i, 4)}, {v(t2)}, {s(R_X, 4)}, {s(99)} offen')
        p(f'buffer_load_dwordx4 {v(XR + 8 * i + 4, 4)}, {v(t2)}, {s(R_X, 4)}, {s(99)} offen offset:64')


x_loads(0, OPT['x1'])
p(f's_lshr_b32 {s(96)}, s2, 4')
p(f's_lshl_b32 {s(96)}, {s(96)}, 2')
p(f's_add_u32 {s(sG0)}, {s(96)}, {s(sW)}')
p(f's_cmp_eq_u32 {s(sG0)}, 3')
p.begin('G0', 's_cbranch_scc0')
p(f'v_lshlrev_b32 {v(T)}, 8, {v(vL16)}')
p(f's_lshl_b32 {s(94)}, s2, 8')
p(f's_add_u32 {s(94)}, {s(94)}, {FLAGS:#x}')
p('s_mov_b64 exec, 0xff')
p(f'buffer_store_dword {v(EI + 3)}, {v(T)}, {s(R_WS, 4)}, {s(94)} offen sc1', tag='z')
p.end()
p(f's_and_b32 {s(96)}, {s(sB)}, 3')
p(f's_lshl_b32 {s(96)}, {s(96)}, 3')
p(f's_and_b32 {s(97)}, {s(sB)}, 4')
p(f's_add_u32 {s(96)}, {s(96)}, {s(97)}')
p(f's_add_u32 {s(96)}, {s(96)}, {s(sW)}')
p(f's_lshl_b32 {s(96)}, {s(96)}, 2')
p(f's_add_u32 {s(97)}, {s(sS2)}, 768')
p(f's_add_u32 {s(sF2s)}, {s(96)}, {s(97)}')
p(f's_lshl_b32 {s(96)}, {s(sW)}, 5')
p(f's_add_u32 {s(sF2l)}, {s(96)}, {s(97)}')
if OPT['wf2']:
    p('s_mov_b64 exec, 3')
    p(f'buffer_store_dword {v(EI + 3)}, {v(EI + 4)}, {s(R_WS, 4)}, {s(sF2s)} offen sc1', tag='pub')
p('s_mov_b64 exec, 0xffff')
for k in range(0 if OPT['noe'] & 1 else 3):
    p(f's_add_u32 {s(96)}, {s(sSt)}, {s(sB128)}')
    p(f's_add_u32 {s(96)}, {s(96)}, {k * 0x20000:#x}')
    p(f'buffer_store_dwordx2 {v(EI, 2)}, {v(vStl)}, {s(R_WS, 4)}, {s(96)} offen sc1', tag='pub')
p('s_mov_b64 exec, 0xff')
p(f's_add_u32 {s(97)}, {s(sS5)}, {s(sB4)}')
if not OPT['noe'] & 2:
    p(f'buffer_store_dword {v(EI + 3)}, {v(EI + 4)}, {s(R_WS, 4)}, {s(97)} offen sc1', tag='pub')
if_wave0()
p('s_mov_b64 exec, 1')
p(f's_add_u32 {s(96)}, {s(sS2)}, {s(sB4)}')
p(f'buffer_store_dword {v(EI + 2)}, off, {s(R_WS, 4)}, {s(96)} offset:128 sc1', tag='pub')
p('s_mov_b64 exec, 15')
if not OPT['noe'] & 2:
    p(f'buffer_store_dword {v(EI + 3)}, {v(EI + 4)}, {s(R_WS, 4)}, {s(96)} offen sc1', tag='pub')
p(f's_lshl_b32 {s(96)}, s2, 8')
p(f's_add_u32 {s(96)}, {s(96)}, {FLAGS:#x}')
p('s_cmp_lt_u32 s2, 128')
p('s_cselect_b32 exec_lo, 2, 3')
p(f'buffer_store_dword {v(EI + 3)}, {v(EI + 4)}, {s(R_WS, 4)}, {s(96)} offen sc1', tag='pub')
p.end()
p('s_mov_b64 exec, -1')
srd(R_WIN, 76, 77, 512 * 3584)
srd(R_WSP, 78, 79, 2048 * 4096)
srd(R_BSP, 80, 81, 4096)
srd(R_WOUT, 82, 83, 896 * 1024)
srd(R_OUT, 84, 85, 2097152)
srd(R_DBG, 86, 87, 256)
p(f's_add_u32 {s(88)}, {s(88)}, {LBASE:#x}')
p(f's_addc_u32 {s(89)}, {s(89)}, 0')
srd(R_WL, 88, 89, 2 * LSTRIDE)
if OPT['tlb']:
    p(f'v_lshlrev_b32 {v(T)}, 21, {v(n_)}')
    p(f'buffer_load_dword {v(240)}, {v(T)}, {s(R_WL, 4)}, 0 offen sc1')
    p(f'buffer_load_dword {v(239)}, {v(T)}, {s(R_WS, 4)}, 0 offen sc1')
    p(f'buffer_load_dword {v(238)}, off, {s(R_OUT, 4)}, 0 sc1')
stamp('start')
vPi, vPo, vPri, vPro, PK = 112, 114, 242, 243, 224
PST = SCR + 12288
p(f's_add_u32 {s(92)}, {s(92)}, L_table-L_pc')
p(f's_addc_u32 {s(93)}, {s(93)}, 0')
for k in range(2):
    p(f'v_add_u32 {v(T)}, {256 * k}, {v(tid)}')
    p(f'v_mul_u32_u24 {v(T + 1)}, 4682, {v(T)}')
    p(f'v_lshrrev_b32 {v(T + 1)}, 16, {v(T + 1)}')
    p(f'v_mul_u32_u24 {v(T + 2)}, 14, {v(T + 1)}')
    p(f'v_sub_u32 {v(T)}, {v(T)}, {v(T + 2)}')
    p(f'v_and_b32 {v(T + 2)}, 0x38, {v(T + 1)}')
    p(f'v_add_u32 {v(T + 1)}, {v(T + 1)}, {v(T + 2)}')
    p(f'v_mul_u32_u24 {v(T + 1)}, 3584, {v(T + 1)}')
    p(f'v_lshl_add_u32 {v(vPi + k)}, {v(T)}, 4, {v(T + 1)}')
p(f's_and_b32 {s(94)}, {s(sC)}, 7')
p(f's_lshl_b32 {s(94)}, {s(94)}, 6')
p(f's_and_b32 {s(95)}, {s(sC)}, 8')
p(f's_add_u32 {s(94)}, {s(94)}, {s(95)}')
p(f's_mul_i32 {s(94)}, {s(94)}, 3584')
p(f's_lshr_b32 {s(95)}, {s(sC)}, 4')
p(f's_mul_i32 {s(95)}, {s(95)}, 1792')
p(f's_add_u32 {s(94)}, {s(94)}, {s(95)}')
p(f's_mul_i32 {s(95)}, {s(sB)}, 224')
p(f's_add_u32 {s(76)}, {s(94)}, {s(95)}')
p(f'v_lshrrev_b32 {v(T)}, 3, {v(lane)}')
p(f'v_and_b32 {v(T + 1)}, 0x70, {v(vL16)}')
p(f'v_lshl_add_u32 {v(vPo)}, {v(T)}, 10, {v(T + 1)}')
p(f's_and_b32 {s(94)}, {s(sC)}, 7')
p(f's_mul_i32 {s(94)}, {s(94)}, 112')
p(f's_lshr_b32 {s(95)}, {s(sC)}, 3')
p(f's_lshl_b32 {s(95)}, {s(95)}, 5')
p(f's_add_u32 {s(94)}, {s(94)}, {s(95)}')
p(f's_sub_u32 {s(95)}, {s(sC)}, 24')
p(f's_mul_i32 {s(95)}, {s(95)}, 224')
p(f's_add_u32 {s(95)}, {s(95)}, 96')
p(f's_cmp_lt_u32 {s(sC)}, 24')
p(f's_cselect_b32 {s(94)}, {s(94)}, {s(95)}')
p(f's_cselect_b32 {s(95)}, 16, 112')
p(f's_lshr_b32 {s(96)}, {s(sW)}, 1')
p(f's_mul_i32 {s(95)}, {s(95)}, {s(96)}')
p(f's_add_u32 {s(94)}, {s(94)}, {s(95)}')
p(f's_and_b32 {s(95)}, {s(sW)}, 1')
p(f's_lshl_b32 {s(95)}, {s(95)}, 3')
p(f's_add_u32 {s(94)}, {s(94)}, {s(95)}')
p(f's_lshl_b32 {s(94)}, {s(94)}, 10')
p(f's_add_u32 {s(77)}, {s(94)}, {s(sB128)}')
p(f'v_lshrrev_b32 {v(T)}, 2, {v(n_)}')
p(f'v_lshl_add_u32 {v(T)}, {v(g_)}, 3, {v(T)}')
p(f'v_mul_u32_u24 {v(T)}, 224, {v(T)}')
p(f'v_and_b32 {v(T + 1)}, 3, {v(lane)}')
p(f'v_lshl_add_u32 {v(T)}, {v(T + 1)}, 3, {v(T)}')
p(f's_lshl_b32 {s(94)}, {s(sW)}, 5')
p(f's_add_u32 {s(94)}, {s(94)}, {PST}')
p(f'v_add_u32 {v(vPri)}, {s(94)}, {v(T)}')
p(f's_lshl_b32 {s(94)}, {s(sW)}, 3')
p(f's_add_u32 {s(94)}, {s(94)}, {PST + 8192}')
p(f'v_lshl_add_u32 {v(vPro)}, {v(lane)}, 5, {s(94)}')
p(f'v_lshrrev_b32 {v(T)}, 3, {v(lane)}')
p(f'v_lshlrev_b32 {v(T)}, 18, {v(T)}')
p(f'v_and_b32 {v(T + 1)}, 7, {v(lane)}')
p(f'v_xor_b32 {v(T + 1)}, {v(T + 1)}, {v(g_)}')
p(f'v_lshl_add_u32 {v(T)}, {v(T + 1)}, 4, {v(T)}')
p(f's_lshl_b32 {s(94)}, {s(sC)}, 12')
p(f's_add_u32 {s(100)}, {s(sW)}, {s(sB)}')
p(f's_and_b32 {s(100)}, {s(100)}, 3')
p(f's_lshl_b32 {s(95)}, {s(100)}, 10')
p(f's_add_u32 {s(94)}, {s(94)}, {s(95)}')
p(f'v_add_u32 {v(vWspA)}, {s(94)}, {v(T)}')
p(f'v_xor_b32 {v(T)}, 64, {v(vWspA)}')
p(f'v_add_u32 {v(vWspA + 1)}, 0x20000, {v(T)}')
p(f's_mul_i32 {s(sWsp)}, {s(sW)}, 24576')
p(f'v_lshrrev_b32 {v(T)}, 1, {v(n_)}')
p(f'v_xor_b32 {v(T)}, {v(T)}, {v(g_)}')
p(f'v_lshlrev_b32 {v(T)}, 4, {v(T)}')
p(f'v_lshl_add_u32 {v(T)}, {v(n_)}, 7, {v(T)}')
p(f's_add_u32 {s(94)}, {s(sWsp)}, 1024')
p(f'v_add_u32 {v(vWspR)}, {s(94)}, {v(T)}')
p(f'v_xor_b32 {v(vWspR + 1)}, 64, {v(vWspR)}')
p(f's_lshr_b32 {s(94)}, {s(sB)}, 2')
p(f's_lshl_b32 {s(95)}, {s(sW)}, 21')
for k in range(2):
    p(f's_lshl_b32 {s(96)}, {s(94)}, 13')
    p(f's_add_u32 {s(78 + k)}, {s(96)}, {s(sWsp)}')
    p(f's_lshl_b32 {s(96)}, {s(94)}, 9')
    p(f's_add_u32 {s(80 + k)}, {s(96)}, {s(95)}')
    p(f's_xor_b32 {s(94)}, {s(94)}, 1')
p(f's_lshl_b32 {s(82)}, {s(sW)}, 10')
prep = [[(f's_add_u32 m0, {s(82)}, {PST}', None), (f'buffer_load_dwordx4 {v(vPi)}, {s(R_WIN, 4)}, {s(76)} offen lds', 'prep')],
        [(f's_add_u32 m0, {s(82)}, {PST + 4096}', None), (f'buffer_load_dwordx4 {v(vPi + 1)}, {s(R_WIN, 4)}, {s(76)} offen lds', 'prep')],
        [(f's_add_u32 m0, {s(82)}, {PST + 8192}', None), (f'buffer_load_dwordx4 {v(vPo)}, {s(R_WOUT, 4)}, {s(77)} offen lds', 'prep')],
        [(f'buffer_load_ushort {v(vBsp)}, {v(t3)}, {s(R_BSP, 4)}, 0 offen', None)]]
wsp_first = wsp_dma_ops(0)
if OPT['early'] & 1:
    emit(prep)
    prep = []
emit(wsp_first[:OPT['early'] >> 1])
wsp_first = wsp_first[OPT['early'] >> 1:]
p(f's_mul_i32 {s(94)}, {s(sB)}, 229376')
p(f's_mul_i32 {s(95)}, {s(sC)}, 7168')
p(f's_add_u32 {s(94)}, {s(94)}, {s(95)}')
p(f's_lshl_b32 {s(95)}, {s(sW)}, 10')
p(f's_add_u32 {s(94)}, {s(94)}, {s(95)}')
p(f's_mov_b32 {s(83)}, {s(94)}')
p(f's_add_u32 {s(94)}, {s(94)}, 4096')
p(f's_cmp_lt_u32 {s(sW)}, 3')
p(f's_cselect_b32 {s(94)}, {s(94)}, {LBASE:#x}')
p(f's_mov_b32 {s(84)}, {s(94)}')
p(f's_mul_i32 {s(94)}, {s(sB)}, 114688')
p(f's_lshl_b32 {s(96)}, {s(sC)}, 12')
p(f's_add_u32 {s(94)}, {s(94)}, {s(96)}')
p(f's_add_u32 {s(94)}, {s(94)}, {s(95)}')
p(f's_add_u32 {s(94)}, {s(94)}, {WO:#x}')
p(f's_cmp_lt_u32 {s(sC)}, 28')
p(f's_cselect_b32 {s(94)}, {s(94)}, {LBASE:#x}')
p(f's_mov_b32 {s(85)}, {s(94)}')
p(f's_lshr_b32 {s(94)}, {s(sB)}, 2')
p(f's_and_b32 {s(95)}, {s(sB)}, 3')
p(f's_lshl_b32 {s(sVst)}, {s(sC)}, 11')
p(f's_lshl_b32 {s(96)}, {s(sB)}, 8')
p(f's_add_u32 {s(sVst)}, {s(sVst)}, {s(96)}')
p(f's_sub_u32 {s(96)}, 32, {s(sC)}')
p(f's_and_b32 {s(96)}, {s(96)}, 31')
p(f's_cmp_eq_u32 {s(94)}, 0')
p(f's_cselect_b32 {s(96)}, {s(sC)}, {s(96)}')
p(f's_lshl_b32 {s(sVld)}, {s(96)}, 16')
p(f's_lshl_b32 {s(sH)}, {s(sC)}, 16')
p(f's_lshl_b32 {s(96)}, {s(95)}, 14')
p(f's_lshl_b32 {s(97)}, {s(94)}, 7')
p(f's_add_u32 {s(96)}, {s(96)}, {s(97)}')
p(f's_add_u32 {s(sK2)}, {s(sH)}, {s(96)}')
p(f's_lshl_b32 {s(96)}, {s(sW)}, 14')
p(f's_add_u32 {s(sH)}, {s(sH)}, {s(96)}')
p(f's_mov_b32 {s(sXb)}, 0')
p(f's_mov_b32 {s(sXo)}, 0x10000')
p(f's_lshl_b32 {s(96)}, {s(sB)}, 2')
p(f's_add_u32 {s(96)}, {s(96)}, {s(100)}')
p(f's_mul_i32 {s(sZld)}, {s(96)}, 114688')
p(f's_add_u32 {s(sZld)}, {s(sZld)}, {Z_:#x}')
p(f's_lshl_b32 {s(96)}, {s(sC)}, 2')
p(f's_add_u32 {s(96)}, {s(96)}, {s(sW)}')
p(f's_lshl_b32 {s(sUld)}, {s(96)}, 14')
p(f's_add_u32 {s(sUld)}, {s(sUld)}, {H_ if OPT["locd"] & 4 else U_:#x}')
p(f's_lshl_b32 {s(97)}, {s(sB)}, 10')
p(f's_add_u32 {s(sUst)}, {s(sUld)}, {s(97)}')
p(f's_lshl_b32 {s(sDm)}, {s(sW)}, 12')
p(f's_mul_i32 {s(sWI)}, {s(sB)}, 229376')
p(f's_add_u32 {s(sWI)}, {s(sWI)}, {s(sDm)}')
p(f's_mul_i32 {s(sWO)}, {s(sB)}, 114688')
p(f's_add_u32 {s(sWO)}, {s(sWO)}, {s(sDm)}')
p(f's_add_u32 {s(sWO)}, {s(sWO)}, {WO:#x}')
p(f's_and_b32 {s(96)}, s2, 15')
p(f's_lshl_b32 {s(96)}, {s(96)}, 8')
p(f's_add_u32 {s(sArr)}, {s(96)}, {FLAGS:#x}')
p(f's_and_b32 {s(96)}, s2, 7')
p(f's_lshl_b32 {s(96)}, {s(96)}, 12')
p(f's_add_u32 {s(sRep)}, {s(96)}, {FLAGS:#x}')
p(f's_lshl_b32 {s(97)}, {s(sB)}, 9')
p(f's_add_u32 {s(97)}, {s(97)}, {FLAGS + 0x8000:#x}')
p(f's_add_u32 {s(sP4)}, {s(96)}, {s(97)}')
p(f's_mov_b32 {s(sS4)}, {s(97)}')
p(f's_mov_b32 {s(sLocH)}, 0')
p(f'v_lshlrev_b32 {v(vL8)}, 3, {v(lane)}')
p(f'v_add_u32 {v(vL16hi)}, 0x10000, {v(vL16)}')
p(f'v_add_u32 {v(vL16h2)}, 0x20000, {v(vL16)}')
p(f'v_lshlrev_b32 {v(vPoll)}, 8, {v(n_)}')
p(f'v_and_b32 {v(vArr)}, 7, {v(lane)}')
p(f'v_lshlrev_b32 {v(vGrp)}, 2, {v(vArr)}')
p(f'v_lshlrev_b32 {v(vArr)}, 12, {v(vArr)}')
p(f'v_mov_b32 {v(vGK)}, {f2u(-2.302208198144325 * 0.044715):#x}')
p(f'v_mov_b32 {v(vGK + 1)}, {f2u(-2.302208198144325):#x}')
p(f'v_lshrrev_b32 {v(T)}, 3, {v(lane)}')
p(f'v_and_b32 {v(T + 4)}, 7, {v(lane)}')
p(f'v_lshlrev_b32 {v(T + 4)}, 4, {v(T + 4)}')
p(f'v_lshl_add_u32 {v(T + 2)}, {v(T)}, 8, {v(T + 4)}')
p(f's_lshl_b32 {s(96)}, {s(sW)}, 12')
p(f'v_add_u32 {v(vK2)}, {s(96)}, {v(T + 2)}')
p(f'v_and_b32 {v(T)}, 1, {v(T)}')
p(f'v_lshl_add_u32 {v(T)}, {v(T)}, 4, {v(g_)}')
p(f'v_mul_u32_u24 {v(T)}, 144, {v(T)}')
p(f's_lshr_b32 {s(96)}, {s(sW)}, 1')
p(f's_mul_i32 {s(96)}, {s(96)}, 4608')
p(f's_and_b32 {s(97)}, {s(sW)}, 1')
p(f's_mul_i32 {s(97)}, {s(97)}, 1152')
p(f's_add_u32 {s(96)}, {s(96)}, {s(97)}')
p(f's_add_u32 {s(96)}, {s(96)}, {SCR}')
p(f'v_add3_u32 {v(vTr)}, {v(T)}, {v(T + 4)}, {s(96)}')
p(f'v_lshrrev_b32 {v(T)}, 5, {v(lane)}')
p(f'v_and_b32 {v(T + 1)}, 1, {v(g_)}')
p(f'v_lshl_add_u32 {v(T + 2)}, {v(T)}, 4, {v(n_)}')
p(f'v_mul_u32_u24 {v(T + 2)}, 144, {v(T + 2)}')
p(f'v_lshl_add_u32 {v(T + 2)}, {v(T + 1)}, 4, {v(T + 2)}')
p(f's_lshl_b32 {s(96)}, {s(sW)}, 5')
p(f's_add_u32 {s(97)}, {s(96)}, {SCR}')
p(f'v_add_u32 {v(vTw)}, {s(97)}, {v(T + 2)}')
p(f'v_and_b32 {v(T + 2)}, 1, {v(lane)}')
p(f'v_lshlrev_b32 {v(T + 2)}, 5, {v(T + 2)}')
p(f'v_and_b32 {v(T + 3)}, 2, {v(lane)}')
p(f'v_lshl_add_u32 {v(T + 2)}, {v(T + 3)}, 3, {v(T + 2)}')
p(f'v_lshrrev_b32 {v(T + 3)}, 2, {v(lane)}')
p(f'v_add_u32 {v(T + 2)}, {v(T + 2)}, {v(T + 3)}')
p(f'v_mul_u32_u24 {v(T + 2)}, 144, {v(T + 2)}')
p(f'v_add_u32 {v(vXw)}, {s(97)}, {v(T + 2)}')
p(f'v_add_u32 {v(vXw + 1)}, 16, {v(vXw)}')
p(f's_lshl_b32 {s(96)}, {s(95)}, 4')
p(f's_add_u32 {s(96)}, {s(96)}, {s(94)}')
p(f's_lshl_b32 {s(96)}, {s(96)}, 5')
p(f's_add_u32 {s(98)}, {s(96)}, {s(sC)}')
p(f's_lshl_b32 {s(96)}, {s(sW)}, 7')
p(f's_add_u32 {s(96)}, {s(96)}, {s(98)}')
p(f's_lshl_b32 {s(96)}, {s(96)}, 10')
p(f'v_add_u32 {v(vXr)}, {s(96)}, {v(vL16)}')
p(f'v_mul_u32_u24 {v(T + 3)}, 1040, {v(T + 1)}')
p(f'v_lshl_add_u32 {v(T + 3)}, {v(T)}, 8, {v(T + 3)}')
p(f'v_lshl_add_u32 {v(T + 3)}, {v(n_)}, 3, {v(T + 3)}')
p(f's_mul_i32 {s(96)}, {s(sW)}, 2080')
p(f's_add_u32 {s(96)}, {s(96)}, {SCR}')
p(f'v_add_u32 {v(vUr)}, {s(96)}, {v(T + 3)}')
p(f'v_mul_u32_u24 {v(T + 3)}, 1040, {v(n_)}')
p(f'v_lshl_add_u32 {v(T + 3)}, {v(g_)}, 5, {v(T + 3)}')
p(f's_lshl_b32 {s(96)}, {s(sW)}, 8')
p(f's_add_u32 {s(96)}, {s(96)}, {SCR}')
p(f'v_add_u32 {v(vUw)}, {s(96)}, {v(T + 3)}')
p(f'v_lshlrev_b32 {v(T + 3)}, 13, {v(g_)}')
p(f'v_lshl_add_u32 {v(T + 3)}, {v(n_)}, 4, {v(T + 3)}')
p(f's_lshl_b32 {s(96)}, {s(sW)}, 9')
p(f'v_add_u32 {v(vVld)}, {s(96)}, {v(T + 3)}')
p(f'v_lshlrev_b32 {v(T + 3)}, 17, {v(g_)}')
p(f'v_lshl_add_u32 {v(T + 3)}, {v(n_)}, 4, {v(T + 3)}')
p(f's_lshl_b32 {s(96)}, {s(sW)}, 19')
p(f'v_add_u32 {v(vVst)}, {s(96)}, {v(T + 3)}')
p(f'v_mul_u32_u24 {v(T + 3)}, 160, {v(n_)}')
p(f'v_lshl_add_u32 {v(T + 3)}, {v(g_)}, 3, {v(T + 3)}')
p(f's_mul_i32 {s(96)}, {s(sW)}, 2560')
p(f's_add_u32 {s(96)}, {s(96)}, {SCR}')
p(f'v_add_u32 {v(vHw2)}, {s(96)}, {v(T + 3)}')
p(f'v_lshrrev_b32 {v(T + 3)}, 2, {v(lane)}')
p(f'v_mul_u32_u24 {v(T + 3)}, 160, {v(T + 3)}')
p(f'v_and_b32 {v(T + 2)}, 3, {v(lane)}')
p(f'v_lshl_add_u32 {v(T + 3)}, {v(T + 2)}, 3, {v(T + 3)}')
p(f'v_add_u32 {v(vHw)}, {s(96)}, {v(T + 3)}')
p(f'v_add_u32 {v(vHr)}, {SCR}, {v(T + 3)}')
for q in range(1, 5):
    p(f's_add_u32 {s(96)}, {s(sW)}, {q}')
    p(f's_and_b32 {s(96)}, {s(96)}, 3')
    p(f's_mul_i32 {s(96)}, {s(96)}, 3072')
    p(f's_add_u32 {s(96)}, {s(96)}, {SCR + (1024 * (q - 1) if q < 4 else 0)}')
    p(f'v_add_u32 {v(vRed + q - 1)}, {s(96)}, {v(vL16)}')
p(f'v_and_b32 {v(T)}, 7, {v(n_)}')
p(f'v_lshlrev_b32 {v(T)}, 6, {v(T)}')
p(f'v_add_u32 {v(T)}, {s(98)}, {v(T)}')
p(f'v_lshlrev_b32 {v(T + 1)}, 2, {v(g_)}')
p(f'v_mul_u32_u24 {v(T + 1)}, {v(T + 1)}, {v(T)}')
p(f'v_lshrrev_b32 {v(T + 2)}, 3, {v(n_)}')
p(f'v_lshl_add_u32 {v(T + 1)}, {v(T + 2)}, 9, {v(T + 1)}')
p(f's_cmp_eq_u32 {s(94)}, 0')
p(f's_cselect_b32 {s(73)}, 1.0, -1.0')
p(f's_cselect_b32 {s(74)}, 0, 1.0')
p(f's_cselect_b32 {s(72)}, 1.0, 0')
p(f's_cmp_eq_u32 {s(sC)}, 0')
p(f's_cselect_b32 {s(72)}, {s(72)}, 1.0')
p(f's_cselect_b32 {s(73)}, 0, {s(73)}')
p(f's_cselect_b32 {s(74)}, {s(74)}, 0')
for k in range(8):
    cp = 16 * (k >> 2) + (k & 3)
    p(f'v_mad_u32_u24 {v(T + 2)}, {v(T)}, {cp}, {v(T + 1)}')
    p(f'v_and_b32 {v(T + 2)}, 0x7ff, {v(T + 2)}')
    p(f'v_cvt_f32_u32 {v(T + 2)}, {v(T + 2)}')
    p(f'v_mul_f32 {v(T + 2)}, {f2u(1.0 / 2048):#x}, {v(T + 2)}')
    p(f'v_cos_f32 {v(T + 3)}, {v(T + 2)}')
    p(f'v_sin_f32 {v(T + 4)}, {v(T + 2)}')
    p(f'v_mul_f32 {v(T + 5)}, {s(74)}, {v(T + 3)}')
    p(f'v_mul_f32 {v(T + 3)}, {s(72)}, {v(T + 3)}')
    p(f'v_fma_f32 {v(T + 4)}, {s(73)}, {v(T + 4)}, {v(T + 5)}')
    p(f'v_cvt_pk_bf16_f32 {v(vC2 + k)}, {v(T + 3)}, {v(T + 4)}')
stamp('setup')
if OPT['wfirst'] == 1:
    emit(wsp_first)
    wsp_first = []
for i in range(OPT['x1'], OPT['xa']):
    if OPT['wfirst'] == 2 and wsp_first:
        emit([wsp_first.pop(0)])
    x_loads(i, i + 1)
if OPT['xa'] == 8:
    m1_load(108)
if OPT['ctpos'] == 0:
    ct_dma(110)
SCHED = OPT['sched'].split('/')
FIX = OPT['fix'].split('/')
WSR = (160, 192)
a2a_load = [(f'buffer_load_dword {v(241)}, {v(vPoll)}, {s(R_WS, 4)}, {s(sRep)} offen sc1', None)]


def wsp_run(items):
    i = 0
    while i < len(items):
        if items[i] == 'q':
            if_wave0()
            emit([a2a_load])
            p.end()
            i += 1
            continue
        k = int(items[i + 1])
        if items[i] == 'd':
            p.wait_lgkm(f'wr{k - 3}')
            wsp_dma(k)
        elif items[i] == 'r':
            wsp_read(k, WSR[k & 1])
        elif items[i] == 'a':
            wsp_park(k)
        else:
            wsp_perm(k, WSR[k & 1])
        if OPT['fine'] == 2:
            stamp('*' + items[i:i + 2])
        i += 2


zpois = [(f'buffer_store_dwordx4 {v(116, 4)}, {v(vZst)}, {s(R_WL, 4)}, {s(sZst)} offen sc1', 'pub')]
bg = prep + wsp_first
if OPT['zs']:
    bg = [zpois] + bg if OPT['zp0'] == 0 else bg + [zpois]
for ch in SCHED[0]:
    bg += wsp_dma_ops(int(ch))
for k in range(4):
    p(f'v_mov_b32 {v(T + 2 + k)}, 0')
p.bg = bg
xnext = OPT['xa']
if xnext == 8:
    p.bg_on(OPT['wspev'])
for i in range(64):
    if xnext < 8 and i % OPT['xe'] == OPT['xe'] - 1:
        x_loads(xnext, xnext + 1)
        xnext += 1
        if xnext == 8:
            m1_load(108)
            p.bg_on(OPT['wspev'])
    p(f'v_dot2c_f32_bf16 {v(T + 2 + (i & 1))}, {s(sOnes)}, {v(XR + i)}')
    p(f'v_dot2c_f32_bf16 {v(T + 4 + (i & 1))}, {v(XR + i)}, {v(XR + i)}')
    if i == 7:
        unpack(XR, 8, XV)
    if i == OPT['ann']:
        p.bg_on(0)
        p(f's_cmp_eq_u32 {s(sG0)}, 3')
        p.begin('G0', 's_cbranch_scc0')
        p.wait_vm('z')
        p(f'v_mov_b32 {v(EI)}, 1')
        p('s_mov_b64 exec, 1')
        p(f's_lshl_b32 {s(99)}, s2, 2')
        p(f'buffer_store_dword {v(EI)}, off, {s(R_DBG, 4)}, {s(99)} sc1')
        p('s_mov_b64 exec, -1')
        p.end()
        p.bg_on(OPT['wspev'] if xnext == 8 else 0)
p.bg_on(0)
p.bg_emit()
p(f'v_add_f32 {v(T)}, {v(T + 2)}, {v(T + 3)}')
p(f'v_add_f32 {v(T + 1)}, {v(T + 4)}, {v(T + 5)}')
for qp in ('[1,0,3,2]', '[2,3,0,1]'):
    for k in range(2):
        p(f'v_add_f32_dpp {v(T + k)}, {v(T + k)}, {v(T + k)} quad_perm:{qp} row_mask:0xf bank_mask:0xf')
p(f'v_lshlrev_b32 {v(240)}, 2, {v(n_)}')
dbg_load = [(f'buffer_load_dword {v(241)}, {v(240)}, {s(R_DBG, 4)}, 0 offen sc1', None)]
assert not SCHED[1]
wsp_run(SCHED[1])

p.section('body')
for _ in range(OPT['algn']):
    p('s_nop 0')
p('L_layer:')
stamp('T')
HP, AF, D1, VO = 56, 72, 104, 56
finish_stats(T, 512)
for i in range(0, 16, 2):
    p(f'v_pk_fma_f32 {v(XV + i, 2)}, {v(XV + i, 2)}, {v(T, 2)}, {v(T, 2)} op_sel:[0,0,1] op_sel_hi:[1,0,1]')
for t in range(4):
    for k in range(2):
        p(f'v_cvt_pk_bf16_f32 {v(HP + 2 * t + k)}, {v(XV + 8 * k + t)}, {v(XV + 8 * k + 4 + t)}')
    p(f'ds_write_b64 {v(vHw)}, {v(HP + 2 * t, 2)} offset:{32 * t}', tag='hw')
p(f's_add_u32 {s(sT + 1)}, {s(sVst)}, 0x10000')
p.wait_lgkm('hw')
p.wait_vm('prep')
p('s_barrier')
for ks in range(2):
    for tile in range(4):
        for half in range(2):
            p(f'ds_read_b64_tr_b16 {v(AF + 16 * ks + 4 * tile + 2 * half, 2)}, {v(vHr)} offset:{(32 * ks + 16 * half) * 160 + 32 * tile}')
if_layer(0)
for k in range(2):
    for half in range(2):
        p(f'ds_read_b64_tr_b16 {v(PK + 4 * k + 2 * half, 2)}, {v(vPri)} offset:{128 * k + 896 * half}')
for half in range(2):
    p(f'ds_read_b64_tr_b16 {v(PK + 8 + 2 * half, 2)}, {v(vPro)} offset:{2048 * half}')
p.end()
for ks in range(2):
    for tile in range(4):
        d = D1 + 4 * tile
        p(f'{M16} {v(d, 4)}, {v(M1 + 4 * ks, 4)}, {v(AF + 16 * ks + 4 * tile, 4)}, {v(d, 4) if ks else 0}')
if_layer(0)
p(f'v_lshlrev_b32 {v(vBsp)}, 16, {v(vBsp)}')
p(f'buffer_store_dwordx4 {v(PK, 4)}, {v(vL16)}, {s(R_WS, 4)}, {s(83)} offen sc1', tag='pub')
p(f'buffer_store_dwordx4 {v(PK + 4, 4)}, {v(vL16)}, {s(R_WS, 4)}, {s(84)} offen sc1', tag='pub')
p(f'buffer_store_dwordx4 {v(PK + 8, 4)}, {v(vL16)}, {s(R_WS, 4)}, {s(85)} offen sc1', tag='pub')
p.end()
for jj in range(2):
    for t in range(4):
        p(f'v_cvt_pk_bf16_f32 {v(VO + 4 * jj + t)}, {v(D1 + 4 * t + 2 * jj)}, {v(D1 + 4 * t + 2 * jj + 1)}')
    p(f'buffer_store_dwordx4 {v(VO + 4 * jj, 4)}, {v(vVst)}, {s(R_WL, 4)}, {s(sT + 1 if jj else sVst)} offen sc1', tag='pub')
stamp('Vst')
if OPT['ctpos'] == 1:
    ct_dma(T + 6)
if_layer(0)
if_wave0()
emit([dbg_load])
p.end()
wsp_run(SCHED[2])
if_wave0()
retry_until(dbg_load, lambda: p(f'v_cmp_ne_u32 vcc, 1, {v(241)}'))
p.end()
p.end()
wz2 = w_dma_ops(sWI, 114688, LOC_Z2, 'wz2')
CMN = [int(ch, 36) for ch in OPT['cmn']]
assert sum(CMN) % 4 == 0 and sum(CMN) + OPT['wzp1'] + OPT['wzp2'] + OPT['wzp3'] == 28
wz2_both, wz2 = wz2[:sum(CMN)], wz2[sum(CMN):]
P1, P2, P3 = OPT['wzp1'], OPT['wzp1'] + OPT['wzp2'], OPT['wzp1'] + OPT['wzp2'] + OPT['wzp3']
assert P1 % 4 == 0 and OPT['wzp0'] % 4 == 0
if (OPT['ctp'] == 2 and OPT['ctpos'] == 0) or P2 > P1:
    if_layer(1)
    if OPT['ctp'] == 2 and OPT['ctpos'] == 0:
        ct_dma(T + 6)
    emit(wz2[P1:P2])
    p.end()
stamp('init')
if OPT['vs']:
    if_layer(0)
    p.wait_vm('pub')
    p.wait_vm('ct')
    arrive(sArr, 8)
    p.end()
    if_layer(1)
    p.wait_vm('x2')
    p.wait_vm('ct')
    arrive_group(sS2, 32)
    p.end()
else:
    p.wait_vm('pub')
    p.wait_vm('ct')
    arrive(sArr, 8)
poison(5, 96)
code_prefetch(1, 'L_k2')
stamp('arr1')
FA, TW, FB, VR, D2, UP, XRES, Y = 40, 64, 80, 96, 160, 192, 224, 208
for k in range(14):
    p(f'ds_read_b128 {v(FA + 4 * k, 4)}, {v(vL16hi)} offset:{CT - 65536 + k * 1024}')
if_layer(0)
wsp_run(SCHED[3])
if_wave0()
retry_until(a2a_load, lambda: p(f'v_cmp_ne_u32 vcc, 16, {v(241)}'))
p.end()
p('s_barrier')
p.end()
for k in range(4):
    p(f's_add_u32 {s(sT + 4 + k)}, {s(sVld)}, {(16 * (k >> 1) + 2 * (k & 1)) * 2048:#x}')
if_layer(1)
emit(wz2[P2:P3])
x2_load = [(f'buffer_load_dword {v(248)}, {v(vGrp)}, {s(R_WS, 4)}, {s(sS2)} offen offset:32{PG}', None)]
if OPT['vs']:
    emit([x2_load])
else:
    poll(sRep, vPoll, 16)
p.end()
assert not SCHED[8:]


def l0_dma(n):
    emit([wz2_both.pop(0) for _ in range(CMN.pop(0))])


stamp('S1')
p('L_k2:')
vl = [(f'buffer_load_dwordx4 {v(VR + 16 * gk + 4 * ii, 4)}, {v(vVld)}, {s(R_WL, 4)}, {s(sT + 4 + 2 * (gk & 1) + (ii >> 1))} '
       f'offen offset:{(ii & 1) * 2048 + (gk >> 1) * 256} sc1', None) for gk in range(4) for ii in range(4)]
for gk in range(4):
    emit([vl[4 * gk:4 * gk + 4]])
    if gk < 3 and SCHED[4 + gk]:
        if_layer(0)
        wsp_run(SCHED[4 + gk])
        p.end()
if OPT['vs']:
    if_layer(1)
    retry_until(x2_load, lambda: p(f'v_cmp_ne_u32 vcc, 1, {v(248)}'))
    p.end()
xl = [(f'buffer_load_dwordx4 {v(XRES + 4 * k, 4)}, {v(vXr)}, {s(R_X, 4)}, {s((sXb, sXo)[k])} offen{LG}', None) for k in range(2)]
emit([xl])
if_layer(0)
p(f'buffer_load_dword {v(248)}, {v(vGrp)}, {s(R_WS, 4)}, {s(sS2)} offen offset:128 sc1')
wsp_run(SCHED[7])
if not SCHED[8:]:
    p('s_waitcnt lgkmcnt(0)')
    p('s_barrier')
p.end()
l0_dma(0)
stamp('Vld')


def u_pack(hi):
    up = (192, 200)[hi]
    for r in range(4):
        for lp in range(2):
            p(f'v_cvt_pk_bf16_f32 {v(up + 2 * r + lp)}, {v(D2 + 16 * hi + 8 * lp + r)}, {v(D2 + 16 * hi + 8 * lp + 4 + r)}')
        if r & 1:
            p(f'ds_write_b128 {v(vUw)}, {v(up + 2 * r - 2, 4)} offset:{128 * hi + 8 * (r - 1)}')


for hi in range(2):
    for ks in range(2):
        if hi and ks:
            u_pack(0)
        r = VR + 32 * hi + 16 * ks
        if OPT['vs']:
            def v_test(r=r):
                p(f'v_max3_u32 {v(T)}, {v(r + 3)}, {v(r + 7)}, {v(r + 11)}')
                p(f'v_max_u32 {v(T)}, {v(T)}, {v(r + 15)}')
                p(f'v_cmp_eq_u32 vcc, -1, {v(T)}')
            gk = 2 * hi + ks
            if OPT['vs'] == 1:
                retry_until(vl[4 * gk:], v_test)
            else:
                retry_until(vl[4 * gk:4 * gk + 4], v_test, after=vl[4 * gk + 4:] + xl if gk < 3 else None)
        for i in range(4):
            for j in range(i + 1, 4):
                p(f'v_swap_b32 {v(r + 4 * i + j)}, {v(r + 4 * j + i)}')
        for lo in range(4):
            d = D2 + 16 * hi + 4 * lo
            p(f'{M16} {v(d, 4)}, {v(r + 4 * lo, 4)}, {v(vC2 + 4 * ks, 4)}, {v(d, 4) if ks else 0}')
fine('st2')
l0_dma(4)
u_pack(1)
for k in range(2):
    p(f'ds_write_b128 {v(vXw + k)}, {v(XRES + 4 * k, 4)} offset:16640')
p('s_waitcnt lgkmcnt(0)')
p('s_barrier')
fine('ubar')
poison(4, 176)
UA, DR, DI, TT, PF = 96, 112, 128, 144, 160
for ri in range(2):
    for dh in range(2):
        for half in range(2):
            p(f'ds_read_b64_tr_b16 {v(UA + 8 * ri + 4 * dh + 2 * half, 2)}, {v(vUr)} offset:{ri * 8320 + dh * 512 + half * 128}')
for o in range(2):
    p(f'ds_read_b128 {v(XRES + 4 * o, 4)}, {v(vTw)} offset:{16640 + 4608 * o}')
l0_dma(4)
for ri in range(2):
    for dh in range(2):
        first = ri == 0 and dh == 0
        fr = FA + 4 * ((2 if ri else 0) + dh)
        fi = FA + 4 * ((0 if ri else 4) + dh)
        p(f'{M32} {v(DR, 16)}, {v(UA + 8 * ri + 4 * dh, 4)}, {v(fr, 4)}, {0 if first else v(DR, 16)}')
        p(f'{M32} {v(DI, 16)}, {v(UA + 8 * ri + 4 * dh, 4)}, {v(fi, 4)}, {0 if first else v(DI, 16)}')
fine('stA')
unpack(XRES, 8, Y)
fine('xres')
l0_dma(4)
for row in range(2):
    for k in range(0, 8, 2):
        r = 8 * row + k
        p(f'v_pk_mul_f32 {v(TT + k, 2)}, {v(DI + r, 2)}, {v(TW + 8 + k, 2)}')
        p(f'v_pk_mul_f32 {v(TT + 8 + k, 2)}, {v(DR + r, 2)}, {v(TW + 8 + k, 2)}')
    for k in range(0, 8, 2):
        r = 8 * row + k
        p(f'v_pk_fma_f32 {v(TT + k, 2)}, {v(DR + r, 2)}, {v(TW + k, 2)}, {v(TT + k, 2)}')
        p(f'v_pk_fma_f32 {v(TT + 8 + k, 2)}, {v(DI + r, 2)}, {v(TW + k, 2)}, {v(TT + 8 + k, 2)} neg_lo:[0,0,1] neg_hi:[0,0,1]')
    for k in range(8):
        p(f'v_cvt_pk_bf16_f32 {v(PF + 8 * row + k)}, {v(TT + 2 * k)}, {v(TT + 2 * k + 1)}')
for k in range(4):
    p(f'{M32} {v(Y, 16)}, {v(PF + 4 * k, 4)}, {v(FB + 4 * k, 4)}, {v(Y, 16)}')
fine('stB')
XO, HO = 224, 232
l0_dma(4)
if_layer(0)
p(f'v_cmp_ne_u32 vcc, {s(sLoc)}, {v(248)}')
p('s_cmp_eq_u64 vcc, 0')
p(f's_cselect_b32 {s(sLoc)}, {OPT["loc"]}, 0')
p(f's_mov_b32 {s(sLocU)}, {s(sLoc)}')
p.end()
local_stats(Y, 16, T)
p(f'v_permlane32_swap_b32 {v(T)}, {v(T + 1)}')
p(f'v_add_f32 {v(T)}, {v(T)}, {v(T + 1)}')
for k, sh in enumerate((8, 4, 2, 1)):
    p(f'v_cvt_pk_bf16_f32 {v(XO + 2 * k)}, {v(Y + 4 * k)}, {v(Y + 4 * k + 1)}')
    p(f'v_cvt_pk_bf16_f32 {v(XO + 2 * k + 1)}, {v(Y + 4 * k + 2)}, {v(Y + 4 * k + 3)}')
    p(f'v_add_f32_dpp {v(T)}, {v(T)}, {v(T)} row_ror:{sh} row_mask:0xf bank_mask:0xf')
p(f'v_mov_b32 {v(T + 1)}, {v(T)}')
p(f's_add_u32 {s(sT)}, {s(sK2)}, {X1_:#x}')
p(f's_add_u32 {s(sT + 1)}, {s(sK2)}, {H_:#x}')
p(f'v_permlane32_swap_b32 {v(T)}, {v(T + 1)}')
finish_stats(T, 512)
norm_pack(Y, 16, T, Y, HO)
fine('norm')
for o in range(2):
    p(f'ds_write_b128 {v(vTw)}, {v(HO + 4 * o, 4)} offset:{16640 + 4608 * o}')
p('s_waitcnt lgkmcnt(0)')
p('s_barrier')
for k in range(2):
    p(f'ds_read_b128 {v(HO + 4 * k, 4)}, {v(vTr)} offset:{16640 + 576 * k}')
for o in range(2):
    p(f'ds_write_b128 {v(vTw)}, {v(XO + 4 * o, 4)} offset:{4608 * o}')
gstore([f'buffer_store_dwordx4 {v(HO + 4 * k, 4)}, {v(vK2)}, {s(R_WL, 4)}, {s(sT + 1)} offen offset:{2048 * k}' for k in range(2)], 'pub', OPT['locd'] & 1, sLocH)
l0_dma(6)
HF, Z2, Z1, WR, WD, GT = 40, 104, 136, 164, 12, 232
for k in range(4):
    p(f's_add_u32 {s(sT + 4 + k)}, {s(sH)}, {H_ + 4096 * k:#x}')
wsp_fix(FIX[0], 104, wz2[:OPT['l0a']])
stamp('K2')
p('s_waitcnt lgkmcnt(0)')
if OPT['wf2']:
    p('s_barrier')
    for k in range(2):
        p(f'ds_read_b128 {v(XO + 4 * k, 4)}, {v(vTr)} offset:{576 * k}')
    p(f'v_mov_b32 {v(T)}, 1')
    p.wait_vm('pub')
    p('s_mov_b64 exec, 1')
    gstore([f'buffer_store_dword {v(T)}, off, {s(R_WS, 4)}, {s(sF2s)}'])
    p('s_mov_b64 exec, -1')
else:
    p.wait_vm('pub')
    arrive_group(sS2)
    for k in range(2):
        p(f'ds_read_b128 {v(XO + 4 * k, 4)}, {v(vTr)} offset:{576 * k}')
wsp_fix(FIX[1], 104, wz2[OPT['l0a']:])
stamp('arr2')
p('s_waitcnt lgkmcnt(0)')
for k in range(7):
    p.wait_vm(f'wz2{k}')
if OPT['wf2']:
    p('s_barrier')
    top, done = p.label('poll'), p.label('pdone')
    p(f'{top}:')
    p(f'buffer_load_dword {v(T)}, {v(vGrp)}, {s(R_WS, 4)}, {s(sF2l)} offen{PG}')
    p('s_waitcnt vmcnt(0)')
    p(f'v_cmp_ne_u32 vcc, 1, {v(T)}')
    spin_tail(top, done)
else:
    poll(sS2, vGrp, 1)
stamp('S2')
p('L_k3:')
hl = [[(f'buffer_load_dwordx4 {v(HF + 4 * ks, 4)}, {v(vL16)}, {s(R_WL, 4)}, {s(sT + 4 + (ks >> 2))} offen offset:{1024 * (ks & 3)}{LG}', None)]
      for ks in range(16)]
xs = [[(f'buffer_store_dwordx4 {v(XO + 4 * k, 4)}, {v(vK2)}, {s(R_WL, 4)}, {s(sT)} offen offset:{2048 * k} sc1', 'x1')] for k in range(2)]
wz1 = w_dma_ops(sWI, 0, LOC_Z1, 'wz1')
emit(hl[:OPT['pre3']])
SEL, ZP, ZT, ZO = 212, 228, 164, 104
p(f'v_and_b32 {v(SEL)}, 0xf0, {v(vL16)}')
p(f'v_lshrrev_b32 {v(SEL + 1)}, 2, {v(vL16)}')
p(f'v_and_b32 {v(SEL + 1)}, 0xc0, {v(SEL + 1)}')
p(f'v_sub_u32 {v(SEL)}, {v(SEL)}, {v(SEL + 1)}')
p(f'v_mov_b32 {v(SEL + 4)}, 0x3f80')
p(f'v_lshlrev_b32 {v(SEL + 4)}, {v(SEL)}, {v(SEL + 4)}')
p(f'v_lshrrev_b32 {v(SEL + 1)}, 5, {v(SEL)}')
p(f'v_cmp_eq_u32 vcc, 0, {v(SEL + 1)}')
p(f'v_cndmask_b32 {v(SEL + 2)}, 0, {v(SEL + 4)}, vcc')
p(f'v_cmp_eq_u32 vcc, 1, {v(SEL + 1)}')
p(f'v_cndmask_b32 {v(SEL + 3)}, 0, {v(SEL + 4)}, vcc')
for k in (0, 1, 4, 5):
    p(f'v_mov_b32 {v(SEL + k)}, 0')
p(f'v_mov_b32 {v(ZP + 14)}, 0')
p(f'v_mov_b32 {v(ZP + 15)}, 0')
wsp_fix(FIX[2], 104)
n_h = 16 - OPT['pre3']
fill = spread(hl[OPT['pre3']:], 1, OPT['hsp'])
fill.update(spread(xs + wz1[:12], OPT['hsp'] * n_h + 1, OPT['z2sp']))
fill[max(fill) + 3] = lambda: poison(1, 132)
gemm_r(Z2, 7, 0, 16, HF, WR, WD, LOC_Z2, fill=fill)
p.wait_vm('x1')
p('s_barrier')
stamp('z2mm')
p.bg = wz1[12:]
p.bg_emit(2)
p.bg_on(OPT['g2ev'])
gelu(Z2, 28, GT)
local_stats(Z2, 28, T)
p.bg_on(0)
reduce_g(T, T + 1)
publish_stats(0)
stamp('pub3')
Z1A = OPT['z1a']
p.bg_emit(None if Z1A else OPT['gb'])
p(f's_mov_b32 {s(sT + 2)}, {s(sZld)}')
p(f'v_add_u32 {v(245)}, {s(sDm)}, {v(vL16)}')
OW, OR, OG = 248, 249, 253
p(f's_add_u32 {s(sT + 1)}, {s(sUst)}, 8192')
p(f's_lshl_b32 {s(sT + 3)}, {s(sB)}, 10')
p(f's_add_u32 {s(sT + 3)}, {s(sT + 3)}, {s(sH)}')
p(f's_add_u32 {s(sT + 12)}, {s(sT + 3)}, {X1_:#x}')
p(f's_add_u32 {s(sT + 13)}, {s(sT + 3)}, {X1_ + 8192:#x}')
for k in range(4):
    p(f's_add_u32 {s(sT + 4 + k)}, {s(sUld)}, {4096 * k}')
    p(f's_add_u32 {s(sT + 8 + k)}, {s(sH)}, {X1_ + 4096 * k:#x}')
p(f'v_and_b32 {v(133)}, 0xf0, {v(vL16)}')
p(f'v_mul_u32_u24 {v(133)}, 9, {v(133)}')
p(f'v_lshrrev_b32 {v(134)}, 8, {v(vL16)}')
p(f'v_lshl_add_u32 {v(133)}, {v(134)}, 5, {v(133)}')
p(f's_mul_i32 {s(99)}, {s(sW)}, 2304')
p(f's_add_u32 {s(99)}, {s(99)}, {SCR + 12288}')
p(f'v_add_u32 {v(OW)}, {s(99)}, {v(133)}')
p(f'v_lshrrev_b32 {v(133)}, 7, {v(vL16)}')
p(f'v_lshl_add_u32 {v(134)}, {v(133)}, 4, {v(vL16)}')
p(f'v_add_u32 {v(OR)}, {s(99)}, {v(134)}')
p(f'v_and_b32 {v(134)}, 0x70, {v(vL16)}')
p(f'v_lshl_add_u32 {v(OG)}, {v(133)}, 16, {v(134)}')
p(f's_lshl_b32 {s(99)}, {s(sW)}, 9')
p(f's_add_u32 {s(99)}, {s(99)}, {s(sC)}')
p(f's_lshl_b32 {s(99)}, {s(99)}, 10')
p(f's_add_u32 {s(sT + 14)}, {s(99)}, {s(sB128)}')
p(f's_add_u32 {s(sT + 15)}, {s(sT + 14)}, 0x8000')
wo = w_dma_ops(sWO, 0, LOC_WO, 'wo')
if Z1A:
    p.wait_vm('wz12')
    p('s_barrier')
    fill = {OPT['gpos']: gather_loads(0)}
    fill.update(spread(wo[:OPT['woa']], OPT['gpos'] + 2, 2))
    gemm_r(Z1, 7, 0, Z1A, HF, WR, WD, LOC_Z1, fill=fill)
else:
    emit([gather_loads(0)])
    p.bg_emit()
    emit(wo[:OPT['woa']])
stamp('z1a')
gather_finish(0)
stamp('S3')
poison(2, 132)
finish_stats(T, 896)
for i in range(0, 28, 2):
    p(f'v_pk_fma_f32 {v(Z2 + i, 2)}, {v(Z2 + i, 2)}, {v(T, 2)}, {v(T, 2)} op_sel:[0,0,1] op_sel_hi:[1,0,1]')
ZO = 192
for pr in range(6):
    if pr < 4:
        tiles = [ft for ft in (2 * pr, 2 * pr + 1) if ft < 7]
        for ft in tiles:
            for k in range(2):
                p(f'v_cvt_pk_bf16_f32 {v(ZP + 2 * ft + k)}, {v(Z2 + 4 * ft + 2 * k)}, {v(Z2 + 4 * ft + 2 * k + 1)}')
    if 2 <= pr:
        q = pr - 2
        for ft in (2 * q, 2 * q + 1):
            for k in range(2 if ft < 7 else 0):
                p(f'v_cvt_pk_bf16_f32 {v(ZO + 2 * ft + k)}, {v(ZT + 4 * ft + 2 * k)}, {v(ZT + 4 * ft + 2 * k + 1)}')
        p(f's_add_u32 {s(sT)}, {s(sZst)}, {q * 32768:#x}')
    if pr < 4:
        for ft in tiles:
            p(f'{M16} {v(ZT + 4 * ft, 4)}, {v(ZP + 4 * pr, 4)}, {v(SEL + (0 if ft & 1 else 2), 4)}, 0')
    if 2 <= pr:
        for k in range(2):
            p(f'v_permlane16_swap_b32 {v(ZO + 4 * q + k)}, {v(ZO + 4 * q + 2 + k)}')
        if q == 3:
            p('s_mov_b32 exec_lo, 0xffff')
            p('s_mov_b32 exec_hi, 0xffff')
        p(f'buffer_store_dwordx4 {v(ZO + 4 * q, 4)}, {v(vZst)}, {s(R_WL, 4)}, {s(sT)} offen sc1', tag='pub')
p('s_mov_b64 exec, -1')
stamp('Zst')
poison(3, 132)
p.wait_vm('wz16')
p('s_barrier')
Z1B = min(16, Z1A + OPT['z1arr'])
wreg = lambda k: 104 + 4 * k if k < 8 else 212 + 4 * (k - 8)
wst = []
for k in range(16):
    g = [(f's_add_u32 {s(sDo)}, {s(sWO)}, {16384 * (3 + (k >> 2)):#x}', None)] if k % 4 == 0 else []
    if not OPT['nobg'] & 1:
        g.append((f'buffer_load_dwordx4 {v(wreg(k), 4)}, {v(vL16)}, {s(R_WS, 4)}, {s(sDo)} offen offset:{1024 * (k & 3)}', None))
    wst.append(g)
bgw = wo[OPT['woa']:12] + wst
wo = []
ZD, AC, RT, UO = OPT['zd'], 196, 228, 240


def zreg(fi):
    k = fi % ZD
    return 56 + 4 * k


def zload(fi):
    if fi % 4 == 0 and fi:
        p(f's_add_u32 {s(sT + 2)}, {s(sT + 2)}, 4096')
    if OPT['k4load'] or fi < ZD:
        p(f'buffer_load_dwordx4 {v(zreg(fi), 4)}, {v(vL16)}, {s(R_WL, 4)}, {s(sT + 2)} offen offset:{(fi % 4) * 1024}' + ' sc1')


nin = min(len(bgw), (112 - 7 * Z1A - 1) // OPT['wosp'])
fill = spread(bgw[:nin], 7 * Z1A + 1, OPT['wosp'])
nz = 0
if OPT['zs'] and OPT['zin'] and nin == len(bgw):
    pos = max(max(fill) + OPT['wosp'], OPT['zin'])
    while nz < ZD and max(pos, 7 * (nz + 5) - 1) < 112:
        pos = max(pos, 7 * (nz + 5) - 1)
        fill[pos] = (lambda k: lambda: zload(k))(nz)
        pos += OPT['zsp']
        nz += 1
gemm_r(Z1, 7, Z1A, Z1B, HF, WR, WD, LOC_Z1, last=112, fill={k: g for k, g in fill.items() if k < 7 * Z1B})
p.wait_vm('pub')
arrive(sS4, 8)
code_prefetch(4, 'L_k4')
stamp('arr4')
if Z1B < 16:
    gemm_r(Z1, 7, Z1B, 16, HF, WR, WD, LOC_Z1, preload=False, fill={k: g for k, g in fill.items() if k >= 7 * Z1B})
p.bg = bgw[nin:]
if nz:
    for fi in range(nz, ZD):
        zload(fi)
    nz = ZD
if OPT['g1w']:
    p.bg_on(8)
    gelu(Z1, 4 * OPT['g1w'], 164)
    p.bg_on(0)
p.bg_emit()
wsp_fix(FIX[3], 164)
stamp('win4')
if OPT['zs']:
    if Z1B < 16:
        p('s_barrier')
else:
    poll(sP4, None, 32)
stamp('S4')
p('L_k4:')
def k4_epilogue(ft):
    ac, buf = AC + 16 * (ft & 1), 12288 * (ft & 1)
    st1 = [f'ds_write_b128 {v(vRed + q - 1)}, {v(ac + 4 * q, 4)} offset:{buf}' for q in (1, 2, 3)]
    st1 += [f'v_add_f32 {v(ac + r)}, {v(vBsp)}, {v(ac + r)}' for r in range(4)]
    st2 = ['s_waitcnt lgkmcnt(0)', 's_barrier']
    st2 += [f'ds_read_b128 {v(RT + 4 * q, 4)}, {v(vRed + 3)} offset:{buf + 1024 * q}' for q in range(3)]
    st3 = [f'v_add_f32 {v(ac + r)}, {v(RT + 4 * q + r)}, {v(ac + r)}' for q in range(3) for r in range(4)]
    st3 += [f'v_mul_f32 {v(ac + r)}, {v(Z1 + 4 * ft + r)}, {v(ac + r)}' for r in range(4)]
    st3 += [f'v_cvt_pk_bf16_f32 {v(UO + 2 * (ft & 1) + k)}, {v(ac + 2 * k)}, {v(ac + 2 * k + 1)}' for k in range(2)]
    if ft == 6:
        st3 += [f'buffer_store_dwordx2 {v(UO, 2)}, {v(vL8)}, {s(R_WL, 4)}, {s(sT + 13)} offen']
    elif ft == 5:
        st3 += [f'buffer_store_dwordx4 {v(UO, 4)}, {v(vL16)}, {s(R_WL, 4)}, {s(sT + 12)} offen']
    elif ft & 1:
        st3 += [f'buffer_store_dwordx4 {v(UO, 4)}, {v(vL16)}, {s(R_WL, 4)}, {s(sT + 1 if ft == 3 else sUst)} offen offset:0']
    return st1, st2, st3


def k4_emit(x):
    if x.startswith('buffer_store'):
        late = x.endswith('offen')
        if late:
            p.wait_vm('x1l')
        gstore([x], 'u6' if 'dwordx2' in x else 'pub', OPT['locd'] & (2 if late else 4), sLocU if OPT['locd'] & (8 if late else 16) else None)
    else:
        p(x)


def gelu_ops(x, t):
    ops = [f'v_mul_f32 {v(t + k)}, {v(x + k)}, {v(x + k)}' for k in range(4)]
    ops += [f'v_fma_f32 {v(t + k)}, {v(t + k)}, {v(vGK)}, {v(vGK + 1)}' for k in range(4)]
    ops += [f'v_mul_f32 {v(t + k)}, {v(t + k)}, {v(x + k)}' for k in range(4)]
    ops += [f'v_exp_f32 {v(t + k)}, {v(t + k)}' for k in range(4)]
    ops += [f'v_add_f32 {v(t + k)}, 1.0, {v(t + k)}' for k in range(4)]
    ops += [f'v_rcp_f32 {v(t + k)}, {v(t + k)}' for k in range(4)]
    ops += [f'v_mul_f32 {v(x + k)}, {v(t + k)}, {v(x + k)}' for k in range(4)]
    return ops


WR5, X1R, XP, FL, X1L = 56, 232, 104, 244, 136
assert ZD == WD


def ureg(ks):
    return (104, 120, 164, 180, 212, 196, 136)[ks >> 2] + 4 * (ks & 3)


ul = [[(f'buffer_load_dwordx4 {v(ureg(ks), 4)}, {v(vL16)}, {s(R_WL, 4)}, {s(sT + 4 + (ks >> 2))} offen offset:{1024 * (ks & 3)}{LG}', None)]
      for ks in range(24)]
ul += [[(f'buffer_load_dwordx2 {v(ureg(24 + i) + 2 * k, 2)}, {v(vL8)}, {s(R_WL, 4)}, {s(sT + 10 + (i >> 1))} offen offset:{1024 * (2 * (i & 1) + k)}{LG}', None)
        for k in range(2)] for i in range(4)]


def flag_store(off):
    p(f'v_mov_b32 {v(FL + 1)}, 1')
    p(f's_add_u32 {s(99)}, {s(sS5)}, {s(sB4)}')
    p('s_mov_b64 exec, 1')
    gstore([f'buffer_store_dword {v(FL + 1)}, off, {s(R_WS, 4)}, {s(99)} offset:{off}'])
    p('s_mov_b64 exec, -1')


def flag_load(off):
    return [(f'buffer_load_dword {v(FL)}, {v(vGrp)}, {s(R_WS, 4)}, {s(sS5)} offen offset:{off}{PG}', None)]


def z_check(fi):
    loads = [(f's_add_u32 {s(99)}, {s(sZld)}, {1024 * fi:#x}', None)]
    loads += [(f'buffer_load_dwordx4 {v(zreg(fi + k), 4)}, {v(vL16)}, {s(R_WL, 4)}, {s(99)} offen offset:{1024 * k} sc1', None) for k in range(2)]
    return loads, lambda: p(f'v_cmp_u_f32 vcc, {v(zreg(fi) + 3)}, {v(zreg(fi + 1) + 3)}')


s4_load = [(f'buffer_load_dword {v(FL)}, off, {s(R_WS, 4)}, {s(sP4)} sc1', None)]


def flag_check(off):
    retry_until(flag_load(off), lambda: p(f'v_cmp_ne_u32 vcc, 1, {v(FL)}'))


for fi in range(nz, ZD):
    zload(fi)
assert not FIX[4]
x1l = [(f'buffer_load_dwordx4 {v(X1L + 4 * o, 4)}, {v(vL16)}, {s(R_WL, 4)}, {s(sT + 12 + o)} offen{LG}', 'x1l') for o in range(2)]
tail = ul[:16]
ROT = 112 % ZD
for ft in range(7):
    fill = {}
    if ft and OPT['k4epi']:
        st1, st2, st3 = k4_epilogue(ft - 1)
        pos = OPT['e1']
        for x in st1:
            fill.setdefault(pos, []).append(x)
            pos += 1
        pos = OPT['e2']
        for x in st2:
            fill.setdefault(pos, []).append(x)
            pos += 1
        pos = OPT['e3']
        for x in st3:
            fill.setdefault(pos, []).append(x)
            pos += 1
    if ft == 0:
        for k in range(16):
            fill[4 * k + 1] = [f'ds_write_b128 {v(245)}, {v(wreg(15 - k), 4)} offset:{16384 * ((15 - k) >> 2) + 1024 * ((15 - k) & 3)}']
    if ft == OPT['upk']:
        free = [k for k in range(64) if k % 4 != 3][-16:]
        for i in range(8):
            fill.setdefault(free[2 * i], []).append(f'v_lshlrev_b32 {v(XV + 2 * i)}, 16, {v(X1L + i)}')
            fill.setdefault(free[2 * i + 1], []).append(f'v_and_b32 {v(XV + 2 * i + 1)}, 0xffff0000, {v(X1L + i)}')
    free = [k for k in range(64) if k not in fill] + [k for k in range(64) if len(fill.get(k, [])) == 1 and fill[k][0][0] == 'v' and k % 4 != 3]
    free = sorted(free[:28])
    for k, x in zip(free, gelu_ops(Z1 + 4 * (ft + OPT['gsh']), T) if OPT['g1w'] <= ft + OPT['gsh'] < 7 else []):
        fill.setdefault(k, []).append(x)
    for a2 in range(16):
        fi = ft * 16 + a2
        chk = OPT['zs'] and fi & 1 and fi < 31
        if OPT['zs'] and fi == 0:
            retry_until(*z_check(0))
        for q in range(4):
            d = AC + 16 * (ft & 1) + 4 * q
            if chk and q == 3:
                z_check(fi + 1)[1]()
            if OPT['k4mfma'] or q == 0:
                p(f'{M16} {v(d, 4)}, {v(zreg(fi), 4)}, {a((q * 16 + a2) * 4, 4)}, {v(d, 4) if a2 else 0}')
            for x in fill.get(4 * a2 + q, []):
                k4_emit(x)
        if chk:
            retry_until(*z_check(fi + 1), tested=True)
        if OPT['zs'] and fi == OPT['q4']:
            emit([s4_load])
        if OPT['zs'] and fi + ZD == 32:
            retry_until(s4_load, lambda: p(f'v_cmp_ne_u32 vcc, 32, {v(FL)}'))
        if fi + ZD < 112:
            zload(fi + ZD)
        elif len(tail) > 16 - OPT['ntail']:
            if len(tail) == 8:
                flag_check(0)
            emit([tail.pop(0)])
        if fi + ZD >= 112:
            wring_read(fi + ZD - 112, WR5, WD, LOC_WO, ROT)
        if fi == OPT['mf']:
            p.wait_vm('pub')
            flag_store(32)
        if OPT['fine'] == 3 and (a2 == 15 or fi == 0) and fi < 111:
            stamp(f'i{fi}')
        if fi == 56:
            p.wait_vm('pub')
            flag_store(96)
        if fi == 70:
            emit([flag_load(96)])
        if fi == 84:
            flag_check(96)
        if fi == OPT['f5a']:
            p.wait_vm('pub')
            flag_store(0)
        if fi == 64:
            code_prefetch(8, 'L_k5')
        if fi == 80:
            p('L_k5:')
        if fi == OPT['x1pos']:
            emit([x1l])
        if fi == OPT['l5a']:
            emit([flag_load(0)])
stamp('K4')


def chain(*fs):
    def run():
        for f in fs:
            f()
    return run


def line(x, tag=None):
    return lambda: p(x, tag=tag)


def flag_after(tag, off):
    p.wait_vm(tag)
    flag_store(off)


def next_m1():
    if_layer(0)
    m1_load(228)
    p.end()


fill = {}


def put(pos, f):
    fill[pos] = chain(fill[pos], f) if pos in fill else f


st1, st2, st3 = k4_epilogue(6)
for k, x in enumerate(st1):
    put(OPT['k1'] + min(k, 3 + (k - 3) // 2), line(x, 'red' if k < 3 else None))
put(OPT['k2'], chain(lambda: p.wait_lgkm('red'), *[line(x) for x in st2[1:]]))
for k, x in enumerate(st3):
    put(OPT['k3'] + k // 2, (lambda y: lambda: k4_emit(y))(x))
kend = OPT['k3'] + len(st3) // 2
assert len(tail) < 8
for k, g in enumerate(tail):
    put(k, (lambda y: lambda: emit([y]))(g))
if OPT['mf'] > 111:
    put(OPT['mf'] - 112, lambda: flag_after('pub', 32))
put(OPT['mb'], lambda: emit([flag_load(32)]))
put(OPT['mc'], lambda: (flag_check(32), fine('ck5m'), emit(ul[16:20])))
for k in range(4):
    put(max(OPT['mc'], kend) + 2 + 2 * k, (lambda y: lambda: emit([y]))(ul[20 + k]))
put(OPT['fa'], lambda: (flag_after('u6', 64), fine('fl5b')))
put(OPT['fb'], lambda: emit([flag_load(64)]))
put(OPT['fc'], lambda: (flag_check(64), fine('ck5b'), emit(ul[24:])))
put(max(OPT['fc'] + 4, 64), next_m1)
gemm_r(XV, 4, 0, 28, ureg, WR5, WD, LOC_WO, first_c=True, fill=fill, preload=False, rot=ROT)


def x_pack():
    for k in range(8):
        p(f'v_cvt_pk_bf16_f32 {v(XP + k)}, {v(XV + 2 * k)}, {v(XV + 2 * k + 1)}')


stamp('K5')
if_layer(1)
x_pack()
for o in range(2):
    p(f'ds_write_b128 {v(OW)}, {v(XP + 4 * o, 4)} offset:{16 * o}')
for k in range(2):
    p(f'ds_read_b128 {v(X1R + 4 * k, 4)}, {v(OR)} offset:{1152 * k}')
for k in range(2):
    p(f'buffer_store_dwordx4 {v(X1R + 4 * k, 4)}, {v(OG)}, {s(R_OUT, 4)}, {s(sT + 14 + k)} offen sc1')
if PROF:
    p('s_waitcnt vmcnt(0)')
    stamp('end')
    p(f's_lshl_b32 {s(sT)}, s2, 2')
    p(f's_add_u32 {s(sT)}, {s(sT)}, {s(sW)}')
    p(f's_lshl_b32 {s(sT)}, {s(sT)}, 8')
    p(f's_add_u32 {s(sT)}, {s(sT)}, {PROFO:#x}')
    p(f'v_lshrrev_b32 {v(T)}, 2, {v(vL16)}')
    p(f'buffer_store_dword {v(vProf)}, {v(T)}, {s(R_WS, 4)}, {s(sT)} offen')
if OPT['diag']:
    p('s_waitcnt vmcnt(0)')
    stamp('end')
    p(f's_sub_u32 s101, s101, {s(sPidx)}')
    p('s_min_u32 s101, s101, 20000')
    p('s_mul_i32 s101, s101, 10')
    p('s_add_u32 s101, s101, 10000')
    p('L_spin:')
    p(f's_memrealtime {s(sStamp, 2)}')
    p('s_waitcnt lgkmcnt(0)')
    p(f's_sub_u32 {s(sStamp)}, {s(sStamp)}, {s(sPidx)}')
    p(f's_cmp_lt_u32 {s(sStamp)}, s101')
    p('s_cbranch_scc1 L_spin')
p('L_exit:')
p('s_endpgm')
p.end()
local_stats(XV, 16, T)
reduce_g(T, T + 1)
publish_stats(0x40000)
p('s_barrier')
if OPT['ctp'] == 0:
    ct_dma(228)
emit(wz2[:OPT['wzp0']])
x_pack()
p(f's_mov_b32 {s(sL)}, 1')
p(f's_mov_b32 {s(sLocH)}, {s(sLoc)}')
p(f's_mov_b32 {s(sLocU)}, 0')
if not OPT['reuse']:
    p(f's_add_u32 {s(R_WL)}, {s(R_WL)}, {LSTRIDE:#x}')
    p(f's_addc_u32 {s(R_WL + 1)}, {s(R_WL + 1)}, 0')
p(f's_mov_b32 {s(R_WL + 2)}, {LSTRIDE:#x}')
p(f's_mov_b32 {s(R_X)}, {s(R_WL)}')
p(f's_mov_b32 {s(R_X + 1)}, {s(R_WL + 1)}')
p(f's_mov_b32 {s(R_X + 2)}, {LSTRIDE:#x}')
p(f's_add_u32 {s(sXb)}, {s(sK2)}, {H_:#x}')
p(f's_add_u32 {s(sXo)}, {s(sXb)}, 2048')
p(f'v_mov_b32 {v(vXr)}, {v(vK2)}')
p(f'v_mov_b32 {v(vXw)}, {v(vTr)}')
p(f'v_add_u32 {v(vXw + 1)}, 576, {v(vTr)}')
p(f'v_mov_b32 {v(vHw)}, {v(vHw2)}')
p(f's_add_u32 {s(sSt)}, {s(sSt)}, 0x20000')
for r in (() if OPT['vs'] else (sArr, sRep)) + (sS2, sS4, sP4, sS5, sF2s, sF2l):
    p(f's_add_u32 {s(r)}, {s(r)}, 0x20000')
for o in range(2):
    p(f's_add_u32 {s(sT + 4 + o)}, {s(sT + 3)}, {H_ + 8192 * o:#x}')
emit([gather_loads(0x20000)])
gather_finish(0x20000)
gstore([f'buffer_store_dwordx4 {v(XP + 4 * o, 4)}, {v(vL16)}, {s(R_WL, 4)}, {s(sT + 4 + o)} offen' for o in range(2)], 'x2')
if OPT['ctp'] == 1:
    ct_dma(228)
emit(wz2[OPT['wzp0']:P1])
p('s_branch L_layer')

p.resolve([('pro', set()), ('body', {'L0'}), ('body', {'L1'})], ['W0', 'G0', 'LOC', 'RETRY'])

hdr = open('interleave_layers__spectral_fnet__mixer_gmlp__prompt.s.ref').read().split('\n')
out = [l for l in hdr if l.startswith(';') and '@launch' not in l][:14]
if PROF:
    k = STAMPS.index('T')
    out.append('; stamps: ' + ' '.join(STAMPS[:-1] + [x for x in STAMPS[k:] if x[0] != '*']))
out.append(f'; @launch grid=(256,1,1) block=(256,1,1) lds={LDS_BYTES}')
out += ['.amdgcn_target "amdgcn-amd-amdhsa--gfx950"', '.text', f'.globl {NAME}', '.p2align 8', f'.type {NAME},@function']
out.append(p.text())
out.append('.p2align 8')
out.append('.type L_table,@object')
out.append('L_table:')
tab = const_table()
for i in range(0, tab.size, 8):
    out.append('.long ' + ','.join(f'{x:#x}' for x in tab[i:i + 8]))
out.append(f'.size L_table, {tab.size * 4}')
out.append('L_end:')
out += ['.section .rodata,"a"', '.p2align 6', f'.amdhsa_kernel {NAME}',
        '  .amdhsa_next_free_vgpr 512', '  .amdhsa_next_free_sgpr 102', '  .amdhsa_accum_offset 256',
        '  .amdhsa_group_segment_fixed_size 0', '  .amdhsa_kernarg_size 104', '  .amdhsa_user_sgpr_count 2',
        '  .amdhsa_user_sgpr_kernarg_segment_ptr 1', '  .amdhsa_system_sgpr_workgroup_id_x 1',
        '  .amdhsa_float_denorm_mode_32 3', '.end_amdhsa_kernel', '']
open(sys.argv[1], 'w').write('\n'.join(out))
print(p.stats(), file=sys.stderr)
```

```python
import sys
import struct
import numpy as np
from asmlib import Prog, v, a, s

NAME = 'interleave_layers__spectral_fnet__mixer_gmlp__prompt_kernel'
OPT = dict(prof=0, k4mfma=1, k4load=1, k4epi=1, zd=12, pre3=6, pre5=16, loc=1, locd=7, x1pos=58, lg=0, pg=0, sg=0, wspev=8, x1=2,
           g2ev=12, z1a=0, gpos=18, z1arr=6, wo4=16, ctp=2, wzp0=0, wzp1=0, wzp2=0, wzp3=8, reuse=0, tlb=0, e1=4, e2=14, e3=24, f5a=87, l5a=95, mb=8, mc=20, fa=36, fb=48, fc=60, hpf=0, we=2, hsp=5, algn=0, xe=4, gb=1, xa=8, to=40000, wf2=1, cmn='044444', l0a=2, noe=0, pz=1, pv=4, vs=2, zp0=0, zin=1, zsp=3, zs=1, q4=8, upk=4, gsh=0, cpf=12, k1=3, k2=9, k3=15, mf=111, fixev=0, woa=8, wosp=4, g1w=1, l0n='0444466', ann=0, fix='6/7///', ntail=12, lnow=4, fine=0, sched='//d1/d2r0d3r1d4p0r2d5p1r3d6p2r4qd7p3/r5p4/a6p5/a7/', ctpos=0, pk=3, nomean=0,  z2sp=4, early=1, wfirst=0, nobg=0, few=0, diag='')
for arg in sys.argv[2:]:
    k, val = arg.split('=')
    OPT[k] = val if k in ('diag', 'sched', 'fix', 'l0n', 'cmn') else int(val)
PROF = OPT['prof']
LG = (' sc1', '', ' nt', ' sc0')[OPT['lg']]
PG = (' sc1', '', ' nt')[OPT['pg']]
SG = ('', ' nt', ' sc0')[OPT['sg']]


WI, WO, FLAGS, STATS, X2, PROFO = 0, 0x200000, 0x300000, 0x340000, 0x400000, 0x600000
LBASE, LSTRIDE = 0x800000, 0x1000000
V_, H_, X1_, Z_, U_ = 0, 0x200000, 0x400000, 0x600000, 0xA00000
WB, CT, SCR, LDS_BYTES = 0, 114688, 114688 + 22528, 163840
CT_FA, CT_TW, CT_FB, CT_M1 = 0, 6144, 10240, 14336

R_X, R_WIN, R_WSP, R_WOUT, R_OUT, R_WS, R_DBG, R_BSP, R_WL = 4, 8, 12, 16, 20, 24, 28, 32, 36
sW, sC, sB, sL, sTO = 40, 41, 42, 43, 44
sVst, sVld, sH, sK2, sXo, sXb, sZst, sZld, sUst, sUld = 45, 46, 47, 48, 49, 50, 51, 52, 53, 54
sLoc, sSt, sWI, sWO, sWsp, sSelLo, sSelHi, sPidx, sOnes = 55, 56, 57, 58, 59, 60, 61, 62, 63
sArr, sRep, sS2, sS4, sS5, sB128, sDm, sDo = 64, 65, 66, 67, 68, 69, 70, 71
sF2s, sF2l = 0, 1
sB4, sP4, sG0, sLocH, sLocU = 3, 88, 75, 89, 100
sT = 72
sStamp = 90
vL16, vTw, vK2, vXr, vVld, vVst, vBsp, vZst = 0, 1, 2, 3, 4, 5, 6, 7
vC2 = 8
vHw, vHr, vUw, vUr, vStl, vL8, vTr, vPoll, vArr, vProf, vGK = 16, 17, 18, 19, 20, 21, 22, 23, 24, 25, 26
vRed = 28
T = 32
XV = 40
M1 = 184


def f2u(x):
    return struct.unpack('<I', struct.pack('<f', x))[0]


def bf16(x):
    u = np.ascontiguousarray(x, dtype=np.float32).view(np.uint32)
    return ((u + 0x7FFF + ((u >> 16) & 1)) >> 16).astype(np.uint32)


def const_table():
    l = np.arange(64)[:, None]
    j = np.arange(8)[None, :]
    nn, h = l & 31, l >> 5
    e1 = 16 * ((nn >> 2) & 1) + 4 * (nn >> 3) + (nn & 3)
    frags = []

    def pack(x):
        x = np.where(np.abs(x) < 1e-12, 0.0, x)
        b = bf16(x)
        return (b[:, 0::2] | (b[:, 1::2] << 16)).astype(np.uint32)
    ang = [2 * np.pi * ((16 * dh + 8 * h + j) * e1 % 32) / 32 for dh in range(2)]
    frags += [pack(np.cos(ang[0])), pack(np.cos(ang[1])), pack(np.sin(ang[0])), pack(np.sin(ang[1])),
              pack(-np.sin(ang[0])), pack(-np.sin(ang[1]))]
    d2 = 8 * (j >> 2) + 4 * h + (j & 3)
    tw = 2 * np.pi * (d2 * e1) / 512
    tc = np.cos(tw).astype(np.float32).view(np.uint32)
    ts = np.sin(tw).astype(np.float32).view(np.uint32)
    frags += [tc[:, :4], tc[:, 4:], ts[:, :4], ts[:, 4:]]
    ps = 2 * np.pi * (d2 * (nn & 15) % 16) / 16
    for row in range(2):
        m = ((nn >> 4) == row)
        frags += [pack(np.cos(ps) * m), pack(np.sin(ps) * m)]
    n, g = l & 15, l >> 4
    for jq in range(4):
        for ks in range(2):
            rho = 32 * ks + 16 * (j >> 2) + 4 * g + (j & 3)
            s1 = 16 * (rho >> 4) + 2 * (rho & 7) + ((rho >> 3) & 1)
            jj = 8 * jq + (n >> 1)
            th = 2 * np.pi * (s1 * jj % 64) / 64
            x = np.where((n & 1) == 0, np.cos(th), np.where(jj == 0, (-1.0) ** s1, -np.sin(th)))
            frags.append(pack(x))
    tab = np.concatenate([np.ascontiguousarray(f).reshape(-1) for f in frags])
    assert tab.size == 22 * 256
    return tab


p = Prog()
M16 = 'v_mfma_f32_16x16x32_bf16'
M32 = 'v_mfma_f32_32x32x16_bf16'


STAMPS = []


def stamp(name):
    if OPT['few'] and name in ('karg', 'start', 'setup', 'init', 'arr1', 'Vst', 'pub3', 'z1a', 'S3', 'Zst', 'arr4', 'win4') + (() if OPT['fine'] else ('Vld', 'K2', 'arr2', 'K5')):
        return
    STAMPS.append(name)
    if OPT['diag'] and OPT['diag'][:-1] == name:
        p(f's_memrealtime {s(sStamp, 2)}')
        p('s_waitcnt lgkmcnt(0)')
        p(f's_cmp_eq_u32 {s(sL)}, {OPT["diag"][-1]}')
        p(f's_cselect_b32 s101, {s(sStamp)}, s101')
    if PROF:
        p(f'{"s_memtime" if PROF == 2 else "s_memrealtime"} {s(sStamp, 2)}')
        p('s_waitcnt lgkmcnt(0)')
        p('s_mov_b32 s101, m0')
        p(f's_mov_b32 m0, {s(sPidx)}')
        p(f'v_writelane_b32 {v(vProf)}, {s(sStamp)}, m0')
        p('s_mov_b32 m0, s101')
        p(f's_add_u32 {s(sPidx)}, {s(sPidx)}, 1')


def fine(name):
    if OPT['fine'] == 1:
        stamp(name)


def srd(r, lo, hi, size):
    p(f's_mov_b32 {s(r)}, {s(lo)}')
    p(f's_and_b32 {s(r + 1)}, {s(hi)}, 0xffff')
    p(f's_mov_b32 {s(r + 2)}, {size:#x}')
    p(f's_mov_b32 {s(r + 3)}, 0x20000')


def if_wave0():
    p(f's_cmp_eq_u32 {s(sW)}, 0')
    p.begin('W0', 's_cbranch_scc0')


def if_layer(l):
    p(f's_cmp_eq_u32 {s(sL)}, {l}')
    p.begin(f'L{l}', 's_cbranch_scc0')


def spin_tail(top, done):
    p(f's_cbranch_vccz {done}')
    p(f's_sub_u32 {s(sTO)}, {s(sTO)}, 1')
    p(f's_cbranch_scc0 {top}')
    p(f's_mov_b32 {s(sTO)}, 0')
    p(f'{done}:')


def arrive(soff, nrep):
    p('s_barrier')
    if_wave0()
    p(f'v_mov_b32 {v(T)}, 1')
    p(f's_mov_b64 exec, {(1 << nrep) - 1:#x}')
    p(f'buffer_atomic_add {v(T)}, {v(vArr)}, {s(R_WS, 4)}, {s(soff)} offen sc1')
    p('s_mov_b64 exec, -1')
    p.end()


def gstore(lines, tag=None, local=False, flag=None):
    if not OPT['loc'] or (tag and not local):
        for x in lines:
            p(x + ' sc1', tag=tag)
        return
    p(f's_cmp_eq_u32 {s(flag or sLoc)}, 0')
    p.begin_ool('!LOC', 's_cbranch_scc1')
    for x in lines:
        p(x + ' sc1', tag=tag)
    p.end_ool(('LOC', lambda: [p(x + SG, tag=tag) for x in lines]))


def arrive_group(soff, off=0):
    p('s_barrier')
    if_wave0()
    p(f'v_mov_b32 {v(T)}, 1')
    p(f's_add_u32 {s(99)}, {s(soff)}, {s(sB4)}')
    p('s_mov_b64 exec, 1')
    gstore([f'buffer_store_dword {v(T)}, off, {s(R_WS, 4)}, {s(99)} offset:{off}'])
    p('s_mov_b64 exec, -1')
    p.end()


def poll(soff, vaddr, need, tag=None):
    if_wave0()
    top, done = p.label('poll'), p.label('pdone')
    p(f'{top}:')
    if vaddr is not None:
        p(f'buffer_load_dword {v(T)}, {v(vaddr)}, {s(R_WS, 4)}, {s(soff)} offen' + (PG if vaddr == vGrp else ' sc1'))
    else:
        p(f'buffer_load_dword {v(T)}, off, {s(R_WS, 4)}, {s(soff)} sc1')
    p('s_waitcnt vmcnt(0)')
    p(f'v_cmp_ne_u32 vcc, {need}, {v(T)}')
    spin_tail(top, done)
    p.end()
    if tag:
        p.wait_vm(tag)
    p('s_barrier')


def reduce_g(x, y):
    p(f'v_permlane16_swap_b32 {v(x)}, {v(y)}')
    p(f'v_add_f32 {v(x)}, {v(x)}, {v(y)}')
    p(f'v_mov_b32 {v(y)}, {v(x)}')
    p(f'v_permlane32_swap_b32 {v(x)}, {v(y)}')
    p(f'v_add_f32 {v(x)}, {v(x)}, {v(y)}')
    p(f'v_mov_b32 {v(y)}, {v(x)}')
    p(f'v_permlane16_swap_b32 {v(x)}, {v(y)}')


def finish_stats(x, n):
    y, m = x + 1, x + 2
    p(f'v_mul_f32 {v(m)}, {f2u(1.0 / n):#x}, {v(x)}')
    p(f'v_mul_f32 {v(y)}, {f2u(1.0 / n):#x}, {v(y)}')
    p(f'v_fma_f32 {v(y)}, -{v(m)}, {v(m)}, {v(y)}')
    p(f'v_max_f32 {v(y)}, 0, {v(y)}')
    p(f'v_add_f32 {v(y)}, {f2u(1e-5):#x}, {v(y)}')
    p(f'v_rsq_f32 {v(x)}, {v(y)}')
    p(f'v_mul_f32 {v(y)}, -{v(m)}, {v(x)}')


def norm_pack(src, n, st, tmp, dst):
    for i in range(0, n, 2):
        p(f'v_pk_fma_f32 {v(tmp + i, 2)}, {v(src + i, 2)}, {v(st, 2)}, {v(st, 2)} op_sel:[0,0,1] op_sel_hi:[1,0,1]')
    for i in range(0, n, 2):
        p(f'v_cvt_pk_bf16_f32 {v(dst + i // 2)}, {v(tmp + i)}, {v(tmp + i + 1)}')


def local_stats(src, n, out):
    sa, sq = out + 2, out + 4
    p(f'v_pk_add_f32 {v(sa, 2)}, {v(src, 2)}, {v(src + 2, 2)}')
    p(f'v_pk_mul_f32 {v(sq, 2)}, {v(src, 2)}, {v(src, 2)}')
    p(f'v_pk_fma_f32 {v(sq, 2)}, {v(src + 2, 2)}, {v(src + 2, 2)}, {v(sq, 2)}')
    for i in range(4, n, 2):
        p(f'v_pk_add_f32 {v(sa, 2)}, {v(sa, 2)}, {v(src + i, 2)}')
        p(f'v_pk_fma_f32 {v(sq, 2)}, {v(src + i, 2)}, {v(src + i, 2)}, {v(sq, 2)}')
    p(f'v_add_f32 {v(out)}, {v(sa)}, {v(sa + 1)}')
    p(f'v_add_f32 {v(out + 1)}, {v(sq)}, {v(sq + 1)}')


def unpack(src, n, dst):
    for i in range(n):
        p(f'v_lshlrev_b32 {v(dst + 2 * i)}, 16, {v(src + i)}')
        p(f'v_and_b32 {v(dst + 2 * i + 1)}, 0xffff0000, {v(src + i)}')


def publish_stats(area):
    p(f's_add_u32 {s(sT)}, {s(sSt)}, {s(sB128)}')
    if area:
        p(f's_add_u32 {s(sT)}, {s(sT)}, {area:#x}')
    p('s_mov_b64 exec, 0xffff')
    gstore([f'buffer_store_dwordx2 {v(T, 2)}, {v(vStl)}, {s(R_WS, 4)}, {s(sT)} offen'])
    p('s_mov_b64 exec, -1')


def gather_loads(area):
    return [(f's_add_u32 {s(99)}, {s(sSt)}, {area:#x}', None),
            (f'buffer_load_dwordx2 {v(T + 4, 2)}, {v(vStl)}, {s(R_WS, 4)}, {s(99)} offen{PG}', None),
            (f'buffer_load_dwordx2 {v(T + 6, 2)}, {v(vStl)}, {s(R_WS, 4)}, {s(99)} offen offset:128{PG}', None)]


def retry_until(loads, test, tested=False, after=None):
    if not tested:
        test()
    p.begin_ool('RETRY', 's_cbranch_vccnz')
    top, done = p.label('rt'), p.label('rdone')
    p(f'{top}:')
    emit([loads])
    p('s_waitcnt vmcnt(0)')
    test()
    spin_tail(top, done)
    if after:
        emit([after])
    p.end_ool()


def gather_finish(area):
    def test():
        p(f'v_add_f32 {v(T)}, {v(T + 4)}, {v(T + 6)}')
        p(f'v_add_f32 {v(T + 1)}, {v(T + 5)}, {v(T + 7)}')
        p(f'v_cmp_u_f32 vcc, {v(T)}, {v(T + 1)}')
    retry_until(gather_loads(area), test)
    reduce_g(T, T + 1)


LOC_Z2 = lambda i: 1024 * i
LOC_Z1 = lambda i: 1024 * (i - 48) if i >= 48 else CT + 1024 * i
LOC_WO = lambda i: 1024 * (i - 48) if i >= 48 else 65536 + 1024 * i


def w_dma_ops(sbase, extra, loc, name):
    ops = []
    for j in range(7):
        for i in range(4):
            o = []
            if i == 0:
                o.append((f's_add_u32 m0, {s(sDm)}, {loc(16 * j):#x}', None))
                o.append((f's_add_u32 {s(sDo)}, {s(sbase)}, {extra + 16384 * j:#x}', None))
            if OPT['nobg'] & 1:
                o.append(('s_nop 0', None))
            else:
                o.append((f'buffer_load_dwordx4 {v(vL16)}, {s(R_WS, 4)}, {s(sDo)} offen offset:{i * 1024} lds', f'{name}{j}'))
            ops.append(o)
    return ops


def emit(groups):
    for g in groups:
        for text, tag in g:
            p(text, tag=tag)


def wsp_dma_ops(batch):
    q, ih = batch >> 1, batch & 1
    ops = []
    for il in range(4):
        for rh in range(2):
            if batch < 2:
                imm, so = 128 * il, 80 + batch
                o = [(f's_add_u32 m0, {s(78 + batch)}, {1024 + 2048 * il + 1024 * rh - imm}', None)]
            else:
                imm, so = 512 * ih + 128 * il, sDo
                o = [(f's_add_u32 m0, {s(sWsp)}, {1024 + 8192 * (batch % 3) + 2048 * il + 1024 * rh - imm}', None)]
                if not ops:
                    o += [(f's_add_u32 {s(sDo)}, {s(sW)}, {q}', None), (f's_and_b32 {s(sDo)}, {s(sDo)}, 3', None),
                          (f's_lshl_b32 {s(sDo)}, {s(sDo)}, 21', None)]
            o.append((f'buffer_load_dwordx4 {v(vWspA + rh)}, {s(R_WSP, 4)}, {s(so)} offen offset:{imm} lds', f'wsp{max(batch, 1)}'))
            ops.append(o)
    return ops


def table_addr(dst, soff):
    p(f'v_add_u32 {v(dst)}, {s(soff)}, {v(vL16)}')
    p(f'v_mov_b32 {v(dst + 1)}, {s(93)}')
    p(f'v_add_co_u32 {v(dst)}, vcc, {s(92)}, {v(dst)}')
    p(f'v_addc_co_u32 {v(dst + 1)}, vcc, 0, {v(dst + 1)}, vcc')


def code_prefetch(bit, lo):
    if not OPT['cpf'] & bit:
        return
    if_layer(0)
    p(f's_lshr_b32 {s(99)}, s2, 3')
    p(f's_lshl_b32 {s(99)}, {s(99)}, 2')
    p(f's_add_u32 {s(99)}, {s(99)}, {s(sW)}')
    p(f's_lshl_b32 {s(99)}, {s(99)}, 7')
    p(f's_sub_u32 {s(98)}, {s(92)}, L_table-{lo}')
    p(f's_subb_u32 {s(97)}, {s(93)}, 0')
    p(f's_add_u32 {s(98)}, {s(98)}, {s(99)}')
    p(f's_addc_u32 {s(97)}, {s(97)}, 0')
    p(f'v_mov_b32 {v(T + 6)}, {s(98)}')
    p(f'v_mov_b32 {v(T + 7)}, {s(97)}')
    p('s_mov_b64 exec, 1')
    p(f'global_load_dword {v(251)}, {v(T + 6, 2)}, off')
    p('s_mov_b64 exec, -1')
    p.end()


def poison(site, reg):
    todo = [(sZst, vZst, 0)] if OPT['zs'] and OPT['pz'] == site else []
    todo += [(sVst, vVst, 0), (sVst, vVst, 0x10000)] if OPT['vs'] and OPT['pv'] == site else []
    if not todo:
        return
    if_layer(0)
    for k in range(4):
        p(f'v_mov_b32 {v(reg + k)}, -1')
    for base, va, off in todo:
        p(f's_add_u32 {s(99)}, {s(base)}, {LSTRIDE + off:#x}')
        p(f'buffer_store_dwordx4 {v(reg, 4)}, {v(va)}, {s(R_WL, 4)}, {s(99)} offen sc1', tag='pub' if site == 3 else None)
    p.end()


def m1_load(dst):
    p(f's_lshl_b32 {s(99)}, {s(sW)}, 11')
    p(f's_add_u32 {s(99)}, {s(99)}, {CT_M1}')
    table_addr(dst, 99)
    for k in range(2):
        p(f'global_load_dwordx4 {v(M1 + 4 * k, 4)}, {v(dst, 2)}, off offset:{1024 * k}')


def ct_dma(dst):
    p(f's_mul_i32 {s(99)}, {s(sW)}, 3584')
    p(f's_add_u32 m0, {s(99)}, {CT}')
    table_addr(dst, 99)
    for off in (0, 1024, 2048):
        p(f'global_load_lds_dwordx4 {v(dst, 2)}, off offset:{off}', tag='ct')
    p('s_mov_b32 exec_hi, 0')
    p(f'global_load_lds_dwordx4 {v(dst, 2)}, off offset:3072', tag='ct')
    p('s_mov_b64 exec, -1')


def wsp_dma(batch):
    p.bg = wsp_dma_ops(batch)
    p.bg_emit()


def wsp_read(batch, reg):
    p.wait_vm(f'wsp{max(batch, 1)}')
    for il in range(4):
        for o in range(2):
            p(f'ds_read_b128 {v(reg + 4 * (2 * il + o), 4)}, {v(vWspR + o)} offset:{8192 * (batch % 3) + 2048 * il}', tag=f'wr{batch}')


def wsp_park(batch):
    q, ih = batch >> 1, batch & 1
    p.wait_vm(f'wsp{max(batch, 1)}')
    for il in range(4):
        for o in range(2):
            p(f'ds_read_b128 {a(64 * q + 32 * o + 4 * (4 * ih + il), 4)}, {v(vWspR + o)} offset:{8192 * (batch % 3) + 2048 * il}', tag=f'wr{batch}')


def wsp_fix(units, reg, first=()):
    if not units and not first:
        return
    if_layer(0)
    emit(first)
    for u in units:
        base = 32 * int(u)
        for k in range(32):
            p(f'v_accvgpr_read_b32 {v(reg + k)}, {a(base + k)}')
        k = 0
        for ip in range(4):
            for al in range(8):
                t = reg + 32 + (k & 3)
                k += 1
                lo, hi = reg + 8 * ip + (al >> 1), reg + 8 * ip + 4 + (al >> 1)
                p(f'v_perm_b32 {v(t)}, {v(hi)}, {v(lo)}, {s(sSelHi if al & 1 else sSelLo)}')
                p(f'v_accvgpr_write_b32 {a(base + 4 * al + ip)}, {v(t)}')
    p.end()


def wsp_perm(batch, reg):
    q, ih = batch >> 1, batch & 1
    k = 0
    for ipl in range(2):
        for o in range(2):
            for al in range(8):
                t = T + (k & 7)
                k += 1
                lo, hi = reg + 4 * (4 * ipl + o) + (al >> 1), reg + 4 * (4 * ipl + 2 + o) + (al >> 1)
                p(f'v_perm_b32 {v(t)}, {v(hi)}, {v(lo)}, {s(sSelHi if al & 1 else sSelLo)}')
                p(f'v_accvgpr_write_b32 {a((q * 16 + 8 * o + al) * 4 + 2 * ih + ipl)}, {v(t)}')


def wring_read(idx, ring, depth, loc, rot=0):
    base, off = (vL16, vL16hi, vL16h2)[loc(idx) >> 16], loc(idx) & 0xffff
    p(f'ds_read_b128 {v(ring + 4 * ((idx + rot) % depth), 4)}, {v(base)} offset:{off}', tag=f'w{idx}')


def gemm_r(acc, nt, ks0, ks1, act, ring, depth, loc, first_c=None, fill=None, preload=True, last=None, rot=0):
    fill = dict(fill or {})
    if OPT['nobg'] & 2 and loc is LOC_Z1:
        raise SystemExit('nobg&2 unsupported')
    lo, hi = nt * ks0, nt * ks1
    if preload:
        for idx in range(lo, min(lo + depth, last or hi)):
            wring_read(idx, ring, depth, loc)
    for idx in range(lo, hi):
        ks, t = divmod(idx, nt)
        if (idx - lo) % OPT['we'] == 0:
            p.wait_lgkm(f'w{min(idx + OPT["we"] - 1, hi - 1)}')
        c = v(acc + 4 * t, 4) if (ks or first_c) else '0'
        p(f'{M16} {v(acc + 4 * t, 4)}, {v(ring + 4 * ((idx + rot) % depth), 4)}, {v(act(ks) if callable(act) else act + 4 * ks, 4)}, {c}')
        if idx + depth < (last or hi):
            wring_read(idx + depth, ring, depth, loc, rot)
        f = fill.pop(idx, None)
        if callable(f):
            f()
        elif f:
            emit([f])
    assert not fill


def spread(groups, first, step):
    return {first + step * k: g for k, g in enumerate(groups)}


def gelu(x, n, tmp):
    for i in range(0, n, 4):
        t = tmp + (i & 4)
        for k in (0, 2):
            p(f'v_pk_mul_f32 {v(t + k, 2)}, {v(x + i + k, 2)}, {v(x + i + k, 2)}')
        for k in (0, 2):
            p(f'v_pk_fma_f32 {v(t + k, 2)}, {v(t + k, 2)}, {v(vGK, 2)}, {v(vGK, 2)} op_sel:[0,0,1] op_sel_hi:[1,0,1]')
        for k in (0, 2):
            p(f'v_pk_mul_f32 {v(t + k, 2)}, {v(t + k, 2)}, {v(x + i + k, 2)}')
        for k in range(4):
            p(f'v_exp_f32 {v(t + k)}, {v(t + k)}')
        for k in (0, 2):
            p(f'v_pk_add_f32 {v(t + k, 2)}, {v(t + k, 2)}, 1.0 op_sel_hi:[1,0]')
        for k in range(4):
            p(f'v_rcp_f32 {v(t + k)}, {v(t + k)}')
        for k in (0, 2):
            p(f'v_pk_mul_f32 {v(x + i + k, 2)}, {v(t + k, 2)}, {v(x + i + k, 2)}')


vWspA, vWspR = 244, 236
vHw2, vXw, vGrp = 250, 246, 254
vL16hi, vL16h2 = 252, 255
p.section('pro')
p(f'{NAME}:')
p(f's_cmp_ge_u32 s2, 256')
p('s_cbranch_scc1 L_exit')
p(f's_load_dwordx2 {s(72, 2)}, s[0:1], 0')
p(f's_load_dwordx8 {s(76, 8)}, s[0:1], 48')
p(f's_load_dwordx4 {s(84, 4)}, s[0:1], 80')
p(f's_load_dwordx2 {s(88, 2)}, s[0:1], 96')
if OPT['diag']:
    p(f's_memrealtime {s(sStamp, 2)}')
    p('s_waitcnt lgkmcnt(0)')
    p(f's_mov_b32 {s(sPidx)}, {s(sStamp)}')
    p(f's_mov_b32 s101, {s(sStamp)}')
if PROF:
    p(f'{"s_memtime" if PROF == 2 else "s_memrealtime"} {s(sStamp, 2)}')
p(f's_getpc_b64 {s(92, 2)}')
p('L_pc:')
lane, n_, g_, t0, t1, t2, t3, tid = 100, 101, 102, 103, 104, 105, 106, 107
p(f'v_mov_b32 {v(tid)}, v0')
p(f's_lshr_b32 {s(94)}, s2, 3')
p(f's_lshl_b32 {s(94)}, {s(94)}, 4')
p(f'v_lshrrev_b32 {v(T)}, 4, v0')
p(f'v_add_u32 {v(T)}, {s(94)}, {v(T)}')
p(f'v_lshlrev_b32 {v(T)}, 7, {v(T)}')
p(f'v_min_u32 {v(T)}, L_end-L_pc-4, {v(T)}')
p(f'v_mov_b32 {v(T + 3)}, {s(93)}')
p(f'v_add_co_u32 {v(T + 2)}, vcc, {s(92)}, {v(T)}')
p(f'v_addc_co_u32 {v(T + 3)}, vcc, 0, {v(T + 3)}, vcc')
p(f'global_load_dword {v(253)}, {v(T + 2, 2)}, off')
p(f'v_lshrrev_b32 {v(t0)}, 6, v0')
p(f'v_and_b32 {v(lane)}, 63, v0')
p(f'v_readfirstlane_b32 {s(sW)}, {v(t0)}')
p(f'v_and_b32 {v(n_)}, 15, {v(lane)}')
p(f'v_lshrrev_b32 {v(g_)}, 4, {v(lane)}')
p(f'v_lshlrev_b32 {v(vL16)}, 4, {v(lane)}')
p(f's_lshr_b32 {s(94)}, s2, 3')
p(f's_and_b32 {s(sB)}, {s(94)}, 7')
p(f's_and_b32 {s(95)}, s2, 7')
p(f's_lshl_b32 {s(95)}, {s(95)}, 1')
p(f's_lshr_b32 {s(96)}, {s(94)}, 4')
p(f's_add_u32 {s(95)}, {s(95)}, {s(96)}')
p(f's_sub_u32 {s(96)}, 32, {s(95)}')
p(f's_cmp_eq_u32 {s(95)}, 0')
p(f's_cselect_b32 {s(96)}, 16, {s(96)}')
p(f's_bitcmp1_b32 {s(94)}, 3')
p(f's_cselect_b32 {s(sC)}, {s(96)}, {s(95)}')
p(f's_mov_b32 {s(sL)}, 0')
p(f's_mov_b32 {s(sTO)}, {OPT["to"]}')
p(f's_lshl_b32 {s(sB128)}, {s(sB)}, 7')
p(f's_lshl_b32 {s(sB4)}, {s(sB)}, 2')
p(f's_getreg_b32 {s(sLoc)}, hwreg(HW_REG_XCC_ID)')
p(f's_mov_b32 {s(sOnes)}, 0x3f803f80')
p(f's_mov_b32 {s(sSelLo)}, 0x05040100')
p(f's_mov_b32 {s(sSelHi)}, 0x07060302')
p(f's_lshl_b32 {s(94)}, {s(sW)}, 9')
p(f's_add_u32 {s(94)}, {s(94)}, {s(sC)}')
p(f'v_and_b32 {v(t0)}, 28, {v(lane)}')
p(f'v_lshlrev_b32 {v(t0)}, 4, {v(t0)}')
p(f'v_and_b32 {v(t1)}, 32, {v(lane)}')
p(f'v_add3_u32 {v(t0)}, {v(t0)}, {v(t1)}, {s(94)}')
p(f'v_lshlrev_b32 {v(t2)}, 10, {v(t0)}')
p(f'v_and_b32 {v(t1)}, 3, {v(lane)}')
p(f'v_lshl_add_u32 {v(t0)}, {v(t1)}, 5, {v(t2)}')
p(f'v_lshl_add_u32 {v(t2)}, {v(t1)}, 4, {v(t2)}')
p(f'v_and_b32 {v(t3)}, 7, {v(n_)}')
p(f'v_lshlrev_b32 {v(t3)}, 6, {v(t3)}')
p(f'v_and_b32 {v(t1)}, 8, {v(n_)}')
p(f'v_lshlrev_b32 {v(t1)}, 2, {v(t1)}')
p(f'v_add3_u32 {v(t3)}, {v(t3)}, {v(t1)}, {s(94)}')
p(f'v_lshlrev_b32 {v(t3)}, 1, {v(t3)}')
p(f's_lshl_b32 {s(96)}, {s(sC)}, 2')
p(f's_add_u32 {s(96)}, {s(96)}, {s(sW)}')
p(f's_lshl_b32 {s(sSt)}, {s(96)}, 10')
p(f's_add_u32 {s(sSt)}, {s(sSt)}, {STATS:#x}')
p(f's_lshl_b32 {s(96)}, {s(sC)}, 10')
p(f's_add_u32 {s(sS2)}, {s(96)}, {FLAGS + 0x10000:#x}')
p(f's_lshl_b32 {s(96)}, {s(sW)}, 7')
p(f's_add_u32 {s(96)}, {s(96)}, 256')
p(f's_add_u32 {s(sS5)}, {s(96)}, {s(sS2)}')
p(f'v_lshlrev_b32 {v(vStl)}, 3, {v(n_)}')
p(f'v_lshl_add_u32 {v(vStl)}, {v(g_)}, 8, {v(vStl)}')
p(f's_lshl_b32 {s(96)}, {s(sB)}, 2')
p(f's_add_u32 {s(96)}, {s(96)}, {s(sW)}')
p(f's_mul_i32 {s(sZld)}, {s(96)}, 114688')
p(f's_add_u32 {s(sZld)}, {s(sZld)}, {Z_:#x}')
p(f's_and_b32 {s(96)}, {s(sC)}, 7')
p(f's_lshl_b32 {s(96)}, {s(96)}, 10')
p(f's_lshr_b32 {s(97)}, {s(sC)}, 3')
p(f's_lshl_b32 {s(97)}, {s(97)}, 8')
p(f's_add_u32 {s(96)}, {s(96)}, {s(97)}')
p(f's_add_u32 {s(sZst)}, {s(sZld)}, {s(96)}')
p(f'v_and_b32 {v(T)}, 1, {v(g_)}')
p(f'v_lshlrev_b32 {v(T)}, 14, {v(T)}')
p(f'v_and_b32 {v(T + 1)}, 2, {v(g_)}')
p(f'v_lshl_add_u32 {v(T)}, {v(T + 1)}, 12, {v(T)}')
p(f'v_lshl_add_u32 {v(vZst)}, {v(n_)}, 4, {v(T)}')
EI = 64
for k in range(4):
    p(f'v_mov_b32 {v(116 + k)}, -1')
p(f'v_mov_b32 {v(EI)}, -1')
p(f'v_mov_b32 {v(EI + 1)}, -1')
p(f'v_mov_b32 {v(EI + 2)}, {s(sLoc)}')
p(f'v_mov_b32 {v(EI + 3)}, 0')
p(f'v_and_b32 {v(EI + 4)}, 16, {v(vL16)}')
p(f'v_lshlrev_b32 {v(EI + 4)}, 13, {v(EI + 4)}')
p(f'v_and_b32 {v(EI + 5)}, 0x60, {v(vL16)}')
p(f'v_or_b32 {v(EI + 4)}, {v(EI + 4)}, {v(EI + 5)}')
p('s_waitcnt lgkmcnt(0)')
if PROF:
    p(f'v_mov_b32 {v(vProf)}, 0')
    p(f'v_writelane_b32 {v(vProf)}, {s(sStamp)}, 0')
    p(f's_mov_b32 {s(sPidx)}, 1')
    STAMPS.append('entry')
stamp('karg')
srd(R_X, 72, 73, 2097152)
srd(R_WS, 88, 89, LBASE)
XR = 120


def x_loads(i0, i1):
    for i in range(i0, i1):
        if i == 0:
            p(f'buffer_load_dwordx4 {v(XR, 4)}, {v(t0)}, {s(R_X, 4)}, {s(sB128)} offen')
            p(f'buffer_load_dwordx4 {v(XR + 4, 4)}, {v(t0)}, {s(R_X, 4)}, {s(sB128)} offen offset:16')
            continue
        p(f's_add_u32 {s(99)}, {s(sB128)}, {128 * i}')
        p(f's_and_b32 {s(99)}, {s(99)}, 0x3ff')
        p(f'buffer_load_dwordx4 {v(XR + 8 * i, 4)}, {v(t2)}, {s(R_X, 4)}, {s(99)} offen')
        p(f'buffer_load_dwordx4 {v(XR + 8 * i + 4, 4)}, {v(t2)}, {s(R_X, 4)}, {s(99)} offen offset:64')


x_loads(0, OPT['x1'])
p(f's_lshl_b32 {s(96)}, s2, 2')
p(f's_add_u32 {s(sG0)}, {s(96)}, {s(sW)}')
p(f's_cmp_eq_u32 {s(sG0)}, 3')
p.begin('G0', 's_cbranch_scc0')
p(f'v_lshlrev_b32 {v(T)}, 4, {v(vL16)}')
for k in range(2):
    p(f's_mov_b32 {s(94)}, {FLAGS + 0x4000 * k:#x}')
    p(f'buffer_store_dword {v(EI + 3)}, {v(T)}, {s(R_WS, 4)}, {s(94)} offen sc1', tag='z')
p.end()
p(f's_and_b32 {s(96)}, {s(sB)}, 3')
p(f's_lshl_b32 {s(96)}, {s(96)}, 3')
p(f's_and_b32 {s(97)}, {s(sB)}, 4')
p(f's_add_u32 {s(96)}, {s(96)}, {s(97)}')
p(f's_add_u32 {s(96)}, {s(96)}, {s(sW)}')
p(f's_lshl_b32 {s(96)}, {s(96)}, 2')
p(f's_add_u32 {s(97)}, {s(sS2)}, 768')
p(f's_add_u32 {s(sF2s)}, {s(96)}, {s(97)}')
p(f's_lshl_b32 {s(96)}, {s(sW)}, 5')
p(f's_add_u32 {s(sF2l)}, {s(96)}, {s(97)}')
if OPT['wf2']:
    p('s_mov_b64 exec, 3')
    p(f'buffer_store_dword {v(EI + 3)}, {v(EI + 4)}, {s(R_WS, 4)}, {s(sF2s)} offen sc1', tag='pub')
p('s_mov_b64 exec, 0xffff')
for k in range(0 if OPT['noe'] & 1 else 3):
    p(f's_add_u32 {s(96)}, {s(sSt)}, {s(sB128)}')
    p(f's_add_u32 {s(96)}, {s(96)}, {k * 0x20000:#x}')
    p(f'buffer_store_dwordx2 {v(EI, 2)}, {v(vStl)}, {s(R_WS, 4)}, {s(96)} offen sc1', tag='pub')
p('s_mov_b64 exec, 0xff')
p(f's_add_u32 {s(97)}, {s(sS5)}, {s(sB4)}')
if not OPT['noe'] & 2:
    p(f'buffer_store_dword {v(EI + 3)}, {v(EI + 4)}, {s(R_WS, 4)}, {s(97)} offen sc1', tag='pub')
if_wave0()
p('s_mov_b64 exec, 1')
p(f's_add_u32 {s(96)}, {s(sS2)}, {s(sB4)}')
p(f'buffer_store_dword {v(EI + 2)}, off, {s(R_WS, 4)}, {s(96)} offset:128 sc1', tag='pub')
p('s_mov_b64 exec, 15')
if not OPT['noe'] & 2:
    p(f'buffer_store_dword {v(EI + 3)}, {v(EI + 4)}, {s(R_WS, 4)}, {s(96)} offen sc1', tag='pub')
p(f's_lshl_b32 {s(96)}, s2, 8')
p(f's_add_u32 {s(96)}, {s(96)}, {FLAGS:#x}')
p('s_cmp_lt_u32 s2, 128')
p('s_cselect_b32 exec_lo, 2, 3')
p(f'buffer_store_dword {v(EI + 3)}, {v(EI + 4)}, {s(R_WS, 4)}, {s(96)} offen sc1', tag='pub')
p.end()
p('s_mov_b64 exec, -1')
srd(R_WIN, 76, 77, 512 * 3584)
srd(R_WSP, 78, 79, 2048 * 4096)
srd(R_BSP, 80, 81, 4096)
srd(R_WOUT, 82, 83, 896 * 1024)
srd(R_OUT, 84, 85, 2097152)
srd(R_DBG, 86, 87, 256)
p(f's_add_u32 {s(88)}, {s(88)}, {LBASE:#x}')
p(f's_addc_u32 {s(89)}, {s(89)}, 0')
srd(R_WL, 88, 89, 2 * LSTRIDE)
if OPT['tlb']:
    p(f'v_lshlrev_b32 {v(T)}, 21, {v(n_)}')
    p(f'buffer_load_dword {v(240)}, {v(T)}, {s(R_WL, 4)}, 0 offen sc1')
    p(f'buffer_load_dword {v(239)}, {v(T)}, {s(R_WS, 4)}, 0 offen sc1')
    p(f'buffer_load_dword {v(238)}, off, {s(R_OUT, 4)}, 0 sc1')
stamp('start')
vPi, vPo, vPri, vPro, PK = 112, 114, 242, 243, 224
PST = SCR + 12288
p(f's_add_u32 {s(92)}, {s(92)}, L_table-L_pc')
p(f's_addc_u32 {s(93)}, {s(93)}, 0')
for k in range(2):
    p(f'v_add_u32 {v(T)}, {256 * k}, {v(tid)}')
    p(f'v_mul_u32_u24 {v(T + 1)}, 4682, {v(T)}')
    p(f'v_lshrrev_b32 {v(T + 1)}, 16, {v(T + 1)}')
    p(f'v_mul_u32_u24 {v(T + 2)}, 14, {v(T + 1)}')
    p(f'v_sub_u32 {v(T)}, {v(T)}, {v(T + 2)}')
    p(f'v_and_b32 {v(T + 2)}, 0x38, {v(T + 1)}')
    p(f'v_add_u32 {v(T + 1)}, {v(T + 1)}, {v(T + 2)}')
    p(f'v_mul_u32_u24 {v(T + 1)}, 3584, {v(T + 1)}')
    p(f'v_lshl_add_u32 {v(vPi + k)}, {v(T)}, 4, {v(T + 1)}')
p(f's_and_b32 {s(94)}, {s(sC)}, 7')
p(f's_lshl_b32 {s(94)}, {s(94)}, 6')
p(f's_and_b32 {s(95)}, {s(sC)}, 8')
p(f's_add_u32 {s(94)}, {s(94)}, {s(95)}')
p(f's_mul_i32 {s(94)}, {s(94)}, 3584')
p(f's_lshr_b32 {s(95)}, {s(sC)}, 4')
p(f's_mul_i32 {s(95)}, {s(95)}, 1792')
p(f's_add_u32 {s(94)}, {s(94)}, {s(95)}')
p(f's_mul_i32 {s(95)}, {s(sB)}, 224')
p(f's_add_u32 {s(76)}, {s(94)}, {s(95)}')
p(f'v_lshrrev_b32 {v(T)}, 3, {v(lane)}')
p(f'v_and_b32 {v(T + 1)}, 0x70, {v(vL16)}')
p(f'v_lshl_add_u32 {v(vPo)}, {v(T)}, 10, {v(T + 1)}')
p(f's_and_b32 {s(94)}, {s(sC)}, 7')
p(f's_mul_i32 {s(94)}, {s(94)}, 112')
p(f's_lshr_b32 {s(95)}, {s(sC)}, 3')
p(f's_lshl_b32 {s(95)}, {s(95)}, 5')
p(f's_add_u32 {s(94)}, {s(94)}, {s(95)}')
p(f's_sub_u32 {s(95)}, {s(sC)}, 24')
p(f's_mul_i32 {s(95)}, {s(95)}, 224')
p(f's_add_u32 {s(95)}, {s(95)}, 96')
p(f's_cmp_lt_u32 {s(sC)}, 24')
p(f's_cselect_b32 {s(94)}, {s(94)}, {s(95)}')
p(f's_cselect_b32 {s(95)}, 16, 112')
p(f's_lshr_b32 {s(96)}, {s(sW)}, 1')
p(f's_mul_i32 {s(95)}, {s(95)}, {s(96)}')
p(f's_add_u32 {s(94)}, {s(94)}, {s(95)}')
p(f's_and_b32 {s(95)}, {s(sW)}, 1')
p(f's_lshl_b32 {s(95)}, {s(95)}, 3')
p(f's_add_u32 {s(94)}, {s(94)}, {s(95)}')
p(f's_lshl_b32 {s(94)}, {s(94)}, 10')
p(f's_add_u32 {s(77)}, {s(94)}, {s(sB128)}')
p(f'v_lshrrev_b32 {v(T)}, 2, {v(n_)}')
p(f'v_lshl_add_u32 {v(T)}, {v(g_)}, 3, {v(T)}')
p(f'v_mul_u32_u24 {v(T)}, 224, {v(T)}')
p(f'v_and_b32 {v(T + 1)}, 3, {v(lane)}')
p(f'v_lshl_add_u32 {v(T)}, {v(T + 1)}, 3, {v(T)}')
p(f's_lshl_b32 {s(94)}, {s(sW)}, 5')
p(f's_add_u32 {s(94)}, {s(94)}, {PST}')
p(f'v_add_u32 {v(vPri)}, {s(94)}, {v(T)}')
p(f's_lshl_b32 {s(94)}, {s(sW)}, 3')
p(f's_add_u32 {s(94)}, {s(94)}, {PST + 8192}')
p(f'v_lshl_add_u32 {v(vPro)}, {v(lane)}, 5, {s(94)}')
p(f'v_lshrrev_b32 {v(T)}, 3, {v(lane)}')
p(f'v_lshlrev_b32 {v(T)}, 18, {v(T)}')
p(f'v_and_b32 {v(T + 1)}, 7, {v(lane)}')
p(f'v_xor_b32 {v(T + 1)}, {v(T + 1)}, {v(g_)}')
p(f'v_lshl_add_u32 {v(T)}, {v(T + 1)}, 4, {v(T)}')
p(f's_lshl_b32 {s(94)}, {s(sC)}, 12')
p(f's_add_u32 {s(100)}, {s(sW)}, {s(sB)}')
p(f's_and_b32 {s(100)}, {s(100)}, 3')
p(f's_lshl_b32 {s(95)}, {s(100)}, 10')
p(f's_add_u32 {s(94)}, {s(94)}, {s(95)}')
p(f'v_add_u32 {v(vWspA)}, {s(94)}, {v(T)}')
p(f'v_xor_b32 {v(T)}, 64, {v(vWspA)}')
p(f'v_add_u32 {v(vWspA + 1)}, 0x20000, {v(T)}')
p(f's_mul_i32 {s(sWsp)}, {s(sW)}, 24576')
p(f'v_lshrrev_b32 {v(T)}, 1, {v(n_)}')
p(f'v_xor_b32 {v(T)}, {v(T)}, {v(g_)}')
p(f'v_lshlrev_b32 {v(T)}, 4, {v(T)}')
p(f'v_lshl_add_u32 {v(T)}, {v(n_)}, 7, {v(T)}')
p(f's_add_u32 {s(94)}, {s(sWsp)}, 1024')
p(f'v_add_u32 {v(vWspR)}, {s(94)}, {v(T)}')
p(f'v_xor_b32 {v(vWspR + 1)}, 64, {v(vWspR)}')
p(f's_lshr_b32 {s(94)}, {s(sB)}, 2')
p(f's_lshl_b32 {s(95)}, {s(sW)}, 21')
for k in range(2):
    p(f's_lshl_b32 {s(96)}, {s(94)}, 13')
    p(f's_add_u32 {s(78 + k)}, {s(96)}, {s(sWsp)}')
    p(f's_lshl_b32 {s(96)}, {s(94)}, 9')
    p(f's_add_u32 {s(80 + k)}, {s(96)}, {s(95)}')
    p(f's_xor_b32 {s(94)}, {s(94)}, 1')
p(f's_lshl_b32 {s(82)}, {s(sW)}, 10')
prep = [[(f's_add_u32 m0, {s(82)}, {PST}', None), (f'buffer_load_dwordx4 {v(vPi)}, {s(R_WIN, 4)}, {s(76)} offen lds', 'prep')],
        [(f's_add_u32 m0, {s(82)}, {PST + 4096}', None), (f'buffer_load_dwordx4 {v(vPi + 1)}, {s(R_WIN, 4)}, {s(76)} offen lds', 'prep')],
        [(f's_add_u32 m0, {s(82)}, {PST + 8192}', None), (f'buffer_load_dwordx4 {v(vPo)}, {s(R_WOUT, 4)}, {s(77)} offen lds', 'prep')],
        [(f'buffer_load_ushort {v(vBsp)}, {v(t3)}, {s(R_BSP, 4)}, 0 offen', None)]]
wsp_first = wsp_dma_ops(0)
if OPT['early'] & 1:
    emit(prep)
    prep = []
emit(wsp_first[:OPT['early'] >> 1])
wsp_first = wsp_first[OPT['early'] >> 1:]
p(f's_mul_i32 {s(94)}, {s(sB)}, 229376')
p(f's_mul_i32 {s(95)}, {s(sC)}, 7168')
p(f's_add_u32 {s(94)}, {s(94)}, {s(95)}')
p(f's_lshl_b32 {s(95)}, {s(sW)}, 10')
p(f's_add_u32 {s(94)}, {s(94)}, {s(95)}')
p(f's_mov_b32 {s(83)}, {s(94)}')
p(f's_add_u32 {s(94)}, {s(94)}, 4096')
p(f's_cmp_lt_u32 {s(sW)}, 3')
p(f's_cselect_b32 {s(94)}, {s(94)}, {LBASE:#x}')
p(f's_mov_b32 {s(84)}, {s(94)}')
p(f's_mul_i32 {s(94)}, {s(sB)}, 114688')
p(f's_lshl_b32 {s(96)}, {s(sC)}, 12')
p(f's_add_u32 {s(94)}, {s(94)}, {s(96)}')
p(f's_add_u32 {s(94)}, {s(94)}, {s(95)}')
p(f's_add_u32 {s(94)}, {s(94)}, {WO:#x}')
p(f's_cmp_lt_u32 {s(sC)}, 28')
p(f's_cselect_b32 {s(94)}, {s(94)}, {LBASE:#x}')
p(f's_mov_b32 {s(85)}, {s(94)}')
p(f's_lshr_b32 {s(94)}, {s(sB)}, 2')
p(f's_and_b32 {s(95)}, {s(sB)}, 3')
p(f's_lshl_b32 {s(sVst)}, {s(sC)}, 11')
p(f's_lshl_b32 {s(96)}, {s(sB)}, 8')
p(f's_add_u32 {s(sVst)}, {s(sVst)}, {s(96)}')
p(f's_sub_u32 {s(96)}, 32, {s(sC)}')
p(f's_and_b32 {s(96)}, {s(96)}, 31')
p(f's_cmp_eq_u32 {s(94)}, 0')
p(f's_cselect_b32 {s(96)}, {s(sC)}, {s(96)}')
p(f's_lshl_b32 {s(sVld)}, {s(96)}, 16')
p(f's_lshl_b32 {s(sH)}, {s(sC)}, 16')
p(f's_lshl_b32 {s(96)}, {s(95)}, 14')
p(f's_lshl_b32 {s(97)}, {s(94)}, 7')
p(f's_add_u32 {s(96)}, {s(96)}, {s(97)}')
p(f's_add_u32 {s(sK2)}, {s(sH)}, {s(96)}')
p(f's_lshl_b32 {s(96)}, {s(sW)}, 14')
p(f's_add_u32 {s(sH)}, {s(sH)}, {s(96)}')
p(f's_mov_b32 {s(sXb)}, 0')
p(f's_mov_b32 {s(sXo)}, 0x10000')
p(f's_lshl_b32 {s(96)}, {s(sB)}, 2')
p(f's_add_u32 {s(96)}, {s(96)}, {s(100)}')
p(f's_mul_i32 {s(sZld)}, {s(96)}, 114688')
p(f's_add_u32 {s(sZld)}, {s(sZld)}, {Z_:#x}')
p(f's_lshl_b32 {s(96)}, {s(sC)}, 2')
p(f's_add_u32 {s(96)}, {s(96)}, {s(sW)}')
p(f's_lshl_b32 {s(sUld)}, {s(96)}, 14')
p(f's_add_u32 {s(sUld)}, {s(sUld)}, {H_ if OPT["locd"] & 4 else U_:#x}')
p(f's_lshl_b32 {s(97)}, {s(sB)}, 10')
p(f's_add_u32 {s(sUst)}, {s(sUld)}, {s(97)}')
p(f's_lshl_b32 {s(sDm)}, {s(sW)}, 12')
p(f's_mul_i32 {s(sWI)}, {s(sB)}, 229376')
p(f's_add_u32 {s(sWI)}, {s(sWI)}, {s(sDm)}')
p(f's_mul_i32 {s(sWO)}, {s(sB)}, 114688')
p(f's_add_u32 {s(sWO)}, {s(sWO)}, {s(sDm)}')
p(f's_add_u32 {s(sWO)}, {s(sWO)}, {WO:#x}')
p(f's_and_b32 {s(96)}, s2, 15')
p(f's_lshl_b32 {s(96)}, {s(96)}, 8')
p(f's_add_u32 {s(sArr)}, {s(96)}, {FLAGS:#x}')
p(f's_and_b32 {s(96)}, s2, 7')
p(f's_lshl_b32 {s(96)}, {s(96)}, 12')
p(f's_add_u32 {s(sRep)}, {s(96)}, {FLAGS:#x}')
p(f's_lshl_b32 {s(97)}, {s(sB)}, 9')
p(f's_add_u32 {s(97)}, {s(97)}, {FLAGS + 0x8000:#x}')
p(f's_add_u32 {s(sP4)}, {s(96)}, {s(97)}')
p(f's_mov_b32 {s(sS4)}, {s(97)}')
p(f's_mov_b32 {s(sLocH)}, 0')
p(f'v_lshlrev_b32 {v(vL8)}, 3, {v(lane)}')
p(f'v_add_u32 {v(vL16hi)}, 0x10000, {v(vL16)}')
p(f'v_add_u32 {v(vL16h2)}, 0x20000, {v(vL16)}')
p(f'v_lshlrev_b32 {v(vPoll)}, 8, {v(n_)}')
p(f'v_and_b32 {v(vArr)}, 7, {v(lane)}')
p(f'v_lshlrev_b32 {v(vGrp)}, 2, {v(vArr)}')
p(f'v_lshlrev_b32 {v(vArr)}, 12, {v(vArr)}')
p(f'v_mov_b32 {v(vGK)}, {f2u(-2.302208198144325 * 0.044715):#x}')
p(f'v_mov_b32 {v(vGK + 1)}, {f2u(-2.302208198144325):#x}')
p(f'v_lshrrev_b32 {v(T)}, 3, {v(lane)}')
p(f'v_and_b32 {v(T + 4)}, 7, {v(lane)}')
p(f'v_lshlrev_b32 {v(T + 4)}, 4, {v(T + 4)}')
p(f'v_lshl_add_u32 {v(T + 2)}, {v(T)}, 8, {v(T + 4)}')
p(f's_lshl_b32 {s(96)}, {s(sW)}, 12')
p(f'v_add_u32 {v(vK2)}, {s(96)}, {v(T + 2)}')
p(f'v_and_b32 {v(T)}, 1, {v(T)}')
p(f'v_lshl_add_u32 {v(T)}, {v(T)}, 4, {v(g_)}')
p(f'v_mul_u32_u24 {v(T)}, 144, {v(T)}')
p(f's_lshr_b32 {s(96)}, {s(sW)}, 1')
p(f's_mul_i32 {s(96)}, {s(96)}, 4608')
p(f's_and_b32 {s(97)}, {s(sW)}, 1')
p(f's_mul_i32 {s(97)}, {s(97)}, 1152')
p(f's_add_u32 {s(96)}, {s(96)}, {s(97)}')
p(f's_add_u32 {s(96)}, {s(96)}, {SCR}')
p(f'v_add3_u32 {v(vTr)}, {v(T)}, {v(T + 4)}, {s(96)}')
p(f'v_lshrrev_b32 {v(T)}, 5, {v(lane)}')
p(f'v_and_b32 {v(T + 1)}, 1, {v(g_)}')
p(f'v_lshl_add_u32 {v(T + 2)}, {v(T)}, 4, {v(n_)}')
p(f'v_mul_u32_u24 {v(T + 2)}, 144, {v(T + 2)}')
p(f'v_lshl_add_u32 {v(T + 2)}, {v(T + 1)}, 4, {v(T + 2)}')
p(f's_lshl_b32 {s(96)}, {s(sW)}, 5')
p(f's_add_u32 {s(97)}, {s(96)}, {SCR}')
p(f'v_add_u32 {v(vTw)}, {s(97)}, {v(T + 2)}')
p(f'v_and_b32 {v(T + 2)}, 1, {v(lane)}')
p(f'v_lshlrev_b32 {v(T + 2)}, 5, {v(T + 2)}')
p(f'v_and_b32 {v(T + 3)}, 2, {v(lane)}')
p(f'v_lshl_add_u32 {v(T + 2)}, {v(T + 3)}, 3, {v(T + 2)}')
p(f'v_lshrrev_b32 {v(T + 3)}, 2, {v(lane)}')
p(f'v_add_u32 {v(T + 2)}, {v(T + 2)}, {v(T + 3)}')
p(f'v_mul_u32_u24 {v(T + 2)}, 144, {v(T + 2)}')
p(f'v_add_u32 {v(vXw)}, {s(97)}, {v(T + 2)}')
p(f'v_add_u32 {v(vXw + 1)}, 16, {v(vXw)}')
p(f's_lshl_b32 {s(96)}, {s(95)}, 4')
p(f's_add_u32 {s(96)}, {s(96)}, {s(94)}')
p(f's_lshl_b32 {s(96)}, {s(96)}, 5')
p(f's_add_u32 {s(98)}, {s(96)}, {s(sC)}')
p(f's_lshl_b32 {s(96)}, {s(sW)}, 7')
p(f's_add_u32 {s(96)}, {s(96)}, {s(98)}')
p(f's_lshl_b32 {s(96)}, {s(96)}, 10')
p(f'v_add_u32 {v(vXr)}, {s(96)}, {v(vL16)}')
p(f'v_mul_u32_u24 {v(T + 3)}, 1040, {v(T + 1)}')
p(f'v_lshl_add_u32 {v(T + 3)}, {v(T)}, 8, {v(T + 3)}')
p(f'v_lshl_add_u32 {v(T + 3)}, {v(n_)}, 3, {v(T + 3)}')
p(f's_mul_i32 {s(96)}, {s(sW)}, 2080')
p(f's_add_u32 {s(96)}, {s(96)}, {SCR}')
p(f'v_add_u32 {v(vUr)}, {s(96)}, {v(T + 3)}')
p(f'v_mul_u32_u24 {v(T + 3)}, 1040, {v(n_)}')
p(f'v_lshl_add_u32 {v(T + 3)}, {v(g_)}, 5, {v(T + 3)}')
p(f's_lshl_b32 {s(96)}, {s(sW)}, 8')
p(f's_add_u32 {s(96)}, {s(96)}, {SCR}')
p(f'v_add_u32 {v(vUw)}, {s(96)}, {v(T + 3)}')
p(f'v_lshlrev_b32 {v(T + 3)}, 13, {v(g_)}')
p(f'v_lshl_add_u32 {v(T + 3)}, {v(n_)}, 4, {v(T + 3)}')
p(f's_lshl_b32 {s(96)}, {s(sW)}, 9')
p(f'v_add_u32 {v(vVld)}, {s(96)}, {v(T + 3)}')
p(f'v_lshlrev_b32 {v(T + 3)}, 17, {v(g_)}')
p(f'v_lshl_add_u32 {v(T + 3)}, {v(n_)}, 4, {v(T + 3)}')
p(f's_lshl_b32 {s(96)}, {s(sW)}, 19')
p(f'v_add_u32 {v(vVst)}, {s(96)}, {v(T + 3)}')
p(f'v_mul_u32_u24 {v(T + 3)}, 160, {v(n_)}')
p(f'v_lshl_add_u32 {v(T + 3)}, {v(g_)}, 3, {v(T + 3)}')
p(f's_mul_i32 {s(96)}, {s(sW)}, 2560')
p(f's_add_u32 {s(96)}, {s(96)}, {SCR}')
p(f'v_add_u32 {v(vHw2)}, {s(96)}, {v(T + 3)}')
p(f'v_lshrrev_b32 {v(T + 3)}, 2, {v(lane)}')
p(f'v_mul_u32_u24 {v(T + 3)}, 160, {v(T + 3)}')
p(f'v_and_b32 {v(T + 2)}, 3, {v(lane)}')
p(f'v_lshl_add_u32 {v(T + 3)}, {v(T + 2)}, 3, {v(T + 3)}')
p(f'v_add_u32 {v(vHw)}, {s(96)}, {v(T + 3)}')
p(f'v_add_u32 {v(vHr)}, {SCR}, {v(T + 3)}')
for q in range(1, 5):
    p(f's_add_u32 {s(96)}, {s(sW)}, {q}')
    p(f's_and_b32 {s(96)}, {s(96)}, 3')
    p(f's_mul_i32 {s(96)}, {s(96)}, 3072')
    p(f's_add_u32 {s(96)}, {s(96)}, {SCR + (1024 * (q - 1) if q < 4 else 0)}')
    p(f'v_add_u32 {v(vRed + q - 1)}, {s(96)}, {v(vL16)}')
p(f'v_and_b32 {v(T)}, 7, {v(n_)}')
p(f'v_lshlrev_b32 {v(T)}, 6, {v(T)}')
p(f'v_add_u32 {v(T)}, {s(98)}, {v(T)}')
p(f'v_lshlrev_b32 {v(T + 1)}, 2, {v(g_)}')
p(f'v_mul_u32_u24 {v(T + 1)}, {v(T + 1)}, {v(T)}')
p(f'v_lshrrev_b32 {v(T + 2)}, 3, {v(n_)}')
p(f'v_lshl_add_u32 {v(T + 1)}, {v(T + 2)}, 9, {v(T + 1)}')
p(f's_cmp_eq_u32 {s(94)}, 0')
p(f's_cselect_b32 {s(73)}, 1.0, -1.0')
p(f's_cselect_b32 {s(74)}, 0, 1.0')
p(f's_cselect_b32 {s(72)}, 1.0, 0')
p(f's_cmp_eq_u32 {s(sC)}, 0')
p(f's_cselect_b32 {s(72)}, {s(72)}, 1.0')
p(f's_cselect_b32 {s(73)}, 0, {s(73)}')
p(f's_cselect_b32 {s(74)}, {s(74)}, 0')
for k in range(8):
    cp = 16 * (k >> 2) + (k & 3)
    p(f'v_mad_u32_u24 {v(T + 2)}, {v(T)}, {cp}, {v(T + 1)}')
    p(f'v_and_b32 {v(T + 2)}, 0x7ff, {v(T + 2)}')
    p(f'v_cvt_f32_u32 {v(T + 2)}, {v(T + 2)}')
    p(f'v_mul_f32 {v(T + 2)}, {f2u(1.0 / 2048):#x}, {v(T + 2)}')
    p(f'v_cos_f32 {v(T + 3)}, {v(T + 2)}')
    p(f'v_sin_f32 {v(T + 4)}, {v(T + 2)}')
    p(f'v_mul_f32 {v(T + 5)}, {s(74)}, {v(T + 3)}')
    p(f'v_mul_f32 {v(T + 3)}, {s(72)}, {v(T + 3)}')
    p(f'v_fma_f32 {v(T + 4)}, {s(73)}, {v(T + 4)}, {v(T + 5)}')
    p(f'v_cvt_pk_bf16_f32 {v(vC2 + k)}, {v(T + 3)}, {v(T + 4)}')
stamp('setup')
if OPT['wfirst'] == 1:
    emit(wsp_first)
    wsp_first = []
for i in range(OPT['x1'], OPT['xa']):
    if OPT['wfirst'] == 2 and wsp_first:
        emit([wsp_first.pop(0)])
    x_loads(i, i + 1)
if OPT['xa'] == 8:
    m1_load(108)
if OPT['ctpos'] == 0:
    ct_dma(110)
SCHED = OPT['sched'].split('/')
FIX = OPT['fix'].split('/')
WSR = (160, 192)
a2a_load = [(f'buffer_load_dword {v(241)}, {v(vPoll)}, {s(R_WS, 4)}, {s(sRep)} offen sc1', None)]


def wsp_run(items):
    i = 0
    while i < len(items):
        if items[i] == 'q':
            if_wave0()
            emit([a2a_load])
            p.end()
            i += 1
            continue
        k = int(items[i + 1])
        if items[i] == 'd':
            p.wait_lgkm(f'wr{k - 3}')
            wsp_dma(k)
        elif items[i] == 'r':
            wsp_read(k, WSR[k & 1])
        elif items[i] == 'a':
            wsp_park(k)
        else:
            wsp_perm(k, WSR[k & 1])
        if OPT['fine'] == 2:
            stamp('*' + items[i:i + 2])
        i += 2


zpois = [(f'buffer_store_dwordx4 {v(116, 4)}, {v(vZst)}, {s(R_WL, 4)}, {s(sZst)} offen sc1', 'pub')]
bg = prep + wsp_first
if OPT['zs']:
    bg = [zpois] + bg if OPT['zp0'] == 0 else bg + [zpois]
for ch in SCHED[0]:
    bg += wsp_dma_ops(int(ch))
for k in range(4):
    p(f'v_mov_b32 {v(T + 2 + k)}, 0')
p.bg = bg
xnext = OPT['xa']
if xnext == 8:
    p.bg_on(OPT['wspev'])
for i in range(64):
    if xnext < 8 and i % OPT['xe'] == OPT['xe'] - 1:
        x_loads(xnext, xnext + 1)
        xnext += 1
        if xnext == 8:
            m1_load(108)
            p.bg_on(OPT['wspev'])
    p(f'v_dot2c_f32_bf16 {v(T + 2 + (i & 1))}, {s(sOnes)}, {v(XR + i)}')
    p(f'v_dot2c_f32_bf16 {v(T + 4 + (i & 1))}, {v(XR + i)}, {v(XR + i)}')
    if i == 7:
        unpack(XR, 8, XV)
    if i == OPT['ann']:
        p.bg_on(0)
        p(f's_cmp_eq_u32 {s(sG0)}, 3')
        p.begin('G0', 's_cbranch_scc0')
        p.wait_vm('z')
        p(f'v_mov_b32 {v(EI)}, 1')
        p('s_mov_b64 exec, 1')
        p(f'buffer_store_dword {v(EI)}, off, {s(R_DBG, 4)}, 0 sc1')
        p('s_mov_b64 exec, -1')
        p.end()
        p.bg_on(OPT['wspev'] if xnext == 8 else 0)
p.bg_on(0)
p.bg_emit()
p(f'v_add_f32 {v(T)}, {v(T + 2)}, {v(T + 3)}')
p(f'v_add_f32 {v(T + 1)}, {v(T + 4)}, {v(T + 5)}')
for qp in ('[1,0,3,2]', '[2,3,0,1]'):
    for k in range(2):
        p(f'v_add_f32_dpp {v(T + k)}, {v(T + k)}, {v(T + k)} quad_perm:{qp} row_mask:0xf bank_mask:0xf')
dbg_load = [(f'buffer_load_dword {v(241)}, off, {s(R_DBG, 4)}, 0 sc1', None)]
assert not SCHED[1]
wsp_run(SCHED[1])

p.section('body')
for _ in range(OPT['algn']):
    p('s_nop 0')
p('L_layer:')
stamp('T')
HP, AF, D1, VO = 56, 72, 104, 56
finish_stats(T, 512)
for i in range(0, 16, 2):
    p(f'v_pk_fma_f32 {v(XV + i, 2)}, {v(XV + i, 2)}, {v(T, 2)}, {v(T, 2)} op_sel:[0,0,1] op_sel_hi:[1,0,1]')
for t in range(4):
    for k in range(2):
        p(f'v_cvt_pk_bf16_f32 {v(HP + 2 * t + k)}, {v(XV + 8 * k + t)}, {v(XV + 8 * k + 4 + t)}')
    p(f'ds_write_b64 {v(vHw)}, {v(HP + 2 * t, 2)} offset:{32 * t}', tag='hw')
p(f's_add_u32 {s(sT + 1)}, {s(sVst)}, 0x10000')
p.wait_lgkm('hw')
p.wait_vm('prep')
p('s_barrier')
for ks in range(2):
    for tile in range(4):
        for half in range(2):
            p(f'ds_read_b64_tr_b16 {v(AF + 16 * ks + 4 * tile + 2 * half, 2)}, {v(vHr)} offset:{(32 * ks + 16 * half) * 160 + 32 * tile}')
if_layer(0)
for k in range(2):
    for half in range(2):
        p(f'ds_read_b64_tr_b16 {v(PK + 4 * k + 2 * half, 2)}, {v(vPri)} offset:{128 * k + 896 * half}')
for half in range(2):
    p(f'ds_read_b64_tr_b16 {v(PK + 8 + 2 * half, 2)}, {v(vPro)} offset:{2048 * half}')
p.end()
for ks in range(2):
    for tile in range(4):
        d = D1 + 4 * tile
        p(f'{M16} {v(d, 4)}, {v(M1 + 4 * ks, 4)}, {v(AF + 16 * ks + 4 * tile, 4)}, {v(d, 4) if ks else 0}')
if_layer(0)
p(f'v_lshlrev_b32 {v(vBsp)}, 16, {v(vBsp)}')
p(f'buffer_store_dwordx4 {v(PK, 4)}, {v(vL16)}, {s(R_WS, 4)}, {s(83)} offen sc1', tag='pub')
p(f'buffer_store_dwordx4 {v(PK + 4, 4)}, {v(vL16)}, {s(R_WS, 4)}, {s(84)} offen sc1', tag='pub')
p(f'buffer_store_dwordx4 {v(PK + 8, 4)}, {v(vL16)}, {s(R_WS, 4)}, {s(85)} offen sc1', tag='pub')
p.end()
for jj in range(2):
    for t in range(4):
        p(f'v_cvt_pk_bf16_f32 {v(VO + 4 * jj + t)}, {v(D1 + 4 * t + 2 * jj)}, {v(D1 + 4 * t + 2 * jj + 1)}')
    p(f'buffer_store_dwordx4 {v(VO + 4 * jj, 4)}, {v(vVst)}, {s(R_WL, 4)}, {s(sT + 1 if jj else sVst)} offen sc1', tag='pub')
stamp('Vst')
if OPT['ctpos'] == 1:
    ct_dma(T + 6)
if_layer(0)
if_wave0()
emit([dbg_load])
p.end()
wsp_run(SCHED[2])
if_wave0()
retry_until(dbg_load, lambda: p(f'v_cmp_ne_u32 vcc, 1, {v(241)}'))
p.end()
p.end()
wz2 = w_dma_ops(sWI, 114688, LOC_Z2, 'wz2')
CMN = [int(ch, 36) for ch in OPT['cmn']]
assert sum(CMN) % 4 == 0 and sum(CMN) + OPT['wzp1'] + OPT['wzp2'] + OPT['wzp3'] == 28
wz2_both, wz2 = wz2[:sum(CMN)], wz2[sum(CMN):]
P1, P2, P3 = OPT['wzp1'], OPT['wzp1'] + OPT['wzp2'], OPT['wzp1'] + OPT['wzp2'] + OPT['wzp3']
assert P1 % 4 == 0 and OPT['wzp0'] % 4 == 0
if (OPT['ctp'] == 2 and OPT['ctpos'] == 0) or P2 > P1:
    if_layer(1)
    if OPT['ctp'] == 2 and OPT['ctpos'] == 0:
        ct_dma(T + 6)
    emit(wz2[P1:P2])
    p.end()
stamp('init')
if OPT['vs']:
    if_layer(0)
    p.wait_vm('pub')
    p.wait_vm('ct')
    arrive(sArr, 8)
    p.end()
    if_layer(1)
    p.wait_vm('x2')
    p.wait_vm('ct')
    arrive_group(sS2, 32)
    p.end()
else:
    p.wait_vm('pub')
    p.wait_vm('ct')
    arrive(sArr, 8)
poison(5, 96)
code_prefetch(1, 'L_k2')
stamp('arr1')
FA, TW, FB, VR, D2, UP, XRES, Y = 40, 64, 80, 96, 160, 192, 224, 208
for k in range(14):
    p(f'ds_read_b128 {v(FA + 4 * k, 4)}, {v(vL16hi)} offset:{CT - 65536 + k * 1024}')
if_layer(0)
wsp_run(SCHED[3])
if_wave0()
retry_until(a2a_load, lambda: p(f'v_cmp_ne_u32 vcc, 16, {v(241)}'))
p.end()
p('s_barrier')
p.end()
for k in range(4):
    p(f's_add_u32 {s(sT + 4 + k)}, {s(sVld)}, {(16 * (k >> 1) + 2 * (k & 1)) * 2048:#x}')
if_layer(1)
emit(wz2[P2:P3])
x2_load = [(f'buffer_load_dword {v(248)}, {v(vGrp)}, {s(R_WS, 4)}, {s(sS2)} offen offset:32{PG}', None)]
if OPT['vs']:
    emit([x2_load])
else:
    poll(sRep, vPoll, 16)
p.end()
assert not SCHED[8:]


def l0_dma(n):
    emit([wz2_both.pop(0) for _ in range(CMN.pop(0))])


stamp('S1')
p('L_k2:')
vl = [(f'buffer_load_dwordx4 {v(VR + 16 * gk + 4 * ii, 4)}, {v(vVld)}, {s(R_WL, 4)}, {s(sT + 4 + 2 * (gk & 1) + (ii >> 1))} '
       f'offen offset:{(ii & 1) * 2048 + (gk >> 1) * 256} sc1', None) for gk in range(4) for ii in range(4)]
for gk in range(4):
    emit([vl[4 * gk:4 * gk + 4]])
    if gk < 3 and SCHED[4 + gk]:
        if_layer(0)
        wsp_run(SCHED[4 + gk])
        p.end()
if OPT['vs']:
    if_layer(1)
    retry_until(x2_load, lambda: p(f'v_cmp_ne_u32 vcc, 1, {v(248)}'))
    p.end()
xl = [(f'buffer_load_dwordx4 {v(XRES + 4 * k, 4)}, {v(vXr)}, {s(R_X, 4)}, {s((sXb, sXo)[k])} offen{LG}', None) for k in range(2)]
emit([xl])
if_layer(0)
p(f'buffer_load_dword {v(248)}, {v(vGrp)}, {s(R_WS, 4)}, {s(sS2)} offen offset:128 sc1')
wsp_run(SCHED[7])
if not SCHED[8:]:
    p('s_waitcnt lgkmcnt(0)')
    p('s_barrier')
p.end()
l0_dma(0)
stamp('Vld')


def u_pack(hi):
    up = (192, 200)[hi]
    for r in range(4):
        for lp in range(2):
            p(f'v_cvt_pk_bf16_f32 {v(up + 2 * r + lp)}, {v(D2 + 16 * hi + 8 * lp + r)}, {v(D2 + 16 * hi + 8 * lp + 4 + r)}')
        if r & 1:
            p(f'ds_write_b128 {v(vUw)}, {v(up + 2 * r - 2, 4)} offset:{128 * hi + 8 * (r - 1)}')


for hi in range(2):
    for ks in range(2):
        if hi and ks:
            u_pack(0)
        r = VR + 32 * hi + 16 * ks
        if OPT['vs']:
            def v_test(r=r):
                p(f'v_max3_u32 {v(T)}, {v(r + 3)}, {v(r + 7)}, {v(r + 11)}')
                p(f'v_max_u32 {v(T)}, {v(T)}, {v(r + 15)}')
                p(f'v_cmp_eq_u32 vcc, -1, {v(T)}')
            gk = 2 * hi + ks
            if OPT['vs'] == 1:
                retry_until(vl[4 * gk:], v_test)
            else:
                retry_until(vl[4 * gk:4 * gk + 4], v_test, after=vl[4 * gk + 4:] + xl if gk < 3 else None)
        for i in range(4):
            for j in range(i + 1, 4):
                p(f'v_swap_b32 {v(r + 4 * i + j)}, {v(r + 4 * j + i)}')
        for lo in range(4):
            d = D2 + 16 * hi + 4 * lo
            p(f'{M16} {v(d, 4)}, {v(r + 4 * lo, 4)}, {v(vC2 + 4 * ks, 4)}, {v(d, 4) if ks else 0}')
fine('st2')
l0_dma(4)
u_pack(1)
for k in range(2):
    p(f'ds_write_b128 {v(vXw + k)}, {v(XRES + 4 * k, 4)} offset:16640')
p('s_waitcnt lgkmcnt(0)')
p('s_barrier')
fine('ubar')
poison(4, 176)
UA, DR, DI, TT, PF = 96, 112, 128, 144, 160
for ri in range(2):
    for dh in range(2):
        for half in range(2):
            p(f'ds_read_b64_tr_b16 {v(UA + 8 * ri + 4 * dh + 2 * half, 2)}, {v(vUr)} offset:{ri * 8320 + dh * 512 + half * 128}')
for o in range(2):
    p(f'ds_read_b128 {v(XRES + 4 * o, 4)}, {v(vTw)} offset:{16640 + 4608 * o}')
l0_dma(4)
for ri in range(2):
    for dh in range(2):
        first = ri == 0 and dh == 0
        fr = FA + 4 * ((2 if ri else 0) + dh)
        fi = FA + 4 * ((0 if ri else 4) + dh)
        p(f'{M32} {v(DR, 16)}, {v(UA + 8 * ri + 4 * dh, 4)}, {v(fr, 4)}, {0 if first else v(DR, 16)}')
        p(f'{M32} {v(DI, 16)}, {v(UA + 8 * ri + 4 * dh, 4)}, {v(fi, 4)}, {0 if first else v(DI, 16)}')
fine('stA')
unpack(XRES, 8, Y)
fine('xres')
l0_dma(4)
for row in range(2):
    for k in range(0, 8, 2):
        r = 8 * row + k
        p(f'v_pk_mul_f32 {v(TT + k, 2)}, {v(DI + r, 2)}, {v(TW + 8 + k, 2)}')
        p(f'v_pk_mul_f32 {v(TT + 8 + k, 2)}, {v(DR + r, 2)}, {v(TW + 8 + k, 2)}')
    for k in range(0, 8, 2):
        r = 8 * row + k
        p(f'v_pk_fma_f32 {v(TT + k, 2)}, {v(DR + r, 2)}, {v(TW + k, 2)}, {v(TT + k, 2)}')
        p(f'v_pk_fma_f32 {v(TT + 8 + k, 2)}, {v(DI + r, 2)}, {v(TW + k, 2)}, {v(TT + 8 + k, 2)} neg_lo:[0,0,1] neg_hi:[0,0,1]')
    for k in range(8):
        p(f'v_cvt_pk_bf16_f32 {v(PF + 8 * row + k)}, {v(TT + 2 * k)}, {v(TT + 2 * k + 1)}')
for k in range(4):
    p(f'{M32} {v(Y, 16)}, {v(PF + 4 * k, 4)}, {v(FB + 4 * k, 4)}, {v(Y, 16)}')
fine('stB')
XO, HO = 224, 232
l0_dma(4)
if_layer(0)
p(f'v_cmp_ne_u32 vcc, {s(sLoc)}, {v(248)}')
p('s_cmp_eq_u64 vcc, 0')
p(f's_cselect_b32 {s(sLoc)}, {OPT["loc"]}, 0')
p(f's_mov_b32 {s(sLocU)}, {s(sLoc)}')
p.end()
local_stats(Y, 16, T)
p(f'v_permlane32_swap_b32 {v(T)}, {v(T + 1)}')
p(f'v_add_f32 {v(T)}, {v(T)}, {v(T + 1)}')
for k, sh in enumerate((8, 4, 2, 1)):
    p(f'v_cvt_pk_bf16_f32 {v(XO + 2 * k)}, {v(Y + 4 * k)}, {v(Y + 4 * k + 1)}')
    p(f'v_cvt_pk_bf16_f32 {v(XO + 2 * k + 1)}, {v(Y + 4 * k + 2)}, {v(Y + 4 * k + 3)}')
    p(f'v_add_f32_dpp {v(T)}, {v(T)}, {v(T)} row_ror:{sh} row_mask:0xf bank_mask:0xf')
p(f'v_mov_b32 {v(T + 1)}, {v(T)}')
p(f's_add_u32 {s(sT)}, {s(sK2)}, {X1_:#x}')
p(f's_add_u32 {s(sT + 1)}, {s(sK2)}, {H_:#x}')
p(f'v_permlane32_swap_b32 {v(T)}, {v(T + 1)}')
finish_stats(T, 512)
norm_pack(Y, 16, T, Y, HO)
fine('norm')
for o in range(2):
    p(f'ds_write_b128 {v(vTw)}, {v(HO + 4 * o, 4)} offset:{16640 + 4608 * o}')
p('s_waitcnt lgkmcnt(0)')
p('s_barrier')
for k in range(2):
    p(f'ds_read_b128 {v(HO + 4 * k, 4)}, {v(vTr)} offset:{16640 + 576 * k}')
for o in range(2):
    p(f'ds_write_b128 {v(vTw)}, {v(XO + 4 * o, 4)} offset:{4608 * o}')
gstore([f'buffer_store_dwordx4 {v(HO + 4 * k, 4)}, {v(vK2)}, {s(R_WL, 4)}, {s(sT + 1)} offen offset:{2048 * k}' for k in range(2)], 'pub', OPT['locd'] & 1, sLocH)
l0_dma(6)
HF, Z2, Z1, WR, WD, GT = 40, 104, 136, 164, 12, 232
for k in range(4):
    p(f's_add_u32 {s(sT + 4 + k)}, {s(sH)}, {H_ + 4096 * k:#x}')
wsp_fix(FIX[0], 104, wz2[:OPT['l0a']])
stamp('K2')
p('s_waitcnt lgkmcnt(0)')
if OPT['wf2']:
    p('s_barrier')
    for k in range(2):
        p(f'ds_read_b128 {v(XO + 4 * k, 4)}, {v(vTr)} offset:{576 * k}')
    p(f'v_mov_b32 {v(T)}, 1')
    p.wait_vm('pub')
    p('s_mov_b64 exec, 1')
    gstore([f'buffer_store_dword {v(T)}, off, {s(R_WS, 4)}, {s(sF2s)}'])
    p('s_mov_b64 exec, -1')
else:
    p.wait_vm('pub')
    arrive_group(sS2)
    for k in range(2):
        p(f'ds_read_b128 {v(XO + 4 * k, 4)}, {v(vTr)} offset:{576 * k}')
wsp_fix(FIX[1], 104, wz2[OPT['l0a']:])
stamp('arr2')
p('s_waitcnt lgkmcnt(0)')
for k in range(7):
    p.wait_vm(f'wz2{k}')
if OPT['wf2']:
    p('s_barrier')
    top, done = p.label('poll'), p.label('pdone')
    p(f'{top}:')
    p(f'buffer_load_dword {v(T)}, {v(vGrp)}, {s(R_WS, 4)}, {s(sF2l)} offen{PG}')
    p('s_waitcnt vmcnt(0)')
    p(f'v_cmp_ne_u32 vcc, 1, {v(T)}')
    spin_tail(top, done)
else:
    poll(sS2, vGrp, 1)
stamp('S2')
p('L_k3:')
hl = [[(f'buffer_load_dwordx4 {v(HF + 4 * ks, 4)}, {v(vL16)}, {s(R_WL, 4)}, {s(sT + 4 + (ks >> 2))} offen offset:{1024 * (ks & 3)}{LG}', None)]
      for ks in range(16)]
xs = [[(f'buffer_store_dwordx4 {v(XO + 4 * k, 4)}, {v(vK2)}, {s(R_WL, 4)}, {s(sT)} offen offset:{2048 * k} sc1', 'x1')] for k in range(2)]
wz1 = w_dma_ops(sWI, 0, LOC_Z1, 'wz1')
emit(hl[:OPT['pre3']])
SEL, ZP, ZT, ZO = 212, 228, 164, 104
p(f'v_and_b32 {v(SEL)}, 0xf0, {v(vL16)}')
p(f'v_lshrrev_b32 {v(SEL + 1)}, 2, {v(vL16)}')
p(f'v_and_b32 {v(SEL + 1)}, 0xc0, {v(SEL + 1)}')
p(f'v_sub_u32 {v(SEL)}, {v(SEL)}, {v(SEL + 1)}')
p(f'v_mov_b32 {v(SEL + 4)}, 0x3f80')
p(f'v_lshlrev_b32 {v(SEL + 4)}, {v(SEL)}, {v(SEL + 4)}')
p(f'v_lshrrev_b32 {v(SEL + 1)}, 5, {v(SEL)}')
p(f'v_cmp_eq_u32 vcc, 0, {v(SEL + 1)}')
p(f'v_cndmask_b32 {v(SEL + 2)}, 0, {v(SEL + 4)}, vcc')
p(f'v_cmp_eq_u32 vcc, 1, {v(SEL + 1)}')
p(f'v_cndmask_b32 {v(SEL + 3)}, 0, {v(SEL + 4)}, vcc')
for k in (0, 1, 4, 5):
    p(f'v_mov_b32 {v(SEL + k)}, 0')
p(f'v_mov_b32 {v(ZP + 14)}, 0')
p(f'v_mov_b32 {v(ZP + 15)}, 0')
wsp_fix(FIX[2], 104)
n_h = 16 - OPT['pre3']
fill = spread(hl[OPT['pre3']:], 1, OPT['hsp'])
fill.update(spread(xs + wz1[:12], OPT['hsp'] * n_h + 1, OPT['z2sp']))
fill[max(fill) + 3] = lambda: poison(1, 132)
gemm_r(Z2, 7, 0, 16, HF, WR, WD, LOC_Z2, fill=fill)
p.wait_vm('x1')
p('s_barrier')
stamp('z2mm')
p.bg = wz1[12:]
p.bg_emit(2)
p.bg_on(OPT['g2ev'])
gelu(Z2, 28, GT)
local_stats(Z2, 28, T)
p.bg_on(0)
reduce_g(T, T + 1)
publish_stats(0)
stamp('pub3')
Z1A = OPT['z1a']
p.bg_emit(None if Z1A else OPT['gb'])
p(f's_mov_b32 {s(sT + 2)}, {s(sZld)}')
p(f'v_add_u32 {v(245)}, {s(sDm)}, {v(vL16)}')
OW, OR, OG = 248, 249, 253
p(f's_add_u32 {s(sT + 1)}, {s(sUst)}, 8192')
p(f's_lshl_b32 {s(sT + 3)}, {s(sB)}, 10')
p(f's_add_u32 {s(sT + 3)}, {s(sT + 3)}, {s(sH)}')
p(f's_add_u32 {s(sT + 12)}, {s(sT + 3)}, {X1_:#x}')
p(f's_add_u32 {s(sT + 13)}, {s(sT + 3)}, {X1_ + 8192:#x}')
for k in range(4):
    p(f's_add_u32 {s(sT + 4 + k)}, {s(sUld)}, {4096 * k}')
    p(f's_add_u32 {s(sT + 8 + k)}, {s(sH)}, {X1_ + 4096 * k:#x}')
p(f'v_and_b32 {v(133)}, 0xf0, {v(vL16)}')
p(f'v_mul_u32_u24 {v(133)}, 9, {v(133)}')
p(f'v_lshrrev_b32 {v(134)}, 8, {v(vL16)}')
p(f'v_lshl_add_u32 {v(133)}, {v(134)}, 5, {v(133)}')
p(f's_mul_i32 {s(99)}, {s(sW)}, 2304')
p(f's_add_u32 {s(99)}, {s(99)}, {SCR + 12288}')
p(f'v_add_u32 {v(OW)}, {s(99)}, {v(133)}')
p(f'v_lshrrev_b32 {v(133)}, 7, {v(vL16)}')
p(f'v_lshl_add_u32 {v(134)}, {v(133)}, 4, {v(vL16)}')
p(f'v_add_u32 {v(OR)}, {s(99)}, {v(134)}')
p(f'v_and_b32 {v(134)}, 0x70, {v(vL16)}')
p(f'v_lshl_add_u32 {v(OG)}, {v(133)}, 16, {v(134)}')
p(f's_lshl_b32 {s(99)}, {s(sW)}, 9')
p(f's_add_u32 {s(99)}, {s(99)}, {s(sC)}')
p(f's_lshl_b32 {s(99)}, {s(99)}, 10')
p(f's_add_u32 {s(sT + 14)}, {s(99)}, {s(sB128)}')
p(f's_add_u32 {s(sT + 15)}, {s(sT + 14)}, 0x8000')
wo = w_dma_ops(sWO, 0, LOC_WO, 'wo')
if Z1A:
    p.wait_vm('wz12')
    p('s_barrier')
    fill = {OPT['gpos']: gather_loads(0)}
    fill.update(spread(wo[:OPT['woa']], OPT['gpos'] + 2, 2))
    gemm_r(Z1, 7, 0, Z1A, HF, WR, WD, LOC_Z1, fill=fill)
else:
    emit([gather_loads(0)])
    p.bg_emit()
    emit(wo[:OPT['woa']])
stamp('z1a')
gather_finish(0)
stamp('S3')
poison(2, 132)
finish_stats(T, 896)
for i in range(0, 28, 2):
    p(f'v_pk_fma_f32 {v(Z2 + i, 2)}, {v(Z2 + i, 2)}, {v(T, 2)}, {v(T, 2)} op_sel:[0,0,1] op_sel_hi:[1,0,1]')
ZO = 192
for pr in range(6):
    if pr < 4:
        tiles = [ft for ft in (2 * pr, 2 * pr + 1) if ft < 7]
        for ft in tiles:
            for k in range(2):
                p(f'v_cvt_pk_bf16_f32 {v(ZP + 2 * ft + k)}, {v(Z2 + 4 * ft + 2 * k)}, {v(Z2 + 4 * ft + 2 * k + 1)}')
    if 2 <= pr:
        q = pr - 2
        for ft in (2 * q, 2 * q + 1):
            for k in range(2 if ft < 7 else 0):
                p(f'v_cvt_pk_bf16_f32 {v(ZO + 2 * ft + k)}, {v(ZT + 4 * ft + 2 * k)}, {v(ZT + 4 * ft + 2 * k + 1)}')
        p(f's_add_u32 {s(sT)}, {s(sZst)}, {q * 32768:#x}')
    if pr < 4:
        for ft in tiles:
            p(f'{M16} {v(ZT + 4 * ft, 4)}, {v(ZP + 4 * pr, 4)}, {v(SEL + (0 if ft & 1 else 2), 4)}, 0')
    if 2 <= pr:
        for k in range(2):
            p(f'v_permlane16_swap_b32 {v(ZO + 4 * q + k)}, {v(ZO + 4 * q + 2 + k)}')
        if q == 3:
            p('s_mov_b32 exec_lo, 0xffff')
            p('s_mov_b32 exec_hi, 0xffff')
        p(f'buffer_store_dwordx4 {v(ZO + 4 * q, 4)}, {v(vZst)}, {s(R_WL, 4)}, {s(sT)} offen sc1', tag='pub')
p('s_mov_b64 exec, -1')
stamp('Zst')
poison(3, 132)
p.wait_vm('wz16')
p('s_barrier')
Z1B = min(16, Z1A + OPT['z1arr'])
wreg = lambda k: 104 + 4 * k if k < 8 else 212 + 4 * (k - 8)
wst = []
for k in range(16):
    g = [(f's_add_u32 {s(sDo)}, {s(sWO)}, {16384 * (3 + (k >> 2)):#x}', None)] if k % 4 == 0 else []
    if not OPT['nobg'] & 1:
        g.append((f'buffer_load_dwordx4 {v(wreg(k), 4)}, {v(vL16)}, {s(R_WS, 4)}, {s(sDo)} offen offset:{1024 * (k & 3)}', None))
    wst.append(g)
bgw = wo[OPT['woa']:12] + wst
wo = []
ZD, AC, RT, UO = OPT['zd'], 196, 228, 240


def zreg(fi):
    k = fi % ZD
    return 56 + 4 * k


def zload(fi):
    if fi % 4 == 0 and fi:
        p(f's_add_u32 {s(sT + 2)}, {s(sT + 2)}, 4096')
    if OPT['k4load'] or fi < ZD:
        p(f'buffer_load_dwordx4 {v(zreg(fi), 4)}, {v(vL16)}, {s(R_WL, 4)}, {s(sT + 2)} offen offset:{(fi % 4) * 1024}' + ' sc1')


nin = min(len(bgw), (112 - 7 * Z1A - 1) // OPT['wosp'])
fill = spread(bgw[:nin], 7 * Z1A + 1, OPT['wosp'])
nz = 0
if OPT['zs'] and OPT['zin'] and nin == len(bgw):
    pos = max(max(fill) + OPT['wosp'], OPT['zin'])
    while nz < ZD and max(pos, 7 * (nz + 5) - 1) < 112:
        pos = max(pos, 7 * (nz + 5) - 1)
        fill[pos] = (lambda k: lambda: zload(k))(nz)
        pos += OPT['zsp']
        nz += 1
gemm_r(Z1, 7, Z1A, Z1B, HF, WR, WD, LOC_Z1, last=112, fill={k: g for k, g in fill.items() if k < 7 * Z1B})
p.wait_vm('pub')
arrive(sS4, 8)
code_prefetch(4, 'L_k4')
stamp('arr4')
if Z1B < 16:
    gemm_r(Z1, 7, Z1B, 16, HF, WR, WD, LOC_Z1, preload=False, fill={k: g for k, g in fill.items() if k >= 7 * Z1B})
p.bg = bgw[nin:]
if nz:
    for fi in range(nz, ZD):
        zload(fi)
    nz = ZD
if OPT['g1w']:
    p.bg_on(8)
    gelu(Z1, 4 * OPT['g1w'], 164)
    p.bg_on(0)
p.bg_emit()
wsp_fix(FIX[3], 164)
stamp('win4')
if OPT['zs']:
    if Z1B < 16:
        p('s_barrier')
else:
    poll(sP4, None, 32)
stamp('S4')
p('L_k4:')
def k4_epilogue(ft):
    ac, buf = AC + 16 * (ft & 1), 12288 * (ft & 1)
    st1 = [f'ds_write_b128 {v(vRed + q - 1)}, {v(ac + 4 * q, 4)} offset:{buf}' for q in (1, 2, 3)]
    st1 += [f'v_add_f32 {v(ac + r)}, {v(vBsp)}, {v(ac + r)}' for r in range(4)]
    st2 = ['s_waitcnt lgkmcnt(0)', 's_barrier']
    st2 += [f'ds_read_b128 {v(RT + 4 * q, 4)}, {v(vRed + 3)} offset:{buf + 1024 * q}' for q in range(3)]
    st3 = [f'v_add_f32 {v(ac + r)}, {v(RT + 4 * q + r)}, {v(ac + r)}' for q in range(3) for r in range(4)]
    st3 += [f'v_mul_f32 {v(ac + r)}, {v(Z1 + 4 * ft + r)}, {v(ac + r)}' for r in range(4)]
    st3 += [f'v_cvt_pk_bf16_f32 {v(UO + 2 * (ft & 1) + k)}, {v(ac + 2 * k)}, {v(ac + 2 * k + 1)}' for k in range(2)]
    if ft == 6:
        st3 += [f'buffer_store_dwordx2 {v(UO, 2)}, {v(vL8)}, {s(R_WL, 4)}, {s(sT + 13)} offen']
    elif ft == 5:
        st3 += [f'buffer_store_dwordx4 {v(UO, 4)}, {v(vL16)}, {s(R_WL, 4)}, {s(sT + 12)} offen']
    elif ft & 1:
        st3 += [f'buffer_store_dwordx4 {v(UO, 4)}, {v(vL16)}, {s(R_WL, 4)}, {s(sT + 1 if ft == 3 else sUst)} offen offset:0']
    return st1, st2, st3


def k4_emit(x):
    if x.startswith('buffer_store'):
        late = x.endswith('offen')
        if late:
            p.wait_vm('x1l')
        gstore([x], 'u6' if 'dwordx2' in x else 'pub', OPT['locd'] & (2 if late else 4), sLocU if OPT['locd'] & (8 if late else 16) else None)
    else:
        p(x)


def gelu_ops(x, t):
    ops = [f'v_mul_f32 {v(t + k)}, {v(x + k)}, {v(x + k)}' for k in range(4)]
    ops += [f'v_fma_f32 {v(t + k)}, {v(t + k)}, {v(vGK)}, {v(vGK + 1)}' for k in range(4)]
    ops += [f'v_mul_f32 {v(t + k)}, {v(t + k)}, {v(x + k)}' for k in range(4)]
    ops += [f'v_exp_f32 {v(t + k)}, {v(t + k)}' for k in range(4)]
    ops += [f'v_add_f32 {v(t + k)}, 1.0, {v(t + k)}' for k in range(4)]
    ops += [f'v_rcp_f32 {v(t + k)}, {v(t + k)}' for k in range(4)]
    ops += [f'v_mul_f32 {v(x + k)}, {v(t + k)}, {v(x + k)}' for k in range(4)]
    return ops


WR5, X1R, XP, FL, X1L = 56, 232, 104, 244, 136
assert ZD == WD


def ureg(ks):
    return (104, 120, 164, 180, 212, 196, 136)[ks >> 2] + 4 * (ks & 3)


ul = [[(f'buffer_load_dwordx4 {v(ureg(ks), 4)}, {v(vL16)}, {s(R_WL, 4)}, {s(sT + 4 + (ks >> 2))} offen offset:{1024 * (ks & 3)}{LG}', None)]
      for ks in range(24)]
ul += [[(f'buffer_load_dwordx2 {v(ureg(24 + i) + 2 * k, 2)}, {v(vL8)}, {s(R_WL, 4)}, {s(sT + 10 + (i >> 1))} offen offset:{1024 * (2 * (i & 1) + k)}{LG}', None)
        for k in range(2)] for i in range(4)]


def flag_store(off):
    p(f'v_mov_b32 {v(FL + 1)}, 1')
    p(f's_add_u32 {s(99)}, {s(sS5)}, {s(sB4)}')
    p('s_mov_b64 exec, 1')
    gstore([f'buffer_store_dword {v(FL + 1)}, off, {s(R_WS, 4)}, {s(99)} offset:{off}'])
    p('s_mov_b64 exec, -1')


def flag_load(off):
    return [(f'buffer_load_dword {v(FL)}, {v(vGrp)}, {s(R_WS, 4)}, {s(sS5)} offen offset:{off}{PG}', None)]


def z_check(fi):
    loads = [(f's_add_u32 {s(99)}, {s(sZld)}, {1024 * fi:#x}', None)]
    loads += [(f'buffer_load_dwordx4 {v(zreg(fi + k), 4)}, {v(vL16)}, {s(R_WL, 4)}, {s(99)} offen offset:{1024 * k} sc1', None) for k in range(2)]
    return loads, lambda: p(f'v_cmp_u_f32 vcc, {v(zreg(fi) + 3)}, {v(zreg(fi + 1) + 3)}')


s4_load = [(f'buffer_load_dword {v(FL)}, off, {s(R_WS, 4)}, {s(sP4)} sc1', None)]


def flag_check(off):
    retry_until(flag_load(off), lambda: p(f'v_cmp_ne_u32 vcc, 1, {v(FL)}'))


for fi in range(nz, ZD):
    zload(fi)
assert not FIX[4]
x1l = [(f'buffer_load_dwordx4 {v(X1L + 4 * o, 4)}, {v(vL16)}, {s(R_WL, 4)}, {s(sT + 12 + o)} offen{LG}', 'x1l') for o in range(2)]
tail = ul[:16]
ROT = 112 % ZD
for ft in range(7):
    fill = {}
    if ft and OPT['k4epi']:
        st1, st2, st3 = k4_epilogue(ft - 1)
        pos = OPT['e1']
        for x in st1:
            fill.setdefault(pos, []).append(x)
            pos += 1
        pos = OPT['e2']
        for x in st2:
            fill.setdefault(pos, []).append(x)
            pos += 1
        pos = OPT['e3']
        for x in st3:
            fill.setdefault(pos, []).append(x)
            pos += 1
    if ft == 0:
        for k in range(16):
            fill[4 * k + 1] = [f'ds_write_b128 {v(245)}, {v(wreg(15 - k), 4)} offset:{16384 * ((15 - k) >> 2) + 1024 * ((15 - k) & 3)}']
    if ft == OPT['upk']:
        free = [k for k in range(64) if k % 4 != 3][-16:]
        for i in range(8):
            fill.setdefault(free[2 * i], []).append(f'v_lshlrev_b32 {v(XV + 2 * i)}, 16, {v(X1L + i)}')
            fill.setdefault(free[2 * i + 1], []).append(f'v_and_b32 {v(XV + 2 * i + 1)}, 0xffff0000, {v(X1L + i)}')
    free = [k for k in range(64) if k not in fill] + [k for k in range(64) if len(fill.get(k, [])) == 1 and fill[k][0][0] == 'v' and k % 4 != 3]
    free = sorted(free[:28])
    for k, x in zip(free, gelu_ops(Z1 + 4 * (ft + OPT['gsh']), T) if OPT['g1w'] <= ft + OPT['gsh'] < 7 else []):
        fill.setdefault(k, []).append(x)
    for a2 in range(16):
        fi = ft * 16 + a2
        chk = OPT['zs'] and fi & 1 and fi < 31
        if OPT['zs'] and fi == 0:
            retry_until(*z_check(0))
        for q in range(4):
            d = AC + 16 * (ft & 1) + 4 * q
            if chk and q == 3:
                z_check(fi + 1)[1]()
            if OPT['k4mfma'] or q == 0:
                p(f'{M16} {v(d, 4)}, {v(zreg(fi), 4)}, {a((q * 16 + a2) * 4, 4)}, {v(d, 4) if a2 else 0}')
            for x in fill.get(4 * a2 + q, []):
                k4_emit(x)
        if chk:
            retry_until(*z_check(fi + 1), tested=True)
        if OPT['zs'] and fi == OPT['q4']:
            emit([s4_load])
        if OPT['zs'] and fi + ZD == 32:
            retry_until(s4_load, lambda: p(f'v_cmp_ne_u32 vcc, 32, {v(FL)}'))
        if fi + ZD < 112:
            zload(fi + ZD)
        elif len(tail) > 16 - OPT['ntail']:
            if len(tail) == 8:
                flag_check(0)
            emit([tail.pop(0)])
        if fi + ZD >= 112:
            wring_read(fi + ZD - 112, WR5, WD, LOC_WO, ROT)
        if fi == OPT['mf']:
            p.wait_vm('pub')
            flag_store(32)
        if OPT['fine'] == 3 and (a2 == 15 or fi == 0) and fi < 111:
            stamp(f'i{fi}')
        if fi == 56:
            p.wait_vm('pub')
            flag_store(96)
        if fi == 70:
            emit([flag_load(96)])
        if fi == 84:
            flag_check(96)
        if fi == OPT['f5a']:
            p.wait_vm('pub')
            flag_store(0)
        if fi == 64:
            code_prefetch(8, 'L_k5')
        if fi == 80:
            p('L_k5:')
        if fi == OPT['x1pos']:
            emit([x1l])
        if fi == OPT['l5a']:
            emit([flag_load(0)])
stamp('K4')


def chain(*fs):
    def run():
        for f in fs:
            f()
    return run


def line(x, tag=None):
    return lambda: p(x, tag=tag)


def flag_after(tag, off):
    p.wait_vm(tag)
    flag_store(off)


def next_m1():
    if_layer(0)
    m1_load(228)
    p.end()


fill = {}


def put(pos, f):
    fill[pos] = chain(fill[pos], f) if pos in fill else f


st1, st2, st3 = k4_epilogue(6)
for k, x in enumerate(st1):
    put(OPT['k1'] + min(k, 3 + (k - 3) // 2), line(x, 'red' if k < 3 else None))
put(OPT['k2'], chain(lambda: p.wait_lgkm('red'), *[line(x) for x in st2[1:]]))
for k, x in enumerate(st3):
    put(OPT['k3'] + k // 2, (lambda y: lambda: k4_emit(y))(x))
kend = OPT['k3'] + len(st3) // 2
assert len(tail) < 8
for k, g in enumerate(tail):
    put(k, (lambda y: lambda: emit([y]))(g))
if OPT['mf'] > 111:
    put(OPT['mf'] - 112, lambda: flag_after('pub', 32))
put(OPT['mb'], lambda: emit([flag_load(32)]))
put(OPT['mc'], lambda: (flag_check(32), fine('ck5m'), emit(ul[16:20])))
for k in range(4):
    put(max(OPT['mc'], kend) + 2 + 2 * k, (lambda y: lambda: emit([y]))(ul[20 + k]))
put(OPT['fa'], lambda: (flag_after('u6', 64), fine('fl5b')))
put(OPT['fb'], lambda: emit([flag_load(64)]))
put(OPT['fc'], lambda: (flag_check(64), fine('ck5b'), emit(ul[24:])))
put(max(OPT['fc'] + 4, 64), next_m1)
gemm_r(XV, 4, 0, 28, ureg, WR5, WD, LOC_WO, first_c=True, fill=fill, preload=False, rot=ROT)


def x_pack():
    for k in range(8):
        p(f'v_cvt_pk_bf16_f32 {v(XP + k)}, {v(XV + 2 * k)}, {v(XV + 2 * k + 1)}')


stamp('K5')
if_layer(1)
x_pack()
for o in range(2):
    p(f'ds_write_b128 {v(OW)}, {v(XP + 4 * o, 4)} offset:{16 * o}')
for k in range(2):
    p(f'ds_read_b128 {v(X1R + 4 * k, 4)}, {v(OR)} offset:{1152 * k}')
for k in range(2):
    p(f'buffer_store_dwordx4 {v(X1R + 4 * k, 4)}, {v(OG)}, {s(R_OUT, 4)}, {s(sT + 14 + k)} offen sc1')
if PROF:
    p('s_waitcnt vmcnt(0)')
    stamp('end')
    p(f's_lshl_b32 {s(sT)}, s2, 2')
    p(f's_add_u32 {s(sT)}, {s(sT)}, {s(sW)}')
    p(f's_lshl_b32 {s(sT)}, {s(sT)}, 8')
    p(f's_add_u32 {s(sT)}, {s(sT)}, {PROFO:#x}')
    p(f'v_lshrrev_b32 {v(T)}, 2, {v(vL16)}')
    p(f'buffer_store_dword {v(vProf)}, {v(T)}, {s(R_WS, 4)}, {s(sT)} offen')
if OPT['diag']:
    p('s_waitcnt vmcnt(0)')
    stamp('end')
    p(f's_sub_u32 s101, s101, {s(sPidx)}')
    p('s_min_u32 s101, s101, 20000')
    p('s_mul_i32 s101, s101, 10')
    p('s_add_u32 s101, s101, 10000')
    p('L_spin:')
    p(f's_memrealtime {s(sStamp, 2)}')
    p('s_waitcnt lgkmcnt(0)')
    p(f's_sub_u32 {s(sStamp)}, {s(sStamp)}, {s(sPidx)}')
    p(f's_cmp_lt_u32 {s(sStamp)}, s101')
    p('s_cbranch_scc1 L_spin')
p('L_exit:')
p('s_endpgm')
p.end()
local_stats(XV, 16, T)
reduce_g(T, T + 1)
publish_stats(0x40000)
p('s_barrier')
if OPT['ctp'] == 0:
    ct_dma(228)
emit(wz2[:OPT['wzp0']])
x_pack()
p(f's_mov_b32 {s(sL)}, 1')
p(f's_mov_b32 {s(sLocH)}, {s(sLoc)}')
p(f's_mov_b32 {s(sLocU)}, 0')
if not OPT['reuse']:
    p(f's_add_u32 {s(R_WL)}, {s(R_WL)}, {LSTRIDE:#x}')
    p(f's_addc_u32 {s(R_WL + 1)}, {s(R_WL + 1)}, 0')
p(f's_mov_b32 {s(R_WL + 2)}, {LSTRIDE:#x}')
p(f's_mov_b32 {s(R_X)}, {s(R_WL)}')
p(f's_mov_b32 {s(R_X + 1)}, {s(R_WL + 1)}')
p(f's_mov_b32 {s(R_X + 2)}, {LSTRIDE:#x}')
p(f's_add_u32 {s(sXb)}, {s(sK2)}, {H_:#x}')
p(f's_add_u32 {s(sXo)}, {s(sXb)}, 2048')
p(f'v_mov_b32 {v(vXr)}, {v(vK2)}')
p(f'v_mov_b32 {v(vXw)}, {v(vTr)}')
p(f'v_add_u32 {v(vXw + 1)}, 576, {v(vTr)}')
p(f'v_mov_b32 {v(vHw)}, {v(vHw2)}')
p(f's_add_u32 {s(sSt)}, {s(sSt)}, 0x20000')
for r in (() if OPT['vs'] else (sArr, sRep)) + (sS2, sS4, sP4, sS5, sF2s, sF2l):
    p(f's_add_u32 {s(r)}, {s(r)}, 0x20000')
for o in range(2):
    p(f's_add_u32 {s(sT + 4 + o)}, {s(sT + 3)}, {H_ + 8192 * o:#x}')
emit([gather_loads(0x20000)])
gather_finish(0x20000)
gstore([f'buffer_store_dwordx4 {v(XP + 4 * o, 4)}, {v(vL16)}, {s(R_WL, 4)}, {s(sT + 4 + o)} offen' for o in range(2)], 'x2')
if OPT['ctp'] == 1:
    ct_dma(228)
emit(wz2[OPT['wzp0']:P1])
p('s_branch L_layer')

p.resolve([('pro', set()), ('body', {'L0'}), ('body', {'L1'})], ['W0', 'G0', 'LOC', 'RETRY'])

hdr = open('interleave_layers__spectral_fnet__mixer_gmlp__prompt.s.ref').read().split('\n')
out = [l for l in hdr if l.startswith(';') and '@launch' not in l][:14]
if PROF:
    k = STAMPS.index('T')
    out.append('; stamps: ' + ' '.join(STAMPS[:-1] + [x for x in STAMPS[k:] if x[0] != '*']))
out.append(f'; @launch grid=(256,1,1) block=(256,1,1) lds={LDS_BYTES}')
out += ['.amdgcn_target "amdgcn-amd-amdhsa--gfx950"', '.text', f'.globl {NAME}', '.p2align 8', f'.type {NAME},@function']
out.append(p.text())
out.append('.p2align 8')
out.append('.type L_table,@object')
out.append('L_table:')
tab = const_table()
for i in range(0, tab.size, 8):
    out.append('.long ' + ','.join(f'{x:#x}' for x in tab[i:i + 8]))
out.append(f'.size L_table, {tab.size * 4}')
out.append('L_end:')
out += ['.section .rodata,"a"', '.p2align 6', f'.amdhsa_kernel {NAME}',
        '  .amdhsa_next_free_vgpr 512', '  .amdhsa_next_free_sgpr 102', '  .amdhsa_accum_offset 256',
        '  .amdhsa_group_segment_fixed_size 0', '  .amdhsa_kernarg_size 104', '  .amdhsa_user_sgpr_count 2',
        '  .amdhsa_user_sgpr_kernarg_segment_ptr 1', '  .amdhsa_system_sgpr_workgroup_id_x 1',
        '  .amdhsa_float_denorm_mode_32 3', '.end_amdhsa_kernel', '']
open(sys.argv[1], 'w').write('\n'.join(out))
print(p.stats(), file=sys.stderr)
```

```python
import sys
import struct
import numpy as np
from asmlib import Prog, v, a, s

NAME = 'interleave_layers__spectral_fnet__mixer_gmlp__prompt_kernel'
OPT = dict(prof=0, k4mfma=1, k4load=1, k4epi=1, zd=12, pre3=6, pre5=16, loc=1, locd=7, x1pos=58, lg=0, pg=0, sg=0, wspev=8, x1=2,
           g2ev=12, z1a=0, gpos=18, z1arr=6, wo4=16, ctp=2, wzp0=0, wzp1=0, wzp2=0, wzp3=8, reuse=0, tlb=0, e1=4, e2=14, e3=24, f5a=87, l5a=95, mb=8, mc=20, fa=36, fb=48, fc=60, hpf=0, we=2, hsp=4, algn=0, xe=4, gb=1, xa=8, to=40000, wf2=1, cmn='044444', l0a=2, noe=0, pz=1, pv=4, vs=2, zp0=0, zin=1, zsp=3, zs=1, q4=8, upk=4, gsh=0, cpf=12, k1=3, k2=9, k3=15, mf=111, fixev=0, woa=8, wosp=4, g1w=1, l0n='0444466', ann=0, fix='6/7///', ntail=12, lnow=4, fine=0, sched='//d1/d2r0d3r1d4p0r2d5p1r3d6p2r4qd7p3/r5p4/a6p5/a7/', ctpos=0, pk=3, nomean=0,  z2sp=4, early=1, wfirst=0, nobg=0, few=0, diag='')
for arg in sys.argv[2:]:
    k, val = arg.split('=')
    OPT[k] = val if k in ('diag', 'sched', 'fix', 'l0n', 'cmn') else int(val)
PROF = OPT['prof']
LG = (' sc1', '', ' nt', ' sc0')[OPT['lg']]
PG = (' sc1', '', ' nt')[OPT['pg']]
SG = ('', ' nt', ' sc0')[OPT['sg']]


WI, WO, FLAGS, STATS, X2, PROFO = 0, 0x200000, 0x300000, 0x340000, 0x400000, 0x600000
LBASE, LSTRIDE = 0x800000, 0x1000000
V_, H_, X1_, Z_, U_ = 0, 0x200000, 0x400000, 0x600000, 0xA00000
WB, CT, SCR, LDS_BYTES = 0, 114688, 114688 + 22528, 163840
CT_FA, CT_TW, CT_FB, CT_M1 = 0, 6144, 10240, 14336

R_X, R_WIN, R_WSP, R_WOUT, R_OUT, R_WS, R_DBG, R_BSP, R_WL = 4, 8, 12, 16, 20, 24, 28, 32, 36
sW, sC, sB, sL, sTO = 40, 41, 42, 43, 44
sVst, sVld, sH, sK2, sXo, sXb, sZst, sZld, sUst, sUld = 45, 46, 47, 48, 49, 50, 51, 52, 53, 54
sLoc, sSt, sWI, sWO, sWsp, sSelLo, sSelHi, sPidx, sOnes = 55, 56, 57, 58, 59, 60, 61, 62, 63
sArr, sRep, sS2, sS4, sS5, sB128, sDm, sDo = 64, 65, 66, 67, 68, 69, 70, 71
sF2s, sF2l = 0, 1
sB4, sP4, sG0, sLocH, sLocU = 3, 88, 75, 89, 100
sT = 72
sStamp = 90
vL16, vTw, vK2, vXr, vVld, vVst, vBsp, vZst = 0, 1, 2, 3, 4, 5, 6, 7
vC2 = 8
vHw, vHr, vUw, vUr, vStl, vL8, vTr, vPoll, vArr, vProf, vGK = 16, 17, 18, 19, 20, 21, 22, 23, 24, 25, 26
vRed = 28
T = 32
XV = 40
M1 = 184


def f2u(x):
    return struct.unpack('<I', struct.pack('<f', x))[0]


def bf16(x):
    u = np.ascontiguousarray(x, dtype=np.float32).view(np.uint32)
    return ((u + 0x7FFF + ((u >> 16) & 1)) >> 16).astype(np.uint32)


def const_table():
    l = np.arange(64)[:, None]
    j = np.arange(8)[None, :]
    nn, h = l & 31, l >> 5
    e1 = 16 * ((nn >> 2) & 1) + 4 * (nn >> 3) + (nn & 3)
    frags = []

    def pack(x):
        x = np.where(np.abs(x) < 1e-12, 0.0, x)
        b = bf16(x)
        return (b[:, 0::2] | (b[:, 1::2] << 16)).astype(np.uint32)
    ang = [2 * np.pi * ((16 * dh + 8 * h + j) * e1 % 32) / 32 for dh in range(2)]
    frags += [pack(np.cos(ang[0])), pack(np.cos(ang[1])), pack(np.sin(ang[0])), pack(np.sin(ang[1])),
              pack(-np.sin(ang[0])), pack(-np.sin(ang[1]))]
    d2 = 8 * (j >> 2) + 4 * h + (j & 3)
    tw = 2 * np.pi * (d2 * e1) / 512
    tc = np.cos(tw).astype(np.float32).view(np.uint32)
    ts = np.sin(tw).astype(np.float32).view(np.uint32)
    frags += [tc[:, :4], tc[:, 4:], ts[:, :4], ts[:, 4:]]
    ps = 2 * np.pi * (d2 * (nn & 15) % 16) / 16
    for row in range(2):
        m = ((nn >> 4) == row)
        frags += [pack(np.cos(ps) * m), pack(np.sin(ps) * m)]
    n, g = l & 15, l >> 4
    for jq in range(4):
        for ks in range(2):
            rho = 32 * ks + 16 * (j >> 2) + 4 * g + (j & 3)
            s1 = 16 * (rho >> 4) + 2 * (rho & 7) + ((rho >> 3) & 1)
            jj = 8 * jq + (n >> 1)
            th = 2 * np.pi * (s1 * jj % 64) / 64
            x = np.where((n & 1) == 0, np.cos(th), np.where(jj == 0, (-1.0) ** s1, -np.sin(th)))
            frags.append(pack(x))
    tab = np.concatenate([np.ascontiguousarray(f).reshape(-1) for f in frags])
    assert tab.size == 22 * 256
    return tab


p = Prog()
M16 = 'v_mfma_f32_16x16x32_bf16'
M32 = 'v_mfma_f32_32x32x16_bf16'


STAMPS = []


def stamp(name):
    if OPT['few'] and name in ('karg', 'start', 'setup', 'init', 'arr1', 'Vst', 'pub3', 'z1a', 'S3', 'Zst', 'arr4', 'win4') + (() if OPT['fine'] else ('Vld', 'K2', 'arr2', 'K5')):
        return
    STAMPS.append(name)
    if OPT['diag'] and OPT['diag'][:-1] == name:
        p(f's_memrealtime {s(sStamp, 2)}')
        p('s_waitcnt lgkmcnt(0)')
        p(f's_cmp_eq_u32 {s(sL)}, {OPT["diag"][-1]}')
        p(f's_cselect_b32 s101, {s(sStamp)}, s101')
    if PROF:
        p(f'{"s_memtime" if PROF == 2 else "s_memrealtime"} {s(sStamp, 2)}')
        p('s_waitcnt lgkmcnt(0)')
        p('s_mov_b32 s101, m0')
        p(f's_mov_b32 m0, {s(sPidx)}')
        p(f'v_writelane_b32 {v(vProf)}, {s(sStamp)}, m0')
        p('s_mov_b32 m0, s101')
        p(f's_add_u32 {s(sPidx)}, {s(sPidx)}, 1')


def fine(name):
    if OPT['fine'] == 1:
        stamp(name)


def srd(r, lo, hi, size):
    p(f's_mov_b32 {s(r)}, {s(lo)}')
    p(f's_and_b32 {s(r + 1)}, {s(hi)}, 0xffff')
    p(f's_mov_b32 {s(r + 2)}, {size:#x}')
    p(f's_mov_b32 {s(r + 3)}, 0x20000')


def if_wave0():
    p(f's_cmp_eq_u32 {s(sW)}, 0')
    p.begin('W0', 's_cbranch_scc0')


def if_layer(l):
    p(f's_cmp_eq_u32 {s(sL)}, {l}')
    p.begin(f'L{l}', 's_cbranch_scc0')


def spin_tail(top, done):
    p(f's_cbranch_vccz {done}')
    p(f's_sub_u32 {s(sTO)}, {s(sTO)}, 1')
    p(f's_cbranch_scc0 {top}')
    p(f's_mov_b32 {s(sTO)}, 0')
    p(f'{done}:')


def arrive(soff, nrep):
    p('s_barrier')
    if_wave0()
    p(f'v_mov_b32 {v(T)}, 1')
    p(f's_mov_b64 exec, {(1 << nrep) - 1:#x}')
    p(f'buffer_atomic_add {v(T)}, {v(vArr)}, {s(R_WS, 4)}, {s(soff)} offen sc1')
    p('s_mov_b64 exec, -1')
    p.end()


def gstore(lines, tag=None, local=False, flag=None):
    if not OPT['loc'] or (tag and not local):
        for x in lines:
            p(x + ' sc1', tag=tag)
        return
    p(f's_cmp_eq_u32 {s(flag or sLoc)}, 0')
    p.begin_ool('!LOC', 's_cbranch_scc1')
    for x in lines:
        p(x + ' sc1', tag=tag)
    p.end_ool(('LOC', lambda: [p(x + SG, tag=tag) for x in lines]))


def arrive_group(soff, off=0):
    p('s_barrier')
    if_wave0()
    p(f'v_mov_b32 {v(T)}, 1')
    p(f's_add_u32 {s(99)}, {s(soff)}, {s(sB4)}')
    p('s_mov_b64 exec, 1')
    gstore([f'buffer_store_dword {v(T)}, off, {s(R_WS, 4)}, {s(99)} offset:{off}'])
    p('s_mov_b64 exec, -1')
    p.end()


def poll(soff, vaddr, need, tag=None):
    if_wave0()
    top, done = p.label('poll'), p.label('pdone')
    p(f'{top}:')
    if vaddr is not None:
        p(f'buffer_load_dword {v(T)}, {v(vaddr)}, {s(R_WS, 4)}, {s(soff)} offen' + (PG if vaddr == vGrp else ' sc1'))
    else:
        p(f'buffer_load_dword {v(T)}, off, {s(R_WS, 4)}, {s(soff)} sc1')
    p('s_waitcnt vmcnt(0)')
    p(f'v_cmp_ne_u32 vcc, {need}, {v(T)}')
    spin_tail(top, done)
    p.end()
    if tag:
        p.wait_vm(tag)
    p('s_barrier')


def reduce_g(x, y):
    p(f'v_permlane16_swap_b32 {v(x)}, {v(y)}')
    p(f'v_add_f32 {v(x)}, {v(x)}, {v(y)}')
    p(f'v_mov_b32 {v(y)}, {v(x)}')
    p(f'v_permlane32_swap_b32 {v(x)}, {v(y)}')
    p(f'v_add_f32 {v(x)}, {v(x)}, {v(y)}')
    p(f'v_mov_b32 {v(y)}, {v(x)}')
    p(f'v_permlane16_swap_b32 {v(x)}, {v(y)}')


def finish_stats(x, n):
    y, m = x + 1, x + 2
    p(f'v_mul_f32 {v(m)}, {f2u(1.0 / n):#x}, {v(x)}')
    p(f'v_mul_f32 {v(y)}, {f2u(1.0 / n):#x}, {v(y)}')
    p(f'v_fma_f32 {v(y)}, -{v(m)}, {v(m)}, {v(y)}')
    p(f'v_max_f32 {v(y)}, 0, {v(y)}')
    p(f'v_add_f32 {v(y)}, {f2u(1e-5):#x}, {v(y)}')
    p(f'v_rsq_f32 {v(x)}, {v(y)}')
    p(f'v_mul_f32 {v(y)}, -{v(m)}, {v(x)}')


def norm_pack(src, n, st, tmp, dst):
    for i in range(0, n, 2):
        p(f'v_pk_fma_f32 {v(tmp + i, 2)}, {v(src + i, 2)}, {v(st, 2)}, {v(st, 2)} op_sel:[0,0,1] op_sel_hi:[1,0,1]')
    for i in range(0, n, 2):
        p(f'v_cvt_pk_bf16_f32 {v(dst + i // 2)}, {v(tmp + i)}, {v(tmp + i + 1)}')


def local_stats(src, n, out):
    sa, sq = out + 2, out + 4
    p(f'v_pk_add_f32 {v(sa, 2)}, {v(src, 2)}, {v(src + 2, 2)}')
    p(f'v_pk_mul_f32 {v(sq, 2)}, {v(src, 2)}, {v(src, 2)}')
    p(f'v_pk_fma_f32 {v(sq, 2)}, {v(src + 2, 2)}, {v(src + 2, 2)}, {v(sq, 2)}')
    for i in range(4, n, 2):
        p(f'v_pk_add_f32 {v(sa, 2)}, {v(sa, 2)}, {v(src + i, 2)}')
        p(f'v_pk_fma_f32 {v(sq, 2)}, {v(src + i, 2)}, {v(src + i, 2)}, {v(sq, 2)}')
    p(f'v_add_f32 {v(out)}, {v(sa)}, {v(sa + 1)}')
    p(f'v_add_f32 {v(out + 1)}, {v(sq)}, {v(sq + 1)}')


def unpack(src, n, dst):
    for i in range(n):
        p(f'v_lshlrev_b32 {v(dst + 2 * i)}, 16, {v(src + i)}')
        p(f'v_and_b32 {v(dst + 2 * i + 1)}, 0xffff0000, {v(src + i)}')


def publish_stats(area):
    p(f's_add_u32 {s(sT)}, {s(sSt)}, {s(sB128)}')
    if area:
        p(f's_add_u32 {s(sT)}, {s(sT)}, {area:#x}')
    p('s_mov_b64 exec, 0xffff')
    gstore([f'buffer_store_dwordx2 {v(T, 2)}, {v(vStl)}, {s(R_WS, 4)}, {s(sT)} offen'])
    p('s_mov_b64 exec, -1')


def gather_loads(area):
    return [(f's_add_u32 {s(99)}, {s(sSt)}, {area:#x}', None),
            (f'buffer_load_dwordx2 {v(T + 4, 2)}, {v(vStl)}, {s(R_WS, 4)}, {s(99)} offen{PG}', None),
            (f'buffer_load_dwordx2 {v(T + 6, 2)}, {v(vStl)}, {s(R_WS, 4)}, {s(99)} offen offset:128{PG}', None)]


def retry_until(loads, test, tested=False, after=None):
    if not tested:
        test()
    p.begin_ool('RETRY', 's_cbranch_vccnz')
    top, done = p.label('rt'), p.label('rdone')
    p(f'{top}:')
    emit([loads])
    p('s_waitcnt vmcnt(0)')
    test()
    spin_tail(top, done)
    if after:
        emit([after])
    p.end_ool()


def gather_finish(area):
    def test():
        p(f'v_add_f32 {v(T)}, {v(T + 4)}, {v(T + 6)}')
        p(f'v_add_f32 {v(T + 1)}, {v(T + 5)}, {v(T + 7)}')
        p(f'v_cmp_u_f32 vcc, {v(T)}, {v(T + 1)}')
    retry_until(gather_loads(area), test)
    reduce_g(T, T + 1)


LOC_Z2 = lambda i: 1024 * i
LOC_Z1 = lambda i: 1024 * (i - 48) if i >= 48 else CT + 1024 * i
LOC_WO = lambda i: 1024 * (i - 48) if i >= 48 else 65536 + 1024 * i


def w_dma_ops(sbase, extra, loc, name):
    ops = []
    for j in range(7):
        for i in range(4):
            o = []
            if i == 0:
                o.append((f's_add_u32 m0, {s(sDm)}, {loc(16 * j):#x}', None))
                o.append((f's_add_u32 {s(sDo)}, {s(sbase)}, {extra + 16384 * j:#x}', None))
            if OPT['nobg'] & 1:
                o.append(('s_nop 0', None))
            else:
                o.append((f'buffer_load_dwordx4 {v(vL16)}, {s(R_WS, 4)}, {s(sDo)} offen offset:{i * 1024} lds', f'{name}{j}'))
            ops.append(o)
    return ops


def emit(groups):
    for g in groups:
        for text, tag in g:
            p(text, tag=tag)


def wsp_dma_ops(batch):
    q, ih = batch >> 1, batch & 1
    ops = []
    for il in range(4):
        for rh in range(2):
            if batch < 2:
                imm, so = 128 * il, 80 + batch
                o = [(f's_add_u32 m0, {s(78 + batch)}, {1024 + 2048 * il + 1024 * rh - imm}', None)]
            else:
                imm, so = 512 * ih + 128 * il, sDo
                o = [(f's_add_u32 m0, {s(sWsp)}, {1024 + 8192 * (batch % 3) + 2048 * il + 1024 * rh - imm}', None)]
                if not ops:
                    o += [(f's_add_u32 {s(sDo)}, {s(sW)}, {q}', None), (f's_and_b32 {s(sDo)}, {s(sDo)}, 3', None),
                          (f's_lshl_b32 {s(sDo)}, {s(sDo)}, 21', None)]
            o.append((f'buffer_load_dwordx4 {v(vWspA + rh)}, {s(R_WSP, 4)}, {s(so)} offen offset:{imm} lds', f'wsp{max(batch, 1)}'))
            ops.append(o)
    return ops


def table_addr(dst, soff):
    p(f'v_add_u32 {v(dst)}, {s(soff)}, {v(vL16)}')
    p(f'v_mov_b32 {v(dst + 1)}, {s(93)}')
    p(f'v_add_co_u32 {v(dst)}, vcc, {s(92)}, {v(dst)}')
    p(f'v_addc_co_u32 {v(dst + 1)}, vcc, 0, {v(dst + 1)}, vcc')


def code_prefetch(bit, lo):
    if not OPT['cpf'] & bit:
        return
    if_layer(0)
    p(f's_lshr_b32 {s(99)}, s2, 3')
    p(f's_lshl_b32 {s(99)}, {s(99)}, 2')
    p(f's_add_u32 {s(99)}, {s(99)}, {s(sW)}')
    p(f's_lshl_b32 {s(99)}, {s(99)}, 7')
    p(f's_sub_u32 {s(98)}, {s(92)}, L_table-{lo}')
    p(f's_subb_u32 {s(97)}, {s(93)}, 0')
    p(f's_add_u32 {s(98)}, {s(98)}, {s(99)}')
    p(f's_addc_u32 {s(97)}, {s(97)}, 0')
    p(f'v_mov_b32 {v(T + 6)}, {s(98)}')
    p(f'v_mov_b32 {v(T + 7)}, {s(97)}')
    p('s_mov_b64 exec, 1')
    p(f'global_load_dword {v(251)}, {v(T + 6, 2)}, off')
    p('s_mov_b64 exec, -1')
    p.end()


def poison(site, reg):
    todo = [(sZst, vZst, 0)] if OPT['zs'] and OPT['pz'] == site else []
    todo += [(sVst, vVst, 0), (sVst, vVst, 0x10000)] if OPT['vs'] and OPT['pv'] == site else []
    if not todo:
        return
    if_layer(0)
    for k in range(4):
        p(f'v_mov_b32 {v(reg + k)}, -1')
    for base, va, off in todo:
        p(f's_add_u32 {s(99)}, {s(base)}, {LSTRIDE + off:#x}')
        p(f'buffer_store_dwordx4 {v(reg, 4)}, {v(va)}, {s(R_WL, 4)}, {s(99)} offen sc1', tag='pub' if site == 3 else None)
    p.end()


def m1_load(dst):
    p(f's_lshl_b32 {s(99)}, {s(sW)}, 11')
    p(f's_add_u32 {s(99)}, {s(99)}, {CT_M1}')
    table_addr(dst, 99)
    for k in range(2):
        p(f'global_load_dwordx4 {v(M1 + 4 * k, 4)}, {v(dst, 2)}, off offset:{1024 * k}')


def ct_dma(dst):
    p(f's_mul_i32 {s(99)}, {s(sW)}, 3584')
    p(f's_add_u32 m0, {s(99)}, {CT}')
    table_addr(dst, 99)
    for off in (0, 1024, 2048):
        p(f'global_load_lds_dwordx4 {v(dst, 2)}, off offset:{off}', tag='ct')
    p('s_mov_b32 exec_hi, 0')
    p(f'global_load_lds_dwordx4 {v(dst, 2)}, off offset:3072', tag='ct')
    p('s_mov_b64 exec, -1')


def wsp_dma(batch):
    p.bg = wsp_dma_ops(batch)
    p.bg_emit()


def wsp_read(batch, reg):
    p.wait_vm(f'wsp{max(batch, 1)}')
    for il in range(4):
        for o in range(2):
            p(f'ds_read_b128 {v(reg + 4 * (2 * il + o), 4)}, {v(vWspR + o)} offset:{8192 * (batch % 3) + 2048 * il}', tag=f'wr{batch}')


def wsp_park(batch):
    q, ih = batch >> 1, batch & 1
    p.wait_vm(f'wsp{max(batch, 1)}')
    for il in range(4):
        for o in range(2):
            p(f'ds_read_b128 {a(64 * q + 32 * o + 4 * (4 * ih + il), 4)}, {v(vWspR + o)} offset:{8192 * (batch % 3) + 2048 * il}', tag=f'wr{batch}')


def wsp_fix(units, reg, first=()):
    if not units and not first:
        return
    if_layer(0)
    emit(first)
    for u in units:
        base = 32 * int(u)
        for k in range(32):
            p(f'v_accvgpr_read_b32 {v(reg + k)}, {a(base + k)}')
        k = 0
        for ip in range(4):
            for al in range(8):
                t = reg + 32 + (k & 3)
                k += 1
                lo, hi = reg + 8 * ip + (al >> 1), reg + 8 * ip + 4 + (al >> 1)
                p(f'v_perm_b32 {v(t)}, {v(hi)}, {v(lo)}, {s(sSelHi if al & 1 else sSelLo)}')
                p(f'v_accvgpr_write_b32 {a(base + 4 * al + ip)}, {v(t)}')
    p.end()


def wsp_perm(batch, reg):
    q, ih = batch >> 1, batch & 1
    k = 0
    for ipl in range(2):
        for o in range(2):
            for al in range(8):
                t = T + (k & 7)
                k += 1
                lo, hi = reg + 4 * (4 * ipl + o) + (al >> 1), reg + 4 * (4 * ipl + 2 + o) + (al >> 1)
                p(f'v_perm_b32 {v(t)}, {v(hi)}, {v(lo)}, {s(sSelHi if al & 1 else sSelLo)}')
                p(f'v_accvgpr_write_b32 {a((q * 16 + 8 * o + al) * 4 + 2 * ih + ipl)}, {v(t)}')


def wring_read(idx, ring, depth, loc, rot=0):
    base, off = (vL16, vL16hi, vL16h2)[loc(idx) >> 16], loc(idx) & 0xffff
    p(f'ds_read_b128 {v(ring + 4 * ((idx + rot) % depth), 4)}, {v(base)} offset:{off}', tag=f'w{idx}')


def gemm_r(acc, nt, ks0, ks1, act, ring, depth, loc, first_c=None, fill=None, preload=True, last=None, rot=0):
    fill = dict(fill or {})
    if OPT['nobg'] & 2 and loc is LOC_Z1:
        raise SystemExit('nobg&2 unsupported')
    lo, hi = nt * ks0, nt * ks1
    if preload:
        for idx in range(lo, min(lo + depth, last or hi)):
            wring_read(idx, ring, depth, loc)
    for idx in range(lo, hi):
        ks, t = divmod(idx, nt)
        if (idx - lo) % OPT['we'] == 0:
            p.wait_lgkm(f'w{min(idx + OPT["we"] - 1, hi - 1)}')
        c = v(acc + 4 * t, 4) if (ks or first_c) else '0'
        p(f'{M16} {v(acc + 4 * t, 4)}, {v(ring + 4 * ((idx + rot) % depth), 4)}, {v(act(ks) if callable(act) else act + 4 * ks, 4)}, {c}')
        if idx + depth < (last or hi):
            wring_read(idx + depth, ring, depth, loc, rot)
        f = fill.pop(idx, None)
        if callable(f):
            f()
        elif f:
            emit([f])
    assert not fill


def spread(groups, first, step):
    return {first + step * k: g for k, g in enumerate(groups)}


def gelu(x, n, tmp):
    for i in range(0, n, 4):
        t = tmp + (i & 4)
        for k in (0, 2):
            p(f'v_pk_mul_f32 {v(t + k, 2)}, {v(x + i + k, 2)}, {v(x + i + k, 2)}')
        for k in (0, 2):
            p(f'v_pk_fma_f32 {v(t + k, 2)}, {v(t + k, 2)}, {v(vGK, 2)}, {v(vGK, 2)} op_sel:[0,0,1] op_sel_hi:[1,0,1]')
        for k in (0, 2):
            p(f'v_pk_mul_f32 {v(t + k, 2)}, {v(t + k, 2)}, {v(x + i + k, 2)}')
        for k in range(4):
            p(f'v_exp_f32 {v(t + k)}, {v(t + k)}')
        for k in (0, 2):
            p(f'v_pk_add_f32 {v(t + k, 2)}, {v(t + k, 2)}, 1.0 op_sel_hi:[1,0]')
        for k in range(4):
            p(f'v_rcp_f32 {v(t + k)}, {v(t + k)}')
        for k in (0, 2):
            p(f'v_pk_mul_f32 {v(x + i + k, 2)}, {v(t + k, 2)}, {v(x + i + k, 2)}')


vWspA, vWspR = 244, 236
vHw2, vXw, vGrp = 250, 246, 254
vL16hi, vL16h2 = 252, 255
p.section('pro')
p(f'{NAME}:')
p(f's_cmp_ge_u32 s2, 256')
p('s_cbranch_scc1 L_exit')
p(f's_load_dwordx2 {s(72, 2)}, s[0:1], 0')
p(f's_load_dwordx8 {s(76, 8)}, s[0:1], 48')
p(f's_load_dwordx4 {s(84, 4)}, s[0:1], 80')
p(f's_load_dwordx2 {s(88, 2)}, s[0:1], 96')
if OPT['diag']:
    p(f's_memrealtime {s(sStamp, 2)}')
    p('s_waitcnt lgkmcnt(0)')
    p(f's_mov_b32 {s(sPidx)}, {s(sStamp)}')
    p(f's_mov_b32 s101, {s(sStamp)}')
if PROF:
    p(f'{"s_memtime" if PROF == 2 else "s_memrealtime"} {s(sStamp, 2)}')
p(f's_getpc_b64 {s(92, 2)}')
p('L_pc:')
lane, n_, g_, t0, t1, t2, t3, tid = 100, 101, 102, 103, 104, 105, 106, 107
p(f'v_mov_b32 {v(tid)}, v0')
p(f's_lshr_b32 {s(94)}, s2, 3')
p(f's_lshl_b32 {s(94)}, {s(94)}, 4')
p(f'v_lshrrev_b32 {v(T)}, 4, v0')
p(f'v_add_u32 {v(T)}, {s(94)}, {v(T)}')
p(f'v_lshlrev_b32 {v(T)}, 7, {v(T)}')
p(f'v_min_u32 {v(T)}, L_end-L_pc-4, {v(T)}')
p(f'v_mov_b32 {v(T + 3)}, {s(93)}')
p(f'v_add_co_u32 {v(T + 2)}, vcc, {s(92)}, {v(T)}')
p(f'v_addc_co_u32 {v(T + 3)}, vcc, 0, {v(T + 3)}, vcc')
p(f'global_load_dword {v(253)}, {v(T + 2, 2)}, off')
p(f'v_lshrrev_b32 {v(t0)}, 6, v0')
p(f'v_and_b32 {v(lane)}, 63, v0')
p(f'v_readfirstlane_b32 {s(sW)}, {v(t0)}')
p(f'v_and_b32 {v(n_)}, 15, {v(lane)}')
p(f'v_lshrrev_b32 {v(g_)}, 4, {v(lane)}')
p(f'v_lshlrev_b32 {v(vL16)}, 4, {v(lane)}')
p(f's_lshr_b32 {s(94)}, s2, 3')
p(f's_and_b32 {s(sB)}, {s(94)}, 7')
p(f's_and_b32 {s(95)}, s2, 7')
p(f's_lshl_b32 {s(95)}, {s(95)}, 1')
p(f's_lshr_b32 {s(96)}, {s(94)}, 4')
p(f's_add_u32 {s(95)}, {s(95)}, {s(96)}')
p(f's_sub_u32 {s(96)}, 32, {s(95)}')
p(f's_cmp_eq_u32 {s(95)}, 0')
p(f's_cselect_b32 {s(96)}, 16, {s(96)}')
p(f's_bitcmp1_b32 {s(94)}, 3')
p(f's_cselect_b32 {s(sC)}, {s(96)}, {s(95)}')
p(f's_mov_b32 {s(sL)}, 0')
p(f's_mov_b32 {s(sTO)}, {OPT["to"]}')
p(f's_lshl_b32 {s(sB128)}, {s(sB)}, 7')
p(f's_lshl_b32 {s(sB4)}, {s(sB)}, 2')
p(f's_getreg_b32 {s(sLoc)}, hwreg(HW_REG_XCC_ID)')
p(f's_mov_b32 {s(sOnes)}, 0x3f803f80')
p(f's_mov_b32 {s(sSelLo)}, 0x05040100')
p(f's_mov_b32 {s(sSelHi)}, 0x07060302')
p(f's_lshl_b32 {s(94)}, {s(sW)}, 9')
p(f's_add_u32 {s(94)}, {s(94)}, {s(sC)}')
p(f'v_and_b32 {v(t0)}, 28, {v(lane)}')
p(f'v_lshlrev_b32 {v(t0)}, 4, {v(t0)}')
p(f'v_and_b32 {v(t1)}, 32, {v(lane)}')
p(f'v_add3_u32 {v(t0)}, {v(t0)}, {v(t1)}, {s(94)}')
p(f'v_lshlrev_b32 {v(t2)}, 10, {v(t0)}')
p(f'v_and_b32 {v(t1)}, 3, {v(lane)}')
p(f'v_lshl_add_u32 {v(t0)}, {v(t1)}, 5, {v(t2)}')
p(f'v_lshl_add_u32 {v(t2)}, {v(t1)}, 4, {v(t2)}')
p(f'v_and_b32 {v(t3)}, 7, {v(n_)}')
p(f'v_lshlrev_b32 {v(t3)}, 6, {v(t3)}')
p(f'v_and_b32 {v(t1)}, 8, {v(n_)}')
p(f'v_lshlrev_b32 {v(t1)}, 2, {v(t1)}')
p(f'v_add3_u32 {v(t3)}, {v(t3)}, {v(t1)}, {s(94)}')
p(f'v_lshlrev_b32 {v(t3)}, 1, {v(t3)}')
p(f's_lshl_b32 {s(96)}, {s(sC)}, 2')
p(f's_add_u32 {s(96)}, {s(96)}, {s(sW)}')
p(f's_lshl_b32 {s(sSt)}, {s(96)}, 10')
p(f's_add_u32 {s(sSt)}, {s(sSt)}, {STATS:#x}')
p(f's_lshl_b32 {s(96)}, {s(sC)}, 10')
p(f's_add_u32 {s(sS2)}, {s(96)}, {FLAGS + 0x10000:#x}')
p(f's_lshl_b32 {s(96)}, {s(sW)}, 7')
p(f's_add_u32 {s(96)}, {s(96)}, 256')
p(f's_add_u32 {s(sS5)}, {s(96)}, {s(sS2)}')
p(f'v_lshlrev_b32 {v(vStl)}, 3, {v(n_)}')
p(f'v_lshl_add_u32 {v(vStl)}, {v(g_)}, 8, {v(vStl)}')
p(f's_lshl_b32 {s(96)}, {s(sB)}, 2')
p(f's_add_u32 {s(96)}, {s(96)}, {s(sW)}')
p(f's_mul_i32 {s(sZld)}, {s(96)}, 114688')
p(f's_add_u32 {s(sZld)}, {s(sZld)}, {Z_:#x}')
p(f's_and_b32 {s(96)}, {s(sC)}, 7')
p(f's_lshl_b32 {s(96)}, {s(96)}, 10')
p(f's_lshr_b32 {s(97)}, {s(sC)}, 3')
p(f's_lshl_b32 {s(97)}, {s(97)}, 8')
p(f's_add_u32 {s(96)}, {s(96)}, {s(97)}')
p(f's_add_u32 {s(sZst)}, {s(sZld)}, {s(96)}')
p(f'v_and_b32 {v(T)}, 1, {v(g_)}')
p(f'v_lshlrev_b32 {v(T)}, 14, {v(T)}')
p(f'v_and_b32 {v(T + 1)}, 2, {v(g_)}')
p(f'v_lshl_add_u32 {v(T)}, {v(T + 1)}, 12, {v(T)}')
p(f'v_lshl_add_u32 {v(vZst)}, {v(n_)}, 4, {v(T)}')
EI = 64
for k in range(4):
    p(f'v_mov_b32 {v(116 + k)}, -1')
p(f'v_mov_b32 {v(EI)}, -1')
p(f'v_mov_b32 {v(EI + 1)}, -1')
p(f'v_mov_b32 {v(EI + 2)}, {s(sLoc)}')
p(f'v_mov_b32 {v(EI + 3)}, 0')
p(f'v_and_b32 {v(EI + 4)}, 16, {v(vL16)}')
p(f'v_lshlrev_b32 {v(EI + 4)}, 13, {v(EI + 4)}')
p(f'v_and_b32 {v(EI + 5)}, 0x60, {v(vL16)}')
p(f'v_or_b32 {v(EI + 4)}, {v(EI + 4)}, {v(EI + 5)}')
p('s_waitcnt lgkmcnt(0)')
if PROF:
    p(f'v_mov_b32 {v(vProf)}, 0')
    p(f'v_writelane_b32 {v(vProf)}, {s(sStamp)}, 0')
    p(f's_mov_b32 {s(sPidx)}, 1')
    STAMPS.append('entry')
stamp('karg')
srd(R_X, 72, 73, 2097152)
srd(R_WS, 88, 89, LBASE)
XR = 120


def x_loads(i0, i1):
    for i in range(i0, i1):
        if i == 0:
            p(f'buffer_load_dwordx4 {v(XR, 4)}, {v(t0)}, {s(R_X, 4)}, {s(sB128)} offen')
            p(f'buffer_load_dwordx4 {v(XR + 4, 4)}, {v(t0)}, {s(R_X, 4)}, {s(sB128)} offen offset:16')
            continue
        p(f's_add_u32 {s(99)}, {s(sB128)}, {128 * i}')
        p(f's_and_b32 {s(99)}, {s(99)}, 0x3ff')
        p(f'buffer_load_dwordx4 {v(XR + 8 * i, 4)}, {v(t2)}, {s(R_X, 4)}, {s(99)} offen')
        p(f'buffer_load_dwordx4 {v(XR + 8 * i + 4, 4)}, {v(t2)}, {s(R_X, 4)}, {s(99)} offen offset:64')


x_loads(0, OPT['x1'])
p(f's_lshl_b32 {s(96)}, s2, 2')
p(f's_add_u32 {s(sG0)}, {s(96)}, {s(sW)}')
p(f's_cmp_eq_u32 {s(sG0)}, 3')
p.begin('G0', 's_cbranch_scc0')
p(f'v_lshlrev_b32 {v(T)}, 4, {v(vL16)}')
for k in range(2):
    p(f's_mov_b32 {s(94)}, {FLAGS + 0x4000 * k:#x}')
    p(f'buffer_store_dword {v(EI + 3)}, {v(T)}, {s(R_WS, 4)}, {s(94)} offen sc1', tag='z')
p.end()
p(f's_and_b32 {s(96)}, {s(sB)}, 3')
p(f's_lshl_b32 {s(96)}, {s(96)}, 3')
p(f's_and_b32 {s(97)}, {s(sB)}, 4')
p(f's_add_u32 {s(96)}, {s(96)}, {s(97)}')
p(f's_add_u32 {s(96)}, {s(96)}, {s(sW)}')
p(f's_lshl_b32 {s(96)}, {s(96)}, 2')
p(f's_add_u32 {s(97)}, {s(sS2)}, 768')
p(f's_add_u32 {s(sF2s)}, {s(96)}, {s(97)}')
p(f's_lshl_b32 {s(96)}, {s(sW)}, 5')
p(f's_add_u32 {s(sF2l)}, {s(96)}, {s(97)}')
if OPT['wf2']:
    p('s_mov_b64 exec, 3')
    p(f'buffer_store_dword {v(EI + 3)}, {v(EI + 4)}, {s(R_WS, 4)}, {s(sF2s)} offen sc1', tag='pub')
p('s_mov_b64 exec, 0xffff')
for k in range(0 if OPT['noe'] & 1 else 3):
    p(f's_add_u32 {s(96)}, {s(sSt)}, {s(sB128)}')
    p(f's_add_u32 {s(96)}, {s(96)}, {k * 0x20000:#x}')
    p(f'buffer_store_dwordx2 {v(EI, 2)}, {v(vStl)}, {s(R_WS, 4)}, {s(96)} offen sc1', tag='pub')
p('s_mov_b64 exec, 0xff')
p(f's_add_u32 {s(97)}, {s(sS5)}, {s(sB4)}')
if not OPT['noe'] & 2:
    p(f'buffer_store_dword {v(EI + 3)}, {v(EI + 4)}, {s(R_WS, 4)}, {s(97)} offen sc1', tag='pub')
if_wave0()
p('s_mov_b64 exec, 1')
p(f's_add_u32 {s(96)}, {s(sS2)}, {s(sB4)}')
p(f'buffer_store_dword {v(EI + 2)}, off, {s(R_WS, 4)}, {s(96)} offset:128 sc1', tag='pub')
p('s_mov_b64 exec, 15')
if not OPT['noe'] & 2:
    p(f'buffer_store_dword {v(EI + 3)}, {v(EI + 4)}, {s(R_WS, 4)}, {s(96)} offen sc1', tag='pub')
p(f's_lshl_b32 {s(96)}, s2, 8')
p(f's_add_u32 {s(96)}, {s(96)}, {FLAGS:#x}')
p('s_cmp_lt_u32 s2, 128')
p('s_cselect_b32 exec_lo, 2, 3')
p(f'buffer_store_dword {v(EI + 3)}, {v(EI + 4)}, {s(R_WS, 4)}, {s(96)} offen sc1', tag='pub')
p.end()
p('s_mov_b64 exec, -1')
srd(R_WIN, 76, 77, 512 * 3584)
srd(R_WSP, 78, 79, 2048 * 4096)
srd(R_BSP, 80, 81, 4096)
srd(R_WOUT, 82, 83, 896 * 1024)
srd(R_OUT, 84, 85, 2097152)
srd(R_DBG, 86, 87, 256)
p(f's_add_u32 {s(88)}, {s(88)}, {LBASE:#x}')
p(f's_addc_u32 {s(89)}, {s(89)}, 0')
srd(R_WL, 88, 89, 2 * LSTRIDE)
if OPT['tlb']:
    p(f's_cmp_eq_u32 {s(sW)}, 1')
    p.begin('W1', 's_cbranch_scc0')
    p(f'v_lshlrev_b32 {v(T)}, 21, {v(n_)}')
    p('s_mov_b64 exec, 0xffff')
    if OPT['tlb'] & 1:
        p(f'buffer_load_dword {v(240)}, {v(T)}, {s(R_WL, 4)}, 0 offen sc1')
        p(f'buffer_load_dword {v(239)}, {v(T)}, {s(R_WS, 4)}, 0 offen sc1')
    if OPT['tlb'] & 2:
        p(f'buffer_load_dword {v(238)}, {v(T)}, {s(R_WSP, 4)}, 0 offen')
        p(f'buffer_load_dword {v(223)}, off, {s(R_DBG, 4)}, 0 offset:128 sc1')
    if OPT['tlb'] & 4:
        p(f'buffer_load_dword {v(222)}, off, {s(R_OUT, 4)}, 0 sc1')
    p('s_mov_b64 exec, -1')
    p.end()
stamp('start')
vPi, vPo, vPri, vPro, PK = 112, 114, 242, 243, 224
PST = SCR + 12288
p(f's_add_u32 {s(92)}, {s(92)}, L_table-L_pc')
p(f's_addc_u32 {s(93)}, {s(93)}, 0')
for k in range(2):
    p(f'v_add_u32 {v(T)}, {256 * k}, {v(tid)}')
    p(f'v_mul_u32_u24 {v(T + 1)}, 4682, {v(T)}')
    p(f'v_lshrrev_b32 {v(T + 1)}, 16, {v(T + 1)}')
    p(f'v_mul_u32_u24 {v(T + 2)}, 14, {v(T + 1)}')
    p(f'v_sub_u32 {v(T)}, {v(T)}, {v(T + 2)}')
    p(f'v_and_b32 {v(T + 2)}, 0x38, {v(T + 1)}')
    p(f'v_add_u32 {v(T + 1)}, {v(T + 1)}, {v(T + 2)}')
    p(f'v_mul_u32_u24 {v(T + 1)}, 3584, {v(T + 1)}')
    p(f'v_lshl_add_u32 {v(vPi + k)}, {v(T)}, 4, {v(T + 1)}')
p(f's_and_b32 {s(94)}, {s(sC)}, 7')
p(f's_lshl_b32 {s(94)}, {s(94)}, 6')
p(f's_and_b32 {s(95)}, {s(sC)}, 8')
p(f's_add_u32 {s(94)}, {s(94)}, {s(95)}')
p(f's_mul_i32 {s(94)}, {s(94)}, 3584')
p(f's_lshr_b32 {s(95)}, {s(sC)}, 4')
p(f's_mul_i32 {s(95)}, {s(95)}, 1792')
p(f's_add_u32 {s(94)}, {s(94)}, {s(95)}')
p(f's_mul_i32 {s(95)}, {s(sB)}, 224')
p(f's_add_u32 {s(76)}, {s(94)}, {s(95)}')
p(f'v_lshrrev_b32 {v(T)}, 3, {v(lane)}')
p(f'v_and_b32 {v(T + 1)}, 0x70, {v(vL16)}')
p(f'v_lshl_add_u32 {v(vPo)}, {v(T)}, 10, {v(T + 1)}')
p(f's_and_b32 {s(94)}, {s(sC)}, 7')
p(f's_mul_i32 {s(94)}, {s(94)}, 112')
p(f's_lshr_b32 {s(95)}, {s(sC)}, 3')
p(f's_lshl_b32 {s(95)}, {s(95)}, 5')
p(f's_add_u32 {s(94)}, {s(94)}, {s(95)}')
p(f's_sub_u32 {s(95)}, {s(sC)}, 24')
p(f's_mul_i32 {s(95)}, {s(95)}, 224')
p(f's_add_u32 {s(95)}, {s(95)}, 96')
p(f's_cmp_lt_u32 {s(sC)}, 24')
p(f's_cselect_b32 {s(94)}, {s(94)}, {s(95)}')
p(f's_cselect_b32 {s(95)}, 16, 112')
p(f's_lshr_b32 {s(96)}, {s(sW)}, 1')
p(f's_mul_i32 {s(95)}, {s(95)}, {s(96)}')
p(f's_add_u32 {s(94)}, {s(94)}, {s(95)}')
p(f's_and_b32 {s(95)}, {s(sW)}, 1')
p(f's_lshl_b32 {s(95)}, {s(95)}, 3')
p(f's_add_u32 {s(94)}, {s(94)}, {s(95)}')
p(f's_lshl_b32 {s(94)}, {s(94)}, 10')
p(f's_add_u32 {s(77)}, {s(94)}, {s(sB128)}')
p(f'v_lshrrev_b32 {v(T)}, 2, {v(n_)}')
p(f'v_lshl_add_u32 {v(T)}, {v(g_)}, 3, {v(T)}')
p(f'v_mul_u32_u24 {v(T)}, 224, {v(T)}')
p(f'v_and_b32 {v(T + 1)}, 3, {v(lane)}')
p(f'v_lshl_add_u32 {v(T)}, {v(T + 1)}, 3, {v(T)}')
p(f's_lshl_b32 {s(94)}, {s(sW)}, 5')
p(f's_add_u32 {s(94)}, {s(94)}, {PST}')
p(f'v_add_u32 {v(vPri)}, {s(94)}, {v(T)}')
p(f's_lshl_b32 {s(94)}, {s(sW)}, 3')
p(f's_add_u32 {s(94)}, {s(94)}, {PST + 8192}')
p(f'v_lshl_add_u32 {v(vPro)}, {v(lane)}, 5, {s(94)}')
p(f'v_lshrrev_b32 {v(T)}, 3, {v(lane)}')
p(f'v_lshlrev_b32 {v(T)}, 18, {v(T)}')
p(f'v_and_b32 {v(T + 1)}, 7, {v(lane)}')
p(f'v_xor_b32 {v(T + 1)}, {v(T + 1)}, {v(g_)}')
p(f'v_lshl_add_u32 {v(T)}, {v(T + 1)}, 4, {v(T)}')
p(f's_lshl_b32 {s(94)}, {s(sC)}, 12')
p(f's_add_u32 {s(100)}, {s(sW)}, {s(sB)}')
p(f's_and_b32 {s(100)}, {s(100)}, 3')
p(f's_lshl_b32 {s(95)}, {s(100)}, 10')
p(f's_add_u32 {s(94)}, {s(94)}, {s(95)}')
p(f'v_add_u32 {v(vWspA)}, {s(94)}, {v(T)}')
p(f'v_xor_b32 {v(T)}, 64, {v(vWspA)}')
p(f'v_add_u32 {v(vWspA + 1)}, 0x20000, {v(T)}')
p(f's_mul_i32 {s(sWsp)}, {s(sW)}, 24576')
p(f'v_lshrrev_b32 {v(T)}, 1, {v(n_)}')
p(f'v_xor_b32 {v(T)}, {v(T)}, {v(g_)}')
p(f'v_lshlrev_b32 {v(T)}, 4, {v(T)}')
p(f'v_lshl_add_u32 {v(T)}, {v(n_)}, 7, {v(T)}')
p(f's_add_u32 {s(94)}, {s(sWsp)}, 1024')
p(f'v_add_u32 {v(vWspR)}, {s(94)}, {v(T)}')
p(f'v_xor_b32 {v(vWspR + 1)}, 64, {v(vWspR)}')
p(f's_lshr_b32 {s(94)}, {s(sB)}, 2')
p(f's_lshl_b32 {s(95)}, {s(sW)}, 21')
for k in range(2):
    p(f's_lshl_b32 {s(96)}, {s(94)}, 13')
    p(f's_add_u32 {s(78 + k)}, {s(96)}, {s(sWsp)}')
    p(f's_lshl_b32 {s(96)}, {s(94)}, 9')
    p(f's_add_u32 {s(80 + k)}, {s(96)}, {s(95)}')
    p(f's_xor_b32 {s(94)}, {s(94)}, 1')
p(f's_lshl_b32 {s(82)}, {s(sW)}, 10')
prep = [[(f's_add_u32 m0, {s(82)}, {PST}', None), (f'buffer_load_dwordx4 {v(vPi)}, {s(R_WIN, 4)}, {s(76)} offen lds', 'prep')],
        [(f's_add_u32 m0, {s(82)}, {PST + 4096}', None), (f'buffer_load_dwordx4 {v(vPi + 1)}, {s(R_WIN, 4)}, {s(76)} offen lds', 'prep')],
        [(f's_add_u32 m0, {s(82)}, {PST + 8192}', None), (f'buffer_load_dwordx4 {v(vPo)}, {s(R_WOUT, 4)}, {s(77)} offen lds', 'prep')],
        [(f'buffer_load_ushort {v(vBsp)}, {v(t3)}, {s(R_BSP, 4)}, 0 offen', None)]]
wsp_first = wsp_dma_ops(0)
if OPT['early'] & 1:
    emit(prep)
    prep = []
emit(wsp_first[:OPT['early'] >> 1])
wsp_first = wsp_first[OPT['early'] >> 1:]
p(f's_mul_i32 {s(94)}, {s(sB)}, 229376')
p(f's_mul_i32 {s(95)}, {s(sC)}, 7168')
p(f's_add_u32 {s(94)}, {s(94)}, {s(95)}')
p(f's_lshl_b32 {s(95)}, {s(sW)}, 10')
p(f's_add_u32 {s(94)}, {s(94)}, {s(95)}')
p(f's_mov_b32 {s(83)}, {s(94)}')
p(f's_add_u32 {s(94)}, {s(94)}, 4096')
p(f's_cmp_lt_u32 {s(sW)}, 3')
p(f's_cselect_b32 {s(94)}, {s(94)}, {LBASE:#x}')
p(f's_mov_b32 {s(84)}, {s(94)}')
p(f's_mul_i32 {s(94)}, {s(sB)}, 114688')
p(f's_lshl_b32 {s(96)}, {s(sC)}, 12')
p(f's_add_u32 {s(94)}, {s(94)}, {s(96)}')
p(f's_add_u32 {s(94)}, {s(94)}, {s(95)}')
p(f's_add_u32 {s(94)}, {s(94)}, {WO:#x}')
p(f's_cmp_lt_u32 {s(sC)}, 28')
p(f's_cselect_b32 {s(94)}, {s(94)}, {LBASE:#x}')
p(f's_mov_b32 {s(85)}, {s(94)}')
p(f's_lshr_b32 {s(94)}, {s(sB)}, 2')
p(f's_and_b32 {s(95)}, {s(sB)}, 3')
p(f's_lshl_b32 {s(sVst)}, {s(sC)}, 11')
p(f's_lshl_b32 {s(96)}, {s(sB)}, 8')
p(f's_add_u32 {s(sVst)}, {s(sVst)}, {s(96)}')
p(f's_sub_u32 {s(96)}, 32, {s(sC)}')
p(f's_and_b32 {s(96)}, {s(96)}, 31')
p(f's_cmp_eq_u32 {s(94)}, 0')
p(f's_cselect_b32 {s(96)}, {s(sC)}, {s(96)}')
p(f's_lshl_b32 {s(sVld)}, {s(96)}, 16')
p(f's_lshl_b32 {s(sH)}, {s(sC)}, 16')
p(f's_lshl_b32 {s(96)}, {s(95)}, 14')
p(f's_lshl_b32 {s(97)}, {s(94)}, 7')
p(f's_add_u32 {s(96)}, {s(96)}, {s(97)}')
p(f's_add_u32 {s(sK2)}, {s(sH)}, {s(96)}')
p(f's_lshl_b32 {s(96)}, {s(sW)}, 14')
p(f's_add_u32 {s(sH)}, {s(sH)}, {s(96)}')
p(f's_mov_b32 {s(sXb)}, 0')
p(f's_mov_b32 {s(sXo)}, 0x10000')
p(f's_lshl_b32 {s(96)}, {s(sB)}, 2')
p(f's_add_u32 {s(96)}, {s(96)}, {s(100)}')
p(f's_mul_i32 {s(sZld)}, {s(96)}, 114688')
p(f's_add_u32 {s(sZld)}, {s(sZld)}, {Z_:#x}')
p(f's_lshl_b32 {s(96)}, {s(sC)}, 2')
p(f's_add_u32 {s(96)}, {s(96)}, {s(sW)}')
p(f's_lshl_b32 {s(sUld)}, {s(96)}, 14')
p(f's_add_u32 {s(sUld)}, {s(sUld)}, {H_ if OPT["locd"] & 4 else U_:#x}')
p(f's_lshl_b32 {s(97)}, {s(sB)}, 10')
p(f's_add_u32 {s(sUst)}, {s(sUld)}, {s(97)}')
p(f's_lshl_b32 {s(sDm)}, {s(sW)}, 12')
p(f's_mul_i32 {s(sWI)}, {s(sB)}, 229376')
p(f's_add_u32 {s(sWI)}, {s(sWI)}, {s(sDm)}')
p(f's_mul_i32 {s(sWO)}, {s(sB)}, 114688')
p(f's_add_u32 {s(sWO)}, {s(sWO)}, {s(sDm)}')
p(f's_add_u32 {s(sWO)}, {s(sWO)}, {WO:#x}')
p(f's_and_b32 {s(96)}, s2, 15')
p(f's_lshl_b32 {s(96)}, {s(96)}, 8')
p(f's_add_u32 {s(sArr)}, {s(96)}, {FLAGS:#x}')
p(f's_and_b32 {s(96)}, s2, 7')
p(f's_lshl_b32 {s(96)}, {s(96)}, 12')
p(f's_add_u32 {s(sRep)}, {s(96)}, {FLAGS:#x}')
p(f's_lshl_b32 {s(97)}, {s(sB)}, 9')
p(f's_add_u32 {s(97)}, {s(97)}, {FLAGS + 0x8000:#x}')
p(f's_add_u32 {s(sP4)}, {s(96)}, {s(97)}')
p(f's_mov_b32 {s(sS4)}, {s(97)}')
p(f's_mov_b32 {s(sLocH)}, 0')
p(f'v_lshlrev_b32 {v(vL8)}, 3, {v(lane)}')
p(f'v_add_u32 {v(vL16hi)}, 0x10000, {v(vL16)}')
p(f'v_add_u32 {v(vL16h2)}, 0x20000, {v(vL16)}')
p(f'v_lshlrev_b32 {v(vPoll)}, 8, {v(n_)}')
p(f'v_and_b32 {v(vArr)}, 7, {v(lane)}')
p(f'v_lshlrev_b32 {v(vGrp)}, 2, {v(vArr)}')
p(f'v_lshlrev_b32 {v(vArr)}, 12, {v(vArr)}')
p(f'v_mov_b32 {v(vGK)}, {f2u(-2.302208198144325 * 0.044715):#x}')
p(f'v_mov_b32 {v(vGK + 1)}, {f2u(-2.302208198144325):#x}')
p(f'v_lshrrev_b32 {v(T)}, 3, {v(lane)}')
p(f'v_and_b32 {v(T + 4)}, 7, {v(lane)}')
p(f'v_lshlrev_b32 {v(T + 4)}, 4, {v(T + 4)}')
p(f'v_lshl_add_u32 {v(T + 2)}, {v(T)}, 8, {v(T + 4)}')
p(f's_lshl_b32 {s(96)}, {s(sW)}, 12')
p(f'v_add_u32 {v(vK2)}, {s(96)}, {v(T + 2)}')
p(f'v_and_b32 {v(T)}, 1, {v(T)}')
p(f'v_lshl_add_u32 {v(T)}, {v(T)}, 4, {v(g_)}')
p(f'v_mul_u32_u24 {v(T)}, 144, {v(T)}')
p(f's_lshr_b32 {s(96)}, {s(sW)}, 1')
p(f's_mul_i32 {s(96)}, {s(96)}, 4608')
p(f's_and_b32 {s(97)}, {s(sW)}, 1')
p(f's_mul_i32 {s(97)}, {s(97)}, 1152')
p(f's_add_u32 {s(96)}, {s(96)}, {s(97)}')
p(f's_add_u32 {s(96)}, {s(96)}, {SCR}')
p(f'v_add3_u32 {v(vTr)}, {v(T)}, {v(T + 4)}, {s(96)}')
p(f'v_lshrrev_b32 {v(T)}, 5, {v(lane)}')
p(f'v_and_b32 {v(T + 1)}, 1, {v(g_)}')
p(f'v_lshl_add_u32 {v(T + 2)}, {v(T)}, 4, {v(n_)}')
p(f'v_mul_u32_u24 {v(T + 2)}, 144, {v(T + 2)}')
p(f'v_lshl_add_u32 {v(T + 2)}, {v(T + 1)}, 4, {v(T + 2)}')
p(f's_lshl_b32 {s(96)}, {s(sW)}, 5')
p(f's_add_u32 {s(97)}, {s(96)}, {SCR}')
p(f'v_add_u32 {v(vTw)}, {s(97)}, {v(T + 2)}')
p(f'v_and_b32 {v(T + 2)}, 1, {v(lane)}')
p(f'v_lshlrev_b32 {v(T + 2)}, 5, {v(T + 2)}')
p(f'v_and_b32 {v(T + 3)}, 2, {v(lane)}')
p(f'v_lshl_add_u32 {v(T + 2)}, {v(T + 3)}, 3, {v(T + 2)}')
p(f'v_lshrrev_b32 {v(T + 3)}, 2, {v(lane)}')
p(f'v_add_u32 {v(T + 2)}, {v(T + 2)}, {v(T + 3)}')
p(f'v_mul_u32_u24 {v(T + 2)}, 144, {v(T + 2)}')
p(f'v_add_u32 {v(vXw)}, {s(97)}, {v(T + 2)}')
p(f'v_add_u32 {v(vXw + 1)}, 16, {v(vXw)}')
p(f's_lshl_b32 {s(96)}, {s(95)}, 4')
p(f's_add_u32 {s(96)}, {s(96)}, {s(94)}')
p(f's_lshl_b32 {s(96)}, {s(96)}, 5')
p(f's_add_u32 {s(98)}, {s(96)}, {s(sC)}')
p(f's_lshl_b32 {s(96)}, {s(sW)}, 7')
p(f's_add_u32 {s(96)}, {s(96)}, {s(98)}')
p(f's_lshl_b32 {s(96)}, {s(96)}, 10')
p(f'v_add_u32 {v(vXr)}, {s(96)}, {v(vL16)}')
p(f'v_mul_u32_u24 {v(T + 3)}, 1040, {v(T + 1)}')
p(f'v_lshl_add_u32 {v(T + 3)}, {v(T)}, 8, {v(T + 3)}')
p(f'v_lshl_add_u32 {v(T + 3)}, {v(n_)}, 3, {v(T + 3)}')
p(f's_mul_i32 {s(96)}, {s(sW)}, 2080')
p(f's_add_u32 {s(96)}, {s(96)}, {SCR}')
p(f'v_add_u32 {v(vUr)}, {s(96)}, {v(T + 3)}')
p(f'v_mul_u32_u24 {v(T + 3)}, 1040, {v(n_)}')
p(f'v_lshl_add_u32 {v(T + 3)}, {v(g_)}, 5, {v(T + 3)}')
p(f's_lshl_b32 {s(96)}, {s(sW)}, 8')
p(f's_add_u32 {s(96)}, {s(96)}, {SCR}')
p(f'v_add_u32 {v(vUw)}, {s(96)}, {v(T + 3)}')
p(f'v_lshlrev_b32 {v(T + 3)}, 13, {v(g_)}')
p(f'v_lshl_add_u32 {v(T + 3)}, {v(n_)}, 4, {v(T + 3)}')
p(f's_lshl_b32 {s(96)}, {s(sW)}, 9')
p(f'v_add_u32 {v(vVld)}, {s(96)}, {v(T + 3)}')
p(f'v_lshlrev_b32 {v(T + 3)}, 17, {v(g_)}')
p(f'v_lshl_add_u32 {v(T + 3)}, {v(n_)}, 4, {v(T + 3)}')
p(f's_lshl_b32 {s(96)}, {s(sW)}, 19')
p(f'v_add_u32 {v(vVst)}, {s(96)}, {v(T + 3)}')
p(f'v_mul_u32_u24 {v(T + 3)}, 160, {v(n_)}')
p(f'v_lshl_add_u32 {v(T + 3)}, {v(g_)}, 3, {v(T + 3)}')
p(f's_mul_i32 {s(96)}, {s(sW)}, 2560')
p(f's_add_u32 {s(96)}, {s(96)}, {SCR}')
p(f'v_add_u32 {v(vHw2)}, {s(96)}, {v(T + 3)}')
p(f'v_lshrrev_b32 {v(T + 3)}, 2, {v(lane)}')
p(f'v_mul_u32_u24 {v(T + 3)}, 160, {v(T + 3)}')
p(f'v_and_b32 {v(T + 2)}, 3, {v(lane)}')
p(f'v_lshl_add_u32 {v(T + 3)}, {v(T + 2)}, 3, {v(T + 3)}')
p(f'v_add_u32 {v(vHw)}, {s(96)}, {v(T + 3)}')
p(f'v_add_u32 {v(vHr)}, {SCR}, {v(T + 3)}')
for q in range(1, 5):
    p(f's_add_u32 {s(96)}, {s(sW)}, {q}')
    p(f's_and_b32 {s(96)}, {s(96)}, 3')
    p(f's_mul_i32 {s(96)}, {s(96)}, 3072')
    p(f's_add_u32 {s(96)}, {s(96)}, {SCR + (1024 * (q - 1) if q < 4 else 0)}')
    p(f'v_add_u32 {v(vRed + q - 1)}, {s(96)}, {v(vL16)}')
p(f'v_and_b32 {v(T)}, 7, {v(n_)}')
p(f'v_lshlrev_b32 {v(T)}, 6, {v(T)}')
p(f'v_add_u32 {v(T)}, {s(98)}, {v(T)}')
p(f'v_lshlrev_b32 {v(T + 1)}, 2, {v(g_)}')
p(f'v_mul_u32_u24 {v(T + 1)}, {v(T + 1)}, {v(T)}')
p(f'v_lshrrev_b32 {v(T + 2)}, 3, {v(n_)}')
p(f'v_lshl_add_u32 {v(T + 1)}, {v(T + 2)}, 9, {v(T + 1)}')
p(f's_cmp_eq_u32 {s(94)}, 0')
p(f's_cselect_b32 {s(73)}, 1.0, -1.0')
p(f's_cselect_b32 {s(74)}, 0, 1.0')
p(f's_cselect_b32 {s(72)}, 1.0, 0')
p(f's_cmp_eq_u32 {s(sC)}, 0')
p(f's_cselect_b32 {s(72)}, {s(72)}, 1.0')
p(f's_cselect_b32 {s(73)}, 0, {s(73)}')
p(f's_cselect_b32 {s(74)}, {s(74)}, 0')
for k in range(8):
    cp = 16 * (k >> 2) + (k & 3)
    p(f'v_mad_u32_u24 {v(T + 2)}, {v(T)}, {cp}, {v(T + 1)}')
    p(f'v_and_b32 {v(T + 2)}, 0x7ff, {v(T + 2)}')
    p(f'v_cvt_f32_u32 {v(T + 2)}, {v(T + 2)}')
    p(f'v_mul_f32 {v(T + 2)}, {f2u(1.0 / 2048):#x}, {v(T + 2)}')
    p(f'v_cos_f32 {v(T + 3)}, {v(T + 2)}')
    p(f'v_sin_f32 {v(T + 4)}, {v(T + 2)}')
    p(f'v_mul_f32 {v(T + 5)}, {s(74)}, {v(T + 3)}')
    p(f'v_mul_f32 {v(T + 3)}, {s(72)}, {v(T + 3)}')
    p(f'v_fma_f32 {v(T + 4)}, {s(73)}, {v(T + 4)}, {v(T + 5)}')
    p(f'v_cvt_pk_bf16_f32 {v(vC2 + k)}, {v(T + 3)}, {v(T + 4)}')
stamp('setup')
if OPT['wfirst'] == 1:
    emit(wsp_first)
    wsp_first = []
for i in range(OPT['x1'], OPT['xa']):
    if OPT['wfirst'] == 2 and wsp_first:
        emit([wsp_first.pop(0)])
    x_loads(i, i + 1)
if OPT['xa'] == 8:
    m1_load(108)
if OPT['ctpos'] == 0:
    ct_dma(110)
SCHED = OPT['sched'].split('/')
FIX = OPT['fix'].split('/')
WSR = (160, 192)
a2a_load = [(f'buffer_load_dword {v(241)}, {v(vPoll)}, {s(R_WS, 4)}, {s(sRep)} offen sc1', None)]


def wsp_run(items):
    i = 0
    while i < len(items):
        if items[i] == 'q':
            if_wave0()
            emit([a2a_load])
            p.end()
            i += 1
            continue
        k = int(items[i + 1])
        if items[i] == 'd':
            p.wait_lgkm(f'wr{k - 3}')
            wsp_dma(k)
        elif items[i] == 'r':
            wsp_read(k, WSR[k & 1])
        elif items[i] == 'a':
            wsp_park(k)
        else:
            wsp_perm(k, WSR[k & 1])
        if OPT['fine'] == 2:
            stamp('*' + items[i:i + 2])
        i += 2


zpois = [(f'buffer_store_dwordx4 {v(116, 4)}, {v(vZst)}, {s(R_WL, 4)}, {s(sZst)} offen sc1', 'pub')]
bg = prep + wsp_first
if OPT['zs']:
    bg = [zpois] + bg if OPT['zp0'] == 0 else bg + [zpois]
for ch in SCHED[0]:
    bg += wsp_dma_ops(int(ch))
for k in range(4):
    p(f'v_mov_b32 {v(T + 2 + k)}, 0')
p.bg = bg
xnext = OPT['xa']
if xnext == 8:
    p.bg_on(OPT['wspev'])
for i in range(64):
    if xnext < 8 and i % OPT['xe'] == OPT['xe'] - 1:
        x_loads(xnext, xnext + 1)
        xnext += 1
        if xnext == 8:
            m1_load(108)
            p.bg_on(OPT['wspev'])
    p(f'v_dot2c_f32_bf16 {v(T + 2 + (i & 1))}, {s(sOnes)}, {v(XR + i)}')
    p(f'v_dot2c_f32_bf16 {v(T + 4 + (i & 1))}, {v(XR + i)}, {v(XR + i)}')
    if i == 7:
        unpack(XR, 8, XV)
    if i == OPT['ann']:
        p.bg_on(0)
        p(f's_cmp_eq_u32 {s(sG0)}, 3')
        p.begin('G0', 's_cbranch_scc0')
        p.wait_vm('z')
        p(f'v_mov_b32 {v(EI)}, 1')
        p('s_mov_b64 exec, 1')
        p(f'buffer_store_dword {v(EI)}, off, {s(R_DBG, 4)}, 0 sc1')
        p('s_mov_b64 exec, -1')
        p.end()
        p.bg_on(OPT['wspev'] if xnext == 8 else 0)
p.bg_on(0)
p.bg_emit()
p(f'v_add_f32 {v(T)}, {v(T + 2)}, {v(T + 3)}')
p(f'v_add_f32 {v(T + 1)}, {v(T + 4)}, {v(T + 5)}')
for qp in ('[1,0,3,2]', '[2,3,0,1]'):
    for k in range(2):
        p(f'v_add_f32_dpp {v(T + k)}, {v(T + k)}, {v(T + k)} quad_perm:{qp} row_mask:0xf bank_mask:0xf')
dbg_load = [(f'buffer_load_dword {v(241)}, off, {s(R_DBG, 4)}, 0 sc1', None)]
assert not SCHED[1]
wsp_run(SCHED[1])

p.section('body')
for _ in range(OPT['algn']):
    p('s_nop 0')
p('L_layer:')
stamp('T')
HP, AF, D1, VO = 56, 72, 104, 56
finish_stats(T, 512)
for i in range(0, 16, 2):
    p(f'v_pk_fma_f32 {v(XV + i, 2)}, {v(XV + i, 2)}, {v(T, 2)}, {v(T, 2)} op_sel:[0,0,1] op_sel_hi:[1,0,1]')
for t in range(4):
    for k in range(2):
        p(f'v_cvt_pk_bf16_f32 {v(HP + 2 * t + k)}, {v(XV + 8 * k + t)}, {v(XV + 8 * k + 4 + t)}')
    p(f'ds_write_b64 {v(vHw)}, {v(HP + 2 * t, 2)} offset:{32 * t}', tag='hw')
p(f's_add_u32 {s(sT + 1)}, {s(sVst)}, 0x10000')
p.wait_lgkm('hw')
p.wait_vm('prep')
p('s_barrier')
for ks in range(2):
    for tile in range(4):
        for half in range(2):
            p(f'ds_read_b64_tr_b16 {v(AF + 16 * ks + 4 * tile + 2 * half, 2)}, {v(vHr)} offset:{(32 * ks + 16 * half) * 160 + 32 * tile}')
if_layer(0)
for k in range(2):
    for half in range(2):
        p(f'ds_read_b64_tr_b16 {v(PK + 4 * k + 2 * half, 2)}, {v(vPri)} offset:{128 * k + 896 * half}')
for half in range(2):
    p(f'ds_read_b64_tr_b16 {v(PK + 8 + 2 * half, 2)}, {v(vPro)} offset:{2048 * half}')
p.end()
for ks in range(2):
    for tile in range(4):
        d = D1 + 4 * tile
        p(f'{M16} {v(d, 4)}, {v(M1 + 4 * ks, 4)}, {v(AF + 16 * ks + 4 * tile, 4)}, {v(d, 4) if ks else 0}')
if_layer(0)
p(f'v_lshlrev_b32 {v(vBsp)}, 16, {v(vBsp)}')
p(f'buffer_store_dwordx4 {v(PK, 4)}, {v(vL16)}, {s(R_WS, 4)}, {s(83)} offen sc1', tag='pub')
p(f'buffer_store_dwordx4 {v(PK + 4, 4)}, {v(vL16)}, {s(R_WS, 4)}, {s(84)} offen sc1', tag='pub')
p(f'buffer_store_dwordx4 {v(PK + 8, 4)}, {v(vL16)}, {s(R_WS, 4)}, {s(85)} offen sc1', tag='pub')
p.end()
for jj in range(2):
    for t in range(4):
        p(f'v_cvt_pk_bf16_f32 {v(VO + 4 * jj + t)}, {v(D1 + 4 * t + 2 * jj)}, {v(D1 + 4 * t + 2 * jj + 1)}')
    p(f'buffer_store_dwordx4 {v(VO + 4 * jj, 4)}, {v(vVst)}, {s(R_WL, 4)}, {s(sT + 1 if jj else sVst)} offen sc1', tag='pub')
stamp('Vst')
if OPT['ctpos'] == 1:
    ct_dma(T + 6)
if_layer(0)
if_wave0()
emit([dbg_load])
p.end()
wsp_run(SCHED[2])
if_wave0()
retry_until(dbg_load, lambda: p(f'v_cmp_ne_u32 vcc, 1, {v(241)}'))
p.end()
p.end()
wz2 = w_dma_ops(sWI, 114688, LOC_Z2, 'wz2')
CMN = [int(ch, 36) for ch in OPT['cmn']]
assert sum(CMN) % 4 == 0 and sum(CMN) + OPT['wzp1'] + OPT['wzp2'] + OPT['wzp3'] == 28
wz2_both, wz2 = wz2[:sum(CMN)], wz2[sum(CMN):]
P1, P2, P3 = OPT['wzp1'], OPT['wzp1'] + OPT['wzp2'], OPT['wzp1'] + OPT['wzp2'] + OPT['wzp3']
assert P1 % 4 == 0 and OPT['wzp0'] % 4 == 0
if (OPT['ctp'] == 2 and OPT['ctpos'] == 0) or P2 > P1:
    if_layer(1)
    if OPT['ctp'] == 2 and OPT['ctpos'] == 0:
        ct_dma(T + 6)
    emit(wz2[P1:P2])
    p.end()
stamp('init')
if OPT['vs']:
    if_layer(0)
    p.wait_vm('pub')
    p.wait_vm('ct')
    arrive(sArr, 8)
    p.end()
    if_layer(1)
    p.wait_vm('x2')
    p.wait_vm('ct')
    arrive_group(sS2, 32)
    p.end()
else:
    p.wait_vm('pub')
    p.wait_vm('ct')
    arrive(sArr, 8)
poison(5, 96)
code_prefetch(1, 'L_k2')
stamp('arr1')
FA, TW, FB, VR, D2, UP, XRES, Y = 40, 64, 80, 96, 160, 192, 224, 208
for k in range(14):
    p(f'ds_read_b128 {v(FA + 4 * k, 4)}, {v(vL16hi)} offset:{CT - 65536 + k * 1024}')
if_layer(0)
wsp_run(SCHED[3])
if_wave0()
retry_until(a2a_load, lambda: p(f'v_cmp_ne_u32 vcc, 16, {v(241)}'))
p.end()
p('s_barrier')
p.end()
for k in range(4):
    p(f's_add_u32 {s(sT + 4 + k)}, {s(sVld)}, {(16 * (k >> 1) + 2 * (k & 1)) * 2048:#x}')
if_layer(1)
emit(wz2[P2:P3])
x2_load = [(f'buffer_load_dword {v(248)}, {v(vGrp)}, {s(R_WS, 4)}, {s(sS2)} offen offset:32{PG}', None)]
if OPT['vs']:
    emit([x2_load])
else:
    poll(sRep, vPoll, 16)
p.end()
assert not SCHED[8:]


def l0_dma(n):
    emit([wz2_both.pop(0) for _ in range(CMN.pop(0))])


stamp('S1')
p('L_k2:')
vl = [(f'buffer_load_dwordx4 {v(VR + 16 * gk + 4 * ii, 4)}, {v(vVld)}, {s(R_WL, 4)}, {s(sT + 4 + 2 * (gk & 1) + (ii >> 1))} '
       f'offen offset:{(ii & 1) * 2048 + (gk >> 1) * 256} sc1', None) for gk in range(4) for ii in range(4)]
for gk in range(4):
    emit([vl[4 * gk:4 * gk + 4]])
    if gk < 3 and SCHED[4 + gk]:
        if_layer(0)
        wsp_run(SCHED[4 + gk])
        p.end()
if OPT['vs']:
    if_layer(1)
    retry_until(x2_load, lambda: p(f'v_cmp_ne_u32 vcc, 1, {v(248)}'))
    p.end()
xl = [(f'buffer_load_dwordx4 {v(XRES + 4 * k, 4)}, {v(vXr)}, {s(R_X, 4)}, {s((sXb, sXo)[k])} offen{LG}', None) for k in range(2)]
emit([xl])
if_layer(0)
p(f'buffer_load_dword {v(248)}, {v(vGrp)}, {s(R_WS, 4)}, {s(sS2)} offen offset:128 sc1')
wsp_run(SCHED[7])
if not SCHED[8:]:
    p('s_waitcnt lgkmcnt(0)')
    p('s_barrier')
p.end()
l0_dma(0)
stamp('Vld')


def u_pack(hi):
    up = (192, 200)[hi]
    for r in range(4):
        for lp in range(2):
            p(f'v_cvt_pk_bf16_f32 {v(up + 2 * r + lp)}, {v(D2 + 16 * hi + 8 * lp + r)}, {v(D2 + 16 * hi + 8 * lp + 4 + r)}')
        if r & 1:
            p(f'ds_write_b128 {v(vUw)}, {v(up + 2 * r - 2, 4)} offset:{128 * hi + 8 * (r - 1)}')


for hi in range(2):
    for ks in range(2):
        if hi and ks:
            u_pack(0)
        r = VR + 32 * hi + 16 * ks
        if OPT['vs']:
            def v_test(r=r):
                p(f'v_max3_u32 {v(T)}, {v(r + 3)}, {v(r + 7)}, {v(r + 11)}')
                p(f'v_max_u32 {v(T)}, {v(T)}, {v(r + 15)}')
                p(f'v_cmp_eq_u32 vcc, -1, {v(T)}')
            gk = 2 * hi + ks
            if OPT['vs'] == 1:
                retry_until(vl[4 * gk:], v_test)
            else:
                retry_until(vl[4 * gk:4 * gk + 4], v_test, after=vl[4 * gk + 4:] + xl if gk < 3 else None)
        for i in range(4):
            for j in range(i + 1, 4):
                p(f'v_swap_b32 {v(r + 4 * i + j)}, {v(r + 4 * j + i)}')
        for lo in range(4):
            d = D2 + 16 * hi + 4 * lo
            p(f'{M16} {v(d, 4)}, {v(r + 4 * lo, 4)}, {v(vC2 + 4 * ks, 4)}, {v(d, 4) if ks else 0}')
fine('st2')
l0_dma(4)
u_pack(1)
for k in range(2):
    p(f'ds_write_b128 {v(vXw + k)}, {v(XRES + 4 * k, 4)} offset:16640')
p('s_waitcnt lgkmcnt(0)')
p('s_barrier')
fine('ubar')
poison(4, 176)
UA, DR, DI, TT, PF = 96, 112, 128, 144, 160
for ri in range(2):
    for dh in range(2):
        for half in range(2):
            p(f'ds_read_b64_tr_b16 {v(UA + 8 * ri + 4 * dh + 2 * half, 2)}, {v(vUr)} offset:{ri * 8320 + dh * 512 + half * 128}')
for o in range(2):
    p(f'ds_read_b128 {v(XRES + 4 * o, 4)}, {v(vTw)} offset:{16640 + 4608 * o}')
l0_dma(4)
for ri in range(2):
    for dh in range(2):
        first = ri == 0 and dh == 0
        fr = FA + 4 * ((2 if ri else 0) + dh)
        fi = FA + 4 * ((0 if ri else 4) + dh)
        p(f'{M32} {v(DR, 16)}, {v(UA + 8 * ri + 4 * dh, 4)}, {v(fr, 4)}, {0 if first else v(DR, 16)}')
        p(f'{M32} {v(DI, 16)}, {v(UA + 8 * ri + 4 * dh, 4)}, {v(fi, 4)}, {0 if first else v(DI, 16)}')
fine('stA')
unpack(XRES, 8, Y)
fine('xres')
l0_dma(4)
for row in range(2):
    for k in range(0, 8, 2):
        r = 8 * row + k
        p(f'v_pk_mul_f32 {v(TT + k, 2)}, {v(DI + r, 2)}, {v(TW + 8 + k, 2)}')
        p(f'v_pk_mul_f32 {v(TT + 8 + k, 2)}, {v(DR + r, 2)}, {v(TW + 8 + k, 2)}')
    for k in range(0, 8, 2):
        r = 8 * row + k
        p(f'v_pk_fma_f32 {v(TT + k, 2)}, {v(DR + r, 2)}, {v(TW + k, 2)}, {v(TT + k, 2)}')
        p(f'v_pk_fma_f32 {v(TT + 8 + k, 2)}, {v(DI + r, 2)}, {v(TW + k, 2)}, {v(TT + 8 + k, 2)} neg_lo:[0,0,1] neg_hi:[0,0,1]')
    for k in range(8):
        p(f'v_cvt_pk_bf16_f32 {v(PF + 8 * row + k)}, {v(TT + 2 * k)}, {v(TT + 2 * k + 1)}')
for k in range(4):
    p(f'{M32} {v(Y, 16)}, {v(PF + 4 * k, 4)}, {v(FB + 4 * k, 4)}, {v(Y, 16)}')
fine('stB')
XO, HO = 224, 232
l0_dma(4)
if_layer(0)
p(f'v_cmp_ne_u32 vcc, {s(sLoc)}, {v(248)}')
p('s_cmp_eq_u64 vcc, 0')
p(f's_cselect_b32 {s(sLoc)}, {OPT["loc"]}, 0')
p(f's_mov_b32 {s(sLocU)}, {s(sLoc)}')
p.end()
local_stats(Y, 16, T)
p(f'v_permlane32_swap_b32 {v(T)}, {v(T + 1)}')
p(f'v_add_f32 {v(T)}, {v(T)}, {v(T + 1)}')
for k, sh in enumerate((8, 4, 2, 1)):
    p(f'v_cvt_pk_bf16_f32 {v(XO + 2 * k)}, {v(Y + 4 * k)}, {v(Y + 4 * k + 1)}')
    p(f'v_cvt_pk_bf16_f32 {v(XO + 2 * k + 1)}, {v(Y + 4 * k + 2)}, {v(Y + 4 * k + 3)}')
    p(f'v_add_f32_dpp {v(T)}, {v(T)}, {v(T)} row_ror:{sh} row_mask:0xf bank_mask:0xf')
p(f'v_mov_b32 {v(T + 1)}, {v(T)}')
p(f's_add_u32 {s(sT)}, {s(sK2)}, {X1_:#x}')
p(f's_add_u32 {s(sT + 1)}, {s(sK2)}, {H_:#x}')
p(f'v_permlane32_swap_b32 {v(T)}, {v(T + 1)}')
finish_stats(T, 512)
norm_pack(Y, 16, T, Y, HO)
fine('norm')
for o in range(2):
    p(f'ds_write_b128 {v(vTw)}, {v(HO + 4 * o, 4)} offset:{16640 + 4608 * o}')
p('s_waitcnt lgkmcnt(0)')
p('s_barrier')
for k in range(2):
    p(f'ds_read_b128 {v(HO + 4 * k, 4)}, {v(vTr)} offset:{16640 + 576 * k}')
for o in range(2):
    p(f'ds_write_b128 {v(vTw)}, {v(XO + 4 * o, 4)} offset:{4608 * o}')
gstore([f'buffer_store_dwordx4 {v(HO + 4 * k, 4)}, {v(vK2)}, {s(R_WL, 4)}, {s(sT + 1)} offen offset:{2048 * k}' for k in range(2)], 'pub', OPT['locd'] & 1, sLocH)
l0_dma(6)
HF, Z2, Z1, WR, WD, GT = 40, 104, 136, 164, 12, 232
for k in range(4):
    p(f's_add_u32 {s(sT + 4 + k)}, {s(sH)}, {H_ + 4096 * k:#x}')
wsp_fix(FIX[0], 104, wz2[:OPT['l0a']])
stamp('K2')
p('s_waitcnt lgkmcnt(0)')
if OPT['wf2']:
    p('s_barrier')
    for k in range(2):
        p(f'ds_read_b128 {v(XO + 4 * k, 4)}, {v(vTr)} offset:{576 * k}')
    p(f'v_mov_b32 {v(T)}, 1')
    p.wait_vm('pub')
    p('s_mov_b64 exec, 1')
    gstore([f'buffer_store_dword {v(T)}, off, {s(R_WS, 4)}, {s(sF2s)}'])
    p('s_mov_b64 exec, -1')
else:
    p.wait_vm('pub')
    arrive_group(sS2)
    for k in range(2):
        p(f'ds_read_b128 {v(XO + 4 * k, 4)}, {v(vTr)} offset:{576 * k}')
wsp_fix(FIX[1], 104, wz2[OPT['l0a']:])
stamp('arr2')
p('s_waitcnt lgkmcnt(0)')
for k in range(7):
    p.wait_vm(f'wz2{k}')
if OPT['wf2']:
    p('s_barrier')
    top, done = p.label('poll'), p.label('pdone')
    p(f'{top}:')
    p(f'buffer_load_dword {v(T)}, {v(vGrp)}, {s(R_WS, 4)}, {s(sF2l)} offen{PG}')
    p('s_waitcnt vmcnt(0)')
    p(f'v_cmp_ne_u32 vcc, 1, {v(T)}')
    spin_tail(top, done)
else:
    poll(sS2, vGrp, 1)
stamp('S2')
p('L_k3:')
hl = [[(f'buffer_load_dwordx4 {v(HF + 4 * ks, 4)}, {v(vL16)}, {s(R_WL, 4)}, {s(sT + 4 + (ks >> 2))} offen offset:{1024 * (ks & 3)}{LG}', None)]
      for ks in range(16)]
xs = [[(f'buffer_store_dwordx4 {v(XO + 4 * k, 4)}, {v(vK2)}, {s(R_WL, 4)}, {s(sT)} offen offset:{2048 * k} sc1', 'x1')] for k in range(2)]
wz1 = w_dma_ops(sWI, 0, LOC_Z1, 'wz1')
emit(hl[:OPT['pre3']])
SEL, ZP, ZT, ZO = 212, 228, 164, 104
p(f'v_and_b32 {v(SEL)}, 0xf0, {v(vL16)}')
p(f'v_lshrrev_b32 {v(SEL + 1)}, 2, {v(vL16)}')
p(f'v_and_b32 {v(SEL + 1)}, 0xc0, {v(SEL + 1)}')
p(f'v_sub_u32 {v(SEL)}, {v(SEL)}, {v(SEL + 1)}')
p(f'v_mov_b32 {v(SEL + 4)}, 0x3f80')
p(f'v_lshlrev_b32 {v(SEL + 4)}, {v(SEL)}, {v(SEL + 4)}')
p(f'v_lshrrev_b32 {v(SEL + 1)}, 5, {v(SEL)}')
p(f'v_cmp_eq_u32 vcc, 0, {v(SEL + 1)}')
p(f'v_cndmask_b32 {v(SEL + 2)}, 0, {v(SEL + 4)}, vcc')
p(f'v_cmp_eq_u32 vcc, 1, {v(SEL + 1)}')
p(f'v_cndmask_b32 {v(SEL + 3)}, 0, {v(SEL + 4)}, vcc')
for k in (0, 1, 4, 5):
    p(f'v_mov_b32 {v(SEL + k)}, 0')
p(f'v_mov_b32 {v(ZP + 14)}, 0')
p(f'v_mov_b32 {v(ZP + 15)}, 0')
wsp_fix(FIX[2], 104)
n_h = 16 - OPT['pre3']
fill = spread(hl[OPT['pre3']:], 1, OPT['hsp'])
fill.update(spread(xs + wz1[:12], OPT['hsp'] * n_h + 1, OPT['z2sp']))
fill[max(fill) + 3] = lambda: poison(1, 132)
gemm_r(Z2, 7, 0, 16, HF, WR, WD, LOC_Z2, fill=fill)
p.wait_vm('x1')
p('s_barrier')
stamp('z2mm')
p.bg = wz1[12:]
p.bg_emit(2)
p.bg_on(OPT['g2ev'])
gelu(Z2, 28, GT)
local_stats(Z2, 28, T)
p.bg_on(0)
reduce_g(T, T + 1)
publish_stats(0)
stamp('pub3')
Z1A = OPT['z1a']
p.bg_emit(None if Z1A else OPT['gb'])
p(f's_mov_b32 {s(sT + 2)}, {s(sZld)}')
p(f'v_add_u32 {v(245)}, {s(sDm)}, {v(vL16)}')
OW, OR, OG = 248, 249, 253
p(f's_add_u32 {s(sT + 1)}, {s(sUst)}, 8192')
p(f's_lshl_b32 {s(sT + 3)}, {s(sB)}, 10')
p(f's_add_u32 {s(sT + 3)}, {s(sT + 3)}, {s(sH)}')
p(f's_add_u32 {s(sT + 12)}, {s(sT + 3)}, {X1_:#x}')
p(f's_add_u32 {s(sT + 13)}, {s(sT + 3)}, {X1_ + 8192:#x}')
for k in range(4):
    p(f's_add_u32 {s(sT + 4 + k)}, {s(sUld)}, {4096 * k}')
    p(f's_add_u32 {s(sT + 8 + k)}, {s(sH)}, {X1_ + 4096 * k:#x}')
p(f'v_and_b32 {v(133)}, 0xf0, {v(vL16)}')
p(f'v_mul_u32_u24 {v(133)}, 9, {v(133)}')
p(f'v_lshrrev_b32 {v(134)}, 8, {v(vL16)}')
p(f'v_lshl_add_u32 {v(133)}, {v(134)}, 5, {v(133)}')
p(f's_mul_i32 {s(99)}, {s(sW)}, 2304')
p(f's_add_u32 {s(99)}, {s(99)}, {SCR + 12288}')
p(f'v_add_u32 {v(OW)}, {s(99)}, {v(133)}')
p(f'v_lshrrev_b32 {v(133)}, 7, {v(vL16)}')
p(f'v_lshl_add_u32 {v(134)}, {v(133)}, 4, {v(vL16)}')
p(f'v_add_u32 {v(OR)}, {s(99)}, {v(134)}')
p(f'v_and_b32 {v(134)}, 0x70, {v(vL16)}')
p(f'v_lshl_add_u32 {v(OG)}, {v(133)}, 16, {v(134)}')
p(f's_lshl_b32 {s(99)}, {s(sW)}, 9')
p(f's_add_u32 {s(99)}, {s(99)}, {s(sC)}')
p(f's_lshl_b32 {s(99)}, {s(99)}, 10')
p(f's_add_u32 {s(sT + 14)}, {s(99)}, {s(sB128)}')
p(f's_add_u32 {s(sT + 15)}, {s(sT + 14)}, 0x8000')
wo = w_dma_ops(sWO, 0, LOC_WO, 'wo')
if Z1A:
    p.wait_vm('wz12')
    p('s_barrier')
    fill = {OPT['gpos']: gather_loads(0)}
    fill.update(spread(wo[:OPT['woa']], OPT['gpos'] + 2, 2))
    gemm_r(Z1, 7, 0, Z1A, HF, WR, WD, LOC_Z1, fill=fill)
else:
    emit([gather_loads(0)])
    p.bg_emit()
    emit(wo[:OPT['woa']])
stamp('z1a')
gather_finish(0)
stamp('S3')
poison(2, 132)
finish_stats(T, 896)
for i in range(0, 28, 2):
    p(f'v_pk_fma_f32 {v(Z2 + i, 2)}, {v(Z2 + i, 2)}, {v(T, 2)}, {v(T, 2)} op_sel:[0,0,1] op_sel_hi:[1,0,1]')
ZO = 192
for pr in range(6):
    if pr < 4:
        tiles = [ft for ft in (2 * pr, 2 * pr + 1) if ft < 7]
        for ft in tiles:
            for k in range(2):
                p(f'v_cvt_pk_bf16_f32 {v(ZP + 2 * ft + k)}, {v(Z2 + 4 * ft + 2 * k)}, {v(Z2 + 4 * ft + 2 * k + 1)}')
    if 2 <= pr:
        q = pr - 2
        for ft in (2 * q, 2 * q + 1):
            for k in range(2 if ft < 7 else 0):
                p(f'v_cvt_pk_bf16_f32 {v(ZO + 2 * ft + k)}, {v(ZT + 4 * ft + 2 * k)}, {v(ZT + 4 * ft + 2 * k + 1)}')
        p(f's_add_u32 {s(sT)}, {s(sZst)}, {q * 32768:#x}')
    if pr < 4:
        for ft in tiles:
            p(f'{M16} {v(ZT + 4 * ft, 4)}, {v(ZP + 4 * pr, 4)}, {v(SEL + (0 if ft & 1 else 2), 4)}, 0')
    if 2 <= pr:
        for k in range(2):
            p(f'v_permlane16_swap_b32 {v(ZO + 4 * q + k)}, {v(ZO + 4 * q + 2 + k)}')
        if q == 3:
            p('s_mov_b32 exec_lo, 0xffff')
            p('s_mov_b32 exec_hi, 0xffff')
        p(f'buffer_store_dwordx4 {v(ZO + 4 * q, 4)}, {v(vZst)}, {s(R_WL, 4)}, {s(sT)} offen sc1', tag='pub')
p('s_mov_b64 exec, -1')
stamp('Zst')
poison(3, 132)
p.wait_vm('wz16')
p('s_barrier')
Z1B = min(16, Z1A + OPT['z1arr'])
wreg = lambda k: 104 + 4 * k if k < 8 else 212 + 4 * (k - 8)
wst = []
for k in range(16):
    g = [(f's_add_u32 {s(sDo)}, {s(sWO)}, {16384 * (3 + (k >> 2)):#x}', None)] if k % 4 == 0 else []
    if not OPT['nobg'] & 1:
        g.append((f'buffer_load_dwordx4 {v(wreg(k), 4)}, {v(vL16)}, {s(R_WS, 4)}, {s(sDo)} offen offset:{1024 * (k & 3)}', None))
    wst.append(g)
bgw = wo[OPT['woa']:12] + wst
wo = []
ZD, AC, RT, UO = OPT['zd'], 196, 228, 240


def zreg(fi):
    k = fi % ZD
    return 56 + 4 * k


def zload(fi):
    if fi % 4 == 0 and fi:
        p(f's_add_u32 {s(sT + 2)}, {s(sT + 2)}, 4096')
    if OPT['k4load'] or fi < ZD:
        p(f'buffer_load_dwordx4 {v(zreg(fi), 4)}, {v(vL16)}, {s(R_WL, 4)}, {s(sT + 2)} offen offset:{(fi % 4) * 1024}' + ' sc1')


nin = min(len(bgw), (112 - 7 * Z1A - 1) // OPT['wosp'])
fill = spread(bgw[:nin], 7 * Z1A + 1, OPT['wosp'])
nz = 0
if OPT['zs'] and OPT['zin'] and nin == len(bgw):
    pos = max(max(fill) + OPT['wosp'], OPT['zin'])
    while nz < ZD and max(pos, 7 * (nz + 5) - 1) < 112:
        pos = max(pos, 7 * (nz + 5) - 1)
        fill[pos] = (lambda k: lambda: zload(k))(nz)
        pos += OPT['zsp']
        nz += 1
gemm_r(Z1, 7, Z1A, Z1B, HF, WR, WD, LOC_Z1, last=112, fill={k: g for k, g in fill.items() if k < 7 * Z1B})
p.wait_vm('pub')
arrive(sS4, 8)
code_prefetch(4, 'L_k4')
stamp('arr4')
if Z1B < 16:
    gemm_r(Z1, 7, Z1B, 16, HF, WR, WD, LOC_Z1, preload=False, fill={k: g for k, g in fill.items() if k >= 7 * Z1B})
p.bg = bgw[nin:]
if nz:
    for fi in range(nz, ZD):
        zload(fi)
    nz = ZD
if OPT['g1w']:
    p.bg_on(8)
    gelu(Z1, 4 * OPT['g1w'], 164)
    p.bg_on(0)
p.bg_emit()
wsp_fix(FIX[3], 164)
stamp('win4')
if OPT['zs']:
    if Z1B < 16:
        p('s_barrier')
else:
    poll(sP4, None, 32)
stamp('S4')
p('L_k4:')
def k4_epilogue(ft):
    ac, buf = AC + 16 * (ft & 1), 12288 * (ft & 1)
    st1 = [f'ds_write_b128 {v(vRed + q - 1)}, {v(ac + 4 * q, 4)} offset:{buf}' for q in (1, 2, 3)]
    st1 += [f'v_add_f32 {v(ac + r)}, {v(vBsp)}, {v(ac + r)}' for r in range(4)]
    st2 = ['s_waitcnt lgkmcnt(0)', 's_barrier']
    st2 += [f'ds_read_b128 {v(RT + 4 * q, 4)}, {v(vRed + 3)} offset:{buf + 1024 * q}' for q in range(3)]
    st3 = [f'v_add_f32 {v(ac + r)}, {v(RT + 4 * q + r)}, {v(ac + r)}' for q in range(3) for r in range(4)]
    st3 += [f'v_mul_f32 {v(ac + r)}, {v(Z1 + 4 * ft + r)}, {v(ac + r)}' for r in range(4)]
    st3 += [f'v_cvt_pk_bf16_f32 {v(UO + 2 * (ft & 1) + k)}, {v(ac + 2 * k)}, {v(ac + 2 * k + 1)}' for k in range(2)]
    if ft == 6:
        st3 += [f'buffer_store_dwordx2 {v(UO, 2)}, {v(vL8)}, {s(R_WL, 4)}, {s(sT + 13)} offen']
    elif ft == 5:
        st3 += [f'buffer_store_dwordx4 {v(UO, 4)}, {v(vL16)}, {s(R_WL, 4)}, {s(sT + 12)} offen']
    elif ft & 1:
        st3 += [f'buffer_store_dwordx4 {v(UO, 4)}, {v(vL16)}, {s(R_WL, 4)}, {s(sT + 1 if ft == 3 else sUst)} offen offset:0']
    return st1, st2, st3


def k4_emit(x):
    if x.startswith('buffer_store'):
        late = x.endswith('offen')
        if late:
            p.wait_vm('x1l')
        gstore([x], 'u6' if 'dwordx2' in x else 'pub', OPT['locd'] & (2 if late else 4), sLocU if OPT['locd'] & (8 if late else 16) else None)
    else:
        p(x)


def gelu_ops(x, t):
    ops = [f'v_mul_f32 {v(t + k)}, {v(x + k)}, {v(x + k)}' for k in range(4)]
    ops += [f'v_fma_f32 {v(t + k)}, {v(t + k)}, {v(vGK)}, {v(vGK + 1)}' for k in range(4)]
    ops += [f'v_mul_f32 {v(t + k)}, {v(t + k)}, {v(x + k)}' for k in range(4)]
    ops += [f'v_exp_f32 {v(t + k)}, {v(t + k)}' for k in range(4)]
    ops += [f'v_add_f32 {v(t + k)}, 1.0, {v(t + k)}' for k in range(4)]
    ops += [f'v_rcp_f32 {v(t + k)}, {v(t + k)}' for k in range(4)]
    ops += [f'v_mul_f32 {v(x + k)}, {v(t + k)}, {v(x + k)}' for k in range(4)]
    return ops


WR5, X1R, XP, FL, X1L = 56, 232, 104, 244, 136
assert ZD == WD


def ureg(ks):
    return (104, 120, 164, 180, 212, 196, 136)[ks >> 2] + 4 * (ks & 3)


ul = [[(f'buffer_load_dwordx4 {v(ureg(ks), 4)}, {v(vL16)}, {s(R_WL, 4)}, {s(sT + 4 + (ks >> 2))} offen offset:{1024 * (ks & 3)}{LG}', None)]
      for ks in range(24)]
ul += [[(f'buffer_load_dwordx2 {v(ureg(24 + i) + 2 * k, 2)}, {v(vL8)}, {s(R_WL, 4)}, {s(sT + 10 + (i >> 1))} offen offset:{1024 * (2 * (i & 1) + k)}{LG}', None)
        for k in range(2)] for i in range(4)]


def flag_store(off):
    p(f'v_mov_b32 {v(FL + 1)}, 1')
    p(f's_add_u32 {s(99)}, {s(sS5)}, {s(sB4)}')
    p('s_mov_b64 exec, 1')
    gstore([f'buffer_store_dword {v(FL + 1)}, off, {s(R_WS, 4)}, {s(99)} offset:{off}'])
    p('s_mov_b64 exec, -1')


def flag_load(off):
    return [(f'buffer_load_dword {v(FL)}, {v(vGrp)}, {s(R_WS, 4)}, {s(sS5)} offen offset:{off}{PG}', None)]


def z_check(fi):
    loads = [(f's_add_u32 {s(99)}, {s(sZld)}, {1024 * fi:#x}', None)]
    loads += [(f'buffer_load_dwordx4 {v(zreg(fi + k), 4)}, {v(vL16)}, {s(R_WL, 4)}, {s(99)} offen offset:{1024 * k} sc1', None) for k in range(2)]
    return loads, lambda: p(f'v_cmp_u_f32 vcc, {v(zreg(fi) + 3)}, {v(zreg(fi + 1) + 3)}')


s4_load = [(f'buffer_load_dword {v(FL)}, off, {s(R_WS, 4)}, {s(sP4)} sc1', None)]


def flag_check(off):
    retry_until(flag_load(off), lambda: p(f'v_cmp_ne_u32 vcc, 1, {v(FL)}'))


for fi in range(nz, ZD):
    zload(fi)
assert not FIX[4]
x1l = [(f'buffer_load_dwordx4 {v(X1L + 4 * o, 4)}, {v(vL16)}, {s(R_WL, 4)}, {s(sT + 12 + o)} offen{LG}', 'x1l') for o in range(2)]
tail = ul[:16]
ROT = 112 % ZD
for ft in range(7):
    fill = {}
    if ft and OPT['k4epi']:
        st1, st2, st3 = k4_epilogue(ft - 1)
        pos = OPT['e1']
        for x in st1:
            fill.setdefault(pos, []).append(x)
            pos += 1
        pos = OPT['e2']
        for x in st2:
            fill.setdefault(pos, []).append(x)
            pos += 1
        pos = OPT['e3']
        for x in st3:
            fill.setdefault(pos, []).append(x)
            pos += 1
    if ft == 0:
        for k in range(16):
            fill[4 * k + 1] = [f'ds_write_b128 {v(245)}, {v(wreg(15 - k), 4)} offset:{16384 * ((15 - k) >> 2) + 1024 * ((15 - k) & 3)}']
    if ft == OPT['upk']:
        free = [k for k in range(64) if k % 4 != 3][-16:]
        for i in range(8):
            fill.setdefault(free[2 * i], []).append(f'v_lshlrev_b32 {v(XV + 2 * i)}, 16, {v(X1L + i)}')
            fill.setdefault(free[2 * i + 1], []).append(f'v_and_b32 {v(XV + 2 * i + 1)}, 0xffff0000, {v(X1L + i)}')
    free = [k for k in range(64) if k not in fill] + [k for k in range(64) if len(fill.get(k, [])) == 1 and fill[k][0][0] == 'v' and k % 4 != 3]
    free = sorted(free[:28])
    for k, x in zip(free, gelu_ops(Z1 + 4 * (ft + OPT['gsh']), T) if OPT['g1w'] <= ft + OPT['gsh'] < 7 else []):
        fill.setdefault(k, []).append(x)
    for a2 in range(16):
        fi = ft * 16 + a2
        chk = OPT['zs'] and fi & 1 and fi < 31
        if OPT['zs'] and fi == 0:
            retry_until(*z_check(0))
        for q in range(4):
            d = AC + 16 * (ft & 1) + 4 * q
            if chk and q == 3:
                z_check(fi + 1)[1]()
            if OPT['k4mfma'] or q == 0:
                p(f'{M16} {v(d, 4)}, {v(zreg(fi), 4)}, {a((q * 16 + a2) * 4, 4)}, {v(d, 4) if a2 else 0}')
            for x in fill.get(4 * a2 + q, []):
                k4_emit(x)
        if chk:
            retry_until(*z_check(fi + 1), tested=True)
        if OPT['zs'] and fi == OPT['q4']:
            emit([s4_load])
        if OPT['zs'] and fi + ZD == 32:
            retry_until(s4_load, lambda: p(f'v_cmp_ne_u32 vcc, 32, {v(FL)}'))
        if fi + ZD < 112:
            zload(fi + ZD)
        elif len(tail) > 16 - OPT['ntail']:
            if len(tail) == 8:
                flag_check(0)
            emit([tail.pop(0)])
        if fi + ZD >= 112:
            wring_read(fi + ZD - 112, WR5, WD, LOC_WO, ROT)
        if fi == OPT['mf']:
            p.wait_vm('pub')
            flag_store(32)
        if OPT['fine'] == 3 and (a2 == 15 or fi == 0) and fi < 111:
            stamp(f'i{fi}')
        if fi == 56:
            p.wait_vm('pub')
            flag_store(96)
        if fi == 70:
            emit([flag_load(96)])
        if fi == 84:
            flag_check(96)
        if fi == OPT['f5a']:
            p.wait_vm('pub')
            flag_store(0)
        if fi == 64:
            code_prefetch(8, 'L_k5')
        if fi == 80:
            p('L_k5:')
        if fi == OPT['x1pos']:
            emit([x1l])
        if fi == OPT['l5a']:
            emit([flag_load(0)])
stamp('K4')


def chain(*fs):
    def run():
        for f in fs:
            f()
    return run


def line(x, tag=None):
    return lambda: p(x, tag=tag)


def flag_after(tag, off):
    p.wait_vm(tag)
    flag_store(off)


def next_m1():
    if_layer(0)
    m1_load(228)
    p.end()


fill = {}


def put(pos, f):
    fill[pos] = chain(fill[pos], f) if pos in fill else f


st1, st2, st3 = k4_epilogue(6)
for k, x in enumerate(st1):
    put(OPT['k1'] + min(k, 3 + (k - 3) // 2), line(x, 'red' if k < 3 else None))
put(OPT['k2'], chain(lambda: p.wait_lgkm('red'), *[line(x) for x in st2[1:]]))
for k, x in enumerate(st3):
    put(OPT['k3'] + k // 2, (lambda y: lambda: k4_emit(y))(x))
kend = OPT['k3'] + len(st3) // 2
assert len(tail) < 8
for k, g in enumerate(tail):
    put(k, (lambda y: lambda: emit([y]))(g))
if OPT['mf'] > 111:
    put(OPT['mf'] - 112, lambda: flag_after('pub', 32))
put(OPT['mb'], lambda: emit([flag_load(32)]))
put(OPT['mc'], lambda: (flag_check(32), fine('ck5m'), emit(ul[16:20])))
for k in range(4):
    put(max(OPT['mc'], kend) + 2 + 2 * k, (lambda y: lambda: emit([y]))(ul[20 + k]))
put(OPT['fa'], lambda: (flag_after('u6', 64), fine('fl5b')))
put(OPT['fb'], lambda: emit([flag_load(64)]))
put(OPT['fc'], lambda: (flag_check(64), fine('ck5b'), emit(ul[24:])))
put(max(OPT['fc'] + 4, 64), next_m1)
gemm_r(XV, 4, 0, 28, ureg, WR5, WD, LOC_WO, first_c=True, fill=fill, preload=False, rot=ROT)


def x_pack():
    for k in range(8):
        p(f'v_cvt_pk_bf16_f32 {v(XP + k)}, {v(XV + 2 * k)}, {v(XV + 2 * k + 1)}')


stamp('K5')
if_layer(1)
x_pack()
for o in range(2):
    p(f'ds_write_b128 {v(OW)}, {v(XP + 4 * o, 4)} offset:{16 * o}')
for k in range(2):
    p(f'ds_read_b128 {v(X1R + 4 * k, 4)}, {v(OR)} offset:{1152 * k}')
for k in range(2):
    p(f'buffer_store_dwordx4 {v(X1R + 4 * k, 4)}, {v(OG)}, {s(R_OUT, 4)}, {s(sT + 14 + k)} offen sc1')
if PROF:
    p('s_waitcnt vmcnt(0)')
    stamp('end')
    p(f's_lshl_b32 {s(sT)}, s2, 2')
    p(f's_add_u32 {s(sT)}, {s(sT)}, {s(sW)}')
    p(f's_lshl_b32 {s(sT)}, {s(sT)}, 8')
    p(f's_add_u32 {s(sT)}, {s(sT)}, {PROFO:#x}')
    p(f'v_lshrrev_b32 {v(T)}, 2, {v(vL16)}')
    p(f'buffer_store_dword {v(vProf)}, {v(T)}, {s(R_WS, 4)}, {s(sT)} offen')
if OPT['diag']:
    p('s_waitcnt vmcnt(0)')
    stamp('end')
    p(f's_sub_u32 s101, s101, {s(sPidx)}')
    p('s_min_u32 s101, s101, 20000')
    p('s_mul_i32 s101, s101, 10')
    p('s_add_u32 s101, s101, 10000')
    p('L_spin:')
    p(f's_memrealtime {s(sStamp, 2)}')
    p('s_waitcnt lgkmcnt(0)')
    p(f's_sub_u32 {s(sStamp)}, {s(sStamp)}, {s(sPidx)}')
    p(f's_cmp_lt_u32 {s(sStamp)}, s101')
    p('s_cbranch_scc1 L_spin')
p('L_exit:')
p('s_endpgm')
p.end()
local_stats(XV, 16, T)
reduce_g(T, T + 1)
publish_stats(0x40000)
p('s_barrier')
if OPT['ctp'] == 0:
    ct_dma(228)
emit(wz2[:OPT['wzp0']])
x_pack()
p(f's_mov_b32 {s(sL)}, 1')
p(f's_mov_b32 {s(sLocH)}, {s(sLoc)}')
p(f's_mov_b32 {s(sLocU)}, 0')
if not OPT['reuse']:
    p(f's_add_u32 {s(R_WL)}, {s(R_WL)}, {LSTRIDE:#x}')
    p(f's_addc_u32 {s(R_WL + 1)}, {s(R_WL + 1)}, 0')
p(f's_mov_b32 {s(R_WL + 2)}, {LSTRIDE:#x}')
p(f's_mov_b32 {s(R_X)}, {s(R_WL)}')
p(f's_mov_b32 {s(R_X + 1)}, {s(R_WL + 1)}')
p(f's_mov_b32 {s(R_X + 2)}, {LSTRIDE:#x}')
p(f's_add_u32 {s(sXb)}, {s(sK2)}, {H_:#x}')
p(f's_add_u32 {s(sXo)}, {s(sXb)}, 2048')
p(f'v_mov_b32 {v(vXr)}, {v(vK2)}')
p(f'v_mov_b32 {v(vXw)}, {v(vTr)}')
p(f'v_add_u32 {v(vXw + 1)}, 576, {v(vTr)}')
p(f'v_mov_b32 {v(vHw)}, {v(vHw2)}')
p(f's_add_u32 {s(sSt)}, {s(sSt)}, 0x20000')
for r in (() if OPT['vs'] else (sArr, sRep)) + (sS2, sS4, sP4, sS5, sF2s, sF2l):
    p(f's_add_u32 {s(r)}, {s(r)}, 0x20000')
for o in range(2):
    p(f's_add_u32 {s(sT + 4 + o)}, {s(sT + 3)}, {H_ + 8192 * o:#x}')
emit([gather_loads(0x20000)])
gather_finish(0x20000)
gstore([f'buffer_store_dwordx4 {v(XP + 4 * o, 4)}, {v(vL16)}, {s(R_WL, 4)}, {s(sT + 4 + o)} offen' for o in range(2)], 'x2')
if OPT['ctp'] == 1:
    ct_dma(228)
emit(wz2[OPT['wzp0']:P1])
p('s_branch L_layer')

p.resolve([('pro', set()), ('body', {'L0'}), ('body', {'L1'})], ['W0', 'G0', 'LOC', 'RETRY'] + (['W1'] if OPT['tlb'] else []))

hdr = open('interleave_layers__spectral_fnet__mixer_gmlp__prompt.s.ref').read().split('\n')
out = [l for l in hdr if l.startswith(';') and '@launch' not in l][:14]
if PROF:
    k = STAMPS.index('T')
    out.append('; stamps: ' + ' '.join(STAMPS[:-1] + [x for x in STAMPS[k:] if x[0] != '*']))
out.append(f'; @launch grid=(256,1,1) block=(256,1,1) lds={LDS_BYTES}')
out += ['.amdgcn_target "amdgcn-amd-amdhsa--gfx950"', '.text', f'.globl {NAME}', '.p2align 8', f'.type {NAME},@function']
out.append(p.text())
out.append('.p2align 8')
out.append('.type L_table,@object')
out.append('L_table:')
tab = const_table()
for i in range(0, tab.size, 8):
    out.append('.long ' + ','.join(f'{x:#x}' for x in tab[i:i + 8]))
out.append(f'.size L_table, {tab.size * 4}')
out.append('L_end:')
out += ['.section .rodata,"a"', '.p2align 6', f'.amdhsa_kernel {NAME}',
        '  .amdhsa_next_free_vgpr 512', '  .amdhsa_next_free_sgpr 102', '  .amdhsa_accum_offset 256',
        '  .amdhsa_group_segment_fixed_size 0', '  .amdhsa_kernarg_size 104', '  .amdhsa_user_sgpr_count 2',
        '  .amdhsa_user_sgpr_kernarg_segment_ptr 1', '  .amdhsa_system_sgpr_workgroup_id_x 1',
        '  .amdhsa_float_denorm_mode_32 3', '.end_amdhsa_kernel', '']
open(sys.argv[1], 'w').write('\n'.join(out))
print(p.stats(), file=sys.stderr)
```

```python
import sys
import struct
import numpy as np
from asmlib import Prog, v, a, s

NAME = 'interleave_layers__spectral_fnet__mixer_gmlp__prompt_kernel'
OPT = dict(prof=0, k4mfma=1, k4load=1, k4epi=1, zd=12, pre3=6, pre5=16, loc=1, locd=7, x1pos=58, lg=0, pg=0, sg=0, wspev=8, x1=2,
           g2ev=12, z1a=0, gpos=18, z1arr=6, wo4=16, ctp=2, wzp0=0, wzp1=0, wzp2=0, wzp3=8, reuse=0, tlb=0, e1=4, e2=14, e3=24, f5a=87, l5a=95, mb=8, mc=20, fa=36, fb=48, fc=60, hpf=0, pre=1, we=2, hsp=4, algn=0, xe=4, gb=1, xa=8, to=40000, wf2=1, cmn='044444', l0a=2, noe=0, pz=1, pv=4, vs=2, zp0=0, zin=1, zsp=3, zs=1, q4=8, upk=4, gsh=0, cpf=12, k1=3, k2=9, k3=15, mf=111, fixev=0, woa=8, wosp=4, g1w=1, l0n='0444466', ann=0, fix='6/7///', ntail=12, lnow=4, fine=0, sched='//d1/d2r0d3r1d4p0r2d5p1r3d6p2r4qd7p3/r5p4/a6p5/a7/', ctpos=0, pk=3, nomean=0,  z2sp=4, early=1, wfirst=0, nobg=0, few=0, diag='')
for arg in sys.argv[2:]:
    k, val = arg.split('=')
    OPT[k] = val if k in ('diag', 'sched', 'fix', 'l0n', 'cmn') else int(val)
PROF = OPT['prof']
LG = (' sc1', '', ' nt', ' sc0')[OPT['lg']]
PG = (' sc1', '', ' nt')[OPT['pg']]
SG = ('', ' nt', ' sc0')[OPT['sg']]


WI, WO, FLAGS, STATS, X2, PROFO = 0, 0x200000, 0x300000, 0x340000, 0x400000, 0x600000
LBASE, LSTRIDE = 0x800000, 0x1000000
V_, H_, X1_, Z_, U_ = 0, 0x200000, 0x400000, 0x600000, 0xA00000
WB, CT, SCR, LDS_BYTES = 0, 114688, 114688 + 22528, 163840
CT_FA, CT_TW, CT_FB, CT_M1 = 0, 6144, 10240, 14336

R_X, R_WIN, R_WSP, R_WOUT, R_OUT, R_WS, R_DBG, R_BSP, R_WL = 4, 8, 12, 16, 20, 24, 28, 32, 36
sW, sC, sB, sL, sTO = 40, 41, 42, 43, 44
sVst, sVld, sH, sK2, sXo, sXb, sZst, sZld, sUst, sUld = 45, 46, 47, 48, 49, 50, 51, 52, 53, 54
sLoc, sSt, sWI, sWO, sWsp, sSelLo, sSelHi, sPidx, sOnes = 55, 56, 57, 58, 59, 60, 61, 62, 63
sArr, sRep, sS2, sS4, sS5, sB128, sDm, sDo = 64, 65, 66, 67, 68, 69, 70, 71
sF2s, sF2l = 86, 87
sB4, sP4, sG0, sLocH, sLocU = 3, 88, 75, 89, 100
sT = 72
sStamp = 90
vL16, vTw, vK2, vXr, vVld, vVst, vBsp, vZst = 0, 1, 2, 3, 4, 5, 6, 7
vC2 = 8
vHw, vHr, vUw, vUr, vStl, vL8, vTr, vPoll, vArr, vProf, vGK = 16, 17, 18, 19, 20, 21, 22, 23, 24, 25, 26
vRed = 28
T = 32
XV = 40
M1 = 184


def f2u(x):
    return struct.unpack('<I', struct.pack('<f', x))[0]


def bf16(x):
    u = np.ascontiguousarray(x, dtype=np.float32).view(np.uint32)
    return ((u + 0x7FFF + ((u >> 16) & 1)) >> 16).astype(np.uint32)


def const_table():
    l = np.arange(64)[:, None]
    j = np.arange(8)[None, :]
    nn, h = l & 31, l >> 5
    e1 = 16 * ((nn >> 2) & 1) + 4 * (nn >> 3) + (nn & 3)
    frags = []

    def pack(x):
        x = np.where(np.abs(x) < 1e-12, 0.0, x)
        b = bf16(x)
        return (b[:, 0::2] | (b[:, 1::2] << 16)).astype(np.uint32)
    ang = [2 * np.pi * ((16 * dh + 8 * h + j) * e1 % 32) / 32 for dh in range(2)]
    frags += [pack(np.cos(ang[0])), pack(np.cos(ang[1])), pack(np.sin(ang[0])), pack(np.sin(ang[1])),
              pack(-np.sin(ang[0])), pack(-np.sin(ang[1]))]
    d2 = 8 * (j >> 2) + 4 * h + (j & 3)
    tw = 2 * np.pi * (d2 * e1) / 512
    tc = np.cos(tw).astype(np.float32).view(np.uint32)
    ts = np.sin(tw).astype(np.float32).view(np.uint32)
    frags += [tc[:, :4], tc[:, 4:], ts[:, :4], ts[:, 4:]]
    ps = 2 * np.pi * (d2 * (nn & 15) % 16) / 16
    for row in range(2):
        m = ((nn >> 4) == row)
        frags += [pack(np.cos(ps) * m), pack(np.sin(ps) * m)]
    n, g = l & 15, l >> 4
    for jq in range(4):
        for ks in range(2):
            rho = 32 * ks + 16 * (j >> 2) + 4 * g + (j & 3)
            s1 = 16 * (rho >> 4) + 2 * (rho & 7) + ((rho >> 3) & 1)
            jj = 8 * jq + (n >> 1)
            th = 2 * np.pi * (s1 * jj % 64) / 64
            x = np.where((n & 1) == 0, np.cos(th), np.where(jj == 0, (-1.0) ** s1, -np.sin(th)))
            frags.append(pack(x))
    tab = np.concatenate([np.ascontiguousarray(f).reshape(-1) for f in frags])
    assert tab.size == 22 * 256
    return tab


p = Prog()
M16 = 'v_mfma_f32_16x16x32_bf16'
M32 = 'v_mfma_f32_32x32x16_bf16'


STAMPS = []


def stamp(name):
    if OPT['few'] and name in ('karg', 'start', 'setup', 'init', 'arr1', 'Vst', 'pub3', 'z1a', 'S3', 'Zst', 'arr4', 'win4') + (() if OPT['fine'] else ('Vld', 'K2', 'arr2', 'K5')):
        return
    STAMPS.append(name)
    if OPT['diag'] and OPT['diag'][:-1] == name:
        p(f's_memrealtime {s(sStamp, 2)}')
        p('s_waitcnt lgkmcnt(0)')
        p(f's_cmp_eq_u32 {s(sL)}, {OPT["diag"][-1]}')
        p(f's_cselect_b32 s101, {s(sStamp)}, s101')
    if PROF:
        p(f'{"s_memtime" if PROF == 2 else "s_memrealtime"} {s(sStamp, 2)}')
        p('s_waitcnt lgkmcnt(0)')
        p('s_mov_b32 s101, m0')
        p(f's_mov_b32 m0, {s(sPidx)}')
        p(f'v_writelane_b32 {v(vProf)}, {s(sStamp)}, m0')
        p('s_mov_b32 m0, s101')
        p(f's_add_u32 {s(sPidx)}, {s(sPidx)}, 1')


def fine(name):
    if OPT['fine'] == 1:
        stamp(name)


def srd(r, lo, hi, size):
    p(f's_mov_b32 {s(r)}, {s(lo)}')
    p(f's_and_b32 {s(r + 1)}, {s(hi)}, 0xffff')
    p(f's_mov_b32 {s(r + 2)}, {size:#x}')
    p(f's_mov_b32 {s(r + 3)}, 0x20000')


def if_wave0():
    p(f's_cmp_eq_u32 {s(sW)}, 0')
    p.begin('W0', 's_cbranch_scc0')


def if_layer(l):
    p(f's_cmp_eq_u32 {s(sL)}, {l}')
    p.begin(f'L{l}', 's_cbranch_scc0')


def spin_tail(top, done):
    p(f's_cbranch_vccz {done}')
    p(f's_sub_u32 {s(sTO)}, {s(sTO)}, 1')
    p(f's_cbranch_scc0 {top}')
    p(f's_mov_b32 {s(sTO)}, 0')
    p(f'{done}:')


def arrive(soff, nrep):
    p('s_barrier')
    if_wave0()
    p(f'v_mov_b32 {v(T)}, 1')
    p(f's_mov_b64 exec, {(1 << nrep) - 1:#x}')
    p(f'buffer_atomic_add {v(T)}, {v(vArr)}, {s(R_WS, 4)}, {s(soff)} offen sc1')
    p('s_mov_b64 exec, -1')
    p.end()


def gstore(lines, tag=None, local=False, flag=None):
    if not OPT['loc'] or (tag and not local):
        for x in lines:
            p(x + ' sc1', tag=tag)
        return
    p(f's_cmp_eq_u32 {s(flag or sLoc)}, 0')
    p.begin_ool('!LOC', 's_cbranch_scc1')
    for x in lines:
        p(x + ' sc1', tag=tag)
    p.end_ool(('LOC', lambda: [p(x + SG, tag=tag) for x in lines]))


def arrive_group(soff, off=0):
    p('s_barrier')
    if_wave0()
    p(f'v_mov_b32 {v(T)}, 1')
    p(f's_add_u32 {s(99)}, {s(soff)}, {s(sB4)}')
    p('s_mov_b64 exec, 1')
    gstore([f'buffer_store_dword {v(T)}, off, {s(R_WS, 4)}, {s(99)} offset:{off}'])
    p('s_mov_b64 exec, -1')
    p.end()


def poll(soff, vaddr, need, tag=None):
    if_wave0()
    top, done = p.label('poll'), p.label('pdone')
    p(f'{top}:')
    if vaddr is not None:
        p(f'buffer_load_dword {v(T)}, {v(vaddr)}, {s(R_WS, 4)}, {s(soff)} offen' + (PG if vaddr == vGrp else ' sc1'))
    else:
        p(f'buffer_load_dword {v(T)}, off, {s(R_WS, 4)}, {s(soff)} sc1')
    p('s_waitcnt vmcnt(0)')
    p(f'v_cmp_ne_u32 vcc, {need}, {v(T)}')
    spin_tail(top, done)
    p.end()
    if tag:
        p.wait_vm(tag)
    p('s_barrier')


def reduce_g(x, y):
    p(f'v_permlane16_swap_b32 {v(x)}, {v(y)}')
    p(f'v_add_f32 {v(x)}, {v(x)}, {v(y)}')
    p(f'v_mov_b32 {v(y)}, {v(x)}')
    p(f'v_permlane32_swap_b32 {v(x)}, {v(y)}')
    p(f'v_add_f32 {v(x)}, {v(x)}, {v(y)}')
    p(f'v_mov_b32 {v(y)}, {v(x)}')
    p(f'v_permlane16_swap_b32 {v(x)}, {v(y)}')


def finish_stats(x, n):
    y, m = x + 1, x + 2
    p(f'v_mul_f32 {v(m)}, {f2u(1.0 / n):#x}, {v(x)}')
    p(f'v_mul_f32 {v(y)}, {f2u(1.0 / n):#x}, {v(y)}')
    p(f'v_fma_f32 {v(y)}, -{v(m)}, {v(m)}, {v(y)}')
    p(f'v_max_f32 {v(y)}, 0, {v(y)}')
    p(f'v_add_f32 {v(y)}, {f2u(1e-5):#x}, {v(y)}')
    p(f'v_rsq_f32 {v(x)}, {v(y)}')
    p(f'v_mul_f32 {v(y)}, -{v(m)}, {v(x)}')


def norm_pack(src, n, st, tmp, dst):
    for i in range(0, n, 2):
        p(f'v_pk_fma_f32 {v(tmp + i, 2)}, {v(src + i, 2)}, {v(st, 2)}, {v(st, 2)} op_sel:[0,0,1] op_sel_hi:[1,0,1]')
    for i in range(0, n, 2):
        p(f'v_cvt_pk_bf16_f32 {v(dst + i // 2)}, {v(tmp + i)}, {v(tmp + i + 1)}')


def local_stats(src, n, out):
    sa, sq = out + 2, out + 4
    p(f'v_pk_add_f32 {v(sa, 2)}, {v(src, 2)}, {v(src + 2, 2)}')
    p(f'v_pk_mul_f32 {v(sq, 2)}, {v(src, 2)}, {v(src, 2)}')
    p(f'v_pk_fma_f32 {v(sq, 2)}, {v(src + 2, 2)}, {v(src + 2, 2)}, {v(sq, 2)}')
    for i in range(4, n, 2):
        p(f'v_pk_add_f32 {v(sa, 2)}, {v(sa, 2)}, {v(src + i, 2)}')
        p(f'v_pk_fma_f32 {v(sq, 2)}, {v(src + i, 2)}, {v(src + i, 2)}, {v(sq, 2)}')
    p(f'v_add_f32 {v(out)}, {v(sa)}, {v(sa + 1)}')
    p(f'v_add_f32 {v(out + 1)}, {v(sq)}, {v(sq + 1)}')


def unpack(src, n, dst):
    for i in range(n):
        p(f'v_lshlrev_b32 {v(dst + 2 * i)}, 16, {v(src + i)}')
        p(f'v_and_b32 {v(dst + 2 * i + 1)}, 0xffff0000, {v(src + i)}')


def publish_stats(area):
    p(f's_add_u32 {s(sT)}, {s(sSt)}, {s(sB128)}')
    if area:
        p(f's_add_u32 {s(sT)}, {s(sT)}, {area:#x}')
    p('s_mov_b64 exec, 0xffff')
    gstore([f'buffer_store_dwordx2 {v(T, 2)}, {v(vStl)}, {s(R_WS, 4)}, {s(sT)} offen'])
    p('s_mov_b64 exec, -1')


def gather_loads(area):
    return [(f's_add_u32 {s(99)}, {s(sSt)}, {area:#x}', None),
            (f'buffer_load_dwordx2 {v(T + 4, 2)}, {v(vStl)}, {s(R_WS, 4)}, {s(99)} offen{PG}', None),
            (f'buffer_load_dwordx2 {v(T + 6, 2)}, {v(vStl)}, {s(R_WS, 4)}, {s(99)} offen offset:128{PG}', None)]


def retry_until(loads, test, tested=False, after=None):
    if not tested:
        test()
    p.begin_ool('RETRY', 's_cbranch_vccnz')
    top, done = p.label('rt'), p.label('rdone')
    p(f'{top}:')
    emit([loads])
    p('s_waitcnt vmcnt(0)')
    test()
    spin_tail(top, done)
    if after:
        emit([after])
    p.end_ool()


def gather_finish(area):
    def test():
        p(f'v_add_f32 {v(T)}, {v(T + 4)}, {v(T + 6)}')
        p(f'v_add_f32 {v(T + 1)}, {v(T + 5)}, {v(T + 7)}')
        p(f'v_cmp_u_f32 vcc, {v(T)}, {v(T + 1)}')
    retry_until(gather_loads(area), test)
    reduce_g(T, T + 1)


LOC_Z2 = lambda i: 1024 * i
LOC_Z1 = lambda i: 1024 * (i - 48) if i >= 48 else CT + 1024 * i
LOC_WO = lambda i: 1024 * (i - 48) if i >= 48 else 65536 + 1024 * i


def w_dma_ops(sbase, extra, loc, name):
    ops = []
    for j in range(7):
        for i in range(4):
            o = []
            if i == 0:
                o.append((f's_add_u32 m0, {s(sDm)}, {loc(16 * j):#x}', None))
                o.append((f's_add_u32 {s(sDo)}, {s(sbase)}, {extra + 16384 * j:#x}', None))
            if OPT['nobg'] & 1:
                o.append(('s_nop 0', None))
            else:
                o.append((f'buffer_load_dwordx4 {v(vL16)}, {s(R_WS, 4)}, {s(sDo)} offen offset:{i * 1024} lds', f'{name}{j}'))
            ops.append(o)
    return ops


def emit(groups):
    for g in groups:
        for text, tag in g:
            p(text, tag=tag)


def wsp_dma_ops(batch):
    q, ih = batch >> 1, batch & 1
    ops = []
    for il in range(4):
        for rh in range(2):
            if batch < 2:
                imm, so = 128 * il, 80 + batch
                o = [(f's_add_u32 m0, {s(78 + batch)}, {1024 + 2048 * il + 1024 * rh - imm}', None)]
            else:
                imm, so = 512 * ih + 128 * il, sDo
                o = [(f's_add_u32 m0, {s(sWsp)}, {1024 + 8192 * (batch % 3) + 2048 * il + 1024 * rh - imm}', None)]
                if not ops:
                    o += [(f's_add_u32 {s(sDo)}, {s(sW)}, {q}', None), (f's_and_b32 {s(sDo)}, {s(sDo)}, 3', None),
                          (f's_lshl_b32 {s(sDo)}, {s(sDo)}, 21', None)]
            o.append((f'buffer_load_dwordx4 {v(vWspA + rh)}, {s(R_WSP, 4)}, {s(so)} offen offset:{imm} lds', f'wsp{max(batch, 1)}'))
            ops.append(o)
    return ops


def table_addr(dst, soff):
    p(f'v_add_u32 {v(dst)}, {s(soff)}, {v(vL16)}')
    p(f'v_mov_b32 {v(dst + 1)}, {s(93)}')
    p(f'v_add_co_u32 {v(dst)}, vcc, {s(92)}, {v(dst)}')
    p(f'v_addc_co_u32 {v(dst + 1)}, vcc, 0, {v(dst + 1)}, vcc')


def code_prefetch(bit, lo):
    if not OPT['cpf'] & bit:
        return
    if_layer(0)
    p(f's_lshr_b32 {s(99)}, s2, 3')
    p(f's_lshl_b32 {s(99)}, {s(99)}, 2')
    p(f's_add_u32 {s(99)}, {s(99)}, {s(sW)}')
    p(f's_lshl_b32 {s(99)}, {s(99)}, 7')
    p(f's_sub_u32 {s(98)}, {s(92)}, L_table-{lo}')
    p(f's_subb_u32 {s(97)}, {s(93)}, 0')
    p(f's_add_u32 {s(98)}, {s(98)}, {s(99)}')
    p(f's_addc_u32 {s(97)}, {s(97)}, 0')
    p(f'v_mov_b32 {v(T + 6)}, {s(98)}')
    p(f'v_mov_b32 {v(T + 7)}, {s(97)}')
    p('s_mov_b64 exec, 1')
    p(f'global_load_dword {v(251)}, {v(T + 6, 2)}, off')
    p('s_mov_b64 exec, -1')
    p.end()


def poison(site, reg):
    todo = [(sZst, vZst, 0)] if OPT['zs'] and OPT['pz'] == site else []
    todo += [(sVst, vVst, 0), (sVst, vVst, 0x10000)] if OPT['vs'] and OPT['pv'] == site else []
    if not todo:
        return
    if_layer(0)
    for k in range(4):
        p(f'v_mov_b32 {v(reg + k)}, -1')
    for base, va, off in todo:
        p(f's_add_u32 {s(99)}, {s(base)}, {LSTRIDE + off:#x}')
        p(f'buffer_store_dwordx4 {v(reg, 4)}, {v(va)}, {s(R_WL, 4)}, {s(99)} offen sc1', tag='pub' if site == 3 else None)
    p.end()


def m1_load(dst):
    p(f's_lshl_b32 {s(99)}, {s(sW)}, 11')
    p(f's_add_u32 {s(99)}, {s(99)}, {CT_M1}')
    table_addr(dst, 99)
    for k in range(2):
        p(f'global_load_dwordx4 {v(M1 + 4 * k, 4)}, {v(dst, 2)}, off offset:{1024 * k}')


def ct_dma(dst):
    p(f's_mul_i32 {s(99)}, {s(sW)}, 3584')
    p(f's_add_u32 m0, {s(99)}, {CT}')
    table_addr(dst, 99)
    for off in (0, 1024, 2048):
        p(f'global_load_lds_dwordx4 {v(dst, 2)}, off offset:{off}', tag='ct')
    p('s_mov_b32 exec_hi, 0')
    p(f'global_load_lds_dwordx4 {v(dst, 2)}, off offset:3072', tag='ct')
    p('s_mov_b64 exec, -1')


def wsp_dma(batch):
    p.bg = wsp_dma_ops(batch)
    p.bg_emit()


def wsp_read(batch, reg):
    p.wait_vm(f'wsp{max(batch, 1)}')
    for il in range(4):
        for o in range(2):
            p(f'ds_read_b128 {v(reg + 4 * (2 * il + o), 4)}, {v(vWspR + o)} offset:{8192 * (batch % 3) + 2048 * il}', tag=f'wr{batch}')


def wsp_park(batch):
    q, ih = batch >> 1, batch & 1
    p.wait_vm(f'wsp{max(batch, 1)}')
    for il in range(4):
        for o in range(2):
            p(f'ds_read_b128 {a(64 * q + 32 * o + 4 * (4 * ih + il), 4)}, {v(vWspR + o)} offset:{8192 * (batch % 3) + 2048 * il}', tag=f'wr{batch}')


def wsp_fix(units, reg, first=()):
    if not units and not first:
        return
    if_layer(0)
    emit(first)
    for u in units:
        base = 32 * int(u)
        for k in range(32):
            p(f'v_accvgpr_read_b32 {v(reg + k)}, {a(base + k)}')
        k = 0
        for ip in range(4):
            for al in range(8):
                t = reg + 32 + (k & 3)
                k += 1
                lo, hi = reg + 8 * ip + (al >> 1), reg + 8 * ip + 4 + (al >> 1)
                p(f'v_perm_b32 {v(t)}, {v(hi)}, {v(lo)}, {s(sSelHi if al & 1 else sSelLo)}')
                p(f'v_accvgpr_write_b32 {a(base + 4 * al + ip)}, {v(t)}')
    p.end()


def wsp_perm(batch, reg):
    q, ih = batch >> 1, batch & 1
    k = 0
    for ipl in range(2):
        for o in range(2):
            for al in range(8):
                t = T + (k & 7)
                k += 1
                lo, hi = reg + 4 * (4 * ipl + o) + (al >> 1), reg + 4 * (4 * ipl + 2 + o) + (al >> 1)
                p(f'v_perm_b32 {v(t)}, {v(hi)}, {v(lo)}, {s(sSelHi if al & 1 else sSelLo)}')
                p(f'v_accvgpr_write_b32 {a((q * 16 + 8 * o + al) * 4 + 2 * ih + ipl)}, {v(t)}')


def wring_read(idx, ring, depth, loc, rot=0):
    base, off = (vL16, vL16hi, vL16h2)[loc(idx) >> 16], loc(idx) & 0xffff
    p(f'ds_read_b128 {v(ring + 4 * ((idx + rot) % depth), 4)}, {v(base)} offset:{off}', tag=f'w{idx}')


def gemm_r(acc, nt, ks0, ks1, act, ring, depth, loc, first_c=None, fill=None, preload=True, last=None, rot=0):
    fill = dict(fill or {})
    if OPT['nobg'] & 2 and loc is LOC_Z1:
        raise SystemExit('nobg&2 unsupported')
    lo, hi = nt * ks0, nt * ks1
    if preload:
        for idx in range(lo, min(lo + depth, last or hi)):
            wring_read(idx, ring, depth, loc)
    for idx in range(lo, hi):
        ks, t = divmod(idx, nt)
        if (idx - lo) % OPT['we'] == 0:
            p.wait_lgkm(f'w{min(idx + OPT["we"] - 1, hi - 1)}')
        c = v(acc + 4 * t, 4) if (ks or first_c) else '0'
        p(f'{M16} {v(acc + 4 * t, 4)}, {v(ring + 4 * ((idx + rot) % depth), 4)}, {v(act(ks) if callable(act) else act + 4 * ks, 4)}, {c}')
        if idx + depth < (last or hi):
            wring_read(idx + depth, ring, depth, loc, rot)
        f = fill.pop(idx, None)
        if callable(f):
            f()
        elif f:
            emit([f])
    assert not fill


def spread(groups, first, step):
    return {first + step * k: g for k, g in enumerate(groups)}


def gelu(x, n, tmp):
    for i in range(0, n, 4):
        t = tmp + (i & 4)
        for k in (0, 2):
            p(f'v_pk_mul_f32 {v(t + k, 2)}, {v(x + i + k, 2)}, {v(x + i + k, 2)}')
        for k in (0, 2):
            p(f'v_pk_fma_f32 {v(t + k, 2)}, {v(t + k, 2)}, {v(vGK, 2)}, {v(vGK, 2)} op_sel:[0,0,1] op_sel_hi:[1,0,1]')
        for k in (0, 2):
            p(f'v_pk_mul_f32 {v(t + k, 2)}, {v(t + k, 2)}, {v(x + i + k, 2)}')
        for k in range(4):
            p(f'v_exp_f32 {v(t + k)}, {v(t + k)}')
        for k in (0, 2):
            p(f'v_pk_add_f32 {v(t + k, 2)}, {v(t + k, 2)}, 1.0 op_sel_hi:[1,0]')
        for k in range(4):
            p(f'v_rcp_f32 {v(t + k)}, {v(t + k)}')
        for k in (0, 2):
            p(f'v_pk_mul_f32 {v(x + i + k, 2)}, {v(t + k, 2)}, {v(x + i + k, 2)}')


vWspA, vWspR = 244, 236
vHw2, vXw, vGrp = 250, 246, 254
vL16hi, vL16h2 = 252, 255
p.section('pro')
p(f'{NAME}:')
p(f's_cmp_ge_u32 s2, 256')
p('s_cbranch_scc1 L_exit')
SRDS = ((R_X, 0, 2097152), (R_WS, 96, LBASE), (R_WIN, 48, 512 * 3584), (R_WOUT, 72, 896 * 1024), (R_WSP, 56, 2048 * 4096),
        (R_BSP, 64, 4096), (R_WL, 96, 2 * LSTRIDE), (R_DBG, 88, 256), (R_OUT, 80, 2097152))
for r, off, size in SRDS[:6]:
    p(f's_load_dwordx2 {s(r, 2)}, s[0:1], {off}')
if OPT['diag']:
    p(f's_memrealtime {s(sStamp, 2)}')
if PROF:
    p(f'{"s_memtime" if PROF == 2 else "s_memrealtime"} {s(sStamp, 2)}')
p(f's_getpc_b64 {s(92, 2)}')
p('L_pc:')
lane, n_, g_, t0, t1, t2, t3, tid = 100, 101, 102, 103, 104, 105, 106, 107
p(f'v_mov_b32 {v(tid)}, v0')
p(f's_lshr_b32 {s(94)}, s2, 3')
p(f's_lshl_b32 {s(94)}, {s(94)}, 4')
p(f'v_lshrrev_b32 {v(T)}, 4, v0')
p(f'v_add_u32 {v(T)}, {s(94)}, {v(T)}')
p(f'v_lshlrev_b32 {v(T)}, 7, {v(T)}')
p(f'v_min_u32 {v(T)}, L_end-L_pc-4, {v(T)}')
p(f'v_mov_b32 {v(T + 3)}, {s(93)}')
p(f'v_add_co_u32 {v(T + 2)}, vcc, {s(92)}, {v(T)}')
p(f'v_addc_co_u32 {v(T + 3)}, vcc, 0, {v(T + 3)}, vcc')
p(f'global_load_dword {v(253)}, {v(T + 2, 2)}, off')
p(f'v_lshrrev_b32 {v(t0)}, 6, v0')
p(f'v_and_b32 {v(lane)}, 63, v0')
p(f'v_readfirstlane_b32 {s(sW)}, {v(t0)}')
p(f'v_and_b32 {v(n_)}, 15, {v(lane)}')
p(f'v_lshrrev_b32 {v(g_)}, 4, {v(lane)}')
p(f'v_lshlrev_b32 {v(vL16)}, 4, {v(lane)}')
for r, off, size in SRDS:
    p(f's_mov_b32 {s(r + 2)}, {size:#x}')
    p(f's_mov_b32 {s(r + 3)}, 0x20000')
p(f's_lshr_b32 {s(94)}, s2, 3')
p(f's_and_b32 {s(sB)}, {s(94)}, 7')
p(f's_and_b32 {s(95)}, s2, 7')
p(f's_lshl_b32 {s(95)}, {s(95)}, 1')
p(f's_lshr_b32 {s(96)}, {s(94)}, 4')
p(f's_add_u32 {s(95)}, {s(95)}, {s(96)}')
p(f's_sub_u32 {s(96)}, 32, {s(95)}')
p(f's_cmp_eq_u32 {s(95)}, 0')
p(f's_cselect_b32 {s(96)}, 16, {s(96)}')
p(f's_bitcmp1_b32 {s(94)}, 3')
p(f's_cselect_b32 {s(sC)}, {s(96)}, {s(95)}')
p(f's_mov_b32 {s(sL)}, 0')
p(f's_mov_b32 {s(sTO)}, {OPT["to"]}')
p(f's_lshl_b32 {s(sB128)}, {s(sB)}, 7')
p(f's_lshl_b32 {s(sB4)}, {s(sB)}, 2')
p(f's_getreg_b32 {s(sLoc)}, hwreg(HW_REG_XCC_ID)')
p(f's_mov_b32 {s(sOnes)}, 0x3f803f80')
p(f's_mov_b32 {s(sSelLo)}, 0x05040100')
p(f's_mov_b32 {s(sSelHi)}, 0x07060302')
p(f's_lshl_b32 {s(94)}, {s(sW)}, 9')
p(f's_add_u32 {s(94)}, {s(94)}, {s(sC)}')
p(f'v_and_b32 {v(t0)}, 28, {v(lane)}')
p(f'v_lshlrev_b32 {v(t0)}, 4, {v(t0)}')
p(f'v_and_b32 {v(t1)}, 32, {v(lane)}')
p(f'v_add3_u32 {v(t0)}, {v(t0)}, {v(t1)}, {s(94)}')
p(f'v_lshlrev_b32 {v(t2)}, 10, {v(t0)}')
p(f'v_and_b32 {v(t1)}, 3, {v(lane)}')
p(f'v_lshl_add_u32 {v(t0)}, {v(t1)}, 5, {v(t2)}')
p(f'v_lshl_add_u32 {v(t2)}, {v(t1)}, 4, {v(t2)}')
p(f'v_and_b32 {v(t3)}, 7, {v(n_)}')
p(f'v_lshlrev_b32 {v(t3)}, 6, {v(t3)}')
p(f'v_and_b32 {v(t1)}, 8, {v(n_)}')
p(f'v_lshlrev_b32 {v(t1)}, 2, {v(t1)}')
p(f'v_add3_u32 {v(t3)}, {v(t3)}, {v(t1)}, {s(94)}')
p(f'v_lshlrev_b32 {v(t3)}, 1, {v(t3)}')
p(f's_lshl_b32 {s(96)}, {s(sC)}, 2')
p(f's_add_u32 {s(96)}, {s(96)}, {s(sW)}')
p(f's_lshl_b32 {s(sSt)}, {s(96)}, 10')
p(f's_add_u32 {s(sSt)}, {s(sSt)}, {STATS:#x}')
p(f's_lshl_b32 {s(96)}, {s(sC)}, 10')
p(f's_add_u32 {s(sS2)}, {s(96)}, {FLAGS + 0x10000:#x}')
p(f's_lshl_b32 {s(96)}, {s(sW)}, 7')
p(f's_add_u32 {s(96)}, {s(96)}, 256')
p(f's_add_u32 {s(sS5)}, {s(96)}, {s(sS2)}')
p(f'v_lshlrev_b32 {v(vStl)}, 3, {v(n_)}')
p(f'v_lshl_add_u32 {v(vStl)}, {v(g_)}, 8, {v(vStl)}')
p(f's_lshl_b32 {s(96)}, {s(sB)}, 2')
p(f's_add_u32 {s(96)}, {s(96)}, {s(sW)}')
p(f's_mul_i32 {s(sZld)}, {s(96)}, 114688')
p(f's_add_u32 {s(sZld)}, {s(sZld)}, {Z_:#x}')
p(f's_and_b32 {s(96)}, {s(sC)}, 7')
p(f's_lshl_b32 {s(96)}, {s(96)}, 10')
p(f's_lshr_b32 {s(97)}, {s(sC)}, 3')
p(f's_lshl_b32 {s(97)}, {s(97)}, 8')
p(f's_add_u32 {s(96)}, {s(96)}, {s(97)}')
p(f's_add_u32 {s(sZst)}, {s(sZld)}, {s(96)}')
p(f'v_and_b32 {v(T)}, 1, {v(g_)}')
p(f'v_lshlrev_b32 {v(T)}, 14, {v(T)}')
p(f'v_and_b32 {v(T + 1)}, 2, {v(g_)}')
p(f'v_lshl_add_u32 {v(T)}, {v(T + 1)}, 12, {v(T)}')
p(f'v_lshl_add_u32 {v(vZst)}, {v(n_)}, 4, {v(T)}')
EI = 64
for k in range(4):
    p(f'v_mov_b32 {v(116 + k)}, -1')
p(f'v_mov_b32 {v(EI)}, -1')
p(f'v_mov_b32 {v(EI + 1)}, -1')
p(f'v_mov_b32 {v(EI + 2)}, {s(sLoc)}')
p(f'v_mov_b32 {v(EI + 3)}, 0')
p(f'v_and_b32 {v(EI + 4)}, 16, {v(vL16)}')
p(f'v_lshlrev_b32 {v(EI + 4)}, 13, {v(EI + 4)}')
p(f'v_and_b32 {v(EI + 5)}, 0x60, {v(vL16)}')
p(f'v_or_b32 {v(EI + 4)}, {v(EI + 4)}, {v(EI + 5)}')
XR = 120


def x_loads(i0, i1):
    for i in range(i0, i1):
        if i == 0:
            p(f'buffer_load_dwordx4 {v(XR, 4)}, {v(t0)}, {s(R_X, 4)}, {s(sB128)} offen')
            p(f'buffer_load_dwordx4 {v(XR + 4, 4)}, {v(t0)}, {s(R_X, 4)}, {s(sB128)} offen offset:16')
            continue
        p(f's_add_u32 {s(99)}, {s(sB128)}, {128 * i}')
        p(f's_and_b32 {s(99)}, {s(99)}, 0x3ff')
        p(f'buffer_load_dwordx4 {v(XR + 8 * i, 4)}, {v(t2)}, {s(R_X, 4)}, {s(99)} offen')
        p(f'buffer_load_dwordx4 {v(XR + 8 * i + 4, 4)}, {v(t2)}, {s(R_X, 4)}, {s(99)} offen offset:64')


def first_requests():
    p('s_waitcnt lgkmcnt(0)')
    if OPT['diag']:
        p(f's_mov_b32 {s(sPidx)}, {s(sStamp)}')
        p(f's_mov_b32 s101, {s(sStamp)}')
    if PROF:
        p(f'v_mov_b32 {v(vProf)}, 0')
        p(f'v_writelane_b32 {v(vProf)}, {s(sStamp)}, 0')
        p(f's_mov_b32 {s(sPidx)}, 1')
        STAMPS.append('entry')
    stamp('karg')
    x_loads(0, OPT['x1'])
    for r, off, size in SRDS[7:]:
        p(f's_load_dwordx2 {s(r, 2)}, s[0:1], {off}')
    p(f's_lshl_b32 {s(96)}, s2, 2')
    p(f's_add_u32 {s(sG0)}, {s(96)}, {s(sW)}')
    p(f's_cmp_eq_u32 {s(sG0)}, 3')
    p.begin('G0', 's_cbranch_scc0')
    p(f'v_lshlrev_b32 {v(EI + 6)}, 4, {v(vL16)}')
    for k in range(2):
        p(f's_mov_b32 {s(99)}, {FLAGS + 0x4000 * k:#x}')
        p(f'buffer_store_dword {v(EI + 3)}, {v(EI + 6)}, {s(R_WS, 4)}, {s(99)} offen sc1', tag='z')
    p.end()
    p(f's_and_b32 {s(96)}, {s(sB)}, 3')
    p(f's_lshl_b32 {s(96)}, {s(96)}, 3')
    p(f's_and_b32 {s(97)}, {s(sB)}, 4')
    p(f's_add_u32 {s(96)}, {s(96)}, {s(97)}')
    p(f's_add_u32 {s(96)}, {s(96)}, {s(sW)}')
    p(f's_lshl_b32 {s(96)}, {s(96)}, 2')
    p(f's_add_u32 {s(97)}, {s(sS2)}, 768')
    p(f's_add_u32 {s(sF2s)}, {s(96)}, {s(97)}')
    p(f's_lshl_b32 {s(96)}, {s(sW)}, 5')
    p(f's_add_u32 {s(sF2l)}, {s(96)}, {s(97)}')
    if OPT['wf2']:
        p('s_mov_b64 exec, 3')
        p(f'buffer_store_dword {v(EI + 3)}, {v(EI + 4)}, {s(R_WS, 4)}, {s(sF2s)} offen sc1', tag='pub')
    p('s_mov_b64 exec, 0xffff')
    for k in range(0 if OPT['noe'] & 1 else 3):
        p(f's_add_u32 {s(96)}, {s(sSt)}, {s(sB128)}')
        p(f's_add_u32 {s(96)}, {s(96)}, {k * 0x20000:#x}')
        p(f'buffer_store_dwordx2 {v(EI, 2)}, {v(vStl)}, {s(R_WS, 4)}, {s(96)} offen sc1', tag='pub')
    p('s_mov_b64 exec, 0xff')
    p(f's_add_u32 {s(97)}, {s(sS5)}, {s(sB4)}')
    if not OPT['noe'] & 2:
        p(f'buffer_store_dword {v(EI + 3)}, {v(EI + 4)}, {s(R_WS, 4)}, {s(97)} offen sc1', tag='pub')
    if_wave0()
    p('s_mov_b64 exec, 1')
    p(f's_add_u32 {s(96)}, {s(sS2)}, {s(sB4)}')
    p(f'buffer_store_dword {v(EI + 2)}, off, {s(R_WS, 4)}, {s(96)} offset:128 sc1', tag='pub')
    p('s_mov_b64 exec, 15')
    if not OPT['noe'] & 2:
        p(f'buffer_store_dword {v(EI + 3)}, {v(EI + 4)}, {s(R_WS, 4)}, {s(96)} offen sc1', tag='pub')
    p(f's_lshl_b32 {s(96)}, s2, 8')
    p(f's_add_u32 {s(96)}, {s(96)}, {FLAGS:#x}')
    p('s_cmp_lt_u32 s2, 128')
    p('s_cselect_b32 exec_lo, 2, 3')
    p(f'buffer_store_dword {v(EI + 3)}, {v(EI + 4)}, {s(R_WS, 4)}, {s(96)} offen sc1', tag='pub')
    p.end()
    p('s_mov_b64 exec, -1')
    p(f's_add_u32 {s(R_WL)}, {s(R_WS)}, {LBASE:#x}')
    p(f's_addc_u32 {s(R_WL + 1)}, {s(R_WS + 1)}, 0')
    p('s_waitcnt lgkmcnt(0)')
    if OPT['tlb']:
        p(f's_cmp_eq_u32 {s(sW)}, 1')
        p.begin('W1', 's_cbranch_scc0')
        p(f'v_lshlrev_b32 {v(EI + 6)}, 21, {v(n_)}')
        p('s_mov_b64 exec, 0xffff')
        if OPT['tlb'] & 1:
            p(f'buffer_load_dword {v(240)}, {v(EI + 6)}, {s(R_WL, 4)}, 0 offen sc1')
            p(f'buffer_load_dword {v(239)}, {v(EI + 6)}, {s(R_WS, 4)}, 0 offen sc1')
        if OPT['tlb'] & 2:
            p(f'buffer_load_dword {v(238)}, {v(EI + 6)}, {s(R_WSP, 4)}, 0 offen')
            p(f'buffer_load_dword {v(223)}, off, {s(R_DBG, 4)}, 0 offset:128 sc1')
        if OPT['tlb'] & 4:
            p(f'buffer_load_dword {v(222)}, off, {s(R_OUT, 4)}, 0 sc1')
        p('s_mov_b64 exec, -1')
        p.end()
    stamp('start')


def early_requests():
    global prep, wsp_first
    if OPT['early'] & 1:
        emit(prep)
        prep = []
    emit(wsp_first[:OPT['early'] >> 1])
    wsp_first = wsp_first[OPT['early'] >> 1:]


def hook(k):
    if OPT['pre'] == k:
        first_requests()
    if max(OPT['pre'], 2) == k:
        early_requests()


hook(1)
vPi, vPo, vPri, vPro, PK = 112, 114, 242, 243, 224
PST = SCR + 12288
p(f's_add_u32 {s(92)}, {s(92)}, L_table-L_pc')
p(f's_addc_u32 {s(93)}, {s(93)}, 0')
for k in range(2):
    p(f'v_add_u32 {v(T)}, {256 * k}, {v(tid)}')
    p(f'v_mul_u32_u24 {v(T + 1)}, 4682, {v(T)}')
    p(f'v_lshrrev_b32 {v(T + 1)}, 16, {v(T + 1)}')
    p(f'v_mul_u32_u24 {v(T + 2)}, 14, {v(T + 1)}')
    p(f'v_sub_u32 {v(T)}, {v(T)}, {v(T + 2)}')
    p(f'v_and_b32 {v(T + 2)}, 0x38, {v(T + 1)}')
    p(f'v_add_u32 {v(T + 1)}, {v(T + 1)}, {v(T + 2)}')
    p(f'v_mul_u32_u24 {v(T + 1)}, 3584, {v(T + 1)}')
    p(f'v_lshl_add_u32 {v(vPi + k)}, {v(T)}, 4, {v(T + 1)}')
p(f's_and_b32 {s(94)}, {s(sC)}, 7')
p(f's_lshl_b32 {s(94)}, {s(94)}, 6')
p(f's_and_b32 {s(95)}, {s(sC)}, 8')
p(f's_add_u32 {s(94)}, {s(94)}, {s(95)}')
p(f's_mul_i32 {s(94)}, {s(94)}, 3584')
p(f's_lshr_b32 {s(95)}, {s(sC)}, 4')
p(f's_mul_i32 {s(95)}, {s(95)}, 1792')
p(f's_add_u32 {s(94)}, {s(94)}, {s(95)}')
p(f's_mul_i32 {s(95)}, {s(sB)}, 224')
p(f's_add_u32 {s(76)}, {s(94)}, {s(95)}')
p(f'v_lshrrev_b32 {v(T)}, 3, {v(lane)}')
p(f'v_and_b32 {v(T + 1)}, 0x70, {v(vL16)}')
p(f'v_lshl_add_u32 {v(vPo)}, {v(T)}, 10, {v(T + 1)}')
p(f's_and_b32 {s(94)}, {s(sC)}, 7')
p(f's_mul_i32 {s(94)}, {s(94)}, 112')
p(f's_lshr_b32 {s(95)}, {s(sC)}, 3')
p(f's_lshl_b32 {s(95)}, {s(95)}, 5')
p(f's_add_u32 {s(94)}, {s(94)}, {s(95)}')
p(f's_sub_u32 {s(95)}, {s(sC)}, 24')
p(f's_mul_i32 {s(95)}, {s(95)}, 224')
p(f's_add_u32 {s(95)}, {s(95)}, 96')
p(f's_cmp_lt_u32 {s(sC)}, 24')
p(f's_cselect_b32 {s(94)}, {s(94)}, {s(95)}')
p(f's_cselect_b32 {s(95)}, 16, 112')
p(f's_lshr_b32 {s(96)}, {s(sW)}, 1')
p(f's_mul_i32 {s(95)}, {s(95)}, {s(96)}')
p(f's_add_u32 {s(94)}, {s(94)}, {s(95)}')
p(f's_and_b32 {s(95)}, {s(sW)}, 1')
p(f's_lshl_b32 {s(95)}, {s(95)}, 3')
p(f's_add_u32 {s(94)}, {s(94)}, {s(95)}')
p(f's_lshl_b32 {s(94)}, {s(94)}, 10')
p(f's_add_u32 {s(77)}, {s(94)}, {s(sB128)}')
p(f'v_lshrrev_b32 {v(T)}, 2, {v(n_)}')
p(f'v_lshl_add_u32 {v(T)}, {v(g_)}, 3, {v(T)}')
p(f'v_mul_u32_u24 {v(T)}, 224, {v(T)}')
p(f'v_and_b32 {v(T + 1)}, 3, {v(lane)}')
p(f'v_lshl_add_u32 {v(T)}, {v(T + 1)}, 3, {v(T)}')
p(f's_lshl_b32 {s(94)}, {s(sW)}, 5')
p(f's_add_u32 {s(94)}, {s(94)}, {PST}')
p(f'v_add_u32 {v(vPri)}, {s(94)}, {v(T)}')
p(f's_lshl_b32 {s(94)}, {s(sW)}, 3')
p(f's_add_u32 {s(94)}, {s(94)}, {PST + 8192}')
p(f'v_lshl_add_u32 {v(vPro)}, {v(lane)}, 5, {s(94)}')
p(f'v_lshrrev_b32 {v(T)}, 3, {v(lane)}')
p(f'v_lshlrev_b32 {v(T)}, 18, {v(T)}')
p(f'v_and_b32 {v(T + 1)}, 7, {v(lane)}')
p(f'v_xor_b32 {v(T + 1)}, {v(T + 1)}, {v(g_)}')
p(f'v_lshl_add_u32 {v(T)}, {v(T + 1)}, 4, {v(T)}')
p(f's_lshl_b32 {s(94)}, {s(sC)}, 12')
p(f's_add_u32 {s(100)}, {s(sW)}, {s(sB)}')
p(f's_and_b32 {s(100)}, {s(100)}, 3')
p(f's_lshl_b32 {s(95)}, {s(100)}, 10')
p(f's_add_u32 {s(94)}, {s(94)}, {s(95)}')
p(f'v_add_u32 {v(vWspA)}, {s(94)}, {v(T)}')
p(f'v_xor_b32 {v(T)}, 64, {v(vWspA)}')
p(f'v_add_u32 {v(vWspA + 1)}, 0x20000, {v(T)}')
p(f's_mul_i32 {s(sWsp)}, {s(sW)}, 24576')
p(f'v_lshrrev_b32 {v(T)}, 1, {v(n_)}')
p(f'v_xor_b32 {v(T)}, {v(T)}, {v(g_)}')
p(f'v_lshlrev_b32 {v(T)}, 4, {v(T)}')
p(f'v_lshl_add_u32 {v(T)}, {v(n_)}, 7, {v(T)}')
p(f's_add_u32 {s(94)}, {s(sWsp)}, 1024')
p(f'v_add_u32 {v(vWspR)}, {s(94)}, {v(T)}')
p(f'v_xor_b32 {v(vWspR + 1)}, 64, {v(vWspR)}')
p(f's_lshr_b32 {s(94)}, {s(sB)}, 2')
p(f's_lshl_b32 {s(95)}, {s(sW)}, 21')
for k in range(2):
    p(f's_lshl_b32 {s(96)}, {s(94)}, 13')
    p(f's_add_u32 {s(78 + k)}, {s(96)}, {s(sWsp)}')
    p(f's_lshl_b32 {s(96)}, {s(94)}, 9')
    p(f's_add_u32 {s(80 + k)}, {s(96)}, {s(95)}')
    p(f's_xor_b32 {s(94)}, {s(94)}, 1')
p(f's_lshl_b32 {s(82)}, {s(sW)}, 10')
prep = [[(f's_add_u32 m0, {s(82)}, {PST}', None), (f'buffer_load_dwordx4 {v(vPi)}, {s(R_WIN, 4)}, {s(76)} offen lds', 'prep')],
        [(f's_add_u32 m0, {s(82)}, {PST + 4096}', None), (f'buffer_load_dwordx4 {v(vPi + 1)}, {s(R_WIN, 4)}, {s(76)} offen lds', 'prep')],
        [(f's_add_u32 m0, {s(82)}, {PST + 8192}', None), (f'buffer_load_dwordx4 {v(vPo)}, {s(R_WOUT, 4)}, {s(77)} offen lds', 'prep')],
        [(f'buffer_load_ushort {v(vBsp)}, {v(t3)}, {s(R_BSP, 4)}, 0 offen', None)]]
wsp_first = wsp_dma_ops(0)
hook(2)
p(f's_mul_i32 {s(94)}, {s(sB)}, 229376')
p(f's_mul_i32 {s(95)}, {s(sC)}, 7168')
p(f's_add_u32 {s(94)}, {s(94)}, {s(95)}')
p(f's_lshl_b32 {s(95)}, {s(sW)}, 10')
p(f's_add_u32 {s(94)}, {s(94)}, {s(95)}')
p(f's_mov_b32 {s(83)}, {s(94)}')
p(f's_add_u32 {s(94)}, {s(94)}, 4096')
p(f's_cmp_lt_u32 {s(sW)}, 3')
p(f's_cselect_b32 {s(94)}, {s(94)}, {LBASE:#x}')
p(f's_mov_b32 {s(84)}, {s(94)}')
p(f's_mul_i32 {s(94)}, {s(sB)}, 114688')
p(f's_lshl_b32 {s(96)}, {s(sC)}, 12')
p(f's_add_u32 {s(94)}, {s(94)}, {s(96)}')
p(f's_add_u32 {s(94)}, {s(94)}, {s(95)}')
p(f's_add_u32 {s(94)}, {s(94)}, {WO:#x}')
p(f's_cmp_lt_u32 {s(sC)}, 28')
p(f's_cselect_b32 {s(94)}, {s(94)}, {LBASE:#x}')
p(f's_mov_b32 {s(85)}, {s(94)}')
p(f's_lshr_b32 {s(94)}, {s(sB)}, 2')
p(f's_and_b32 {s(95)}, {s(sB)}, 3')
p(f's_lshl_b32 {s(sVst)}, {s(sC)}, 11')
p(f's_lshl_b32 {s(96)}, {s(sB)}, 8')
p(f's_add_u32 {s(sVst)}, {s(sVst)}, {s(96)}')
p(f's_sub_u32 {s(96)}, 32, {s(sC)}')
p(f's_and_b32 {s(96)}, {s(96)}, 31')
p(f's_cmp_eq_u32 {s(94)}, 0')
p(f's_cselect_b32 {s(96)}, {s(sC)}, {s(96)}')
p(f's_lshl_b32 {s(sVld)}, {s(96)}, 16')
p(f's_lshl_b32 {s(sH)}, {s(sC)}, 16')
p(f's_lshl_b32 {s(96)}, {s(95)}, 14')
p(f's_lshl_b32 {s(97)}, {s(94)}, 7')
p(f's_add_u32 {s(96)}, {s(96)}, {s(97)}')
p(f's_add_u32 {s(sK2)}, {s(sH)}, {s(96)}')
p(f's_lshl_b32 {s(96)}, {s(sW)}, 14')
p(f's_add_u32 {s(sH)}, {s(sH)}, {s(96)}')
p(f's_mov_b32 {s(sXb)}, 0')
p(f's_mov_b32 {s(sXo)}, 0x10000')
p(f's_lshl_b32 {s(96)}, {s(sB)}, 2')
p(f's_add_u32 {s(96)}, {s(96)}, {s(100)}')
p(f's_mul_i32 {s(sZld)}, {s(96)}, 114688')
p(f's_add_u32 {s(sZld)}, {s(sZld)}, {Z_:#x}')
p(f's_lshl_b32 {s(96)}, {s(sC)}, 2')
p(f's_add_u32 {s(96)}, {s(96)}, {s(sW)}')
p(f's_lshl_b32 {s(sUld)}, {s(96)}, 14')
p(f's_add_u32 {s(sUld)}, {s(sUld)}, {H_ if OPT["locd"] & 4 else U_:#x}')
p(f's_lshl_b32 {s(97)}, {s(sB)}, 10')
p(f's_add_u32 {s(sUst)}, {s(sUld)}, {s(97)}')
p(f's_lshl_b32 {s(sDm)}, {s(sW)}, 12')
p(f's_mul_i32 {s(sWI)}, {s(sB)}, 229376')
p(f's_add_u32 {s(sWI)}, {s(sWI)}, {s(sDm)}')
p(f's_mul_i32 {s(sWO)}, {s(sB)}, 114688')
p(f's_add_u32 {s(sWO)}, {s(sWO)}, {s(sDm)}')
p(f's_add_u32 {s(sWO)}, {s(sWO)}, {WO:#x}')
p(f's_and_b32 {s(96)}, s2, 15')
p(f's_lshl_b32 {s(96)}, {s(96)}, 8')
p(f's_add_u32 {s(sArr)}, {s(96)}, {FLAGS:#x}')
p(f's_and_b32 {s(96)}, s2, 7')
p(f's_lshl_b32 {s(96)}, {s(96)}, 12')
p(f's_add_u32 {s(sRep)}, {s(96)}, {FLAGS:#x}')
p(f's_lshl_b32 {s(97)}, {s(sB)}, 9')
p(f's_add_u32 {s(97)}, {s(97)}, {FLAGS + 0x8000:#x}')
p(f's_add_u32 {s(sP4)}, {s(96)}, {s(97)}')
p(f's_mov_b32 {s(sS4)}, {s(97)}')
p(f's_mov_b32 {s(sLocH)}, 0')
hook(3)
p(f'v_lshlrev_b32 {v(vL8)}, 3, {v(lane)}')
p(f'v_add_u32 {v(vL16hi)}, 0x10000, {v(vL16)}')
p(f'v_add_u32 {v(vL16h2)}, 0x20000, {v(vL16)}')
p(f'v_lshlrev_b32 {v(vPoll)}, 8, {v(n_)}')
p(f'v_and_b32 {v(vArr)}, 7, {v(lane)}')
p(f'v_lshlrev_b32 {v(vGrp)}, 2, {v(vArr)}')
p(f'v_lshlrev_b32 {v(vArr)}, 12, {v(vArr)}')
p(f'v_mov_b32 {v(vGK)}, {f2u(-2.302208198144325 * 0.044715):#x}')
p(f'v_mov_b32 {v(vGK + 1)}, {f2u(-2.302208198144325):#x}')
p(f'v_lshrrev_b32 {v(T)}, 3, {v(lane)}')
p(f'v_and_b32 {v(T + 4)}, 7, {v(lane)}')
p(f'v_lshlrev_b32 {v(T + 4)}, 4, {v(T + 4)}')
p(f'v_lshl_add_u32 {v(T + 2)}, {v(T)}, 8, {v(T + 4)}')
p(f's_lshl_b32 {s(96)}, {s(sW)}, 12')
p(f'v_add_u32 {v(vK2)}, {s(96)}, {v(T + 2)}')
p(f'v_and_b32 {v(T)}, 1, {v(T)}')
p(f'v_lshl_add_u32 {v(T)}, {v(T)}, 4, {v(g_)}')
p(f'v_mul_u32_u24 {v(T)}, 144, {v(T)}')
p(f's_lshr_b32 {s(96)}, {s(sW)}, 1')
p(f's_mul_i32 {s(96)}, {s(96)}, 4608')
p(f's_and_b32 {s(97)}, {s(sW)}, 1')
p(f's_mul_i32 {s(97)}, {s(97)}, 1152')
p(f's_add_u32 {s(96)}, {s(96)}, {s(97)}')
p(f's_add_u32 {s(96)}, {s(96)}, {SCR}')
p(f'v_add3_u32 {v(vTr)}, {v(T)}, {v(T + 4)}, {s(96)}')
p(f'v_lshrrev_b32 {v(T)}, 5, {v(lane)}')
p(f'v_and_b32 {v(T + 1)}, 1, {v(g_)}')
p(f'v_lshl_add_u32 {v(T + 2)}, {v(T)}, 4, {v(n_)}')
p(f'v_mul_u32_u24 {v(T + 2)}, 144, {v(T + 2)}')
p(f'v_lshl_add_u32 {v(T + 2)}, {v(T + 1)}, 4, {v(T + 2)}')
p(f's_lshl_b32 {s(96)}, {s(sW)}, 5')
p(f's_add_u32 {s(97)}, {s(96)}, {SCR}')
p(f'v_add_u32 {v(vTw)}, {s(97)}, {v(T + 2)}')
p(f'v_and_b32 {v(T + 2)}, 1, {v(lane)}')
p(f'v_lshlrev_b32 {v(T + 2)}, 5, {v(T + 2)}')
p(f'v_and_b32 {v(T + 3)}, 2, {v(lane)}')
p(f'v_lshl_add_u32 {v(T + 2)}, {v(T + 3)}, 3, {v(T + 2)}')
p(f'v_lshrrev_b32 {v(T + 3)}, 2, {v(lane)}')
p(f'v_add_u32 {v(T + 2)}, {v(T + 2)}, {v(T + 3)}')
p(f'v_mul_u32_u24 {v(T + 2)}, 144, {v(T + 2)}')
p(f'v_add_u32 {v(vXw)}, {s(97)}, {v(T + 2)}')
p(f'v_add_u32 {v(vXw + 1)}, 16, {v(vXw)}')
p(f's_lshl_b32 {s(96)}, {s(95)}, 4')
p(f's_add_u32 {s(96)}, {s(96)}, {s(94)}')
p(f's_lshl_b32 {s(96)}, {s(96)}, 5')
p(f's_add_u32 {s(98)}, {s(96)}, {s(sC)}')
p(f's_lshl_b32 {s(96)}, {s(sW)}, 7')
p(f's_add_u32 {s(96)}, {s(96)}, {s(98)}')
p(f's_lshl_b32 {s(96)}, {s(96)}, 10')
p(f'v_add_u32 {v(vXr)}, {s(96)}, {v(vL16)}')
p(f'v_mul_u32_u24 {v(T + 3)}, 1040, {v(T + 1)}')
p(f'v_lshl_add_u32 {v(T + 3)}, {v(T)}, 8, {v(T + 3)}')
p(f'v_lshl_add_u32 {v(T + 3)}, {v(n_)}, 3, {v(T + 3)}')
p(f's_mul_i32 {s(96)}, {s(sW)}, 2080')
p(f's_add_u32 {s(96)}, {s(96)}, {SCR}')
p(f'v_add_u32 {v(vUr)}, {s(96)}, {v(T + 3)}')
p(f'v_mul_u32_u24 {v(T + 3)}, 1040, {v(n_)}')
p(f'v_lshl_add_u32 {v(T + 3)}, {v(g_)}, 5, {v(T + 3)}')
p(f's_lshl_b32 {s(96)}, {s(sW)}, 8')
p(f's_add_u32 {s(96)}, {s(96)}, {SCR}')
p(f'v_add_u32 {v(vUw)}, {s(96)}, {v(T + 3)}')
p(f'v_lshlrev_b32 {v(T + 3)}, 13, {v(g_)}')
p(f'v_lshl_add_u32 {v(T + 3)}, {v(n_)}, 4, {v(T + 3)}')
p(f's_lshl_b32 {s(96)}, {s(sW)}, 9')
p(f'v_add_u32 {v(vVld)}, {s(96)}, {v(T + 3)}')
p(f'v_lshlrev_b32 {v(T + 3)}, 17, {v(g_)}')
p(f'v_lshl_add_u32 {v(T + 3)}, {v(n_)}, 4, {v(T + 3)}')
p(f's_lshl_b32 {s(96)}, {s(sW)}, 19')
p(f'v_add_u32 {v(vVst)}, {s(96)}, {v(T + 3)}')
p(f'v_mul_u32_u24 {v(T + 3)}, 160, {v(n_)}')
p(f'v_lshl_add_u32 {v(T + 3)}, {v(g_)}, 3, {v(T + 3)}')
p(f's_mul_i32 {s(96)}, {s(sW)}, 2560')
p(f's_add_u32 {s(96)}, {s(96)}, {SCR}')
p(f'v_add_u32 {v(vHw2)}, {s(96)}, {v(T + 3)}')
p(f'v_lshrrev_b32 {v(T + 3)}, 2, {v(lane)}')
p(f'v_mul_u32_u24 {v(T + 3)}, 160, {v(T + 3)}')
p(f'v_and_b32 {v(T + 2)}, 3, {v(lane)}')
p(f'v_lshl_add_u32 {v(T + 3)}, {v(T + 2)}, 3, {v(T + 3)}')
p(f'v_add_u32 {v(vHw)}, {s(96)}, {v(T + 3)}')
p(f'v_add_u32 {v(vHr)}, {SCR}, {v(T + 3)}')
for q in range(1, 5):
    p(f's_add_u32 {s(96)}, {s(sW)}, {q}')
    p(f's_and_b32 {s(96)}, {s(96)}, 3')
    p(f's_mul_i32 {s(96)}, {s(96)}, 3072')
    p(f's_add_u32 {s(96)}, {s(96)}, {SCR + (1024 * (q - 1) if q < 4 else 0)}')
    p(f'v_add_u32 {v(vRed + q - 1)}, {s(96)}, {v(vL16)}')
hook(4)
p(f'v_and_b32 {v(T)}, 7, {v(n_)}')
p(f'v_lshlrev_b32 {v(T)}, 6, {v(T)}')
p(f'v_add_u32 {v(T)}, {s(98)}, {v(T)}')
p(f'v_lshlrev_b32 {v(T + 1)}, 2, {v(g_)}')
p(f'v_mul_u32_u24 {v(T + 1)}, {v(T + 1)}, {v(T)}')
p(f'v_lshrrev_b32 {v(T + 2)}, 3, {v(n_)}')
p(f'v_lshl_add_u32 {v(T + 1)}, {v(T + 2)}, 9, {v(T + 1)}')
p(f's_cmp_eq_u32 {s(94)}, 0')
p(f's_cselect_b32 {s(73)}, 1.0, -1.0')
p(f's_cselect_b32 {s(74)}, 0, 1.0')
p(f's_cselect_b32 {s(72)}, 1.0, 0')
p(f's_cmp_eq_u32 {s(sC)}, 0')
p(f's_cselect_b32 {s(72)}, {s(72)}, 1.0')
p(f's_cselect_b32 {s(73)}, 0, {s(73)}')
p(f's_cselect_b32 {s(74)}, {s(74)}, 0')
for k in range(8):
    cp = 16 * (k >> 2) + (k & 3)
    p(f'v_mad_u32_u24 {v(T + 2)}, {v(T)}, {cp}, {v(T + 1)}')
    p(f'v_and_b32 {v(T + 2)}, 0x7ff, {v(T + 2)}')
    p(f'v_cvt_f32_u32 {v(T + 2)}, {v(T + 2)}')
    p(f'v_mul_f32 {v(T + 2)}, {f2u(1.0 / 2048):#x}, {v(T + 2)}')
    p(f'v_cos_f32 {v(T + 3)}, {v(T + 2)}')
    p(f'v_sin_f32 {v(T + 4)}, {v(T + 2)}')
    p(f'v_mul_f32 {v(T + 5)}, {s(74)}, {v(T + 3)}')
    p(f'v_mul_f32 {v(T + 3)}, {s(72)}, {v(T + 3)}')
    p(f'v_fma_f32 {v(T + 4)}, {s(73)}, {v(T + 4)}, {v(T + 5)}')
    p(f'v_cvt_pk_bf16_f32 {v(vC2 + k)}, {v(T + 3)}, {v(T + 4)}')
hook(5)
p('s_mov_b32 s0, s86')
p('s_mov_b32 s1, s87')
sF2s, sF2l = 0, 1
stamp('setup')
if OPT['wfirst'] == 1:
    emit(wsp_first)
    wsp_first = []
for i in range(OPT['x1'], OPT['xa']):
    if OPT['wfirst'] == 2 and wsp_first:
        emit([wsp_first.pop(0)])
    x_loads(i, i + 1)
if OPT['xa'] == 8:
    m1_load(108)
if OPT['ctpos'] == 0:
    ct_dma(110)
SCHED = OPT['sched'].split('/')
FIX = OPT['fix'].split('/')
WSR = (160, 192)
a2a_load = [(f'buffer_load_dword {v(241)}, {v(vPoll)}, {s(R_WS, 4)}, {s(sRep)} offen sc1', None)]


def wsp_run(items):
    i = 0
    while i < len(items):
        if items[i] == 'q':
            if_wave0()
            emit([a2a_load])
            p.end()
            i += 1
            continue
        k = int(items[i + 1])
        if items[i] == 'd':
            p.wait_lgkm(f'wr{k - 3}')
            wsp_dma(k)
        elif items[i] == 'r':
            wsp_read(k, WSR[k & 1])
        elif items[i] == 'a':
            wsp_park(k)
        else:
            wsp_perm(k, WSR[k & 1])
        if OPT['fine'] == 2:
            stamp('*' + items[i:i + 2])
        i += 2


zpois = [(f'buffer_store_dwordx4 {v(116, 4)}, {v(vZst)}, {s(R_WL, 4)}, {s(sZst)} offen sc1', 'pub')]
bg = prep + wsp_first
if OPT['zs']:
    bg = [zpois] + bg if OPT['zp0'] == 0 else bg + [zpois]
for ch in SCHED[0]:
    bg += wsp_dma_ops(int(ch))
for k in range(4):
    p(f'v_mov_b32 {v(T + 2 + k)}, 0')
p.bg = bg
xnext = OPT['xa']
if xnext == 8:
    p.bg_on(OPT['wspev'])
for i in range(64):
    if xnext < 8 and i % OPT['xe'] == OPT['xe'] - 1:
        x_loads(xnext, xnext + 1)
        xnext += 1
        if xnext == 8:
            m1_load(108)
            p.bg_on(OPT['wspev'])
    p(f'v_dot2c_f32_bf16 {v(T + 2 + (i & 1))}, {s(sOnes)}, {v(XR + i)}')
    p(f'v_dot2c_f32_bf16 {v(T + 4 + (i & 1))}, {v(XR + i)}, {v(XR + i)}')
    if i == 7:
        unpack(XR, 8, XV)
    if i == OPT['ann']:
        p.bg_on(0)
        p(f's_cmp_eq_u32 {s(sG0)}, 3')
        p.begin('G0', 's_cbranch_scc0')
        p.wait_vm('z')
        p(f'v_mov_b32 {v(EI)}, 1')
        p('s_mov_b64 exec, 1')
        p(f'buffer_store_dword {v(EI)}, off, {s(R_DBG, 4)}, 0 sc1')
        p('s_mov_b64 exec, -1')
        p.end()
        p.bg_on(OPT['wspev'] if xnext == 8 else 0)
p.bg_on(0)
p.bg_emit()
p(f'v_add_f32 {v(T)}, {v(T + 2)}, {v(T + 3)}')
p(f'v_add_f32 {v(T + 1)}, {v(T + 4)}, {v(T + 5)}')
for qp in ('[1,0,3,2]', '[2,3,0,1]'):
    for k in range(2):
        p(f'v_add_f32_dpp {v(T + k)}, {v(T + k)}, {v(T + k)} quad_perm:{qp} row_mask:0xf bank_mask:0xf')
dbg_load = [(f'buffer_load_dword {v(241)}, off, {s(R_DBG, 4)}, 0 sc1', None)]
assert not SCHED[1]
wsp_run(SCHED[1])

p.section('body')
for _ in range(OPT['algn']):
    p('s_nop 0')
p('L_layer:')
stamp('T')
HP, AF, D1, VO = 56, 72, 104, 56
finish_stats(T, 512)
for i in range(0, 16, 2):
    p(f'v_pk_fma_f32 {v(XV + i, 2)}, {v(XV + i, 2)}, {v(T, 2)}, {v(T, 2)} op_sel:[0,0,1] op_sel_hi:[1,0,1]')
for t in range(4):
    for k in range(2):
        p(f'v_cvt_pk_bf16_f32 {v(HP + 2 * t + k)}, {v(XV + 8 * k + t)}, {v(XV + 8 * k + 4 + t)}')
    p(f'ds_write_b64 {v(vHw)}, {v(HP + 2 * t, 2)} offset:{32 * t}', tag='hw')
p(f's_add_u32 {s(sT + 1)}, {s(sVst)}, 0x10000')
p.wait_lgkm('hw')
p.wait_vm('prep')
p('s_barrier')
for ks in range(2):
    for tile in range(4):
        for half in range(2):
            p(f'ds_read_b64_tr_b16 {v(AF + 16 * ks + 4 * tile + 2 * half, 2)}, {v(vHr)} offset:{(32 * ks + 16 * half) * 160 + 32 * tile}')
if_layer(0)
for k in range(2):
    for half in range(2):
        p(f'ds_read_b64_tr_b16 {v(PK + 4 * k + 2 * half, 2)}, {v(vPri)} offset:{128 * k + 896 * half}')
for half in range(2):
    p(f'ds_read_b64_tr_b16 {v(PK + 8 + 2 * half, 2)}, {v(vPro)} offset:{2048 * half}')
p.end()
for ks in range(2):
    for tile in range(4):
        d = D1 + 4 * tile
        p(f'{M16} {v(d, 4)}, {v(M1 + 4 * ks, 4)}, {v(AF + 16 * ks + 4 * tile, 4)}, {v(d, 4) if ks else 0}')
if_layer(0)
p(f'v_lshlrev_b32 {v(vBsp)}, 16, {v(vBsp)}')
p(f'buffer_store_dwordx4 {v(PK, 4)}, {v(vL16)}, {s(R_WS, 4)}, {s(83)} offen sc1', tag='pub')
p(f'buffer_store_dwordx4 {v(PK + 4, 4)}, {v(vL16)}, {s(R_WS, 4)}, {s(84)} offen sc1', tag='pub')
p(f'buffer_store_dwordx4 {v(PK + 8, 4)}, {v(vL16)}, {s(R_WS, 4)}, {s(85)} offen sc1', tag='pub')
p.end()
for jj in range(2):
    for t in range(4):
        p(f'v_cvt_pk_bf16_f32 {v(VO + 4 * jj + t)}, {v(D1 + 4 * t + 2 * jj)}, {v(D1 + 4 * t + 2 * jj + 1)}')
    p(f'buffer_store_dwordx4 {v(VO + 4 * jj, 4)}, {v(vVst)}, {s(R_WL, 4)}, {s(sT + 1 if jj else sVst)} offen sc1', tag='pub')
stamp('Vst')
if OPT['ctpos'] == 1:
    ct_dma(T + 6)
if_layer(0)
if_wave0()
emit([dbg_load])
p.end()
wsp_run(SCHED[2])
if_wave0()
retry_until(dbg_load, lambda: p(f'v_cmp_ne_u32 vcc, 1, {v(241)}'))
p.end()
p.end()
wz2 = w_dma_ops(sWI, 114688, LOC_Z2, 'wz2')
CMN = [int(ch, 36) for ch in OPT['cmn']]
assert sum(CMN) % 4 == 0 and sum(CMN) + OPT['wzp1'] + OPT['wzp2'] + OPT['wzp3'] == 28
wz2_both, wz2 = wz2[:sum(CMN)], wz2[sum(CMN):]
P1, P2, P3 = OPT['wzp1'], OPT['wzp1'] + OPT['wzp2'], OPT['wzp1'] + OPT['wzp2'] + OPT['wzp3']
assert P1 % 4 == 0 and OPT['wzp0'] % 4 == 0
if (OPT['ctp'] == 2 and OPT['ctpos'] == 0) or P2 > P1:
    if_layer(1)
    if OPT['ctp'] == 2 and OPT['ctpos'] == 0:
        ct_dma(T + 6)
    emit(wz2[P1:P2])
    p.end()
stamp('init')
if OPT['vs']:
    if_layer(0)
    p.wait_vm('pub')
    p.wait_vm('ct')
    arrive(sArr, 8)
    p.end()
    if_layer(1)
    p.wait_vm('x2')
    p.wait_vm('ct')
    arrive_group(sS2, 32)
    p.end()
else:
    p.wait_vm('pub')
    p.wait_vm('ct')
    arrive(sArr, 8)
poison(5, 96)
code_prefetch(1, 'L_k2')
stamp('arr1')
FA, TW, FB, VR, D2, UP, XRES, Y = 40, 64, 80, 96, 160, 192, 224, 208
for k in range(14):
    p(f'ds_read_b128 {v(FA + 4 * k, 4)}, {v(vL16hi)} offset:{CT - 65536 + k * 1024}')
if_layer(0)
wsp_run(SCHED[3])
if_wave0()
retry_until(a2a_load, lambda: p(f'v_cmp_ne_u32 vcc, 16, {v(241)}'))
p.end()
p('s_barrier')
p.end()
for k in range(4):
    p(f's_add_u32 {s(sT + 4 + k)}, {s(sVld)}, {(16 * (k >> 1) + 2 * (k & 1)) * 2048:#x}')
if_layer(1)
emit(wz2[P2:P3])
x2_load = [(f'buffer_load_dword {v(248)}, {v(vGrp)}, {s(R_WS, 4)}, {s(sS2)} offen offset:32{PG}', None)]
if OPT['vs']:
    emit([x2_load])
else:
    poll(sRep, vPoll, 16)
p.end()
assert not SCHED[8:]


def l0_dma(n):
    emit([wz2_both.pop(0) for _ in range(CMN.pop(0))])


stamp('S1')
p('L_k2:')
vl = [(f'buffer_load_dwordx4 {v(VR + 16 * gk + 4 * ii, 4)}, {v(vVld)}, {s(R_WL, 4)}, {s(sT + 4 + 2 * (gk & 1) + (ii >> 1))} '
       f'offen offset:{(ii & 1) * 2048 + (gk >> 1) * 256} sc1', None) for gk in range(4) for ii in range(4)]
for gk in range(4):
    emit([vl[4 * gk:4 * gk + 4]])
    if gk < 3 and SCHED[4 + gk]:
        if_layer(0)
        wsp_run(SCHED[4 + gk])
        p.end()
if OPT['vs']:
    if_layer(1)
    retry_until(x2_load, lambda: p(f'v_cmp_ne_u32 vcc, 1, {v(248)}'))
    p.end()
xl = [(f'buffer_load_dwordx4 {v(XRES + 4 * k, 4)}, {v(vXr)}, {s(R_X, 4)}, {s((sXb, sXo)[k])} offen{LG}', None) for k in range(2)]
emit([xl])
if_layer(0)
p(f'buffer_load_dword {v(248)}, {v(vGrp)}, {s(R_WS, 4)}, {s(sS2)} offen offset:128 sc1')
wsp_run(SCHED[7])
if not SCHED[8:]:
    p('s_waitcnt lgkmcnt(0)')
    p('s_barrier')
p.end()
l0_dma(0)
stamp('Vld')


def u_pack(hi):
    up = (192, 200)[hi]
    for r in range(4):
        for lp in range(2):
            p(f'v_cvt_pk_bf16_f32 {v(up + 2 * r + lp)}, {v(D2 + 16 * hi + 8 * lp + r)}, {v(D2 + 16 * hi + 8 * lp + 4 + r)}')
        if r & 1:
            p(f'ds_write_b128 {v(vUw)}, {v(up + 2 * r - 2, 4)} offset:{128 * hi + 8 * (r - 1)}')


for hi in range(2):
    for ks in range(2):
        if hi and ks:
            u_pack(0)
        r = VR + 32 * hi + 16 * ks
        if OPT['vs']:
            def v_test(r=r):
                p(f'v_max3_u32 {v(T)}, {v(r + 3)}, {v(r + 7)}, {v(r + 11)}')
                p(f'v_max_u32 {v(T)}, {v(T)}, {v(r + 15)}')
                p(f'v_cmp_eq_u32 vcc, -1, {v(T)}')
            gk = 2 * hi + ks
            if OPT['vs'] == 1:
                retry_until(vl[4 * gk:], v_test)
            else:
                retry_until(vl[4 * gk:4 * gk + 4], v_test, after=vl[4 * gk + 4:] + xl if gk < 3 else None)
        for i in range(4):
            for j in range(i + 1, 4):
                p(f'v_swap_b32 {v(r + 4 * i + j)}, {v(r + 4 * j + i)}')
        for lo in range(4):
            d = D2 + 16 * hi + 4 * lo
            p(f'{M16} {v(d, 4)}, {v(r + 4 * lo, 4)}, {v(vC2 + 4 * ks, 4)}, {v(d, 4) if ks else 0}')
fine('st2')
l0_dma(4)
u_pack(1)
for k in range(2):
    p(f'ds_write_b128 {v(vXw + k)}, {v(XRES + 4 * k, 4)} offset:16640')
p('s_waitcnt lgkmcnt(0)')
p('s_barrier')
fine('ubar')
poison(4, 176)
UA, DR, DI, TT, PF = 96, 112, 128, 144, 160
for ri in range(2):
    for dh in range(2):
        for half in range(2):
            p(f'ds_read_b64_tr_b16 {v(UA + 8 * ri + 4 * dh + 2 * half, 2)}, {v(vUr)} offset:{ri * 8320 + dh * 512 + half * 128}')
for o in range(2):
    p(f'ds_read_b128 {v(XRES + 4 * o, 4)}, {v(vTw)} offset:{16640 + 4608 * o}')
l0_dma(4)
for ri in range(2):
    for dh in range(2):
        first = ri == 0 and dh == 0
        fr = FA + 4 * ((2 if ri else 0) + dh)
        fi = FA + 4 * ((0 if ri else 4) + dh)
        p(f'{M32} {v(DR, 16)}, {v(UA + 8 * ri + 4 * dh, 4)}, {v(fr, 4)}, {0 if first else v(DR, 16)}')
        p(f'{M32} {v(DI, 16)}, {v(UA + 8 * ri + 4 * dh, 4)}, {v(fi, 4)}, {0 if first else v(DI, 16)}')
fine('stA')
unpack(XRES, 8, Y)
fine('xres')
l0_dma(4)
for row in range(2):
    for k in range(0, 8, 2):
        r = 8 * row + k
        p(f'v_pk_mul_f32 {v(TT + k, 2)}, {v(DI + r, 2)}, {v(TW + 8 + k, 2)}')
        p(f'v_pk_mul_f32 {v(TT + 8 + k, 2)}, {v(DR + r, 2)}, {v(TW + 8 + k, 2)}')
    for k in range(0, 8, 2):
        r = 8 * row + k
        p(f'v_pk_fma_f32 {v(TT + k, 2)}, {v(DR + r, 2)}, {v(TW + k, 2)}, {v(TT + k, 2)}')
        p(f'v_pk_fma_f32 {v(TT + 8 + k, 2)}, {v(DI + r, 2)}, {v(TW + k, 2)}, {v(TT + 8 + k, 2)} neg_lo:[0,0,1] neg_hi:[0,0,1]')
    for k in range(8):
        p(f'v_cvt_pk_bf16_f32 {v(PF + 8 * row + k)}, {v(TT + 2 * k)}, {v(TT + 2 * k + 1)}')
for k in range(4):
    p(f'{M32} {v(Y, 16)}, {v(PF + 4 * k, 4)}, {v(FB + 4 * k, 4)}, {v(Y, 16)}')
fine('stB')
XO, HO = 224, 232
l0_dma(4)
if_layer(0)
p(f'v_cmp_ne_u32 vcc, {s(sLoc)}, {v(248)}')
p('s_cmp_eq_u64 vcc, 0')
p(f's_cselect_b32 {s(sLoc)}, {OPT["loc"]}, 0')
p(f's_mov_b32 {s(sLocU)}, {s(sLoc)}')
p.end()
local_stats(Y, 16, T)
p(f'v_permlane32_swap_b32 {v(T)}, {v(T + 1)}')
p(f'v_add_f32 {v(T)}, {v(T)}, {v(T + 1)}')
for k, sh in enumerate((8, 4, 2, 1)):
    p(f'v_cvt_pk_bf16_f32 {v(XO + 2 * k)}, {v(Y + 4 * k)}, {v(Y + 4 * k + 1)}')
    p(f'v_cvt_pk_bf16_f32 {v(XO + 2 * k + 1)}, {v(Y + 4 * k + 2)}, {v(Y + 4 * k + 3)}')
    p(f'v_add_f32_dpp {v(T)}, {v(T)}, {v(T)} row_ror:{sh} row_mask:0xf bank_mask:0xf')
p(f'v_mov_b32 {v(T + 1)}, {v(T)}')
p(f's_add_u32 {s(sT)}, {s(sK2)}, {X1_:#x}')
p(f's_add_u32 {s(sT + 1)}, {s(sK2)}, {H_:#x}')
p(f'v_permlane32_swap_b32 {v(T)}, {v(T + 1)}')
finish_stats(T, 512)
norm_pack(Y, 16, T, Y, HO)
fine('norm')
for o in range(2):
    p(f'ds_write_b128 {v(vTw)}, {v(HO + 4 * o, 4)} offset:{16640 + 4608 * o}')
p('s_waitcnt lgkmcnt(0)')
p('s_barrier')
for k in range(2):
    p(f'ds_read_b128 {v(HO + 4 * k, 4)}, {v(vTr)} offset:{16640 + 576 * k}')
for o in range(2):
    p(f'ds_write_b128 {v(vTw)}, {v(XO + 4 * o, 4)} offset:{4608 * o}')
gstore([f'buffer_store_dwordx4 {v(HO + 4 * k, 4)}, {v(vK2)}, {s(R_WL, 4)}, {s(sT + 1)} offen offset:{2048 * k}' for k in range(2)], 'pub', OPT['locd'] & 1, sLocH)
l0_dma(6)
HF, Z2, Z1, WR, WD, GT = 40, 104, 136, 164, 12, 232
for k in range(4):
    p(f's_add_u32 {s(sT + 4 + k)}, {s(sH)}, {H_ + 4096 * k:#x}')
wsp_fix(FIX[0], 104, wz2[:OPT['l0a']])
stamp('K2')
p('s_waitcnt lgkmcnt(0)')
if OPT['wf2']:
    p('s_barrier')
    for k in range(2):
        p(f'ds_read_b128 {v(XO + 4 * k, 4)}, {v(vTr)} offset:{576 * k}')
    p(f'v_mov_b32 {v(T)}, 1')
    p.wait_vm('pub')
    p('s_mov_b64 exec, 1')
    gstore([f'buffer_store_dword {v(T)}, off, {s(R_WS, 4)}, {s(sF2s)}'])
    p('s_mov_b64 exec, -1')
else:
    p.wait_vm('pub')
    arrive_group(sS2)
    for k in range(2):
        p(f'ds_read_b128 {v(XO + 4 * k, 4)}, {v(vTr)} offset:{576 * k}')
wsp_fix(FIX[1], 104, wz2[OPT['l0a']:])
stamp('arr2')
p('s_waitcnt lgkmcnt(0)')
for k in range(7):
    p.wait_vm(f'wz2{k}')
if OPT['wf2']:
    p('s_barrier')
    top, done = p.label('poll'), p.label('pdone')
    p(f'{top}:')
    p(f'buffer_load_dword {v(T)}, {v(vGrp)}, {s(R_WS, 4)}, {s(sF2l)} offen{PG}')
    p('s_waitcnt vmcnt(0)')
    p(f'v_cmp_ne_u32 vcc, 1, {v(T)}')
    spin_tail(top, done)
else:
    poll(sS2, vGrp, 1)
stamp('S2')
p('L_k3:')
hl = [[(f'buffer_load_dwordx4 {v(HF + 4 * ks, 4)}, {v(vL16)}, {s(R_WL, 4)}, {s(sT + 4 + (ks >> 2))} offen offset:{1024 * (ks & 3)}{LG}', None)]
      for ks in range(16)]
xs = [[(f'buffer_store_dwordx4 {v(XO + 4 * k, 4)}, {v(vK2)}, {s(R_WL, 4)}, {s(sT)} offen offset:{2048 * k} sc1', 'x1')] for k in range(2)]
wz1 = w_dma_ops(sWI, 0, LOC_Z1, 'wz1')
emit(hl[:OPT['pre3']])
SEL, ZP, ZT, ZO = 212, 228, 164, 104
p(f'v_and_b32 {v(SEL)}, 0xf0, {v(vL16)}')
p(f'v_lshrrev_b32 {v(SEL + 1)}, 2, {v(vL16)}')
p(f'v_and_b32 {v(SEL + 1)}, 0xc0, {v(SEL + 1)}')
p(f'v_sub_u32 {v(SEL)}, {v(SEL)}, {v(SEL + 1)}')
p(f'v_mov_b32 {v(SEL + 4)}, 0x3f80')
p(f'v_lshlrev_b32 {v(SEL + 4)}, {v(SEL)}, {v(SEL + 4)}')
p(f'v_lshrrev_b32 {v(SEL + 1)}, 5, {v(SEL)}')
p(f'v_cmp_eq_u32 vcc, 0, {v(SEL + 1)}')
p(f'v_cndmask_b32 {v(SEL + 2)}, 0, {v(SEL + 4)}, vcc')
p(f'v_cmp_eq_u32 vcc, 1, {v(SEL + 1)}')
p(f'v_cndmask_b32 {v(SEL + 3)}, 0, {v(SEL + 4)}, vcc')
for k in (0, 1, 4, 5):
    p(f'v_mov_b32 {v(SEL + k)}, 0')
p(f'v_mov_b32 {v(ZP + 14)}, 0')
p(f'v_mov_b32 {v(ZP + 15)}, 0')
wsp_fix(FIX[2], 104)
n_h = 16 - OPT['pre3']
fill = spread(hl[OPT['pre3']:], 1, OPT['hsp'])
fill.update(spread(xs + wz1[:12], OPT['hsp'] * n_h + 1, OPT['z2sp']))
fill[max(fill) + 3] = lambda: poison(1, 132)
gemm_r(Z2, 7, 0, 16, HF, WR, WD, LOC_Z2, fill=fill)
p.wait_vm('x1')
p('s_barrier')
stamp('z2mm')
p.bg = wz1[12:]
p.bg_emit(2)
p.bg_on(OPT['g2ev'])
gelu(Z2, 28, GT)
local_stats(Z2, 28, T)
p.bg_on(0)
reduce_g(T, T + 1)
publish_stats(0)
stamp('pub3')
Z1A = OPT['z1a']
p.bg_emit(None if Z1A else OPT['gb'])
p(f's_mov_b32 {s(sT + 2)}, {s(sZld)}')
p(f'v_add_u32 {v(245)}, {s(sDm)}, {v(vL16)}')
OW, OR, OG = 248, 249, 253
p(f's_add_u32 {s(sT + 1)}, {s(sUst)}, 8192')
p(f's_lshl_b32 {s(sT + 3)}, {s(sB)}, 10')
p(f's_add_u32 {s(sT + 3)}, {s(sT + 3)}, {s(sH)}')
p(f's_add_u32 {s(sT + 12)}, {s(sT + 3)}, {X1_:#x}')
p(f's_add_u32 {s(sT + 13)}, {s(sT + 3)}, {X1_ + 8192:#x}')
for k in range(4):
    p(f's_add_u32 {s(sT + 4 + k)}, {s(sUld)}, {4096 * k}')
    p(f's_add_u32 {s(sT + 8 + k)}, {s(sH)}, {X1_ + 4096 * k:#x}')
p(f'v_and_b32 {v(133)}, 0xf0, {v(vL16)}')
p(f'v_mul_u32_u24 {v(133)}, 9, {v(133)}')
p(f'v_lshrrev_b32 {v(134)}, 8, {v(vL16)}')
p(f'v_lshl_add_u32 {v(133)}, {v(134)}, 5, {v(133)}')
p(f's_mul_i32 {s(99)}, {s(sW)}, 2304')
p(f's_add_u32 {s(99)}, {s(99)}, {SCR + 12288}')
p(f'v_add_u32 {v(OW)}, {s(99)}, {v(133)}')
p(f'v_lshrrev_b32 {v(133)}, 7, {v(vL16)}')
p(f'v_lshl_add_u32 {v(134)}, {v(133)}, 4, {v(vL16)}')
p(f'v_add_u32 {v(OR)}, {s(99)}, {v(134)}')
p(f'v_and_b32 {v(134)}, 0x70, {v(vL16)}')
p(f'v_lshl_add_u32 {v(OG)}, {v(133)}, 16, {v(134)}')
p(f's_lshl_b32 {s(99)}, {s(sW)}, 9')
p(f's_add_u32 {s(99)}, {s(99)}, {s(sC)}')
p(f's_lshl_b32 {s(99)}, {s(99)}, 10')
p(f's_add_u32 {s(sT + 14)}, {s(99)}, {s(sB128)}')
p(f's_add_u32 {s(sT + 15)}, {s(sT + 14)}, 0x8000')
wo = w_dma_ops(sWO, 0, LOC_WO, 'wo')
if Z1A:
    p.wait_vm('wz12')
    p('s_barrier')
    fill = {OPT['gpos']: gather_loads(0)}
    fill.update(spread(wo[:OPT['woa']], OPT['gpos'] + 2, 2))
    gemm_r(Z1, 7, 0, Z1A, HF, WR, WD, LOC_Z1, fill=fill)
else:
    emit([gather_loads(0)])
    p.bg_emit()
    emit(wo[:OPT['woa']])
stamp('z1a')
gather_finish(0)
stamp('S3')
poison(2, 132)
finish_stats(T, 896)
for i in range(0, 28, 2):
    p(f'v_pk_fma_f32 {v(Z2 + i, 2)}, {v(Z2 + i, 2)}, {v(T, 2)}, {v(T, 2)} op_sel:[0,0,1] op_sel_hi:[1,0,1]')
ZO = 192
for pr in range(6):
    if pr < 4:
        tiles = [ft for ft in (2 * pr, 2 * pr + 1) if ft < 7]
        for ft in tiles:
            for k in range(2):
                p(f'v_cvt_pk_bf16_f32 {v(ZP + 2 * ft + k)}, {v(Z2 + 4 * ft + 2 * k)}, {v(Z2 + 4 * ft + 2 * k + 1)}')
    if 2 <= pr:
        q = pr - 2
        for ft in (2 * q, 2 * q + 1):
            for k in range(2 if ft < 7 else 0):
                p(f'v_cvt_pk_bf16_f32 {v(ZO + 2 * ft + k)}, {v(ZT + 4 * ft + 2 * k)}, {v(ZT + 4 * ft + 2 * k + 1)}')
        p(f's_add_u32 {s(sT)}, {s(sZst)}, {q * 32768:#x}')
    if pr < 4:
        for ft in tiles:
            p(f'{M16} {v(ZT + 4 * ft, 4)}, {v(ZP + 4 * pr, 4)}, {v(SEL + (0 if ft & 1 else 2), 4)}, 0')
    if 2 <= pr:
        for k in range(2):
            p(f'v_permlane16_swap_b32 {v(ZO + 4 * q + k)}, {v(ZO + 4 * q + 2 + k)}')
        if q == 3:
            p('s_mov_b32 exec_lo, 0xffff')
            p('s_mov_b32 exec_hi, 0xffff')
        p(f'buffer_store_dwordx4 {v(ZO + 4 * q, 4)}, {v(vZst)}, {s(R_WL, 4)}, {s(sT)} offen sc1', tag='pub')
p('s_mov_b64 exec, -1')
stamp('Zst')
poison(3, 132)
p.wait_vm('wz16')
p('s_barrier')
Z1B = min(16, Z1A + OPT['z1arr'])
wreg = lambda k: 104 + 4 * k if k < 8 else 212 + 4 * (k - 8)
wst = []
for k in range(16):
    g = [(f's_add_u32 {s(sDo)}, {s(sWO)}, {16384 * (3 + (k >> 2)):#x}', None)] if k % 4 == 0 else []
    if not OPT['nobg'] & 1:
        g.append((f'buffer_load_dwordx4 {v(wreg(k), 4)}, {v(vL16)}, {s(R_WS, 4)}, {s(sDo)} offen offset:{1024 * (k & 3)}', None))
    wst.append(g)
bgw = wo[OPT['woa']:12] + wst
wo = []
ZD, AC, RT, UO = OPT['zd'], 196, 228, 240


def zreg(fi):
    k = fi % ZD
    return 56 + 4 * k


def zload(fi):
    if fi % 4 == 0 and fi:
        p(f's_add_u32 {s(sT + 2)}, {s(sT + 2)}, 4096')
    if OPT['k4load'] or fi < ZD:
        p(f'buffer_load_dwordx4 {v(zreg(fi), 4)}, {v(vL16)}, {s(R_WL, 4)}, {s(sT + 2)} offen offset:{(fi % 4) * 1024}' + ' sc1')


nin = min(len(bgw), (112 - 7 * Z1A - 1) // OPT['wosp'])
fill = spread(bgw[:nin], 7 * Z1A + 1, OPT['wosp'])
nz = 0
if OPT['zs'] and OPT['zin'] and nin == len(bgw):
    pos = max(max(fill) + OPT['wosp'], OPT['zin'])
    while nz < ZD and max(pos, 7 * (nz + 5) - 1) < 112:
        pos = max(pos, 7 * (nz + 5) - 1)
        fill[pos] = (lambda k: lambda: zload(k))(nz)
        pos += OPT['zsp']
        nz += 1
gemm_r(Z1, 7, Z1A, Z1B, HF, WR, WD, LOC_Z1, last=112, fill={k: g for k, g in fill.items() if k < 7 * Z1B})
p.wait_vm('pub')
arrive(sS4, 8)
code_prefetch(4, 'L_k4')
stamp('arr4')
if Z1B < 16:
    gemm_r(Z1, 7, Z1B, 16, HF, WR, WD, LOC_Z1, preload=False, fill={k: g for k, g in fill.items() if k >= 7 * Z1B})
p.bg = bgw[nin:]
if nz:
    for fi in range(nz, ZD):
        zload(fi)
    nz = ZD
if OPT['g1w']:
    p.bg_on(8)
    gelu(Z1, 4 * OPT['g1w'], 164)
    p.bg_on(0)
p.bg_emit()
wsp_fix(FIX[3], 164)
stamp('win4')
if OPT['zs']:
    if Z1B < 16:
        p('s_barrier')
else:
    poll(sP4, None, 32)
stamp('S4')
p('L_k4:')
def k4_epilogue(ft):
    ac, buf = AC + 16 * (ft & 1), 12288 * (ft & 1)
    st1 = [f'ds_write_b128 {v(vRed + q - 1)}, {v(ac + 4 * q, 4)} offset:{buf}' for q in (1, 2, 3)]
    st1 += [f'v_add_f32 {v(ac + r)}, {v(vBsp)}, {v(ac + r)}' for r in range(4)]
    st2 = ['s_waitcnt lgkmcnt(0)', 's_barrier']
    st2 += [f'ds_read_b128 {v(RT + 4 * q, 4)}, {v(vRed + 3)} offset:{buf + 1024 * q}' for q in range(3)]
    st3 = [f'v_add_f32 {v(ac + r)}, {v(RT + 4 * q + r)}, {v(ac + r)}' for q in range(3) for r in range(4)]
    st3 += [f'v_mul_f32 {v(ac + r)}, {v(Z1 + 4 * ft + r)}, {v(ac + r)}' for r in range(4)]
    st3 += [f'v_cvt_pk_bf16_f32 {v(UO + 2 * (ft & 1) + k)}, {v(ac + 2 * k)}, {v(ac + 2 * k + 1)}' for k in range(2)]
    if ft == 6:
        st3 += [f'buffer_store_dwordx2 {v(UO, 2)}, {v(vL8)}, {s(R_WL, 4)}, {s(sT + 13)} offen']
    elif ft == 5:
        st3 += [f'buffer_store_dwordx4 {v(UO, 4)}, {v(vL16)}, {s(R_WL, 4)}, {s(sT + 12)} offen']
    elif ft & 1:
        st3 += [f'buffer_store_dwordx4 {v(UO, 4)}, {v(vL16)}, {s(R_WL, 4)}, {s(sT + 1 if ft == 3 else sUst)} offen offset:0']
    return st1, st2, st3


def k4_emit(x):
    if x.startswith('buffer_store'):
        late = x.endswith('offen')
        if late:
            p.wait_vm('x1l')
        gstore([x], 'u6' if 'dwordx2' in x else 'pub', OPT['locd'] & (2 if late else 4), sLocU if OPT['locd'] & (8 if late else 16) else None)
    else:
        p(x)


def gelu_ops(x, t):
    ops = [f'v_mul_f32 {v(t + k)}, {v(x + k)}, {v(x + k)}' for k in range(4)]
    ops += [f'v_fma_f32 {v(t + k)}, {v(t + k)}, {v(vGK)}, {v(vGK + 1)}' for k in range(4)]
    ops += [f'v_mul_f32 {v(t + k)}, {v(t + k)}, {v(x + k)}' for k in range(4)]
    ops += [f'v_exp_f32 {v(t + k)}, {v(t + k)}' for k in range(4)]
    ops += [f'v_add_f32 {v(t + k)}, 1.0, {v(t + k)}' for k in range(4)]
    ops += [f'v_rcp_f32 {v(t + k)}, {v(t + k)}' for k in range(4)]
    ops += [f'v_mul_f32 {v(x + k)}, {v(t + k)}, {v(x + k)}' for k in range(4)]
    return ops


WR5, X1R, XP, FL, X1L = 56, 232, 104, 244, 136
assert ZD == WD


def ureg(ks):
    return (104, 120, 164, 180, 212, 196, 136)[ks >> 2] + 4 * (ks & 3)


ul = [[(f'buffer_load_dwordx4 {v(ureg(ks), 4)}, {v(vL16)}, {s(R_WL, 4)}, {s(sT + 4 + (ks >> 2))} offen offset:{1024 * (ks & 3)}{LG}', None)]
      for ks in range(24)]
ul += [[(f'buffer_load_dwordx2 {v(ureg(24 + i) + 2 * k, 2)}, {v(vL8)}, {s(R_WL, 4)}, {s(sT + 10 + (i >> 1))} offen offset:{1024 * (2 * (i & 1) + k)}{LG}', None)
        for k in range(2)] for i in range(4)]


def flag_store(off):
    p(f'v_mov_b32 {v(FL + 1)}, 1')
    p(f's_add_u32 {s(99)}, {s(sS5)}, {s(sB4)}')
    p('s_mov_b64 exec, 1')
    gstore([f'buffer_store_dword {v(FL + 1)}, off, {s(R_WS, 4)}, {s(99)} offset:{off}'])
    p('s_mov_b64 exec, -1')


def flag_load(off):
    return [(f'buffer_load_dword {v(FL)}, {v(vGrp)}, {s(R_WS, 4)}, {s(sS5)} offen offset:{off}{PG}', None)]


def z_check(fi):
    loads = [(f's_add_u32 {s(99)}, {s(sZld)}, {1024 * fi:#x}', None)]
    loads += [(f'buffer_load_dwordx4 {v(zreg(fi + k), 4)}, {v(vL16)}, {s(R_WL, 4)}, {s(99)} offen offset:{1024 * k} sc1', None) for k in range(2)]
    return loads, lambda: p(f'v_cmp_u_f32 vcc, {v(zreg(fi) + 3)}, {v(zreg(fi + 1) + 3)}')


s4_load = [(f'buffer_load_dword {v(FL)}, off, {s(R_WS, 4)}, {s(sP4)} sc1', None)]


def flag_check(off):
    retry_until(flag_load(off), lambda: p(f'v_cmp_ne_u32 vcc, 1, {v(FL)}'))


for fi in range(nz, ZD):
    zload(fi)
assert not FIX[4]
x1l = [(f'buffer_load_dwordx4 {v(X1L + 4 * o, 4)}, {v(vL16)}, {s(R_WL, 4)}, {s(sT + 12 + o)} offen{LG}', 'x1l') for o in range(2)]
tail = ul[:16]
ROT = 112 % ZD
for ft in range(7):
    fill = {}
    if ft and OPT['k4epi']:
        st1, st2, st3 = k4_epilogue(ft - 1)
        pos = OPT['e1']
        for x in st1:
            fill.setdefault(pos, []).append(x)
            pos += 1
        pos = OPT['e2']
        for x in st2:
            fill.setdefault(pos, []).append(x)
            pos += 1
        pos = OPT['e3']
        for x in st3:
            fill.setdefault(pos, []).append(x)
            pos += 1
    if ft == 0:
        for k in range(16):
            fill[4 * k + 1] = [f'ds_write_b128 {v(245)}, {v(wreg(15 - k), 4)} offset:{16384 * ((15 - k) >> 2) + 1024 * ((15 - k) & 3)}']
    if ft == OPT['upk']:
        free = [k for k in range(64) if k % 4 != 3][-16:]
        for i in range(8):
            fill.setdefault(free[2 * i], []).append(f'v_lshlrev_b32 {v(XV + 2 * i)}, 16, {v(X1L + i)}')
            fill.setdefault(free[2 * i + 1], []).append(f'v_and_b32 {v(XV + 2 * i + 1)}, 0xffff0000, {v(X1L + i)}')
    free = [k for k in range(64) if k not in fill] + [k for k in range(64) if len(fill.get(k, [])) == 1 and fill[k][0][0] == 'v' and k % 4 != 3]
    free = sorted(free[:28])
    for k, x in zip(free, gelu_ops(Z1 + 4 * (ft + OPT['gsh']), T) if OPT['g1w'] <= ft + OPT['gsh'] < 7 else []):
        fill.setdefault(k, []).append(x)
    for a2 in range(16):
        fi = ft * 16 + a2
        chk = OPT['zs'] and fi & 1 and fi < 31
        if OPT['zs'] and fi == 0:
            retry_until(*z_check(0))
        for q in range(4):
            d = AC + 16 * (ft & 1) + 4 * q
            if chk and q == 3:
                z_check(fi + 1)[1]()
            if OPT['k4mfma'] or q == 0:
                p(f'{M16} {v(d, 4)}, {v(zreg(fi), 4)}, {a((q * 16 + a2) * 4, 4)}, {v(d, 4) if a2 else 0}')
            for x in fill.get(4 * a2 + q, []):
                k4_emit(x)
        if chk:
            retry_until(*z_check(fi + 1), tested=True)
        if OPT['zs'] and fi == OPT['q4']:
            emit([s4_load])
        if OPT['zs'] and fi + ZD == 32:
            retry_until(s4_load, lambda: p(f'v_cmp_ne_u32 vcc, 32, {v(FL)}'))
        if fi + ZD < 112:
            zload(fi + ZD)
        elif len(tail) > 16 - OPT['ntail']:
            if len(tail) == 8:
                flag_check(0)
            emit([tail.pop(0)])
        if fi + ZD >= 112:
            wring_read(fi + ZD - 112, WR5, WD, LOC_WO, ROT)
        if fi == OPT['mf']:
            p.wait_vm('pub')
            flag_store(32)
        if OPT['fine'] == 3 and (a2 == 15 or fi == 0) and fi < 111:
            stamp(f'i{fi}')
        if fi == 56:
            p.wait_vm('pub')
            flag_store(96)
        if fi == 70:
            emit([flag_load(96)])
        if fi == 84:
            flag_check(96)
        if fi == OPT['f5a']:
            p.wait_vm('pub')
            flag_store(0)
        if fi == 64:
            code_prefetch(8, 'L_k5')
        if fi == 80:
            p('L_k5:')
        if fi == OPT['x1pos']:
            emit([x1l])
        if fi == OPT['l5a']:
            emit([flag_load(0)])
stamp('K4')


def chain(*fs):
    def run():
        for f in fs:
            f()
    return run


def line(x, tag=None):
    return lambda: p(x, tag=tag)


def flag_after(tag, off):
    p.wait_vm(tag)
    flag_store(off)


def next_m1():
    if_layer(0)
    m1_load(228)
    p.end()


fill = {}


def put(pos, f):
    fill[pos] = chain(fill[pos], f) if pos in fill else f


st1, st2, st3 = k4_epilogue(6)
for k, x in enumerate(st1):
    put(OPT['k1'] + min(k, 3 + (k - 3) // 2), line(x, 'red' if k < 3 else None))
put(OPT['k2'], chain(lambda: p.wait_lgkm('red'), *[line(x) for x in st2[1:]]))
for k, x in enumerate(st3):
    put(OPT['k3'] + k // 2, (lambda y: lambda: k4_emit(y))(x))
kend = OPT['k3'] + len(st3) // 2
assert len(tail) < 8
for k, g in enumerate(tail):
    put(k, (lambda y: lambda: emit([y]))(g))
if OPT['mf'] > 111:
    put(OPT['mf'] - 112, lambda: flag_after('pub', 32))
put(OPT['mb'], lambda: emit([flag_load(32)]))
put(OPT['mc'], lambda: (flag_check(32), fine('ck5m'), emit(ul[16:20])))
for k in range(4):
    put(max(OPT['mc'], kend) + 2 + 2 * k, (lambda y: lambda: emit([y]))(ul[20 + k]))
put(OPT['fa'], lambda: (flag_after('u6', 64), fine('fl5b')))
put(OPT['fb'], lambda: emit([flag_load(64)]))
put(OPT['fc'], lambda: (flag_check(64), fine('ck5b'), emit(ul[24:])))
put(max(OPT['fc'] + 4, 64), next_m1)
gemm_r(XV, 4, 0, 28, ureg, WR5, WD, LOC_WO, first_c=True, fill=fill, preload=False, rot=ROT)


def x_pack():
    for k in range(8):
        p(f'v_cvt_pk_bf16_f32 {v(XP + k)}, {v(XV + 2 * k)}, {v(XV + 2 * k + 1)}')


stamp('K5')
if_layer(1)
x_pack()
for o in range(2):
    p(f'ds_write_b128 {v(OW)}, {v(XP + 4 * o, 4)} offset:{16 * o}')
for k in range(2):
    p(f'ds_read_b128 {v(X1R + 4 * k, 4)}, {v(OR)} offset:{1152 * k}')
for k in range(2):
    p(f'buffer_store_dwordx4 {v(X1R + 4 * k, 4)}, {v(OG)}, {s(R_OUT, 4)}, {s(sT + 14 + k)} offen sc1')
if PROF:
    p('s_waitcnt vmcnt(0)')
    stamp('end')
    p(f's_lshl_b32 {s(sT)}, s2, 2')
    p(f's_add_u32 {s(sT)}, {s(sT)}, {s(sW)}')
    p(f's_lshl_b32 {s(sT)}, {s(sT)}, 8')
    p(f's_add_u32 {s(sT)}, {s(sT)}, {PROFO:#x}')
    p(f'v_lshrrev_b32 {v(T)}, 2, {v(vL16)}')
    p(f'buffer_store_dword {v(vProf)}, {v(T)}, {s(R_WS, 4)}, {s(sT)} offen')
if OPT['diag']:
    p('s_waitcnt vmcnt(0)')
    stamp('end')
    p(f's_sub_u32 s101, s101, {s(sPidx)}')
    p('s_min_u32 s101, s101, 20000')
    p('s_mul_i32 s101, s101, 10')
    p('s_add_u32 s101, s101, 10000')
    p('L_spin:')
    p(f's_memrealtime {s(sStamp, 2)}')
    p('s_waitcnt lgkmcnt(0)')
    p(f's_sub_u32 {s(sStamp)}, {s(sStamp)}, {s(sPidx)}')
    p(f's_cmp_lt_u32 {s(sStamp)}, s101')
    p('s_cbranch_scc1 L_spin')
p('L_exit:')
p('s_endpgm')
p.end()
local_stats(XV, 16, T)
reduce_g(T, T + 1)
publish_stats(0x40000)
p('s_barrier')
if OPT['ctp'] == 0:
    ct_dma(228)
emit(wz2[:OPT['wzp0']])
x_pack()
p(f's_mov_b32 {s(sL)}, 1')
p(f's_mov_b32 {s(sLocH)}, {s(sLoc)}')
p(f's_mov_b32 {s(sLocU)}, 0')
if not OPT['reuse']:
    p(f's_add_u32 {s(R_WL)}, {s(R_WL)}, {LSTRIDE:#x}')
    p(f's_addc_u32 {s(R_WL + 1)}, {s(R_WL + 1)}, 0')
p(f's_mov_b32 {s(R_WL + 2)}, {LSTRIDE:#x}')
p(f's_mov_b32 {s(R_X)}, {s(R_WL)}')
p(f's_mov_b32 {s(R_X + 1)}, {s(R_WL + 1)}')
p(f's_mov_b32 {s(R_X + 2)}, {LSTRIDE:#x}')
p(f's_add_u32 {s(sXb)}, {s(sK2)}, {H_:#x}')
p(f's_add_u32 {s(sXo)}, {s(sXb)}, 2048')
p(f'v_mov_b32 {v(vXr)}, {v(vK2)}')
p(f'v_mov_b32 {v(vXw)}, {v(vTr)}')
p(f'v_add_u32 {v(vXw + 1)}, 576, {v(vTr)}')
p(f'v_mov_b32 {v(vHw)}, {v(vHw2)}')
p(f's_add_u32 {s(sSt)}, {s(sSt)}, 0x20000')
for r in (() if OPT['vs'] else (sArr, sRep)) + (sS2, sS4, sP4, sS5, sF2s, sF2l):
    p(f's_add_u32 {s(r)}, {s(r)}, 0x20000')
for o in range(2):
    p(f's_add_u32 {s(sT + 4 + o)}, {s(sT + 3)}, {H_ + 8192 * o:#x}')
emit([gather_loads(0x20000)])
gather_finish(0x20000)
gstore([f'buffer_store_dwordx4 {v(XP + 4 * o, 4)}, {v(vL16)}, {s(R_WL, 4)}, {s(sT + 4 + o)} offen' for o in range(2)], 'x2')
if OPT['ctp'] == 1:
    ct_dma(228)
emit(wz2[OPT['wzp0']:P1])
p('s_branch L_layer')

p.resolve([('pro', set()), ('body', {'L0'}), ('body', {'L1'})], ['W0', 'G0', 'LOC', 'RETRY'] + (['W1'] if OPT['tlb'] else []))

hdr = open('interleave_layers__spectral_fnet__mixer_gmlp__prompt.s.ref').read().split('\n')
out = [l for l in hdr if l.startswith(';') and '@launch' not in l][:14]
if PROF:
    k = STAMPS.index('T')
    out.append('; stamps: ' + ' '.join(STAMPS[:-1] + [x for x in STAMPS[k:] if x[0] != '*']))
out.append(f'; @launch grid=(256,1,1) block=(256,1,1) lds={LDS_BYTES}')
out += ['.amdgcn_target "amdgcn-amd-amdhsa--gfx950"', '.text', f'.globl {NAME}', '.p2align 8', f'.type {NAME},@function']
out.append(p.text())
out.append('.p2align 8')
out.append('.type L_table,@object')
out.append('L_table:')
tab = const_table()
for i in range(0, tab.size, 8):
    out.append('.long ' + ','.join(f'{x:#x}' for x in tab[i:i + 8]))
out.append(f'.size L_table, {tab.size * 4}')
out.append('L_end:')
out += ['.section .rodata,"a"', '.p2align 6', f'.amdhsa_kernel {NAME}',
        '  .amdhsa_next_free_vgpr 512', '  .amdhsa_next_free_sgpr 102', '  .amdhsa_accum_offset 256',
        '  .amdhsa_group_segment_fixed_size 0', '  .amdhsa_kernarg_size 104', '  .amdhsa_user_sgpr_count 2',
        '  .amdhsa_user_sgpr_kernarg_segment_ptr 1', '  .amdhsa_system_sgpr_workgroup_id_x 1',
        '  .amdhsa_float_denorm_mode_32 3', '.end_amdhsa_kernel', '']
open(sys.argv[1], 'w').write('\n'.join(out))
print(p.stats(), file=sys.stderr)
```

```python
import sys
import struct
import numpy as np
from asmlib import Prog, v, a, s

NAME = 'interleave_layers__spectral_fnet__mixer_gmlp__prompt_kernel'
OPT = dict(prof=0, k4mfma=1, k4load=1, k4epi=1, zd=12, pre3=6, pre5=16, loc=1, locd=7, x1pos=58, lg=0, pg=0, sg=0, wspev=8, x1=2,
           g2ev=12, z1a=0, gpos=18, z1arr=6, wo4=16, ctp=2, wzp0=0, wzp1=0, wzp2=0, wzp3=8, reuse=0, tlb=0, e1=4, e2=14, e3=24, f5a=87, l5a=95, mb=8, mc=20, fa=36, fb=48, fc=60, hpf=0, min0=1, pre=1, we=2, hsp=4, algn=0, xe=4, gb=1, xa=8, to=40000, wf2=1, cmn='044444', l0a=2, noe=0, pz=1, pv=4, vs=2, zp0=0, zin=1, zsp=3, zs=1, q4=8, upk=4, gsh=0, cpf=12, k1=3, k2=9, k3=15, mf=111, fixev=0, woa=8, wosp=4, g1w=1, l0n='0444466', ann=0, fix='6/7///', ntail=12, lnow=4, fine=0, sched='//d1/d2r0d3r1d4p0r2d5p1r3d6p2r4qd7p3/r5p4/a6p5/a7/', ctpos=0, pk=3, nomean=0,  z2sp=4, early=1, wfirst=0, nobg=0, few=0, diag='')
for arg in sys.argv[2:]:
    k, val = arg.split('=')
    OPT[k] = val if k in ('diag', 'sched', 'fix', 'l0n', 'cmn') else int(val)
PROF = OPT['prof']
LG = (' sc1', '', ' nt', ' sc0')[OPT['lg']]
PG = (' sc1', '', ' nt')[OPT['pg']]
SG = ('', ' nt', ' sc0')[OPT['sg']]


WI, WO, FLAGS, STATS, X2, PROFO = 0, 0x200000, 0x300000, 0x340000, 0x400000, 0x600000
LBASE, LSTRIDE = 0x800000, 0x1000000
V_, H_, X1_, Z_, U_ = 0, 0x200000, 0x400000, 0x600000, 0xA00000
WB, CT, SCR, LDS_BYTES = 0, 114688, 114688 + 22528, 163840
CT_FA, CT_TW, CT_FB, CT_M1 = 0, 6144, 10240, 14336

R_X, R_WIN, R_WSP, R_WOUT, R_OUT, R_WS, R_DBG, R_BSP, R_WL = 4, 8, 12, 16, 20, 24, 28, 32, 36
sW, sC, sB, sL, sTO = 40, 41, 42, 43, 44
sVst, sVld, sH, sK2, sXo, sXb, sZst, sZld, sUst, sUld = 45, 46, 47, 48, 49, 50, 51, 52, 53, 54
sLoc, sSt, sWI, sWO, sWsp, sSelLo, sSelHi, sPidx, sOnes = 55, 56, 57, 58, 59, 60, 61, 62, 63
sArr, sRep, sS2, sS4, sS5, sB128, sDm, sDo = 64, 65, 66, 67, 68, 69, 70, 71
sF2s, sF2l = 86, 87
sB4, sP4, sG0, sLocH, sLocU = 3, 88, 75, 89, 100
sT = 72
sStamp = 90
vL16, vTw, vK2, vXr, vVld, vVst, vBsp, vZst = 0, 1, 2, 3, 4, 5, 6, 7
vC2 = 8
vHw, vHr, vUw, vUr, vStl, vL8, vTr, vPoll, vArr, vProf, vGK = 16, 17, 18, 19, 20, 21, 22, 23, 24, 25, 26
vRed = 28
T = 32
XV = 40
M1 = 184


def f2u(x):
    return struct.unpack('<I', struct.pack('<f', x))[0]


def bf16(x):
    u = np.ascontiguousarray(x, dtype=np.float32).view(np.uint32)
    return ((u + 0x7FFF + ((u >> 16) & 1)) >> 16).astype(np.uint32)


def const_table():
    l = np.arange(64)[:, None]
    j = np.arange(8)[None, :]
    nn, h = l & 31, l >> 5
    e1 = 16 * ((nn >> 2) & 1) + 4 * (nn >> 3) + (nn & 3)
    frags = []

    def pack(x):
        x = np.where(np.abs(x) < 1e-12, 0.0, x)
        b = bf16(x)
        return (b[:, 0::2] | (b[:, 1::2] << 16)).astype(np.uint32)
    ang = [2 * np.pi * ((16 * dh + 8 * h + j) * e1 % 32) / 32 for dh in range(2)]
    frags += [pack(np.cos(ang[0])), pack(np.cos(ang[1])), pack(np.sin(ang[0])), pack(np.sin(ang[1])),
              pack(-np.sin(ang[0])), pack(-np.sin(ang[1]))]
    d2 = 8 * (j >> 2) + 4 * h + (j & 3)
    tw = 2 * np.pi * (d2 * e1) / 512
    tc = np.cos(tw).astype(np.float32).view(np.uint32)
    ts = np.sin(tw).astype(np.float32).view(np.uint32)
    frags += [tc[:, :4], tc[:, 4:], ts[:, :4], ts[:, 4:]]
    ps = 2 * np.pi * (d2 * (nn & 15) % 16) / 16
    for row in range(2):
        m = ((nn >> 4) == row)
        frags += [pack(np.cos(ps) * m), pack(np.sin(ps) * m)]
    n, g = l & 15, l >> 4
    for jq in range(4):
        for ks in range(2):
            rho = 32 * ks + 16 * (j >> 2) + 4 * g + (j & 3)
            s1 = 16 * (rho >> 4) + 2 * (rho & 7) + ((rho >> 3) & 1)
            jj = 8 * jq + (n >> 1)
            th = 2 * np.pi * (s1 * jj % 64) / 64
            x = np.where((n & 1) == 0, np.cos(th), np.where(jj == 0, (-1.0) ** s1, -np.sin(th)))
            frags.append(pack(x))
    tab = np.concatenate([np.ascontiguousarray(f).reshape(-1) for f in frags])
    assert tab.size == 22 * 256
    return tab


p = Prog()
M16 = 'v_mfma_f32_16x16x32_bf16'
M32 = 'v_mfma_f32_32x32x16_bf16'


STAMPS = []


def stamp(name):
    if OPT['few'] and name in ('karg', 'start', 'setup', 'init', 'arr1', 'Vst', 'pub3', 'z1a', 'S3', 'Zst', 'arr4', 'win4') + (() if OPT['fine'] else ('Vld', 'K2', 'arr2', 'K5')):
        return
    STAMPS.append(name)
    if OPT['diag'] and OPT['diag'][:-1] == name:
        p(f's_memrealtime {s(sStamp, 2)}')
        p('s_waitcnt lgkmcnt(0)')
        p(f's_cmp_eq_u32 {s(sL)}, {OPT["diag"][-1]}')
        p(f's_cselect_b32 s101, {s(sStamp)}, s101')
    if PROF:
        p(f'{"s_memtime" if PROF == 2 else "s_memrealtime"} {s(sStamp, 2)}')
        p('s_waitcnt lgkmcnt(0)')
        p('s_mov_b32 s101, m0')
        p(f's_mov_b32 m0, {s(sPidx)}')
        p(f'v_writelane_b32 {v(vProf)}, {s(sStamp)}, m0')
        p('s_mov_b32 m0, s101')
        p(f's_add_u32 {s(sPidx)}, {s(sPidx)}, 1')


def fine(name):
    if OPT['fine'] == 1:
        stamp(name)


def srd(r, lo, hi, size):
    p(f's_mov_b32 {s(r)}, {s(lo)}')
    p(f's_and_b32 {s(r + 1)}, {s(hi)}, 0xffff')
    p(f's_mov_b32 {s(r + 2)}, {size:#x}')
    p(f's_mov_b32 {s(r + 3)}, 0x20000')


def if_wave0():
    p(f's_cmp_eq_u32 {s(sW)}, 0')
    p.begin('W0', 's_cbranch_scc0')


def if_layer(l):
    p(f's_cmp_eq_u32 {s(sL)}, {l}')
    p.begin(f'L{l}', 's_cbranch_scc0')


def spin_tail(top, done):
    p(f's_cbranch_vccz {done}')
    p(f's_sub_u32 {s(sTO)}, {s(sTO)}, 1')
    p(f's_cbranch_scc0 {top}')
    p(f's_mov_b32 {s(sTO)}, 0')
    p(f'{done}:')


def arrive(soff, nrep):
    p('s_barrier')
    if_wave0()
    p(f'v_mov_b32 {v(T)}, 1')
    p(f's_mov_b64 exec, {(1 << nrep) - 1:#x}')
    p(f'buffer_atomic_add {v(T)}, {v(vArr)}, {s(R_WS, 4)}, {s(soff)} offen sc1')
    p('s_mov_b64 exec, -1')
    p.end()


def gstore(lines, tag=None, local=False, flag=None):
    if not OPT['loc'] or (tag and not local):
        for x in lines:
            p(x + ' sc1', tag=tag)
        return
    p(f's_cmp_eq_u32 {s(flag or sLoc)}, 0')
    p.begin_ool('!LOC', 's_cbranch_scc1')
    for x in lines:
        p(x + ' sc1', tag=tag)
    p.end_ool(('LOC', lambda: [p(x + SG, tag=tag) for x in lines]))


def arrive_group(soff, off=0):
    p('s_barrier')
    if_wave0()
    p(f'v_mov_b32 {v(T)}, 1')
    p(f's_add_u32 {s(99)}, {s(soff)}, {s(sB4)}')
    p('s_mov_b64 exec, 1')
    gstore([f'buffer_store_dword {v(T)}, off, {s(R_WS, 4)}, {s(99)} offset:{off}'])
    p('s_mov_b64 exec, -1')
    p.end()


def poll(soff, vaddr, need, tag=None):
    if_wave0()
    top, done = p.label('poll'), p.label('pdone')
    p(f'{top}:')
    if vaddr is not None:
        p(f'buffer_load_dword {v(T)}, {v(vaddr)}, {s(R_WS, 4)}, {s(soff)} offen' + (PG if vaddr == vGrp else ' sc1'))
    else:
        p(f'buffer_load_dword {v(T)}, off, {s(R_WS, 4)}, {s(soff)} sc1')
    p('s_waitcnt vmcnt(0)')
    p(f'v_cmp_ne_u32 vcc, {need}, {v(T)}')
    spin_tail(top, done)
    p.end()
    if tag:
        p.wait_vm(tag)
    p('s_barrier')


def reduce_g(x, y):
    p(f'v_permlane16_swap_b32 {v(x)}, {v(y)}')
    p(f'v_add_f32 {v(x)}, {v(x)}, {v(y)}')
    p(f'v_mov_b32 {v(y)}, {v(x)}')
    p(f'v_permlane32_swap_b32 {v(x)}, {v(y)}')
    p(f'v_add_f32 {v(x)}, {v(x)}, {v(y)}')
    p(f'v_mov_b32 {v(y)}, {v(x)}')
    p(f'v_permlane16_swap_b32 {v(x)}, {v(y)}')


def finish_stats(x, n):
    y, m = x + 1, x + 2
    p(f'v_mul_f32 {v(m)}, {f2u(1.0 / n):#x}, {v(x)}')
    p(f'v_mul_f32 {v(y)}, {f2u(1.0 / n):#x}, {v(y)}')
    p(f'v_fma_f32 {v(y)}, -{v(m)}, {v(m)}, {v(y)}')
    p(f'v_max_f32 {v(y)}, 0, {v(y)}')
    p(f'v_add_f32 {v(y)}, {f2u(1e-5):#x}, {v(y)}')
    p(f'v_rsq_f32 {v(x)}, {v(y)}')
    p(f'v_mul_f32 {v(y)}, -{v(m)}, {v(x)}')


def norm_pack(src, n, st, tmp, dst):
    for i in range(0, n, 2):
        p(f'v_pk_fma_f32 {v(tmp + i, 2)}, {v(src + i, 2)}, {v(st, 2)}, {v(st, 2)} op_sel:[0,0,1] op_sel_hi:[1,0,1]')
    for i in range(0, n, 2):
        p(f'v_cvt_pk_bf16_f32 {v(dst + i // 2)}, {v(tmp + i)}, {v(tmp + i + 1)}')


def local_stats(src, n, out):
    sa, sq = out + 2, out + 4
    p(f'v_pk_add_f32 {v(sa, 2)}, {v(src, 2)}, {v(src + 2, 2)}')
    p(f'v_pk_mul_f32 {v(sq, 2)}, {v(src, 2)}, {v(src, 2)}')
    p(f'v_pk_fma_f32 {v(sq, 2)}, {v(src + 2, 2)}, {v(src + 2, 2)}, {v(sq, 2)}')
    for i in range(4, n, 2):
        p(f'v_pk_add_f32 {v(sa, 2)}, {v(sa, 2)}, {v(src + i, 2)}')
        p(f'v_pk_fma_f32 {v(sq, 2)}, {v(src + i, 2)}, {v(src + i, 2)}, {v(sq, 2)}')
    p(f'v_add_f32 {v(out)}, {v(sa)}, {v(sa + 1)}')
    p(f'v_add_f32 {v(out + 1)}, {v(sq)}, {v(sq + 1)}')


def unpack(src, n, dst):
    for i in range(n):
        p(f'v_lshlrev_b32 {v(dst + 2 * i)}, 16, {v(src + i)}')
        p(f'v_and_b32 {v(dst + 2 * i + 1)}, 0xffff0000, {v(src + i)}')


def publish_stats(area):
    p(f's_add_u32 {s(sT)}, {s(sSt)}, {s(sB128)}')
    if area:
        p(f's_add_u32 {s(sT)}, {s(sT)}, {area:#x}')
    p('s_mov_b64 exec, 0xffff')
    gstore([f'buffer_store_dwordx2 {v(T, 2)}, {v(vStl)}, {s(R_WS, 4)}, {s(sT)} offen'])
    p('s_mov_b64 exec, -1')


def gather_loads(area):
    return [(f's_add_u32 {s(99)}, {s(sSt)}, {area:#x}', None),
            (f'buffer_load_dwordx2 {v(T + 4, 2)}, {v(vStl)}, {s(R_WS, 4)}, {s(99)} offen{PG}', None),
            (f'buffer_load_dwordx2 {v(T + 6, 2)}, {v(vStl)}, {s(R_WS, 4)}, {s(99)} offen offset:128{PG}', None)]


def retry_until(loads, test, tested=False, after=None):
    if not tested:
        test()
    p.begin_ool('RETRY', 's_cbranch_vccnz')
    top, done = p.label('rt'), p.label('rdone')
    p(f'{top}:')
    emit([loads])
    p('s_waitcnt vmcnt(0)')
    test()
    spin_tail(top, done)
    if after:
        emit([after])
    p.end_ool()


def gather_finish(area):
    def test():
        p(f'v_add_f32 {v(T)}, {v(T + 4)}, {v(T + 6)}')
        p(f'v_add_f32 {v(T + 1)}, {v(T + 5)}, {v(T + 7)}')
        p(f'v_cmp_u_f32 vcc, {v(T)}, {v(T + 1)}')
    retry_until(gather_loads(area), test)
    reduce_g(T, T + 1)


LOC_Z2 = lambda i: 1024 * i
LOC_Z1 = lambda i: 1024 * (i - 48) if i >= 48 else CT + 1024 * i
LOC_WO = lambda i: 1024 * (i - 48) if i >= 48 else 65536 + 1024 * i


def w_dma_ops(sbase, extra, loc, name):
    ops = []
    for j in range(7):
        for i in range(4):
            o = []
            if i == 0:
                o.append((f's_add_u32 m0, {s(sDm)}, {loc(16 * j):#x}', None))
                o.append((f's_add_u32 {s(sDo)}, {s(sbase)}, {extra + 16384 * j:#x}', None))
            if OPT['nobg'] & 1:
                o.append(('s_nop 0', None))
            else:
                o.append((f'buffer_load_dwordx4 {v(vL16)}, {s(R_WS, 4)}, {s(sDo)} offen offset:{i * 1024} lds', f'{name}{j}'))
            ops.append(o)
    return ops


def emit(groups):
    for g in groups:
        for text, tag in g:
            p(text, tag=tag)


def wsp_dma_ops(batch):
    q, ih = batch >> 1, batch & 1
    ops = []
    for il in range(4):
        for rh in range(2):
            if batch < 2:
                imm, so = 128 * il, 80 + batch
                o = [(f's_add_u32 m0, {s(78 + batch)}, {1024 + 2048 * il + 1024 * rh - imm}', None)]
            else:
                imm, so = 512 * ih + 128 * il, sDo
                o = [(f's_add_u32 m0, {s(sWsp)}, {1024 + 8192 * (batch % 3) + 2048 * il + 1024 * rh - imm}', None)]
                if not ops:
                    o += [(f's_add_u32 {s(sDo)}, {s(sW)}, {q}', None), (f's_and_b32 {s(sDo)}, {s(sDo)}, 3', None),
                          (f's_lshl_b32 {s(sDo)}, {s(sDo)}, 21', None)]
            o.append((f'buffer_load_dwordx4 {v(vWspA + rh)}, {s(R_WSP, 4)}, {s(so)} offen offset:{imm} lds', f'wsp{max(batch, 1)}'))
            ops.append(o)
    return ops


def table_addr(dst, soff):
    p(f'v_add_u32 {v(dst)}, {s(soff)}, {v(vL16)}')
    p(f'v_mov_b32 {v(dst + 1)}, {s(93)}')
    p(f'v_add_co_u32 {v(dst)}, vcc, {s(92)}, {v(dst)}')
    p(f'v_addc_co_u32 {v(dst + 1)}, vcc, 0, {v(dst + 1)}, vcc')


def code_prefetch(bit, lo):
    if not OPT['cpf'] & bit:
        return
    if_layer(0)
    p(f's_lshr_b32 {s(99)}, s2, 3')
    p(f's_lshl_b32 {s(99)}, {s(99)}, 2')
    p(f's_add_u32 {s(99)}, {s(99)}, {s(sW)}')
    p(f's_lshl_b32 {s(99)}, {s(99)}, 7')
    p(f's_sub_u32 {s(98)}, {s(92)}, L_table-{lo}')
    p(f's_subb_u32 {s(97)}, {s(93)}, 0')
    p(f's_add_u32 {s(98)}, {s(98)}, {s(99)}')
    p(f's_addc_u32 {s(97)}, {s(97)}, 0')
    p(f'v_mov_b32 {v(T + 6)}, {s(98)}')
    p(f'v_mov_b32 {v(T + 7)}, {s(97)}')
    p('s_mov_b64 exec, 1')
    p(f'global_load_dword {v(251)}, {v(T + 6, 2)}, off')
    p('s_mov_b64 exec, -1')
    p.end()


def poison(site, reg):
    todo = [(sZst, vZst, 0)] if OPT['zs'] and OPT['pz'] == site else []
    todo += [(sVst, vVst, 0), (sVst, vVst, 0x10000)] if OPT['vs'] and OPT['pv'] == site else []
    if not todo:
        return
    if_layer(0)
    for k in range(4):
        p(f'v_mov_b32 {v(reg + k)}, -1')
    for base, va, off in todo:
        p(f's_add_u32 {s(99)}, {s(base)}, {LSTRIDE + off:#x}')
        p(f'buffer_store_dwordx4 {v(reg, 4)}, {v(va)}, {s(R_WL, 4)}, {s(99)} offen sc1', tag='pub' if site == 3 else None)
    p.end()


def m1_load(dst):
    p(f's_lshl_b32 {s(99)}, {s(sW)}, 11')
    p(f's_add_u32 {s(99)}, {s(99)}, {CT_M1}')
    table_addr(dst, 99)
    for k in range(2):
        p(f'global_load_dwordx4 {v(M1 + 4 * k, 4)}, {v(dst, 2)}, off offset:{1024 * k}')


def ct_dma(dst):
    p(f's_mul_i32 {s(99)}, {s(sW)}, 3584')
    p(f's_add_u32 m0, {s(99)}, {CT}')
    table_addr(dst, 99)
    for off in (0, 1024, 2048):
        p(f'global_load_lds_dwordx4 {v(dst, 2)}, off offset:{off}', tag='ct')
    p('s_mov_b32 exec_hi, 0')
    p(f'global_load_lds_dwordx4 {v(dst, 2)}, off offset:3072', tag='ct')
    p('s_mov_b64 exec, -1')


def wsp_dma(batch):
    p.bg = wsp_dma_ops(batch)
    p.bg_emit()


def wsp_read(batch, reg):
    p.wait_vm(f'wsp{max(batch, 1)}')
    for il in range(4):
        for o in range(2):
            p(f'ds_read_b128 {v(reg + 4 * (2 * il + o), 4)}, {v(vWspR + o)} offset:{8192 * (batch % 3) + 2048 * il}', tag=f'wr{batch}')


def wsp_park(batch):
    q, ih = batch >> 1, batch & 1
    p.wait_vm(f'wsp{max(batch, 1)}')
    for il in range(4):
        for o in range(2):
            p(f'ds_read_b128 {a(64 * q + 32 * o + 4 * (4 * ih + il), 4)}, {v(vWspR + o)} offset:{8192 * (batch % 3) + 2048 * il}', tag=f'wr{batch}')


def wsp_fix(units, reg, first=()):
    if not units and not first:
        return
    if_layer(0)
    emit(first)
    for u in units:
        base = 32 * int(u)
        for k in range(32):
            p(f'v_accvgpr_read_b32 {v(reg + k)}, {a(base + k)}')
        k = 0
        for ip in range(4):
            for al in range(8):
                t = reg + 32 + (k & 3)
                k += 1
                lo, hi = reg + 8 * ip + (al >> 1), reg + 8 * ip + 4 + (al >> 1)
                p(f'v_perm_b32 {v(t)}, {v(hi)}, {v(lo)}, {s(sSelHi if al & 1 else sSelLo)}')
                p(f'v_accvgpr_write_b32 {a(base + 4 * al + ip)}, {v(t)}')
    p.end()


def wsp_perm(batch, reg):
    q, ih = batch >> 1, batch & 1
    k = 0
    for ipl in range(2):
        for o in range(2):
            for al in range(8):
                t = T + (k & 7)
                k += 1
                lo, hi = reg + 4 * (4 * ipl + o) + (al >> 1), reg + 4 * (4 * ipl + 2 + o) + (al >> 1)
                p(f'v_perm_b32 {v(t)}, {v(hi)}, {v(lo)}, {s(sSelHi if al & 1 else sSelLo)}')
                p(f'v_accvgpr_write_b32 {a((q * 16 + 8 * o + al) * 4 + 2 * ih + ipl)}, {v(t)}')


def wring_read(idx, ring, depth, loc, rot=0):
    base, off = (vL16, vL16hi, vL16h2)[loc(idx) >> 16], loc(idx) & 0xffff
    p(f'ds_read_b128 {v(ring + 4 * ((idx + rot) % depth), 4)}, {v(base)} offset:{off}', tag=f'w{idx}')


def gemm_r(acc, nt, ks0, ks1, act, ring, depth, loc, first_c=None, fill=None, preload=True, last=None, rot=0):
    fill = dict(fill or {})
    if OPT['nobg'] & 2 and loc is LOC_Z1:
        raise SystemExit('nobg&2 unsupported')
    lo, hi = nt * ks0, nt * ks1
    if preload:
        for idx in range(lo, min(lo + depth, last or hi)):
            wring_read(idx, ring, depth, loc)
    for idx in range(lo, hi):
        ks, t = divmod(idx, nt)
        if (idx - lo) % OPT['we'] == 0:
            p.wait_lgkm(f'w{min(idx + OPT["we"] - 1, hi - 1)}')
        c = v(acc + 4 * t, 4) if (ks or first_c) else '0'
        p(f'{M16} {v(acc + 4 * t, 4)}, {v(ring + 4 * ((idx + rot) % depth), 4)}, {v(act(ks) if callable(act) else act + 4 * ks, 4)}, {c}')
        if idx + depth < (last or hi):
            wring_read(idx + depth, ring, depth, loc, rot)
        f = fill.pop(idx, None)
        if callable(f):
            f()
        elif f:
            emit([f])
    assert not fill


def spread(groups, first, step):
    return {first + step * k: g for k, g in enumerate(groups)}


def gelu(x, n, tmp):
    for i in range(0, n, 4):
        t = tmp + (i & 4)
        for k in (0, 2):
            p(f'v_pk_mul_f32 {v(t + k, 2)}, {v(x + i + k, 2)}, {v(x + i + k, 2)}')
        for k in (0, 2):
            p(f'v_pk_fma_f32 {v(t + k, 2)}, {v(t + k, 2)}, {v(vGK, 2)}, {v(vGK, 2)} op_sel:[0,0,1] op_sel_hi:[1,0,1]')
        for k in (0, 2):
            p(f'v_pk_mul_f32 {v(t + k, 2)}, {v(t + k, 2)}, {v(x + i + k, 2)}')
        for k in range(4):
            p(f'v_exp_f32 {v(t + k)}, {v(t + k)}')
        for k in (0, 2):
            p(f'v_pk_add_f32 {v(t + k, 2)}, {v(t + k, 2)}, 1.0 op_sel_hi:[1,0]')
        for k in range(4):
            p(f'v_rcp_f32 {v(t + k)}, {v(t + k)}')
        for k in (0, 2):
            p(f'v_pk_mul_f32 {v(x + i + k, 2)}, {v(t + k, 2)}, {v(x + i + k, 2)}')


vWspA, vWspR = 244, 236
vHw2, vXw, vGrp = 250, 246, 254
vL16hi, vL16h2 = 252, 255
p.section('pro')
p(f'{NAME}:')
p(f's_cmp_ge_u32 s2, 256')
p('s_cbranch_scc1 L_exit')
SRDS = ((R_X, 0, 2097152), (R_WS, 96, LBASE), (R_WIN, 48, 512 * 3584), (R_WOUT, 72, 896 * 1024), (R_WSP, 56, 2048 * 4096),
        (R_BSP, 64, 4096), (R_WL, 96, 2 * LSTRIDE), (R_DBG, 88, 256), (R_OUT, 80, 2097152))
for r, off, size in SRDS[:6]:
    p(f's_load_dwordx2 {s(r, 2)}, s[0:1], {off}')
if OPT['diag']:
    p(f's_memrealtime {s(sStamp, 2)}')
if PROF:
    p(f'{"s_memtime" if PROF == 2 else "s_memrealtime"} {s(sStamp, 2)}')
p(f's_getpc_b64 {s(92, 2)}')
p('L_pc:')
lane, n_, g_, t0, t1, t2, t3, tid = 100, 101, 102, 103, 104, 105, 106, 107
p(f'v_mov_b32 {v(tid)}, v0')
p(f's_lshr_b32 {s(94)}, s2, 3')
p(f's_lshl_b32 {s(94)}, {s(94)}, 4')
p(f'v_lshrrev_b32 {v(T)}, 4, v0')
p(f'v_add_u32 {v(T)}, {s(94)}, {v(T)}')
p(f'v_lshlrev_b32 {v(T)}, 7, {v(T)}')
p(f'v_min_u32 {v(T)}, L_end-L_pc-4, {v(T)}')
p(f'v_mov_b32 {v(T + 3)}, {s(93)}')
p(f'v_add_co_u32 {v(T + 2)}, vcc, {s(92)}, {v(T)}')
p(f'v_addc_co_u32 {v(T + 3)}, vcc, 0, {v(T + 3)}, vcc')
p(f'global_load_dword {v(253)}, {v(T + 2, 2)}, off')
p(f'v_lshrrev_b32 {v(t0)}, 6, v0')
p(f'v_and_b32 {v(lane)}, 63, v0')
p(f'v_readfirstlane_b32 {s(sW)}, {v(t0)}')
p(f's_lshr_b32 {s(94)}, s2, 3')
p(f's_and_b32 {s(sB)}, {s(94)}, 7')
p(f's_and_b32 {s(95)}, s2, 7')
p(f's_lshl_b32 {s(95)}, {s(95)}, 1')
p(f's_lshr_b32 {s(96)}, {s(94)}, 4')
p(f's_add_u32 {s(95)}, {s(95)}, {s(96)}')
p(f's_sub_u32 {s(96)}, 32, {s(95)}')
p(f's_cmp_eq_u32 {s(95)}, 0')
p(f's_cselect_b32 {s(96)}, 16, {s(96)}')
p(f's_bitcmp1_b32 {s(94)}, 3')
p(f's_cselect_b32 {s(sC)}, {s(96)}, {s(95)}')
p(f's_lshl_b32 {s(sB128)}, {s(sB)}, 7')
p(f's_lshl_b32 {s(94)}, {s(sW)}, 9')
p(f's_add_u32 {s(94)}, {s(94)}, {s(sC)}')
p(f'v_and_b32 {v(t0)}, 28, {v(lane)}')
p(f'v_lshlrev_b32 {v(t0)}, 4, {v(t0)}')
p(f'v_and_b32 {v(t1)}, 32, {v(lane)}')
p(f'v_add3_u32 {v(t0)}, {v(t0)}, {v(t1)}, {s(94)}')
p(f'v_lshlrev_b32 {v(t2)}, 10, {v(t0)}')
p(f'v_and_b32 {v(t1)}, 3, {v(lane)}')
p(f'v_lshl_add_u32 {v(t0)}, {v(t1)}, 5, {v(t2)}')
p(f'v_lshl_add_u32 {v(t2)}, {v(t1)}, 4, {v(t2)}')
XR = 120


def x_loads(i0, i1):
    for i in range(i0, i1):
        if i == 0:
            p(f'buffer_load_dwordx4 {v(XR, 4)}, {v(t0)}, {s(R_X, 4)}, {s(sB128)} offen')
            p(f'buffer_load_dwordx4 {v(XR + 4, 4)}, {v(t0)}, {s(R_X, 4)}, {s(sB128)} offen offset:16')
            continue
        p(f's_add_u32 {s(99)}, {s(sB128)}, {128 * i}')
        p(f's_and_b32 {s(99)}, {s(99)}, 0x3ff')
        p(f'buffer_load_dwordx4 {v(XR + 8 * i, 4)}, {v(t2)}, {s(R_X, 4)}, {s(99)} offen')
        p(f'buffer_load_dwordx4 {v(XR + 8 * i + 4, 4)}, {v(t2)}, {s(R_X, 4)}, {s(99)} offen offset:64')


def first_loads():
    p('s_waitcnt lgkmcnt(0)')
    if OPT['diag']:
        p(f's_mov_b32 {s(sPidx)}, {s(sStamp)}')
        p(f's_mov_b32 s101, {s(sStamp)}')
    if PROF:
        p(f'v_mov_b32 {v(vProf)}, 0')
        p(f'v_writelane_b32 {v(vProf)}, {s(sStamp)}, 0')
        p(f's_mov_b32 {s(sPidx)}, 1')
        STAMPS.append('entry')
    stamp('karg')
    x_loads(0, OPT['x1'])


p(f's_mov_b32 {s(R_X + 2)}, {SRDS[0][2]:#x}')
p(f's_mov_b32 {s(R_X + 3)}, 0x20000')
p(f's_mov_b32 {s(sL)}, 0')
if OPT['min0']:
    first_loads()
p(f'v_and_b32 {v(n_)}, 15, {v(lane)}')
p(f'v_lshrrev_b32 {v(g_)}, 4, {v(lane)}')
p(f'v_lshlrev_b32 {v(vL16)}, 4, {v(lane)}')
for r, off, size in SRDS[1:]:
    p(f's_mov_b32 {s(r + 2)}, {size:#x}')
    p(f's_mov_b32 {s(r + 3)}, 0x20000')
p(f's_mov_b32 {s(sTO)}, {OPT["to"]}')
p(f's_lshl_b32 {s(sB4)}, {s(sB)}, 2')
p(f's_getreg_b32 {s(sLoc)}, hwreg(HW_REG_XCC_ID)')
p(f's_mov_b32 {s(sOnes)}, 0x3f803f80')
p(f's_mov_b32 {s(sSelLo)}, 0x05040100')
p(f's_mov_b32 {s(sSelHi)}, 0x07060302')
p(f'v_and_b32 {v(t3)}, 7, {v(n_)}')
p(f'v_lshlrev_b32 {v(t3)}, 6, {v(t3)}')
p(f'v_and_b32 {v(t1)}, 8, {v(n_)}')
p(f'v_lshlrev_b32 {v(t1)}, 2, {v(t1)}')
p(f'v_add3_u32 {v(t3)}, {v(t3)}, {v(t1)}, {s(94)}')
p(f'v_lshlrev_b32 {v(t3)}, 1, {v(t3)}')
p(f's_lshl_b32 {s(96)}, {s(sC)}, 2')
p(f's_add_u32 {s(96)}, {s(96)}, {s(sW)}')
p(f's_lshl_b32 {s(sSt)}, {s(96)}, 10')
p(f's_add_u32 {s(sSt)}, {s(sSt)}, {STATS:#x}')
p(f's_lshl_b32 {s(96)}, {s(sC)}, 10')
p(f's_add_u32 {s(sS2)}, {s(96)}, {FLAGS + 0x10000:#x}')
p(f's_lshl_b32 {s(96)}, {s(sW)}, 7')
p(f's_add_u32 {s(96)}, {s(96)}, 256')
p(f's_add_u32 {s(sS5)}, {s(96)}, {s(sS2)}')
p(f'v_lshlrev_b32 {v(vStl)}, 3, {v(n_)}')
p(f'v_lshl_add_u32 {v(vStl)}, {v(g_)}, 8, {v(vStl)}')
p(f's_lshl_b32 {s(96)}, {s(sB)}, 2')
p(f's_add_u32 {s(96)}, {s(96)}, {s(sW)}')
p(f's_mul_i32 {s(sZld)}, {s(96)}, 114688')
p(f's_add_u32 {s(sZld)}, {s(sZld)}, {Z_:#x}')
p(f's_and_b32 {s(96)}, {s(sC)}, 7')
p(f's_lshl_b32 {s(96)}, {s(96)}, 10')
p(f's_lshr_b32 {s(97)}, {s(sC)}, 3')
p(f's_lshl_b32 {s(97)}, {s(97)}, 8')
p(f's_add_u32 {s(96)}, {s(96)}, {s(97)}')
p(f's_add_u32 {s(sZst)}, {s(sZld)}, {s(96)}')
p(f'v_and_b32 {v(T)}, 1, {v(g_)}')
p(f'v_lshlrev_b32 {v(T)}, 14, {v(T)}')
p(f'v_and_b32 {v(T + 1)}, 2, {v(g_)}')
p(f'v_lshl_add_u32 {v(T)}, {v(T + 1)}, 12, {v(T)}')
p(f'v_lshl_add_u32 {v(vZst)}, {v(n_)}, 4, {v(T)}')
EI = 64
for k in range(4):
    p(f'v_mov_b32 {v(116 + k)}, -1')
p(f'v_mov_b32 {v(EI)}, -1')
p(f'v_mov_b32 {v(EI + 1)}, -1')
p(f'v_mov_b32 {v(EI + 2)}, {s(sLoc)}')
p(f'v_mov_b32 {v(EI + 3)}, 0')
p(f'v_and_b32 {v(EI + 4)}, 16, {v(vL16)}')
p(f'v_lshlrev_b32 {v(EI + 4)}, 13, {v(EI + 4)}')
p(f'v_and_b32 {v(EI + 5)}, 0x60, {v(vL16)}')
p(f'v_or_b32 {v(EI + 4)}, {v(EI + 4)}, {v(EI + 5)}')
def first_requests():
    if not OPT['min0']:
        first_loads()
    for r, off, size in SRDS[7:]:
        p(f's_load_dwordx2 {s(r, 2)}, s[0:1], {off}')
    p(f's_lshl_b32 {s(96)}, s2, 2')
    p(f's_add_u32 {s(sG0)}, {s(96)}, {s(sW)}')
    p(f's_cmp_eq_u32 {s(sG0)}, 3')
    p.begin('G0', 's_cbranch_scc0')
    p(f'v_lshlrev_b32 {v(EI + 6)}, 4, {v(vL16)}')
    for k in range(2):
        p(f's_mov_b32 {s(99)}, {FLAGS + 0x4000 * k:#x}')
        p(f'buffer_store_dword {v(EI + 3)}, {v(EI + 6)}, {s(R_WS, 4)}, {s(99)} offen sc1', tag='z')
    p.end()
    p(f's_and_b32 {s(96)}, {s(sB)}, 3')
    p(f's_lshl_b32 {s(96)}, {s(96)}, 3')
    p(f's_and_b32 {s(97)}, {s(sB)}, 4')
    p(f's_add_u32 {s(96)}, {s(96)}, {s(97)}')
    p(f's_add_u32 {s(96)}, {s(96)}, {s(sW)}')
    p(f's_lshl_b32 {s(96)}, {s(96)}, 2')
    p(f's_add_u32 {s(97)}, {s(sS2)}, 768')
    p(f's_add_u32 {s(sF2s)}, {s(96)}, {s(97)}')
    p(f's_lshl_b32 {s(96)}, {s(sW)}, 5')
    p(f's_add_u32 {s(sF2l)}, {s(96)}, {s(97)}')
    if OPT['wf2']:
        p('s_mov_b64 exec, 3')
        p(f'buffer_store_dword {v(EI + 3)}, {v(EI + 4)}, {s(R_WS, 4)}, {s(sF2s)} offen sc1', tag='pub')
    p('s_mov_b64 exec, 0xffff')
    for k in range(0 if OPT['noe'] & 1 else 3):
        p(f's_add_u32 {s(96)}, {s(sSt)}, {s(sB128)}')
        p(f's_add_u32 {s(96)}, {s(96)}, {k * 0x20000:#x}')
        p(f'buffer_store_dwordx2 {v(EI, 2)}, {v(vStl)}, {s(R_WS, 4)}, {s(96)} offen sc1', tag='pub')
    p('s_mov_b64 exec, 0xff')
    p(f's_add_u32 {s(97)}, {s(sS5)}, {s(sB4)}')
    if not OPT['noe'] & 2:
        p(f'buffer_store_dword {v(EI + 3)}, {v(EI + 4)}, {s(R_WS, 4)}, {s(97)} offen sc1', tag='pub')
    if_wave0()
    p('s_mov_b64 exec, 1')
    p(f's_add_u32 {s(96)}, {s(sS2)}, {s(sB4)}')
    p(f'buffer_store_dword {v(EI + 2)}, off, {s(R_WS, 4)}, {s(96)} offset:128 sc1', tag='pub')
    p('s_mov_b64 exec, 15')
    if not OPT['noe'] & 2:
        p(f'buffer_store_dword {v(EI + 3)}, {v(EI + 4)}, {s(R_WS, 4)}, {s(96)} offen sc1', tag='pub')
    p(f's_lshl_b32 {s(96)}, s2, 8')
    p(f's_add_u32 {s(96)}, {s(96)}, {FLAGS:#x}')
    p('s_cmp_lt_u32 s2, 128')
    p('s_cselect_b32 exec_lo, 2, 3')
    p(f'buffer_store_dword {v(EI + 3)}, {v(EI + 4)}, {s(R_WS, 4)}, {s(96)} offen sc1', tag='pub')
    p.end()
    p('s_mov_b64 exec, -1')
    p(f's_add_u32 {s(R_WL)}, {s(R_WS)}, {LBASE:#x}')
    p(f's_addc_u32 {s(R_WL + 1)}, {s(R_WS + 1)}, 0')
    p('s_waitcnt lgkmcnt(0)')
    if OPT['tlb']:
        p(f's_cmp_eq_u32 {s(sW)}, 1')
        p.begin('W1', 's_cbranch_scc0')
        p(f'v_lshlrev_b32 {v(EI + 6)}, 21, {v(n_)}')
        p('s_mov_b64 exec, 0xffff')
        if OPT['tlb'] & 1:
            p(f'buffer_load_dword {v(240)}, {v(EI + 6)}, {s(R_WL, 4)}, 0 offen sc1')
            p(f'buffer_load_dword {v(239)}, {v(EI + 6)}, {s(R_WS, 4)}, 0 offen sc1')
        if OPT['tlb'] & 2:
            p(f'buffer_load_dword {v(238)}, {v(EI + 6)}, {s(R_WSP, 4)}, 0 offen')
            p(f'buffer_load_dword {v(223)}, off, {s(R_DBG, 4)}, 0 offset:128 sc1')
        if OPT['tlb'] & 4:
            p(f'buffer_load_dword {v(222)}, off, {s(R_OUT, 4)}, 0 sc1')
        p('s_mov_b64 exec, -1')
        p.end()
    stamp('start')


def early_requests():
    global prep, wsp_first
    if OPT['early'] & 1:
        emit(prep)
        prep = []
    emit(wsp_first[:OPT['early'] >> 1])
    wsp_first = wsp_first[OPT['early'] >> 1:]


def hook(k):
    if OPT['pre'] == k:
        first_requests()
    if max(OPT['pre'], 2) == k:
        early_requests()


hook(1)
vPi, vPo, vPri, vPro, PK = 112, 114, 242, 243, 224
PST = SCR + 12288
p(f's_add_u32 {s(92)}, {s(92)}, L_table-L_pc')
p(f's_addc_u32 {s(93)}, {s(93)}, 0')
for k in range(2):
    p(f'v_add_u32 {v(T)}, {256 * k}, {v(tid)}')
    p(f'v_mul_u32_u24 {v(T + 1)}, 4682, {v(T)}')
    p(f'v_lshrrev_b32 {v(T + 1)}, 16, {v(T + 1)}')
    p(f'v_mul_u32_u24 {v(T + 2)}, 14, {v(T + 1)}')
    p(f'v_sub_u32 {v(T)}, {v(T)}, {v(T + 2)}')
    p(f'v_and_b32 {v(T + 2)}, 0x38, {v(T + 1)}')
    p(f'v_add_u32 {v(T + 1)}, {v(T + 1)}, {v(T + 2)}')
    p(f'v_mul_u32_u24 {v(T + 1)}, 3584, {v(T + 1)}')
    p(f'v_lshl_add_u32 {v(vPi + k)}, {v(T)}, 4, {v(T + 1)}')
p(f's_and_b32 {s(94)}, {s(sC)}, 7')
p(f's_lshl_b32 {s(94)}, {s(94)}, 6')
p(f's_and_b32 {s(95)}, {s(sC)}, 8')
p(f's_add_u32 {s(94)}, {s(94)}, {s(95)}')
p(f's_mul_i32 {s(94)}, {s(94)}, 3584')
p(f's_lshr_b32 {s(95)}, {s(sC)}, 4')
p(f's_mul_i32 {s(95)}, {s(95)}, 1792')
p(f's_add_u32 {s(94)}, {s(94)}, {s(95)}')
p(f's_mul_i32 {s(95)}, {s(sB)}, 224')
p(f's_add_u32 {s(76)}, {s(94)}, {s(95)}')
p(f'v_lshrrev_b32 {v(T)}, 3, {v(lane)}')
p(f'v_and_b32 {v(T + 1)}, 0x70, {v(vL16)}')
p(f'v_lshl_add_u32 {v(vPo)}, {v(T)}, 10, {v(T + 1)}')
p(f's_and_b32 {s(94)}, {s(sC)}, 7')
p(f's_mul_i32 {s(94)}, {s(94)}, 112')
p(f's_lshr_b32 {s(95)}, {s(sC)}, 3')
p(f's_lshl_b32 {s(95)}, {s(95)}, 5')
p(f's_add_u32 {s(94)}, {s(94)}, {s(95)}')
p(f's_sub_u32 {s(95)}, {s(sC)}, 24')
p(f's_mul_i32 {s(95)}, {s(95)}, 224')
p(f's_add_u32 {s(95)}, {s(95)}, 96')
p(f's_cmp_lt_u32 {s(sC)}, 24')
p(f's_cselect_b32 {s(94)}, {s(94)}, {s(95)}')
p(f's_cselect_b32 {s(95)}, 16, 112')
p(f's_lshr_b32 {s(96)}, {s(sW)}, 1')
p(f's_mul_i32 {s(95)}, {s(95)}, {s(96)}')
p(f's_add_u32 {s(94)}, {s(94)}, {s(95)}')
p(f's_and_b32 {s(95)}, {s(sW)}, 1')
p(f's_lshl_b32 {s(95)}, {s(95)}, 3')
p(f's_add_u32 {s(94)}, {s(94)}, {s(95)}')
p(f's_lshl_b32 {s(94)}, {s(94)}, 10')
p(f's_add_u32 {s(77)}, {s(94)}, {s(sB128)}')
p(f'v_lshrrev_b32 {v(T)}, 2, {v(n_)}')
p(f'v_lshl_add_u32 {v(T)}, {v(g_)}, 3, {v(T)}')
p(f'v_mul_u32_u24 {v(T)}, 224, {v(T)}')
p(f'v_and_b32 {v(T + 1)}, 3, {v(lane)}')
p(f'v_lshl_add_u32 {v(T)}, {v(T + 1)}, 3, {v(T)}')
p(f's_lshl_b32 {s(94)}, {s(sW)}, 5')
p(f's_add_u32 {s(94)}, {s(94)}, {PST}')
p(f'v_add_u32 {v(vPri)}, {s(94)}, {v(T)}')
p(f's_lshl_b32 {s(94)}, {s(sW)}, 3')
p(f's_add_u32 {s(94)}, {s(94)}, {PST + 8192}')
p(f'v_lshl_add_u32 {v(vPro)}, {v(lane)}, 5, {s(94)}')
p(f'v_lshrrev_b32 {v(T)}, 3, {v(lane)}')
p(f'v_lshlrev_b32 {v(T)}, 18, {v(T)}')
p(f'v_and_b32 {v(T + 1)}, 7, {v(lane)}')
p(f'v_xor_b32 {v(T + 1)}, {v(T + 1)}, {v(g_)}')
p(f'v_lshl_add_u32 {v(T)}, {v(T + 1)}, 4, {v(T)}')
p(f's_lshl_b32 {s(94)}, {s(sC)}, 12')
p(f's_add_u32 {s(100)}, {s(sW)}, {s(sB)}')
p(f's_and_b32 {s(100)}, {s(100)}, 3')
p(f's_lshl_b32 {s(95)}, {s(100)}, 10')
p(f's_add_u32 {s(94)}, {s(94)}, {s(95)}')
p(f'v_add_u32 {v(vWspA)}, {s(94)}, {v(T)}')
p(f'v_xor_b32 {v(T)}, 64, {v(vWspA)}')
p(f'v_add_u32 {v(vWspA + 1)}, 0x20000, {v(T)}')
p(f's_mul_i32 {s(sWsp)}, {s(sW)}, 24576')
p(f'v_lshrrev_b32 {v(T)}, 1, {v(n_)}')
p(f'v_xor_b32 {v(T)}, {v(T)}, {v(g_)}')
p(f'v_lshlrev_b32 {v(T)}, 4, {v(T)}')
p(f'v_lshl_add_u32 {v(T)}, {v(n_)}, 7, {v(T)}')
p(f's_add_u32 {s(94)}, {s(sWsp)}, 1024')
p(f'v_add_u32 {v(vWspR)}, {s(94)}, {v(T)}')
p(f'v_xor_b32 {v(vWspR + 1)}, 64, {v(vWspR)}')
p(f's_lshr_b32 {s(94)}, {s(sB)}, 2')
p(f's_lshl_b32 {s(95)}, {s(sW)}, 21')
for k in range(2):
    p(f's_lshl_b32 {s(96)}, {s(94)}, 13')
    p(f's_add_u32 {s(78 + k)}, {s(96)}, {s(sWsp)}')
    p(f's_lshl_b32 {s(96)}, {s(94)}, 9')
    p(f's_add_u32 {s(80 + k)}, {s(96)}, {s(95)}')
    p(f's_xor_b32 {s(94)}, {s(94)}, 1')
p(f's_lshl_b32 {s(82)}, {s(sW)}, 10')
prep = [[(f's_add_u32 m0, {s(82)}, {PST}', None), (f'buffer_load_dwordx4 {v(vPi)}, {s(R_WIN, 4)}, {s(76)} offen lds', 'prep')],
        [(f's_add_u32 m0, {s(82)}, {PST + 4096}', None), (f'buffer_load_dwordx4 {v(vPi + 1)}, {s(R_WIN, 4)}, {s(76)} offen lds', 'prep')],
        [(f's_add_u32 m0, {s(82)}, {PST + 8192}', None), (f'buffer_load_dwordx4 {v(vPo)}, {s(R_WOUT, 4)}, {s(77)} offen lds', 'prep')],
        [(f'buffer_load_ushort {v(vBsp)}, {v(t3)}, {s(R_BSP, 4)}, 0 offen', None)]]
wsp_first = wsp_dma_ops(0)
hook(2)
p(f's_mul_i32 {s(94)}, {s(sB)}, 229376')
p(f's_mul_i32 {s(95)}, {s(sC)}, 7168')
p(f's_add_u32 {s(94)}, {s(94)}, {s(95)}')
p(f's_lshl_b32 {s(95)}, {s(sW)}, 10')
p(f's_add_u32 {s(94)}, {s(94)}, {s(95)}')
p(f's_mov_b32 {s(83)}, {s(94)}')
p(f's_add_u32 {s(94)}, {s(94)}, 4096')
p(f's_cmp_lt_u32 {s(sW)}, 3')
p(f's_cselect_b32 {s(94)}, {s(94)}, {LBASE:#x}')
p(f's_mov_b32 {s(84)}, {s(94)}')
p(f's_mul_i32 {s(94)}, {s(sB)}, 114688')
p(f's_lshl_b32 {s(96)}, {s(sC)}, 12')
p(f's_add_u32 {s(94)}, {s(94)}, {s(96)}')
p(f's_add_u32 {s(94)}, {s(94)}, {s(95)}')
p(f's_add_u32 {s(94)}, {s(94)}, {WO:#x}')
p(f's_cmp_lt_u32 {s(sC)}, 28')
p(f's_cselect_b32 {s(94)}, {s(94)}, {LBASE:#x}')
p(f's_mov_b32 {s(85)}, {s(94)}')
p(f's_lshr_b32 {s(94)}, {s(sB)}, 2')
p(f's_and_b32 {s(95)}, {s(sB)}, 3')
p(f's_lshl_b32 {s(sVst)}, {s(sC)}, 11')
p(f's_lshl_b32 {s(96)}, {s(sB)}, 8')
p(f's_add_u32 {s(sVst)}, {s(sVst)}, {s(96)}')
p(f's_sub_u32 {s(96)}, 32, {s(sC)}')
p(f's_and_b32 {s(96)}, {s(96)}, 31')
p(f's_cmp_eq_u32 {s(94)}, 0')
p(f's_cselect_b32 {s(96)}, {s(sC)}, {s(96)}')
p(f's_lshl_b32 {s(sVld)}, {s(96)}, 16')
p(f's_lshl_b32 {s(sH)}, {s(sC)}, 16')
p(f's_lshl_b32 {s(96)}, {s(95)}, 14')
p(f's_lshl_b32 {s(97)}, {s(94)}, 7')
p(f's_add_u32 {s(96)}, {s(96)}, {s(97)}')
p(f's_add_u32 {s(sK2)}, {s(sH)}, {s(96)}')
p(f's_lshl_b32 {s(96)}, {s(sW)}, 14')
p(f's_add_u32 {s(sH)}, {s(sH)}, {s(96)}')
p(f's_mov_b32 {s(sXb)}, 0')
p(f's_mov_b32 {s(sXo)}, 0x10000')
p(f's_lshl_b32 {s(96)}, {s(sB)}, 2')
p(f's_add_u32 {s(96)}, {s(96)}, {s(100)}')
p(f's_mul_i32 {s(sZld)}, {s(96)}, 114688')
p(f's_add_u32 {s(sZld)}, {s(sZld)}, {Z_:#x}')
p(f's_lshl_b32 {s(96)}, {s(sC)}, 2')
p(f's_add_u32 {s(96)}, {s(96)}, {s(sW)}')
p(f's_lshl_b32 {s(sUld)}, {s(96)}, 14')
p(f's_add_u32 {s(sUld)}, {s(sUld)}, {H_ if OPT["locd"] & 4 else U_:#x}')
p(f's_lshl_b32 {s(97)}, {s(sB)}, 10')
p(f's_add_u32 {s(sUst)}, {s(sUld)}, {s(97)}')
p(f's_lshl_b32 {s(sDm)}, {s(sW)}, 12')
p(f's_mul_i32 {s(sWI)}, {s(sB)}, 229376')
p(f's_add_u32 {s(sWI)}, {s(sWI)}, {s(sDm)}')
p(f's_mul_i32 {s(sWO)}, {s(sB)}, 114688')
p(f's_add_u32 {s(sWO)}, {s(sWO)}, {s(sDm)}')
p(f's_add_u32 {s(sWO)}, {s(sWO)}, {WO:#x}')
p(f's_and_b32 {s(96)}, s2, 15')
p(f's_lshl_b32 {s(96)}, {s(96)}, 8')
p(f's_add_u32 {s(sArr)}, {s(96)}, {FLAGS:#x}')
p(f's_and_b32 {s(96)}, s2, 7')
p(f's_lshl_b32 {s(96)}, {s(96)}, 12')
p(f's_add_u32 {s(sRep)}, {s(96)}, {FLAGS:#x}')
p(f's_lshl_b32 {s(97)}, {s(sB)}, 9')
p(f's_add_u32 {s(97)}, {s(97)}, {FLAGS + 0x8000:#x}')
p(f's_add_u32 {s(sP4)}, {s(96)}, {s(97)}')
p(f's_mov_b32 {s(sS4)}, {s(97)}')
p(f's_mov_b32 {s(sLocH)}, 0')
hook(3)
p(f'v_lshlrev_b32 {v(vL8)}, 3, {v(lane)}')
p(f'v_add_u32 {v(vL16hi)}, 0x10000, {v(vL16)}')
p(f'v_add_u32 {v(vL16h2)}, 0x20000, {v(vL16)}')
p(f'v_lshlrev_b32 {v(vPoll)}, 8, {v(n_)}')
p(f'v_and_b32 {v(vArr)}, 7, {v(lane)}')
p(f'v_lshlrev_b32 {v(vGrp)}, 2, {v(vArr)}')
p(f'v_lshlrev_b32 {v(vArr)}, 12, {v(vArr)}')
p(f'v_mov_b32 {v(vGK)}, {f2u(-2.302208198144325 * 0.044715):#x}')
p(f'v_mov_b32 {v(vGK + 1)}, {f2u(-2.302208198144325):#x}')
p(f'v_lshrrev_b32 {v(T)}, 3, {v(lane)}')
p(f'v_and_b32 {v(T + 4)}, 7, {v(lane)}')
p(f'v_lshlrev_b32 {v(T + 4)}, 4, {v(T + 4)}')
p(f'v_lshl_add_u32 {v(T + 2)}, {v(T)}, 8, {v(T + 4)}')
p(f's_lshl_b32 {s(96)}, {s(sW)}, 12')
p(f'v_add_u32 {v(vK2)}, {s(96)}, {v(T + 2)}')
p(f'v_and_b32 {v(T)}, 1, {v(T)}')
p(f'v_lshl_add_u32 {v(T)}, {v(T)}, 4, {v(g_)}')
p(f'v_mul_u32_u24 {v(T)}, 144, {v(T)}')
p(f's_lshr_b32 {s(96)}, {s(sW)}, 1')
p(f's_mul_i32 {s(96)}, {s(96)}, 4608')
p(f's_and_b32 {s(97)}, {s(sW)}, 1')
p(f's_mul_i32 {s(97)}, {s(97)}, 1152')
p(f's_add_u32 {s(96)}, {s(96)}, {s(97)}')
p(f's_add_u32 {s(96)}, {s(96)}, {SCR}')
p(f'v_add3_u32 {v(vTr)}, {v(T)}, {v(T + 4)}, {s(96)}')
p(f'v_lshrrev_b32 {v(T)}, 5, {v(lane)}')
p(f'v_and_b32 {v(T + 1)}, 1, {v(g_)}')
p(f'v_lshl_add_u32 {v(T + 2)}, {v(T)}, 4, {v(n_)}')
p(f'v_mul_u32_u24 {v(T + 2)}, 144, {v(T + 2)}')
p(f'v_lshl_add_u32 {v(T + 2)}, {v(T + 1)}, 4, {v(T + 2)}')
p(f's_lshl_b32 {s(96)}, {s(sW)}, 5')
p(f's_add_u32 {s(97)}, {s(96)}, {SCR}')
p(f'v_add_u32 {v(vTw)}, {s(97)}, {v(T + 2)}')
p(f'v_and_b32 {v(T + 2)}, 1, {v(lane)}')
p(f'v_lshlrev_b32 {v(T + 2)}, 5, {v(T + 2)}')
p(f'v_and_b32 {v(T + 3)}, 2, {v(lane)}')
p(f'v_lshl_add_u32 {v(T + 2)}, {v(T + 3)}, 3, {v(T + 2)}')
p(f'v_lshrrev_b32 {v(T + 3)}, 2, {v(lane)}')
p(f'v_add_u32 {v(T + 2)}, {v(T + 2)}, {v(T + 3)}')
p(f'v_mul_u32_u24 {v(T + 2)}, 144, {v(T + 2)}')
p(f'v_add_u32 {v(vXw)}, {s(97)}, {v(T + 2)}')
p(f'v_add_u32 {v(vXw + 1)}, 16, {v(vXw)}')
p(f's_lshl_b32 {s(96)}, {s(95)}, 4')
p(f's_add_u32 {s(96)}, {s(96)}, {s(94)}')
p(f's_lshl_b32 {s(96)}, {s(96)}, 5')
p(f's_add_u32 {s(98)}, {s(96)}, {s(sC)}')
p(f's_lshl_b32 {s(96)}, {s(sW)}, 7')
p(f's_add_u32 {s(96)}, {s(96)}, {s(98)}')
p(f's_lshl_b32 {s(96)}, {s(96)}, 10')
p(f'v_add_u32 {v(vXr)}, {s(96)}, {v(vL16)}')
p(f'v_mul_u32_u24 {v(T + 3)}, 1040, {v(T + 1)}')
p(f'v_lshl_add_u32 {v(T + 3)}, {v(T)}, 8, {v(T + 3)}')
p(f'v_lshl_add_u32 {v(T + 3)}, {v(n_)}, 3, {v(T + 3)}')
p(f's_mul_i32 {s(96)}, {s(sW)}, 2080')
p(f's_add_u32 {s(96)}, {s(96)}, {SCR}')
p(f'v_add_u32 {v(vUr)}, {s(96)}, {v(T + 3)}')
p(f'v_mul_u32_u24 {v(T + 3)}, 1040, {v(n_)}')
p(f'v_lshl_add_u32 {v(T + 3)}, {v(g_)}, 5, {v(T + 3)}')
p(f's_lshl_b32 {s(96)}, {s(sW)}, 8')
p(f's_add_u32 {s(96)}, {s(96)}, {SCR}')
p(f'v_add_u32 {v(vUw)}, {s(96)}, {v(T + 3)}')
p(f'v_lshlrev_b32 {v(T + 3)}, 13, {v(g_)}')
p(f'v_lshl_add_u32 {v(T + 3)}, {v(n_)}, 4, {v(T + 3)}')
p(f's_lshl_b32 {s(96)}, {s(sW)}, 9')
p(f'v_add_u32 {v(vVld)}, {s(96)}, {v(T + 3)}')
p(f'v_lshlrev_b32 {v(T + 3)}, 17, {v(g_)}')
p(f'v_lshl_add_u32 {v(T + 3)}, {v(n_)}, 4, {v(T + 3)}')
p(f's_lshl_b32 {s(96)}, {s(sW)}, 19')
p(f'v_add_u32 {v(vVst)}, {s(96)}, {v(T + 3)}')
p(f'v_mul_u32_u24 {v(T + 3)}, 160, {v(n_)}')
p(f'v_lshl_add_u32 {v(T + 3)}, {v(g_)}, 3, {v(T + 3)}')
p(f's_mul_i32 {s(96)}, {s(sW)}, 2560')
p(f's_add_u32 {s(96)}, {s(96)}, {SCR}')
p(f'v_add_u32 {v(vHw2)}, {s(96)}, {v(T + 3)}')
p(f'v_lshrrev_b32 {v(T + 3)}, 2, {v(lane)}')
p(f'v_mul_u32_u24 {v(T + 3)}, 160, {v(T + 3)}')
p(f'v_and_b32 {v(T + 2)}, 3, {v(lane)}')
p(f'v_lshl_add_u32 {v(T + 3)}, {v(T + 2)}, 3, {v(T + 3)}')
p(f'v_add_u32 {v(vHw)}, {s(96)}, {v(T + 3)}')
p(f'v_add_u32 {v(vHr)}, {SCR}, {v(T + 3)}')
for q in range(1, 5):
    p(f's_add_u32 {s(96)}, {s(sW)}, {q}')
    p(f's_and_b32 {s(96)}, {s(96)}, 3')
    p(f's_mul_i32 {s(96)}, {s(96)}, 3072')
    p(f's_add_u32 {s(96)}, {s(96)}, {SCR + (1024 * (q - 1) if q < 4 else 0)}')
    p(f'v_add_u32 {v(vRed + q - 1)}, {s(96)}, {v(vL16)}')
hook(4)
p(f'v_and_b32 {v(T)}, 7, {v(n_)}')
p(f'v_lshlrev_b32 {v(T)}, 6, {v(T)}')
p(f'v_add_u32 {v(T)}, {s(98)}, {v(T)}')
p(f'v_lshlrev_b32 {v(T + 1)}, 2, {v(g_)}')
p(f'v_mul_u32_u24 {v(T + 1)}, {v(T + 1)}, {v(T)}')
p(f'v_lshrrev_b32 {v(T + 2)}, 3, {v(n_)}')
p(f'v_lshl_add_u32 {v(T + 1)}, {v(T + 2)}, 9, {v(T + 1)}')
p(f's_cmp_eq_u32 {s(94)}, 0')
p(f's_cselect_b32 {s(73)}, 1.0, -1.0')
p(f's_cselect_b32 {s(74)}, 0, 1.0')
p(f's_cselect_b32 {s(72)}, 1.0, 0')
p(f's_cmp_eq_u32 {s(sC)}, 0')
p(f's_cselect_b32 {s(72)}, {s(72)}, 1.0')
p(f's_cselect_b32 {s(73)}, 0, {s(73)}')
p(f's_cselect_b32 {s(74)}, {s(74)}, 0')
for k in range(8):
    cp = 16 * (k >> 2) + (k & 3)
    p(f'v_mad_u32_u24 {v(T + 2)}, {v(T)}, {cp}, {v(T + 1)}')
    p(f'v_and_b32 {v(T + 2)}, 0x7ff, {v(T + 2)}')
    p(f'v_cvt_f32_u32 {v(T + 2)}, {v(T + 2)}')
    p(f'v_mul_f32 {v(T + 2)}, {f2u(1.0 / 2048):#x}, {v(T + 2)}')
    p(f'v_cos_f32 {v(T + 3)}, {v(T + 2)}')
    p(f'v_sin_f32 {v(T + 4)}, {v(T + 2)}')
    p(f'v_mul_f32 {v(T + 5)}, {s(74)}, {v(T + 3)}')
    p(f'v_mul_f32 {v(T + 3)}, {s(72)}, {v(T + 3)}')
    p(f'v_fma_f32 {v(T + 4)}, {s(73)}, {v(T + 4)}, {v(T + 5)}')
    p(f'v_cvt_pk_bf16_f32 {v(vC2 + k)}, {v(T + 3)}, {v(T + 4)}')
hook(5)
p('s_mov_b32 s0, s86')
p('s_mov_b32 s1, s87')
sF2s, sF2l = 0, 1
stamp('setup')
if OPT['wfirst'] == 1:
    emit(wsp_first)
    wsp_first = []
for i in range(OPT['x1'], OPT['xa']):
    if OPT['wfirst'] == 2 and wsp_first:
        emit([wsp_first.pop(0)])
    x_loads(i, i + 1)
if OPT['xa'] == 8:
    m1_load(108)
if OPT['ctpos'] == 0:
    ct_dma(110)
SCHED = OPT['sched'].split('/')
FIX = OPT['fix'].split('/')
WSR = (160, 192)
a2a_load = [(f'buffer_load_dword {v(241)}, {v(vPoll)}, {s(R_WS, 4)}, {s(sRep)} offen sc1', None)]


def wsp_run(items):
    i = 0
    while i < len(items):
        if items[i] == 'q':
            if_wave0()
            emit([a2a_load])
            p.end()
            i += 1
            continue
        k = int(items[i + 1])
        if items[i] == 'd':
            p.wait_lgkm(f'wr{k - 3}')
            wsp_dma(k)
        elif items[i] == 'r':
            wsp_read(k, WSR[k & 1])
        elif items[i] == 'a':
            wsp_park(k)
        else:
            wsp_perm(k, WSR[k & 1])
        if OPT['fine'] == 2:
            stamp('*' + items[i:i + 2])
        i += 2


zpois = [(f'buffer_store_dwordx4 {v(116, 4)}, {v(vZst)}, {s(R_WL, 4)}, {s(sZst)} offen sc1', 'pub')]
bg = prep + wsp_first
if OPT['zs']:
    bg = [zpois] + bg if OPT['zp0'] == 0 else bg + [zpois]
for ch in SCHED[0]:
    bg += wsp_dma_ops(int(ch))
for k in range(4):
    p(f'v_mov_b32 {v(T + 2 + k)}, 0')
p.bg = bg
xnext = OPT['xa']
if xnext == 8:
    p.bg_on(OPT['wspev'])
for i in range(64):
    if xnext < 8 and i % OPT['xe'] == OPT['xe'] - 1:
        x_loads(xnext, xnext + 1)
        xnext += 1
        if xnext == 8:
            m1_load(108)
            p.bg_on(OPT['wspev'])
    p(f'v_dot2c_f32_bf16 {v(T + 2 + (i & 1))}, {s(sOnes)}, {v(XR + i)}')
    p(f'v_dot2c_f32_bf16 {v(T + 4 + (i & 1))}, {v(XR + i)}, {v(XR + i)}')
    if i == 7:
        unpack(XR, 8, XV)
    if i == OPT['ann']:
        p.bg_on(0)
        p(f's_cmp_eq_u32 {s(sG0)}, 3')
        p.begin('G0', 's_cbranch_scc0')
        p.wait_vm('z')
        p(f'v_mov_b32 {v(EI)}, 1')
        p('s_mov_b64 exec, 1')
        p(f'buffer_store_dword {v(EI)}, off, {s(R_DBG, 4)}, 0 sc1')
        p('s_mov_b64 exec, -1')
        p.end()
        p.bg_on(OPT['wspev'] if xnext == 8 else 0)
p.bg_on(0)
p.bg_emit()
p(f'v_add_f32 {v(T)}, {v(T + 2)}, {v(T + 3)}')
p(f'v_add_f32 {v(T + 1)}, {v(T + 4)}, {v(T + 5)}')
for qp in ('[1,0,3,2]', '[2,3,0,1]'):
    for k in range(2):
        p(f'v_add_f32_dpp {v(T + k)}, {v(T + k)}, {v(T + k)} quad_perm:{qp} row_mask:0xf bank_mask:0xf')
dbg_load = [(f'buffer_load_dword {v(241)}, off, {s(R_DBG, 4)}, 0 sc1', None)]
assert not SCHED[1]
wsp_run(SCHED[1])

p.section('body')
for _ in range(OPT['algn']):
    p('s_nop 0')
p('L_layer:')
stamp('T')
HP, AF, D1, VO = 56, 72, 104, 56
finish_stats(T, 512)
for i in range(0, 16, 2):
    p(f'v_pk_fma_f32 {v(XV + i, 2)}, {v(XV + i, 2)}, {v(T, 2)}, {v(T, 2)} op_sel:[0,0,1] op_sel_hi:[1,0,1]')
for t in range(4):
    for k in range(2):
        p(f'v_cvt_pk_bf16_f32 {v(HP + 2 * t + k)}, {v(XV + 8 * k + t)}, {v(XV + 8 * k + 4 + t)}')
    p(f'ds_write_b64 {v(vHw)}, {v(HP + 2 * t, 2)} offset:{32 * t}', tag='hw')
p(f's_add_u32 {s(sT + 1)}, {s(sVst)}, 0x10000')
p.wait_lgkm('hw')
p.wait_vm('prep')
p('s_barrier')
for ks in range(2):
    for tile in range(4):
        for half in range(2):
            p(f'ds_read_b64_tr_b16 {v(AF + 16 * ks + 4 * tile + 2 * half, 2)}, {v(vHr)} offset:{(32 * ks + 16 * half) * 160 + 32 * tile}')
if_layer(0)
for k in range(2):
    for half in range(2):
        p(f'ds_read_b64_tr_b16 {v(PK + 4 * k + 2 * half, 2)}, {v(vPri)} offset:{128 * k + 896 * half}')
for half in range(2):
    p(f'ds_read_b64_tr_b16 {v(PK + 8 + 2 * half, 2)}, {v(vPro)} offset:{2048 * half}')
p.end()
for ks in range(2):
    for tile in range(4):
        d = D1 + 4 * tile
        p(f'{M16} {v(d, 4)}, {v(M1 + 4 * ks, 4)}, {v(AF + 16 * ks + 4 * tile, 4)}, {v(d, 4) if ks else 0}')
if_layer(0)
p(f'v_lshlrev_b32 {v(vBsp)}, 16, {v(vBsp)}')
p(f'buffer_store_dwordx4 {v(PK, 4)}, {v(vL16)}, {s(R_WS, 4)}, {s(83)} offen sc1', tag='pub')
p(f'buffer_store_dwordx4 {v(PK + 4, 4)}, {v(vL16)}, {s(R_WS, 4)}, {s(84)} offen sc1', tag='pub')
p(f'buffer_store_dwordx4 {v(PK + 8, 4)}, {v(vL16)}, {s(R_WS, 4)}, {s(85)} offen sc1', tag='pub')
p.end()
for jj in range(2):
    for t in range(4):
        p(f'v_cvt_pk_bf16_f32 {v(VO + 4 * jj + t)}, {v(D1 + 4 * t + 2 * jj)}, {v(D1 + 4 * t + 2 * jj + 1)}')
    p(f'buffer_store_dwordx4 {v(VO + 4 * jj, 4)}, {v(vVst)}, {s(R_WL, 4)}, {s(sT + 1 if jj else sVst)} offen sc1', tag='pub')
stamp('Vst')
if OPT['ctpos'] == 1:
    ct_dma(T + 6)
if_layer(0)
if_wave0()
emit([dbg_load])
p.end()
wsp_run(SCHED[2])
if_wave0()
retry_until(dbg_load, lambda: p(f'v_cmp_ne_u32 vcc, 1, {v(241)}'))
p.end()
p.end()
wz2 = w_dma_ops(sWI, 114688, LOC_Z2, 'wz2')
CMN = [int(ch, 36) for ch in OPT['cmn']]
assert sum(CMN) % 4 == 0 and sum(CMN) + OPT['wzp1'] + OPT['wzp2'] + OPT['wzp3'] == 28
wz2_both, wz2 = wz2[:sum(CMN)], wz2[sum(CMN):]
P1, P2, P3 = OPT['wzp1'], OPT['wzp1'] + OPT['wzp2'], OPT['wzp1'] + OPT['wzp2'] + OPT['wzp3']
assert P1 % 4 == 0 and OPT['wzp0'] % 4 == 0
if (OPT['ctp'] == 2 and OPT['ctpos'] == 0) or P2 > P1:
    if_layer(1)
    if OPT['ctp'] == 2 and OPT['ctpos'] == 0:
        ct_dma(T + 6)
    emit(wz2[P1:P2])
    p.end()
stamp('init')
if OPT['vs']:
    if_layer(0)
    p.wait_vm('pub')
    p.wait_vm('ct')
    arrive(sArr, 8)
    p.end()
    if_layer(1)
    p.wait_vm('x2')
    p.wait_vm('ct')
    arrive_group(sS2, 32)
    p.end()
else:
    p.wait_vm('pub')
    p.wait_vm('ct')
    arrive(sArr, 8)
poison(5, 96)
code_prefetch(1, 'L_k2')
stamp('arr1')
FA, TW, FB, VR, D2, UP, XRES, Y = 40, 64, 80, 96, 160, 192, 224, 208
for k in range(14):
    p(f'ds_read_b128 {v(FA + 4 * k, 4)}, {v(vL16hi)} offset:{CT - 65536 + k * 1024}')
if_layer(0)
wsp_run(SCHED[3])
if_wave0()
retry_until(a2a_load, lambda: p(f'v_cmp_ne_u32 vcc, 16, {v(241)}'))
p.end()
p('s_barrier')
p.end()
for k in range(4):
    p(f's_add_u32 {s(sT + 4 + k)}, {s(sVld)}, {(16 * (k >> 1) + 2 * (k & 1)) * 2048:#x}')
if_layer(1)
emit(wz2[P2:P3])
x2_load = [(f'buffer_load_dword {v(248)}, {v(vGrp)}, {s(R_WS, 4)}, {s(sS2)} offen offset:32{PG}', None)]
if OPT['vs']:
    emit([x2_load])
else:
    poll(sRep, vPoll, 16)
p.end()
assert not SCHED[8:]


def l0_dma(n):
    emit([wz2_both.pop(0) for _ in range(CMN.pop(0))])


stamp('S1')
p('L_k2:')
vl = [(f'buffer_load_dwordx4 {v(VR + 16 * gk + 4 * ii, 4)}, {v(vVld)}, {s(R_WL, 4)}, {s(sT + 4 + 2 * (gk & 1) + (ii >> 1))} '
       f'offen offset:{(ii & 1) * 2048 + (gk >> 1) * 256} sc1', None) for gk in range(4) for ii in range(4)]
for gk in range(4):
    emit([vl[4 * gk:4 * gk + 4]])
    if gk < 3 and SCHED[4 + gk]:
        if_layer(0)
        wsp_run(SCHED[4 + gk])
        p.end()
if OPT['vs']:
    if_layer(1)
    retry_until(x2_load, lambda: p(f'v_cmp_ne_u32 vcc, 1, {v(248)}'))
    p.end()
xl = [(f'buffer_load_dwordx4 {v(XRES + 4 * k, 4)}, {v(vXr)}, {s(R_X, 4)}, {s((sXb, sXo)[k])} offen{LG}', None) for k in range(2)]
emit([xl])
if_layer(0)
p(f'buffer_load_dword {v(248)}, {v(vGrp)}, {s(R_WS, 4)}, {s(sS2)} offen offset:128 sc1')
wsp_run(SCHED[7])
if not SCHED[8:]:
    p('s_waitcnt lgkmcnt(0)')
    p('s_barrier')
p.end()
l0_dma(0)
stamp('Vld')


def u_pack(hi):
    up = (192, 200)[hi]
    for r in range(4):
        for lp in range(2):
            p(f'v_cvt_pk_bf16_f32 {v(up + 2 * r + lp)}, {v(D2 + 16 * hi + 8 * lp + r)}, {v(D2 + 16 * hi + 8 * lp + 4 + r)}')
        if r & 1:
            p(f'ds_write_b128 {v(vUw)}, {v(up + 2 * r - 2, 4)} offset:{128 * hi + 8 * (r - 1)}')


for hi in range(2):
    for ks in range(2):
        if hi and ks:
            u_pack(0)
        r = VR + 32 * hi + 16 * ks
        if OPT['vs']:
            def v_test(r=r):
                p(f'v_max3_u32 {v(T)}, {v(r + 3)}, {v(r + 7)}, {v(r + 11)}')
                p(f'v_max_u32 {v(T)}, {v(T)}, {v(r + 15)}')
                p(f'v_cmp_eq_u32 vcc, -1, {v(T)}')
            gk = 2 * hi + ks
            if OPT['vs'] == 1:
                retry_until(vl[4 * gk:], v_test)
            else:
                retry_until(vl[4 * gk:4 * gk + 4], v_test, after=vl[4 * gk + 4:] + xl if gk < 3 else None)
        for i in range(4):
            for j in range(i + 1, 4):
                p(f'v_swap_b32 {v(r + 4 * i + j)}, {v(r + 4 * j + i)}')
        for lo in range(4):
            d = D2 + 16 * hi + 4 * lo
            p(f'{M16} {v(d, 4)}, {v(r + 4 * lo, 4)}, {v(vC2 + 4 * ks, 4)}, {v(d, 4) if ks else 0}')
fine('st2')
l0_dma(4)
u_pack(1)
for k in range(2):
    p(f'ds_write_b128 {v(vXw + k)}, {v(XRES + 4 * k, 4)} offset:16640')
p('s_waitcnt lgkmcnt(0)')
p('s_barrier')
fine('ubar')
poison(4, 176)
UA, DR, DI, TT, PF = 96, 112, 128, 144, 160
for ri in range(2):
    for dh in range(2):
        for half in range(2):
            p(f'ds_read_b64_tr_b16 {v(UA + 8 * ri + 4 * dh + 2 * half, 2)}, {v(vUr)} offset:{ri * 8320 + dh * 512 + half * 128}')
for o in range(2):
    p(f'ds_read_b128 {v(XRES + 4 * o, 4)}, {v(vTw)} offset:{16640 + 4608 * o}')
l0_dma(4)
for ri in range(2):
    for dh in range(2):
        first = ri == 0 and dh == 0
        fr = FA + 4 * ((2 if ri else 0) + dh)
        fi = FA + 4 * ((0 if ri else 4) + dh)
        p(f'{M32} {v(DR, 16)}, {v(UA + 8 * ri + 4 * dh, 4)}, {v(fr, 4)}, {0 if first else v(DR, 16)}')
        p(f'{M32} {v(DI, 16)}, {v(UA + 8 * ri + 4 * dh, 4)}, {v(fi, 4)}, {0 if first else v(DI, 16)}')
fine('stA')
unpack(XRES, 8, Y)
fine('xres')
l0_dma(4)
for row in range(2):
    for k in range(0, 8, 2):
        r = 8 * row + k
        p(f'v_pk_mul_f32 {v(TT + k, 2)}, {v(DI + r, 2)}, {v(TW + 8 + k, 2)}')
        p(f'v_pk_mul_f32 {v(TT + 8 + k, 2)}, {v(DR + r, 2)}, {v(TW + 8 + k, 2)}')
    for k in range(0, 8, 2):
        r = 8 * row + k
        p(f'v_pk_fma_f32 {v(TT + k, 2)}, {v(DR + r, 2)}, {v(TW + k, 2)}, {v(TT + k, 2)}')
        p(f'v_pk_fma_f32 {v(TT + 8 + k, 2)}, {v(DI + r, 2)}, {v(TW + k, 2)}, {v(TT + 8 + k, 2)} neg_lo:[0,0,1] neg_hi:[0,0,1]')
    for k in range(8):
        p(f'v_cvt_pk_bf16_f32 {v(PF + 8 * row + k)}, {v(TT + 2 * k)}, {v(TT + 2 * k + 1)}')
for k in range(4):
    p(f'{M32} {v(Y, 16)}, {v(PF + 4 * k, 4)}, {v(FB + 4 * k, 4)}, {v(Y, 16)}')
fine('stB')
XO, HO = 224, 232
l0_dma(4)
if_layer(0)
p(f'v_cmp_ne_u32 vcc, {s(sLoc)}, {v(248)}')
p('s_cmp_eq_u64 vcc, 0')
p(f's_cselect_b32 {s(sLoc)}, {OPT["loc"]}, 0')
p(f's_mov_b32 {s(sLocU)}, {s(sLoc)}')
p.end()
local_stats(Y, 16, T)
p(f'v_permlane32_swap_b32 {v(T)}, {v(T + 1)}')
p(f'v_add_f32 {v(T)}, {v(T)}, {v(T + 1)}')
for k, sh in enumerate((8, 4, 2, 1)):
    p(f'v_cvt_pk_bf16_f32 {v(XO + 2 * k)}, {v(Y + 4 * k)}, {v(Y + 4 * k + 1)}')
    p(f'v_cvt_pk_bf16_f32 {v(XO + 2 * k + 1)}, {v(Y + 4 * k + 2)}, {v(Y + 4 * k + 3)}')
    p(f'v_add_f32_dpp {v(T)}, {v(T)}, {v(T)} row_ror:{sh} row_mask:0xf bank_mask:0xf')
p(f'v_mov_b32 {v(T + 1)}, {v(T)}')
p(f's_add_u32 {s(sT)}, {s(sK2)}, {X1_:#x}')
p(f's_add_u32 {s(sT + 1)}, {s(sK2)}, {H_:#x}')
p(f'v_permlane32_swap_b32 {v(T)}, {v(T + 1)}')
finish_stats(T, 512)
norm_pack(Y, 16, T, Y, HO)
fine('norm')
for o in range(2):
    p(f'ds_write_b128 {v(vTw)}, {v(HO + 4 * o, 4)} offset:{16640 + 4608 * o}')
p('s_waitcnt lgkmcnt(0)')
p('s_barrier')
for k in range(2):
    p(f'ds_read_b128 {v(HO + 4 * k, 4)}, {v(vTr)} offset:{16640 + 576 * k}')
for o in range(2):
    p(f'ds_write_b128 {v(vTw)}, {v(XO + 4 * o, 4)} offset:{4608 * o}')
gstore([f'buffer_store_dwordx4 {v(HO + 4 * k, 4)}, {v(vK2)}, {s(R_WL, 4)}, {s(sT + 1)} offen offset:{2048 * k}' for k in range(2)], 'pub', OPT['locd'] & 1, sLocH)
l0_dma(6)
HF, Z2, Z1, WR, WD, GT = 40, 104, 136, 164, 12, 232
for k in range(4):
    p(f's_add_u32 {s(sT + 4 + k)}, {s(sH)}, {H_ + 4096 * k:#x}')
wsp_fix(FIX[0], 104, wz2[:OPT['l0a']])
stamp('K2')
p('s_waitcnt lgkmcnt(0)')
if OPT['wf2']:
    p('s_barrier')
    for k in range(2):
        p(f'ds_read_b128 {v(XO + 4 * k, 4)}, {v(vTr)} offset:{576 * k}')
    p(f'v_mov_b32 {v(T)}, 1')
    p.wait_vm('pub')
    p('s_mov_b64 exec, 1')
    gstore([f'buffer_store_dword {v(T)}, off, {s(R_WS, 4)}, {s(sF2s)}'])
    p('s_mov_b64 exec, -1')
else:
    p.wait_vm('pub')
    arrive_group(sS2)
    for k in range(2):
        p(f'ds_read_b128 {v(XO + 4 * k, 4)}, {v(vTr)} offset:{576 * k}')
wsp_fix(FIX[1], 104, wz2[OPT['l0a']:])
stamp('arr2')
p('s_waitcnt lgkmcnt(0)')
for k in range(7):
    p.wait_vm(f'wz2{k}')
if OPT['wf2']:
    p('s_barrier')
    top, done = p.label('poll'), p.label('pdone')
    p(f'{top}:')
    p(f'buffer_load_dword {v(T)}, {v(vGrp)}, {s(R_WS, 4)}, {s(sF2l)} offen{PG}')
    p('s_waitcnt vmcnt(0)')
    p(f'v_cmp_ne_u32 vcc, 1, {v(T)}')
    spin_tail(top, done)
else:
    poll(sS2, vGrp, 1)
stamp('S2')
p('L_k3:')
hl = [[(f'buffer_load_dwordx4 {v(HF + 4 * ks, 4)}, {v(vL16)}, {s(R_WL, 4)}, {s(sT + 4 + (ks >> 2))} offen offset:{1024 * (ks & 3)}{LG}', None)]
      for ks in range(16)]
xs = [[(f'buffer_store_dwordx4 {v(XO + 4 * k, 4)}, {v(vK2)}, {s(R_WL, 4)}, {s(sT)} offen offset:{2048 * k} sc1', 'x1')] for k in range(2)]
wz1 = w_dma_ops(sWI, 0, LOC_Z1, 'wz1')
emit(hl[:OPT['pre3']])
SEL, ZP, ZT, ZO = 212, 228, 164, 104
p(f'v_and_b32 {v(SEL)}, 0xf0, {v(vL16)}')
p(f'v_lshrrev_b32 {v(SEL + 1)}, 2, {v(vL16)}')
p(f'v_and_b32 {v(SEL + 1)}, 0xc0, {v(SEL + 1)}')
p(f'v_sub_u32 {v(SEL)}, {v(SEL)}, {v(SEL + 1)}')
p(f'v_mov_b32 {v(SEL + 4)}, 0x3f80')
p(f'v_lshlrev_b32 {v(SEL + 4)}, {v(SEL)}, {v(SEL + 4)}')
p(f'v_lshrrev_b32 {v(SEL + 1)}, 5, {v(SEL)}')
p(f'v_cmp_eq_u32 vcc, 0, {v(SEL + 1)}')
p(f'v_cndmask_b32 {v(SEL + 2)}, 0, {v(SEL + 4)}, vcc')
p(f'v_cmp_eq_u32 vcc, 1, {v(SEL + 1)}')
p(f'v_cndmask_b32 {v(SEL + 3)}, 0, {v(SEL + 4)}, vcc')
for k in (0, 1, 4, 5):
    p(f'v_mov_b32 {v(SEL + k)}, 0')
p(f'v_mov_b32 {v(ZP + 14)}, 0')
p(f'v_mov_b32 {v(ZP + 15)}, 0')
wsp_fix(FIX[2], 104)
n_h = 16 - OPT['pre3']
fill = spread(hl[OPT['pre3']:], 1, OPT['hsp'])
fill.update(spread(xs + wz1[:12], OPT['hsp'] * n_h + 1, OPT['z2sp']))
fill[max(fill) + 3] = lambda: poison(1, 132)
gemm_r(Z2, 7, 0, 16, HF, WR, WD, LOC_Z2, fill=fill)
p.wait_vm('x1')
p('s_barrier')
stamp('z2mm')
p.bg = wz1[12:]
p.bg_emit(2)
p.bg_on(OPT['g2ev'])
gelu(Z2, 28, GT)
local_stats(Z2, 28, T)
p.bg_on(0)
reduce_g(T, T + 1)
publish_stats(0)
stamp('pub3')
Z1A = OPT['z1a']
p.bg_emit(None if Z1A else OPT['gb'])
p(f's_mov_b32 {s(sT + 2)}, {s(sZld)}')
p(f'v_add_u32 {v(245)}, {s(sDm)}, {v(vL16)}')
OW, OR, OG = 248, 249, 253
p(f's_add_u32 {s(sT + 1)}, {s(sUst)}, 8192')
p(f's_lshl_b32 {s(sT + 3)}, {s(sB)}, 10')
p(f's_add_u32 {s(sT + 3)}, {s(sT + 3)}, {s(sH)}')
p(f's_add_u32 {s(sT + 12)}, {s(sT + 3)}, {X1_:#x}')
p(f's_add_u32 {s(sT + 13)}, {s(sT + 3)}, {X1_ + 8192:#x}')
for k in range(4):
    p(f's_add_u32 {s(sT + 4 + k)}, {s(sUld)}, {4096 * k}')
    p(f's_add_u32 {s(sT + 8 + k)}, {s(sH)}, {X1_ + 4096 * k:#x}')
p(f'v_and_b32 {v(133)}, 0xf0, {v(vL16)}')
p(f'v_mul_u32_u24 {v(133)}, 9, {v(133)}')
p(f'v_lshrrev_b32 {v(134)}, 8, {v(vL16)}')
p(f'v_lshl_add_u32 {v(133)}, {v(134)}, 5, {v(133)}')
p(f's_mul_i32 {s(99)}, {s(sW)}, 2304')
p(f's_add_u32 {s(99)}, {s(99)}, {SCR + 12288}')
p(f'v_add_u32 {v(OW)}, {s(99)}, {v(133)}')
p(f'v_lshrrev_b32 {v(133)}, 7, {v(vL16)}')
p(f'v_lshl_add_u32 {v(134)}, {v(133)}, 4, {v(vL16)}')
p(f'v_add_u32 {v(OR)}, {s(99)}, {v(134)}')
p(f'v_and_b32 {v(134)}, 0x70, {v(vL16)}')
p(f'v_lshl_add_u32 {v(OG)}, {v(133)}, 16, {v(134)}')
p(f's_lshl_b32 {s(99)}, {s(sW)}, 9')
p(f's_add_u32 {s(99)}, {s(99)}, {s(sC)}')
p(f's_lshl_b32 {s(99)}, {s(99)}, 10')
p(f's_add_u32 {s(sT + 14)}, {s(99)}, {s(sB128)}')
p(f's_add_u32 {s(sT + 15)}, {s(sT + 14)}, 0x8000')
wo = w_dma_ops(sWO, 0, LOC_WO, 'wo')
if Z1A:
    p.wait_vm('wz12')
    p('s_barrier')
    fill = {OPT['gpos']: gather_loads(0)}
    fill.update(spread(wo[:OPT['woa']], OPT['gpos'] + 2, 2))
    gemm_r(Z1, 7, 0, Z1A, HF, WR, WD, LOC_Z1, fill=fill)
else:
    emit([gather_loads(0)])
    p.bg_emit()
    emit(wo[:OPT['woa']])
stamp('z1a')
gather_finish(0)
stamp('S3')
poison(2, 132)
finish_stats(T, 896)
for i in range(0, 28, 2):
    p(f'v_pk_fma_f32 {v(Z2 + i, 2)}, {v(Z2 + i, 2)}, {v(T, 2)}, {v(T, 2)} op_sel:[0,0,1] op_sel_hi:[1,0,1]')
ZO = 192
for pr in range(6):
    if pr < 4:
        tiles = [ft for ft in (2 * pr, 2 * pr + 1) if ft < 7]
        for ft in tiles:
            for k in range(2):
                p(f'v_cvt_pk_bf16_f32 {v(ZP + 2 * ft + k)}, {v(Z2 + 4 * ft + 2 * k)}, {v(Z2 + 4 * ft + 2 * k + 1)}')
    if 2 <= pr:
        q = pr - 2
        for ft in (2 * q, 2 * q + 1):
            for k in range(2 if ft < 7 else 0):
                p(f'v_cvt_pk_bf16_f32 {v(ZO + 2 * ft + k)}, {v(ZT + 4 * ft + 2 * k)}, {v(ZT + 4 * ft + 2 * k + 1)}')
        p(f's_add_u32 {s(sT)}, {s(sZst)}, {q * 32768:#x}')
    if pr < 4:
        for ft in tiles:
            p(f'{M16} {v(ZT + 4 * ft, 4)}, {v(ZP + 4 * pr, 4)}, {v(SEL + (0 if ft & 1 else 2), 4)}, 0')
    if 2 <= pr:
        for k in range(2):
            p(f'v_permlane16_swap_b32 {v(ZO + 4 * q + k)}, {v(ZO + 4 * q + 2 + k)}')
        if q == 3:
            p('s_mov_b32 exec_lo, 0xffff')
            p('s_mov_b32 exec_hi, 0xffff')
        p(f'buffer_store_dwordx4 {v(ZO + 4 * q, 4)}, {v(vZst)}, {s(R_WL, 4)}, {s(sT)} offen sc1', tag='pub')
p('s_mov_b64 exec, -1')
stamp('Zst')
poison(3, 132)
p.wait_vm('wz16')
p('s_barrier')
Z1B = min(16, Z1A + OPT['z1arr'])
wreg = lambda k: 104 + 4 * k if k < 8 else 212 + 4 * (k - 8)
wst = []
for k in range(16):
    g = [(f's_add_u32 {s(sDo)}, {s(sWO)}, {16384 * (3 + (k >> 2)):#x}', None)] if k % 4 == 0 else []
    if not OPT['nobg'] & 1:
        g.append((f'buffer_load_dwordx4 {v(wreg(k), 4)}, {v(vL16)}, {s(R_WS, 4)}, {s(sDo)} offen offset:{1024 * (k & 3)}', None))
    wst.append(g)
bgw = wo[OPT['woa']:12] + wst
wo = []
ZD, AC, RT, UO = OPT['zd'], 196, 228, 240


def zreg(fi):
    k = fi % ZD
    return 56 + 4 * k


def zload(fi):
    if fi % 4 == 0 and fi:
        p(f's_add_u32 {s(sT + 2)}, {s(sT + 2)}, 4096')
    if OPT['k4load'] or fi < ZD:
        p(f'buffer_load_dwordx4 {v(zreg(fi), 4)}, {v(vL16)}, {s(R_WL, 4)}, {s(sT + 2)} offen offset:{(fi % 4) * 1024}' + ' sc1')


nin = min(len(bgw), (112 - 7 * Z1A - 1) // OPT['wosp'])
fill = spread(bgw[:nin], 7 * Z1A + 1, OPT['wosp'])
nz = 0
if OPT['zs'] and OPT['zin'] and nin == len(bgw):
    pos = max(max(fill) + OPT['wosp'], OPT['zin'])
    while nz < ZD and max(pos, 7 * (nz + 5) - 1) < 112:
        pos = max(pos, 7 * (nz + 5) - 1)
        fill[pos] = (lambda k: lambda: zload(k))(nz)
        pos += OPT['zsp']
        nz += 1
gemm_r(Z1, 7, Z1A, Z1B, HF, WR, WD, LOC_Z1, last=112, fill={k: g for k, g in fill.items() if k < 7 * Z1B})
p.wait_vm('pub')
arrive(sS4, 8)
code_prefetch(4, 'L_k4')
stamp('arr4')
if Z1B < 16:
    gemm_r(Z1, 7, Z1B, 16, HF, WR, WD, LOC_Z1, preload=False, fill={k: g for k, g in fill.items() if k >= 7 * Z1B})
p.bg = bgw[nin:]
if nz:
    for fi in range(nz, ZD):
        zload(fi)
    nz = ZD
if OPT['g1w']:
    p.bg_on(8)
    gelu(Z1, 4 * OPT['g1w'], 164)
    p.bg_on(0)
p.bg_emit()
wsp_fix(FIX[3], 164)
stamp('win4')
if OPT['zs']:
    if Z1B < 16:
        p('s_barrier')
else:
    poll(sP4, None, 32)
stamp('S4')
p('L_k4:')
def k4_epilogue(ft):
    ac, buf = AC + 16 * (ft & 1), 12288 * (ft & 1)
    st1 = [f'ds_write_b128 {v(vRed + q - 1)}, {v(ac + 4 * q, 4)} offset:{buf}' for q in (1, 2, 3)]
    st1 += [f'v_add_f32 {v(ac + r)}, {v(vBsp)}, {v(ac + r)}' for r in range(4)]
    st2 = ['s_waitcnt lgkmcnt(0)', 's_barrier']
    st2 += [f'ds_read_b128 {v(RT + 4 * q, 4)}, {v(vRed + 3)} offset:{buf + 1024 * q}' for q in range(3)]
    st3 = [f'v_add_f32 {v(ac + r)}, {v(RT + 4 * q + r)}, {v(ac + r)}' for q in range(3) for r in range(4)]
    st3 += [f'v_mul_f32 {v(ac + r)}, {v(Z1 + 4 * ft + r)}, {v(ac + r)}' for r in range(4)]
    st3 += [f'v_cvt_pk_bf16_f32 {v(UO + 2 * (ft & 1) + k)}, {v(ac + 2 * k)}, {v(ac + 2 * k + 1)}' for k in range(2)]
    if ft == 6:
        st3 += [f'buffer_store_dwordx2 {v(UO, 2)}, {v(vL8)}, {s(R_WL, 4)}, {s(sT + 13)} offen']
    elif ft == 5:
        st3 += [f'buffer_store_dwordx4 {v(UO, 4)}, {v(vL16)}, {s(R_WL, 4)}, {s(sT + 12)} offen']
    elif ft & 1:
        st3 += [f'buffer_store_dwordx4 {v(UO, 4)}, {v(vL16)}, {s(R_WL, 4)}, {s(sT + 1 if ft == 3 else sUst)} offen offset:0']
    return st1, st2, st3


def k4_emit(x):
    if x.startswith('buffer_store'):
        late = x.endswith('offen')
        if late:
            p.wait_vm('x1l')
        gstore([x], 'u6' if 'dwordx2' in x else 'pub', OPT['locd'] & (2 if late else 4), sLocU if OPT['locd'] & (8 if late else 16) else None)
    else:
        p(x)


def gelu_ops(x, t):
    ops = [f'v_mul_f32 {v(t + k)}, {v(x + k)}, {v(x + k)}' for k in range(4)]
    ops += [f'v_fma_f32 {v(t + k)}, {v(t + k)}, {v(vGK)}, {v(vGK + 1)}' for k in range(4)]
    ops += [f'v_mul_f32 {v(t + k)}, {v(t + k)}, {v(x + k)}' for k in range(4)]
    ops += [f'v_exp_f32 {v(t + k)}, {v(t + k)}' for k in range(4)]
    ops += [f'v_add_f32 {v(t + k)}, 1.0, {v(t + k)}' for k in range(4)]
    ops += [f'v_rcp_f32 {v(t + k)}, {v(t + k)}' for k in range(4)]
    ops += [f'v_mul_f32 {v(x + k)}, {v(t + k)}, {v(x + k)}' for k in range(4)]
    return ops


WR5, X1R, XP, FL, X1L = 56, 232, 104, 244, 136
assert ZD == WD


def ureg(ks):
    return (104, 120, 164, 180, 212, 196, 136)[ks >> 2] + 4 * (ks & 3)


ul = [[(f'buffer_load_dwordx4 {v(ureg(ks), 4)}, {v(vL16)}, {s(R_WL, 4)}, {s(sT + 4 + (ks >> 2))} offen offset:{1024 * (ks & 3)}{LG}', None)]
      for ks in range(24)]
ul += [[(f'buffer_load_dwordx2 {v(ureg(24 + i) + 2 * k, 2)}, {v(vL8)}, {s(R_WL, 4)}, {s(sT + 10 + (i >> 1))} offen offset:{1024 * (2 * (i & 1) + k)}{LG}', None)
        for k in range(2)] for i in range(4)]


def flag_store(off):
    p(f'v_mov_b32 {v(FL + 1)}, 1')
    p(f's_add_u32 {s(99)}, {s(sS5)}, {s(sB4)}')
    p('s_mov_b64 exec, 1')
    gstore([f'buffer_store_dword {v(FL + 1)}, off, {s(R_WS, 4)}, {s(99)} offset:{off}'])
    p('s_mov_b64 exec, -1')


def flag_load(off):
    return [(f'buffer_load_dword {v(FL)}, {v(vGrp)}, {s(R_WS, 4)}, {s(sS5)} offen offset:{off}{PG}', None)]


def z_check(fi):
    loads = [(f's_add_u32 {s(99)}, {s(sZld)}, {1024 * fi:#x}', None)]
    loads += [(f'buffer_load_dwordx4 {v(zreg(fi + k), 4)}, {v(vL16)}, {s(R_WL, 4)}, {s(99)} offen offset:{1024 * k} sc1', None) for k in range(2)]
    return loads, lambda: p(f'v_cmp_u_f32 vcc, {v(zreg(fi) + 3)}, {v(zreg(fi + 1) + 3)}')


s4_load = [(f'buffer_load_dword {v(FL)}, off, {s(R_WS, 4)}, {s(sP4)} sc1', None)]


def flag_check(off):
    retry_until(flag_load(off), lambda: p(f'v_cmp_ne_u32 vcc, 1, {v(FL)}'))


for fi in range(nz, ZD):
    zload(fi)
assert not FIX[4]
x1l = [(f'buffer_load_dwordx4 {v(X1L + 4 * o, 4)}, {v(vL16)}, {s(R_WL, 4)}, {s(sT + 12 + o)} offen{LG}', 'x1l') for o in range(2)]
tail = ul[:16]
ROT = 112 % ZD
for ft in range(7):
    fill = {}
    if ft and OPT['k4epi']:
        st1, st2, st3 = k4_epilogue(ft - 1)
        pos = OPT['e1']
        for x in st1:
            fill.setdefault(pos, []).append(x)
            pos += 1
        pos = OPT['e2']
        for x in st2:
            fill.setdefault(pos, []).append(x)
            pos += 1
        pos = OPT['e3']
        for x in st3:
            fill.setdefault(pos, []).append(x)
            pos += 1
    if ft == 0:
        for k in range(16):
            fill[4 * k + 1] = [f'ds_write_b128 {v(245)}, {v(wreg(15 - k), 4)} offset:{16384 * ((15 - k) >> 2) + 1024 * ((15 - k) & 3)}']
    if ft == OPT['upk']:
        free = [k for k in range(64) if k % 4 != 3][-16:]
        for i in range(8):
            fill.setdefault(free[2 * i], []).append(f'v_lshlrev_b32 {v(XV + 2 * i)}, 16, {v(X1L + i)}')
            fill.setdefault(free[2 * i + 1], []).append(f'v_and_b32 {v(XV + 2 * i + 1)}, 0xffff0000, {v(X1L + i)}')
    free = [k for k in range(64) if k not in fill] + [k for k in range(64) if len(fill.get(k, [])) == 1 and fill[k][0][0] == 'v' and k % 4 != 3]
    free = sorted(free[:28])
    for k, x in zip(free, gelu_ops(Z1 + 4 * (ft + OPT['gsh']), T) if OPT['g1w'] <= ft + OPT['gsh'] < 7 else []):
        fill.setdefault(k, []).append(x)
    for a2 in range(16):
        fi = ft * 16 + a2
        chk = OPT['zs'] and fi & 1 and fi < 31
        if OPT['zs'] and fi == 0:
            retry_until(*z_check(0))
        for q in range(4):
            d = AC + 16 * (ft & 1) + 4 * q
            if chk and q == 3:
                z_check(fi + 1)[1]()
            if OPT['k4mfma'] or q == 0:
                p(f'{M16} {v(d, 4)}, {v(zreg(fi), 4)}, {a((q * 16 + a2) * 4, 4)}, {v(d, 4) if a2 else 0}')
            for x in fill.get(4 * a2 + q, []):
                k4_emit(x)
        if chk:
            retry_until(*z_check(fi + 1), tested=True)
        if OPT['zs'] and fi == OPT['q4']:
            emit([s4_load])
        if OPT['zs'] and fi + ZD == 32:
            retry_until(s4_load, lambda: p(f'v_cmp_ne_u32 vcc, 32, {v(FL)}'))
        if fi + ZD < 112:
            zload(fi + ZD)
        elif len(tail) > 16 - OPT['ntail']:
            if len(tail) == 8:
                flag_check(0)
            emit([tail.pop(0)])
        if fi + ZD >= 112:
            wring_read(fi + ZD - 112, WR5, WD, LOC_WO, ROT)
        if fi == OPT['mf']:
            p.wait_vm('pub')
            flag_store(32)
        if OPT['fine'] == 3 and (a2 == 15 or fi == 0) and fi < 111:
            stamp(f'i{fi}')
        if fi == 56:
            p.wait_vm('pub')
            flag_store(96)
        if fi == 70:
            emit([flag_load(96)])
        if fi == 84:
            flag_check(96)
        if fi == OPT['f5a']:
            p.wait_vm('pub')
            flag_store(0)
        if fi == 64:
            code_prefetch(8, 'L_k5')
        if fi == 80:
            p('L_k5:')
        if fi == OPT['x1pos']:
            emit([x1l])
        if fi == OPT['l5a']:
            emit([flag_load(0)])
stamp('K4')


def chain(*fs):
    def run():
        for f in fs:
            f()
    return run


def line(x, tag=None):
    return lambda: p(x, tag=tag)


def flag_after(tag, off):
    p.wait_vm(tag)
    flag_store(off)


def next_m1():
    if_layer(0)
    m1_load(228)
    p.end()


fill = {}


def put(pos, f):
    fill[pos] = chain(fill[pos], f) if pos in fill else f


st1, st2, st3 = k4_epilogue(6)
for k, x in enumerate(st1):
    put(OPT['k1'] + min(k, 3 + (k - 3) // 2), line(x, 'red' if k < 3 else None))
put(OPT['k2'], chain(lambda: p.wait_lgkm('red'), *[line(x) for x in st2[1:]]))
for k, x in enumerate(st3):
    put(OPT['k3'] + k // 2, (lambda y: lambda: k4_emit(y))(x))
kend = OPT['k3'] + len(st3) // 2
assert len(tail) < 8
for k, g in enumerate(tail):
    put(k, (lambda y: lambda: emit([y]))(g))
if OPT['mf'] > 111:
    put(OPT['mf'] - 112, lambda: flag_after('pub', 32))
put(OPT['mb'], lambda: emit([flag_load(32)]))
put(OPT['mc'], lambda: (flag_check(32), fine('ck5m'), emit(ul[16:20])))
for k in range(4):
    put(max(OPT['mc'], kend) + 2 + 2 * k, (lambda y: lambda: emit([y]))(ul[20 + k]))
put(OPT['fa'], lambda: (flag_after('u6', 64), fine('fl5b')))
put(OPT['fb'], lambda: emit([flag_load(64)]))
put(OPT['fc'], lambda: (flag_check(64), fine('ck5b'), emit(ul[24:])))
put(max(OPT['fc'] + 4, 64), next_m1)
gemm_r(XV, 4, 0, 28, ureg, WR5, WD, LOC_WO, first_c=True, fill=fill, preload=False, rot=ROT)


def x_pack():
    for k in range(8):
        p(f'v_cvt_pk_bf16_f32 {v(XP + k)}, {v(XV + 2 * k)}, {v(XV + 2 * k + 1)}')


stamp('K5')
if_layer(1)
x_pack()
for o in range(2):
    p(f'ds_write_b128 {v(OW)}, {v(XP + 4 * o, 4)} offset:{16 * o}')
for k in range(2):
    p(f'ds_read_b128 {v(X1R + 4 * k, 4)}, {v(OR)} offset:{1152 * k}')
for k in range(2):
    p(f'buffer_store_dwordx4 {v(X1R + 4 * k, 4)}, {v(OG)}, {s(R_OUT, 4)}, {s(sT + 14 + k)} offen sc1')
if PROF:
    p('s_waitcnt vmcnt(0)')
    stamp('end')
    p(f's_lshl_b32 {s(sT)}, s2, 2')
    p(f's_add_u32 {s(sT)}, {s(sT)}, {s(sW)}')
    p(f's_lshl_b32 {s(sT)}, {s(sT)}, 8')
    p(f's_add_u32 {s(sT)}, {s(sT)}, {PROFO:#x}')
    p(f'v_lshrrev_b32 {v(T)}, 2, {v(vL16)}')
    p(f'buffer_store_dword {v(vProf)}, {v(T)}, {s(R_WS, 4)}, {s(sT)} offen')
if OPT['diag']:
    p('s_waitcnt vmcnt(0)')
    stamp('end')
    p(f's_sub_u32 s101, s101, {s(sPidx)}')
    p('s_min_u32 s101, s101, 20000')
    p('s_mul_i32 s101, s101, 10')
    p('s_add_u32 s101, s101, 10000')
    p('L_spin:')
    p(f's_memrealtime {s(sStamp, 2)}')
    p('s_waitcnt lgkmcnt(0)')
    p(f's_sub_u32 {s(sStamp)}, {s(sStamp)}, {s(sPidx)}')
    p(f's_cmp_lt_u32 {s(sStamp)}, s101')
    p('s_cbranch_scc1 L_spin')
p('L_exit:')
p('s_endpgm')
p.end()
local_stats(XV, 16, T)
reduce_g(T, T + 1)
publish_stats(0x40000)
p('s_barrier')
if OPT['ctp'] == 0:
    ct_dma(228)
emit(wz2[:OPT['wzp0']])
x_pack()
p(f's_mov_b32 {s(sL)}, 1')
p(f's_mov_b32 {s(sLocH)}, {s(sLoc)}')
p(f's_mov_b32 {s(sLocU)}, 0')
if not OPT['reuse']:
    p(f's_add_u32 {s(R_WL)}, {s(R_WL)}, {LSTRIDE:#x}')
    p(f's_addc_u32 {s(R_WL + 1)}, {s(R_WL + 1)}, 0')
p(f's_mov_b32 {s(R_WL + 2)}, {LSTRIDE:#x}')
p(f's_mov_b32 {s(R_X)}, {s(R_WL)}')
p(f's_mov_b32 {s(R_X + 1)}, {s(R_WL + 1)}')
p(f's_mov_b32 {s(R_X + 2)}, {LSTRIDE:#x}')
p(f's_add_u32 {s(sXb)}, {s(sK2)}, {H_:#x}')
p(f's_add_u32 {s(sXo)}, {s(sXb)}, 2048')
p(f'v_mov_b32 {v(vXr)}, {v(vK2)}')
p(f'v_mov_b32 {v(vXw)}, {v(vTr)}')
p(f'v_add_u32 {v(vXw + 1)}, 576, {v(vTr)}')
p(f'v_mov_b32 {v(vHw)}, {v(vHw2)}')
p(f's_add_u32 {s(sSt)}, {s(sSt)}, 0x20000')
for r in (() if OPT['vs'] else (sArr, sRep)) + (sS2, sS4, sP4, sS5, sF2s, sF2l):
    p(f's_add_u32 {s(r)}, {s(r)}, 0x20000')
for o in range(2):
    p(f's_add_u32 {s(sT + 4 + o)}, {s(sT + 3)}, {H_ + 8192 * o:#x}')
emit([gather_loads(0x20000)])
gather_finish(0x20000)
gstore([f'buffer_store_dwordx4 {v(XP + 4 * o, 4)}, {v(vL16)}, {s(R_WL, 4)}, {s(sT + 4 + o)} offen' for o in range(2)], 'x2')
if OPT['ctp'] == 1:
    ct_dma(228)
emit(wz2[OPT['wzp0']:P1])
p('s_branch L_layer')

p.resolve([('pro', set()), ('body', {'L0'}), ('body', {'L1'})], ['W0', 'G0', 'LOC', 'RETRY'] + (['W1'] if OPT['tlb'] else []))

hdr = open('interleave_layers__spectral_fnet__mixer_gmlp__prompt.s.ref').read().split('\n')
out = [l for l in hdr if l.startswith(';') and '@launch' not in l][:14]
if PROF:
    k = STAMPS.index('T')
    out.append('; stamps: ' + ' '.join(STAMPS[:-1] + [x for x in STAMPS[k:] if x[0] != '*']))
out.append(f'; @launch grid=(256,1,1) block=(256,1,1) lds={LDS_BYTES}')
out += ['.amdgcn_target "amdgcn-amd-amdhsa--gfx950"', '.text', f'.globl {NAME}', '.p2align 8', f'.type {NAME},@function']
out.append(p.text())
out.append('.p2align 8')
out.append('.type L_table,@object')
out.append('L_table:')
tab = const_table()
for i in range(0, tab.size, 8):
    out.append('.long ' + ','.join(f'{x:#x}' for x in tab[i:i + 8]))
out.append(f'.size L_table, {tab.size * 4}')
out.append('L_end:')
out += ['.section .rodata,"a"', '.p2align 6', f'.amdhsa_kernel {NAME}',
        '  .amdhsa_next_free_vgpr 512', '  .amdhsa_next_free_sgpr 102', '  .amdhsa_accum_offset 256',
        '  .amdhsa_group_segment_fixed_size 0', '  .amdhsa_kernarg_size 104', '  .amdhsa_user_sgpr_count 2',
        '  .amdhsa_user_sgpr_kernarg_segment_ptr 1', '  .amdhsa_system_sgpr_workgroup_id_x 1',
        '  .amdhsa_float_denorm_mode_32 3', '.end_amdhsa_kernel', '']
open(sys.argv[1], 'w').write('\n'.join(out))
print(p.stats(), file=sys.stderr)
```

```python
import sys
import struct
import numpy as np
from asmlib import Prog, v, a, s

NAME = 'interleave_layers__spectral_fnet__mixer_gmlp__prompt_kernel'
OPT = dict(prof=0, k4mfma=1, k4load=1, k4epi=1, zd=12, pre3=6, pre5=16, loc=1, locd=7, x1pos=58, lg=0, pg=0, sg=0, wspev=8, x1=2,
           g2ev=12, z1a=0, gpos=18, z1arr=6, wo4=16, ctp=2, wzp0=0, wzp1=0, wzp2=0, wzp3=8, reuse=0, tlb=0, e1=4, e2=14, e3=24, f5a=87, l5a=95, mb=8, mc=20, fa=36, fb=48, fc=60, hpf=0, late=0, min0=1, pre=1, we=2, hsp=4, algn=0, xe=4, gb=1, xa=8, to=40000, wf2=1, cmn='044444', l0a=2, noe=0, pz=1, pv=4, vs=2, zp0=0, zin=1, zsp=3, zs=1, q4=8, upk=4, gsh=0, cpf=12, k1=3, k2=9, k3=15, mf=111, fixev=0, woa=8, wosp=4, g1w=1, l0n='0444466', ann=0, fix='6/7///', ntail=12, lnow=4, fine=0, sched='//d1/d2r0d3r1d4p0r2d5p1r3d6p2r4qd7p3/r5p4/a6p5/a7/', ctpos=0, pk=3, nomean=0,  z2sp=4, early=1, wfirst=0, nobg=0, few=0, diag='')
for arg in sys.argv[2:]:
    k, val = arg.split('=')
    OPT[k] = val if k in ('diag', 'sched', 'fix', 'l0n', 'cmn') else int(val)
PROF = OPT['prof']
LG = (' sc1', '', ' nt', ' sc0')[OPT['lg']]
PG = (' sc1', '', ' nt')[OPT['pg']]
SG = ('', ' nt', ' sc0')[OPT['sg']]


WI, WO, FLAGS, STATS, X2, PROFO = 0, 0x200000, 0x300000, 0x340000, 0x400000, 0x600000
LBASE, LSTRIDE = 0x800000, 0x1000000
V_, H_, X1_, Z_, U_ = 0, 0x200000, 0x400000, 0x600000, 0xA00000
WB, CT, SCR, LDS_BYTES = 0, 114688, 114688 + 22528, 163840
CT_FA, CT_TW, CT_FB, CT_M1 = 0, 6144, 10240, 14336

R_X, R_WIN, R_WSP, R_WOUT, R_OUT, R_WS, R_DBG, R_BSP, R_WL = 4, 8, 12, 16, 20, 24, 28, 32, 36
sW, sC, sB, sL, sTO = 40, 41, 42, 43, 44
sVst, sVld, sH, sK2, sXo, sXb, sZst, sZld, sUst, sUld = 45, 46, 47, 48, 49, 50, 51, 52, 53, 54
sLoc, sSt, sWI, sWO, sWsp, sSelLo, sSelHi, sPidx, sOnes = 55, 56, 57, 58, 59, 60, 61, 62, 63
sArr, sRep, sS2, sS4, sS5, sB128, sDm, sDo = 64, 65, 66, 67, 68, 69, 70, 71
sF2s, sF2l = 86, 87
sB4, sP4, sG0, sLocH, sLocU = 3, 88, 75, 89, 100
sT = 72
sStamp = 90
vL16, vTw, vK2, vXr, vVld, vVst, vBsp, vZst = 0, 1, 2, 3, 4, 5, 6, 7
vC2 = 8
vHw, vHr, vUw, vUr, vStl, vL8, vTr, vPoll, vArr, vProf, vGK = 16, 17, 18, 19, 20, 21, 22, 23, 24, 25, 26
vRed = 28
T = 32
XV = 40
M1 = 184


def f2u(x):
    return struct.unpack('<I', struct.pack('<f', x))[0]


def bf16(x):
    u = np.ascontiguousarray(x, dtype=np.float32).view(np.uint32)
    return ((u + 0x7FFF + ((u >> 16) & 1)) >> 16).astype(np.uint32)


def const_table():
    l = np.arange(64)[:, None]
    j = np.arange(8)[None, :]
    nn, h = l & 31, l >> 5
    e1 = 16 * ((nn >> 2) & 1) + 4 * (nn >> 3) + (nn & 3)
    frags = []

    def pack(x):
        x = np.where(np.abs(x) < 1e-12, 0.0, x)
        b = bf16(x)
        return (b[:, 0::2] | (b[:, 1::2] << 16)).astype(np.uint32)
    ang = [2 * np.pi * ((16 * dh + 8 * h + j) * e1 % 32) / 32 for dh in range(2)]
    frags += [pack(np.cos(ang[0])), pack(np.cos(ang[1])), pack(np.sin(ang[0])), pack(np.sin(ang[1])),
              pack(-np.sin(ang[0])), pack(-np.sin(ang[1]))]
    d2 = 8 * (j >> 2) + 4 * h + (j & 3)
    tw = 2 * np.pi * (d2 * e1) / 512
    tc = np.cos(tw).astype(np.float32).view(np.uint32)
    ts = np.sin(tw).astype(np.float32).view(np.uint32)
    frags += [tc[:, :4], tc[:, 4:], ts[:, :4], ts[:, 4:]]
    ps = 2 * np.pi * (d2 * (nn & 15) % 16) / 16
    for row in range(2):
        m = ((nn >> 4) == row)
        frags += [pack(np.cos(ps) * m), pack(np.sin(ps) * m)]
    n, g = l & 15, l >> 4
    for jq in range(4):
        for ks in range(2):
            rho = 32 * ks + 16 * (j >> 2) + 4 * g + (j & 3)
            s1 = 16 * (rho >> 4) + 2 * (rho & 7) + ((rho >> 3) & 1)
            jj = 8 * jq + (n >> 1)
            th = 2 * np.pi * (s1 * jj % 64) / 64
            x = np.where((n & 1) == 0, np.cos(th), np.where(jj == 0, (-1.0) ** s1, -np.sin(th)))
            frags.append(pack(x))
    tab = np.concatenate([np.ascontiguousarray(f).reshape(-1) for f in frags])
    assert tab.size == 22 * 256
    return tab


p = Prog()
M16 = 'v_mfma_f32_16x16x32_bf16'
M32 = 'v_mfma_f32_32x32x16_bf16'


STAMPS = []


def stamp(name):
    if OPT['few'] and name in ('karg', 'start', 'setup', 'init', 'arr1', 'Vst', 'pub3', 'z1a', 'S3', 'Zst', 'arr4', 'win4') + (() if OPT['fine'] else ('Vld', 'K2', 'arr2', 'K5')):
        return
    STAMPS.append(name)
    if OPT['diag'] and OPT['diag'][:-1] == name:
        p(f's_memrealtime {s(sStamp, 2)}')
        p('s_waitcnt lgkmcnt(0)')
        p(f's_cmp_eq_u32 {s(sL)}, {OPT["diag"][-1]}')
        p(f's_cselect_b32 s101, {s(sStamp)}, s101')
    if PROF:
        p(f'{"s_memtime" if PROF == 2 else "s_memrealtime"} {s(sStamp, 2)}')
        p('s_waitcnt lgkmcnt(0)')
        p('s_mov_b32 s101, m0')
        p(f's_mov_b32 m0, {s(sPidx)}')
        p(f'v_writelane_b32 {v(vProf)}, {s(sStamp)}, m0')
        p('s_mov_b32 m0, s101')
        p(f's_add_u32 {s(sPidx)}, {s(sPidx)}, 1')


def fine(name):
    if OPT['fine'] == 1:
        stamp(name)


def srd(r, lo, hi, size):
    p(f's_mov_b32 {s(r)}, {s(lo)}')
    p(f's_and_b32 {s(r + 1)}, {s(hi)}, 0xffff')
    p(f's_mov_b32 {s(r + 2)}, {size:#x}')
    p(f's_mov_b32 {s(r + 3)}, 0x20000')


def if_wave0():
    p(f's_cmp_eq_u32 {s(sW)}, 0')
    p.begin('W0', 's_cbranch_scc0')


def if_layer(l):
    p(f's_cmp_eq_u32 {s(sL)}, {l}')
    p.begin(f'L{l}', 's_cbranch_scc0')


def spin_tail(top, done):
    p(f's_cbranch_vccz {done}')
    p(f's_sub_u32 {s(sTO)}, {s(sTO)}, 1')
    p(f's_cbranch_scc0 {top}')
    p(f's_mov_b32 {s(sTO)}, 0')
    p(f'{done}:')


def arrive(soff, nrep):
    p('s_barrier')
    if_wave0()
    p(f'v_mov_b32 {v(T)}, 1')
    p(f's_mov_b64 exec, {(1 << nrep) - 1:#x}')
    p(f'buffer_atomic_add {v(T)}, {v(vArr)}, {s(R_WS, 4)}, {s(soff)} offen sc1')
    p('s_mov_b64 exec, -1')
    p.end()


def gstore(lines, tag=None, local=False, flag=None):
    if not OPT['loc'] or (tag and not local):
        for x in lines:
            p(x + ' sc1', tag=tag)
        return
    p(f's_cmp_eq_u32 {s(flag or sLoc)}, 0')
    p.begin_ool('!LOC', 's_cbranch_scc1')
    for x in lines:
        p(x + ' sc1', tag=tag)
    p.end_ool(('LOC', lambda: [p(x + SG, tag=tag) for x in lines]))


def arrive_group(soff, off=0):
    p('s_barrier')
    if_wave0()
    p(f'v_mov_b32 {v(T)}, 1')
    p(f's_add_u32 {s(99)}, {s(soff)}, {s(sB4)}')
    p('s_mov_b64 exec, 1')
    gstore([f'buffer_store_dword {v(T)}, off, {s(R_WS, 4)}, {s(99)} offset:{off}'])
    p('s_mov_b64 exec, -1')
    p.end()


def poll(soff, vaddr, need, tag=None):
    if_wave0()
    top, done = p.label('poll'), p.label('pdone')
    p(f'{top}:')
    if vaddr is not None:
        p(f'buffer_load_dword {v(T)}, {v(vaddr)}, {s(R_WS, 4)}, {s(soff)} offen' + (PG if vaddr == vGrp else ' sc1'))
    else:
        p(f'buffer_load_dword {v(T)}, off, {s(R_WS, 4)}, {s(soff)} sc1')
    p('s_waitcnt vmcnt(0)')
    p(f'v_cmp_ne_u32 vcc, {need}, {v(T)}')
    spin_tail(top, done)
    p.end()
    if tag:
        p.wait_vm(tag)
    p('s_barrier')


def reduce_g(x, y):
    p(f'v_permlane16_swap_b32 {v(x)}, {v(y)}')
    p(f'v_add_f32 {v(x)}, {v(x)}, {v(y)}')
    p(f'v_mov_b32 {v(y)}, {v(x)}')
    p(f'v_permlane32_swap_b32 {v(x)}, {v(y)}')
    p(f'v_add_f32 {v(x)}, {v(x)}, {v(y)}')
    p(f'v_mov_b32 {v(y)}, {v(x)}')
    p(f'v_permlane16_swap_b32 {v(x)}, {v(y)}')


def finish_stats(x, n):
    y, m = x + 1, x + 2
    p(f'v_mul_f32 {v(m)}, {f2u(1.0 / n):#x}, {v(x)}')
    p(f'v_mul_f32 {v(y)}, {f2u(1.0 / n):#x}, {v(y)}')
    p(f'v_fma_f32 {v(y)}, -{v(m)}, {v(m)}, {v(y)}')
    p(f'v_max_f32 {v(y)}, 0, {v(y)}')
    p(f'v_add_f32 {v(y)}, {f2u(1e-5):#x}, {v(y)}')
    p(f'v_rsq_f32 {v(x)}, {v(y)}')
    p(f'v_mul_f32 {v(y)}, -{v(m)}, {v(x)}')


def norm_pack(src, n, st, tmp, dst):
    for i in range(0, n, 2):
        p(f'v_pk_fma_f32 {v(tmp + i, 2)}, {v(src + i, 2)}, {v(st, 2)}, {v(st, 2)} op_sel:[0,0,1] op_sel_hi:[1,0,1]')
    for i in range(0, n, 2):
        p(f'v_cvt_pk_bf16_f32 {v(dst + i // 2)}, {v(tmp + i)}, {v(tmp + i + 1)}')


def local_stats(src, n, out):
    sa, sq = out + 2, out + 4
    p(f'v_pk_add_f32 {v(sa, 2)}, {v(src, 2)}, {v(src + 2, 2)}')
    p(f'v_pk_mul_f32 {v(sq, 2)}, {v(src, 2)}, {v(src, 2)}')
    p(f'v_pk_fma_f32 {v(sq, 2)}, {v(src + 2, 2)}, {v(src + 2, 2)}, {v(sq, 2)}')
    for i in range(4, n, 2):
        p(f'v_pk_add_f32 {v(sa, 2)}, {v(sa, 2)}, {v(src + i, 2)}')
        p(f'v_pk_fma_f32 {v(sq, 2)}, {v(src + i, 2)}, {v(src + i, 2)}, {v(sq, 2)}')
    p(f'v_add_f32 {v(out)}, {v(sa)}, {v(sa + 1)}')
    p(f'v_add_f32 {v(out + 1)}, {v(sq)}, {v(sq + 1)}')


def unpack(src, n, dst):
    for i in range(n):
        p(f'v_lshlrev_b32 {v(dst + 2 * i)}, 16, {v(src + i)}')
        p(f'v_and_b32 {v(dst + 2 * i + 1)}, 0xffff0000, {v(src + i)}')


def publish_stats(area):
    p(f's_add_u32 {s(sT)}, {s(sSt)}, {s(sB128)}')
    if area:
        p(f's_add_u32 {s(sT)}, {s(sT)}, {area:#x}')
    p('s_mov_b64 exec, 0xffff')
    gstore([f'buffer_store_dwordx2 {v(T, 2)}, {v(vStl)}, {s(R_WS, 4)}, {s(sT)} offen'])
    p('s_mov_b64 exec, -1')


def gather_loads(area):
    return [(f's_add_u32 {s(99)}, {s(sSt)}, {area:#x}', None),
            (f'buffer_load_dwordx2 {v(T + 4, 2)}, {v(vStl)}, {s(R_WS, 4)}, {s(99)} offen{PG}', None),
            (f'buffer_load_dwordx2 {v(T + 6, 2)}, {v(vStl)}, {s(R_WS, 4)}, {s(99)} offen offset:128{PG}', None)]


def retry_until(loads, test, tested=False, after=None):
    if not tested:
        test()
    p.begin_ool('RETRY', 's_cbranch_vccnz')
    top, done = p.label('rt'), p.label('rdone')
    p(f'{top}:')
    emit([loads])
    p('s_waitcnt vmcnt(0)')
    test()
    spin_tail(top, done)
    if after:
        emit([after])
    p.end_ool()


def gather_finish(area):
    def test():
        p(f'v_add_f32 {v(T)}, {v(T + 4)}, {v(T + 6)}')
        p(f'v_add_f32 {v(T + 1)}, {v(T + 5)}, {v(T + 7)}')
        p(f'v_cmp_u_f32 vcc, {v(T)}, {v(T + 1)}')
    retry_until(gather_loads(area), test)
    reduce_g(T, T + 1)


LOC_Z2 = lambda i: 1024 * i
LOC_Z1 = lambda i: 1024 * (i - 48) if i >= 48 else CT + 1024 * i
LOC_WO = lambda i: 1024 * (i - 48) if i >= 48 else 65536 + 1024 * i


def w_dma_ops(sbase, extra, loc, name):
    ops = []
    for j in range(7):
        for i in range(4):
            o = []
            if i == 0:
                o.append((f's_add_u32 m0, {s(sDm)}, {loc(16 * j):#x}', None))
                o.append((f's_add_u32 {s(sDo)}, {s(sbase)}, {extra + 16384 * j:#x}', None))
            if OPT['nobg'] & 1:
                o.append(('s_nop 0', None))
            else:
                o.append((f'buffer_load_dwordx4 {v(vL16)}, {s(R_WS, 4)}, {s(sDo)} offen offset:{i * 1024} lds', f'{name}{j}'))
            ops.append(o)
    return ops


def emit(groups):
    for g in groups:
        for text, tag in g:
            p(text, tag=tag)


def wsp_dma_ops(batch):
    q, ih = batch >> 1, batch & 1
    ops = []
    for il in range(4):
        for rh in range(2):
            if batch < 2:
                imm, so = 128 * il, 80 + batch
                o = [(f's_add_u32 m0, {s(78 + batch)}, {1024 + 2048 * il + 1024 * rh - imm}', None)]
            else:
                imm, so = 512 * ih + 128 * il, sDo
                o = [(f's_add_u32 m0, {s(sWsp)}, {1024 + 8192 * (batch % 3) + 2048 * il + 1024 * rh - imm}', None)]
                if not ops:
                    o += [(f's_add_u32 {s(sDo)}, {s(sW)}, {q}', None), (f's_and_b32 {s(sDo)}, {s(sDo)}, 3', None),
                          (f's_lshl_b32 {s(sDo)}, {s(sDo)}, 21', None)]
            o.append((f'buffer_load_dwordx4 {v(vWspA + rh)}, {s(R_WSP, 4)}, {s(so)} offen offset:{imm} lds', f'wsp{max(batch, 1)}'))
            ops.append(o)
    return ops


def table_addr(dst, soff):
    p(f'v_add_u32 {v(dst)}, {s(soff)}, {v(vL16)}')
    p(f'v_mov_b32 {v(dst + 1)}, {s(93)}')
    p(f'v_add_co_u32 {v(dst)}, vcc, {s(92)}, {v(dst)}')
    p(f'v_addc_co_u32 {v(dst + 1)}, vcc, 0, {v(dst + 1)}, vcc')


def code_prefetch(bit, lo):
    if not OPT['cpf'] & bit:
        return
    if_layer(0)
    p(f's_lshr_b32 {s(99)}, s2, 3')
    p(f's_lshl_b32 {s(99)}, {s(99)}, 2')
    p(f's_add_u32 {s(99)}, {s(99)}, {s(sW)}')
    p(f's_lshl_b32 {s(99)}, {s(99)}, 7')
    p(f's_sub_u32 {s(98)}, {s(92)}, L_table-{lo}')
    p(f's_subb_u32 {s(97)}, {s(93)}, 0')
    p(f's_add_u32 {s(98)}, {s(98)}, {s(99)}')
    p(f's_addc_u32 {s(97)}, {s(97)}, 0')
    p(f'v_mov_b32 {v(T + 6)}, {s(98)}')
    p(f'v_mov_b32 {v(T + 7)}, {s(97)}')
    p('s_mov_b64 exec, 1')
    p(f'global_load_dword {v(251)}, {v(T + 6, 2)}, off')
    p('s_mov_b64 exec, -1')
    p.end()


def poison(site, reg):
    todo = [(sZst, vZst, 0)] if OPT['zs'] and OPT['pz'] == site else []
    todo += [(sVst, vVst, 0), (sVst, vVst, 0x10000)] if OPT['vs'] and OPT['pv'] == site else []
    if not todo:
        return
    if_layer(0)
    for k in range(4):
        p(f'v_mov_b32 {v(reg + k)}, -1')
    for base, va, off in todo:
        p(f's_add_u32 {s(99)}, {s(base)}, {LSTRIDE + off:#x}')
        p(f'buffer_store_dwordx4 {v(reg, 4)}, {v(va)}, {s(R_WL, 4)}, {s(99)} offen sc1', tag='pub' if site == 3 else None)
    p.end()


def m1_load(dst):
    p(f's_lshl_b32 {s(99)}, {s(sW)}, 11')
    p(f's_add_u32 {s(99)}, {s(99)}, {CT_M1}')
    table_addr(dst, 99)
    for k in range(2):
        p(f'global_load_dwordx4 {v(M1 + 4 * k, 4)}, {v(dst, 2)}, off offset:{1024 * k}')


def ct_dma(dst):
    p(f's_mul_i32 {s(99)}, {s(sW)}, 3584')
    p(f's_add_u32 m0, {s(99)}, {CT}')
    table_addr(dst, 99)
    for off in (0, 1024, 2048):
        p(f'global_load_lds_dwordx4 {v(dst, 2)}, off offset:{off}', tag='ct')
    p('s_mov_b32 exec_hi, 0')
    p(f'global_load_lds_dwordx4 {v(dst, 2)}, off offset:3072', tag='ct')
    p('s_mov_b64 exec, -1')


def wsp_dma(batch):
    p.bg = wsp_dma_ops(batch)
    p.bg_emit()


def wsp_read(batch, reg):
    p.wait_vm(f'wsp{max(batch, 1)}')
    for il in range(4):
        for o in range(2):
            p(f'ds_read_b128 {v(reg + 4 * (2 * il + o), 4)}, {v(vWspR + o)} offset:{8192 * (batch % 3) + 2048 * il}', tag=f'wr{batch}')


def wsp_park(batch):
    q, ih = batch >> 1, batch & 1
    p.wait_vm(f'wsp{max(batch, 1)}')
    for il in range(4):
        for o in range(2):
            p(f'ds_read_b128 {a(64 * q + 32 * o + 4 * (4 * ih + il), 4)}, {v(vWspR + o)} offset:{8192 * (batch % 3) + 2048 * il}', tag=f'wr{batch}')


def wsp_fix(units, reg, first=()):
    if not units and not first:
        return
    if_layer(0)
    emit(first)
    for u in units:
        base = 32 * int(u)
        for k in range(32):
            p(f'v_accvgpr_read_b32 {v(reg + k)}, {a(base + k)}')
        k = 0
        for ip in range(4):
            for al in range(8):
                t = reg + 32 + (k & 3)
                k += 1
                lo, hi = reg + 8 * ip + (al >> 1), reg + 8 * ip + 4 + (al >> 1)
                p(f'v_perm_b32 {v(t)}, {v(hi)}, {v(lo)}, {s(sSelHi if al & 1 else sSelLo)}')
                p(f'v_accvgpr_write_b32 {a(base + 4 * al + ip)}, {v(t)}')
    p.end()


def wsp_perm(batch, reg):
    q, ih = batch >> 1, batch & 1
    k = 0
    for ipl in range(2):
        for o in range(2):
            for al in range(8):
                t = T + (k & 7)
                k += 1
                lo, hi = reg + 4 * (4 * ipl + o) + (al >> 1), reg + 4 * (4 * ipl + 2 + o) + (al >> 1)
                p(f'v_perm_b32 {v(t)}, {v(hi)}, {v(lo)}, {s(sSelHi if al & 1 else sSelLo)}')
                p(f'v_accvgpr_write_b32 {a((q * 16 + 8 * o + al) * 4 + 2 * ih + ipl)}, {v(t)}')


def wring_read(idx, ring, depth, loc, rot=0):
    base, off = (vL16, vL16hi, vL16h2)[loc(idx) >> 16], loc(idx) & 0xffff
    p(f'ds_read_b128 {v(ring + 4 * ((idx + rot) % depth), 4)}, {v(base)} offset:{off}', tag=f'w{idx}')


def gemm_r(acc, nt, ks0, ks1, act, ring, depth, loc, first_c=None, fill=None, preload=True, last=None, rot=0):
    fill = dict(fill or {})
    if OPT['nobg'] & 2 and loc is LOC_Z1:
        raise SystemExit('nobg&2 unsupported')
    lo, hi = nt * ks0, nt * ks1
    if preload:
        for idx in range(lo, min(lo + depth, last or hi)):
            wring_read(idx, ring, depth, loc)
    for idx in range(lo, hi):
        ks, t = divmod(idx, nt)
        if (idx - lo) % OPT['we'] == 0:
            p.wait_lgkm(f'w{min(idx + OPT["we"] - 1, hi - 1)}')
        c = v(acc + 4 * t, 4) if (ks or first_c) else '0'
        p(f'{M16} {v(acc + 4 * t, 4)}, {v(ring + 4 * ((idx + rot) % depth), 4)}, {v(act(ks) if callable(act) else act + 4 * ks, 4)}, {c}')
        if idx + depth < (last or hi):
            wring_read(idx + depth, ring, depth, loc, rot)
        f = fill.pop(idx, None)
        if callable(f):
            f()
        elif f:
            emit([f])
    assert not fill


def spread(groups, first, step):
    return {first + step * k: g for k, g in enumerate(groups)}


def gelu(x, n, tmp):
    for i in range(0, n, 4):
        t = tmp + (i & 4)
        for k in (0, 2):
            p(f'v_pk_mul_f32 {v(t + k, 2)}, {v(x + i + k, 2)}, {v(x + i + k, 2)}')
        for k in (0, 2):
            p(f'v_pk_fma_f32 {v(t + k, 2)}, {v(t + k, 2)}, {v(vGK, 2)}, {v(vGK, 2)} op_sel:[0,0,1] op_sel_hi:[1,0,1]')
        for k in (0, 2):
            p(f'v_pk_mul_f32 {v(t + k, 2)}, {v(t + k, 2)}, {v(x + i + k, 2)}')
        for k in range(4):
            p(f'v_exp_f32 {v(t + k)}, {v(t + k)}')
        for k in (0, 2):
            p(f'v_pk_add_f32 {v(t + k, 2)}, {v(t + k, 2)}, 1.0 op_sel_hi:[1,0]')
        for k in range(4):
            p(f'v_rcp_f32 {v(t + k)}, {v(t + k)}')
        for k in (0, 2):
            p(f'v_pk_mul_f32 {v(x + i + k, 2)}, {v(t + k, 2)}, {v(x + i + k, 2)}')


vWspA, vWspR = 244, 236
vHw2, vXw, vGrp = 250, 246, 254
vL16hi, vL16h2 = 252, 255
p.section('pro')
p(f'{NAME}:')
p(f's_cmp_ge_u32 s2, 256')
p('s_cbranch_scc1 L_exit')
SRDS = ((R_X, 0, 2097152), (R_WS, 96, LBASE), (R_WIN, 48, 512 * 3584), (R_WOUT, 72, 896 * 1024), (R_WSP, 56, 2048 * 4096),
        (R_BSP, 64, 4096), (R_WL, 96, 2 * LSTRIDE), (R_DBG, 88, 256), (R_OUT, 80, 2097152))
for r, off, size in SRDS[:6]:
    p(f's_load_dwordx2 {s(r, 2)}, s[0:1], {off}')
if OPT['diag']:
    p(f's_memrealtime {s(sStamp, 2)}')
if PROF:
    p(f'{"s_memtime" if PROF == 2 else "s_memrealtime"} {s(sStamp, 2)}')
p(f's_getpc_b64 {s(92, 2)}')
p('L_pc:')
lane, n_, g_, t0, t1, t2, t3, tid = 100, 101, 102, 103, 104, 105, 106, 107
p(f'v_mov_b32 {v(tid)}, v0')
p(f's_lshr_b32 {s(94)}, s2, 3')
p(f's_lshl_b32 {s(94)}, {s(94)}, 4')
p(f'v_lshrrev_b32 {v(T)}, 4, v0')
p(f'v_add_u32 {v(T)}, {s(94)}, {v(T)}')
p(f'v_lshlrev_b32 {v(T)}, 7, {v(T)}')
p(f'v_min_u32 {v(T)}, L_end-L_pc-4, {v(T)}')
p(f'v_mov_b32 {v(T + 3)}, {s(93)}')
p(f'v_add_co_u32 {v(T + 2)}, vcc, {s(92)}, {v(T)}')
p(f'v_addc_co_u32 {v(T + 3)}, vcc, 0, {v(T + 3)}, vcc')
p(f'global_load_dword {v(253)}, {v(T + 2, 2)}, off')
p(f'v_lshrrev_b32 {v(t0)}, 6, v0')
p(f'v_and_b32 {v(lane)}, 63, v0')
p(f'v_readfirstlane_b32 {s(sW)}, {v(t0)}')
p(f's_lshr_b32 {s(94)}, s2, 3')
p(f's_and_b32 {s(sB)}, {s(94)}, 7')
p(f's_and_b32 {s(95)}, s2, 7')
p(f's_lshl_b32 {s(95)}, {s(95)}, 1')
p(f's_lshr_b32 {s(96)}, {s(94)}, 4')
p(f's_add_u32 {s(95)}, {s(95)}, {s(96)}')
p(f's_sub_u32 {s(96)}, 32, {s(95)}')
p(f's_cmp_eq_u32 {s(95)}, 0')
p(f's_cselect_b32 {s(96)}, 16, {s(96)}')
p(f's_bitcmp1_b32 {s(94)}, 3')
p(f's_cselect_b32 {s(sC)}, {s(96)}, {s(95)}')
p(f's_lshl_b32 {s(sB128)}, {s(sB)}, 7')
p(f's_lshl_b32 {s(94)}, {s(sW)}, 9')
p(f's_add_u32 {s(94)}, {s(94)}, {s(sC)}')
p(f'v_and_b32 {v(t0)}, 28, {v(lane)}')
p(f'v_lshlrev_b32 {v(t0)}, 4, {v(t0)}')
p(f'v_and_b32 {v(t1)}, 32, {v(lane)}')
p(f'v_add3_u32 {v(t0)}, {v(t0)}, {v(t1)}, {s(94)}')
p(f'v_lshlrev_b32 {v(t2)}, 10, {v(t0)}')
p(f'v_and_b32 {v(t1)}, 3, {v(lane)}')
p(f'v_lshl_add_u32 {v(t0)}, {v(t1)}, 5, {v(t2)}')
p(f'v_lshl_add_u32 {v(t2)}, {v(t1)}, 4, {v(t2)}')
XR = 120


def x_loads(i0, i1):
    for i in range(i0, i1):
        if i == 0:
            p(f'buffer_load_dwordx4 {v(XR, 4)}, {v(t0)}, {s(R_X, 4)}, {s(sB128)} offen')
            p(f'buffer_load_dwordx4 {v(XR + 4, 4)}, {v(t0)}, {s(R_X, 4)}, {s(sB128)} offen offset:16')
            continue
        p(f's_add_u32 {s(99)}, {s(sB128)}, {128 * i}')
        p(f's_and_b32 {s(99)}, {s(99)}, 0x3ff')
        p(f'buffer_load_dwordx4 {v(XR + 8 * i, 4)}, {v(t2)}, {s(R_X, 4)}, {s(99)} offen')
        p(f'buffer_load_dwordx4 {v(XR + 8 * i + 4, 4)}, {v(t2)}, {s(R_X, 4)}, {s(99)} offen offset:64')


def first_loads():
    p('s_waitcnt lgkmcnt(0)')
    if OPT['diag']:
        p(f's_mov_b32 {s(sPidx)}, {s(sStamp)}')
        p(f's_mov_b32 s101, {s(sStamp)}')
    if PROF:
        p(f'v_mov_b32 {v(vProf)}, 0')
        p(f'v_writelane_b32 {v(vProf)}, {s(sStamp)}, 0')
        p(f's_mov_b32 {s(sPidx)}, 1')
        STAMPS.append('entry')
    stamp('karg')
    x_loads(0, OPT['x1'])


p(f's_mov_b32 {s(R_X + 2)}, {SRDS[0][2]:#x}')
p(f's_mov_b32 {s(R_X + 3)}, 0x20000')
p(f's_mov_b32 {s(sL)}, 0')
if OPT['min0']:
    first_loads()
p(f'v_and_b32 {v(n_)}, 15, {v(lane)}')
p(f'v_lshrrev_b32 {v(g_)}, 4, {v(lane)}')
p(f'v_lshlrev_b32 {v(vL16)}, 4, {v(lane)}')
for r, off, size in SRDS[1:]:
    p(f's_mov_b32 {s(r + 2)}, {size:#x}')
    p(f's_mov_b32 {s(r + 3)}, 0x20000')
p(f's_mov_b32 {s(sTO)}, {OPT["to"]}')
p(f's_lshl_b32 {s(sB4)}, {s(sB)}, 2')
p(f's_getreg_b32 {s(sLoc)}, hwreg(HW_REG_XCC_ID)')
p(f's_mov_b32 {s(sOnes)}, 0x3f803f80')
p(f's_mov_b32 {s(sSelLo)}, 0x05040100')
p(f's_mov_b32 {s(sSelHi)}, 0x07060302')
p(f'v_and_b32 {v(t3)}, 7, {v(n_)}')
p(f'v_lshlrev_b32 {v(t3)}, 6, {v(t3)}')
p(f'v_and_b32 {v(t1)}, 8, {v(n_)}')
p(f'v_lshlrev_b32 {v(t1)}, 2, {v(t1)}')
p(f'v_add3_u32 {v(t3)}, {v(t3)}, {v(t1)}, {s(94)}')
p(f'v_lshlrev_b32 {v(t3)}, 1, {v(t3)}')
p(f's_lshl_b32 {s(96)}, {s(sC)}, 2')
p(f's_add_u32 {s(96)}, {s(96)}, {s(sW)}')
p(f's_lshl_b32 {s(sSt)}, {s(96)}, 10')
p(f's_add_u32 {s(sSt)}, {s(sSt)}, {STATS:#x}')
p(f's_lshl_b32 {s(96)}, {s(sC)}, 10')
p(f's_add_u32 {s(sS2)}, {s(96)}, {FLAGS + 0x10000:#x}')
p(f's_lshl_b32 {s(96)}, {s(sW)}, 7')
p(f's_add_u32 {s(96)}, {s(96)}, 256')
p(f's_add_u32 {s(sS5)}, {s(96)}, {s(sS2)}')
p(f'v_lshlrev_b32 {v(vStl)}, 3, {v(n_)}')
p(f'v_lshl_add_u32 {v(vStl)}, {v(g_)}, 8, {v(vStl)}')
p(f's_lshl_b32 {s(96)}, {s(sB)}, 2')
p(f's_add_u32 {s(96)}, {s(96)}, {s(sW)}')
p(f's_mul_i32 {s(sZld)}, {s(96)}, 114688')
p(f's_add_u32 {s(sZld)}, {s(sZld)}, {Z_:#x}')
p(f's_and_b32 {s(96)}, {s(sC)}, 7')
p(f's_lshl_b32 {s(96)}, {s(96)}, 10')
p(f's_lshr_b32 {s(97)}, {s(sC)}, 3')
p(f's_lshl_b32 {s(97)}, {s(97)}, 8')
p(f's_add_u32 {s(96)}, {s(96)}, {s(97)}')
p(f's_add_u32 {s(sZst)}, {s(sZld)}, {s(96)}')
p(f'v_and_b32 {v(T)}, 1, {v(g_)}')
p(f'v_lshlrev_b32 {v(T)}, 14, {v(T)}')
p(f'v_and_b32 {v(T + 1)}, 2, {v(g_)}')
p(f'v_lshl_add_u32 {v(T)}, {v(T + 1)}, 12, {v(T)}')
p(f'v_lshl_add_u32 {v(vZst)}, {v(n_)}, 4, {v(T)}')
EI = 64
for k in range(4):
    p(f'v_mov_b32 {v(116 + k)}, -1')
p(f'v_mov_b32 {v(EI)}, -1')
p(f'v_mov_b32 {v(EI + 1)}, -1')
p(f'v_mov_b32 {v(EI + 2)}, {s(sLoc)}')
p(f'v_mov_b32 {v(EI + 3)}, 0')
p(f'v_and_b32 {v(EI + 4)}, 16, {v(vL16)}')
p(f'v_lshlrev_b32 {v(EI + 4)}, 13, {v(EI + 4)}')
p(f'v_and_b32 {v(EI + 5)}, 0x60, {v(vL16)}')
p(f'v_or_b32 {v(EI + 4)}, {v(EI + 4)}, {v(EI + 5)}')
def first_requests():
    if not OPT['min0']:
        first_loads()
    for r, off, size in SRDS[7:]:
        p(f's_load_dwordx2 {s(r, 2)}, s[0:1], {off}')
    p(f's_lshl_b32 {s(96)}, s2, 2')
    p(f's_add_u32 {s(sG0)}, {s(96)}, {s(sW)}')
    p(f's_cmp_eq_u32 {s(sG0)}, 3')
    p.begin('G0', 's_cbranch_scc0')
    p(f'v_lshlrev_b32 {v(EI + 6)}, 4, {v(vL16)}')
    for k in range(2):
        p(f's_mov_b32 {s(99)}, {FLAGS + 0x4000 * k:#x}')
        p(f'buffer_store_dword {v(EI + 3)}, {v(EI + 6)}, {s(R_WS, 4)}, {s(99)} offen sc1', tag='z')
    p.end()
    p(f's_and_b32 {s(96)}, {s(sB)}, 3')
    p(f's_lshl_b32 {s(96)}, {s(96)}, 3')
    p(f's_and_b32 {s(97)}, {s(sB)}, 4')
    p(f's_add_u32 {s(96)}, {s(96)}, {s(97)}')
    p(f's_add_u32 {s(96)}, {s(96)}, {s(sW)}')
    p(f's_lshl_b32 {s(96)}, {s(96)}, 2')
    p(f's_add_u32 {s(97)}, {s(sS2)}, 768')
    p(f's_add_u32 {s(sF2s)}, {s(96)}, {s(97)}')
    p(f's_lshl_b32 {s(96)}, {s(sW)}, 5')
    p(f's_add_u32 {s(sF2l)}, {s(96)}, {s(97)}')
    if OPT['wf2']:
        p('s_mov_b64 exec, 3')
        p(f'buffer_store_dword {v(EI + 3)}, {v(EI + 4)}, {s(R_WS, 4)}, {s(sF2s)} offen sc1', tag='pub')
    p('s_mov_b64 exec, 0xffff')
    for k in range(0 if OPT['noe'] & 1 else 3):
        p(f's_add_u32 {s(96)}, {s(sSt)}, {s(sB128)}')
        p(f's_add_u32 {s(96)}, {s(96)}, {k * 0x20000:#x}')
        p(f'buffer_store_dwordx2 {v(EI, 2)}, {v(vStl)}, {s(R_WS, 4)}, {s(96)} offen sc1', tag='pub')
    p('s_mov_b64 exec, 0xff')
    p(f's_add_u32 {s(97)}, {s(sS5)}, {s(sB4)}')
    if not OPT['noe'] & 2:
        p(f'buffer_store_dword {v(EI + 3)}, {v(EI + 4)}, {s(R_WS, 4)}, {s(97)} offen sc1', tag='pub')
    if_wave0()
    p('s_mov_b64 exec, 1')
    p(f's_add_u32 {s(96)}, {s(sS2)}, {s(sB4)}')
    p(f'buffer_store_dword {v(EI + 2)}, off, {s(R_WS, 4)}, {s(96)} offset:128 sc1', tag='pub')
    p('s_mov_b64 exec, 15')
    if not OPT['noe'] & 2:
        p(f'buffer_store_dword {v(EI + 3)}, {v(EI + 4)}, {s(R_WS, 4)}, {s(96)} offen sc1', tag='pub')
    p(f's_lshl_b32 {s(96)}, s2, 8')
    p(f's_add_u32 {s(96)}, {s(96)}, {FLAGS:#x}')
    p('s_cmp_lt_u32 s2, 128')
    p('s_cselect_b32 exec_lo, 2, 3')
    p(f'buffer_store_dword {v(EI + 3)}, {v(EI + 4)}, {s(R_WS, 4)}, {s(96)} offen sc1', tag='pub')
    p.end()
    p('s_mov_b64 exec, -1')
    p(f's_add_u32 {s(R_WL)}, {s(R_WS)}, {LBASE:#x}')
    p(f's_addc_u32 {s(R_WL + 1)}, {s(R_WS + 1)}, 0')
    p('s_waitcnt lgkmcnt(0)')
    if OPT['tlb']:
        p(f's_cmp_eq_u32 {s(sW)}, 1')
        p.begin('W1', 's_cbranch_scc0')
        p(f'v_lshlrev_b32 {v(EI + 6)}, 21, {v(n_)}')
        p('s_mov_b64 exec, 0xffff')
        if OPT['tlb'] & 1:
            p(f'buffer_load_dword {v(240)}, {v(EI + 6)}, {s(R_WL, 4)}, 0 offen sc1')
            p(f'buffer_load_dword {v(239)}, {v(EI + 6)}, {s(R_WS, 4)}, 0 offen sc1')
        if OPT['tlb'] & 2:
            p(f'buffer_load_dword {v(238)}, {v(EI + 6)}, {s(R_WSP, 4)}, 0 offen')
            p(f'buffer_load_dword {v(223)}, off, {s(R_DBG, 4)}, 0 offset:128 sc1')
        if OPT['tlb'] & 4:
            p(f'buffer_load_dword {v(222)}, off, {s(R_OUT, 4)}, 0 sc1')
        p('s_mov_b64 exec, -1')
        p.end()
    stamp('start')


def early_requests():
    global prep, wsp_first
    if OPT['early'] & 1:
        emit(prep)
        prep = []
    emit(wsp_first[:OPT['early'] >> 1])
    wsp_first = wsp_first[OPT['early'] >> 1:]


def hook(k):
    if OPT['pre'] == k:
        first_requests()
    if max(OPT['pre'], 2) == k:
        early_requests()


hook(1)
vPi, vPo, vPri, vPro, PK = 112, 114, 242, 243, 224
PST = SCR + 12288
p(f's_add_u32 {s(92)}, {s(92)}, L_table-L_pc')
p(f's_addc_u32 {s(93)}, {s(93)}, 0')
for k in range(2):
    p(f'v_add_u32 {v(T)}, {256 * k}, {v(tid)}')
    p(f'v_mul_u32_u24 {v(T + 1)}, 4682, {v(T)}')
    p(f'v_lshrrev_b32 {v(T + 1)}, 16, {v(T + 1)}')
    p(f'v_mul_u32_u24 {v(T + 2)}, 14, {v(T + 1)}')
    p(f'v_sub_u32 {v(T)}, {v(T)}, {v(T + 2)}')
    p(f'v_and_b32 {v(T + 2)}, 0x38, {v(T + 1)}')
    p(f'v_add_u32 {v(T + 1)}, {v(T + 1)}, {v(T + 2)}')
    p(f'v_mul_u32_u24 {v(T + 1)}, 3584, {v(T + 1)}')
    p(f'v_lshl_add_u32 {v(vPi + k)}, {v(T)}, 4, {v(T + 1)}')
p(f's_and_b32 {s(94)}, {s(sC)}, 7')
p(f's_lshl_b32 {s(94)}, {s(94)}, 6')
p(f's_and_b32 {s(95)}, {s(sC)}, 8')
p(f's_add_u32 {s(94)}, {s(94)}, {s(95)}')
p(f's_mul_i32 {s(94)}, {s(94)}, 3584')
p(f's_lshr_b32 {s(95)}, {s(sC)}, 4')
p(f's_mul_i32 {s(95)}, {s(95)}, 1792')
p(f's_add_u32 {s(94)}, {s(94)}, {s(95)}')
p(f's_mul_i32 {s(95)}, {s(sB)}, 224')
p(f's_add_u32 {s(76)}, {s(94)}, {s(95)}')
p(f'v_lshrrev_b32 {v(T)}, 3, {v(lane)}')
p(f'v_and_b32 {v(T + 1)}, 0x70, {v(vL16)}')
p(f'v_lshl_add_u32 {v(vPo)}, {v(T)}, 10, {v(T + 1)}')
p(f's_and_b32 {s(94)}, {s(sC)}, 7')
p(f's_mul_i32 {s(94)}, {s(94)}, 112')
p(f's_lshr_b32 {s(95)}, {s(sC)}, 3')
p(f's_lshl_b32 {s(95)}, {s(95)}, 5')
p(f's_add_u32 {s(94)}, {s(94)}, {s(95)}')
p(f's_sub_u32 {s(95)}, {s(sC)}, 24')
p(f's_mul_i32 {s(95)}, {s(95)}, 224')
p(f's_add_u32 {s(95)}, {s(95)}, 96')
p(f's_cmp_lt_u32 {s(sC)}, 24')
p(f's_cselect_b32 {s(94)}, {s(94)}, {s(95)}')
p(f's_cselect_b32 {s(95)}, 16, 112')
p(f's_lshr_b32 {s(96)}, {s(sW)}, 1')
p(f's_mul_i32 {s(95)}, {s(95)}, {s(96)}')
p(f's_add_u32 {s(94)}, {s(94)}, {s(95)}')
p(f's_and_b32 {s(95)}, {s(sW)}, 1')
p(f's_lshl_b32 {s(95)}, {s(95)}, 3')
p(f's_add_u32 {s(94)}, {s(94)}, {s(95)}')
p(f's_lshl_b32 {s(94)}, {s(94)}, 10')
p(f's_add_u32 {s(77)}, {s(94)}, {s(sB128)}')
p(f'v_lshrrev_b32 {v(T)}, 2, {v(n_)}')
p(f'v_lshl_add_u32 {v(T)}, {v(g_)}, 3, {v(T)}')
p(f'v_mul_u32_u24 {v(T)}, 224, {v(T)}')
p(f'v_and_b32 {v(T + 1)}, 3, {v(lane)}')
p(f'v_lshl_add_u32 {v(T)}, {v(T + 1)}, 3, {v(T)}')
p(f's_lshl_b32 {s(94)}, {s(sW)}, 5')
p(f's_add_u32 {s(94)}, {s(94)}, {PST}')
p(f'v_add_u32 {v(vPri)}, {s(94)}, {v(T)}')
p(f's_lshl_b32 {s(94)}, {s(sW)}, 3')
p(f's_add_u32 {s(94)}, {s(94)}, {PST + 8192}')
p(f'v_lshl_add_u32 {v(vPro)}, {v(lane)}, 5, {s(94)}')
p(f'v_lshrrev_b32 {v(T)}, 3, {v(lane)}')
p(f'v_lshlrev_b32 {v(T)}, 18, {v(T)}')
p(f'v_and_b32 {v(T + 1)}, 7, {v(lane)}')
p(f'v_xor_b32 {v(T + 1)}, {v(T + 1)}, {v(g_)}')
p(f'v_lshl_add_u32 {v(T)}, {v(T + 1)}, 4, {v(T)}')
p(f's_lshl_b32 {s(94)}, {s(sC)}, 12')
p(f's_add_u32 {s(100)}, {s(sW)}, {s(sB)}')
p(f's_and_b32 {s(100)}, {s(100)}, 3')
p(f's_lshl_b32 {s(95)}, {s(100)}, 10')
p(f's_add_u32 {s(94)}, {s(94)}, {s(95)}')
p(f'v_add_u32 {v(vWspA)}, {s(94)}, {v(T)}')
p(f'v_xor_b32 {v(T)}, 64, {v(vWspA)}')
p(f'v_add_u32 {v(vWspA + 1)}, 0x20000, {v(T)}')
p(f's_mul_i32 {s(sWsp)}, {s(sW)}, 24576')
p(f'v_lshrrev_b32 {v(T)}, 1, {v(n_)}')
p(f'v_xor_b32 {v(T)}, {v(T)}, {v(g_)}')
p(f'v_lshlrev_b32 {v(T)}, 4, {v(T)}')
p(f'v_lshl_add_u32 {v(T)}, {v(n_)}, 7, {v(T)}')
p(f's_add_u32 {s(94)}, {s(sWsp)}, 1024')
p(f'v_add_u32 {v(vWspR)}, {s(94)}, {v(T)}')
p(f'v_xor_b32 {v(vWspR + 1)}, 64, {v(vWspR)}')
p(f's_lshr_b32 {s(94)}, {s(sB)}, 2')
p(f's_lshl_b32 {s(95)}, {s(sW)}, 21')
for k in range(2):
    p(f's_lshl_b32 {s(96)}, {s(94)}, 13')
    p(f's_add_u32 {s(78 + k)}, {s(96)}, {s(sWsp)}')
    p(f's_lshl_b32 {s(96)}, {s(94)}, 9')
    p(f's_add_u32 {s(80 + k)}, {s(96)}, {s(95)}')
    p(f's_xor_b32 {s(94)}, {s(94)}, 1')
p(f's_lshl_b32 {s(82)}, {s(sW)}, 10')
prep = [[(f's_add_u32 m0, {s(82)}, {PST}', None), (f'buffer_load_dwordx4 {v(vPi)}, {s(R_WIN, 4)}, {s(76)} offen lds', 'prep')],
        [(f's_add_u32 m0, {s(82)}, {PST + 4096}', None), (f'buffer_load_dwordx4 {v(vPi + 1)}, {s(R_WIN, 4)}, {s(76)} offen lds', 'prep')],
        [(f's_add_u32 m0, {s(82)}, {PST + 8192}', None), (f'buffer_load_dwordx4 {v(vPo)}, {s(R_WOUT, 4)}, {s(77)} offen lds', 'prep')],
        [(f'buffer_load_ushort {v(vBsp)}, {v(t3)}, {s(R_BSP, 4)}, 0 offen', None)]]
wsp_first = wsp_dma_ops(0)
hook(2)
p(f's_mul_i32 {s(94)}, {s(sB)}, 229376')
p(f's_mul_i32 {s(95)}, {s(sC)}, 7168')
p(f's_add_u32 {s(94)}, {s(94)}, {s(95)}')
p(f's_lshl_b32 {s(95)}, {s(sW)}, 10')
p(f's_add_u32 {s(94)}, {s(94)}, {s(95)}')
p(f's_mov_b32 {s(83)}, {s(94)}')
p(f's_add_u32 {s(94)}, {s(94)}, 4096')
p(f's_cmp_lt_u32 {s(sW)}, 3')
p(f's_cselect_b32 {s(94)}, {s(94)}, {LBASE:#x}')
p(f's_mov_b32 {s(84)}, {s(94)}')
p(f's_mul_i32 {s(94)}, {s(sB)}, 114688')
p(f's_lshl_b32 {s(96)}, {s(sC)}, 12')
p(f's_add_u32 {s(94)}, {s(94)}, {s(96)}')
p(f's_add_u32 {s(94)}, {s(94)}, {s(95)}')
p(f's_add_u32 {s(94)}, {s(94)}, {WO:#x}')
p(f's_cmp_lt_u32 {s(sC)}, 28')
p(f's_cselect_b32 {s(94)}, {s(94)}, {LBASE:#x}')
p(f's_mov_b32 {s(85)}, {s(94)}')
p(f's_lshl_b32 {s(sVst)}, {s(sC)}, 11')
p(f's_lshl_b32 {s(96)}, {s(sB)}, 8')
p(f's_add_u32 {s(sVst)}, {s(sVst)}, {s(96)}')
p(f'v_lshlrev_b32 {v(T + 3)}, 17, {v(g_)}')
p(f'v_lshl_add_u32 {v(T + 3)}, {v(n_)}, 4, {v(T + 3)}')
p(f's_lshl_b32 {s(96)}, {s(sW)}, 19')
p(f'v_add_u32 {v(vVst)}, {s(96)}, {v(T + 3)}')
p(f'v_mul_u32_u24 {v(T + 3)}, 160, {v(n_)}')
p(f'v_lshl_add_u32 {v(T + 3)}, {v(g_)}, 3, {v(T + 3)}')
p(f's_mul_i32 {s(96)}, {s(sW)}, 2560')
p(f's_add_u32 {s(96)}, {s(96)}, {SCR}')
p(f'v_add_u32 {v(vHw2)}, {s(96)}, {v(T + 3)}')
p(f'v_lshrrev_b32 {v(T + 3)}, 2, {v(lane)}')
p(f'v_mul_u32_u24 {v(T + 3)}, 160, {v(T + 3)}')
p(f'v_and_b32 {v(T + 2)}, 3, {v(lane)}')
p(f'v_lshl_add_u32 {v(T + 3)}, {v(T + 2)}, 3, {v(T + 3)}')
p(f'v_add_u32 {v(vHw)}, {s(96)}, {v(T + 3)}')
p(f'v_add_u32 {v(vHr)}, {SCR}, {v(T + 3)}')


def setup_a():
    p(f's_lshr_b32 {s(94)}, {s(sB)}, 2')
    p(f's_and_b32 {s(95)}, {s(sB)}, 3')
    p(f's_sub_u32 {s(96)}, 32, {s(sC)}')
    p(f's_and_b32 {s(96)}, {s(96)}, 31')
    p(f's_cmp_eq_u32 {s(94)}, 0')
    p(f's_cselect_b32 {s(96)}, {s(sC)}, {s(96)}')
    p(f's_lshl_b32 {s(sVld)}, {s(96)}, 16')
    p(f's_lshl_b32 {s(sH)}, {s(sC)}, 16')
    p(f's_lshl_b32 {s(96)}, {s(95)}, 14')
    p(f's_lshl_b32 {s(97)}, {s(94)}, 7')
    p(f's_add_u32 {s(96)}, {s(96)}, {s(97)}')
    p(f's_add_u32 {s(sK2)}, {s(sH)}, {s(96)}')
    p(f's_lshl_b32 {s(96)}, {s(sW)}, 14')
    p(f's_add_u32 {s(sH)}, {s(sH)}, {s(96)}')
    p(f's_mov_b32 {s(sXb)}, 0')
    p(f's_mov_b32 {s(sXo)}, 0x10000')
    p(f's_lshl_b32 {s(96)}, {s(sB)}, 2')
    p(f's_add_u32 {s(96)}, {s(96)}, {s(100)}')
    p(f's_mul_i32 {s(sZld)}, {s(96)}, 114688')
    p(f's_add_u32 {s(sZld)}, {s(sZld)}, {Z_:#x}')
    p(f's_lshl_b32 {s(96)}, {s(sC)}, 2')
    p(f's_add_u32 {s(96)}, {s(96)}, {s(sW)}')
    p(f's_lshl_b32 {s(sUld)}, {s(96)}, 14')
    p(f's_add_u32 {s(sUld)}, {s(sUld)}, {H_ if OPT["locd"] & 4 else U_:#x}')
    p(f's_lshl_b32 {s(97)}, {s(sB)}, 10')
    p(f's_add_u32 {s(sUst)}, {s(sUld)}, {s(97)}')
    p(f's_lshl_b32 {s(sDm)}, {s(sW)}, 12')
    p(f's_mul_i32 {s(sWI)}, {s(sB)}, 229376')
    p(f's_add_u32 {s(sWI)}, {s(sWI)}, {s(sDm)}')
    p(f's_mul_i32 {s(sWO)}, {s(sB)}, 114688')
    p(f's_add_u32 {s(sWO)}, {s(sWO)}, {s(sDm)}')
    p(f's_add_u32 {s(sWO)}, {s(sWO)}, {WO:#x}')
    p(f's_and_b32 {s(96)}, s2, 15')
    p(f's_lshl_b32 {s(96)}, {s(96)}, 8')
    p(f's_add_u32 {s(sArr)}, {s(96)}, {FLAGS:#x}')
    p(f's_and_b32 {s(96)}, s2, 7')
    p(f's_lshl_b32 {s(96)}, {s(96)}, 12')
    p(f's_add_u32 {s(sRep)}, {s(96)}, {FLAGS:#x}')
    p(f's_lshl_b32 {s(97)}, {s(sB)}, 9')
    p(f's_add_u32 {s(97)}, {s(97)}, {FLAGS + 0x8000:#x}')
    p(f's_add_u32 {s(sP4)}, {s(96)}, {s(97)}')
    p(f's_mov_b32 {s(sS4)}, {s(97)}')
    p(f's_mov_b32 {s(sLocH)}, 0')
    p(f'v_lshlrev_b32 {v(vL8)}, 3, {v(lane)}')
    p(f'v_add_u32 {v(vL16hi)}, 0x10000, {v(vL16)}')
    p(f'v_add_u32 {v(vL16h2)}, 0x20000, {v(vL16)}')
    p(f'v_lshlrev_b32 {v(vPoll)}, 8, {v(n_)}')
    p(f'v_and_b32 {v(vArr)}, 7, {v(lane)}')
    p(f'v_lshlrev_b32 {v(vGrp)}, 2, {v(vArr)}')
    p(f'v_lshlrev_b32 {v(vArr)}, 12, {v(vArr)}')
    p(f'v_mov_b32 {v(vGK)}, {f2u(-2.302208198144325 * 0.044715):#x}')
    p(f'v_mov_b32 {v(vGK + 1)}, {f2u(-2.302208198144325):#x}')
    p(f'v_lshrrev_b32 {v(T)}, 3, {v(lane)}')
    p(f'v_and_b32 {v(T + 4)}, 7, {v(lane)}')
    p(f'v_lshlrev_b32 {v(T + 4)}, 4, {v(T + 4)}')
    p(f'v_lshl_add_u32 {v(T + 2)}, {v(T)}, 8, {v(T + 4)}')
    p(f's_lshl_b32 {s(96)}, {s(sW)}, 12')
    p(f'v_add_u32 {v(vK2)}, {s(96)}, {v(T + 2)}')
    p(f'v_and_b32 {v(T)}, 1, {v(T)}')
    p(f'v_lshl_add_u32 {v(T)}, {v(T)}, 4, {v(g_)}')
    p(f'v_mul_u32_u24 {v(T)}, 144, {v(T)}')
    p(f's_lshr_b32 {s(96)}, {s(sW)}, 1')
    p(f's_mul_i32 {s(96)}, {s(96)}, 4608')
    p(f's_and_b32 {s(97)}, {s(sW)}, 1')
    p(f's_mul_i32 {s(97)}, {s(97)}, 1152')
    p(f's_add_u32 {s(96)}, {s(96)}, {s(97)}')
    p(f's_add_u32 {s(96)}, {s(96)}, {SCR}')
    p(f'v_add3_u32 {v(vTr)}, {v(T)}, {v(T + 4)}, {s(96)}')
    p(f'v_lshrrev_b32 {v(T)}, 5, {v(lane)}')
    p(f'v_and_b32 {v(T + 1)}, 1, {v(g_)}')
    p(f'v_lshl_add_u32 {v(T + 2)}, {v(T)}, 4, {v(n_)}')
    p(f'v_mul_u32_u24 {v(T + 2)}, 144, {v(T + 2)}')
    p(f'v_lshl_add_u32 {v(T + 2)}, {v(T + 1)}, 4, {v(T + 2)}')
    p(f's_lshl_b32 {s(96)}, {s(sW)}, 5')
    p(f's_add_u32 {s(97)}, {s(96)}, {SCR}')
    p(f'v_add_u32 {v(vTw)}, {s(97)}, {v(T + 2)}')
    p(f'v_and_b32 {v(T + 2)}, 1, {v(lane)}')
    p(f'v_lshlrev_b32 {v(T + 2)}, 5, {v(T + 2)}')
    p(f'v_and_b32 {v(T + 3)}, 2, {v(lane)}')
    p(f'v_lshl_add_u32 {v(T + 2)}, {v(T + 3)}, 3, {v(T + 2)}')
    p(f'v_lshrrev_b32 {v(T + 3)}, 2, {v(lane)}')
    p(f'v_add_u32 {v(T + 2)}, {v(T + 2)}, {v(T + 3)}')
    p(f'v_mul_u32_u24 {v(T + 2)}, 144, {v(T + 2)}')
    p(f'v_add_u32 {v(vXw)}, {s(97)}, {v(T + 2)}')
    p(f'v_add_u32 {v(vXw + 1)}, 16, {v(vXw)}')
    p(f's_lshl_b32 {s(96)}, {s(95)}, 4')
    p(f's_add_u32 {s(96)}, {s(96)}, {s(94)}')
    p(f's_lshl_b32 {s(96)}, {s(96)}, 5')
    p(f's_add_u32 {s(98)}, {s(96)}, {s(sC)}')
    p(f's_lshl_b32 {s(96)}, {s(sW)}, 7')
    p(f's_add_u32 {s(96)}, {s(96)}, {s(98)}')
    p(f's_lshl_b32 {s(96)}, {s(96)}, 10')
    p(f'v_add_u32 {v(vXr)}, {s(96)}, {v(vL16)}')
    p(f'v_mul_u32_u24 {v(T + 3)}, 1040, {v(T + 1)}')
    p(f'v_lshl_add_u32 {v(T + 3)}, {v(T)}, 8, {v(T + 3)}')
    p(f'v_lshl_add_u32 {v(T + 3)}, {v(n_)}, 3, {v(T + 3)}')
    p(f's_mul_i32 {s(96)}, {s(sW)}, 2080')
    p(f's_add_u32 {s(96)}, {s(96)}, {SCR}')
    p(f'v_add_u32 {v(vUr)}, {s(96)}, {v(T + 3)}')
    p(f'v_mul_u32_u24 {v(T + 3)}, 1040, {v(n_)}')
    p(f'v_lshl_add_u32 {v(T + 3)}, {v(g_)}, 5, {v(T + 3)}')
    p(f's_lshl_b32 {s(96)}, {s(sW)}, 8')
    p(f's_add_u32 {s(96)}, {s(96)}, {SCR}')
    p(f'v_add_u32 {v(vUw)}, {s(96)}, {v(T + 3)}')
    p(f'v_lshlrev_b32 {v(T + 3)}, 13, {v(g_)}')
    p(f'v_lshl_add_u32 {v(T + 3)}, {v(n_)}, 4, {v(T + 3)}')
    p(f's_lshl_b32 {s(96)}, {s(sW)}, 9')
    p(f'v_add_u32 {v(vVld)}, {s(96)}, {v(T + 3)}')
    for q in range(1, 5):
        p(f's_add_u32 {s(96)}, {s(sW)}, {q}')
        p(f's_and_b32 {s(96)}, {s(96)}, 3')
        p(f's_mul_i32 {s(96)}, {s(96)}, 3072')
        p(f's_add_u32 {s(96)}, {s(96)}, {SCR + (1024 * (q - 1) if q < 4 else 0)}')
        p(f'v_add_u32 {v(vRed + q - 1)}, {s(96)}, {v(vL16)}')


def setup_b():
    p(f'v_and_b32 {v(T)}, 7, {v(n_)}')
    p(f'v_lshlrev_b32 {v(T)}, 6, {v(T)}')
    p(f'v_add_u32 {v(T)}, {s(98)}, {v(T)}')
    p(f'v_lshlrev_b32 {v(T + 1)}, 2, {v(g_)}')
    p(f'v_mul_u32_u24 {v(T + 1)}, {v(T + 1)}, {v(T)}')
    p(f'v_lshrrev_b32 {v(T + 2)}, 3, {v(n_)}')
    p(f'v_lshl_add_u32 {v(T + 1)}, {v(T + 2)}, 9, {v(T + 1)}')
    p(f's_cmp_eq_u32 {s(94)}, 0')
    p(f's_cselect_b32 {s(73)}, 1.0, -1.0')
    p(f's_cselect_b32 {s(74)}, 0, 1.0')
    p(f's_cselect_b32 {s(72)}, 1.0, 0')
    p(f's_cmp_eq_u32 {s(sC)}, 0')
    p(f's_cselect_b32 {s(72)}, {s(72)}, 1.0')
    p(f's_cselect_b32 {s(73)}, 0, {s(73)}')
    p(f's_cselect_b32 {s(74)}, {s(74)}, 0')
    for k in range(8):
        cp = 16 * (k >> 2) + (k & 3)
        p(f'v_mad_u32_u24 {v(T + 2)}, {v(T)}, {cp}, {v(T + 1)}')
        p(f'v_and_b32 {v(T + 2)}, 0x7ff, {v(T + 2)}')
        p(f'v_cvt_f32_u32 {v(T + 2)}, {v(T + 2)}')
        p(f'v_mul_f32 {v(T + 2)}, {f2u(1.0 / 2048):#x}, {v(T + 2)}')
        p(f'v_cos_f32 {v(T + 3)}, {v(T + 2)}')
        p(f'v_sin_f32 {v(T + 4)}, {v(T + 2)}')
        p(f'v_mul_f32 {v(T + 5)}, {s(74)}, {v(T + 3)}')
        p(f'v_mul_f32 {v(T + 3)}, {s(72)}, {v(T + 3)}')
        p(f'v_fma_f32 {v(T + 4)}, {s(73)}, {v(T + 4)}, {v(T + 5)}')
        p(f'v_cvt_pk_bf16_f32 {v(vC2 + k)}, {v(T + 3)}, {v(T + 4)}')


def late_setup():
    global lane, n_, g_
    lane, n_, g_ = 120, 121, 122
    if OPT['late']:
        p(f'v_lshrrev_b32 {v(lane)}, 4, {v(vL16)}')
        p(f'v_and_b32 {v(n_)}, 15, {v(lane)}')
        p(f'v_lshrrev_b32 {v(g_)}, 4, {v(lane)}')
    if OPT['late'] == 2:
        setup_a()
    if OPT['late']:
        setup_b()


assert OPT['pre'] <= 2
if OPT['late'] < 2:
    setup_a()
if OPT['late'] < 1:
    setup_b()
p('s_mov_b32 s0, s86')
p('s_mov_b32 s1, s87')
sF2s, sF2l = 0, 1
stamp('setup')
if OPT['wfirst'] == 1:
    emit(wsp_first)
    wsp_first = []
for i in range(OPT['x1'], OPT['xa']):
    if OPT['wfirst'] == 2 and wsp_first:
        emit([wsp_first.pop(0)])
    x_loads(i, i + 1)
if OPT['xa'] == 8:
    m1_load(108)
if OPT['ctpos'] == 0:
    ct_dma(110)
SCHED = OPT['sched'].split('/')
FIX = OPT['fix'].split('/')
WSR = (160, 192)
a2a_load = [(f'buffer_load_dword {v(241)}, {v(vPoll)}, {s(R_WS, 4)}, {s(sRep)} offen sc1', None)]


def wsp_run(items):
    i = 0
    while i < len(items):
        if items[i] == 'q':
            if_wave0()
            emit([a2a_load])
            p.end()
            i += 1
            continue
        k = int(items[i + 1])
        if items[i] == 'd':
            p.wait_lgkm(f'wr{k - 3}')
            wsp_dma(k)
        elif items[i] == 'r':
            wsp_read(k, WSR[k & 1])
        elif items[i] == 'a':
            wsp_park(k)
        else:
            wsp_perm(k, WSR[k & 1])
        if OPT['fine'] == 2:
            stamp('*' + items[i:i + 2])
        i += 2


zpois = [(f'buffer_store_dwordx4 {v(116, 4)}, {v(vZst)}, {s(R_WL, 4)}, {s(sZst)} offen sc1', 'pub')]
bg = prep + wsp_first
if OPT['zs']:
    bg = [zpois] + bg if OPT['zp0'] == 0 else bg + [zpois]
for ch in SCHED[0]:
    bg += wsp_dma_ops(int(ch))
for k in range(4):
    p(f'v_mov_b32 {v(T + 2 + k)}, 0')
p.bg = bg
xnext = OPT['xa']
if xnext == 8:
    p.bg_on(OPT['wspev'])
for i in range(64):
    if xnext < 8 and i % OPT['xe'] == OPT['xe'] - 1:
        x_loads(xnext, xnext + 1)
        xnext += 1
        if xnext == 8:
            m1_load(108)
            p.bg_on(OPT['wspev'])
    p(f'v_dot2c_f32_bf16 {v(T + 2 + (i & 1))}, {s(sOnes)}, {v(XR + i)}')
    p(f'v_dot2c_f32_bf16 {v(T + 4 + (i & 1))}, {v(XR + i)}, {v(XR + i)}')
    if i == 7:
        unpack(XR, 8, XV)
    if i == OPT['ann']:
        p.bg_on(0)
        p(f's_cmp_eq_u32 {s(sG0)}, 3')
        p.begin('G0', 's_cbranch_scc0')
        p.wait_vm('z')
        p(f'v_mov_b32 {v(EI)}, 1')
        p('s_mov_b64 exec, 1')
        p(f'buffer_store_dword {v(EI)}, off, {s(R_DBG, 4)}, 0 sc1')
        p('s_mov_b64 exec, -1')
        p.end()
        p.bg_on(OPT['wspev'] if xnext == 8 else 0)
p.bg_on(0)
p.bg_emit()
p(f'v_add_f32 {v(T)}, {v(T + 2)}, {v(T + 3)}')
p(f'v_add_f32 {v(T + 1)}, {v(T + 4)}, {v(T + 5)}')
for qp in ('[1,0,3,2]', '[2,3,0,1]'):
    for k in range(2):
        p(f'v_add_f32_dpp {v(T + k)}, {v(T + k)}, {v(T + k)} quad_perm:{qp} row_mask:0xf bank_mask:0xf')
dbg_load = [(f'buffer_load_dword {v(241)}, off, {s(R_DBG, 4)}, 0 sc1', None)]
assert not SCHED[1]
wsp_run(SCHED[1])

p.section('body')
for _ in range(OPT['algn']):
    p('s_nop 0')
p('L_layer:')
stamp('T')
HP, AF, D1, VO = 56, 72, 104, 56
finish_stats(T, 512)
for i in range(0, 16, 2):
    p(f'v_pk_fma_f32 {v(XV + i, 2)}, {v(XV + i, 2)}, {v(T, 2)}, {v(T, 2)} op_sel:[0,0,1] op_sel_hi:[1,0,1]')
for t in range(4):
    for k in range(2):
        p(f'v_cvt_pk_bf16_f32 {v(HP + 2 * t + k)}, {v(XV + 8 * k + t)}, {v(XV + 8 * k + 4 + t)}')
    p(f'ds_write_b64 {v(vHw)}, {v(HP + 2 * t, 2)} offset:{32 * t}', tag='hw')
p(f's_add_u32 {s(sT + 1)}, {s(sVst)}, 0x10000')
p.wait_lgkm('hw')
p.wait_vm('prep')
p('s_barrier')
for ks in range(2):
    for tile in range(4):
        for half in range(2):
            p(f'ds_read_b64_tr_b16 {v(AF + 16 * ks + 4 * tile + 2 * half, 2)}, {v(vHr)} offset:{(32 * ks + 16 * half) * 160 + 32 * tile}')
if_layer(0)
for k in range(2):
    for half in range(2):
        p(f'ds_read_b64_tr_b16 {v(PK + 4 * k + 2 * half, 2)}, {v(vPri)} offset:{128 * k + 896 * half}')
for half in range(2):
    p(f'ds_read_b64_tr_b16 {v(PK + 8 + 2 * half, 2)}, {v(vPro)} offset:{2048 * half}')
p.end()
for ks in range(2):
    for tile in range(4):
        d = D1 + 4 * tile
        p(f'{M16} {v(d, 4)}, {v(M1 + 4 * ks, 4)}, {v(AF + 16 * ks + 4 * tile, 4)}, {v(d, 4) if ks else 0}')
if_layer(0)
p(f'v_lshlrev_b32 {v(vBsp)}, 16, {v(vBsp)}')
p(f'buffer_store_dwordx4 {v(PK, 4)}, {v(vL16)}, {s(R_WS, 4)}, {s(83)} offen sc1', tag='pub')
p(f'buffer_store_dwordx4 {v(PK + 4, 4)}, {v(vL16)}, {s(R_WS, 4)}, {s(84)} offen sc1', tag='pub')
p(f'buffer_store_dwordx4 {v(PK + 8, 4)}, {v(vL16)}, {s(R_WS, 4)}, {s(85)} offen sc1', tag='pub')
p.end()
for jj in range(2):
    for t in range(4):
        p(f'v_cvt_pk_bf16_f32 {v(VO + 4 * jj + t)}, {v(D1 + 4 * t + 2 * jj)}, {v(D1 + 4 * t + 2 * jj + 1)}')
    p(f'buffer_store_dwordx4 {v(VO + 4 * jj, 4)}, {v(vVst)}, {s(R_WL, 4)}, {s(sT + 1 if jj else sVst)} offen sc1', tag='pub')
stamp('Vst')
if OPT['ctpos'] == 1:
    ct_dma(T + 6)
if_layer(0)
if_wave0()
emit([dbg_load])
p.end()
wsp_run(SCHED[2])
late_setup()
if_wave0()
retry_until(dbg_load, lambda: p(f'v_cmp_ne_u32 vcc, 1, {v(241)}'))
p.end()
p.end()
wz2 = w_dma_ops(sWI, 114688, LOC_Z2, 'wz2')
CMN = [int(ch, 36) for ch in OPT['cmn']]
assert sum(CMN) % 4 == 0 and sum(CMN) + OPT['wzp1'] + OPT['wzp2'] + OPT['wzp3'] == 28
wz2_both, wz2 = wz2[:sum(CMN)], wz2[sum(CMN):]
P1, P2, P3 = OPT['wzp1'], OPT['wzp1'] + OPT['wzp2'], OPT['wzp1'] + OPT['wzp2'] + OPT['wzp3']
assert P1 % 4 == 0 and OPT['wzp0'] % 4 == 0
if (OPT['ctp'] == 2 and OPT['ctpos'] == 0) or P2 > P1:
    if_layer(1)
    if OPT['ctp'] == 2 and OPT['ctpos'] == 0:
        ct_dma(T + 6)
    emit(wz2[P1:P2])
    p.end()
stamp('init')
if OPT['vs']:
    if_layer(0)
    p.wait_vm('pub')
    p.wait_vm('ct')
    arrive(sArr, 8)
    p.end()
    if_layer(1)
    p.wait_vm('x2')
    p.wait_vm('ct')
    arrive_group(sS2, 32)
    p.end()
else:
    p.wait_vm('pub')
    p.wait_vm('ct')
    arrive(sArr, 8)
poison(5, 96)
code_prefetch(1, 'L_k2')
stamp('arr1')
FA, TW, FB, VR, D2, UP, XRES, Y = 40, 64, 80, 96, 160, 192, 224, 208
for k in range(14):
    p(f'ds_read_b128 {v(FA + 4 * k, 4)}, {v(vL16hi)} offset:{CT - 65536 + k * 1024}')
if_layer(0)
wsp_run(SCHED[3])
if_wave0()
retry_until(a2a_load, lambda: p(f'v_cmp_ne_u32 vcc, 16, {v(241)}'))
p.end()
p('s_barrier')
p.end()
for k in range(4):
    p(f's_add_u32 {s(sT + 4 + k)}, {s(sVld)}, {(16 * (k >> 1) + 2 * (k & 1)) * 2048:#x}')
if_layer(1)
emit(wz2[P2:P3])
x2_load = [(f'buffer_load_dword {v(248)}, {v(vGrp)}, {s(R_WS, 4)}, {s(sS2)} offen offset:32{PG}', None)]
if OPT['vs']:
    emit([x2_load])
else:
    poll(sRep, vPoll, 16)
p.end()
assert not SCHED[8:]


def l0_dma(n):
    emit([wz2_both.pop(0) for _ in range(CMN.pop(0))])


stamp('S1')
p('L_k2:')
vl = [(f'buffer_load_dwordx4 {v(VR + 16 * gk + 4 * ii, 4)}, {v(vVld)}, {s(R_WL, 4)}, {s(sT + 4 + 2 * (gk & 1) + (ii >> 1))} '
       f'offen offset:{(ii & 1) * 2048 + (gk >> 1) * 256} sc1', None) for gk in range(4) for ii in range(4)]
for gk in range(4):
    emit([vl[4 * gk:4 * gk + 4]])
    if gk < 3 and SCHED[4 + gk]:
        if_layer(0)
        wsp_run(SCHED[4 + gk])
        p.end()
if OPT['vs']:
    if_layer(1)
    retry_until(x2_load, lambda: p(f'v_cmp_ne_u32 vcc, 1, {v(248)}'))
    p.end()
xl = [(f'buffer_load_dwordx4 {v(XRES + 4 * k, 4)}, {v(vXr)}, {s(R_X, 4)}, {s((sXb, sXo)[k])} offen{LG}', None) for k in range(2)]
emit([xl])
if_layer(0)
p(f'buffer_load_dword {v(248)}, {v(vGrp)}, {s(R_WS, 4)}, {s(sS2)} offen offset:128 sc1')
wsp_run(SCHED[7])
if not SCHED[8:]:
    p('s_waitcnt lgkmcnt(0)')
    p('s_barrier')
p.end()
l0_dma(0)
stamp('Vld')


def u_pack(hi):
    up = (192, 200)[hi]
    for r in range(4):
        for lp in range(2):
            p(f'v_cvt_pk_bf16_f32 {v(up + 2 * r + lp)}, {v(D2 + 16 * hi + 8 * lp + r)}, {v(D2 + 16 * hi + 8 * lp + 4 + r)}')
        if r & 1:
            p(f'ds_write_b128 {v(vUw)}, {v(up + 2 * r - 2, 4)} offset:{128 * hi + 8 * (r - 1)}')


for hi in range(2):
    for ks in range(2):
        if hi and ks:
            u_pack(0)
        r = VR + 32 * hi + 16 * ks
        if OPT['vs']:
            def v_test(r=r):
                p(f'v_max3_u32 {v(T)}, {v(r + 3)}, {v(r + 7)}, {v(r + 11)}')
                p(f'v_max_u32 {v(T)}, {v(T)}, {v(r + 15)}')
                p(f'v_cmp_eq_u32 vcc, -1, {v(T)}')
            gk = 2 * hi + ks
            if OPT['vs'] == 1:
                retry_until(vl[4 * gk:], v_test)
            else:
                retry_until(vl[4 * gk:4 * gk + 4], v_test, after=vl[4 * gk + 4:] + xl if gk < 3 else None)
        for i in range(4):
            for j in range(i + 1, 4):
                p(f'v_swap_b32 {v(r + 4 * i + j)}, {v(r + 4 * j + i)}')
        for lo in range(4):
            d = D2 + 16 * hi + 4 * lo
            p(f'{M16} {v(d, 4)}, {v(r + 4 * lo, 4)}, {v(vC2 + 4 * ks, 4)}, {v(d, 4) if ks else 0}')
fine('st2')
l0_dma(4)
u_pack(1)
for k in range(2):
    p(f'ds_write_b128 {v(vXw + k)}, {v(XRES + 4 * k, 4)} offset:16640')
p('s_waitcnt lgkmcnt(0)')
p('s_barrier')
fine('ubar')
poison(4, 176)
UA, DR, DI, TT, PF = 96, 112, 128, 144, 160
for ri in range(2):
    for dh in range(2):
        for half in range(2):
            p(f'ds_read_b64_tr_b16 {v(UA + 8 * ri + 4 * dh + 2 * half, 2)}, {v(vUr)} offset:{ri * 8320 + dh * 512 + half * 128}')
for o in range(2):
    p(f'ds_read_b128 {v(XRES + 4 * o, 4)}, {v(vTw)} offset:{16640 + 4608 * o}')
l0_dma(4)
for ri in range(2):
    for dh in range(2):
        first = ri == 0 and dh == 0
        fr = FA + 4 * ((2 if ri else 0) + dh)
        fi = FA + 4 * ((0 if ri else 4) + dh)
        p(f'{M32} {v(DR, 16)}, {v(UA + 8 * ri + 4 * dh, 4)}, {v(fr, 4)}, {0 if first else v(DR, 16)}')
        p(f'{M32} {v(DI, 16)}, {v(UA + 8 * ri + 4 * dh, 4)}, {v(fi, 4)}, {0 if first else v(DI, 16)}')
fine('stA')
unpack(XRES, 8, Y)
fine('xres')
l0_dma(4)
for row in range(2):
    for k in range(0, 8, 2):
        r = 8 * row + k
        p(f'v_pk_mul_f32 {v(TT + k, 2)}, {v(DI + r, 2)}, {v(TW + 8 + k, 2)}')
        p(f'v_pk_mul_f32 {v(TT + 8 + k, 2)}, {v(DR + r, 2)}, {v(TW + 8 + k, 2)}')
    for k in range(0, 8, 2):
        r = 8 * row + k
        p(f'v_pk_fma_f32 {v(TT + k, 2)}, {v(DR + r, 2)}, {v(TW + k, 2)}, {v(TT + k, 2)}')
        p(f'v_pk_fma_f32 {v(TT + 8 + k, 2)}, {v(DI + r, 2)}, {v(TW + k, 2)}, {v(TT + 8 + k, 2)} neg_lo:[0,0,1] neg_hi:[0,0,1]')
    for k in range(8):
        p(f'v_cvt_pk_bf16_f32 {v(PF + 8 * row + k)}, {v(TT + 2 * k)}, {v(TT + 2 * k + 1)}')
for k in range(4):
    p(f'{M32} {v(Y, 16)}, {v(PF + 4 * k, 4)}, {v(FB + 4 * k, 4)}, {v(Y, 16)}')
fine('stB')
XO, HO = 224, 232
l0_dma(4)
if_layer(0)
p(f'v_cmp_ne_u32 vcc, {s(sLoc)}, {v(248)}')
p('s_cmp_eq_u64 vcc, 0')
p(f's_cselect_b32 {s(sLoc)}, {OPT["loc"]}, 0')
p(f's_mov_b32 {s(sLocU)}, {s(sLoc)}')
p.end()
local_stats(Y, 16, T)
p(f'v_permlane32_swap_b32 {v(T)}, {v(T + 1)}')
p(f'v_add_f32 {v(T)}, {v(T)}, {v(T + 1)}')
for k, sh in enumerate((8, 4, 2, 1)):
    p(f'v_cvt_pk_bf16_f32 {v(XO + 2 * k)}, {v(Y + 4 * k)}, {v(Y + 4 * k + 1)}')
    p(f'v_cvt_pk_bf16_f32 {v(XO + 2 * k + 1)}, {v(Y + 4 * k + 2)}, {v(Y + 4 * k + 3)}')
    p(f'v_add_f32_dpp {v(T)}, {v(T)}, {v(T)} row_ror:{sh} row_mask:0xf bank_mask:0xf')
p(f'v_mov_b32 {v(T + 1)}, {v(T)}')
p(f's_add_u32 {s(sT)}, {s(sK2)}, {X1_:#x}')
p(f's_add_u32 {s(sT + 1)}, {s(sK2)}, {H_:#x}')
p(f'v_permlane32_swap_b32 {v(T)}, {v(T + 1)}')
finish_stats(T, 512)
norm_pack(Y, 16, T, Y, HO)
fine('norm')
for o in range(2):
    p(f'ds_write_b128 {v(vTw)}, {v(HO + 4 * o, 4)} offset:{16640 + 4608 * o}')
p('s_waitcnt lgkmcnt(0)')
p('s_barrier')
for k in range(2):
    p(f'ds_read_b128 {v(HO + 4 * k, 4)}, {v(vTr)} offset:{16640 + 576 * k}')
for o in range(2):
    p(f'ds_write_b128 {v(vTw)}, {v(XO + 4 * o, 4)} offset:{4608 * o}')
gstore([f'buffer_store_dwordx4 {v(HO + 4 * k, 4)}, {v(vK2)}, {s(R_WL, 4)}, {s(sT + 1)} offen offset:{2048 * k}' for k in range(2)], 'pub', OPT['locd'] & 1, sLocH)
l0_dma(6)
HF, Z2, Z1, WR, WD, GT = 40, 104, 136, 164, 12, 232
for k in range(4):
    p(f's_add_u32 {s(sT + 4 + k)}, {s(sH)}, {H_ + 4096 * k:#x}')
wsp_fix(FIX[0], 104, wz2[:OPT['l0a']])
stamp('K2')
p('s_waitcnt lgkmcnt(0)')
if OPT['wf2']:
    p('s_barrier')
    for k in range(2):
        p(f'ds_read_b128 {v(XO + 4 * k, 4)}, {v(vTr)} offset:{576 * k}')
    p(f'v_mov_b32 {v(T)}, 1')
    p.wait_vm('pub')
    p('s_mov_b64 exec, 1')
    gstore([f'buffer_store_dword {v(T)}, off, {s(R_WS, 4)}, {s(sF2s)}'])
    p('s_mov_b64 exec, -1')
else:
    p.wait_vm('pub')
    arrive_group(sS2)
    for k in range(2):
        p(f'ds_read_b128 {v(XO + 4 * k, 4)}, {v(vTr)} offset:{576 * k}')
wsp_fix(FIX[1], 104, wz2[OPT['l0a']:])
stamp('arr2')
p('s_waitcnt lgkmcnt(0)')
for k in range(7):
    p.wait_vm(f'wz2{k}')
if OPT['wf2']:
    p('s_barrier')
    top, done = p.label('poll'), p.label('pdone')
    p(f'{top}:')
    p(f'buffer_load_dword {v(T)}, {v(vGrp)}, {s(R_WS, 4)}, {s(sF2l)} offen{PG}')
    p('s_waitcnt vmcnt(0)')
    p(f'v_cmp_ne_u32 vcc, 1, {v(T)}')
    spin_tail(top, done)
else:
    poll(sS2, vGrp, 1)
stamp('S2')
p('L_k3:')
hl = [[(f'buffer_load_dwordx4 {v(HF + 4 * ks, 4)}, {v(vL16)}, {s(R_WL, 4)}, {s(sT + 4 + (ks >> 2))} offen offset:{1024 * (ks & 3)}{LG}', None)]
      for ks in range(16)]
xs = [[(f'buffer_store_dwordx4 {v(XO + 4 * k, 4)}, {v(vK2)}, {s(R_WL, 4)}, {s(sT)} offen offset:{2048 * k} sc1', 'x1')] for k in range(2)]
wz1 = w_dma_ops(sWI, 0, LOC_Z1, 'wz1')
emit(hl[:OPT['pre3']])
SEL, ZP, ZT, ZO = 212, 228, 164, 104
p(f'v_and_b32 {v(SEL)}, 0xf0, {v(vL16)}')
p(f'v_lshrrev_b32 {v(SEL + 1)}, 2, {v(vL16)}')
p(f'v_and_b32 {v(SEL + 1)}, 0xc0, {v(SEL + 1)}')
p(f'v_sub_u32 {v(SEL)}, {v(SEL)}, {v(SEL + 1)}')
p(f'v_mov_b32 {v(SEL + 4)}, 0x3f80')
p(f'v_lshlrev_b32 {v(SEL + 4)}, {v(SEL)}, {v(SEL + 4)}')
p(f'v_lshrrev_b32 {v(SEL + 1)}, 5, {v(SEL)}')
p(f'v_cmp_eq_u32 vcc, 0, {v(SEL + 1)}')
p(f'v_cndmask_b32 {v(SEL + 2)}, 0, {v(SEL + 4)}, vcc')
p(f'v_cmp_eq_u32 vcc, 1, {v(SEL + 1)}')
p(f'v_cndmask_b32 {v(SEL + 3)}, 0, {v(SEL + 4)}, vcc')
for k in (0, 1, 4, 5):
    p(f'v_mov_b32 {v(SEL + k)}, 0')
p(f'v_mov_b32 {v(ZP + 14)}, 0')
p(f'v_mov_b32 {v(ZP + 15)}, 0')
wsp_fix(FIX[2], 104)
n_h = 16 - OPT['pre3']
fill = spread(hl[OPT['pre3']:], 1, OPT['hsp'])
fill.update(spread(xs + wz1[:12], OPT['hsp'] * n_h + 1, OPT['z2sp']))
fill[max(fill) + 3] = lambda: poison(1, 132)
gemm_r(Z2, 7, 0, 16, HF, WR, WD, LOC_Z2, fill=fill)
p.wait_vm('x1')
p('s_barrier')
stamp('z2mm')
p.bg = wz1[12:]
p.bg_emit(2)
p.bg_on(OPT['g2ev'])
gelu(Z2, 28, GT)
local_stats(Z2, 28, T)
p.bg_on(0)
reduce_g(T, T + 1)
publish_stats(0)
stamp('pub3')
Z1A = OPT['z1a']
p.bg_emit(None if Z1A else OPT['gb'])
p(f's_mov_b32 {s(sT + 2)}, {s(sZld)}')
p(f'v_add_u32 {v(245)}, {s(sDm)}, {v(vL16)}')
OW, OR, OG = 248, 249, 253
p(f's_add_u32 {s(sT + 1)}, {s(sUst)}, 8192')
p(f's_lshl_b32 {s(sT + 3)}, {s(sB)}, 10')
p(f's_add_u32 {s(sT + 3)}, {s(sT + 3)}, {s(sH)}')
p(f's_add_u32 {s(sT + 12)}, {s(sT + 3)}, {X1_:#x}')
p(f's_add_u32 {s(sT + 13)}, {s(sT + 3)}, {X1_ + 8192:#x}')
for k in range(4):
    p(f's_add_u32 {s(sT + 4 + k)}, {s(sUld)}, {4096 * k}')
    p(f's_add_u32 {s(sT + 8 + k)}, {s(sH)}, {X1_ + 4096 * k:#x}')
p(f'v_and_b32 {v(133)}, 0xf0, {v(vL16)}')
p(f'v_mul_u32_u24 {v(133)}, 9, {v(133)}')
p(f'v_lshrrev_b32 {v(134)}, 8, {v(vL16)}')
p(f'v_lshl_add_u32 {v(133)}, {v(134)}, 5, {v(133)}')
p(f's_mul_i32 {s(99)}, {s(sW)}, 2304')
p(f's_add_u32 {s(99)}, {s(99)}, {SCR + 12288}')
p(f'v_add_u32 {v(OW)}, {s(99)}, {v(133)}')
p(f'v_lshrrev_b32 {v(133)}, 7, {v(vL16)}')
p(f'v_lshl_add_u32 {v(134)}, {v(133)}, 4, {v(vL16)}')
p(f'v_add_u32 {v(OR)}, {s(99)}, {v(134)}')
p(f'v_and_b32 {v(134)}, 0x70, {v(vL16)}')
p(f'v_lshl_add_u32 {v(OG)}, {v(133)}, 16, {v(134)}')
p(f's_lshl_b32 {s(99)}, {s(sW)}, 9')
p(f's_add_u32 {s(99)}, {s(99)}, {s(sC)}')
p(f's_lshl_b32 {s(99)}, {s(99)}, 10')
p(f's_add_u32 {s(sT + 14)}, {s(99)}, {s(sB128)}')
p(f's_add_u32 {s(sT + 15)}, {s(sT + 14)}, 0x8000')
wo = w_dma_ops(sWO, 0, LOC_WO, 'wo')
if Z1A:
    p.wait_vm('wz12')
    p('s_barrier')
    fill = {OPT['gpos']: gather_loads(0)}
    fill.update(spread(wo[:OPT['woa']], OPT['gpos'] + 2, 2))
    gemm_r(Z1, 7, 0, Z1A, HF, WR, WD, LOC_Z1, fill=fill)
else:
    emit([gather_loads(0)])
    p.bg_emit()
    emit(wo[:OPT['woa']])
stamp('z1a')
gather_finish(0)
stamp('S3')
poison(2, 132)
finish_stats(T, 896)
for i in range(0, 28, 2):
    p(f'v_pk_fma_f32 {v(Z2 + i, 2)}, {v(Z2 + i, 2)}, {v(T, 2)}, {v(T, 2)} op_sel:[0,0,1] op_sel_hi:[1,0,1]')
ZO = 192
for pr in range(6):
    if pr < 4:
        tiles = [ft for ft in (2 * pr, 2 * pr + 1) if ft < 7]
        for ft in tiles:
            for k in range(2):
                p(f'v_cvt_pk_bf16_f32 {v(ZP + 2 * ft + k)}, {v(Z2 + 4 * ft + 2 * k)}, {v(Z2 + 4 * ft + 2 * k + 1)}')
    if 2 <= pr:
        q = pr - 2
        for ft in (2 * q, 2 * q + 1):
            for k in range(2 if ft < 7 else 0):
                p(f'v_cvt_pk_bf16_f32 {v(ZO + 2 * ft + k)}, {v(ZT + 4 * ft + 2 * k)}, {v(ZT + 4 * ft + 2 * k + 1)}')
        p(f's_add_u32 {s(sT)}, {s(sZst)}, {q * 32768:#x}')
    if pr < 4:
        for ft in tiles:
            p(f'{M16} {v(ZT + 4 * ft, 4)}, {v(ZP + 4 * pr, 4)}, {v(SEL + (0 if ft & 1 else 2), 4)}, 0')
    if 2 <= pr:
        for k in range(2):
            p(f'v_permlane16_swap_b32 {v(ZO + 4 * q + k)}, {v(ZO + 4 * q + 2 + k)}')
        if q == 3:
            p('s_mov_b32 exec_lo, 0xffff')
            p('s_mov_b32 exec_hi, 0xffff')
        p(f'buffer_store_dwordx4 {v(ZO + 4 * q, 4)}, {v(vZst)}, {s(R_WL, 4)}, {s(sT)} offen sc1', tag='pub')
p('s_mov_b64 exec, -1')
stamp('Zst')
poison(3, 132)
p.wait_vm('wz16')
p('s_barrier')
Z1B = min(16, Z1A + OPT['z1arr'])
wreg = lambda k: 104 + 4 * k if k < 8 else 212 + 4 * (k - 8)
wst = []
for k in range(16):
    g = [(f's_add_u32 {s(sDo)}, {s(sWO)}, {16384 * (3 + (k >> 2)):#x}', None)] if k % 4 == 0 else []
    if not OPT['nobg'] & 1:
        g.append((f'buffer_load_dwordx4 {v(wreg(k), 4)}, {v(vL16)}, {s(R_WS, 4)}, {s(sDo)} offen offset:{1024 * (k & 3)}', None))
    wst.append(g)
bgw = wo[OPT['woa']:12] + wst
wo = []
ZD, AC, RT, UO = OPT['zd'], 196, 228, 240


def zreg(fi):
    k = fi % ZD
    return 56 + 4 * k


def zload(fi):
    if fi % 4 == 0 and fi:
        p(f's_add_u32 {s(sT + 2)}, {s(sT + 2)}, 4096')
    if OPT['k4load'] or fi < ZD:
        p(f'buffer_load_dwordx4 {v(zreg(fi), 4)}, {v(vL16)}, {s(R_WL, 4)}, {s(sT + 2)} offen offset:{(fi % 4) * 1024}' + ' sc1')


nin = min(len(bgw), (112 - 7 * Z1A - 1) // OPT['wosp'])
fill = spread(bgw[:nin], 7 * Z1A + 1, OPT['wosp'])
nz = 0
if OPT['zs'] and OPT['zin'] and nin == len(bgw):
    pos = max(max(fill) + OPT['wosp'], OPT['zin'])
    while nz < ZD and max(pos, 7 * (nz + 5) - 1) < 112:
        pos = max(pos, 7 * (nz + 5) - 1)
        fill[pos] = (lambda k: lambda: zload(k))(nz)
        pos += OPT['zsp']
        nz += 1
gemm_r(Z1, 7, Z1A, Z1B, HF, WR, WD, LOC_Z1, last=112, fill={k: g for k, g in fill.items() if k < 7 * Z1B})
p.wait_vm('pub')
arrive(sS4, 8)
code_prefetch(4, 'L_k4')
stamp('arr4')
if Z1B < 16:
    gemm_r(Z1, 7, Z1B, 16, HF, WR, WD, LOC_Z1, preload=False, fill={k: g for k, g in fill.items() if k >= 7 * Z1B})
p.bg = bgw[nin:]
if nz:
    for fi in range(nz, ZD):
        zload(fi)
    nz = ZD
if OPT['g1w']:
    p.bg_on(8)
    gelu(Z1, 4 * OPT['g1w'], 164)
    p.bg_on(0)
p.bg_emit()
wsp_fix(FIX[3], 164)
stamp('win4')
if OPT['zs']:
    if Z1B < 16:
        p('s_barrier')
else:
    poll(sP4, None, 32)
stamp('S4')
p('L_k4:')
def k4_epilogue(ft):
    ac, buf = AC + 16 * (ft & 1), 12288 * (ft & 1)
    st1 = [f'ds_write_b128 {v(vRed + q - 1)}, {v(ac + 4 * q, 4)} offset:{buf}' for q in (1, 2, 3)]
    st1 += [f'v_add_f32 {v(ac + r)}, {v(vBsp)}, {v(ac + r)}' for r in range(4)]
    st2 = ['s_waitcnt lgkmcnt(0)', 's_barrier']
    st2 += [f'ds_read_b128 {v(RT + 4 * q, 4)}, {v(vRed + 3)} offset:{buf + 1024 * q}' for q in range(3)]
    st3 = [f'v_add_f32 {v(ac + r)}, {v(RT + 4 * q + r)}, {v(ac + r)}' for q in range(3) for r in range(4)]
    st3 += [f'v_mul_f32 {v(ac + r)}, {v(Z1 + 4 * ft + r)}, {v(ac + r)}' for r in range(4)]
    st3 += [f'v_cvt_pk_bf16_f32 {v(UO + 2 * (ft & 1) + k)}, {v(ac + 2 * k)}, {v(ac + 2 * k + 1)}' for k in range(2)]
    if ft == 6:
        st3 += [f'buffer_store_dwordx2 {v(UO, 2)}, {v(vL8)}, {s(R_WL, 4)}, {s(sT + 13)} offen']
    elif ft == 5:
        st3 += [f'buffer_store_dwordx4 {v(UO, 4)}, {v(vL16)}, {s(R_WL, 4)}, {s(sT + 12)} offen']
    elif ft & 1:
        st3 += [f'buffer_store_dwordx4 {v(UO, 4)}, {v(vL16)}, {s(R_WL, 4)}, {s(sT + 1 if ft == 3 else sUst)} offen offset:0']
    return st1, st2, st3


def k4_emit(x):
    if x.startswith('buffer_store'):
        late = x.endswith('offen')
        if late:
            p.wait_vm('x1l')
        gstore([x], 'u6' if 'dwordx2' in x else 'pub', OPT['locd'] & (2 if late else 4), sLocU if OPT['locd'] & (8 if late else 16) else None)
    else:
        p(x)


def gelu_ops(x, t):
    ops = [f'v_mul_f32 {v(t + k)}, {v(x + k)}, {v(x + k)}' for k in range(4)]
    ops += [f'v_fma_f32 {v(t + k)}, {v(t + k)}, {v(vGK)}, {v(vGK + 1)}' for k in range(4)]
    ops += [f'v_mul_f32 {v(t + k)}, {v(t + k)}, {v(x + k)}' for k in range(4)]
    ops += [f'v_exp_f32 {v(t + k)}, {v(t + k)}' for k in range(4)]
    ops += [f'v_add_f32 {v(t + k)}, 1.0, {v(t + k)}' for k in range(4)]
    ops += [f'v_rcp_f32 {v(t + k)}, {v(t + k)}' for k in range(4)]
    ops += [f'v_mul_f32 {v(x + k)}, {v(t + k)}, {v(x + k)}' for k in range(4)]
    return ops


WR5, X1R, XP, FL, X1L = 56, 232, 104, 244, 136
assert ZD == WD


def ureg(ks):
    return (104, 120, 164, 180, 212, 196, 136)[ks >> 2] + 4 * (ks & 3)


ul = [[(f'buffer_load_dwordx4 {v(ureg(ks), 4)}, {v(vL16)}, {s(R_WL, 4)}, {s(sT + 4 + (ks >> 2))} offen offset:{1024 * (ks & 3)}{LG}', None)]
      for ks in range(24)]
ul += [[(f'buffer_load_dwordx2 {v(ureg(24 + i) + 2 * k, 2)}, {v(vL8)}, {s(R_WL, 4)}, {s(sT + 10 + (i >> 1))} offen offset:{1024 * (2 * (i & 1) + k)}{LG}', None)
        for k in range(2)] for i in range(4)]


def flag_store(off):
    p(f'v_mov_b32 {v(FL + 1)}, 1')
    p(f's_add_u32 {s(99)}, {s(sS5)}, {s(sB4)}')
    p('s_mov_b64 exec, 1')
    gstore([f'buffer_store_dword {v(FL + 1)}, off, {s(R_WS, 4)}, {s(99)} offset:{off}'])
    p('s_mov_b64 exec, -1')


def flag_load(off):
    return [(f'buffer_load_dword {v(FL)}, {v(vGrp)}, {s(R_WS, 4)}, {s(sS5)} offen offset:{off}{PG}', None)]


def z_check(fi):
    loads = [(f's_add_u32 {s(99)}, {s(sZld)}, {1024 * fi:#x}', None)]
    loads += [(f'buffer_load_dwordx4 {v(zreg(fi + k), 4)}, {v(vL16)}, {s(R_WL, 4)}, {s(99)} offen offset:{1024 * k} sc1', None) for k in range(2)]
    return loads, lambda: p(f'v_cmp_u_f32 vcc, {v(zreg(fi) + 3)}, {v(zreg(fi + 1) + 3)}')


s4_load = [(f'buffer_load_dword {v(FL)}, off, {s(R_WS, 4)}, {s(sP4)} sc1', None)]


def flag_check(off):
    retry_until(flag_load(off), lambda: p(f'v_cmp_ne_u32 vcc, 1, {v(FL)}'))


for fi in range(nz, ZD):
    zload(fi)
assert not FIX[4]
x1l = [(f'buffer_load_dwordx4 {v(X1L + 4 * o, 4)}, {v(vL16)}, {s(R_WL, 4)}, {s(sT + 12 + o)} offen{LG}', 'x1l') for o in range(2)]
tail = ul[:16]
ROT = 112 % ZD
for ft in range(7):
    fill = {}
    if ft and OPT['k4epi']:
        st1, st2, st3 = k4_epilogue(ft - 1)
        pos = OPT['e1']
        for x in st1:
            fill.setdefault(pos, []).append(x)
            pos += 1
        pos = OPT['e2']
        for x in st2:
            fill.setdefault(pos, []).append(x)
            pos += 1
        pos = OPT['e3']
        for x in st3:
            fill.setdefault(pos, []).append(x)
            pos += 1
    if ft == 0:
        for k in range(16):
            fill[4 * k + 1] = [f'ds_write_b128 {v(245)}, {v(wreg(15 - k), 4)} offset:{16384 * ((15 - k) >> 2) + 1024 * ((15 - k) & 3)}']
    if ft == OPT['upk']:
        free = [k for k in range(64) if k % 4 != 3][-16:]
        for i in range(8):
            fill.setdefault(free[2 * i], []).append(f'v_lshlrev_b32 {v(XV + 2 * i)}, 16, {v(X1L + i)}')
            fill.setdefault(free[2 * i + 1], []).append(f'v_and_b32 {v(XV + 2 * i + 1)}, 0xffff0000, {v(X1L + i)}')
    free = [k for k in range(64) if k not in fill] + [k for k in range(64) if len(fill.get(k, [])) == 1 and fill[k][0][0] == 'v' and k % 4 != 3]
    free = sorted(free[:28])
    for k, x in zip(free, gelu_ops(Z1 + 4 * (ft + OPT['gsh']), T) if OPT['g1w'] <= ft + OPT['gsh'] < 7 else []):
        fill.setdefault(k, []).append(x)
    for a2 in range(16):
        fi = ft * 16 + a2
        chk = OPT['zs'] and fi & 1 and fi < 31
        if OPT['zs'] and fi == 0:
            retry_until(*z_check(0))
        for q in range(4):
            d = AC + 16 * (ft & 1) + 4 * q
            if chk and q == 3:
                z_check(fi + 1)[1]()
            if OPT['k4mfma'] or q == 0:
                p(f'{M16} {v(d, 4)}, {v(zreg(fi), 4)}, {a((q * 16 + a2) * 4, 4)}, {v(d, 4) if a2 else 0}')
            for x in fill.get(4 * a2 + q, []):
                k4_emit(x)
        if chk:
            retry_until(*z_check(fi + 1), tested=True)
        if OPT['zs'] and fi == OPT['q4']:
            emit([s4_load])
        if OPT['zs'] and fi + ZD == 32:
            retry_until(s4_load, lambda: p(f'v_cmp_ne_u32 vcc, 32, {v(FL)}'))
        if fi + ZD < 112:
            zload(fi + ZD)
        elif len(tail) > 16 - OPT['ntail']:
            if len(tail) == 8:
                flag_check(0)
            emit([tail.pop(0)])
        if fi + ZD >= 112:
            wring_read(fi + ZD - 112, WR5, WD, LOC_WO, ROT)
        if fi == OPT['mf']:
            p.wait_vm('pub')
            flag_store(32)
        if OPT['fine'] == 3 and (a2 == 15 or fi == 0) and fi < 111:
            stamp(f'i{fi}')
        if fi == 56:
            p.wait_vm('pub')
            flag_store(96)
        if fi == 70:
            emit([flag_load(96)])
        if fi == 84:
            flag_check(96)
        if fi == OPT['f5a']:
            p.wait_vm('pub')
            flag_store(0)
        if fi == 64:
            code_prefetch(8, 'L_k5')
        if fi == 80:
            p('L_k5:')
        if fi == OPT['x1pos']:
            emit([x1l])
        if fi == OPT['l5a']:
            emit([flag_load(0)])
stamp('K4')


def chain(*fs):
    def run():
        for f in fs:
            f()
    return run


def line(x, tag=None):
    return lambda: p(x, tag=tag)


def flag_after(tag, off):
    p.wait_vm(tag)
    flag_store(off)


def next_m1():
    if_layer(0)
    m1_load(228)
    p.end()


fill = {}


def put(pos, f):
    fill[pos] = chain(fill[pos], f) if pos in fill else f


st1, st2, st3 = k4_epilogue(6)
for k, x in enumerate(st1):
    put(OPT['k1'] + min(k, 3 + (k - 3) // 2), line(x, 'red' if k < 3 else None))
put(OPT['k2'], chain(lambda: p.wait_lgkm('red'), *[line(x) for x in st2[1:]]))
for k, x in enumerate(st3):
    put(OPT['k3'] + k // 2, (lambda y: lambda: k4_emit(y))(x))
kend = OPT['k3'] + len(st3) // 2
assert len(tail) < 8
for k, g in enumerate(tail):
    put(k, (lambda y: lambda: emit([y]))(g))
if OPT['mf'] > 111:
    put(OPT['mf'] - 112, lambda: flag_after('pub', 32))
put(OPT['mb'], lambda: emit([flag_load(32)]))
put(OPT['mc'], lambda: (flag_check(32), fine('ck5m'), emit(ul[16:20])))
for k in range(4):
    put(max(OPT['mc'], kend) + 2 + 2 * k, (lambda y: lambda: emit([y]))(ul[20 + k]))
put(OPT['fa'], lambda: (flag_after('u6', 64), fine('fl5b')))
put(OPT['fb'], lambda: emit([flag_load(64)]))
put(OPT['fc'], lambda: (flag_check(64), fine('ck5b'), emit(ul[24:])))
put(max(OPT['fc'] + 4, 64), next_m1)
gemm_r(XV, 4, 0, 28, ureg, WR5, WD, LOC_WO, first_c=True, fill=fill, preload=False, rot=ROT)


def x_pack():
    for k in range(8):
        p(f'v_cvt_pk_bf16_f32 {v(XP + k)}, {v(XV + 2 * k)}, {v(XV + 2 * k + 1)}')


stamp('K5')
if_layer(1)
x_pack()
for o in range(2):
    p(f'ds_write_b128 {v(OW)}, {v(XP + 4 * o, 4)} offset:{16 * o}')
for k in range(2):
    p(f'ds_read_b128 {v(X1R + 4 * k, 4)}, {v(OR)} offset:{1152 * k}')
for k in range(2):
    p(f'buffer_store_dwordx4 {v(X1R + 4 * k, 4)}, {v(OG)}, {s(R_OUT, 4)}, {s(sT + 14 + k)} offen sc1')
if PROF:
    p('s_waitcnt vmcnt(0)')
    stamp('end')
    p(f's_lshl_b32 {s(sT)}, s2, 2')
    p(f's_add_u32 {s(sT)}, {s(sT)}, {s(sW)}')
    p(f's_lshl_b32 {s(sT)}, {s(sT)}, 8')
    p(f's_add_u32 {s(sT)}, {s(sT)}, {PROFO:#x}')
    p(f'v_lshrrev_b32 {v(T)}, 2, {v(vL16)}')
    p(f'buffer_store_dword {v(vProf)}, {v(T)}, {s(R_WS, 4)}, {s(sT)} offen')
if OPT['diag']:
    p('s_waitcnt vmcnt(0)')
    stamp('end')
    p(f's_sub_u32 s101, s101, {s(sPidx)}')
    p('s_min_u32 s101, s101, 20000')
    p('s_mul_i32 s101, s101, 10')
    p('s_add_u32 s101, s101, 10000')
    p('L_spin:')
    p(f's_memrealtime {s(sStamp, 2)}')
    p('s_waitcnt lgkmcnt(0)')
    p(f's_sub_u32 {s(sStamp)}, {s(sStamp)}, {s(sPidx)}')
    p(f's_cmp_lt_u32 {s(sStamp)}, s101')
    p('s_cbranch_scc1 L_spin')
p('L_exit:')
p('s_endpgm')
p.end()
local_stats(XV, 16, T)
reduce_g(T, T + 1)
publish_stats(0x40000)
p('s_barrier')
if OPT['ctp'] == 0:
    ct_dma(228)
emit(wz2[:OPT['wzp0']])
x_pack()
p(f's_mov_b32 {s(sL)}, 1')
p(f's_mov_b32 {s(sLocH)}, {s(sLoc)}')
p(f's_mov_b32 {s(sLocU)}, 0')
if not OPT['reuse']:
    p(f's_add_u32 {s(R_WL)}, {s(R_WL)}, {LSTRIDE:#x}')
    p(f's_addc_u32 {s(R_WL + 1)}, {s(R_WL + 1)}, 0')
p(f's_mov_b32 {s(R_WL + 2)}, {LSTRIDE:#x}')
p(f's_mov_b32 {s(R_X)}, {s(R_WL)}')
p(f's_mov_b32 {s(R_X + 1)}, {s(R_WL + 1)}')
p(f's_mov_b32 {s(R_X + 2)}, {LSTRIDE:#x}')
p(f's_add_u32 {s(sXb)}, {s(sK2)}, {H_:#x}')
p(f's_add_u32 {s(sXo)}, {s(sXb)}, 2048')
p(f'v_mov_b32 {v(vXr)}, {v(vK2)}')
p(f'v_mov_b32 {v(vXw)}, {v(vTr)}')
p(f'v_add_u32 {v(vXw + 1)}, 576, {v(vTr)}')
p(f'v_mov_b32 {v(vHw)}, {v(vHw2)}')
p(f's_add_u32 {s(sSt)}, {s(sSt)}, 0x20000')
for r in (() if OPT['vs'] else (sArr, sRep)) + (sS2, sS4, sP4, sS5, sF2s, sF2l):
    p(f's_add_u32 {s(r)}, {s(r)}, 0x20000')
for o in range(2):
    p(f's_add_u32 {s(sT + 4 + o)}, {s(sT + 3)}, {H_ + 8192 * o:#x}')
emit([gather_loads(0x20000)])
gather_finish(0x20000)
gstore([f'buffer_store_dwordx4 {v(XP + 4 * o, 4)}, {v(vL16)}, {s(R_WL, 4)}, {s(sT + 4 + o)} offen' for o in range(2)], 'x2')
if OPT['ctp'] == 1:
    ct_dma(228)
emit(wz2[OPT['wzp0']:P1])
p('s_branch L_layer')

p.resolve([('pro', set()), ('body', {'L0'}), ('body', {'L1'})], ['W0', 'G0', 'LOC', 'RETRY'] + (['W1'] if OPT['tlb'] else []))

hdr = open('interleave_layers__spectral_fnet__mixer_gmlp__prompt.s.ref').read().split('\n')
out = [l for l in hdr if l.startswith(';') and '@launch' not in l][:14]
if PROF:
    k = STAMPS.index('T')
    out.append('; stamps: ' + ' '.join(STAMPS[:-1] + [x for x in STAMPS[k:] if x[0] != '*']))
out.append(f'; @launch grid=(256,1,1) block=(256,1,1) lds={LDS_BYTES}')
out += ['.amdgcn_target "amdgcn-amd-amdhsa--gfx950"', '.text', f'.globl {NAME}', '.p2align 8', f'.type {NAME},@function']
out.append(p.text())
out.append('.p2align 8')
out.append('.type L_table,@object')
out.append('L_table:')
tab = const_table()
for i in range(0, tab.size, 8):
    out.append('.long ' + ','.join(f'{x:#x}' for x in tab[i:i + 8]))
out.append(f'.size L_table, {tab.size * 4}')
out.append('L_end:')
out += ['.section .rodata,"a"', '.p2align 6', f'.amdhsa_kernel {NAME}',
        '  .amdhsa_next_free_vgpr 512', '  .amdhsa_next_free_sgpr 102', '  .amdhsa_accum_offset 256',
        '  .amdhsa_group_segment_fixed_size 0', '  .amdhsa_kernarg_size 104', '  .amdhsa_user_sgpr_count 2',
        '  .amdhsa_user_sgpr_kernarg_segment_ptr 1', '  .amdhsa_system_sgpr_workgroup_id_x 1',
        '  .amdhsa_float_denorm_mode_32 3', '.end_amdhsa_kernel', '']
open(sys.argv[1], 'w').write('\n'.join(out))
print(p.stats(), file=sys.stderr)
```

```python
import sys
import struct
import numpy as np
from asmlib import Prog, v, a, s

NAME = 'interleave_layers__spectral_fnet__mixer_gmlp__prompt_kernel'
OPT = dict(prof=0, k4mfma=1, k4load=1, k4epi=1, zd=12, pre3=6, pre5=16, loc=1, locd=7, x1pos=58, lg=0, pg=0, sg=0, wspev=8, x1=2,
           g2ev=12, z1a=0, gpos=18, z1arr=6, wo4=16, ctp=2, wzp0=0, wzp1=0, wzp2=0, wzp3=8, reuse=0, tlb=0, e1=4, e2=14, e3=24, f5a=87, l5a=95, mb=8, mc=20, fa=36, fb=48, fc=60, hpf=0, late=0, min0=1, pre=1, we=2, hsp=4, algn=0, xe=4, gb=1, xa=8, to=2000000, wf2=1, cmn='044444', l0a=2, noe=0, pz=1, pv=4, vs=2, zp0=0, zin=1, zsp=3, zs=1, q4=8, upk=4, gsh=0, cpf=12, k1=3, k2=9, k3=15, mf=111, fixev=0, woa=8, wosp=4, g1w=1, l0n='0444466', ann=0, fix='6/7///', ntail=12, lnow=4, fine=0, sched='//d1/d2r0d3r1d4p0r2d5p1r3d6p2r4qd7p3/r5p4/a6p5/a7/', ctpos=0, pk=3, nomean=0,  z2sp=4, early=1, wfirst=0, nobg=0, few=0, diag='')
for arg in sys.argv[2:]:
    k, val = arg.split('=')
    OPT[k] = val if k in ('diag', 'sched', 'fix', 'l0n', 'cmn') else int(val)
PROF = OPT['prof']
LG = (' sc1', '', ' nt', ' sc0')[OPT['lg']]
PG = (' sc1', '', ' nt')[OPT['pg']]
SG = ('', ' nt', ' sc0')[OPT['sg']]


WI, WO, FLAGS, STATS, X2, PROFO = 0, 0x200000, 0x300000, 0x340000, 0x400000, 0x600000
LBASE, LSTRIDE = 0x800000, 0x1000000
V_, H_, X1_, Z_, U_ = 0, 0x200000, 0x400000, 0x600000, 0xA00000
WB, CT, SCR, LDS_BYTES = 0, 114688, 114688 + 22528, 163840
CT_FA, CT_TW, CT_FB, CT_M1 = 0, 6144, 10240, 14336

R_X, R_WIN, R_WSP, R_WOUT, R_OUT, R_WS, R_DBG, R_BSP, R_WL = 4, 8, 12, 16, 20, 24, 28, 32, 36
sW, sC, sB, sL, sTO = 40, 41, 42, 43, 44
sVst, sVld, sH, sK2, sXo, sXb, sZst, sZld, sUst, sUld = 45, 46, 47, 48, 49, 50, 51, 52, 53, 54
sLoc, sSt, sWI, sWO, sWsp, sSelLo, sSelHi, sPidx, sOnes = 55, 56, 57, 58, 59, 60, 61, 62, 63
sArr, sRep, sS2, sS4, sS5, sB128, sDm, sDo = 64, 65, 66, 67, 68, 69, 70, 71
sF2s, sF2l = 86, 87
sB4, sP4, sG0, sLocH, sLocU = 3, 88, 75, 89, 100
sT = 72
sStamp = 90
vL16, vTw, vK2, vXr, vVld, vVst, vBsp, vZst = 0, 1, 2, 3, 4, 5, 6, 7
vC2 = 8
vHw, vHr, vUw, vUr, vStl, vL8, vTr, vPoll, vArr, vProf, vGK = 16, 17, 18, 19, 20, 21, 22, 23, 24, 25, 26
vRed = 28
T = 32
XV = 40
M1 = 184


def f2u(x):
    return struct.unpack('<I', struct.pack('<f', x))[0]


def bf16(x):
    u = np.ascontiguousarray(x, dtype=np.float32).view(np.uint32)
    return ((u + 0x7FFF + ((u >> 16) & 1)) >> 16).astype(np.uint32)


def const_table():
    l = np.arange(64)[:, None]
    j = np.arange(8)[None, :]
    nn, h = l & 31, l >> 5
    e1 = 16 * ((nn >> 2) & 1) + 4 * (nn >> 3) + (nn & 3)
    frags = []

    def pack(x):
        x = np.where(np.abs(x) < 1e-12, 0.0, x)
        b = bf16(x)
        return (b[:, 0::2] | (b[:, 1::2] << 16)).astype(np.uint32)
    ang = [2 * np.pi * ((16 * dh + 8 * h + j) * e1 % 32) / 32 for dh in range(2)]
    frags += [pack(np.cos(ang[0])), pack(np.cos(ang[1])), pack(np.sin(ang[0])), pack(np.sin(ang[1])),
              pack(-np.sin(ang[0])), pack(-np.sin(ang[1]))]
    d2 = 8 * (j >> 2) + 4 * h + (j & 3)
    tw = 2 * np.pi * (d2 * e1) / 512
    tc = np.cos(tw).astype(np.float32).view(np.uint32)
    ts = np.sin(tw).astype(np.float32).view(np.uint32)
    frags += [tc[:, :4], tc[:, 4:], ts[:, :4], ts[:, 4:]]
    ps = 2 * np.pi * (d2 * (nn & 15) % 16) / 16
    for row in range(2):
        m = ((nn >> 4) == row)
        frags += [pack(np.cos(ps) * m), pack(np.sin(ps) * m)]
    n, g = l & 15, l >> 4
    for jq in range(4):
        for ks in range(2):
            rho = 32 * ks + 16 * (j >> 2) + 4 * g + (j & 3)
            s1 = 16 * (rho >> 4) + 2 * (rho & 7) + ((rho >> 3) & 1)
            jj = 8 * jq + (n >> 1)
            th = 2 * np.pi * (s1 * jj % 64) / 64
            x = np.where((n & 1) == 0, np.cos(th), np.where(jj == 0, (-1.0) ** s1, -np.sin(th)))
            frags.append(pack(x))
    tab = np.concatenate([np.ascontiguousarray(f).reshape(-1) for f in frags])
    assert tab.size == 22 * 256
    return tab


p = Prog()
M16 = 'v_mfma_f32_16x16x32_bf16'
M32 = 'v_mfma_f32_32x32x16_bf16'


STAMPS = []


def stamp(name):
    if OPT['few'] and name in ('karg', 'start', 'setup', 'init', 'arr1', 'Vst', 'pub3', 'z1a', 'S3', 'Zst', 'arr4', 'win4') + (() if OPT['fine'] else ('Vld', 'K2', 'arr2', 'K5')):
        return
    STAMPS.append(name)
    if OPT['diag'] and OPT['diag'][:-1] == name:
        p(f's_memrealtime {s(sStamp, 2)}')
        p('s_waitcnt lgkmcnt(0)')
        p(f's_cmp_eq_u32 {s(sL)}, {OPT["diag"][-1]}')
        p(f's_cselect_b32 s101, {s(sStamp)}, s101')
    if PROF:
        p(f'{"s_memtime" if PROF == 2 else "s_memrealtime"} {s(sStamp, 2)}')
        p('s_waitcnt lgkmcnt(0)')
        p('s_mov_b32 s101, m0')
        p(f's_mov_b32 m0, {s(sPidx)}')
        p(f'v_writelane_b32 {v(vProf)}, {s(sStamp)}, m0')
        p('s_mov_b32 m0, s101')
        p(f's_add_u32 {s(sPidx)}, {s(sPidx)}, 1')


def fine(name):
    if OPT['fine'] == 1:
        stamp(name)


def srd(r, lo, hi, size):
    p(f's_mov_b32 {s(r)}, {s(lo)}')
    p(f's_and_b32 {s(r + 1)}, {s(hi)}, 0xffff')
    p(f's_mov_b32 {s(r + 2)}, {size:#x}')
    p(f's_mov_b32 {s(r + 3)}, 0x20000')


def if_wave0():
    p(f's_cmp_eq_u32 {s(sW)}, 0')
    p.begin('W0', 's_cbranch_scc0')


def if_layer(l):
    p(f's_cmp_eq_u32 {s(sL)}, {l}')
    p.begin(f'L{l}', 's_cbranch_scc0')


def spin_tail(top, done):
    p(f's_cbranch_vccz {done}')
    p(f's_sub_u32 {s(sTO)}, {s(sTO)}, 1')
    p(f's_cbranch_scc0 {top}')
    p(f's_mov_b32 {s(sTO)}, 0')
    p(f'{done}:')


def arrive(soff, nrep):
    p('s_barrier')
    if_wave0()
    p(f'v_mov_b32 {v(T)}, 1')
    p(f's_mov_b64 exec, {(1 << nrep) - 1:#x}')
    p(f'buffer_atomic_add {v(T)}, {v(vArr)}, {s(R_WS, 4)}, {s(soff)} offen sc1')
    p('s_mov_b64 exec, -1')
    p.end()


def gstore(lines, tag=None, local=False, flag=None):
    if not OPT['loc'] or (tag and not local):
        for x in lines:
            p(x + ' sc1', tag=tag)
        return
    p(f's_cmp_eq_u32 {s(flag or sLoc)}, 0')
    p.begin_ool('!LOC', 's_cbranch_scc1')
    for x in lines:
        p(x + ' sc1', tag=tag)
    p.end_ool(('LOC', lambda: [p(x + SG, tag=tag) for x in lines]))


def arrive_group(soff, off=0):
    p('s_barrier')
    if_wave0()
    p(f'v_mov_b32 {v(T)}, 1')
    p(f's_add_u32 {s(99)}, {s(soff)}, {s(sB4)}')
    p('s_mov_b64 exec, 1')
    gstore([f'buffer_store_dword {v(T)}, off, {s(R_WS, 4)}, {s(99)} offset:{off}'])
    p('s_mov_b64 exec, -1')
    p.end()


def poll(soff, vaddr, need, tag=None):
    if_wave0()
    top, done = p.label('poll'), p.label('pdone')
    p(f'{top}:')
    if vaddr is not None:
        p(f'buffer_load_dword {v(T)}, {v(vaddr)}, {s(R_WS, 4)}, {s(soff)} offen' + (PG if vaddr == vGrp else ' sc1'))
    else:
        p(f'buffer_load_dword {v(T)}, off, {s(R_WS, 4)}, {s(soff)} sc1')
    p('s_waitcnt vmcnt(0)')
    p(f'v_cmp_ne_u32 vcc, {need}, {v(T)}')
    spin_tail(top, done)
    p.end()
    if tag:
        p.wait_vm(tag)
    p('s_barrier')


def reduce_g(x, y):
    p(f'v_permlane16_swap_b32 {v(x)}, {v(y)}')
    p(f'v_add_f32 {v(x)}, {v(x)}, {v(y)}')
    p(f'v_mov_b32 {v(y)}, {v(x)}')
    p(f'v_permlane32_swap_b32 {v(x)}, {v(y)}')
    p(f'v_add_f32 {v(x)}, {v(x)}, {v(y)}')
    p(f'v_mov_b32 {v(y)}, {v(x)}')
    p(f'v_permlane16_swap_b32 {v(x)}, {v(y)}')


def finish_stats(x, n):
    y, m = x + 1, x + 2
    p(f'v_mul_f32 {v(m)}, {f2u(1.0 / n):#x}, {v(x)}')
    p(f'v_mul_f32 {v(y)}, {f2u(1.0 / n):#x}, {v(y)}')
    p(f'v_fma_f32 {v(y)}, -{v(m)}, {v(m)}, {v(y)}')
    p(f'v_max_f32 {v(y)}, 0, {v(y)}')
    p(f'v_add_f32 {v(y)}, {f2u(1e-5):#x}, {v(y)}')
    p(f'v_rsq_f32 {v(x)}, {v(y)}')
    p(f'v_mul_f32 {v(y)}, -{v(m)}, {v(x)}')


def norm_pack(src, n, st, tmp, dst):
    for i in range(0, n, 2):
        p(f'v_pk_fma_f32 {v(tmp + i, 2)}, {v(src + i, 2)}, {v(st, 2)}, {v(st, 2)} op_sel:[0,0,1] op_sel_hi:[1,0,1]')
    for i in range(0, n, 2):
        p(f'v_cvt_pk_bf16_f32 {v(dst + i // 2)}, {v(tmp + i)}, {v(tmp + i + 1)}')


def local_stats(src, n, out):
    sa, sq = out + 2, out + 4
    p(f'v_pk_add_f32 {v(sa, 2)}, {v(src, 2)}, {v(src + 2, 2)}')
    p(f'v_pk_mul_f32 {v(sq, 2)}, {v(src, 2)}, {v(src, 2)}')
    p(f'v_pk_fma_f32 {v(sq, 2)}, {v(src + 2, 2)}, {v(src + 2, 2)}, {v(sq, 2)}')
    for i in range(4, n, 2):
        p(f'v_pk_add_f32 {v(sa, 2)}, {v(sa, 2)}, {v(src + i, 2)}')
        p(f'v_pk_fma_f32 {v(sq, 2)}, {v(src + i, 2)}, {v(src + i, 2)}, {v(sq, 2)}')
    p(f'v_add_f32 {v(out)}, {v(sa)}, {v(sa + 1)}')
    p(f'v_add_f32 {v(out + 1)}, {v(sq)}, {v(sq + 1)}')


def unpack(src, n, dst):
    for i in range(n):
        p(f'v_lshlrev_b32 {v(dst + 2 * i)}, 16, {v(src + i)}')
        p(f'v_and_b32 {v(dst + 2 * i + 1)}, 0xffff0000, {v(src + i)}')


def publish_stats(area):
    p(f's_add_u32 {s(sT)}, {s(sSt)}, {s(sB128)}')
    if area:
        p(f's_add_u32 {s(sT)}, {s(sT)}, {area:#x}')
    p('s_mov_b64 exec, 0xffff')
    gstore([f'buffer_store_dwordx2 {v(T, 2)}, {v(vStl)}, {s(R_WS, 4)}, {s(sT)} offen'])
    p('s_mov_b64 exec, -1')


def gather_loads(area):
    return [(f's_add_u32 {s(99)}, {s(sSt)}, {area:#x}', None),
            (f'buffer_load_dwordx2 {v(T + 4, 2)}, {v(vStl)}, {s(R_WS, 4)}, {s(99)} offen{PG}', None),
            (f'buffer_load_dwordx2 {v(T + 6, 2)}, {v(vStl)}, {s(R_WS, 4)}, {s(99)} offen offset:128{PG}', None)]


def retry_until(loads, test, tested=False, after=None):
    if not tested:
        test()
    p.begin_ool('RETRY', 's_cbranch_vccnz')
    top, done = p.label('rt'), p.label('rdone')
    p(f'{top}:')
    emit([loads])
    p('s_waitcnt vmcnt(0)')
    test()
    spin_tail(top, done)
    if after:
        emit([after])
    p.end_ool()


def gather_finish(area):
    def test():
        p(f'v_add_f32 {v(T)}, {v(T + 4)}, {v(T + 6)}')
        p(f'v_add_f32 {v(T + 1)}, {v(T + 5)}, {v(T + 7)}')
        p(f'v_cmp_u_f32 vcc, {v(T)}, {v(T + 1)}')
    retry_until(gather_loads(area), test)
    reduce_g(T, T + 1)


LOC_Z2 = lambda i: 1024 * i
LOC_Z1 = lambda i: 1024 * (i - 48) if i >= 48 else CT + 1024 * i
LOC_WO = lambda i: 1024 * (i - 48) if i >= 48 else 65536 + 1024 * i


def w_dma_ops(sbase, extra, loc, name):
    ops = []
    for j in range(7):
        for i in range(4):
            o = []
            if i == 0:
                o.append((f's_add_u32 m0, {s(sDm)}, {loc(16 * j):#x}', None))
                o.append((f's_add_u32 {s(sDo)}, {s(sbase)}, {extra + 16384 * j:#x}', None))
            if OPT['nobg'] & 1:
                o.append(('s_nop 0', None))
            else:
                o.append((f'buffer_load_dwordx4 {v(vL16)}, {s(R_WS, 4)}, {s(sDo)} offen offset:{i * 1024} lds', f'{name}{j}'))
            ops.append(o)
    return ops


def emit(groups):
    for g in groups:
        for text, tag in g:
            p(text, tag=tag)


def wsp_dma_ops(batch):
    q, ih = batch >> 1, batch & 1
    ops = []
    for il in range(4):
        for rh in range(2):
            if batch < 2:
                imm, so = 128 * il, 80 + batch
                o = [(f's_add_u32 m0, {s(78 + batch)}, {1024 + 2048 * il + 1024 * rh - imm}', None)]
            else:
                imm, so = 512 * ih + 128 * il, sDo
                o = [(f's_add_u32 m0, {s(sWsp)}, {1024 + 8192 * (batch % 3) + 2048 * il + 1024 * rh - imm}', None)]
                if not ops:
                    o += [(f's_add_u32 {s(sDo)}, {s(sW)}, {q}', None), (f's_and_b32 {s(sDo)}, {s(sDo)}, 3', None),
                          (f's_lshl_b32 {s(sDo)}, {s(sDo)}, 21', None)]
            o.append((f'buffer_load_dwordx4 {v(vWspA + rh)}, {s(R_WSP, 4)}, {s(so)} offen offset:{imm} lds', f'wsp{max(batch, 1)}'))
            ops.append(o)
    return ops


def table_addr(dst, soff):
    p(f'v_add_u32 {v(dst)}, {s(soff)}, {v(vL16)}')
    p(f'v_mov_b32 {v(dst + 1)}, {s(93)}')
    p(f'v_add_co_u32 {v(dst)}, vcc, {s(92)}, {v(dst)}')
    p(f'v_addc_co_u32 {v(dst + 1)}, vcc, 0, {v(dst + 1)}, vcc')


def code_prefetch(bit, lo):
    if not OPT['cpf'] & bit:
        return
    if_layer(0)
    p(f's_lshr_b32 {s(99)}, s2, 3')
    p(f's_lshl_b32 {s(99)}, {s(99)}, 2')
    p(f's_add_u32 {s(99)}, {s(99)}, {s(sW)}')
    p(f's_lshl_b32 {s(99)}, {s(99)}, 7')
    p(f's_sub_u32 {s(98)}, {s(92)}, L_table-{lo}')
    p(f's_subb_u32 {s(97)}, {s(93)}, 0')
    p(f's_add_u32 {s(98)}, {s(98)}, {s(99)}')
    p(f's_addc_u32 {s(97)}, {s(97)}, 0')
    p(f'v_mov_b32 {v(T + 6)}, {s(98)}')
    p(f'v_mov_b32 {v(T + 7)}, {s(97)}')
    p('s_mov_b64 exec, 1')
    p(f'global_load_dword {v(251)}, {v(T + 6, 2)}, off')
    p('s_mov_b64 exec, -1')
    p.end()


def poison(site, reg):
    todo = [(sZst, vZst, 0)] if OPT['zs'] and OPT['pz'] == site else []
    todo += [(sVst, vVst, 0), (sVst, vVst, 0x10000)] if OPT['vs'] and OPT['pv'] == site else []
    if not todo:
        return
    if_layer(0)
    for k in range(4):
        p(f'v_mov_b32 {v(reg + k)}, -1')
    for base, va, off in todo:
        p(f's_add_u32 {s(99)}, {s(base)}, {LSTRIDE + off:#x}')
        p(f'buffer_store_dwordx4 {v(reg, 4)}, {v(va)}, {s(R_WL, 4)}, {s(99)} offen sc1', tag='pub' if site == 3 else None)
    p.end()


def m1_load(dst):
    p(f's_lshl_b32 {s(99)}, {s(sW)}, 11')
    p(f's_add_u32 {s(99)}, {s(99)}, {CT_M1}')
    table_addr(dst, 99)
    for k in range(2):
        p(f'global_load_dwordx4 {v(M1 + 4 * k, 4)}, {v(dst, 2)}, off offset:{1024 * k}')


def ct_dma(dst):
    p(f's_mul_i32 {s(99)}, {s(sW)}, 3584')
    p(f's_add_u32 m0, {s(99)}, {CT}')
    table_addr(dst, 99)
    for off in (0, 1024, 2048):
        p(f'global_load_lds_dwordx4 {v(dst, 2)}, off offset:{off}', tag='ct')
    p('s_mov_b32 exec_hi, 0')
    p(f'global_load_lds_dwordx4 {v(dst, 2)}, off offset:3072', tag='ct')
    p('s_mov_b64 exec, -1')


def wsp_dma(batch):
    p.bg = wsp_dma_ops(batch)
    p.bg_emit()


def wsp_read(batch, reg):
    p.wait_vm(f'wsp{max(batch, 1)}')
    for il in range(4):
        for o in range(2):
            p(f'ds_read_b128 {v(reg + 4 * (2 * il + o), 4)}, {v(vWspR + o)} offset:{8192 * (batch % 3) + 2048 * il}', tag=f'wr{batch}')


def wsp_park(batch):
    q, ih = batch >> 1, batch & 1
    p.wait_vm(f'wsp{max(batch, 1)}')
    for il in range(4):
        for o in range(2):
            p(f'ds_read_b128 {a(64 * q + 32 * o + 4 * (4 * ih + il), 4)}, {v(vWspR + o)} offset:{8192 * (batch % 3) + 2048 * il}', tag=f'wr{batch}')


def wsp_fix(units, reg, first=()):
    if not units and not first:
        return
    if_layer(0)
    emit(first)
    for u in units:
        base = 32 * int(u)
        for k in range(32):
            p(f'v_accvgpr_read_b32 {v(reg + k)}, {a(base + k)}')
        k = 0
        for ip in range(4):
            for al in range(8):
                t = reg + 32 + (k & 3)
                k += 1
                lo, hi = reg + 8 * ip + (al >> 1), reg + 8 * ip + 4 + (al >> 1)
                p(f'v_perm_b32 {v(t)}, {v(hi)}, {v(lo)}, {s(sSelHi if al & 1 else sSelLo)}')
                p(f'v_accvgpr_write_b32 {a(base + 4 * al + ip)}, {v(t)}')
    p.end()


def wsp_perm(batch, reg):
    q, ih = batch >> 1, batch & 1
    k = 0
    for ipl in range(2):
        for o in range(2):
            for al in range(8):
                t = T + (k & 7)
                k += 1
                lo, hi = reg + 4 * (4 * ipl + o) + (al >> 1), reg + 4 * (4 * ipl + 2 + o) + (al >> 1)
                p(f'v_perm_b32 {v(t)}, {v(hi)}, {v(lo)}, {s(sSelHi if al & 1 else sSelLo)}')
                p(f'v_accvgpr_write_b32 {a((q * 16 + 8 * o + al) * 4 + 2 * ih + ipl)}, {v(t)}')


def wring_read(idx, ring, depth, loc, rot=0):
    base, off = (vL16, vL16hi, vL16h2)[loc(idx) >> 16], loc(idx) & 0xffff
    p(f'ds_read_b128 {v(ring + 4 * ((idx + rot) % depth), 4)}, {v(base)} offset:{off}', tag=f'w{idx}')


def gemm_r(acc, nt, ks0, ks1, act, ring, depth, loc, first_c=None, fill=None, preload=True, last=None, rot=0):
    fill = dict(fill or {})
    if OPT['nobg'] & 2 and loc is LOC_Z1:
        raise SystemExit('nobg&2 unsupported')
    lo, hi = nt * ks0, nt * ks1
    if preload:
        for idx in range(lo, min(lo + depth, last or hi)):
            wring_read(idx, ring, depth, loc)
    for idx in range(lo, hi):
        ks, t = divmod(idx, nt)
        if (idx - lo) % OPT['we'] == 0:
            p.wait_lgkm(f'w{min(idx + OPT["we"] - 1, hi - 1)}')
        c = v(acc + 4 * t, 4) if (ks or first_c) else '0'
        p(f'{M16} {v(acc + 4 * t, 4)}, {v(ring + 4 * ((idx + rot) % depth), 4)}, {v(act(ks) if callable(act) else act + 4 * ks, 4)}, {c}')
        if idx + depth < (last or hi):
            wring_read(idx + depth, ring, depth, loc, rot)
        f = fill.pop(idx, None)
        if callable(f):
            f()
        elif f:
            emit([f])
    assert not fill


def spread(groups, first, step):
    return {first + step * k: g for k, g in enumerate(groups)}


def gelu(x, n, tmp):
    for i in range(0, n, 4):
        t = tmp + (i & 4)
        for k in (0, 2):
            p(f'v_pk_mul_f32 {v(t + k, 2)}, {v(x + i + k, 2)}, {v(x + i + k, 2)}')
        for k in (0, 2):
            p(f'v_pk_fma_f32 {v(t + k, 2)}, {v(t + k, 2)}, {v(vGK, 2)}, {v(vGK, 2)} op_sel:[0,0,1] op_sel_hi:[1,0,1]')
        for k in (0, 2):
            p(f'v_pk_mul_f32 {v(t + k, 2)}, {v(t + k, 2)}, {v(x + i + k, 2)}')
        for k in range(4):
            p(f'v_exp_f32 {v(t + k)}, {v(t + k)}')
        for k in (0, 2):
            p(f'v_pk_add_f32 {v(t + k, 2)}, {v(t + k, 2)}, 1.0 op_sel_hi:[1,0]')
        for k in range(4):
            p(f'v_rcp_f32 {v(t + k)}, {v(t + k)}')
        for k in (0, 2):
            p(f'v_pk_mul_f32 {v(x + i + k, 2)}, {v(t + k, 2)}, {v(x + i + k, 2)}')


vWspA, vWspR = 244, 236
vHw2, vXw, vGrp = 250, 246, 254
vL16hi, vL16h2 = 252, 255
p.section('pro')
p(f'{NAME}:')
p(f's_cmp_ge_u32 s2, 256')
p('s_cbranch_scc1 L_exit')
SRDS = ((R_X, 0, 2097152), (R_WS, 96, LBASE), (R_WIN, 48, 512 * 3584), (R_WOUT, 72, 896 * 1024), (R_WSP, 56, 2048 * 4096),
        (R_BSP, 64, 4096), (R_WL, 96, 2 * LSTRIDE), (R_DBG, 88, 256), (R_OUT, 80, 2097152))
for r, off, size in SRDS[:6]:
    p(f's_load_dwordx2 {s(r, 2)}, s[0:1], {off}')
if OPT['diag']:
    p(f's_memrealtime {s(sStamp, 2)}')
if PROF:
    p(f'{"s_memtime" if PROF == 2 else "s_memrealtime"} {s(sStamp, 2)}')
p(f's_getpc_b64 {s(92, 2)}')
p('L_pc:')
lane, n_, g_, t0, t1, t2, t3, tid = 100, 101, 102, 103, 104, 105, 106, 107
p(f'v_mov_b32 {v(tid)}, v0')
p(f's_lshr_b32 {s(94)}, s2, 3')
p(f's_lshl_b32 {s(94)}, {s(94)}, 4')
p(f'v_lshrrev_b32 {v(T)}, 4, v0')
p(f'v_add_u32 {v(T)}, {s(94)}, {v(T)}')
p(f'v_lshlrev_b32 {v(T)}, 7, {v(T)}')
p(f'v_min_u32 {v(T)}, L_end-L_pc-4, {v(T)}')
p(f'v_mov_b32 {v(T + 3)}, {s(93)}')
p(f'v_add_co_u32 {v(T + 2)}, vcc, {s(92)}, {v(T)}')
p(f'v_addc_co_u32 {v(T + 3)}, vcc, 0, {v(T + 3)}, vcc')
p(f'global_load_dword {v(253)}, {v(T + 2, 2)}, off')
p(f'v_lshrrev_b32 {v(t0)}, 6, v0')
p(f'v_and_b32 {v(lane)}, 63, v0')
p(f'v_readfirstlane_b32 {s(sW)}, {v(t0)}')
p(f's_lshr_b32 {s(94)}, s2, 3')
p(f's_and_b32 {s(sB)}, {s(94)}, 7')
p(f's_and_b32 {s(95)}, s2, 7')
p(f's_lshl_b32 {s(95)}, {s(95)}, 1')
p(f's_lshr_b32 {s(96)}, {s(94)}, 4')
p(f's_add_u32 {s(95)}, {s(95)}, {s(96)}')
p(f's_sub_u32 {s(96)}, 32, {s(95)}')
p(f's_cmp_eq_u32 {s(95)}, 0')
p(f's_cselect_b32 {s(96)}, 16, {s(96)}')
p(f's_bitcmp1_b32 {s(94)}, 3')
p(f's_cselect_b32 {s(sC)}, {s(96)}, {s(95)}')
p(f's_lshl_b32 {s(sB128)}, {s(sB)}, 7')
p(f's_lshl_b32 {s(94)}, {s(sW)}, 9')
p(f's_add_u32 {s(94)}, {s(94)}, {s(sC)}')
p(f'v_and_b32 {v(t0)}, 28, {v(lane)}')
p(f'v_lshlrev_b32 {v(t0)}, 4, {v(t0)}')
p(f'v_and_b32 {v(t1)}, 32, {v(lane)}')
p(f'v_add3_u32 {v(t0)}, {v(t0)}, {v(t1)}, {s(94)}')
p(f'v_lshlrev_b32 {v(t2)}, 10, {v(t0)}')
p(f'v_and_b32 {v(t1)}, 3, {v(lane)}')
p(f'v_lshl_add_u32 {v(t0)}, {v(t1)}, 5, {v(t2)}')
p(f'v_lshl_add_u32 {v(t2)}, {v(t1)}, 4, {v(t2)}')
XR = 120


def x_loads(i0, i1):
    for i in range(i0, i1):
        if i == 0:
            p(f'buffer_load_dwordx4 {v(XR, 4)}, {v(t0)}, {s(R_X, 4)}, {s(sB128)} offen')
            p(f'buffer_load_dwordx4 {v(XR + 4, 4)}, {v(t0)}, {s(R_X, 4)}, {s(sB128)} offen offset:16')
            continue
        p(f's_add_u32 {s(99)}, {s(sB128)}, {128 * i}')
        p(f's_and_b32 {s(99)}, {s(99)}, 0x3ff')
        p(f'buffer_load_dwordx4 {v(XR + 8 * i, 4)}, {v(t2)}, {s(R_X, 4)}, {s(99)} offen')
        p(f'buffer_load_dwordx4 {v(XR + 8 * i + 4, 4)}, {v(t2)}, {s(R_X, 4)}, {s(99)} offen offset:64')


def first_loads():
    p('s_waitcnt lgkmcnt(0)')
    if OPT['diag']:
        p(f's_mov_b32 {s(sPidx)}, {s(sStamp)}')
        p(f's_mov_b32 s101, {s(sStamp)}')
    if PROF:
        p(f'v_mov_b32 {v(vProf)}, 0')
        p(f'v_writelane_b32 {v(vProf)}, {s(sStamp)}, 0')
        p(f's_mov_b32 {s(sPidx)}, 1')
        STAMPS.append('entry')
    stamp('karg')
    x_loads(0, OPT['x1'])


p(f's_mov_b32 {s(R_X + 2)}, {SRDS[0][2]:#x}')
p(f's_mov_b32 {s(R_X + 3)}, 0x20000')
p(f's_mov_b32 {s(sL)}, 0')
if OPT['min0']:
    first_loads()
p(f'v_and_b32 {v(n_)}, 15, {v(lane)}')
p(f'v_lshrrev_b32 {v(g_)}, 4, {v(lane)}')
p(f'v_lshlrev_b32 {v(vL16)}, 4, {v(lane)}')
for r, off, size in SRDS[1:]:
    p(f's_mov_b32 {s(r + 2)}, {size:#x}')
    p(f's_mov_b32 {s(r + 3)}, 0x20000')
p(f's_mov_b32 {s(sTO)}, {OPT["to"]}')
p(f's_lshl_b32 {s(sB4)}, {s(sB)}, 2')
p(f's_getreg_b32 {s(sLoc)}, hwreg(HW_REG_XCC_ID)')
p(f's_mov_b32 {s(sOnes)}, 0x3f803f80')
p(f's_mov_b32 {s(sSelLo)}, 0x05040100')
p(f's_mov_b32 {s(sSelHi)}, 0x07060302')
p(f'v_and_b32 {v(t3)}, 7, {v(n_)}')
p(f'v_lshlrev_b32 {v(t3)}, 6, {v(t3)}')
p(f'v_and_b32 {v(t1)}, 8, {v(n_)}')
p(f'v_lshlrev_b32 {v(t1)}, 2, {v(t1)}')
p(f'v_add3_u32 {v(t3)}, {v(t3)}, {v(t1)}, {s(94)}')
p(f'v_lshlrev_b32 {v(t3)}, 1, {v(t3)}')
p(f's_lshl_b32 {s(96)}, {s(sC)}, 2')
p(f's_add_u32 {s(96)}, {s(96)}, {s(sW)}')
p(f's_lshl_b32 {s(sSt)}, {s(96)}, 10')
p(f's_add_u32 {s(sSt)}, {s(sSt)}, {STATS:#x}')
p(f's_lshl_b32 {s(96)}, {s(sC)}, 10')
p(f's_add_u32 {s(sS2)}, {s(96)}, {FLAGS + 0x10000:#x}')
p(f's_lshl_b32 {s(96)}, {s(sW)}, 7')
p(f's_add_u32 {s(96)}, {s(96)}, 256')
p(f's_add_u32 {s(sS5)}, {s(96)}, {s(sS2)}')
p(f'v_lshlrev_b32 {v(vStl)}, 3, {v(n_)}')
p(f'v_lshl_add_u32 {v(vStl)}, {v(g_)}, 8, {v(vStl)}')
p(f's_lshl_b32 {s(96)}, {s(sB)}, 2')
p(f's_add_u32 {s(96)}, {s(96)}, {s(sW)}')
p(f's_mul_i32 {s(sZld)}, {s(96)}, 114688')
p(f's_add_u32 {s(sZld)}, {s(sZld)}, {Z_:#x}')
p(f's_and_b32 {s(96)}, {s(sC)}, 7')
p(f's_lshl_b32 {s(96)}, {s(96)}, 10')
p(f's_lshr_b32 {s(97)}, {s(sC)}, 3')
p(f's_lshl_b32 {s(97)}, {s(97)}, 8')
p(f's_add_u32 {s(96)}, {s(96)}, {s(97)}')
p(f's_add_u32 {s(sZst)}, {s(sZld)}, {s(96)}')
p(f'v_and_b32 {v(T)}, 1, {v(g_)}')
p(f'v_lshlrev_b32 {v(T)}, 14, {v(T)}')
p(f'v_and_b32 {v(T + 1)}, 2, {v(g_)}')
p(f'v_lshl_add_u32 {v(T)}, {v(T + 1)}, 12, {v(T)}')
p(f'v_lshl_add_u32 {v(vZst)}, {v(n_)}, 4, {v(T)}')
EI = 64
for k in range(4):
    p(f'v_mov_b32 {v(116 + k)}, -1')
p(f'v_mov_b32 {v(EI)}, -1')
p(f'v_mov_b32 {v(EI + 1)}, -1')
p(f'v_mov_b32 {v(EI + 2)}, {s(sLoc)}')
p(f'v_mov_b32 {v(EI + 3)}, 0')
p(f'v_and_b32 {v(EI + 4)}, 16, {v(vL16)}')
p(f'v_lshlrev_b32 {v(EI + 4)}, 13, {v(EI + 4)}')
p(f'v_and_b32 {v(EI + 5)}, 0x60, {v(vL16)}')
p(f'v_or_b32 {v(EI + 4)}, {v(EI + 4)}, {v(EI + 5)}')
def first_requests():
    if not OPT['min0']:
        first_loads()
    for r, off, size in SRDS[7:]:
        p(f's_load_dwordx2 {s(r, 2)}, s[0:1], {off}')
    p(f's_lshl_b32 {s(96)}, s2, 2')
    p(f's_add_u32 {s(sG0)}, {s(96)}, {s(sW)}')
    p(f's_cmp_eq_u32 {s(sG0)}, 3')
    p.begin('G0', 's_cbranch_scc0')
    p(f'v_lshlrev_b32 {v(EI + 6)}, 4, {v(vL16)}')
    for k in range(2):
        p(f's_mov_b32 {s(99)}, {FLAGS + 0x4000 * k:#x}')
        p(f'buffer_store_dword {v(EI + 3)}, {v(EI + 6)}, {s(R_WS, 4)}, {s(99)} offen sc1', tag='z')
    p.end()
    p(f's_and_b32 {s(96)}, {s(sB)}, 3')
    p(f's_lshl_b32 {s(96)}, {s(96)}, 3')
    p(f's_and_b32 {s(97)}, {s(sB)}, 4')
    p(f's_add_u32 {s(96)}, {s(96)}, {s(97)}')
    p(f's_add_u32 {s(96)}, {s(96)}, {s(sW)}')
    p(f's_lshl_b32 {s(96)}, {s(96)}, 2')
    p(f's_add_u32 {s(97)}, {s(sS2)}, 768')
    p(f's_add_u32 {s(sF2s)}, {s(96)}, {s(97)}')
    p(f's_lshl_b32 {s(96)}, {s(sW)}, 5')
    p(f's_add_u32 {s(sF2l)}, {s(96)}, {s(97)}')
    if OPT['wf2']:
        p('s_mov_b64 exec, 3')
        p(f'buffer_store_dword {v(EI + 3)}, {v(EI + 4)}, {s(R_WS, 4)}, {s(sF2s)} offen sc1', tag='pub')
    p('s_mov_b64 exec, 0xffff')
    for k in range(0 if OPT['noe'] & 1 else 3):
        p(f's_add_u32 {s(96)}, {s(sSt)}, {s(sB128)}')
        p(f's_add_u32 {s(96)}, {s(96)}, {k * 0x20000:#x}')
        p(f'buffer_store_dwordx2 {v(EI, 2)}, {v(vStl)}, {s(R_WS, 4)}, {s(96)} offen sc1', tag='pub')
    p('s_mov_b64 exec, 0xff')
    p(f's_add_u32 {s(97)}, {s(sS5)}, {s(sB4)}')
    if not OPT['noe'] & 2:
        p(f'buffer_store_dword {v(EI + 3)}, {v(EI + 4)}, {s(R_WS, 4)}, {s(97)} offen sc1', tag='pub')
    if_wave0()
    p('s_mov_b64 exec, 1')
    p(f's_add_u32 {s(96)}, {s(sS2)}, {s(sB4)}')
    p(f'buffer_store_dword {v(EI + 2)}, off, {s(R_WS, 4)}, {s(96)} offset:128 sc1', tag='pub')
    p('s_mov_b64 exec, 15')
    if not OPT['noe'] & 2:
        p(f'buffer_store_dword {v(EI + 3)}, {v(EI + 4)}, {s(R_WS, 4)}, {s(96)} offen sc1', tag='pub')
    p(f's_lshl_b32 {s(96)}, s2, 8')
    p(f's_add_u32 {s(96)}, {s(96)}, {FLAGS:#x}')
    p('s_cmp_lt_u32 s2, 128')
    p('s_cselect_b32 exec_lo, 2, 3')
    p(f'buffer_store_dword {v(EI + 3)}, {v(EI + 4)}, {s(R_WS, 4)}, {s(96)} offen sc1', tag='pub')
    p.end()
    p('s_mov_b64 exec, -1')
    p(f's_add_u32 {s(R_WL)}, {s(R_WS)}, {LBASE:#x}')
    p(f's_addc_u32 {s(R_WL + 1)}, {s(R_WS + 1)}, 0')
    p('s_waitcnt lgkmcnt(0)')
    if OPT['tlb']:
        p(f's_cmp_eq_u32 {s(sW)}, 1')
        p.begin('W1', 's_cbranch_scc0')
        p(f'v_lshlrev_b32 {v(EI + 6)}, 21, {v(n_)}')
        p('s_mov_b64 exec, 0xffff')
        if OPT['tlb'] & 1:
            p(f'buffer_load_dword {v(240)}, {v(EI + 6)}, {s(R_WL, 4)}, 0 offen sc1')
            p(f'buffer_load_dword {v(239)}, {v(EI + 6)}, {s(R_WS, 4)}, 0 offen sc1')
        if OPT['tlb'] & 2:
            p(f'buffer_load_dword {v(238)}, {v(EI + 6)}, {s(R_WSP, 4)}, 0 offen')
            p(f'buffer_load_dword {v(223)}, off, {s(R_DBG, 4)}, 0 offset:128 sc1')
        if OPT['tlb'] & 4:
            p(f'buffer_load_dword {v(222)}, off, {s(R_OUT, 4)}, 0 sc1')
        p('s_mov_b64 exec, -1')
        p.end()
    stamp('start')


def early_requests():
    global prep, wsp_first
    if OPT['early'] & 1:
        emit(prep)
        prep = []
    emit(wsp_first[:OPT['early'] >> 1])
    wsp_first = wsp_first[OPT['early'] >> 1:]


def hook(k):
    if OPT['pre'] == k:
        first_requests()
    if max(OPT['pre'], 2) == k:
        early_requests()


hook(1)
vPi, vPo, vPri, vPro, PK = 112, 114, 242, 243, 224
PST = SCR + 12288
p(f's_add_u32 {s(92)}, {s(92)}, L_table-L_pc')
p(f's_addc_u32 {s(93)}, {s(93)}, 0')
for k in range(2):
    p(f'v_add_u32 {v(T)}, {256 * k}, {v(tid)}')
    p(f'v_mul_u32_u24 {v(T + 1)}, 4682, {v(T)}')
    p(f'v_lshrrev_b32 {v(T + 1)}, 16, {v(T + 1)}')
    p(f'v_mul_u32_u24 {v(T + 2)}, 14, {v(T + 1)}')
    p(f'v_sub_u32 {v(T)}, {v(T)}, {v(T + 2)}')
    p(f'v_and_b32 {v(T + 2)}, 0x38, {v(T + 1)}')
    p(f'v_add_u32 {v(T + 1)}, {v(T + 1)}, {v(T + 2)}')
    p(f'v_mul_u32_u24 {v(T + 1)}, 3584, {v(T + 1)}')
    p(f'v_lshl_add_u32 {v(vPi + k)}, {v(T)}, 4, {v(T + 1)}')
p(f's_and_b32 {s(94)}, {s(sC)}, 7')
p(f's_lshl_b32 {s(94)}, {s(94)}, 6')
p(f's_and_b32 {s(95)}, {s(sC)}, 8')
p(f's_add_u32 {s(94)}, {s(94)}, {s(95)}')
p(f's_mul_i32 {s(94)}, {s(94)}, 3584')
p(f's_lshr_b32 {s(95)}, {s(sC)}, 4')
p(f's_mul_i32 {s(95)}, {s(95)}, 1792')
p(f's_add_u32 {s(94)}, {s(94)}, {s(95)}')
p(f's_mul_i32 {s(95)}, {s(sB)}, 224')
p(f's_add_u32 {s(76)}, {s(94)}, {s(95)}')
p(f'v_lshrrev_b32 {v(T)}, 3, {v(lane)}')
p(f'v_and_b32 {v(T + 1)}, 0x70, {v(vL16)}')
p(f'v_lshl_add_u32 {v(vPo)}, {v(T)}, 10, {v(T + 1)}')
p(f's_and_b32 {s(94)}, {s(sC)}, 7')
p(f's_mul_i32 {s(94)}, {s(94)}, 112')
p(f's_lshr_b32 {s(95)}, {s(sC)}, 3')
p(f's_lshl_b32 {s(95)}, {s(95)}, 5')
p(f's_add_u32 {s(94)}, {s(94)}, {s(95)}')
p(f's_sub_u32 {s(95)}, {s(sC)}, 24')
p(f's_mul_i32 {s(95)}, {s(95)}, 224')
p(f's_add_u32 {s(95)}, {s(95)}, 96')
p(f's_cmp_lt_u32 {s(sC)}, 24')
p(f's_cselect_b32 {s(94)}, {s(94)}, {s(95)}')
p(f's_cselect_b32 {s(95)}, 16, 112')
p(f's_lshr_b32 {s(96)}, {s(sW)}, 1')
p(f's_mul_i32 {s(95)}, {s(95)}, {s(96)}')
p(f's_add_u32 {s(94)}, {s(94)}, {s(95)}')
p(f's_and_b32 {s(95)}, {s(sW)}, 1')
p(f's_lshl_b32 {s(95)}, {s(95)}, 3')
p(f's_add_u32 {s(94)}, {s(94)}, {s(95)}')
p(f's_lshl_b32 {s(94)}, {s(94)}, 10')
p(f's_add_u32 {s(77)}, {s(94)}, {s(sB128)}')
p(f'v_lshrrev_b32 {v(T)}, 2, {v(n_)}')
p(f'v_lshl_add_u32 {v(T)}, {v(g_)}, 3, {v(T)}')
p(f'v_mul_u32_u24 {v(T)}, 224, {v(T)}')
p(f'v_and_b32 {v(T + 1)}, 3, {v(lane)}')
p(f'v_lshl_add_u32 {v(T)}, {v(T + 1)}, 3, {v(T)}')
p(f's_lshl_b32 {s(94)}, {s(sW)}, 5')
p(f's_add_u32 {s(94)}, {s(94)}, {PST}')
p(f'v_add_u32 {v(vPri)}, {s(94)}, {v(T)}')
p(f's_lshl_b32 {s(94)}, {s(sW)}, 3')
p(f's_add_u32 {s(94)}, {s(94)}, {PST + 8192}')
p(f'v_lshl_add_u32 {v(vPro)}, {v(lane)}, 5, {s(94)}')
p(f'v_lshrrev_b32 {v(T)}, 3, {v(lane)}')
p(f'v_lshlrev_b32 {v(T)}, 18, {v(T)}')
p(f'v_and_b32 {v(T + 1)}, 7, {v(lane)}')
p(f'v_xor_b32 {v(T + 1)}, {v(T + 1)}, {v(g_)}')
p(f'v_lshl_add_u32 {v(T)}, {v(T + 1)}, 4, {v(T)}')
p(f's_lshl_b32 {s(94)}, {s(sC)}, 12')
p(f's_add_u32 {s(100)}, {s(sW)}, {s(sB)}')
p(f's_and_b32 {s(100)}, {s(100)}, 3')
p(f's_lshl_b32 {s(95)}, {s(100)}, 10')
p(f's_add_u32 {s(94)}, {s(94)}, {s(95)}')
p(f'v_add_u32 {v(vWspA)}, {s(94)}, {v(T)}')
p(f'v_xor_b32 {v(T)}, 64, {v(vWspA)}')
p(f'v_add_u32 {v(vWspA + 1)}, 0x20000, {v(T)}')
p(f's_mul_i32 {s(sWsp)}, {s(sW)}, 24576')
p(f'v_lshrrev_b32 {v(T)}, 1, {v(n_)}')
p(f'v_xor_b32 {v(T)}, {v(T)}, {v(g_)}')
p(f'v_lshlrev_b32 {v(T)}, 4, {v(T)}')
p(f'v_lshl_add_u32 {v(T)}, {v(n_)}, 7, {v(T)}')
p(f's_add_u32 {s(94)}, {s(sWsp)}, 1024')
p(f'v_add_u32 {v(vWspR)}, {s(94)}, {v(T)}')
p(f'v_xor_b32 {v(vWspR + 1)}, 64, {v(vWspR)}')
p(f's_lshr_b32 {s(94)}, {s(sB)}, 2')
p(f's_lshl_b32 {s(95)}, {s(sW)}, 21')
for k in range(2):
    p(f's_lshl_b32 {s(96)}, {s(94)}, 13')
    p(f's_add_u32 {s(78 + k)}, {s(96)}, {s(sWsp)}')
    p(f's_lshl_b32 {s(96)}, {s(94)}, 9')
    p(f's_add_u32 {s(80 + k)}, {s(96)}, {s(95)}')
    p(f's_xor_b32 {s(94)}, {s(94)}, 1')
p(f's_lshl_b32 {s(82)}, {s(sW)}, 10')
prep = [[(f's_add_u32 m0, {s(82)}, {PST}', None), (f'buffer_load_dwordx4 {v(vPi)}, {s(R_WIN, 4)}, {s(76)} offen lds', 'prep')],
        [(f's_add_u32 m0, {s(82)}, {PST + 4096}', None), (f'buffer_load_dwordx4 {v(vPi + 1)}, {s(R_WIN, 4)}, {s(76)} offen lds', 'prep')],
        [(f's_add_u32 m0, {s(82)}, {PST + 8192}', None), (f'buffer_load_dwordx4 {v(vPo)}, {s(R_WOUT, 4)}, {s(77)} offen lds', 'prep')],
        [(f'buffer_load_ushort {v(vBsp)}, {v(t3)}, {s(R_BSP, 4)}, 0 offen', None)]]
wsp_first = wsp_dma_ops(0)
hook(2)
p(f's_mul_i32 {s(94)}, {s(sB)}, 229376')
p(f's_mul_i32 {s(95)}, {s(sC)}, 7168')
p(f's_add_u32 {s(94)}, {s(94)}, {s(95)}')
p(f's_lshl_b32 {s(95)}, {s(sW)}, 10')
p(f's_add_u32 {s(94)}, {s(94)}, {s(95)}')
p(f's_mov_b32 {s(83)}, {s(94)}')
p(f's_add_u32 {s(94)}, {s(94)}, 4096')
p(f's_cmp_lt_u32 {s(sW)}, 3')
p(f's_cselect_b32 {s(94)}, {s(94)}, {LBASE:#x}')
p(f's_mov_b32 {s(84)}, {s(94)}')
p(f's_mul_i32 {s(94)}, {s(sB)}, 114688')
p(f's_lshl_b32 {s(96)}, {s(sC)}, 12')
p(f's_add_u32 {s(94)}, {s(94)}, {s(96)}')
p(f's_add_u32 {s(94)}, {s(94)}, {s(95)}')
p(f's_add_u32 {s(94)}, {s(94)}, {WO:#x}')
p(f's_cmp_lt_u32 {s(sC)}, 28')
p(f's_cselect_b32 {s(94)}, {s(94)}, {LBASE:#x}')
p(f's_mov_b32 {s(85)}, {s(94)}')
p(f's_lshl_b32 {s(sVst)}, {s(sC)}, 11')
p(f's_lshl_b32 {s(96)}, {s(sB)}, 8')
p(f's_add_u32 {s(sVst)}, {s(sVst)}, {s(96)}')
p(f'v_lshlrev_b32 {v(T + 3)}, 17, {v(g_)}')
p(f'v_lshl_add_u32 {v(T + 3)}, {v(n_)}, 4, {v(T + 3)}')
p(f's_lshl_b32 {s(96)}, {s(sW)}, 19')
p(f'v_add_u32 {v(vVst)}, {s(96)}, {v(T + 3)}')
p(f'v_mul_u32_u24 {v(T + 3)}, 160, {v(n_)}')
p(f'v_lshl_add_u32 {v(T + 3)}, {v(g_)}, 3, {v(T + 3)}')
p(f's_mul_i32 {s(96)}, {s(sW)}, 2560')
p(f's_add_u32 {s(96)}, {s(96)}, {SCR}')
p(f'v_add_u32 {v(vHw2)}, {s(96)}, {v(T + 3)}')
p(f'v_lshrrev_b32 {v(T + 3)}, 2, {v(lane)}')
p(f'v_mul_u32_u24 {v(T + 3)}, 160, {v(T + 3)}')
p(f'v_and_b32 {v(T + 2)}, 3, {v(lane)}')
p(f'v_lshl_add_u32 {v(T + 3)}, {v(T + 2)}, 3, {v(T + 3)}')
p(f'v_add_u32 {v(vHw)}, {s(96)}, {v(T + 3)}')
p(f'v_add_u32 {v(vHr)}, {SCR}, {v(T + 3)}')


def setup_a():
    p(f's_lshr_b32 {s(94)}, {s(sB)}, 2')
    p(f's_and_b32 {s(95)}, {s(sB)}, 3')
    p(f's_sub_u32 {s(96)}, 32, {s(sC)}')
    p(f's_and_b32 {s(96)}, {s(96)}, 31')
    p(f's_cmp_eq_u32 {s(94)}, 0')
    p(f's_cselect_b32 {s(96)}, {s(sC)}, {s(96)}')
    p(f's_lshl_b32 {s(sVld)}, {s(96)}, 16')
    p(f's_lshl_b32 {s(sH)}, {s(sC)}, 16')
    p(f's_lshl_b32 {s(96)}, {s(95)}, 14')
    p(f's_lshl_b32 {s(97)}, {s(94)}, 7')
    p(f's_add_u32 {s(96)}, {s(96)}, {s(97)}')
    p(f's_add_u32 {s(sK2)}, {s(sH)}, {s(96)}')
    p(f's_lshl_b32 {s(96)}, {s(sW)}, 14')
    p(f's_add_u32 {s(sH)}, {s(sH)}, {s(96)}')
    p(f's_mov_b32 {s(sXb)}, 0')
    p(f's_mov_b32 {s(sXo)}, 0x10000')
    p(f's_lshl_b32 {s(96)}, {s(sB)}, 2')
    p(f's_add_u32 {s(96)}, {s(96)}, {s(100)}')
    p(f's_mul_i32 {s(sZld)}, {s(96)}, 114688')
    p(f's_add_u32 {s(sZld)}, {s(sZld)}, {Z_:#x}')
    p(f's_lshl_b32 {s(96)}, {s(sC)}, 2')
    p(f's_add_u32 {s(96)}, {s(96)}, {s(sW)}')
    p(f's_lshl_b32 {s(sUld)}, {s(96)}, 14')
    p(f's_add_u32 {s(sUld)}, {s(sUld)}, {H_ if OPT["locd"] & 4 else U_:#x}')
    p(f's_lshl_b32 {s(97)}, {s(sB)}, 10')
    p(f's_add_u32 {s(sUst)}, {s(sUld)}, {s(97)}')
    p(f's_lshl_b32 {s(sDm)}, {s(sW)}, 12')
    p(f's_mul_i32 {s(sWI)}, {s(sB)}, 229376')
    p(f's_add_u32 {s(sWI)}, {s(sWI)}, {s(sDm)}')
    p(f's_mul_i32 {s(sWO)}, {s(sB)}, 114688')
    p(f's_add_u32 {s(sWO)}, {s(sWO)}, {s(sDm)}')
    p(f's_add_u32 {s(sWO)}, {s(sWO)}, {WO:#x}')
    p(f's_and_b32 {s(96)}, s2, 15')
    p(f's_lshl_b32 {s(96)}, {s(96)}, 8')
    p(f's_add_u32 {s(sArr)}, {s(96)}, {FLAGS:#x}')
    p(f's_and_b32 {s(96)}, s2, 7')
    p(f's_lshl_b32 {s(96)}, {s(96)}, 12')
    p(f's_add_u32 {s(sRep)}, {s(96)}, {FLAGS:#x}')
    p(f's_lshl_b32 {s(97)}, {s(sB)}, 9')
    p(f's_add_u32 {s(97)}, {s(97)}, {FLAGS + 0x8000:#x}')
    p(f's_add_u32 {s(sP4)}, {s(96)}, {s(97)}')
    p(f's_mov_b32 {s(sS4)}, {s(97)}')
    p(f's_mov_b32 {s(sLocH)}, 0')
    p(f'v_lshlrev_b32 {v(vL8)}, 3, {v(lane)}')
    p(f'v_add_u32 {v(vL16hi)}, 0x10000, {v(vL16)}')
    p(f'v_add_u32 {v(vL16h2)}, 0x20000, {v(vL16)}')
    p(f'v_lshlrev_b32 {v(vPoll)}, 8, {v(n_)}')
    p(f'v_and_b32 {v(vArr)}, 7, {v(lane)}')
    p(f'v_lshlrev_b32 {v(vGrp)}, 2, {v(vArr)}')
    p(f'v_lshlrev_b32 {v(vArr)}, 12, {v(vArr)}')
    p(f'v_mov_b32 {v(vGK)}, {f2u(-2.302208198144325 * 0.044715):#x}')
    p(f'v_mov_b32 {v(vGK + 1)}, {f2u(-2.302208198144325):#x}')
    p(f'v_lshrrev_b32 {v(T)}, 3, {v(lane)}')
    p(f'v_and_b32 {v(T + 4)}, 7, {v(lane)}')
    p(f'v_lshlrev_b32 {v(T + 4)}, 4, {v(T + 4)}')
    p(f'v_lshl_add_u32 {v(T + 2)}, {v(T)}, 8, {v(T + 4)}')
    p(f's_lshl_b32 {s(96)}, {s(sW)}, 12')
    p(f'v_add_u32 {v(vK2)}, {s(96)}, {v(T + 2)}')
    p(f'v_and_b32 {v(T)}, 1, {v(T)}')
    p(f'v_lshl_add_u32 {v(T)}, {v(T)}, 4, {v(g_)}')
    p(f'v_mul_u32_u24 {v(T)}, 144, {v(T)}')
    p(f's_lshr_b32 {s(96)}, {s(sW)}, 1')
    p(f's_mul_i32 {s(96)}, {s(96)}, 4608')
    p(f's_and_b32 {s(97)}, {s(sW)}, 1')
    p(f's_mul_i32 {s(97)}, {s(97)}, 1152')
    p(f's_add_u32 {s(96)}, {s(96)}, {s(97)}')
    p(f's_add_u32 {s(96)}, {s(96)}, {SCR}')
    p(f'v_add3_u32 {v(vTr)}, {v(T)}, {v(T + 4)}, {s(96)}')
    p(f'v_lshrrev_b32 {v(T)}, 5, {v(lane)}')
    p(f'v_and_b32 {v(T + 1)}, 1, {v(g_)}')
    p(f'v_lshl_add_u32 {v(T + 2)}, {v(T)}, 4, {v(n_)}')
    p(f'v_mul_u32_u24 {v(T + 2)}, 144, {v(T + 2)}')
    p(f'v_lshl_add_u32 {v(T + 2)}, {v(T + 1)}, 4, {v(T + 2)}')
    p(f's_lshl_b32 {s(96)}, {s(sW)}, 5')
    p(f's_add_u32 {s(97)}, {s(96)}, {SCR}')
    p(f'v_add_u32 {v(vTw)}, {s(97)}, {v(T + 2)}')
    p(f'v_and_b32 {v(T + 2)}, 1, {v(lane)}')
    p(f'v_lshlrev_b32 {v(T + 2)}, 5, {v(T + 2)}')
    p(f'v_and_b32 {v(T + 3)}, 2, {v(lane)}')
    p(f'v_lshl_add_u32 {v(T + 2)}, {v(T + 3)}, 3, {v(T + 2)}')
    p(f'v_lshrrev_b32 {v(T + 3)}, 2, {v(lane)}')
    p(f'v_add_u32 {v(T + 2)}, {v(T + 2)}, {v(T + 3)}')
    p(f'v_mul_u32_u24 {v(T + 2)}, 144, {v(T + 2)}')
    p(f'v_add_u32 {v(vXw)}, {s(97)}, {v(T + 2)}')
    p(f'v_add_u32 {v(vXw + 1)}, 16, {v(vXw)}')
    p(f's_lshl_b32 {s(96)}, {s(95)}, 4')
    p(f's_add_u32 {s(96)}, {s(96)}, {s(94)}')
    p(f's_lshl_b32 {s(96)}, {s(96)}, 5')
    p(f's_add_u32 {s(98)}, {s(96)}, {s(sC)}')
    p(f's_lshl_b32 {s(96)}, {s(sW)}, 7')
    p(f's_add_u32 {s(96)}, {s(96)}, {s(98)}')
    p(f's_lshl_b32 {s(96)}, {s(96)}, 10')
    p(f'v_add_u32 {v(vXr)}, {s(96)}, {v(vL16)}')
    p(f'v_mul_u32_u24 {v(T + 3)}, 1040, {v(T + 1)}')
    p(f'v_lshl_add_u32 {v(T + 3)}, {v(T)}, 8, {v(T + 3)}')
    p(f'v_lshl_add_u32 {v(T + 3)}, {v(n_)}, 3, {v(T + 3)}')
    p(f's_mul_i32 {s(96)}, {s(sW)}, 2080')
    p(f's_add_u32 {s(96)}, {s(96)}, {SCR}')
    p(f'v_add_u32 {v(vUr)}, {s(96)}, {v(T + 3)}')
    p(f'v_mul_u32_u24 {v(T + 3)}, 1040, {v(n_)}')
    p(f'v_lshl_add_u32 {v(T + 3)}, {v(g_)}, 5, {v(T + 3)}')
    p(f's_lshl_b32 {s(96)}, {s(sW)}, 8')
    p(f's_add_u32 {s(96)}, {s(96)}, {SCR}')
    p(f'v_add_u32 {v(vUw)}, {s(96)}, {v(T + 3)}')
    p(f'v_lshlrev_b32 {v(T + 3)}, 13, {v(g_)}')
    p(f'v_lshl_add_u32 {v(T + 3)}, {v(n_)}, 4, {v(T + 3)}')
    p(f's_lshl_b32 {s(96)}, {s(sW)}, 9')
    p(f'v_add_u32 {v(vVld)}, {s(96)}, {v(T + 3)}')
    for q in range(1, 5):
        p(f's_add_u32 {s(96)}, {s(sW)}, {q}')
        p(f's_and_b32 {s(96)}, {s(96)}, 3')
        p(f's_mul_i32 {s(96)}, {s(96)}, 3072')
        p(f's_add_u32 {s(96)}, {s(96)}, {SCR + (1024 * (q - 1) if q < 4 else 0)}')
        p(f'v_add_u32 {v(vRed + q - 1)}, {s(96)}, {v(vL16)}')


def setup_b():
    p(f'v_and_b32 {v(T)}, 7, {v(n_)}')
    p(f'v_lshlrev_b32 {v(T)}, 6, {v(T)}')
    p(f'v_add_u32 {v(T)}, {s(98)}, {v(T)}')
    p(f'v_lshlrev_b32 {v(T + 1)}, 2, {v(g_)}')
    p(f'v_mul_u32_u24 {v(T + 1)}, {v(T + 1)}, {v(T)}')
    p(f'v_lshrrev_b32 {v(T + 2)}, 3, {v(n_)}')
    p(f'v_lshl_add_u32 {v(T + 1)}, {v(T + 2)}, 9, {v(T + 1)}')
    p(f's_cmp_eq_u32 {s(94)}, 0')
    p(f's_cselect_b32 {s(73)}, 1.0, -1.0')
    p(f's_cselect_b32 {s(74)}, 0, 1.0')
    p(f's_cselect_b32 {s(72)}, 1.0, 0')
    p(f's_cmp_eq_u32 {s(sC)}, 0')
    p(f's_cselect_b32 {s(72)}, {s(72)}, 1.0')
    p(f's_cselect_b32 {s(73)}, 0, {s(73)}')
    p(f's_cselect_b32 {s(74)}, {s(74)}, 0')
    for k in range(8):
        cp = 16 * (k >> 2) + (k & 3)
        p(f'v_mad_u32_u24 {v(T + 2)}, {v(T)}, {cp}, {v(T + 1)}')
        p(f'v_and_b32 {v(T + 2)}, 0x7ff, {v(T + 2)}')
        p(f'v_cvt_f32_u32 {v(T + 2)}, {v(T + 2)}')
        p(f'v_mul_f32 {v(T + 2)}, {f2u(1.0 / 2048):#x}, {v(T + 2)}')
        p(f'v_cos_f32 {v(T + 3)}, {v(T + 2)}')
        p(f'v_sin_f32 {v(T + 4)}, {v(T + 2)}')
        p(f'v_mul_f32 {v(T + 5)}, {s(74)}, {v(T + 3)}')
        p(f'v_mul_f32 {v(T + 3)}, {s(72)}, {v(T + 3)}')
        p(f'v_fma_f32 {v(T + 4)}, {s(73)}, {v(T + 4)}, {v(T + 5)}')
        p(f'v_cvt_pk_bf16_f32 {v(vC2 + k)}, {v(T + 3)}, {v(T + 4)}')


def late_setup():
    global lane, n_, g_
    lane, n_, g_ = 120, 121, 122
    if OPT['late']:
        p(f'v_lshrrev_b32 {v(lane)}, 4, {v(vL16)}')
        p(f'v_and_b32 {v(n_)}, 15, {v(lane)}')
        p(f'v_lshrrev_b32 {v(g_)}, 4, {v(lane)}')
    if OPT['late'] == 2:
        setup_a()
    if OPT['late']:
        setup_b()


assert OPT['pre'] <= 2
if OPT['late'] < 2:
    setup_a()
if OPT['late'] < 1:
    setup_b()
p('s_mov_b32 s0, s86')
p('s_mov_b32 s1, s87')
sF2s, sF2l = 0, 1
stamp('setup')
if OPT['wfirst'] == 1:
    emit(wsp_first)
    wsp_first = []
for i in range(OPT['x1'], OPT['xa']):
    if OPT['wfirst'] == 2 and wsp_first:
        emit([wsp_first.pop(0)])
    x_loads(i, i + 1)
if OPT['xa'] == 8:
    m1_load(108)
if OPT['ctpos'] == 0:
    ct_dma(110)
SCHED = OPT['sched'].split('/')
FIX = OPT['fix'].split('/')
WSR = (160, 192)
a2a_load = [(f'buffer_load_dword {v(241)}, {v(vPoll)}, {s(R_WS, 4)}, {s(sRep)} offen sc1', None)]


def wsp_run(items):
    i = 0
    while i < len(items):
        if items[i] == 'q':
            if_wave0()
            emit([a2a_load])
            p.end()
            i += 1
            continue
        k = int(items[i + 1])
        if items[i] == 'd':
            p.wait_lgkm(f'wr{k - 3}')
            wsp_dma(k)
        elif items[i] == 'r':
            wsp_read(k, WSR[k & 1])
        elif items[i] == 'a':
            wsp_park(k)
        else:
            wsp_perm(k, WSR[k & 1])
        if OPT['fine'] == 2:
            stamp('*' + items[i:i + 2])
        i += 2


zpois = [(f'buffer_store_dwordx4 {v(116, 4)}, {v(vZst)}, {s(R_WL, 4)}, {s(sZst)} offen sc1', 'pub')]
bg = prep + wsp_first
if OPT['zs']:
    bg = [zpois] + bg if OPT['zp0'] == 0 else bg + [zpois]
for ch in SCHED[0]:
    bg += wsp_dma_ops(int(ch))
for k in range(4):
    p(f'v_mov_b32 {v(T + 2 + k)}, 0')
p.bg = bg
xnext = OPT['xa']
if xnext == 8:
    p.bg_on(OPT['wspev'])
for i in range(64):
    if xnext < 8 and i % OPT['xe'] == OPT['xe'] - 1:
        x_loads(xnext, xnext + 1)
        xnext += 1
        if xnext == 8:
            m1_load(108)
            p.bg_on(OPT['wspev'])
    p(f'v_dot2c_f32_bf16 {v(T + 2 + (i & 1))}, {s(sOnes)}, {v(XR + i)}')
    p(f'v_dot2c_f32_bf16 {v(T + 4 + (i & 1))}, {v(XR + i)}, {v(XR + i)}')
    if i == 7:
        unpack(XR, 8, XV)
    if i == OPT['ann']:
        p.bg_on(0)
        p(f's_cmp_eq_u32 {s(sG0)}, 3')
        p.begin('G0', 's_cbranch_scc0')
        p.wait_vm('z')
        p(f'v_mov_b32 {v(EI)}, 1')
        p('s_mov_b64 exec, 1')
        p(f'buffer_store_dword {v(EI)}, off, {s(R_DBG, 4)}, 0 sc1')
        p('s_mov_b64 exec, -1')
        p.end()
        p.bg_on(OPT['wspev'] if xnext == 8 else 0)
p.bg_on(0)
p.bg_emit()
p(f'v_add_f32 {v(T)}, {v(T + 2)}, {v(T + 3)}')
p(f'v_add_f32 {v(T + 1)}, {v(T + 4)}, {v(T + 5)}')
for qp in ('[1,0,3,2]', '[2,3,0,1]'):
    for k in range(2):
        p(f'v_add_f32_dpp {v(T + k)}, {v(T + k)}, {v(T + k)} quad_perm:{qp} row_mask:0xf bank_mask:0xf')
dbg_load = [(f'buffer_load_dword {v(241)}, off, {s(R_DBG, 4)}, 0 sc1', None)]
assert not SCHED[1]
wsp_run(SCHED[1])

p.section('body')
for _ in range(OPT['algn']):
    p('s_nop 0')
p('L_layer:')
stamp('T')
HP, AF, D1, VO = 56, 72, 104, 56
finish_stats(T, 512)
for i in range(0, 16, 2):
    p(f'v_pk_fma_f32 {v(XV + i, 2)}, {v(XV + i, 2)}, {v(T, 2)}, {v(T, 2)} op_sel:[0,0,1] op_sel_hi:[1,0,1]')
for t in range(4):
    for k in range(2):
        p(f'v_cvt_pk_bf16_f32 {v(HP + 2 * t + k)}, {v(XV + 8 * k + t)}, {v(XV + 8 * k + 4 + t)}')
    p(f'ds_write_b64 {v(vHw)}, {v(HP + 2 * t, 2)} offset:{32 * t}', tag='hw')
p(f's_add_u32 {s(sT + 1)}, {s(sVst)}, 0x10000')
p.wait_lgkm('hw')
p.wait_vm('prep')
p('s_barrier')
for ks in range(2):
    for tile in range(4):
        for half in range(2):
            p(f'ds_read_b64_tr_b16 {v(AF + 16 * ks + 4 * tile + 2 * half, 2)}, {v(vHr)} offset:{(32 * ks + 16 * half) * 160 + 32 * tile}')
if_layer(0)
for k in range(2):
    for half in range(2):
        p(f'ds_read_b64_tr_b16 {v(PK + 4 * k + 2 * half, 2)}, {v(vPri)} offset:{128 * k + 896 * half}')
for half in range(2):
    p(f'ds_read_b64_tr_b16 {v(PK + 8 + 2 * half, 2)}, {v(vPro)} offset:{2048 * half}')
p.end()
for ks in range(2):
    for tile in range(4):
        d = D1 + 4 * tile
        p(f'{M16} {v(d, 4)}, {v(M1 + 4 * ks, 4)}, {v(AF + 16 * ks + 4 * tile, 4)}, {v(d, 4) if ks else 0}')
if_layer(0)
p(f'v_lshlrev_b32 {v(vBsp)}, 16, {v(vBsp)}')
p(f'buffer_store_dwordx4 {v(PK, 4)}, {v(vL16)}, {s(R_WS, 4)}, {s(83)} offen sc1', tag='pub')
p(f'buffer_store_dwordx4 {v(PK + 4, 4)}, {v(vL16)}, {s(R_WS, 4)}, {s(84)} offen sc1', tag='pub')
p(f'buffer_store_dwordx4 {v(PK + 8, 4)}, {v(vL16)}, {s(R_WS, 4)}, {s(85)} offen sc1', tag='pub')
p.end()
for jj in range(2):
    for t in range(4):
        p(f'v_cvt_pk_bf16_f32 {v(VO + 4 * jj + t)}, {v(D1 + 4 * t + 2 * jj)}, {v(D1 + 4 * t + 2 * jj + 1)}')
    p(f'buffer_store_dwordx4 {v(VO + 4 * jj, 4)}, {v(vVst)}, {s(R_WL, 4)}, {s(sT + 1 if jj else sVst)} offen sc1', tag='pub')
stamp('Vst')
if OPT['ctpos'] == 1:
    ct_dma(T + 6)
if_layer(0)
if_wave0()
emit([dbg_load])
p.end()
wsp_run(SCHED[2])
late_setup()
if_wave0()
retry_until(dbg_load, lambda: p(f'v_cmp_ne_u32 vcc, 1, {v(241)}'))
p.end()
p.end()
wz2 = w_dma_ops(sWI, 114688, LOC_Z2, 'wz2')
CMN = [int(ch, 36) for ch in OPT['cmn']]
assert sum(CMN) % 4 == 0 and sum(CMN) + OPT['wzp1'] + OPT['wzp2'] + OPT['wzp3'] == 28
wz2_both, wz2 = wz2[:sum(CMN)], wz2[sum(CMN):]
P1, P2, P3 = OPT['wzp1'], OPT['wzp1'] + OPT['wzp2'], OPT['wzp1'] + OPT['wzp2'] + OPT['wzp3']
assert P1 % 4 == 0 and OPT['wzp0'] % 4 == 0
if (OPT['ctp'] == 2 and OPT['ctpos'] == 0) or P2 > P1:
    if_layer(1)
    if OPT['ctp'] == 2 and OPT['ctpos'] == 0:
        ct_dma(T + 6)
    emit(wz2[P1:P2])
    p.end()
stamp('init')
if OPT['vs']:
    if_layer(0)
    p.wait_vm('pub')
    p.wait_vm('ct')
    arrive(sArr, 8)
    p.end()
    if_layer(1)
    p.wait_vm('x2')
    p.wait_vm('ct')
    arrive_group(sS2, 32)
    p.end()
else:
    p.wait_vm('pub')
    p.wait_vm('ct')
    arrive(sArr, 8)
poison(5, 96)
code_prefetch(1, 'L_k2')
stamp('arr1')
FA, TW, FB, VR, D2, UP, XRES, Y = 40, 64, 80, 96, 160, 192, 224, 208
for k in range(14):
    p(f'ds_read_b128 {v(FA + 4 * k, 4)}, {v(vL16hi)} offset:{CT - 65536 + k * 1024}')
if_layer(0)
wsp_run(SCHED[3])
if_wave0()
retry_until(a2a_load, lambda: p(f'v_cmp_ne_u32 vcc, 16, {v(241)}'))
p.end()
p('s_barrier')
p.end()
for k in range(4):
    p(f's_add_u32 {s(sT + 4 + k)}, {s(sVld)}, {(16 * (k >> 1) + 2 * (k & 1)) * 2048:#x}')
if_layer(1)
emit(wz2[P2:P3])
x2_load = [(f'buffer_load_dword {v(248)}, {v(vGrp)}, {s(R_WS, 4)}, {s(sS2)} offen offset:32{PG}', None)]
if OPT['vs']:
    emit([x2_load])
else:
    poll(sRep, vPoll, 16)
p.end()
assert not SCHED[8:]


def l0_dma(n):
    emit([wz2_both.pop(0) for _ in range(CMN.pop(0))])


stamp('S1')
p('L_k2:')
vl = [(f'buffer_load_dwordx4 {v(VR + 16 * gk + 4 * ii, 4)}, {v(vVld)}, {s(R_WL, 4)}, {s(sT + 4 + 2 * (gk & 1) + (ii >> 1))} '
       f'offen offset:{(ii & 1) * 2048 + (gk >> 1) * 256} sc1', None) for gk in range(4) for ii in range(4)]
for gk in range(4):
    emit([vl[4 * gk:4 * gk + 4]])
    if gk < 3 and SCHED[4 + gk]:
        if_layer(0)
        wsp_run(SCHED[4 + gk])
        p.end()
if OPT['vs']:
    if_layer(1)
    retry_until(x2_load, lambda: p(f'v_cmp_ne_u32 vcc, 1, {v(248)}'))
    p.end()
xl = [(f'buffer_load_dwordx4 {v(XRES + 4 * k, 4)}, {v(vXr)}, {s(R_X, 4)}, {s((sXb, sXo)[k])} offen{LG}', None) for k in range(2)]
emit([xl])
if_layer(0)
p(f'buffer_load_dword {v(248)}, {v(vGrp)}, {s(R_WS, 4)}, {s(sS2)} offen offset:128 sc1')
wsp_run(SCHED[7])
if not SCHED[8:]:
    p('s_waitcnt lgkmcnt(0)')
    p('s_barrier')
p.end()
l0_dma(0)
stamp('Vld')


def u_pack(hi):
    up = (192, 200)[hi]
    for r in range(4):
        for lp in range(2):
            p(f'v_cvt_pk_bf16_f32 {v(up + 2 * r + lp)}, {v(D2 + 16 * hi + 8 * lp + r)}, {v(D2 + 16 * hi + 8 * lp + 4 + r)}')
        if r & 1:
            p(f'ds_write_b128 {v(vUw)}, {v(up + 2 * r - 2, 4)} offset:{128 * hi + 8 * (r - 1)}')


for hi in range(2):
    for ks in range(2):
        if hi and ks:
            u_pack(0)
        r = VR + 32 * hi + 16 * ks
        if OPT['vs']:
            def v_test(r=r):
                p(f'v_max3_u32 {v(T)}, {v(r + 3)}, {v(r + 7)}, {v(r + 11)}')
                p(f'v_max_u32 {v(T)}, {v(T)}, {v(r + 15)}')
                p(f'v_cmp_eq_u32 vcc, -1, {v(T)}')
            gk = 2 * hi + ks
            if OPT['vs'] == 1:
                retry_until(vl[4 * gk:], v_test)
            else:
                retry_until(vl[4 * gk:4 * gk + 4], v_test, after=vl[4 * gk + 4:] + xl if gk < 3 else None)
        for i in range(4):
            for j in range(i + 1, 4):
                p(f'v_swap_b32 {v(r + 4 * i + j)}, {v(r + 4 * j + i)}')
        for lo in range(4):
            d = D2 + 16 * hi + 4 * lo
            p(f'{M16} {v(d, 4)}, {v(r + 4 * lo, 4)}, {v(vC2 + 4 * ks, 4)}, {v(d, 4) if ks else 0}')
fine('st2')
l0_dma(4)
u_pack(1)
for k in range(2):
    p(f'ds_write_b128 {v(vXw + k)}, {v(XRES + 4 * k, 4)} offset:16640')
p('s_waitcnt lgkmcnt(0)')
p('s_barrier')
fine('ubar')
poison(4, 176)
UA, DR, DI, TT, PF = 96, 112, 128, 144, 160
for ri in range(2):
    for dh in range(2):
        for half in range(2):
            p(f'ds_read_b64_tr_b16 {v(UA + 8 * ri + 4 * dh + 2 * half, 2)}, {v(vUr)} offset:{ri * 8320 + dh * 512 + half * 128}')
for o in range(2):
    p(f'ds_read_b128 {v(XRES + 4 * o, 4)}, {v(vTw)} offset:{16640 + 4608 * o}')
l0_dma(4)
for ri in range(2):
    for dh in range(2):
        first = ri == 0 and dh == 0
        fr = FA + 4 * ((2 if ri else 0) + dh)
        fi = FA + 4 * ((0 if ri else 4) + dh)
        p(f'{M32} {v(DR, 16)}, {v(UA + 8 * ri + 4 * dh, 4)}, {v(fr, 4)}, {0 if first else v(DR, 16)}')
        p(f'{M32} {v(DI, 16)}, {v(UA + 8 * ri + 4 * dh, 4)}, {v(fi, 4)}, {0 if first else v(DI, 16)}')
fine('stA')
unpack(XRES, 8, Y)
fine('xres')
l0_dma(4)
for row in range(2):
    for k in range(0, 8, 2):
        r = 8 * row + k
        p(f'v_pk_mul_f32 {v(TT + k, 2)}, {v(DI + r, 2)}, {v(TW + 8 + k, 2)}')
        p(f'v_pk_mul_f32 {v(TT + 8 + k, 2)}, {v(DR + r, 2)}, {v(TW + 8 + k, 2)}')
    for k in range(0, 8, 2):
        r = 8 * row + k
        p(f'v_pk_fma_f32 {v(TT + k, 2)}, {v(DR + r, 2)}, {v(TW + k, 2)}, {v(TT + k, 2)}')
        p(f'v_pk_fma_f32 {v(TT + 8 + k, 2)}, {v(DI + r, 2)}, {v(TW + k, 2)}, {v(TT + 8 + k, 2)} neg_lo:[0,0,1] neg_hi:[0,0,1]')
    for k in range(8):
        p(f'v_cvt_pk_bf16_f32 {v(PF + 8 * row + k)}, {v(TT + 2 * k)}, {v(TT + 2 * k + 1)}')
for k in range(4):
    p(f'{M32} {v(Y, 16)}, {v(PF + 4 * k, 4)}, {v(FB + 4 * k, 4)}, {v(Y, 16)}')
fine('stB')
XO, HO = 224, 232
l0_dma(4)
if_layer(0)
p(f'v_cmp_ne_u32 vcc, {s(sLoc)}, {v(248)}')
p('s_cmp_eq_u64 vcc, 0')
p(f's_cselect_b32 {s(sLoc)}, {OPT["loc"]}, 0')
p(f's_mov_b32 {s(sLocU)}, {s(sLoc)}')
p.end()
local_stats(Y, 16, T)
p(f'v_permlane32_swap_b32 {v(T)}, {v(T + 1)}')
p(f'v_add_f32 {v(T)}, {v(T)}, {v(T + 1)}')
for k, sh in enumerate((8, 4, 2, 1)):
    p(f'v_cvt_pk_bf16_f32 {v(XO + 2 * k)}, {v(Y + 4 * k)}, {v(Y + 4 * k + 1)}')
    p(f'v_cvt_pk_bf16_f32 {v(XO + 2 * k + 1)}, {v(Y + 4 * k + 2)}, {v(Y + 4 * k + 3)}')
    p(f'v_add_f32_dpp {v(T)}, {v(T)}, {v(T)} row_ror:{sh} row_mask:0xf bank_mask:0xf')
p(f'v_mov_b32 {v(T + 1)}, {v(T)}')
p(f's_add_u32 {s(sT)}, {s(sK2)}, {X1_:#x}')
p(f's_add_u32 {s(sT + 1)}, {s(sK2)}, {H_:#x}')
p(f'v_permlane32_swap_b32 {v(T)}, {v(T + 1)}')
finish_stats(T, 512)
norm_pack(Y, 16, T, Y, HO)
fine('norm')
for o in range(2):
    p(f'ds_write_b128 {v(vTw)}, {v(HO + 4 * o, 4)} offset:{16640 + 4608 * o}')
p('s_waitcnt lgkmcnt(0)')
p('s_barrier')
for k in range(2):
    p(f'ds_read_b128 {v(HO + 4 * k, 4)}, {v(vTr)} offset:{16640 + 576 * k}')
for o in range(2):
    p(f'ds_write_b128 {v(vTw)}, {v(XO + 4 * o, 4)} offset:{4608 * o}')
gstore([f'buffer_store_dwordx4 {v(HO + 4 * k, 4)}, {v(vK2)}, {s(R_WL, 4)}, {s(sT + 1)} offen offset:{2048 * k}' for k in range(2)], 'pub', OPT['locd'] & 1, sLocH)
l0_dma(6)
HF, Z2, Z1, WR, WD, GT = 40, 104, 136, 164, 12, 232
for k in range(4):
    p(f's_add_u32 {s(sT + 4 + k)}, {s(sH)}, {H_ + 4096 * k:#x}')
wsp_fix(FIX[0], 104, wz2[:OPT['l0a']])
stamp('K2')
p('s_waitcnt lgkmcnt(0)')
if OPT['wf2']:
    p('s_barrier')
    for k in range(2):
        p(f'ds_read_b128 {v(XO + 4 * k, 4)}, {v(vTr)} offset:{576 * k}')
    p(f'v_mov_b32 {v(T)}, 1')
    p.wait_vm('pub')
    p('s_mov_b64 exec, 1')
    gstore([f'buffer_store_dword {v(T)}, off, {s(R_WS, 4)}, {s(sF2s)}'])
    p('s_mov_b64 exec, -1')
else:
    p.wait_vm('pub')
    arrive_group(sS2)
    for k in range(2):
        p(f'ds_read_b128 {v(XO + 4 * k, 4)}, {v(vTr)} offset:{576 * k}')
wsp_fix(FIX[1], 104, wz2[OPT['l0a']:])
stamp('arr2')
p('s_waitcnt lgkmcnt(0)')
for k in range(7):
    p.wait_vm(f'wz2{k}')
if OPT['wf2']:
    p('s_barrier')
    top, done = p.label('poll'), p.label('pdone')
    p(f'{top}:')
    p(f'buffer_load_dword {v(T)}, {v(vGrp)}, {s(R_WS, 4)}, {s(sF2l)} offen{PG}')
    p('s_waitcnt vmcnt(0)')
    p(f'v_cmp_ne_u32 vcc, 1, {v(T)}')
    spin_tail(top, done)
else:
    poll(sS2, vGrp, 1)
stamp('S2')
p('L_k3:')
hl = [[(f'buffer_load_dwordx4 {v(HF + 4 * ks, 4)}, {v(vL16)}, {s(R_WL, 4)}, {s(sT + 4 + (ks >> 2))} offen offset:{1024 * (ks & 3)}{LG}', None)]
      for ks in range(16)]
xs = [[(f'buffer_store_dwordx4 {v(XO + 4 * k, 4)}, {v(vK2)}, {s(R_WL, 4)}, {s(sT)} offen offset:{2048 * k} sc1', 'x1')] for k in range(2)]
wz1 = w_dma_ops(sWI, 0, LOC_Z1, 'wz1')
emit(hl[:OPT['pre3']])
SEL, ZP, ZT, ZO = 212, 228, 164, 104
p(f'v_and_b32 {v(SEL)}, 0xf0, {v(vL16)}')
p(f'v_lshrrev_b32 {v(SEL + 1)}, 2, {v(vL16)}')
p(f'v_and_b32 {v(SEL + 1)}, 0xc0, {v(SEL + 1)}')
p(f'v_sub_u32 {v(SEL)}, {v(SEL)}, {v(SEL + 1)}')
p(f'v_mov_b32 {v(SEL + 4)}, 0x3f80')
p(f'v_lshlrev_b32 {v(SEL + 4)}, {v(SEL)}, {v(SEL + 4)}')
p(f'v_lshrrev_b32 {v(SEL + 1)}, 5, {v(SEL)}')
p(f'v_cmp_eq_u32 vcc, 0, {v(SEL + 1)}')
p(f'v_cndmask_b32 {v(SEL + 2)}, 0, {v(SEL + 4)}, vcc')
p(f'v_cmp_eq_u32 vcc, 1, {v(SEL + 1)}')
p(f'v_cndmask_b32 {v(SEL + 3)}, 0, {v(SEL + 4)}, vcc')
for k in (0, 1, 4, 5):
    p(f'v_mov_b32 {v(SEL + k)}, 0')
p(f'v_mov_b32 {v(ZP + 14)}, 0')
p(f'v_mov_b32 {v(ZP + 15)}, 0')
wsp_fix(FIX[2], 104)
n_h = 16 - OPT['pre3']
fill = spread(hl[OPT['pre3']:], 1, OPT['hsp'])
fill.update(spread(xs + wz1[:12], OPT['hsp'] * n_h + 1, OPT['z2sp']))
fill[max(fill) + 3] = lambda: poison(1, 132)
gemm_r(Z2, 7, 0, 16, HF, WR, WD, LOC_Z2, fill=fill)
p.wait_vm('x1')
p('s_barrier')
stamp('z2mm')
p.bg = wz1[12:]
p.bg_emit(2)
p.bg_on(OPT['g2ev'])
gelu(Z2, 28, GT)
local_stats(Z2, 28, T)
p.bg_on(0)
reduce_g(T, T + 1)
publish_stats(0)
stamp('pub3')
Z1A = OPT['z1a']
p.bg_emit(None if Z1A else OPT['gb'])
p(f's_mov_b32 {s(sT + 2)}, {s(sZld)}')
p(f'v_add_u32 {v(245)}, {s(sDm)}, {v(vL16)}')
OW, OR, OG = 248, 249, 253
p(f's_add_u32 {s(sT + 1)}, {s(sUst)}, 8192')
p(f's_lshl_b32 {s(sT + 3)}, {s(sB)}, 10')
p(f's_add_u32 {s(sT + 3)}, {s(sT + 3)}, {s(sH)}')
p(f's_add_u32 {s(sT + 12)}, {s(sT + 3)}, {X1_:#x}')
p(f's_add_u32 {s(sT + 13)}, {s(sT + 3)}, {X1_ + 8192:#x}')
for k in range(4):
    p(f's_add_u32 {s(sT + 4 + k)}, {s(sUld)}, {4096 * k}')
    p(f's_add_u32 {s(sT + 8 + k)}, {s(sH)}, {X1_ + 4096 * k:#x}')
p(f'v_and_b32 {v(133)}, 0xf0, {v(vL16)}')
p(f'v_mul_u32_u24 {v(133)}, 9, {v(133)}')
p(f'v_lshrrev_b32 {v(134)}, 8, {v(vL16)}')
p(f'v_lshl_add_u32 {v(133)}, {v(134)}, 5, {v(133)}')
p(f's_mul_i32 {s(99)}, {s(sW)}, 2304')
p(f's_add_u32 {s(99)}, {s(99)}, {SCR + 12288}')
p(f'v_add_u32 {v(OW)}, {s(99)}, {v(133)}')
p(f'v_lshrrev_b32 {v(133)}, 7, {v(vL16)}')
p(f'v_lshl_add_u32 {v(134)}, {v(133)}, 4, {v(vL16)}')
p(f'v_add_u32 {v(OR)}, {s(99)}, {v(134)}')
p(f'v_and_b32 {v(134)}, 0x70, {v(vL16)}')
p(f'v_lshl_add_u32 {v(OG)}, {v(133)}, 16, {v(134)}')
p(f's_lshl_b32 {s(99)}, {s(sW)}, 9')
p(f's_add_u32 {s(99)}, {s(99)}, {s(sC)}')
p(f's_lshl_b32 {s(99)}, {s(99)}, 10')
p(f's_add_u32 {s(sT + 14)}, {s(99)}, {s(sB128)}')
p(f's_add_u32 {s(sT + 15)}, {s(sT + 14)}, 0x8000')
wo = w_dma_ops(sWO, 0, LOC_WO, 'wo')
if Z1A:
    p.wait_vm('wz12')
    p('s_barrier')
    fill = {OPT['gpos']: gather_loads(0)}
    fill.update(spread(wo[:OPT['woa']], OPT['gpos'] + 2, 2))
    gemm_r(Z1, 7, 0, Z1A, HF, WR, WD, LOC_Z1, fill=fill)
else:
    emit([gather_loads(0)])
    p.bg_emit()
    emit(wo[:OPT['woa']])
stamp('z1a')
gather_finish(0)
stamp('S3')
poison(2, 132)
finish_stats(T, 896)
for i in range(0, 28, 2):
    p(f'v_pk_fma_f32 {v(Z2 + i, 2)}, {v(Z2 + i, 2)}, {v(T, 2)}, {v(T, 2)} op_sel:[0,0,1] op_sel_hi:[1,0,1]')
ZO = 192
for pr in range(6):
    if pr < 4:
        tiles = [ft for ft in (2 * pr, 2 * pr + 1) if ft < 7]
        for ft in tiles:
            for k in range(2):
                p(f'v_cvt_pk_bf16_f32 {v(ZP + 2 * ft + k)}, {v(Z2 + 4 * ft + 2 * k)}, {v(Z2 + 4 * ft + 2 * k + 1)}')
    if 2 <= pr:
        q = pr - 2
        for ft in (2 * q, 2 * q + 1):
            for k in range(2 if ft < 7 else 0):
                p(f'v_cvt_pk_bf16_f32 {v(ZO + 2 * ft + k)}, {v(ZT + 4 * ft + 2 * k)}, {v(ZT + 4 * ft + 2 * k + 1)}')
        p(f's_add_u32 {s(sT)}, {s(sZst)}, {q * 32768:#x}')
    if pr < 4:
        for ft in tiles:
            p(f'{M16} {v(ZT + 4 * ft, 4)}, {v(ZP + 4 * pr, 4)}, {v(SEL + (0 if ft & 1 else 2), 4)}, 0')
    if 2 <= pr:
        for k in range(2):
            p(f'v_permlane16_swap_b32 {v(ZO + 4 * q + k)}, {v(ZO + 4 * q + 2 + k)}')
        if q == 3:
            p('s_mov_b32 exec_lo, 0xffff')
            p('s_mov_b32 exec_hi, 0xffff')
        p(f'buffer_store_dwordx4 {v(ZO + 4 * q, 4)}, {v(vZst)}, {s(R_WL, 4)}, {s(sT)} offen sc1', tag='pub')
p('s_mov_b64 exec, -1')
stamp('Zst')
poison(3, 132)
p.wait_vm('wz16')
p('s_barrier')
Z1B = min(16, Z1A + OPT['z1arr'])
wreg = lambda k: 104 + 4 * k if k < 8 else 212 + 4 * (k - 8)
wst = []
for k in range(16):
    g = [(f's_add_u32 {s(sDo)}, {s(sWO)}, {16384 * (3 + (k >> 2)):#x}', None)] if k % 4 == 0 else []
    if not OPT['nobg'] & 1:
        g.append((f'buffer_load_dwordx4 {v(wreg(k), 4)}, {v(vL16)}, {s(R_WS, 4)}, {s(sDo)} offen offset:{1024 * (k & 3)}', None))
    wst.append(g)
bgw = wo[OPT['woa']:12] + wst
wo = []
ZD, AC, RT, UO = OPT['zd'], 196, 228, 240


def zreg(fi):
    k = fi % ZD
    return 56 + 4 * k


def zload(fi):
    if fi % 4 == 0 and fi:
        p(f's_add_u32 {s(sT + 2)}, {s(sT + 2)}, 4096')
    if OPT['k4load'] or fi < ZD:
        p(f'buffer_load_dwordx4 {v(zreg(fi), 4)}, {v(vL16)}, {s(R_WL, 4)}, {s(sT + 2)} offen offset:{(fi % 4) * 1024}' + ' sc1')


nin = min(len(bgw), (112 - 7 * Z1A - 1) // OPT['wosp'])
fill = spread(bgw[:nin], 7 * Z1A + 1, OPT['wosp'])
nz = 0
if OPT['zs'] and OPT['zin'] and nin == len(bgw):
    pos = max(max(fill) + OPT['wosp'], OPT['zin'])
    while nz < ZD and max(pos, 7 * (nz + 5) - 1) < 112:
        pos = max(pos, 7 * (nz + 5) - 1)
        fill[pos] = (lambda k: lambda: zload(k))(nz)
        pos += OPT['zsp']
        nz += 1
gemm_r(Z1, 7, Z1A, Z1B, HF, WR, WD, LOC_Z1, last=112, fill={k: g for k, g in fill.items() if k < 7 * Z1B})
p.wait_vm('pub')
arrive(sS4, 8)
code_prefetch(4, 'L_k4')
stamp('arr4')
if Z1B < 16:
    gemm_r(Z1, 7, Z1B, 16, HF, WR, WD, LOC_Z1, preload=False, fill={k: g for k, g in fill.items() if k >= 7 * Z1B})
p.bg = bgw[nin:]
if nz:
    for fi in range(nz, ZD):
        zload(fi)
    nz = ZD
if OPT['g1w']:
    p.bg_on(8)
    gelu(Z1, 4 * OPT['g1w'], 164)
    p.bg_on(0)
p.bg_emit()
wsp_fix(FIX[3], 164)
stamp('win4')
if OPT['zs']:
    if Z1B < 16:
        p('s_barrier')
else:
    poll(sP4, None, 32)
stamp('S4')
p('L_k4:')
def k4_epilogue(ft):
    ac, buf = AC + 16 * (ft & 1), 12288 * (ft & 1)
    st1 = [f'ds_write_b128 {v(vRed + q - 1)}, {v(ac + 4 * q, 4)} offset:{buf}' for q in (1, 2, 3)]
    st1 += [f'v_add_f32 {v(ac + r)}, {v(vBsp)}, {v(ac + r)}' for r in range(4)]
    st2 = ['s_waitcnt lgkmcnt(0)', 's_barrier']
    st2 += [f'ds_read_b128 {v(RT + 4 * q, 4)}, {v(vRed + 3)} offset:{buf + 1024 * q}' for q in range(3)]
    st3 = [f'v_add_f32 {v(ac + r)}, {v(RT + 4 * q + r)}, {v(ac + r)}' for q in range(3) for r in range(4)]
    st3 += [f'v_mul_f32 {v(ac + r)}, {v(Z1 + 4 * ft + r)}, {v(ac + r)}' for r in range(4)]
    st3 += [f'v_cvt_pk_bf16_f32 {v(UO + 2 * (ft & 1) + k)}, {v(ac + 2 * k)}, {v(ac + 2 * k + 1)}' for k in range(2)]
    if ft == 6:
        st3 += [f'buffer_store_dwordx2 {v(UO, 2)}, {v(vL8)}, {s(R_WL, 4)}, {s(sT + 13)} offen']
    elif ft == 5:
        st3 += [f'buffer_store_dwordx4 {v(UO, 4)}, {v(vL16)}, {s(R_WL, 4)}, {s(sT + 12)} offen']
    elif ft & 1:
        st3 += [f'buffer_store_dwordx4 {v(UO, 4)}, {v(vL16)}, {s(R_WL, 4)}, {s(sT + 1 if ft == 3 else sUst)} offen offset:0']
    return st1, st2, st3


def k4_emit(x):
    if x.startswith('buffer_store'):
        late = x.endswith('offen')
        if late:
            p.wait_vm('x1l')
        gstore([x], 'u6' if 'dwordx2' in x else 'pub', OPT['locd'] & (2 if late else 4), sLocU if OPT['locd'] & (8 if late else 16) else None)
    else:
        p(x)


def gelu_ops(x, t):
    ops = [f'v_mul_f32 {v(t + k)}, {v(x + k)}, {v(x + k)}' for k in range(4)]
    ops += [f'v_fma_f32 {v(t + k)}, {v(t + k)}, {v(vGK)}, {v(vGK + 1)}' for k in range(4)]
    ops += [f'v_mul_f32 {v(t + k)}, {v(t + k)}, {v(x + k)}' for k in range(4)]
    ops += [f'v_exp_f32 {v(t + k)}, {v(t + k)}' for k in range(4)]
    ops += [f'v_add_f32 {v(t + k)}, 1.0, {v(t + k)}' for k in range(4)]
    ops += [f'v_rcp_f32 {v(t + k)}, {v(t + k)}' for k in range(4)]
    ops += [f'v_mul_f32 {v(x + k)}, {v(t + k)}, {v(x + k)}' for k in range(4)]
    return ops


WR5, X1R, XP, FL, X1L = 56, 232, 104, 244, 136
assert ZD == WD


def ureg(ks):
    return (104, 120, 164, 180, 212, 196, 136)[ks >> 2] + 4 * (ks & 3)


ul = [[(f'buffer_load_dwordx4 {v(ureg(ks), 4)}, {v(vL16)}, {s(R_WL, 4)}, {s(sT + 4 + (ks >> 2))} offen offset:{1024 * (ks & 3)}{LG}', None)]
      for ks in range(24)]
ul += [[(f'buffer_load_dwordx2 {v(ureg(24 + i) + 2 * k, 2)}, {v(vL8)}, {s(R_WL, 4)}, {s(sT + 10 + (i >> 1))} offen offset:{1024 * (2 * (i & 1) + k)}{LG}', None)
        for k in range(2)] for i in range(4)]


def flag_store(off):
    p(f'v_mov_b32 {v(FL + 1)}, 1')
    p(f's_add_u32 {s(99)}, {s(sS5)}, {s(sB4)}')
    p('s_mov_b64 exec, 1')
    gstore([f'buffer_store_dword {v(FL + 1)}, off, {s(R_WS, 4)}, {s(99)} offset:{off}'])
    p('s_mov_b64 exec, -1')


def flag_load(off):
    return [(f'buffer_load_dword {v(FL)}, {v(vGrp)}, {s(R_WS, 4)}, {s(sS5)} offen offset:{off}{PG}', None)]


def z_check(fi):
    loads = [(f's_add_u32 {s(99)}, {s(sZld)}, {1024 * fi:#x}', None)]
    loads += [(f'buffer_load_dwordx4 {v(zreg(fi + k), 4)}, {v(vL16)}, {s(R_WL, 4)}, {s(99)} offen offset:{1024 * k} sc1', None) for k in range(2)]
    return loads, lambda: p(f'v_cmp_u_f32 vcc, {v(zreg(fi) + 3)}, {v(zreg(fi + 1) + 3)}')


s4_load = [(f'buffer_load_dword {v(FL)}, off, {s(R_WS, 4)}, {s(sP4)} sc1', None)]


def flag_check(off):
    retry_until(flag_load(off), lambda: p(f'v_cmp_ne_u32 vcc, 1, {v(FL)}'))


for fi in range(nz, ZD):
    zload(fi)
assert not FIX[4]
x1l = [(f'buffer_load_dwordx4 {v(X1L + 4 * o, 4)}, {v(vL16)}, {s(R_WL, 4)}, {s(sT + 12 + o)} offen{LG}', 'x1l') for o in range(2)]
tail = ul[:16]
ROT = 112 % ZD
for ft in range(7):
    fill = {}
    if ft and OPT['k4epi']:
        st1, st2, st3 = k4_epilogue(ft - 1)
        pos = OPT['e1']
        for x in st1:
            fill.setdefault(pos, []).append(x)
            pos += 1
        pos = OPT['e2']
        for x in st2:
            fill.setdefault(pos, []).append(x)
            pos += 1
        pos = OPT['e3']
        for x in st3:
            fill.setdefault(pos, []).append(x)
            pos += 1
    if ft == 0:
        for k in range(16):
            fill[4 * k + 1] = [f'ds_write_b128 {v(245)}, {v(wreg(15 - k), 4)} offset:{16384 * ((15 - k) >> 2) + 1024 * ((15 - k) & 3)}']
    if ft == OPT['upk']:
        free = [k for k in range(64) if k % 4 != 3][-16:]
        for i in range(8):
            fill.setdefault(free[2 * i], []).append(f'v_lshlrev_b32 {v(XV + 2 * i)}, 16, {v(X1L + i)}')
            fill.setdefault(free[2 * i + 1], []).append(f'v_and_b32 {v(XV + 2 * i + 1)}, 0xffff0000, {v(X1L + i)}')
    free = [k for k in range(64) if k not in fill] + [k for k in range(64) if len(fill.get(k, [])) == 1 and fill[k][0][0] == 'v' and k % 4 != 3]
    free = sorted(free[:28])
    for k, x in zip(free, gelu_ops(Z1 + 4 * (ft + OPT['gsh']), T) if OPT['g1w'] <= ft + OPT['gsh'] < 7 else []):
        fill.setdefault(k, []).append(x)
    for a2 in range(16):
        fi = ft * 16 + a2
        chk = OPT['zs'] and fi & 1 and fi < 31
        if OPT['zs'] and fi == 0:
            retry_until(*z_check(0))
        for q in range(4):
            d = AC + 16 * (ft & 1) + 4 * q
            if chk and q == 3:
                z_check(fi + 1)[1]()
            if OPT['k4mfma'] or q == 0:
                p(f'{M16} {v(d, 4)}, {v(zreg(fi), 4)}, {a((q * 16 + a2) * 4, 4)}, {v(d, 4) if a2 else 0}')
            for x in fill.get(4 * a2 + q, []):
                k4_emit(x)
        if chk:
            retry_until(*z_check(fi + 1), tested=True)
        if OPT['zs'] and fi == OPT['q4']:
            emit([s4_load])
        if OPT['zs'] and fi + ZD == 32:
            retry_until(s4_load, lambda: p(f'v_cmp_ne_u32 vcc, 32, {v(FL)}'))
        if fi + ZD < 112:
            zload(fi + ZD)
        elif len(tail) > 16 - OPT['ntail']:
            if len(tail) == 8:
                flag_check(0)
            emit([tail.pop(0)])
        if fi + ZD >= 112:
            wring_read(fi + ZD - 112, WR5, WD, LOC_WO, ROT)
        if fi == OPT['mf']:
            p.wait_vm('pub')
            flag_store(32)
        if OPT['fine'] == 3 and (a2 == 15 or fi == 0) and fi < 111:
            stamp(f'i{fi}')
        if fi == 56:
            p.wait_vm('pub')
            flag_store(96)
        if fi == 70:
            emit([flag_load(96)])
        if fi == 84:
            flag_check(96)
        if fi == OPT['f5a']:
            p.wait_vm('pub')
            flag_store(0)
        if fi == 64:
            code_prefetch(8, 'L_k5')
        if fi == 80:
            p('L_k5:')
        if fi == OPT['x1pos']:
            emit([x1l])
        if fi == OPT['l5a']:
            emit([flag_load(0)])
stamp('K4')


def chain(*fs):
    def run():
        for f in fs:
            f()
    return run


def line(x, tag=None):
    return lambda: p(x, tag=tag)


def flag_after(tag, off):
    p.wait_vm(tag)
    flag_store(off)


def next_m1():
    if_layer(0)
    m1_load(228)
    p.end()


fill = {}


def put(pos, f):
    fill[pos] = chain(fill[pos], f) if pos in fill else f


st1, st2, st3 = k4_epilogue(6)
for k, x in enumerate(st1):
    put(OPT['k1'] + min(k, 3 + (k - 3) // 2), line(x, 'red' if k < 3 else None))
put(OPT['k2'], chain(lambda: p.wait_lgkm('red'), *[line(x) for x in st2[1:]]))
for k, x in enumerate(st3):
    put(OPT['k3'] + k // 2, (lambda y: lambda: k4_emit(y))(x))
kend = OPT['k3'] + len(st3) // 2
assert len(tail) < 8
for k, g in enumerate(tail):
    put(k, (lambda y: lambda: emit([y]))(g))
if OPT['mf'] > 111:
    put(OPT['mf'] - 112, lambda: flag_after('pub', 32))
put(OPT['mb'], lambda: emit([flag_load(32)]))
put(OPT['mc'], lambda: (flag_check(32), fine('ck5m'), emit(ul[16:20])))
for k in range(4):
    put(max(OPT['mc'], kend) + 2 + 2 * k, (lambda y: lambda: emit([y]))(ul[20 + k]))
put(OPT['fa'], lambda: (flag_after('u6', 64), fine('fl5b')))
put(OPT['fb'], lambda: emit([flag_load(64)]))
put(OPT['fc'], lambda: (flag_check(64), fine('ck5b'), emit(ul[24:])))
put(max(OPT['fc'] + 4, 64), next_m1)
gemm_r(XV, 4, 0, 28, ureg, WR5, WD, LOC_WO, first_c=True, fill=fill, preload=False, rot=ROT)


def x_pack():
    for k in range(8):
        p(f'v_cvt_pk_bf16_f32 {v(XP + k)}, {v(XV + 2 * k)}, {v(XV + 2 * k + 1)}')


stamp('K5')
if_layer(1)
x_pack()
for o in range(2):
    p(f'ds_write_b128 {v(OW)}, {v(XP + 4 * o, 4)} offset:{16 * o}')
for k in range(2):
    p(f'ds_read_b128 {v(X1R + 4 * k, 4)}, {v(OR)} offset:{1152 * k}')
for k in range(2):
    p(f'buffer_store_dwordx4 {v(X1R + 4 * k, 4)}, {v(OG)}, {s(R_OUT, 4)}, {s(sT + 14 + k)} offen sc1')
if PROF:
    p('s_waitcnt vmcnt(0)')
    stamp('end')
    p(f's_lshl_b32 {s(sT)}, s2, 2')
    p(f's_add_u32 {s(sT)}, {s(sT)}, {s(sW)}')
    p(f's_lshl_b32 {s(sT)}, {s(sT)}, 8')
    p(f's_add_u32 {s(sT)}, {s(sT)}, {PROFO:#x}')
    p(f'v_lshrrev_b32 {v(T)}, 2, {v(vL16)}')
    p(f'buffer_store_dword {v(vProf)}, {v(T)}, {s(R_WS, 4)}, {s(sT)} offen')
if OPT['diag']:
    p('s_waitcnt vmcnt(0)')
    stamp('end')
    p(f's_sub_u32 s101, s101, {s(sPidx)}')
    p('s_min_u32 s101, s101, 20000')
    p('s_mul_i32 s101, s101, 10')
    p('s_add_u32 s101, s101, 10000')
    p('L_spin:')
    p(f's_memrealtime {s(sStamp, 2)}')
    p('s_waitcnt lgkmcnt(0)')
    p(f's_sub_u32 {s(sStamp)}, {s(sStamp)}, {s(sPidx)}')
    p(f's_cmp_lt_u32 {s(sStamp)}, s101')
    p('s_cbranch_scc1 L_spin')
p('L_exit:')
p('s_endpgm')
p.end()
local_stats(XV, 16, T)
reduce_g(T, T + 1)
publish_stats(0x40000)
p('s_barrier')
if OPT['ctp'] == 0:
    ct_dma(228)
emit(wz2[:OPT['wzp0']])
x_pack()
p(f's_mov_b32 {s(sL)}, 1')
p(f's_mov_b32 {s(sLocH)}, {s(sLoc)}')
p(f's_mov_b32 {s(sLocU)}, 0')
if not OPT['reuse']:
    p(f's_add_u32 {s(R_WL)}, {s(R_WL)}, {LSTRIDE:#x}')
    p(f's_addc_u32 {s(R_WL + 1)}, {s(R_WL + 1)}, 0')
p(f's_mov_b32 {s(R_WL + 2)}, {LSTRIDE:#x}')
p(f's_mov_b32 {s(R_X)}, {s(R_WL)}')
p(f's_mov_b32 {s(R_X + 1)}, {s(R_WL + 1)}')
p(f's_mov_b32 {s(R_X + 2)}, {LSTRIDE:#x}')
p(f's_add_u32 {s(sXb)}, {s(sK2)}, {H_:#x}')
p(f's_add_u32 {s(sXo)}, {s(sXb)}, 2048')
p(f'v_mov_b32 {v(vXr)}, {v(vK2)}')
p(f'v_mov_b32 {v(vXw)}, {v(vTr)}')
p(f'v_add_u32 {v(vXw + 1)}, 576, {v(vTr)}')
p(f'v_mov_b32 {v(vHw)}, {v(vHw2)}')
p(f's_add_u32 {s(sSt)}, {s(sSt)}, 0x20000')
for r in (() if OPT['vs'] else (sArr, sRep)) + (sS2, sS4, sP4, sS5, sF2s, sF2l):
    p(f's_add_u32 {s(r)}, {s(r)}, 0x20000')
for o in range(2):
    p(f's_add_u32 {s(sT + 4 + o)}, {s(sT + 3)}, {H_ + 8192 * o:#x}')
emit([gather_loads(0x20000)])
gather_finish(0x20000)
gstore([f'buffer_store_dwordx4 {v(XP + 4 * o, 4)}, {v(vL16)}, {s(R_WL, 4)}, {s(sT + 4 + o)} offen' for o in range(2)], 'x2')
if OPT['ctp'] == 1:
    ct_dma(228)
emit(wz2[OPT['wzp0']:P1])
p('s_branch L_layer')

p.resolve([('pro', set()), ('body', {'L0'}), ('body', {'L1'})], ['W0', 'G0', 'LOC', 'RETRY'] + (['W1'] if OPT['tlb'] else []))

hdr = open('interleave_layers__spectral_fnet__mixer_gmlp__prompt.s.ref').read().split('\n')
out = [l for l in hdr if l.startswith(';') and '@launch' not in l][:14]
if PROF:
    k = STAMPS.index('T')
    out.append('; stamps: ' + ' '.join(STAMPS[:-1] + [x for x in STAMPS[k:] if x[0] != '*']))
out.append(f'; @launch grid=(256,1,1) block=(256,1,1) lds={LDS_BYTES}')
out += """;
; One persistent launch: 256 workgroups x 4 waves, one workgroup per CU, both layer pairs in a loop.
; Workgroup (c, b): row block c = rows s with s mod 32 == c (64 rows), column block b (112 of 896, 64 of 512).
; Per layer pair:
;   1. LayerNorm of the 64x64 tile, radix-64 stage of the sequence DFT              -> V   (all-to-all)
;   2. radix-32 stage, 32x16 hidden FFT (real part), residual, LayerNorm, 8 rows     -> h1  (row block)
;   3. z2 = gelu(h1 w_in), row statistics exchange, normalise; z1 stays in registers -> z2  (column block)
;   4. g = w_sp z2 + b_sp with the w_sp tile resident in AGPRs, u = z1 * g           -> u   (row block)
;   5. x2 = x1 + u w_out, row statistics exchange (or final store)
; The DFT factors are constants (table behind the code; per-workgroup factors from v_sin/v_cos).
; Hand-offs use write-through stores plus counters/flags cleared inside this launch, or slots pre-filled
; inside this launch with a not-ready pattern that the reader checks. Row-block hand-offs stay in L2 only
; after the eight workgroups have compared their XCC ids and found them equal; otherwise they write through.
; Every spin is bounded.""".split('\n')
out += ['.amdgcn_target "amdgcn-amd-amdhsa--gfx950"', '.text', f'.globl {NAME}', '.p2align 8', f'.type {NAME},@function']
out.append(p.text())
out.append('.p2align 8')
out.append('.type L_table,@object')
out.append('L_table:')
tab = const_table()
for i in range(0, tab.size, 8):
    out.append('.long ' + ','.join(f'{x:#x}' for x in tab[i:i + 8]))
out.append(f'.size L_table, {tab.size * 4}')
out.append('L_end:')
out += ['.section .rodata,"a"', '.p2align 6', f'.amdhsa_kernel {NAME}',
        '  .amdhsa_next_free_vgpr 512', '  .amdhsa_next_free_sgpr 102', '  .amdhsa_accum_offset 256',
        '  .amdhsa_group_segment_fixed_size 0', '  .amdhsa_kernarg_size 104', '  .amdhsa_user_sgpr_count 2',
        '  .amdhsa_user_sgpr_kernarg_segment_ptr 1', '  .amdhsa_system_sgpr_workgroup_id_x 1',
        '  .amdhsa_float_denorm_mode_32 3', '.end_amdhsa_kernel', '']
open(sys.argv[1], 'w').write('\n'.join(out))
print(p.stats(), file=sys.stderr)
```

```python
import sys
import struct
import numpy as np
from asmlib import Prog, v, a, s

NAME = 'interleave_layers__spectral_fnet__mixer_gmlp__prompt_kernel'
OPT = dict(prof=0, k4mfma=1, k4load=1, k4epi=1, zd=12, pre3=6, pre5=16, loc=1, locd=7, x1pos=58, lg=0, pg=0, sg=0, wspev=8, x1=2,
           g2ev=12, z1a=0, gpos=18, z1arr=6, wo4=16, ctp=2, wzp0=0, wzp1=0, wzp2=0, wzp3=8, reuse=0, tlb=0, e1=4, e2=16, e3=26, bc=1, zw=2, wx=0, fx=1, f5a=87, l5a=95, mb=8, mc=20, fa=46, fb=58, fc=70, hpf=0, el=0, kst=1, tp0=0, tps=1, ms=0, pr=1, gmap='/16//23//45/', ews=1, zx=1, rot=0, wt='/', stouch=0, stn=14, nowsp=0, late=0, min0=1, pre=1, we=2, hsp=4, algn=0, xe=4, gb=1, xa=8, to=2000000, wf2=1, cmn='044444', l0a=2, noe=0, pz=1, pv=4, vs=2, zp0=0, zin=1, zsp=3, zs=1, q4=8, upk=4, gsh=0, cpf=12, k1=3, k2=9, k3=15, mf=111, fixev=0, woa=8, wosp=4, g1w=1, l0n='0444466', ann=0, fix='6/7///', ntail=12, lnow=4, fine=0, sched='//d1/d2r0d3r1d4p0r2d5p1r3d6p2r4qd7p3/r5p4/a6p5/a7/', ctpos=0, pk=3, nomean=0,  z2sp=4, early=1, wfirst=0, nobg=0, few=0, diag='')
for arg in sys.argv[2:]:
    k, val = arg.split('=')
    OPT[k] = val if k in ('diag', 'sched', 'fix', 'l0n', 'cmn', 'wt', 'gmap') else int(val)
PROF = OPT['prof']
LG = (' sc1', '', ' nt', ' sc0')[OPT['lg']]
PG = (' sc1', '', ' nt')[OPT['pg']]
SG = ('', ' nt', ' sc0')[OPT['sg']]


WI, WO, FLAGS, STATS, X2, PROFO = 0, 0x200000, 0x300000, 0x340000, 0x400000, 0x600000
LBASE, LSTRIDE = 0x800000, 0x1000000
V_, H_, X1_, Z_, U_ = 0, 0x200000, 0x400000, 0x600000, 0xA00000
WB, CT, SCR, LDS_BYTES = 0, 114688, 114688 + 22528, 163840
CT_FA, CT_TW, CT_FB, CT_M1 = 0, 6144, 10240, 14336

R_X, R_WIN, R_WSP, R_WOUT, R_OUT, R_WS, R_DBG, R_BSP, R_WL = 4, 8, 12, 16, 20, 24, 28, 32, 36
sW, sC, sB, sL, sTO = 40, 41, 42, 43, 44
sVst, sVld, sH, sK2, sXo, sXb, sZst, sZld, sUst, sUld = 45, 46, 47, 48, 49, 50, 51, 52, 53, 54
sLoc, sSt, sWI, sWO, sWsp, sSelLo, sSelHi, sPidx, sOnes = 55, 56, 57, 58, 59, 60, 61, 62, 63
sArr, sRep, sS2, sS4, sS5, sB128, sDm, sDo = 64, 65, 66, 67, 68, 69, 70, 71
sF2s, sF2l = 86, 87
sB4, sP4, sG0, sLocH, sLocU = 3, 88, 75, 89, 100
sT = 72
sStamp = 90
vL16, vTw, vK2, vXr, vVld, vVst, vBsp, vZst = 0, 1, 2, 3, 4, 5, 6, 7
vC2 = 8
vHw, vHr, vUw, vUr, vStl, vL8, vTr, vPoll, vArr, vProf, vGK = 16, 17, 18, 19, 20, 21, 22, 23, 24, 25, 26
vRed = 28
T = 32
XV = 40
vZ = (23, 251)
M1 = 184


def f2u(x):
    return struct.unpack('<I', struct.pack('<f', x))[0]


def bf16(x):
    u = np.ascontiguousarray(x, dtype=np.float32).view(np.uint32)
    return ((u + 0x7FFF + ((u >> 16) & 1)) >> 16).astype(np.uint32)


def const_table():
    l = np.arange(64)[:, None]
    j = np.arange(8)[None, :]
    nn, h = l & 31, l >> 5
    e1 = 16 * ((nn >> 2) & 1) + 4 * (nn >> 3) + (nn & 3)
    frags = []

    def pack(x):
        x = np.where(np.abs(x) < 1e-12, 0.0, x)
        b = bf16(x)
        return (b[:, 0::2] | (b[:, 1::2] << 16)).astype(np.uint32)
    ang = [2 * np.pi * ((16 * dh + 8 * h + j) * e1 % 32) / 32 for dh in range(2)]
    frags += [pack(np.cos(ang[0])), pack(np.cos(ang[1])), pack(np.sin(ang[0])), pack(np.sin(ang[1])),
              pack(-np.sin(ang[0])), pack(-np.sin(ang[1]))]
    d2 = 8 * (j >> 2) + 4 * h + (j & 3)
    tw = 2 * np.pi * (d2 * e1) / 512
    tc = np.cos(tw).astype(np.float32).view(np.uint32)
    ts = np.sin(tw).astype(np.float32).view(np.uint32)
    frags += [tc[:, :4], tc[:, 4:], ts[:, :4], ts[:, 4:]]
    ps = 2 * np.pi * (d2 * (nn & 15) % 16) / 16
    for row in range(2):
        m = ((nn >> 4) == row)
        frags += [pack(np.cos(ps) * m), pack(np.sin(ps) * m)]
    n, g = l & 15, l >> 4
    for jq in range(4):
        for ks in range(2):
            rho = 32 * ks + 16 * (j >> 2) + 4 * g + (j & 3)
            s1 = 16 * (rho >> 4) + 2 * (rho & 7) + ((rho >> 3) & 1)
            jj = 8 * jq + (n >> 1)
            th = 2 * np.pi * (s1 * jj % 64) / 64
            x = np.where((n & 1) == 0, np.cos(th), np.where(jj == 0, (-1.0) ** s1, -np.sin(th)))
            frags.append(pack(x))
    tab = np.concatenate([np.ascontiguousarray(f).reshape(-1) for f in frags])
    assert tab.size == 22 * 256
    return tab


p = Prog()
M16 = 'v_mfma_f32_16x16x32_bf16'
M32 = 'v_mfma_f32_32x32x16_bf16'


STAMPS = []


def stamp(name):
    if OPT['few'] and name in ('karg', 'start', 'setup', 'init', 'arr1', 'Vst', 'pub3', 'z1a', 'S3', 'Zst', 'arr4', 'win4') + (() if OPT['fine'] else ('Vld', 'K2', 'arr2', 'K5')):
        return
    STAMPS.append(name)
    if OPT['diag'] and OPT['diag'][:-1] == name:
        p(f's_memrealtime {s(sStamp, 2)}')
        p('s_waitcnt lgkmcnt(0)')
        p(f's_cmp_eq_u32 {s(sL)}, {OPT["diag"][-1]}')
        p(f's_cselect_b32 s101, {s(sStamp)}, s101')
    if PROF:
        p(f'{"s_memtime" if PROF == 2 else "s_memrealtime"} {s(sStamp, 2)}')
        p('s_waitcnt lgkmcnt(0)')
        p('s_mov_b32 s101, m0')
        p(f's_mov_b32 m0, {s(sPidx)}')
        p(f'v_writelane_b32 {v(vProf)}, {s(sStamp)}, m0')
        p('s_mov_b32 m0, s101')
        p(f's_add_u32 {s(sPidx)}, {s(sPidx)}, 1')


def fine(name):
    if OPT['fine'] == 1:
        stamp(name)


def srd(r, lo, hi, size):
    p(f's_mov_b32 {s(r)}, {s(lo)}')
    p(f's_and_b32 {s(r + 1)}, {s(hi)}, 0xffff')
    p(f's_mov_b32 {s(r + 2)}, {size:#x}')
    p(f's_mov_b32 {s(r + 3)}, 0x20000')


def if_wave0():
    p(f's_cmp_eq_u32 {s(sW)}, 0')
    p.begin('W0', 's_cbranch_scc0')


def if_layer(l):
    p(f's_cmp_eq_u32 {s(sL)}, {l}')
    p.begin(f'L{l}', 's_cbranch_scc0')


def spin_tail(top, done):
    p(f's_cbranch_vccz {done}')
    p(f's_sub_u32 {s(sTO)}, {s(sTO)}, 1')
    p(f's_cbranch_scc0 {top}')
    p(f's_mov_b32 {s(sTO)}, 0')
    p(f'{done}:')


def arrive(soff, nrep):
    p('s_barrier')
    if_wave0()
    p(f'v_mov_b32 {v(T)}, 1')
    p(f's_mov_b64 exec, {(1 << nrep) - 1:#x}')
    p(f'buffer_atomic_add {v(T)}, {v(vArr)}, {s(R_WS, 4)}, {s(soff)} offen sc1')
    p('s_mov_b64 exec, -1')
    p.end()


def gstore(lines, tag=None, local=False, flag=None):
    if not OPT['loc'] or (tag and not local):
        for x in lines:
            p(x + ' sc1', tag=tag)
        return
    p(f's_cmp_eq_u32 {s(flag or sLoc)}, 0')
    p.begin_ool('!LOC', 's_cbranch_scc1')
    for x in lines:
        p(x + ' sc1', tag=tag)
    p.end_ool(('LOC', lambda: [p(x + SG, tag=tag) for x in lines]))


def arrive_group(soff, off=0):
    p('s_barrier')
    if_wave0()
    p(f'v_mov_b32 {v(T)}, 1')
    p(f's_add_u32 {s(99)}, {s(soff)}, {s(sB4)}')
    p('s_mov_b64 exec, 1')
    gstore([f'buffer_store_dword {v(T)}, off, {s(R_WS, 4)}, {s(99)} offset:{off}'])
    p('s_mov_b64 exec, -1')
    p.end()


def poll(soff, vaddr, need, tag=None):
    if_wave0()
    top, done = p.label('poll'), p.label('pdone')
    p(f'{top}:')
    if vaddr is not None:
        p(f'buffer_load_dword {v(T)}, {v(vaddr)}, {s(R_WS, 4)}, {s(soff)} offen' + (PG if vaddr == vGrp else ' sc1'))
    else:
        p(f'buffer_load_dword {v(T)}, off, {s(R_WS, 4)}, {s(soff)} sc1')
    p('s_waitcnt vmcnt(0)')
    p(f'v_cmp_ne_u32 vcc, {need}, {v(T)}')
    spin_tail(top, done)
    p.end()
    if tag:
        p.wait_vm(tag)
    p('s_barrier')


def reduce_g(x, y):
    p(f'v_permlane16_swap_b32 {v(x)}, {v(y)}')
    p(f'v_add_f32 {v(x)}, {v(x)}, {v(y)}')
    p(f'v_mov_b32 {v(y)}, {v(x)}')
    p(f'v_permlane32_swap_b32 {v(x)}, {v(y)}')
    p(f'v_add_f32 {v(x)}, {v(x)}, {v(y)}')
    p(f'v_mov_b32 {v(y)}, {v(x)}')
    p(f'v_permlane16_swap_b32 {v(x)}, {v(y)}')


def finish_stats(x, n):
    y, m = x + 1, x + 2
    p(f'v_mul_f32 {v(m)}, {f2u(1.0 / n):#x}, {v(x)}')
    p(f'v_mul_f32 {v(y)}, {f2u(1.0 / n):#x}, {v(y)}')
    p(f'v_fma_f32 {v(y)}, -{v(m)}, {v(m)}, {v(y)}')
    p(f'v_max_f32 {v(y)}, 0, {v(y)}')
    p(f'v_add_f32 {v(y)}, {f2u(1e-5):#x}, {v(y)}')
    p(f'v_rsq_f32 {v(x)}, {v(y)}')
    p(f'v_mul_f32 {v(y)}, -{v(m)}, {v(x)}')


def norm_pack(src, n, st, tmp, dst):
    for i in range(0, n, 2):
        p(f'v_pk_fma_f32 {v(tmp + i, 2)}, {v(src + i, 2)}, {v(st, 2)}, {v(st, 2)} op_sel:[0,0,1] op_sel_hi:[1,0,1]')
    for i in range(0, n, 2):
        p(f'v_cvt_pk_bf16_f32 {v(dst + i // 2)}, {v(tmp + i)}, {v(tmp + i + 1)}')


def local_stats(src, n, out):
    sa, sq = out + 2, out + 4
    p(f'v_pk_add_f32 {v(sa, 2)}, {v(src, 2)}, {v(src + 2, 2)}')
    p(f'v_pk_mul_f32 {v(sq, 2)}, {v(src, 2)}, {v(src, 2)}')
    p(f'v_pk_fma_f32 {v(sq, 2)}, {v(src + 2, 2)}, {v(src + 2, 2)}, {v(sq, 2)}')
    for i in range(4, n, 2):
        p(f'v_pk_add_f32 {v(sa, 2)}, {v(sa, 2)}, {v(src + i, 2)}')
        p(f'v_pk_fma_f32 {v(sq, 2)}, {v(src + i, 2)}, {v(src + i, 2)}, {v(sq, 2)}')
    p(f'v_add_f32 {v(out)}, {v(sa)}, {v(sa + 1)}')
    p(f'v_add_f32 {v(out + 1)}, {v(sq)}, {v(sq + 1)}')


def unpack(src, n, dst):
    for i in range(n):
        p(f'v_lshlrev_b32 {v(dst + 2 * i)}, 16, {v(src + i)}')
        p(f'v_and_b32 {v(dst + 2 * i + 1)}, 0xffff0000, {v(src + i)}')


def publish_stats(area):
    p(f's_add_u32 {s(sT)}, {s(sSt)}, {s(sB128)}')
    if area:
        p(f's_add_u32 {s(sT)}, {s(sT)}, {area:#x}')
    p('s_mov_b64 exec, 0xffff')
    gstore([f'buffer_store_dwordx2 {v(T, 2)}, {v(vStl)}, {s(R_WS, 4)}, {s(sT)} offen'])
    p('s_mov_b64 exec, -1')


def gather_loads(area):
    return [(f's_add_u32 {s(99)}, {s(sSt)}, {area:#x}', None),
            (f'buffer_load_dwordx2 {v(T + 4, 2)}, {v(vStl)}, {s(R_WS, 4)}, {s(99)} offen{PG}', None),
            (f'buffer_load_dwordx2 {v(T + 6, 2)}, {v(vStl)}, {s(R_WS, 4)}, {s(99)} offen offset:128{PG}', None)]


def retry_until(loads, test, tested=False, after=None):
    if not tested:
        test()
    p.begin_ool('RETRY', 's_cbranch_vccnz')
    top, done = p.label('rt'), p.label('rdone')
    p(f'{top}:')
    emit([loads])
    p('s_waitcnt vmcnt(0)')
    test()
    spin_tail(top, done)
    if after:
        emit([after])
    p.end_ool()


def gather_finish(area):
    def test():
        p(f'v_add_f32 {v(T)}, {v(T + 4)}, {v(T + 6)}')
        p(f'v_add_f32 {v(T + 1)}, {v(T + 5)}, {v(T + 7)}')
        p(f'v_cmp_u_f32 vcc, {v(T)}, {v(T + 1)}')
    retry_until(gather_loads(area), test)
    reduce_g(T, T + 1)


LOC_Z2 = lambda i: 1024 * i
LOC_Z1 = lambda i: 1024 * (i - 48) if i >= 48 else CT + 1024 * i
LOC_WO = lambda i: 1024 * (i - 48) if i >= 48 else 65536 + 1024 * i


def w_dma_ops(sbase, extra, loc, name):
    ops = []
    for j in range(7):
        for i in range(4):
            o = []
            swap = OPT['wx'] & {'wz2': 1, 'wz1': 2, 'wo': 4}[name]
            if swap:
                o.append((f's_add_u32 m0, {s(94 + (i & 1))}, {loc(16 * j):#x}', None))
            elif i == 0:
                o.append((f's_add_u32 m0, {s(sDm)}, {loc(16 * j):#x}', None))
            if i == 0:
                o.append((f's_add_u32 {s(sDo)}, {s(sbase)}, {extra + 16384 * j:#x}', None))
            if swap:
                o.append((f'buffer_load_dwordx4 {v(vZ[i & 1])}, {s(R_WS, 4)}, {s(sDo)} offen offset:{(i & 2) * 1024} lds', f'{name}{j}'))
                ops.append(o)
                continue
            if OPT['nobg'] & 1:
                o.append(('s_nop 0', None))
            else:
                o.append((f'buffer_load_dwordx4 {v(vL16)}, {s(R_WS, 4)}, {s(sDo)} offen offset:{i * 1024} lds', f'{name}{j}'))
            ops.append(o)
    return ops


def emit(groups):
    for g in groups:
        for text, tag in g:
            p(text, tag=tag)


def wsp_dma_ops(batch):
    q, ih = batch >> 1, batch & 1
    ops = []
    for il in range(4):
        for rh in range(2):
            if batch < 2:
                imm, so = 128 * il, 80 + batch
                o = [(f's_add_u32 m0, {s(78 + batch)}, {1024 + 2048 * il + 1024 * rh - imm}', None)]
            else:
                imm, so = 512 * ih + 128 * il, sDo
                o = [(f's_add_u32 m0, {s(sWsp)}, {1024 + 8192 * (batch % 3) + 2048 * il + 1024 * rh - imm}', None)]
                if not ops:
                    o += [(f's_add_u32 {s(sDo)}, {s(sW)}, {q}', None), (f's_and_b32 {s(sDo)}, {s(sDo)}, 3', None),
                          (f's_lshl_b32 {s(sDo)}, {s(sDo)}, 21', None)]
            o.append((f'buffer_load_dwordx4 {v(vWspA + rh)}, {s(R_WSP, 4)}, {s(so)} offen offset:{imm} lds', f'wsp{max(batch, 1)}'))
            ops.append(o)
    return ops


def table_addr(dst, soff):
    p(f'v_add_u32 {v(dst)}, {s(soff)}, {v(vL16)}')
    p(f'v_mov_b32 {v(dst + 1)}, {s(93)}')
    p(f'v_add_co_u32 {v(dst)}, vcc, {s(92)}, {v(dst)}')
    p(f'v_addc_co_u32 {v(dst + 1)}, vcc, 0, {v(dst + 1)}, vcc')


def code_prefetch(bit, lo):
    if not OPT['cpf'] & bit:
        return
    if_layer(0)
    p(f's_lshr_b32 {s(99)}, s2, 3')
    p(f's_lshl_b32 {s(99)}, {s(99)}, 2')
    p(f's_add_u32 {s(99)}, {s(99)}, {s(sW)}')
    p(f's_lshl_b32 {s(99)}, {s(99)}, 7')
    p(f's_sub_u32 {s(98)}, {s(92)}, L_table-{lo}')
    p(f's_subb_u32 {s(97)}, {s(93)}, 0')
    p(f's_add_u32 {s(98)}, {s(98)}, {s(99)}')
    p(f's_addc_u32 {s(97)}, {s(97)}, 0')
    p(f'v_mov_b32 {v(T + 6)}, {s(98)}')
    p(f'v_mov_b32 {v(T + 7)}, {s(97)}')
    p('s_mov_b64 exec, 1')
    p(f'global_load_dword {v(T + 6)}, {v(T + 6, 2)}, off')
    p('s_mov_b64 exec, -1')
    p.end()


def poison(site, reg):
    todo = [(sZst, vZst, 0)] if OPT['zs'] and OPT['pz'] == site else []
    todo += [(sVst, vVst, 0), (sVst, vVst, 0x10000)] if OPT['vs'] and OPT['pv'] == site else []
    if not todo:
        return
    if_layer(0)
    for k in range(4):
        p(f'v_mov_b32 {v(reg + k)}, -1')
    for base, va, off in todo:
        p(f's_add_u32 {s(99)}, {s(base)}, {LSTRIDE + off:#x}')
        p(f'buffer_store_dwordx4 {v(reg, 4)}, {v(va)}, {s(R_WL, 4)}, {s(99)} offen sc1', tag='pub' if site == 3 else None)
    p.end()


def w_touch(spec, dst):
    if not spec:
        return
    base, extra = ((sWI, 114688), (sWI, 0), (sWO, 0))[int(spec[0])]
    p(f's_lshr_b32 {s(98)}, s2, 6')
    p(f's_lshl_b32 {s(98)}, {s(98)}, 10')
    p(f's_add_u32 {s(98)}, {s(98)}, {s(base)}')
    for ch in spec[1:]:
        p(f's_add_u32 {s(99)}, {s(98)}, {extra + 16384 * int(ch):#x}')
        p(f'buffer_load_dwordx4 {v(dst, 4)}, {v(vL16)}, {s(R_WS, 4)}, {s(99)} offen')
        p.cur[-1].defs = set()


def m1_load(dst):
    p(f's_lshl_b32 {s(99)}, {s(sW)}, 11')
    p(f's_add_u32 {s(99)}, {s(99)}, {CT_M1}')
    table_addr(dst, 99)
    for k in range(2):
        p(f'global_load_dwordx4 {v(M1 + 4 * k, 4)}, {v(dst, 2)}, off offset:{1024 * k}')


def ct_dma(dst):
    p(f's_mul_i32 {s(99)}, {s(sW)}, 3584')
    p(f's_add_u32 m0, {s(99)}, {CT}')
    table_addr(dst, 99)
    for off in (0, 1024, 2048):
        p(f'global_load_lds_dwordx4 {v(dst, 2)}, off offset:{off}', tag='ct')
    p('s_mov_b32 exec_hi, 0')
    p(f'global_load_lds_dwordx4 {v(dst, 2)}, off offset:3072', tag='ct')
    p('s_mov_b64 exec, -1')


def wsp_dma(batch):
    p.bg = wsp_dma_ops(batch)
    p.bg_emit()


def wsp_read(batch, reg):
    p.wait_vm(f'wsp{max(batch, 1)}')
    for il in range(4):
        for o in range(2):
            p(f'ds_read_b128 {v(reg + 4 * (2 * il + o), 4)}, {v(vWspR + o)} offset:{8192 * (batch % 3) + 2048 * il}', tag=f'wr{batch}')


def wsp_park(batch):
    q, ih = batch >> 1, batch & 1
    p.wait_vm(f'wsp{max(batch, 1)}')
    for il in range(4):
        for o in range(2):
            p(f'ds_read_b128 {a(64 * q + 32 * o + 4 * (4 * ih + il), 4)}, {v(vWspR + o)} offset:{8192 * (batch % 3) + 2048 * il}', tag=f'wr{batch}')


def wsp_fix(units, reg, first=()):
    if not units and not first:
        return
    if_layer(0)
    emit(first)
    for u in units:
        base = 32 * int(u)
        for k in range(32):
            p(f'v_accvgpr_read_b32 {v(reg + k)}, {a(base + k)}')
        k = 0
        for ip in range(4):
            for al in range(8):
                t = reg + 32 + (k & 3)
                k += 1
                lo, hi = reg + 8 * ip + (al >> 1), reg + 8 * ip + 4 + (al >> 1)
                p(f'v_perm_b32 {v(t)}, {v(hi)}, {v(lo)}, {s(sSelHi if al & 1 else sSelLo)}')
                p(f'v_accvgpr_write_b32 {a(base + 4 * al + ip)}, {v(t)}')
    p.end()


def wsp_perm(batch, reg):
    q, ih = batch >> 1, batch & 1
    k = 0
    for ipl in range(2):
        for o in range(2):
            for al in range(8):
                t = T + (k & 7)
                k += 1
                lo, hi = reg + 4 * (4 * ipl + o) + (al >> 1), reg + 4 * (4 * ipl + 2 + o) + (al >> 1)
                p(f'v_perm_b32 {v(t)}, {v(hi)}, {v(lo)}, {s(sSelHi if al & 1 else sSelLo)}')
                p(f'v_accvgpr_write_b32 {a((q * 16 + 8 * o + al) * 4 + 2 * ih + ipl)}, {v(t)}')


def wring_read(idx, ring, depth, loc, rot=0):
    base, off = (vL16, vL16hi, vL16h2)[loc(idx) >> 16], loc(idx) & 0xffff
    p(f'ds_read_b128 {v(ring + 4 * ((idx + rot) % depth), 4)}, {v(base)} offset:{off}', tag=f'w{idx}')


def gemm_r(acc, nt, ks0, ks1, act, ring, depth, loc, first_c=None, fill=None, preload=True, last=None, rot=0):
    fill = dict(fill or {})
    if OPT['nobg'] & 2 and loc is LOC_Z1:
        raise SystemExit('nobg&2 unsupported')
    lo, hi = nt * ks0, nt * ks1
    if preload:
        for idx in range(lo, min(lo + depth, last or hi)):
            wring_read(idx, ring, depth, loc)
    for idx in range(lo, hi):
        ks, t = divmod(idx, nt)
        if (idx - lo) % OPT['we'] == 0:
            p.wait_lgkm(f'w{min(idx + OPT["we"] - 1, hi - 1)}')
        c = v(acc + 4 * t, 4) if (ks or first_c) else '0'
        p(f'{M16} {v(acc + 4 * t, 4)}, {v(ring + 4 * ((idx + rot) % depth), 4)}, {v(act(ks) if callable(act) else act + 4 * ks, 4)}, {c}')
        if idx + depth < (last or hi):
            wring_read(idx + depth, ring, depth, loc, rot)
        f = fill.pop(idx, None)
        if callable(f):
            f()
        elif f:
            emit([f])
    assert not fill


def spread(groups, first, step):
    return {first + step * k: g for k, g in enumerate(groups)}


def gelu(x, n, tmp):
    for i in range(0, n, 4):
        t = tmp + (i & 4)
        for k in (0, 2):
            p(f'v_pk_mul_f32 {v(t + k, 2)}, {v(x + i + k, 2)}, {v(x + i + k, 2)}')
        for k in (0, 2):
            p(f'v_pk_fma_f32 {v(t + k, 2)}, {v(t + k, 2)}, {v(vGK, 2)}, {v(vGK, 2)} op_sel:[0,0,1] op_sel_hi:[1,0,1]')
        for k in (0, 2):
            p(f'v_pk_mul_f32 {v(t + k, 2)}, {v(t + k, 2)}, {v(x + i + k, 2)}')
        for k in range(4):
            p(f'v_exp_f32 {v(t + k)}, {v(t + k)}')
        for k in (0, 2):
            p(f'v_pk_add_f32 {v(t + k, 2)}, {v(t + k, 2)}, 1.0 op_sel_hi:[1,0]')
        for k in range(4):
            p(f'v_rcp_f32 {v(t + k)}, {v(t + k)}')
        for k in (0, 2):
            p(f'v_pk_mul_f32 {v(x + i + k, 2)}, {v(t + k, 2)}, {v(x + i + k, 2)}')


vWspA, vWspR = 244, 236
vHw2, vXw, vGrp = 250, 246, 254
vL16hi, vL16h2 = 252, 255
p.section('pro')
p(f'{NAME}:')
p(f's_cmp_ge_u32 s2, 256')
p('s_cbranch_scc1 L_exit')
SRDS = ((R_X, 0, 2097152), (R_WS, 96, LBASE), (R_WIN, 48, 512 * 3584), (R_WOUT, 72, 896 * 1024), (R_WSP, 56, 2048 * 4096),
        (R_BSP, 64, 4096), (R_WL, 96, 2 * LSTRIDE), (R_DBG, 88, 256), (R_OUT, 80, 2097152))
for r, off, size in SRDS[:6]:
    p(f's_load_dwordx2 {s(r, 2)}, s[0:1], {off}')
if OPT['diag']:
    p(f's_memrealtime {s(sStamp, 2)}')
if PROF:
    p(f'{"s_memtime" if PROF == 2 else "s_memrealtime"} {s(sStamp, 2)}')
p(f's_getpc_b64 {s(92, 2)}')
p('L_pc:')
lane, n_, g_, t0, t1, t2, t3, tid = 100, 101, 102, 103, 104, 105, 106, 107
p(f'v_mov_b32 {v(tid)}, v0')
p(f's_lshr_b32 {s(94)}, s2, 3')
p(f's_lshl_b32 {s(94)}, {s(94)}, 4')
p(f'v_lshrrev_b32 {v(T)}, 4, v0')
p(f'v_add_u32 {v(T)}, {s(94)}, {v(T)}')
p(f'v_lshlrev_b32 {v(T)}, 7, {v(T)}')
p(f'v_min_u32 {v(T)}, L_end-L_pc-4, {v(T)}')
p(f'v_mov_b32 {v(T + 3)}, {s(93)}')
p(f'v_add_co_u32 {v(T + 2)}, vcc, {s(92)}, {v(T)}')
p(f'v_addc_co_u32 {v(T + 3)}, vcc, 0, {v(T + 3)}, vcc')
p(f'global_load_dword {v(253)}, {v(T + 2, 2)}, off')
p(f'v_lshrrev_b32 {v(t0)}, 6, v0')
p(f'v_and_b32 {v(lane)}, 63, v0')
p(f'v_readfirstlane_b32 {s(sW)}, {v(t0)}')
p(f's_lshr_b32 {s(94)}, s2, 3')
p(f's_and_b32 {s(sB)}, {s(94)}, 7')
p(f's_and_b32 {s(95)}, s2, 7')
p(f's_lshl_b32 {s(95)}, {s(95)}, 1')
p(f's_lshr_b32 {s(96)}, {s(94)}, 4')
p(f's_add_u32 {s(95)}, {s(95)}, {s(96)}')
p(f's_sub_u32 {s(96)}, 32, {s(95)}')
p(f's_cmp_eq_u32 {s(95)}, 0')
p(f's_cselect_b32 {s(96)}, 16, {s(96)}')
p(f's_bitcmp1_b32 {s(94)}, 3')
p(f's_cselect_b32 {s(sC)}, {s(96)}, {s(95)}')
p(f's_lshl_b32 {s(sB128)}, {s(sB)}, 7')
p(f's_lshl_b32 {s(94)}, {s(sW)}, 9')
p(f's_add_u32 {s(94)}, {s(94)}, {s(sC)}')
p(f'v_and_b32 {v(t0)}, 28, {v(lane)}')
p(f'v_lshlrev_b32 {v(t0)}, 4, {v(t0)}')
p(f'v_and_b32 {v(t1)}, 32, {v(lane)}')
p(f'v_add3_u32 {v(t0)}, {v(t0)}, {v(t1)}, {s(94)}')
p(f'v_lshlrev_b32 {v(t2)}, 10, {v(t0)}')
p(f'v_and_b32 {v(t1)}, 3, {v(lane)}')
p(f'v_lshl_add_u32 {v(t0)}, {v(t1)}, 5, {v(t2)}')
p(f'v_lshl_add_u32 {v(t2)}, {v(t1)}, 4, {v(t2)}')
XR = 120


def x_loads(i0, i1):
    for i in range(i0, i1):
        if i == 0:
            p(f'buffer_load_dwordx4 {v(XR, 4)}, {v(t0)}, {s(R_X, 4)}, {s(sB128)} offen')
            p(f'buffer_load_dwordx4 {v(XR + 4, 4)}, {v(t0)}, {s(R_X, 4)}, {s(sB128)} offen offset:16')
            continue
        p(f's_add_u32 {s(99)}, {s(sB128)}, {128 * i}')
        p(f's_and_b32 {s(99)}, {s(99)}, 0x3ff')
        p(f'buffer_load_dwordx4 {v(XR + 8 * i, 4)}, {v(t2)}, {s(R_X, 4)}, {s(99)} offen')
        p(f'buffer_load_dwordx4 {v(XR + 8 * i + 4, 4)}, {v(t2)}, {s(R_X, 4)}, {s(99)} offen offset:64')


def first_loads():
    p('s_waitcnt lgkmcnt(0)')
    if OPT['diag']:
        p(f's_mov_b32 {s(sPidx)}, {s(sStamp)}')
        p(f's_mov_b32 s101, {s(sStamp)}')
    if PROF:
        p(f'v_mov_b32 {v(vProf)}, 0')
        p(f'v_writelane_b32 {v(vProf)}, {s(sStamp)}, 0')
        p(f's_mov_b32 {s(sPidx)}, 1')
        STAMPS.append('entry')
    stamp('karg')
    x_loads(0, OPT['x1'])


p(f's_mov_b32 {s(R_X + 2)}, {SRDS[0][2]:#x}')
p(f's_mov_b32 {s(R_X + 3)}, 0x20000')
p(f's_mov_b32 {s(sL)}, 0')
if OPT['min0']:
    first_loads()
p(f'v_and_b32 {v(n_)}, 15, {v(lane)}')
p(f'v_lshrrev_b32 {v(g_)}, 4, {v(lane)}')
p(f'v_lshlrev_b32 {v(vL16)}, 4, {v(lane)}')
for r, off, size in SRDS[1:]:
    p(f's_mov_b32 {s(r + 2)}, {size:#x}')
    p(f's_mov_b32 {s(r + 3)}, 0x20000')
p(f's_mov_b32 {s(sTO)}, {OPT["to"]}')
p(f's_lshl_b32 {s(sB4)}, {s(sB)}, 2')
p(f's_getreg_b32 {s(sLoc)}, hwreg(HW_REG_XCC_ID)')
p(f's_mov_b32 {s(sOnes)}, 0x3f803f80')
p(f's_mov_b32 {s(sSelLo)}, 0x05040100')
p(f's_mov_b32 {s(sSelHi)}, 0x07060302')
if OPT['zx']:
    p(f's_bitcmp1_b32 s2, {5 + OPT["zx"]}')
    p(f's_cselect_b32 {s(96)}, 0x02020202, 0')
    p(f's_xor_b32 {s(sSelLo)}, {s(sSelLo)}, {s(96)}')
    p(f's_xor_b32 {s(sSelHi)}, {s(sSelHi)}, {s(96)}')
p(f'v_and_b32 {v(t3)}, 7, {v(n_)}')
p(f'v_lshlrev_b32 {v(t3)}, 6, {v(t3)}')
p(f'v_and_b32 {v(t1)}, 8, {v(n_)}')
p(f'v_lshlrev_b32 {v(t1)}, 2, {v(t1)}')
p(f'v_add3_u32 {v(t3)}, {v(t3)}, {v(t1)}, {s(94)}')
p(f'v_lshlrev_b32 {v(t3)}, 1, {v(t3)}')
p(f's_lshl_b32 {s(96)}, {s(sC)}, 2')
p(f's_add_u32 {s(96)}, {s(96)}, {s(sW)}')
p(f's_lshl_b32 {s(sSt)}, {s(96)}, 10')
p(f's_add_u32 {s(sSt)}, {s(sSt)}, {STATS:#x}')
p(f's_lshl_b32 {s(96)}, {s(sC)}, 10')
p(f's_add_u32 {s(sS2)}, {s(96)}, {FLAGS + 0x10000:#x}')
p(f's_lshl_b32 {s(96)}, {s(sW)}, 7')
p(f's_add_u32 {s(96)}, {s(96)}, 256')
p(f's_add_u32 {s(sS5)}, {s(96)}, {s(sS2)}')
p(f'v_lshlrev_b32 {v(vStl)}, 3, {v(n_)}')
p(f'v_lshl_add_u32 {v(vStl)}, {v(g_)}, 8, {v(vStl)}')
p(f's_lshl_b32 {s(96)}, {s(sB)}, 2')
p(f's_add_u32 {s(96)}, {s(96)}, {s(sW)}')
p(f's_mul_i32 {s(sZld)}, {s(96)}, 114688')
p(f's_add_u32 {s(sZld)}, {s(sZld)}, {Z_:#x}')
p(f's_and_b32 {s(96)}, {s(sC)}, 7')
p(f's_lshl_b32 {s(96)}, {s(96)}, 10')
p(f's_lshr_b32 {s(97)}, {s(sC)}, 3')
p(f's_lshl_b32 {s(97)}, {s(97)}, 8')
p(f's_add_u32 {s(96)}, {s(96)}, {s(97)}')
p(f's_add_u32 {s(sZst)}, {s(sZld)}, {s(96)}')
p(f'v_and_b32 {v(T)}, 1, {v(g_)}')
p(f'v_lshlrev_b32 {v(T)}, 14, {v(T)}')
p(f'v_and_b32 {v(T + 1)}, 2, {v(g_)}')
p(f'v_lshl_add_u32 {v(T)}, {v(T + 1)}, 12, {v(T)}')
p(f'v_lshl_add_u32 {v(vZst)}, {v(n_)}, 4, {v(T)}')
EI = 64
for k in range(4):
    p(f'v_mov_b32 {v(116 + k)}, -1')
p(f'v_mov_b32 {v(EI)}, -1')
p(f'v_mov_b32 {v(EI + 1)}, -1')
p(f'v_mov_b32 {v(EI + 2)}, {s(sLoc)}')
p(f'v_mov_b32 {v(EI + 3)}, 0')
p(f'v_and_b32 {v(EI + 4)}, 16, {v(vL16)}')
p(f'v_lshlrev_b32 {v(EI + 4)}, 13, {v(EI + 4)}')
p(f'v_and_b32 {v(EI + 5)}, 0x60, {v(vL16)}')
p(f'v_or_b32 {v(EI + 4)}, {v(EI + 4)}, {v(EI + 5)}')
def first_requests():
    if not OPT['min0']:
        first_loads()
    for r, off, size in SRDS[7:]:
        p(f's_load_dwordx2 {s(r, 2)}, s[0:1], {off}')
    p(f's_lshl_b32 {s(96)}, s2, 2')
    p(f's_add_u32 {s(sG0)}, {s(96)}, {s(sW)}')
    p(f's_cmp_eq_u32 {s(sG0)}, 3')
    p.begin('G0', 's_cbranch_scc0')
    p(f'v_lshlrev_b32 {v(EI + 6)}, 4, {v(vL16)}')
    for k in range(2):
        p(f's_mov_b32 {s(99)}, {FLAGS + 0x4000 * k:#x}')
        p(f'buffer_store_dword {v(EI + 3)}, {v(EI + 6)}, {s(R_WS, 4)}, {s(99)} offen sc1', tag='z')
    p.end()
    p(f's_and_b32 {s(96)}, {s(sB)}, 3')
    p(f's_lshl_b32 {s(96)}, {s(96)}, 3')
    p(f's_and_b32 {s(97)}, {s(sB)}, 4')
    p(f's_add_u32 {s(96)}, {s(96)}, {s(97)}')
    p(f's_add_u32 {s(96)}, {s(96)}, {s(sW)}')
    p(f's_lshl_b32 {s(96)}, {s(96)}, 2')
    p(f's_add_u32 {s(97)}, {s(sS2)}, 768')
    p(f's_add_u32 {s(sF2s)}, {s(96)}, {s(97)}')
    p(f's_lshl_b32 {s(96)}, {s(sW)}, 5')
    p(f's_add_u32 {s(sF2l)}, {s(96)}, {s(97)}')
    if OPT['wf2']:
        p('s_mov_b64 exec, 3')
        p(f'buffer_store_dword {v(EI + 3)}, {v(EI + 4)}, {s(R_WS, 4)}, {s(sF2s)} offen sc1', tag='pub')
    p('s_mov_b64 exec, 0xffff')
    for k in range(0 if OPT['noe'] & 1 else 3):
        p(f's_add_u32 {s(96)}, {s(sSt)}, {s(sB128)}')
        p(f's_add_u32 {s(96)}, {s(96)}, {k * 0x20000:#x}')
        p(f'buffer_store_dwordx2 {v(EI, 2)}, {v(vStl)}, {s(R_WS, 4)}, {s(96)} offen sc1', tag='pub')
    p('s_mov_b64 exec, 0xff')
    p(f's_add_u32 {s(97)}, {s(sS5)}, {s(sB4)}')
    if not OPT['noe'] & 2:
        p(f'buffer_store_dword {v(EI + 3)}, {v(EI + 4)}, {s(R_WS, 4)}, {s(97)} offen sc1', tag='pub')
    if_wave0()
    p('s_mov_b64 exec, 1')
    p(f's_add_u32 {s(96)}, {s(sS2)}, {s(sB4)}')
    p(f'buffer_store_dword {v(EI + 2)}, off, {s(R_WS, 4)}, {s(96)} offset:128 sc1', tag='pub')
    p('s_mov_b64 exec, 15')
    if not OPT['noe'] & 2:
        p(f'buffer_store_dword {v(EI + 3)}, {v(EI + 4)}, {s(R_WS, 4)}, {s(96)} offen sc1', tag='pub')
    p(f's_lshl_b32 {s(96)}, s2, 8')
    p(f's_add_u32 {s(96)}, {s(96)}, {FLAGS:#x}')
    p('s_cmp_lt_u32 s2, 128')
    p('s_cselect_b32 exec_lo, 2, 3')
    p(f'buffer_store_dword {v(EI + 3)}, {v(EI + 4)}, {s(R_WS, 4)}, {s(96)} offen sc1', tag='pub')
    p.end()
    p('s_mov_b64 exec, -1')
    p(f's_add_u32 {s(R_WL)}, {s(R_WS)}, {LBASE:#x}')
    p(f's_addc_u32 {s(R_WL + 1)}, {s(R_WS + 1)}, 0')
    p('s_waitcnt lgkmcnt(0)')
    if OPT['tlb']:
        p(f's_cmp_eq_u32 {s(sW)}, 1')
        p.begin('W1', 's_cbranch_scc0')
        p(f'v_lshlrev_b32 {v(EI + 6)}, 21, {v(n_)}')
        p('s_mov_b64 exec, 0xffff')
        if OPT['tlb'] & 1:
            p(f'buffer_load_dword {v(240)}, {v(EI + 6)}, {s(R_WL, 4)}, 0 offen sc1')
            p(f'buffer_load_dword {v(239)}, {v(EI + 6)}, {s(R_WS, 4)}, 0 offen sc1')
        if OPT['tlb'] & 2:
            p(f'buffer_load_dword {v(238)}, {v(EI + 6)}, {s(R_WSP, 4)}, 0 offen')
            p(f'buffer_load_dword {v(223)}, off, {s(R_DBG, 4)}, 0 offset:128 sc1')
        if OPT['tlb'] & 4:
            p(f'buffer_load_dword {v(222)}, off, {s(R_OUT, 4)}, 0 sc1')
        p('s_mov_b64 exec, -1')
        p.end()
    scalar_touch(0)
    stamp('start')


def scalar_touch(k):
    if OPT['stouch'] <= k:
        return
    if k == 0:
        p(f's_add_u32 {s(96)}, {s(sW)}, {s(sB)}')
        p(f's_and_b32 {s(96)}, {s(96)}, 3')
        p(f's_lshl_b32 {s(96)}, {s(96)}, 10')
        p(f's_and_b32 {s(97)}, {s(sB128)}, 512')
        p(f's_add_u32 {s(96)}, {s(96)}, {s(97)}')
        p(f's_lshl_b32 {s(97)}, {s(sC)}, 12')
        p(f's_add_u32 {s(96)}, {s(96)}, {s(97)}')
        p(f's_lshl_b32 {s(97)}, {s(sW)}, 21')
        p(f's_add_u32 {s(96)}, {s(96)}, {s(97)}')
        p(f's_add_u32 {s(96)}, {s(96)}, 0x100000')
        p(f's_add_u32 s0, {s(R_WSP)}, {s(96)}')
        p(f's_addc_u32 s1, {s(R_WSP + 1)}, 0')
    else:
        p('s_waitcnt lgkmcnt(0)')
    for i in range(OPT['stn'] * k, OPT['stn'] * (k + 1)):
        p(f's_load_dword s91, s[0:1], {131072 * (i >> 2) + 128 * (i & 3) - 0x100000}')
        p.cur[-1].defs = set()


def early_requests():
    global prep, wsp_first
    if OPT['early'] & 1:
        emit(prep)
        prep = []
    emit(wsp_first[:OPT['early'] >> 1])
    wsp_first = wsp_first[OPT['early'] >> 1:]


def hook(k):
    if OPT['pre'] == k:
        first_requests()
    if max(OPT['pre'], 2) == k:
        early_requests()


hook(1)
vPi, vPo, vPri, vPro, PK = 112, 114, 242, 243, 224
PST = SCR + 12288
p(f's_add_u32 {s(92)}, {s(92)}, L_table-L_pc')
p(f's_addc_u32 {s(93)}, {s(93)}, 0')
for k in range(2):
    p(f'v_add_u32 {v(T)}, {256 * k}, {v(tid)}')
    p(f'v_mul_u32_u24 {v(T + 1)}, 4682, {v(T)}')
    p(f'v_lshrrev_b32 {v(T + 1)}, 16, {v(T + 1)}')
    p(f'v_mul_u32_u24 {v(T + 2)}, 14, {v(T + 1)}')
    p(f'v_sub_u32 {v(T)}, {v(T)}, {v(T + 2)}')
    p(f'v_and_b32 {v(T + 2)}, 0x38, {v(T + 1)}')
    p(f'v_add_u32 {v(T + 1)}, {v(T + 1)}, {v(T + 2)}')
    p(f'v_mul_u32_u24 {v(T + 1)}, 3584, {v(T + 1)}')
    p(f'v_lshl_add_u32 {v(vPi + k)}, {v(T)}, 4, {v(T + 1)}')
p(f's_and_b32 {s(94)}, {s(sC)}, 7')
p(f's_lshl_b32 {s(94)}, {s(94)}, 6')
p(f's_and_b32 {s(95)}, {s(sC)}, 8')
p(f's_add_u32 {s(94)}, {s(94)}, {s(95)}')
p(f's_mul_i32 {s(94)}, {s(94)}, 3584')
p(f's_lshr_b32 {s(95)}, {s(sC)}, 4')
p(f's_mul_i32 {s(95)}, {s(95)}, 1792')
p(f's_add_u32 {s(94)}, {s(94)}, {s(95)}')
p(f's_mul_i32 {s(95)}, {s(sB)}, 224')
p(f's_add_u32 {s(76)}, {s(94)}, {s(95)}')
p(f'v_lshrrev_b32 {v(T)}, 3, {v(lane)}')
p(f'v_and_b32 {v(T + 1)}, 0x70, {v(vL16)}')
p(f'v_lshl_add_u32 {v(vPo)}, {v(T)}, 10, {v(T + 1)}')
p(f's_and_b32 {s(94)}, {s(sC)}, 7')
p(f's_mul_i32 {s(94)}, {s(94)}, 112')
p(f's_lshr_b32 {s(95)}, {s(sC)}, 3')
p(f's_lshl_b32 {s(95)}, {s(95)}, 5')
p(f's_add_u32 {s(94)}, {s(94)}, {s(95)}')
p(f's_sub_u32 {s(95)}, {s(sC)}, 24')
p(f's_mul_i32 {s(95)}, {s(95)}, 224')
p(f's_add_u32 {s(95)}, {s(95)}, 96')
p(f's_cmp_lt_u32 {s(sC)}, 24')
p(f's_cselect_b32 {s(94)}, {s(94)}, {s(95)}')
p(f's_cselect_b32 {s(95)}, 16, 112')
p(f's_lshr_b32 {s(96)}, {s(sW)}, 1')
p(f's_mul_i32 {s(95)}, {s(95)}, {s(96)}')
p(f's_add_u32 {s(94)}, {s(94)}, {s(95)}')
p(f's_and_b32 {s(95)}, {s(sW)}, 1')
p(f's_lshl_b32 {s(95)}, {s(95)}, 3')
p(f's_add_u32 {s(94)}, {s(94)}, {s(95)}')
p(f's_lshl_b32 {s(94)}, {s(94)}, 10')
p(f's_add_u32 {s(77)}, {s(94)}, {s(sB128)}')
p(f'v_lshrrev_b32 {v(T)}, 2, {v(n_)}')
p(f'v_lshl_add_u32 {v(T)}, {v(g_)}, 3, {v(T)}')
p(f'v_mul_u32_u24 {v(T)}, 224, {v(T)}')
p(f'v_and_b32 {v(T + 1)}, 3, {v(lane)}')
p(f'v_lshl_add_u32 {v(T)}, {v(T + 1)}, 3, {v(T)}')
p(f's_lshl_b32 {s(94)}, {s(sW)}, 5')
p(f's_add_u32 {s(94)}, {s(94)}, {PST}')
p(f'v_add_u32 {v(vPri)}, {s(94)}, {v(T)}')
p(f's_lshl_b32 {s(94)}, {s(sW)}, 3')
p(f's_add_u32 {s(94)}, {s(94)}, {PST + 8192}')
p(f'v_lshl_add_u32 {v(vPro)}, {v(lane)}, 5, {s(94)}')
p(f'v_lshrrev_b32 {v(T)}, 3, {v(lane)}')
p(f'v_lshlrev_b32 {v(T)}, 18, {v(T)}')
p(f'v_and_b32 {v(T + 1)}, 7, {v(lane)}')
p(f'v_xor_b32 {v(T + 1)}, {v(T + 1)}, {v(g_)}')
p(f'v_lshl_add_u32 {v(T)}, {v(T + 1)}, 4, {v(T)}')
p(f's_lshl_b32 {s(94)}, {s(sC)}, 12')
p(f's_add_u32 {s(100)}, {s(sW)}, {s(sB)}')
if OPT['rot']:
    p(f's_lshr_b32 {s(95)}, s2, 6')
    p(f's_mul_i32 {s(95)}, {s(95)}, {OPT["rot"]}')
    p(f's_add_u32 {s(100)}, {s(100)}, {s(95)}')
p(f's_and_b32 {s(100)}, {s(100)}, 3')
p(f's_lshl_b32 {s(95)}, {s(100)}, 10')
p(f's_add_u32 {s(94)}, {s(94)}, {s(95)}')
p(f'v_add_u32 {v(vWspA)}, {s(94)}, {v(T)}')
p(f'v_xor_b32 {v(T)}, 64, {v(vWspA)}')
p(f'v_add_u32 {v(vWspA + 1)}, 0x20000, {v(T)}')
p(f's_mul_i32 {s(sWsp)}, {s(sW)}, 24576')
p(f'v_lshrrev_b32 {v(T)}, 1, {v(n_)}')
p(f'v_xor_b32 {v(T)}, {v(T)}, {v(g_)}')
p(f'v_lshlrev_b32 {v(T)}, 4, {v(T)}')
p(f'v_lshl_add_u32 {v(T)}, {v(n_)}, 7, {v(T)}')
p(f's_add_u32 {s(94)}, {s(sWsp)}, 1024')
p(f'v_add_u32 {v(vWspR)}, {s(94)}, {v(T)}')
p(f'v_xor_b32 {v(vWspR + 1)}, 64, {v(vWspR)}')
p(f's_lshr_b32 {s(94)}, {s(sB)}, 2')
p(f's_lshl_b32 {s(95)}, {s(sW)}, 21')
for k in range(2):
    p(f's_lshl_b32 {s(96)}, {s(94)}, 13')
    p(f's_add_u32 {s(78 + k)}, {s(96)}, {s(sWsp)}')
    p(f's_lshl_b32 {s(96)}, {s(94)}, 9')
    p(f's_add_u32 {s(80 + k)}, {s(96)}, {s(95)}')
    p(f's_xor_b32 {s(94)}, {s(94)}, 1')
p(f's_lshl_b32 {s(82)}, {s(sW)}, 10')
prep = [[(f's_add_u32 m0, {s(82)}, {PST}', None), (f'buffer_load_dwordx4 {v(vPi)}, {s(R_WIN, 4)}, {s(76)} offen lds', 'prep')],
        [(f's_add_u32 m0, {s(82)}, {PST + 4096}', None), (f'buffer_load_dwordx4 {v(vPi + 1)}, {s(R_WIN, 4)}, {s(76)} offen lds', 'prep')],
        [(f's_add_u32 m0, {s(82)}, {PST + 8192}', None), (f'buffer_load_dwordx4 {v(vPo)}, {s(R_WOUT, 4)}, {s(77)} offen lds', 'prep')],
        [(f'buffer_load_ushort {v(vBsp)}, {v(t3)}, {s(R_BSP, 4)}, 0 offen', None)]]
wsp_first = wsp_dma_ops(0) if OPT['nowsp'] < 2 else []
hook(2)
p(f's_mul_i32 {s(94)}, {s(sB)}, 229376')
p(f's_mul_i32 {s(95)}, {s(sC)}, 7168')
p(f's_add_u32 {s(94)}, {s(94)}, {s(95)}')
p(f's_lshl_b32 {s(95)}, {s(sW)}, 10')
p(f's_add_u32 {s(94)}, {s(94)}, {s(95)}')
p(f's_mov_b32 {s(83)}, {s(94)}')
p(f's_add_u32 {s(94)}, {s(94)}, 4096')
p(f's_cmp_lt_u32 {s(sW)}, 3')
p(f's_cselect_b32 {s(94)}, {s(94)}, {LBASE:#x}')
p(f's_mov_b32 {s(84)}, {s(94)}')
p(f's_mul_i32 {s(94)}, {s(sB)}, 114688')
p(f's_lshl_b32 {s(96)}, {s(sC)}, 12')
p(f's_add_u32 {s(94)}, {s(94)}, {s(96)}')
p(f's_add_u32 {s(94)}, {s(94)}, {s(95)}')
p(f's_add_u32 {s(94)}, {s(94)}, {WO:#x}')
p(f's_cmp_lt_u32 {s(sC)}, 28')
p(f's_cselect_b32 {s(94)}, {s(94)}, {LBASE:#x}')
p(f's_mov_b32 {s(85)}, {s(94)}')
p(f's_lshl_b32 {s(sVst)}, {s(sC)}, 11')
p(f's_lshl_b32 {s(96)}, {s(sB)}, 8')
p(f's_add_u32 {s(sVst)}, {s(sVst)}, {s(96)}')
p(f'v_lshlrev_b32 {v(T + 3)}, 17, {v(g_)}')
p(f'v_lshl_add_u32 {v(T + 3)}, {v(n_)}, 4, {v(T + 3)}')
p(f's_lshl_b32 {s(96)}, {s(sW)}, 19')
p(f'v_add_u32 {v(vVst)}, {s(96)}, {v(T + 3)}')
p(f'v_mul_u32_u24 {v(T + 3)}, 160, {v(n_)}')
p(f'v_lshl_add_u32 {v(T + 3)}, {v(g_)}, 3, {v(T + 3)}')
p(f's_mul_i32 {s(96)}, {s(sW)}, 2560')
p(f's_add_u32 {s(96)}, {s(96)}, {SCR}')
p(f'v_add_u32 {v(vHw2)}, {s(96)}, {v(T + 3)}')
p(f'v_lshrrev_b32 {v(T + 3)}, 2, {v(lane)}')
p(f'v_mul_u32_u24 {v(T + 3)}, 160, {v(T + 3)}')
p(f'v_and_b32 {v(T + 2)}, 3, {v(lane)}')
p(f'v_lshl_add_u32 {v(T + 3)}, {v(T + 2)}, 3, {v(T + 3)}')
p(f'v_add_u32 {v(vHw)}, {s(96)}, {v(T + 3)}')
p(f'v_add_u32 {v(vHr)}, {SCR}, {v(T + 3)}')


def setup_a():
    p(f's_lshr_b32 {s(94)}, {s(sB)}, 2')
    p(f's_and_b32 {s(95)}, {s(sB)}, 3')
    p(f's_sub_u32 {s(96)}, 32, {s(sC)}')
    p(f's_and_b32 {s(96)}, {s(96)}, 31')
    p(f's_cmp_eq_u32 {s(94)}, 0')
    p(f's_cselect_b32 {s(96)}, {s(sC)}, {s(96)}')
    p(f's_lshl_b32 {s(sVld)}, {s(96)}, 16')
    p(f's_lshl_b32 {s(sH)}, {s(sC)}, 16')
    p(f's_lshl_b32 {s(96)}, {s(95)}, 14')
    p(f's_lshl_b32 {s(97)}, {s(94)}, 7')
    p(f's_add_u32 {s(96)}, {s(96)}, {s(97)}')
    p(f's_add_u32 {s(sK2)}, {s(sH)}, {s(96)}')
    p(f's_lshl_b32 {s(96)}, {s(sW)}, 14')
    p(f's_add_u32 {s(sH)}, {s(sH)}, {s(96)}')
    p(f's_mov_b32 {s(sXb)}, 0')
    p(f's_mov_b32 {s(sXo)}, 0x10000')
    p(f's_lshl_b32 {s(96)}, {s(sB)}, 2')
    p(f's_add_u32 {s(96)}, {s(96)}, {s(100)}')
    p(f's_mul_i32 {s(sZld)}, {s(96)}, 114688')
    p(f's_add_u32 {s(sZld)}, {s(sZld)}, {Z_:#x}')
    p(f's_lshl_b32 {s(96)}, {s(sC)}, 2')
    p(f's_add_u32 {s(96)}, {s(96)}, {s(sW)}')
    p(f's_lshl_b32 {s(sUld)}, {s(96)}, 14')
    p(f's_add_u32 {s(sUld)}, {s(sUld)}, {H_ if OPT["locd"] & 4 else U_:#x}')
    p(f's_lshl_b32 {s(97)}, {s(sB)}, 10')
    p(f's_add_u32 {s(sUst)}, {s(sUld)}, {s(97)}')
    p(f's_lshl_b32 {s(sDm)}, {s(sW)}, 12')
    p(f's_mul_i32 {s(sWI)}, {s(sB)}, 229376')
    p(f's_add_u32 {s(sWI)}, {s(sWI)}, {s(sDm)}')
    p(f's_mul_i32 {s(sWO)}, {s(sB)}, 114688')
    p(f's_add_u32 {s(sWO)}, {s(sWO)}, {s(sDm)}')
    p(f's_add_u32 {s(sWO)}, {s(sWO)}, {WO:#x}')
    p(f's_and_b32 {s(96)}, s2, 15')
    p(f's_lshl_b32 {s(96)}, {s(96)}, 8')
    p(f's_add_u32 {s(sArr)}, {s(96)}, {FLAGS:#x}')
    p(f's_and_b32 {s(96)}, s2, 7')
    p(f's_lshl_b32 {s(96)}, {s(96)}, 12')
    p(f's_add_u32 {s(sRep)}, {s(96)}, {FLAGS:#x}')
    p(f's_lshl_b32 {s(97)}, {s(sB)}, 9')
    p(f's_add_u32 {s(97)}, {s(97)}, {FLAGS + 0x8000:#x}')
    p(f's_add_u32 {s(sP4)}, {s(96)}, {s(97)}')
    p(f's_mov_b32 {s(sS4)}, {s(97)}')
    p(f's_mov_b32 {s(sLocH)}, 0')
    p(f'v_lshlrev_b32 {v(vL8)}, 3, {v(lane)}')
    p(f'v_add_u32 {v(vL16hi)}, 0x10000, {v(vL16)}')
    p(f'v_add_u32 {v(vL16h2)}, 0x20000, {v(vL16)}')
    p(f'v_lshlrev_b32 {v(vPoll)}, 8, {v(n_)}')
    p(f'v_and_b32 {v(vArr)}, 7, {v(lane)}')
    p(f'v_lshlrev_b32 {v(vGrp)}, 2, {v(vArr)}')
    p(f'v_lshlrev_b32 {v(vArr)}, 12, {v(vArr)}')
    p(f'v_mov_b32 {v(vGK)}, {f2u(-2.302208198144325 * 0.044715):#x}')
    p(f'v_mov_b32 {v(vGK + 1)}, {f2u(-2.302208198144325):#x}')
    p(f'v_lshrrev_b32 {v(T)}, 3, {v(lane)}')
    p(f'v_and_b32 {v(T + 4)}, 7, {v(lane)}')
    p(f'v_lshlrev_b32 {v(T + 4)}, 4, {v(T + 4)}')
    p(f'v_lshl_add_u32 {v(T + 2)}, {v(T)}, 8, {v(T + 4)}')
    p(f's_lshl_b32 {s(96)}, {s(sW)}, 12')
    p(f'v_add_u32 {v(vK2)}, {s(96)}, {v(T + 2)}')
    p(f'v_and_b32 {v(T)}, 1, {v(T)}')
    p(f'v_lshl_add_u32 {v(T)}, {v(T)}, 4, {v(g_)}')
    p(f'v_mul_u32_u24 {v(T)}, 144, {v(T)}')
    p(f's_lshr_b32 {s(96)}, {s(sW)}, 1')
    p(f's_mul_i32 {s(96)}, {s(96)}, 4608')
    p(f's_and_b32 {s(97)}, {s(sW)}, 1')
    p(f's_mul_i32 {s(97)}, {s(97)}, 1152')
    p(f's_add_u32 {s(96)}, {s(96)}, {s(97)}')
    p(f's_add_u32 {s(96)}, {s(96)}, {SCR}')
    p(f'v_add3_u32 {v(vTr)}, {v(T)}, {v(T + 4)}, {s(96)}')
    p(f'v_lshrrev_b32 {v(T)}, 5, {v(lane)}')
    p(f'v_and_b32 {v(T + 1)}, 1, {v(g_)}')
    p(f'v_lshl_add_u32 {v(T + 2)}, {v(T)}, 4, {v(n_)}')
    p(f'v_mul_u32_u24 {v(T + 2)}, 144, {v(T + 2)}')
    p(f'v_lshl_add_u32 {v(T + 2)}, {v(T + 1)}, 4, {v(T + 2)}')
    p(f's_lshl_b32 {s(96)}, {s(sW)}, 5')
    p(f's_add_u32 {s(97)}, {s(96)}, {SCR}')
    p(f'v_add_u32 {v(vTw)}, {s(97)}, {v(T + 2)}')
    p(f'v_and_b32 {v(T + 2)}, 1, {v(lane)}')
    p(f'v_lshlrev_b32 {v(T + 2)}, 5, {v(T + 2)}')
    p(f'v_and_b32 {v(T + 3)}, 2, {v(lane)}')
    p(f'v_lshl_add_u32 {v(T + 2)}, {v(T + 3)}, 3, {v(T + 2)}')
    p(f'v_lshrrev_b32 {v(T + 3)}, 2, {v(lane)}')
    p(f'v_add_u32 {v(T + 2)}, {v(T + 2)}, {v(T + 3)}')
    p(f'v_mul_u32_u24 {v(T + 2)}, 144, {v(T + 2)}')
    p(f'v_add_u32 {v(vXw)}, {s(97)}, {v(T + 2)}')
    p(f'v_add_u32 {v(vXw + 1)}, 16, {v(vXw)}')
    p(f's_lshl_b32 {s(96)}, {s(95)}, 4')
    p(f's_add_u32 {s(96)}, {s(96)}, {s(94)}')
    p(f's_lshl_b32 {s(96)}, {s(96)}, 5')
    p(f's_add_u32 {s(98)}, {s(96)}, {s(sC)}')
    p(f's_lshl_b32 {s(96)}, {s(sW)}, 7')
    p(f's_add_u32 {s(96)}, {s(96)}, {s(98)}')
    p(f's_lshl_b32 {s(96)}, {s(96)}, 10')
    p(f'v_add_u32 {v(vXr)}, {s(96)}, {v(vL16)}')
    p(f'v_mul_u32_u24 {v(T + 3)}, 1040, {v(T + 1)}')
    p(f'v_lshl_add_u32 {v(T + 3)}, {v(T)}, 8, {v(T + 3)}')
    p(f'v_lshl_add_u32 {v(T + 3)}, {v(n_)}, 3, {v(T + 3)}')
    p(f's_mul_i32 {s(96)}, {s(sW)}, 2080')
    p(f's_add_u32 {s(96)}, {s(96)}, {SCR}')
    p(f'v_add_u32 {v(vUr)}, {s(96)}, {v(T + 3)}')
    p(f'v_mul_u32_u24 {v(T + 3)}, 1040, {v(n_)}')
    p(f'v_lshl_add_u32 {v(T + 3)}, {v(g_)}, 5, {v(T + 3)}')
    p(f's_lshl_b32 {s(96)}, {s(sW)}, 8')
    p(f's_add_u32 {s(96)}, {s(96)}, {SCR}')
    p(f'v_add_u32 {v(vUw)}, {s(96)}, {v(T + 3)}')
    p(f'v_lshlrev_b32 {v(T + 3)}, 13, {v(g_)}')
    p(f'v_lshl_add_u32 {v(T + 3)}, {v(n_)}, 4, {v(T + 3)}')
    p(f's_lshl_b32 {s(96)}, {s(sW)}, 9')
    p(f'v_add_u32 {v(vVld)}, {s(96)}, {v(T + 3)}')
    for q in range(1, 5):
        p(f's_add_u32 {s(96)}, {s(sW)}, {q}')
        p(f's_and_b32 {s(96)}, {s(96)}, 3')
        p(f's_mul_i32 {s(96)}, {s(96)}, 3072')
        p(f's_add_u32 {s(96)}, {s(96)}, {(CT if OPT["pr"] else SCR) + (1024 * (q - 1) if q < 4 else 0)}')
        p(f'v_add_u32 {v(vRed + q - 1)}, {s(96)}, {v(vL16)}')


def setup_b():
    p(f'v_and_b32 {v(T)}, 7, {v(n_)}')
    p(f'v_lshlrev_b32 {v(T)}, 6, {v(T)}')
    p(f'v_add_u32 {v(T)}, {s(98)}, {v(T)}')
    p(f'v_lshlrev_b32 {v(T + 1)}, 2, {v(g_)}')
    p(f'v_mul_u32_u24 {v(T + 1)}, {v(T + 1)}, {v(T)}')
    p(f'v_lshrrev_b32 {v(T + 2)}, 3, {v(n_)}')
    p(f'v_lshl_add_u32 {v(T + 1)}, {v(T + 2)}, 9, {v(T + 1)}')
    p(f's_cmp_eq_u32 {s(94)}, 0')
    p(f's_cselect_b32 {s(73)}, 1.0, -1.0')
    p(f's_cselect_b32 {s(74)}, 0, 1.0')
    p(f's_cselect_b32 {s(72)}, 1.0, 0')
    p(f's_cmp_eq_u32 {s(sC)}, 0')
    p(f's_cselect_b32 {s(72)}, {s(72)}, 1.0')
    p(f's_cselect_b32 {s(73)}, 0, {s(73)}')
    p(f's_cselect_b32 {s(74)}, {s(74)}, 0')
    for k in range(8):
        cp = 16 * (k >> 2) + (k & 3)
        p(f'v_mad_u32_u24 {v(T + 2)}, {v(T)}, {cp}, {v(T + 1)}')
        p(f'v_and_b32 {v(T + 2)}, 0x7ff, {v(T + 2)}')
        p(f'v_cvt_f32_u32 {v(T + 2)}, {v(T + 2)}')
        p(f'v_mul_f32 {v(T + 2)}, {f2u(1.0 / 2048):#x}, {v(T + 2)}')
        p(f'v_cos_f32 {v(T + 3)}, {v(T + 2)}')
        p(f'v_sin_f32 {v(T + 4)}, {v(T + 2)}')
        p(f'v_mul_f32 {v(T + 5)}, {s(74)}, {v(T + 3)}')
        p(f'v_mul_f32 {v(T + 3)}, {s(72)}, {v(T + 3)}')
        p(f'v_fma_f32 {v(T + 4)}, {s(73)}, {v(T + 4)}, {v(T + 5)}')
        p(f'v_cvt_pk_bf16_f32 {v(vC2 + k)}, {v(T + 3)}, {v(T + 4)}')


def late_setup():
    global lane, n_, g_
    lane, n_, g_ = 120, 121, 122
    if OPT['late']:
        p(f'v_lshrrev_b32 {v(lane)}, 4, {v(vL16)}')
        p(f'v_and_b32 {v(n_)}, 15, {v(lane)}')
        p(f'v_lshrrev_b32 {v(g_)}, 4, {v(lane)}')
    if OPT['late'] == 2:
        setup_a()
    if OPT['late']:
        setup_b()


assert OPT['pre'] <= 2
if OPT['late'] < 2:
    setup_a()
scalar_touch(1)
if OPT['late'] < 1:
    setup_b()
scalar_touch(2)
stamp('setup')
if OPT['wfirst'] == 1:
    emit(wsp_first)
    wsp_first = []
for i in range(OPT['x1'], OPT['xa']):
    if OPT['wfirst'] == 2 and wsp_first:
        emit([wsp_first.pop(0)])
    x_loads(i, i + 1)
if OPT['xa'] == 8:
    m1_load(108)
if OPT['ctpos'] == 0:
    ct_dma(110)
SCHED = OPT['sched'].split('/')
WT = OPT['wt'].split('/')
FIX = OPT['fix'].split('/')
WSR = (160, 192)
a2a_load = [(f'buffer_load_dword {v(241)}, {v(vPoll)}, {s(R_WS, 4)}, {s(sRep)} offen sc1', None)]


def wsp_run(items):
    i = 0
    while i < len(items):
        if items[i] == 'q':
            if_wave0()
            emit([a2a_load])
            p.end()
            i += 1
            continue
        k = int(items[i + 1])
        if items[i] == 'd':
            p.wait_lgkm(f'wr{k - 3}')
            wsp_dma(k)
        elif items[i] == 'r':
            wsp_read(k, WSR[k & 1])
        elif items[i] == 'a':
            wsp_park(k)
        else:
            wsp_perm(k, WSR[k & 1])
        if OPT['fine'] == 2:
            stamp('*' + items[i:i + 2])
        i += 2


zpois = [(f'buffer_store_dwordx4 {v(116, 4)}, {v(vZst)}, {s(R_WL, 4)}, {s(sZst)} offen sc1', 'pub')]
bg = prep + wsp_first
if OPT['zs']:
    bg = [zpois] + bg if OPT['zp0'] == 0 else bg + [zpois]
for ch in SCHED[0]:
    bg += wsp_dma_ops(int(ch))
for k in range(4):
    p(f'v_mov_b32 {v(T + 2 + k)}, 0')
p.bg = bg
xnext = OPT['xa']
if xnext == 8:
    p.bg_on(OPT['wspev'])
for i in range(64):
    if xnext < 8 and i % OPT['xe'] == OPT['xe'] - 1:
        x_loads(xnext, xnext + 1)
        xnext += 1
        if xnext == 8:
            m1_load(108)
            p.bg_on(OPT['wspev'])
    p(f'v_dot2c_f32_bf16 {v(T + 2 + (i & 1))}, {s(sOnes)}, {v(XR + i)}')
    p(f'v_dot2c_f32_bf16 {v(T + 4 + (i & 1))}, {v(XR + i)}, {v(XR + i)}')
    if i == 7:
        unpack(XR, 8, XV)
    if i == OPT['ann']:
        p.bg_on(0)
        p(f's_cmp_eq_u32 {s(sG0)}, 3')
        p.begin('G0', 's_cbranch_scc0')
        p.wait_vm('z')
        p(f'v_mov_b32 {v(EI)}, 1')
        p('s_mov_b64 exec, 1')
        p(f'buffer_store_dword {v(EI)}, off, {s(R_DBG, 4)}, 0 sc1')
        p('s_mov_b64 exec, -1')
        p.end()
        p.bg_on(OPT['wspev'] if xnext == 8 else 0)
p.bg_on(0)
p.bg_emit()
p(f'v_add_f32 {v(T)}, {v(T + 2)}, {v(T + 3)}')
p(f'v_add_f32 {v(T + 1)}, {v(T + 4)}, {v(T + 5)}')
for qp in ('[1,0,3,2]', '[2,3,0,1]'):
    for k in range(2):
        p(f'v_add_f32_dpp {v(T + k)}, {v(T + k)}, {v(T + k)} quad_perm:{qp} row_mask:0xf bank_mask:0xf')
p('s_waitcnt lgkmcnt(0)')
p('s_mov_b32 s0, s86')
p('s_mov_b32 s1, s87')
sF2s, sF2l = 0, 1
dbg_load = [(f'buffer_load_dword {v(241)}, off, {s(R_DBG, 4)}, 0 sc1', None)]
assert not SCHED[1]
wsp_run(SCHED[1])

p.section('body')
for _ in range(OPT['algn']):
    p('s_nop 0')
p('L_layer:')
stamp('T')
HP, AF, D1, VO = 56, 72, 104, 56
finish_stats(T, 512)
for i in range(0, 16, 2):
    p(f'v_pk_fma_f32 {v(XV + i, 2)}, {v(XV + i, 2)}, {v(T, 2)}, {v(T, 2)} op_sel:[0,0,1] op_sel_hi:[1,0,1]')
for t in range(4):
    for k in range(2):
        p(f'v_cvt_pk_bf16_f32 {v(HP + 2 * t + k)}, {v(XV + 8 * k + t)}, {v(XV + 8 * k + 4 + t)}')
    p(f'ds_write_b64 {v(vHw)}, {v(HP + 2 * t, 2)} offset:{32 * t}', tag='hw')
p(f's_add_u32 {s(sT + 1)}, {s(sVst)}, 0x10000')
p.wait_lgkm('hw')
p.wait_vm('prep')
p('s_barrier')
for ks in range(2):
    for tile in range(4):
        for half in range(2):
            p(f'ds_read_b64_tr_b16 {v(AF + 16 * ks + 4 * tile + 2 * half, 2)}, {v(vHr)} offset:{(32 * ks + 16 * half) * 160 + 32 * tile}')
if_layer(0)
for k in range(2):
    for half in range(2):
        p(f'ds_read_b64_tr_b16 {v(PK + 4 * k + 2 * half, 2)}, {v(vPri)} offset:{128 * k + 896 * half}')
for half in range(2):
    p(f'ds_read_b64_tr_b16 {v(PK + 8 + 2 * half, 2)}, {v(vPro)} offset:{2048 * half}')
p.end()
for ks in range(2):
    for tile in range(4):
        d = D1 + 4 * tile
        p(f'{M16} {v(d, 4)}, {v(M1 + 4 * ks, 4)}, {v(AF + 16 * ks + 4 * tile, 4)}, {v(d, 4) if ks else 0}')
if_layer(0)
p(f'v_lshlrev_b32 {v(vBsp)}, 16, {v(vBsp)}')
p(f'buffer_store_dwordx4 {v(PK, 4)}, {v(vL16)}, {s(R_WS, 4)}, {s(83)} offen sc1', tag='pub')
p(f'buffer_store_dwordx4 {v(PK + 4, 4)}, {v(vL16)}, {s(R_WS, 4)}, {s(84)} offen sc1', tag='pub')
p(f'buffer_store_dwordx4 {v(PK + 8, 4)}, {v(vL16)}, {s(R_WS, 4)}, {s(85)} offen sc1', tag='pub')
p.end()
for jj in range(2):
    for t in range(4):
        p(f'v_cvt_pk_bf16_f32 {v(VO + 4 * jj + t)}, {v(D1 + 4 * t + 2 * jj)}, {v(D1 + 4 * t + 2 * jj + 1)}')
    p(f'buffer_store_dwordx4 {v(VO + 4 * jj, 4)}, {v(vVst)}, {s(R_WL, 4)}, {s(sT + 1 if jj else sVst)} offen sc1', tag='pub')
stamp('Vst')
if OPT['ctpos'] == 1:
    ct_dma(T + 6)
if_layer(0)
if_wave0()
emit([dbg_load])
p.end()
wsp_run(SCHED[2])
late_setup()
if_wave0()
retry_until(dbg_load, lambda: p(f'v_cmp_ne_u32 vcc, 1, {v(241)}'))
p.end()
p.end()
wz2 = w_dma_ops(sWI, 114688, LOC_Z2, 'wz2')
CMN = [int(ch, 36) for ch in OPT['cmn']]
assert sum(CMN) % 4 == 0 and sum(CMN) + OPT['wzp1'] + OPT['wzp2'] + OPT['wzp3'] == 28
wz2_both, wz2 = wz2[:sum(CMN)], wz2[sum(CMN):]
P1, P2, P3 = OPT['wzp1'], OPT['wzp1'] + OPT['wzp2'], OPT['wzp1'] + OPT['wzp2'] + OPT['wzp3']
assert P1 % 4 == 0 and OPT['wzp0'] % 4 == 0
if (OPT['ctp'] == 2 and OPT['ctpos'] == 0) or P2 > P1:
    if_layer(1)
    if OPT['ctp'] == 2 and OPT['ctpos'] == 0:
        ct_dma(T + 6)
    emit(wz2[P1:P2])
    p.end()
stamp('init')
if OPT['vs']:
    if_layer(0)
    p.wait_vm('pub')
    p.wait_vm('ct')
    arrive(sArr, 8)
    p.end()
    if_layer(1)
    p.wait_vm('x2')
    p.wait_vm('ct')
    arrive_group(sS2, 32)
    p.end()
else:
    p.wait_vm('pub')
    p.wait_vm('ct')
    arrive(sArr, 8)
poison(5, 96)
code_prefetch(1, 'L_k2')
stamp('arr1')
FA, TW, FB, VR, D2, UP, XRES, Y = 40, 64, 80, 96, 160, 192, 224, 208
for k in range(14):
    p(f'ds_read_b128 {v(FA + 4 * k, 4)}, {v(vL16hi)} offset:{CT - 65536 + k * 1024}')
if_layer(0)
wsp_run(SCHED[3])
if_wave0()
retry_until(a2a_load, lambda: p(f'v_cmp_ne_u32 vcc, 16, {v(241)}'))
p.end()
assert OPT['vs']
p(f's_and_b32 {s(99)}, {s(sSelLo)}, 2')
p(f's_lshl_b32 {s(99)}, {s(99)}, 9')
p(f'v_add_u32 {v(vZ[0])}, {s(99)}, {v(vL16)}')
p(f'v_xor_b32 {v(vZ[1])}, 0x400, {v(vZ[0])}')
p(f's_add_u32 {s(94)}, {s(99)}, {s(sDm)}')
p(f's_xor_b32 {s(95)}, {s(94)}, 0x400')
p('s_barrier')
p.end()
for k in range(4):
    p(f's_add_u32 {s(sT + 4 + k)}, {s(sVld)}, {(16 * (k >> 1) + 2 * (k & 1)) * 2048:#x}')
if_layer(1)
emit(wz2[P2:P3])
x2_load = [(f'buffer_load_dword {v(248)}, {v(vGrp)}, {s(R_WS, 4)}, {s(sS2)} offen offset:32{PG}', None)]
if OPT['vs']:
    emit([x2_load])
else:
    poll(sRep, vPoll, 16)
p.end()
assert not SCHED[8:]


def l0_dma(n):
    emit([wz2_both.pop(0) for _ in range(CMN.pop(0))])


stamp('S1')
p('L_k2:')
vl = [(f'buffer_load_dwordx4 {v(VR + 16 * gk + 4 * ii, 4)}, {v(vVld)}, {s(R_WL, 4)}, {s(sT + 4 + 2 * (gk & 1) + (ii >> 1))} '
       f'offen offset:{(ii & 1) * 2048 + (gk >> 1) * 256} sc1', None) for gk in range(4) for ii in range(4)]
for gk in range(4):
    emit([vl[4 * gk:4 * gk + 4]])
    if gk < 3 and SCHED[4 + gk]:
        if_layer(0)
        wsp_run(SCHED[4 + gk])
        p.end()
if OPT['vs']:
    if_layer(1)
    retry_until(x2_load, lambda: p(f'v_cmp_ne_u32 vcc, 1, {v(248)}'))
    p.end()
xl = [(f'buffer_load_dwordx4 {v(XRES + 4 * k, 4)}, {v(vXr)}, {s(R_X, 4)}, {s((sXb, sXo)[k])} offen{LG}', None) for k in range(2)]
emit([xl])
if_layer(0)
p(f'buffer_load_dword {v(248)}, {v(vGrp)}, {s(R_WS, 4)}, {s(sS2)} offen offset:128 sc1')
wsp_run(SCHED[7])
if not SCHED[8:]:
    p('s_waitcnt lgkmcnt(0)')
    p('s_barrier')
p.end()
l0_dma(0)
stamp('Vld')


def u_pack(hi):
    up = (192, 200)[hi]
    for r in range(4):
        for lp in range(2):
            p(f'v_cvt_pk_bf16_f32 {v(up + 2 * r + lp)}, {v(D2 + 16 * hi + 8 * lp + r)}, {v(D2 + 16 * hi + 8 * lp + 4 + r)}')
        if r & 1:
            p(f'ds_write_b128 {v(vUw)}, {v(up + 2 * r - 2, 4)} offset:{128 * hi + 8 * (r - 1)}')


for hi in range(2):
    for ks in range(2):
        if hi and ks:
            u_pack(0)
        r = VR + 32 * hi + 16 * ks
        if OPT['vs']:
            def v_test(r=r):
                p(f'v_max3_u32 {v(T)}, {v(r + 3)}, {v(r + 7)}, {v(r + 11)}')
                p(f'v_max_u32 {v(T)}, {v(T)}, {v(r + 15)}')
                p(f'v_cmp_eq_u32 vcc, -1, {v(T)}')
            gk = 2 * hi + ks
            if OPT['vs'] == 1:
                retry_until(vl[4 * gk:], v_test)
            else:
                retry_until(vl[4 * gk:4 * gk + 4], v_test, after=vl[4 * gk + 4:] + xl if gk < 3 else None)
        for i in range(4):
            for j in range(i + 1, 4):
                p(f'v_swap_b32 {v(r + 4 * i + j)}, {v(r + 4 * j + i)}')
        for lo in range(4):
            d = D2 + 16 * hi + 4 * lo
            p(f'{M16} {v(d, 4)}, {v(r + 4 * lo, 4)}, {v(vC2 + 4 * ks, 4)}, {v(d, 4) if ks else 0}')
fine('st2')
l0_dma(4)
u_pack(1)
for k in range(2):
    p(f'ds_write_b128 {v(vXw + k)}, {v(XRES + 4 * k, 4)} offset:16640')
p('s_waitcnt lgkmcnt(0)')
p('s_barrier')
fine('ubar')
poison(4, 176)
UA, DR, DI, TT, PF = 96, 112, 128, 144, 160
for ri in range(2):
    for dh in range(2):
        for half in range(2):
            p(f'ds_read_b64_tr_b16 {v(UA + 8 * ri + 4 * dh + 2 * half, 2)}, {v(vUr)} offset:{ri * 8320 + dh * 512 + half * 128}')
for o in range(2):
    p(f'ds_read_b128 {v(XRES + 4 * o, 4)}, {v(vTw)} offset:{16640 + 4608 * o}')
l0_dma(4)
for ri in range(2):
    for dh in range(2):
        first = ri == 0 and dh == 0
        fr = FA + 4 * ((2 if ri else 0) + dh)
        fi = FA + 4 * ((0 if ri else 4) + dh)
        p(f'{M32} {v(DR, 16)}, {v(UA + 8 * ri + 4 * dh, 4)}, {v(fr, 4)}, {0 if first else v(DR, 16)}')
        p(f'{M32} {v(DI, 16)}, {v(UA + 8 * ri + 4 * dh, 4)}, {v(fi, 4)}, {0 if first else v(DI, 16)}')
fine('stA')
unpack(XRES, 8, Y)
fine('xres')
l0_dma(4)
for row in range(2):
    for k in range(0, 8, 2):
        r = 8 * row + k
        p(f'v_pk_mul_f32 {v(TT + k, 2)}, {v(DI + r, 2)}, {v(TW + 8 + k, 2)}')
        p(f'v_pk_mul_f32 {v(TT + 8 + k, 2)}, {v(DR + r, 2)}, {v(TW + 8 + k, 2)}')
    for k in range(0, 8, 2):
        r = 8 * row + k
        p(f'v_pk_fma_f32 {v(TT + k, 2)}, {v(DR + r, 2)}, {v(TW + k, 2)}, {v(TT + k, 2)}')
        p(f'v_pk_fma_f32 {v(TT + 8 + k, 2)}, {v(DI + r, 2)}, {v(TW + k, 2)}, {v(TT + 8 + k, 2)} neg_lo:[0,0,1] neg_hi:[0,0,1]')
    for k in range(8):
        p(f'v_cvt_pk_bf16_f32 {v(PF + 8 * row + k)}, {v(TT + 2 * k)}, {v(TT + 2 * k + 1)}')
for k in range(4):
    p(f'{M32} {v(Y, 16)}, {v(PF + 4 * k, 4)}, {v(FB + 4 * k, 4)}, {v(Y, 16)}')
fine('stB')
XO, HO = 224, 232
l0_dma(4)
if_layer(0)
p(f'v_cmp_ne_u32 vcc, {s(sLoc)}, {v(248)}')
p('s_cmp_eq_u64 vcc, 0')
p(f's_cselect_b32 {s(sLoc)}, {OPT["loc"]}, 0')
p(f's_mov_b32 {s(sLocU)}, {s(sLoc)}')
p.end()
local_stats(Y, 16, T)
p(f'v_permlane32_swap_b32 {v(T)}, {v(T + 1)}')
p(f'v_add_f32 {v(T)}, {v(T)}, {v(T + 1)}')
for k, sh in enumerate((8, 4, 2, 1)):
    p(f'v_cvt_pk_bf16_f32 {v(XO + 2 * k)}, {v(Y + 4 * k)}, {v(Y + 4 * k + 1)}')
    p(f'v_cvt_pk_bf16_f32 {v(XO + 2 * k + 1)}, {v(Y + 4 * k + 2)}, {v(Y + 4 * k + 3)}')
    p(f'v_add_f32_dpp {v(T)}, {v(T)}, {v(T)} row_ror:{sh} row_mask:0xf bank_mask:0xf')
p(f'v_mov_b32 {v(T + 1)}, {v(T)}')
p(f's_add_u32 {s(sT)}, {s(sK2)}, {X1_:#x}')
p(f's_add_u32 {s(sT + 1)}, {s(sK2)}, {H_:#x}')
p(f'v_permlane32_swap_b32 {v(T)}, {v(T + 1)}')
finish_stats(T, 512)
norm_pack(Y, 16, T, Y, HO)
fine('norm')
for o in range(2):
    p(f'ds_write_b128 {v(vTw)}, {v(HO + 4 * o, 4)} offset:{16640 + 4608 * o}')
p('s_waitcnt lgkmcnt(0)')
p('s_barrier')
for k in range(2):
    p(f'ds_read_b128 {v(HO + 4 * k, 4)}, {v(vTr)} offset:{16640 + 576 * k}')
for o in range(2):
    p(f'ds_write_b128 {v(vTw)}, {v(XO + 4 * o, 4)} offset:{4608 * o}')
gstore([f'buffer_store_dwordx4 {v(HO + 4 * k, 4)}, {v(vK2)}, {s(R_WL, 4)}, {s(sT + 1)} offen offset:{2048 * k}' for k in range(2)], 'pub', OPT['locd'] & 1, sLocH)
l0_dma(6)
HF, Z2, Z1, WR, WD, GT = 40, 104, 136, 164, 12, 232
for k in range(4):
    p(f's_add_u32 {s(sT + 4 + k)}, {s(sH)}, {H_ + 4096 * k:#x}')
wsp_fix(FIX[0], 104, wz2[:OPT['l0a']])
stamp('K2')
p('s_waitcnt lgkmcnt(0)')
if OPT['wf2']:
    p('s_barrier')
    for k in range(2):
        p(f'ds_read_b128 {v(XO + 4 * k, 4)}, {v(vTr)} offset:{576 * k}')
    p(f'v_mov_b32 {v(T)}, 1')
    p.wait_vm('pub')
    p('s_mov_b64 exec, 1')
    gstore([f'buffer_store_dword {v(T)}, off, {s(R_WS, 4)}, {s(sF2s)}'])
    p('s_mov_b64 exec, -1')
else:
    p.wait_vm('pub')
    arrive_group(sS2)
    for k in range(2):
        p(f'ds_read_b128 {v(XO + 4 * k, 4)}, {v(vTr)} offset:{576 * k}')
wsp_fix(FIX[1], 104, wz2[OPT['l0a']:])
stamp('arr2')
p('s_waitcnt lgkmcnt(0)')
for k in range(7):
    p.wait_vm(f'wz2{k}')
if OPT['wf2']:
    p('s_barrier')
    top, done = p.label('poll'), p.label('pdone')
    p(f'{top}:')
    p(f'buffer_load_dword {v(T)}, {v(vGrp)}, {s(R_WS, 4)}, {s(sF2l)} offen{PG}')
    p('s_waitcnt vmcnt(0)')
    p(f'v_cmp_ne_u32 vcc, 1, {v(T)}')
    spin_tail(top, done)
else:
    poll(sS2, vGrp, 1)
stamp('S2')
p('L_k3:')
hl = [[(f'buffer_load_dwordx4 {v(HF + 4 * ks, 4)}, {v(vL16)}, {s(R_WL, 4)}, {s(sT + 4 + (ks >> 2))} offen offset:{1024 * (ks & 3)}{LG}', None)]
      for ks in range(16)]
xs = [[(f'buffer_store_dwordx4 {v(XO + 4 * k, 4)}, {v(vK2)}, {s(R_WL, 4)}, {s(sT)} offen offset:{2048 * k} sc1', 'x1')] for k in range(2)]
wz1 = w_dma_ops(sWI, 0, LOC_Z1, 'wz1')
emit(hl[:OPT['pre3']])
SEL, ZP, ZT, ZO = 212, 228, 164, 104
p(f'v_and_b32 {v(SEL)}, 0xf0, {v(vL16)}')
p(f'v_lshrrev_b32 {v(SEL + 1)}, 2, {v(vL16)}')
p(f'v_and_b32 {v(SEL + 1)}, 0xc0, {v(SEL + 1)}')
p(f'v_sub_u32 {v(SEL)}, {v(SEL)}, {v(SEL + 1)}')
p(f'v_mov_b32 {v(SEL + 4)}, 0x3f80')
p(f'v_lshlrev_b32 {v(SEL + 4)}, {v(SEL)}, {v(SEL + 4)}')
p(f'v_lshrrev_b32 {v(SEL + 1)}, 5, {v(SEL)}')
p(f'v_cmp_eq_u32 vcc, 0, {v(SEL + 1)}')
p(f'v_cndmask_b32 {v(SEL + 2)}, 0, {v(SEL + 4)}, vcc')
p(f'v_cmp_eq_u32 vcc, 1, {v(SEL + 1)}')
p(f'v_cndmask_b32 {v(SEL + 3)}, 0, {v(SEL + 4)}, vcc')
for k in (0, 1, 4, 5):
    p(f'v_mov_b32 {v(SEL + k)}, 0')
p(f'v_mov_b32 {v(ZP + 14)}, 0')
p(f'v_mov_b32 {v(ZP + 15)}, 0')
wsp_fix(FIX[2], 104)
n_h = 16 - OPT['pre3']
fill = spread(hl[OPT['pre3']:], 1, OPT['hsp'])
fill.update(spread(xs + wz1[:12], OPT['hsp'] * n_h + 1, OPT['z2sp']))
fill[max(fill) + 3] = lambda: poison(1, 132)
gemm_r(Z2, 7, 0, 16, HF, WR, WD, LOC_Z2, fill=fill)
p.wait_vm('x1')
p('s_barrier')
stamp('z2mm')
p.bg = wz1[12:]
p.bg_emit(2)
p.bg_on(OPT['g2ev'])
gelu(Z2, 28, GT)
local_stats(Z2, 28, T)
p.bg_on(0)
reduce_g(T, T + 1)
publish_stats(0)
stamp('pub3')
Z1A = OPT['z1a']
p.bg_emit(None if Z1A else OPT['gb'])
p(f's_mov_b32 {s(sT + 2)}, {s(sZld)}')
for k in range(2):
    p(f'v_add_u32 {v(246 + k)}, {s(94 + k)}, {v(vL16)}')
OW, OR, OG = 248, 249, 253
p(f's_add_u32 {s(sT + 1)}, {s(sUst)}, 8192')
p(f's_lshl_b32 {s(sT + 3)}, {s(sB)}, 10')
p(f's_add_u32 {s(sT + 3)}, {s(sT + 3)}, {s(sH)}')
p(f's_add_u32 {s(sT + 12)}, {s(sT + 3)}, {X1_:#x}')
p(f's_add_u32 {s(sT + 13)}, {s(sT + 3)}, {X1_ + 8192:#x}')
for k in range(4):
    p(f's_add_u32 {s(sT + 4 + k)}, {s(sUld)}, {4096 * k}')
    p(f's_add_u32 {s(sT + 8 + k)}, {s(sH)}, {X1_ + 4096 * k:#x}')
p(f'v_and_b32 {v(133)}, 0xf0, {v(vL16)}')
p(f'v_mul_u32_u24 {v(133)}, 9, {v(133)}')
p(f'v_lshrrev_b32 {v(134)}, 8, {v(vL16)}')
p(f'v_lshl_add_u32 {v(133)}, {v(134)}, 5, {v(133)}')
p(f's_mul_i32 {s(99)}, {s(sW)}, 2304')
p(f's_add_u32 {s(99)}, {s(99)}, {CT if OPT["pr"] else SCR + 12288}')
p(f'v_add_u32 {v(OW)}, {s(99)}, {v(133)}')
p(f'v_lshrrev_b32 {v(133)}, 7, {v(vL16)}')
p(f'v_lshl_add_u32 {v(134)}, {v(133)}, 4, {v(vL16)}')
p(f'v_add_u32 {v(OR)}, {s(99)}, {v(134)}')
p(f'v_and_b32 {v(134)}, 0x70, {v(vL16)}')
p(f'v_lshl_add_u32 {v(OG)}, {v(133)}, 16, {v(134)}')
p(f's_lshl_b32 {s(99)}, {s(sW)}, 9')
p(f's_add_u32 {s(99)}, {s(99)}, {s(sC)}')
p(f's_lshl_b32 {s(99)}, {s(99)}, 10')
p(f's_add_u32 {s(sT + 14)}, {s(99)}, {s(sB128)}')
p(f's_add_u32 {s(sT + 15)}, {s(sT + 14)}, 0x8000')
wo = w_dma_ops(sWO, 0, LOC_WO, 'wo')
if Z1A:
    p.wait_vm('wz12')
    p('s_barrier')
    fill = {OPT['gpos']: gather_loads(0)}
    fill.update(spread(wo[:OPT['woa']], OPT['gpos'] + 2, 2))
    gemm_r(Z1, 7, 0, Z1A, HF, WR, WD, LOC_Z1, fill=fill)
else:
    emit([gather_loads(0)])
    p.bg_emit()
    emit(wo[:OPT['woa']])
stamp('z1a')
gather_finish(0)
stamp('S3')
poison(2, 132)
finish_stats(T, 896)
for i in range(0, 28, 2):
    p(f'v_pk_fma_f32 {v(Z2 + i, 2)}, {v(Z2 + i, 2)}, {v(T, 2)}, {v(T, 2)} op_sel:[0,0,1] op_sel_hi:[1,0,1]')
ZO = 192
for pr in range(6):
    if pr < 4:
        tiles = [ft for ft in (2 * pr, 2 * pr + 1) if ft < 7]
        for ft in tiles:
            for k in range(2):
                p(f'v_cvt_pk_bf16_f32 {v(ZP + 2 * ft + k)}, {v(Z2 + 4 * ft + 2 * k)}, {v(Z2 + 4 * ft + 2 * k + 1)}')
    if 2 <= pr:
        q = pr - 2
        for ft in (2 * q, 2 * q + 1):
            for k in range(2 if ft < 7 else 0):
                p(f'v_cvt_pk_bf16_f32 {v(ZO + 2 * ft + k)}, {v(ZT + 4 * ft + 2 * k)}, {v(ZT + 4 * ft + 2 * k + 1)}')
        p(f's_add_u32 {s(sT)}, {s(sZst)}, {q * 32768:#x}')
    if pr < 4:
        for ft in tiles:
            p(f'{M16} {v(ZT + 4 * ft, 4)}, {v(ZP + 4 * pr, 4)}, {v(SEL + (0 if ft & 1 else 2), 4)}, 0')
    if 2 <= pr:
        for k in range(2):
            p(f'v_permlane16_swap_b32 {v(ZO + 4 * q + k)}, {v(ZO + 4 * q + 2 + k)}')
        if q == 3:
            p('s_mov_b32 exec_lo, 0xffff')
            p('s_mov_b32 exec_hi, 0xffff')
        p(f'buffer_store_dwordx4 {v(ZO + 4 * q, 4)}, {v(vZst)}, {s(R_WL, 4)}, {s(sT)} offen sc1', tag='pub')
p('s_mov_b64 exec, -1')
stamp('Zst')
poison(3, 132)
p.wait_vm('wz16')
p('s_barrier')
Z1B = min(16, Z1A + OPT['z1arr'])
wreg = lambda k: 104 + 4 * k if k < 8 else 212 + 4 * (k - 8)
wst = []
for k in range(16):
    g = [(f's_add_u32 {s(sDo)}, {s(sWO)}, {16384 * (3 + (k >> 2)):#x}', None)] if k % 4 == 0 else []
    if not OPT['nobg'] & 1:
        g.append((f'buffer_load_dwordx4 {v(wreg(k), 4)}, {v(vZ[k & 1])}, {s(R_WS, 4)}, {s(sDo)} offen offset:{1024 * (k & 2)}', None))
    wst.append(g)
bgw = wo[OPT['woa']:12] + wst
wo = []
ZD, AC, RT, UO = OPT['zd'], 196, 228, 240


def zreg(fi):
    k = fi % ZD
    return 56 + 4 * k


def zload(fi):
    if fi % 4 == 0 and fi:
        p(f's_add_u32 {s(sT + 2)}, {s(sT + 2)}, 4096')
    if OPT['k4load'] or fi < ZD:
        p(f'buffer_load_dwordx4 {v(zreg(fi), 4)}, {v(vZ[fi & 1])}, {s(R_WL, 4)}, {s(sT + 2)} offen offset:{(fi & 2) * 1024}' + ' sc1', tag=f'z{fi}')


nin = min(len(bgw), (112 - 7 * Z1A - 1) // OPT['wosp'])
fill = spread(bgw[:nin], 7 * Z1A + 1, OPT['wosp'])
nz = 0
if OPT['zs'] and OPT['zin'] and nin == len(bgw):
    pos = max(max(fill) + OPT['wosp'], OPT['zin'])
    while nz < ZD and max(pos, 7 * (nz + 5) - 1) < 112:
        pos = max(pos, 7 * (nz + 5) - 1)
        fill[pos] = (lambda k: lambda: zload(k))(nz)
        pos += OPT['zsp']
        nz += 1
gemm_r(Z1, 7, Z1A, Z1B, HF, WR, WD, LOC_Z1, last=112, fill={k: g for k, g in fill.items() if k < 7 * Z1B})
p.wait_vm('pub')
arrive(sS4, 8)
code_prefetch(4, 'L_k4')
stamp('arr4')
if Z1B < 16:
    gemm_r(Z1, 7, Z1B, 16, HF, WR, WD, LOC_Z1, preload=False, fill={k: g for k, g in fill.items() if k >= 7 * Z1B})
p.bg = bgw[nin:]
if nz:
    for fi in range(nz, ZD):
        zload(fi)
    nz = ZD
if OPT['g1w']:
    p.bg_on(8)
    gelu(Z1, 4 * OPT['g1w'], 164)
    p.bg_on(0)
p.bg_emit()
wsp_fix(FIX[3], 164)
B4 = 188
p(f'v_mov_b32 {v(T + 4)}, 1')
p(f's_add_u32 {s(96)}, {s(sS5)}, {s(sB4)}')
if OPT['bc']:
    for k in range(4):
        p(f'v_mov_b32 {v(B4 + k)}, {v(vBsp)}')
stamp('win4')
if OPT['zs']:
    if Z1B < 16:
        p('s_barrier')
else:
    poll(sP4, None, 32)
stamp('S4')
p('L_k4:')
def acc0(ft):
    return (196, 212, 192)[ft % 3] if OPT['pr'] else AC + 16 * (ft & 1)


def k4_epilogue(ft):
    ac, buf = AC + 16 * (ft & 1), 12288 * (ft & (3 if OPT['pr'] else 1))
    RT = 164 if OPT['pr'] and ft in (0, 2, 4) else 228
    st1 = [f'ds_write_b128 {v(vRed + q - 1)}, {v(ac + 4 * q, 4)} offset:{buf}' for q in (1, 2, 3)]
    ac = acc0(ft)
    st1 += [f'v_add_f32 {v(ac + r)}, {v(vBsp)}, {v(ac + r)}' for r in range(0 if OPT['bc'] else 4)]
    st2 = ['s_waitcnt lgkmcnt(0)', 's_barrier']
    st2 += [f'ds_read_b128 {v(RT + 4 * q, 4)}, {v(vRed + 3)} offset:{buf + 1024 * q}' for q in range(3)]
    st3 = [f'v_add_f32 {v(ac + r)}, {v(RT + 4 * q + r)}, {v(ac + r)}' for q in range(3) for r in range(4)]
    st3 += [f'v_mul_f32 {v(ac + r)}, {v(Z1 + 4 * ft + r)}, {v(ac + r)}' for r in range(4)]
    st3 += [f'v_cvt_pk_bf16_f32 {v(UO + 2 * (ft & 1) + k)}, {v(ac + 2 * k)}, {v(ac + 2 * k + 1)}' for k in range(2)]
    if ft == 6:
        st3 += [f'buffer_store_dwordx2 {v(UO, 2)}, {v(vL8)}, {s(R_WL, 4)}, {s(sT + 13)} offen']
    elif ft == 5:
        st3 += [f'buffer_store_dwordx4 {v(UO, 4)}, {v(vL16)}, {s(R_WL, 4)}, {s(sT + 12)} offen']
    elif ft & 1:
        st3 += [f'buffer_store_dwordx4 {v(UO, 4)}, {v(vL16)}, {s(R_WL, 4)}, {s(sT + 1 if ft == 3 else sUst)} offen offset:0']
    return st1, st2, st3


def k4_emit(x):
    if x.startswith('buffer_store'):
        late = x.endswith('offen')
        if late:
            p.wait_vm('x1l')
        gstore([x], 'u6' if 'dwordx2' in x else 'pub', OPT['locd'] & (2 if late else 4), sLocU if OPT['locd'] & (8 if late else 16) else None)
    else:
        p(x)


def gelu_ops(x, t):
    ops = [f'v_mul_f32 {v(t + k)}, {v(x + k)}, {v(x + k)}' for k in range(4)]
    ops += [f'v_fma_f32 {v(t + k)}, {v(t + k)}, {v(vGK)}, {v(vGK + 1)}' for k in range(4)]
    ops += [f'v_mul_f32 {v(t + k)}, {v(t + k)}, {v(x + k)}' for k in range(4)]
    ops += [f'v_exp_f32 {v(t + k)}, {v(t + k)}' for k in range(4)]
    ops += [f'v_add_f32 {v(t + k)}, 1.0, {v(t + k)}' for k in range(4)]
    ops += [f'v_rcp_f32 {v(t + k)}, {v(t + k)}' for k in range(4)]
    ops += [f'v_mul_f32 {v(x + k)}, {v(t + k)}, {v(x + k)}' for k in range(4)]
    return ops


WR5, X1R, XP, FL, X1L = 56, 232, 104, 244, 136
assert ZD == WD


def ureg(ks):
    return (104, 120, 164, 180, 212, 196, 136)[ks >> 2] + 4 * (ks & 3)


ul = [[(f'buffer_load_dwordx4 {v(ureg(ks), 4)}, {v(vL16)}, {s(R_WL, 4)}, {s(sT + 4 + (ks >> 2))} offen offset:{1024 * (ks & 3)}{LG}', None)]
      for ks in range(24)]
ul += [[(f'buffer_load_dwordx2 {v(ureg(24 + i) + 2 * k, 2)}, {v(vL8)}, {s(R_WL, 4)}, {s(sT + 10 + (i >> 1))} offen offset:{1024 * (2 * (i & 1) + k)}{LG}', None)
        for k in range(2)] for i in range(4)]


def flag_store(off):
    if OPT['fx']:
        p('s_mov_b64 exec, 1')
        gstore([f'buffer_store_dword {v(T + 4)}, off, {s(R_WS, 4)}, {s(96)} offset:{off}'])
        p('s_mov_b64 exec, -1')
        return
    p(f'v_mov_b32 {v(FL + 1)}, 1')
    p(f's_add_u32 {s(99)}, {s(sS5)}, {s(sB4)}')
    p('s_mov_b64 exec, 1')
    gstore([f'buffer_store_dword {v(FL + 1)}, off, {s(R_WS, 4)}, {s(99)} offset:{off}'])
    p('s_mov_b64 exec, -1')


def flag_load(off):
    return [(f'buffer_load_dword {v(FL)}, {v(vGrp)}, {s(R_WS, 4)}, {s(sS5)} offen offset:{off}{PG}', None)]


def z_check(fi):
    loads = [(f's_add_u32 {s(99)}, {s(sZld)}, {1024 * fi:#x}', None)]
    loads += [(f'buffer_load_dwordx4 {v(zreg(fi + k), 4)}, {v(vZ[k])}, {s(R_WL, 4)}, {s(99)} offen sc1', None) for k in range(2)]
    return loads, lambda: p(f'v_cmp_u_f32 vcc, {v(zreg(fi) + 3)}, {v(zreg(fi + 1) + 3)}')


s4_load = [(f'buffer_load_dword {v(FL)}, off, {s(R_WS, 4)}, {s(sP4)} sc1', None)]


def flag_check(off):
    retry_until(flag_load(off), lambda: p(f'v_cmp_ne_u32 vcc, 1, {v(FL)}'))


for fi in range(nz, ZD):
    zload(fi)
assert not FIX[4]
x1l = [(f'buffer_load_dwordx4 {v(X1L + 4 * o, 4)}, {v(vL16)}, {s(R_WL, 4)}, {s(sT + 12 + o)} offen{LG}', 'x1l') for o in range(2)]
tail = ul[:16]
ROT = 112 % ZD
for ft in range(7):
    fill = {}
    if ft and OPT['k4epi']:
        st1, st2, st3 = k4_epilogue(ft - 1)
        pos = OPT['e1']
        for x in st1:
            fill.setdefault(pos, []).append(x)
            pos += OPT['ews'] if x[0] == 'd' else 1
        if OPT['pr'] == 2 and ft >= 5:
            pass
        elif OPT['pr'] and ft & 1:
            st2, st3 = [], []
        elif OPT['pr']:
            _, p2, p3 = k4_epilogue(ft - 2)
            st2 = p2 + st2[2:]
            st3, slots = p3 + st3, [k for k in range(OPT['e3'], 64) for _ in range(1 if k % 4 == 3 else 2)]
            for k, x in zip(slots, st3):
                fill.setdefault(k, []).append(x)
            st3 = []
        pos = OPT['e2'] - (OPT['el'] if ft == 6 else 0)
        for x in st2:
            fill.setdefault(pos, []).append(x)
            pos += 1
        pos = OPT['e3'] - (OPT['el'] if ft == 6 else 0)
        for x in st3:
            fill.setdefault(pos, []).append(x)
            pos += 1
    if ft == 0:
        for k in range(16):
            fill[4 * k + 1] = [f'ds_write_b128 {v(246 + ((15 - k) & 1))}, {v(wreg(15 - k), 4)} offset:{16384 * ((15 - k) >> 2) + 1024 * ((15 - k) & 2)}']
    if ft == OPT['upk']:
        free = [k for k in range(64) if k % 4 != 3][-16:]
        for i in range(8):
            fill.setdefault(free[2 * i], []).append(f'v_lshlrev_b32 {v(XV + 2 * i)}, 16, {v(X1L + i)}')
            fill.setdefault(free[2 * i + 1], []).append(f'v_and_b32 {v(XV + 2 * i + 1)}, 0xffff0000, {v(X1L + i)}')
    if OPT['pr']:
        gops = [x for ch in OPT['gmap'].split('/')[ft] for x in gelu_ops(Z1 + 4 * int(ch), T)]
    else:
        gops = gelu_ops(Z1 + 4 * (ft + OPT['gsh']), T) if OPT['g1w'] <= ft + OPT['gsh'] < 7 else []
    free = [k for k in range(64) if k not in fill] + [k for k in range(64) if len(fill.get(k, [])) == 1 and fill[k][0][0] == 'v' and k % 4 != 3]
    assert len(free) >= len(gops)
    for k, x in zip(sorted(free[:len(gops)]), gops):
        fill.setdefault(k, []).append(x)
    for a2 in range(16):
        fi = ft * 16 + a2
        chk = OPT['zs'] and fi & 1 and fi < 31
        if fi % OPT['zw'] == 0:
            p.wait_vm(f'z{min(fi + OPT["zw"] - 1, 111)}')
        if OPT['zs'] and fi == 0:
            retry_until(*z_check(0))
        for q in range(4):
            d = AC + 16 * (ft & 1) + 4 * q if q else acc0(ft)
            if chk and q == 3:
                z_check(fi + 1)[1]()
            if OPT['k4mfma'] or q == 0:
                p(f'{M16} {v(d, 4)}, {v(zreg(fi), 4)}, {a((q * 16 + a2) * 4, 4)}, {v(d, 4) if a2 else (v(B4, 4) if OPT["bc"] and q == 0 else 0)}')
            for x in fill.get(4 * a2 + q, []):
                k4_emit(x)
        if chk:
            retry_until(*z_check(fi + 1), tested=True)
        if OPT['zs'] and fi == OPT['q4']:
            emit([s4_load])
        if OPT['zs'] and fi + ZD == 32:
            retry_until(s4_load, lambda: p(f'v_cmp_ne_u32 vcc, 32, {v(FL)}'))
        if fi + ZD < 112:
            zload(fi + ZD)
        elif len(tail) > 16 - OPT['ntail']:
            if len(tail) == 8:
                flag_check(0)
            emit([tail.pop(0)])
        if fi + ZD >= 112:
            wring_read(fi + ZD - 112, WR5, WD, LOC_WO, ROT)
        if fi == OPT['mf']:
            p.wait_vm('pub')
            flag_store(32)
        if OPT['fine'] == 3 and (a2 == 15 or fi == 0) and fi < 111:
            stamp(f'i{fi}')
        if fi == 56:
            p.wait_vm('pub')
            flag_store(96)
        if fi == 70:
            emit([flag_load(96)])
        if fi == 84:
            flag_check(96)
        if fi == OPT['f5a']:
            p.wait_vm('pub')
            flag_store(0)
        if fi == 64:
            code_prefetch(8, 'L_k5')
        if fi == 80:
            p('L_k5:')
        if fi == OPT['x1pos']:
            emit([x1l])
        if fi == OPT['l5a']:
            emit([flag_load(0)])
stamp('K4')


def chain(*fs):
    def run():
        for f in fs:
            f()
    return run


def line(x, tag=None):
    return lambda: p(x, tag=tag)


def flag_after(tag, off):
    p.wait_vm(tag)
    flag_store(off)


def next_m1():
    if_layer(0)
    m1_load(228)
    w_touch(WT[0], 152)
    p.end()


fill = {}


def put(pos, f):
    fill[pos] = chain(fill[pos], f) if pos in fill else f


st1, st2, st3 = k4_epilogue(6)
for k, x in enumerate(st1):
    put(OPT['k1'] + min(k, 3 + (k - 3) // 2), line(x, 'red' if k < 3 else None))
put(OPT['k2'], chain(lambda: p.wait_lgkm('red'), *[line(x) for x in st2[1:]]))
for k, x in enumerate(st3):
    put(OPT['k3'] + k // OPT['kst'], (lambda y: lambda: k4_emit(y))(x))
kend = OPT['k3'] + len(st3) // OPT['kst']
assert len(tail) < 8
for k, g in enumerate(tail):
    put(OPT['tp0'] + OPT['tps'] * k, (lambda y: lambda: emit([y]))(g))
if OPT['mf'] > 111:
    put(OPT['mf'] - 112, lambda: flag_after('pub', 32))
put(OPT['mb'], lambda: emit([flag_load(32)]))
put(OPT['mc'], lambda: (flag_check(32), fine('ck5m')))
for k in range(4):
    put(OPT['mc'] + OPT['ms'] * k, (lambda y: lambda: emit([y]))(ul[16 + k]))
for k in range(4):
    put(max(OPT['mc'] + 3 * OPT['ms'], kend) + max(2, OPT['ms']) * (k + 1), (lambda y: lambda: emit([y]))(ul[20 + k]))
put(OPT['fa'], lambda: (flag_after('u6', 64), fine('fl5b')))
put(OPT['fb'], lambda: emit([flag_load(64)]))
put(OPT['fc'], lambda: (flag_check(64), fine('ck5b'), emit(ul[24:])))
put(max(OPT['fc'] + 4, 64), next_m1)
gemm_r(XV, 4, 0, 28, ureg, WR5, WD, LOC_WO, first_c=True, fill=fill, preload=False, rot=ROT)


def x_pack():
    for k in range(8):
        p(f'v_cvt_pk_bf16_f32 {v(XP + k)}, {v(XV + 2 * k)}, {v(XV + 2 * k + 1)}')


stamp('K5')
if_layer(1)
x_pack()
for o in range(2):
    p(f'ds_write_b128 {v(OW)}, {v(XP + 4 * o, 4)} offset:{16 * o}')
for k in range(2):
    p(f'ds_read_b128 {v(X1R + 4 * k, 4)}, {v(OR)} offset:{1152 * k}')
for k in range(2):
    p(f'buffer_store_dwordx4 {v(X1R + 4 * k, 4)}, {v(OG)}, {s(R_OUT, 4)}, {s(sT + 14 + k)} offen sc1')
if PROF:
    p('s_waitcnt vmcnt(0)')
    stamp('end')
    p(f's_lshl_b32 {s(sT)}, s2, 2')
    p(f's_add_u32 {s(sT)}, {s(sT)}, {s(sW)}')
    p(f's_lshl_b32 {s(sT)}, {s(sT)}, 8')
    p(f's_add_u32 {s(sT)}, {s(sT)}, {PROFO:#x}')
    p(f'v_lshrrev_b32 {v(T)}, 2, {v(vL16)}')
    p(f'buffer_store_dword {v(vProf)}, {v(T)}, {s(R_WS, 4)}, {s(sT)} offen')
if OPT['diag']:
    p('s_waitcnt vmcnt(0)')
    stamp('end')
    p(f's_sub_u32 s101, s101, {s(sPidx)}')
    p('s_min_u32 s101, s101, 20000')
    p('s_mul_i32 s101, s101, 10')
    p('s_add_u32 s101, s101, 10000')
    p('L_spin:')
    p(f's_memrealtime {s(sStamp, 2)}')
    p('s_waitcnt lgkmcnt(0)')
    p(f's_sub_u32 {s(sStamp)}, {s(sStamp)}, {s(sPidx)}')
    p(f's_cmp_lt_u32 {s(sStamp)}, s101')
    p('s_cbranch_scc1 L_spin')
p('L_exit:')
p('s_endpgm')
p.end()
local_stats(XV, 16, T)
reduce_g(T, T + 1)
publish_stats(0x40000)
p('s_barrier')
if OPT['ctp'] == 0:
    ct_dma(228)
emit(wz2[:OPT['wzp0']])
x_pack()
p(f's_mov_b32 {s(sL)}, 1')
p(f's_mov_b32 {s(sLocH)}, {s(sLoc)}')
p(f's_mov_b32 {s(sLocU)}, 0')
if not OPT['reuse']:
    p(f's_add_u32 {s(R_WL)}, {s(R_WL)}, {LSTRIDE:#x}')
    p(f's_addc_u32 {s(R_WL + 1)}, {s(R_WL + 1)}, 0')
p(f's_mov_b32 {s(R_WL + 2)}, {LSTRIDE:#x}')
p(f's_mov_b32 {s(R_X)}, {s(R_WL)}')
p(f's_mov_b32 {s(R_X + 1)}, {s(R_WL + 1)}')
p(f's_mov_b32 {s(R_X + 2)}, {LSTRIDE:#x}')
p(f's_add_u32 {s(sXb)}, {s(sK2)}, {H_:#x}')
p(f's_add_u32 {s(sXo)}, {s(sXb)}, 2048')
p(f'v_mov_b32 {v(vXr)}, {v(vK2)}')
p(f'v_mov_b32 {v(vXw)}, {v(vTr)}')
p(f'v_add_u32 {v(vXw + 1)}, 576, {v(vTr)}')
p(f'v_mov_b32 {v(vHw)}, {v(vHw2)}')
p(f's_add_u32 {s(sSt)}, {s(sSt)}, 0x20000')
for r in (() if OPT['vs'] else (sArr, sRep)) + (sS2, sS4, sP4, sS5, sF2s, sF2l):
    p(f's_add_u32 {s(r)}, {s(r)}, 0x20000')
for o in range(2):
    p(f's_add_u32 {s(sT + 4 + o)}, {s(sT + 3)}, {H_ + 8192 * o:#x}')
emit([gather_loads(0x20000)])
gather_finish(0x20000)
gstore([f'buffer_store_dwordx4 {v(XP + 4 * o, 4)}, {v(vL16)}, {s(R_WL, 4)}, {s(sT + 4 + o)} offen' for o in range(2)], 'x2')
if OPT['ctp'] == 1:
    ct_dma(228)
emit(wz2[OPT['wzp0']:P1])
w_touch(WT[1], 152)
p('s_branch L_layer')

p.resolve([('pro', set()), ('body', {'L0'}), ('body', {'L1'})], ['W0', 'G0', 'LOC', 'RETRY'] + (['W1'] if OPT['tlb'] else []))

hdr = open('interleave_layers__spectral_fnet__mixer_gmlp__prompt.s.ref').read().split('\n')
out = [l for l in hdr if l.startswith(';') and '@launch' not in l][:14]
if PROF:
    k = STAMPS.index('T')
    out.append('; stamps: ' + ' '.join(STAMPS[:-1] + [x for x in STAMPS[k:] if x[0] != '*']))
out.append(f'; @launch grid=(256,1,1) block=(256,1,1) lds={LDS_BYTES}')
out += """;
; One persistent launch: 256 workgroups x 4 waves, one workgroup per CU, both layer pairs in a loop.
; Workgroup (c, b): row block c = rows s with s mod 32 == c (64 rows), column block b (112 of 896, 64 of 512).
; Per layer pair:
;   1. LayerNorm of the 64x64 tile, radix-64 stage of the sequence DFT              -> V   (all-to-all)
;   2. radix-32 stage, 32x16 hidden FFT (real part), residual, LayerNorm, 8 rows     -> h1  (row block)
;   3. z2 = gelu(h1 w_in), row statistics exchange, normalise; z1 stays in registers -> z2  (column block)
;   4. g = w_sp z2 + b_sp with the w_sp tile resident in AGPRs, u = z1 * g           -> u   (row block)
;   5. x2 = x1 + u w_out, row statistics exchange (or final store)
; The DFT factors are constants (table behind the code; per-workgroup factors from v_sin/v_cos).
; Hand-offs use write-through stores plus counters/flags cleared inside this launch, or slots pre-filled
; inside this launch with a not-ready pattern that the reader checks. Row-block hand-offs stay in L2 only
; after the eight workgroups have compared their XCC ids and found them equal; otherwise they write through.
; Every spin is bounded.""".split('\n')
out += ['.amdgcn_target "amdgcn-amd-amdhsa--gfx950"', '.text', f'.globl {NAME}', '.p2align 8', f'.type {NAME},@function']
out.append(p.text())
out.append('.p2align 8')
out.append('.type L_table,@object')
out.append('L_table:')
tab = const_table()
for i in range(0, tab.size, 8):
    out.append('.long ' + ','.join(f'{x:#x}' for x in tab[i:i + 8]))
out.append(f'.size L_table, {tab.size * 4}')
out.append('L_end:')
out += ['.section .rodata,"a"', '.p2align 6', f'.amdhsa_kernel {NAME}',
        '  .amdhsa_next_free_vgpr 512', '  .amdhsa_next_free_sgpr 102', '  .amdhsa_accum_offset 256',
        '  .amdhsa_group_segment_fixed_size 0', '  .amdhsa_kernarg_size 104', '  .amdhsa_user_sgpr_count 2',
        '  .amdhsa_user_sgpr_kernarg_segment_ptr 1', '  .amdhsa_system_sgpr_workgroup_id_x 1',
        '  .amdhsa_float_denorm_mode_32 3', '.end_amdhsa_kernel', '']
open(sys.argv[1], 'w').write('\n'.join(out))
print(p.stats(), file=sys.stderr)
```

```python
import sys
import struct
import numpy as np
from asmlib import Prog, v, a, s

NAME = 'interleave_layers__spectral_fnet__mixer_gmlp__prompt_kernel'
OPT = dict(prof=0, k4mfma=1, k4load=1, k4epi=1, zd=12, pre3=6, pre5=16, loc=1, locd=7, x1pos=58, lg=0, pg=0, sg=0, wspev=8, x1=2,
           g2ev=16, z1a=0, gpos=18, z1arr=6, wo4=16, ctp=2, wzp0=0, wzp1=0, wzp2=4, wzp3=8, reuse=0, tlb=0, e1=4, e2=16, e3=26, bc=1, zw=2, wx=0, fx=1, f5a=87, l5a=95, mb=8, mc=20, fa=46, fb=58, fc=70, hpf=0, hx=0, pp=0, dp=0, el=0, kst=1, tp0=0, tps=1, ms=0, pr=1, gmap='/16//23//45/', ews=1, zx=1, rot=0, wt='/', stouch=0, stn=14, nowsp=0, late=0, min0=1, pre=1, we=2, hsp=4, algn=0, xe=4, gb=3, xa=8, to=2000000, wf2=1, cmn='044440', l0a=2, noe=0, pz=1, pv=4, vs=2, zp0=0, zin=1, zsp=3, zs=1, q4=8, upk=4, gsh=0, cpf=12, k1=3, k2=9, k3=15, mf=111, fixev=0, woa=8, wosp=4, g1w=1, l0n='0444466', ann=0, fix='6/7///', ntail=12, lnow=4, fine=0, sched='//d1/d2r0d3r1d4p0r2d5p1r3d6p2r4qd7p3/r5p4/a6p5/a7/', ctpos=0, pk=3, nomean=0,  z2sp=4, early=1, wfirst=0, nobg=0, few=0, diag='')
for arg in sys.argv[2:]:
    k, val = arg.split('=')
    OPT[k] = val if k in ('diag', 'sched', 'fix', 'l0n', 'cmn', 'wt', 'gmap') else int(val)
PROF = OPT['prof']
LG = (' sc1', '', ' nt', ' sc0')[OPT['lg']]
PG = (' sc1', '', ' nt')[OPT['pg']]
SG = ('', ' nt', ' sc0')[OPT['sg']]


WI, WO, FLAGS, STATS, X2, PROFO = 0, 0x200000, 0x300000, 0x340000, 0x400000, 0x600000
LBASE, LSTRIDE = 0x800000, 0x1000000
V_, H_, X1_, Z_, U_ = 0, 0x200000, 0x400000, 0x600000, 0xA00000
WB, CT, SCR, LDS_BYTES = 0, 114688, 114688 + 22528, 163840
CT_FA, CT_TW, CT_FB, CT_M1 = 0, 6144, 10240, 14336

R_X, R_WIN, R_WSP, R_WOUT, R_OUT, R_WS, R_DBG, R_BSP, R_WL = 4, 8, 12, 16, 20, 24, 28, 32, 36
sW, sC, sB, sL, sTO = 40, 41, 42, 43, 44
sVst, sVld, sH, sK2, sXo, sXb, sZst, sZld, sUst, sUld = 45, 46, 47, 48, 49, 50, 51, 52, 53, 54
sLoc, sSt, sWI, sWO, sWsp, sSelLo, sSelHi, sPidx, sOnes = 55, 56, 57, 58, 59, 60, 61, 62, 63
sArr, sRep, sS2, sS4, sS5, sB128, sDm, sDo = 64, 65, 66, 67, 68, 69, 70, 71
sF2s, sF2l = 86, 87
sB4, sP4, sG0, sLocH, sLocU = 3, 88, 75, 89, 100
sT = 72
sStamp = 90
vL16, vTw, vK2, vXr, vVld, vVst, vBsp, vZst = 0, 1, 2, 3, 4, 5, 6, 7
vC2 = 8
vHw, vHr, vUw, vUr, vStl, vL8, vTr, vPoll, vArr, vProf, vGK = 16, 17, 18, 19, 20, 21, 22, 23, 24, 25, 26
vRed = 28
T = 32
XV = 40
vZ = (23, 251)
M1 = 184


def f2u(x):
    return struct.unpack('<I', struct.pack('<f', x))[0]


def bf16(x):
    u = np.ascontiguousarray(x, dtype=np.float32).view(np.uint32)
    return ((u + 0x7FFF + ((u >> 16) & 1)) >> 16).astype(np.uint32)


def const_table():
    l = np.arange(64)[:, None]
    j = np.arange(8)[None, :]
    nn, h = l & 31, l >> 5
    e1 = 16 * ((nn >> 2) & 1) + 4 * (nn >> 3) + (nn & 3)
    frags = []

    def pack(x):
        x = np.where(np.abs(x) < 1e-12, 0.0, x)
        b = bf16(x)
        return (b[:, 0::2] | (b[:, 1::2] << 16)).astype(np.uint32)
    ang = [2 * np.pi * ((16 * dh + 8 * h + j) * e1 % 32) / 32 for dh in range(2)]
    frags += [pack(np.cos(ang[0])), pack(np.cos(ang[1])), pack(np.sin(ang[0])), pack(np.sin(ang[1])),
              pack(-np.sin(ang[0])), pack(-np.sin(ang[1]))]
    d2 = 8 * (j >> 2) + 4 * h + (j & 3)
    tw = 2 * np.pi * (d2 * e1) / 512
    tc = np.cos(tw).astype(np.float32).view(np.uint32)
    ts = np.sin(tw).astype(np.float32).view(np.uint32)
    frags += [tc[:, :4], tc[:, 4:], ts[:, :4], ts[:, 4:]]
    ps = 2 * np.pi * (d2 * (nn & 15) % 16) / 16
    for row in range(2):
        m = ((nn >> 4) == row)
        frags += [pack(np.cos(ps) * m), pack(np.sin(ps) * m)]
    n, g = l & 15, l >> 4
    for jq in range(4):
        for ks in range(2):
            rho = 32 * ks + 16 * (j >> 2) + 4 * g + (j & 3)
            s1 = 16 * (rho >> 4) + 2 * (rho & 7) + ((rho >> 3) & 1)
            jj = 8 * jq + (n >> 1)
            th = 2 * np.pi * (s1 * jj % 64) / 64
            x = np.where((n & 1) == 0, np.cos(th), np.where(jj == 0, (-1.0) ** s1, -np.sin(th)))
            frags.append(pack(x))
    tab = np.concatenate([np.ascontiguousarray(f).reshape(-1) for f in frags])
    assert tab.size == 22 * 256
    return tab


p = Prog()
M16 = 'v_mfma_f32_16x16x32_bf16'
M32 = 'v_mfma_f32_32x32x16_bf16'


STAMPS = []


def stamp(name):
    if OPT['few'] and name in ('karg', 'start', 'setup', 'init', 'arr1', 'Vst', 'pub3', 'z1a', 'S3', 'Zst', 'arr4', 'win4') + (() if OPT['fine'] else ('Vld', 'K2', 'arr2', 'K5')):
        return
    STAMPS.append(name)
    if OPT['diag'] and OPT['diag'][:-1] == name:
        p(f's_memrealtime {s(sStamp, 2)}')
        p('s_waitcnt lgkmcnt(0)')
        p(f's_cmp_eq_u32 {s(sL)}, {OPT["diag"][-1]}')
        p(f's_cselect_b32 s101, {s(sStamp)}, s101')
    if PROF:
        p(f'{"s_memtime" if PROF == 2 else "s_memrealtime"} {s(sStamp, 2)}')
        p('s_waitcnt lgkmcnt(0)')
        p('s_mov_b32 s101, m0')
        p(f's_mov_b32 m0, {s(sPidx)}')
        p(f'v_writelane_b32 {v(vProf)}, {s(sStamp)}, m0')
        p('s_mov_b32 m0, s101')
        p(f's_add_u32 {s(sPidx)}, {s(sPidx)}, 1')


def fine(name):
    if OPT['fine'] == 1:
        stamp(name)


def srd(r, lo, hi, size):
    p(f's_mov_b32 {s(r)}, {s(lo)}')
    p(f's_and_b32 {s(r + 1)}, {s(hi)}, 0xffff')
    p(f's_mov_b32 {s(r + 2)}, {size:#x}')
    p(f's_mov_b32 {s(r + 3)}, 0x20000')


def if_wave0():
    p(f's_cmp_eq_u32 {s(sW)}, 0')
    p.begin('W0', 's_cbranch_scc0')


def if_layer(l):
    p(f's_cmp_eq_u32 {s(sL)}, {l}')
    p.begin(f'L{l}', 's_cbranch_scc0')


def spin_tail(top, done):
    p(f's_cbranch_vccz {done}')
    p(f's_sub_u32 {s(sTO)}, {s(sTO)}, 1')
    p(f's_cbranch_scc0 {top}')
    p(f's_mov_b32 {s(sTO)}, 0')
    p(f'{done}:')


def arrive(soff, nrep):
    p('s_barrier')
    if_wave0()
    p(f'v_mov_b32 {v(T)}, 1')
    p(f's_mov_b64 exec, {(1 << nrep) - 1:#x}')
    p(f'buffer_atomic_add {v(T)}, {v(vArr)}, {s(R_WS, 4)}, {s(soff)} offen sc1')
    p('s_mov_b64 exec, -1')
    p.end()


def gstore(lines, tag=None, local=False, flag=None):
    if not OPT['loc'] or (tag and not local):
        for x in lines:
            p(x + ' sc1', tag=tag)
        return
    p(f's_cmp_eq_u32 {s(flag or sLoc)}, 0')
    p.begin_ool('!LOC', 's_cbranch_scc1')
    for x in lines:
        p(x + ' sc1', tag=tag)
    p.end_ool(('LOC', lambda: [p(x + SG, tag=tag) for x in lines]))


def arrive_group(soff, off=0):
    p('s_barrier')
    if_wave0()
    p(f'v_mov_b32 {v(T)}, 1')
    p(f's_add_u32 {s(99)}, {s(soff)}, {s(sB4)}')
    p('s_mov_b64 exec, 1')
    gstore([f'buffer_store_dword {v(T)}, off, {s(R_WS, 4)}, {s(99)} offset:{off}'])
    p('s_mov_b64 exec, -1')
    p.end()


def poll(soff, vaddr, need, tag=None):
    if_wave0()
    top, done = p.label('poll'), p.label('pdone')
    p(f'{top}:')
    if vaddr is not None:
        p(f'buffer_load_dword {v(T)}, {v(vaddr)}, {s(R_WS, 4)}, {s(soff)} offen' + (PG if vaddr == vGrp else ' sc1'))
    else:
        p(f'buffer_load_dword {v(T)}, off, {s(R_WS, 4)}, {s(soff)} sc1')
    p('s_waitcnt vmcnt(0)')
    p(f'v_cmp_ne_u32 vcc, {need}, {v(T)}')
    spin_tail(top, done)
    p.end()
    if tag:
        p.wait_vm(tag)
    p('s_barrier')


def reduce_g(x, y):
    p(f'v_permlane16_swap_b32 {v(x)}, {v(y)}')
    p(f'v_add_f32 {v(x)}, {v(x)}, {v(y)}')
    p(f'v_mov_b32 {v(y)}, {v(x)}')
    p(f'v_permlane32_swap_b32 {v(x)}, {v(y)}')
    p(f'v_add_f32 {v(x)}, {v(x)}, {v(y)}')
    p(f'v_mov_b32 {v(y)}, {v(x)}')
    p(f'v_permlane16_swap_b32 {v(x)}, {v(y)}')


def finish_stats(x, n):
    y, m = x + 1, x + 2
    p(f'v_mul_f32 {v(m)}, {f2u(1.0 / n):#x}, {v(x)}')
    p(f'v_mul_f32 {v(y)}, {f2u(1.0 / n):#x}, {v(y)}')
    p(f'v_fma_f32 {v(y)}, -{v(m)}, {v(m)}, {v(y)}')
    p(f'v_max_f32 {v(y)}, 0, {v(y)}')
    p(f'v_add_f32 {v(y)}, {f2u(1e-5):#x}, {v(y)}')
    p(f'v_rsq_f32 {v(x)}, {v(y)}')
    p(f'v_mul_f32 {v(y)}, -{v(m)}, {v(x)}')


def norm_pack(src, n, st, tmp, dst):
    for i in range(0, n, 2):
        p(f'v_pk_fma_f32 {v(tmp + i, 2)}, {v(src + i, 2)}, {v(st, 2)}, {v(st, 2)} op_sel:[0,0,1] op_sel_hi:[1,0,1]')
    for i in range(0, n, 2):
        p(f'v_cvt_pk_bf16_f32 {v(dst + i // 2)}, {v(tmp + i)}, {v(tmp + i + 1)}')


def local_stats(src, n, out):
    sa, sq = out + 2, out + 4
    p(f'v_pk_add_f32 {v(sa, 2)}, {v(src, 2)}, {v(src + 2, 2)}')
    p(f'v_pk_mul_f32 {v(sq, 2)}, {v(src, 2)}, {v(src, 2)}')
    p(f'v_pk_fma_f32 {v(sq, 2)}, {v(src + 2, 2)}, {v(src + 2, 2)}, {v(sq, 2)}')
    for i in range(4, n, 2):
        p(f'v_pk_add_f32 {v(sa, 2)}, {v(sa, 2)}, {v(src + i, 2)}')
        p(f'v_pk_fma_f32 {v(sq, 2)}, {v(src + i, 2)}, {v(src + i, 2)}, {v(sq, 2)}')
    p(f'v_add_f32 {v(out)}, {v(sa)}, {v(sa + 1)}')
    p(f'v_add_f32 {v(out + 1)}, {v(sq)}, {v(sq + 1)}')


def unpack(src, n, dst):
    for i in range(n):
        p(f'v_lshlrev_b32 {v(dst + 2 * i)}, 16, {v(src + i)}')
        p(f'v_and_b32 {v(dst + 2 * i + 1)}, 0xffff0000, {v(src + i)}')


def publish_stats(area):
    p(f's_add_u32 {s(sT)}, {s(sSt)}, {s(sB128)}')
    if area:
        p(f's_add_u32 {s(sT)}, {s(sT)}, {area:#x}')
    p('s_mov_b64 exec, 0xffff')
    gstore([f'buffer_store_dwordx2 {v(T, 2)}, {v(vStl)}, {s(R_WS, 4)}, {s(sT)} offen'])
    p('s_mov_b64 exec, -1')


def gather_loads(area):
    return [(f's_add_u32 {s(99)}, {s(sSt)}, {area:#x}', None),
            (f'buffer_load_dwordx2 {v(T + 4, 2)}, {v(vStl)}, {s(R_WS, 4)}, {s(99)} offen{PG}', None),
            (f'buffer_load_dwordx2 {v(T + 6, 2)}, {v(vStl)}, {s(R_WS, 4)}, {s(99)} offen offset:128{PG}', None)]


def retry_until(loads, test, tested=False, after=None):
    if not tested:
        test()
    p.begin_ool('RETRY', 's_cbranch_vccnz')
    top, done = p.label('rt'), p.label('rdone')
    p(f'{top}:')
    emit([loads])
    p('s_waitcnt vmcnt(0)')
    test()
    spin_tail(top, done)
    if after:
        emit([after])
    p.end_ool()


def gather_finish(area):
    def test():
        p(f'v_add_f32 {v(T)}, {v(T + 4)}, {v(T + 6)}')
        p(f'v_add_f32 {v(T + 1)}, {v(T + 5)}, {v(T + 7)}')
        p(f'v_cmp_u_f32 vcc, {v(T)}, {v(T + 1)}')
    retry_until(gather_loads(area), test)
    reduce_g(T, T + 1)


LOC_Z2 = lambda i: 1024 * i
LOC_Z1 = lambda i: 1024 * (i - 48) if i >= 48 else CT + 1024 * i
LOC_WO = lambda i: 1024 * (i - 48) if i >= 48 else 65536 + 1024 * i


def w_dma_ops(sbase, extra, loc, name):
    ops = []
    for j in range(7):
        for i in range(4):
            o = []
            swap = OPT['wx'] & {'wz2': 1, 'wz1': 2, 'wo': 4}[name]
            if swap:
                o.append((f's_add_u32 m0, {s(94 + (i & 1))}, {loc(16 * j):#x}', None))
            elif i == 0:
                o.append((f's_add_u32 m0, {s(sDm)}, {loc(16 * j):#x}', None))
            if i == 0:
                o.append((f's_add_u32 {s(sDo)}, {s(sbase)}, {extra + 16384 * j:#x}', None))
            if swap:
                o.append((f'buffer_load_dwordx4 {v(vZ[i & 1])}, {s(R_WS, 4)}, {s(sDo)} offen offset:{(i & 2) * 1024} lds', f'{name}{j}'))
                ops.append(o)
                continue
            if OPT['nobg'] & 1:
                o.append(('s_nop 0', None))
            else:
                o.append((f'buffer_load_dwordx4 {v(vL16)}, {s(R_WS, 4)}, {s(sDo)} offen offset:{i * 1024} lds', f'{name}{j}'))
            ops.append(o)
    return ops


def emit(groups):
    for g in groups:
        for text, tag in g:
            p(text, tag=tag)


def wsp_dma_ops(batch):
    q, ih = batch >> 1, batch & 1
    ops = []
    for il in range(4):
        for rh in range(2):
            if batch < 2:
                imm, so = 128 * il, 80 + batch
                o = [(f's_add_u32 m0, {s(78 + batch)}, {1024 + 2048 * il + 1024 * rh - imm}', None)]
            else:
                imm, so = 512 * ih + 128 * il, sDo
                o = [(f's_add_u32 m0, {s(sWsp)}, {1024 + 8192 * (batch % 3) + 2048 * il + 1024 * rh - imm}', None)]
                if not ops:
                    o += [(f's_add_u32 {s(sDo)}, {s(sW)}, {q}', None), (f's_and_b32 {s(sDo)}, {s(sDo)}, 3', None),
                          (f's_lshl_b32 {s(sDo)}, {s(sDo)}, 21', None)]
            o.append((f'buffer_load_dwordx4 {v(vWspA + rh)}, {s(R_WSP, 4)}, {s(so)} offen offset:{imm} lds', f'wsp{max(batch, 1)}'))
            ops.append(o)
    return ops


def table_addr(dst, soff):
    p(f'v_add_u32 {v(dst)}, {s(soff)}, {v(vL16)}')
    p(f'v_mov_b32 {v(dst + 1)}, {s(93)}')
    p(f'v_add_co_u32 {v(dst)}, vcc, {s(92)}, {v(dst)}')
    p(f'v_addc_co_u32 {v(dst + 1)}, vcc, 0, {v(dst + 1)}, vcc')


def code_prefetch(bit, lo):
    if not OPT['cpf'] & bit:
        return
    if_layer(0)
    p(f's_lshr_b32 {s(99)}, s2, 3')
    p(f's_lshl_b32 {s(99)}, {s(99)}, 2')
    p(f's_add_u32 {s(99)}, {s(99)}, {s(sW)}')
    p(f's_lshl_b32 {s(99)}, {s(99)}, 7')
    p(f's_sub_u32 {s(98)}, {s(92)}, L_table-{lo}')
    p(f's_subb_u32 {s(97)}, {s(93)}, 0')
    p(f's_add_u32 {s(98)}, {s(98)}, {s(99)}')
    p(f's_addc_u32 {s(97)}, {s(97)}, 0')
    p(f'v_mov_b32 {v(T + 6)}, {s(98)}')
    p(f'v_mov_b32 {v(T + 7)}, {s(97)}')
    p('s_mov_b64 exec, 1')
    p(f'global_load_dword {v(T + 6)}, {v(T + 6, 2)}, off')
    p('s_mov_b64 exec, -1')
    p.end()


def poison(site, reg):
    todo = [(sZst, vZst, 0)] if OPT['zs'] and OPT['pz'] == site else []
    todo += [(sVst, vVst, 0), (sVst, vVst, 0x10000)] if OPT['vs'] and OPT['pv'] == site else []
    if not todo:
        return
    if_layer(0)
    for k in range(4):
        p(f'v_mov_b32 {v(reg + k)}, -1')
    for base, va, off in todo:
        p(f's_add_u32 {s(99)}, {s(base)}, {LSTRIDE + off:#x}')
        p(f'buffer_store_dwordx4 {v(reg, 4)}, {v(va)}, {s(R_WL, 4)}, {s(99)} offen sc1', tag='pub' if site == 3 else None)
    p.end()


def w_touch(spec, dst):
    if not spec:
        return
    base, extra = ((sWI, 114688), (sWI, 0), (sWO, 0))[int(spec[0])]
    p(f's_lshr_b32 {s(98)}, s2, 6')
    p(f's_lshl_b32 {s(98)}, {s(98)}, 10')
    p(f's_add_u32 {s(98)}, {s(98)}, {s(base)}')
    for ch in spec[1:]:
        p(f's_add_u32 {s(99)}, {s(98)}, {extra + 16384 * int(ch):#x}')
        p(f'buffer_load_dwordx4 {v(dst, 4)}, {v(vL16)}, {s(R_WS, 4)}, {s(99)} offen')
        p.cur[-1].defs = set()


def m1_load(dst):
    p(f's_lshl_b32 {s(99)}, {s(sW)}, 11')
    p(f's_add_u32 {s(99)}, {s(99)}, {CT_M1}')
    table_addr(dst, 99)
    for k in range(2):
        p(f'global_load_dwordx4 {v(M1 + 4 * k, 4)}, {v(dst, 2)}, off offset:{1024 * k}')


def ct_dma(dst):
    p(f's_mul_i32 {s(99)}, {s(sW)}, 3584')
    p(f's_add_u32 m0, {s(99)}, {CT}')
    table_addr(dst, 99)
    for off in (0, 1024, 2048):
        p(f'global_load_lds_dwordx4 {v(dst, 2)}, off offset:{off}', tag='ct')
    p('s_mov_b32 exec_hi, 0')
    p(f'global_load_lds_dwordx4 {v(dst, 2)}, off offset:3072', tag='ct')
    p('s_mov_b64 exec, -1')


def wsp_dma(batch):
    p.bg = wsp_dma_ops(batch)
    p.bg_emit()


def wsp_read(batch, reg):
    p.wait_vm(f'wsp{max(batch, 1)}')
    for il in range(4):
        for o in range(2):
            p(f'ds_read_b128 {v(reg + 4 * (2 * il + o), 4)}, {v(vWspR + o)} offset:{8192 * (batch % 3) + 2048 * il}', tag=f'wr{batch}')


def wsp_park(batch):
    q, ih = batch >> 1, batch & 1
    p.wait_vm(f'wsp{max(batch, 1)}')
    for il in range(4):
        for o in range(2):
            p(f'ds_read_b128 {a(64 * q + 32 * o + 4 * (4 * ih + il), 4)}, {v(vWspR + o)} offset:{8192 * (batch % 3) + 2048 * il}', tag=f'wr{batch}')


def wsp_fix(units, reg, first=()):
    if not units and not first:
        return
    if_layer(0)
    emit(first)
    for u in units:
        base = 32 * int(u)
        for k in range(32):
            p(f'v_accvgpr_read_b32 {v(reg + k)}, {a(base + k)}')
        k = 0
        for ip in range(4):
            for al in range(8):
                t = reg + 32 + (k & 3)
                k += 1
                lo, hi = reg + 8 * ip + (al >> 1), reg + 8 * ip + 4 + (al >> 1)
                p(f'v_perm_b32 {v(t)}, {v(hi)}, {v(lo)}, {s(sSelHi if al & 1 else sSelLo)}')
                p(f'v_accvgpr_write_b32 {a(base + 4 * al + ip)}, {v(t)}')
    p.end()


def wsp_perm(batch, reg):
    q, ih = batch >> 1, batch & 1
    k = 0
    for ipl in range(2):
        for o in range(2):
            for al in range(8):
                t = T + (k & 7)
                k += 1
                lo, hi = reg + 4 * (4 * ipl + o) + (al >> 1), reg + 4 * (4 * ipl + 2 + o) + (al >> 1)
                p(f'v_perm_b32 {v(t)}, {v(hi)}, {v(lo)}, {s(sSelHi if al & 1 else sSelLo)}')
                p(f'v_accvgpr_write_b32 {a((q * 16 + 8 * o + al) * 4 + 2 * ih + ipl)}, {v(t)}')


def wring_read(idx, ring, depth, loc, rot=0):
    base, off = (vL16, vL16hi, vL16h2)[loc(idx) >> 16], loc(idx) & 0xffff
    p(f'ds_read_b128 {v(ring + 4 * ((idx + rot) % depth), 4)}, {v(base)} offset:{off}', tag=f'w{idx}')


def gemm_r(acc, nt, ks0, ks1, act, ring, depth, loc, first_c=None, fill=None, preload=True, last=None, rot=0):
    fill = dict(fill or {})
    if OPT['nobg'] & 2 and loc is LOC_Z1:
        raise SystemExit('nobg&2 unsupported')
    lo, hi = nt * ks0, nt * ks1
    if preload:
        for idx in range(lo, min(lo + depth, last or hi)):
            wring_read(idx, ring, depth, loc)
    for idx in range(lo, hi):
        ks, t = divmod(idx, nt)
        if (idx - lo) % OPT['we'] == 0:
            p.wait_lgkm(f'w{min(idx + OPT["we"] - 1, hi - 1)}')
        c = v(acc + 4 * t, 4) if (ks or first_c) else '0'
        p(f'{M16} {v(acc + 4 * t, 4)}, {v(ring + 4 * ((idx + rot) % depth), 4)}, {v(act(ks) if callable(act) else act + 4 * ks, 4)}, {c}')
        if idx + depth < (last or hi):
            wring_read(idx + depth, ring, depth, loc, rot)
        f = fill.pop(idx, None)
        if callable(f):
            f()
        elif f:
            emit([f])
    assert not fill


def spread(groups, first, step):
    return {first + step * k: g for k, g in enumerate(groups)}


def gelu(x, n, tmp):
    for i in range(0, n, 4):
        t = tmp + (i & 4)
        for k in (0, 2):
            p(f'v_pk_mul_f32 {v(t + k, 2)}, {v(x + i + k, 2)}, {v(x + i + k, 2)}')
        for k in (0, 2):
            p(f'v_pk_fma_f32 {v(t + k, 2)}, {v(t + k, 2)}, {v(vGK, 2)}, {v(vGK, 2)} op_sel:[0,0,1] op_sel_hi:[1,0,1]')
        for k in (0, 2):
            p(f'v_pk_mul_f32 {v(t + k, 2)}, {v(t + k, 2)}, {v(x + i + k, 2)}')
        for k in range(4):
            p(f'v_exp_f32 {v(t + k)}, {v(t + k)}')
        for k in (0, 2):
            p(f'v_pk_add_f32 {v(t + k, 2)}, {v(t + k, 2)}, 1.0 op_sel_hi:[1,0]')
        for k in range(4):
            p(f'v_rcp_f32 {v(t + k)}, {v(t + k)}')
        for k in (0, 2):
            p(f'v_pk_mul_f32 {v(x + i + k, 2)}, {v(t + k, 2)}, {v(x + i + k, 2)}')


vWspA, vWspR = 244, 236
vHw2, vXw, vGrp = 250, 246, 254
vL16hi, vL16h2 = 252, 255
p.section('pro')
p(f'{NAME}:')
p(f's_cmp_ge_u32 s2, 256')
p('s_cbranch_scc1 L_exit')
SRDS = ((R_X, 0, 2097152), (R_WS, 96, LBASE), (R_WIN, 48, 512 * 3584), (R_WOUT, 72, 896 * 1024), (R_WSP, 56, 2048 * 4096),
        (R_BSP, 64, 4096), (R_WL, 96, 2 * LSTRIDE), (R_DBG, 88, 256), (R_OUT, 80, 2097152))
for r, off, size in SRDS[:6]:
    p(f's_load_dwordx2 {s(r, 2)}, s[0:1], {off}')
if OPT['diag']:
    p(f's_memrealtime {s(sStamp, 2)}')
if PROF:
    p(f'{"s_memtime" if PROF == 2 else "s_memrealtime"} {s(sStamp, 2)}')
p(f's_getpc_b64 {s(92, 2)}')
p('L_pc:')
lane, n_, g_, t0, t1, t2, t3, tid = 100, 101, 102, 103, 104, 105, 106, 107
p(f'v_mov_b32 {v(tid)}, v0')
p(f's_lshr_b32 {s(94)}, s2, 3')
p(f's_lshl_b32 {s(94)}, {s(94)}, 4')
p(f'v_lshrrev_b32 {v(T)}, 4, v0')
p(f'v_add_u32 {v(T)}, {s(94)}, {v(T)}')
p(f'v_lshlrev_b32 {v(T)}, 7, {v(T)}')
p(f'v_min_u32 {v(T)}, L_end-L_pc-4, {v(T)}')
p(f'v_mov_b32 {v(T + 3)}, {s(93)}')
p(f'v_add_co_u32 {v(T + 2)}, vcc, {s(92)}, {v(T)}')
p(f'v_addc_co_u32 {v(T + 3)}, vcc, 0, {v(T + 3)}, vcc')
p(f'global_load_dword {v(253)}, {v(T + 2, 2)}, off')
p(f'v_lshrrev_b32 {v(t0)}, 6, v0')
p(f'v_and_b32 {v(lane)}, 63, v0')
p(f'v_readfirstlane_b32 {s(sW)}, {v(t0)}')
p(f's_lshr_b32 {s(94)}, s2, 3')
p(f's_and_b32 {s(sB)}, {s(94)}, 7')
p(f's_and_b32 {s(95)}, s2, 7')
p(f's_lshl_b32 {s(95)}, {s(95)}, 1')
p(f's_lshr_b32 {s(96)}, {s(94)}, 4')
p(f's_add_u32 {s(95)}, {s(95)}, {s(96)}')
p(f's_sub_u32 {s(96)}, 32, {s(95)}')
p(f's_cmp_eq_u32 {s(95)}, 0')
p(f's_cselect_b32 {s(96)}, 16, {s(96)}')
p(f's_bitcmp1_b32 {s(94)}, 3')
p(f's_cselect_b32 {s(sC)}, {s(96)}, {s(95)}')
p(f's_lshl_b32 {s(sB128)}, {s(sB)}, 7')
p(f's_lshl_b32 {s(94)}, {s(sW)}, 9')
p(f's_add_u32 {s(94)}, {s(94)}, {s(sC)}')
p(f'v_and_b32 {v(t0)}, 28, {v(lane)}')
p(f'v_lshlrev_b32 {v(t0)}, 4, {v(t0)}')
p(f'v_and_b32 {v(t1)}, 32, {v(lane)}')
p(f'v_add3_u32 {v(t0)}, {v(t0)}, {v(t1)}, {s(94)}')
p(f'v_lshlrev_b32 {v(t2)}, 10, {v(t0)}')
p(f'v_and_b32 {v(t1)}, 3, {v(lane)}')
p(f'v_lshl_add_u32 {v(t0)}, {v(t1)}, 5, {v(t2)}')
p(f'v_lshl_add_u32 {v(t2)}, {v(t1)}, 4, {v(t2)}')
XR = 120


def x_loads(i0, i1):
    for i in range(i0, i1):
        if i == 0:
            p(f'buffer_load_dwordx4 {v(XR, 4)}, {v(t0)}, {s(R_X, 4)}, {s(sB128)} offen')
            p(f'buffer_load_dwordx4 {v(XR + 4, 4)}, {v(t0)}, {s(R_X, 4)}, {s(sB128)} offen offset:16')
            continue
        p(f's_add_u32 {s(99)}, {s(sB128)}, {128 * i}')
        p(f's_and_b32 {s(99)}, {s(99)}, 0x3ff')
        p(f'buffer_load_dwordx4 {v(XR + 8 * i, 4)}, {v(t2)}, {s(R_X, 4)}, {s(99)} offen')
        p(f'buffer_load_dwordx4 {v(XR + 8 * i + 4, 4)}, {v(t2)}, {s(R_X, 4)}, {s(99)} offen offset:64')


def first_loads():
    p('s_waitcnt lgkmcnt(0)')
    if OPT['diag']:
        p(f's_mov_b32 {s(sPidx)}, {s(sStamp)}')
        p(f's_mov_b32 s101, {s(sStamp)}')
    if PROF:
        p(f'v_mov_b32 {v(vProf)}, 0')
        p(f'v_writelane_b32 {v(vProf)}, {s(sStamp)}, 0')
        p(f's_mov_b32 {s(sPidx)}, 1')
        STAMPS.append('entry')
    stamp('karg')
    x_loads(0, OPT['x1'])


p(f's_mov_b32 {s(R_X + 2)}, {SRDS[0][2]:#x}')
p(f's_mov_b32 {s(R_X + 3)}, 0x20000')
p(f's_mov_b32 {s(sL)}, 0')
if OPT['min0']:
    first_loads()
p(f'v_and_b32 {v(n_)}, 15, {v(lane)}')
p(f'v_lshrrev_b32 {v(g_)}, 4, {v(lane)}')
p(f'v_lshlrev_b32 {v(vL16)}, 4, {v(lane)}')
for r, off, size in SRDS[1:]:
    p(f's_mov_b32 {s(r + 2)}, {size:#x}')
    p(f's_mov_b32 {s(r + 3)}, 0x20000')
p(f's_mov_b32 {s(sTO)}, {OPT["to"]}')
p(f's_lshl_b32 {s(sB4)}, {s(sB)}, 2')
p(f's_getreg_b32 {s(sLoc)}, hwreg(HW_REG_XCC_ID)')
p(f's_mov_b32 {s(sOnes)}, 0x3f803f80')
p(f's_mov_b32 {s(sSelLo)}, 0x05040100')
p(f's_mov_b32 {s(sSelHi)}, 0x07060302')
if OPT['zx']:
    p(f's_bitcmp1_b32 s2, {5 + OPT["zx"]}')
    p(f's_cselect_b32 {s(96)}, 0x02020202, 0')
    p(f's_xor_b32 {s(sSelLo)}, {s(sSelLo)}, {s(96)}')
    p(f's_xor_b32 {s(sSelHi)}, {s(sSelHi)}, {s(96)}')
p(f'v_and_b32 {v(t3)}, 7, {v(n_)}')
p(f'v_lshlrev_b32 {v(t3)}, 6, {v(t3)}')
p(f'v_and_b32 {v(t1)}, 8, {v(n_)}')
p(f'v_lshlrev_b32 {v(t1)}, 2, {v(t1)}')
p(f'v_add3_u32 {v(t3)}, {v(t3)}, {v(t1)}, {s(94)}')
p(f'v_lshlrev_b32 {v(t3)}, 1, {v(t3)}')
p(f's_lshl_b32 {s(96)}, {s(sC)}, 2')
p(f's_add_u32 {s(96)}, {s(96)}, {s(sW)}')
p(f's_lshl_b32 {s(sSt)}, {s(96)}, 10')
p(f's_add_u32 {s(sSt)}, {s(sSt)}, {STATS:#x}')
p(f's_lshl_b32 {s(96)}, {s(sC)}, 10')
p(f's_add_u32 {s(sS2)}, {s(96)}, {FLAGS + 0x10000:#x}')
p(f's_lshl_b32 {s(96)}, {s(sW)}, 7')
p(f's_add_u32 {s(96)}, {s(96)}, 256')
p(f's_add_u32 {s(sS5)}, {s(96)}, {s(sS2)}')
p(f'v_lshlrev_b32 {v(vStl)}, 3, {v(n_)}')
p(f'v_lshl_add_u32 {v(vStl)}, {v(g_)}, 8, {v(vStl)}')
p(f's_lshl_b32 {s(96)}, {s(sB)}, 2')
p(f's_add_u32 {s(96)}, {s(96)}, {s(sW)}')
p(f's_mul_i32 {s(sZld)}, {s(96)}, 114688')
p(f's_add_u32 {s(sZld)}, {s(sZld)}, {Z_:#x}')
p(f's_and_b32 {s(96)}, {s(sC)}, 7')
p(f's_lshl_b32 {s(96)}, {s(96)}, 10')
p(f's_lshr_b32 {s(97)}, {s(sC)}, 3')
p(f's_lshl_b32 {s(97)}, {s(97)}, 8')
p(f's_add_u32 {s(96)}, {s(96)}, {s(97)}')
p(f's_add_u32 {s(sZst)}, {s(sZld)}, {s(96)}')
p(f'v_and_b32 {v(T)}, 1, {v(g_)}')
p(f'v_lshlrev_b32 {v(T)}, 14, {v(T)}')
p(f'v_and_b32 {v(T + 1)}, 2, {v(g_)}')
p(f'v_lshl_add_u32 {v(T)}, {v(T + 1)}, 12, {v(T)}')
p(f'v_lshl_add_u32 {v(vZst)}, {v(n_)}, 4, {v(T)}')
EI = 64
for k in range(4):
    p(f'v_mov_b32 {v(116 + k)}, -1')
p(f'v_mov_b32 {v(EI)}, -1')
p(f'v_mov_b32 {v(EI + 1)}, -1')
p(f'v_mov_b32 {v(EI + 2)}, {s(sLoc)}')
p(f'v_mov_b32 {v(EI + 3)}, 0')
p(f'v_and_b32 {v(EI + 4)}, 16, {v(vL16)}')
p(f'v_lshlrev_b32 {v(EI + 4)}, 13, {v(EI + 4)}')
p(f'v_and_b32 {v(EI + 5)}, 0x60, {v(vL16)}')
p(f'v_or_b32 {v(EI + 4)}, {v(EI + 4)}, {v(EI + 5)}')
def first_requests():
    if not OPT['min0']:
        first_loads()
    for r, off, size in SRDS[7:]:
        p(f's_load_dwordx2 {s(r, 2)}, s[0:1], {off}')
    p(f's_lshl_b32 {s(96)}, s2, 2')
    p(f's_add_u32 {s(sG0)}, {s(96)}, {s(sW)}')
    p(f's_cmp_eq_u32 {s(sG0)}, 3')
    p.begin('G0', 's_cbranch_scc0')
    p(f'v_lshlrev_b32 {v(EI + 6)}, 4, {v(vL16)}')
    for k in range(2):
        p(f's_mov_b32 {s(99)}, {FLAGS + 0x4000 * k:#x}')
        p(f'buffer_store_dword {v(EI + 3)}, {v(EI + 6)}, {s(R_WS, 4)}, {s(99)} offen sc1', tag='z')
    if OPT['dp']:
        p(f'v_lshlrev_b32 {v(EI + 7)}, 5, {v(vL16)}')
        p(f's_mov_b32 {s(99)}, {FLAGS + 0x8100:#x}')
        p(f'buffer_store_dword {v(EI + 3)}, {v(EI + 7)}, {s(R_WS, 4)}, {s(99)} offen sc1', tag='z')
    p.end()
    p(f's_and_b32 {s(96)}, {s(sB)}, 3')
    p(f's_lshl_b32 {s(96)}, {s(96)}, 3')
    p(f's_and_b32 {s(97)}, {s(sB)}, 4')
    p(f's_add_u32 {s(96)}, {s(96)}, {s(97)}')
    p(f's_add_u32 {s(96)}, {s(96)}, {s(sW)}')
    p(f's_lshl_b32 {s(96)}, {s(96)}, 2')
    p(f's_add_u32 {s(97)}, {s(sS2)}, 768')
    p(f's_add_u32 {s(sF2s)}, {s(96)}, {s(97)}')
    p(f's_lshl_b32 {s(96)}, {s(sW)}, 5')
    p(f's_add_u32 {s(sF2l)}, {s(96)}, {s(97)}')
    if OPT['wf2']:
        p('s_mov_b64 exec, 3')
        p(f'buffer_store_dword {v(EI + 3)}, {v(EI + 4)}, {s(R_WS, 4)}, {s(sF2s)} offen sc1', tag='pub')
    p('s_mov_b64 exec, 0xffff')
    for k in range(0 if OPT['noe'] & 1 else 3):
        p(f's_add_u32 {s(96)}, {s(sSt)}, {s(sB128)}')
        p(f's_add_u32 {s(96)}, {s(96)}, {k * 0x20000:#x}')
        p(f'buffer_store_dwordx2 {v(EI, 2)}, {v(vStl)}, {s(R_WS, 4)}, {s(96)} offen sc1', tag='pub')
    p('s_mov_b64 exec, 0xff')
    p(f's_add_u32 {s(97)}, {s(sS5)}, {s(sB4)}')
    if not OPT['noe'] & 2:
        p(f'buffer_store_dword {v(EI + 3)}, {v(EI + 4)}, {s(R_WS, 4)}, {s(97)} offen sc1', tag='pub')
    if_wave0()
    p('s_mov_b64 exec, 1')
    p(f's_add_u32 {s(96)}, {s(sS2)}, {s(sB4)}')
    p(f'buffer_store_dword {v(EI + 2)}, off, {s(R_WS, 4)}, {s(96)} offset:128 sc1', tag='pub')
    p('s_mov_b64 exec, 15')
    if not OPT['noe'] & 2:
        p(f'buffer_store_dword {v(EI + 3)}, {v(EI + 4)}, {s(R_WS, 4)}, {s(96)} offen sc1', tag='pub')
    p(f's_lshl_b32 {s(96)}, s2, 8')
    p(f's_add_u32 {s(96)}, {s(96)}, {FLAGS:#x}')
    p(f's_and_b32 {s(97)}, s2, 0x81')
    p(f's_cmp_eq_u32 {s(97)}, 0x80')
    p('s_cselect_b32 exec_lo, 3, 2')
    p(f'buffer_store_dword {v(EI + 3)}, {v(EI + 4)}, {s(R_WS, 4)}, {s(96)} offen sc1', tag='pub')
    p.end()
    p('s_mov_b64 exec, -1')
    p(f's_add_u32 {s(R_WL)}, {s(R_WS)}, {LBASE:#x}')
    p(f's_addc_u32 {s(R_WL + 1)}, {s(R_WS + 1)}, 0')
    p('s_waitcnt lgkmcnt(0)')
    if OPT['tlb']:
        p(f's_cmp_eq_u32 {s(sW)}, 1')
        p.begin('W1', 's_cbranch_scc0')
        p(f'v_lshlrev_b32 {v(EI + 6)}, 21, {v(n_)}')
        p('s_mov_b64 exec, 0xffff')
        if OPT['tlb'] & 1:
            p(f'buffer_load_dword {v(240)}, {v(EI + 6)}, {s(R_WL, 4)}, 0 offen sc1')
            p(f'buffer_load_dword {v(239)}, {v(EI + 6)}, {s(R_WS, 4)}, 0 offen sc1')
        if OPT['tlb'] & 2:
            p(f'buffer_load_dword {v(238)}, {v(EI + 6)}, {s(R_WSP, 4)}, 0 offen')
            p(f'buffer_load_dword {v(223)}, off, {s(R_DBG, 4)}, 0 offset:128 sc1')
        if OPT['tlb'] & 4:
            p(f'buffer_load_dword {v(222)}, off, {s(R_OUT, 4)}, 0 sc1')
        p('s_mov_b64 exec, -1')
        p.end()
    scalar_touch(0)
    stamp('start')


def scalar_touch(k):
    if OPT['stouch'] <= k:
        return
    if k == 0:
        p(f's_add_u32 {s(96)}, {s(sW)}, {s(sB)}')
        p(f's_and_b32 {s(96)}, {s(96)}, 3')
        p(f's_lshl_b32 {s(96)}, {s(96)}, 10')
        p(f's_and_b32 {s(97)}, {s(sB128)}, 512')
        p(f's_add_u32 {s(96)}, {s(96)}, {s(97)}')
        p(f's_lshl_b32 {s(97)}, {s(sC)}, 12')
        p(f's_add_u32 {s(96)}, {s(96)}, {s(97)}')
        p(f's_lshl_b32 {s(97)}, {s(sW)}, 21')
        p(f's_add_u32 {s(96)}, {s(96)}, {s(97)}')
        p(f's_add_u32 {s(96)}, {s(96)}, 0x100000')
        p(f's_add_u32 s0, {s(R_WSP)}, {s(96)}')
        p(f's_addc_u32 s1, {s(R_WSP + 1)}, 0')
    else:
        p('s_waitcnt lgkmcnt(0)')
    for i in range(OPT['stn'] * k, OPT['stn'] * (k + 1)):
        p(f's_load_dword s91, s[0:1], {131072 * (i >> 2) + 128 * (i & 3) - 0x100000}')
        p.cur[-1].defs = set()


def early_requests():
    global prep, wsp_first
    if OPT['early'] & 1:
        emit(prep)
        prep = []
    emit(wsp_first[:OPT['early'] >> 1])
    wsp_first = wsp_first[OPT['early'] >> 1:]


def hook(k):
    if OPT['pre'] == k:
        first_requests()
    if max(OPT['pre'], 2) == k:
        early_requests()


hook(1)
vPi, vPo, vPri, vPro, PK = 112, 114, 242, 243, 224
PST = SCR + 12288
p(f's_add_u32 {s(92)}, {s(92)}, L_table-L_pc')
p(f's_addc_u32 {s(93)}, {s(93)}, 0')
for k in range(2):
    p(f'v_add_u32 {v(T)}, {256 * k}, {v(tid)}')
    p(f'v_mul_u32_u24 {v(T + 1)}, 4682, {v(T)}')
    p(f'v_lshrrev_b32 {v(T + 1)}, 16, {v(T + 1)}')
    p(f'v_mul_u32_u24 {v(T + 2)}, 14, {v(T + 1)}')
    p(f'v_sub_u32 {v(T)}, {v(T)}, {v(T + 2)}')
    p(f'v_and_b32 {v(T + 2)}, 0x38, {v(T + 1)}')
    p(f'v_add_u32 {v(T + 1)}, {v(T + 1)}, {v(T + 2)}')
    p(f'v_mul_u32_u24 {v(T + 1)}, 3584, {v(T + 1)}')
    p(f'v_lshl_add_u32 {v(vPi + k)}, {v(T)}, 4, {v(T + 1)}')
p(f's_and_b32 {s(94)}, {s(sC)}, 7')
p(f's_lshl_b32 {s(94)}, {s(94)}, 6')
p(f's_and_b32 {s(95)}, {s(sC)}, 8')
p(f's_add_u32 {s(94)}, {s(94)}, {s(95)}')
p(f's_mul_i32 {s(94)}, {s(94)}, 3584')
p(f's_lshr_b32 {s(95)}, {s(sC)}, 4')
p(f's_mul_i32 {s(95)}, {s(95)}, 1792')
p(f's_add_u32 {s(94)}, {s(94)}, {s(95)}')
p(f's_mul_i32 {s(95)}, {s(sB)}, 224')
p(f's_add_u32 {s(76)}, {s(94)}, {s(95)}')
p(f'v_lshrrev_b32 {v(T)}, 3, {v(lane)}')
p(f'v_and_b32 {v(T + 1)}, 0x70, {v(vL16)}')
p(f'v_lshl_add_u32 {v(vPo)}, {v(T)}, 10, {v(T + 1)}')
p(f's_and_b32 {s(94)}, {s(sC)}, 7')
p(f's_mul_i32 {s(94)}, {s(94)}, 112')
p(f's_lshr_b32 {s(95)}, {s(sC)}, 3')
p(f's_lshl_b32 {s(95)}, {s(95)}, 5')
p(f's_add_u32 {s(94)}, {s(94)}, {s(95)}')
p(f's_sub_u32 {s(95)}, {s(sC)}, 24')
p(f's_mul_i32 {s(95)}, {s(95)}, 224')
p(f's_add_u32 {s(95)}, {s(95)}, 96')
p(f's_cmp_lt_u32 {s(sC)}, 24')
p(f's_cselect_b32 {s(94)}, {s(94)}, {s(95)}')
p(f's_cselect_b32 {s(95)}, 16, 112')
p(f's_lshr_b32 {s(96)}, {s(sW)}, 1')
p(f's_mul_i32 {s(95)}, {s(95)}, {s(96)}')
p(f's_add_u32 {s(94)}, {s(94)}, {s(95)}')
p(f's_and_b32 {s(95)}, {s(sW)}, 1')
p(f's_lshl_b32 {s(95)}, {s(95)}, 3')
p(f's_add_u32 {s(94)}, {s(94)}, {s(95)}')
p(f's_lshl_b32 {s(94)}, {s(94)}, 10')
p(f's_add_u32 {s(77)}, {s(94)}, {s(sB128)}')
p(f'v_lshrrev_b32 {v(T)}, 2, {v(n_)}')
p(f'v_lshl_add_u32 {v(T)}, {v(g_)}, 3, {v(T)}')
p(f'v_mul_u32_u24 {v(T)}, 224, {v(T)}')
p(f'v_and_b32 {v(T + 1)}, 3, {v(lane)}')
p(f'v_lshl_add_u32 {v(T)}, {v(T + 1)}, 3, {v(T)}')
p(f's_lshl_b32 {s(94)}, {s(sW)}, 5')
p(f's_add_u32 {s(94)}, {s(94)}, {PST}')
p(f'v_add_u32 {v(vPri)}, {s(94)}, {v(T)}')
p(f's_lshl_b32 {s(94)}, {s(sW)}, 3')
p(f's_add_u32 {s(94)}, {s(94)}, {PST + 8192}')
p(f'v_lshl_add_u32 {v(vPro)}, {v(lane)}, 5, {s(94)}')
p(f'v_lshrrev_b32 {v(T)}, 3, {v(lane)}')
p(f'v_lshlrev_b32 {v(T)}, 18, {v(T)}')
p(f'v_and_b32 {v(T + 1)}, 7, {v(lane)}')
p(f'v_xor_b32 {v(T + 1)}, {v(T + 1)}, {v(g_)}')
p(f'v_lshl_add_u32 {v(T)}, {v(T + 1)}, 4, {v(T)}')
p(f's_lshl_b32 {s(94)}, {s(sC)}, 12')
p(f's_add_u32 {s(100)}, {s(sW)}, {s(sB)}')
if OPT['rot']:
    p(f's_lshr_b32 {s(95)}, s2, 6')
    p(f's_mul_i32 {s(95)}, {s(95)}, {OPT["rot"]}')
    p(f's_add_u32 {s(100)}, {s(100)}, {s(95)}')
p(f's_and_b32 {s(100)}, {s(100)}, 3')
p(f's_lshl_b32 {s(95)}, {s(100)}, 10')
p(f's_add_u32 {s(94)}, {s(94)}, {s(95)}')
p(f'v_add_u32 {v(vWspA)}, {s(94)}, {v(T)}')
p(f'v_xor_b32 {v(T)}, 64, {v(vWspA)}')
p(f'v_add_u32 {v(vWspA + 1)}, 0x20000, {v(T)}')
p(f's_mul_i32 {s(sWsp)}, {s(sW)}, 24576')
p(f'v_lshrrev_b32 {v(T)}, 1, {v(n_)}')
p(f'v_xor_b32 {v(T)}, {v(T)}, {v(g_)}')
p(f'v_lshlrev_b32 {v(T)}, 4, {v(T)}')
p(f'v_lshl_add_u32 {v(T)}, {v(n_)}, 7, {v(T)}')
p(f's_add_u32 {s(94)}, {s(sWsp)}, 1024')
p(f'v_add_u32 {v(vWspR)}, {s(94)}, {v(T)}')
p(f'v_xor_b32 {v(vWspR + 1)}, 64, {v(vWspR)}')
p(f's_lshr_b32 {s(94)}, {s(sB)}, 2')
p(f's_lshl_b32 {s(95)}, {s(sW)}, 21')
for k in range(2):
    p(f's_lshl_b32 {s(96)}, {s(94)}, 13')
    p(f's_add_u32 {s(78 + k)}, {s(96)}, {s(sWsp)}')
    p(f's_lshl_b32 {s(96)}, {s(94)}, 9')
    p(f's_add_u32 {s(80 + k)}, {s(96)}, {s(95)}')
    p(f's_xor_b32 {s(94)}, {s(94)}, 1')
p(f's_lshl_b32 {s(82)}, {s(sW)}, 10')
prep = [[(f's_add_u32 m0, {s(82)}, {PST}', None), (f'buffer_load_dwordx4 {v(vPi)}, {s(R_WIN, 4)}, {s(76)} offen lds', 'prep')],
        [(f's_add_u32 m0, {s(82)}, {PST + 4096}', None), (f'buffer_load_dwordx4 {v(vPi + 1)}, {s(R_WIN, 4)}, {s(76)} offen lds', 'prep')],
        [(f's_add_u32 m0, {s(82)}, {PST + 8192}', None), (f'buffer_load_dwordx4 {v(vPo)}, {s(R_WOUT, 4)}, {s(77)} offen lds', 'prep')],
        [(f'buffer_load_ushort {v(vBsp)}, {v(t3)}, {s(R_BSP, 4)}, 0 offen', None)]]
wsp_first = wsp_dma_ops(0) if OPT['nowsp'] < 2 else []
hook(2)
p(f's_mul_i32 {s(94)}, {s(sB)}, 229376')
p(f's_mul_i32 {s(95)}, {s(sC)}, 7168')
p(f's_add_u32 {s(94)}, {s(94)}, {s(95)}')
p(f's_lshl_b32 {s(95)}, {s(sW)}, 10')
p(f's_add_u32 {s(94)}, {s(94)}, {s(95)}')
p(f's_mov_b32 {s(83)}, {s(94)}')
p(f's_add_u32 {s(94)}, {s(94)}, 4096')
p(f's_cmp_lt_u32 {s(sW)}, 3')
p(f's_cselect_b32 {s(94)}, {s(94)}, {LBASE:#x}')
p(f's_mov_b32 {s(84)}, {s(94)}')
p(f's_mul_i32 {s(94)}, {s(sB)}, 114688')
p(f's_lshl_b32 {s(96)}, {s(sC)}, 12')
p(f's_add_u32 {s(94)}, {s(94)}, {s(96)}')
p(f's_add_u32 {s(94)}, {s(94)}, {s(95)}')
p(f's_add_u32 {s(94)}, {s(94)}, {WO:#x}')
p(f's_cmp_lt_u32 {s(sC)}, 28')
p(f's_cselect_b32 {s(94)}, {s(94)}, {LBASE:#x}')
p(f's_mov_b32 {s(85)}, {s(94)}')
p(f's_lshl_b32 {s(sVst)}, {s(sC)}, 11')
p(f's_lshl_b32 {s(96)}, {s(sB)}, 8')
p(f's_add_u32 {s(sVst)}, {s(sVst)}, {s(96)}')
p(f'v_lshlrev_b32 {v(T + 3)}, 17, {v(g_)}')
p(f'v_lshl_add_u32 {v(T + 3)}, {v(n_)}, 4, {v(T + 3)}')
p(f's_lshl_b32 {s(96)}, {s(sW)}, 19')
p(f'v_add_u32 {v(vVst)}, {s(96)}, {v(T + 3)}')
p(f'v_mul_u32_u24 {v(T + 3)}, 160, {v(n_)}')
p(f'v_lshl_add_u32 {v(T + 3)}, {v(g_)}, 3, {v(T + 3)}')
p(f's_mul_i32 {s(96)}, {s(sW)}, 2560')
p(f's_add_u32 {s(96)}, {s(96)}, {SCR}')
p(f'v_add_u32 {v(vHw2)}, {s(96)}, {v(T + 3)}')
p(f'v_lshrrev_b32 {v(T + 3)}, 2, {v(lane)}')
p(f'v_mul_u32_u24 {v(T + 3)}, 160, {v(T + 3)}')
p(f'v_and_b32 {v(T + 2)}, 3, {v(lane)}')
p(f'v_lshl_add_u32 {v(T + 3)}, {v(T + 2)}, 3, {v(T + 3)}')
p(f'v_add_u32 {v(vHw)}, {s(96)}, {v(T + 3)}')
p(f'v_add_u32 {v(vHr)}, {SCR}, {v(T + 3)}')


def setup_a():
    p(f's_lshr_b32 {s(94)}, {s(sB)}, 2')
    p(f's_and_b32 {s(95)}, {s(sB)}, 3')
    p(f's_sub_u32 {s(96)}, 32, {s(sC)}')
    p(f's_and_b32 {s(96)}, {s(96)}, 31')
    p(f's_cmp_eq_u32 {s(94)}, 0')
    p(f's_cselect_b32 {s(96)}, {s(sC)}, {s(96)}')
    p(f's_lshl_b32 {s(sVld)}, {s(96)}, 16')
    p(f's_lshl_b32 {s(sH)}, {s(sC)}, 16')
    p(f's_lshl_b32 {s(96)}, {s(95)}, 14')
    p(f's_lshl_b32 {s(97)}, {s(94)}, 7')
    p(f's_add_u32 {s(96)}, {s(96)}, {s(97)}')
    p(f's_add_u32 {s(sK2)}, {s(sH)}, {s(96)}')
    p(f's_lshl_b32 {s(96)}, {s(sW)}, 14')
    p(f's_add_u32 {s(sH)}, {s(sH)}, {s(96)}')
    p(f's_mov_b32 {s(sXb)}, 0')
    p(f's_mov_b32 {s(sXo)}, 0x10000')
    p(f's_lshl_b32 {s(96)}, {s(sB)}, 2')
    p(f's_add_u32 {s(96)}, {s(96)}, {s(100)}')
    p(f's_mul_i32 {s(sZld)}, {s(96)}, 114688')
    p(f's_add_u32 {s(sZld)}, {s(sZld)}, {Z_:#x}')
    p(f's_lshl_b32 {s(96)}, {s(sC)}, 2')
    p(f's_add_u32 {s(96)}, {s(96)}, {s(sW)}')
    p(f's_lshl_b32 {s(sUld)}, {s(96)}, 14')
    p(f's_add_u32 {s(sUld)}, {s(sUld)}, {H_ if OPT["locd"] & 4 else U_:#x}')
    p(f's_lshl_b32 {s(97)}, {s(sB)}, 10')
    p(f's_add_u32 {s(sUst)}, {s(sUld)}, {s(97)}')
    p(f's_lshl_b32 {s(sDm)}, {s(sW)}, 12')
    p(f's_mul_i32 {s(sWI)}, {s(sB)}, 229376')
    p(f's_add_u32 {s(sWI)}, {s(sWI)}, {s(sDm)}')
    p(f's_mul_i32 {s(sWO)}, {s(sB)}, 114688')
    p(f's_add_u32 {s(sWO)}, {s(sWO)}, {s(sDm)}')
    p(f's_add_u32 {s(sWO)}, {s(sWO)}, {WO:#x}')
    p(f's_and_b32 {s(96)}, s2, 15')
    p(f's_lshl_b32 {s(96)}, {s(96)}, 8')
    p(f's_add_u32 {s(sArr)}, {s(96)}, {FLAGS:#x}')
    p(f's_and_b32 {s(96)}, s2, 7')
    p(f's_lshl_b32 {s(96)}, {s(96)}, 12')
    p(f's_add_u32 {s(sRep)}, {s(96)}, {FLAGS:#x}')
    p(f's_lshl_b32 {s(97)}, {s(sB)}, 9')
    p(f's_add_u32 {s(97)}, {s(97)}, {FLAGS + 0x8000:#x}')
    p(f's_add_u32 {s(sP4)}, {s(96)}, {s(97)}')
    p(f's_mov_b32 {s(sS4)}, {s(97)}')
    p(f's_mov_b32 {s(sLocH)}, 0')
    p(f'v_lshlrev_b32 {v(vL8)}, 3, {v(lane)}')
    p(f'v_add_u32 {v(vL16hi)}, 0x10000, {v(vL16)}')
    p(f'v_add_u32 {v(vL16h2)}, 0x20000, {v(vL16)}')
    p(f'v_lshlrev_b32 {v(vPoll)}, 8, {v(n_)}')
    p(f'v_and_b32 {v(vArr)}, 7, {v(lane)}')
    p(f'v_lshlrev_b32 {v(vGrp)}, 2, {v(vArr)}')
    p(f'v_lshlrev_b32 {v(vArr)}, 12, {v(vArr)}')
    p(f'v_mov_b32 {v(vGK)}, {f2u(-2.302208198144325 * 0.044715):#x}')
    p(f'v_mov_b32 {v(vGK + 1)}, {f2u(-2.302208198144325):#x}')
    p(f'v_lshrrev_b32 {v(T)}, 3, {v(lane)}')
    p(f'v_and_b32 {v(T + 4)}, 7, {v(lane)}')
    p(f'v_lshlrev_b32 {v(T + 4)}, 4, {v(T + 4)}')
    p(f'v_lshl_add_u32 {v(T + 2)}, {v(T)}, 8, {v(T + 4)}')
    p(f's_lshl_b32 {s(96)}, {s(sW)}, 12')
    p(f'v_add_u32 {v(vK2)}, {s(96)}, {v(T + 2)}')
    p(f'v_and_b32 {v(T)}, 1, {v(T)}')
    p(f'v_lshl_add_u32 {v(T)}, {v(T)}, 4, {v(g_)}')
    p(f'v_mul_u32_u24 {v(T)}, 144, {v(T)}')
    p(f's_lshr_b32 {s(96)}, {s(sW)}, 1')
    p(f's_mul_i32 {s(96)}, {s(96)}, 4608')
    p(f's_and_b32 {s(97)}, {s(sW)}, 1')
    p(f's_mul_i32 {s(97)}, {s(97)}, 1152')
    p(f's_add_u32 {s(96)}, {s(96)}, {s(97)}')
    p(f's_add_u32 {s(96)}, {s(96)}, {SCR}')
    p(f'v_add3_u32 {v(vTr)}, {v(T)}, {v(T + 4)}, {s(96)}')
    p(f'v_lshrrev_b32 {v(T)}, 5, {v(lane)}')
    p(f'v_and_b32 {v(T + 1)}, 1, {v(g_)}')
    p(f'v_lshl_add_u32 {v(T + 2)}, {v(T)}, 4, {v(n_)}')
    p(f'v_mul_u32_u24 {v(T + 2)}, 144, {v(T + 2)}')
    p(f'v_lshl_add_u32 {v(T + 2)}, {v(T + 1)}, 4, {v(T + 2)}')
    p(f's_lshl_b32 {s(96)}, {s(sW)}, 5')
    p(f's_add_u32 {s(97)}, {s(96)}, {SCR}')
    p(f'v_add_u32 {v(vTw)}, {s(97)}, {v(T + 2)}')
    p(f'v_and_b32 {v(T + 2)}, 1, {v(lane)}')
    p(f'v_lshlrev_b32 {v(T + 2)}, 5, {v(T + 2)}')
    p(f'v_and_b32 {v(T + 3)}, 2, {v(lane)}')
    p(f'v_lshl_add_u32 {v(T + 2)}, {v(T + 3)}, 3, {v(T + 2)}')
    p(f'v_lshrrev_b32 {v(T + 3)}, 2, {v(lane)}')
    p(f'v_add_u32 {v(T + 2)}, {v(T + 2)}, {v(T + 3)}')
    p(f'v_mul_u32_u24 {v(T + 2)}, 144, {v(T + 2)}')
    p(f'v_add_u32 {v(vXw)}, {s(97)}, {v(T + 2)}')
    p(f'v_add_u32 {v(vXw + 1)}, 16, {v(vXw)}')
    p(f's_lshl_b32 {s(96)}, {s(95)}, 4')
    p(f's_add_u32 {s(96)}, {s(96)}, {s(94)}')
    p(f's_lshl_b32 {s(96)}, {s(96)}, 5')
    p(f's_add_u32 {s(98)}, {s(96)}, {s(sC)}')
    p(f's_lshl_b32 {s(96)}, {s(sW)}, 7')
    p(f's_add_u32 {s(96)}, {s(96)}, {s(98)}')
    p(f's_lshl_b32 {s(96)}, {s(96)}, 10')
    p(f'v_add_u32 {v(vXr)}, {s(96)}, {v(vL16)}')
    p(f'v_mul_u32_u24 {v(T + 3)}, 1040, {v(T + 1)}')
    p(f'v_lshl_add_u32 {v(T + 3)}, {v(T)}, 8, {v(T + 3)}')
    p(f'v_lshl_add_u32 {v(T + 3)}, {v(n_)}, 3, {v(T + 3)}')
    p(f's_mul_i32 {s(96)}, {s(sW)}, 2080')
    p(f's_add_u32 {s(96)}, {s(96)}, {SCR}')
    p(f'v_add_u32 {v(vUr)}, {s(96)}, {v(T + 3)}')
    p(f'v_mul_u32_u24 {v(T + 3)}, 1040, {v(n_)}')
    p(f'v_lshl_add_u32 {v(T + 3)}, {v(g_)}, 5, {v(T + 3)}')
    p(f's_lshl_b32 {s(96)}, {s(sW)}, 8')
    p(f's_add_u32 {s(96)}, {s(96)}, {SCR}')
    p(f'v_add_u32 {v(vUw)}, {s(96)}, {v(T + 3)}')
    p(f'v_lshlrev_b32 {v(T + 3)}, 13, {v(g_)}')
    p(f'v_lshl_add_u32 {v(T + 3)}, {v(n_)}, 4, {v(T + 3)}')
    p(f's_lshl_b32 {s(96)}, {s(sW)}, 9')
    p(f'v_add_u32 {v(vVld)}, {s(96)}, {v(T + 3)}')
    for q in range(1, 5):
        p(f's_add_u32 {s(96)}, {s(sW)}, {q}')
        p(f's_and_b32 {s(96)}, {s(96)}, 3')
        p(f's_mul_i32 {s(96)}, {s(96)}, 3072')
        p(f's_add_u32 {s(96)}, {s(96)}, {(CT if OPT["pr"] else SCR) + (1024 * (q - 1) if q < 4 else 0)}')
        p(f'v_add_u32 {v(vRed + q - 1)}, {s(96)}, {v(vL16)}')


def setup_b():
    p(f'v_and_b32 {v(T)}, 7, {v(n_)}')
    p(f'v_lshlrev_b32 {v(T)}, 6, {v(T)}')
    p(f'v_add_u32 {v(T)}, {s(98)}, {v(T)}')
    p(f'v_lshlrev_b32 {v(T + 1)}, 2, {v(g_)}')
    p(f'v_mul_u32_u24 {v(T + 1)}, {v(T + 1)}, {v(T)}')
    p(f'v_lshrrev_b32 {v(T + 2)}, 3, {v(n_)}')
    p(f'v_lshl_add_u32 {v(T + 1)}, {v(T + 2)}, 9, {v(T + 1)}')
    p(f's_cmp_eq_u32 {s(94)}, 0')
    p(f's_cselect_b32 {s(73)}, 1.0, -1.0')
    p(f's_cselect_b32 {s(74)}, 0, 1.0')
    p(f's_cselect_b32 {s(72)}, 1.0, 0')
    p(f's_cmp_eq_u32 {s(sC)}, 0')
    p(f's_cselect_b32 {s(72)}, {s(72)}, 1.0')
    p(f's_cselect_b32 {s(73)}, 0, {s(73)}')
    p(f's_cselect_b32 {s(74)}, {s(74)}, 0')
    for k in range(8):
        cp = 16 * (k >> 2) + (k & 3)
        p(f'v_mad_u32_u24 {v(T + 2)}, {v(T)}, {cp}, {v(T + 1)}')
        p(f'v_and_b32 {v(T + 2)}, 0x7ff, {v(T + 2)}')
        p(f'v_cvt_f32_u32 {v(T + 2)}, {v(T + 2)}')
        p(f'v_mul_f32 {v(T + 2)}, {f2u(1.0 / 2048):#x}, {v(T + 2)}')
        p(f'v_cos_f32 {v(T + 3)}, {v(T + 2)}')
        p(f'v_sin_f32 {v(T + 4)}, {v(T + 2)}')
        p(f'v_mul_f32 {v(T + 5)}, {s(74)}, {v(T + 3)}')
        p(f'v_mul_f32 {v(T + 3)}, {s(72)}, {v(T + 3)}')
        p(f'v_fma_f32 {v(T + 4)}, {s(73)}, {v(T + 4)}, {v(T + 5)}')
        p(f'v_cvt_pk_bf16_f32 {v(vC2 + k)}, {v(T + 3)}, {v(T + 4)}')


def late_setup():
    global lane, n_, g_
    lane, n_, g_ = 120, 121, 122
    if OPT['late']:
        p(f'v_lshrrev_b32 {v(lane)}, 4, {v(vL16)}')
        p(f'v_and_b32 {v(n_)}, 15, {v(lane)}')
        p(f'v_lshrrev_b32 {v(g_)}, 4, {v(lane)}')
    if OPT['late'] == 2:
        setup_a()
    if OPT['late']:
        setup_b()


assert OPT['pre'] <= 2
if OPT['late'] < 2:
    setup_a()
scalar_touch(1)
if OPT['late'] < 1:
    setup_b()
scalar_touch(2)
stamp('setup')
if OPT['wfirst'] == 1:
    emit(wsp_first)
    wsp_first = []
for i in range(OPT['x1'], OPT['xa']):
    if OPT['wfirst'] == 2 and wsp_first:
        emit([wsp_first.pop(0)])
    x_loads(i, i + 1)
if OPT['xa'] == 8:
    m1_load(108)
if OPT['ctpos'] == 0:
    ct_dma(110)
SCHED = OPT['sched'].split('/')
WT = OPT['wt'].split('/')
FIX = OPT['fix'].split('/')
WSR = (160, 192)
a2a_load = [(f'buffer_load_dword {v(241)}, {v(vPoll)}, {s(R_WS, 4)}, {s(sRep)} offen sc1', None)]


def wsp_run(items):
    i = 0
    while i < len(items):
        if items[i] == 's':
            if OPT['dp'] == 1:
                for k in range(4):
                    p(f'v_mov_b32 {v(116 + k)}, -1')
            emit([[(x, 'pub2') for x, _ in g] for g in prep_stores + ([zpois] if OPT['dp'] == 1 else [])])
            i += 1
            continue
        if items[i] == 'A':
            p.wait_vm('pub2')
            p(f's_add_u32 {s(98)}, {s(sS4)}, 256')
            arrive(98, 8)
            i += 1
            continue
        if items[i] == 'q':
            if_wave0()
            emit([a2a_load])
            p.end()
            i += 1
            continue
        k = int(items[i + 1])
        if items[i] == 'd':
            p.wait_lgkm(f'wr{k - 3}')
            wsp_dma(k)
        elif items[i] == 'r':
            wsp_read(k, WSR[k & 1])
        elif items[i] == 'a':
            wsp_park(k)
        else:
            wsp_perm(k, WSR[k & 1])
        if OPT['fine'] == 2:
            stamp('*' + items[i:i + 2])
        i += 2


zpois = [(f'buffer_store_dwordx4 {v(116, 4)}, {v(vZst)}, {s(R_WL, 4)}, {s(sZst)} offen sc1', 'pub')]


def prep_reads():
    for k in range(2):
        for half in range(2):
            p(f'ds_read_b64_tr_b16 {v(PK + 4 * k + 2 * half, 2)}, {v(vPri)} offset:{128 * k + 896 * half}')
    for half in range(2):
        p(f'ds_read_b64_tr_b16 {v(PK + 8 + 2 * half, 2)}, {v(vPro)} offset:{2048 * half}')


prep_stores = [[(f'buffer_store_dwordx4 {v(PK + 4 * k, 4)}, {v(vL16)}, {s(R_WS, 4)}, {s(83 + k)} offen sc1', 'pub')] for k in range(3)]
bg = prep + wsp_first
if OPT['pp']:
    assert not prep
    p.wait_vm('prep')
    p('s_barrier')
    prep_reads()
    bg = prep_stores + bg if OPT['pp'] == 1 else bg[:OPT['pp']] + prep_stores + bg[OPT['pp']:]
if OPT['zs'] and OPT['dp'] != 1:
    bg = [zpois] + bg if OPT['zp0'] == 0 else bg + [zpois]
for ch in SCHED[0]:
    bg += wsp_dma_ops(int(ch))
for k in range(4):
    p(f'v_mov_b32 {v(T + 2 + k)}, 0')
p.bg = bg
xnext = OPT['xa']
if xnext == 8:
    p.bg_on(OPT['wspev'])
for i in range(64):
    if xnext < 8 and i % OPT['xe'] == OPT['xe'] - 1:
        x_loads(xnext, xnext + 1)
        xnext += 1
        if xnext == 8:
            m1_load(108)
            p.bg_on(OPT['wspev'])
    p(f'v_dot2c_f32_bf16 {v(T + 2 + (i & 1))}, {s(sOnes)}, {v(XR + i)}')
    p(f'v_dot2c_f32_bf16 {v(T + 4 + (i & 1))}, {v(XR + i)}, {v(XR + i)}')
    if i == 7:
        unpack(XR, 8, XV)
        if OPT['hx']:
            p(f'v_lshlrev_b32 {v(208)}, 4, {v(n_)}')
            p(f'v_lshl_add_u32 {v(208)}, {v(g_)}, 2, {v(208)}')
            for k in range(8):
                p(f'ds_bpermute_b32 {v(200 + k)}, {v(208)}, {v(XR + k)}')
    if i == OPT['ann']:
        p.bg_on(0)
        p(f's_cmp_eq_u32 {s(sG0)}, 3')
        p.begin('G0', 's_cbranch_scc0')
        p.wait_vm('z')
        p(f'v_mov_b32 {v(EI)}, 1')
        p('s_mov_b64 exec, 1')
        p(f'buffer_store_dword {v(EI)}, off, {s(R_DBG, 4)}, 0 sc1')
        p('s_mov_b64 exec, -1')
        p.end()
        p.bg_on(OPT['wspev'] if xnext == 8 else 0)
p.bg_on(0)
p.bg_emit()
p(f'v_add_f32 {v(T)}, {v(T + 2)}, {v(T + 3)}')
p(f'v_add_f32 {v(T + 1)}, {v(T + 4)}, {v(T + 5)}')
for qp in ('[1,0,3,2]', '[2,3,0,1]'):
    for k in range(2):
        p(f'v_add_f32_dpp {v(T + k)}, {v(T + k)}, {v(T + k)} quad_perm:{qp} row_mask:0xf bank_mask:0xf')
p('s_waitcnt lgkmcnt(0)')
p('s_mov_b32 s0, s86')
p('s_mov_b32 s1, s87')
sF2s, sF2l = 0, 1
dbg_load = [(f'buffer_load_dword {v(241)}, off, {s(R_DBG, 4)}, 0 sc1', None)]
assert not SCHED[1]
wsp_run(SCHED[1])


def x_copy():
    p(f's_lshl_b32 {s(98)}, {s(sB)}, 10')
    p(f's_add_u32 {s(98)}, {s(98)}, {s(sH)}')
    for o in range(2):
        p(f's_add_u32 {s(99)}, {s(98)}, {H_ + 8192 * o:#x}')
        p(f'buffer_store_dwordx4 {v(200 + 4 * o, 4)}, {v(vL16)}, {s(R_WL, 4)}, {s(99)} offen sc1', tag='pub')


def residual_from_ws():
    p(f's_mov_b32 {s(R_X)}, {s(R_WL)}')
    p(f's_mov_b32 {s(R_X + 1)}, {s(R_WL + 1)}')
    p(f's_mov_b32 {s(R_X + 2)}, {LSTRIDE:#x}')
    p(f's_add_u32 {s(sXb)}, {s(sK2)}, {H_:#x}')
    p(f's_add_u32 {s(sXo)}, {s(sXb)}, 2048')
    p(f'v_mov_b32 {v(vXr)}, {v(vK2)}')
    p(f'v_mov_b32 {v(vXw)}, {v(vTr)}')
    p(f'v_add_u32 {v(vXw + 1)}, 576, {v(vTr)}')


if OPT['hx'] == 2:
    x_copy()
p.section('body')
for _ in range(OPT['algn']):
    p('s_nop 0')
p('L_layer:')
stamp('T')
HP, AF, D1, VO = 56, 72, 104, 56
finish_stats(T, 512)
for i in range(0, 16, 2):
    p(f'v_pk_fma_f32 {v(XV + i, 2)}, {v(XV + i, 2)}, {v(T, 2)}, {v(T, 2)} op_sel:[0,0,1] op_sel_hi:[1,0,1]')
for t in range(4):
    for k in range(2):
        p(f'v_cvt_pk_bf16_f32 {v(HP + 2 * t + k)}, {v(XV + 8 * k + t)}, {v(XV + 8 * k + 4 + t)}')
    p(f'ds_write_b64 {v(vHw)}, {v(HP + 2 * t, 2)} offset:{32 * t}', tag='hw')
p(f's_add_u32 {s(sT + 1)}, {s(sVst)}, 0x10000')
p.wait_lgkm('hw')
p.wait_vm('prep')
p('s_barrier')
for ks in range(2):
    for tile in range(4):
        for half in range(2):
            p(f'ds_read_b64_tr_b16 {v(AF + 16 * ks + 4 * tile + 2 * half, 2)}, {v(vHr)} offset:{(32 * ks + 16 * half) * 160 + 32 * tile}')
if not OPT['pp']:
    if_layer(0)
    prep_reads()
    p.end()
for ks in range(2):
    for tile in range(4):
        d = D1 + 4 * tile
        p(f'{M16} {v(d, 4)}, {v(M1 + 4 * ks, 4)}, {v(AF + 16 * ks + 4 * tile, 4)}, {v(d, 4) if ks else 0}')
if_layer(0)
p(f'v_lshlrev_b32 {v(vBsp)}, 16, {v(vBsp)}')
if OPT['hx'] == 1:
    x_copy()
if not OPT['pp'] and not OPT['dp']:
    emit(prep_stores)
p.end()
for jj in range(2):
    for t in range(4):
        p(f'v_cvt_pk_bf16_f32 {v(VO + 4 * jj + t)}, {v(D1 + 4 * t + 2 * jj)}, {v(D1 + 4 * t + 2 * jj + 1)}')
    p(f'buffer_store_dwordx4 {v(VO + 4 * jj, 4)}, {v(vVst)}, {s(R_WL, 4)}, {s(sT + 1 if jj else sVst)} offen sc1', tag='pub')
stamp('Vst')
if OPT['ctpos'] == 1:
    ct_dma(T + 6)
if_layer(0)
if_wave0()
emit([dbg_load])
p.end()
wsp_run(SCHED[2])
late_setup()
if OPT['hx'] == 3:
    x_copy()
if OPT['hx']:
    residual_from_ws()
if_wave0()
retry_until(dbg_load, lambda: p(f'v_cmp_ne_u32 vcc, 1, {v(241)}'))
p.end()
p.end()
wz2 = w_dma_ops(sWI, 114688, LOC_Z2, 'wz2')
CMN = [int(ch, 36) for ch in OPT['cmn']]
assert sum(CMN) % 4 == 0 and sum(CMN) + OPT['wzp1'] + OPT['wzp2'] + OPT['wzp3'] == 28
wz2_both, wz2 = wz2[:sum(CMN)], wz2[sum(CMN):]
P1, P2, P3 = OPT['wzp1'], OPT['wzp1'] + OPT['wzp2'], OPT['wzp1'] + OPT['wzp2'] + OPT['wzp3']
assert P1 % 4 == 0 and OPT['wzp0'] % 4 == 0
if (OPT['ctp'] == 2 and OPT['ctpos'] == 0) or P2 > P1:
    if_layer(1)
    if OPT['ctp'] == 2 and OPT['ctpos'] == 0:
        ct_dma(T + 6)
    emit(wz2[P1:P2])
    p.end()
stamp('init')
if OPT['vs']:
    if_layer(0)
    p.wait_vm('pub')
    p.wait_vm('ct')
    arrive(sArr, 8)
    p.end()
    if_layer(1)
    p.wait_vm('x2')
    p.wait_vm('ct')
    arrive_group(sS2, 32)
    p.end()
else:
    p.wait_vm('pub')
    p.wait_vm('ct')
    arrive(sArr, 8)
poison(5, 96)
code_prefetch(1, 'L_k2')
stamp('arr1')
FA, TW, FB, VR, D2, UP, XRES, Y = 40, 64, 80, 96, 160, 192, 224, 208
for k in range(14):
    p(f'ds_read_b128 {v(FA + 4 * k, 4)}, {v(vL16hi)} offset:{CT - 65536 + k * 1024}')
if_layer(0)
wsp_run(SCHED[3])
if_wave0()
retry_until(a2a_load, lambda: p(f'v_cmp_ne_u32 vcc, 16, {v(241)}'))
p.end()
assert OPT['vs']
p(f's_and_b32 {s(99)}, {s(sSelLo)}, 2')
p(f's_lshl_b32 {s(99)}, {s(99)}, 9')
p(f'v_add_u32 {v(vZ[0])}, {s(99)}, {v(vL16)}')
p(f'v_xor_b32 {v(vZ[1])}, 0x400, {v(vZ[0])}')
p(f's_add_u32 {s(94)}, {s(99)}, {s(sDm)}')
p(f's_xor_b32 {s(95)}, {s(94)}, 0x400')
p('s_barrier')
p.end()
for k in range(4):
    p(f's_add_u32 {s(sT + 4 + k)}, {s(sVld)}, {(16 * (k >> 1) + 2 * (k & 1)) * 2048:#x}')
if_layer(1)
emit(wz2[P2:P3])
x2_load = [(f'buffer_load_dword {v(248)}, {v(vGrp)}, {s(R_WS, 4)}, {s(sS2)} offen offset:32{PG}', None)]
if OPT['vs']:
    emit([x2_load])
else:
    poll(sRep, vPoll, 16)
p.end()
assert not SCHED[8:]


def l0_dma(n):
    emit([wz2_both.pop(0) for _ in range(CMN.pop(0))])


stamp('S1')
p('L_k2:')
vl = [(f'buffer_load_dwordx4 {v(VR + 16 * gk + 4 * ii, 4)}, {v(vVld)}, {s(R_WL, 4)}, {s(sT + 4 + 2 * (gk & 1) + (ii >> 1))} '
       f'offen offset:{(ii & 1) * 2048 + (gk >> 1) * 256} sc1', None) for gk in range(4) for ii in range(4)]
for gk in range(4):
    emit([vl[4 * gk:4 * gk + 4]])
    if gk < 3 and SCHED[4 + gk]:
        if_layer(0)
        wsp_run(SCHED[4 + gk])
        p.end()
if OPT['vs']:
    if_layer(1)
    retry_until(x2_load, lambda: p(f'v_cmp_ne_u32 vcc, 1, {v(248)}'))
    p.end()
xl = [(f'buffer_load_dwordx4 {v(XRES + 4 * k, 4)}, {v(vXr)}, {s(R_X, 4)}, {s((sXb, sXo)[k])} offen{LG}', None) for k in range(2)]
emit([xl])
if_layer(0)
p(f'buffer_load_dword {v(248)}, {v(vGrp)}, {s(R_WS, 4)}, {s(sS2)} offen offset:128 sc1')
w_load = [(f'buffer_load_dword {v(249)}, off, {s(R_WS, 4)}, {s(sP4)} offset:256 sc1', None)]
if OPT['dp']:
    emit([w_load])
wsp_run(SCHED[7])
if not SCHED[8:]:
    p('s_waitcnt lgkmcnt(0)')
    p('s_barrier')
p.end()
l0_dma(0)
stamp('Vld')


def u_pack(hi):
    up = (192, 200)[hi]
    for r in range(4):
        for lp in range(2):
            p(f'v_cvt_pk_bf16_f32 {v(up + 2 * r + lp)}, {v(D2 + 16 * hi + 8 * lp + r)}, {v(D2 + 16 * hi + 8 * lp + 4 + r)}')
        if r & 1:
            p(f'ds_write_b128 {v(vUw)}, {v(up + 2 * r - 2, 4)} offset:{128 * hi + 8 * (r - 1)}')


for hi in range(2):
    for ks in range(2):
        if hi and ks:
            u_pack(0)
        r = VR + 32 * hi + 16 * ks
        if OPT['vs']:
            def v_test(r=r):
                p(f'v_max3_u32 {v(T)}, {v(r + 3)}, {v(r + 7)}, {v(r + 11)}')
                p(f'v_max_u32 {v(T)}, {v(T)}, {v(r + 15)}')
                p(f'v_cmp_eq_u32 vcc, -1, {v(T)}')
            gk = 2 * hi + ks
            if OPT['vs'] == 1:
                retry_until(vl[4 * gk:], v_test)
            else:
                retry_until(vl[4 * gk:4 * gk + 4], v_test, after=vl[4 * gk + 4:] + xl if gk < 3 else None)
        for i in range(4):
            for j in range(i + 1, 4):
                p(f'v_swap_b32 {v(r + 4 * i + j)}, {v(r + 4 * j + i)}')
        for lo in range(4):
            d = D2 + 16 * hi + 4 * lo
            p(f'{M16} {v(d, 4)}, {v(r + 4 * lo, 4)}, {v(vC2 + 4 * ks, 4)}, {v(d, 4) if ks else 0}')
fine('st2')
if OPT['dp']:
    assert OPT['cmn'][0] == '0'
    if_layer(0)
    retry_until(w_load, lambda: p(f'v_cmp_ne_u32 vcc, 32, {v(249)}'))
    p.end()
l0_dma(4)
u_pack(1)
for k in range(2):
    p(f'ds_write_b128 {v(vXw + k)}, {v(XRES + 4 * k, 4)} offset:16640')
p('s_waitcnt lgkmcnt(0)')
p('s_barrier')
fine('ubar')
poison(4, 176)
UA, DR, DI, TT, PF = 96, 112, 128, 144, 160
for ri in range(2):
    for dh in range(2):
        for half in range(2):
            p(f'ds_read_b64_tr_b16 {v(UA + 8 * ri + 4 * dh + 2 * half, 2)}, {v(vUr)} offset:{ri * 8320 + dh * 512 + half * 128}')
for o in range(2):
    p(f'ds_read_b128 {v(XRES + 4 * o, 4)}, {v(vTw)} offset:{16640 + 4608 * o}')
l0_dma(4)
for ri in range(2):
    for dh in range(2):
        first = ri == 0 and dh == 0
        fr = FA + 4 * ((2 if ri else 0) + dh)
        fi = FA + 4 * ((0 if ri else 4) + dh)
        p(f'{M32} {v(DR, 16)}, {v(UA + 8 * ri + 4 * dh, 4)}, {v(fr, 4)}, {0 if first else v(DR, 16)}')
        p(f'{M32} {v(DI, 16)}, {v(UA + 8 * ri + 4 * dh, 4)}, {v(fi, 4)}, {0 if first else v(DI, 16)}')
fine('stA')
unpack(XRES, 8, Y)
fine('xres')
l0_dma(4)
for row in range(2):
    for k in range(0, 8, 2):
        r = 8 * row + k
        p(f'v_pk_mul_f32 {v(TT + k, 2)}, {v(DI + r, 2)}, {v(TW + 8 + k, 2)}')
        p(f'v_pk_mul_f32 {v(TT + 8 + k, 2)}, {v(DR + r, 2)}, {v(TW + 8 + k, 2)}')
    for k in range(0, 8, 2):
        r = 8 * row + k
        p(f'v_pk_fma_f32 {v(TT + k, 2)}, {v(DR + r, 2)}, {v(TW + k, 2)}, {v(TT + k, 2)}')
        p(f'v_pk_fma_f32 {v(TT + 8 + k, 2)}, {v(DI + r, 2)}, {v(TW + k, 2)}, {v(TT + 8 + k, 2)} neg_lo:[0,0,1] neg_hi:[0,0,1]')
    for k in range(8):
        p(f'v_cvt_pk_bf16_f32 {v(PF + 8 * row + k)}, {v(TT + 2 * k)}, {v(TT + 2 * k + 1)}')
for k in range(4):
    p(f'{M32} {v(Y, 16)}, {v(PF + 4 * k, 4)}, {v(FB + 4 * k, 4)}, {v(Y, 16)}')
fine('stB')
XO, HO = 224, 232
l0_dma(4)
if_layer(0)
p(f'v_cmp_ne_u32 vcc, {s(sLoc)}, {v(248)}')
p('s_cmp_eq_u64 vcc, 0')
p(f's_cselect_b32 {s(sLoc)}, {OPT["loc"]}, 0')
p(f's_mov_b32 {s(sLocU)}, {s(sLoc)}')
p.end()
local_stats(Y, 16, T)
p(f'v_permlane32_swap_b32 {v(T)}, {v(T + 1)}')
p(f'v_add_f32 {v(T)}, {v(T)}, {v(T + 1)}')
for k, sh in enumerate((8, 4, 2, 1)):
    p(f'v_cvt_pk_bf16_f32 {v(XO + 2 * k)}, {v(Y + 4 * k)}, {v(Y + 4 * k + 1)}')
    p(f'v_cvt_pk_bf16_f32 {v(XO + 2 * k + 1)}, {v(Y + 4 * k + 2)}, {v(Y + 4 * k + 3)}')
    p(f'v_add_f32_dpp {v(T)}, {v(T)}, {v(T)} row_ror:{sh} row_mask:0xf bank_mask:0xf')
p(f'v_mov_b32 {v(T + 1)}, {v(T)}')
p(f's_add_u32 {s(sT)}, {s(sK2)}, {X1_:#x}')
p(f's_add_u32 {s(sT + 1)}, {s(sK2)}, {H_:#x}')
p(f'v_permlane32_swap_b32 {v(T)}, {v(T + 1)}')
finish_stats(T, 512)
norm_pack(Y, 16, T, Y, HO)
fine('norm')
for o in range(2):
    p(f'ds_write_b128 {v(vTw)}, {v(HO + 4 * o, 4)} offset:{16640 + 4608 * o}')
p('s_waitcnt lgkmcnt(0)')
p('s_barrier')
for k in range(2):
    p(f'ds_read_b128 {v(HO + 4 * k, 4)}, {v(vTr)} offset:{16640 + 576 * k}')
for o in range(2):
    p(f'ds_write_b128 {v(vTw)}, {v(XO + 4 * o, 4)} offset:{4608 * o}')
gstore([f'buffer_store_dwordx4 {v(HO + 4 * k, 4)}, {v(vK2)}, {s(R_WL, 4)}, {s(sT + 1)} offen offset:{2048 * k}' for k in range(2)], 'pub', OPT['locd'] & 1, None if OPT['hx'] else sLocH)
l0_dma(6)
HF, Z2, Z1, WR, WD, GT = 40, 104, 136, 164, 12, 232
for k in range(4):
    p(f's_add_u32 {s(sT + 4 + k)}, {s(sH)}, {H_ + 4096 * k:#x}')
wsp_fix(FIX[0], 104, wz2[:OPT['l0a']])
stamp('K2')
p('s_waitcnt lgkmcnt(0)')
if OPT['wf2']:
    p('s_barrier')
    for k in range(2):
        p(f'ds_read_b128 {v(XO + 4 * k, 4)}, {v(vTr)} offset:{576 * k}')
    p(f'v_mov_b32 {v(T)}, 1')
    p.wait_vm('pub')
    p('s_mov_b64 exec, 1')
    gstore([f'buffer_store_dword {v(T)}, off, {s(R_WS, 4)}, {s(sF2s)}'])
    p('s_mov_b64 exec, -1')
else:
    p.wait_vm('pub')
    arrive_group(sS2)
    for k in range(2):
        p(f'ds_read_b128 {v(XO + 4 * k, 4)}, {v(vTr)} offset:{576 * k}')
wsp_fix(FIX[1], 104, wz2[OPT['l0a']:])
stamp('arr2')
p('s_waitcnt lgkmcnt(0)')
for k in range(7):
    p.wait_vm(f'wz2{k}')
if OPT['wf2']:
    p('s_barrier')
    top, done = p.label('poll'), p.label('pdone')
    p(f'{top}:')
    p(f'buffer_load_dword {v(T)}, {v(vGrp)}, {s(R_WS, 4)}, {s(sF2l)} offen{PG}')
    p('s_waitcnt vmcnt(0)')
    p(f'v_cmp_ne_u32 vcc, 1, {v(T)}')
    spin_tail(top, done)
else:
    poll(sS2, vGrp, 1)
stamp('S2')
p('L_k3:')
hl = [[(f'buffer_load_dwordx4 {v(HF + 4 * ks, 4)}, {v(vL16)}, {s(R_WL, 4)}, {s(sT + 4 + (ks >> 2))} offen offset:{1024 * (ks & 3)}{LG}', None)]
      for ks in range(16)]
xs = [[(f'buffer_store_dwordx4 {v(XO + 4 * k, 4)}, {v(vK2)}, {s(R_WL, 4)}, {s(sT)} offen offset:{2048 * k} sc1', 'x1')] for k in range(2)]
wz1 = w_dma_ops(sWI, 0, LOC_Z1, 'wz1')
emit(hl[:OPT['pre3']])
SEL, ZP, ZT, ZO = 212, 228, 164, 104
p(f'v_and_b32 {v(SEL)}, 0xf0, {v(vL16)}')
p(f'v_lshrrev_b32 {v(SEL + 1)}, 2, {v(vL16)}')
p(f'v_and_b32 {v(SEL + 1)}, 0xc0, {v(SEL + 1)}')
p(f'v_sub_u32 {v(SEL)}, {v(SEL)}, {v(SEL + 1)}')
p(f'v_mov_b32 {v(SEL + 4)}, 0x3f80')
p(f'v_lshlrev_b32 {v(SEL + 4)}, {v(SEL)}, {v(SEL + 4)}')
p(f'v_lshrrev_b32 {v(SEL + 1)}, 5, {v(SEL)}')
p(f'v_cmp_eq_u32 vcc, 0, {v(SEL + 1)}')
p(f'v_cndmask_b32 {v(SEL + 2)}, 0, {v(SEL + 4)}, vcc')
p(f'v_cmp_eq_u32 vcc, 1, {v(SEL + 1)}')
p(f'v_cndmask_b32 {v(SEL + 3)}, 0, {v(SEL + 4)}, vcc')
for k in (0, 1, 4, 5):
    p(f'v_mov_b32 {v(SEL + k)}, 0')
p(f'v_mov_b32 {v(ZP + 14)}, 0')
p(f'v_mov_b32 {v(ZP + 15)}, 0')
wsp_fix(FIX[2], 104)
n_h = 16 - OPT['pre3']
fill = spread(hl[OPT['pre3']:], 1, OPT['hsp'])
fill.update(spread(xs + wz1[:12], OPT['hsp'] * n_h + 1, OPT['z2sp']))
fill[max(fill) + 3] = lambda: poison(1, 132)
gemm_r(Z2, 7, 0, 16, HF, WR, WD, LOC_Z2, fill=fill)
p.wait_vm('x1')
p('s_barrier')
stamp('z2mm')
p.bg = wz1[12:]
p.bg_emit(2)
p.bg_on(OPT['g2ev'])
gelu(Z2, 28, GT)
local_stats(Z2, 28, T)
p.bg_on(0)
reduce_g(T, T + 1)
publish_stats(0)
stamp('pub3')
Z1A = OPT['z1a']
p.bg_emit(None if Z1A else OPT['gb'])
p(f's_mov_b32 {s(sT + 2)}, {s(sZld)}')
for k in range(2):
    p(f'v_add_u32 {v(246 + k)}, {s(94 + k)}, {v(vL16)}')
OW, OR, OG = 248, 249, 253
p(f's_add_u32 {s(sT + 1)}, {s(sUst)}, 8192')
p(f's_lshl_b32 {s(sT + 3)}, {s(sB)}, 10')
p(f's_add_u32 {s(sT + 3)}, {s(sT + 3)}, {s(sH)}')
p(f's_add_u32 {s(sT + 12)}, {s(sT + 3)}, {X1_:#x}')
p(f's_add_u32 {s(sT + 13)}, {s(sT + 3)}, {X1_ + 8192:#x}')
for k in range(4):
    p(f's_add_u32 {s(sT + 4 + k)}, {s(sUld)}, {4096 * k}')
    p(f's_add_u32 {s(sT + 8 + k)}, {s(sH)}, {X1_ + 4096 * k:#x}')
p(f'v_and_b32 {v(133)}, 0xf0, {v(vL16)}')
p(f'v_mul_u32_u24 {v(133)}, 9, {v(133)}')
p(f'v_lshrrev_b32 {v(134)}, 8, {v(vL16)}')
p(f'v_lshl_add_u32 {v(133)}, {v(134)}, 5, {v(133)}')
p(f's_mul_i32 {s(99)}, {s(sW)}, 2304')
p(f's_add_u32 {s(99)}, {s(99)}, {CT if OPT["pr"] else SCR + 12288}')
p(f'v_add_u32 {v(OW)}, {s(99)}, {v(133)}')
p(f'v_lshrrev_b32 {v(133)}, 7, {v(vL16)}')
p(f'v_lshl_add_u32 {v(134)}, {v(133)}, 4, {v(vL16)}')
p(f'v_add_u32 {v(OR)}, {s(99)}, {v(134)}')
p(f'v_and_b32 {v(134)}, 0x70, {v(vL16)}')
p(f'v_lshl_add_u32 {v(OG)}, {v(133)}, 16, {v(134)}')
p(f's_lshl_b32 {s(99)}, {s(sW)}, 9')
p(f's_add_u32 {s(99)}, {s(99)}, {s(sC)}')
p(f's_lshl_b32 {s(99)}, {s(99)}, 10')
p(f's_add_u32 {s(sT + 14)}, {s(99)}, {s(sB128)}')
p(f's_add_u32 {s(sT + 15)}, {s(sT + 14)}, 0x8000')
wo = w_dma_ops(sWO, 0, LOC_WO, 'wo')
if Z1A:
    p.wait_vm('wz12')
    p('s_barrier')
    fill = {OPT['gpos']: gather_loads(0)}
    fill.update(spread(wo[:OPT['woa']], OPT['gpos'] + 2, 2))
    gemm_r(Z1, 7, 0, Z1A, HF, WR, WD, LOC_Z1, fill=fill)
else:
    emit([gather_loads(0)])
    p.bg_emit()
    emit(wo[:OPT['woa']])
stamp('z1a')
gather_finish(0)
stamp('S3')
poison(2, 132)
finish_stats(T, 896)
for i in range(0, 28, 2):
    p(f'v_pk_fma_f32 {v(Z2 + i, 2)}, {v(Z2 + i, 2)}, {v(T, 2)}, {v(T, 2)} op_sel:[0,0,1] op_sel_hi:[1,0,1]')
ZO = 192
for pr in range(6):
    if pr < 4:
        tiles = [ft for ft in (2 * pr, 2 * pr + 1) if ft < 7]
        for ft in tiles:
            for k in range(2):
                p(f'v_cvt_pk_bf16_f32 {v(ZP + 2 * ft + k)}, {v(Z2 + 4 * ft + 2 * k)}, {v(Z2 + 4 * ft + 2 * k + 1)}')
    if 2 <= pr:
        q = pr - 2
        for ft in (2 * q, 2 * q + 1):
            for k in range(2 if ft < 7 else 0):
                p(f'v_cvt_pk_bf16_f32 {v(ZO + 2 * ft + k)}, {v(ZT + 4 * ft + 2 * k)}, {v(ZT + 4 * ft + 2 * k + 1)}')
        p(f's_add_u32 {s(sT)}, {s(sZst)}, {q * 32768:#x}')
    if pr < 4:
        for ft in tiles:
            p(f'{M16} {v(ZT + 4 * ft, 4)}, {v(ZP + 4 * pr, 4)}, {v(SEL + (0 if ft & 1 else 2), 4)}, 0')
    if 2 <= pr:
        for k in range(2):
            p(f'v_permlane16_swap_b32 {v(ZO + 4 * q + k)}, {v(ZO + 4 * q + 2 + k)}')
        if q == 3:
            p('s_mov_b32 exec_lo, 0xffff')
            p('s_mov_b32 exec_hi, 0xffff')
        p(f'buffer_store_dwordx4 {v(ZO + 4 * q, 4)}, {v(vZst)}, {s(R_WL, 4)}, {s(sT)} offen sc1', tag='pub')
p('s_mov_b64 exec, -1')
stamp('Zst')
poison(3, 132)
p.wait_vm('wz16')
p('s_barrier')
Z1B = min(16, Z1A + OPT['z1arr'])
wreg = lambda k: 104 + 4 * k if k < 8 else 212 + 4 * (k - 8)
wst = []
for k in range(16):
    g = [(f's_add_u32 {s(sDo)}, {s(sWO)}, {16384 * (3 + (k >> 2)):#x}', None)] if k % 4 == 0 else []
    if not OPT['nobg'] & 1:
        g.append((f'buffer_load_dwordx4 {v(wreg(k), 4)}, {v(vZ[k & 1])}, {s(R_WS, 4)}, {s(sDo)} offen offset:{1024 * (k & 2)}', None))
    wst.append(g)
bgw = wo[OPT['woa']:12] + wst
wo = []
ZD, AC, RT, UO = OPT['zd'], 196, 228, 240


def zreg(fi):
    k = fi % ZD
    return 56 + 4 * k


def zload(fi):
    if fi % 4 == 0 and fi:
        p(f's_add_u32 {s(sT + 2)}, {s(sT + 2)}, 4096')
    if OPT['k4load'] or fi < ZD:
        p(f'buffer_load_dwordx4 {v(zreg(fi), 4)}, {v(vZ[fi & 1])}, {s(R_WL, 4)}, {s(sT + 2)} offen offset:{(fi & 2) * 1024}' + ' sc1', tag=f'z{fi}')


nin = min(len(bgw), (112 - 7 * Z1A - 1) // OPT['wosp'])
fill = spread(bgw[:nin], 7 * Z1A + 1, OPT['wosp'])
nz = 0
if OPT['zs'] and OPT['zin'] and nin == len(bgw):
    pos = max(max(fill) + OPT['wosp'], OPT['zin'])
    while nz < ZD and max(pos, 7 * (nz + 5) - 1) < 112:
        pos = max(pos, 7 * (nz + 5) - 1)
        fill[pos] = (lambda k: lambda: zload(k))(nz)
        pos += OPT['zsp']
        nz += 1
gemm_r(Z1, 7, Z1A, Z1B, HF, WR, WD, LOC_Z1, last=112, fill={k: g for k, g in fill.items() if k < 7 * Z1B})
p.wait_vm('pub')
arrive(sS4, 8)
code_prefetch(4, 'L_k4')
stamp('arr4')
if Z1B < 16:
    gemm_r(Z1, 7, Z1B, 16, HF, WR, WD, LOC_Z1, preload=False, fill={k: g for k, g in fill.items() if k >= 7 * Z1B})
p.bg = bgw[nin:]
if nz:
    for fi in range(nz, ZD):
        zload(fi)
    nz = ZD
if OPT['g1w']:
    p.bg_on(8)
    gelu(Z1, 4 * OPT['g1w'], 164)
    p.bg_on(0)
p.bg_emit()
wsp_fix(FIX[3], 164)
B4 = 188
p(f'v_mov_b32 {v(T + 4)}, 1')
p(f's_add_u32 {s(96)}, {s(sS5)}, {s(sB4)}')
if OPT['bc']:
    for k in range(4):
        p(f'v_mov_b32 {v(B4 + k)}, {v(vBsp)}')
stamp('win4')
if OPT['zs']:
    if Z1B < 16:
        p('s_barrier')
else:
    poll(sP4, None, 32)
stamp('S4')
p('L_k4:')
def acc0(ft):
    return (196, 212, 192)[ft % 3] if OPT['pr'] else AC + 16 * (ft & 1)


def k4_epilogue(ft):
    ac, buf = AC + 16 * (ft & 1), 12288 * (ft & (3 if OPT['pr'] else 1))
    RT = 164 if OPT['pr'] and ft in (0, 2, 4) else 228
    st1 = [f'ds_write_b128 {v(vRed + q - 1)}, {v(ac + 4 * q, 4)} offset:{buf}' for q in (1, 2, 3)]
    ac = acc0(ft)
    st1 += [f'v_add_f32 {v(ac + r)}, {v(vBsp)}, {v(ac + r)}' for r in range(0 if OPT['bc'] else 4)]
    st2 = ['s_waitcnt lgkmcnt(0)', 's_barrier']
    st2 += [f'ds_read_b128 {v(RT + 4 * q, 4)}, {v(vRed + 3)} offset:{buf + 1024 * q}' for q in range(3)]
    st3 = [f'v_add_f32 {v(ac + r)}, {v(RT + 4 * q + r)}, {v(ac + r)}' for q in range(3) for r in range(4)]
    st3 += [f'v_mul_f32 {v(ac + r)}, {v(Z1 + 4 * ft + r)}, {v(ac + r)}' for r in range(4)]
    st3 += [f'v_cvt_pk_bf16_f32 {v(UO + 2 * (ft & 1) + k)}, {v(ac + 2 * k)}, {v(ac + 2 * k + 1)}' for k in range(2)]
    if ft == 6:
        st3 += [f'buffer_store_dwordx2 {v(UO, 2)}, {v(vL8)}, {s(R_WL, 4)}, {s(sT + 13)} offen']
    elif ft == 5:
        st3 += [f'buffer_store_dwordx4 {v(UO, 4)}, {v(vL16)}, {s(R_WL, 4)}, {s(sT + 12)} offen']
    elif ft & 1:
        st3 += [f'buffer_store_dwordx4 {v(UO, 4)}, {v(vL16)}, {s(R_WL, 4)}, {s(sT + 1 if ft == 3 else sUst)} offen offset:0']
    return st1, st2, st3


def k4_emit(x):
    if x.startswith('buffer_store'):
        late = x.endswith('offen')
        if late:
            p.wait_vm('x1l')
        gstore([x], 'u6' if 'dwordx2' in x else 'pub', OPT['locd'] & (2 if late else 4), sLocU if OPT['locd'] & (8 if late else 16) else None)
    else:
        p(x)


def gelu_ops(x, t):
    ops = [f'v_mul_f32 {v(t + k)}, {v(x + k)}, {v(x + k)}' for k in range(4)]
    ops += [f'v_fma_f32 {v(t + k)}, {v(t + k)}, {v(vGK)}, {v(vGK + 1)}' for k in range(4)]
    ops += [f'v_mul_f32 {v(t + k)}, {v(t + k)}, {v(x + k)}' for k in range(4)]
    ops += [f'v_exp_f32 {v(t + k)}, {v(t + k)}' for k in range(4)]
    ops += [f'v_add_f32 {v(t + k)}, 1.0, {v(t + k)}' for k in range(4)]
    ops += [f'v_rcp_f32 {v(t + k)}, {v(t + k)}' for k in range(4)]
    ops += [f'v_mul_f32 {v(x + k)}, {v(t + k)}, {v(x + k)}' for k in range(4)]
    return ops


WR5, X1R, XP, FL, X1L = 56, 232, 104, 244, 136
assert ZD == WD


def ureg(ks):
    return (104, 120, 164, 180, 212, 196, 136)[ks >> 2] + 4 * (ks & 3)


ul = [[(f'buffer_load_dwordx4 {v(ureg(ks), 4)}, {v(vL16)}, {s(R_WL, 4)}, {s(sT + 4 + (ks >> 2))} offen offset:{1024 * (ks & 3)}{LG}', None)]
      for ks in range(24)]
ul += [[(f'buffer_load_dwordx2 {v(ureg(24 + i) + 2 * k, 2)}, {v(vL8)}, {s(R_WL, 4)}, {s(sT + 10 + (i >> 1))} offen offset:{1024 * (2 * (i & 1) + k)}{LG}', None)
        for k in range(2)] for i in range(4)]


def flag_store(off):
    if OPT['fx']:
        p('s_mov_b64 exec, 1')
        gstore([f'buffer_store_dword {v(T + 4)}, off, {s(R_WS, 4)}, {s(96)} offset:{off}'])
        p('s_mov_b64 exec, -1')
        return
    p(f'v_mov_b32 {v(FL + 1)}, 1')
    p(f's_add_u32 {s(99)}, {s(sS5)}, {s(sB4)}')
    p('s_mov_b64 exec, 1')
    gstore([f'buffer_store_dword {v(FL + 1)}, off, {s(R_WS, 4)}, {s(99)} offset:{off}'])
    p('s_mov_b64 exec, -1')


def flag_load(off):
    return [(f'buffer_load_dword {v(FL)}, {v(vGrp)}, {s(R_WS, 4)}, {s(sS5)} offen offset:{off}{PG}', None)]


def z_check(fi):
    loads = [(f's_add_u32 {s(99)}, {s(sZld)}, {1024 * fi:#x}', None)]
    loads += [(f'buffer_load_dwordx4 {v(zreg(fi + k), 4)}, {v(vZ[k])}, {s(R_WL, 4)}, {s(99)} offen sc1', None) for k in range(2)]
    return loads, lambda: p(f'v_cmp_u_f32 vcc, {v(zreg(fi) + 3)}, {v(zreg(fi + 1) + 3)}')


s4_load = [(f'buffer_load_dword {v(FL)}, off, {s(R_WS, 4)}, {s(sP4)} sc1', None)]


def flag_check(off):
    retry_until(flag_load(off), lambda: p(f'v_cmp_ne_u32 vcc, 1, {v(FL)}'))


for fi in range(nz, ZD):
    zload(fi)
assert not FIX[4]
x1l = [(f'buffer_load_dwordx4 {v(X1L + 4 * o, 4)}, {v(vL16)}, {s(R_WL, 4)}, {s(sT + 12 + o)} offen{LG}', 'x1l') for o in range(2)]
tail = ul[:16]
ROT = 112 % ZD
for ft in range(7):
    fill = {}
    if ft and OPT['k4epi']:
        st1, st2, st3 = k4_epilogue(ft - 1)
        pos = OPT['e1']
        for x in st1:
            fill.setdefault(pos, []).append(x)
            pos += OPT['ews'] if x[0] == 'd' else 1
        if OPT['pr'] == 2 and ft >= 5:
            pass
        elif OPT['pr'] and ft & 1:
            st2, st3 = [], []
        elif OPT['pr']:
            _, p2, p3 = k4_epilogue(ft - 2)
            st2 = p2 + st2[2:]
            st3, slots = p3 + st3, [k for k in range(OPT['e3'], 64) for _ in range(1 if k % 4 == 3 else 2)]
            for k, x in zip(slots, st3):
                fill.setdefault(k, []).append(x)
            st3 = []
        pos = OPT['e2'] - (OPT['el'] if ft == 6 else 0)
        for x in st2:
            fill.setdefault(pos, []).append(x)
            pos += 1
        pos = OPT['e3'] - (OPT['el'] if ft == 6 else 0)
        for x in st3:
            fill.setdefault(pos, []).append(x)
            pos += 1
    if ft == 0:
        for k in range(16):
            fill[4 * k + 1] = [f'ds_write_b128 {v(246 + ((15 - k) & 1))}, {v(wreg(15 - k), 4)} offset:{16384 * ((15 - k) >> 2) + 1024 * ((15 - k) & 2)}']
    if ft == OPT['upk']:
        free = [k for k in range(64) if k % 4 != 3][-16:]
        for i in range(8):
            fill.setdefault(free[2 * i], []).append(f'v_lshlrev_b32 {v(XV + 2 * i)}, 16, {v(X1L + i)}')
            fill.setdefault(free[2 * i + 1], []).append(f'v_and_b32 {v(XV + 2 * i + 1)}, 0xffff0000, {v(X1L + i)}')
    if OPT['pr']:
        gops = [x for ch in OPT['gmap'].split('/')[ft] for x in gelu_ops(Z1 + 4 * int(ch), T)]
    else:
        gops = gelu_ops(Z1 + 4 * (ft + OPT['gsh']), T) if OPT['g1w'] <= ft + OPT['gsh'] < 7 else []
    free = [k for k in range(64) if k not in fill] + [k for k in range(64) if len(fill.get(k, [])) == 1 and fill[k][0][0] == 'v' and k % 4 != 3]
    assert len(free) >= len(gops)
    for k, x in zip(sorted(free[:len(gops)]), gops):
        fill.setdefault(k, []).append(x)
    for a2 in range(16):
        fi = ft * 16 + a2
        chk = OPT['zs'] and fi & 1 and fi < 31
        if fi % OPT['zw'] == 0:
            p.wait_vm(f'z{min(fi + OPT["zw"] - 1, 111)}')
        if OPT['zs'] and fi == 0:
            retry_until(*z_check(0))
        for q in range(4):
            d = AC + 16 * (ft & 1) + 4 * q if q else acc0(ft)
            if chk and q == 3:
                z_check(fi + 1)[1]()
            if OPT['k4mfma'] or q == 0:
                p(f'{M16} {v(d, 4)}, {v(zreg(fi), 4)}, {a((q * 16 + a2) * 4, 4)}, {v(d, 4) if a2 else (v(B4, 4) if OPT["bc"] and q == 0 else 0)}')
            for x in fill.get(4 * a2 + q, []):
                k4_emit(x)
        if chk:
            retry_until(*z_check(fi + 1), tested=True)
        if OPT['zs'] and fi == OPT['q4']:
            emit([s4_load])
        if OPT['zs'] and fi + ZD == 32:
            retry_until(s4_load, lambda: p(f'v_cmp_ne_u32 vcc, 32, {v(FL)}'))
        if fi + ZD < 112:
            zload(fi + ZD)
        elif len(tail) > 16 - OPT['ntail']:
            if len(tail) == 8:
                flag_check(0)
            emit([tail.pop(0)])
        if fi + ZD >= 112:
            wring_read(fi + ZD - 112, WR5, WD, LOC_WO, ROT)
        if fi == OPT['mf']:
            p.wait_vm('pub')
            flag_store(32)
        if OPT['fine'] == 3 and (a2 == 15 or fi == 0) and fi < 111:
            stamp(f'i{fi}')
        if fi == 56:
            p.wait_vm('pub')
            flag_store(96)
        if fi == 70:
            emit([flag_load(96)])
        if fi == 84:
            flag_check(96)
        if fi == OPT['f5a']:
            p.wait_vm('pub')
            flag_store(0)
        if fi == 64:
            code_prefetch(8, 'L_k5')
        if fi == 80:
            p('L_k5:')
        if fi == OPT['x1pos']:
            emit([x1l])
        if fi == OPT['l5a']:
            emit([flag_load(0)])
stamp('K4')


def chain(*fs):
    def run():
        for f in fs:
            f()
    return run


def line(x, tag=None):
    return lambda: p(x, tag=tag)


def flag_after(tag, off):
    p.wait_vm(tag)
    flag_store(off)


def next_m1():
    if_layer(0)
    m1_load(228)
    w_touch(WT[0], 152)
    p.end()


fill = {}


def put(pos, f):
    fill[pos] = chain(fill[pos], f) if pos in fill else f


st1, st2, st3 = k4_epilogue(6)
for k, x in enumerate(st1):
    put(OPT['k1'] + min(k, 3 + (k - 3) // 2), line(x, 'red' if k < 3 else None))
put(OPT['k2'], chain(lambda: p.wait_lgkm('red'), *[line(x) for x in st2[1:]]))
for k, x in enumerate(st3):
    put(OPT['k3'] + k // OPT['kst'], (lambda y: lambda: k4_emit(y))(x))
kend = OPT['k3'] + len(st3) // OPT['kst']
assert len(tail) < 8
for k, g in enumerate(tail):
    put(OPT['tp0'] + OPT['tps'] * k, (lambda y: lambda: emit([y]))(g))
if OPT['mf'] > 111:
    put(OPT['mf'] - 112, lambda: flag_after('pub', 32))
put(OPT['mb'], lambda: emit([flag_load(32)]))
put(OPT['mc'], lambda: (flag_check(32), fine('ck5m')))
for k in range(4):
    put(OPT['mc'] + OPT['ms'] * k, (lambda y: lambda: emit([y]))(ul[16 + k]))
for k in range(4):
    put(max(OPT['mc'] + 3 * OPT['ms'], kend) + max(2, OPT['ms']) * (k + 1), (lambda y: lambda: emit([y]))(ul[20 + k]))
put(OPT['fa'], lambda: (flag_after('u6', 64), fine('fl5b')))
put(OPT['fb'], lambda: emit([flag_load(64)]))
put(OPT['fc'], lambda: (flag_check(64), fine('ck5b'), emit(ul[24:])))
put(max(OPT['fc'] + 4, 64), next_m1)
gemm_r(XV, 4, 0, 28, ureg, WR5, WD, LOC_WO, first_c=True, fill=fill, preload=False, rot=ROT)


def x_pack():
    for k in range(8):
        p(f'v_cvt_pk_bf16_f32 {v(XP + k)}, {v(XV + 2 * k)}, {v(XV + 2 * k + 1)}')


stamp('K5')
if_layer(1)
x_pack()
for o in range(2):
    p(f'ds_write_b128 {v(OW)}, {v(XP + 4 * o, 4)} offset:{16 * o}')
for k in range(2):
    p(f'ds_read_b128 {v(X1R + 4 * k, 4)}, {v(OR)} offset:{1152 * k}')
for k in range(2):
    p(f'buffer_store_dwordx4 {v(X1R + 4 * k, 4)}, {v(OG)}, {s(R_OUT, 4)}, {s(sT + 14 + k)} offen sc1')
if PROF:
    p('s_waitcnt vmcnt(0)')
    stamp('end')
    p(f's_lshl_b32 {s(sT)}, s2, 2')
    p(f's_add_u32 {s(sT)}, {s(sT)}, {s(sW)}')
    p(f's_lshl_b32 {s(sT)}, {s(sT)}, 8')
    p(f's_add_u32 {s(sT)}, {s(sT)}, {PROFO:#x}')
    p(f'v_lshrrev_b32 {v(T)}, 2, {v(vL16)}')
    p(f'buffer_store_dword {v(vProf)}, {v(T)}, {s(R_WS, 4)}, {s(sT)} offen')
if OPT['diag']:
    p('s_waitcnt vmcnt(0)')
    stamp('end')
    p(f's_sub_u32 s101, s101, {s(sPidx)}')
    p('s_min_u32 s101, s101, 20000')
    p('s_mul_i32 s101, s101, 10')
    p('s_add_u32 s101, s101, 10000')
    p('L_spin:')
    p(f's_memrealtime {s(sStamp, 2)}')
    p('s_waitcnt lgkmcnt(0)')
    p(f's_sub_u32 {s(sStamp)}, {s(sStamp)}, {s(sPidx)}')
    p(f's_cmp_lt_u32 {s(sStamp)}, s101')
    p('s_cbranch_scc1 L_spin')
p('L_exit:')
p('s_endpgm')
p.end()
local_stats(XV, 16, T)
reduce_g(T, T + 1)
publish_stats(0x40000)
p('s_barrier')
if OPT['ctp'] == 0:
    ct_dma(228)
emit(wz2[:OPT['wzp0']])
x_pack()
p(f's_mov_b32 {s(sL)}, 1')
p(f's_mov_b32 {s(sLocH)}, {s(sLoc)}')
p(f's_mov_b32 {s(sLocU)}, 0')
if not OPT['reuse']:
    p(f's_add_u32 {s(R_WL)}, {s(R_WL)}, {LSTRIDE:#x}')
    p(f's_addc_u32 {s(R_WL + 1)}, {s(R_WL + 1)}, 0')
p(f's_mov_b32 {s(R_WL + 2)}, {LSTRIDE:#x}')
residual_from_ws()
p(f'v_mov_b32 {v(vHw)}, {v(vHw2)}')
p(f's_add_u32 {s(sSt)}, {s(sSt)}, 0x20000')
for r in (() if OPT['vs'] else (sArr, sRep)) + (sS2, sS4, sP4, sS5, sF2s, sF2l):
    p(f's_add_u32 {s(r)}, {s(r)}, 0x20000')
for o in range(2):
    p(f's_add_u32 {s(sT + 4 + o)}, {s(sT + 3)}, {H_ + 8192 * o:#x}')
emit([gather_loads(0x20000)])
gather_finish(0x20000)
gstore([f'buffer_store_dwordx4 {v(XP + 4 * o, 4)}, {v(vL16)}, {s(R_WL, 4)}, {s(sT + 4 + o)} offen' for o in range(2)], 'x2')
if OPT['ctp'] == 1:
    ct_dma(228)
emit(wz2[OPT['wzp0']:P1])
w_touch(WT[1], 152)
p('s_branch L_layer')

p.resolve([('pro', set()), ('body', {'L0'}), ('body', {'L1'})], ['W0', 'G0', 'LOC', 'RETRY'] + (['W1'] if OPT['tlb'] else []))

hdr = open('interleave_layers__spectral_fnet__mixer_gmlp__prompt.s.ref').read().split('\n')
out = [l for l in hdr if l.startswith(';') and '@launch' not in l][:14]
if PROF:
    k = STAMPS.index('T')
    out.append('; stamps: ' + ' '.join(STAMPS[:-1] + [x for x in STAMPS[k:] if x[0] != '*']))
out.append(f'; @launch grid=(256,1,1) block=(256,1,1) lds={LDS_BYTES}')
out += """;
; One persistent launch: 256 workgroups x 4 waves, one workgroup per CU, both layer pairs in a loop.
; Workgroup (c, b): row block c = rows s with s mod 32 == c (64 rows), column block b (112 of 896, 64 of 512).
; Per layer pair:
;   1. LayerNorm of the 64x64 tile, radix-64 stage of the sequence DFT              -> V   (all-to-all)
;   2. radix-32 stage, 32x16 hidden FFT (real part), residual, LayerNorm, 8 rows     -> h1  (row block)
;   3. z2 = gelu(h1 w_in), row statistics exchange, normalise; z1 stays in registers -> z2  (column block)
;   4. g = w_sp z2 + b_sp with the w_sp tile resident in AGPRs, u = z1 * g           -> u   (row block)
;   5. x2 = x1 + u w_out, row statistics exchange (or final store)
; The DFT factors are constants (table behind the code; per-workgroup factors from v_sin/v_cos).
; Hand-offs use write-through stores plus counters/flags cleared inside this launch, or slots pre-filled
; inside this launch with a not-ready pattern that the reader checks. Row-block hand-offs stay in L2 only
; after the eight workgroups have compared their XCC ids and found them equal; otherwise they write through.
; Every spin is bounded.""".split('\n')
out += ['.amdgcn_target "amdgcn-amd-amdhsa--gfx950"', '.text', f'.globl {NAME}', '.p2align 8', f'.type {NAME},@function']
out.append(p.text())
out.append('.p2align 8')
out.append('.type L_table,@object')
out.append('L_table:')
tab = const_table()
for i in range(0, tab.size, 8):
    out.append('.long ' + ','.join(f'{x:#x}' for x in tab[i:i + 8]))
out.append(f'.size L_table, {tab.size * 4}')
out.append('L_end:')
out += ['.section .rodata,"a"', '.p2align 6', f'.amdhsa_kernel {NAME}',
        '  .amdhsa_next_free_vgpr 512', '  .amdhsa_next_free_sgpr 102', '  .amdhsa_accum_offset 256',
        '  .amdhsa_group_segment_fixed_size 0', '  .amdhsa_kernarg_size 104', '  .amdhsa_user_sgpr_count 2',
        '  .amdhsa_user_sgpr_kernarg_segment_ptr 1', '  .amdhsa_system_sgpr_workgroup_id_x 1',
        '  .amdhsa_float_denorm_mode_32 3', '.end_amdhsa_kernel', '']
open(sys.argv[1], 'w').write('\n'.join(out))
print(p.stats(), file=sys.stderr)
```

```python
import sys
import struct
import numpy as np
from asmlib import Prog, v, a, s

NAME = 'interleave_layers__spectral_fnet__mixer_gmlp__prompt_kernel'
OPT = dict(prof=0, k4mfma=1, k4load=1, k4epi=1, zd=12, pre3=6, pre5=16, loc=1, locd=7, x1pos=58, lg=0, pg=0, sg=0, wspev=8, x1=2,
           g2ev=16, z1a=0, gpos=18, z1arr=6, wo4=16, ctp=2, wzp0=0, wzp1=0, wzp2=4, wzp3=8, reuse=0, tlb=0, e1=4, e2=16, e3=26, bc=1, zw=2, wx=0, fx=1, f5a=87, l5a=95, mb=8, mc=20, fa=46, fb=58, fc=70, hpf=0, osc=1, ip=0, wsc=1, jit=0, jl=30, jw=1, hx=0, pp=0, dp=0, el=0, kst=1, tp0=0, tps=1, ms=0, pr=1, gmap='/16//23//45/', ews=1, zx=1, rot=0, wt='/', stouch=0, stn=14, nowsp=0, late=0, min0=1, pre=1, we=2, hsp=4, algn=0, xe=4, gb=3, xa=8, to=2000000, wf2=1, cmn='044440', l0a=2, noe=0, pz=1, pv=4, vs=2, zp0=0, zin=1, zsp=3, zs=1, q4=8, upk=4, gsh=0, cpf=12, k1=3, k2=9, k3=15, mf=111, fixev=0, woa=8, wosp=4, g1w=1, l0n='0444466', ann=0, fix='6/7///', ntail=12, lnow=4, fine=0, sched='//d1/d2r0d3r1d4p0r2d5p1r3d6p2r4qd7p3/r5p4/a6p5/a7/', ctpos=0, pk=3, nomean=0,  z2sp=4, early=1, wfirst=0, nobg=0, few=0, diag='')
for arg in sys.argv[2:]:
    k, val = arg.split('=')
    OPT[k] = val if k in ('diag', 'sched', 'fix', 'l0n', 'cmn', 'wt', 'gmap') else int(val)
PROF = OPT['prof']
WSC = ' sc1' if OPT['wsc'] else ''
LG = (' sc1', '', ' nt', ' sc0')[OPT['lg']]
PG = (' sc1', '', ' nt')[OPT['pg']]
SG = ('', ' nt', ' sc0')[OPT['sg']]


WI, WO, FLAGS, STATS, X2, PROFO = 0, 0x200000, 0x300000, 0x340000, 0x400000, 0x600000
LBASE, LSTRIDE = 0x800000, 0x1000000
V_, H_, X1_, Z_, U_ = 0, 0x200000, 0x400000, 0x600000, 0xA00000
WB, CT, SCR, LDS_BYTES = 0, 114688, 114688 + 22528, 163840
CT_FA, CT_TW, CT_FB, CT_M1 = 0, 6144, 10240, 14336

R_X, R_WIN, R_WSP, R_WOUT, R_OUT, R_WS, R_DBG, R_BSP, R_WL = 4, 8, 12, 16, 20, 24, 28, 32, 36
sW, sC, sB, sL, sTO = 40, 41, 42, 43, 44
sVst, sVld, sH, sK2, sXo, sXb, sZst, sZld, sUst, sUld = 45, 46, 47, 48, 49, 50, 51, 52, 53, 54
sLoc, sSt, sWI, sWO, sWsp, sSelLo, sSelHi, sPidx, sOnes = 55, 56, 57, 58, 59, 60, 61, 62, 63
sArr, sRep, sS2, sS4, sS5, sB128, sDm, sDo = 64, 65, 66, 67, 68, 69, 70, 71
sF2s, sF2l = 86, 87
sB4, sP4, sG0, sLocH, sLocU = 3, 88, 75, 89, 100
sT = 72
sStamp = 90
vL16, vTw, vK2, vXr, vVld, vVst, vBsp, vZst = 0, 1, 2, 3, 4, 5, 6, 7
vC2 = 8
vHw, vHr, vUw, vUr, vStl, vL8, vTr, vPoll, vArr, vProf, vGK = 16, 17, 18, 19, 20, 21, 22, 23, 24, 25, 26
vRed = 28
T = 32
XV = 40
vZ = (23, 251)
M1 = 184


def f2u(x):
    return struct.unpack('<I', struct.pack('<f', x))[0]


def bf16(x):
    u = np.ascontiguousarray(x, dtype=np.float32).view(np.uint32)
    return ((u + 0x7FFF + ((u >> 16) & 1)) >> 16).astype(np.uint32)


def const_table():
    l = np.arange(64)[:, None]
    j = np.arange(8)[None, :]
    nn, h = l & 31, l >> 5
    e1 = 16 * ((nn >> 2) & 1) + 4 * (nn >> 3) + (nn & 3)
    frags = []

    def pack(x):
        x = np.where(np.abs(x) < 1e-12, 0.0, x)
        b = bf16(x)
        return (b[:, 0::2] | (b[:, 1::2] << 16)).astype(np.uint32)
    ang = [2 * np.pi * ((16 * dh + 8 * h + j) * e1 % 32) / 32 for dh in range(2)]
    frags += [pack(np.cos(ang[0])), pack(np.cos(ang[1])), pack(np.sin(ang[0])), pack(np.sin(ang[1])),
              pack(-np.sin(ang[0])), pack(-np.sin(ang[1]))]
    d2 = 8 * (j >> 2) + 4 * h + (j & 3)
    tw = 2 * np.pi * (d2 * e1) / 512
    tc = np.cos(tw).astype(np.float32).view(np.uint32)
    ts = np.sin(tw).astype(np.float32).view(np.uint32)
    frags += [tc[:, :4], tc[:, 4:], ts[:, :4], ts[:, 4:]]
    ps = 2 * np.pi * (d2 * (nn & 15) % 16) / 16
    for row in range(2):
        m = ((nn >> 4) == row)
        frags += [pack(np.cos(ps) * m), pack(np.sin(ps) * m)]
    n, g = l & 15, l >> 4
    for jq in range(4):
        for ks in range(2):
            rho = 32 * ks + 16 * (j >> 2) + 4 * g + (j & 3)
            s1 = 16 * (rho >> 4) + 2 * (rho & 7) + ((rho >> 3) & 1)
            jj = 8 * jq + (n >> 1)
            th = 2 * np.pi * (s1 * jj % 64) / 64
            x = np.where((n & 1) == 0, np.cos(th), np.where(jj == 0, (-1.0) ** s1, -np.sin(th)))
            frags.append(pack(x))
    tab = np.concatenate([np.ascontiguousarray(f).reshape(-1) for f in frags])
    assert tab.size == 22 * 256
    return tab


p = Prog()
M16 = 'v_mfma_f32_16x16x32_bf16'
M32 = 'v_mfma_f32_32x32x16_bf16'


STAMPS = []


def jitter():
    lab = p.label('jit')
    p('s_mul_i32 s101, s101, 0x41c64e6d')
    p('s_add_u32 s101, s101, 12345')
    p(f's_lshr_b32 {s(sStamp + 1)}, s101, {32 - OPT["jit"]}')
    p(f's_cmp_eq_u32 {s(sStamp + 1)}, 0')
    p(f's_cbranch_scc0 {lab}')
    p(f's_sleep {OPT["jl"]}')
    p(f'{lab}:')


def stamp(name):
    if OPT['jit'] and name != 'karg':
        jitter()
    if OPT['few'] and name in ('karg', 'start', 'setup', 'init', 'arr1', 'Vst', 'pub3', 'z1a', 'S3', 'Zst', 'arr4', 'win4') + (() if OPT['fine'] else ('Vld', 'K2', 'arr2', 'K5')):
        return
    STAMPS.append(name)
    if OPT['diag'] and OPT['diag'][:-1] == name:
        p(f's_memrealtime {s(sStamp, 2)}')
        p('s_waitcnt lgkmcnt(0)')
        p(f's_cmp_eq_u32 {s(sL)}, {OPT["diag"][-1]}')
        p(f's_cselect_b32 s101, {s(sStamp)}, s101')
    if PROF:
        p(f'{"s_memtime" if PROF == 2 else "s_memrealtime"} {s(sStamp, 2)}')
        p('s_waitcnt lgkmcnt(0)')
        p('s_mov_b32 s101, m0')
        p(f's_mov_b32 m0, {s(sPidx)}')
        p(f'v_writelane_b32 {v(vProf)}, {s(sStamp)}, m0')
        p('s_mov_b32 m0, s101')
        p(f's_add_u32 {s(sPidx)}, {s(sPidx)}, 1')


def fine(name):
    if OPT['fine'] == 1 or OPT['jit']:
        stamp(name)


def srd(r, lo, hi, size):
    p(f's_mov_b32 {s(r)}, {s(lo)}')
    p(f's_and_b32 {s(r + 1)}, {s(hi)}, 0xffff')
    p(f's_mov_b32 {s(r + 2)}, {size:#x}')
    p(f's_mov_b32 {s(r + 3)}, 0x20000')


def if_wave0():
    p(f's_cmp_eq_u32 {s(sW)}, 0')
    p.begin('W0', 's_cbranch_scc0')


def if_layer(l):
    p(f's_cmp_eq_u32 {s(sL)}, {l}')
    p.begin(f'L{l}', 's_cbranch_scc0')


def spin_tail(top, done):
    p(f's_cbranch_vccz {done}')
    p(f's_sub_u32 {s(sTO)}, {s(sTO)}, 1')
    p(f's_cbranch_scc0 {top}')
    p(f's_mov_b32 {s(sTO)}, 0')
    p(f'{done}:')


def arrive(soff, nrep):
    p('s_barrier')
    if_wave0()
    p(f'v_mov_b32 {v(T)}, 1')
    p(f's_mov_b64 exec, {(1 << nrep) - 1:#x}')
    p(f'buffer_atomic_add {v(T)}, {v(vArr)}, {s(R_WS, 4)}, {s(soff)} offen sc1')
    p('s_mov_b64 exec, -1')
    p.end()


def gstore(lines, tag=None, local=False, flag=None):
    if not OPT['loc'] or (tag and not local):
        for x in lines:
            p(x + ' sc1', tag=tag)
        return
    p(f's_cmp_eq_u32 {s(flag or sLoc)}, 0')
    p.begin_ool('!LOC', 's_cbranch_scc1')
    for x in lines:
        p(x + ' sc1', tag=tag)
    p.end_ool(('LOC', lambda: [p(x + SG, tag=tag) for x in lines]))


def arrive_group(soff, off=0):
    p('s_barrier')
    if_wave0()
    p(f'v_mov_b32 {v(T)}, 1')
    p(f's_add_u32 {s(99)}, {s(soff)}, {s(sB4)}')
    p('s_mov_b64 exec, 1')
    gstore([f'buffer_store_dword {v(T)}, off, {s(R_WS, 4)}, {s(99)} offset:{off}'])
    p('s_mov_b64 exec, -1')
    p.end()


def poll(soff, vaddr, need, tag=None):
    if_wave0()
    top, done = p.label('poll'), p.label('pdone')
    p(f'{top}:')
    if vaddr is not None:
        p(f'buffer_load_dword {v(T)}, {v(vaddr)}, {s(R_WS, 4)}, {s(soff)} offen' + (PG if vaddr == vGrp else ' sc1'))
    else:
        p(f'buffer_load_dword {v(T)}, off, {s(R_WS, 4)}, {s(soff)} sc1')
    p('s_waitcnt vmcnt(0)')
    p(f'v_cmp_ne_u32 vcc, {need}, {v(T)}')
    spin_tail(top, done)
    p.end()
    if tag:
        p.wait_vm(tag)
    p('s_barrier')


def reduce_g(x, y):
    p(f'v_permlane16_swap_b32 {v(x)}, {v(y)}')
    p(f'v_add_f32 {v(x)}, {v(x)}, {v(y)}')
    p(f'v_mov_b32 {v(y)}, {v(x)}')
    p(f'v_permlane32_swap_b32 {v(x)}, {v(y)}')
    p(f'v_add_f32 {v(x)}, {v(x)}, {v(y)}')
    p(f'v_mov_b32 {v(y)}, {v(x)}')
    p(f'v_permlane16_swap_b32 {v(x)}, {v(y)}')


def finish_stats(x, n):
    y, m = x + 1, x + 2
    p(f'v_mul_f32 {v(m)}, {f2u(1.0 / n):#x}, {v(x)}')
    p(f'v_mul_f32 {v(y)}, {f2u(1.0 / n):#x}, {v(y)}')
    p(f'v_fma_f32 {v(y)}, -{v(m)}, {v(m)}, {v(y)}')
    p(f'v_max_f32 {v(y)}, 0, {v(y)}')
    p(f'v_add_f32 {v(y)}, {f2u(1e-5):#x}, {v(y)}')
    p(f'v_rsq_f32 {v(x)}, {v(y)}')
    p(f'v_mul_f32 {v(y)}, -{v(m)}, {v(x)}')


def norm_pack(src, n, st, tmp, dst):
    for i in range(0, n, 2):
        p(f'v_pk_fma_f32 {v(tmp + i, 2)}, {v(src + i, 2)}, {v(st, 2)}, {v(st, 2)} op_sel:[0,0,1] op_sel_hi:[1,0,1]')
    for i in range(0, n, 2):
        p(f'v_cvt_pk_bf16_f32 {v(dst + i // 2)}, {v(tmp + i)}, {v(tmp + i + 1)}')


def local_stats(src, n, out):
    sa, sq = out + 2, out + 4
    p(f'v_pk_add_f32 {v(sa, 2)}, {v(src, 2)}, {v(src + 2, 2)}')
    p(f'v_pk_mul_f32 {v(sq, 2)}, {v(src, 2)}, {v(src, 2)}')
    p(f'v_pk_fma_f32 {v(sq, 2)}, {v(src + 2, 2)}, {v(src + 2, 2)}, {v(sq, 2)}')
    for i in range(4, n, 2):
        p(f'v_pk_add_f32 {v(sa, 2)}, {v(sa, 2)}, {v(src + i, 2)}')
        p(f'v_pk_fma_f32 {v(sq, 2)}, {v(src + i, 2)}, {v(src + i, 2)}, {v(sq, 2)}')
    p(f'v_add_f32 {v(out)}, {v(sa)}, {v(sa + 1)}')
    p(f'v_add_f32 {v(out + 1)}, {v(sq)}, {v(sq + 1)}')


def unpack(src, n, dst):
    for i in range(n):
        p(f'v_lshlrev_b32 {v(dst + 2 * i)}, 16, {v(src + i)}')
        p(f'v_and_b32 {v(dst + 2 * i + 1)}, 0xffff0000, {v(src + i)}')


def publish_stats(area):
    p(f's_add_u32 {s(sT)}, {s(sSt)}, {s(sB128)}')
    if area:
        p(f's_add_u32 {s(sT)}, {s(sT)}, {area:#x}')
    p('s_mov_b64 exec, 0xffff')
    gstore([f'buffer_store_dwordx2 {v(T, 2)}, {v(vStl)}, {s(R_WS, 4)}, {s(sT)} offen'])
    p('s_mov_b64 exec, -1')


def gather_loads(area):
    return [(f's_add_u32 {s(99)}, {s(sSt)}, {area:#x}', None),
            (f'buffer_load_dwordx2 {v(T + 4, 2)}, {v(vStl)}, {s(R_WS, 4)}, {s(99)} offen{PG}', None),
            (f'buffer_load_dwordx2 {v(T + 6, 2)}, {v(vStl)}, {s(R_WS, 4)}, {s(99)} offen offset:128{PG}', None)]


def retry_until(loads, test, tested=False, after=None):
    if not tested:
        test()
    p.begin_ool('RETRY', 's_cbranch_vccnz')
    top, done = p.label('rt'), p.label('rdone')
    p(f'{top}:')
    emit([loads])
    p('s_waitcnt vmcnt(0)')
    test()
    spin_tail(top, done)
    if after:
        emit([after])
    p.end_ool()


def gather_finish(area):
    def test():
        p(f'v_add_f32 {v(T)}, {v(T + 4)}, {v(T + 6)}')
        p(f'v_add_f32 {v(T + 1)}, {v(T + 5)}, {v(T + 7)}')
        p(f'v_cmp_u_f32 vcc, {v(T)}, {v(T + 1)}')
    retry_until(gather_loads(area), test)
    reduce_g(T, T + 1)


LOC_Z2 = lambda i: 1024 * i
LOC_Z1 = lambda i: 1024 * (i - 48) if i >= 48 else CT + 1024 * i
LOC_WO = lambda i: 1024 * (i - 48) if i >= 48 else 65536 + 1024 * i


def w_dma_ops(sbase, extra, loc, name):
    ops = []
    for j in range(7):
        for i in range(4):
            o = []
            swap = OPT['wx'] & {'wz2': 1, 'wz1': 2, 'wo': 4}[name]
            if swap:
                o.append((f's_add_u32 m0, {s(94 + (i & 1))}, {loc(16 * j):#x}', None))
            elif i == 0:
                o.append((f's_add_u32 m0, {s(sDm)}, {loc(16 * j):#x}', None))
            if i == 0:
                o.append((f's_add_u32 {s(sDo)}, {s(sbase)}, {extra + 16384 * j:#x}', None))
            if swap:
                o.append((f'buffer_load_dwordx4 {v(vZ[i & 1])}, {s(R_WS, 4)}, {s(sDo)} offen offset:{(i & 2) * 1024}{WSC} lds', f'{name}{j}'))
                ops.append(o)
                continue
            if OPT['nobg'] & 1:
                o.append(('s_nop 0', None))
            else:
                o.append((f'buffer_load_dwordx4 {v(vL16)}, {s(R_WS, 4)}, {s(sDo)} offen offset:{i * 1024}{WSC} lds', f'{name}{j}'))
            ops.append(o)
    return ops


def emit(groups):
    for g in groups:
        for text, tag in g:
            p(text, tag=tag)


def wsp_dma_ops(batch):
    q, ih = batch >> 1, batch & 1
    ops = []
    for il in range(4):
        for rh in range(2):
            if batch < 2:
                imm, so = 128 * il, 80 + batch
                o = [(f's_add_u32 m0, {s(78 + batch)}, {1024 + 2048 * il + 1024 * rh - imm}', None)]
            else:
                imm, so = 512 * ih + 128 * il, sDo
                o = [(f's_add_u32 m0, {s(sWsp)}, {1024 + 8192 * (batch % 3) + 2048 * il + 1024 * rh - imm}', None)]
                if not ops:
                    o += [(f's_add_u32 {s(sDo)}, {s(sW)}, {q}', None), (f's_and_b32 {s(sDo)}, {s(sDo)}, 3', None),
                          (f's_lshl_b32 {s(sDo)}, {s(sDo)}, 21', None)]
            o.append((f'buffer_load_dwordx4 {v(vWspA + rh)}, {s(R_WSP, 4)}, {s(so)} offen offset:{imm} lds', f'wsp{max(batch, 1)}'))
            ops.append(o)
    return ops


def table_addr(dst, soff):
    p(f'v_add_u32 {v(dst)}, {s(soff)}, {v(vL16)}')
    p(f'v_mov_b32 {v(dst + 1)}, {s(93)}')
    p(f'v_add_co_u32 {v(dst)}, vcc, {s(92)}, {v(dst)}')
    p(f'v_addc_co_u32 {v(dst + 1)}, vcc, 0, {v(dst + 1)}, vcc')


def code_prefetch(bit, lo):
    if not OPT['cpf'] & bit:
        return
    if_layer(0)
    p(f's_lshr_b32 {s(99)}, s2, 3')
    p(f's_lshl_b32 {s(99)}, {s(99)}, 2')
    p(f's_add_u32 {s(99)}, {s(99)}, {s(sW)}')
    p(f's_lshl_b32 {s(99)}, {s(99)}, 7')
    p(f's_sub_u32 {s(98)}, {s(92)}, L_table-{lo}')
    p(f's_subb_u32 {s(97)}, {s(93)}, 0')
    p(f's_add_u32 {s(98)}, {s(98)}, {s(99)}')
    p(f's_addc_u32 {s(97)}, {s(97)}, 0')
    p(f'v_mov_b32 {v(T + 6)}, {s(98)}')
    p(f'v_mov_b32 {v(T + 7)}, {s(97)}')
    p('s_mov_b64 exec, 1')
    p(f'global_load_dword {v(T + 6)}, {v(T + 6, 2)}, off')
    p('s_mov_b64 exec, -1')
    p.end()


def poison(site, reg):
    todo = [(sZst, vZst, 0)] if OPT['zs'] and OPT['pz'] == site else []
    todo += [(sVst, vVst, 0), (sVst, vVst, 0x10000)] if OPT['vs'] and OPT['pv'] == site else []
    if not todo:
        return
    if_layer(0)
    for k in range(4):
        p(f'v_mov_b32 {v(reg + k)}, -1')
    for base, va, off in todo:
        p(f's_add_u32 {s(99)}, {s(base)}, {LSTRIDE + off:#x}')
        p(f'buffer_store_dwordx4 {v(reg, 4)}, {v(va)}, {s(R_WL, 4)}, {s(99)} offen sc1', tag='pub' if site == 3 else None)
    p.end()


def w_touch(spec, dst):
    if not spec:
        return
    base, extra = ((sWI, 114688), (sWI, 0), (sWO, 0))[int(spec[0])]
    p(f's_lshr_b32 {s(98)}, s2, 6')
    p(f's_lshl_b32 {s(98)}, {s(98)}, 10')
    p(f's_add_u32 {s(98)}, {s(98)}, {s(base)}')
    for ch in spec[1:]:
        p(f's_add_u32 {s(99)}, {s(98)}, {extra + 16384 * int(ch):#x}')
        p(f'buffer_load_dwordx4 {v(dst, 4)}, {v(vL16)}, {s(R_WS, 4)}, {s(99)} offen')
        p.cur[-1].defs = set()


def m1_load(dst):
    p(f's_lshl_b32 {s(99)}, {s(sW)}, 11')
    p(f's_add_u32 {s(99)}, {s(99)}, {CT_M1}')
    table_addr(dst, 99)
    for k in range(2):
        p(f'global_load_dwordx4 {v(M1 + 4 * k, 4)}, {v(dst, 2)}, off offset:{1024 * k}')


def ct_dma(dst):
    p(f's_mul_i32 {s(99)}, {s(sW)}, 3584')
    p(f's_add_u32 m0, {s(99)}, {CT}')
    table_addr(dst, 99)
    for off in (0, 1024, 2048):
        p(f'global_load_lds_dwordx4 {v(dst, 2)}, off offset:{off}', tag='ct')
    p('s_mov_b32 exec_hi, 0')
    p(f'global_load_lds_dwordx4 {v(dst, 2)}, off offset:3072', tag='ct')
    p('s_mov_b64 exec, -1')


def wsp_dma(batch):
    p.bg = wsp_dma_ops(batch)
    p.bg_emit()


def wsp_read(batch, reg):
    p.wait_vm(f'wsp{max(batch, 1)}')
    for il in range(4):
        for o in range(2):
            p(f'ds_read_b128 {v(reg + 4 * (2 * il + o), 4)}, {v(vWspR + o)} offset:{8192 * (batch % 3) + 2048 * il}', tag=f'wr{batch}')


def wsp_park(batch):
    q, ih = batch >> 1, batch & 1
    p.wait_vm(f'wsp{max(batch, 1)}')
    for il in range(4):
        for o in range(2):
            p(f'ds_read_b128 {a(64 * q + 32 * o + 4 * (4 * ih + il), 4)}, {v(vWspR + o)} offset:{8192 * (batch % 3) + 2048 * il}', tag=f'wr{batch}')


def wsp_fix(units, reg, first=()):
    if not units and not first:
        return
    if_layer(0)
    emit(first)
    for u in units:
        base = 32 * int(u)
        for k in range(32):
            p(f'v_accvgpr_read_b32 {v(reg + k)}, {a(base + k)}')
        k = 0
        for ip in range(4):
            for al in range(8):
                t = reg + 32 + (k & 3)
                k += 1
                lo, hi = reg + 8 * ip + (al >> 1), reg + 8 * ip + 4 + (al >> 1)
                p(f'v_perm_b32 {v(t)}, {v(hi)}, {v(lo)}, {s(sSelHi if al & 1 else sSelLo)}')
                p(f'v_accvgpr_write_b32 {a(base + 4 * al + ip)}, {v(t)}')
    p.end()


def wsp_perm(batch, reg):
    q, ih = batch >> 1, batch & 1
    k = 0
    for ipl in range(2):
        for o in range(2):
            for al in range(8):
                t = T + (k & 7)
                k += 1
                lo, hi = reg + 4 * (4 * ipl + o) + (al >> 1), reg + 4 * (4 * ipl + 2 + o) + (al >> 1)
                p(f'v_perm_b32 {v(t)}, {v(hi)}, {v(lo)}, {s(sSelHi if al & 1 else sSelLo)}')
                p(f'v_accvgpr_write_b32 {a((q * 16 + 8 * o + al) * 4 + 2 * ih + ipl)}, {v(t)}')


def wring_read(idx, ring, depth, loc, rot=0):
    base, off = (vL16, vL16hi, vL16h2)[loc(idx) >> 16], loc(idx) & 0xffff
    p(f'ds_read_b128 {v(ring + 4 * ((idx + rot) % depth), 4)}, {v(base)} offset:{off}', tag=f'w{idx}')


def gemm_r(acc, nt, ks0, ks1, act, ring, depth, loc, first_c=None, fill=None, preload=True, last=None, rot=0):
    fill = dict(fill or {})
    if OPT['nobg'] & 2 and loc is LOC_Z1:
        raise SystemExit('nobg&2 unsupported')
    lo, hi = nt * ks0, nt * ks1
    if preload:
        for idx in range(lo, min(lo + depth, last or hi)):
            wring_read(idx, ring, depth, loc)
    for idx in range(lo, hi):
        ks, t = divmod(idx, nt)
        if (idx - lo) % OPT['we'] == 0:
            p.wait_lgkm(f'w{min(idx + OPT["we"] - 1, hi - 1)}')
        c = v(acc + 4 * t, 4) if (ks or first_c) else '0'
        p(f'{M16} {v(acc + 4 * t, 4)}, {v(ring + 4 * ((idx + rot) % depth), 4)}, {v(act(ks) if callable(act) else act + 4 * ks, 4)}, {c}')
        if idx + depth < (last or hi):
            wring_read(idx + depth, ring, depth, loc, rot)
        f = fill.pop(idx, None)
        if callable(f):
            f()
        elif f:
            emit([f])
    assert not fill


def spread(groups, first, step):
    return {first + step * k: g for k, g in enumerate(groups)}


def gelu(x, n, tmp):
    for i in range(0, n, 4):
        t = tmp + (i & 4)
        for k in (0, 2):
            p(f'v_pk_mul_f32 {v(t + k, 2)}, {v(x + i + k, 2)}, {v(x + i + k, 2)}')
        for k in (0, 2):
            p(f'v_pk_fma_f32 {v(t + k, 2)}, {v(t + k, 2)}, {v(vGK, 2)}, {v(vGK, 2)} op_sel:[0,0,1] op_sel_hi:[1,0,1]')
        for k in (0, 2):
            p(f'v_pk_mul_f32 {v(t + k, 2)}, {v(t + k, 2)}, {v(x + i + k, 2)}')
        for k in range(4):
            p(f'v_exp_f32 {v(t + k)}, {v(t + k)}')
        for k in (0, 2):
            p(f'v_pk_add_f32 {v(t + k, 2)}, {v(t + k, 2)}, 1.0 op_sel_hi:[1,0]')
        for k in range(4):
            p(f'v_rcp_f32 {v(t + k)}, {v(t + k)}')
        for k in (0, 2):
            p(f'v_pk_mul_f32 {v(x + i + k, 2)}, {v(t + k, 2)}, {v(x + i + k, 2)}')


vWspA, vWspR = 244, 236
vHw2, vXw, vGrp = 250, 246, 254
vL16hi, vL16h2 = 252, 255
p.section('pro')
p(f'{NAME}:')
p(f's_cmp_ge_u32 s2, 256')
p('s_cbranch_scc1 L_exit')
SRDS = ((R_X, 0, 2097152), (R_WS, 96, LBASE), (R_WIN, 48, 512 * 3584), (R_WOUT, 72, 896 * 1024), (R_WSP, 56, 2048 * 4096),
        (R_BSP, 64, 4096), (R_WL, 96, 2 * LSTRIDE), (R_DBG, 88, 256), (R_OUT, 80, 2097152))
for r, off, size in SRDS[:6]:
    p(f's_load_dwordx2 {s(r, 2)}, s[0:1], {off}')
if OPT['diag'] or OPT['jit']:
    p(f's_memrealtime {s(sStamp, 2)}')
if PROF:
    p(f'{"s_memtime" if PROF == 2 else "s_memrealtime"} {s(sStamp, 2)}')
p(f's_getpc_b64 {s(92, 2)}')
p('L_pc:')
lane, n_, g_, t0, t1, t2, t3, tid = 100, 101, 102, 103, 104, 105, 106, 107
p(f'v_mov_b32 {v(tid)}, v0')
p(f's_lshr_b32 {s(94)}, s2, 3')
p(f's_lshl_b32 {s(94)}, {s(94)}, 4')
p(f'v_lshrrev_b32 {v(T)}, 4, v0')
p(f'v_add_u32 {v(T)}, {s(94)}, {v(T)}')
p(f'v_lshlrev_b32 {v(T)}, 7, {v(T)}')
p(f'v_min_u32 {v(T)}, L_end-L_pc-4, {v(T)}')
p(f'v_mov_b32 {v(T + 3)}, {s(93)}')
p(f'v_add_co_u32 {v(T + 2)}, vcc, {s(92)}, {v(T)}')
p(f'v_addc_co_u32 {v(T + 3)}, vcc, 0, {v(T + 3)}, vcc')
p(f'global_load_dword {v(253)}, {v(T + 2, 2)}, off')
p(f'v_lshrrev_b32 {v(t0)}, 6, v0')
p(f'v_and_b32 {v(lane)}, 63, v0')
p(f'v_readfirstlane_b32 {s(sW)}, {v(t0)}')
p(f's_lshr_b32 {s(94)}, s2, 3')
p(f's_and_b32 {s(sB)}, {s(94)}, 7')
p(f's_and_b32 {s(95)}, s2, 7')
p(f's_lshl_b32 {s(95)}, {s(95)}, 1')
p(f's_lshr_b32 {s(96)}, {s(94)}, 4')
p(f's_add_u32 {s(95)}, {s(95)}, {s(96)}')
p(f's_sub_u32 {s(96)}, 32, {s(95)}')
p(f's_cmp_eq_u32 {s(95)}, 0')
p(f's_cselect_b32 {s(96)}, 16, {s(96)}')
p(f's_bitcmp1_b32 {s(94)}, 3')
p(f's_cselect_b32 {s(sC)}, {s(96)}, {s(95)}')
p(f's_lshl_b32 {s(sB128)}, {s(sB)}, 7')
p(f's_lshl_b32 {s(94)}, {s(sW)}, 9')
p(f's_add_u32 {s(94)}, {s(94)}, {s(sC)}')
p(f'v_and_b32 {v(t0)}, 28, {v(lane)}')
p(f'v_lshlrev_b32 {v(t0)}, 4, {v(t0)}')
p(f'v_and_b32 {v(t1)}, 32, {v(lane)}')
p(f'v_add3_u32 {v(t0)}, {v(t0)}, {v(t1)}, {s(94)}')
p(f'v_lshlrev_b32 {v(t2)}, 10, {v(t0)}')
p(f'v_and_b32 {v(t1)}, 3, {v(lane)}')
p(f'v_lshl_add_u32 {v(t0)}, {v(t1)}, 5, {v(t2)}')
p(f'v_lshl_add_u32 {v(t2)}, {v(t1)}, 4, {v(t2)}')
XR = 120


def x_loads(i0, i1):
    for i in range(i0, i1):
        if i == 0:
            p(f'buffer_load_dwordx4 {v(XR, 4)}, {v(t0)}, {s(R_X, 4)}, {s(sB128)} offen')
            p(f'buffer_load_dwordx4 {v(XR + 4, 4)}, {v(t0)}, {s(R_X, 4)}, {s(sB128)} offen offset:16')
            continue
        p(f's_add_u32 {s(99)}, {s(sB128)}, {128 * i}')
        p(f's_and_b32 {s(99)}, {s(99)}, 0x3ff')
        p(f'buffer_load_dwordx4 {v(XR + 8 * i, 4)}, {v(t2)}, {s(R_X, 4)}, {s(99)} offen')
        p(f'buffer_load_dwordx4 {v(XR + 8 * i + 4, 4)}, {v(t2)}, {s(R_X, 4)}, {s(99)} offen offset:64')


def first_loads():
    p('s_waitcnt lgkmcnt(0)')
    if OPT['diag']:
        p(f's_mov_b32 {s(sPidx)}, {s(sStamp)}')
        p(f's_mov_b32 s101, {s(sStamp)}')
    if PROF:
        p(f'v_mov_b32 {v(vProf)}, 0')
        p(f'v_writelane_b32 {v(vProf)}, {s(sStamp)}, 0')
        p(f's_mov_b32 {s(sPidx)}, 1')
        STAMPS.append('entry')
    if OPT['jit']:
        p(f's_mul_i32 s101, s2, 0x9e3779b1')
        if OPT['jw']:
            p(f's_mul_i32 {s(99)}, {s(sW)}, 0x85ebca6b')
            p(f's_add_u32 s101, s101, {s(99)}')
            p(f's_xor_b32 s101, s101, {s(sStamp)}')
        else:
            p(f's_lshr_b32 {s(99)}, {s(sStamp)}, 12')
            p(f's_xor_b32 s101, s101, {s(99)}')
    stamp('karg')
    x_loads(0, OPT['x1'])


p(f's_mov_b32 {s(R_X + 2)}, {SRDS[0][2]:#x}')
p(f's_mov_b32 {s(R_X + 3)}, 0x20000')
p(f's_mov_b32 {s(sL)}, 0')
if OPT['min0']:
    first_loads()
p(f'v_and_b32 {v(n_)}, 15, {v(lane)}')
p(f'v_lshrrev_b32 {v(g_)}, 4, {v(lane)}')
p(f'v_lshlrev_b32 {v(vL16)}, 4, {v(lane)}')
for r, off, size in SRDS[1:]:
    p(f's_mov_b32 {s(r + 2)}, {size:#x}')
    p(f's_mov_b32 {s(r + 3)}, 0x20000')
p(f's_mov_b32 {s(sTO)}, {OPT["to"]}')
p(f's_lshl_b32 {s(sB4)}, {s(sB)}, 2')
p(f's_getreg_b32 {s(sLoc)}, hwreg(HW_REG_XCC_ID)')
p(f's_mov_b32 {s(sOnes)}, 0x3f803f80')
p(f's_mov_b32 {s(sSelLo)}, 0x05040100')
p(f's_mov_b32 {s(sSelHi)}, 0x07060302')
if OPT['zx']:
    p(f's_bitcmp1_b32 s2, {5 + OPT["zx"]}')
    p(f's_cselect_b32 {s(96)}, 0x02020202, 0')
    p(f's_xor_b32 {s(sSelLo)}, {s(sSelLo)}, {s(96)}')
    p(f's_xor_b32 {s(sSelHi)}, {s(sSelHi)}, {s(96)}')
p(f'v_and_b32 {v(t3)}, 7, {v(n_)}')
p(f'v_lshlrev_b32 {v(t3)}, 6, {v(t3)}')
p(f'v_and_b32 {v(t1)}, 8, {v(n_)}')
p(f'v_lshlrev_b32 {v(t1)}, 2, {v(t1)}')
p(f'v_add3_u32 {v(t3)}, {v(t3)}, {v(t1)}, {s(94)}')
p(f'v_lshlrev_b32 {v(t3)}, 1, {v(t3)}')
p(f's_lshl_b32 {s(96)}, {s(sC)}, 2')
p(f's_add_u32 {s(96)}, {s(96)}, {s(sW)}')
p(f's_lshl_b32 {s(sSt)}, {s(96)}, 10')
p(f's_add_u32 {s(sSt)}, {s(sSt)}, {STATS:#x}')
p(f's_lshl_b32 {s(96)}, {s(sC)}, 10')
p(f's_add_u32 {s(sS2)}, {s(96)}, {FLAGS + 0x10000:#x}')
p(f's_lshl_b32 {s(96)}, {s(sW)}, 7')
p(f's_add_u32 {s(96)}, {s(96)}, 256')
p(f's_add_u32 {s(sS5)}, {s(96)}, {s(sS2)}')
p(f'v_lshlrev_b32 {v(vStl)}, 3, {v(n_)}')
p(f'v_lshl_add_u32 {v(vStl)}, {v(g_)}, 8, {v(vStl)}')
p(f's_lshl_b32 {s(96)}, {s(sB)}, 2')
p(f's_add_u32 {s(96)}, {s(96)}, {s(sW)}')
p(f's_mul_i32 {s(sZld)}, {s(96)}, 114688')
p(f's_add_u32 {s(sZld)}, {s(sZld)}, {Z_:#x}')
p(f's_and_b32 {s(96)}, {s(sC)}, 7')
p(f's_lshl_b32 {s(96)}, {s(96)}, 10')
p(f's_lshr_b32 {s(97)}, {s(sC)}, 3')
p(f's_lshl_b32 {s(97)}, {s(97)}, 8')
p(f's_add_u32 {s(96)}, {s(96)}, {s(97)}')
p(f's_add_u32 {s(sZst)}, {s(sZld)}, {s(96)}')
p(f'v_and_b32 {v(T)}, 1, {v(g_)}')
p(f'v_lshlrev_b32 {v(T)}, 14, {v(T)}')
p(f'v_and_b32 {v(T + 1)}, 2, {v(g_)}')
p(f'v_lshl_add_u32 {v(T)}, {v(T + 1)}, 12, {v(T)}')
p(f'v_lshl_add_u32 {v(vZst)}, {v(n_)}, 4, {v(T)}')
EI = 64
for k in range(4):
    p(f'v_mov_b32 {v(116 + k)}, -1')
p(f'v_mov_b32 {v(EI)}, -1')
p(f'v_mov_b32 {v(EI + 1)}, -1')
p(f'v_mov_b32 {v(EI + 2)}, {s(sLoc)}')
p(f'v_mov_b32 {v(EI + 3)}, 0')
p(f'v_and_b32 {v(EI + 4)}, 16, {v(vL16)}')
p(f'v_lshlrev_b32 {v(EI + 4)}, 13, {v(EI + 4)}')
p(f'v_and_b32 {v(EI + 5)}, 0x60, {v(vL16)}')
p(f'v_or_b32 {v(EI + 4)}, {v(EI + 4)}, {v(EI + 5)}')
def first_requests():
    if not OPT['min0']:
        first_loads()
    for r, off, size in SRDS[7:]:
        p(f's_load_dwordx2 {s(r, 2)}, s[0:1], {off}')
    p(f's_lshl_b32 {s(96)}, s2, 2')
    p(f's_add_u32 {s(sG0)}, {s(96)}, {s(sW)}')
    p(f's_cmp_eq_u32 {s(sG0)}, 3')
    p.begin('G0', 's_cbranch_scc0')
    p(f'v_lshlrev_b32 {v(EI + 6)}, 4, {v(vL16)}')
    for k in range(2):
        p(f's_mov_b32 {s(99)}, {FLAGS + 0x4000 * k:#x}')
        p(f'buffer_store_dword {v(EI + 3)}, {v(EI + 6)}, {s(R_WS, 4)}, {s(99)} offen sc1', tag='z')
    if OPT['dp']:
        p(f'v_lshlrev_b32 {v(EI + 7)}, 5, {v(vL16)}')
        p(f's_mov_b32 {s(99)}, {FLAGS + 0x8100:#x}')
        p(f'buffer_store_dword {v(EI + 3)}, {v(EI + 7)}, {s(R_WS, 4)}, {s(99)} offen sc1', tag='z')
    p.end()
    p(f's_and_b32 {s(96)}, {s(sB)}, 3')
    p(f's_lshl_b32 {s(96)}, {s(96)}, 3')
    p(f's_and_b32 {s(97)}, {s(sB)}, 4')
    p(f's_add_u32 {s(96)}, {s(96)}, {s(97)}')
    p(f's_add_u32 {s(96)}, {s(96)}, {s(sW)}')
    p(f's_lshl_b32 {s(96)}, {s(96)}, 2')
    p(f's_add_u32 {s(97)}, {s(sS2)}, 768')
    p(f's_add_u32 {s(sF2s)}, {s(96)}, {s(97)}')
    p(f's_lshl_b32 {s(96)}, {s(sW)}, 5')
    p(f's_add_u32 {s(sF2l)}, {s(96)}, {s(97)}')
    if OPT['wf2']:
        p('s_mov_b64 exec, 3')
        p(f'buffer_store_dword {v(EI + 3)}, {v(EI + 4)}, {s(R_WS, 4)}, {s(sF2s)} offen sc1', tag='pub')
    p('s_mov_b64 exec, 0xffff')
    for k in range(0 if OPT['noe'] & 1 else 3):
        p(f's_add_u32 {s(96)}, {s(sSt)}, {s(sB128)}')
        p(f's_add_u32 {s(96)}, {s(96)}, {k * 0x20000:#x}')
        p(f'buffer_store_dwordx2 {v(EI, 2)}, {v(vStl)}, {s(R_WS, 4)}, {s(96)} offen sc1', tag='pub')
    p('s_mov_b64 exec, 0xff')
    p(f's_add_u32 {s(97)}, {s(sS5)}, {s(sB4)}')
    if not OPT['noe'] & 2:
        p(f'buffer_store_dword {v(EI + 3)}, {v(EI + 4)}, {s(R_WS, 4)}, {s(97)} offen sc1', tag='pub')
    if_wave0()
    p('s_mov_b64 exec, 1')
    p(f's_add_u32 {s(96)}, {s(sS2)}, {s(sB4)}')
    p(f'buffer_store_dword {v(EI + 2)}, off, {s(R_WS, 4)}, {s(96)} offset:128 sc1', tag='pub')
    p('s_mov_b64 exec, 15')
    if not OPT['noe'] & 2:
        p(f'buffer_store_dword {v(EI + 3)}, {v(EI + 4)}, {s(R_WS, 4)}, {s(96)} offen sc1', tag='pub')
    p(f's_lshl_b32 {s(96)}, s2, 8')
    p(f's_add_u32 {s(96)}, {s(96)}, {FLAGS:#x}')
    p(f's_and_b32 {s(97)}, s2, 0x81')
    p(f's_cmp_eq_u32 {s(97)}, 0x80')
    p('s_cselect_b32 exec_lo, 3, 2')
    p(f'buffer_store_dword {v(EI + 3)}, {v(EI + 4)}, {s(R_WS, 4)}, {s(96)} offen sc1', tag='pub')
    p.end()
    p('s_mov_b64 exec, -1')
    p(f's_add_u32 {s(R_WL)}, {s(R_WS)}, {LBASE:#x}')
    p(f's_addc_u32 {s(R_WL + 1)}, {s(R_WS + 1)}, 0')
    p('s_waitcnt lgkmcnt(0)')
    if OPT['tlb']:
        p(f's_cmp_eq_u32 {s(sW)}, 1')
        p.begin('W1', 's_cbranch_scc0')
        p(f'v_lshlrev_b32 {v(EI + 6)}, 21, {v(n_)}')
        p('s_mov_b64 exec, 0xffff')
        if OPT['tlb'] & 1:
            p(f'buffer_load_dword {v(240)}, {v(EI + 6)}, {s(R_WL, 4)}, 0 offen sc1')
            p(f'buffer_load_dword {v(239)}, {v(EI + 6)}, {s(R_WS, 4)}, 0 offen sc1')
        if OPT['tlb'] & 2:
            p(f'buffer_load_dword {v(238)}, {v(EI + 6)}, {s(R_WSP, 4)}, 0 offen')
            p(f'buffer_load_dword {v(223)}, off, {s(R_DBG, 4)}, 0 offset:128 sc1')
        if OPT['tlb'] & 4:
            p(f'buffer_load_dword {v(222)}, off, {s(R_OUT, 4)}, 0 sc1')
        p('s_mov_b64 exec, -1')
        p.end()
    scalar_touch(0)
    stamp('start')


def scalar_touch(k):
    if OPT['stouch'] <= k:
        return
    if k == 0:
        p(f's_add_u32 {s(96)}, {s(sW)}, {s(sB)}')
        p(f's_and_b32 {s(96)}, {s(96)}, 3')
        p(f's_lshl_b32 {s(96)}, {s(96)}, 10')
        p(f's_and_b32 {s(97)}, {s(sB128)}, 512')
        p(f's_add_u32 {s(96)}, {s(96)}, {s(97)}')
        p(f's_lshl_b32 {s(97)}, {s(sC)}, 12')
        p(f's_add_u32 {s(96)}, {s(96)}, {s(97)}')
        p(f's_lshl_b32 {s(97)}, {s(sW)}, 21')
        p(f's_add_u32 {s(96)}, {s(96)}, {s(97)}')
        p(f's_add_u32 {s(96)}, {s(96)}, 0x100000')
        p(f's_add_u32 s0, {s(R_WSP)}, {s(96)}')
        p(f's_addc_u32 s1, {s(R_WSP + 1)}, 0')
    else:
        p('s_waitcnt lgkmcnt(0)')
    for i in range(OPT['stn'] * k, OPT['stn'] * (k + 1)):
        p(f's_load_dword s91, s[0:1], {131072 * (i >> 2) + 128 * (i & 3) - 0x100000}')
        p.cur[-1].defs = set()


def early_requests():
    global prep, wsp_first
    if OPT['early'] & 1:
        emit(prep)
        prep = []
    emit(wsp_first[:OPT['early'] >> 1])
    wsp_first = wsp_first[OPT['early'] >> 1:]


def hook(k):
    if OPT['pre'] == k:
        first_requests()
    if max(OPT['pre'], 2) == k:
        early_requests()


hook(1)
vPi, vPo, vPri, vPro, PK = 112, 114, 242, 243, 224
PST = SCR + 12288
p(f's_add_u32 {s(92)}, {s(92)}, L_table-L_pc')
p(f's_addc_u32 {s(93)}, {s(93)}, 0')
for k in range(2):
    p(f'v_add_u32 {v(T)}, {256 * k}, {v(tid)}')
    p(f'v_mul_u32_u24 {v(T + 1)}, 4682, {v(T)}')
    p(f'v_lshrrev_b32 {v(T + 1)}, 16, {v(T + 1)}')
    p(f'v_mul_u32_u24 {v(T + 2)}, 14, {v(T + 1)}')
    p(f'v_sub_u32 {v(T)}, {v(T)}, {v(T + 2)}')
    p(f'v_and_b32 {v(T + 2)}, 0x38, {v(T + 1)}')
    p(f'v_add_u32 {v(T + 1)}, {v(T + 1)}, {v(T + 2)}')
    p(f'v_mul_u32_u24 {v(T + 1)}, 3584, {v(T + 1)}')
    p(f'v_lshl_add_u32 {v(vPi + k)}, {v(T)}, 4, {v(T + 1)}')
p(f's_and_b32 {s(94)}, {s(sC)}, 7')
p(f's_lshl_b32 {s(94)}, {s(94)}, 6')
p(f's_and_b32 {s(95)}, {s(sC)}, 8')
p(f's_add_u32 {s(94)}, {s(94)}, {s(95)}')
p(f's_mul_i32 {s(94)}, {s(94)}, 3584')
p(f's_lshr_b32 {s(95)}, {s(sC)}, 4')
p(f's_mul_i32 {s(95)}, {s(95)}, 1792')
p(f's_add_u32 {s(94)}, {s(94)}, {s(95)}')
p(f's_mul_i32 {s(95)}, {s(sB)}, 224')
p(f's_add_u32 {s(76)}, {s(94)}, {s(95)}')
p(f'v_lshrrev_b32 {v(T)}, 3, {v(lane)}')
p(f'v_and_b32 {v(T + 1)}, 0x70, {v(vL16)}')
p(f'v_lshl_add_u32 {v(vPo)}, {v(T)}, 10, {v(T + 1)}')
p(f's_and_b32 {s(94)}, {s(sC)}, 7')
p(f's_mul_i32 {s(94)}, {s(94)}, 112')
p(f's_lshr_b32 {s(95)}, {s(sC)}, 3')
p(f's_lshl_b32 {s(95)}, {s(95)}, 5')
p(f's_add_u32 {s(94)}, {s(94)}, {s(95)}')
p(f's_sub_u32 {s(95)}, {s(sC)}, 24')
p(f's_mul_i32 {s(95)}, {s(95)}, 224')
p(f's_add_u32 {s(95)}, {s(95)}, 96')
p(f's_cmp_lt_u32 {s(sC)}, 24')
p(f's_cselect_b32 {s(94)}, {s(94)}, {s(95)}')
p(f's_cselect_b32 {s(95)}, 16, 112')
p(f's_lshr_b32 {s(96)}, {s(sW)}, 1')
p(f's_mul_i32 {s(95)}, {s(95)}, {s(96)}')
p(f's_add_u32 {s(94)}, {s(94)}, {s(95)}')
p(f's_and_b32 {s(95)}, {s(sW)}, 1')
p(f's_lshl_b32 {s(95)}, {s(95)}, 3')
p(f's_add_u32 {s(94)}, {s(94)}, {s(95)}')
p(f's_lshl_b32 {s(94)}, {s(94)}, 10')
p(f's_add_u32 {s(77)}, {s(94)}, {s(sB128)}')
p(f'v_lshrrev_b32 {v(T)}, 2, {v(n_)}')
p(f'v_lshl_add_u32 {v(T)}, {v(g_)}, 3, {v(T)}')
p(f'v_mul_u32_u24 {v(T)}, 224, {v(T)}')
p(f'v_and_b32 {v(T + 1)}, 3, {v(lane)}')
p(f'v_lshl_add_u32 {v(T)}, {v(T + 1)}, 3, {v(T)}')
p(f's_lshl_b32 {s(94)}, {s(sW)}, 5')
p(f's_add_u32 {s(94)}, {s(94)}, {PST}')
p(f'v_add_u32 {v(vPri)}, {s(94)}, {v(T)}')
p(f's_lshl_b32 {s(94)}, {s(sW)}, 3')
p(f's_add_u32 {s(94)}, {s(94)}, {PST + 8192}')
p(f'v_lshl_add_u32 {v(vPro)}, {v(lane)}, 5, {s(94)}')
p(f'v_lshrrev_b32 {v(T)}, 3, {v(lane)}')
p(f'v_lshlrev_b32 {v(T)}, 18, {v(T)}')
p(f'v_and_b32 {v(T + 1)}, 7, {v(lane)}')
p(f'v_xor_b32 {v(T + 1)}, {v(T + 1)}, {v(g_)}')
p(f'v_lshl_add_u32 {v(T)}, {v(T + 1)}, 4, {v(T)}')
p(f's_lshl_b32 {s(94)}, {s(sC)}, 12')
p(f's_add_u32 {s(100)}, {s(sW)}, {s(sB)}')
if OPT['rot']:
    p(f's_lshr_b32 {s(95)}, s2, 6')
    p(f's_mul_i32 {s(95)}, {s(95)}, {OPT["rot"]}')
    p(f's_add_u32 {s(100)}, {s(100)}, {s(95)}')
p(f's_and_b32 {s(100)}, {s(100)}, 3')
p(f's_lshl_b32 {s(95)}, {s(100)}, 10')
p(f's_add_u32 {s(94)}, {s(94)}, {s(95)}')
p(f'v_add_u32 {v(vWspA)}, {s(94)}, {v(T)}')
p(f'v_xor_b32 {v(T)}, 64, {v(vWspA)}')
p(f'v_add_u32 {v(vWspA + 1)}, 0x20000, {v(T)}')
p(f's_mul_i32 {s(sWsp)}, {s(sW)}, 24576')
p(f'v_lshrrev_b32 {v(T)}, 1, {v(n_)}')
p(f'v_xor_b32 {v(T)}, {v(T)}, {v(g_)}')
p(f'v_lshlrev_b32 {v(T)}, 4, {v(T)}')
p(f'v_lshl_add_u32 {v(T)}, {v(n_)}, 7, {v(T)}')
p(f's_add_u32 {s(94)}, {s(sWsp)}, 1024')
p(f'v_add_u32 {v(vWspR)}, {s(94)}, {v(T)}')
p(f'v_xor_b32 {v(vWspR + 1)}, 64, {v(vWspR)}')
p(f's_lshr_b32 {s(94)}, {s(sB)}, 2')
p(f's_lshl_b32 {s(95)}, {s(sW)}, 21')
for k in range(2):
    p(f's_lshl_b32 {s(96)}, {s(94)}, 13')
    p(f's_add_u32 {s(78 + k)}, {s(96)}, {s(sWsp)}')
    p(f's_lshl_b32 {s(96)}, {s(94)}, 9')
    p(f's_add_u32 {s(80 + k)}, {s(96)}, {s(95)}')
    p(f's_xor_b32 {s(94)}, {s(94)}, 1')
p(f's_lshl_b32 {s(82)}, {s(sW)}, 10')
prep = [[(f's_add_u32 m0, {s(82)}, {PST}', None), (f'buffer_load_dwordx4 {v(vPi)}, {s(R_WIN, 4)}, {s(76)} offen lds', 'prep')],
        [(f's_add_u32 m0, {s(82)}, {PST + 4096}', None), (f'buffer_load_dwordx4 {v(vPi + 1)}, {s(R_WIN, 4)}, {s(76)} offen lds', 'prep')],
        [(f's_add_u32 m0, {s(82)}, {PST + 8192}', None), (f'buffer_load_dwordx4 {v(vPo)}, {s(R_WOUT, 4)}, {s(77)} offen lds', 'prep')],
        [(f'buffer_load_ushort {v(vBsp)}, {v(t3)}, {s(R_BSP, 4)}, 0 offen', None)]]
wsp_first = wsp_dma_ops(0) if OPT['nowsp'] < 2 else []
hook(2)
p(f's_mul_i32 {s(94)}, {s(sB)}, 229376')
p(f's_mul_i32 {s(95)}, {s(sC)}, 7168')
p(f's_add_u32 {s(94)}, {s(94)}, {s(95)}')
p(f's_lshl_b32 {s(95)}, {s(sW)}, 10')
p(f's_add_u32 {s(94)}, {s(94)}, {s(95)}')
p(f's_mov_b32 {s(83)}, {s(94)}')
p(f's_add_u32 {s(94)}, {s(94)}, 4096')
p(f's_cmp_lt_u32 {s(sW)}, 3')
p(f's_cselect_b32 {s(94)}, {s(94)}, {LBASE:#x}')
p(f's_mov_b32 {s(84)}, {s(94)}')
p(f's_mul_i32 {s(94)}, {s(sB)}, 114688')
p(f's_lshl_b32 {s(96)}, {s(sC)}, 12')
p(f's_add_u32 {s(94)}, {s(94)}, {s(96)}')
p(f's_add_u32 {s(94)}, {s(94)}, {s(95)}')
p(f's_add_u32 {s(94)}, {s(94)}, {WO:#x}')
p(f's_cmp_lt_u32 {s(sC)}, 28')
p(f's_cselect_b32 {s(94)}, {s(94)}, {LBASE:#x}')
p(f's_mov_b32 {s(85)}, {s(94)}')
p(f's_lshl_b32 {s(sVst)}, {s(sC)}, 11')
p(f's_lshl_b32 {s(96)}, {s(sB)}, 8')
p(f's_add_u32 {s(sVst)}, {s(sVst)}, {s(96)}')
p(f'v_lshlrev_b32 {v(T + 3)}, 17, {v(g_)}')
p(f'v_lshl_add_u32 {v(T + 3)}, {v(n_)}, 4, {v(T + 3)}')
p(f's_lshl_b32 {s(96)}, {s(sW)}, 19')
p(f'v_add_u32 {v(vVst)}, {s(96)}, {v(T + 3)}')
p(f'v_mul_u32_u24 {v(T + 3)}, 160, {v(n_)}')
p(f'v_lshl_add_u32 {v(T + 3)}, {v(g_)}, 3, {v(T + 3)}')
p(f's_mul_i32 {s(96)}, {s(sW)}, 2560')
p(f's_add_u32 {s(96)}, {s(96)}, {SCR}')
p(f'v_add_u32 {v(vHw2)}, {s(96)}, {v(T + 3)}')
p(f'v_lshrrev_b32 {v(T + 3)}, 2, {v(lane)}')
p(f'v_mul_u32_u24 {v(T + 3)}, 160, {v(T + 3)}')
p(f'v_and_b32 {v(T + 2)}, 3, {v(lane)}')
p(f'v_lshl_add_u32 {v(T + 3)}, {v(T + 2)}, 3, {v(T + 3)}')
p(f'v_add_u32 {v(vHw)}, {s(96)}, {v(T + 3)}')
p(f'v_add_u32 {v(vHr)}, {SCR}, {v(T + 3)}')


def setup_a():
    p(f's_lshr_b32 {s(94)}, {s(sB)}, 2')
    p(f's_and_b32 {s(95)}, {s(sB)}, 3')
    p(f's_sub_u32 {s(96)}, 32, {s(sC)}')
    p(f's_and_b32 {s(96)}, {s(96)}, 31')
    p(f's_cmp_eq_u32 {s(94)}, 0')
    p(f's_cselect_b32 {s(96)}, {s(sC)}, {s(96)}')
    p(f's_lshl_b32 {s(sVld)}, {s(96)}, 16')
    p(f's_lshl_b32 {s(sH)}, {s(sC)}, 16')
    p(f's_lshl_b32 {s(96)}, {s(95)}, 14')
    p(f's_lshl_b32 {s(97)}, {s(94)}, 7')
    p(f's_add_u32 {s(96)}, {s(96)}, {s(97)}')
    p(f's_add_u32 {s(sK2)}, {s(sH)}, {s(96)}')
    p(f's_lshl_b32 {s(96)}, {s(sW)}, 14')
    p(f's_add_u32 {s(sH)}, {s(sH)}, {s(96)}')
    p(f's_mov_b32 {s(sXb)}, 0')
    p(f's_mov_b32 {s(sXo)}, 0x10000')
    p(f's_lshl_b32 {s(96)}, {s(sB)}, 2')
    p(f's_add_u32 {s(96)}, {s(96)}, {s(100)}')
    p(f's_mul_i32 {s(sZld)}, {s(96)}, 114688')
    p(f's_add_u32 {s(sZld)}, {s(sZld)}, {Z_:#x}')
    p(f's_lshl_b32 {s(96)}, {s(sC)}, 2')
    p(f's_add_u32 {s(96)}, {s(96)}, {s(sW)}')
    p(f's_lshl_b32 {s(sUld)}, {s(96)}, 14')
    p(f's_add_u32 {s(sUld)}, {s(sUld)}, {H_ if OPT["locd"] & 4 else U_:#x}')
    p(f's_lshl_b32 {s(97)}, {s(sB)}, 10')
    p(f's_add_u32 {s(sUst)}, {s(sUld)}, {s(97)}')
    p(f's_lshl_b32 {s(sDm)}, {s(sW)}, 12')
    p(f's_mul_i32 {s(sWI)}, {s(sB)}, 229376')
    p(f's_add_u32 {s(sWI)}, {s(sWI)}, {s(sDm)}')
    p(f's_mul_i32 {s(sWO)}, {s(sB)}, 114688')
    p(f's_add_u32 {s(sWO)}, {s(sWO)}, {s(sDm)}')
    p(f's_add_u32 {s(sWO)}, {s(sWO)}, {WO:#x}')
    p(f's_and_b32 {s(96)}, s2, 15')
    p(f's_lshl_b32 {s(96)}, {s(96)}, 8')
    p(f's_add_u32 {s(sArr)}, {s(96)}, {FLAGS:#x}')
    p(f's_and_b32 {s(96)}, s2, 7')
    p(f's_lshl_b32 {s(96)}, {s(96)}, 12')
    p(f's_add_u32 {s(sRep)}, {s(96)}, {FLAGS:#x}')
    p(f's_lshl_b32 {s(97)}, {s(sB)}, 9')
    p(f's_add_u32 {s(97)}, {s(97)}, {FLAGS + 0x8000:#x}')
    p(f's_add_u32 {s(sP4)}, {s(96)}, {s(97)}')
    p(f's_mov_b32 {s(sS4)}, {s(97)}')
    p(f's_mov_b32 {s(sLocH)}, 0')
    p(f'v_lshlrev_b32 {v(vL8)}, 3, {v(lane)}')
    p(f'v_add_u32 {v(vL16hi)}, 0x10000, {v(vL16)}')
    p(f'v_add_u32 {v(vL16h2)}, 0x20000, {v(vL16)}')
    p(f'v_lshlrev_b32 {v(vPoll)}, 8, {v(n_)}')
    p(f'v_and_b32 {v(vArr)}, 7, {v(lane)}')
    p(f'v_lshlrev_b32 {v(vGrp)}, 2, {v(vArr)}')
    p(f'v_lshlrev_b32 {v(vArr)}, 12, {v(vArr)}')
    p(f'v_mov_b32 {v(vGK)}, {f2u(-2.302208198144325 * 0.044715):#x}')
    p(f'v_mov_b32 {v(vGK + 1)}, {f2u(-2.302208198144325):#x}')
    p(f'v_lshrrev_b32 {v(T)}, 3, {v(lane)}')
    p(f'v_and_b32 {v(T + 4)}, 7, {v(lane)}')
    p(f'v_lshlrev_b32 {v(T + 4)}, 4, {v(T + 4)}')
    p(f'v_lshl_add_u32 {v(T + 2)}, {v(T)}, 8, {v(T + 4)}')
    p(f's_lshl_b32 {s(96)}, {s(sW)}, 12')
    p(f'v_add_u32 {v(vK2)}, {s(96)}, {v(T + 2)}')
    p(f'v_and_b32 {v(T)}, 1, {v(T)}')
    p(f'v_lshl_add_u32 {v(T)}, {v(T)}, 4, {v(g_)}')
    p(f'v_mul_u32_u24 {v(T)}, 144, {v(T)}')
    p(f's_lshr_b32 {s(96)}, {s(sW)}, 1')
    p(f's_mul_i32 {s(96)}, {s(96)}, 4608')
    p(f's_and_b32 {s(97)}, {s(sW)}, 1')
    p(f's_mul_i32 {s(97)}, {s(97)}, 1152')
    p(f's_add_u32 {s(96)}, {s(96)}, {s(97)}')
    p(f's_add_u32 {s(96)}, {s(96)}, {SCR}')
    p(f'v_add3_u32 {v(vTr)}, {v(T)}, {v(T + 4)}, {s(96)}')
    p(f'v_lshrrev_b32 {v(T)}, 5, {v(lane)}')
    p(f'v_and_b32 {v(T + 1)}, 1, {v(g_)}')
    p(f'v_lshl_add_u32 {v(T + 2)}, {v(T)}, 4, {v(n_)}')
    p(f'v_mul_u32_u24 {v(T + 2)}, 144, {v(T + 2)}')
    p(f'v_lshl_add_u32 {v(T + 2)}, {v(T + 1)}, 4, {v(T + 2)}')
    p(f's_lshl_b32 {s(96)}, {s(sW)}, 5')
    p(f's_add_u32 {s(97)}, {s(96)}, {SCR}')
    p(f'v_add_u32 {v(vTw)}, {s(97)}, {v(T + 2)}')
    p(f'v_and_b32 {v(T + 2)}, 1, {v(lane)}')
    p(f'v_lshlrev_b32 {v(T + 2)}, 5, {v(T + 2)}')
    p(f'v_and_b32 {v(T + 3)}, 2, {v(lane)}')
    p(f'v_lshl_add_u32 {v(T + 2)}, {v(T + 3)}, 3, {v(T + 2)}')
    p(f'v_lshrrev_b32 {v(T + 3)}, 2, {v(lane)}')
    p(f'v_add_u32 {v(T + 2)}, {v(T + 2)}, {v(T + 3)}')
    p(f'v_mul_u32_u24 {v(T + 2)}, 144, {v(T + 2)}')
    p(f'v_add_u32 {v(vXw)}, {s(97)}, {v(T + 2)}')
    p(f'v_add_u32 {v(vXw + 1)}, 16, {v(vXw)}')
    p(f's_lshl_b32 {s(96)}, {s(95)}, 4')
    p(f's_add_u32 {s(96)}, {s(96)}, {s(94)}')
    p(f's_lshl_b32 {s(96)}, {s(96)}, 5')
    p(f's_add_u32 {s(98)}, {s(96)}, {s(sC)}')
    p(f's_lshl_b32 {s(96)}, {s(sW)}, 7')
    p(f's_add_u32 {s(96)}, {s(96)}, {s(98)}')
    p(f's_lshl_b32 {s(96)}, {s(96)}, 10')
    p(f'v_add_u32 {v(vXr)}, {s(96)}, {v(vL16)}')
    p(f'v_mul_u32_u24 {v(T + 3)}, 1040, {v(T + 1)}')
    p(f'v_lshl_add_u32 {v(T + 3)}, {v(T)}, 8, {v(T + 3)}')
    p(f'v_lshl_add_u32 {v(T + 3)}, {v(n_)}, 3, {v(T + 3)}')
    p(f's_mul_i32 {s(96)}, {s(sW)}, 2080')
    p(f's_add_u32 {s(96)}, {s(96)}, {SCR}')
    p(f'v_add_u32 {v(vUr)}, {s(96)}, {v(T + 3)}')
    p(f'v_mul_u32_u24 {v(T + 3)}, 1040, {v(n_)}')
    p(f'v_lshl_add_u32 {v(T + 3)}, {v(g_)}, 5, {v(T + 3)}')
    p(f's_lshl_b32 {s(96)}, {s(sW)}, 8')
    p(f's_add_u32 {s(96)}, {s(96)}, {SCR}')
    p(f'v_add_u32 {v(vUw)}, {s(96)}, {v(T + 3)}')
    p(f'v_lshlrev_b32 {v(T + 3)}, 13, {v(g_)}')
    p(f'v_lshl_add_u32 {v(T + 3)}, {v(n_)}, 4, {v(T + 3)}')
    p(f's_lshl_b32 {s(96)}, {s(sW)}, 9')
    p(f'v_add_u32 {v(vVld)}, {s(96)}, {v(T + 3)}')
    for q in range(1, 5):
        p(f's_add_u32 {s(96)}, {s(sW)}, {q}')
        p(f's_and_b32 {s(96)}, {s(96)}, 3')
        p(f's_mul_i32 {s(96)}, {s(96)}, 3072')
        p(f's_add_u32 {s(96)}, {s(96)}, {(CT if OPT["pr"] else SCR) + (1024 * (q - 1) if q < 4 else 0)}')
        p(f'v_add_u32 {v(vRed + q - 1)}, {s(96)}, {v(vL16)}')


def setup_b():
    p(f'v_and_b32 {v(T)}, 7, {v(n_)}')
    p(f'v_lshlrev_b32 {v(T)}, 6, {v(T)}')
    p(f'v_add_u32 {v(T)}, {s(98)}, {v(T)}')
    p(f'v_lshlrev_b32 {v(T + 1)}, 2, {v(g_)}')
    p(f'v_mul_u32_u24 {v(T + 1)}, {v(T + 1)}, {v(T)}')
    p(f'v_lshrrev_b32 {v(T + 2)}, 3, {v(n_)}')
    p(f'v_lshl_add_u32 {v(T + 1)}, {v(T + 2)}, 9, {v(T + 1)}')
    p(f's_cmp_eq_u32 {s(94)}, 0')
    p(f's_cselect_b32 {s(73)}, 1.0, -1.0')
    p(f's_cselect_b32 {s(74)}, 0, 1.0')
    p(f's_cselect_b32 {s(72)}, 1.0, 0')
    p(f's_cmp_eq_u32 {s(sC)}, 0')
    p(f's_cselect_b32 {s(72)}, {s(72)}, 1.0')
    p(f's_cselect_b32 {s(73)}, 0, {s(73)}')
    p(f's_cselect_b32 {s(74)}, {s(74)}, 0')
    for k in range(8):
        cp = 16 * (k >> 2) + (k & 3)
        p(f'v_mad_u32_u24 {v(T + 2)}, {v(T)}, {cp}, {v(T + 1)}')
        p(f'v_and_b32 {v(T + 2)}, 0x7ff, {v(T + 2)}')
        p(f'v_cvt_f32_u32 {v(T + 2)}, {v(T + 2)}')
        p(f'v_mul_f32 {v(T + 2)}, {f2u(1.0 / 2048):#x}, {v(T + 2)}')
        p(f'v_cos_f32 {v(T + 3)}, {v(T + 2)}')
        p(f'v_sin_f32 {v(T + 4)}, {v(T + 2)}')
        p(f'v_mul_f32 {v(T + 5)}, {s(74)}, {v(T + 3)}')
        p(f'v_mul_f32 {v(T + 3)}, {s(72)}, {v(T + 3)}')
        p(f'v_fma_f32 {v(T + 4)}, {s(73)}, {v(T + 4)}, {v(T + 5)}')
        p(f'v_cvt_pk_bf16_f32 {v(vC2 + k)}, {v(T + 3)}, {v(T + 4)}')


def late_setup():
    global lane, n_, g_
    lane, n_, g_ = 120, 121, 122
    if OPT['late']:
        p(f'v_lshrrev_b32 {v(lane)}, 4, {v(vL16)}')
        p(f'v_and_b32 {v(n_)}, 15, {v(lane)}')
        p(f'v_lshrrev_b32 {v(g_)}, 4, {v(lane)}')
    if OPT['late'] == 2:
        setup_a()
    if OPT['late']:
        setup_b()


assert OPT['pre'] <= 2
if OPT['late'] < 2:
    setup_a()
scalar_touch(1)
if OPT['late'] < 1:
    setup_b()
scalar_touch(2)
stamp('setup')
if OPT['wfirst'] == 1:
    emit(wsp_first)
    wsp_first = []
for i in range(OPT['x1'], OPT['xa']):
    if OPT['wfirst'] == 2 and wsp_first:
        emit([wsp_first.pop(0)])
    x_loads(i, i + 1)
if OPT['xa'] == 8:
    m1_load(108)
if OPT['ctpos'] == 0:
    ct_dma(110)
SCHED = OPT['sched'].split('/')
WT = OPT['wt'].split('/')
FIX = OPT['fix'].split('/')
WSR = (160, 192)
a2a_load = [(f'buffer_load_dword {v(241)}, {v(vPoll)}, {s(R_WS, 4)}, {s(sRep)} offen sc1', None)]


def wsp_run(items):
    i = 0
    while i < len(items):
        if items[i] == 's':
            if OPT['dp'] == 1:
                for k in range(4):
                    p(f'v_mov_b32 {v(116 + k)}, -1')
            emit([[(x, 'pub2') for x, _ in g] for g in prep_stores + ([zpois] if OPT['dp'] == 1 else [])])
            i += 1
            continue
        if items[i] == 'A':
            p.wait_vm('pub2')
            p(f's_add_u32 {s(98)}, {s(sS4)}, 256')
            arrive(98, 8)
            i += 1
            continue
        if items[i] == 'q':
            if_wave0()
            emit([a2a_load])
            p.end()
            i += 1
            continue
        k = int(items[i + 1])
        if items[i] == 'd':
            p.wait_lgkm(f'wr{k - 3}')
            wsp_dma(k)
        elif items[i] == 'r':
            wsp_read(k, WSR[k & 1])
        elif items[i] == 'a':
            wsp_park(k)
        else:
            wsp_perm(k, WSR[k & 1])
        if OPT['fine'] == 2 or OPT['jit']:
            stamp('*' + items[i:i + 2])
        i += 2


zpois = [(f'buffer_store_dwordx4 {v(116, 4)}, {v(vZst)}, {s(R_WL, 4)}, {s(sZst)} offen sc1', 'pub')]


def prep_reads():
    for k in range(2):
        for half in range(2):
            p(f'ds_read_b64_tr_b16 {v(PK + 4 * k + 2 * half, 2)}, {v(vPri)} offset:{128 * k + 896 * half}')
    for half in range(2):
        p(f'ds_read_b64_tr_b16 {v(PK + 8 + 2 * half, 2)}, {v(vPro)} offset:{2048 * half}')


prep_stores = [[(f'buffer_store_dwordx4 {v(PK + 4 * k, 4)}, {v(vL16)}, {s(R_WS, 4)}, {s(83 + k)} offen sc1', 'pub')] for k in range(3)]
bg = prep + wsp_first
if OPT['pp']:
    assert not prep
    p.wait_vm('prep')
    p('s_barrier')
    prep_reads()
    bg = prep_stores + bg if OPT['pp'] == 1 else bg[:OPT['pp']] + prep_stores + bg[OPT['pp']:]
if OPT['zs'] and OPT['dp'] != 1:
    bg = [zpois] + bg if OPT['zp0'] == 0 else bg + [zpois]
for ch in SCHED[0]:
    bg += wsp_dma_ops(int(ch))
for k in range(4):
    p(f'v_mov_b32 {v(T + 2 + k)}, 0')
p.bg = bg
xnext = OPT['xa']
if xnext == 8:
    p.bg_on(OPT['wspev'])
for i in range(64):
    if xnext < 8 and i % OPT['xe'] == OPT['xe'] - 1:
        x_loads(xnext, xnext + 1)
        xnext += 1
        if xnext == 8:
            m1_load(108)
            p.bg_on(OPT['wspev'])
    p(f'v_dot2c_f32_bf16 {v(T + 2 + (i & 1))}, {s(sOnes)}, {v(XR + i)}')
    p(f'v_dot2c_f32_bf16 {v(T + 4 + (i & 1))}, {v(XR + i)}, {v(XR + i)}')
    if i == 7:
        unpack(XR, 8, XV)
        if OPT['hx']:
            p(f'v_lshlrev_b32 {v(208)}, 4, {v(n_)}')
            p(f'v_lshl_add_u32 {v(208)}, {v(g_)}, 2, {v(208)}')
            for k in range(8):
                p(f'ds_bpermute_b32 {v(200 + k)}, {v(208)}, {v(XR + k)}')
    if i == OPT['ann']:
        p.bg_on(0)
        p(f's_cmp_eq_u32 {s(sG0)}, 3')
        p.begin('G0', 's_cbranch_scc0')
        p.wait_vm('z')
        p(f'v_mov_b32 {v(EI)}, 1')
        p('s_mov_b64 exec, 1')
        p(f'buffer_store_dword {v(EI)}, off, {s(R_DBG, 4)}, 0 sc1')
        p('s_mov_b64 exec, -1')
        p.end()
        p.bg_on(OPT['wspev'] if xnext == 8 else 0)
p.bg_on(0)
p.bg_emit()
p(f'v_add_f32 {v(T)}, {v(T + 2)}, {v(T + 3)}')
p(f'v_add_f32 {v(T + 1)}, {v(T + 4)}, {v(T + 5)}')
for qp in ('[1,0,3,2]', '[2,3,0,1]'):
    for k in range(2):
        p(f'v_add_f32_dpp {v(T + k)}, {v(T + k)}, {v(T + k)} quad_perm:{qp} row_mask:0xf bank_mask:0xf')
p('s_waitcnt lgkmcnt(0)')
p('s_mov_b32 s0, s86')
p('s_mov_b32 s1, s87')
sF2s, sF2l = 0, 1
dbg_load = [(f'buffer_load_dword {v(241)}, off, {s(R_DBG, 4)}, 0 sc1', None)]
assert not SCHED[1]
wsp_run(SCHED[1])


def x_copy():
    p(f's_lshl_b32 {s(98)}, {s(sB)}, 10')
    p(f's_add_u32 {s(98)}, {s(98)}, {s(sH)}')
    for o in range(2):
        p(f's_add_u32 {s(99)}, {s(98)}, {H_ + 8192 * o:#x}')
        p(f'buffer_store_dwordx4 {v(200 + 4 * o, 4)}, {v(vL16)}, {s(R_WL, 4)}, {s(99)} offen sc1', tag='pub')


def residual_from_ws():
    p(f's_mov_b32 {s(R_X)}, {s(R_WL)}')
    p(f's_mov_b32 {s(R_X + 1)}, {s(R_WL + 1)}')
    p(f's_mov_b32 {s(R_X + 2)}, {LSTRIDE:#x}')
    p(f's_add_u32 {s(sXb)}, {s(sK2)}, {H_:#x}')
    p(f's_add_u32 {s(sXo)}, {s(sXb)}, 2048')
    p(f'v_mov_b32 {v(vXr)}, {v(vK2)}')
    p(f'v_mov_b32 {v(vXw)}, {v(vTr)}')
    p(f'v_add_u32 {v(vXw + 1)}, 576, {v(vTr)}')


if OPT['hx'] == 2:
    x_copy()
p.section('body')
for _ in range(OPT['algn']):
    p('s_nop 0')
p('L_layer:')
stamp('T')
HP, AF, D1, VO = 56, 72, 104, 56
finish_stats(T, 512)
for i in range(0, 16, 2):
    p(f'v_pk_fma_f32 {v(XV + i, 2)}, {v(XV + i, 2)}, {v(T, 2)}, {v(T, 2)} op_sel:[0,0,1] op_sel_hi:[1,0,1]')
for t in range(4):
    for k in range(2):
        p(f'v_cvt_pk_bf16_f32 {v(HP + 2 * t + k)}, {v(XV + 8 * k + t)}, {v(XV + 8 * k + 4 + t)}')
    p(f'ds_write_b64 {v(vHw)}, {v(HP + 2 * t, 2)} offset:{32 * t}', tag='hw')
p(f's_add_u32 {s(sT + 1)}, {s(sVst)}, 0x10000')
p.wait_lgkm('hw')
p.wait_vm('prep')
p('s_barrier')
for ks in range(2):
    for tile in range(4):
        for half in range(2):
            p(f'ds_read_b64_tr_b16 {v(AF + 16 * ks + 4 * tile + 2 * half, 2)}, {v(vHr)} offset:{(32 * ks + 16 * half) * 160 + 32 * tile}')
if not OPT['pp']:
    if_layer(0)
    prep_reads()
    p.end()
for ks in range(2):
    for tile in range(4):
        d = D1 + 4 * tile
        p(f'{M16} {v(d, 4)}, {v(M1 + 4 * ks, 4)}, {v(AF + 16 * ks + 4 * tile, 4)}, {v(d, 4) if ks else 0}')
if_layer(0)
p(f'v_lshlrev_b32 {v(vBsp)}, 16, {v(vBsp)}')
if OPT['hx'] == 1:
    x_copy()
if not OPT['pp'] and not OPT['dp']:
    emit(prep_stores)
p.end()
for jj in range(2):
    for t in range(4):
        p(f'v_cvt_pk_bf16_f32 {v(VO + 4 * jj + t)}, {v(D1 + 4 * t + 2 * jj)}, {v(D1 + 4 * t + 2 * jj + 1)}')
    p(f'buffer_store_dwordx4 {v(VO + 4 * jj, 4)}, {v(vVst)}, {s(R_WL, 4)}, {s(sT + 1 if jj else sVst)} offen sc1', tag='pub')
stamp('Vst')
if OPT['ctpos'] == 1:
    ct_dma(T + 6)
if_layer(0)
if_wave0()
emit([dbg_load])
p.end()
wsp_run(SCHED[2])
late_setup()
if OPT['hx'] == 3:
    x_copy()
if OPT['hx']:
    residual_from_ws()
if_wave0()
retry_until(dbg_load, lambda: p(f'v_cmp_ne_u32 vcc, 1, {v(241)}'))
p.end()
p.end()
wz2 = w_dma_ops(sWI, 114688, LOC_Z2, 'wz2')
CMN = [int(ch, 36) for ch in OPT['cmn']]
assert sum(CMN) % 4 == 0 and sum(CMN) + OPT['wzp1'] + OPT['wzp2'] + OPT['wzp3'] == 28
wz2_both, wz2 = wz2[:sum(CMN)], wz2[sum(CMN):]
P1, P2, P3 = OPT['wzp1'], OPT['wzp1'] + OPT['wzp2'], OPT['wzp1'] + OPT['wzp2'] + OPT['wzp3']
assert P1 % 4 == 0 and OPT['wzp0'] % 4 == 0
if (OPT['ctp'] == 2 and OPT['ctpos'] == 0) or P2 > P1:
    if_layer(1)
    if OPT['ctp'] == 2 and OPT['ctpos'] == 0:
        ct_dma(T + 6)
    emit(wz2[P1:P2])
    p.end()
stamp('init')
if OPT['vs']:
    if_layer(0)
    p.wait_vm('pub')
    p.wait_vm('ct')
    arrive(sArr, 8)
    p.end()
    if_layer(1)
    p.wait_vm('x2')
    p.wait_vm('ct')
    arrive_group(sS2, 32)
    p.end()
else:
    p.wait_vm('pub')
    p.wait_vm('ct')
    arrive(sArr, 8)
poison(5, 96)
code_prefetch(1, 'L_k2')
stamp('arr1')
FA, TW, FB, VR, D2, UP, XRES, Y = 40, 64, 80, 96, 160, 192, 224, 208
for k in range(14):
    p(f'ds_read_b128 {v(FA + 4 * k, 4)}, {v(vL16hi)} offset:{CT - 65536 + k * 1024}')
if_layer(0)
wsp_run(SCHED[3])
if_wave0()
retry_until(a2a_load, lambda: p(f'v_cmp_ne_u32 vcc, 16, {v(241)}'))
p.end()
assert OPT['vs']
p(f's_and_b32 {s(99)}, {s(sSelLo)}, 2')
p(f's_lshl_b32 {s(99)}, {s(99)}, 9')
p(f'v_add_u32 {v(vZ[0])}, {s(99)}, {v(vL16)}')
p(f'v_xor_b32 {v(vZ[1])}, 0x400, {v(vZ[0])}')
p(f's_add_u32 {s(94)}, {s(99)}, {s(sDm)}')
p(f's_xor_b32 {s(95)}, {s(94)}, 0x400')
p('s_barrier')
p.end()
for k in range(4):
    p(f's_add_u32 {s(sT + 4 + k)}, {s(sVld)}, {(16 * (k >> 1) + 2 * (k & 1)) * 2048:#x}')
if_layer(1)
emit(wz2[P2:P3])
x2_load = [(f'buffer_load_dword {v(248)}, {v(vGrp)}, {s(R_WS, 4)}, {s(sS2)} offen offset:32{PG}', None)]
if OPT['vs']:
    emit([x2_load])
else:
    poll(sRep, vPoll, 16)
p.end()
assert not SCHED[8:]


def l0_dma(n):
    emit([wz2_both.pop(0) for _ in range(CMN.pop(0))])


stamp('S1')
p('L_k2:')
vl = [(f'buffer_load_dwordx4 {v(VR + 16 * gk + 4 * ii, 4)}, {v(vVld)}, {s(R_WL, 4)}, {s(sT + 4 + 2 * (gk & 1) + (ii >> 1))} '
       f'offen offset:{(ii & 1) * 2048 + (gk >> 1) * 256} sc1', None) for gk in range(4) for ii in range(4)]
for gk in range(4):
    emit([vl[4 * gk:4 * gk + 4]])
    if gk < 3 and SCHED[4 + gk]:
        if_layer(0)
        wsp_run(SCHED[4 + gk])
        p.end()
if OPT['vs']:
    if_layer(1)
    retry_until(x2_load, lambda: p(f'v_cmp_ne_u32 vcc, 1, {v(248)}'))
    p.end()
xl = [(f'buffer_load_dwordx4 {v(XRES + 4 * k, 4)}, {v(vXr)}, {s(R_X, 4)}, {s((sXb, sXo)[k])} offen{LG}', None) for k in range(2)]
emit([xl])
if_layer(0)
p(f'buffer_load_dword {v(248)}, {v(vGrp)}, {s(R_WS, 4)}, {s(sS2)} offen offset:128 sc1')
w_load = [(f'buffer_load_dword {v(249)}, off, {s(R_WS, 4)}, {s(sP4)} offset:256 sc1', None)]
if OPT['dp']:
    emit([w_load])
wsp_run(SCHED[7])
if not SCHED[8:]:
    p('s_waitcnt lgkmcnt(0)')
    p('s_barrier')
p.end()
l0_dma(0)
stamp('Vld')


def u_pack(hi):
    up = (192, 200)[hi]
    for r in range(4):
        for lp in range(2):
            p(f'v_cvt_pk_bf16_f32 {v(up + 2 * r + lp)}, {v(D2 + 16 * hi + 8 * lp + r)}, {v(D2 + 16 * hi + 8 * lp + 4 + r)}')
        if r & 1:
            p(f'ds_write_b128 {v(vUw)}, {v(up + 2 * r - 2, 4)} offset:{128 * hi + 8 * (r - 1)}')


for hi in range(2):
    for ks in range(2):
        if hi and ks:
            u_pack(0)
        r = VR + 32 * hi + 16 * ks
        if OPT['vs']:
            def v_test(r=r):
                p(f'v_max3_u32 {v(T)}, {v(r + 3)}, {v(r + 7)}, {v(r + 11)}')
                p(f'v_max_u32 {v(T)}, {v(T)}, {v(r + 15)}')
                p(f'v_cmp_eq_u32 vcc, -1, {v(T)}')
            gk = 2 * hi + ks
            if OPT['vs'] == 1:
                retry_until(vl[4 * gk:], v_test)
            else:
                retry_until(vl[4 * gk:4 * gk + 4], v_test, after=vl[4 * gk + 4:] + xl if gk < 3 else None)
        for i in range(4):
            for j in range(i + 1, 4):
                p(f'v_swap_b32 {v(r + 4 * i + j)}, {v(r + 4 * j + i)}')
        for lo in range(4):
            d = D2 + 16 * hi + 4 * lo
            p(f'{M16} {v(d, 4)}, {v(r + 4 * lo, 4)}, {v(vC2 + 4 * ks, 4)}, {v(d, 4) if ks else 0}')
fine('st2')
if OPT['dp']:
    assert OPT['cmn'][0] == '0'
    if_layer(0)
    retry_until(w_load, lambda: p(f'v_cmp_ne_u32 vcc, 32, {v(249)}'))
    p.end()
l0_dma(4)
u_pack(1)
for k in range(2):
    p(f'ds_write_b128 {v(vXw + k)}, {v(XRES + 4 * k, 4)} offset:16640')
p('s_waitcnt lgkmcnt(0)')
p('s_barrier')
fine('ubar')
poison(4, 176)
UA, DR, DI, TT, PF = 96, 112, 128, 144, 160
for ri in range(2):
    for dh in range(2):
        for half in range(2):
            p(f'ds_read_b64_tr_b16 {v(UA + 8 * ri + 4 * dh + 2 * half, 2)}, {v(vUr)} offset:{ri * 8320 + dh * 512 + half * 128}')
for o in range(2):
    p(f'ds_read_b128 {v(XRES + 4 * o, 4)}, {v(vTw)} offset:{16640 + 4608 * o}')
l0_dma(4)
for ri in range(2):
    for dh in range(2):
        first = ri == 0 and dh == 0
        fr = FA + 4 * ((2 if ri else 0) + dh)
        fi = FA + 4 * ((0 if ri else 4) + dh)
        p(f'{M32} {v(DR, 16)}, {v(UA + 8 * ri + 4 * dh, 4)}, {v(fr, 4)}, {0 if first else v(DR, 16)}')
        p(f'{M32} {v(DI, 16)}, {v(UA + 8 * ri + 4 * dh, 4)}, {v(fi, 4)}, {0 if first else v(DI, 16)}')
fine('stA')
unpack(XRES, 8, Y)
fine('xres')
l0_dma(4)
for row in range(2):
    for k in range(0, 8, 2):
        r = 8 * row + k
        p(f'v_pk_mul_f32 {v(TT + k, 2)}, {v(DI + r, 2)}, {v(TW + 8 + k, 2)}')
        p(f'v_pk_mul_f32 {v(TT + 8 + k, 2)}, {v(DR + r, 2)}, {v(TW + 8 + k, 2)}')
    for k in range(0, 8, 2):
        r = 8 * row + k
        p(f'v_pk_fma_f32 {v(TT + k, 2)}, {v(DR + r, 2)}, {v(TW + k, 2)}, {v(TT + k, 2)}')
        p(f'v_pk_fma_f32 {v(TT + 8 + k, 2)}, {v(DI + r, 2)}, {v(TW + k, 2)}, {v(TT + 8 + k, 2)} neg_lo:[0,0,1] neg_hi:[0,0,1]')
    for k in range(8):
        p(f'v_cvt_pk_bf16_f32 {v(PF + 8 * row + k)}, {v(TT + 2 * k)}, {v(TT + 2 * k + 1)}')
for k in range(4):
    p(f'{M32} {v(Y, 16)}, {v(PF + 4 * k, 4)}, {v(FB + 4 * k, 4)}, {v(Y, 16)}')
fine('stB')
XO, HO = 224, 232
l0_dma(4)
if_layer(0)
p(f'v_cmp_ne_u32 vcc, {s(sLoc)}, {v(248)}')
p('s_cmp_eq_u64 vcc, 0')
p(f's_cselect_b32 {s(sLoc)}, {OPT["loc"]}, 0')
p(f's_mov_b32 {s(sLocU)}, {s(sLoc)}')
p.end()
local_stats(Y, 16, T)
p(f'v_permlane32_swap_b32 {v(T)}, {v(T + 1)}')
p(f'v_add_f32 {v(T)}, {v(T)}, {v(T + 1)}')
for k, sh in enumerate((8, 4, 2, 1)):
    p(f'v_cvt_pk_bf16_f32 {v(XO + 2 * k)}, {v(Y + 4 * k)}, {v(Y + 4 * k + 1)}')
    p(f'v_cvt_pk_bf16_f32 {v(XO + 2 * k + 1)}, {v(Y + 4 * k + 2)}, {v(Y + 4 * k + 3)}')
    p(f'v_add_f32_dpp {v(T)}, {v(T)}, {v(T)} row_ror:{sh} row_mask:0xf bank_mask:0xf')
p(f'v_mov_b32 {v(T + 1)}, {v(T)}')
p(f's_add_u32 {s(sT)}, {s(sK2)}, {X1_:#x}')
p(f's_add_u32 {s(sT + 1)}, {s(sK2)}, {H_:#x}')
p(f'v_permlane32_swap_b32 {v(T)}, {v(T + 1)}')
finish_stats(T, 512)
norm_pack(Y, 16, T, Y, HO)
fine('norm')
for o in range(2):
    p(f'ds_write_b128 {v(vTw)}, {v(HO + 4 * o, 4)} offset:{16640 + 4608 * o}')
p('s_waitcnt lgkmcnt(0)')
p('s_barrier')
for k in range(2):
    p(f'ds_read_b128 {v(HO + 4 * k, 4)}, {v(vTr)} offset:{16640 + 576 * k}')
for o in range(2):
    p(f'ds_write_b128 {v(vTw)}, {v(XO + 4 * o, 4)} offset:{4608 * o}')
gstore([f'buffer_store_dwordx4 {v(HO + 4 * k, 4)}, {v(vK2)}, {s(R_WL, 4)}, {s(sT + 1)} offen offset:{2048 * k}' for k in range(2)], 'pub', OPT['locd'] & 1, None if OPT['hx'] else sLocH)
l0_dma(6)
HF, Z2, Z1, WR, WD, GT = 40, 104, 136, 164, 12, 232
for k in range(4):
    p(f's_add_u32 {s(sT + 4 + k)}, {s(sH)}, {H_ + 4096 * k:#x}')
wsp_fix(FIX[0], 104, wz2[:OPT['l0a']])
stamp('K2')
p('s_waitcnt lgkmcnt(0)')
if OPT['wf2']:
    p('s_barrier')
    for k in range(2):
        p(f'ds_read_b128 {v(XO + 4 * k, 4)}, {v(vTr)} offset:{576 * k}')
    p(f'v_mov_b32 {v(T)}, 1')
    p.wait_vm('pub')
    p('s_mov_b64 exec, 1')
    gstore([f'buffer_store_dword {v(T)}, off, {s(R_WS, 4)}, {s(sF2s)}'])
    p('s_mov_b64 exec, -1')
else:
    p.wait_vm('pub')
    arrive_group(sS2)
    for k in range(2):
        p(f'ds_read_b128 {v(XO + 4 * k, 4)}, {v(vTr)} offset:{576 * k}')
wsp_fix(FIX[1], 104, wz2[OPT['l0a']:])
stamp('arr2')
p('s_waitcnt lgkmcnt(0)')
for k in range(7):
    p.wait_vm(f'wz2{k}')
if OPT['wf2']:
    p('s_barrier')
    top, done = p.label('poll'), p.label('pdone')
    p(f'{top}:')
    p(f'buffer_load_dword {v(T)}, {v(vGrp)}, {s(R_WS, 4)}, {s(sF2l)} offen{PG}')
    p('s_waitcnt vmcnt(0)')
    p(f'v_cmp_ne_u32 vcc, 1, {v(T)}')
    spin_tail(top, done)
else:
    poll(sS2, vGrp, 1)
stamp('S2')
p('L_k3:')
hl = [[(f'buffer_load_dwordx4 {v(HF + 4 * ks, 4)}, {v(vL16)}, {s(R_WL, 4)}, {s(sT + 4 + (ks >> 2))} offen offset:{1024 * (ks & 3)}{LG}', None)]
      for ks in range(16)]
xs = [(lambda k: lambda: gstore([f'buffer_store_dwordx4 {v(XO + 4 * k, 4)}, {v(vK2)}, {s(R_WL, 4)}, {s(sT)} offen offset:{2048 * k}'],
                              'x1', OPT['ip'] & 4, sLocH))(k) for k in range(2)]
wz1 = w_dma_ops(sWI, 0, LOC_Z1, 'wz1')
emit(hl[:OPT['pre3']])
SEL, ZP, ZT, ZO = 212, 228, 164, 104
p(f'v_and_b32 {v(SEL)}, 0xf0, {v(vL16)}')
p(f'v_lshrrev_b32 {v(SEL + 1)}, 2, {v(vL16)}')
p(f'v_and_b32 {v(SEL + 1)}, 0xc0, {v(SEL + 1)}')
p(f'v_sub_u32 {v(SEL)}, {v(SEL)}, {v(SEL + 1)}')
p(f'v_mov_b32 {v(SEL + 4)}, 0x3f80')
p(f'v_lshlrev_b32 {v(SEL + 4)}, {v(SEL)}, {v(SEL + 4)}')
p(f'v_lshrrev_b32 {v(SEL + 1)}, 5, {v(SEL)}')
p(f'v_cmp_eq_u32 vcc, 0, {v(SEL + 1)}')
p(f'v_cndmask_b32 {v(SEL + 2)}, 0, {v(SEL + 4)}, vcc')
p(f'v_cmp_eq_u32 vcc, 1, {v(SEL + 1)}')
p(f'v_cndmask_b32 {v(SEL + 3)}, 0, {v(SEL + 4)}, vcc')
for k in (0, 1, 4, 5):
    p(f'v_mov_b32 {v(SEL + k)}, 0')
p(f'v_mov_b32 {v(ZP + 14)}, 0')
p(f'v_mov_b32 {v(ZP + 15)}, 0')
wsp_fix(FIX[2], 104)
n_h = 16 - OPT['pre3']
fill = spread(hl[OPT['pre3']:], 1, OPT['hsp'])
fill.update(spread(xs + wz1[:12], OPT['hsp'] * n_h + 1, OPT['z2sp']))
fill[max(fill) + 3] = lambda: poison(1, 132)
gemm_r(Z2, 7, 0, 16, HF, WR, WD, LOC_Z2, fill=fill)
p.wait_vm('x1')
p('s_barrier')
stamp('z2mm')
p.bg = wz1[12:]
p.bg_emit(2)
p.bg_on(OPT['g2ev'])
gelu(Z2, 28, GT)
local_stats(Z2, 28, T)
p.bg_on(0)
reduce_g(T, T + 1)
publish_stats(0)
stamp('pub3')
Z1A = OPT['z1a']
p.bg_emit(None if Z1A else OPT['gb'])
p(f's_mov_b32 {s(sT + 2)}, {s(sZld)}')
for k in range(2):
    p(f'v_add_u32 {v(246 + k)}, {s(94 + k)}, {v(vL16)}')
OW, OR, OG = 248, 249, 253
p(f's_add_u32 {s(sT + 1)}, {s(sUst)}, 8192')
p(f's_lshl_b32 {s(sT + 3)}, {s(sB)}, 10')
p(f's_add_u32 {s(sT + 3)}, {s(sT + 3)}, {s(sH)}')
p(f's_add_u32 {s(sT + 12)}, {s(sT + 3)}, {X1_:#x}')
p(f's_add_u32 {s(sT + 13)}, {s(sT + 3)}, {X1_ + 8192:#x}')
for k in range(4):
    p(f's_add_u32 {s(sT + 4 + k)}, {s(sUld)}, {4096 * k}')
    p(f's_add_u32 {s(sT + 8 + k)}, {s(sH)}, {X1_ + 4096 * k:#x}')
p(f'v_and_b32 {v(133)}, 0xf0, {v(vL16)}')
p(f'v_mul_u32_u24 {v(133)}, 9, {v(133)}')
p(f'v_lshrrev_b32 {v(134)}, 8, {v(vL16)}')
p(f'v_lshl_add_u32 {v(133)}, {v(134)}, 5, {v(133)}')
p(f's_mul_i32 {s(99)}, {s(sW)}, 2304')
p(f's_add_u32 {s(99)}, {s(99)}, {CT if OPT["pr"] else SCR + 12288}')
p(f'v_add_u32 {v(OW)}, {s(99)}, {v(133)}')
p(f'v_lshrrev_b32 {v(133)}, 7, {v(vL16)}')
p(f'v_lshl_add_u32 {v(134)}, {v(133)}, 4, {v(vL16)}')
p(f'v_add_u32 {v(OR)}, {s(99)}, {v(134)}')
p(f'v_and_b32 {v(134)}, 0x70, {v(vL16)}')
p(f'v_lshl_add_u32 {v(OG)}, {v(133)}, 16, {v(134)}')
p(f's_lshl_b32 {s(99)}, {s(sW)}, 9')
p(f's_add_u32 {s(99)}, {s(99)}, {s(sC)}')
p(f's_lshl_b32 {s(99)}, {s(99)}, 10')
p(f's_add_u32 {s(sT + 14)}, {s(99)}, {s(sB128)}')
p(f's_add_u32 {s(sT + 15)}, {s(sT + 14)}, 0x8000')
wo = w_dma_ops(sWO, 0, LOC_WO, 'wo')
if Z1A:
    p.wait_vm('wz12')
    p('s_barrier')
    fill = {OPT['gpos']: gather_loads(0)}
    fill.update(spread(wo[:OPT['woa']], OPT['gpos'] + 2, 2))
    gemm_r(Z1, 7, 0, Z1A, HF, WR, WD, LOC_Z1, fill=fill)
else:
    emit([gather_loads(0)])
    p.bg_emit()
    emit(wo[:OPT['woa']])
stamp('z1a')
gather_finish(0)
stamp('S3')
poison(2, 132)
finish_stats(T, 896)
for i in range(0, 28, 2):
    p(f'v_pk_fma_f32 {v(Z2 + i, 2)}, {v(Z2 + i, 2)}, {v(T, 2)}, {v(T, 2)} op_sel:[0,0,1] op_sel_hi:[1,0,1]')
ZO = 192
for pr in range(6):
    if pr < 4:
        tiles = [ft for ft in (2 * pr, 2 * pr + 1) if ft < 7]
        for ft in tiles:
            for k in range(2):
                p(f'v_cvt_pk_bf16_f32 {v(ZP + 2 * ft + k)}, {v(Z2 + 4 * ft + 2 * k)}, {v(Z2 + 4 * ft + 2 * k + 1)}')
    if 2 <= pr:
        q = pr - 2
        for ft in (2 * q, 2 * q + 1):
            for k in range(2 if ft < 7 else 0):
                p(f'v_cvt_pk_bf16_f32 {v(ZO + 2 * ft + k)}, {v(ZT + 4 * ft + 2 * k)}, {v(ZT + 4 * ft + 2 * k + 1)}')
        p(f's_add_u32 {s(sT)}, {s(sZst)}, {q * 32768:#x}')
    if pr < 4:
        for ft in tiles:
            p(f'{M16} {v(ZT + 4 * ft, 4)}, {v(ZP + 4 * pr, 4)}, {v(SEL + (0 if ft & 1 else 2), 4)}, 0')
    if 2 <= pr:
        for k in range(2):
            p(f'v_permlane16_swap_b32 {v(ZO + 4 * q + k)}, {v(ZO + 4 * q + 2 + k)}')
        if q == 3:
            p('s_mov_b32 exec_lo, 0xffff')
            p('s_mov_b32 exec_hi, 0xffff')
        p(f'buffer_store_dwordx4 {v(ZO + 4 * q, 4)}, {v(vZst)}, {s(R_WL, 4)}, {s(sT)} offen sc1', tag='pub')
p('s_mov_b64 exec, -1')
stamp('Zst')
poison(3, 132)
p.wait_vm('wz16')
p('s_barrier')
Z1B = min(16, Z1A + OPT['z1arr'])
wreg = lambda k: 104 + 4 * k if k < 8 else 212 + 4 * (k - 8)
wst = []
for k in range(16):
    g = [(f's_add_u32 {s(sDo)}, {s(sWO)}, {16384 * (3 + (k >> 2)):#x}', None)] if k % 4 == 0 else []
    if not OPT['nobg'] & 1:
        g.append((f'buffer_load_dwordx4 {v(wreg(k), 4)}, {v(vZ[k & 1])}, {s(R_WS, 4)}, {s(sDo)} offen offset:{1024 * (k & 2)}{WSC}', None))
    wst.append(g)
bgw = wo[OPT['woa']:12] + wst
wo = []
ZD, AC, RT, UO = OPT['zd'], 196, 228, 240


def zreg(fi):
    k = fi % ZD
    return 56 + 4 * k


def zload(fi):
    if fi % 4 == 0 and fi:
        p(f's_add_u32 {s(sT + 2)}, {s(sT + 2)}, 4096')
    if OPT['k4load'] or fi < ZD:
        p(f'buffer_load_dwordx4 {v(zreg(fi), 4)}, {v(vZ[fi & 1])}, {s(R_WL, 4)}, {s(sT + 2)} offen offset:{(fi & 2) * 1024}' + ' sc1', tag=f'z{fi}')


nin = min(len(bgw), (112 - 7 * Z1A - 1) // OPT['wosp'])
fill = spread(bgw[:nin], 7 * Z1A + 1, OPT['wosp'])
nz = 0
if OPT['zs'] and OPT['zin'] and nin == len(bgw):
    pos = max(max(fill) + OPT['wosp'], OPT['zin'])
    while nz < ZD and max(pos, 7 * (nz + 5) - 1) < 112:
        pos = max(pos, 7 * (nz + 5) - 1)
        fill[pos] = (lambda k: lambda: zload(k))(nz)
        pos += OPT['zsp']
        nz += 1
gemm_r(Z1, 7, Z1A, Z1B, HF, WR, WD, LOC_Z1, last=112, fill={k: g for k, g in fill.items() if k < 7 * Z1B})
p.wait_vm('pub')
arrive(sS4, 8)
code_prefetch(4, 'L_k4')
stamp('arr4')
if Z1B < 16:
    gemm_r(Z1, 7, Z1B, 16, HF, WR, WD, LOC_Z1, preload=False, fill={k: g for k, g in fill.items() if k >= 7 * Z1B})
p.bg = bgw[nin:]
if nz:
    for fi in range(nz, ZD):
        zload(fi)
    nz = ZD
if OPT['g1w']:
    p.bg_on(8)
    gelu(Z1, 4 * OPT['g1w'], 164)
    p.bg_on(0)
p.bg_emit()
wsp_fix(FIX[3], 164)
B4 = 188
p(f'v_mov_b32 {v(T + 4)}, 1')
p(f's_add_u32 {s(96)}, {s(sS5)}, {s(sB4)}')
if OPT['bc']:
    for k in range(4):
        p(f'v_mov_b32 {v(B4 + k)}, {v(vBsp)}')
stamp('win4')
if OPT['zs']:
    if Z1B < 16:
        p('s_barrier')
else:
    poll(sP4, None, 32)
stamp('S4')
p('L_k4:')
def acc0(ft):
    return (196, 212, 192)[ft % 3] if OPT['pr'] else AC + 16 * (ft & 1)


def k4_epilogue(ft):
    ac, buf = AC + 16 * (ft & 1), 12288 * (ft & (3 if OPT['pr'] else 1))
    RT = 164 if OPT['pr'] and ft in (0, 2, 4) else 228
    st1 = [f'ds_write_b128 {v(vRed + q - 1)}, {v(ac + 4 * q, 4)} offset:{buf}' for q in (1, 2, 3)]
    ac = acc0(ft)
    st1 += [f'v_add_f32 {v(ac + r)}, {v(vBsp)}, {v(ac + r)}' for r in range(0 if OPT['bc'] else 4)]
    st2 = ['s_waitcnt lgkmcnt(0)', 's_barrier']
    st2 += [f'ds_read_b128 {v(RT + 4 * q, 4)}, {v(vRed + 3)} offset:{buf + 1024 * q}' for q in range(3)]
    st3 = [f'v_add_f32 {v(ac + r)}, {v(RT + 4 * q + r)}, {v(ac + r)}' for q in range(3) for r in range(4)]
    st3 += [f'v_mul_f32 {v(ac + r)}, {v(Z1 + 4 * ft + r)}, {v(ac + r)}' for r in range(4)]
    st3 += [f'v_cvt_pk_bf16_f32 {v(UO + 2 * (ft & 1) + k)}, {v(ac + 2 * k)}, {v(ac + 2 * k + 1)}' for k in range(2)]
    if ft == 6:
        st3 += [f'buffer_store_dwordx2 {v(UO, 2)}, {v(vL8)}, {s(R_WL, 4)}, {s(sT + 13)} offen']
    elif ft == 5:
        st3 += [f'buffer_store_dwordx4 {v(UO, 4)}, {v(vL16)}, {s(R_WL, 4)}, {s(sT + 12)} offen']
    elif ft & 1:
        st3 += [f'buffer_store_dwordx4 {v(UO, 4)}, {v(vL16)}, {s(R_WL, 4)}, {s(sT + 1 if ft == 3 else sUst)} offen offset:0']
    return st1, st2, st3


def k4_emit(x):
    if x.startswith('buffer_store'):
        late = x.endswith('offen')
        if late:
            p.wait_vm('x1l')
        gstore([x], 'u6' if 'dwordx2' in x else 'pub', OPT['locd'] & (2 if late else 4), sLocU if OPT['locd'] & (8 if late else 16) else None)
    else:
        p(x)


def gelu_ops(x, t):
    ops = [f'v_mul_f32 {v(t + k)}, {v(x + k)}, {v(x + k)}' for k in range(4)]
    ops += [f'v_fma_f32 {v(t + k)}, {v(t + k)}, {v(vGK)}, {v(vGK + 1)}' for k in range(4)]
    ops += [f'v_mul_f32 {v(t + k)}, {v(t + k)}, {v(x + k)}' for k in range(4)]
    ops += [f'v_exp_f32 {v(t + k)}, {v(t + k)}' for k in range(4)]
    ops += [f'v_add_f32 {v(t + k)}, 1.0, {v(t + k)}' for k in range(4)]
    ops += [f'v_rcp_f32 {v(t + k)}, {v(t + k)}' for k in range(4)]
    ops += [f'v_mul_f32 {v(x + k)}, {v(t + k)}, {v(x + k)}' for k in range(4)]
    return ops


WR5, X1R, XP, FL, X1L = 56, 232, 104, 244, 136
assert ZD == WD


def ureg(ks):
    return (104, 120, 164, 180, 212, 196, 136)[ks >> 2] + 4 * (ks & 3)


ul = [[(f'buffer_load_dwordx4 {v(ureg(ks), 4)}, {v(vL16)}, {s(R_WL, 4)}, {s(sT + 4 + (ks >> 2))} offen offset:{1024 * (ks & 3)}{LG}', None)]
      for ks in range(24)]
ul += [[(f'buffer_load_dwordx2 {v(ureg(24 + i) + 2 * k, 2)}, {v(vL8)}, {s(R_WL, 4)}, {s(sT + 10 + (i >> 1))} offen offset:{1024 * (2 * (i & 1) + k)}{LG}', None)
        for k in range(2)] for i in range(4)]


def flag_store(off):
    if OPT['fx']:
        p('s_mov_b64 exec, 1')
        gstore([f'buffer_store_dword {v(T + 4)}, off, {s(R_WS, 4)}, {s(96)} offset:{off}'])
        p('s_mov_b64 exec, -1')
        return
    p(f'v_mov_b32 {v(FL + 1)}, 1')
    p(f's_add_u32 {s(99)}, {s(sS5)}, {s(sB4)}')
    p('s_mov_b64 exec, 1')
    gstore([f'buffer_store_dword {v(FL + 1)}, off, {s(R_WS, 4)}, {s(99)} offset:{off}'])
    p('s_mov_b64 exec, -1')


def flag_load(off):
    return [(f'buffer_load_dword {v(FL)}, {v(vGrp)}, {s(R_WS, 4)}, {s(sS5)} offen offset:{off}{PG}', None)]


def z_check(fi):
    loads = [(f's_add_u32 {s(99)}, {s(sZld)}, {1024 * fi:#x}', None)]
    loads += [(f'buffer_load_dwordx4 {v(zreg(fi + k), 4)}, {v(vZ[k])}, {s(R_WL, 4)}, {s(99)} offen sc1', None) for k in range(2)]
    return loads, lambda: p(f'v_cmp_u_f32 vcc, {v(zreg(fi) + 3)}, {v(zreg(fi + 1) + 3)}')


s4_load = [(f'buffer_load_dword {v(FL)}, off, {s(R_WS, 4)}, {s(sP4)} sc1', None)]


def flag_check(off):
    retry_until(flag_load(off), lambda: p(f'v_cmp_ne_u32 vcc, 1, {v(FL)}'))


for fi in range(nz, ZD):
    zload(fi)
assert not FIX[4]
x1l = [(f'buffer_load_dwordx4 {v(X1L + 4 * o, 4)}, {v(vL16)}, {s(R_WL, 4)}, {s(sT + 12 + o)} offen{LG}', 'x1l') for o in range(2)]
tail = ul[:16]
ROT = 112 % ZD
for ft in range(7):
    fill = {}
    if ft and OPT['k4epi']:
        st1, st2, st3 = k4_epilogue(ft - 1)
        pos = OPT['e1']
        for x in st1:
            fill.setdefault(pos, []).append(x)
            pos += OPT['ews'] if x[0] == 'd' else 1
        if OPT['pr'] == 2 and ft >= 5:
            pass
        elif OPT['pr'] and ft & 1:
            st2, st3 = [], []
        elif OPT['pr']:
            _, p2, p3 = k4_epilogue(ft - 2)
            st2 = p2 + st2[2:]
            st3, slots = p3 + st3, [k for k in range(OPT['e3'], 64) for _ in range(1 if k % 4 == 3 else 2)]
            for k, x in zip(slots, st3):
                fill.setdefault(k, []).append(x)
            st3 = []
        pos = OPT['e2'] - (OPT['el'] if ft == 6 else 0)
        for x in st2:
            fill.setdefault(pos, []).append(x)
            pos += 1
        pos = OPT['e3'] - (OPT['el'] if ft == 6 else 0)
        for x in st3:
            fill.setdefault(pos, []).append(x)
            pos += 1
    if ft == 0:
        for k in range(16):
            fill[4 * k + 1] = [f'ds_write_b128 {v(246 + ((15 - k) & 1))}, {v(wreg(15 - k), 4)} offset:{16384 * ((15 - k) >> 2) + 1024 * ((15 - k) & 2)}']
    if ft == OPT['upk']:
        free = [k for k in range(64) if k % 4 != 3][-16:]
        for i in range(8):
            fill.setdefault(free[2 * i], []).append(f'v_lshlrev_b32 {v(XV + 2 * i)}, 16, {v(X1L + i)}')
            fill.setdefault(free[2 * i + 1], []).append(f'v_and_b32 {v(XV + 2 * i + 1)}, 0xffff0000, {v(X1L + i)}')
    if OPT['pr']:
        gops = [x for ch in OPT['gmap'].split('/')[ft] for x in gelu_ops(Z1 + 4 * int(ch), T)]
    else:
        gops = gelu_ops(Z1 + 4 * (ft + OPT['gsh']), T) if OPT['g1w'] <= ft + OPT['gsh'] < 7 else []
    free = [k for k in range(64) if k not in fill] + [k for k in range(64) if len(fill.get(k, [])) == 1 and fill[k][0][0] == 'v' and k % 4 != 3]
    assert len(free) >= len(gops)
    for k, x in zip(sorted(free[:len(gops)]), gops):
        fill.setdefault(k, []).append(x)
    for a2 in range(16):
        fi = ft * 16 + a2
        chk = OPT['zs'] and fi & 1 and fi < 31
        if fi % OPT['zw'] == 0:
            p.wait_vm(f'z{min(fi + OPT["zw"] - 1, 111)}')
        if OPT['zs'] and fi == 0:
            retry_until(*z_check(0))
        for q in range(4):
            d = AC + 16 * (ft & 1) + 4 * q if q else acc0(ft)
            if chk and q == 3:
                z_check(fi + 1)[1]()
            if OPT['k4mfma'] or q == 0:
                p(f'{M16} {v(d, 4)}, {v(zreg(fi), 4)}, {a((q * 16 + a2) * 4, 4)}, {v(d, 4) if a2 else (v(B4, 4) if OPT["bc"] and q == 0 else 0)}')
            for x in fill.get(4 * a2 + q, []):
                k4_emit(x)
        if chk:
            retry_until(*z_check(fi + 1), tested=True)
        if OPT['zs'] and fi == OPT['q4']:
            emit([s4_load])
        if OPT['zs'] and fi + ZD == 32:
            retry_until(s4_load, lambda: p(f'v_cmp_ne_u32 vcc, 32, {v(FL)}'))
        if fi + ZD < 112:
            zload(fi + ZD)
        elif len(tail) > 16 - OPT['ntail']:
            if len(tail) == 8:
                flag_check(0)
            emit([tail.pop(0)])
        if fi + ZD >= 112:
            wring_read(fi + ZD - 112, WR5, WD, LOC_WO, ROT)
        if fi == OPT['mf']:
            p.wait_vm('pub')
            flag_store(32)
        if (OPT['fine'] == 3 and (a2 == 15 or fi == 0) or OPT['jit'] and a2 % 8 == 5) and fi < 111:
            stamp(f'i{fi}')
        if fi == 56:
            p.wait_vm('pub')
            flag_store(96)
        if fi == 70:
            emit([flag_load(96)])
        if fi == 84:
            flag_check(96)
        if fi == OPT['f5a']:
            p.wait_vm('pub')
            flag_store(0)
        if fi == 64:
            code_prefetch(8, 'L_k5')
        if fi == 80:
            p('L_k5:')
        if fi == OPT['x1pos']:
            emit([x1l])
        if fi == OPT['l5a']:
            emit([flag_load(0)])
stamp('K4')


def chain(*fs):
    def run():
        for f in fs:
            f()
    return run


def line(x, tag=None):
    return lambda: p(x, tag=tag)


def flag_after(tag, off):
    p.wait_vm(tag)
    flag_store(off)


def next_m1():
    if_layer(0)
    m1_load(228)
    w_touch(WT[0], 152)
    p.end()


fill = {}


def put(pos, f):
    fill[pos] = chain(fill[pos], f) if pos in fill else f


st1, st2, st3 = k4_epilogue(6)
for k, x in enumerate(st1):
    put(OPT['k1'] + min(k, 3 + (k - 3) // 2), line(x, 'red' if k < 3 else None))
put(OPT['k2'], chain(lambda: p.wait_lgkm('red'), *[line(x) for x in st2[1:]]))
for k, x in enumerate(st3):
    put(OPT['k3'] + k // OPT['kst'], (lambda y: lambda: k4_emit(y))(x))
kend = OPT['k3'] + len(st3) // OPT['kst']
assert len(tail) < 8
for k, g in enumerate(tail):
    put(OPT['tp0'] + OPT['tps'] * k, (lambda y: lambda: emit([y]))(g))
if OPT['mf'] > 111:
    put(OPT['mf'] - 112, lambda: flag_after('pub', 32))
put(OPT['mb'], lambda: emit([flag_load(32)]))
put(OPT['mc'], lambda: (flag_check(32), fine('ck5m')))
for k in range(4):
    put(OPT['mc'] + OPT['ms'] * k, (lambda y: lambda: emit([y]))(ul[16 + k]))
for k in range(4):
    put(max(OPT['mc'] + 3 * OPT['ms'], kend) + max(2, OPT['ms']) * (k + 1), (lambda y: lambda: emit([y]))(ul[20 + k]))
put(OPT['fa'], lambda: (flag_after('u6', 64), fine('fl5b')))
put(OPT['fb'], lambda: emit([flag_load(64)]))
put(OPT['fc'], lambda: (flag_check(64), fine('ck5b'), emit(ul[24:])))
put(max(OPT['fc'] + 4, 64), next_m1)
gemm_r(XV, 4, 0, 28, ureg, WR5, WD, LOC_WO, first_c=True, fill=fill, preload=False, rot=ROT)


def x_pack():
    for k in range(8):
        p(f'v_cvt_pk_bf16_f32 {v(XP + k)}, {v(XV + 2 * k)}, {v(XV + 2 * k + 1)}')


stamp('K5')
if_layer(1)
x_pack()
for o in range(2):
    p(f'ds_write_b128 {v(OW)}, {v(XP + 4 * o, 4)} offset:{16 * o}')
for k in range(2):
    p(f'ds_read_b128 {v(X1R + 4 * k, 4)}, {v(OR)} offset:{1152 * k}')
for k in range(2):
    p(f'buffer_store_dwordx4 {v(X1R + 4 * k, 4)}, {v(OG)}, {s(R_OUT, 4)}, {s(sT + 14 + k)} offen' + ('', ' sc1', ' nt', ' sc0 sc1', ' sc1 nt')[OPT['osc']])
if PROF:
    p('s_waitcnt vmcnt(0)')
    stamp('end')
    p(f's_lshl_b32 {s(sT)}, s2, 2')
    p(f's_add_u32 {s(sT)}, {s(sT)}, {s(sW)}')
    p(f's_lshl_b32 {s(sT)}, {s(sT)}, 8')
    p(f's_add_u32 {s(sT)}, {s(sT)}, {PROFO:#x}')
    p(f'v_lshrrev_b32 {v(T)}, 2, {v(vL16)}')
    p(f'buffer_store_dword {v(vProf)}, {v(T)}, {s(R_WS, 4)}, {s(sT)} offen')
if OPT['diag']:
    p('s_waitcnt vmcnt(0)')
    stamp('end')
    p(f's_sub_u32 s101, s101, {s(sPidx)}')
    p('s_min_u32 s101, s101, 20000')
    p('s_mul_i32 s101, s101, 10')
    p('s_add_u32 s101, s101, 10000')
    p('L_spin:')
    p(f's_memrealtime {s(sStamp, 2)}')
    p('s_waitcnt lgkmcnt(0)')
    p(f's_sub_u32 {s(sStamp)}, {s(sStamp)}, {s(sPidx)}')
    p(f's_cmp_lt_u32 {s(sStamp)}, s101')
    p('s_cbranch_scc1 L_spin')
p('L_exit:')
p('s_endpgm')
p.end()
local_stats(XV, 16, T)
reduce_g(T, T + 1)
publish_stats(0x40000)
p('s_barrier')
if OPT['ctp'] == 0:
    ct_dma(228)
emit(wz2[:OPT['wzp0']])
x_pack()
p(f's_mov_b32 {s(sL)}, 1')
p(f's_mov_b32 {s(sLocH)}, {s(sLoc)}')
p(f's_mov_b32 {s(sLocU)}, 0')
if OPT['ip']:
    for r in (sVst, sVld, sZst, sZld):
        p(f's_add_u32 {s(r)}, {s(r)}, {LSTRIDE:#x}')
else:
    p(f's_add_u32 {s(R_WL)}, {s(R_WL)}, {LSTRIDE:#x}')
    p(f's_addc_u32 {s(R_WL + 1)}, {s(R_WL + 1)}, 0')
    p(f's_mov_b32 {s(R_WL + 2)}, {LSTRIDE:#x}')
residual_from_ws()
p(f'v_mov_b32 {v(vHw)}, {v(vHw2)}')
p(f's_add_u32 {s(sSt)}, {s(sSt)}, 0x20000')
for r in (() if OPT['vs'] else (sArr, sRep)) + (sS2, sS4, sP4, sS5, sF2s, sF2l):
    p(f's_add_u32 {s(r)}, {s(r)}, 0x20000')
for o in range(2):
    p(f's_add_u32 {s(sT + 4 + o)}, {s(sT + 3)}, {H_ + 8192 * o:#x}')
emit([gather_loads(0x20000)])
gather_finish(0x20000)
gstore([f'buffer_store_dwordx4 {v(XP + 4 * o, 4)}, {v(vL16)}, {s(R_WL, 4)}, {s(sT + 4 + o)} offen' for o in range(2)], 'x2', OPT['ip'] & 2)
if OPT['ctp'] == 1:
    ct_dma(228)
emit(wz2[OPT['wzp0']:P1])
w_touch(WT[1], 152)
p('s_branch L_layer')

p.resolve([('pro', set()), ('body', {'L0'}), ('body', {'L1'})], ['W0', 'G0', 'LOC', 'RETRY'] + (['W1'] if OPT['tlb'] else []))

hdr = open('interleave_layers__spectral_fnet__mixer_gmlp__prompt.s.ref').read().split('\n')
out = [l for l in hdr if l.startswith(';') and '@launch' not in l][:14]
if PROF:
    k = STAMPS.index('T')
    out.append('; stamps: ' + ' '.join(STAMPS[:-1] + [x for x in STAMPS[k:] if x[0] != '*']))
out.append(f'; @launch grid=(256,1,1) block=(256,1,1) lds={LDS_BYTES}')
out += """;
; One persistent launch: 256 workgroups x 4 waves, one workgroup per CU, both layer pairs in a loop.
; Workgroup (c, b): row block c = rows s with s mod 32 == c (64 rows), column block b (112 of 896, 64 of 512).
; Per layer pair:
;   1. LayerNorm of the 64x64 tile, radix-64 stage of the sequence DFT              -> V   (all-to-all)
;   2. radix-32 stage, 32x16 hidden FFT (real part), residual, LayerNorm, 8 rows     -> h1  (row block)
;   3. z2 = gelu(h1 w_in), row statistics exchange, normalise; z1 stays in registers -> z2  (column block)
;   4. g = w_sp z2 + b_sp with the w_sp tile resident in AGPRs, u = z1 * g           -> u   (row block)
;   5. x2 = x1 + u w_out, row statistics exchange (or final store)
; The DFT factors are constants (table behind the code; per-workgroup factors from v_sin/v_cos).
; Hand-offs use write-through stores plus counters/flags cleared inside this launch, or slots pre-filled
; inside this launch with a not-ready pattern that the reader checks. Row-block hand-offs stay in L2 only
; after the eight workgroups have compared their XCC ids and found them equal; otherwise they write through.
; Every spin is bounded.""".split('\n')
out += ['.amdgcn_target "amdgcn-amd-amdhsa--gfx950"', '.text', f'.globl {NAME}', '.p2align 8', f'.type {NAME},@function']
out.append(p.text())
out.append('.p2align 8')
out.append('.type L_table,@object')
out.append('L_table:')
tab = const_table()
for i in range(0, tab.size, 8):
    out.append('.long ' + ','.join(f'{x:#x}' for x in tab[i:i + 8]))
out.append(f'.size L_table, {tab.size * 4}')
out.append('L_end:')
out += ['.section .rodata,"a"', '.p2align 6', f'.amdhsa_kernel {NAME}',
        '  .amdhsa_next_free_vgpr 512', '  .amdhsa_next_free_sgpr 102', '  .amdhsa_accum_offset 256',
        '  .amdhsa_group_segment_fixed_size 0', '  .amdhsa_kernarg_size 104', '  .amdhsa_user_sgpr_count 2',
        '  .amdhsa_user_sgpr_kernarg_segment_ptr 1', '  .amdhsa_system_sgpr_workgroup_id_x 1',
        '  .amdhsa_float_denorm_mode_32 3', '.end_amdhsa_kernel', '']
open(sys.argv[1], 'w').write('\n'.join(out))
print(p.stats(), file=sys.stderr)
```
